```python
import torch

def _softmax(x, axis=-1):
    return torch.softmax(x, dim=axis)
def _gelu(x):
    return torch.nn.functional.gelu(x, approximate="tanh")
def _silu(x):
    return torch.nn.functional.silu(x)
def _sigmoid(x):
    return torch.sigmoid(x)
def _layernorm(x, axis=-1, eps=1e-5):
    m = x.mean(dim=axis, keepdim=True)
    v = x.var(dim=axis, keepdim=True, unbiased=False)
    return (x - m) / torch.sqrt(v + eps)
def _scatter_add(tgt, idx, src, axis=0):
    return tgt.clone().index_add_(axis, idx, src)
def _segment_sum(src, seg, n):
    out = torch.zeros((n,) + src.shape[1:], dtype=src.dtype)
    return out.index_add_(0, seg, src)
def _pad(x, pw):
    flat = tuple(v for pair in reversed(pw) for v in pair)
    return torch.nn.functional.pad(x, flat)

kernel_name = 'concat_heads__gqa_block_cached__gqa_block_cached__near_ridge'

def setup_inputs():

    _w = (lambda a: (lambda t: t.to(torch.bfloat16) if t.is_floating_point() else t)(torch.as_tensor(a)))
    def _A_setup():
        B, Sq, D = 8, 112, 576
        Hq, Hkv, Sk, Dh = 32, 16, 512, 128
        assert Hq % Hkv == 0, (Hq, Hkv)
        return {
            "x": _w((lambda *s: torch.randn(*s, dtype=torch.bfloat16) * 0.8)(B, Sq, D)),
            "k_cache": _w((lambda *s: torch.randn(*s, dtype=torch.bfloat16) * 0.8)(B, Hkv, Sk, Dh)),
            "v_cache": _w((lambda *s: torch.randn(*s, dtype=torch.bfloat16) * 0.05)(B, Hkv, Sk, Dh)),
            "wq": _w((lambda *s: torch.randn(*s, dtype=torch.bfloat16) * 0.8)(D, Hq * Dh) * (D ** -0.5)),
            "wo": _w((lambda *s: torch.randn(*s, dtype=torch.bfloat16) * 0.05)(Hq * Dh, D) * ((Hq * Dh) ** -0.5)),
        }
    _A_in = _A_setup()

    def _B_setup():
        B, Sq, D = 8, 112, 576
        Hq, Hkv, Sk, Dh = 32, 16, 512, 128
        assert Hq % Hkv == 0, (Hq, Hkv)
        return {
            "x": _w((lambda *s: torch.randn(*s, dtype=torch.bfloat16) * 0.8)(B, Sq, D)),
            "k_cache": _w((lambda *s: torch.randn(*s, dtype=torch.bfloat16) * 0.8)(B, Hkv, Sk, Dh)),
            "v_cache": _w((lambda *s: torch.randn(*s, dtype=torch.bfloat16) * 0.05)(B, Hkv, Sk, Dh)),
            "wq": _w((lambda *s: torch.randn(*s, dtype=torch.bfloat16) * 0.8)(D, Hq * Dh) * (D ** -0.5)),
            "wo": _w((lambda *s: torch.randn(*s, dtype=torch.bfloat16) * 0.05)(Hq * Dh, D) * ((Hq * Dh) ** -0.5)),
        }
    _B_in = _B_setup()

    return {
        "A_x": _A_in["x"],
        "A_k_cache": _A_in["k_cache"],
        "A_v_cache": _A_in["v_cache"],
        "A_wq": _A_in["wq"],
        "A_wo": _A_in["wo"],
        "B_x": _B_in["x"],
        "B_k_cache": _B_in["k_cache"],
        "B_v_cache": _B_in["v_cache"],
        "B_wq": _B_in["wq"],
        "B_wo": _B_in["wo"],
    }

def reference(A_x, A_k_cache, A_v_cache, A_wq, A_wo, B_x, B_k_cache, B_v_cache, B_wq, B_wo):
    def _A_ref(x, k_cache, v_cache, wq, wo):
        B, Sq, D = x.shape
        Hq, Dh = 32, 128
        Hkv = k_cache.shape[1]
        rep = Hq // Hkv
        q = (lambda x, *d: x.permute(*d))((x @ wq).reshape(B, Sq, Hq, Dh), 0, 2, 1, 3)
        k = (lambda x, n, axis: torch.repeat_interleave(x, n, dim=axis))(k_cache, rep, axis=1)
        v = (lambda x, n, axis: torch.repeat_interleave(x, n, dim=axis))(v_cache, rep, axis=1)
        scores = torch.einsum("bhqd,bhkd->bhqk", q, k) * (Dh ** -0.5)
        p = _softmax(scores, axis=-1)
        o = torch.einsum("bhqk,bhkd->bhqd", p, v)
        return (lambda x, *d: x.permute(*d))(o, 0, 2, 1, 3).reshape(B, Sq, Hq * Dh) @ wo

    def _B_ref(x, k_cache, v_cache, wq, wo):
        B, Sq, D = x.shape
        Hq, Dh = 32, 128
        Hkv = k_cache.shape[1]
        rep = Hq // Hkv
        q = (lambda x, *d: x.permute(*d))((x @ wq).reshape(B, Sq, Hq, Dh), 0, 2, 1, 3)
        k = (lambda x, n, axis: torch.repeat_interleave(x, n, dim=axis))(k_cache, rep, axis=1)
        v = (lambda x, n, axis: torch.repeat_interleave(x, n, dim=axis))(v_cache, rep, axis=1)
        scores = torch.einsum("bhqd,bhkd->bhqk", q, k) * (Dh ** -0.5)
        p = _softmax(scores, axis=-1)
        o = torch.einsum("bhqk,bhkd->bhqd", p, v)
        return (lambda x, *d: x.permute(*d))(o, 0, 2, 1, 3).reshape(B, Sq, Hq * Dh) @ wo

    a = _A_ref(A_x, A_k_cache, A_v_cache, A_wq, A_wo)
    b = _B_ref(B_x, B_k_cache, B_v_cache, B_wq, B_wo)
    return torch.concatenate([a, b], axis=-1)
```

```python
import re

def vr(a, n=1):
    return set(range(a, a + n))

def vname(a, n=1):
    return f"v{a}" if n == 1 else f"v[{a}:{a+n-1}]"

def sname(a, n=1):
    return f"s{a}" if n == 1 else f"s[{a}:{a+n-1}]"

class I:
    __slots__ = ("text", "kind", "r", "w", "ma", "mc", "md", "sw", "sr", "m0w", "m0r", "ws", "storedata")
    def __init__(self, text, kind, r=(), w=(), ma=(), mc=(), md=(), sw=(), sr=(), m0w=False, m0r=False, ws=1, storedata=()):
        self.text = text; self.kind = kind
        self.r = set(r); self.w = set(w); self.ma = set(ma); self.mc = set(mc); self.md = set(md)
        self.sw = set(sw); self.sr = set(sr); self.m0w = m0w; self.m0r = m0r; self.ws = ws
        self.storedata = set(storedata)

class Asm:
    def __init__(self):
        self.out = []
        self.win = []
        self.nds = 0
        self.nvm = 0
        self.ds_done = 0
        self.vm_done = 0
        self.nops_inserted = 0

    def raw(self, s):
        self.out.append(s)

    def label(self, name):
        self.out.append(f"{name}:")

    def flush_hazards(self):
        self._emit(I("s_nop 15", "nop", ws=16), check=False)
        self._emit(I("s_nop 7", "nop", ws=8), check=False)
        self.win = []

    def _need(self, c):
        need = 0
        d = 0
        for p in reversed(self.win):
            req = 0
            cv_rw = c.r | c.w
            if p.kind in ("valu", "trans", "perm"):
                if c.kind == "mfma" and p.w & (c.ma | c.mc): req = max(req, 2)
                if p.kind == "trans" and c.kind in ("valu", "perm") and p.w & c.r: req = max(req, 1)
                if c.kind == "perm" and p.w & c.r: req = max(req, 2)
                if c.kind == "rdlane" and p.w & c.r: req = max(req, 1)
                if p.sw:
                    if c.kind in ("valu", "trans", "perm", "rdlane") and p.sw & c.sr: req = max(req, 2)
                    if c.kind in ("vmem", "dma") and p.sw & c.sr: req = max(req, 5)
            if p.kind == "rdlane" and p.sw:
                if c.kind in ("valu", "trans", "perm", "rdlane") and p.sw & c.sr: req = max(req, 2)
                if c.kind in ("vmem", "dma") and p.sw & c.sr: req = max(req, 5)
                if c.kind == "salu" and p.sw & c.sr: req = max(req, 1)
            if p.kind == "mfma":
                if c.kind == "mfma":
                    if p.md & c.ma: req = max(req, 12)
                    if p.md & c.mc and p.md != c.mc: req = max(req, 10)
                    if p.md & c.md and p.md != c.md: req = max(req, 12)
                else:
                    if p.md & cv_rw: req = max(req, 12)
                    if c.kind in ("valu", "trans", "perm") and p.mc & c.w: req = max(req, 7)
            if p.m0w and c.m0r: req = max(req, 1)
            if p.storedata and (p.storedata & c.w): req = max(req, 2)
            need = max(need, req - d)
            d += p.ws
            if d >= 24: break
        return need

    def _emit(self, ins, check=True):
        if check:
            n = self._need(ins)
            while n > 0:
                k = min(n, 16)
                nop = I(f"s_nop {k-1}", "nop", ws=k)
                self.out.append(nop); self.win.append(nop)
                self.nops_inserted += 1
                n -= k
        self.out.append(ins)
        self.win.append(ins)
        if len(self.win) > 40: self.win = self.win[-40:]
        return ins

    def salu(self, text, sw=(), sr=(), m0w=False):
        return self._emit(I(text, "salu", sr=sr, m0w=m0w))

    def waitcnt(self, vm=None, lgkm=None):
        parts = []
        if vm is not None: parts.append(f"vmcnt({vm})")
        if lgkm is not None: parts.append(f"lgkmcnt({lgkm})")
        self._emit(I("s_waitcnt " + " ".join(parts), "salu"))

    def barrier(self):
        self._emit(I("s_barrier", "salu"))

    def valu(self, text, w=(), r=(), sw=(), sr=(), kind="valu"):
        return self._emit(I(text, kind, r=r, w=w, sw=sw, sr=sr))

    def mfma(self, d, a, b, c=None):
        if c is None: c = d
        if c == "zero":
            ctext = "0"; mc = set()
        else:
            ctext = vname(c, 16); mc = vr(c, 16)
        t = f"v_mfma_f32_32x32x16_bf16 {vname(d,16)}, {vname(a,4)}, {vname(b,4)}, {ctext}"
        return self._emit(I(t, "mfma", ma=vr(a, 4) | vr(b, 4), mc=mc, md=vr(d, 16), w=vr(d, 16), r=vr(a, 4) | vr(b, 4) | mc))

    def ds(self, text, w=(), r=()):
        self._emit(I(text, "ds", r=r, w=w))
        self.nds += 1
        return self.nds - 1

    def ds_read_b128(self, d, addr, off=0):
        return self.ds(f"ds_read_b128 {vname(d,4)}, v{addr} offset:{off}", w=vr(d, 4), r={addr})

    def ds_read_tr(self, d, addr, off=0):
        return self.ds(f"ds_read_b64_tr_b16 {vname(d,2)}, v{addr} offset:{off}", w=vr(d, 2), r={addr})

    def ds_write_b128(self, addr, s, off=0):
        return self.ds(f"ds_write_b128 v{addr}, {vname(s,4)} offset:{off}", r={addr} | vr(s, 4))

    def wait_ds(self, idx):
        if idx < self.ds_done: return
        n = self.nds - 1 - idx
        assert n <= 15, n
        self.waitcnt(lgkm=n)
        self.ds_done = idx + 1

    def wait_ds_all(self):
        if self.nds > self.ds_done:
            self.waitcnt(lgkm=0)
            self.ds_done = self.nds

    def vmem(self, text, kind="vmem", w=(), r=(), sr=(), m0r=False, storedata=()):
        self._emit(I(text, kind, r=r, w=w, sr=sr, m0r=m0r, storedata=storedata))
        self.nvm += 1
        return self.nvm - 1

    def wait_vm(self, idx):
        if idx < self.vm_done: return
        n = self.nvm - 1 - idx
        assert n <= 63, n
        self.waitcnt(vm=n)
        self.vm_done = idx + 1

    def text(self):
        lines = []
        for o in self.out:
            if isinstance(o, I): lines.append("    " + o.text)
            else: lines.append(o)
        return "\n".join(lines) + "\n"
```

```python
import sys, math
sys.path.insert(0, "gen")
from asmlib import *

NAME = "concat_heads__gqa_block_cached__gqa_block_cached__near_ridge"
OPT = dict(prio=1)
for a in sys.argv[2:]:
    k, v = a.split("="); OPT[k] = int(v)

O_BLK = 896 * 4096 * 2
SLOT = 16384
NSLOT = 10

def srd(A, d, base, nbytes):
    A.salu(f"s_mov_b32 s{d}, s{base}")
    A.salu(f"s_and_b32 s{d+1}, s{base+1}, 0xffff")
    A.salu(f"s_mov_b32 s{d+2}, {nbytes}")
    A.salu(f"s_mov_b32 s{d+3}, 0x00020000")

def gen_k1(A):
    V = A.valu
    T0, T1, T2, T3, T4, T5, T6, T7 = range(0, 8)
    XO, WO, KO = 8, 10, 12
    BW, BX, BK, BV = 14, 15, 16, 17
    LSUM, OST = 18, 19
    SUMA, SUMB, MX, MX2 = 20, 21, 22, 23
    AD = 24
    FR = 32
    NEGM = 48
    QB = 64
    S = 96
    O = 160
    P = 224
    sBLK, sKVH, sB, sW, sHL, sRT = 26, 27, 4, 5, 6, 7
    SX, SW_, SK, SV, SO = 28, 32, 36, 40, 44
    sWL, sXB, sWB, sKVB, sT, sOB = 48, 49, 50, 51, 52, 53
    sMASK, sTHR, sC = 54, 56, 57

    A.raw(f".p2align 8\n.globl k1_kernel\n.type k1_kernel,@function\nk1_kernel:")
    A.salu("s_cmp_ge_u32 s2, 256")
    A.salu("s_cbranch_scc1 K1_END")
    A.salu("s_load_dwordx8 s[8:15], s[0:1], 0")
    A.salu("s_load_dwordx8 s[16:23], s[0:1], 40")
    A.salu("s_load_dwordx2 s[24:25], s[0:1], 96")
    A.salu("s_and_b32 s3, s2, 7")
    A.salu(f"s_lshr_b32 s{sB}, s2, 3")
    A.salu(f"s_lshr_b32 s{sBLK}, s3, 2")
    A.salu("s_and_b32 s3, s3, 3")
    A.salu("s_lshl_b32 s3, s3, 2")
    A.salu(f"s_and_b32 s{sKVH}, s{sB}, 3")
    A.salu(f"s_add_u32 s{sKVH}, s{sKVH}, s3")
    A.salu(f"s_lshr_b32 s{sB}, s{sB}, 2")
    V(f"v_lshrrev_b32 v{T1}, 6, v0", w={T1}, r={0})
    A._emit(I(f"v_readfirstlane_b32 s{sW}, v{T1}", "rdlane", r={T1}, sw={sW}))
    V(f"v_and_b32 v{T0}, 63, v0", w={T0}, r={0})
    A.salu(f"s_lshr_b32 s{sHL}, s{sW}, 2", sr={sW})
    A.salu(f"s_and_b32 s{sRT}, s{sW}, 3", sr={sW})
    A.salu(f"s_lshl_b32 s{sWL}, s{sW}, 11", sr={sW})
    A.salu(f"s_mul_i32 s{sXB}, s{sB}, 129024")
    A.salu(f"s_lshl_b32 s{sWB}, s{sKVH}, 9")
    A.salu(f"s_lshl_b32 s{sKVB}, s{sB}, 4")
    A.salu(f"s_add_u32 s{sKVB}, s{sKVB}, s{sKVH}")
    A.salu(f"s_lshl_b32 s{sKVB}, s{sKVB}, 17")
    A.salu(f"s_mov_b32 s{sTHR}, 0x4b800000")
    c = math.log2(math.e) / math.sqrt(128.0)
    import struct
    cbits = struct.unpack("<I", struct.pack("<f", c))[0]
    A.salu(f"s_mov_b32 s{sC}, {cbits:#x}")
    A.salu(f"s_mov_b64 s[{sMASK}:{sMASK+1}], -1")
    L = T0
    for q in range(2):
        V(f"v_lshrrev_b32 v{T1}, 3, v{L}", w={T1}, r={L})
        A.salu(f"s_lshl_b32 s3, s{sW}, 4")
        A.salu(f"s_add_u32 s3, s3, {8*q}")
        V(f"v_add_u32 v{T1}, s3, v{T1}", w={T1}, r={T1})
        V(f"v_mul_u32_u24 v{T1}, 1152, v{T1}", w={T1}, r={T1})
        V(f"v_and_b32 v{T2}, 7, v{L}", w={T2}, r={L})
        V(f"v_lshrrev_b32 v{T3}, 4, v{L}", w={T3}, r={L})
        V(f"v_xor_b32 v{T2}, v{T2}, v{T3}", w={T2}, r={T2, T3})
        if q: V(f"v_xor_b32 v{T2}, 4, v{T2}", w={T2}, r={T2})
        V(f"v_lshl_add_u32 v{XO+q}, v{T2}, 4, v{T1}", w={XO+q}, r={T2, T1})
        V(f"v_lshrrev_b32 v{T3}, 5, v{L}", w={T3}, r={L})
        A.salu(f"s_lshl_b32 s3, s{sW}, 2")
        A.salu(f"s_add_u32 s3, s3, {2*q}")
        V(f"v_add_u32 v{T1}, s3, v{T3}", w={T1}, r={T3})
        V(f"v_lshlrev_b32 v{T1}, 13, v{T1}", w={T1}, r={T1})
        V(f"v_or_b32 v{T3}, {2*q}, v{T3}", w={T3}, r={T3})
        V(f"v_lshlrev_b32 v{T3}, 2, v{T3}", w={T3}, r={T3})
        V(f"v_and_b32 v{T2}, 31, v{L}", w={T2}, r={L})
        V(f"v_xor_b32 v{T2}, v{T2}, v{T3}", w={T2}, r={T2, T3})
        V(f"v_lshl_add_u32 v{WO+q}, v{T2}, 4, v{T1}", w={WO+q}, r={T2, T1})
        V(f"v_lshrrev_b32 v{T3}, 4, v{L}", w={T3}, r={L})
        A.salu(f"s_lshl_b32 s3, s{sW}, 3")
        A.salu(f"s_add_u32 s3, s3, {4*q}")
        V(f"v_add_u32 v{T1}, s3, v{T3}", w={T1}, r={T3})
        V(f"v_lshlrev_b32 v{T1}, 8, v{T1}", w={T1}, r={T1})
        A.salu(f"s_and_b32 s3, s{sW}, 1")
        A.salu(f"s_lshl_b32 s3, s3, 1")
        A.salu(f"s_or_b32 s3, s3, {q}")
        V(f"v_lshlrev_b32 v{T3}, 2, v{T3}", w={T3}, r={T3})
        V(f"v_or_b32 v{T3}, s3, v{T3}", w={T3}, r={T3})
        V(f"v_and_b32 v{T2}, 15, v{L}", w={T2}, r={L})
        V(f"v_xor_b32 v{T2}, v{T2}, v{T3}", w={T2}, r={T2, T3})
        V(f"v_lshl_add_u32 v{KO+q}, v{T2}, 4, v{T1}", w={KO+q}, r={T2, T1})
    V(f"v_lshrrev_b32 v{T1}, 5, v{L}", w={T1}, r={L})
    V(f"v_bfe_u32 v{T2}, v{L}, 4, 1", w={T2}, r={L})
    V(f"v_bfe_u32 v{T3}, v{L}, 2, 2", w={T3}, r={L})
    V(f"v_and_b32 v{T4}, 3, v{L}", w={T4}, r={L})
    V(f"v_and_b32 v{T5}, 31, v{L}", w={T5}, r={L})
    V(f"v_lshl_add_u32 v{T6}, v{T1}, 3, v{T3}", w={T6}, r={T1, T3})
    V(f"v_lshlrev_b32 v{T6}, 9, v{T6}", w={T6}, r={T6})
    V(f"v_lshlrev_b32 v{T7}, 2, v{T3}", w={T7}, r={T3})
    V(f"v_lshl_add_u32 v{T7}, v{T2}, 1, v{T7}", w={T7}, r={T2, T7})
    V(f"v_and_b32 v{BW}, 1, v{T4}", w={BW}, r={T4})
    V(f"v_add_u32 v{T7}, v{T7}, v{BW}", w={T7}, r={T7, BW})
    A.salu(f"s_lshl_b32 s3, s{sHL}, 4")
    V(f"v_add_u32 v{T7}, s3, v{T7}", w={T7}, r={T7})
    V(f"v_lshl_add_u32 v{T6}, v{T7}, 4, v{T6}", w={T6}, r={T7, T6})
    V(f"v_lshrrev_b32 v{T7}, 1, v{T4}", w={T7}, r={T4})
    V(f"v_lshl_add_u32 v{BW}, v{T7}, 3, v{T6}", w={BW}, r={T7, T6})
    A.salu(f"s_lshl_b32 s3, s{sRT}, 5")
    V(f"v_add_u32 v{T6}, s3, v{T5}", w={T6}, r={T5})
    V(f"v_lshlrev_b32 v{T6}, 7, v{T6}", w={T6}, r={T6})
    V(f"v_bfe_u32 v{T7}, v{T5}, 1, 3", w={T7}, r={T5})
    V(f"v_xor_b32 v{T7}, v{T7}, v{T1}", w={T7}, r={T7, T1})
    V(f"v_lshl_add_u32 v{BX}, v{T7}, 4, v{T6}", w={BX}, r={T7, T6})
    V(f"v_lshlrev_b32 v{T6}, 2, v{T4}", w={T6}, r={T4})
    V(f"v_or_b32 v{T6}, v{T6}, v{T3}", w={T6}, r={T6, T3})
    V(f"v_xor_b32 v{T6}, v{T6}, v{T1}", w={T6}, r={T6, T1})
    V(f"v_lshlrev_b32 v{T7}, 8, v{T5}", w={T7}, r={T5})
    V(f"v_lshl_add_u32 v{BK}, v{T6}, 4, v{T7}", w={BK}, r={T6, T7})
    V(f"v_lshl_add_u32 v{T6}, v{T1}, 2, v{T3}", w={T6}, r={T1, T3})
    V(f"v_lshlrev_b32 v{T6}, 8, v{T6}", w={T6}, r={T6})
    V(f"v_lshrrev_b32 v{T7}, 1, v{T4}", w={T7}, r={T4})
    V(f"v_lshl_add_u32 v{T7}, v{T2}, 1, v{T7}", w={T7}, r={T2, T7})
    V(f"v_xor_b32 v{T7}, v{T7}, v{T1}", w={T7}, r={T7, T1})
    V(f"v_lshl_or_b32 v{T7}, v{T3}, 2, v{T7}", w={T7}, r={T3, T7})
    V(f"v_lshl_add_u32 v{T6}, v{T7}, 4, v{T6}", w={T6}, r={T7, T6})
    V(f"v_and_b32 v{T7}, 1, v{T4}", w={T7}, r={T4})
    V(f"v_lshl_add_u32 v{BV}, v{T7}, 3, v{T6}", w={BV}, r={T7, T6})
    V(f"v_lshlrev_b32 v{T6}, 17, v{T2}", w={T6}, r={T2})
    V(f"v_lshl_add_u32 v{T6}, v{T1}, 8, v{T6}", w={T6}, r={T1, T6})
    V(f"v_and_b32 v{T7}, 15, v{L}", w={T7}, r={L})
    V(f"v_lshl_add_u32 v{OST}, v{T7}, 4, v{T6}", w={OST}, r={T7, T6})
    V(f"v_mov_b32 v{LSUM}, 0", w={LSUM})
    A.waitcnt(lgkm=0)
    A.salu(f"s_cmp_eq_u32 s{sBLK}, 0")
    for k in range(8):
        A.salu(f"s_cselect_b32 s{8+k}, s{8+k}, s{16+k}")
    srd(A, SX, 8, 8 * 112 * 576 * 2)
    srd(A, SK, 10, 8 * 16 * 512 * 128 * 2)
    srd(A, SV, 12, 8 * 16 * 512 * 128 * 2)
    srd(A, SW_, 14, 576 * 4096 * 2)
    srd(A, SO, 24, 2 * O_BLK)
    A.salu(f"s_mul_i32 s{sOB}, s{sBLK}, {O_BLK}")
    A.salu(f"s_mul_i32 s3, s{sB}, 7")
    A.salu(f"s_lshl_b32 s{sT}, s{sRT}, 1")
    A.salu(f"s_add_u32 s3, s3, s{sT}")
    A.salu(f"s_lshl_b32 s3, s3, 17")
    A.salu(f"s_add_u32 s{sOB}, s{sOB}, s3")
    A.salu(f"s_lshl_b32 s3, s{sKVH}, 1")
    A.salu(f"s_add_u32 s3, s3, s{sHL}")
    A.salu(f"s_lshl_b32 s3, s3, 12")
    A.salu(f"s_add_u32 s{sOB}, s{sOB}, s3")
    if OPT["prio"]:
        A.salu(f"s_cmp_ge_u32 s{sW}, 4")
        A.salu("s_cbranch_scc0 K1_PRIO_DONE" if OPT["prio"] == 1 else "s_cbranch_scc1 K1_PRIO_DONE")
        A.salu("s_setprio 1")
        A.label("K1_PRIO_DONE")

    units = []
    for s in range(9):
        units += [("X", s), ("W", 2 * s), ("W", 2 * s + 1)]
    for j in range(4):
        units += [("K", 2 * j), ("K", 2 * j + 1), ("V", 2 * j), ("V", 2 * j + 1)]
    stage_end = [3 * (s + 1) for s in range(9)] + [27 + 4 * (j + 1) for j in range(4)]
    unit_last_vm = {}
    issued = [0]

    def issue_unit():
        u = issued[0]
        typ, idx = units[u]
        slot = u % NSLOT
        if typ == "X": base, const, sr_, vo = sXB, idx * 128, SX, XO
        elif typ == "W": base, const, sr_, vo = sWB, idx * 32 * 8192, SW_, WO
        elif typ == "K": base, const, sr_, vo = sKVB, idx * 64 * 256, SK, KO
        else: base, const, sr_, vo = sKVB, idx * 64 * 256, SV, KO
        A.salu(f"s_add_u32 s{sT}, s{base}, {const}")
        for q in range(2):
            A.salu(f"s_add_u32 m0, s{sWL}, {slot * SLOT + q * 1024}", m0w=True)
            k = A.vmem(f"buffer_load_dwordx4 v{vo+q}, s[{sr_}:{sr_+3}], s{sT} offen lds", kind="dma", r={vo + q}, m0r=True)
        unit_last_vm[u] = k
        issued[0] += 1

    def stage_begin(s):
        A.wait_ds_all()
        A.wait_vm(unit_last_vm[stage_end[s] - 1])
        A.barrier()
        start = stage_end[s - 1] if s > 0 else 0
        while issued[0] < len(units) and issued[0] < start + NSLOT:
            issue_unit()

    for _ in range(NSLOT): issue_unit()

    def addr_set(dst, base, slot, xors):
        V(f"v_add_u32 v{dst}, {slot * SLOT}, v{base}", w={dst}, r={base})
        for i, x in enumerate(xors):
            if i == 0: continue
            V(f"v_xor_b32 v{dst+i}, {x}, v{dst}", w={dst + i}, r={dst})

    QA = S
    FB = O
    AW = [P, P + 4]
    AX = P + 8
    first = True
    for s in range(9):
        stage_begin(s)
        u0 = 3 * s
        addr_set(AX, BX, u0 % NSLOT, [0, 32, 64, 96])
        addr_set(AW[0], BW, (u0 + 1) % NSLOT, [0, 64, 128, 192])
        addr_set(AW[1], BW, (u0 + 2) % NSLOT, [0, 64, 128, 192])
        def reads(ks):
            fb = FB + (ks % 2) * 20
            last = A.ds_read_b128(fb + 16, AX + ks)
            for t in range(4):
                for j in range(2):
                    last = A.ds_read_tr(fb + 4 * t + 2 * j, AW[ks // 2] + t, ((ks % 2) * 16 + 4 * j) * 512)
            return last
        pend = reads(0)
        for ks in range(4):
            A.wait_ds(pend)
            if ks < 3: pend = reads(ks + 1)
            fb = FB + (ks % 2) * 20
            for t in range(4):
                A.mfma(QA + 16 * t, fb + 4 * t, fb + 16, "zero" if first else None)
            first = False
    for i in range(64):
        V(f"v_mul_f32 v{QA+i}, s{sC}, v{QA+i}", w={QA + i}, r={QA + i})
    for q in range(32):
        V(f"v_cvt_pk_bf16_f32 v{QB+q}, v{QA+2*q}, v{QA+2*q+1}", w={QB + q}, r={QA + 2 * q, QA + 2 * q + 1})

    def rowmax():
        V(f"v_max3_f32 v{MX}, v{S}, v{S+1}, v{S+2}", w={MX}, r={S, S + 1, S + 2})
        V(f"v_max3_f32 v{MX2}, v{S+3}, v{S+4}, v{S+5}", w={MX2}, r={S + 3, S + 4, S + 5})
        i = 6
        while i < 62:
            V(f"v_max3_f32 v{MX}, v{MX}, v{S+i}, v{S+i+1}", w={MX}, r={MX, S + i, S + i + 1})
            V(f"v_max3_f32 v{MX2}, v{MX2}, v{S+i+2}, v{S+i+3}", w={MX2}, r={MX2, S + i + 2, S + i + 3})
            i += 4
        V(f"v_max3_f32 v{MX}, v{MX}, v{S+62}, v{S+63}", w={MX}, r={MX, S + 62, S + 63})
        V(f"v_max_f32 v{MX}, v{MX}, v{MX2}", w={MX}, r={MX, MX2})
        V(f"v_mov_b32 v{MX2}, v{MX}", w={MX2}, r={MX})
        V(f"v_permlane32_swap_b32 v{MX}, v{MX2}", w={MX, MX2}, r={MX, MX2}, kind="perm")
        V(f"v_max_f32 v{MX}, v{MX}, v{MX2}", w={MX}, r={MX, MX2})

    slow_paths = []
    for j in range(4):
        s = 9 + j
        stage_begin(s)
        u0 = 27 + 4 * j
        sl = [(u0 + i) % NSLOT for i in range(4)]
        kx = [32 * ks for ks in range(8)]
        addr_set(AD, BK, sl[0], kx)
        kadj = (sl[1] == sl[0] + 1)
        seq = [(kt, ks) for kt in range(4) for ks in range(8)]
        ids = {}
        def kread(i):
            kt, ks = seq[i]
            if kt == 2 and ks == 0 and not kadj:
                pass
            off = (kt % 2) * 8192 + ((kt // 2) * SLOT if kadj else 0)
            ids[i] = A.ds_read_b128(FR + 4 * (i % 4), AD + ks, off)
        for i in range(4): kread(i)
        for i in range(32):
            kt, ks = seq[i]
            A.wait_ds(ids[i])
            c = None
            if ks == 0: c = "zero" if j == 0 else NEGM
            A.mfma(S + 16 * kt, FR + 4 * (i % 4), QB + 4 * ks, c)
            if i + 4 < 32:
                if i + 4 == 16 and not kadj:
                    addr_set(AD, BK, sl[1], kx)
                kread(i + 4)
        vx = [(t << 6) ^ (32 * jj) for t in range(4) for jj in range(2)]
        addr_set(AD, BV, sl[2], vx)
        vadj = (sl[3] == sl[2] + 1)
        vseq = [(g, t) for g in range(8) for t in range(4)]
        vids = {}
        def vread(i):
            g, t = vseq[i]
            off = (g % 4) * 4096 + ((g // 4) * SLOT if vadj else 0)
            A.ds_read_tr(FR + 4 * (i % 4), AD + 2 * t, off)
            vids[i] = A.ds_read_tr(FR + 4 * (i % 4) + 2, AD + 2 * t + 1, off + 2048)
        for i in range(4): vread(i)
        if j == 0:
            rowmax()
            for i in range(16):
                V(f"v_sub_f32 v{NEGM+i}, 0, v{MX}", w={NEGM + i}, r={MX})
            for i in range(64):
                V(f"v_sub_f32 v{S+i}, v{S+i}, v{MX}", w={S + i}, r={S + i, MX})
        A.label(f"K1_FAST{j}")
        ta = [T0, T1]; tb = [T2, T3]
        for p in range(33):
            if p < 32:
                V(f"v_exp_f32 v{ta[p%2]}, v{S+2*p}", w={ta[p % 2]}, r={S + 2 * p}, kind="trans")
                V(f"v_exp_f32 v{tb[p%2]}, v{S+2*p+1}", w={tb[p % 2]}, r={S + 2 * p + 1}, kind="trans")
            if p > 0:
                a_, b_ = ta[(p - 1) % 2], tb[(p - 1) % 2]
                if p == 1:
                    V(f"v_mov_b32 v{SUMA}, v{a_}", w={SUMA}, r={a_})
                    V(f"v_mov_b32 v{SUMB}, v{b_}", w={SUMB}, r={b_})
                else:
                    V(f"v_add_f32 v{SUMA}, v{SUMA}, v{a_}", w={SUMA}, r={SUMA, a_})
                    V(f"v_add_f32 v{SUMB}, v{SUMB}, v{b_}", w={SUMB}, r={SUMB, b_})
                V(f"v_cvt_pk_bf16_f32 v{P+p-1}, v{a_}, v{b_}", w={P + p - 1}, r={a_, b_})
        V(f"v_add_f32 v{SUMA}, v{SUMA}, v{SUMB}", w={SUMA}, r={SUMA, SUMB})
        V(f"v_cmp_nle_f32 vcc, v{SUMA}, v{SUMA}" if False else f"v_cmp_nge_f32 vcc, s{sTHR}, v{SUMA}", r={SUMA}, sw={"vcc"})
        A.salu("s_nop 1")
        A.salu(f"s_and_b64 vcc, vcc, s[{sMASK}:{sMASK+1}]")
        A.salu(f"s_cbranch_vccnz K1_SLOW{j}")
        A.salu(f"s_mov_b64 s[{sMASK}:{sMASK+1}], -1")
        V(f"v_add_f32 v{LSUM}, v{LSUM}, v{SUMA}", w={LSUM}, r={LSUM, SUMA})
        slow_paths.append(j)
        for i in range(32):
            g, t = vseq[i]
            A.wait_ds(vids[i])
            c = "zero" if (j == 0 and g == 0) else None
            A.mfma(O + 16 * t, FR + 4 * (i % 4), P + 4 * g, c)
            if i + 4 < 32:
                if i + 4 == 16 and not vadj:
                    addr_set(AD, BV, sl[3], vx)
                vread(i + 4)
    V(f"v_mov_b32 v{T0}, v{LSUM}", w={T0}, r={LSUM})
    V(f"v_permlane32_swap_b32 v{T0}, v{LSUM}", w={T0, LSUM}, r={T0, LSUM}, kind="perm")
    V(f"v_add_f32 v{T0}, v{T0}, v{LSUM}", w={T0}, r={T0, LSUM})
    V(f"v_rcp_f32 v{T0}, v{T0}", w={T0}, r={T0}, kind="trans")
    A.salu(f"s_cmp_eq_u32 s{sRT}, 3")
    A.salu("s_cbranch_scc0 K1_NOMASK")
    A.salu("s_mov_b32 exec_lo, 0xffff")
    A.salu("s_mov_b32 exec_hi, 0xffff")
    A.label("K1_NOMASK")
    for f in range(8):
        b0 = O + 8 * f
        for i in range(8):
            V(f"v_mul_f32 v{b0+i}, v{T0}, v{b0+i}", w={b0 + i}, r={T0, b0 + i})
        d = P + 4 * f
        for q in range(4):
            V(f"v_cvt_pk_bf16_f32 v{d+q}, v{b0+2*q}, v{b0+2*q+1}", w={d + q}, r={b0 + 2 * q, b0 + 2 * q + 1})
        A.vmem(f"buffer_store_dwordx4 {vname(d,4)}, v{OST}, s[{SO}:{SO+3}], s{sOB} offen offset:{f*512}", r=vr(d, 4) | {OST}, storedata=vr(d, 4))
    A.label("K1_END")
    A.salu("s_endpgm")
    for j in slow_paths:
        A.label(f"K1_SLOW{j}")
        A.flush_hazards()
        rowmax()
        V(f"v_max_f32 v{MX}, 0, v{MX}", w={MX}, r={MX})
        V(f"v_sub_f32 v{MX2}, 0, v{MX}", w={MX2}, r={MX})
        V(f"v_exp_f32 v{MX2}, v{MX2}", w={MX2}, r={MX2}, kind="trans")
        if j > 0:
            for i in range(64):
                V(f"v_mul_f32 v{O+i}, v{MX2}, v{O+i}", w={O + i}, r={MX2, O + i})
        V(f"v_mul_f32 v{LSUM}, v{MX2}, v{LSUM}", w={LSUM}, r={MX2, LSUM})
        for i in range(16):
            V(f"v_sub_f32 v{NEGM+i}, v{NEGM+i}, v{MX}", w={NEGM + i}, r={NEGM + i, MX})
        for i in range(64):
            V(f"v_sub_f32 v{S+i}, v{S+i}, v{MX}", w={S + i}, r={S + i, MX})
        A.salu(f"s_mov_b64 s[{sMASK}:{sMASK+1}], 0")
        A.flush_hazards()
        A.salu(f"s_branch K1_FAST{j}")

def gen_k2(A):
    V = A.valu
    T0, T1, T2, T3, T4, T5, T6, T7 = range(0, 8)
    WOFF = 8
    OOFF = 12
    BA = 13
    RED = 15
    AF = 16
    OF = 48
    ACC = 112
    sBLK, sMT, sNT, sW = 26, 27, 4, 5
    SW_, SO, SOUT = 28, 32, 36
    sWL, sWB, sO0, sO1, sT = 48, 49, 50, 51, 52
    A.win = []
    A.nds = A.ds_done = A.nvm = A.vm_done = 0
    A.raw(f".p2align 8\n.globl k2_kernel\n.type k2_kernel,@function\nk2_kernel:")
    A.salu("s_cmp_ge_u32 s2, 256")
    A.salu("s_cbranch_scc1 K2_END")
    A.salu("s_and_b32 s3, s2, 7")
    A.salu("s_lshl_b32 s3, s3, 5")
    A.salu("s_lshr_b32 s6, s2, 3")
    A.salu("s_add_u32 s3, s3, s6")
    A.salu("s_cmp_ge_u32 s3, 252")
    A.salu("s_cbranch_scc1 K2_END")
    A.salu("s_load_dwordx2 s[8:9], s[0:1], 32")
    A.salu("s_load_dwordx2 s[10:11], s[0:1], 72")
    A.salu("s_load_dwordx2 s[12:13], s[0:1], 80")
    A.salu("s_load_dwordx2 s[14:15], s[0:1], 96")
    A.salu("s_cmp_ge_u32 s3, 126")
    A.salu(f"s_cselect_b32 s{sBLK}, 1, 0")
    A.salu(f"s_mul_i32 s6, s{sBLK}, 126")
    A.salu("s_sub_u32 s3, s3, s6")
    A.salu("s_mul_i32 s6, s3, 57")
    A.salu(f"s_lshr_b32 s{sMT}, s6, 9")
    A.salu(f"s_mul_i32 s6, s{sMT}, 9")
    A.salu(f"s_sub_u32 s{sNT}, s3, s6")
    V(f"v_lshrrev_b32 v{T1}, 6, v0", w={T1}, r={0})
    A._emit(I(f"v_readfirstlane_b32 s{sW}, v{T1}", "rdlane", r={T1}, sw={sW}))
    V(f"v_and_b32 v{T0}, 63, v0", w={T0}, r={0})
    L = T0
    A.salu(f"s_lshl_b32 s{sWL}, s{sW}, 14", sr={sW})
    A.salu(f"s_mul_i32 s{sWB}, s{sW}, {512*1152}", sr={sW})
    A.salu(f"s_lshl_b32 s6, s{sNT}, 7")
    A.salu(f"s_add_u32 s{sWB}, s{sWB}, s6")
    A.salu(f"s_mul_i32 s{sO0}, s{sBLK}, {O_BLK}")
    A.salu(f"s_lshl_b32 s6, s{sMT}, 19")
    A.salu(f"s_add_u32 s{sO0}, s{sO0}, s6")
    A.salu(f"s_lshl_b32 s6, s{sW}, 14")
    A.salu(f"s_add_u32 s{sO0}, s{sO0}, s6")
    A.salu(f"s_add_u32 s{sO1}, s{sO0}, {2*131072}")
    V(f"v_lshrrev_b32 v{T1}, 3, v{L}", w={T1}, r={L})
    V(f"v_mul_u32_u24 v{T1}, 1152, v{T1}", w={T1}, r={T1})
    V(f"v_bfe_u32 v{T2}, v{L}, 4, 1", w={T2}, r={L})
    V(f"v_lshlrev_b32 v{T3}, 2, v{T2}", w={T3}, r={T2})
    V(f"v_and_b32 v{T4}, 7, v{L}", w={T4}, r={L})
    V(f"v_xor_b32 v{T4}, v{T4}, v{T3}", w={T4}, r={T4, T3})
    V(f"v_lshl_add_u32 v{WOFF}, v{T4}, 4, v{T1}", w={WOFF}, r={T4, T1})
    for i in range(1, 4):
        V(f"v_add_u32 v{WOFF+i}, {9216*i}, v{WOFF}", w={WOFF + i}, r={WOFF})
    V(f"v_lshrrev_b32 v{T1}, 5, v{L}", w={T1}, r={L})
    V(f"v_bfe_u32 v{T3}, v{L}, 2, 2", w={T3}, r={L})
    V(f"v_and_b32 v{T4}, 3, v{L}", w={T4}, r={L})
    V(f"v_lshlrev_b32 v{T6}, 17, v{T2}", w={T6}, r={T2})
    V(f"v_lshl_add_u32 v{T6}, v{T1}, 8, v{T6}", w={T6}, r={T1, T6})
    V(f"v_and_b32 v{T7}, 15, v{L}", w={T7}, r={L})
    V(f"v_lshl_add_u32 v{OOFF}, v{T7}, 4, v{T6}", w={OOFF}, r={T7, T6})
    V(f"v_lshl_add_u32 v{T6}, v{T1}, 2, v{T3}", w={T6}, r={T1, T3})
    V(f"v_lshlrev_b32 v{T6}, 7, v{T6}", w={T6}, r={T6})
    V(f"v_lshrrev_b32 v{T7}, 1, v{T4}", w={T7}, r={T4})
    V(f"v_lshl_add_u32 v{T7}, v{T2}, 1, v{T7}", w={T7}, r={T2, T7})
    V(f"v_lshrrev_b32 v{T5}, 1, v{T3}", w={T5}, r={T3})
    V(f"v_lshlrev_b32 v{T5}, 2, v{T5}", w={T5}, r={T5})
    V(f"v_xor_b32 v{T7}, v{T7}, v{T5}", w={T7}, r={T7, T5})
    V(f"v_lshl_add_u32 v{T6}, v{T7}, 4, v{T6}", w={T6}, r={T7, T6})
    V(f"v_and_b32 v{T7}, 1, v{T4}", w={T7}, r={T4})
    V(f"v_lshl_add_u32 v{T6}, v{T7}, 3, v{T6}", w={T6}, r={T7, T6})
    V(f"v_add_u32 v{BA}, s{sWL}, v{T6}", w={BA}, r={T6})
    V(f"v_xor_b32 v{BA+1}, 64, v{BA}", w={BA + 1}, r={BA})
    V(f"v_lshlrev_b32 v{RED}, 4, v{L}", w={RED}, r={L})
    A.waitcnt(lgkm=0)
    A.salu(f"s_cmp_eq_u32 s{sBLK}, 0")
    A.salu("s_cselect_b32 s8, s8, s10")
    A.salu("s_cselect_b32 s9, s9, s11")
    srd(A, SW_, 8, 4096 * 576 * 2)
    srd(A, SO, 14, 2 * O_BLK)
    srd(A, SOUT, 12, 896 * 1152 * 2)

    NU = 16; DEPTH = 4
    last_vm = {}
    def issue(u):
        slot = u % DEPTH
        A.salu(f"s_add_u32 s{sT}, s{sWB}, {u * 32 * 1152}")
        for i in range(4):
            A.salu(f"s_add_u32 m0, s{sWL}, {slot * 4096 + i * 1024}", m0w=True)
            A.vmem(f"buffer_load_dwordx4 v{WOFF+i}, s[{SW_}:{SW_+3}], s{sT} offen lds", kind="dma", r={WOFF + i}, m0r=True)
        for ks in range(2):
            for tm in range(2):
                d = OF + slot * 16 + (ks * 2 + tm) * 4
                off = (2 * u + ks) * 512
                sb = sO0 if tm == 0 else sO1
                if off >= 4096:
                    A.salu(f"s_add_u32 s{sT}, s{sb}, {off & ~4095}")
                    k = A.vmem(f"buffer_load_dwordx4 {vname(d,4)}, v{OOFF}, s[{SO}:{SO+3}], s{sT} offen offset:{off & 4095}", w=vr(d, 4), r={OOFF})
                else:
                    k = A.vmem(f"buffer_load_dwordx4 {vname(d,4)}, v{OOFF}, s[{SO}:{SO+3}], s{sb} offen offset:{off}", w=vr(d, 4), r={OOFF})
        last_vm[u] = k
    def dsreads(u):
        slot = u % DEPTH
        ab = AF + (u % 2) * 16
        for ks in range(2):
            for tn in range(2):
                for j in range(2):
                    k = A.ds_read_tr(ab + (ks * 2 + tn) * 4 + 2 * j, BA + tn, slot * 4096 + (16 * ks + 8 * j) * 128)
        return k
    for u in range(DEPTH): issue(u)
    A.wait_vm(last_vm[0])
    pend = dsreads(0)
    for u in range(NU):
        A.wait_ds(pend)
        if u + 1 < NU:
            A.wait_vm(last_vm[u + 1])
            pend = dsreads(u + 1)
        ab = AF + (u % 2) * 16
        ob = OF + (u % DEPTH) * 16
        for ks in range(2):
            for tn in range(2):
                for tm in range(2):
                    c = "zero" if (u == 0 and ks == 0) else None
                    A.mfma(ACC + (tn * 2 + tm) * 16, ab + (ks * 2 + tn) * 4, ob + (ks * 2 + tm) * 4, c)
        if u + DEPTH < NU: issue(u + DEPTH)
    A.wait_ds_all()
    A.barrier()
    V(f"v_add_u32 v{T1}, s{sWL}, v{RED}", w={T1}, r={RED})
    for q in range(16):
        A.ds_write_b128(T1, ACC + 4 * q, q * 1024)
    A.wait_ds_all()
    A.barrier()
    A.salu(f"s_lshl_b32 s6, s{sW}, 11")
    V(f"v_add_u32 v{T1}, s6, v{RED}", w={T1}, r={RED})
    V(f"v_add_u32 v{T2}, 0x10000, v{T1}", w={T2}, r={T1})
    R = OF
    for ww in range(8):
        for q in range(2):
            A.ds_read_b128(R + (ww * 2 + q) * 4, T1 if ww < 4 else T2, (ww % 4) * 16384 + q * 1024)
            if ww == 6 and q == 1: pass
        if ww == 5:
            A.wait_ds_all()
    A.wait_ds_all()
    for ww in range(1, 8):
        for i in range(8):
            V(f"v_add_f32 v{R+i}, v{R+i}, v{R+ww*8+i}", w={R + i}, r={R + i, R + ww * 8 + i})
    for q in range(4):
        V(f"v_cvt_pk_bf16_f32 v{AF+q}, v{R+2*q}, v{R+2*q+1}", w={AF + q}, r={R + 2 * q, R + 2 * q + 1})
    A.salu(f"s_lshr_b32 s6, s{sW}, 1")
    A.salu("s_and_b32 s7, s6, 1")
    A.salu("s_lshr_b32 s6, s6, 1")
    A.salu(f"s_lshl_b32 s3, s{sMT}, 6")
    A.salu("s_lshl_b32 s7, s7, 5")
    A.salu("s_add_u32 s3, s3, s7")
    A.salu("s_mul_i32 s3, s3, 2304")
    A.salu(f"s_mul_i32 s7, s{sBLK}, 1152")
    A.salu("s_add_u32 s3, s3, s7")
    A.salu(f"s_lshl_b32 s7, s{sNT}, 7")
    A.salu("s_add_u32 s3, s3, s7")
    A.salu("s_lshl_b32 s7, s6, 6")
    A.salu("s_add_u32 s3, s3, s7")
    A.salu(f"s_and_b32 s7, s{sW}, 1")
    A.salu("s_lshl_b32 s7, s7, 5")
    A.salu("s_add_u32 s3, s3, s7")
    V(f"v_and_b32 v{T1}, 31, v{L}", w={T1}, r={L})
    V(f"v_mul_u32_u24 v{T1}, 2304, v{T1}", w={T1}, r={T1})
    V(f"v_lshrrev_b32 v{T2}, 5, v{L}", w={T2}, r={L})
    V(f"v_lshl_add_u32 v{T1}, v{T2}, 3, v{T1}", w={T1}, r={T2, T1})
    A.vmem(f"buffer_store_dwordx2 {vname(AF,2)}, v{T1}, s[{SOUT}:{SOUT+3}], s3 offen", r=vr(AF, 2) | {T1})
    A.vmem(f"buffer_store_dwordx2 {vname(AF+2,2)}, v{T1}, s[{SOUT}:{SOUT+3}], s3 offen offset:16", r=vr(AF + 2, 2) | {T1})
    A.label("K2_END")
    A.salu("s_endpgm")

def kd(name, vgpr, sgpr):
    return f""".amdhsa_kernel {name}
  .amdhsa_next_free_vgpr {vgpr}
  .amdhsa_next_free_sgpr {sgpr}
  .amdhsa_accum_offset {(vgpr + 3) // 4 * 4}
  .amdhsa_group_segment_fixed_size 0
  .amdhsa_kernarg_size 104
  .amdhsa_user_sgpr_count 2
  .amdhsa_user_sgpr_kernarg_segment_ptr 1
  .amdhsa_system_sgpr_workgroup_id_x 1
.end_amdhsa_kernel
"""

def main():
    A = Asm()
    gen_k1(A)
    gen_k2(A)
    head = """; Two-launch GQA block pair: k1 = Q projection + attention (o -> ws), k2 = output projection.
; @launch kernel=k1_kernel grid=(256,1,1) block=(512,1,1) lds=163840
; @launch kernel=k2_kernel grid=(256,1,1) block=(512,1,1) lds=131072
.amdgcn_target "amdgcn-amd-amdhsa--gfx950"
.text
"""
    tail = '\n.section .rodata,"a"\n.p2align 6\n' + kd("k1_kernel", 256, 64) + ".p2align 6\n" + kd("k2_kernel", 176, 64)
    open(sys.argv[1], "w").write(head + A.text() + tail)
    print("nops inserted:", A.nops_inserted, "lines:", len(A.out))

main()
```

```python
import sys, math
sys.path.insert(0, "gen")
from asmlib import *

NAME = "concat_heads__gqa_block_cached__gqa_block_cached__near_ridge"
OPT = dict(prio=1, prof=0, ntkv=1, ntw=0, ntx=0, ntwo=0, nto=0, ntst=0, nq=6, kvrate=1, l2pf=1, wopf=3, fat=1)
for a in sys.argv[2:]:
    k, v = a.split("="); OPT[k] = int(v)

O_BLK = 896 * 4096 * 2
SLOT = 16384
NSLOT = 10

def srd(A, d, base, nbytes):
    A.salu(f"s_mov_b32 s{d}, s{base}")
    A.salu(f"s_and_b32 s{d+1}, s{base+1}, 0xffff")
    A.salu(f"s_mov_b32 s{d+2}, {nbytes}")
    A.salu(f"s_mov_b32 s{d+3}, 0x00020000")

class Prof:
    def __init__(self, A, kidx):
        self.A = A; self.n = 0; self.names = []; self.kidx = kidx
    def stamp(self, name):
        if not OPT["prof"]: return
        A = self.A
        assert self.n < 30
        A.salu("s_waitcnt lgkmcnt(0)")
        A.ds_done = A.nds
        A.salu("s_memtime s[96:97]")
        A.salu("s_waitcnt lgkmcnt(0)")
        A.salu(f"s_mov_b32 s{64+self.n}, s96")
        if self.n == 0:
            A.salu("s_memrealtime s[98:99]")
            A.salu("s_waitcnt lgkmcnt(0)")
        self.n += 1; self.names.append(name)
    def dump(self, wsreg, sW, tmp):
        if not OPT["prof"]: return
        A = self.A
        self.stamp("end")
        A.salu("s_memrealtime s[96:97]")
        A.salu("s_waitcnt lgkmcnt(0)")
        A.salu("s_mov_b64 exec, -1")
        A.salu("s_nop 4")
        for i in range(self.n):
            A.salu(f"v_writelane_b32 v{tmp}, s{64+i}, {i}")
        A.salu(f"v_writelane_b32 v{tmp}, s98, 30")
        A.salu(f"v_writelane_b32 v{tmp}, s96, 31")
        A.salu(f"s_mov_b32 s60, s{wsreg}")
        A.salu(f"s_and_b32 s61, s{wsreg+1}, 0xffff")
        A.salu("s_mov_b32 s62, 0x10000000")
        A.salu("s_mov_b32 s63, 0x00020000")
        A.salu("s_lshl_b32 s96, s2, 3")
        A.salu(f"s_add_u32 s96, s96, s{sW}")
        A.salu("s_lshl_b32 s96, s96, 7")
        A.salu(f"s_add_u32 s96, s96, {255*1024*1024 + self.kidx*512*1024}")
        A.salu(f"v_mbcnt_lo_u32_b32 v{tmp+1}, -1, 0")
        A.salu(f"v_mbcnt_hi_u32_b32 v{tmp+1}, -1, v{tmp+1}")
        A.salu(f"v_lshlrev_b32 v{tmp+1}, 2, v{tmp+1}")
        A.salu("s_mov_b64 exec, 0xffffffff")
        A.salu("s_nop 4")
        A.salu(f"buffer_store_dword v{tmp}, v{tmp+1}, s[60:63], s96 offen")
        print("stamps k%d:" % self.kidx, self.names)

def gen_k1(A):
    V = A.valu
    T0, T1, T2, T3, T4, T5, T6, T7 = range(0, 8)
    XO, WO, KO = 8, 10, 12
    BW, BX, BK, BV = 14, 15, 16, 17
    LSUM, OST = 18, 19
    SUMA, SUMB, MX, MX2 = 20, 21, 22, 23
    AD = 24
    FR = 32
    NEGM = 48
    QB = 64
    S = 96
    O = 160
    P = 224
    sBLK, sKVH, sB, sW, sHL, sRT = 26, 27, 4, 5, 6, 7
    SX, SW_, SK, SV, SO = 28, 32, 36, 40, 44
    sWL, sXB, sWB, sKVB, sT, sOB = 48, 49, 50, 51, 52, 53
    sMASK, sTHR, sC = 54, 56, 57

    A.raw(f".p2align 8\n.globl k1_kernel\n.type k1_kernel,@function\nk1_kernel:")
    A.salu("s_cmp_ge_u32 s2, 256")
    A.salu("s_cbranch_scc1 K1_END")
    A.salu("s_load_dwordx8 s[8:15], s[0:1], 0")
    A.salu("s_load_dwordx8 s[16:23], s[0:1], 40")
    A.salu("s_load_dwordx2 s[24:25], s[0:1], 96")
    A.salu("s_and_b32 s3, s2, 7")
    A.salu(f"s_lshr_b32 s{sB}, s2, 3")
    A.salu(f"s_lshr_b32 s{sBLK}, s3, 2")
    A.salu("s_and_b32 s3, s3, 3")
    A.salu("s_lshl_b32 s3, s3, 2")
    A.salu(f"s_and_b32 s{sKVH}, s{sB}, 3")
    A.salu(f"s_add_u32 s{sKVH}, s{sKVH}, s3")
    A.salu(f"s_lshr_b32 s{sB}, s{sB}, 2")
    V(f"v_lshrrev_b32 v{T1}, 6, v0", w={T1}, r={0})
    A._emit(I(f"v_readfirstlane_b32 s{sW}, v{T1}", "rdlane", r={T1}, sw={sW}))
    V(f"v_and_b32 v{T0}, 63, v0", w={T0}, r={0})
    if OPT["fat"]:
        A.salu(f"s_bfe_u32 s{sHL}, s{sW}, 0x10001", sr={sW})
        A.salu(f"s_and_b32 s{sRT}, s{sW}, 1", sr={sW})
        A.salu(f"s_lshl_b32 s{sRT}, s{sRT}, 1")
        A.salu(f"s_lshr_b32 s3, s{sW}, 2", sr={sW})
        A.salu(f"s_add_u32 s{sRT}, s{sRT}, s3")
    else:
        A.salu(f"s_lshr_b32 s{sHL}, s{sW}, 2", sr={sW})
        A.salu(f"s_and_b32 s{sRT}, s{sW}, 3", sr={sW})
    A.salu(f"s_lshl_b32 s{sWL}, s{sW}, 11", sr={sW})
    A.salu(f"s_mul_i32 s{sXB}, s{sB}, 129024")
    A.salu(f"s_lshl_b32 s{sWB}, s{sKVH}, 9")
    A.salu(f"s_lshl_b32 s{sKVB}, s{sB}, 4")
    A.salu(f"s_add_u32 s{sKVB}, s{sKVB}, s{sKVH}")
    A.salu(f"s_lshl_b32 s{sKVB}, s{sKVB}, 17")
    A.salu(f"s_mov_b32 s{sTHR}, 0x4b800000")
    c = math.log2(math.e) / math.sqrt(128.0)
    import struct
    cbits = struct.unpack("<I", struct.pack("<f", c))[0]
    A.salu(f"s_mov_b32 s{sC}, {cbits:#x}")
    A.salu(f"s_mov_b64 s[{sMASK}:{sMASK+1}], -1")
    L = T0
    for q in range(2):
        V(f"v_lshrrev_b32 v{T1}, 3, v{L}", w={T1}, r={L})
        A.salu(f"s_lshl_b32 s3, s{sW}, 4")
        A.salu(f"s_add_u32 s3, s3, {8*q}")
        V(f"v_add_u32 v{T1}, s3, v{T1}", w={T1}, r={T1})
        V(f"v_mul_u32_u24 v{T1}, 1152, v{T1}", w={T1}, r={T1})
        V(f"v_and_b32 v{T2}, 7, v{L}", w={T2}, r={L})
        V(f"v_lshrrev_b32 v{T3}, 4, v{L}", w={T3}, r={L})
        V(f"v_xor_b32 v{T2}, v{T2}, v{T3}", w={T2}, r={T2, T3})
        if q: V(f"v_xor_b32 v{T2}, 4, v{T2}", w={T2}, r={T2})
        V(f"v_lshl_add_u32 v{XO+q}, v{T2}, 4, v{T1}", w={XO+q}, r={T2, T1})
        V(f"v_lshrrev_b32 v{T3}, 5, v{L}", w={T3}, r={L})
        A.salu(f"s_lshl_b32 s3, s{sW}, 2")
        A.salu(f"s_add_u32 s3, s3, {2*q}")
        V(f"v_add_u32 v{T1}, s3, v{T3}", w={T1}, r={T3})
        V(f"v_lshlrev_b32 v{T1}, 13, v{T1}", w={T1}, r={T1})
        V(f"v_or_b32 v{T3}, {2*q}, v{T3}", w={T3}, r={T3})
        V(f"v_lshlrev_b32 v{T3}, 2, v{T3}", w={T3}, r={T3})
        V(f"v_and_b32 v{T2}, 31, v{L}", w={T2}, r={L})
        V(f"v_xor_b32 v{T2}, v{T2}, v{T3}", w={T2}, r={T2, T3})
        V(f"v_lshl_add_u32 v{WO+q}, v{T2}, 4, v{T1}", w={WO+q}, r={T2, T1})
        V(f"v_lshrrev_b32 v{T3}, 4, v{L}", w={T3}, r={L})
        A.salu(f"s_lshl_b32 s3, s{sW}, 3")
        A.salu(f"s_add_u32 s3, s3, {4*q}")
        V(f"v_add_u32 v{T1}, s3, v{T3}", w={T1}, r={T3})
        V(f"v_lshlrev_b32 v{T1}, 8, v{T1}", w={T1}, r={T1})
        A.salu(f"s_and_b32 s3, s{sW}, 1")
        A.salu(f"s_lshl_b32 s3, s3, 1")
        A.salu(f"s_or_b32 s3, s3, {q}")
        V(f"v_lshlrev_b32 v{T3}, 2, v{T3}", w={T3}, r={T3})
        V(f"v_or_b32 v{T3}, s3, v{T3}", w={T3}, r={T3})
        V(f"v_and_b32 v{T2}, 15, v{L}", w={T2}, r={L})
        V(f"v_xor_b32 v{T2}, v{T2}, v{T3}", w={T2}, r={T2, T3})
        V(f"v_lshl_add_u32 v{KO+q}, v{T2}, 4, v{T1}", w={KO+q}, r={T2, T1})
    V(f"v_lshrrev_b32 v{T1}, 5, v{L}", w={T1}, r={L})
    V(f"v_bfe_u32 v{T2}, v{L}, 4, 1", w={T2}, r={L})
    V(f"v_bfe_u32 v{T3}, v{L}, 2, 2", w={T3}, r={L})
    V(f"v_and_b32 v{T4}, 3, v{L}", w={T4}, r={L})
    V(f"v_and_b32 v{T5}, 31, v{L}", w={T5}, r={L})
    V(f"v_lshl_add_u32 v{T6}, v{T1}, 3, v{T3}", w={T6}, r={T1, T3})
    V(f"v_lshlrev_b32 v{T6}, 9, v{T6}", w={T6}, r={T6})
    V(f"v_lshlrev_b32 v{T7}, 2, v{T3}", w={T7}, r={T3})
    V(f"v_lshl_add_u32 v{T7}, v{T2}, 1, v{T7}", w={T7}, r={T2, T7})
    V(f"v_and_b32 v{BW}, 1, v{T4}", w={BW}, r={T4})
    V(f"v_add_u32 v{T7}, v{T7}, v{BW}", w={T7}, r={T7, BW})
    A.salu(f"s_lshl_b32 s3, s{sHL}, 4")
    V(f"v_add_u32 v{T7}, s3, v{T7}", w={T7}, r={T7})
    V(f"v_lshl_add_u32 v{T6}, v{T7}, 4, v{T6}", w={T6}, r={T7, T6})
    V(f"v_lshrrev_b32 v{T7}, 1, v{T4}", w={T7}, r={T4})
    V(f"v_lshl_add_u32 v{BW}, v{T7}, 3, v{T6}", w={BW}, r={T7, T6})
    A.salu(f"s_lshl_b32 s3, s{sRT}, 5")
    V(f"v_add_u32 v{T6}, s3, v{T5}", w={T6}, r={T5})
    V(f"v_lshlrev_b32 v{T6}, 7, v{T6}", w={T6}, r={T6})
    V(f"v_bfe_u32 v{T7}, v{T5}, 1, 3", w={T7}, r={T5})
    V(f"v_xor_b32 v{T7}, v{T7}, v{T1}", w={T7}, r={T7, T1})
    V(f"v_lshl_add_u32 v{BX}, v{T7}, 4, v{T6}", w={BX}, r={T7, T6})
    V(f"v_lshlrev_b32 v{T6}, 2, v{T4}", w={T6}, r={T4})
    V(f"v_or_b32 v{T6}, v{T6}, v{T3}", w={T6}, r={T6, T3})
    V(f"v_xor_b32 v{T6}, v{T6}, v{T1}", w={T6}, r={T6, T1})
    V(f"v_lshlrev_b32 v{T7}, 8, v{T5}", w={T7}, r={T5})
    V(f"v_lshl_add_u32 v{BK}, v{T6}, 4, v{T7}", w={BK}, r={T6, T7})
    V(f"v_lshl_add_u32 v{T6}, v{T1}, 2, v{T3}", w={T6}, r={T1, T3})
    V(f"v_lshlrev_b32 v{T6}, 8, v{T6}", w={T6}, r={T6})
    V(f"v_lshrrev_b32 v{T7}, 1, v{T4}", w={T7}, r={T4})
    V(f"v_lshl_add_u32 v{T7}, v{T2}, 1, v{T7}", w={T7}, r={T2, T7})
    V(f"v_xor_b32 v{T7}, v{T7}, v{T1}", w={T7}, r={T7, T1})
    V(f"v_lshl_or_b32 v{T7}, v{T3}, 2, v{T7}", w={T7}, r={T3, T7})
    V(f"v_lshl_add_u32 v{T6}, v{T7}, 4, v{T6}", w={T6}, r={T7, T6})
    V(f"v_and_b32 v{T7}, 1, v{T4}", w={T7}, r={T4})
    V(f"v_lshl_add_u32 v{BV}, v{T7}, 3, v{T6}", w={BV}, r={T7, T6})
    V(f"v_lshlrev_b32 v{T6}, 17, v{T2}", w={T6}, r={T2})
    V(f"v_lshl_add_u32 v{T6}, v{T1}, 8, v{T6}", w={T6}, r={T1, T6})
    V(f"v_and_b32 v{T7}, 15, v{L}", w={T7}, r={L})
    V(f"v_lshl_add_u32 v{OST}, v{T7}, 4, v{T6}", w={OST}, r={T7, T6})
    V(f"v_mov_b32 v{LSUM}, 0", w={LSUM})
    A.waitcnt(lgkm=0)
    A.salu(f"s_cmp_eq_u32 s{sBLK}, 0")
    for k in range(8):
        A.salu(f"s_cselect_b32 s{8+k}, s{8+k}, s{16+k}")
    srd(A, SX, 8, 8 * 112 * 576 * 2)
    srd(A, SK, 10, 8 * 16 * 512 * 128 * 2)
    srd(A, SV, 12, 8 * 16 * 512 * 128 * 2)
    srd(A, SW_, 14, 576 * 4096 * 2)
    srd(A, SO, 24, 2 * O_BLK)
    A.salu(f"s_mul_i32 s{sOB}, s{sBLK}, {O_BLK}")
    A.salu(f"s_mul_i32 s3, s{sB}, 7")
    A.salu(f"s_lshl_b32 s{sT}, s{sRT}, 1")
    A.salu(f"s_add_u32 s3, s3, s{sT}")
    A.salu(f"s_lshl_b32 s3, s3, 17")
    A.salu(f"s_add_u32 s{sOB}, s{sOB}, s3")
    A.salu(f"s_lshl_b32 s3, s{sKVH}, 1")
    A.salu(f"s_add_u32 s3, s3, s{sHL}")
    A.salu(f"s_lshl_b32 s3, s3, 12")
    A.salu(f"s_add_u32 s{sOB}, s{sOB}, s3")
    if OPT["prio"]:
        A.salu(f"s_cmp_ge_u32 s{sW}, 4")
        A.salu("s_cbranch_scc0 K1_PRIO_DONE" if OPT["prio"] == 1 else "s_cbranch_scc1 K1_PRIO_DONE")
        A.salu("s_setprio 1")
        A.label("K1_PRIO_DONE")

    qunits = []
    for s_ in range(9):
        qunits += [("X", s_), ("W", 2 * s_), ("W", 2 * s_ + 1)]
    kvunits = []
    for j in range(4):
        kvunits += [("K", 2 * j), ("K", 2 * j + 1), ("V", 2 * j), ("V", 2 * j + 1)]
    units = qunits + kvunits
    stage_units = [list(range(3 * s_, 3 * s_ + 3)) for s_ in range(9)] + [list(range(27 + 4 * j, 31 + 4 * j)) for j in range(4)]
    unit_last_vm = {}
    unit_slot = {}
    free = list(range(NSLOT))
    nq = [0]; nkv = [0]; xch = []

    def issue_unit(u):
        typ, idx = units[u]
        slot = free.pop(0)
        unit_slot[u] = slot
        if typ == "X": base, const, sr_, vo = sXB, idx * 128, SX, XO
        elif typ == "W": base, const, sr_, vo = sWB, idx * 32 * 8192, SW_, WO
        elif typ == "K": base, const, sr_, vo = sKVB, idx * 64 * 256, SK, KO
        else: base, const, sr_, vo = sKVB, idx * 64 * 256, SV, KO
        A.salu(f"s_add_u32 s{sT}, s{base}, {const}")
        for q in range(2):
            A.salu(f"s_add_u32 m0, s{sWL}, {slot * SLOT + q * 1024}", m0w=True)
            nt = " nt" if OPT[{"X": "ntx", "W": "ntw", "K": "ntkv", "V": "ntkv"}[typ]] else ""
            k = A.vmem(f"buffer_load_dwordx4 v{vo+q}, s[{sr_}:{sr_+3}], s{sT} offen{nt} lds", kind="dma", r={vo + q}, m0r=True)
        unit_last_vm[u] = k

    NQ = OPT["nq"]
    def refill(s):
        done_q = 3 * max(s, 0) if s < 9 else 27
        while nq[0] < 27 and nq[0] - done_q < NQ and free:
            issue_unit(nq[0]); nq[0] += 1
        if OPT["fat"] and s == 8:
            xch.append(free.pop(0)); xch.append(free.pop(0))
        lim = 16
        if s < 9:
            lim = min(16, (s + 2) * OPT["kvrate"])
        inq = nq[0] - done_q if s < 9 else 0
        while nkv[0] < lim and free and (nq[0] == 27 or len(free) > NQ - inq):
            issue_unit(27 + nkv[0]); nkv[0] += 1

    def stage_begin(s):
        A.wait_ds_all()
        A.wait_vm(max(unit_last_vm[u] for u in stage_units[s]))
        A.barrier()
        if s > 0:
            for u in stage_units[s - 1]: free.append(unit_slot[u])
        if s == 10: free.extend(xch)
        refill(s)

    PF = Prof(A, 0)
    PF.stamp("start")
    refill(-1)
    if OPT["l2pf"]:
        V(f"v_lshrrev_b32 v{T1}, 2, v{L}", w={T1}, r={L})
        V(f"v_lshlrev_b32 v{T1}, 13, v{T1}", w={T1}, r={T1})
        V(f"v_and_b32 v{T2}, 3, v{L}", w={T2}, r={L})
        V(f"v_lshl_add_u32 v{T1}, v{T2}, 7, v{T1}", w={T1}, r={T2, T1})
        A.salu(f"s_lshl_b32 s3, s{sW}, 4")
        A.salu(f"s_min_u32 s3, s3, 56")
        A.salu(f"s_mul_i32 s{sT}, s{sB}, 72")
        A.salu(f"s_add_u32 s3, s3, s{sT}")
        A.salu(f"s_lshl_b32 s3, s3, 13")
        A.salu(f"s_add_u32 s3, s3, s{sWB}")
        A.vmem(f"buffer_load_dword v{T4}, v{T1}, s[{SW_}:{SW_+3}], s3 offen", w={T4}, r={T1})
        V(f"v_lshlrev_b32 v{T2}, 7, v{L}", w={T2}, r={L})
        A.salu(f"s_and_b32 s3, s{sKVH}, 3")
        A.salu(f"s_mul_i32 s3, s3, {28*1152}")
        A.salu(f"s_and_b32 s{sT}, s{sW}, 3")
        A.salu(f"s_lshl_b32 s{sT}, s{sT}, 13")
        A.salu(f"s_add_u32 s3, s3, s{sT}")
        A.salu(f"s_add_u32 s3, s3, s{sXB}")
        A.vmem(f"buffer_load_dword v{T5}, v{T2}, s[{SX}:{SX+3}], s3 offen", w={T5}, r={T2})

    def addr_set(dst, base, slot, xors):
        V(f"v_add_u32 v{dst}, {slot * SLOT}, v{base}", w={dst}, r={base})
        for i, x in enumerate(xors):
            if i == 0: continue
            V(f"v_xor_b32 v{dst+i}, {x}, v{dst}", w={dst + i}, r={dst})

    if not OPT["fat"]:
        QA = S
        FB = O
        AW = [P, P + 4]
        AX = P + 8
        first = True
        for s in range(9):
            stage_begin(s)
            PF.stamp(f"q{s}")
            u0 = 3 * s
            addr_set(AX, BX, unit_slot[u0], [0, 32, 64, 96])
            addr_set(AW[0], BW, unit_slot[u0 + 1], [0, 64, 128, 192])
            addr_set(AW[1], BW, unit_slot[u0 + 2], [0, 64, 128, 192])
            def reads(ks):
                fb = FB + (ks % 2) * 20
                last = A.ds_read_b128(fb + 16, AX + ks)
                for t in range(4):
                    for j in range(2):
                        last = A.ds_read_tr(fb + 4 * t + 2 * j, AW[ks // 2] + t, ((ks % 2) * 16 + 4 * j) * 512)
                return last
            pend = reads(0)
            for ks in range(4):
                A.wait_ds(pend)
                if ks < 3: pend = reads(ks + 1)
                fb = FB + (ks % 2) * 20
                for t in range(4):
                    A.mfma(QA + 16 * t, fb + 4 * t, fb + 16, "zero" if first else None)
                first = False
        for i in range(64):
            V(f"v_mul_f32 v{QA+i}, s{sC}, v{QA+i}", w={QA + i}, r={QA + i})
        for q in range(32):
            V(f"v_cvt_pk_bf16_f32 v{QB+q}, v{QA+2*q}, v{QA+2*q+1}", w={QB + q}, r={QA + 2 * q, QA + 2 * q + 1})
    else:
        QA = [S, O]
        FBW = [P, QB]; FBX = [P + 16, QB + 16]
        AW = [FR, FR + 4]; AX = FR + 8
        first = True
        for s in range(9):
            stage_begin(s)
            PF.stamp(f"q{s}")
            A.salu(f"s_cmp_ge_u32 s{sW}, 4")
            A.salu(f"s_cbranch_scc1 K1_QSKIP{s}")
            u0 = 3 * s
            addr_set(AX, BX, unit_slot[u0], [0, 32, 64, 96])
            addr_set(AW[0], BW, unit_slot[u0 + 1], [0, 64, 128, 192])
            addr_set(AW[1], BW, unit_slot[u0 + 2], [0, 64, 128, 192])
            def reads(ks):
                A.ds_read_b128(FBX[ks % 2], AX + ks)
                last = A.ds_read_b128(FBX[ks % 2] + 4, AX + ks, 4096)
                for t in range(4):
                    for j in range(2):
                        last = A.ds_read_tr(FBW[ks % 2] + 4 * t + 2 * j, AW[ks // 2] + t, ((ks % 2) * 16 + 4 * j) * 512)
                return last
            pend = reads(0)
            for ks in range(4):
                A.wait_ds(pend)
                if ks < 3: pend = reads(ks + 1)
                for t in range(4):
                    for r2 in range(2):
                        A.mfma(QA[r2] + 16 * t, FBW[ks % 2] + 4 * t, FBX[ks % 2] + 4 * r2, "zero" if first else None)
                first = False
            if s == 8:
                A.salu(f"s_lshr_b32 s3, s{sW}, 1")
                A.salu(f"s_cmp_eq_u32 s3, 0")
                A.salu(f"s_cselect_b32 s3, {xch[0]}, {xch[1]}")
                A.salu(f"s_lshl_b32 s3, s3, 14")
                A.salu(f"s_and_b32 s{sT}, s{sW}, 1")
                A.salu(f"s_lshl_b32 s{sT}, s{sT}, 13")
                A.salu(f"s_add_u32 s3, s3, s{sT}")
                V(f"v_mbcnt_lo_u32_b32 v{T6}, -1, 0", w={T6})
                V(f"v_mbcnt_hi_u32_b32 v{T6}, -1, v{T6}", w={T6}, r={T6})
                V(f"v_lshlrev_b32 v{T6}, 4, v{T6}", w={T6}, r={T6})
                V(f"v_add_u32 v{T6}, s3, v{T6}", w={T6}, r={T6})
                for i in range(64):
                    V(f"v_mul_f32 v{O+i}, s{sC}, v{O+i}", w={O + i}, r={O + i})
                for q in range(32):
                    V(f"v_cvt_pk_bf16_f32 v{P+q}, v{O+2*q}, v{O+2*q+1}", w={P + q}, r={O + 2 * q, O + 2 * q + 1})
                    if q % 4 == 3:
                        A.ds_write_b128(T6, P + q - 3, (q // 4) * 1024)
                for i in range(64):
                    V(f"v_mul_f32 v{S+i}, s{sC}, v{S+i}", w={S + i}, r={S + i})
                for q in range(32):
                    V(f"v_cvt_pk_bf16_f32 v{QB+q}, v{S+2*q}, v{S+2*q+1}", w={QB + q}, r={S + 2 * q, S + 2 * q + 1})
            A.label(f"K1_QSKIP{s}")
            A.salu("s_nop 1")

    def rowmax():
        V(f"v_max3_f32 v{MX}, v{S}, v{S+1}, v{S+2}", w={MX}, r={S, S + 1, S + 2})
        V(f"v_max3_f32 v{MX2}, v{S+3}, v{S+4}, v{S+5}", w={MX2}, r={S + 3, S + 4, S + 5})
        i = 6
        while i < 62:
            V(f"v_max3_f32 v{MX}, v{MX}, v{S+i}, v{S+i+1}", w={MX}, r={MX, S + i, S + i + 1})
            V(f"v_max3_f32 v{MX2}, v{MX2}, v{S+i+2}, v{S+i+3}", w={MX2}, r={MX2, S + i + 2, S + i + 3})
            i += 4
        V(f"v_max3_f32 v{MX}, v{MX}, v{S+62}, v{S+63}", w={MX}, r={MX, S + 62, S + 63})
        V(f"v_max_f32 v{MX}, v{MX}, v{MX2}", w={MX}, r={MX, MX2})
        V(f"v_mov_b32 v{MX2}, v{MX}", w={MX2}, r={MX})
        V(f"v_permlane32_swap_b32 v{MX}, v{MX2}", w={MX, MX2}, r={MX, MX2}, kind="perm")
        V(f"v_max_f32 v{MX}, v{MX}, v{MX2}", w={MX}, r={MX, MX2})

    slow_paths = []
    for j in range(4):
        s = 9 + j
        stage_begin(s)
        PF.stamp(f"a{j}")
        if OPT["fat"] and j == 0:
            A.salu(f"s_cmp_lt_u32 s{sW}, 4")
            A.salu(f"s_cbranch_scc1 K1_QGOT")
            A.salu(f"s_bfe_u32 s3, s{sW}, 0x10001")
            A.salu(f"s_cmp_eq_u32 s3, 0")
            A.salu(f"s_cselect_b32 s3, {xch[0]}, {xch[1]}")
            A.salu(f"s_lshl_b32 s3, s3, 14")
            A.salu(f"s_and_b32 s{sT}, s{sW}, 1")
            A.salu(f"s_lshl_b32 s{sT}, s{sT}, 13")
            A.salu(f"s_add_u32 s3, s3, s{sT}")
            V(f"v_mbcnt_lo_u32_b32 v{T6}, -1, 0", w={T6})
            V(f"v_mbcnt_hi_u32_b32 v{T6}, -1, v{T6}", w={T6}, r={T6})
            V(f"v_lshlrev_b32 v{T6}, 4, v{T6}", w={T6}, r={T6})
            V(f"v_add_u32 v{T6}, s3, v{T6}", w={T6}, r={T6})
            for q in range(8):
                A.ds_read_b128(QB + 4 * q, T6, q * 1024)
            A.wait_ds_all()
            A.label("K1_QGOT")
            A.salu("s_nop 1")
        if OPT["wopf"] and j == OPT["wopf"] - 1:
            A.salu("s_load_dwordx2 s[60:61], s[0:1], 32")
            A.salu("s_load_dwordx2 s[62:63], s[0:1], 72")
            A.salu(f"s_lshl_b32 s3, s{sB}, 4")
            A.salu(f"s_add_u32 s3, s3, s{sKVH}")
            A.salu(f"s_mul_i32 s3, s3, 288")
            A.salu(f"s_lshl_b32 s{sT}, s{sW}, 6")
            A.salu(f"s_min_u32 s{sT}, s{sT}, 224")
            A.salu(f"s_add_u32 s3, s3, s{sT}")
            A.salu(f"s_lshl_b32 s3, s3, 7")
            V(f"v_mbcnt_lo_u32_b32 v{T6}, -1, 0", w={T6})
            V(f"v_mbcnt_hi_u32_b32 v{T6}, -1, v{T6}", w={T6}, r={T6})
            V(f"v_lshlrev_b32 v{T6}, 7, v{T6}", w={T6}, r={T6})
            A.salu("s_waitcnt lgkmcnt(0)")
            A.salu(f"s_cmp_eq_u32 s{sBLK}, 0")
            A.salu("s_cselect_b32 s60, s60, s62")
            A.salu("s_cselect_b32 s61, s61, s63")
            A.salu("s_and_b32 s61, s61, 0xffff")
            A.salu(f"s_mov_b32 s62, {4096*576*2}")
            A.salu("s_mov_b32 s63, 0x00020000")
            A.vmem(f"buffer_load_dword v{T7}, v{T6}, s[60:63], s3 offen", w={T7}, r={T6})
        u0 = 27 + 4 * j
        sl = [unit_slot[u0 + i] for i in range(4)]
        kx = [32 * ks for ks in range(8)]
        addr_set(AD, BK, sl[0], kx)
        kadj = (sl[1] == sl[0] + 1)
        seq = [(kt, ks) for kt in range(4) for ks in range(8)]
        ids = {}
        def kread(i):
            kt, ks = seq[i]
            if kt == 2 and ks == 0 and not kadj:
                pass
            off = (kt % 2) * 8192 + ((kt // 2) * SLOT if kadj else 0)
            ids[i] = A.ds_read_b128(FR + 4 * (i % 4), AD + ks, off)
        for i in range(4): kread(i)
        for i in range(32):
            kt, ks = seq[i]
            A.wait_ds(ids[i])
            c = None
            if ks == 0: c = "zero" if j == 0 else NEGM
            A.mfma(S + 16 * kt, FR + 4 * (i % 4), QB + 4 * ks, c)
            if i + 4 < 32:
                if i + 4 == 16 and not kadj:
                    addr_set(AD, BK, sl[1], kx)
                kread(i + 4)
        vx = [(t << 6) ^ (32 * jj) for t in range(4) for jj in range(2)]
        addr_set(AD, BV, sl[2], vx)
        vadj = (sl[3] == sl[2] + 1)
        vseq = [(g, t) for g in range(8) for t in range(4)]
        vids = {}
        def vread(i):
            g, t = vseq[i]
            off = (g % 4) * 4096 + ((g // 4) * SLOT if vadj else 0)
            A.ds_read_tr(FR + 4 * (i % 4), AD + 2 * t, off)
            vids[i] = A.ds_read_tr(FR + 4 * (i % 4) + 2, AD + 2 * t + 1, off + 2048)
        for i in range(4): vread(i)
        PF.stamp(f"qk{j}")
        if j == 0:
            rowmax()
            for i in range(16):
                V(f"v_sub_f32 v{NEGM+i}, 0, v{MX}", w={NEGM + i}, r={MX})
            for i in range(64):
                V(f"v_sub_f32 v{S+i}, v{S+i}, v{MX}", w={S + i}, r={S + i, MX})
        A.label(f"K1_FAST{j}")
        ta = [T0, T1]; tb = [T2, T3]
        for p in range(33):
            if p < 32:
                V(f"v_exp_f32 v{ta[p%2]}, v{S+2*p}", w={ta[p % 2]}, r={S + 2 * p}, kind="trans")
                V(f"v_exp_f32 v{tb[p%2]}, v{S+2*p+1}", w={tb[p % 2]}, r={S + 2 * p + 1}, kind="trans")
            if p > 0:
                a_, b_ = ta[(p - 1) % 2], tb[(p - 1) % 2]
                if p == 1:
                    V(f"v_mov_b32 v{SUMA}, v{a_}", w={SUMA}, r={a_})
                    V(f"v_mov_b32 v{SUMB}, v{b_}", w={SUMB}, r={b_})
                else:
                    V(f"v_add_f32 v{SUMA}, v{SUMA}, v{a_}", w={SUMA}, r={SUMA, a_})
                    V(f"v_add_f32 v{SUMB}, v{SUMB}, v{b_}", w={SUMB}, r={SUMB, b_})
                V(f"v_cvt_pk_bf16_f32 v{P+p-1}, v{a_}, v{b_}", w={P + p - 1}, r={a_, b_})
        V(f"v_add_f32 v{SUMA}, v{SUMA}, v{SUMB}", w={SUMA}, r={SUMA, SUMB})
        V(f"v_cmp_nle_f32 vcc, v{SUMA}, v{SUMA}" if False else f"v_cmp_nge_f32 vcc, s{sTHR}, v{SUMA}", r={SUMA}, sw={"vcc"})
        A.salu("s_nop 1")
        A.salu(f"s_and_b64 vcc, vcc, s[{sMASK}:{sMASK+1}]")
        A.salu(f"s_cbranch_vccnz K1_SLOW{j}")
        A.salu(f"s_mov_b64 s[{sMASK}:{sMASK+1}], -1")
        V(f"v_add_f32 v{LSUM}, v{LSUM}, v{SUMA}", w={LSUM}, r={LSUM, SUMA})
        slow_paths.append(j)
        PF.stamp(f"sm{j}")
        for i in range(32):
            g, t = vseq[i]
            A.wait_ds(vids[i])
            c = "zero" if (j == 0 and g == 0) else None
            A.mfma(O + 16 * t, FR + 4 * (i % 4), P + 4 * g, c)
            if i + 4 < 32:
                if i + 4 == 16 and not vadj:
                    addr_set(AD, BV, sl[3], vx)
                vread(i + 4)
    PF.stamp("pv3")
    V(f"v_mov_b32 v{T0}, v{LSUM}", w={T0}, r={LSUM})
    V(f"v_permlane32_swap_b32 v{T0}, v{LSUM}", w={T0, LSUM}, r={T0, LSUM}, kind="perm")
    V(f"v_add_f32 v{T0}, v{T0}, v{LSUM}", w={T0}, r={T0, LSUM})
    V(f"v_rcp_f32 v{T0}, v{T0}", w={T0}, r={T0}, kind="trans")
    A.salu(f"s_cmp_eq_u32 s{sRT}, 3")
    A.salu("s_cbranch_scc0 K1_NOMASK")
    A.salu("s_mov_b32 exec_lo, 0xffff")
    A.salu("s_mov_b32 exec_hi, 0xffff")
    A.label("K1_NOMASK")
    for f in range(8):
        b0 = O + 8 * f
        for i in range(8):
            V(f"v_mul_f32 v{b0+i}, v{T0}, v{b0+i}", w={b0 + i}, r={T0, b0 + i})
        d = P + 4 * f
        for q in range(4):
            V(f"v_cvt_pk_bf16_f32 v{d+q}, v{b0+2*q}, v{b0+2*q+1}", w={d + q}, r={b0 + 2 * q, b0 + 2 * q + 1})
        A.vmem(f"buffer_store_dwordx4 {vname(d,4)}, v{OST}, s[{SO}:{SO+3}], s{sOB} offen offset:{f*512}{' nt' if OPT['ntst'] else ''}", r=vr(d, 4) | {OST}, storedata=vr(d, 4))
    PF.dump(24, sW, 0)
    A.label("K1_END")
    A.salu("s_endpgm")
    for j in slow_paths:
        A.label(f"K1_SLOW{j}")
        A.flush_hazards()
        rowmax()
        V(f"v_max_f32 v{MX}, 0, v{MX}", w={MX}, r={MX})
        V(f"v_sub_f32 v{MX2}, 0, v{MX}", w={MX2}, r={MX})
        V(f"v_exp_f32 v{MX2}, v{MX2}", w={MX2}, r={MX2}, kind="trans")
        if j > 0:
            for i in range(64):
                V(f"v_mul_f32 v{O+i}, v{MX2}, v{O+i}", w={O + i}, r={MX2, O + i})
        V(f"v_mul_f32 v{LSUM}, v{MX2}, v{LSUM}", w={LSUM}, r={MX2, LSUM})
        for i in range(16):
            V(f"v_sub_f32 v{NEGM+i}, v{NEGM+i}, v{MX}", w={NEGM + i}, r={NEGM + i, MX})
        for i in range(64):
            V(f"v_sub_f32 v{S+i}, v{S+i}, v{MX}", w={S + i}, r={S + i, MX})
        A.salu(f"s_mov_b64 s[{sMASK}:{sMASK+1}], 0")
        A.flush_hazards()
        A.salu(f"s_branch K1_FAST{j}")

def gen_k2(A):
    V = A.valu
    T0, T1, T2, T3, T4, T5, T6, T7 = range(0, 8)
    WOFF = 8
    OOFF = 12
    BA = 13
    RED = 15
    AF = 16
    OF = 48
    ACC = 112
    sBLK, sMT, sNT, sW = 26, 27, 4, 5
    SW_, SO, SOUT = 28, 32, 36
    sWL, sWB, sO0, sO1, sT = 48, 49, 50, 51, 52
    A.win = []
    A.nds = A.ds_done = A.nvm = A.vm_done = 0
    A.raw(f".p2align 8\n.globl k2_kernel\n.type k2_kernel,@function\nk2_kernel:")
    A.salu("s_cmp_ge_u32 s2, 256")
    A.salu("s_cbranch_scc1 K2_END")
    A.salu("s_and_b32 s3, s2, 7")
    A.salu("s_lshl_b32 s3, s3, 5")
    A.salu("s_lshr_b32 s6, s2, 3")
    A.salu("s_add_u32 s3, s3, s6")
    A.salu("s_cmp_ge_u32 s3, 252")
    A.salu("s_cbranch_scc1 K2_END")
    A.salu("s_load_dwordx2 s[8:9], s[0:1], 32")
    A.salu("s_load_dwordx2 s[10:11], s[0:1], 72")
    A.salu("s_load_dwordx2 s[12:13], s[0:1], 80")
    A.salu("s_load_dwordx2 s[14:15], s[0:1], 96")
    A.salu("s_cmp_ge_u32 s3, 126")
    A.salu(f"s_cselect_b32 s{sBLK}, 1, 0")
    A.salu(f"s_mul_i32 s6, s{sBLK}, 126")
    A.salu("s_sub_u32 s3, s3, s6")
    A.salu("s_mul_i32 s6, s3, 57")
    A.salu(f"s_lshr_b32 s{sMT}, s6, 9")
    A.salu(f"s_mul_i32 s6, s{sMT}, 9")
    A.salu(f"s_sub_u32 s{sNT}, s3, s6")
    V(f"v_lshrrev_b32 v{T1}, 6, v0", w={T1}, r={0})
    A._emit(I(f"v_readfirstlane_b32 s{sW}, v{T1}", "rdlane", r={T1}, sw={sW}))
    V(f"v_and_b32 v{T0}, 63, v0", w={T0}, r={0})
    L = T0
    A.salu(f"s_lshl_b32 s{sWL}, s{sW}, 14", sr={sW})
    A.salu(f"s_mul_i32 s{sWB}, s{sW}, {512*1152}", sr={sW})
    A.salu(f"s_lshl_b32 s6, s{sNT}, 7")
    A.salu(f"s_add_u32 s{sWB}, s{sWB}, s6")
    A.salu(f"s_mul_i32 s{sO0}, s{sBLK}, {O_BLK}")
    A.salu(f"s_lshl_b32 s6, s{sMT}, 19")
    A.salu(f"s_add_u32 s{sO0}, s{sO0}, s6")
    A.salu(f"s_lshl_b32 s6, s{sW}, 14")
    A.salu(f"s_add_u32 s{sO0}, s{sO0}, s6")
    A.salu(f"s_add_u32 s{sO1}, s{sO0}, {2*131072}")
    V(f"v_lshrrev_b32 v{T1}, 3, v{L}", w={T1}, r={L})
    V(f"v_mul_u32_u24 v{T1}, 1152, v{T1}", w={T1}, r={T1})
    V(f"v_bfe_u32 v{T2}, v{L}, 4, 1", w={T2}, r={L})
    V(f"v_lshlrev_b32 v{T3}, 2, v{T2}", w={T3}, r={T2})
    V(f"v_and_b32 v{T4}, 7, v{L}", w={T4}, r={L})
    V(f"v_xor_b32 v{T4}, v{T4}, v{T3}", w={T4}, r={T4, T3})
    V(f"v_lshl_add_u32 v{WOFF}, v{T4}, 4, v{T1}", w={WOFF}, r={T4, T1})
    for i in range(1, 4):
        V(f"v_add_u32 v{WOFF+i}, {9216*i}, v{WOFF}", w={WOFF + i}, r={WOFF})
    V(f"v_lshrrev_b32 v{T1}, 5, v{L}", w={T1}, r={L})
    V(f"v_bfe_u32 v{T3}, v{L}, 2, 2", w={T3}, r={L})
    V(f"v_and_b32 v{T4}, 3, v{L}", w={T4}, r={L})
    V(f"v_lshlrev_b32 v{T6}, 17, v{T2}", w={T6}, r={T2})
    V(f"v_lshl_add_u32 v{T6}, v{T1}, 8, v{T6}", w={T6}, r={T1, T6})
    V(f"v_and_b32 v{T7}, 15, v{L}", w={T7}, r={L})
    V(f"v_lshl_add_u32 v{OOFF}, v{T7}, 4, v{T6}", w={OOFF}, r={T7, T6})
    V(f"v_lshl_add_u32 v{T6}, v{T1}, 2, v{T3}", w={T6}, r={T1, T3})
    V(f"v_lshlrev_b32 v{T6}, 7, v{T6}", w={T6}, r={T6})
    V(f"v_lshrrev_b32 v{T7}, 1, v{T4}", w={T7}, r={T4})
    V(f"v_lshl_add_u32 v{T7}, v{T2}, 1, v{T7}", w={T7}, r={T2, T7})
    V(f"v_lshrrev_b32 v{T5}, 1, v{T3}", w={T5}, r={T3})
    V(f"v_lshlrev_b32 v{T5}, 2, v{T5}", w={T5}, r={T5})
    V(f"v_xor_b32 v{T7}, v{T7}, v{T5}", w={T7}, r={T7, T5})
    V(f"v_lshl_add_u32 v{T6}, v{T7}, 4, v{T6}", w={T6}, r={T7, T6})
    V(f"v_and_b32 v{T7}, 1, v{T4}", w={T7}, r={T4})
    V(f"v_lshl_add_u32 v{T6}, v{T7}, 3, v{T6}", w={T6}, r={T7, T6})
    V(f"v_add_u32 v{BA}, s{sWL}, v{T6}", w={BA}, r={T6})
    V(f"v_xor_b32 v{BA+1}, 64, v{BA}", w={BA + 1}, r={BA})
    V(f"v_lshlrev_b32 v{RED}, 4, v{L}", w={RED}, r={L})
    A.waitcnt(lgkm=0)
    A.salu(f"s_cmp_eq_u32 s{sBLK}, 0")
    A.salu("s_cselect_b32 s8, s8, s10")
    A.salu("s_cselect_b32 s9, s9, s11")
    srd(A, SW_, 8, 4096 * 576 * 2)
    srd(A, SO, 14, 2 * O_BLK)
    srd(A, SOUT, 12, 896 * 1152 * 2)

    NU = 16; DEPTH = 4
    last_vm = {}
    def issue(u):
        slot = u % DEPTH
        A.salu(f"s_add_u32 s{sT}, s{sWB}, {u * 32 * 1152}")
        for i in range(4):
            A.salu(f"s_add_u32 m0, s{sWL}, {slot * 4096 + i * 1024}", m0w=True)
            A.vmem(f"buffer_load_dwordx4 v{WOFF+i}, s[{SW_}:{SW_+3}], s{sT} offen{' nt' if OPT['ntwo'] else ''} lds", kind="dma", r={WOFF + i}, m0r=True)
        for ks in range(2):
            for tm in range(2):
                d = OF + slot * 16 + (ks * 2 + tm) * 4
                off = (2 * u + ks) * 512
                sb = sO0 if tm == 0 else sO1
                if off >= 4096:
                    A.salu(f"s_add_u32 s{sT}, s{sb}, {off & ~4095}")
                    k = A.vmem(f"buffer_load_dwordx4 {vname(d,4)}, v{OOFF}, s[{SO}:{SO+3}], s{sT} offen offset:{off & 4095}{' nt' if OPT['nto'] else ''}", w=vr(d, 4), r={OOFF})
                else:
                    k = A.vmem(f"buffer_load_dwordx4 {vname(d,4)}, v{OOFF}, s[{SO}:{SO+3}], s{sb} offen offset:{off}{' nt' if OPT['nto'] else ''}", w=vr(d, 4), r={OOFF})
        last_vm[u] = k
    def dsreads(u):
        slot = u % DEPTH
        ab = AF + (u % 2) * 16
        for ks in range(2):
            for tn in range(2):
                for j in range(2):
                    k = A.ds_read_tr(ab + (ks * 2 + tn) * 4 + 2 * j, BA + tn, slot * 4096 + (16 * ks + 8 * j) * 128)
        return k
    PF = Prof(A, 1)
    PF.stamp("start")
    for u in range(DEPTH): issue(u)
    A.wait_vm(last_vm[0])
    pend = dsreads(0)
    for u in range(NU):
        A.wait_ds(pend)
        if u + 1 < NU:
            A.wait_vm(last_vm[u + 1])
            pend = dsreads(u + 1)
        ab = AF + (u % 2) * 16
        ob = OF + (u % DEPTH) * 16
        for ks in range(2):
            for tn in range(2):
                for tm in range(2):
                    c = "zero" if (u == 0 and ks == 0) else None
                    A.mfma(ACC + (tn * 2 + tm) * 16, ab + (ks * 2 + tn) * 4, ob + (ks * 2 + tm) * 4, c)
        if u + DEPTH < NU: issue(u + DEPTH)
        PF.stamp(f"u{u}")
    A.wait_ds_all()
    A.barrier()
    V(f"v_add_u32 v{T1}, s{sWL}, v{RED}", w={T1}, r={RED})
    for q in range(16):
        A.ds_write_b128(T1, ACC + 4 * q, q * 1024)
    A.wait_ds_all()
    A.barrier()
    A.salu(f"s_lshl_b32 s6, s{sW}, 11")
    V(f"v_add_u32 v{T1}, s6, v{RED}", w={T1}, r={RED})
    V(f"v_add_u32 v{T2}, 0x10000, v{T1}", w={T2}, r={T1})
    R = OF
    for ww in range(8):
        for q in range(2):
            A.ds_read_b128(R + (ww * 2 + q) * 4, T1 if ww < 4 else T2, (ww % 4) * 16384 + q * 1024)
            if ww == 6 and q == 1: pass
        if ww == 5:
            A.wait_ds_all()
    A.wait_ds_all()
    for ww in range(1, 8):
        for i in range(8):
            V(f"v_add_f32 v{R+i}, v{R+i}, v{R+ww*8+i}", w={R + i}, r={R + i, R + ww * 8 + i})
    for q in range(4):
        V(f"v_cvt_pk_bf16_f32 v{AF+q}, v{R+2*q}, v{R+2*q+1}", w={AF + q}, r={R + 2 * q, R + 2 * q + 1})
    A.salu(f"s_lshr_b32 s6, s{sW}, 1")
    A.salu("s_and_b32 s7, s6, 1")
    A.salu("s_lshr_b32 s6, s6, 1")
    A.salu(f"s_lshl_b32 s3, s{sMT}, 6")
    A.salu("s_lshl_b32 s7, s7, 5")
    A.salu("s_add_u32 s3, s3, s7")
    A.salu("s_mul_i32 s3, s3, 2304")
    A.salu(f"s_mul_i32 s7, s{sBLK}, 1152")
    A.salu("s_add_u32 s3, s3, s7")
    A.salu(f"s_lshl_b32 s7, s{sNT}, 7")
    A.salu("s_add_u32 s3, s3, s7")
    A.salu("s_lshl_b32 s7, s6, 6")
    A.salu("s_add_u32 s3, s3, s7")
    A.salu(f"s_and_b32 s7, s{sW}, 1")
    A.salu("s_lshl_b32 s7, s7, 5")
    A.salu("s_add_u32 s3, s3, s7")
    V(f"v_and_b32 v{T1}, 31, v{L}", w={T1}, r={L})
    V(f"v_mul_u32_u24 v{T1}, 2304, v{T1}", w={T1}, r={T1})
    V(f"v_lshrrev_b32 v{T2}, 5, v{L}", w={T2}, r={L})
    V(f"v_lshl_add_u32 v{T1}, v{T2}, 3, v{T1}", w={T1}, r={T2, T1})
    A.vmem(f"buffer_store_dwordx2 {vname(AF,2)}, v{T1}, s[{SOUT}:{SOUT+3}], s3 offen", r=vr(AF, 2) | {T1})
    A.vmem(f"buffer_store_dwordx2 {vname(AF+2,2)}, v{T1}, s[{SOUT}:{SOUT+3}], s3 offen offset:16", r=vr(AF + 2, 2) | {T1})
    PF.dump(14, sW, 0)
    A.label("K2_END")
    A.salu("s_endpgm")

def kd(name, vgpr, sgpr):
    return f""".amdhsa_kernel {name}
  .amdhsa_next_free_vgpr {vgpr}
  .amdhsa_next_free_sgpr {sgpr}
  .amdhsa_accum_offset {(vgpr + 3) // 4 * 4}
  .amdhsa_group_segment_fixed_size 0
  .amdhsa_kernarg_size 104
  .amdhsa_user_sgpr_count 2
  .amdhsa_user_sgpr_kernarg_segment_ptr 1
  .amdhsa_system_sgpr_workgroup_id_x 1
.end_amdhsa_kernel
"""

def main():
    A = Asm()
    gen_k1(A)
    gen_k2(A)
    head = """; Two-launch GQA block pair: k1 = Q projection + attention (o -> ws), k2 = output projection.
; @launch kernel=k1_kernel grid=(256,1,1) block=(512,1,1) lds=163840
; @launch kernel=k2_kernel grid=(256,1,1) block=(512,1,1) lds=131072
.amdgcn_target "amdgcn-amd-amdhsa--gfx950"
.text
"""
    tail = '\n.section .rodata,"a"\n.p2align 6\n' + kd("k1_kernel", 256, 102 if OPT["prof"] else 64) + ".p2align 6\n" + kd("k2_kernel", 176, 102 if OPT["prof"] else 64)
    open(sys.argv[1], "w").write(head + A.text() + tail)
    print("nops inserted:", A.nops_inserted, "lines:", len(A.out))

main()
```

```python
import sys, math
sys.path.insert(0, "gen")
from asmlib import *

NAME = "concat_heads__gqa_block_cached__gqa_block_cached__near_ridge"
OPT = dict(prio=1, prof=0, ntkv=1, ntw=0, ntx=0, ntwo=0, nto=0, ntst=0, nq=6, kvrate=1, l2pf=1, wopf=3, fat=1)
for a in sys.argv[2:]:
    k, v = a.split("="); OPT[k] = int(v)

O_BLK = 896 * 4096 * 2
SLOT = 16384
NSLOT = 10

def srd(A, d, base, nbytes):
    A.salu(f"s_mov_b32 s{d}, s{base}")
    A.salu(f"s_and_b32 s{d+1}, s{base+1}, 0xffff")
    A.salu(f"s_mov_b32 s{d+2}, {nbytes}")
    A.salu(f"s_mov_b32 s{d+3}, 0x00020000")

class Prof:
    def __init__(self, A, kidx):
        self.A = A; self.n = 0; self.names = []; self.kidx = kidx
    def stamp(self, name):
        if not OPT["prof"]: return
        A = self.A
        assert self.n < 30
        A.salu("s_waitcnt lgkmcnt(0)")
        A.ds_done = A.nds
        A.salu("s_memtime s[96:97]")
        A.salu("s_waitcnt lgkmcnt(0)")
        A.salu(f"s_mov_b32 s{64+self.n}, s96")
        if self.n == 0:
            A.salu("s_memrealtime s[98:99]")
            A.salu("s_waitcnt lgkmcnt(0)")
        self.n += 1; self.names.append(name)
    def dump(self, wsreg, sW, tmp):
        if not OPT["prof"]: return
        A = self.A
        self.stamp("end")
        A.salu("s_memrealtime s[96:97]")
        A.salu("s_waitcnt lgkmcnt(0)")
        A.salu("s_mov_b64 exec, -1")
        A.salu("s_nop 4")
        for i in range(self.n):
            A.salu(f"v_writelane_b32 v{tmp}, s{64+i}, {i}")
        A.salu("s_getreg_b32 s97, hwreg(HW_REG_HW_ID)")
        A.salu(f"v_writelane_b32 v{tmp}, s97, 29")
        A.salu(f"v_writelane_b32 v{tmp}, s98, 30")
        A.salu(f"v_writelane_b32 v{tmp}, s96, 31")
        A.salu(f"s_mov_b32 s60, s{wsreg}")
        A.salu(f"s_and_b32 s61, s{wsreg+1}, 0xffff")
        A.salu("s_mov_b32 s62, 0x10000000")
        A.salu("s_mov_b32 s63, 0x00020000")
        A.salu("s_lshl_b32 s96, s2, 3")
        A.salu(f"s_add_u32 s96, s96, s{sW}")
        A.salu("s_lshl_b32 s96, s96, 7")
        A.salu(f"s_add_u32 s96, s96, {255*1024*1024 + self.kidx*512*1024}")
        A.salu(f"v_mbcnt_lo_u32_b32 v{tmp+1}, -1, 0")
        A.salu(f"v_mbcnt_hi_u32_b32 v{tmp+1}, -1, v{tmp+1}")
        A.salu(f"v_lshlrev_b32 v{tmp+1}, 2, v{tmp+1}")
        A.salu("s_mov_b64 exec, 0xffffffff")
        A.salu("s_nop 4")
        A.salu(f"buffer_store_dword v{tmp}, v{tmp+1}, s[60:63], s96 offen")
        print("stamps k%d:" % self.kidx, self.names)

def gen_k1(A):
    V = A.valu
    T0, T1, T2, T3, T4, T5, T6, T7 = range(0, 8)
    XO, WO, KO = 8, 10, 12
    BW, BX, BK, BV = 14, 15, 16, 17
    LSUM, OST = 18, 19
    SUMA, SUMB, MX, MX2 = 20, 21, 22, 23
    AD = 24
    FR = 32
    NEGM = 48
    QB = 64
    S = 96
    O = 160
    P = 224
    sBLK, sKVH, sB, sW, sHL, sRT = 26, 27, 4, 5, 6, 7
    SX, SW_, SK, SV, SO = 28, 32, 36, 40, 44
    sWL, sXB, sWB, sKVB, sT, sOB = 48, 49, 50, 51, 52, 53
    sMASK, sTHR, sC = 54, 56, 57

    A.raw(f".p2align 8\n.globl k1_kernel\n.type k1_kernel,@function\nk1_kernel:")
    A.salu("s_cmp_ge_u32 s2, 256")
    A.salu("s_cbranch_scc1 K1_END")
    A.salu("s_load_dwordx8 s[8:15], s[0:1], 0")
    A.salu("s_load_dwordx8 s[16:23], s[0:1], 40")
    A.salu("s_load_dwordx2 s[24:25], s[0:1], 96")
    A.salu("s_and_b32 s3, s2, 7")
    A.salu(f"s_lshr_b32 s{sB}, s2, 3")
    A.salu(f"s_lshr_b32 s{sBLK}, s3, 2")
    A.salu("s_and_b32 s3, s3, 3")
    A.salu("s_lshl_b32 s3, s3, 2")
    A.salu(f"s_and_b32 s{sKVH}, s{sB}, 3")
    A.salu(f"s_add_u32 s{sKVH}, s{sKVH}, s3")
    A.salu(f"s_lshr_b32 s{sB}, s{sB}, 2")
    V(f"v_lshrrev_b32 v{T1}, 6, v0", w={T1}, r={0})
    A._emit(I(f"v_readfirstlane_b32 s{sW}, v{T1}", "rdlane", r={T1}, sw={sW}))
    V(f"v_and_b32 v{T0}, 63, v0", w={T0}, r={0})
    if OPT["fat"]:
        A.salu(f"s_bfe_u32 s{sHL}, s{sW}, 0x10001", sr={sW})
        A.salu(f"s_and_b32 s{sRT}, s{sW}, 1", sr={sW})
        A.salu(f"s_lshl_b32 s{sRT}, s{sRT}, 1")
        A.salu(f"s_lshr_b32 s3, s{sW}, 2", sr={sW})
        A.salu(f"s_add_u32 s{sRT}, s{sRT}, s3")
    else:
        A.salu(f"s_lshr_b32 s{sHL}, s{sW}, 2", sr={sW})
        A.salu(f"s_and_b32 s{sRT}, s{sW}, 3", sr={sW})
    A.salu(f"s_lshl_b32 s{sWL}, s{sW}, 11", sr={sW})
    A.salu(f"s_mul_i32 s{sXB}, s{sB}, 129024")
    A.salu(f"s_lshl_b32 s{sWB}, s{sKVH}, 9")
    A.salu(f"s_lshl_b32 s{sKVB}, s{sB}, 4")
    A.salu(f"s_add_u32 s{sKVB}, s{sKVB}, s{sKVH}")
    A.salu(f"s_lshl_b32 s{sKVB}, s{sKVB}, 17")
    A.salu(f"s_mov_b32 s{sTHR}, 0x4b800000")
    c = math.log2(math.e) / math.sqrt(128.0)
    import struct
    cbits = struct.unpack("<I", struct.pack("<f", c))[0]
    A.salu(f"s_mov_b32 s{sC}, {cbits:#x}")
    A.salu(f"s_mov_b64 s[{sMASK}:{sMASK+1}], -1")
    L = T0
    for q in range(2):
        V(f"v_lshrrev_b32 v{T1}, 3, v{L}", w={T1}, r={L})
        A.salu(f"s_lshl_b32 s3, s{sW}, 4")
        A.salu(f"s_add_u32 s3, s3, {8*q}")
        V(f"v_add_u32 v{T1}, s3, v{T1}", w={T1}, r={T1})
        V(f"v_mul_u32_u24 v{T1}, 1152, v{T1}", w={T1}, r={T1})
        V(f"v_and_b32 v{T2}, 7, v{L}", w={T2}, r={L})
        V(f"v_lshrrev_b32 v{T3}, 4, v{L}", w={T3}, r={L})
        V(f"v_xor_b32 v{T2}, v{T2}, v{T3}", w={T2}, r={T2, T3})
        if q: V(f"v_xor_b32 v{T2}, 4, v{T2}", w={T2}, r={T2})
        V(f"v_lshl_add_u32 v{XO+q}, v{T2}, 4, v{T1}", w={XO+q}, r={T2, T1})
        V(f"v_lshrrev_b32 v{T3}, 5, v{L}", w={T3}, r={L})
        A.salu(f"s_lshl_b32 s3, s{sW}, 2")
        A.salu(f"s_add_u32 s3, s3, {2*q}")
        V(f"v_add_u32 v{T1}, s3, v{T3}", w={T1}, r={T3})
        V(f"v_lshlrev_b32 v{T1}, 13, v{T1}", w={T1}, r={T1})
        V(f"v_or_b32 v{T3}, {2*q}, v{T3}", w={T3}, r={T3})
        V(f"v_lshlrev_b32 v{T3}, 2, v{T3}", w={T3}, r={T3})
        V(f"v_and_b32 v{T2}, 31, v{L}", w={T2}, r={L})
        V(f"v_xor_b32 v{T2}, v{T2}, v{T3}", w={T2}, r={T2, T3})
        V(f"v_lshl_add_u32 v{WO+q}, v{T2}, 4, v{T1}", w={WO+q}, r={T2, T1})
        V(f"v_lshrrev_b32 v{T3}, 4, v{L}", w={T3}, r={L})
        A.salu(f"s_lshl_b32 s3, s{sW}, 3")
        A.salu(f"s_add_u32 s3, s3, {4*q}")
        V(f"v_add_u32 v{T1}, s3, v{T3}", w={T1}, r={T3})
        V(f"v_lshlrev_b32 v{T1}, 8, v{T1}", w={T1}, r={T1})
        A.salu(f"s_and_b32 s3, s{sW}, 1")
        A.salu(f"s_lshl_b32 s3, s3, 1")
        A.salu(f"s_or_b32 s3, s3, {q}")
        V(f"v_lshlrev_b32 v{T3}, 2, v{T3}", w={T3}, r={T3})
        V(f"v_or_b32 v{T3}, s3, v{T3}", w={T3}, r={T3})
        V(f"v_and_b32 v{T2}, 15, v{L}", w={T2}, r={L})
        V(f"v_xor_b32 v{T2}, v{T2}, v{T3}", w={T2}, r={T2, T3})
        V(f"v_lshl_add_u32 v{KO+q}, v{T2}, 4, v{T1}", w={KO+q}, r={T2, T1})
    V(f"v_lshrrev_b32 v{T1}, 5, v{L}", w={T1}, r={L})
    V(f"v_bfe_u32 v{T2}, v{L}, 4, 1", w={T2}, r={L})
    V(f"v_bfe_u32 v{T3}, v{L}, 2, 2", w={T3}, r={L})
    V(f"v_and_b32 v{T4}, 3, v{L}", w={T4}, r={L})
    V(f"v_and_b32 v{T5}, 31, v{L}", w={T5}, r={L})
    V(f"v_lshl_add_u32 v{T6}, v{T1}, 3, v{T3}", w={T6}, r={T1, T3})
    V(f"v_lshlrev_b32 v{T6}, 9, v{T6}", w={T6}, r={T6})
    V(f"v_lshlrev_b32 v{T7}, 2, v{T3}", w={T7}, r={T3})
    V(f"v_lshl_add_u32 v{T7}, v{T2}, 1, v{T7}", w={T7}, r={T2, T7})
    V(f"v_and_b32 v{BW}, 1, v{T4}", w={BW}, r={T4})
    V(f"v_add_u32 v{T7}, v{T7}, v{BW}", w={T7}, r={T7, BW})
    A.salu(f"s_lshl_b32 s3, s{sHL}, 4")
    V(f"v_add_u32 v{T7}, s3, v{T7}", w={T7}, r={T7})
    V(f"v_lshl_add_u32 v{T6}, v{T7}, 4, v{T6}", w={T6}, r={T7, T6})
    V(f"v_lshrrev_b32 v{T7}, 1, v{T4}", w={T7}, r={T4})
    V(f"v_lshl_add_u32 v{BW}, v{T7}, 3, v{T6}", w={BW}, r={T7, T6})
    A.salu(f"s_lshl_b32 s3, s{sRT}, 5")
    V(f"v_add_u32 v{T6}, s3, v{T5}", w={T6}, r={T5})
    V(f"v_lshlrev_b32 v{T6}, 7, v{T6}", w={T6}, r={T6})
    V(f"v_bfe_u32 v{T7}, v{T5}, 1, 3", w={T7}, r={T5})
    V(f"v_xor_b32 v{T7}, v{T7}, v{T1}", w={T7}, r={T7, T1})
    V(f"v_lshl_add_u32 v{BX}, v{T7}, 4, v{T6}", w={BX}, r={T7, T6})
    V(f"v_lshlrev_b32 v{T6}, 2, v{T4}", w={T6}, r={T4})
    V(f"v_or_b32 v{T6}, v{T6}, v{T3}", w={T6}, r={T6, T3})
    V(f"v_xor_b32 v{T6}, v{T6}, v{T1}", w={T6}, r={T6, T1})
    V(f"v_lshlrev_b32 v{T7}, 8, v{T5}", w={T7}, r={T5})
    V(f"v_lshl_add_u32 v{BK}, v{T6}, 4, v{T7}", w={BK}, r={T6, T7})
    V(f"v_lshl_add_u32 v{T6}, v{T1}, 2, v{T3}", w={T6}, r={T1, T3})
    V(f"v_lshlrev_b32 v{T6}, 8, v{T6}", w={T6}, r={T6})
    V(f"v_lshrrev_b32 v{T7}, 1, v{T4}", w={T7}, r={T4})
    V(f"v_lshl_add_u32 v{T7}, v{T2}, 1, v{T7}", w={T7}, r={T2, T7})
    V(f"v_xor_b32 v{T7}, v{T7}, v{T1}", w={T7}, r={T7, T1})
    V(f"v_lshl_or_b32 v{T7}, v{T3}, 2, v{T7}", w={T7}, r={T3, T7})
    V(f"v_lshl_add_u32 v{T6}, v{T7}, 4, v{T6}", w={T6}, r={T7, T6})
    V(f"v_and_b32 v{T7}, 1, v{T4}", w={T7}, r={T4})
    V(f"v_lshl_add_u32 v{BV}, v{T7}, 3, v{T6}", w={BV}, r={T7, T6})
    V(f"v_lshlrev_b32 v{T6}, 17, v{T2}", w={T6}, r={T2})
    V(f"v_lshl_add_u32 v{T6}, v{T1}, 8, v{T6}", w={T6}, r={T1, T6})
    V(f"v_and_b32 v{T7}, 15, v{L}", w={T7}, r={L})
    V(f"v_lshl_add_u32 v{OST}, v{T7}, 4, v{T6}", w={OST}, r={T7, T6})
    V(f"v_mov_b32 v{LSUM}, 0", w={LSUM})
    A.waitcnt(lgkm=0)
    A.salu(f"s_cmp_eq_u32 s{sBLK}, 0")
    for k in range(8):
        A.salu(f"s_cselect_b32 s{8+k}, s{8+k}, s{16+k}")
    srd(A, SX, 8, 8 * 112 * 576 * 2)
    srd(A, SK, 10, 8 * 16 * 512 * 128 * 2)
    srd(A, SV, 12, 8 * 16 * 512 * 128 * 2)
    srd(A, SW_, 14, 576 * 4096 * 2)
    srd(A, SO, 24, 2 * O_BLK)
    A.salu(f"s_mul_i32 s{sOB}, s{sBLK}, {O_BLK}")
    A.salu(f"s_mul_i32 s3, s{sB}, 7")
    A.salu(f"s_lshl_b32 s{sT}, s{sRT}, 1")
    A.salu(f"s_add_u32 s3, s3, s{sT}")
    A.salu(f"s_lshl_b32 s3, s3, 17")
    A.salu(f"s_add_u32 s{sOB}, s{sOB}, s3")
    A.salu(f"s_lshl_b32 s3, s{sKVH}, 1")
    A.salu(f"s_add_u32 s3, s3, s{sHL}")
    A.salu(f"s_lshl_b32 s3, s3, 12")
    A.salu(f"s_add_u32 s{sOB}, s{sOB}, s3")
    if OPT["prio"]:
        A.salu(f"s_cmp_ge_u32 s{sW}, 4")
        A.salu("s_cbranch_scc0 K1_PRIO_DONE" if OPT["prio"] == 1 else "s_cbranch_scc1 K1_PRIO_DONE")
        A.salu("s_setprio 1")
        A.label("K1_PRIO_DONE")

    qunits = []
    for s_ in range(9):
        qunits += [("X", s_), ("W", 2 * s_), ("W", 2 * s_ + 1)]
    kvunits = []
    for j in range(4):
        kvunits += [("K", 2 * j), ("K", 2 * j + 1), ("V", 2 * j), ("V", 2 * j + 1)]
    units = qunits + kvunits
    stage_units = [list(range(3 * s_, 3 * s_ + 3)) for s_ in range(9)] + [list(range(27 + 4 * j, 31 + 4 * j)) for j in range(4)]
    unit_last_vm = {}
    unit_slot = {}
    free = list(range(NSLOT))
    nq = [0]; nkv = [0]; xch = []

    def issue_unit(u):
        typ, idx = units[u]
        slot = free.pop(0)
        unit_slot[u] = slot
        if typ == "X": base, const, sr_, vo = sXB, idx * 128, SX, XO
        elif typ == "W": base, const, sr_, vo = sWB, idx * 32 * 8192, SW_, WO
        elif typ == "K": base, const, sr_, vo = sKVB, idx * 64 * 256, SK, KO
        else: base, const, sr_, vo = sKVB, idx * 64 * 256, SV, KO
        A.salu(f"s_add_u32 s{sT}, s{base}, {const}")
        for q in range(2):
            A.salu(f"s_add_u32 m0, s{sWL}, {slot * SLOT + q * 1024}", m0w=True)
            nt = " nt" if OPT[{"X": "ntx", "W": "ntw", "K": "ntkv", "V": "ntkv"}[typ]] else ""
            k = A.vmem(f"buffer_load_dwordx4 v{vo+q}, s[{sr_}:{sr_+3}], s{sT} offen{nt} lds", kind="dma", r={vo + q}, m0r=True)
        unit_last_vm[u] = k

    NQ = OPT["nq"]
    def refill(s):
        done_q = 3 * max(s, 0) if s < 9 else 27
        while nq[0] < 27 and nq[0] - done_q < NQ and free:
            issue_unit(nq[0]); nq[0] += 1
        if OPT["fat"] and s == 8:
            xch.append(free.pop(0)); xch.append(free.pop(0))
        lim = 16
        if s < 9:
            lim = min(16, (s + 2) * OPT["kvrate"])
        inq = nq[0] - done_q if s < 9 else 0
        while nkv[0] < lim and free and (nq[0] == 27 or len(free) > NQ - inq):
            issue_unit(27 + nkv[0]); nkv[0] += 1

    def stage_begin(s):
        A.wait_ds_all()
        A.wait_vm(max(unit_last_vm[u] for u in stage_units[s]))
        A.barrier()
        if s > 0:
            for u in stage_units[s - 1]: free.append(unit_slot[u])
        if s == 10: free.extend(xch)
        refill(s)

    PF = Prof(A, 0)
    PF.stamp("start")
    refill(-1)
    if OPT["l2pf"]:
        V(f"v_lshrrev_b32 v{T1}, 2, v{L}", w={T1}, r={L})
        V(f"v_lshlrev_b32 v{T1}, 13, v{T1}", w={T1}, r={T1})
        V(f"v_and_b32 v{T2}, 3, v{L}", w={T2}, r={L})
        V(f"v_lshl_add_u32 v{T1}, v{T2}, 7, v{T1}", w={T1}, r={T2, T1})
        A.salu(f"s_lshl_b32 s3, s{sW}, 4")
        A.salu(f"s_min_u32 s3, s3, 56")
        A.salu(f"s_mul_i32 s{sT}, s{sB}, 72")
        A.salu(f"s_add_u32 s3, s3, s{sT}")
        A.salu(f"s_lshl_b32 s3, s3, 13")
        A.salu(f"s_add_u32 s3, s3, s{sWB}")
        A.vmem(f"buffer_load_dword v{T4}, v{T1}, s[{SW_}:{SW_+3}], s3 offen", w={T4}, r={T1})
        V(f"v_lshlrev_b32 v{T2}, 7, v{L}", w={T2}, r={L})
        A.salu(f"s_and_b32 s3, s{sKVH}, 3")
        A.salu(f"s_mul_i32 s3, s3, {28*1152}")
        A.salu(f"s_and_b32 s{sT}, s{sW}, 3")
        A.salu(f"s_lshl_b32 s{sT}, s{sT}, 13")
        A.salu(f"s_add_u32 s3, s3, s{sT}")
        A.salu(f"s_add_u32 s3, s3, s{sXB}")
        A.vmem(f"buffer_load_dword v{T5}, v{T2}, s[{SX}:{SX+3}], s3 offen", w={T5}, r={T2})

    def addr_set(dst, base, slot, xors):
        V(f"v_add_u32 v{dst}, {slot * SLOT}, v{base}", w={dst}, r={base})
        for i, x in enumerate(xors):
            if i == 0: continue
            V(f"v_xor_b32 v{dst+i}, {x}, v{dst}", w={dst + i}, r={dst})

    if not OPT["fat"]:
        QA = S
        FB = O
        AW = [P, P + 4]
        AX = P + 8
        first = True
        for s in range(9):
            stage_begin(s)
            PF.stamp(f"q{s}")
            u0 = 3 * s
            addr_set(AX, BX, unit_slot[u0], [0, 32, 64, 96])
            addr_set(AW[0], BW, unit_slot[u0 + 1], [0, 64, 128, 192])
            addr_set(AW[1], BW, unit_slot[u0 + 2], [0, 64, 128, 192])
            def reads(ks):
                fb = FB + (ks % 2) * 20
                last = A.ds_read_b128(fb + 16, AX + ks)
                for t in range(4):
                    for j in range(2):
                        last = A.ds_read_tr(fb + 4 * t + 2 * j, AW[ks // 2] + t, ((ks % 2) * 16 + 4 * j) * 512)
                return last
            pend = reads(0)
            for ks in range(4):
                A.wait_ds(pend)
                if ks < 3: pend = reads(ks + 1)
                fb = FB + (ks % 2) * 20
                for t in range(4):
                    A.mfma(QA + 16 * t, fb + 4 * t, fb + 16, "zero" if first else None)
                first = False
        for i in range(64):
            V(f"v_mul_f32 v{QA+i}, s{sC}, v{QA+i}", w={QA + i}, r={QA + i})
        for q in range(32):
            V(f"v_cvt_pk_bf16_f32 v{QB+q}, v{QA+2*q}, v{QA+2*q+1}", w={QB + q}, r={QA + 2 * q, QA + 2 * q + 1})
    else:
        QA = [S, O]
        FBW = [P, QB]; FBX = [P + 16, QB + 16]
        AW = [FR, FR + 4]; AX = FR + 8
        first = True
        for s in range(9):
            stage_begin(s)
            PF.stamp(f"q{s}")
            A.salu(f"s_cmp_ge_u32 s{sW}, 4")
            A.salu(f"s_cbranch_scc1 K1_QSKIP{s}")
            u0 = 3 * s
            addr_set(AX, BX, unit_slot[u0], [0, 32, 64, 96])
            addr_set(AW[0], BW, unit_slot[u0 + 1], [0, 64, 128, 192])
            addr_set(AW[1], BW, unit_slot[u0 + 2], [0, 64, 128, 192])
            def reads(ks):
                A.ds_read_b128(FBX[ks % 2], AX + ks)
                last = A.ds_read_b128(FBX[ks % 2] + 4, AX + ks, 4096)
                for t in range(4):
                    for j in range(2):
                        last = A.ds_read_tr(FBW[ks % 2] + 4 * t + 2 * j, AW[ks // 2] + t, ((ks % 2) * 16 + 4 * j) * 512)
                return last
            pend = reads(0)
            for ks in range(4):
                A.wait_ds(pend)
                if ks < 3: pend = reads(ks + 1)
                for t in range(4):
                    for r2 in range(2):
                        A.mfma(QA[r2] + 16 * t, FBW[ks % 2] + 4 * t, FBX[ks % 2] + 4 * r2, "zero" if first else None)
                first = False
            if s == 8:
                A.salu(f"s_lshr_b32 s3, s{sW}, 1")
                A.salu(f"s_cmp_eq_u32 s3, 0")
                A.salu(f"s_cselect_b32 s3, {xch[0]}, {xch[1]}")
                A.salu(f"s_lshl_b32 s3, s3, 14")
                A.salu(f"s_and_b32 s{sT}, s{sW}, 1")
                A.salu(f"s_lshl_b32 s{sT}, s{sT}, 13")
                A.salu(f"s_add_u32 s3, s3, s{sT}")
                V(f"v_mbcnt_lo_u32_b32 v{T6}, -1, 0", w={T6})
                V(f"v_mbcnt_hi_u32_b32 v{T6}, -1, v{T6}", w={T6}, r={T6})
                V(f"v_lshlrev_b32 v{T6}, 4, v{T6}", w={T6}, r={T6})
                V(f"v_add_u32 v{T6}, s3, v{T6}", w={T6}, r={T6})
                for i in range(64):
                    V(f"v_mul_f32 v{O+i}, s{sC}, v{O+i}", w={O + i}, r={O + i})
                for q in range(32):
                    V(f"v_cvt_pk_bf16_f32 v{P+q}, v{O+2*q}, v{O+2*q+1}", w={P + q}, r={O + 2 * q, O + 2 * q + 1})
                    if q % 4 == 3:
                        A.ds_write_b128(T6, P + q - 3, (q // 4) * 1024)
                for i in range(64):
                    V(f"v_mul_f32 v{S+i}, s{sC}, v{S+i}", w={S + i}, r={S + i})
                for q in range(32):
                    V(f"v_cvt_pk_bf16_f32 v{QB+q}, v{S+2*q}, v{S+2*q+1}", w={QB + q}, r={S + 2 * q, S + 2 * q + 1})
            A.label(f"K1_QSKIP{s}")
            A.salu("s_nop 1")
            if OPT["prof"] == 2 and s in (3, 4, 5): PF.stamp(f"c{s}")

    def rowmax():
        V(f"v_max3_f32 v{MX}, v{S}, v{S+1}, v{S+2}", w={MX}, r={S, S + 1, S + 2})
        V(f"v_max3_f32 v{MX2}, v{S+3}, v{S+4}, v{S+5}", w={MX2}, r={S + 3, S + 4, S + 5})
        i = 6
        while i < 62:
            V(f"v_max3_f32 v{MX}, v{MX}, v{S+i}, v{S+i+1}", w={MX}, r={MX, S + i, S + i + 1})
            V(f"v_max3_f32 v{MX2}, v{MX2}, v{S+i+2}, v{S+i+3}", w={MX2}, r={MX2, S + i + 2, S + i + 3})
            i += 4
        V(f"v_max3_f32 v{MX}, v{MX}, v{S+62}, v{S+63}", w={MX}, r={MX, S + 62, S + 63})
        V(f"v_max_f32 v{MX}, v{MX}, v{MX2}", w={MX}, r={MX, MX2})
        V(f"v_mov_b32 v{MX2}, v{MX}", w={MX2}, r={MX})
        V(f"v_permlane32_swap_b32 v{MX}, v{MX2}", w={MX, MX2}, r={MX, MX2}, kind="perm")
        V(f"v_max_f32 v{MX}, v{MX}, v{MX2}", w={MX}, r={MX, MX2})

    slow_paths = []
    for j in range(4):
        s = 9 + j
        stage_begin(s)
        PF.stamp(f"a{j}")
        if OPT["fat"] and j == 0:
            A.salu(f"s_cmp_lt_u32 s{sW}, 4")
            A.salu(f"s_cbranch_scc1 K1_QGOT")
            A.salu(f"s_bfe_u32 s3, s{sW}, 0x10001")
            A.salu(f"s_cmp_eq_u32 s3, 0")
            A.salu(f"s_cselect_b32 s3, {xch[0]}, {xch[1]}")
            A.salu(f"s_lshl_b32 s3, s3, 14")
            A.salu(f"s_and_b32 s{sT}, s{sW}, 1")
            A.salu(f"s_lshl_b32 s{sT}, s{sT}, 13")
            A.salu(f"s_add_u32 s3, s3, s{sT}")
            V(f"v_mbcnt_lo_u32_b32 v{T6}, -1, 0", w={T6})
            V(f"v_mbcnt_hi_u32_b32 v{T6}, -1, v{T6}", w={T6}, r={T6})
            V(f"v_lshlrev_b32 v{T6}, 4, v{T6}", w={T6}, r={T6})
            V(f"v_add_u32 v{T6}, s3, v{T6}", w={T6}, r={T6})
            for q in range(8):
                A.ds_read_b128(QB + 4 * q, T6, q * 1024)
            A.wait_ds_all()
            A.label("K1_QGOT")
            A.salu("s_nop 1")
        if OPT["wopf"] and j == OPT["wopf"] - 1:
            A.salu("s_load_dwordx2 s[60:61], s[0:1], 32")
            A.salu("s_load_dwordx2 s[62:63], s[0:1], 72")
            A.salu(f"s_lshl_b32 s3, s{sB}, 4")
            A.salu(f"s_add_u32 s3, s3, s{sKVH}")
            A.salu(f"s_mul_i32 s3, s3, 288")
            A.salu(f"s_lshl_b32 s{sT}, s{sW}, 6")
            A.salu(f"s_min_u32 s{sT}, s{sT}, 224")
            A.salu(f"s_add_u32 s3, s3, s{sT}")
            A.salu(f"s_lshl_b32 s3, s3, 7")
            V(f"v_mbcnt_lo_u32_b32 v{T6}, -1, 0", w={T6})
            V(f"v_mbcnt_hi_u32_b32 v{T6}, -1, v{T6}", w={T6}, r={T6})
            V(f"v_lshlrev_b32 v{T6}, 7, v{T6}", w={T6}, r={T6})
            A.salu("s_waitcnt lgkmcnt(0)")
            A.salu(f"s_cmp_eq_u32 s{sBLK}, 0")
            A.salu("s_cselect_b32 s60, s60, s62")
            A.salu("s_cselect_b32 s61, s61, s63")
            A.salu("s_and_b32 s61, s61, 0xffff")
            A.salu(f"s_mov_b32 s62, {4096*576*2}")
            A.salu("s_mov_b32 s63, 0x00020000")
            A.vmem(f"buffer_load_dword v{T7}, v{T6}, s[60:63], s3 offen", w={T7}, r={T6})
        u0 = 27 + 4 * j
        sl = [unit_slot[u0 + i] for i in range(4)]
        kx = [32 * ks for ks in range(8)]
        addr_set(AD, BK, sl[0], kx)
        kadj = (sl[1] == sl[0] + 1)
        seq = [(kt, ks) for kt in range(4) for ks in range(8)]
        ids = {}
        def kread(i):
            kt, ks = seq[i]
            if kt == 2 and ks == 0 and not kadj:
                pass
            off = (kt % 2) * 8192 + ((kt // 2) * SLOT if kadj else 0)
            ids[i] = A.ds_read_b128(FR + 4 * (i % 4), AD + ks, off)
        for i in range(4): kread(i)
        for i in range(32):
            kt, ks = seq[i]
            A.wait_ds(ids[i])
            c = None
            if ks == 0: c = "zero" if j == 0 else NEGM
            A.mfma(S + 16 * kt, FR + 4 * (i % 4), QB + 4 * ks, c)
            if i + 4 < 32:
                if i + 4 == 16 and not kadj:
                    addr_set(AD, BK, sl[1], kx)
                kread(i + 4)
        vx = [(t << 6) ^ (32 * jj) for t in range(4) for jj in range(2)]
        addr_set(AD, BV, sl[2], vx)
        vadj = (sl[3] == sl[2] + 1)
        vseq = [(g, t) for g in range(8) for t in range(4)]
        vids = {}
        def vread(i):
            g, t = vseq[i]
            off = (g % 4) * 4096 + ((g // 4) * SLOT if vadj else 0)
            A.ds_read_tr(FR + 4 * (i % 4), AD + 2 * t, off)
            vids[i] = A.ds_read_tr(FR + 4 * (i % 4) + 2, AD + 2 * t + 1, off + 2048)
        for i in range(4): vread(i)
        if OPT["prof"] == 1: PF.stamp(f"qk{j}")
        if j == 0:
            rowmax()
            for i in range(16):
                V(f"v_sub_f32 v{NEGM+i}, 0, v{MX}", w={NEGM + i}, r={MX})
            for i in range(64):
                V(f"v_sub_f32 v{S+i}, v{S+i}, v{MX}", w={S + i}, r={S + i, MX})
        A.label(f"K1_FAST{j}")
        ta = [T0, T1]; tb = [T2, T3]
        for p in range(33):
            if p < 32:
                V(f"v_exp_f32 v{ta[p%2]}, v{S+2*p}", w={ta[p % 2]}, r={S + 2 * p}, kind="trans")
                V(f"v_exp_f32 v{tb[p%2]}, v{S+2*p+1}", w={tb[p % 2]}, r={S + 2 * p + 1}, kind="trans")
            if p > 0:
                a_, b_ = ta[(p - 1) % 2], tb[(p - 1) % 2]
                if p == 1:
                    V(f"v_mov_b32 v{SUMA}, v{a_}", w={SUMA}, r={a_})
                    V(f"v_mov_b32 v{SUMB}, v{b_}", w={SUMB}, r={b_})
                else:
                    V(f"v_add_f32 v{SUMA}, v{SUMA}, v{a_}", w={SUMA}, r={SUMA, a_})
                    V(f"v_add_f32 v{SUMB}, v{SUMB}, v{b_}", w={SUMB}, r={SUMB, b_})
                V(f"v_cvt_pk_bf16_f32 v{P+p-1}, v{a_}, v{b_}", w={P + p - 1}, r={a_, b_})
        V(f"v_add_f32 v{SUMA}, v{SUMA}, v{SUMB}", w={SUMA}, r={SUMA, SUMB})
        V(f"v_cmp_nle_f32 vcc, v{SUMA}, v{SUMA}" if False else f"v_cmp_nge_f32 vcc, s{sTHR}, v{SUMA}", r={SUMA}, sw={"vcc"})
        A.salu("s_nop 1")
        A.salu(f"s_and_b64 vcc, vcc, s[{sMASK}:{sMASK+1}]")
        A.salu(f"s_cbranch_vccnz K1_SLOW{j}")
        A.salu(f"s_mov_b64 s[{sMASK}:{sMASK+1}], -1")
        V(f"v_add_f32 v{LSUM}, v{LSUM}, v{SUMA}", w={LSUM}, r={LSUM, SUMA})
        slow_paths.append(j)
        if OPT["prof"] == 1: PF.stamp(f"sm{j}")
        for i in range(32):
            g, t = vseq[i]
            A.wait_ds(vids[i])
            c = "zero" if (j == 0 and g == 0) else None
            A.mfma(O + 16 * t, FR + 4 * (i % 4), P + 4 * g, c)
            if i + 4 < 32:
                if i + 4 == 16 and not vadj:
                    addr_set(AD, BV, sl[3], vx)
                vread(i + 4)
    PF.stamp("pv3")
    V(f"v_mov_b32 v{T0}, v{LSUM}", w={T0}, r={LSUM})
    V(f"v_permlane32_swap_b32 v{T0}, v{LSUM}", w={T0, LSUM}, r={T0, LSUM}, kind="perm")
    V(f"v_add_f32 v{T0}, v{T0}, v{LSUM}", w={T0}, r={T0, LSUM})
    V(f"v_rcp_f32 v{T0}, v{T0}", w={T0}, r={T0}, kind="trans")
    A.salu(f"s_cmp_eq_u32 s{sRT}, 3")
    A.salu("s_cbranch_scc0 K1_NOMASK")
    A.salu("s_mov_b32 exec_lo, 0xffff")
    A.salu("s_mov_b32 exec_hi, 0xffff")
    A.label("K1_NOMASK")
    for f in range(8):
        b0 = O + 8 * f
        for i in range(8):
            V(f"v_mul_f32 v{b0+i}, v{T0}, v{b0+i}", w={b0 + i}, r={T0, b0 + i})
        d = P + 4 * f
        for q in range(4):
            V(f"v_cvt_pk_bf16_f32 v{d+q}, v{b0+2*q}, v{b0+2*q+1}", w={d + q}, r={b0 + 2 * q, b0 + 2 * q + 1})
        A.vmem(f"buffer_store_dwordx4 {vname(d,4)}, v{OST}, s[{SO}:{SO+3}], s{sOB} offen offset:{f*512}{' nt' if OPT['ntst'] else ''}", r=vr(d, 4) | {OST}, storedata=vr(d, 4))
    PF.dump(24, sW, 0)
    A.label("K1_END")
    A.salu("s_endpgm")
    for j in slow_paths:
        A.label(f"K1_SLOW{j}")
        A.flush_hazards()
        rowmax()
        V(f"v_max_f32 v{MX}, 0, v{MX}", w={MX}, r={MX})
        V(f"v_sub_f32 v{MX2}, 0, v{MX}", w={MX2}, r={MX})
        V(f"v_exp_f32 v{MX2}, v{MX2}", w={MX2}, r={MX2}, kind="trans")
        if j > 0:
            for i in range(64):
                V(f"v_mul_f32 v{O+i}, v{MX2}, v{O+i}", w={O + i}, r={MX2, O + i})
        V(f"v_mul_f32 v{LSUM}, v{MX2}, v{LSUM}", w={LSUM}, r={MX2, LSUM})
        for i in range(16):
            V(f"v_sub_f32 v{NEGM+i}, v{NEGM+i}, v{MX}", w={NEGM + i}, r={NEGM + i, MX})
        for i in range(64):
            V(f"v_sub_f32 v{S+i}, v{S+i}, v{MX}", w={S + i}, r={S + i, MX})
        A.salu(f"s_mov_b64 s[{sMASK}:{sMASK+1}], 0")
        A.flush_hazards()
        A.salu(f"s_branch K1_FAST{j}")

def gen_k2(A):
    V = A.valu
    T0, T1, T2, T3, T4, T5, T6, T7 = range(0, 8)
    WOFF = 8
    OOFF = 12
    BA = 13
    RED = 15
    AF = 16
    OF = 48
    ACC = 112
    sBLK, sMT, sNT, sW = 26, 27, 4, 5
    SW_, SO, SOUT = 28, 32, 36
    sWL, sWB, sO0, sO1, sT = 48, 49, 50, 51, 52
    A.win = []
    A.nds = A.ds_done = A.nvm = A.vm_done = 0
    A.raw(f".p2align 8\n.globl k2_kernel\n.type k2_kernel,@function\nk2_kernel:")
    A.salu("s_cmp_ge_u32 s2, 256")
    A.salu("s_cbranch_scc1 K2_END")
    A.salu("s_and_b32 s3, s2, 7")
    A.salu("s_lshl_b32 s3, s3, 5")
    A.salu("s_lshr_b32 s6, s2, 3")
    A.salu("s_add_u32 s3, s3, s6")
    A.salu("s_cmp_ge_u32 s3, 252")
    A.salu("s_cbranch_scc1 K2_END")
    A.salu("s_load_dwordx2 s[8:9], s[0:1], 32")
    A.salu("s_load_dwordx2 s[10:11], s[0:1], 72")
    A.salu("s_load_dwordx2 s[12:13], s[0:1], 80")
    A.salu("s_load_dwordx2 s[14:15], s[0:1], 96")
    A.salu("s_cmp_ge_u32 s3, 126")
    A.salu(f"s_cselect_b32 s{sBLK}, 1, 0")
    A.salu(f"s_mul_i32 s6, s{sBLK}, 126")
    A.salu("s_sub_u32 s3, s3, s6")
    A.salu("s_mul_i32 s6, s3, 57")
    A.salu(f"s_lshr_b32 s{sMT}, s6, 9")
    A.salu(f"s_mul_i32 s6, s{sMT}, 9")
    A.salu(f"s_sub_u32 s{sNT}, s3, s6")
    V(f"v_lshrrev_b32 v{T1}, 6, v0", w={T1}, r={0})
    A._emit(I(f"v_readfirstlane_b32 s{sW}, v{T1}", "rdlane", r={T1}, sw={sW}))
    V(f"v_and_b32 v{T0}, 63, v0", w={T0}, r={0})
    L = T0
    A.salu(f"s_lshl_b32 s{sWL}, s{sW}, 14", sr={sW})
    A.salu(f"s_mul_i32 s{sWB}, s{sW}, {512*1152}", sr={sW})
    A.salu(f"s_lshl_b32 s6, s{sNT}, 7")
    A.salu(f"s_add_u32 s{sWB}, s{sWB}, s6")
    A.salu(f"s_mul_i32 s{sO0}, s{sBLK}, {O_BLK}")
    A.salu(f"s_lshl_b32 s6, s{sMT}, 19")
    A.salu(f"s_add_u32 s{sO0}, s{sO0}, s6")
    A.salu(f"s_lshl_b32 s6, s{sW}, 14")
    A.salu(f"s_add_u32 s{sO0}, s{sO0}, s6")
    A.salu(f"s_add_u32 s{sO1}, s{sO0}, {2*131072}")
    V(f"v_lshrrev_b32 v{T1}, 3, v{L}", w={T1}, r={L})
    V(f"v_mul_u32_u24 v{T1}, 1152, v{T1}", w={T1}, r={T1})
    V(f"v_bfe_u32 v{T2}, v{L}, 4, 1", w={T2}, r={L})
    V(f"v_lshlrev_b32 v{T3}, 2, v{T2}", w={T3}, r={T2})
    V(f"v_and_b32 v{T4}, 7, v{L}", w={T4}, r={L})
    V(f"v_xor_b32 v{T4}, v{T4}, v{T3}", w={T4}, r={T4, T3})
    V(f"v_lshl_add_u32 v{WOFF}, v{T4}, 4, v{T1}", w={WOFF}, r={T4, T1})
    for i in range(1, 4):
        V(f"v_add_u32 v{WOFF+i}, {9216*i}, v{WOFF}", w={WOFF + i}, r={WOFF})
    V(f"v_lshrrev_b32 v{T1}, 5, v{L}", w={T1}, r={L})
    V(f"v_bfe_u32 v{T3}, v{L}, 2, 2", w={T3}, r={L})
    V(f"v_and_b32 v{T4}, 3, v{L}", w={T4}, r={L})
    V(f"v_lshlrev_b32 v{T6}, 17, v{T2}", w={T6}, r={T2})
    V(f"v_lshl_add_u32 v{T6}, v{T1}, 8, v{T6}", w={T6}, r={T1, T6})
    V(f"v_and_b32 v{T7}, 15, v{L}", w={T7}, r={L})
    V(f"v_lshl_add_u32 v{OOFF}, v{T7}, 4, v{T6}", w={OOFF}, r={T7, T6})
    V(f"v_lshl_add_u32 v{T6}, v{T1}, 2, v{T3}", w={T6}, r={T1, T3})
    V(f"v_lshlrev_b32 v{T6}, 7, v{T6}", w={T6}, r={T6})
    V(f"v_lshrrev_b32 v{T7}, 1, v{T4}", w={T7}, r={T4})
    V(f"v_lshl_add_u32 v{T7}, v{T2}, 1, v{T7}", w={T7}, r={T2, T7})
    V(f"v_lshrrev_b32 v{T5}, 1, v{T3}", w={T5}, r={T3})
    V(f"v_lshlrev_b32 v{T5}, 2, v{T5}", w={T5}, r={T5})
    V(f"v_xor_b32 v{T7}, v{T7}, v{T5}", w={T7}, r={T7, T5})
    V(f"v_lshl_add_u32 v{T6}, v{T7}, 4, v{T6}", w={T6}, r={T7, T6})
    V(f"v_and_b32 v{T7}, 1, v{T4}", w={T7}, r={T4})
    V(f"v_lshl_add_u32 v{T6}, v{T7}, 3, v{T6}", w={T6}, r={T7, T6})
    V(f"v_add_u32 v{BA}, s{sWL}, v{T6}", w={BA}, r={T6})
    V(f"v_xor_b32 v{BA+1}, 64, v{BA}", w={BA + 1}, r={BA})
    V(f"v_lshlrev_b32 v{RED}, 4, v{L}", w={RED}, r={L})
    A.waitcnt(lgkm=0)
    A.salu(f"s_cmp_eq_u32 s{sBLK}, 0")
    A.salu("s_cselect_b32 s8, s8, s10")
    A.salu("s_cselect_b32 s9, s9, s11")
    srd(A, SW_, 8, 4096 * 576 * 2)
    srd(A, SO, 14, 2 * O_BLK)
    srd(A, SOUT, 12, 896 * 1152 * 2)

    NU = 16; DEPTH = 4
    last_vm = {}
    def issue(u):
        slot = u % DEPTH
        A.salu(f"s_add_u32 s{sT}, s{sWB}, {u * 32 * 1152}")
        for i in range(4):
            A.salu(f"s_add_u32 m0, s{sWL}, {slot * 4096 + i * 1024}", m0w=True)
            A.vmem(f"buffer_load_dwordx4 v{WOFF+i}, s[{SW_}:{SW_+3}], s{sT} offen{' nt' if OPT['ntwo'] else ''} lds", kind="dma", r={WOFF + i}, m0r=True)
        for ks in range(2):
            for tm in range(2):
                d = OF + slot * 16 + (ks * 2 + tm) * 4
                off = (2 * u + ks) * 512
                sb = sO0 if tm == 0 else sO1
                if off >= 4096:
                    A.salu(f"s_add_u32 s{sT}, s{sb}, {off & ~4095}")
                    k = A.vmem(f"buffer_load_dwordx4 {vname(d,4)}, v{OOFF}, s[{SO}:{SO+3}], s{sT} offen offset:{off & 4095}{' nt' if OPT['nto'] else ''}", w=vr(d, 4), r={OOFF})
                else:
                    k = A.vmem(f"buffer_load_dwordx4 {vname(d,4)}, v{OOFF}, s[{SO}:{SO+3}], s{sb} offen offset:{off}{' nt' if OPT['nto'] else ''}", w=vr(d, 4), r={OOFF})
        last_vm[u] = k
    def dsreads(u):
        slot = u % DEPTH
        ab = AF + (u % 2) * 16
        for ks in range(2):
            for tn in range(2):
                for j in range(2):
                    k = A.ds_read_tr(ab + (ks * 2 + tn) * 4 + 2 * j, BA + tn, slot * 4096 + (16 * ks + 8 * j) * 128)
        return k
    PF = Prof(A, 1)
    PF.stamp("start")
    for u in range(DEPTH): issue(u)
    A.wait_vm(last_vm[0])
    pend = dsreads(0)
    for u in range(NU):
        A.wait_ds(pend)
        if u + 1 < NU:
            A.wait_vm(last_vm[u + 1])
            pend = dsreads(u + 1)
        ab = AF + (u % 2) * 16
        ob = OF + (u % DEPTH) * 16
        for ks in range(2):
            for tn in range(2):
                for tm in range(2):
                    c = "zero" if (u == 0 and ks == 0) else None
                    A.mfma(ACC + (tn * 2 + tm) * 16, ab + (ks * 2 + tn) * 4, ob + (ks * 2 + tm) * 4, c)
        if u + DEPTH < NU: issue(u + DEPTH)
        PF.stamp(f"u{u}")
    A.wait_ds_all()
    A.barrier()
    V(f"v_add_u32 v{T1}, s{sWL}, v{RED}", w={T1}, r={RED})
    for q in range(16):
        A.ds_write_b128(T1, ACC + 4 * q, q * 1024)
    A.wait_ds_all()
    A.barrier()
    A.salu(f"s_lshl_b32 s6, s{sW}, 11")
    V(f"v_add_u32 v{T1}, s6, v{RED}", w={T1}, r={RED})
    V(f"v_add_u32 v{T2}, 0x10000, v{T1}", w={T2}, r={T1})
    R = OF
    for ww in range(8):
        for q in range(2):
            A.ds_read_b128(R + (ww * 2 + q) * 4, T1 if ww < 4 else T2, (ww % 4) * 16384 + q * 1024)
            if ww == 6 and q == 1: pass
        if ww == 5:
            A.wait_ds_all()
    A.wait_ds_all()
    for ww in range(1, 8):
        for i in range(8):
            V(f"v_add_f32 v{R+i}, v{R+i}, v{R+ww*8+i}", w={R + i}, r={R + i, R + ww * 8 + i})
    for q in range(4):
        V(f"v_cvt_pk_bf16_f32 v{AF+q}, v{R+2*q}, v{R+2*q+1}", w={AF + q}, r={R + 2 * q, R + 2 * q + 1})
    A.salu(f"s_lshr_b32 s6, s{sW}, 1")
    A.salu("s_and_b32 s7, s6, 1")
    A.salu("s_lshr_b32 s6, s6, 1")
    A.salu(f"s_lshl_b32 s3, s{sMT}, 6")
    A.salu("s_lshl_b32 s7, s7, 5")
    A.salu("s_add_u32 s3, s3, s7")
    A.salu("s_mul_i32 s3, s3, 2304")
    A.salu(f"s_mul_i32 s7, s{sBLK}, 1152")
    A.salu("s_add_u32 s3, s3, s7")
    A.salu(f"s_lshl_b32 s7, s{sNT}, 7")
    A.salu("s_add_u32 s3, s3, s7")
    A.salu("s_lshl_b32 s7, s6, 6")
    A.salu("s_add_u32 s3, s3, s7")
    A.salu(f"s_and_b32 s7, s{sW}, 1")
    A.salu("s_lshl_b32 s7, s7, 5")
    A.salu("s_add_u32 s3, s3, s7")
    V(f"v_and_b32 v{T1}, 31, v{L}", w={T1}, r={L})
    V(f"v_mul_u32_u24 v{T1}, 2304, v{T1}", w={T1}, r={T1})
    V(f"v_lshrrev_b32 v{T2}, 5, v{L}", w={T2}, r={L})
    V(f"v_lshl_add_u32 v{T1}, v{T2}, 3, v{T1}", w={T1}, r={T2, T1})
    A.vmem(f"buffer_store_dwordx2 {vname(AF,2)}, v{T1}, s[{SOUT}:{SOUT+3}], s3 offen", r=vr(AF, 2) | {T1})
    A.vmem(f"buffer_store_dwordx2 {vname(AF+2,2)}, v{T1}, s[{SOUT}:{SOUT+3}], s3 offen offset:16", r=vr(AF + 2, 2) | {T1})
    PF.dump(14, sW, 0)
    A.label("K2_END")
    A.salu("s_endpgm")

def kd(name, vgpr, sgpr):
    return f""".amdhsa_kernel {name}
  .amdhsa_next_free_vgpr {vgpr}
  .amdhsa_next_free_sgpr {sgpr}
  .amdhsa_accum_offset {(vgpr + 3) // 4 * 4}
  .amdhsa_group_segment_fixed_size 0
  .amdhsa_kernarg_size 104
  .amdhsa_user_sgpr_count 2
  .amdhsa_user_sgpr_kernarg_segment_ptr 1
  .amdhsa_system_sgpr_workgroup_id_x 1
.end_amdhsa_kernel
"""

def main():
    A = Asm()
    gen_k1(A)
    gen_k2(A)
    head = """; Two-launch GQA block pair: k1 = Q projection + attention (o -> ws), k2 = output projection.
; @launch kernel=k1_kernel grid=(256,1,1) block=(512,1,1) lds=163840
; @launch kernel=k2_kernel grid=(256,1,1) block=(512,1,1) lds=131072
.amdgcn_target "amdgcn-amd-amdhsa--gfx950"
.text
"""
    tail = '\n.section .rodata,"a"\n.p2align 6\n' + kd("k1_kernel", 256, 102 if OPT["prof"] else 64) + ".p2align 6\n" + kd("k2_kernel", 176, 102 if OPT["prof"] else 64)
    open(sys.argv[1], "w").write(head + A.text() + tail)
    print("nops inserted:", A.nops_inserted, "lines:", len(A.out))

main()
```

```python
import sys, math
sys.path.insert(0, "gen")
from asmlib import *

NAME = "concat_heads__gqa_block_cached__gqa_block_cached__near_ridge"
OPT = dict(prio=1, prof=0, ntkv=1, ntw=0, ntx=0, ntwo=0, nto=0, ntst=0, nq=6, kvrate=1, l2pf=1, wopf=4, fat=1, bstep=1, dmagap=1, pflead=4, kv0=2, nstg=4, kvt=0)
for a in sys.argv[2:]:
    k, v = a.split("="); OPT[k] = int(v)

O_BLK = 896 * 4096 * 2
SLOT = 16384
NSLOT = 10

def srd(A, d, base, nbytes):
    A.salu(f"s_mov_b32 s{d}, s{base}")
    A.salu(f"s_and_b32 s{d+1}, s{base+1}, 0xffff")
    A.salu(f"s_mov_b32 s{d+2}, {nbytes}")
    A.salu(f"s_mov_b32 s{d+3}, 0x00020000")

class Prof:
    def __init__(self, A, kidx):
        self.A = A; self.n = 0; self.names = []; self.kidx = kidx
    def stamp(self, name):
        if not OPT["prof"]: return
        A = self.A
        assert self.n < 30
        A.salu("s_waitcnt lgkmcnt(0)")
        A.ds_done = A.nds
        A.salu("s_memtime s[96:97]")
        A.salu("s_waitcnt lgkmcnt(0)")
        A.salu(f"s_mov_b32 s{64+self.n}, s96")
        if self.n == 0:
            A.salu("s_memrealtime s[98:99]")
            A.salu("s_waitcnt lgkmcnt(0)")
        self.n += 1; self.names.append(name)
    def dump(self, wsreg, sW, tmp):
        if not OPT["prof"]: return
        A = self.A
        self.stamp("end")
        A.salu("s_memrealtime s[96:97]")
        A.salu("s_waitcnt lgkmcnt(0)")
        A.salu("s_mov_b64 exec, -1")
        A.salu("s_nop 4")
        for i in range(self.n):
            A.salu(f"v_writelane_b32 v{tmp}, s{64+i}, {i}")
        A.salu("s_getreg_b32 s97, hwreg(HW_REG_HW_ID)")
        A.salu(f"v_writelane_b32 v{tmp}, s97, 29")
        A.salu(f"v_writelane_b32 v{tmp}, s98, 30")
        A.salu(f"v_writelane_b32 v{tmp}, s96, 31")
        A.salu(f"s_mov_b32 s60, s{wsreg}")
        A.salu(f"s_and_b32 s61, s{wsreg+1}, 0xffff")
        A.salu("s_mov_b32 s62, 0x10000000")
        A.salu("s_mov_b32 s63, 0x00020000")
        A.salu("s_lshl_b32 s96, s2, 3")
        A.salu(f"s_add_u32 s96, s96, s{sW}")
        A.salu("s_lshl_b32 s96, s96, 7")
        A.salu(f"s_add_u32 s96, s96, {255*1024*1024 + self.kidx*512*1024}")
        A.salu(f"v_mbcnt_lo_u32_b32 v{tmp+1}, -1, 0")
        A.salu(f"v_mbcnt_hi_u32_b32 v{tmp+1}, -1, v{tmp+1}")
        A.salu(f"v_lshlrev_b32 v{tmp+1}, 2, v{tmp+1}")
        A.salu("s_mov_b64 exec, 0xffffffff")
        A.salu("s_nop 4")
        A.salu(f"buffer_store_dword v{tmp}, v{tmp+1}, s[60:63], s96 offen")
        print("stamps k%d:" % self.kidx, self.names)

def gen_k1(A):
    V = A.valu
    T0, T1, T2, T3, T4, T5, T6, T7 = range(0, 8)
    XO, WO, KO = 8, 10, 12
    BW, BX, BK, BV = 14, 15, 16, 17
    LSUM, OST = 18, 19
    SUMA, SUMB, MX, MX2 = 20, 21, 22, 23
    AD = 24
    FR = 32
    NEGM = 48
    QB = 64
    S = 96
    O = 160
    P = 224
    sBLK, sKVH, sB, sW, sHL, sRT = 26, 27, 4, 5, 6, 7
    SX, SW_, SK, SV, SO = 28, 32, 36, 40, 44
    sWL, sXB, sWB, sKVB, sT, sOB = 48, 49, 50, 51, 52, 53
    sMASK, sTHR, sC = 54, 56, 57
    sW3, sWL4, sT2 = 58, 59, 55

    A.raw(f".p2align 8\n.globl k1_kernel\n.type k1_kernel,@function\nk1_kernel:")
    A.salu("s_cmp_ge_u32 s2, 256")
    A.salu("s_cbranch_scc1 K1_END")
    A.salu("s_load_dwordx8 s[8:15], s[0:1], 0")
    A.salu("s_load_dwordx8 s[16:23], s[0:1], 40")
    A.salu("s_load_dwordx2 s[24:25], s[0:1], 96")
    A.salu("s_and_b32 s3, s2, 7")
    A.salu(f"s_lshr_b32 s{sB}, s2, 3")
    A.salu(f"s_lshr_b32 s{sBLK}, s3, 2")
    A.salu("s_and_b32 s3, s3, 3")
    A.salu("s_lshl_b32 s3, s3, 2")
    A.salu(f"s_and_b32 s{sKVH}, s{sB}, 3")
    A.salu(f"s_add_u32 s{sKVH}, s{sKVH}, s3")
    A.salu(f"s_lshr_b32 s{sB}, s{sB}, 2")
    V(f"v_lshrrev_b32 v{T1}, 6, v0", w={T1}, r={0})
    A._emit(I(f"v_readfirstlane_b32 s{sW}, v{T1}", "rdlane", r={T1}, sw={sW}))
    V(f"v_and_b32 v{T0}, 63, v0", w={T0}, r={0})
    if OPT["fat"]:
        A.salu(f"s_bfe_u32 s{sHL}, s{sW}, 0x10001", sr={sW})
        A.salu(f"s_and_b32 s{sRT}, s{sW}, 1", sr={sW})
        A.salu(f"s_lshl_b32 s{sRT}, s{sRT}, 1")
        A.salu(f"s_lshr_b32 s3, s{sW}, 2", sr={sW})
        A.salu(f"s_add_u32 s{sRT}, s{sRT}, s3")
    else:
        A.salu(f"s_lshr_b32 s{sHL}, s{sW}, 2", sr={sW})
        A.salu(f"s_and_b32 s{sRT}, s{sW}, 3", sr={sW})
    A.salu(f"s_lshl_b32 s{sWL}, s{sW}, 11", sr={sW})
    A.salu(f"s_and_b32 s{sW3}, s{sW}, 1", sr={sW})
    A.salu(f"s_lshl_b32 s{sWL4}, s{sW3}, 11")
    A.salu(f"s_mul_i32 s{sXB}, s{sB}, 129024")
    A.salu(f"s_lshl_b32 s{sWB}, s{sKVH}, 9")
    A.salu(f"s_lshl_b32 s{sKVB}, s{sB}, 4")
    A.salu(f"s_add_u32 s{sKVB}, s{sKVB}, s{sKVH}")
    A.salu(f"s_lshl_b32 s{sKVB}, s{sKVB}, 17")
    A.salu(f"s_mov_b32 s{sTHR}, 0x4b800000")
    c = math.log2(math.e) / math.sqrt(128.0)
    import struct
    cbits = struct.unpack("<I", struct.pack("<f", c))[0]
    A.salu(f"s_mov_b32 s{sC}, {cbits:#x}")
    L = T0
    for q in range(2):
        V(f"v_lshrrev_b32 v{T1}, 3, v{L}", w={T1}, r={L})
        A.salu(f"s_lshl_b32 s3, s{sW3}, 4")
        A.salu(f"s_add_u32 s3, s3, {8*q}")
        V(f"v_add_u32 v{T1}, s3, v{T1}", w={T1}, r={T1})
        V(f"v_mul_u32_u24 v{T1}, 1152, v{T1}", w={T1}, r={T1})
        V(f"v_and_b32 v{T2}, 7, v{L}", w={T2}, r={L})
        V(f"v_lshrrev_b32 v{T3}, 4, v{L}", w={T3}, r={L})
        V(f"v_xor_b32 v{T2}, v{T2}, v{T3}", w={T2}, r={T2, T3})
        if q: V(f"v_xor_b32 v{T2}, 4, v{T2}", w={T2}, r={T2})
        V(f"v_lshl_add_u32 v{XO+q}, v{T2}, 4, v{T1}", w={XO+q}, r={T2, T1})
        V(f"v_lshrrev_b32 v{T3}, 5, v{L}", w={T3}, r={L})
        A.salu(f"s_lshl_b32 s3, s{sW3}, 2")
        A.salu(f"s_add_u32 s3, s3, {2*q}")
        V(f"v_add_u32 v{T1}, s3, v{T3}", w={T1}, r={T3})
        V(f"v_lshlrev_b32 v{T1}, 13, v{T1}", w={T1}, r={T1})
        V(f"v_or_b32 v{T3}, {2*q}, v{T3}", w={T3}, r={T3})
        V(f"v_lshlrev_b32 v{T3}, 2, v{T3}", w={T3}, r={T3})
        V(f"v_and_b32 v{T2}, 31, v{L}", w={T2}, r={L})
        V(f"v_xor_b32 v{T2}, v{T2}, v{T3}", w={T2}, r={T2, T3})
        V(f"v_lshl_add_u32 v{WO+q}, v{T2}, 4, v{T1}", w={WO+q}, r={T2, T1})
        V(f"v_lshrrev_b32 v{T3}, 4, v{L}", w={T3}, r={L})
        A.salu(f"s_lshl_b32 s3, s{sW}, 3")
        A.salu(f"s_add_u32 s3, s3, {4*q}")
        V(f"v_add_u32 v{T1}, s3, v{T3}", w={T1}, r={T3})
        V(f"v_lshlrev_b32 v{T1}, 8, v{T1}", w={T1}, r={T1})
        A.salu(f"s_and_b32 s3, s{sW}, 1")
        A.salu(f"s_lshl_b32 s3, s3, 1")
        A.salu(f"s_or_b32 s3, s3, {q}")
        V(f"v_lshlrev_b32 v{T3}, 2, v{T3}", w={T3}, r={T3})
        V(f"v_or_b32 v{T3}, s3, v{T3}", w={T3}, r={T3})
        V(f"v_and_b32 v{T2}, 15, v{L}", w={T2}, r={L})
        V(f"v_xor_b32 v{T2}, v{T2}, v{T3}", w={T2}, r={T2, T3})
        V(f"v_lshl_add_u32 v{KO+q}, v{T2}, 4, v{T1}", w={KO+q}, r={T2, T1})
    V(f"v_lshrrev_b32 v{T1}, 5, v{L}", w={T1}, r={L})
    V(f"v_bfe_u32 v{T2}, v{L}, 4, 1", w={T2}, r={L})
    V(f"v_bfe_u32 v{T3}, v{L}, 2, 2", w={T3}, r={L})
    V(f"v_and_b32 v{T4}, 3, v{L}", w={T4}, r={L})
    V(f"v_and_b32 v{T5}, 31, v{L}", w={T5}, r={L})
    V(f"v_lshl_add_u32 v{T6}, v{T1}, 3, v{T3}", w={T6}, r={T1, T3})
    V(f"v_lshlrev_b32 v{T6}, 9, v{T6}", w={T6}, r={T6})
    V(f"v_lshlrev_b32 v{T7}, 2, v{T3}", w={T7}, r={T3})
    V(f"v_lshl_add_u32 v{T7}, v{T2}, 1, v{T7}", w={T7}, r={T2, T7})
    V(f"v_and_b32 v{BW}, 1, v{T4}", w={BW}, r={T4})
    V(f"v_add_u32 v{T7}, v{T7}, v{BW}", w={T7}, r={T7, BW})
    A.salu(f"s_lshl_b32 s3, s{sHL}, 4")
    V(f"v_add_u32 v{T7}, s3, v{T7}", w={T7}, r={T7})
    V(f"v_lshl_add_u32 v{T6}, v{T7}, 4, v{T6}", w={T6}, r={T7, T6})
    V(f"v_lshrrev_b32 v{T7}, 1, v{T4}", w={T7}, r={T4})
    V(f"v_lshl_add_u32 v{BW}, v{T7}, 3, v{T6}", w={BW}, r={T7, T6})
    A.salu(f"s_lshl_b32 s3, s{sRT}, 5")
    V(f"v_add_u32 v{T6}, s3, v{T5}", w={T6}, r={T5})
    V(f"v_lshlrev_b32 v{T6}, 7, v{T6}", w={T6}, r={T6})
    V(f"v_bfe_u32 v{T7}, v{T5}, 1, 3", w={T7}, r={T5})
    V(f"v_xor_b32 v{T7}, v{T7}, v{T1}", w={T7}, r={T7, T1})
    V(f"v_lshl_add_u32 v{BX}, v{T7}, 4, v{T6}", w={BX}, r={T7, T6})
    V(f"v_lshlrev_b32 v{T6}, 2, v{T4}", w={T6}, r={T4})
    V(f"v_or_b32 v{T6}, v{T6}, v{T3}", w={T6}, r={T6, T3})
    V(f"v_xor_b32 v{T6}, v{T6}, v{T1}", w={T6}, r={T6, T1})
    V(f"v_lshlrev_b32 v{T7}, 8, v{T5}", w={T7}, r={T5})
    V(f"v_lshl_add_u32 v{BK}, v{T6}, 4, v{T7}", w={BK}, r={T6, T7})
    V(f"v_lshl_add_u32 v{T6}, v{T1}, 2, v{T3}", w={T6}, r={T1, T3})
    V(f"v_lshlrev_b32 v{T6}, 8, v{T6}", w={T6}, r={T6})
    V(f"v_lshrrev_b32 v{T7}, 1, v{T4}", w={T7}, r={T4})
    V(f"v_lshl_add_u32 v{T7}, v{T2}, 1, v{T7}", w={T7}, r={T2, T7})
    V(f"v_xor_b32 v{T7}, v{T7}, v{T1}", w={T7}, r={T7, T1})
    V(f"v_lshl_or_b32 v{T7}, v{T3}, 2, v{T7}", w={T7}, r={T3, T7})
    V(f"v_lshl_add_u32 v{T6}, v{T7}, 4, v{T6}", w={T6}, r={T7, T6})
    V(f"v_and_b32 v{T7}, 1, v{T4}", w={T7}, r={T4})
    V(f"v_lshl_add_u32 v{BV}, v{T7}, 3, v{T6}", w={BV}, r={T7, T6})
    V(f"v_lshlrev_b32 v{T6}, 17, v{T2}", w={T6}, r={T2})
    V(f"v_lshl_add_u32 v{T6}, v{T1}, 8, v{T6}", w={T6}, r={T1, T6})
    V(f"v_and_b32 v{T7}, 15, v{L}", w={T7}, r={L})
    V(f"v_lshl_add_u32 v{OST}, v{T7}, 4, v{T6}", w={OST}, r={T7, T6})
    V(f"v_mov_b32 v{LSUM}, 0", w={LSUM})
    A.waitcnt(lgkm=0)
    A.salu(f"s_cmp_eq_u32 s{sBLK}, 0")
    for k in range(8):
        A.salu(f"s_cselect_b32 s{8+k}, s{8+k}, s{16+k}")
    srd(A, SX, 8, 8 * 112 * 576 * 2)
    srd(A, SK, 10, 8 * 16 * 512 * 128 * 2)
    srd(A, SV, 12, 8 * 16 * 512 * 128 * 2)
    srd(A, SW_, 14, 576 * 4096 * 2)
    srd(A, SO, 24, 2 * O_BLK)
    A.salu(f"s_mul_i32 s{sOB}, s{sBLK}, {O_BLK}")
    A.salu(f"s_mul_i32 s3, s{sB}, 7")
    A.salu(f"s_lshl_b32 s{sT}, s{sRT}, 1")
    A.salu(f"s_add_u32 s3, s3, s{sT}")
    A.salu(f"s_lshl_b32 s3, s3, 17")
    A.salu(f"s_add_u32 s{sOB}, s{sOB}, s3")
    A.salu(f"s_lshl_b32 s3, s{sKVH}, 1")
    A.salu(f"s_add_u32 s3, s3, s{sHL}")
    A.salu(f"s_lshl_b32 s3, s3, 12")
    A.salu(f"s_add_u32 s{sOB}, s{sOB}, s3")
    if OPT["prio"]:
        A.salu(f"s_cmp_ge_u32 s{sW}, 4")
        A.salu("s_cbranch_scc0 K1_PRIO_DONE" if OPT["prio"] == 1 else "s_cbranch_scc1 K1_PRIO_DONE")
        A.salu("s_setprio 1")
        A.label("K1_PRIO_DONE")

    qunits = []
    for s_ in range(9):
        qunits += [("X", s_), ("W", 2 * s_), ("W", 2 * s_ + 1)]
    kvunits = [("K", 0)]
    for h in range(7):
        kvunits += [("K", h + 1), ("V", h)]
    kvunits += [("V", 7)]
    units = qunits + kvunits
    UK = {idx: 27 + i for i, (t_, idx) in enumerate(kvunits) if t_ == "K"}
    UV = {idx: 27 + i for i, (t_, idx) in enumerate(kvunits) if t_ == "V"}
    stage_units = [list(range(3 * s_, 3 * s_ + 3)) for s_ in range(9)]
    unit_last_vm = {}
    unit_slot = {}
    free = list(range(NSLOT))
    nq = [0]; nkv = [0]; xch = []
    KQ = FR
    DV = FR + 2
    NSTG = OPT["nstg"]
    STG = [S + 32, O, O + 32, P][:NSTG]

    def unit_info(u):
        typ, idx = units[u]
        if typ == "X": return sXB, idx * 128, SX, XO, 2 * 16 * 1152, "ntx"
        if typ == "W": return sWB, idx * 32 * 8192, SW_, WO, 2 * 4 * 8192, "ntw"
        if typ == "K": return sKVB, idx * 64 * 256, SK, KO, 4096, "ntkv"
        return sKVB, idx * 64 * 256, SV, KO, 4096, "ntkv"

    def issue_unit_q(u, stage_reg=None):
        if stage_reg is None:
            slot = free.pop(0)
            unit_slot[u] = slot
        base, const, sr_, vo, delta, nto = unit_info(u)
        if vo == KO: vo = KQ
        nt = " nt" if OPT[nto] else ""
        for hv in range(4):
            A.salu(f"s_add_u32 s{sT}, s{base}, {const + delta * hv}")
            for q in range(2):
                if stage_reg is None:
                    A.salu(f"s_add_u32 m0, s{sWL4}, {slot * SLOT + hv * 4096 + q * 1024}", m0w=True)
                    k = A.vmem(f"buffer_load_dwordx4 v{vo+q}, s[{sr_}:{sr_+3}], s{sT} offen{nt} lds", kind="dma", r={vo + q}, m0r=True)
                else:
                    d = stage_reg + (hv * 2 + q) * 4
                    k = A.vmem(f"buffer_load_dwordx4 {vname(d,4)}, v{vo+q}, s[{sr_}:{sr_+3}], s{sT} offen{nt}", w=vr(d, 4), r={vo + q})
        unit_last_vm[u] = k

    def dump_unit(u, stage_reg):
        slot = free.pop(0)
        unit_slot[u] = slot
        V(f"v_add_u32 v{DV+1}, {slot * SLOT}, v{DV}", w={DV + 1}, r={DV})
        for hv in range(4):
            for q in range(2):
                A.ds_write_b128(DV + 1, stage_reg + (hv * 2 + q) * 4, hv * 4096 + q * 1024)

    def dma_items(u):
        slot = free.pop(0)
        unit_slot[u] = slot
        base, const, sr_, vo, delta, nto = unit_info(u)
        nt = " nt" if OPT[nto] else ""
        def mk(q):
            def f():
                A.salu(f"s_add_u32 s{sT}, s{base}, {const}")
                A.salu(f"s_add_u32 m0, s{sWL}, {slot * SLOT + q * 1024}", m0w=True)
                k = A.vmem(f"buffer_load_dwordx4 v{vo+q}, s[{sr_}:{sr_+3}], s{sT} offen{nt} lds", kind="dma", r={vo + q}, m0r=True)
                unit_last_vm[u] = k
            return f
        return [mk(0), mk(1)]

    NQ = OPT["nq"]
    PF = Prof(A, 0)
    PF.stamp("start")

    def addr_items(dst, base, slot, xors):
        it = [lambda: V(f"v_add_u32 v{dst[0]}, {slot * SLOT}, v{base}", w={dst[0]}, r={base})]
        for i, x in enumerate(xors):
            if i == 0: continue
            it.append(lambda i=i, x=x: V(f"v_xor_b32 v{dst[i]}, {x}, v{dst[0]}", w={dst[i]}, r={dst[0]}))
        return it

    A.salu(f"s_cmp_lt_u32 s{sW}, 4")
    A.salu("s_cbranch_scc1 K1_FAT")
    A.salu(f"s_cmp_ge_u32 s{sW}, 6")
    A.salu("s_cbranch_scc1 K1_KVL")
    pf0 = PF.n
    kvslots = [free.pop() for _ in range(NSLOT - NQ)]
    def refill(s):
        done_q = 3 * max(s, 0)
        while nq[0] < 27 and nq[0] - done_q < NQ and free:
            issue_unit_q(nq[0]); nq[0] += 1
    refill(-1)
    for s in range(9):
        A.wait_vm(max(unit_last_vm[u] for u in stage_units[s]))
        A.barrier()
        PF.stamp(f"q{s}")
        if s > 0:
            for u in stage_units[s - 1]: free.append(unit_slot[u])
        refill(s)
        if s == 8:
            xch.append(free.pop(0)); xch.append(free.pop(0))
    A.waitcnt(vm=0)
    A.vm_done = A.nvm
    A.salu("s_branch K1_ATT")
    A.label("K1_KVL")
    A.win = []
    A.salu("s_nop 4")
    PF.n = pf0; PF.names = PF.names[:pf0]
    for q in range(2):
        V(f"v_subrev_u32 v{KQ+q}, {6*8*256}, v{KO+q}", w={KQ + q}, r={KO + q})
    V(f"v_lshlrev_b32 v{DV}, 4, v{L}", w={DV}, r={L})
    V(f"v_add_u32 v{DV}, s{sWL4}, v{DV}", w={DV}, r={DV})
    late_free = free[:]; free[:] = kvslots
    NL = len(kvslots)
    TV = FR + 4
    V(f"v_lshlrev_b32 v{TV}, 7, v{L}", w={TV}, r={L})
    A.salu(f"s_lshl_b32 s3, s{sW3}, 13")
    V(f"v_add_u32 v{TV}, s3, v{TV}", w={TV}, r={TV})
    NT = OPT["kvt"]
    ntouch = [0]
    def kv_issue():
        i = nkv[0]
        if i < NL: issue_unit_q(27 + i)
        elif i < NL + NSTG: issue_unit_q(27 + i, STG[i - NL])
        else:
            if ntouch[0] < NT:
                u = 27 + NL + NSTG + ntouch[0]
                base, const, sr_, vo, delta, nto = unit_info(u)
                A.salu(f"s_add_u32 s{sT}, s{base}, {const}")
                A.vmem(f"buffer_load_dword v{TV+1}, v{TV}, s[{sr_}:{sr_+3}], s{sT} offen", w={TV + 1}, r={TV})
                ntouch[0] += 1
            return
        nkv[0] += 1
    for _ in range(OPT["kv0"]): kv_issue()
    for s in range(9):
        A.barrier()
        PF.stamp(f"q{s}")
        for _ in range(OPT["kvrate"]): kv_issue()
    assert nkv[0] == NL + NSTG
    free[:] = late_free
    staged = [(27 + NL + i, STG[i]) for i in range(NSTG)]
    while staged and free:
        u, r_ = staged.pop(0)
        A.wait_vm(unit_last_vm[u])
        dump_unit(u, r_)
    A.waitcnt(vm=0)
    A.vm_done = A.nvm
    A.wait_ds_all()
    A.salu("s_branch K1_ATT")
    A.label("K1_FAT")
    A.win = []
    A.salu("s_nop 4")
    PF.n = pf0; PF.names = PF.names[:pf0]
    TW, TX = XO, XO + 1
    V(f"v_bfe_u32 v{T1}, v{L}, 2, 1", w={T1}, r={L})
    A.salu(f"s_lshl_b32 s3, s{sW}, 1")
    V(f"v_add_u32 v{T1}, s3, v{T1}", w={T1}, r={T1})
    V(f"v_lshlrev_b32 v{T1}, 13, v{T1}", w={T1}, r={T1})
    V(f"v_and_b32 v{T2}, 3, v{L}", w={T2}, r={L})
    V(f"v_lshl_add_u32 v{TW}, v{T2}, 7, v{T1}", w={TW}, r={T2, T1})
    V(f"v_and_b32 v{T1}, 7, v{L}", w={T1}, r={L})
    V(f"v_min_u32 v{T1}, 6, v{T1}", w={T1}, r={T1})
    A.salu(f"s_mul_i32 s3, s{sW}, 7")
    V(f"v_add_u32 v{T1}, s3, v{T1}", w={T1}, r={T1})
    V(f"v_mul_u32_u24 v{TX}, 1152, v{T1}", w={TX}, r={T1})
    A.salu(f"s_lshl_b32 s8, s{sB}, 16")
    A.salu(f"s_add_u32 s8, s8, s{sWB}")
    A.salu(f"s_and_b32 s9, s{sKVH}, 3")
    A.salu(f"s_mul_i32 s9, s9, {28*1152}")
    A.salu(f"s_add_u32 s9, s9, s{sXB}")
    def touch(s_):
        if not OPT["l2pf"] or s_ > 8: return
        A.salu(f"s_add_u32 s3, s8, {s_ * 64 * 8192}")
        A.vmem(f"buffer_load_dword v{T4}, v{TW}, s[{SW_}:{SW_+3}], s3 offen", w={T4}, r={TW})
        A.vmem(f"buffer_load_dword v{T5}, v{TX}, s[{SX}:{SX+3}], s9 offen offset:{s_ * 128}", w={T5}, r={TX})
    for s_ in range(2, OPT["pflead"]): touch(s_)
    QA = [S, O]
    FBW = [P, QB]; FBX = [P + 16, QB + 16]
    AW = [FR, FR + 4]; AX = FR + 8
    def qaddr(s):
        u0 = 3 * s
        return (addr_items([AX + i for i in range(4)], BX, unit_slot[u0], [0, 32, 64, 96]) +
                addr_items([AW[0] + i for i in range(4)], BW, unit_slot[u0 + 1], [0, 64, 128, 192]) +
                addr_items([AW[1] + i for i in range(4)], BW, unit_slot[u0 + 2], [0, 64, 128, 192]))
    def qreads(ks):
        A.ds_read_b128(FBX[ks % 2], AX + ks)
        last = A.ds_read_b128(FBX[ks % 2] + 4, AX + ks, 4096)
        for t in range(4):
            for j in range(2):
                last = A.ds_read_tr(FBW[ks % 2] + 4 * t + 2 * j, AW[ks // 2] + t, ((ks % 2) * 16 + 4 * j) * 512)
        return last
    for it in qaddr(0): it()
    A.barrier()
    PF.stamp("q0")
    pend = qreads(0)
    touch(OPT["pflead"])
    for s in range(9):
        for ks in range(4):
            A.wait_ds(pend)
            if ks < 3: pend = qreads(ks + 1)
            nxt = qaddr(s + 1) if (ks == 3 and s < 8) else []
            m = 0
            for t in range(4):
                for r2 in range(2):
                    A.mfma(QA[r2] + 16 * t, FBW[ks % 2] + 4 * t, FBX[ks % 2] + 4 * r2, "zero" if (s == 0 and ks == 0) else None)
                    if nxt:
                        if m < 2:
                            for it in nxt[6 * m: 6 * m + 6]: it()
                        if m == 1:
                            A.barrier()
                            PF.stamp(f"q{s+1}")
                            pend = qreads(0)
                        if m == 3: touch(s + 1 + OPT["pflead"])
                    m += 1
    A.salu(f"s_lshr_b32 s3, s{sW}, 1")
    A.salu(f"s_cmp_eq_u32 s3, 0")
    A.salu(f"s_cselect_b32 s3, {xch[0]}, {xch[1]}")
    A.salu(f"s_lshl_b32 s3, s3, 14")
    A.salu(f"s_and_b32 s{sT}, s{sW}, 1")
    A.salu(f"s_lshl_b32 s{sT}, s{sT}, 13")
    A.salu(f"s_add_u32 s3, s3, s{sT}")
    V(f"v_lshlrev_b32 v{T6}, 4, v{L}", w={T6}, r={L})
    V(f"v_add_u32 v{T6}, s3, v{T6}", w={T6}, r={T6})
    for i in range(64):
        V(f"v_mul_f32 v{O+i}, s{sC}, v{O+i}", w={O + i}, r={O + i})
    for q in range(32):
        V(f"v_cvt_pk_bf16_f32 v{P+q}, v{O+2*q}, v{O+2*q+1}", w={P + q}, r={O + 2 * q, O + 2 * q + 1})
        if q % 4 == 3:
            A.ds_write_b128(T6, P + q - 3, (q // 4) * 1024)
    for i in range(64):
        V(f"v_mul_f32 v{S+i}, s{sC}, v{S+i}", w={S + i}, r={S + i})
    for q in range(32):
        V(f"v_cvt_pk_bf16_f32 v{QB+q}, v{S+2*q}, v{S+2*q+1}", w={QB + q}, r={S + 2 * q, S + 2 * q + 1})
    A.wait_ds_all()
    A.waitcnt(vm=0)
    A.vm_done = A.nvm
    A.label("K1_ATT")
    A.win = []
    A.salu("s_nop 4")

    SETA = [AD + i for i in range(8)]
    SETB = [XO, XO + 1, WO, WO + 1, BW, BX, T4, T5]
    kx = [32 * ks for ks in range(8)]
    vx = [(t << 6) ^ (32 * jj) for t in range(4) for jj in range(2)]
    SB = lambda h: S + 32 * (h % 2)
    PB = lambda h: P + 16 * (h % 2)
    phases = [("qk", 0)] + [x for h in range(7) for x in (("qk", h + 1), ("pv", h))] + [("pv", 7)]
    pset = {}
    for ph in phases:
        pset[ph] = SETA if ph[0] == "qk" else SETB
    pset[("qk", 0)] = SETB; pset[("pv", 7)] = SETA
    punit = lambda ph: UK[ph[1]] if ph[0] == "qk" else UV[ph[1]]
    def paddr(ph):
        u = punit(ph)
        return addr_items(pset[ph], BK if ph[0] == "qk" else BV, unit_slot[u], kx if ph[0] == "qk" else vx)
    mf = [(ph, i) for ph in phases for i in range(16)]
    syncJ = list(range(0, 6, OPT["bstep"]))
    sync_pos = [phases.index(("pv", j)) * 16 + 12 for j in syncJ]
    first_read = {}
    for n, (ph, i) in enumerate(mf):
        first_read.setdefault(punit(ph), max(n - 4, -1))
    last_read = {}
    for n, (ph, i) in enumerate(mf):
        last_read[punit(ph)] = n - 4
    def publish_set(pos_from, pos_to):
        return [u for u, fr in first_read.items() if pos_from <= fr < pos_to]
    freed = set()
    dmaq = []
    def refill_att():
        while nkv[0] < 16 and free:
            dmaq.extend(dma_items(27 + nkv[0])); nkv[0] += 1

    pub = publish_set(-1, sync_pos[0])
    A.wait_vm(max(unit_last_vm[u] for u in pub))
    A.barrier()
    PF.stamp("a0")
    for u in stage_units[8]: free.append(unit_slot[u])
    A.salu(f"s_cmp_lt_u32 s{sW}, 4")
    A.salu(f"s_cbranch_scc1 K1_QGOT")
    if staged:
        A.salu(f"s_cmp_lt_u32 s{sW}, 6")
        A.salu(f"s_cbranch_scc1 K1_NODUMP")
        while staged:
            u, r_ = staged.pop(0)
            dump_unit(u, r_)
        A.label("K1_NODUMP")
    refill_att()
    A.salu(f"s_bfe_u32 s3, s{sW}, 0x10001")
    A.salu(f"s_cmp_eq_u32 s3, 0")
    A.salu(f"s_cselect_b32 s3, {xch[0]}, {xch[1]}")
    A.salu(f"s_lshl_b32 s3, s3, 14")
    A.salu(f"s_and_b32 s{sT}, s{sW}, 1")
    A.salu(f"s_lshl_b32 s{sT}, s{sT}, 13")
    A.salu(f"s_add_u32 s3, s3, s{sT}")
    V(f"v_lshlrev_b32 v{T6}, 4, v{L}", w={T6}, r={L})
    V(f"v_add_u32 v{T6}, s3, v{T6}", w={T6}, r={T6})
    for q in range(8):
        A.ds_read_b128(QB + 4 * q, T6, q * 1024)
    A.wait_ds_all()
    A.label("K1_QGOT")
    A.salu("s_nop 1")
    for it in paddr(("qk", 0)) + paddr(("qk", 1)): it()

    TT = [T0, T1, T2, T3]
    def max_items(regs, first, final):
        it = []
        r = list(regs)
        if first:
            a = r[:3]; b = r[3:6]; r = r[6:]
            it.append(lambda a=a: V(f"v_max3_f32 v{MX}, v{a[0]}, v{a[1]}, v{a[2]}", w={MX}, r=set(a)))
            it.append(lambda b=b: V(f"v_max3_f32 v{MX2}, v{b[0]}, v{b[1]}, v{b[2]}", w={MX2}, r=set(b)))
        k = 0
        while r:
            a = r[:2]; r = r[2:]
            d = MX if k % 2 == 0 else MX2
            it.append(lambda a=a, d=d: V(f"v_max3_f32 v{d}, v{d}, v{a[0]}, v{a[1]}", w={d}, r={d} | set(a)))
            k += 1
        if final:
            it.append(lambda: V(f"v_max_f32 v{MX}, v{MX}, v{MX2}", w={MX}, r={MX, MX2}))
            it.append(lambda: V(f"v_mov_b32 v{MX2}, v{MX}", w={MX2}, r={MX}))
            it.append(lambda: V(f"v_permlane32_swap_b32 v{MX}, v{MX2}", w={MX, MX2}, r={MX, MX2}, kind="perm"))
            it.append(lambda: V(f"v_max_f32 v{MX}, v{MX}, v{MX2}", w={MX}, r={MX, MX2}))
        return it
    def sm_items(h, lo, hi, sub):
        it = []
        sb, pb = SB(h), PB(h)
        if sub:
            it.append(lambda: V(f"v_sub_f32 v{sb+lo}, v{sb+lo}, v{MX}", w={sb + lo}, r={sb + lo, MX}))
        for e in range(lo, hi + 2):
            if sub and e + 1 < hi:
                it.append(lambda e=e: V(f"v_sub_f32 v{sb+e+1}, v{sb+e+1}, v{MX}", w={sb + e + 1}, r={sb + e + 1, MX}))
            if e < hi:
                it.append(lambda e=e: V(f"v_exp_f32 v{TT[e%4]}, v{sb+e}", w={TT[e % 4]}, r={sb + e}, kind="trans"))
            if lo <= e - 1 < hi:
                p = e - 1; acc = SUMA if p % 2 == 0 else SUMB
                if p < 2:
                    it.append(lambda p=p, acc=acc: V(f"v_mov_b32 v{acc}, v{TT[p%4]}", w={acc}, r={TT[p % 4]}))
                else:
                    it.append(lambda p=p, acc=acc: V(f"v_add_f32 v{acc}, v{acc}, v{TT[p%4]}", w={acc}, r={acc, TT[p % 4]}))
            if e - 2 >= lo and (e - 2) % 2 == 0 and e - 1 < hi:
                p = e - 2
                it.append(lambda p=p: V(f"v_cvt_pk_bf16_f32 v{pb+p//2}, v{TT[p%4]}, v{TT[(p+1)%4]}", w={pb + p // 2}, r={TT[p % 4], TT[(p + 1) % 4]}))
        return it
    def negm_items():
        return [lambda i=i: V(f"v_sub_f32 v{NEGM+i}, 0, v{MX}", w={NEGM + i}, r={MX}) for i in range(16)]
    def check(h):
        V(f"v_add_f32 v{SUMA}, v{SUMA}, v{SUMB}", w={SUMA}, r={SUMA, SUMB})
        if h > 0:
            V(f"v_cmp_nge_f32 vcc, s{sTHR}, v{SUMA}", r={SUMA}, sw={"vcc"})
            A.salu("s_nop 1")
            A.salu(f"s_cbranch_vccnz K1_SLOW{h}")
            A.label(f"K1_BACK{h}")
        V(f"v_add_f32 v{LSUM}, v{LSUM}, v{SUMA}", w={LSUM}, r={LSUM, SUMA})

    def side_for(ph):
        kind, h = ph
        if ph == ("qk", 0):
            return [], []
        if kind == "qk":
            hh = h - 1
            if hh == 0:
                main = max_items([SB(0) + i for i in range(32)], True, True) + sm_items(0, 0, 32, True)
            else:
                main = sm_items(hh, 16, 32, hh == 1)
            return main, paddr(("pv", hh))
        if h == 7: return [], []
        if h == 6:
            return sm_items(7, 0, 32, False), paddr(("pv", 7))
        main = sm_items(h + 1, 0, 16, h == 0)
        if h == 0: main = negm_items() + main
        return main, paddr(("qk", h + 2))

    rid = {}
    def issue_read(n):
        ph, i = mf[n]
        st = pset[ph]; fr = FR + 4 * (n % 4)
        if ph[0] == "qk":
            rid[n] = A.ds_read_b128(fr, st[i % 8], (i // 8) * 8192)
        else:
            g, t = i // 4, i % 4
            A.ds_read_tr(fr, st[2 * t], g * 4096)
            rid[n] = A.ds_read_tr(fr + 2, st[2 * t + 1], g * 4096 + 2048)
    for n in range(4): issue_read(n)
    gap = 0
    for n, (ph, i) in enumerate(mf):
        kind, h = ph
        if i == 0:
            main, adr = side_for(ph)
            plan = [[] for _ in range(16)]
            for k, it in enumerate(adr): plan[k * 12 // max(len(adr), 1)].append(it)
            s0 = 1 if ph == ("qk", 1) else 0
            for k, it in enumerate(main): plan[s0 + k * (16 - s0) // len(main)].append(it)
        A.wait_ds(rid[n])
        fr = FR + 4 * (n % 4)
        if kind == "qk":
            kt, ks = i // 8, i % 8
            c = None
            if ks == 0: c = "zero" if h <= 1 else NEGM
            A.mfma(SB(h) + 16 * kt, fr, QB + 4 * ks, c)
        else:
            g, t = i // 4, i % 4
            A.mfma(O + 16 * t, fr, PB(h) + 4 * g, "zero" if (h == 0 and g == 0) else None)
        if n in sync_pos:
            k = sync_pos.index(n)
            pub = publish_set(n, sync_pos[k + 1] if k + 1 < len(sync_pos) else 10**9)
            while dmaq: dmaq.pop(0)()
            A.wait_ds_all()
            A.wait_vm(max(unit_last_vm[u] for u in pub))
            A.barrier()
            PF.stamp(f"x{h}")
            if k == 0: free.extend(xch)
            for u, lr in last_read.items():
                if lr < n and u not in freed:
                    freed.add(u); free.append(unit_slot[u])
            refill_att()
            if OPT["wopf"] and h == OPT["wopf"] - 1:
                A.salu("s_load_dwordx2 s[60:61], s[0:1], 32")
                A.salu("s_load_dwordx2 s[62:63], s[0:1], 72")
                A.salu(f"s_lshl_b32 s3, s{sB}, 4")
                A.salu(f"s_add_u32 s3, s3, s{sKVH}")
                A.salu(f"s_mul_i32 s3, s3, 288")
                A.salu(f"s_lshl_b32 s{sT}, s{sW}, 6")
                A.salu(f"s_min_u32 s{sT}, s{sT}, 224")
                A.salu(f"s_add_u32 s3, s3, s{sT}")
                A.salu(f"s_lshl_b32 s3, s3, 7")
                V(f"v_mbcnt_lo_u32_b32 v{T6}, -1, 0", w={T6})
                V(f"v_mbcnt_hi_u32_b32 v{T6}, -1, v{T6}", w={T6}, r={T6})
                V(f"v_lshlrev_b32 v{T6}, 7, v{T6}", w={T6}, r={T6})
                A.salu("s_waitcnt lgkmcnt(0)")
                A.salu(f"s_cmp_eq_u32 s{sBLK}, 0")
                A.salu("s_cselect_b32 s60, s60, s62")
                A.salu("s_cselect_b32 s61, s61, s63")
                A.salu("s_and_b32 s61, s61, 0xffff")
                A.salu(f"s_mov_b32 s62, {4096*576*2}")
                A.salu("s_mov_b32 s63, 0x00020000")
                A.vmem(f"buffer_load_dword v{T7}, v{T6}, s[60:63], s3 offen", w={T7}, r={T6})
        if n + 4 < len(mf): issue_read(n + 4)
        for it in plan[i]: it()
        gap += 1
        if dmaq and gap >= OPT["dmagap"]:
            dmaq.pop(0)(); gap = 0
        if i == 15:
            if kind == "qk" and h >= 1: check(h - 1)
            if ph == ("pv", 6): check(7)
    assert not dmaq
    PF.stamp("pv7")
    V(f"v_mov_b32 v{T0}, v{LSUM}", w={T0}, r={LSUM})
    V(f"v_permlane32_swap_b32 v{T0}, v{LSUM}", w={T0, LSUM}, r={T0, LSUM}, kind="perm")
    V(f"v_add_f32 v{T0}, v{T0}, v{LSUM}", w={T0}, r={T0, LSUM})
    V(f"v_rcp_f32 v{T0}, v{T0}", w={T0}, r={T0}, kind="trans")
    A.salu(f"s_cmp_eq_u32 s{sRT}, 3")
    A.salu("s_cbranch_scc0 K1_NOMASK")
    A.salu("s_mov_b32 exec_lo, 0xffff")
    A.salu("s_mov_b32 exec_hi, 0xffff")
    A.label("K1_NOMASK")
    for f in range(8):
        b0 = O + 8 * f
        for i in range(8):
            V(f"v_mul_f32 v{b0+i}, v{T0}, v{b0+i}", w={b0 + i}, r={T0, b0 + i})
        d = P + 4 * f
        for q in range(4):
            V(f"v_cvt_pk_bf16_f32 v{d+q}, v{b0+2*q}, v{b0+2*q+1}", w={d + q}, r={b0 + 2 * q, b0 + 2 * q + 1})
        A.vmem(f"buffer_store_dwordx4 {vname(d,4)}, v{OST}, s[{SO}:{SO+3}], s{sOB} offen offset:{f*512}{' nt' if OPT['ntst'] else ''}", r=vr(d, 4) | {OST}, storedata=vr(d, 4))
    PF.dump(24, sW, 0)
    A.label("K1_END")
    A.salu("s_endpgm")
    for h in range(1, 8):
        A.label(f"K1_SLOW{h}")
        A.flush_hazards()
        sb = SB(h)
        for it in max_items([sb + i for i in range(32)], True, True): it()
        V(f"v_max_f32 v{MX}, 0, v{MX}", w={MX}, r={MX})
        V(f"v_sub_f32 v{MX2}, 0, v{MX}", w={MX2}, r={MX})
        V(f"v_exp_f32 v{MX2}, v{MX2}", w={MX2}, r={MX2}, kind="trans")
        for i in range(64):
            V(f"v_mul_f32 v{O+i}, v{MX2}, v{O+i}", w={O + i}, r={MX2, O + i})
        V(f"v_mul_f32 v{LSUM}, v{MX2}, v{LSUM}", w={LSUM}, r={MX2, LSUM})
        for i in range(16):
            V(f"v_sub_f32 v{NEGM+i}, v{NEGM+i}, v{MX}", w={NEGM + i}, r={NEGM + i, MX})
        if h < 7:
            s2 = SB(h + 1)
            for i in range(32):
                V(f"v_sub_f32 v{s2+i}, v{s2+i}, v{MX}", w={s2 + i}, r={s2 + i, MX})
        for it in sm_items(h, 0, 32, True): it()
        V(f"v_add_f32 v{SUMA}, v{SUMA}, v{SUMB}", w={SUMA}, r={SUMA, SUMB})
        A.flush_hazards()
        A.salu(f"s_branch K1_BACK{h}")

def gen_k2(A):
    V = A.valu
    T0, T1, T2, T3, T4, T5, T6, T7 = range(0, 8)
    WOFF = 8
    OOFF = 12
    BA = 13
    RED = 15
    AF = 16
    OF = 48
    ACC = 112
    sBLK, sMT, sNT, sW = 26, 27, 4, 5
    SW_, SO, SOUT = 28, 32, 36
    sWL, sWB, sO0, sO1, sT = 48, 49, 50, 51, 52
    A.win = []
    A.nds = A.ds_done = A.nvm = A.vm_done = 0
    A.raw(f".p2align 8\n.globl k2_kernel\n.type k2_kernel,@function\nk2_kernel:")
    A.salu("s_cmp_ge_u32 s2, 256")
    A.salu("s_cbranch_scc1 K2_END")
    A.salu("s_and_b32 s3, s2, 7")
    A.salu("s_lshl_b32 s3, s3, 5")
    A.salu("s_lshr_b32 s6, s2, 3")
    A.salu("s_add_u32 s3, s3, s6")
    A.salu("s_cmp_ge_u32 s3, 252")
    A.salu("s_cbranch_scc1 K2_END")
    A.salu("s_load_dwordx2 s[8:9], s[0:1], 32")
    A.salu("s_load_dwordx2 s[10:11], s[0:1], 72")
    A.salu("s_load_dwordx2 s[12:13], s[0:1], 80")
    A.salu("s_load_dwordx2 s[14:15], s[0:1], 96")
    A.salu("s_cmp_ge_u32 s3, 126")
    A.salu(f"s_cselect_b32 s{sBLK}, 1, 0")
    A.salu(f"s_mul_i32 s6, s{sBLK}, 126")
    A.salu("s_sub_u32 s3, s3, s6")
    A.salu("s_mul_i32 s6, s3, 57")
    A.salu(f"s_lshr_b32 s{sMT}, s6, 9")
    A.salu(f"s_mul_i32 s6, s{sMT}, 9")
    A.salu(f"s_sub_u32 s{sNT}, s3, s6")
    V(f"v_lshrrev_b32 v{T1}, 6, v0", w={T1}, r={0})
    A._emit(I(f"v_readfirstlane_b32 s{sW}, v{T1}", "rdlane", r={T1}, sw={sW}))
    V(f"v_and_b32 v{T0}, 63, v0", w={T0}, r={0})
    L = T0
    A.salu(f"s_lshl_b32 s{sWL}, s{sW}, 14", sr={sW})
    A.salu(f"s_mul_i32 s{sWB}, s{sW}, {512*1152}", sr={sW})
    A.salu(f"s_lshl_b32 s6, s{sNT}, 7")
    A.salu(f"s_add_u32 s{sWB}, s{sWB}, s6")
    A.salu(f"s_mul_i32 s{sO0}, s{sBLK}, {O_BLK}")
    A.salu(f"s_lshl_b32 s6, s{sMT}, 19")
    A.salu(f"s_add_u32 s{sO0}, s{sO0}, s6")
    A.salu(f"s_lshl_b32 s6, s{sW}, 14")
    A.salu(f"s_add_u32 s{sO0}, s{sO0}, s6")
    A.salu(f"s_add_u32 s{sO1}, s{sO0}, {2*131072}")
    V(f"v_lshrrev_b32 v{T1}, 3, v{L}", w={T1}, r={L})
    V(f"v_mul_u32_u24 v{T1}, 1152, v{T1}", w={T1}, r={T1})
    V(f"v_bfe_u32 v{T2}, v{L}, 4, 1", w={T2}, r={L})
    V(f"v_lshlrev_b32 v{T3}, 2, v{T2}", w={T3}, r={T2})
    V(f"v_and_b32 v{T4}, 7, v{L}", w={T4}, r={L})
    V(f"v_xor_b32 v{T4}, v{T4}, v{T3}", w={T4}, r={T4, T3})
    V(f"v_lshl_add_u32 v{WOFF}, v{T4}, 4, v{T1}", w={WOFF}, r={T4, T1})
    for i in range(1, 4):
        V(f"v_add_u32 v{WOFF+i}, {9216*i}, v{WOFF}", w={WOFF + i}, r={WOFF})
    V(f"v_lshrrev_b32 v{T1}, 5, v{L}", w={T1}, r={L})
    V(f"v_bfe_u32 v{T3}, v{L}, 2, 2", w={T3}, r={L})
    V(f"v_and_b32 v{T4}, 3, v{L}", w={T4}, r={L})
    V(f"v_lshlrev_b32 v{T6}, 17, v{T2}", w={T6}, r={T2})
    V(f"v_lshl_add_u32 v{T6}, v{T1}, 8, v{T6}", w={T6}, r={T1, T6})
    V(f"v_and_b32 v{T7}, 15, v{L}", w={T7}, r={L})
    V(f"v_lshl_add_u32 v{OOFF}, v{T7}, 4, v{T6}", w={OOFF}, r={T7, T6})
    V(f"v_lshl_add_u32 v{T6}, v{T1}, 2, v{T3}", w={T6}, r={T1, T3})
    V(f"v_lshlrev_b32 v{T6}, 7, v{T6}", w={T6}, r={T6})
    V(f"v_lshrrev_b32 v{T7}, 1, v{T4}", w={T7}, r={T4})
    V(f"v_lshl_add_u32 v{T7}, v{T2}, 1, v{T7}", w={T7}, r={T2, T7})
    V(f"v_lshrrev_b32 v{T5}, 1, v{T3}", w={T5}, r={T3})
    V(f"v_lshlrev_b32 v{T5}, 2, v{T5}", w={T5}, r={T5})
    V(f"v_xor_b32 v{T7}, v{T7}, v{T5}", w={T7}, r={T7, T5})
    V(f"v_lshl_add_u32 v{T6}, v{T7}, 4, v{T6}", w={T6}, r={T7, T6})
    V(f"v_and_b32 v{T7}, 1, v{T4}", w={T7}, r={T4})
    V(f"v_lshl_add_u32 v{T6}, v{T7}, 3, v{T6}", w={T6}, r={T7, T6})
    V(f"v_add_u32 v{BA}, s{sWL}, v{T6}", w={BA}, r={T6})
    V(f"v_xor_b32 v{BA+1}, 64, v{BA}", w={BA + 1}, r={BA})
    V(f"v_lshlrev_b32 v{RED}, 4, v{L}", w={RED}, r={L})
    A.waitcnt(lgkm=0)
    A.salu(f"s_cmp_eq_u32 s{sBLK}, 0")
    A.salu("s_cselect_b32 s8, s8, s10")
    A.salu("s_cselect_b32 s9, s9, s11")
    srd(A, SW_, 8, 4096 * 576 * 2)
    srd(A, SO, 14, 2 * O_BLK)
    srd(A, SOUT, 12, 896 * 1152 * 2)

    NU = 16; DEPTH = 4
    last_vm = {}
    def issue(u):
        slot = u % DEPTH
        A.salu(f"s_add_u32 s{sT}, s{sWB}, {u * 32 * 1152}")
        for i in range(4):
            A.salu(f"s_add_u32 m0, s{sWL}, {slot * 4096 + i * 1024}", m0w=True)
            A.vmem(f"buffer_load_dwordx4 v{WOFF+i}, s[{SW_}:{SW_+3}], s{sT} offen{' nt' if OPT['ntwo'] else ''} lds", kind="dma", r={WOFF + i}, m0r=True)
        for ks in range(2):
            for tm in range(2):
                d = OF + slot * 16 + (ks * 2 + tm) * 4
                off = (2 * u + ks) * 512
                sb = sO0 if tm == 0 else sO1
                if off >= 4096:
                    A.salu(f"s_add_u32 s{sT}, s{sb}, {off & ~4095}")
                    k = A.vmem(f"buffer_load_dwordx4 {vname(d,4)}, v{OOFF}, s[{SO}:{SO+3}], s{sT} offen offset:{off & 4095}{' nt' if OPT['nto'] else ''}", w=vr(d, 4), r={OOFF})
                else:
                    k = A.vmem(f"buffer_load_dwordx4 {vname(d,4)}, v{OOFF}, s[{SO}:{SO+3}], s{sb} offen offset:{off}{' nt' if OPT['nto'] else ''}", w=vr(d, 4), r={OOFF})
        last_vm[u] = k
    def dsreads(u):
        slot = u % DEPTH
        ab = AF + (u % 2) * 16
        for ks in range(2):
            for tn in range(2):
                for j in range(2):
                    k = A.ds_read_tr(ab + (ks * 2 + tn) * 4 + 2 * j, BA + tn, slot * 4096 + (16 * ks + 8 * j) * 128)
        return k
    PF = Prof(A, 1)
    PF.stamp("start")
    for u in range(DEPTH): issue(u)
    A.wait_vm(last_vm[0])
    pend = dsreads(0)
    for u in range(NU):
        A.wait_ds(pend)
        if u + 1 < NU:
            A.wait_vm(last_vm[u + 1])
            pend = dsreads(u + 1)
        ab = AF + (u % 2) * 16
        ob = OF + (u % DEPTH) * 16
        for ks in range(2):
            for tn in range(2):
                for tm in range(2):
                    c = "zero" if (u == 0 and ks == 0) else None
                    A.mfma(ACC + (tn * 2 + tm) * 16, ab + (ks * 2 + tn) * 4, ob + (ks * 2 + tm) * 4, c)
        if u + DEPTH < NU: issue(u + DEPTH)
        PF.stamp(f"u{u}")
    A.wait_ds_all()
    A.barrier()
    V(f"v_add_u32 v{T1}, s{sWL}, v{RED}", w={T1}, r={RED})
    for q in range(16):
        A.ds_write_b128(T1, ACC + 4 * q, q * 1024)
    A.wait_ds_all()
    A.barrier()
    A.salu(f"s_lshl_b32 s6, s{sW}, 11")
    V(f"v_add_u32 v{T1}, s6, v{RED}", w={T1}, r={RED})
    V(f"v_add_u32 v{T2}, 0x10000, v{T1}", w={T2}, r={T1})
    R = OF
    for ww in range(8):
        for q in range(2):
            A.ds_read_b128(R + (ww * 2 + q) * 4, T1 if ww < 4 else T2, (ww % 4) * 16384 + q * 1024)
            if ww == 6 and q == 1: pass
        if ww == 5:
            A.wait_ds_all()
    A.wait_ds_all()
    for ww in range(1, 8):
        for i in range(8):
            V(f"v_add_f32 v{R+i}, v{R+i}, v{R+ww*8+i}", w={R + i}, r={R + i, R + ww * 8 + i})
    for q in range(4):
        V(f"v_cvt_pk_bf16_f32 v{AF+q}, v{R+2*q}, v{R+2*q+1}", w={AF + q}, r={R + 2 * q, R + 2 * q + 1})
    A.salu(f"s_lshr_b32 s6, s{sW}, 1")
    A.salu("s_and_b32 s7, s6, 1")
    A.salu("s_lshr_b32 s6, s6, 1")
    A.salu(f"s_lshl_b32 s3, s{sMT}, 6")
    A.salu("s_lshl_b32 s7, s7, 5")
    A.salu("s_add_u32 s3, s3, s7")
    A.salu("s_mul_i32 s3, s3, 2304")
    A.salu(f"s_mul_i32 s7, s{sBLK}, 1152")
    A.salu("s_add_u32 s3, s3, s7")
    A.salu(f"s_lshl_b32 s7, s{sNT}, 7")
    A.salu("s_add_u32 s3, s3, s7")
    A.salu("s_lshl_b32 s7, s6, 6")
    A.salu("s_add_u32 s3, s3, s7")
    A.salu(f"s_and_b32 s7, s{sW}, 1")
    A.salu("s_lshl_b32 s7, s7, 5")
    A.salu("s_add_u32 s3, s3, s7")
    V(f"v_and_b32 v{T1}, 31, v{L}", w={T1}, r={L})
    V(f"v_mul_u32_u24 v{T1}, 2304, v{T1}", w={T1}, r={T1})
    V(f"v_lshrrev_b32 v{T2}, 5, v{L}", w={T2}, r={L})
    V(f"v_lshl_add_u32 v{T1}, v{T2}, 3, v{T1}", w={T1}, r={T2, T1})
    A.vmem(f"buffer_store_dwordx2 {vname(AF,2)}, v{T1}, s[{SOUT}:{SOUT+3}], s3 offen", r=vr(AF, 2) | {T1})
    A.vmem(f"buffer_store_dwordx2 {vname(AF+2,2)}, v{T1}, s[{SOUT}:{SOUT+3}], s3 offen offset:16", r=vr(AF + 2, 2) | {T1})
    PF.dump(14, sW, 0)
    A.label("K2_END")
    A.salu("s_endpgm")

def kd(name, vgpr, sgpr):
    return f""".amdhsa_kernel {name}
  .amdhsa_next_free_vgpr {vgpr}
  .amdhsa_next_free_sgpr {sgpr}
  .amdhsa_accum_offset {(vgpr + 3) // 4 * 4}
  .amdhsa_group_segment_fixed_size 0
  .amdhsa_kernarg_size 104
  .amdhsa_user_sgpr_count 2
  .amdhsa_user_sgpr_kernarg_segment_ptr 1
  .amdhsa_system_sgpr_workgroup_id_x 1
.end_amdhsa_kernel
"""

def main():
    A = Asm()
    gen_k1(A)
    gen_k2(A)
    head = """; Two-launch GQA block pair: k1 = Q projection + attention (o -> ws), k2 = output projection.
; @launch kernel=k1_kernel grid=(256,1,1) block=(512,1,1) lds=163840
; @launch kernel=k2_kernel grid=(256,1,1) block=(512,1,1) lds=131072
.amdgcn_target "amdgcn-amd-amdhsa--gfx950"
.text
"""
    tail = '\n.section .rodata,"a"\n.p2align 6\n' + kd("k1_kernel", 256, 102 if OPT["prof"] else 64) + ".p2align 6\n" + kd("k2_kernel", 176, 102 if OPT["prof"] else 64)
    open(sys.argv[1], "w").write(head + A.text() + tail)
    print("nops inserted:", A.nops_inserted, "lines:", len(A.out))

main()
```

```python
import sys, math
sys.path.insert(0, "gen")
from asmlib import *

NAME = "concat_heads__gqa_block_cached__gqa_block_cached__near_ridge"
OPT = dict(prio=1, prof=0, ntkv=1, ntw=0, ntx=0, ntwo=0, nto=0, ntst=0, nq=6, kvrate=1, l2pf=1, wopf=4, fat=1, bstep=1, dmagap=1, pflead=4, kv0=2, nstg=4, kvt=0, ld4=1, cpf=0, mid=0, kvt0=1, kvtr=1)
for a in sys.argv[2:]:
    k, v = a.split("="); OPT[k] = int(v)

O_BLK = 896 * 4096 * 2
SLOT = 16384
NSLOT = 10

def srd(A, d, base, nbytes):
    A.salu(f"s_mov_b32 s{d}, s{base}")
    A.salu(f"s_and_b32 s{d+1}, s{base+1}, 0xffff")
    A.salu(f"s_mov_b32 s{d+2}, {nbytes}")
    A.salu(f"s_mov_b32 s{d+3}, 0x00020000")

class Prof:
    def __init__(self, A, kidx):
        self.A = A; self.n = 0; self.names = []; self.kidx = kidx
    def stamp(self, name):
        if not OPT["prof"]: return
        A = self.A
        assert self.n < 30
        A.salu("s_waitcnt lgkmcnt(0)")
        A.ds_done = A.nds
        A.salu("s_memtime s[96:97]")
        A.salu("s_waitcnt lgkmcnt(0)")
        A.salu(f"s_mov_b32 s{64+self.n}, s96")
        if self.n == 0:
            A.salu("s_memrealtime s[98:99]")
            A.salu("s_waitcnt lgkmcnt(0)")
        self.n += 1; self.names.append(name)
    def dump(self, wsreg, sW, tmp):
        if not OPT["prof"]: return
        A = self.A
        self.stamp("end")
        A.salu("s_memrealtime s[96:97]")
        A.salu("s_waitcnt lgkmcnt(0)")
        A.salu("s_mov_b64 exec, -1")
        A.salu("s_nop 4")
        for i in range(self.n):
            A.salu(f"v_writelane_b32 v{tmp}, s{64+i}, {i}")
        A.salu("s_getreg_b32 s97, hwreg(HW_REG_HW_ID)")
        A.salu(f"v_writelane_b32 v{tmp}, s97, 29")
        A.salu(f"v_writelane_b32 v{tmp}, s98, 30")
        A.salu(f"v_writelane_b32 v{tmp}, s96, 31")
        A.salu(f"s_mov_b32 s60, s{wsreg}")
        A.salu(f"s_and_b32 s61, s{wsreg+1}, 0xffff")
        A.salu("s_mov_b32 s62, 0x10000000")
        A.salu("s_mov_b32 s63, 0x00020000")
        A.salu("s_lshl_b32 s96, s2, 3")
        A.salu(f"s_add_u32 s96, s96, s{sW}")
        A.salu("s_lshl_b32 s96, s96, 7")
        A.salu(f"s_add_u32 s96, s96, {255*1024*1024 + self.kidx*512*1024}")
        A.salu(f"v_mbcnt_lo_u32_b32 v{tmp+1}, -1, 0")
        A.salu(f"v_mbcnt_hi_u32_b32 v{tmp+1}, -1, v{tmp+1}")
        A.salu(f"v_lshlrev_b32 v{tmp+1}, 2, v{tmp+1}")
        A.salu("s_mov_b64 exec, 0xffffffff")
        A.salu("s_nop 4")
        A.salu(f"buffer_store_dword v{tmp}, v{tmp+1}, s[60:63], s96 offen")
        print("stamps k%d:" % self.kidx, self.names)

def gen_k1(A):
    V = A.valu
    T0, T1, T2, T3, T4, T5, T6, T7 = range(0, 8)
    XO, WO, KO = 8, 10, 12
    BW, BX, BK, BV = 14, 15, 16, 17
    LSUM, OST = 18, 19
    SUMA, SUMB, MX, MX2 = 20, 21, 22, 23
    AD = 24
    FR = 32
    NEGM = 48
    QB = 64
    S = 96
    O = 160
    P = 224
    sBLK, sKVH, sB, sW, sHL, sRT = 26, 27, 4, 5, 6, 7
    SX, SW_, SK, SV, SO = 28, 32, 36, 40, 44
    sWL, sXB, sWB, sKVB, sT, sOB = 48, 49, 50, 51, 52, 53
    sMASK, sTHR, sC = 54, 56, 57
    sW3, sWL4, sT2 = 58, 59, 55

    A.raw(f".p2align 8\n.globl k1_kernel\n.type k1_kernel,@function\nk1_kernel:\nK1_BEGIN:")
    A.salu("s_cmp_ge_u32 s2, 256")
    A.salu("s_cbranch_scc1 K1_END")
    A.salu("s_load_dwordx8 s[8:15], s[0:1], 0")
    A.salu("s_load_dwordx8 s[16:23], s[0:1], 40")
    A.salu("s_load_dwordx2 s[24:25], s[0:1], 96")
    if OPT["cpf"]:
        A.salu("s_getpc_b64 s[60:61]")
        A.salu("s_and_b32 s60, s60, 0xffffff00")
        A.salu("s_and_b32 s61, s61, 0xffff")
        A.salu("s_mov_b32 s62, CODE_BYTES")
        A.salu("s_mov_b32 s63, 0x00020000")
        V(f"v_lshlrev_b32 v{T7}, 7, v0", w={T7}, r={0})
        A.vmem(f"buffer_load_dword v{NEGM+15}, v{T7}, s[60:63], 0 offen", w={NEGM+15}, r={T7})
    A.salu("s_and_b32 s3, s2, 7")
    A.salu(f"s_lshr_b32 s{sB}, s2, 3")
    A.salu(f"s_lshr_b32 s{sBLK}, s3, 2")
    A.salu("s_and_b32 s3, s3, 3")
    A.salu("s_lshl_b32 s3, s3, 2")
    A.salu(f"s_and_b32 s{sKVH}, s{sB}, 3")
    A.salu(f"s_add_u32 s{sKVH}, s{sKVH}, s3")
    A.salu(f"s_lshr_b32 s{sB}, s{sB}, 2")
    V(f"v_lshrrev_b32 v{T1}, 6, v0", w={T1}, r={0})
    A._emit(I(f"v_readfirstlane_b32 s{sW}, v{T1}", "rdlane", r={T1}, sw={sW}))
    V(f"v_and_b32 v{T0}, 63, v0", w={T0}, r={0})
    if OPT["fat"]:
        A.salu(f"s_bfe_u32 s{sHL}, s{sW}, 0x10001", sr={sW})
        A.salu(f"s_and_b32 s{sRT}, s{sW}, 1", sr={sW})
        A.salu(f"s_lshl_b32 s{sRT}, s{sRT}, 1")
        A.salu(f"s_lshr_b32 s3, s{sW}, 2", sr={sW})
        A.salu(f"s_add_u32 s{sRT}, s{sRT}, s3")
    else:
        A.salu(f"s_lshr_b32 s{sHL}, s{sW}, 2", sr={sW})
        A.salu(f"s_and_b32 s{sRT}, s{sW}, 3", sr={sW})
    A.salu(f"s_lshl_b32 s{sWL}, s{sW}, 11", sr={sW})
    A.salu(f"s_and_b32 s{sW3}, s{sW}, {3 if OPT['ld4'] else 1}", sr={sW})
    A.salu(f"s_lshl_b32 s{sWL4}, s{sW3}, 11")
    A.salu(f"s_mul_i32 s{sXB}, s{sB}, 129024")
    A.salu(f"s_lshl_b32 s{sWB}, s{sKVH}, 9")
    A.salu(f"s_lshl_b32 s{sKVB}, s{sB}, 4")
    A.salu(f"s_add_u32 s{sKVB}, s{sKVB}, s{sKVH}")
    A.salu(f"s_lshl_b32 s{sKVB}, s{sKVB}, 17")
    A.salu(f"s_mov_b32 s{sTHR}, 0x4b800000")
    c = math.log2(math.e) / math.sqrt(128.0)
    import struct
    cbits = struct.unpack("<I", struct.pack("<f", c))[0]
    A.salu(f"s_mov_b32 s{sC}, {cbits:#x}")
    L = T0
    for q in range(2):
        V(f"v_lshrrev_b32 v{T1}, 3, v{L}", w={T1}, r={L})
        A.salu(f"s_lshl_b32 s3, s{sW3}, 4")
        A.salu(f"s_add_u32 s3, s3, {8*q}")
        V(f"v_add_u32 v{T1}, s3, v{T1}", w={T1}, r={T1})
        V(f"v_mul_u32_u24 v{T1}, 1152, v{T1}", w={T1}, r={T1})
        V(f"v_and_b32 v{T2}, 7, v{L}", w={T2}, r={L})
        V(f"v_lshrrev_b32 v{T3}, 4, v{L}", w={T3}, r={L})
        V(f"v_xor_b32 v{T2}, v{T2}, v{T3}", w={T2}, r={T2, T3})
        if q: V(f"v_xor_b32 v{T2}, 4, v{T2}", w={T2}, r={T2})
        V(f"v_lshl_add_u32 v{XO+q}, v{T2}, 4, v{T1}", w={XO+q}, r={T2, T1})
        V(f"v_lshrrev_b32 v{T3}, 5, v{L}", w={T3}, r={L})
        A.salu(f"s_lshl_b32 s3, s{sW3}, 2")
        A.salu(f"s_add_u32 s3, s3, {2*q}")
        V(f"v_add_u32 v{T1}, s3, v{T3}", w={T1}, r={T3})
        V(f"v_lshlrev_b32 v{T1}, 13, v{T1}", w={T1}, r={T1})
        V(f"v_or_b32 v{T3}, {2*q}, v{T3}", w={T3}, r={T3})
        V(f"v_lshlrev_b32 v{T3}, 2, v{T3}", w={T3}, r={T3})
        V(f"v_and_b32 v{T2}, 31, v{L}", w={T2}, r={L})
        V(f"v_xor_b32 v{T2}, v{T2}, v{T3}", w={T2}, r={T2, T3})
        V(f"v_lshl_add_u32 v{WO+q}, v{T2}, 4, v{T1}", w={WO+q}, r={T2, T1})
        V(f"v_lshrrev_b32 v{T3}, 4, v{L}", w={T3}, r={L})
        A.salu(f"s_lshl_b32 s3, s{sW}, 3")
        A.salu(f"s_add_u32 s3, s3, {4*q}")
        V(f"v_add_u32 v{T1}, s3, v{T3}", w={T1}, r={T3})
        V(f"v_lshlrev_b32 v{T1}, 8, v{T1}", w={T1}, r={T1})
        A.salu(f"s_and_b32 s3, s{sW}, 1")
        A.salu(f"s_lshl_b32 s3, s3, 1")
        A.salu(f"s_or_b32 s3, s3, {q}")
        V(f"v_lshlrev_b32 v{T3}, 2, v{T3}", w={T3}, r={T3})
        V(f"v_or_b32 v{T3}, s3, v{T3}", w={T3}, r={T3})
        V(f"v_and_b32 v{T2}, 15, v{L}", w={T2}, r={L})
        V(f"v_xor_b32 v{T2}, v{T2}, v{T3}", w={T2}, r={T2, T3})
        V(f"v_lshl_add_u32 v{KO+q}, v{T2}, 4, v{T1}", w={KO+q}, r={T2, T1})
    V(f"v_lshrrev_b32 v{T1}, 5, v{L}", w={T1}, r={L})
    V(f"v_bfe_u32 v{T2}, v{L}, 4, 1", w={T2}, r={L})
    V(f"v_bfe_u32 v{T3}, v{L}, 2, 2", w={T3}, r={L})
    V(f"v_and_b32 v{T4}, 3, v{L}", w={T4}, r={L})
    V(f"v_and_b32 v{T5}, 31, v{L}", w={T5}, r={L})
    V(f"v_lshl_add_u32 v{T6}, v{T1}, 3, v{T3}", w={T6}, r={T1, T3})
    V(f"v_lshlrev_b32 v{T6}, 9, v{T6}", w={T6}, r={T6})
    V(f"v_lshlrev_b32 v{T7}, 2, v{T3}", w={T7}, r={T3})
    V(f"v_lshl_add_u32 v{T7}, v{T2}, 1, v{T7}", w={T7}, r={T2, T7})
    V(f"v_and_b32 v{BW}, 1, v{T4}", w={BW}, r={T4})
    V(f"v_add_u32 v{T7}, v{T7}, v{BW}", w={T7}, r={T7, BW})
    A.salu(f"s_lshl_b32 s3, s{sHL}, 4")
    V(f"v_add_u32 v{T7}, s3, v{T7}", w={T7}, r={T7})
    V(f"v_lshl_add_u32 v{T6}, v{T7}, 4, v{T6}", w={T6}, r={T7, T6})
    V(f"v_lshrrev_b32 v{T7}, 1, v{T4}", w={T7}, r={T4})
    V(f"v_lshl_add_u32 v{BW}, v{T7}, 3, v{T6}", w={BW}, r={T7, T6})
    A.salu(f"s_lshl_b32 s3, s{sRT}, 5")
    V(f"v_add_u32 v{T6}, s3, v{T5}", w={T6}, r={T5})
    V(f"v_lshlrev_b32 v{T6}, 7, v{T6}", w={T6}, r={T6})
    V(f"v_bfe_u32 v{T7}, v{T5}, 1, 3", w={T7}, r={T5})
    V(f"v_xor_b32 v{T7}, v{T7}, v{T1}", w={T7}, r={T7, T1})
    V(f"v_lshl_add_u32 v{BX}, v{T7}, 4, v{T6}", w={BX}, r={T7, T6})
    V(f"v_lshlrev_b32 v{T6}, 2, v{T4}", w={T6}, r={T4})
    V(f"v_or_b32 v{T6}, v{T6}, v{T3}", w={T6}, r={T6, T3})
    V(f"v_xor_b32 v{T6}, v{T6}, v{T1}", w={T6}, r={T6, T1})
    V(f"v_lshlrev_b32 v{T7}, 8, v{T5}", w={T7}, r={T5})
    V(f"v_lshl_add_u32 v{BK}, v{T6}, 4, v{T7}", w={BK}, r={T6, T7})
    V(f"v_lshl_add_u32 v{T6}, v{T1}, 2, v{T3}", w={T6}, r={T1, T3})
    V(f"v_lshlrev_b32 v{T6}, 8, v{T6}", w={T6}, r={T6})
    V(f"v_lshrrev_b32 v{T7}, 1, v{T4}", w={T7}, r={T4})
    V(f"v_lshl_add_u32 v{T7}, v{T2}, 1, v{T7}", w={T7}, r={T2, T7})
    V(f"v_xor_b32 v{T7}, v{T7}, v{T1}", w={T7}, r={T7, T1})
    V(f"v_lshl_or_b32 v{T7}, v{T3}, 2, v{T7}", w={T7}, r={T3, T7})
    V(f"v_lshl_add_u32 v{T6}, v{T7}, 4, v{T6}", w={T6}, r={T7, T6})
    V(f"v_and_b32 v{T7}, 1, v{T4}", w={T7}, r={T4})
    V(f"v_lshl_add_u32 v{BV}, v{T7}, 3, v{T6}", w={BV}, r={T7, T6})
    V(f"v_lshlrev_b32 v{T6}, 17, v{T2}", w={T6}, r={T2})
    V(f"v_lshl_add_u32 v{T6}, v{T1}, 8, v{T6}", w={T6}, r={T1, T6})
    V(f"v_and_b32 v{T7}, 15, v{L}", w={T7}, r={L})
    V(f"v_lshl_add_u32 v{OST}, v{T7}, 4, v{T6}", w={OST}, r={T7, T6})
    V(f"v_mov_b32 v{LSUM}, 0", w={LSUM})
    A.waitcnt(lgkm=0)
    A.salu(f"s_cmp_eq_u32 s{sBLK}, 0")
    for k in range(8):
        A.salu(f"s_cselect_b32 s{8+k}, s{8+k}, s{16+k}")
    srd(A, SX, 8, 8 * 112 * 576 * 2)
    srd(A, SK, 10, 8 * 16 * 512 * 128 * 2)
    srd(A, SV, 12, 8 * 16 * 512 * 128 * 2)
    srd(A, SW_, 14, 576 * 4096 * 2)
    srd(A, SO, 24, 2 * O_BLK)
    A.salu(f"s_mul_i32 s{sOB}, s{sBLK}, {O_BLK}")
    A.salu(f"s_mul_i32 s3, s{sB}, 7")
    A.salu(f"s_lshl_b32 s{sT}, s{sRT}, 1")
    A.salu(f"s_add_u32 s3, s3, s{sT}")
    A.salu(f"s_lshl_b32 s3, s3, 17")
    A.salu(f"s_add_u32 s{sOB}, s{sOB}, s3")
    A.salu(f"s_lshl_b32 s3, s{sKVH}, 1")
    A.salu(f"s_add_u32 s3, s3, s{sHL}")
    A.salu(f"s_lshl_b32 s3, s3, 12")
    A.salu(f"s_add_u32 s{sOB}, s{sOB}, s3")
    if OPT["prio"]:
        A.salu(f"s_cmp_ge_u32 s{sW}, 4")
        A.salu("s_cbranch_scc0 K1_PRIO_DONE" if OPT["prio"] == 1 else "s_cbranch_scc1 K1_PRIO_DONE")
        A.salu("s_setprio 1")
        A.label("K1_PRIO_DONE")

    qunits = []
    for s_ in range(9):
        qunits += [("X", s_), ("W", 2 * s_), ("W", 2 * s_ + 1)]
    kvunits = [("K", 0)]
    for h in range(7):
        kvunits += [("K", h + 1), ("V", h)]
    kvunits += [("V", 7)]
    units = qunits + kvunits
    UK = {idx: 27 + i for i, (t_, idx) in enumerate(kvunits) if t_ == "K"}
    UV = {idx: 27 + i for i, (t_, idx) in enumerate(kvunits) if t_ == "V"}
    stage_units = [list(range(3 * s_, 3 * s_ + 3)) for s_ in range(9)]
    unit_last_vm = {}
    unit_slot = {}
    free = list(range(NSLOT))
    nq = [0]; nkv = [0]; xch = []
    KQ = FR
    DV = FR + 2
    NSTG = OPT["nstg"]
    STG = [S + 32, O, O + 32, P][:NSTG]

    def unit_info(u):
        typ, idx = units[u]
        if typ == "X": return sXB, idx * 128, SX, XO, 2 * 16 * 1152, "ntx"
        if typ == "W": return sWB, idx * 32 * 8192, SW_, WO, 2 * 4 * 8192, "ntw"
        if typ == "K": return sKVB, idx * 64 * 256, SK, KO, 4096, "ntkv"
        return sKVB, idx * 64 * 256, SV, KO, 4096, "ntkv"

    def issue_unit_q(u, stage_reg=None):
        if stage_reg is None:
            slot = free.pop(0)
            unit_slot[u] = slot
        base, const, sr_, vo, delta, nto = unit_info(u)
        if vo == KO: vo = KQ
        nt = " nt" if OPT[nto] else ""
        for hv in range(4):
            A.salu(f"s_add_u32 s{sT}, s{base}, {const + delta * hv}")
            for q in range(2):
                if stage_reg is None:
                    A.salu(f"s_add_u32 m0, s{sWL4}, {slot * SLOT + hv * 4096 + q * 1024}", m0w=True)
                    k = A.vmem(f"buffer_load_dwordx4 v{vo+q}, s[{sr_}:{sr_+3}], s{sT} offen{nt} lds", kind="dma", r={vo + q}, m0r=True)
                else:
                    d = stage_reg + (hv * 2 + q) * 4
                    k = A.vmem(f"buffer_load_dwordx4 {vname(d,4)}, v{vo+q}, s[{sr_}:{sr_+3}], s{sT} offen{nt}", w=vr(d, 4), r={vo + q})
        unit_last_vm[u] = k

    def issue_unit_4(u):
        slot = free.pop(0)
        unit_slot[u] = slot
        base, const, sr_, vo, delta, nto = unit_info(u)
        nt = " nt" if OPT[nto] else ""
        A.salu(f"s_add_u32 s{sT}, s{base}, {const}")
        if vo != KO: A.salu(f"s_add_u32 s{sT2}, s{base}, {const + 2 * delta}")
        for hv in range(2):
            for q in range(2):
                A.salu(f"s_add_u32 m0, s{sWL4}, {slot * SLOT + hv * 8192 + q * 1024}", m0w=True)
                if vo == KO:
                    va = (KQ if hv == 0 else KO) + q; so = sT
                else:
                    va = vo + q; so = sT if hv == 0 else sT2
                k = A.vmem(f"buffer_load_dwordx4 v{va}, s[{sr_}:{sr_+3}], s{so} offen{nt} lds", kind="dma", r={va}, m0r=True)
        unit_last_vm[u] = k

    def flood():
        if not OPT["l2pf"]: return
        V(f"v_lshrrev_b32 v{T1}, 2, v{L}", w={T1}, r={L})
        V(f"v_lshlrev_b32 v{T1}, 13, v{T1}", w={T1}, r={T1})
        V(f"v_and_b32 v{T2}, 3, v{L}", w={T2}, r={L})
        V(f"v_lshl_add_u32 v{T1}, v{T2}, 7, v{T1}", w={T1}, r={T2, T1})
        A.salu(f"s_lshl_b32 s3, s{sW}, 4")
        A.salu(f"s_min_u32 s3, s3, 56")
        A.salu(f"s_mul_i32 s{sT}, s{sB}, 72")
        A.salu(f"s_add_u32 s3, s3, s{sT}")
        A.salu(f"s_lshl_b32 s3, s3, 13")
        A.salu(f"s_add_u32 s3, s3, s{sWB}")
        A.vmem(f"buffer_load_dword v{T4}, v{T1}, s[{SW_}:{SW_+3}], s3 offen", w={T4}, r={T1})
        V(f"v_lshlrev_b32 v{T2}, 7, v{L}", w={T2}, r={L})
        A.salu(f"s_and_b32 s3, s{sKVH}, 3")
        A.salu(f"s_mul_i32 s3, s3, 32256")
        A.salu(f"s_and_b32 s{sT}, s{sW}, 3")
        A.salu(f"s_lshl_b32 s{sT}, s{sT}, 13")
        A.salu(f"s_add_u32 s3, s3, s{sT}")
        A.salu(f"s_add_u32 s3, s3, s{sXB}")
        A.vmem(f"buffer_load_dword v{T5}, v{T2}, s[{SX}:{SX+3}], s3 offen", w={T5}, r={T2})

    def dump_unit(u, stage_reg):
        slot = free.pop(0)
        unit_slot[u] = slot
        V(f"v_add_u32 v{DV+1}, {slot * SLOT}, v{DV}", w={DV + 1}, r={DV})
        for hv in range(4):
            for q in range(2):
                A.ds_write_b128(DV + 1, stage_reg + (hv * 2 + q) * 4, hv * 4096 + q * 1024)

    def dma_items(u):
        slot = free.pop(0)
        unit_slot[u] = slot
        base, const, sr_, vo, delta, nto = unit_info(u)
        nt = " nt" if OPT[nto] else ""
        def mk(q):
            def f():
                A.salu(f"s_add_u32 s{sT}, s{base}, {const}")
                A.salu(f"s_add_u32 m0, s{sWL}, {slot * SLOT + q * 1024}", m0w=True)
                k = A.vmem(f"buffer_load_dwordx4 v{vo+q}, s[{sr_}:{sr_+3}], s{sT} offen{nt} lds", kind="dma", r={vo + q}, m0r=True)
                unit_last_vm[u] = k
            return f
        return [mk(0), mk(1)]

    NQ = OPT["nq"]
    PF = Prof(A, 0)
    PF.stamp("start")

    def addr_items(dst, base, slot, xors):
        it = [lambda: V(f"v_add_u32 v{dst[0]}, {slot * SLOT}, v{base}", w={dst[0]}, r={base})]
        for i, x in enumerate(xors):
            if i == 0: continue
            it.append(lambda i=i, x=x: V(f"v_xor_b32 v{dst[i]}, {x}, v{dst[0]}", w={dst[i]}, r={dst[0]}))
        return it

    A.salu(f"s_cmp_lt_u32 s{sW}, 4")
    A.salu("s_cbranch_scc1 K1_FAT")
    pf0 = PF.n
    staged = []
    if OPT["ld4"]:
        for q in range(2):
            V(f"v_subrev_u32 v{KQ+q}, {4*8*256}, v{KO+q}", w={KQ + q}, r={KO + q})
        NL = NSLOT - NQ
        def refill(s):
            done_q = 3 * max(s, 0)
            while nq[0] < 27 and nq[0] - done_q < NQ and free:
                issue_unit_4(nq[0]); nq[0] += 1
        def kv_issue():
            if nkv[0] < NL:
                if free:
                    issue_unit_4(27 + nkv[0]); nkv[0] += 1
        refill(-1)
        for _ in range(OPT["kv0"]): kv_issue()
        flood()
        for s in range(9):
            A.wait_vm(max(unit_last_vm[u] for u in stage_units[s]))
            A.barrier()
            PF.stamp(f"q{s}")
            if s > 0:
                for u in stage_units[s - 1]: free.append(unit_slot[u])
            refill(s)
            if s == 8:
                xch.append(free.pop(0)); xch.append(free.pop(0))
                while free:
                    issue_unit_4(27 + nkv[0]); nkv[0] += 1
            else:
                for _ in range(OPT["kvrate"]): kv_issue()
        A.salu("s_branch K1_ATT")
        ldr_vm = (A.nvm, A.vm_done)
    else:
        A.salu(f"s_cmp_ge_u32 s{sW}, 6")
        A.salu("s_cbranch_scc1 K1_KVL")
        pf0 = PF.n
        kvslots = [free.pop() for _ in range(NSLOT - NQ)]
        def refill(s):
            done_q = 3 * max(s, 0)
            while nq[0] < 27 and nq[0] - done_q < NQ and free:
                issue_unit_q(nq[0]); nq[0] += 1
        refill(-1)
        for s in range(9):
            A.wait_vm(max(unit_last_vm[u] for u in stage_units[s]))
            A.barrier()
            PF.stamp(f"q{s}")
            if s > 0:
                for u in stage_units[s - 1]: free.append(unit_slot[u])
            refill(s)
            if s == 8:
                xch.append(free.pop(0)); xch.append(free.pop(0))
        A.waitcnt(vm=0)
        A.vm_done = A.nvm
        A.salu("s_branch K1_ATT")
        A.label("K1_KVL")
        A.win = []
        A.salu("s_nop 4")
        PF.n = pf0; PF.names = PF.names[:pf0]
        for q in range(2):
            V(f"v_subrev_u32 v{KQ+q}, {6*8*256}, v{KO+q}", w={KQ + q}, r={KO + q})
        V(f"v_lshlrev_b32 v{DV}, 4, v{L}", w={DV}, r={L})
        V(f"v_add_u32 v{DV}, s{sWL4}, v{DV}", w={DV}, r={DV})
        late_free = free[:]; free[:] = kvslots
        NL = len(kvslots)
        TV = FR + 4
        V(f"v_lshlrev_b32 v{TV}, 7, v{L}", w={TV}, r={L})
        A.salu(f"s_lshl_b32 s3, s{sW3}, 13")
        V(f"v_add_u32 v{TV}, s3, v{TV}", w={TV}, r={TV})
        NT = OPT["kvt"]
        ntouch = [0]
        def kv_issue():
            i = nkv[0]
            if i < NL: issue_unit_q(27 + i)
            elif i < NL + NSTG: issue_unit_q(27 + i, STG[i - NL])
            else:
                if ntouch[0] < NT:
                    u = 27 + NL + NSTG + ntouch[0]
                    base, const, sr_, vo, delta, nto = unit_info(u)
                    A.salu(f"s_add_u32 s{sT}, s{base}, {const}")
                    A.vmem(f"buffer_load_dword v{TV+1}, v{TV}, s[{sr_}:{sr_+3}], s{sT} offen", w={TV + 1}, r={TV})
                    ntouch[0] += 1
                return
            nkv[0] += 1
        for _ in range(OPT["kv0"]): kv_issue()
        for s in range(9):
            A.barrier()
            PF.stamp(f"q{s}")
            for _ in range(OPT["kvrate"]): kv_issue()
        assert nkv[0] == NL + NSTG
        free[:] = late_free
        staged = [(27 + NL + i, STG[i]) for i in range(NSTG)]
        while staged and free:
            u, r_ = staged.pop(0)
            A.wait_vm(unit_last_vm[u])
            dump_unit(u, r_)
        A.waitcnt(vm=0)
        A.vm_done = A.nvm
        A.wait_ds_all()
        A.salu("s_branch K1_ATT")
    A.label("K1_FAT")
    A.win = []
    A.salu("s_nop 4")
    PF.n = pf0; PF.names = PF.names[:pf0]
    TW, TX = XO, XO + 1
    if OPT["ld4"]:
        V(f"v_lshlrev_b32 v{TW}, 7, v{L}", w={TW}, r={L})
        A.salu(f"s_lshl_b32 s3, s{sW}, 13")
        V(f"v_add_u32 v{TW}, s3, v{TW}", w={TW}, r={TW})
    else:
        TW, TX = XO, XO + 1
        V(f"v_bfe_u32 v{T1}, v{L}, 2, 1", w={T1}, r={L})
        A.salu(f"s_lshl_b32 s3, s{sW}, 1")
        V(f"v_add_u32 v{T1}, s3, v{T1}", w={T1}, r={T1})
        V(f"v_lshlrev_b32 v{T1}, 13, v{T1}", w={T1}, r={T1})
        V(f"v_and_b32 v{T2}, 3, v{L}", w={T2}, r={L})
        V(f"v_lshl_add_u32 v{TW}, v{T2}, 7, v{T1}", w={TW}, r={T2, T1})
        V(f"v_and_b32 v{T1}, 7, v{L}", w={T1}, r={L})
        V(f"v_min_u32 v{T1}, 6, v{T1}", w={T1}, r={T1})
        A.salu(f"s_mul_i32 s3, s{sW}, 7")
        V(f"v_add_u32 v{T1}, s3, v{T1}", w={T1}, r={T1})
        V(f"v_mul_u32_u24 v{TX}, 1152, v{T1}", w={TX}, r={T1})
        A.salu(f"s_lshl_b32 s8, s{sB}, 16")
        A.salu(f"s_add_u32 s8, s8, s{sWB}")
        A.salu(f"s_and_b32 s9, s{sKVH}, 3")
        A.salu(f"s_mul_i32 s9, s9, {28*1152}")
        A.salu(f"s_add_u32 s9, s9, s{sXB}")
    def touch(s_):
        if not OPT["l2pf"] or s_ > 8: return
        A.salu(f"s_add_u32 s3, s8, {s_ * 64 * 8192}")
        A.vmem(f"buffer_load_dword v{T4}, v{TW}, s[{SW_}:{SW_+3}], s3 offen", w={T4}, r={TW})
        A.vmem(f"buffer_load_dword v{T5}, v{TX}, s[{SX}:{SX+3}], s9 offen offset:{s_ * 128}", w={T5}, r={TX})
    if OPT["ld4"]:
        flood()
        ntouch = [0]
        def touch(s_):
            s_ -= OPT["pflead"]
            if s_ < OPT["kvt0"]: return
            for _ in range(OPT["kvtr"]):
                if ntouch[0] >= OPT["kvt"]: return
                ua = 27 + NL + 1 + ntouch[0]
                ia = unit_info(ua); ib = unit_info(ua + 1)
                A.salu(f"s_cmp_lt_u32 s{sW}, 2")
                A.salu(f"s_mov_b32 s3, {ib[1] - 16384}")
                A.salu(f"s_cselect_b32 s3, {ia[1]}, s3")
                A.salu(f"s_cselect_b32 s60, s{ia[2]}, s{ib[2]}")
                A.salu(f"s_cselect_b32 s61, s{ia[2]+1}, s{ib[2]+1}")
                A.salu(f"s_mov_b32 s62, s{ia[2]+2}")
                A.salu(f"s_mov_b32 s63, s{ia[2]+3}")
                A.salu(f"s_add_u32 s3, s3, s{sKVB}")
                A.vmem(f"buffer_load_dword v{T4}, v{TW}, s[60:63], s3 offen", w={T4}, r={TW})
                ntouch[0] += 2
    if not OPT["ld4"]:
        for s_ in range(2, OPT["pflead"]): touch(s_)
    QA = [S, O]
    FBW = [P, QB]; FBX = [P + 16, QB + 16]
    AW = [FR, FR + 4]; AX = FR + 8
    def qaddr(s):
        u0 = 3 * s
        return (addr_items([AX + i for i in range(4)], BX, unit_slot[u0], [0, 32, 64, 96]) +
                addr_items([AW[0] + i for i in range(4)], BW, unit_slot[u0 + 1], [0, 64, 128, 192]) +
                addr_items([AW[1] + i for i in range(4)], BW, unit_slot[u0 + 2], [0, 64, 128, 192]))
    def qreads(ks):
        A.ds_read_b128(FBX[ks % 2], AX + ks)
        last = A.ds_read_b128(FBX[ks % 2] + 4, AX + ks, 4096)
        for t in range(4):
            for j in range(2):
                last = A.ds_read_tr(FBW[ks % 2] + 4 * t + 2 * j, AW[ks // 2] + t, ((ks % 2) * 16 + 4 * j) * 512)
        return last
    for it in qaddr(0): it()
    A.barrier()
    PF.stamp("q0")
    pend = qreads(0)
    touch(OPT["pflead"])
    for s in range(9):
        for ks in range(4):
            A.wait_ds(pend)
            if ks < 3: pend = qreads(ks + 1)
            nxt = qaddr(s + 1) if (ks == 3 and s < 8) else []
            m = 0
            for t in range(4):
                for r2 in range(2):
                    A.mfma(QA[r2] + 16 * t, FBW[ks % 2] + 4 * t, FBX[ks % 2] + 4 * r2, "zero" if (s == 0 and ks == 0) else None)
                    if nxt:
                        if m < 2:
                            for it in nxt[6 * m: 6 * m + 6]: it()
                        if m == 1:
                            A.barrier()
                            PF.stamp(f"q{s+1}")
                            pend = qreads(0)
                        if m == 3: touch(s + 1 + OPT["pflead"])
                    m += 1
    A.salu(f"s_lshr_b32 s3, s{sW}, 1")
    A.salu(f"s_cmp_eq_u32 s3, 0")
    A.salu(f"s_cselect_b32 s3, {xch[0]}, {xch[1]}")
    A.salu(f"s_lshl_b32 s3, s3, 14")
    A.salu(f"s_and_b32 s{sT}, s{sW}, 1")
    A.salu(f"s_lshl_b32 s{sT}, s{sT}, 13")
    A.salu(f"s_add_u32 s3, s3, s{sT}")
    V(f"v_lshlrev_b32 v{T6}, 4, v{L}", w={T6}, r={L})
    V(f"v_add_u32 v{T6}, s3, v{T6}", w={T6}, r={T6})
    for i in range(64):
        V(f"v_mul_f32 v{O+i}, s{sC}, v{O+i}", w={O + i}, r={O + i})
    for q in range(32):
        V(f"v_cvt_pk_bf16_f32 v{P+q}, v{O+2*q}, v{O+2*q+1}", w={P + q}, r={O + 2 * q, O + 2 * q + 1})
        if q % 4 == 3:
            A.ds_write_b128(T6, P + q - 3, (q // 4) * 1024)
    for i in range(64):
        V(f"v_mul_f32 v{S+i}, s{sC}, v{S+i}", w={S + i}, r={S + i})
    for q in range(32):
        V(f"v_cvt_pk_bf16_f32 v{QB+q}, v{S+2*q}, v{S+2*q+1}", w={QB + q}, r={S + 2 * q, S + 2 * q + 1})
    A.wait_ds_all()
    A.waitcnt(vm=0)
    A.vm_done = A.nvm
    if OPT["ld4"]:
        A.nvm, A.vm_done = ldr_vm
    A.label("K1_ATT")
    A.win = []
    A.salu("s_nop 4")

    SETA = [AD + i for i in range(8)]
    SETB = [XO, XO + 1, WO, WO + 1, BW, BX, T4, T5]
    kx = [32 * ks for ks in range(8)]
    vx = [(t << 6) ^ (32 * jj) for t in range(4) for jj in range(2)]
    SB = lambda h: S + 32 * (h % 2)
    PB = lambda h: P + 16 * (h % 2)
    phases = [("qk", 0)] + [x for h in range(7) for x in (("qk", h + 1), ("pv", h))] + [("pv", 7)]
    pset = {}
    for ph in phases:
        pset[ph] = SETA if ph[0] == "qk" else SETB
    pset[("qk", 0)] = SETB; pset[("pv", 7)] = SETA
    punit = lambda ph: UK[ph[1]] if ph[0] == "qk" else UV[ph[1]]
    def paddr(ph):
        u = punit(ph)
        return addr_items(pset[ph], BK if ph[0] == "qk" else BV, unit_slot[u], kx if ph[0] == "qk" else vx)
    mf = [(ph, i) for ph in phases for i in range(16)]
    syncJ = list(range(0, 6, OPT["bstep"]))
    sync_pos = [phases.index(("pv", j)) * 16 + 12 for j in syncJ]
    first_read = {}
    for n, (ph, i) in enumerate(mf):
        first_read.setdefault(punit(ph), max(n - 4, -1))
    last_read = {}
    for n, (ph, i) in enumerate(mf):
        last_read[punit(ph)] = n - 4
    def publish_set(pos_from, pos_to):
        return [u for u, fr in first_read.items() if pos_from <= fr < pos_to]
    freed = set()
    dmaq = []
    def refill_att():
        while nkv[0] < 16 and free:
            dmaq.extend(dma_items(27 + nkv[0])); nkv[0] += 1

    pub = publish_set(-1, sync_pos[0])
    A.wait_vm(max(unit_last_vm[u] for u in pub))
    A.barrier()
    PF.stamp("a0")
    for u in stage_units[8]: free.append(unit_slot[u])
    A.salu(f"s_cmp_lt_u32 s{sW}, 4")
    A.salu(f"s_cbranch_scc1 K1_QGOT")
    if staged:
        A.salu(f"s_cmp_lt_u32 s{sW}, 6")
        A.salu(f"s_cbranch_scc1 K1_NODUMP")
        while staged:
            u, r_ = staged.pop(0)
            dump_unit(u, r_)
        A.label("K1_NODUMP")
    refill_att()
    A.salu(f"s_bfe_u32 s3, s{sW}, 0x10001")
    A.salu(f"s_cmp_eq_u32 s3, 0")
    A.salu(f"s_cselect_b32 s3, {xch[0]}, {xch[1]}")
    A.salu(f"s_lshl_b32 s3, s3, 14")
    A.salu(f"s_and_b32 s{sT}, s{sW}, 1")
    A.salu(f"s_lshl_b32 s{sT}, s{sT}, 13")
    A.salu(f"s_add_u32 s3, s3, s{sT}")
    V(f"v_lshlrev_b32 v{T6}, 4, v{L}", w={T6}, r={L})
    V(f"v_add_u32 v{T6}, s3, v{T6}", w={T6}, r={T6})
    for q in range(8):
        A.ds_read_b128(QB + 4 * q, T6, q * 1024)
    A.wait_ds_all()
    A.label("K1_QGOT")
    A.salu("s_nop 1")
    for it in paddr(("qk", 0)) + paddr(("qk", 1)): it()

    TT = [T0, T1, T2, T3]
    def max_items(regs, first, final):
        it = []
        r = list(regs)
        if first:
            a = r[:3]; b = r[3:6]; r = r[6:]
            it.append(lambda a=a: V(f"v_max3_f32 v{MX}, v{a[0]}, v{a[1]}, v{a[2]}", w={MX}, r=set(a)))
            it.append(lambda b=b: V(f"v_max3_f32 v{MX2}, v{b[0]}, v{b[1]}, v{b[2]}", w={MX2}, r=set(b)))
        k = 0
        while r:
            a = r[:2]; r = r[2:]
            d = MX if k % 2 == 0 else MX2
            it.append(lambda a=a, d=d: V(f"v_max3_f32 v{d}, v{d}, v{a[0]}, v{a[1]}", w={d}, r={d} | set(a)))
            k += 1
        if final:
            it.append(lambda: V(f"v_max_f32 v{MX}, v{MX}, v{MX2}", w={MX}, r={MX, MX2}))
            it.append(lambda: V(f"v_mov_b32 v{MX2}, v{MX}", w={MX2}, r={MX}))
            it.append(lambda: V(f"v_permlane32_swap_b32 v{MX}, v{MX2}", w={MX, MX2}, r={MX, MX2}, kind="perm"))
            it.append(lambda: V(f"v_max_f32 v{MX}, v{MX}, v{MX2}", w={MX}, r={MX, MX2}))
        return it
    def sm_items(h, lo, hi, sub):
        it = []
        sb, pb = SB(h), PB(h)
        if sub:
            it.append(lambda: V(f"v_sub_f32 v{sb+lo}, v{sb+lo}, v{MX}", w={sb + lo}, r={sb + lo, MX}))
        for e in range(lo, hi + 2):
            if sub and e + 1 < hi:
                it.append(lambda e=e: V(f"v_sub_f32 v{sb+e+1}, v{sb+e+1}, v{MX}", w={sb + e + 1}, r={sb + e + 1, MX}))
            if e < hi:
                it.append(lambda e=e: V(f"v_exp_f32 v{TT[e%4]}, v{sb+e}", w={TT[e % 4]}, r={sb + e}, kind="trans"))
            if lo <= e - 1 < hi:
                p = e - 1; acc = SUMA if p % 2 == 0 else SUMB
                if p < 2:
                    it.append(lambda p=p, acc=acc: V(f"v_mov_b32 v{acc}, v{TT[p%4]}", w={acc}, r={TT[p % 4]}))
                else:
                    it.append(lambda p=p, acc=acc: V(f"v_add_f32 v{acc}, v{acc}, v{TT[p%4]}", w={acc}, r={acc, TT[p % 4]}))
            if e - 2 >= lo and (e - 2) % 2 == 0 and e - 1 < hi:
                p = e - 2
                it.append(lambda p=p: V(f"v_cvt_pk_bf16_f32 v{pb+p//2}, v{TT[p%4]}, v{TT[(p+1)%4]}", w={pb + p // 2}, r={TT[p % 4], TT[(p + 1) % 4]}))
        return it
    def negm_items():
        return [lambda i=i: V(f"v_sub_f32 v{NEGM+i}, 0, v{MX}", w={NEGM + i}, r={MX}) for i in range(16)]
    def check(h):
        V(f"v_add_f32 v{SUMA}, v{SUMA}, v{SUMB}", w={SUMA}, r={SUMA, SUMB})
        if h > 0:
            V(f"v_cmp_nge_f32 vcc, s{sTHR}, v{SUMA}", r={SUMA}, sw={"vcc"})
            A.salu("s_nop 1")
            A.salu(f"s_cbranch_vccnz K1_SLOW{h}")
            A.label(f"K1_BACK{h}")
        V(f"v_add_f32 v{LSUM}, v{LSUM}, v{SUMA}", w={LSUM}, r={LSUM, SUMA})

    def side_for(ph):
        kind, h = ph
        if ph == ("qk", 0):
            return [], []
        if kind == "qk":
            hh = h - 1
            if hh == 0:
                main = max_items([SB(0) + i for i in range(32)], True, True) + sm_items(0, 0, 32, True)
            else:
                main = sm_items(hh, 16, 32, hh == 1)
            return main, paddr(("pv", hh))
        if h == 7: return [], []
        if h == 6:
            return sm_items(7, 0, 32, False), paddr(("pv", 7))
        main = sm_items(h + 1, 0, 16, h == 0)
        if h == 0: main = negm_items() + main
        return main, paddr(("qk", h + 2))

    rid = {}
    def issue_read(n):
        ph, i = mf[n]
        st = pset[ph]; fr = FR + 4 * (n % 4)
        if ph[0] == "qk":
            rid[n] = A.ds_read_b128(fr, st[i % 8], (i // 8) * 8192)
        else:
            g, t = i // 4, i % 4
            A.ds_read_tr(fr, st[2 * t], g * 4096)
            rid[n] = A.ds_read_tr(fr + 2, st[2 * t + 1], g * 4096 + 2048)
    for n in range(4): issue_read(n)
    gap = 0
    for n, (ph, i) in enumerate(mf):
        kind, h = ph
        if i == 0:
            main, adr = side_for(ph)
            plan = [[] for _ in range(16)]
            for k, it in enumerate(adr): plan[k * 12 // max(len(adr), 1)].append(it)
            s0 = 1 if ph == ("qk", 1) else 0
            for k, it in enumerate(main): plan[s0 + k * (16 - s0) // len(main)].append(it)
        A.wait_ds(rid[n])
        fr = FR + 4 * (n % 4)
        if kind == "qk":
            kt, ks = i // 8, i % 8
            c = None
            if ks == 0: c = "zero" if h <= 1 else NEGM
            A.mfma(SB(h) + 16 * kt, fr, QB + 4 * ks, c)
        else:
            g, t = i // 4, i % 4
            A.mfma(O + 16 * t, fr, PB(h) + 4 * g, "zero" if (h == 0 and g == 0) else None)
        if n in sync_pos:
            k = sync_pos.index(n)
            pub = publish_set(n, sync_pos[k + 1] if k + 1 < len(sync_pos) else 10**9)
            while dmaq: dmaq.pop(0)()
            A.wait_ds_all()
            A.wait_vm(max(unit_last_vm[u] for u in pub))
            A.barrier()
            PF.stamp(f"x{h}")
            if k == 0: free.extend(xch)
            for u, lr in last_read.items():
                if lr < n and u not in freed:
                    freed.add(u); free.append(unit_slot[u])
            refill_att()
            if OPT["wopf"] and h == OPT["wopf"] - 1:
                A.salu("s_load_dwordx2 s[60:61], s[0:1], 32")
                A.salu("s_load_dwordx2 s[62:63], s[0:1], 72")
                A.salu(f"s_lshl_b32 s3, s{sB}, 4")
                A.salu(f"s_add_u32 s3, s3, s{sKVH}")
                A.salu(f"s_mul_i32 s3, s3, 288")
                A.salu(f"s_lshl_b32 s{sT}, s{sW}, 6")
                A.salu(f"s_min_u32 s{sT}, s{sT}, 224")
                A.salu(f"s_add_u32 s3, s3, s{sT}")
                A.salu(f"s_lshl_b32 s3, s3, 7")
                V(f"v_mbcnt_lo_u32_b32 v{T6}, -1, 0", w={T6})
                V(f"v_mbcnt_hi_u32_b32 v{T6}, -1, v{T6}", w={T6}, r={T6})
                V(f"v_lshlrev_b32 v{T6}, 7, v{T6}", w={T6}, r={T6})
                A.salu("s_waitcnt lgkmcnt(0)")
                A.salu(f"s_cmp_eq_u32 s{sBLK}, 0")
                A.salu("s_cselect_b32 s60, s60, s62")
                A.salu("s_cselect_b32 s61, s61, s63")
                A.salu("s_and_b32 s61, s61, 0xffff")
                A.salu(f"s_mov_b32 s62, {4096*576*2}")
                A.salu("s_mov_b32 s63, 0x00020000")
                A.vmem(f"buffer_load_dword v{T7}, v{T6}, s[60:63], s3 offen", w={T7}, r={T6})
        if n + 4 < len(mf): issue_read(n + 4)
        for it in plan[i]: it()
        gap += 1
        if dmaq and gap >= OPT["dmagap"]:
            dmaq.pop(0)(); gap = 0
        if i == 15:
            if kind == "qk" and h >= 1: check(h - 1)
            if ph == ("pv", 6): check(7)
    assert not dmaq
    PF.stamp("pv7")
    V(f"v_mov_b32 v{T0}, v{LSUM}", w={T0}, r={LSUM})
    V(f"v_permlane32_swap_b32 v{T0}, v{LSUM}", w={T0, LSUM}, r={T0, LSUM}, kind="perm")
    V(f"v_add_f32 v{T0}, v{T0}, v{LSUM}", w={T0}, r={T0, LSUM})
    V(f"v_rcp_f32 v{T0}, v{T0}", w={T0}, r={T0}, kind="trans")
    A.salu(f"s_cmp_eq_u32 s{sRT}, 3")
    A.salu("s_cbranch_scc0 K1_NOMASK")
    A.salu("s_mov_b32 exec_lo, 0xffff")
    A.salu("s_mov_b32 exec_hi, 0xffff")
    A.label("K1_NOMASK")
    for f in range(8):
        b0 = O + 8 * f
        for i in range(8):
            V(f"v_mul_f32 v{b0+i}, v{T0}, v{b0+i}", w={b0 + i}, r={T0, b0 + i})
        d = P + 4 * f
        for q in range(4):
            V(f"v_cvt_pk_bf16_f32 v{d+q}, v{b0+2*q}, v{b0+2*q+1}", w={d + q}, r={b0 + 2 * q, b0 + 2 * q + 1})
        A.vmem(f"buffer_store_dwordx4 {vname(d,4)}, v{OST}, s[{SO}:{SO+3}], s{sOB} offen offset:{f*512}{' nt' if OPT['ntst'] else ''}", r=vr(d, 4) | {OST}, storedata=vr(d, 4))
    PF.dump(24, sW, 0)
    A.label("K1_END")
    A.salu("s_endpgm")
    for h in range(1, 8):
        A.label(f"K1_SLOW{h}")
        A.flush_hazards()
        sb = SB(h)
        for it in max_items([sb + i for i in range(32)], True, True): it()
        V(f"v_max_f32 v{MX}, 0, v{MX}", w={MX}, r={MX})
        V(f"v_sub_f32 v{MX2}, 0, v{MX}", w={MX2}, r={MX})
        V(f"v_exp_f32 v{MX2}, v{MX2}", w={MX2}, r={MX2}, kind="trans")
        for i in range(64):
            V(f"v_mul_f32 v{O+i}, v{MX2}, v{O+i}", w={O + i}, r={MX2, O + i})
        V(f"v_mul_f32 v{LSUM}, v{MX2}, v{LSUM}", w={LSUM}, r={MX2, LSUM})
        for i in range(16):
            V(f"v_sub_f32 v{NEGM+i}, v{NEGM+i}, v{MX}", w={NEGM + i}, r={NEGM + i, MX})
        if h < 7:
            s2 = SB(h + 1)
            for i in range(32):
                V(f"v_sub_f32 v{s2+i}, v{s2+i}, v{MX}", w={s2 + i}, r={s2 + i, MX})
        for it in sm_items(h, 0, 32, True): it()
        V(f"v_add_f32 v{SUMA}, v{SUMA}, v{SUMB}", w={SUMA}, r={SUMA, SUMB})
        A.flush_hazards()
        A.salu(f"s_branch K1_BACK{h}")

def gen_k2(A):
    V = A.valu
    T0, T1, T2, T3, T4, T5, T6, T7 = range(0, 8)
    WOFF = 8
    OOFF = 12
    BA = 13
    RED = 15
    AF = 16
    OF = 48
    ACC = 112
    sBLK, sMT, sNT, sW = 26, 27, 4, 5
    SW_, SO, SOUT = 28, 32, 36
    sWL, sWB, sO0, sO1, sT = 48, 49, 50, 51, 52
    A.win = []
    A.nds = A.ds_done = A.nvm = A.vm_done = 0
    A.raw(f".p2align 8\n.globl k2_kernel\n.type k2_kernel,@function\nk2_kernel:")
    A.salu("s_cmp_ge_u32 s2, 256")
    A.salu("s_cbranch_scc1 K2_END")
    A.salu("s_and_b32 s3, s2, 7")
    A.salu("s_lshl_b32 s3, s3, 5")
    A.salu("s_lshr_b32 s6, s2, 3")
    A.salu("s_add_u32 s3, s3, s6")
    A.salu("s_cmp_ge_u32 s3, 252")
    A.salu("s_cbranch_scc1 K2_END")
    A.salu("s_load_dwordx2 s[8:9], s[0:1], 32")
    A.salu("s_load_dwordx2 s[10:11], s[0:1], 72")
    A.salu("s_load_dwordx2 s[12:13], s[0:1], 80")
    A.salu("s_load_dwordx2 s[14:15], s[0:1], 96")
    A.salu("s_cmp_ge_u32 s3, 126")
    A.salu(f"s_cselect_b32 s{sBLK}, 1, 0")
    A.salu(f"s_mul_i32 s6, s{sBLK}, 126")
    A.salu("s_sub_u32 s3, s3, s6")
    A.salu("s_mul_i32 s6, s3, 57")
    A.salu(f"s_lshr_b32 s{sMT}, s6, 9")
    A.salu(f"s_mul_i32 s6, s{sMT}, 9")
    A.salu(f"s_sub_u32 s{sNT}, s3, s6")
    V(f"v_lshrrev_b32 v{T1}, 6, v0", w={T1}, r={0})
    A._emit(I(f"v_readfirstlane_b32 s{sW}, v{T1}", "rdlane", r={T1}, sw={sW}))
    V(f"v_and_b32 v{T0}, 63, v0", w={T0}, r={0})
    L = T0
    A.salu(f"s_lshl_b32 s{sWL}, s{sW}, 14", sr={sW})
    A.salu(f"s_mul_i32 s{sWB}, s{sW}, {512*1152}", sr={sW})
    A.salu(f"s_lshl_b32 s6, s{sNT}, 7")
    A.salu(f"s_add_u32 s{sWB}, s{sWB}, s6")
    A.salu(f"s_mul_i32 s{sO0}, s{sBLK}, {O_BLK}")
    A.salu(f"s_lshl_b32 s6, s{sMT}, 19")
    A.salu(f"s_add_u32 s{sO0}, s{sO0}, s6")
    A.salu(f"s_lshl_b32 s6, s{sW}, 14")
    A.salu(f"s_add_u32 s{sO0}, s{sO0}, s6")
    A.salu(f"s_add_u32 s{sO1}, s{sO0}, {2*131072}")
    V(f"v_lshrrev_b32 v{T1}, 3, v{L}", w={T1}, r={L})
    V(f"v_mul_u32_u24 v{T1}, 1152, v{T1}", w={T1}, r={T1})
    V(f"v_bfe_u32 v{T2}, v{L}, 4, 1", w={T2}, r={L})
    V(f"v_lshlrev_b32 v{T3}, 2, v{T2}", w={T3}, r={T2})
    V(f"v_and_b32 v{T4}, 7, v{L}", w={T4}, r={L})
    V(f"v_xor_b32 v{T4}, v{T4}, v{T3}", w={T4}, r={T4, T3})
    V(f"v_lshl_add_u32 v{WOFF}, v{T4}, 4, v{T1}", w={WOFF}, r={T4, T1})
    for i in range(1, 4):
        V(f"v_add_u32 v{WOFF+i}, {9216*i}, v{WOFF}", w={WOFF + i}, r={WOFF})
    V(f"v_lshrrev_b32 v{T1}, 5, v{L}", w={T1}, r={L})
    V(f"v_bfe_u32 v{T3}, v{L}, 2, 2", w={T3}, r={L})
    V(f"v_and_b32 v{T4}, 3, v{L}", w={T4}, r={L})
    V(f"v_lshlrev_b32 v{T6}, 17, v{T2}", w={T6}, r={T2})
    V(f"v_lshl_add_u32 v{T6}, v{T1}, 8, v{T6}", w={T6}, r={T1, T6})
    V(f"v_and_b32 v{T7}, 15, v{L}", w={T7}, r={L})
    V(f"v_lshl_add_u32 v{OOFF}, v{T7}, 4, v{T6}", w={OOFF}, r={T7, T6})
    V(f"v_lshl_add_u32 v{T6}, v{T1}, 2, v{T3}", w={T6}, r={T1, T3})
    V(f"v_lshlrev_b32 v{T6}, 7, v{T6}", w={T6}, r={T6})
    V(f"v_lshrrev_b32 v{T7}, 1, v{T4}", w={T7}, r={T4})
    V(f"v_lshl_add_u32 v{T7}, v{T2}, 1, v{T7}", w={T7}, r={T2, T7})
    V(f"v_lshrrev_b32 v{T5}, 1, v{T3}", w={T5}, r={T3})
    V(f"v_lshlrev_b32 v{T5}, 2, v{T5}", w={T5}, r={T5})
    V(f"v_xor_b32 v{T7}, v{T7}, v{T5}", w={T7}, r={T7, T5})
    V(f"v_lshl_add_u32 v{T6}, v{T7}, 4, v{T6}", w={T6}, r={T7, T6})
    V(f"v_and_b32 v{T7}, 1, v{T4}", w={T7}, r={T4})
    V(f"v_lshl_add_u32 v{T6}, v{T7}, 3, v{T6}", w={T6}, r={T7, T6})
    V(f"v_add_u32 v{BA}, s{sWL}, v{T6}", w={BA}, r={T6})
    V(f"v_xor_b32 v{BA+1}, 64, v{BA}", w={BA + 1}, r={BA})
    V(f"v_lshlrev_b32 v{RED}, 4, v{L}", w={RED}, r={L})
    A.waitcnt(lgkm=0)
    A.salu(f"s_cmp_eq_u32 s{sBLK}, 0")
    A.salu("s_cselect_b32 s8, s8, s10")
    A.salu("s_cselect_b32 s9, s9, s11")
    srd(A, SW_, 8, 4096 * 576 * 2)
    srd(A, SO, 14, 2 * O_BLK)
    srd(A, SOUT, 12, 896 * 1152 * 2)

    NU = 16; DEPTH = 4
    last_vm = {}
    def issue(u):
        slot = u % DEPTH
        A.salu(f"s_add_u32 s{sT}, s{sWB}, {u * 32 * 1152}")
        for i in range(4):
            A.salu(f"s_add_u32 m0, s{sWL}, {slot * 4096 + i * 1024}", m0w=True)
            A.vmem(f"buffer_load_dwordx4 v{WOFF+i}, s[{SW_}:{SW_+3}], s{sT} offen{' nt' if OPT['ntwo'] else ''} lds", kind="dma", r={WOFF + i}, m0r=True)
        for ks in range(2):
            for tm in range(2):
                d = OF + slot * 16 + (ks * 2 + tm) * 4
                off = (2 * u + ks) * 512
                sb = sO0 if tm == 0 else sO1
                if off >= 4096:
                    A.salu(f"s_add_u32 s{sT}, s{sb}, {off & ~4095}")
                    k = A.vmem(f"buffer_load_dwordx4 {vname(d,4)}, v{OOFF}, s[{SO}:{SO+3}], s{sT} offen offset:{off & 4095}{' nt' if OPT['nto'] else ''}", w=vr(d, 4), r={OOFF})
                else:
                    k = A.vmem(f"buffer_load_dwordx4 {vname(d,4)}, v{OOFF}, s[{SO}:{SO+3}], s{sb} offen offset:{off}{' nt' if OPT['nto'] else ''}", w=vr(d, 4), r={OOFF})
        last_vm[u] = k
    def dsreads(u):
        slot = u % DEPTH
        ab = AF + (u % 2) * 16
        for ks in range(2):
            for tn in range(2):
                for j in range(2):
                    k = A.ds_read_tr(ab + (ks * 2 + tn) * 4 + 2 * j, BA + tn, slot * 4096 + (16 * ks + 8 * j) * 128)
        return k
    PF = Prof(A, 1)
    PF.stamp("start")
    for u in range(DEPTH): issue(u)
    A.wait_vm(last_vm[0])
    pend = dsreads(0)
    for u in range(NU):
        A.wait_ds(pend)
        if u + 1 < NU:
            A.wait_vm(last_vm[u + 1])
            pend = dsreads(u + 1)
        ab = AF + (u % 2) * 16
        ob = OF + (u % DEPTH) * 16
        for ks in range(2):
            for tn in range(2):
                for tm in range(2):
                    c = "zero" if (u == 0 and ks == 0) else None
                    A.mfma(ACC + (tn * 2 + tm) * 16, ab + (ks * 2 + tn) * 4, ob + (ks * 2 + tm) * 4, c)
        if u + DEPTH < NU: issue(u + DEPTH)
        PF.stamp(f"u{u}")
    A.wait_ds_all()
    A.barrier()
    V(f"v_add_u32 v{T1}, s{sWL}, v{RED}", w={T1}, r={RED})
    for q in range(16):
        A.ds_write_b128(T1, ACC + 4 * q, q * 1024)
    A.wait_ds_all()
    A.barrier()
    A.salu(f"s_lshl_b32 s6, s{sW}, 11")
    V(f"v_add_u32 v{T1}, s6, v{RED}", w={T1}, r={RED})
    V(f"v_add_u32 v{T2}, 0x10000, v{T1}", w={T2}, r={T1})
    R = OF
    for ww in range(8):
        for q in range(2):
            A.ds_read_b128(R + (ww * 2 + q) * 4, T1 if ww < 4 else T2, (ww % 4) * 16384 + q * 1024)
            if ww == 6 and q == 1: pass
        if ww == 5:
            A.wait_ds_all()
    A.wait_ds_all()
    for ww in range(1, 8):
        for i in range(8):
            V(f"v_add_f32 v{R+i}, v{R+i}, v{R+ww*8+i}", w={R + i}, r={R + i, R + ww * 8 + i})
    for q in range(4):
        V(f"v_cvt_pk_bf16_f32 v{AF+q}, v{R+2*q}, v{R+2*q+1}", w={AF + q}, r={R + 2 * q, R + 2 * q + 1})
    A.salu(f"s_lshr_b32 s6, s{sW}, 1")
    A.salu("s_and_b32 s7, s6, 1")
    A.salu("s_lshr_b32 s6, s6, 1")
    A.salu(f"s_lshl_b32 s3, s{sMT}, 6")
    A.salu("s_lshl_b32 s7, s7, 5")
    A.salu("s_add_u32 s3, s3, s7")
    A.salu("s_mul_i32 s3, s3, 2304")
    A.salu(f"s_mul_i32 s7, s{sBLK}, 1152")
    A.salu("s_add_u32 s3, s3, s7")
    A.salu(f"s_lshl_b32 s7, s{sNT}, 7")
    A.salu("s_add_u32 s3, s3, s7")
    A.salu("s_lshl_b32 s7, s6, 6")
    A.salu("s_add_u32 s3, s3, s7")
    A.salu(f"s_and_b32 s7, s{sW}, 1")
    A.salu("s_lshl_b32 s7, s7, 5")
    A.salu("s_add_u32 s3, s3, s7")
    V(f"v_and_b32 v{T1}, 31, v{L}", w={T1}, r={L})
    V(f"v_mul_u32_u24 v{T1}, 2304, v{T1}", w={T1}, r={T1})
    V(f"v_lshrrev_b32 v{T2}, 5, v{L}", w={T2}, r={L})
    V(f"v_lshl_add_u32 v{T1}, v{T2}, 3, v{T1}", w={T1}, r={T2, T1})
    A.vmem(f"buffer_store_dwordx2 {vname(AF,2)}, v{T1}, s[{SOUT}:{SOUT+3}], s3 offen", r=vr(AF, 2) | {T1})
    A.vmem(f"buffer_store_dwordx2 {vname(AF+2,2)}, v{T1}, s[{SOUT}:{SOUT+3}], s3 offen offset:16", r=vr(AF + 2, 2) | {T1})
    PF.dump(14, sW, 0)
    A.label("K2_END")
    A.salu("s_endpgm")

def kd(name, vgpr, sgpr):
    return f""".amdhsa_kernel {name}
  .amdhsa_next_free_vgpr {vgpr}
  .amdhsa_next_free_sgpr {sgpr}
  .amdhsa_accum_offset {(vgpr + 3) // 4 * 4}
  .amdhsa_group_segment_fixed_size 0
  .amdhsa_kernarg_size 104
  .amdhsa_user_sgpr_count 2
  .amdhsa_user_sgpr_kernarg_segment_ptr 1
  .amdhsa_system_sgpr_workgroup_id_x 1
.end_amdhsa_kernel
"""

def main():
    A = Asm()
    gen_k1(A)
    gen_k2(A)
    head = """; Two-launch GQA block pair: k1 = Q projection + attention (o -> ws), k2 = output projection.
; @launch kernel=k1_kernel grid=(256,1,1) block=(512,1,1) lds=163840
; @launch kernel=k2_kernel grid=(256,1,1) block=(512,1,1) lds=131072
.amdgcn_target "amdgcn-amd-amdhsa--gfx950"
.text
"""
    tail = '\n.section .rodata,"a"\n.p2align 6\n' + kd("k1_kernel", 256, 102 if OPT["prof"] else 64) + ".p2align 6\n" + kd("k2_kernel", 176, 102 if OPT["prof"] else 64)
    txt = head + A.text() + tail
    if "CODE_BYTES" in txt:
        import subprocess, re
        open("_p1.s", "w").write(txt.replace("CODE_BYTES", "0x12345"))
        subprocess.check_call(["clang", "-x", "assembler", "-target", "amdgcn-amd-amdhsa", "-mcpu=gfx950", "-c", "_p1.s", "-o", "_p1.o"])
        o = subprocess.check_output(["llvm-objdump", "-h", "_p1.o"]).decode()
        n = int(re.search(r"\.text\s+([0-9a-f]+)", o).group(1), 16)
        txt = txt.replace("CODE_BYTES", str(n))
    open(sys.argv[1], "w").write(txt)
    print("nops inserted:", A.nops_inserted, "lines:", len(A.out))

main()
```

```python
import sys, math
sys.path.insert(0, "gen")
from asmlib import *

NAME = "concat_heads__gqa_block_cached__gqa_block_cached__near_ridge"
OPT = dict(prio=1, prof=0, ntkv=1, ntw=0, ntx=0, ntwo=0, nto=0, ntst=0, nq=6, kvrate=1, l2pf=1, wopf=4, fat=1, bstep=1, dmagap=1, pflead=4, kv0=2, nstg=4, kvt=0, ld4=1, cpf=0, mid=0, kvt0=1, kvtr=1, roll=0, pfrate=1)
for a in sys.argv[2:]:
    k, v = a.split("="); OPT[k] = int(v)

O_BLK = 896 * 4096 * 2
SLOT = 16384
NSLOT = 10

def srd(A, d, base, nbytes):
    A.salu(f"s_mov_b32 s{d}, s{base}")
    A.salu(f"s_and_b32 s{d+1}, s{base+1}, 0xffff")
    A.salu(f"s_mov_b32 s{d+2}, {nbytes}")
    A.salu(f"s_mov_b32 s{d+3}, 0x00020000")

class Prof:
    def __init__(self, A, kidx):
        self.A = A; self.n = 0; self.names = []; self.kidx = kidx
    def stamp(self, name):
        if not OPT["prof"]: return
        A = self.A
        assert self.n < 30
        A.salu("s_waitcnt lgkmcnt(0)")
        A.ds_done = A.nds
        A.salu("s_memtime s[96:97]")
        A.salu("s_waitcnt lgkmcnt(0)")
        A.salu(f"s_mov_b32 s{64+self.n}, s96")
        if self.n == 0:
            A.salu("s_memrealtime s[98:99]")
            A.salu("s_waitcnt lgkmcnt(0)")
        self.n += 1; self.names.append(name)
    def dump(self, wsreg, sW, tmp):
        if not OPT["prof"]: return
        A = self.A
        self.stamp("end")
        A.salu("s_memrealtime s[96:97]")
        A.salu("s_waitcnt lgkmcnt(0)")
        A.salu("s_mov_b64 exec, -1")
        A.salu("s_nop 4")
        for i in range(self.n):
            A.salu(f"v_writelane_b32 v{tmp}, s{64+i}, {i}")
        A.salu("s_getreg_b32 s97, hwreg(HW_REG_HW_ID)")
        A.salu(f"v_writelane_b32 v{tmp}, s97, 29")
        A.salu(f"v_writelane_b32 v{tmp}, s98, 30")
        A.salu(f"v_writelane_b32 v{tmp}, s96, 31")
        A.salu(f"s_mov_b32 s60, s{wsreg}")
        A.salu(f"s_and_b32 s61, s{wsreg+1}, 0xffff")
        A.salu("s_mov_b32 s62, 0x10000000")
        A.salu("s_mov_b32 s63, 0x00020000")
        A.salu("s_lshl_b32 s96, s2, 3")
        A.salu(f"s_add_u32 s96, s96, s{sW}")
        A.salu("s_lshl_b32 s96, s96, 7")
        A.salu(f"s_add_u32 s96, s96, {255*1024*1024 + self.kidx*512*1024}")
        A.salu(f"v_mbcnt_lo_u32_b32 v{tmp+1}, -1, 0")
        A.salu(f"v_mbcnt_hi_u32_b32 v{tmp+1}, -1, v{tmp+1}")
        A.salu(f"v_lshlrev_b32 v{tmp+1}, 2, v{tmp+1}")
        A.salu("s_mov_b64 exec, 0xffffffff")
        A.salu("s_nop 4")
        A.salu(f"buffer_store_dword v{tmp}, v{tmp+1}, s[60:63], s96 offen")
        print("stamps k%d:" % self.kidx, self.names)

def gen_k1(A):
    V = A.valu
    T0, T1, T2, T3, T4, T5, T6, T7 = range(0, 8)
    XO, WO, KO = 8, 10, 12
    BW, BX, BK, BV = 14, 15, 16, 17
    LSUM, OST = 18, 19
    SUMA, SUMB, MX, MX2 = 20, 21, 22, 23
    AD = 24
    FR = 32
    NEGM = 48
    QB = 64
    S = 96
    O = 160
    P = 224
    sBLK, sKVH, sB, sW, sHL, sRT = 26, 27, 4, 5, 6, 7
    SX, SW_, SK, SV, SO = 28, 32, 36, 40, 44
    sWL, sXB, sWB, sKVB, sT, sOB = 48, 49, 50, 51, 52, 53
    sMASK, sTHR, sC = 54, 56, 57
    sW3, sWL4, sT2 = 58, 59, 55

    A.raw(f".p2align 8\n.globl k1_kernel\n.type k1_kernel,@function\nk1_kernel:\nK1_BEGIN:")
    A.salu("s_cmp_ge_u32 s2, 256")
    A.salu("s_cbranch_scc1 K1_END")
    A.salu("s_load_dwordx8 s[8:15], s[0:1], 0")
    A.salu("s_load_dwordx8 s[16:23], s[0:1], 40")
    A.salu("s_load_dwordx2 s[24:25], s[0:1], 96")
    if OPT["cpf"]:
        A.salu("s_getpc_b64 s[60:61]")
        A.salu("s_and_b32 s60, s60, 0xffffff00")
        A.salu("s_and_b32 s61, s61, 0xffff")
        A.salu("s_mov_b32 s62, CODE_BYTES")
        A.salu("s_mov_b32 s63, 0x00020000")
        V(f"v_lshlrev_b32 v{T7}, 7, v0", w={T7}, r={0})
        A.vmem(f"buffer_load_dword v{NEGM+15}, v{T7}, s[60:63], 0 offen", w={NEGM+15}, r={T7})
    A.salu("s_and_b32 s3, s2, 7")
    A.salu(f"s_lshr_b32 s{sB}, s2, 3")
    A.salu(f"s_lshr_b32 s{sBLK}, s3, 2")
    A.salu("s_and_b32 s3, s3, 3")
    A.salu("s_lshl_b32 s3, s3, 2")
    A.salu(f"s_and_b32 s{sKVH}, s{sB}, 3")
    A.salu(f"s_add_u32 s{sKVH}, s{sKVH}, s3")
    A.salu(f"s_lshr_b32 s{sB}, s{sB}, 2")
    V(f"v_lshrrev_b32 v{T1}, 6, v0", w={T1}, r={0})
    A._emit(I(f"v_readfirstlane_b32 s{sW}, v{T1}", "rdlane", r={T1}, sw={sW}))
    V(f"v_and_b32 v{T0}, 63, v0", w={T0}, r={0})
    if OPT["fat"]:
        A.salu(f"s_bfe_u32 s{sHL}, s{sW}, 0x10001", sr={sW})
        A.salu(f"s_and_b32 s{sRT}, s{sW}, 1", sr={sW})
        A.salu(f"s_lshl_b32 s{sRT}, s{sRT}, 1")
        A.salu(f"s_lshr_b32 s3, s{sW}, 2", sr={sW})
        A.salu(f"s_add_u32 s{sRT}, s{sRT}, s3")
    else:
        A.salu(f"s_lshr_b32 s{sHL}, s{sW}, 2", sr={sW})
        A.salu(f"s_and_b32 s{sRT}, s{sW}, 3", sr={sW})
    A.salu(f"s_lshl_b32 s{sWL}, s{sW}, 11", sr={sW})
    A.salu(f"s_and_b32 s{sW3}, s{sW}, {3 if OPT['ld4'] else 1}", sr={sW})
    A.salu(f"s_lshl_b32 s{sWL4}, s{sW3}, 11")
    A.salu(f"s_mul_i32 s{sXB}, s{sB}, 129024")
    A.salu(f"s_lshl_b32 s{sWB}, s{sKVH}, 9")
    A.salu(f"s_lshl_b32 s{sKVB}, s{sB}, 4")
    A.salu(f"s_add_u32 s{sKVB}, s{sKVB}, s{sKVH}")
    A.salu(f"s_lshl_b32 s{sKVB}, s{sKVB}, 17")
    A.salu(f"s_mov_b32 s{sTHR}, 0x4b800000")
    c = math.log2(math.e) / math.sqrt(128.0)
    import struct
    cbits = struct.unpack("<I", struct.pack("<f", c))[0]
    A.salu(f"s_mov_b32 s{sC}, {cbits:#x}")
    L = T0
    for q in range(2):
        V(f"v_lshrrev_b32 v{T1}, 3, v{L}", w={T1}, r={L})
        A.salu(f"s_lshl_b32 s3, s{sW3}, 4")
        A.salu(f"s_add_u32 s3, s3, {8*q}")
        V(f"v_add_u32 v{T1}, s3, v{T1}", w={T1}, r={T1})
        V(f"v_mul_u32_u24 v{T1}, 1152, v{T1}", w={T1}, r={T1})
        V(f"v_and_b32 v{T2}, 7, v{L}", w={T2}, r={L})
        V(f"v_lshrrev_b32 v{T3}, 4, v{L}", w={T3}, r={L})
        V(f"v_xor_b32 v{T2}, v{T2}, v{T3}", w={T2}, r={T2, T3})
        if q: V(f"v_xor_b32 v{T2}, 4, v{T2}", w={T2}, r={T2})
        V(f"v_lshl_add_u32 v{XO+q}, v{T2}, 4, v{T1}", w={XO+q}, r={T2, T1})
        V(f"v_lshrrev_b32 v{T3}, 5, v{L}", w={T3}, r={L})
        A.salu(f"s_lshl_b32 s3, s{sW3}, 2")
        A.salu(f"s_add_u32 s3, s3, {2*q}")
        V(f"v_add_u32 v{T1}, s3, v{T3}", w={T1}, r={T3})
        V(f"v_lshlrev_b32 v{T1}, 13, v{T1}", w={T1}, r={T1})
        V(f"v_or_b32 v{T3}, {2*q}, v{T3}", w={T3}, r={T3})
        V(f"v_lshlrev_b32 v{T3}, 2, v{T3}", w={T3}, r={T3})
        V(f"v_and_b32 v{T2}, 31, v{L}", w={T2}, r={L})
        V(f"v_xor_b32 v{T2}, v{T2}, v{T3}", w={T2}, r={T2, T3})
        V(f"v_lshl_add_u32 v{WO+q}, v{T2}, 4, v{T1}", w={WO+q}, r={T2, T1})
        V(f"v_lshrrev_b32 v{T3}, 4, v{L}", w={T3}, r={L})
        A.salu(f"s_lshl_b32 s3, s{sW}, 3")
        A.salu(f"s_add_u32 s3, s3, {4*q}")
        V(f"v_add_u32 v{T1}, s3, v{T3}", w={T1}, r={T3})
        V(f"v_lshlrev_b32 v{T1}, 8, v{T1}", w={T1}, r={T1})
        A.salu(f"s_and_b32 s3, s{sW}, 1")
        A.salu(f"s_lshl_b32 s3, s3, 1")
        A.salu(f"s_or_b32 s3, s3, {q}")
        V(f"v_lshlrev_b32 v{T3}, 2, v{T3}", w={T3}, r={T3})
        V(f"v_or_b32 v{T3}, s3, v{T3}", w={T3}, r={T3})
        V(f"v_and_b32 v{T2}, 15, v{L}", w={T2}, r={L})
        V(f"v_xor_b32 v{T2}, v{T2}, v{T3}", w={T2}, r={T2, T3})
        V(f"v_lshl_add_u32 v{KO+q}, v{T2}, 4, v{T1}", w={KO+q}, r={T2, T1})
    V(f"v_lshrrev_b32 v{T1}, 5, v{L}", w={T1}, r={L})
    V(f"v_bfe_u32 v{T2}, v{L}, 4, 1", w={T2}, r={L})
    V(f"v_bfe_u32 v{T3}, v{L}, 2, 2", w={T3}, r={L})
    V(f"v_and_b32 v{T4}, 3, v{L}", w={T4}, r={L})
    V(f"v_and_b32 v{T5}, 31, v{L}", w={T5}, r={L})
    V(f"v_lshl_add_u32 v{T6}, v{T1}, 3, v{T3}", w={T6}, r={T1, T3})
    V(f"v_lshlrev_b32 v{T6}, 9, v{T6}", w={T6}, r={T6})
    V(f"v_lshlrev_b32 v{T7}, 2, v{T3}", w={T7}, r={T3})
    V(f"v_lshl_add_u32 v{T7}, v{T2}, 1, v{T7}", w={T7}, r={T2, T7})
    V(f"v_and_b32 v{BW}, 1, v{T4}", w={BW}, r={T4})
    V(f"v_add_u32 v{T7}, v{T7}, v{BW}", w={T7}, r={T7, BW})
    A.salu(f"s_lshl_b32 s3, s{sHL}, 4")
    V(f"v_add_u32 v{T7}, s3, v{T7}", w={T7}, r={T7})
    V(f"v_lshl_add_u32 v{T6}, v{T7}, 4, v{T6}", w={T6}, r={T7, T6})
    V(f"v_lshrrev_b32 v{T7}, 1, v{T4}", w={T7}, r={T4})
    V(f"v_lshl_add_u32 v{BW}, v{T7}, 3, v{T6}", w={BW}, r={T7, T6})
    A.salu(f"s_lshl_b32 s3, s{sRT}, 5")
    V(f"v_add_u32 v{T6}, s3, v{T5}", w={T6}, r={T5})
    V(f"v_lshlrev_b32 v{T6}, 7, v{T6}", w={T6}, r={T6})
    V(f"v_bfe_u32 v{T7}, v{T5}, 1, 3", w={T7}, r={T5})
    V(f"v_xor_b32 v{T7}, v{T7}, v{T1}", w={T7}, r={T7, T1})
    V(f"v_lshl_add_u32 v{BX}, v{T7}, 4, v{T6}", w={BX}, r={T7, T6})
    V(f"v_lshlrev_b32 v{T6}, 2, v{T4}", w={T6}, r={T4})
    V(f"v_or_b32 v{T6}, v{T6}, v{T3}", w={T6}, r={T6, T3})
    V(f"v_xor_b32 v{T6}, v{T6}, v{T1}", w={T6}, r={T6, T1})
    V(f"v_lshlrev_b32 v{T7}, 8, v{T5}", w={T7}, r={T5})
    V(f"v_lshl_add_u32 v{BK}, v{T6}, 4, v{T7}", w={BK}, r={T6, T7})
    V(f"v_lshl_add_u32 v{T6}, v{T1}, 2, v{T3}", w={T6}, r={T1, T3})
    V(f"v_lshlrev_b32 v{T6}, 8, v{T6}", w={T6}, r={T6})
    V(f"v_lshrrev_b32 v{T7}, 1, v{T4}", w={T7}, r={T4})
    V(f"v_lshl_add_u32 v{T7}, v{T2}, 1, v{T7}", w={T7}, r={T2, T7})
    V(f"v_xor_b32 v{T7}, v{T7}, v{T1}", w={T7}, r={T7, T1})
    V(f"v_lshl_or_b32 v{T7}, v{T3}, 2, v{T7}", w={T7}, r={T3, T7})
    V(f"v_lshl_add_u32 v{T6}, v{T7}, 4, v{T6}", w={T6}, r={T7, T6})
    V(f"v_and_b32 v{T7}, 1, v{T4}", w={T7}, r={T4})
    V(f"v_lshl_add_u32 v{BV}, v{T7}, 3, v{T6}", w={BV}, r={T7, T6})
    V(f"v_lshlrev_b32 v{T6}, 17, v{T2}", w={T6}, r={T2})
    V(f"v_lshl_add_u32 v{T6}, v{T1}, 8, v{T6}", w={T6}, r={T1, T6})
    V(f"v_and_b32 v{T7}, 15, v{L}", w={T7}, r={L})
    V(f"v_lshl_add_u32 v{OST}, v{T7}, 4, v{T6}", w={OST}, r={T7, T6})
    V(f"v_mov_b32 v{LSUM}, 0", w={LSUM})
    A.waitcnt(lgkm=0)
    A.salu(f"s_cmp_eq_u32 s{sBLK}, 0")
    for k in range(8):
        A.salu(f"s_cselect_b32 s{8+k}, s{8+k}, s{16+k}")
    srd(A, SX, 8, 8 * 112 * 576 * 2)
    srd(A, SK, 10, 8 * 16 * 512 * 128 * 2)
    srd(A, SV, 12, 8 * 16 * 512 * 128 * 2)
    srd(A, SW_, 14, 576 * 4096 * 2)
    srd(A, SO, 24, 2 * O_BLK)
    A.salu(f"s_mul_i32 s{sOB}, s{sBLK}, {O_BLK}")
    A.salu(f"s_mul_i32 s3, s{sB}, 7")
    A.salu(f"s_lshl_b32 s{sT}, s{sRT}, 1")
    A.salu(f"s_add_u32 s3, s3, s{sT}")
    A.salu(f"s_lshl_b32 s3, s3, 17")
    A.salu(f"s_add_u32 s{sOB}, s{sOB}, s3")
    A.salu(f"s_lshl_b32 s3, s{sKVH}, 1")
    A.salu(f"s_add_u32 s3, s3, s{sHL}")
    A.salu(f"s_lshl_b32 s3, s3, 12")
    A.salu(f"s_add_u32 s{sOB}, s{sOB}, s3")
    if OPT["prio"]:
        A.salu(f"s_cmp_ge_u32 s{sW}, 4")
        A.salu("s_cbranch_scc0 K1_PRIO_DONE" if OPT["prio"] == 1 else "s_cbranch_scc1 K1_PRIO_DONE")
        A.salu("s_setprio 1")
        A.label("K1_PRIO_DONE")

    qunits = []
    for s_ in range(9):
        qunits += [("X", s_), ("W", 2 * s_), ("W", 2 * s_ + 1)]
    kvunits = [("K", 0)]
    for h in range(7):
        kvunits += [("K", h + 1), ("V", h)]
    kvunits += [("V", 7)]
    units = qunits + kvunits
    UK = {idx: 27 + i for i, (t_, idx) in enumerate(kvunits) if t_ == "K"}
    UV = {idx: 27 + i for i, (t_, idx) in enumerate(kvunits) if t_ == "V"}
    stage_units = [list(range(3 * s_, 3 * s_ + 3)) for s_ in range(9)]
    unit_last_vm = {}
    unit_slot = {}
    free = list(range(NSLOT))
    nq = [0]; nkv = [0]; xch = []
    KQ = FR
    DV = FR + 2
    NSTG = OPT["nstg"]
    STG = [S + 32, O, O + 32, P][:NSTG]

    def unit_info(u):
        typ, idx = units[u]
        if typ == "X": return sXB, idx * 128, SX, XO, 2 * 16 * 1152, "ntx"
        if typ == "W": return sWB, idx * 32 * 8192, SW_, WO, 2 * 4 * 8192, "ntw"
        if typ == "K": return sKVB, idx * 64 * 256, SK, KO, 4096, "ntkv"
        return sKVB, idx * 64 * 256, SV, KO, 4096, "ntkv"

    def issue_unit_q(u, stage_reg=None):
        if stage_reg is None:
            slot = free.pop(0)
            unit_slot[u] = slot
        base, const, sr_, vo, delta, nto = unit_info(u)
        if vo == KO: vo = KQ
        nt = " nt" if OPT[nto] else ""
        for hv in range(4):
            A.salu(f"s_add_u32 s{sT}, s{base}, {const + delta * hv}")
            for q in range(2):
                if stage_reg is None:
                    A.salu(f"s_add_u32 m0, s{sWL4}, {slot * SLOT + hv * 4096 + q * 1024}", m0w=True)
                    k = A.vmem(f"buffer_load_dwordx4 v{vo+q}, s[{sr_}:{sr_+3}], s{sT} offen{nt} lds", kind="dma", r={vo + q}, m0r=True)
                else:
                    d = stage_reg + (hv * 2 + q) * 4
                    k = A.vmem(f"buffer_load_dwordx4 {vname(d,4)}, v{vo+q}, s[{sr_}:{sr_+3}], s{sT} offen{nt}", w=vr(d, 4), r={vo + q})
        unit_last_vm[u] = k

    def issue_unit_4(u):
        slot = free.pop(0)
        unit_slot[u] = slot
        base, const, sr_, vo, delta, nto = unit_info(u)
        nt = " nt" if OPT[nto] else ""
        A.salu(f"s_add_u32 s{sT}, s{base}, {const}")
        if vo != KO: A.salu(f"s_add_u32 s{sT2}, s{base}, {const + 2 * delta}")
        for hv in range(2):
            for q in range(2):
                A.salu(f"s_add_u32 m0, s{sWL4}, {slot * SLOT + hv * 8192 + q * 1024}", m0w=True)
                if vo == KO:
                    va = (KQ if hv == 0 else KO) + q; so = sT
                else:
                    va = vo + q; so = sT if hv == 0 else sT2
                k = A.vmem(f"buffer_load_dwordx4 v{va}, s[{sr_}:{sr_+3}], s{so} offen{nt} lds", kind="dma", r={va}, m0r=True)
        unit_last_vm[u] = k

    def flood():
        if not OPT["l2pf"]: return
        V(f"v_lshrrev_b32 v{T1}, 2, v{L}", w={T1}, r={L})
        V(f"v_lshlrev_b32 v{T1}, 13, v{T1}", w={T1}, r={T1})
        V(f"v_and_b32 v{T2}, 3, v{L}", w={T2}, r={L})
        V(f"v_lshl_add_u32 v{T1}, v{T2}, 7, v{T1}", w={T1}, r={T2, T1})
        A.salu(f"s_lshl_b32 s3, s{sW}, 4")
        A.salu(f"s_min_u32 s3, s3, 56")
        A.salu(f"s_mul_i32 s{sT}, s{sB}, 72")
        A.salu(f"s_add_u32 s3, s3, s{sT}")
        A.salu(f"s_lshl_b32 s3, s3, 13")
        A.salu(f"s_add_u32 s3, s3, s{sWB}")
        A.vmem(f"buffer_load_dword v{T4}, v{T1}, s[{SW_}:{SW_+3}], s3 offen", w={T4}, r={T1})
        V(f"v_lshlrev_b32 v{T2}, 7, v{L}", w={T2}, r={L})
        A.salu(f"s_and_b32 s3, s{sKVH}, 3")
        A.salu(f"s_mul_i32 s3, s3, 32256")
        A.salu(f"s_and_b32 s{sT}, s{sW}, 3")
        A.salu(f"s_lshl_b32 s{sT}, s{sT}, 13")
        A.salu(f"s_add_u32 s3, s3, s{sT}")
        A.salu(f"s_add_u32 s3, s3, s{sXB}")
        A.vmem(f"buffer_load_dword v{T5}, v{T2}, s[{SX}:{SX+3}], s3 offen", w={T5}, r={T2})

    def dump_unit(u, stage_reg):
        slot = free.pop(0)
        unit_slot[u] = slot
        V(f"v_add_u32 v{DV+1}, {slot * SLOT}, v{DV}", w={DV + 1}, r={DV})
        for hv in range(4):
            for q in range(2):
                A.ds_write_b128(DV + 1, stage_reg + (hv * 2 + q) * 4, hv * 4096 + q * 1024)

    def dma_items(u):
        slot = free.pop(0)
        unit_slot[u] = slot
        base, const, sr_, vo, delta, nto = unit_info(u)
        nt = " nt" if OPT[nto] else ""
        def mk(q):
            def f():
                A.salu(f"s_add_u32 s{sT}, s{base}, {const}")
                A.salu(f"s_add_u32 m0, s{sWL}, {slot * SLOT + q * 1024}", m0w=True)
                k = A.vmem(f"buffer_load_dwordx4 v{vo+q}, s[{sr_}:{sr_+3}], s{sT} offen{nt} lds", kind="dma", r={vo + q}, m0r=True)
                unit_last_vm[u] = k
            return f
        return [mk(0), mk(1)]

    NQ = OPT["nq"]
    PF = Prof(A, 0)
    PF.stamp("start")

    def addr_items(dst, base, slot, xors):
        it = [lambda: V(f"v_add_u32 v{dst[0]}, {slot * SLOT}, v{base}", w={dst[0]}, r={base})]
        for i, x in enumerate(xors):
            if i == 0: continue
            it.append(lambda i=i, x=x: V(f"v_xor_b32 v{dst[i]}, {x}, v{dst[0]}", w={dst[i]}, r={dst[0]}))
        return it

    A.salu(f"s_cmp_lt_u32 s{sW}, 4")
    A.salu("s_cbranch_scc1 K1_FAT")
    pf0 = PF.n
    staged = []
    if OPT["ld4"]:
        for q in range(2):
            V(f"v_subrev_u32 v{KQ+q}, {4*8*256}, v{KO+q}", w={KQ + q}, r={KO + q})
        NL = NSLOT - NQ
        def refill(s):
            done_q = 3 * max(s, 0)
            while nq[0] < 27 and nq[0] - done_q < NQ and free:
                issue_unit_4(nq[0]); nq[0] += 1
        def kv_issue():
            if nkv[0] < NL:
                if free:
                    issue_unit_4(27 + nkv[0]); nkv[0] += 1
        refill(-1)
        for _ in range(OPT["kv0"]): kv_issue()
        if not OPT["roll"]: flood()
        for s in range(9):
            A.wait_vm(max(unit_last_vm[u] for u in stage_units[s]))
            A.barrier()
            PF.stamp(f"q{s}")
            if s > 0:
                for u in stage_units[s - 1]: free.append(unit_slot[u])
            refill(s)
            if s == 8:
                xch.append(free.pop(0)); xch.append(free.pop(0))
                while free:
                    issue_unit_4(27 + nkv[0]); nkv[0] += 1
            else:
                for _ in range(OPT["kvrate"]): kv_issue()
        A.salu("s_branch K1_ATT")
        ldr_vm = (A.nvm, A.vm_done)
    else:
        A.salu(f"s_cmp_ge_u32 s{sW}, 6")
        A.salu("s_cbranch_scc1 K1_KVL")
        pf0 = PF.n
        kvslots = [free.pop() for _ in range(NSLOT - NQ)]
        def refill(s):
            done_q = 3 * max(s, 0)
            while nq[0] < 27 and nq[0] - done_q < NQ and free:
                issue_unit_q(nq[0]); nq[0] += 1
        refill(-1)
        for s in range(9):
            A.wait_vm(max(unit_last_vm[u] for u in stage_units[s]))
            A.barrier()
            PF.stamp(f"q{s}")
            if s > 0:
                for u in stage_units[s - 1]: free.append(unit_slot[u])
            refill(s)
            if s == 8:
                xch.append(free.pop(0)); xch.append(free.pop(0))
        A.waitcnt(vm=0)
        A.vm_done = A.nvm
        A.salu("s_branch K1_ATT")
        A.label("K1_KVL")
        A.win = []
        A.salu("s_nop 4")
        PF.n = pf0; PF.names = PF.names[:pf0]
        for q in range(2):
            V(f"v_subrev_u32 v{KQ+q}, {6*8*256}, v{KO+q}", w={KQ + q}, r={KO + q})
        V(f"v_lshlrev_b32 v{DV}, 4, v{L}", w={DV}, r={L})
        V(f"v_add_u32 v{DV}, s{sWL4}, v{DV}", w={DV}, r={DV})
        late_free = free[:]; free[:] = kvslots
        NL = len(kvslots)
        TV = FR + 4
        V(f"v_lshlrev_b32 v{TV}, 7, v{L}", w={TV}, r={L})
        A.salu(f"s_lshl_b32 s3, s{sW3}, 13")
        V(f"v_add_u32 v{TV}, s3, v{TV}", w={TV}, r={TV})
        NT = OPT["kvt"]
        ntouch = [0]
        def kv_issue():
            i = nkv[0]
            if i < NL: issue_unit_q(27 + i)
            elif i < NL + NSTG: issue_unit_q(27 + i, STG[i - NL])
            else:
                if ntouch[0] < NT:
                    u = 27 + NL + NSTG + ntouch[0]
                    base, const, sr_, vo, delta, nto = unit_info(u)
                    A.salu(f"s_add_u32 s{sT}, s{base}, {const}")
                    A.vmem(f"buffer_load_dword v{TV+1}, v{TV}, s[{sr_}:{sr_+3}], s{sT} offen", w={TV + 1}, r={TV})
                    ntouch[0] += 1
                return
            nkv[0] += 1
        for _ in range(OPT["kv0"]): kv_issue()
        for s in range(9):
            A.barrier()
            PF.stamp(f"q{s}")
            for _ in range(OPT["kvrate"]): kv_issue()
        assert nkv[0] == NL + NSTG
        free[:] = late_free
        staged = [(27 + NL + i, STG[i]) for i in range(NSTG)]
        while staged and free:
            u, r_ = staged.pop(0)
            A.wait_vm(unit_last_vm[u])
            dump_unit(u, r_)
        A.waitcnt(vm=0)
        A.vm_done = A.nvm
        A.wait_ds_all()
        A.salu("s_branch K1_ATT")
    A.label("K1_FAT")
    A.win = []
    A.salu("s_nop 4")
    PF.n = pf0; PF.names = PF.names[:pf0]
    TW, TX = XO, XO + 1
    if OPT["ld4"] and not OPT["roll"]:
        V(f"v_lshlrev_b32 v{TW}, 7, v{L}", w={TW}, r={L})
        A.salu(f"s_lshl_b32 s3, s{sW}, 13")
        V(f"v_add_u32 v{TW}, s3, v{TW}", w={TW}, r={TW})
    else:
        TW, TX = XO, XO + 1
        V(f"v_bfe_u32 v{T1}, v{L}, 2, 1", w={T1}, r={L})
        A.salu(f"s_lshl_b32 s3, s{sW}, 1")
        V(f"v_add_u32 v{T1}, s3, v{T1}", w={T1}, r={T1})
        V(f"v_lshlrev_b32 v{T1}, 13, v{T1}", w={T1}, r={T1})
        V(f"v_and_b32 v{T2}, 3, v{L}", w={T2}, r={L})
        V(f"v_lshl_add_u32 v{TW}, v{T2}, 7, v{T1}", w={TW}, r={T2, T1})
        V(f"v_and_b32 v{T1}, 7, v{L}", w={T1}, r={L})
        V(f"v_min_u32 v{T1}, 6, v{T1}", w={T1}, r={T1})
        A.salu(f"s_mul_i32 s3, s{sW}, 7")
        V(f"v_add_u32 v{T1}, s3, v{T1}", w={T1}, r={T1})
        V(f"v_mul_u32_u24 v{TX}, 1152, v{T1}", w={TX}, r={T1})
        A.salu(f"s_lshl_b32 s8, s{sB}, 16")
        A.salu(f"s_add_u32 s8, s8, s{sWB}")
        A.salu(f"s_and_b32 s9, s{sKVH}, 3")
        A.salu(f"s_mul_i32 s9, s9, {28*1152}")
        A.salu(f"s_add_u32 s9, s9, s{sXB}")
    def touch(s_):
        if not OPT["l2pf"] or s_ > 8: return
        A.salu(f"s_add_u32 s3, s8, {s_ * 64 * 8192}")
        A.vmem(f"buffer_load_dword v{T4}, v{TW}, s[{SW_}:{SW_+3}], s3 offen", w={T4}, r={TW})
        A.vmem(f"buffer_load_dword v{T5}, v{TX}, s[{SX}:{SX+3}], s9 offen offset:{s_ * 128}", w={T5}, r={TX})
    if OPT["roll"]:
        touch1 = touch
        nroll = [2]
        def roll(n):
            for _ in range(n):
                touch1(nroll[0]); nroll[0] += 1
        roll(OPT["pflead"] - 2)
        touch = lambda s_: roll(OPT["pfrate"])
    elif OPT["ld4"]:
        flood()
        ntouch = [0]
        def touch(s_):
            s_ -= OPT["pflead"]
            if s_ < OPT["kvt0"]: return
            for _ in range(OPT["kvtr"]):
                if ntouch[0] >= OPT["kvt"]: return
                ua = 27 + NL + 1 + ntouch[0]
                ia = unit_info(ua); ib = unit_info(ua + 1)
                A.salu(f"s_cmp_lt_u32 s{sW}, 2")
                A.salu(f"s_mov_b32 s3, {ib[1] - 16384}")
                A.salu(f"s_cselect_b32 s3, {ia[1]}, s3")
                A.salu(f"s_cselect_b32 s60, s{ia[2]}, s{ib[2]}")
                A.salu(f"s_cselect_b32 s61, s{ia[2]+1}, s{ib[2]+1}")
                A.salu(f"s_mov_b32 s62, s{ia[2]+2}")
                A.salu(f"s_mov_b32 s63, s{ia[2]+3}")
                A.salu(f"s_add_u32 s3, s3, s{sKVB}")
                A.vmem(f"buffer_load_dword v{T4}, v{TW}, s[60:63], s3 offen", w={T4}, r={TW})
                ntouch[0] += 2
    if not OPT["ld4"]:
        for s_ in range(2, OPT["pflead"]): touch(s_)
    QA = [S, O]
    FBW = [P, QB]; FBX = [P + 16, QB + 16]
    AW = [FR, FR + 4]; AX = FR + 8
    def qaddr(s):
        u0 = 3 * s
        return (addr_items([AX + i for i in range(4)], BX, unit_slot[u0], [0, 32, 64, 96]) +
                addr_items([AW[0] + i for i in range(4)], BW, unit_slot[u0 + 1], [0, 64, 128, 192]) +
                addr_items([AW[1] + i for i in range(4)], BW, unit_slot[u0 + 2], [0, 64, 128, 192]))
    def qreads(ks):
        A.ds_read_b128(FBX[ks % 2], AX + ks)
        last = A.ds_read_b128(FBX[ks % 2] + 4, AX + ks, 4096)
        for t in range(4):
            for j in range(2):
                last = A.ds_read_tr(FBW[ks % 2] + 4 * t + 2 * j, AW[ks // 2] + t, ((ks % 2) * 16 + 4 * j) * 512)
        return last
    for it in qaddr(0): it()
    A.barrier()
    PF.stamp("q0")
    pend = qreads(0)
    touch(OPT["pflead"])
    for s in range(9):
        for ks in range(4):
            A.wait_ds(pend)
            if ks < 3: pend = qreads(ks + 1)
            nxt = qaddr(s + 1) if (ks == 3 and s < 8) else []
            m = 0
            for t in range(4):
                for r2 in range(2):
                    A.mfma(QA[r2] + 16 * t, FBW[ks % 2] + 4 * t, FBX[ks % 2] + 4 * r2, "zero" if (s == 0 and ks == 0) else None)
                    if nxt:
                        if m < 2:
                            for it in nxt[6 * m: 6 * m + 6]: it()
                        if m == 1:
                            A.barrier()
                            PF.stamp(f"q{s+1}")
                            pend = qreads(0)
                        if m == 3: touch(s + 1 + OPT["pflead"])
                    m += 1
    A.salu(f"s_lshr_b32 s3, s{sW}, 1")
    A.salu(f"s_cmp_eq_u32 s3, 0")
    A.salu(f"s_cselect_b32 s3, {xch[0]}, {xch[1]}")
    A.salu(f"s_lshl_b32 s3, s3, 14")
    A.salu(f"s_and_b32 s{sT}, s{sW}, 1")
    A.salu(f"s_lshl_b32 s{sT}, s{sT}, 13")
    A.salu(f"s_add_u32 s3, s3, s{sT}")
    V(f"v_lshlrev_b32 v{T6}, 4, v{L}", w={T6}, r={L})
    V(f"v_add_u32 v{T6}, s3, v{T6}", w={T6}, r={T6})
    for i in range(64):
        V(f"v_mul_f32 v{O+i}, s{sC}, v{O+i}", w={O + i}, r={O + i})
    for q in range(32):
        V(f"v_cvt_pk_bf16_f32 v{P+q}, v{O+2*q}, v{O+2*q+1}", w={P + q}, r={O + 2 * q, O + 2 * q + 1})
        if q % 4 == 3:
            A.ds_write_b128(T6, P + q - 3, (q // 4) * 1024)
    for i in range(64):
        V(f"v_mul_f32 v{S+i}, s{sC}, v{S+i}", w={S + i}, r={S + i})
    for q in range(32):
        V(f"v_cvt_pk_bf16_f32 v{QB+q}, v{S+2*q}, v{S+2*q+1}", w={QB + q}, r={S + 2 * q, S + 2 * q + 1})
    A.wait_ds_all()
    A.waitcnt(vm=0)
    A.vm_done = A.nvm
    if OPT["ld4"]:
        A.nvm, A.vm_done = ldr_vm
    A.label("K1_ATT")
    A.win = []
    A.salu("s_nop 4")

    SETA = [AD + i for i in range(8)]
    SETB = [XO, XO + 1, WO, WO + 1, BW, BX, T4, T5]
    kx = [32 * ks for ks in range(8)]
    vx = [(t << 6) ^ (32 * jj) for t in range(4) for jj in range(2)]
    SB = lambda h: S + 32 * (h % 2)
    PB = lambda h: P + 16 * (h % 2)
    phases = [("qk", 0)] + [x for h in range(7) for x in (("qk", h + 1), ("pv", h))] + [("pv", 7)]
    pset = {}
    for ph in phases:
        pset[ph] = SETA if ph[0] == "qk" else SETB
    pset[("qk", 0)] = SETB; pset[("pv", 7)] = SETA
    punit = lambda ph: UK[ph[1]] if ph[0] == "qk" else UV[ph[1]]
    def paddr(ph):
        u = punit(ph)
        return addr_items(pset[ph], BK if ph[0] == "qk" else BV, unit_slot[u], kx if ph[0] == "qk" else vx)
    mf = [(ph, i) for ph in phases for i in range(16)]
    syncJ = list(range(0, 6, OPT["bstep"]))
    sync_pos = [phases.index(("pv", j)) * 16 + 12 for j in syncJ]
    first_read = {}
    for n, (ph, i) in enumerate(mf):
        first_read.setdefault(punit(ph), max(n - 4, -1))
    last_read = {}
    for n, (ph, i) in enumerate(mf):
        last_read[punit(ph)] = n - 4
    def publish_set(pos_from, pos_to):
        return [u for u, fr in first_read.items() if pos_from <= fr < pos_to]
    freed = set()
    dmaq = []
    def refill_att():
        while nkv[0] < 16 and free:
            dmaq.extend(dma_items(27 + nkv[0])); nkv[0] += 1

    pub = publish_set(-1, sync_pos[0])
    A.wait_vm(max(unit_last_vm[u] for u in pub))
    A.barrier()
    PF.stamp("a0")
    for u in stage_units[8]: free.append(unit_slot[u])
    A.salu(f"s_cmp_lt_u32 s{sW}, 4")
    A.salu(f"s_cbranch_scc1 K1_QGOT")
    if staged:
        A.salu(f"s_cmp_lt_u32 s{sW}, 6")
        A.salu(f"s_cbranch_scc1 K1_NODUMP")
        while staged:
            u, r_ = staged.pop(0)
            dump_unit(u, r_)
        A.label("K1_NODUMP")
    refill_att()
    A.salu(f"s_bfe_u32 s3, s{sW}, 0x10001")
    A.salu(f"s_cmp_eq_u32 s3, 0")
    A.salu(f"s_cselect_b32 s3, {xch[0]}, {xch[1]}")
    A.salu(f"s_lshl_b32 s3, s3, 14")
    A.salu(f"s_and_b32 s{sT}, s{sW}, 1")
    A.salu(f"s_lshl_b32 s{sT}, s{sT}, 13")
    A.salu(f"s_add_u32 s3, s3, s{sT}")
    V(f"v_lshlrev_b32 v{T6}, 4, v{L}", w={T6}, r={L})
    V(f"v_add_u32 v{T6}, s3, v{T6}", w={T6}, r={T6})
    for q in range(8):
        A.ds_read_b128(QB + 4 * q, T6, q * 1024)
    A.wait_ds_all()
    A.label("K1_QGOT")
    A.salu("s_nop 1")
    for it in paddr(("qk", 0)) + paddr(("qk", 1)): it()

    TT = [T0, T1, T2, T3]
    def max_items(regs, first, final):
        it = []
        r = list(regs)
        if first:
            a = r[:3]; b = r[3:6]; r = r[6:]
            it.append(lambda a=a: V(f"v_max3_f32 v{MX}, v{a[0]}, v{a[1]}, v{a[2]}", w={MX}, r=set(a)))
            it.append(lambda b=b: V(f"v_max3_f32 v{MX2}, v{b[0]}, v{b[1]}, v{b[2]}", w={MX2}, r=set(b)))
        k = 0
        while r:
            a = r[:2]; r = r[2:]
            d = MX if k % 2 == 0 else MX2
            it.append(lambda a=a, d=d: V(f"v_max3_f32 v{d}, v{d}, v{a[0]}, v{a[1]}", w={d}, r={d} | set(a)))
            k += 1
        if final:
            it.append(lambda: V(f"v_max_f32 v{MX}, v{MX}, v{MX2}", w={MX}, r={MX, MX2}))
            it.append(lambda: V(f"v_mov_b32 v{MX2}, v{MX}", w={MX2}, r={MX}))
            it.append(lambda: V(f"v_permlane32_swap_b32 v{MX}, v{MX2}", w={MX, MX2}, r={MX, MX2}, kind="perm"))
            it.append(lambda: V(f"v_max_f32 v{MX}, v{MX}, v{MX2}", w={MX}, r={MX, MX2}))
        return it
    def sm_items(h, lo, hi, sub):
        it = []
        sb, pb = SB(h), PB(h)
        if sub:
            it.append(lambda: V(f"v_sub_f32 v{sb+lo}, v{sb+lo}, v{MX}", w={sb + lo}, r={sb + lo, MX}))
        for e in range(lo, hi + 2):
            if sub and e + 1 < hi:
                it.append(lambda e=e: V(f"v_sub_f32 v{sb+e+1}, v{sb+e+1}, v{MX}", w={sb + e + 1}, r={sb + e + 1, MX}))
            if e < hi:
                it.append(lambda e=e: V(f"v_exp_f32 v{TT[e%4]}, v{sb+e}", w={TT[e % 4]}, r={sb + e}, kind="trans"))
            if lo <= e - 1 < hi:
                p = e - 1; acc = SUMA if p % 2 == 0 else SUMB
                if p < 2:
                    it.append(lambda p=p, acc=acc: V(f"v_mov_b32 v{acc}, v{TT[p%4]}", w={acc}, r={TT[p % 4]}))
                else:
                    it.append(lambda p=p, acc=acc: V(f"v_add_f32 v{acc}, v{acc}, v{TT[p%4]}", w={acc}, r={acc, TT[p % 4]}))
            if e - 2 >= lo and (e - 2) % 2 == 0 and e - 1 < hi:
                p = e - 2
                it.append(lambda p=p: V(f"v_cvt_pk_bf16_f32 v{pb+p//2}, v{TT[p%4]}, v{TT[(p+1)%4]}", w={pb + p // 2}, r={TT[p % 4], TT[(p + 1) % 4]}))
        return it
    def negm_items():
        return [lambda i=i: V(f"v_sub_f32 v{NEGM+i}, 0, v{MX}", w={NEGM + i}, r={MX}) for i in range(16)]
    def check(h):
        V(f"v_add_f32 v{SUMA}, v{SUMA}, v{SUMB}", w={SUMA}, r={SUMA, SUMB})
        if h > 0:
            V(f"v_cmp_nge_f32 vcc, s{sTHR}, v{SUMA}", r={SUMA}, sw={"vcc"})
            A.salu("s_nop 1")
            A.salu(f"s_cbranch_vccnz K1_SLOW{h}")
            A.label(f"K1_BACK{h}")
        V(f"v_add_f32 v{LSUM}, v{LSUM}, v{SUMA}", w={LSUM}, r={LSUM, SUMA})

    def side_for(ph):
        kind, h = ph
        if ph == ("qk", 0):
            return [], []
        if kind == "qk":
            hh = h - 1
            if hh == 0:
                main = max_items([SB(0) + i for i in range(32)], True, True) + sm_items(0, 0, 32, True)
            else:
                main = sm_items(hh, 16, 32, hh == 1)
            return main, paddr(("pv", hh))
        if h == 7: return [], []
        if h == 6:
            return sm_items(7, 0, 32, False), paddr(("pv", 7))
        main = sm_items(h + 1, 0, 16, h == 0)
        if h == 0: main = negm_items() + main
        return main, paddr(("qk", h + 2))

    rid = {}
    def issue_read(n):
        ph, i = mf[n]
        st = pset[ph]; fr = FR + 4 * (n % 4)
        if ph[0] == "qk":
            rid[n] = A.ds_read_b128(fr, st[i % 8], (i // 8) * 8192)
        else:
            g, t = i // 4, i % 4
            A.ds_read_tr(fr, st[2 * t], g * 4096)
            rid[n] = A.ds_read_tr(fr + 2, st[2 * t + 1], g * 4096 + 2048)
    for n in range(4): issue_read(n)
    gap = 0
    for n, (ph, i) in enumerate(mf):
        kind, h = ph
        if i == 0:
            main, adr = side_for(ph)
            plan = [[] for _ in range(16)]
            for k, it in enumerate(adr): plan[k * 12 // max(len(adr), 1)].append(it)
            s0 = 1 if ph == ("qk", 1) else 0
            for k, it in enumerate(main): plan[s0 + k * (16 - s0) // len(main)].append(it)
        A.wait_ds(rid[n])
        fr = FR + 4 * (n % 4)
        if kind == "qk":
            kt, ks = i // 8, i % 8
            c = None
            if ks == 0: c = "zero" if h <= 1 else NEGM
            A.mfma(SB(h) + 16 * kt, fr, QB + 4 * ks, c)
        else:
            g, t = i // 4, i % 4
            A.mfma(O + 16 * t, fr, PB(h) + 4 * g, "zero" if (h == 0 and g == 0) else None)
        if n in sync_pos:
            k = sync_pos.index(n)
            pub = publish_set(n, sync_pos[k + 1] if k + 1 < len(sync_pos) else 10**9)
            while dmaq: dmaq.pop(0)()
            A.wait_ds_all()
            A.wait_vm(max(unit_last_vm[u] for u in pub))
            A.barrier()
            PF.stamp(f"x{h}")
            if k == 0: free.extend(xch)
            for u, lr in last_read.items():
                if lr < n and u not in freed:
                    freed.add(u); free.append(unit_slot[u])
            refill_att()
            if OPT["wopf"] and h == OPT["wopf"] - 1:
                A.salu("s_load_dwordx2 s[60:61], s[0:1], 32")
                A.salu("s_load_dwordx2 s[62:63], s[0:1], 72")
                A.salu(f"s_lshl_b32 s3, s{sB}, 4")
                A.salu(f"s_add_u32 s3, s3, s{sKVH}")
                A.salu(f"s_mul_i32 s3, s3, 288")
                A.salu(f"s_lshl_b32 s{sT}, s{sW}, 6")
                A.salu(f"s_min_u32 s{sT}, s{sT}, 224")
                A.salu(f"s_add_u32 s3, s3, s{sT}")
                A.salu(f"s_lshl_b32 s3, s3, 7")
                V(f"v_mbcnt_lo_u32_b32 v{T6}, -1, 0", w={T6})
                V(f"v_mbcnt_hi_u32_b32 v{T6}, -1, v{T6}", w={T6}, r={T6})
                V(f"v_lshlrev_b32 v{T6}, 7, v{T6}", w={T6}, r={T6})
                A.salu("s_waitcnt lgkmcnt(0)")
                A.salu(f"s_cmp_eq_u32 s{sBLK}, 0")
                A.salu("s_cselect_b32 s60, s60, s62")
                A.salu("s_cselect_b32 s61, s61, s63")
                A.salu("s_and_b32 s61, s61, 0xffff")
                A.salu(f"s_mov_b32 s62, {4096*576*2}")
                A.salu("s_mov_b32 s63, 0x00020000")
                A.vmem(f"buffer_load_dword v{T7}, v{T6}, s[60:63], s3 offen", w={T7}, r={T6})
        if n + 4 < len(mf): issue_read(n + 4)
        for it in plan[i]: it()
        gap += 1
        if dmaq and gap >= OPT["dmagap"]:
            dmaq.pop(0)(); gap = 0
        if i == 15:
            if kind == "qk" and h >= 1: check(h - 1)
            if ph == ("pv", 6): check(7)
    assert not dmaq
    PF.stamp("pv7")
    V(f"v_mov_b32 v{T0}, v{LSUM}", w={T0}, r={LSUM})
    V(f"v_permlane32_swap_b32 v{T0}, v{LSUM}", w={T0, LSUM}, r={T0, LSUM}, kind="perm")
    V(f"v_add_f32 v{T0}, v{T0}, v{LSUM}", w={T0}, r={T0, LSUM})
    V(f"v_rcp_f32 v{T0}, v{T0}", w={T0}, r={T0}, kind="trans")
    A.salu(f"s_cmp_eq_u32 s{sRT}, 3")
    A.salu("s_cbranch_scc0 K1_NOMASK")
    A.salu("s_mov_b32 exec_lo, 0xffff")
    A.salu("s_mov_b32 exec_hi, 0xffff")
    A.label("K1_NOMASK")
    for f in range(8):
        b0 = O + 8 * f
        for i in range(8):
            V(f"v_mul_f32 v{b0+i}, v{T0}, v{b0+i}", w={b0 + i}, r={T0, b0 + i})
        d = P + 4 * f
        for q in range(4):
            V(f"v_cvt_pk_bf16_f32 v{d+q}, v{b0+2*q}, v{b0+2*q+1}", w={d + q}, r={b0 + 2 * q, b0 + 2 * q + 1})
        A.vmem(f"buffer_store_dwordx4 {vname(d,4)}, v{OST}, s[{SO}:{SO+3}], s{sOB} offen offset:{f*512}{' nt' if OPT['ntst'] else ''}", r=vr(d, 4) | {OST}, storedata=vr(d, 4))
    PF.dump(24, sW, 0)
    A.label("K1_END")
    A.salu("s_endpgm")
    for h in range(1, 8):
        A.label(f"K1_SLOW{h}")
        A.flush_hazards()
        sb = SB(h)
        for it in max_items([sb + i for i in range(32)], True, True): it()
        V(f"v_max_f32 v{MX}, 0, v{MX}", w={MX}, r={MX})
        V(f"v_sub_f32 v{MX2}, 0, v{MX}", w={MX2}, r={MX})
        V(f"v_exp_f32 v{MX2}, v{MX2}", w={MX2}, r={MX2}, kind="trans")
        for i in range(64):
            V(f"v_mul_f32 v{O+i}, v{MX2}, v{O+i}", w={O + i}, r={MX2, O + i})
        V(f"v_mul_f32 v{LSUM}, v{MX2}, v{LSUM}", w={LSUM}, r={MX2, LSUM})
        for i in range(16):
            V(f"v_sub_f32 v{NEGM+i}, v{NEGM+i}, v{MX}", w={NEGM + i}, r={NEGM + i, MX})
        if h < 7:
            s2 = SB(h + 1)
            for i in range(32):
                V(f"v_sub_f32 v{s2+i}, v{s2+i}, v{MX}", w={s2 + i}, r={s2 + i, MX})
        for it in sm_items(h, 0, 32, True): it()
        V(f"v_add_f32 v{SUMA}, v{SUMA}, v{SUMB}", w={SUMA}, r={SUMA, SUMB})
        A.flush_hazards()
        A.salu(f"s_branch K1_BACK{h}")

def gen_k2(A):
    V = A.valu
    T0, T1, T2, T3, T4, T5, T6, T7 = range(0, 8)
    WOFF = 8
    OOFF = 12
    BA = 13
    RED = 15
    AF = 16
    OF = 48
    ACC = 112
    sBLK, sMT, sNT, sW = 26, 27, 4, 5
    SW_, SO, SOUT = 28, 32, 36
    sWL, sWB, sO0, sO1, sT = 48, 49, 50, 51, 52
    A.win = []
    A.nds = A.ds_done = A.nvm = A.vm_done = 0
    A.raw(f".p2align 8\n.globl k2_kernel\n.type k2_kernel,@function\nk2_kernel:")
    A.salu("s_cmp_ge_u32 s2, 256")
    A.salu("s_cbranch_scc1 K2_END")
    A.salu("s_and_b32 s3, s2, 7")
    A.salu("s_lshl_b32 s3, s3, 5")
    A.salu("s_lshr_b32 s6, s2, 3")
    A.salu("s_add_u32 s3, s3, s6")
    A.salu("s_cmp_ge_u32 s3, 252")
    A.salu("s_cbranch_scc1 K2_END")
    A.salu("s_load_dwordx2 s[8:9], s[0:1], 32")
    A.salu("s_load_dwordx2 s[10:11], s[0:1], 72")
    A.salu("s_load_dwordx2 s[12:13], s[0:1], 80")
    A.salu("s_load_dwordx2 s[14:15], s[0:1], 96")
    A.salu("s_cmp_ge_u32 s3, 126")
    A.salu(f"s_cselect_b32 s{sBLK}, 1, 0")
    A.salu(f"s_mul_i32 s6, s{sBLK}, 126")
    A.salu("s_sub_u32 s3, s3, s6")
    A.salu("s_mul_i32 s6, s3, 57")
    A.salu(f"s_lshr_b32 s{sMT}, s6, 9")
    A.salu(f"s_mul_i32 s6, s{sMT}, 9")
    A.salu(f"s_sub_u32 s{sNT}, s3, s6")
    V(f"v_lshrrev_b32 v{T1}, 6, v0", w={T1}, r={0})
    A._emit(I(f"v_readfirstlane_b32 s{sW}, v{T1}", "rdlane", r={T1}, sw={sW}))
    V(f"v_and_b32 v{T0}, 63, v0", w={T0}, r={0})
    L = T0
    A.salu(f"s_lshl_b32 s{sWL}, s{sW}, 14", sr={sW})
    A.salu(f"s_mul_i32 s{sWB}, s{sW}, {512*1152}", sr={sW})
    A.salu(f"s_lshl_b32 s6, s{sNT}, 7")
    A.salu(f"s_add_u32 s{sWB}, s{sWB}, s6")
    A.salu(f"s_mul_i32 s{sO0}, s{sBLK}, {O_BLK}")
    A.salu(f"s_lshl_b32 s6, s{sMT}, 19")
    A.salu(f"s_add_u32 s{sO0}, s{sO0}, s6")
    A.salu(f"s_lshl_b32 s6, s{sW}, 14")
    A.salu(f"s_add_u32 s{sO0}, s{sO0}, s6")
    A.salu(f"s_add_u32 s{sO1}, s{sO0}, {2*131072}")
    V(f"v_lshrrev_b32 v{T1}, 3, v{L}", w={T1}, r={L})
    V(f"v_mul_u32_u24 v{T1}, 1152, v{T1}", w={T1}, r={T1})
    V(f"v_bfe_u32 v{T2}, v{L}, 4, 1", w={T2}, r={L})
    V(f"v_lshlrev_b32 v{T3}, 2, v{T2}", w={T3}, r={T2})
    V(f"v_and_b32 v{T4}, 7, v{L}", w={T4}, r={L})
    V(f"v_xor_b32 v{T4}, v{T4}, v{T3}", w={T4}, r={T4, T3})
    V(f"v_lshl_add_u32 v{WOFF}, v{T4}, 4, v{T1}", w={WOFF}, r={T4, T1})
    for i in range(1, 4):
        V(f"v_add_u32 v{WOFF+i}, {9216*i}, v{WOFF}", w={WOFF + i}, r={WOFF})
    V(f"v_lshrrev_b32 v{T1}, 5, v{L}", w={T1}, r={L})
    V(f"v_bfe_u32 v{T3}, v{L}, 2, 2", w={T3}, r={L})
    V(f"v_and_b32 v{T4}, 3, v{L}", w={T4}, r={L})
    V(f"v_lshlrev_b32 v{T6}, 17, v{T2}", w={T6}, r={T2})
    V(f"v_lshl_add_u32 v{T6}, v{T1}, 8, v{T6}", w={T6}, r={T1, T6})
    V(f"v_and_b32 v{T7}, 15, v{L}", w={T7}, r={L})
    V(f"v_lshl_add_u32 v{OOFF}, v{T7}, 4, v{T6}", w={OOFF}, r={T7, T6})
    V(f"v_lshl_add_u32 v{T6}, v{T1}, 2, v{T3}", w={T6}, r={T1, T3})
    V(f"v_lshlrev_b32 v{T6}, 7, v{T6}", w={T6}, r={T6})
    V(f"v_lshrrev_b32 v{T7}, 1, v{T4}", w={T7}, r={T4})
    V(f"v_lshl_add_u32 v{T7}, v{T2}, 1, v{T7}", w={T7}, r={T2, T7})
    V(f"v_lshrrev_b32 v{T5}, 1, v{T3}", w={T5}, r={T3})
    V(f"v_lshlrev_b32 v{T5}, 2, v{T5}", w={T5}, r={T5})
    V(f"v_xor_b32 v{T7}, v{T7}, v{T5}", w={T7}, r={T7, T5})
    V(f"v_lshl_add_u32 v{T6}, v{T7}, 4, v{T6}", w={T6}, r={T7, T6})
    V(f"v_and_b32 v{T7}, 1, v{T4}", w={T7}, r={T4})
    V(f"v_lshl_add_u32 v{T6}, v{T7}, 3, v{T6}", w={T6}, r={T7, T6})
    V(f"v_add_u32 v{BA}, s{sWL}, v{T6}", w={BA}, r={T6})
    V(f"v_xor_b32 v{BA+1}, 64, v{BA}", w={BA + 1}, r={BA})
    V(f"v_lshlrev_b32 v{RED}, 4, v{L}", w={RED}, r={L})
    A.waitcnt(lgkm=0)
    A.salu(f"s_cmp_eq_u32 s{sBLK}, 0")
    A.salu("s_cselect_b32 s8, s8, s10")
    A.salu("s_cselect_b32 s9, s9, s11")
    srd(A, SW_, 8, 4096 * 576 * 2)
    srd(A, SO, 14, 2 * O_BLK)
    srd(A, SOUT, 12, 896 * 1152 * 2)

    NU = 16; DEPTH = 4
    last_vm = {}
    def issue(u):
        slot = u % DEPTH
        A.salu(f"s_add_u32 s{sT}, s{sWB}, {u * 32 * 1152}")
        for i in range(4):
            A.salu(f"s_add_u32 m0, s{sWL}, {slot * 4096 + i * 1024}", m0w=True)
            A.vmem(f"buffer_load_dwordx4 v{WOFF+i}, s[{SW_}:{SW_+3}], s{sT} offen{' nt' if OPT['ntwo'] else ''} lds", kind="dma", r={WOFF + i}, m0r=True)
        for ks in range(2):
            for tm in range(2):
                d = OF + slot * 16 + (ks * 2 + tm) * 4
                off = (2 * u + ks) * 512
                sb = sO0 if tm == 0 else sO1
                if off >= 4096:
                    A.salu(f"s_add_u32 s{sT}, s{sb}, {off & ~4095}")
                    k = A.vmem(f"buffer_load_dwordx4 {vname(d,4)}, v{OOFF}, s[{SO}:{SO+3}], s{sT} offen offset:{off & 4095}{' nt' if OPT['nto'] else ''}", w=vr(d, 4), r={OOFF})
                else:
                    k = A.vmem(f"buffer_load_dwordx4 {vname(d,4)}, v{OOFF}, s[{SO}:{SO+3}], s{sb} offen offset:{off}{' nt' if OPT['nto'] else ''}", w=vr(d, 4), r={OOFF})
        last_vm[u] = k
    def dsreads(u):
        slot = u % DEPTH
        ab = AF + (u % 2) * 16
        for ks in range(2):
            for tn in range(2):
                for j in range(2):
                    k = A.ds_read_tr(ab + (ks * 2 + tn) * 4 + 2 * j, BA + tn, slot * 4096 + (16 * ks + 8 * j) * 128)
        return k
    PF = Prof(A, 1)
    PF.stamp("start")
    for u in range(DEPTH): issue(u)
    A.wait_vm(last_vm[0])
    pend = dsreads(0)
    for u in range(NU):
        A.wait_ds(pend)
        if u + 1 < NU:
            A.wait_vm(last_vm[u + 1])
            pend = dsreads(u + 1)
        ab = AF + (u % 2) * 16
        ob = OF + (u % DEPTH) * 16
        for ks in range(2):
            for tn in range(2):
                for tm in range(2):
                    c = "zero" if (u == 0 and ks == 0) else None
                    A.mfma(ACC + (tn * 2 + tm) * 16, ab + (ks * 2 + tn) * 4, ob + (ks * 2 + tm) * 4, c)
        if u + DEPTH < NU: issue(u + DEPTH)
        PF.stamp(f"u{u}")
    A.wait_ds_all()
    A.barrier()
    V(f"v_add_u32 v{T1}, s{sWL}, v{RED}", w={T1}, r={RED})
    for q in range(16):
        A.ds_write_b128(T1, ACC + 4 * q, q * 1024)
    A.wait_ds_all()
    A.barrier()
    A.salu(f"s_lshl_b32 s6, s{sW}, 11")
    V(f"v_add_u32 v{T1}, s6, v{RED}", w={T1}, r={RED})
    V(f"v_add_u32 v{T2}, 0x10000, v{T1}", w={T2}, r={T1})
    R = OF
    for ww in range(8):
        for q in range(2):
            A.ds_read_b128(R + (ww * 2 + q) * 4, T1 if ww < 4 else T2, (ww % 4) * 16384 + q * 1024)
            if ww == 6 and q == 1: pass
        if ww == 5:
            A.wait_ds_all()
    A.wait_ds_all()
    for ww in range(1, 8):
        for i in range(8):
            V(f"v_add_f32 v{R+i}, v{R+i}, v{R+ww*8+i}", w={R + i}, r={R + i, R + ww * 8 + i})
    for q in range(4):
        V(f"v_cvt_pk_bf16_f32 v{AF+q}, v{R+2*q}, v{R+2*q+1}", w={AF + q}, r={R + 2 * q, R + 2 * q + 1})
    A.salu(f"s_lshr_b32 s6, s{sW}, 1")
    A.salu("s_and_b32 s7, s6, 1")
    A.salu("s_lshr_b32 s6, s6, 1")
    A.salu(f"s_lshl_b32 s3, s{sMT}, 6")
    A.salu("s_lshl_b32 s7, s7, 5")
    A.salu("s_add_u32 s3, s3, s7")
    A.salu("s_mul_i32 s3, s3, 2304")
    A.salu(f"s_mul_i32 s7, s{sBLK}, 1152")
    A.salu("s_add_u32 s3, s3, s7")
    A.salu(f"s_lshl_b32 s7, s{sNT}, 7")
    A.salu("s_add_u32 s3, s3, s7")
    A.salu("s_lshl_b32 s7, s6, 6")
    A.salu("s_add_u32 s3, s3, s7")
    A.salu(f"s_and_b32 s7, s{sW}, 1")
    A.salu("s_lshl_b32 s7, s7, 5")
    A.salu("s_add_u32 s3, s3, s7")
    V(f"v_and_b32 v{T1}, 31, v{L}", w={T1}, r={L})
    V(f"v_mul_u32_u24 v{T1}, 2304, v{T1}", w={T1}, r={T1})
    V(f"v_lshrrev_b32 v{T2}, 5, v{L}", w={T2}, r={L})
    V(f"v_lshl_add_u32 v{T1}, v{T2}, 3, v{T1}", w={T1}, r={T2, T1})
    A.vmem(f"buffer_store_dwordx2 {vname(AF,2)}, v{T1}, s[{SOUT}:{SOUT+3}], s3 offen", r=vr(AF, 2) | {T1})
    A.vmem(f"buffer_store_dwordx2 {vname(AF+2,2)}, v{T1}, s[{SOUT}:{SOUT+3}], s3 offen offset:16", r=vr(AF + 2, 2) | {T1})
    PF.dump(14, sW, 0)
    A.label("K2_END")
    A.salu("s_endpgm")

def kd(name, vgpr, sgpr):
    return f""".amdhsa_kernel {name}
  .amdhsa_next_free_vgpr {vgpr}
  .amdhsa_next_free_sgpr {sgpr}
  .amdhsa_accum_offset {(vgpr + 3) // 4 * 4}
  .amdhsa_group_segment_fixed_size 0
  .amdhsa_kernarg_size 104
  .amdhsa_user_sgpr_count 2
  .amdhsa_user_sgpr_kernarg_segment_ptr 1
  .amdhsa_system_sgpr_workgroup_id_x 1
.end_amdhsa_kernel
"""

def main():
    A = Asm()
    gen_k1(A)
    gen_k2(A)
    head = """; Two-launch GQA block pair: k1 = Q projection + attention (o -> ws), k2 = output projection.
; @launch kernel=k1_kernel grid=(256,1,1) block=(512,1,1) lds=163840
; @launch kernel=k2_kernel grid=(256,1,1) block=(512,1,1) lds=131072
.amdgcn_target "amdgcn-amd-amdhsa--gfx950"
.text
"""
    tail = '\n.section .rodata,"a"\n.p2align 6\n' + kd("k1_kernel", 256, 102 if OPT["prof"] else 64) + ".p2align 6\n" + kd("k2_kernel", 176, 102 if OPT["prof"] else 64)
    txt = head + A.text() + tail
    if "CODE_BYTES" in txt:
        import subprocess, re
        open("_p1.s", "w").write(txt.replace("CODE_BYTES", "0x12345"))
        subprocess.check_call(["clang", "-x", "assembler", "-target", "amdgcn-amd-amdhsa", "-mcpu=gfx950", "-c", "_p1.s", "-o", "_p1.o"])
        o = subprocess.check_output(["llvm-objdump", "-h", "_p1.o"]).decode()
        n = int(re.search(r"\.text\s+([0-9a-f]+)", o).group(1), 16)
        txt = txt.replace("CODE_BYTES", str(n))
    open(sys.argv[1], "w").write(txt)
    print("nops inserted:", A.nops_inserted, "lines:", len(A.out))

main()
```

```python
import sys, math
sys.path.insert(0, "gen")
from asmlib import *

NAME = "concat_heads__gqa_block_cached__gqa_block_cached__near_ridge"
OPT = dict(prio=1, prof=0, ntkv=1, ntw=0, ntx=0, ntwo=0, nto=0, ntst=0, nq=6, kvrate=1, l2pf=1, wopf=4, fat=1, bstep=1, dmagap=1, pflead=4, kv0=2, nstg=4, kvt=0, ld4=1, cpf=0, mid=0, kvt0=1, kvtr=1, roll=0, pfrate=1, kvs=0, rot=0, stag=0, qi=0)
for a in sys.argv[2:]:
    k, v = a.split("="); OPT[k] = int(v)

O_BLK = 896 * 4096 * 2
SLOT = 16384
NSLOT = 10

def srd(A, d, base, nbytes):
    A.salu(f"s_mov_b32 s{d}, s{base}")
    A.salu(f"s_and_b32 s{d+1}, s{base+1}, 0xffff")
    A.salu(f"s_mov_b32 s{d+2}, {nbytes}")
    A.salu(f"s_mov_b32 s{d+3}, 0x00020000")

class Prof:
    def __init__(self, A, kidx):
        self.A = A; self.n = 0; self.names = []; self.kidx = kidx
    def stamp(self, name):
        if not OPT["prof"]: return
        A = self.A
        assert self.n < 30
        A.salu("s_waitcnt lgkmcnt(0)")
        A.ds_done = A.nds
        A.salu("s_memtime s[96:97]")
        A.salu("s_waitcnt lgkmcnt(0)")
        A.salu(f"s_mov_b32 s{64+self.n}, s96")
        if self.n == 0:
            A.salu("s_memrealtime s[98:99]")
            A.salu("s_waitcnt lgkmcnt(0)")
        self.n += 1; self.names.append(name)
    def dump(self, wsreg, sW, tmp):
        if not OPT["prof"]: return
        A = self.A
        self.stamp("end")
        A.salu("s_memrealtime s[96:97]")
        A.salu("s_waitcnt lgkmcnt(0)")
        A.salu("s_mov_b64 exec, -1")
        A.salu("s_nop 4")
        for i in range(self.n):
            A.salu(f"v_writelane_b32 v{tmp}, s{64+i}, {i}")
        A.salu("s_getreg_b32 s97, hwreg(HW_REG_HW_ID)")
        A.salu(f"v_writelane_b32 v{tmp}, s97, 29")
        A.salu(f"v_writelane_b32 v{tmp}, s98, 30")
        A.salu(f"v_writelane_b32 v{tmp}, s96, 31")
        A.salu(f"s_mov_b32 s60, s{wsreg}")
        A.salu(f"s_and_b32 s61, s{wsreg+1}, 0xffff")
        A.salu("s_mov_b32 s62, 0x10000000")
        A.salu("s_mov_b32 s63, 0x00020000")
        A.salu("s_lshl_b32 s96, s2, 3")
        A.salu(f"s_add_u32 s96, s96, s{sW}")
        A.salu("s_lshl_b32 s96, s96, 7")
        A.salu(f"s_add_u32 s96, s96, {255*1024*1024 + self.kidx*512*1024}")
        A.salu(f"v_mbcnt_lo_u32_b32 v{tmp+1}, -1, 0")
        A.salu(f"v_mbcnt_hi_u32_b32 v{tmp+1}, -1, v{tmp+1}")
        A.salu(f"v_lshlrev_b32 v{tmp+1}, 2, v{tmp+1}")
        A.salu("s_mov_b64 exec, 0xffffffff")
        A.salu("s_nop 4")
        A.salu(f"buffer_store_dword v{tmp}, v{tmp+1}, s[60:63], s96 offen")
        print("stamps k%d:" % self.kidx, self.names)

def gen_k1(A):
    V = A.valu
    T0, T1, T2, T3, T4, T5, T6, T7 = range(0, 8)
    XO, WO, KO = 8, 10, 12
    BW, BX, BK, BV = 14, 15, 16, 17
    LSUM, OST = 18, 19
    SUMA, SUMB, MX, MX2 = 20, 21, 22, 23
    AD = 24
    FR = 32
    NEGM = 48
    QB = 64
    S = 96
    O = 160
    P = 224
    sBLK, sKVH, sB, sW, sHL, sRT = 26, 27, 4, 5, 6, 7
    SX, SW_, SK, SV, SO = 28, 32, 36, 40, 44
    sWL, sXB, sWB, sKVB, sT, sOB = 48, 49, 50, 51, 52, 53
    sMASK, sTHR, sC = 54, 56, 57
    sW3, sWL4, sT2 = 58, 59, 55

    A.raw(f".p2align 8\n.globl k1_kernel\n.type k1_kernel,@function\nk1_kernel:\nK1_BEGIN:")
    A.salu("s_cmp_ge_u32 s2, 256")
    A.salu("s_cbranch_scc1 K1_END")
    A.salu("s_load_dwordx8 s[8:15], s[0:1], 0")
    A.salu("s_load_dwordx8 s[16:23], s[0:1], 40")
    A.salu("s_load_dwordx2 s[24:25], s[0:1], 96")
    if OPT["cpf"]:
        A.salu("s_getpc_b64 s[60:61]")
        A.salu("s_and_b32 s60, s60, 0xffffff00")
        A.salu("s_and_b32 s61, s61, 0xffff")
        A.salu("s_mov_b32 s62, CODE_BYTES")
        A.salu("s_mov_b32 s63, 0x00020000")
        V(f"v_lshlrev_b32 v{T7}, 7, v0", w={T7}, r={0})
        A.vmem(f"buffer_load_dword v{NEGM+15}, v{T7}, s[60:63], 0 offen", w={NEGM+15}, r={T7})
    A.salu("s_and_b32 s3, s2, 7")
    A.salu(f"s_lshr_b32 s{sB}, s2, 3")
    A.salu(f"s_lshr_b32 s{sBLK}, s3, 2")
    A.salu("s_and_b32 s3, s3, 3")
    A.salu("s_lshl_b32 s3, s3, 2")
    A.salu(f"s_and_b32 s{sKVH}, s{sB}, 3")
    A.salu(f"s_add_u32 s{sKVH}, s{sKVH}, s3")
    A.salu(f"s_lshr_b32 s{sB}, s{sB}, 2")
    V(f"v_lshrrev_b32 v{T1}, 6, v0", w={T1}, r={0})
    A._emit(I(f"v_readfirstlane_b32 s{sW}, v{T1}", "rdlane", r={T1}, sw={sW}))
    V(f"v_and_b32 v{T0}, 63, v0", w={T0}, r={0})
    if OPT["fat"]:
        A.salu(f"s_bfe_u32 s{sHL}, s{sW}, 0x10001", sr={sW})
        A.salu(f"s_and_b32 s{sRT}, s{sW}, 1", sr={sW})
        A.salu(f"s_lshl_b32 s{sRT}, s{sRT}, 1")
        A.salu(f"s_lshr_b32 s3, s{sW}, 2", sr={sW})
        A.salu(f"s_add_u32 s{sRT}, s{sRT}, s3")
    else:
        A.salu(f"s_lshr_b32 s{sHL}, s{sW}, 2", sr={sW})
        A.salu(f"s_and_b32 s{sRT}, s{sW}, 3", sr={sW})
    A.salu(f"s_lshl_b32 s{sWL}, s{sW}, 11", sr={sW})
    A.salu(f"s_and_b32 s{sW3}, s{sW}, {3 if OPT['ld4'] else 1}", sr={sW})
    A.salu(f"s_lshl_b32 s{sWL4}, s{sW3}, 11")
    A.salu(f"s_mul_i32 s{sXB}, s{sB}, 129024")
    A.salu(f"s_lshl_b32 s{sWB}, s{sKVH}, 9")
    A.salu(f"s_lshl_b32 s{sKVB}, s{sB}, 4")
    A.salu(f"s_add_u32 s{sKVB}, s{sKVB}, s{sKVH}")
    if OPT["rot"] == 1:
        A.salu(f"s_and_b32 s{sMASK}, s{sKVB}, 7")
    elif OPT["rot"] == 2:
        A.salu(f"s_add_u32 s{sMASK}, s{sKVH}, s{sB}")
        A.salu(f"s_and_b32 s{sMASK}, s{sMASK}, 7")
    elif OPT["rot"] == 3:
        A.salu(f"s_and_b32 s{sMASK}, s{sB}, 7")
    A.salu(f"s_lshl_b32 s{sMASK}, s{sMASK}, 14")
    A.salu(f"s_lshl_b32 s{sKVB}, s{sKVB}, 17")
    A.salu(f"s_mov_b32 s{sTHR}, 0x4b800000")
    c = math.log2(math.e) / math.sqrt(128.0)
    import struct
    cbits = struct.unpack("<I", struct.pack("<f", c))[0]
    A.salu(f"s_mov_b32 s{sC}, {cbits:#x}")
    L = T0
    for q in range(2):
        V(f"v_lshrrev_b32 v{T1}, 3, v{L}", w={T1}, r={L})
        A.salu(f"s_lshl_b32 s3, s{sW3}, 4")
        A.salu(f"s_add_u32 s3, s3, {8*q}")
        V(f"v_add_u32 v{T1}, s3, v{T1}", w={T1}, r={T1})
        V(f"v_mul_u32_u24 v{T1}, 1152, v{T1}", w={T1}, r={T1})
        V(f"v_and_b32 v{T2}, 7, v{L}", w={T2}, r={L})
        V(f"v_lshrrev_b32 v{T3}, 4, v{L}", w={T3}, r={L})
        V(f"v_xor_b32 v{T2}, v{T2}, v{T3}", w={T2}, r={T2, T3})
        if q: V(f"v_xor_b32 v{T2}, 4, v{T2}", w={T2}, r={T2})
        V(f"v_lshl_add_u32 v{XO+q}, v{T2}, 4, v{T1}", w={XO+q}, r={T2, T1})
        V(f"v_lshrrev_b32 v{T3}, 5, v{L}", w={T3}, r={L})
        A.salu(f"s_lshl_b32 s3, s{sW3}, 2")
        A.salu(f"s_add_u32 s3, s3, {2*q}")
        V(f"v_add_u32 v{T1}, s3, v{T3}", w={T1}, r={T3})
        V(f"v_lshlrev_b32 v{T1}, 13, v{T1}", w={T1}, r={T1})
        V(f"v_or_b32 v{T3}, {2*q}, v{T3}", w={T3}, r={T3})
        V(f"v_lshlrev_b32 v{T3}, 2, v{T3}", w={T3}, r={T3})
        V(f"v_and_b32 v{T2}, 31, v{L}", w={T2}, r={L})
        V(f"v_xor_b32 v{T2}, v{T2}, v{T3}", w={T2}, r={T2, T3})
        V(f"v_lshl_add_u32 v{WO+q}, v{T2}, 4, v{T1}", w={WO+q}, r={T2, T1})
        V(f"v_lshrrev_b32 v{T3}, 4, v{L}", w={T3}, r={L})
        A.salu(f"s_lshl_b32 s3, s{sW}, 3")
        A.salu(f"s_add_u32 s3, s3, {4*q}")
        V(f"v_add_u32 v{T1}, s3, v{T3}", w={T1}, r={T3})
        V(f"v_lshlrev_b32 v{T1}, 8, v{T1}", w={T1}, r={T1})
        A.salu(f"s_and_b32 s3, s{sW}, 1")
        A.salu(f"s_lshl_b32 s3, s3, 1")
        A.salu(f"s_or_b32 s3, s3, {q}")
        V(f"v_lshlrev_b32 v{T3}, 2, v{T3}", w={T3}, r={T3})
        V(f"v_or_b32 v{T3}, s3, v{T3}", w={T3}, r={T3})
        V(f"v_and_b32 v{T2}, 15, v{L}", w={T2}, r={L})
        V(f"v_xor_b32 v{T2}, v{T2}, v{T3}", w={T2}, r={T2, T3})
        V(f"v_lshl_add_u32 v{KO+q}, v{T2}, 4, v{T1}", w={KO+q}, r={T2, T1})
    V(f"v_lshrrev_b32 v{T1}, 5, v{L}", w={T1}, r={L})
    V(f"v_bfe_u32 v{T2}, v{L}, 4, 1", w={T2}, r={L})
    V(f"v_bfe_u32 v{T3}, v{L}, 2, 2", w={T3}, r={L})
    V(f"v_and_b32 v{T4}, 3, v{L}", w={T4}, r={L})
    V(f"v_and_b32 v{T5}, 31, v{L}", w={T5}, r={L})
    V(f"v_lshl_add_u32 v{T6}, v{T1}, 3, v{T3}", w={T6}, r={T1, T3})
    V(f"v_lshlrev_b32 v{T6}, 9, v{T6}", w={T6}, r={T6})
    V(f"v_lshlrev_b32 v{T7}, 2, v{T3}", w={T7}, r={T3})
    V(f"v_lshl_add_u32 v{T7}, v{T2}, 1, v{T7}", w={T7}, r={T2, T7})
    V(f"v_and_b32 v{BW}, 1, v{T4}", w={BW}, r={T4})
    V(f"v_add_u32 v{T7}, v{T7}, v{BW}", w={T7}, r={T7, BW})
    A.salu(f"s_lshl_b32 s3, s{sHL}, 4")
    V(f"v_add_u32 v{T7}, s3, v{T7}", w={T7}, r={T7})
    V(f"v_lshl_add_u32 v{T6}, v{T7}, 4, v{T6}", w={T6}, r={T7, T6})
    V(f"v_lshrrev_b32 v{T7}, 1, v{T4}", w={T7}, r={T4})
    V(f"v_lshl_add_u32 v{BW}, v{T7}, 3, v{T6}", w={BW}, r={T7, T6})
    A.salu(f"s_lshl_b32 s3, s{sRT}, 5")
    V(f"v_add_u32 v{T6}, s3, v{T5}", w={T6}, r={T5})
    V(f"v_lshlrev_b32 v{T6}, 7, v{T6}", w={T6}, r={T6})
    V(f"v_bfe_u32 v{T7}, v{T5}, 1, 3", w={T7}, r={T5})
    V(f"v_xor_b32 v{T7}, v{T7}, v{T1}", w={T7}, r={T7, T1})
    V(f"v_lshl_add_u32 v{BX}, v{T7}, 4, v{T6}", w={BX}, r={T7, T6})
    V(f"v_lshlrev_b32 v{T6}, 2, v{T4}", w={T6}, r={T4})
    V(f"v_or_b32 v{T6}, v{T6}, v{T3}", w={T6}, r={T6, T3})
    V(f"v_xor_b32 v{T6}, v{T6}, v{T1}", w={T6}, r={T6, T1})
    V(f"v_lshlrev_b32 v{T7}, 8, v{T5}", w={T7}, r={T5})
    V(f"v_lshl_add_u32 v{BK}, v{T6}, 4, v{T7}", w={BK}, r={T6, T7})
    V(f"v_lshl_add_u32 v{T6}, v{T1}, 2, v{T3}", w={T6}, r={T1, T3})
    V(f"v_lshlrev_b32 v{T6}, 8, v{T6}", w={T6}, r={T6})
    V(f"v_lshrrev_b32 v{T7}, 1, v{T4}", w={T7}, r={T4})
    V(f"v_lshl_add_u32 v{T7}, v{T2}, 1, v{T7}", w={T7}, r={T2, T7})
    V(f"v_xor_b32 v{T7}, v{T7}, v{T1}", w={T7}, r={T7, T1})
    V(f"v_lshl_or_b32 v{T7}, v{T3}, 2, v{T7}", w={T7}, r={T3, T7})
    V(f"v_lshl_add_u32 v{T6}, v{T7}, 4, v{T6}", w={T6}, r={T7, T6})
    V(f"v_and_b32 v{T7}, 1, v{T4}", w={T7}, r={T4})
    V(f"v_lshl_add_u32 v{BV}, v{T7}, 3, v{T6}", w={BV}, r={T7, T6})
    V(f"v_lshlrev_b32 v{T6}, 17, v{T2}", w={T6}, r={T2})
    V(f"v_lshl_add_u32 v{T6}, v{T1}, 8, v{T6}", w={T6}, r={T1, T6})
    V(f"v_and_b32 v{T7}, 15, v{L}", w={T7}, r={L})
    V(f"v_lshl_add_u32 v{OST}, v{T7}, 4, v{T6}", w={OST}, r={T7, T6})
    V(f"v_mov_b32 v{LSUM}, 0", w={LSUM})
    A.waitcnt(lgkm=0)
    A.salu(f"s_cmp_eq_u32 s{sBLK}, 0")
    for k in range(8):
        A.salu(f"s_cselect_b32 s{8+k}, s{8+k}, s{16+k}")
    srd(A, SX, 8, 8 * 112 * 576 * 2)
    srd(A, SK, 10, 8 * 16 * 512 * 128 * 2)
    srd(A, SV, 12, 8 * 16 * 512 * 128 * 2)
    srd(A, SW_, 14, 576 * 4096 * 2)
    srd(A, SO, 24, 2 * O_BLK)
    A.salu(f"s_mul_i32 s{sOB}, s{sBLK}, {O_BLK}")
    A.salu(f"s_mul_i32 s3, s{sB}, 7")
    A.salu(f"s_lshl_b32 s{sT}, s{sRT}, 1")
    A.salu(f"s_add_u32 s3, s3, s{sT}")
    A.salu(f"s_lshl_b32 s3, s3, 17")
    A.salu(f"s_add_u32 s{sOB}, s{sOB}, s3")
    A.salu(f"s_lshl_b32 s3, s{sKVH}, 1")
    A.salu(f"s_add_u32 s3, s3, s{sHL}")
    A.salu(f"s_lshl_b32 s3, s3, 12")
    A.salu(f"s_add_u32 s{sOB}, s{sOB}, s3")
    if OPT["prio"]:
        A.salu(f"s_cmp_ge_u32 s{sW}, 4")
        A.salu("s_cbranch_scc0 K1_PRIO_DONE" if OPT["prio"] == 1 else "s_cbranch_scc1 K1_PRIO_DONE")
        A.salu("s_setprio 1")
        A.label("K1_PRIO_DONE")

    qunits = []
    for s_ in range(9):
        qunits += [("X", s_), ("W", 2 * s_), ("W", 2 * s_ + 1)]
    kvunits = [("K", 0)]
    for h in range(7):
        kvunits += [("K", h + 1), ("V", h)]
    kvunits += [("V", 7)]
    units = qunits + kvunits
    UK = {idx: 27 + i for i, (t_, idx) in enumerate(kvunits) if t_ == "K"}
    UV = {idx: 27 + i for i, (t_, idx) in enumerate(kvunits) if t_ == "V"}
    stage_units = [list(range(3 * s_, 3 * s_ + 3)) for s_ in range(9)]
    unit_last_vm = {}
    unit_slot = {}
    free = list(range(NSLOT))
    nq = [0]; nkv = [0]; xch = []
    KQ = FR
    DV = FR + 2
    NSTG = OPT["nstg"]
    STG = [S + 32, O, O + 32, P][:NSTG]

    def unit_info(u):
        typ, idx = units[u]
        if typ == "X": return sXB, idx * 128, SX, XO, 2 * 16 * 1152, "ntx"
        if typ == "W": return sWB, idx * 32 * 8192, SW_, WO, 2 * 4 * 8192, "ntw"
        if typ == "K": return sKVB, idx * 64 * 256, SK, KO, 4096, "ntkv"
        return sKVB, idx * 64 * 256, SV, KO, 4096, "ntkv"

    def sbase(base, const):
        if base == sKVB and OPT["rot"]:
            A.salu(f"s_add_u32 s{sT}, s{sMASK}, {const}")
            A.salu(f"s_and_b32 s{sT}, s{sT}, 0x1ffff")
            A.salu(f"s_or_b32 s{sT}, s{sT}, s{sKVB}")
        else:
            A.salu(f"s_add_u32 s{sT}, s{base}, {const}")

    def issue_unit_q(u, stage_reg=None):
        if stage_reg is None:
            slot = free.pop(0)
            unit_slot[u] = slot
        base, const, sr_, vo, delta, nto = unit_info(u)
        if vo == KO: vo = KQ
        nt = " nt" if OPT[nto] else ""
        for hv in range(4):
            A.salu(f"s_add_u32 s{sT}, s{base}, {const + delta * hv}")
            for q in range(2):
                if stage_reg is None:
                    A.salu(f"s_add_u32 m0, s{sWL4}, {slot * SLOT + hv * 4096 + q * 1024}", m0w=True)
                    k = A.vmem(f"buffer_load_dwordx4 v{vo+q}, s[{sr_}:{sr_+3}], s{sT} offen{nt} lds", kind="dma", r={vo + q}, m0r=True)
                else:
                    d = stage_reg + (hv * 2 + q) * 4
                    k = A.vmem(f"buffer_load_dwordx4 {vname(d,4)}, v{vo+q}, s[{sr_}:{sr_+3}], s{sT} offen{nt}", w=vr(d, 4), r={vo + q})
        unit_last_vm[u] = k

    def issue_unit_4(u):
        slot = free.pop(0)
        unit_slot[u] = slot
        base, const, sr_, vo, delta, nto = unit_info(u)
        nt = " nt" if OPT[nto] else ""
        sbase(base, const)
        if vo != KO: A.salu(f"s_add_u32 s{sT2}, s{base}, {const + 2 * delta}")
        for hv in range(2):
            for q in range(2):
                A.salu(f"s_add_u32 m0, s{sWL4}, {slot * SLOT + hv * 8192 + q * 1024}", m0w=True)
                if vo == KO:
                    va = (KQ if hv == 0 else KO) + q; so = sT
                else:
                    va = vo + q; so = sT if hv == 0 else sT2
                k = A.vmem(f"buffer_load_dwordx4 v{va}, s[{sr_}:{sr_+3}], s{so} offen{nt} lds", kind="dma", r={va}, m0r=True)
        unit_last_vm[u] = k

    def flood():
        if not OPT["l2pf"]: return
        V(f"v_lshrrev_b32 v{T1}, 2, v{L}", w={T1}, r={L})
        V(f"v_lshlrev_b32 v{T1}, 13, v{T1}", w={T1}, r={T1})
        V(f"v_and_b32 v{T2}, 3, v{L}", w={T2}, r={L})
        V(f"v_lshl_add_u32 v{T1}, v{T2}, 7, v{T1}", w={T1}, r={T2, T1})
        A.salu(f"s_lshl_b32 s3, s{sW}, 4")
        A.salu(f"s_min_u32 s3, s3, 56")
        A.salu(f"s_mul_i32 s{sT}, s{sB}, 72")
        A.salu(f"s_add_u32 s3, s3, s{sT}")
        A.salu(f"s_lshl_b32 s3, s3, 13")
        A.salu(f"s_add_u32 s3, s3, s{sWB}")
        A.vmem(f"buffer_load_dword v{T4}, v{T1}, s[{SW_}:{SW_+3}], s3 offen", w={T4}, r={T1})
        V(f"v_lshlrev_b32 v{T2}, 7, v{L}", w={T2}, r={L})
        A.salu(f"s_and_b32 s3, s{sKVH}, 3")
        A.salu(f"s_mul_i32 s3, s3, 32256")
        A.salu(f"s_and_b32 s{sT}, s{sW}, 3")
        A.salu(f"s_lshl_b32 s{sT}, s{sT}, 13")
        A.salu(f"s_add_u32 s3, s3, s{sT}")
        A.salu(f"s_add_u32 s3, s3, s{sXB}")
        A.vmem(f"buffer_load_dword v{T5}, v{T2}, s[{SX}:{SX+3}], s3 offen", w={T5}, r={T2})

    def dump_unit(u, stage_reg):
        slot = free.pop(0)
        unit_slot[u] = slot
        V(f"v_add_u32 v{DV+1}, {slot * SLOT}, v{DV}", w={DV + 1}, r={DV})
        for hv in range(4):
            for q in range(2):
                A.ds_write_b128(DV + 1, stage_reg + (hv * 2 + q) * 4, hv * 4096 + q * 1024)

    def dma_items(u):
        slot = free.pop(0)
        unit_slot[u] = slot
        base, const, sr_, vo, delta, nto = unit_info(u)
        nt = " nt" if OPT[nto] else ""
        def mk(q):
            def f():
                sbase(base, const)
                A.salu(f"s_add_u32 m0, s{sWL}, {slot * SLOT + q * 1024}", m0w=True)
                k = A.vmem(f"buffer_load_dwordx4 v{vo+q}, s[{sr_}:{sr_+3}], s{sT} offen{nt} lds", kind="dma", r={vo + q}, m0r=True)
                unit_last_vm[u] = k
            return f
        if not OPT["stag"]: return [mk(0), mk(1)]
        G = 8 // OPT["stag"]
        def cond(f, g):
            def h():
                lab = f"K1_D{nlab[0]}"; nlab[0] += 1
                A.salu(f"s_cmp_eq_u32 s{sT2}, {g}")
                A.salu(f"s_cbranch_scc0 {lab}")
                n0 = len(A.out)
                f()
                for o in A.out[n0:]: o.ws = 0
                A.label(lab)
                if g < G - 1: A.nvm -= 1
            return h
        return [cond(mk(q), g) for q in range(2) for g in range(G)]
    nlab = [0]

    NQ = OPT["nq"]
    PF = Prof(A, 0)
    PF.stamp("start")

    def addr_items(dst, base, slot, xors):
        it = [lambda: V(f"v_add_u32 v{dst[0]}, {slot * SLOT}, v{base}", w={dst[0]}, r={base})]
        for i, x in enumerate(xors):
            if i == 0: continue
            it.append(lambda i=i, x=x: V(f"v_xor_b32 v{dst[i]}, {x}, v{dst[0]}", w={dst[i]}, r={dst[0]}))
        return it

    A.salu(f"s_cmp_lt_u32 s{sW}, 4")
    A.salu("s_cbranch_scc1 K1_FAT")
    pf0 = PF.n
    staged = []
    if OPT["ld4"]:
        for q in range(2):
            V(f"v_subrev_u32 v{KQ+q}, {4*8*256}, v{KO+q}", w={KQ + q}, r={KO + q})
        NL = NSLOT - NQ
        def refill(s):
            done_q = 3 * max(s, 0)
            while nq[0] < 27 and nq[0] - done_q < NQ and free:
                issue_unit_4(nq[0]); nq[0] += 1
        def kv_issue():
            if nkv[0] < NL:
                if free:
                    issue_unit_4(27 + nkv[0]); nkv[0] += 1
        LW, LX = FR + 4, FR + 5
        nroll = [NQ // 3]
        def lroll(n):
            n = min(n, 9 - nroll[0])
            if n <= 0 or OPT["roll"] != 2: return
            a = nroll[0]; nroll[0] += n
            if n < 8:
                m = (1 << (8 * n)) - 1
                A.salu(f"s_mov_b32 exec_lo, {m & 0xffffffff}")
                A.salu(f"s_mov_b32 exec_hi, {m >> 32}")
            A.salu(f"s_add_u32 s3, s8, {a * 64 * 8192}")
            A.vmem(f"buffer_load_dword v{FR+6}, v{LW}, s[{SW_}:{SW_+3}], s3 offen", w={FR + 6}, r={LW})
            A.vmem(f"buffer_load_dword v{FR+7}, v{LX}, s[{SX}:{SX+3}], s9 offen offset:{a * 128}", w={FR + 7}, r={LX})
            if n < 8: A.salu("s_mov_b64 exec, -1")
        refill(-1)
        for _ in range(OPT["kv0"]): kv_issue()
        if not OPT["roll"]: flood()
        if OPT["roll"] == 2:
            V(f"v_bfe_u32 v{T1}, v{L}, 2, 1", w={T1}, r={L})
            A.salu(f"s_lshl_b32 s3, s{sW3}, 1")
            V(f"v_add_u32 v{T1}, s3, v{T1}", w={T1}, r={T1})
            V(f"v_lshrrev_b32 v{T3}, 3, v{L}", w={T3}, r={L})
            V(f"v_lshl_add_u32 v{T1}, v{T3}, 6, v{T1}", w={T1}, r={T3, T1})
            V(f"v_lshlrev_b32 v{T1}, 13, v{T1}", w={T1}, r={T1})
            V(f"v_and_b32 v{T2}, 3, v{L}", w={T2}, r={L})
            V(f"v_lshl_add_u32 v{LW}, v{T2}, 7, v{T1}", w={LW}, r={T2, T1})
            V(f"v_and_b32 v{T1}, 7, v{L}", w={T1}, r={L})
            V(f"v_min_u32 v{T1}, 6, v{T1}", w={T1}, r={T1})
            A.salu(f"s_mul_i32 s3, s{sW3}, 7")
            V(f"v_add_u32 v{T1}, s3, v{T1}", w={T1}, r={T1})
            V(f"v_mul_u32_u24 v{T1}, 1152, v{T1}", w={T1}, r={T1})
            V(f"v_lshl_add_u32 v{LX}, v{T3}, 7, v{T1}", w={LX}, r={T3, T1})
            A.salu(f"s_lshl_b32 s8, s{sB}, 16")
            A.salu(f"s_add_u32 s8, s8, s{sWB}")
            A.salu(f"s_and_b32 s9, s{sKVH}, 3")
            A.salu(f"s_mul_i32 s9, s9, {28*1152}")
            A.salu(f"s_add_u32 s9, s9, s{sXB}")
            lroll(OPT["pflead"] - nroll[0])
        for s in range(9):
            A.wait_vm(max(unit_last_vm[u] for u in stage_units[s]))
            A.barrier()
            PF.stamp(f"q{s}")
            if s > 0:
                for u in stage_units[s - 1]: free.append(unit_slot[u])
            refill(s)
            lroll(OPT["pfrate"])
            if s == 8:
                xch.append(free.pop(0)); xch.append(free.pop(0))
            elif s >= OPT["kvs"]:
                for _ in range(OPT["kvrate"]): kv_issue()
            if nq[0] == 27 and nkv[0] >= NL:
                while free:
                    issue_unit_4(27 + nkv[0]); nkv[0] += 1
        A.salu("s_branch K1_ATT")
        ldr_vm = (A.nvm, A.vm_done)
    else:
        A.salu(f"s_cmp_ge_u32 s{sW}, 6")
        A.salu("s_cbranch_scc1 K1_KVL")
        pf0 = PF.n
        kvslots = [free.pop() for _ in range(NSLOT - NQ)]
        def refill(s):
            done_q = 3 * max(s, 0)
            while nq[0] < 27 and nq[0] - done_q < NQ and free:
                issue_unit_q(nq[0]); nq[0] += 1
        refill(-1)
        for s in range(9):
            A.wait_vm(max(unit_last_vm[u] for u in stage_units[s]))
            A.barrier()
            PF.stamp(f"q{s}")
            if s > 0:
                for u in stage_units[s - 1]: free.append(unit_slot[u])
            refill(s)
            if s == 8:
                xch.append(free.pop(0)); xch.append(free.pop(0))
        A.waitcnt(vm=0)
        A.vm_done = A.nvm
        A.salu("s_branch K1_ATT")
        A.label("K1_KVL")
        A.win = []
        A.salu("s_nop 4")
        PF.n = pf0; PF.names = PF.names[:pf0]
        for q in range(2):
            V(f"v_subrev_u32 v{KQ+q}, {6*8*256}, v{KO+q}", w={KQ + q}, r={KO + q})
        V(f"v_lshlrev_b32 v{DV}, 4, v{L}", w={DV}, r={L})
        V(f"v_add_u32 v{DV}, s{sWL4}, v{DV}", w={DV}, r={DV})
        late_free = free[:]; free[:] = kvslots
        NL = len(kvslots)
        TV = FR + 4
        V(f"v_lshlrev_b32 v{TV}, 7, v{L}", w={TV}, r={L})
        A.salu(f"s_lshl_b32 s3, s{sW3}, 13")
        V(f"v_add_u32 v{TV}, s3, v{TV}", w={TV}, r={TV})
        NT = OPT["kvt"]
        ntouch = [0]
        def kv_issue():
            i = nkv[0]
            if i < NL: issue_unit_q(27 + i)
            elif i < NL + NSTG: issue_unit_q(27 + i, STG[i - NL])
            else:
                if ntouch[0] < NT:
                    u = 27 + NL + NSTG + ntouch[0]
                    base, const, sr_, vo, delta, nto = unit_info(u)
                    A.salu(f"s_add_u32 s{sT}, s{base}, {const}")
                    A.vmem(f"buffer_load_dword v{TV+1}, v{TV}, s[{sr_}:{sr_+3}], s{sT} offen", w={TV + 1}, r={TV})
                    ntouch[0] += 1
                return
            nkv[0] += 1
        for _ in range(OPT["kv0"]): kv_issue()
        for s in range(9):
            A.barrier()
            PF.stamp(f"q{s}")
            for _ in range(OPT["kvrate"]): kv_issue()
        assert nkv[0] == NL + NSTG
        free[:] = late_free
        staged = [(27 + NL + i, STG[i]) for i in range(NSTG)]
        while staged and free:
            u, r_ = staged.pop(0)
            A.wait_vm(unit_last_vm[u])
            dump_unit(u, r_)
        A.waitcnt(vm=0)
        A.vm_done = A.nvm
        A.wait_ds_all()
        A.salu("s_branch K1_ATT")
    A.label("K1_FAT")
    A.win = []
    A.salu("s_nop 4")
    PF.n = pf0; PF.names = PF.names[:pf0]
    TW, TX = XO, XO + 1
    if OPT["roll"] == 2:
        pass
    elif OPT["ld4"] and not OPT["roll"]:
        V(f"v_lshlrev_b32 v{TW}, 7, v{L}", w={TW}, r={L})
        A.salu(f"s_lshl_b32 s3, s{sW}, 13")
        V(f"v_add_u32 v{TW}, s3, v{TW}", w={TW}, r={TW})
    else:
        TW, TX = XO, XO + 1
        V(f"v_bfe_u32 v{T1}, v{L}, 2, 1", w={T1}, r={L})
        A.salu(f"s_lshl_b32 s3, s{sW}, 1")
        V(f"v_add_u32 v{T1}, s3, v{T1}", w={T1}, r={T1})
        V(f"v_lshlrev_b32 v{T1}, 13, v{T1}", w={T1}, r={T1})
        V(f"v_and_b32 v{T2}, 3, v{L}", w={T2}, r={L})
        V(f"v_lshl_add_u32 v{TW}, v{T2}, 7, v{T1}", w={TW}, r={T2, T1})
        V(f"v_and_b32 v{T1}, 7, v{L}", w={T1}, r={L})
        V(f"v_min_u32 v{T1}, 6, v{T1}", w={T1}, r={T1})
        A.salu(f"s_mul_i32 s3, s{sW}, 7")
        V(f"v_add_u32 v{T1}, s3, v{T1}", w={T1}, r={T1})
        V(f"v_mul_u32_u24 v{TX}, 1152, v{T1}", w={TX}, r={T1})
        A.salu(f"s_lshl_b32 s8, s{sB}, 16")
        A.salu(f"s_add_u32 s8, s8, s{sWB}")
        A.salu(f"s_and_b32 s9, s{sKVH}, 3")
        A.salu(f"s_mul_i32 s9, s9, {28*1152}")
        A.salu(f"s_add_u32 s9, s9, s{sXB}")
    def touch(s_):
        if not OPT["l2pf"] or s_ > 8: return
        A.salu(f"s_add_u32 s3, s8, {s_ * 64 * 8192}")
        A.vmem(f"buffer_load_dword v{T4}, v{TW}, s[{SW_}:{SW_+3}], s3 offen", w={T4}, r={TW})
        A.vmem(f"buffer_load_dword v{T5}, v{TX}, s[{SX}:{SX+3}], s9 offen offset:{s_ * 128}", w={T5}, r={TX})
    if OPT["roll"] == 2:
        touch = lambda s_: None
    elif OPT["roll"]:
        touch1 = touch
        nroll = [2]
        def roll(n):
            for _ in range(n):
                touch1(nroll[0]); nroll[0] += 1
        roll(OPT["pflead"] - 2)
        touch = lambda s_: roll(OPT["pfrate"])
    elif OPT["ld4"]:
        flood()
        ntouch = [0]
        def touch(s_):
            s_ -= OPT["pflead"]
            if s_ < OPT["kvt0"]: return
            for _ in range(OPT["kvtr"]):
                if ntouch[0] >= OPT["kvt"]: return
                ua = 27 + NL + 1 + ntouch[0]
                ia = unit_info(ua); ib = unit_info(ua + 1)
                A.salu(f"s_cmp_lt_u32 s{sW}, 2")
                A.salu(f"s_mov_b32 s3, {ib[1] - 16384}")
                A.salu(f"s_cselect_b32 s3, {ia[1]}, s3")
                A.salu(f"s_cselect_b32 s60, s{ia[2]}, s{ib[2]}")
                A.salu(f"s_cselect_b32 s61, s{ia[2]+1}, s{ib[2]+1}")
                A.salu(f"s_mov_b32 s62, s{ia[2]+2}")
                A.salu(f"s_mov_b32 s63, s{ia[2]+3}")
                A.salu(f"s_add_u32 s3, s3, s{sKVB}")
                A.vmem(f"buffer_load_dword v{T4}, v{TW}, s[60:63], s3 offen", w={T4}, r={TW})
                ntouch[0] += 2
    if not OPT["ld4"]:
        for s_ in range(2, OPT["pflead"]): touch(s_)
    QA = [S, O]
    FBW = [P, QB]; FBX = [P + 16, QB + 16]
    AW = [FR, FR + 4]; AX = FR + 8
    def qaddr(s):
        u0 = 3 * s
        return (addr_items([AX + i for i in range(4)], BX, unit_slot[u0], [0, 32, 64, 96]) +
                addr_items([AW[0] + i for i in range(4)], BW, unit_slot[u0 + 1], [0, 64, 128, 192]) +
                addr_items([AW[1] + i for i in range(4)], BW, unit_slot[u0 + 2], [0, 64, 128, 192]))
    def qread_items(ks):
        it = [lambda: A.ds_read_b128(FBX[ks % 2], AX + ks), lambda: A.ds_read_b128(FBX[ks % 2] + 4, AX + ks, 4096)]
        for t in range(4):
            for j in range(2):
                it.append(lambda t=t, j=j: A.ds_read_tr(FBW[ks % 2] + 4 * t + 2 * j, AW[ks // 2] + t, ((ks % 2) * 16 + 4 * j) * 512))
        return it
    def qreads(ks):
        for it in qread_items(ks): last = it()
        return last
    for it in qaddr(0): it()
    A.barrier()
    PF.stamp("q0")
    pend = qreads(0)
    touch(OPT["pflead"])
    QI = OPT["qi"]
    for s in range(9):
        for ks in range(4):
            A.wait_ds(pend)
            rq = []
            if ks < 3:
                if QI: rq = qread_items(ks + 1)
                else: pend = qreads(ks + 1)
            nxt = qaddr(s + 1) if (ks == 3 and s < 8) else []
            m = 0
            for t in range(4):
                for r2 in range(2):
                    A.mfma(QA[r2] + 16 * t, FBW[ks % 2] + 4 * t, FBX[ks % 2] + 4 * r2, "zero" if (s == 0 and ks == 0) else None)
                    if nxt:
                        if m < 2:
                            for it in nxt[6 * m: 6 * m + 6]: it()
                        if m == 1:
                            A.barrier()
                            PF.stamp(f"q{s+1}")
                            if QI: rq = qread_items(0)
                            else: pend = qreads(0)
                        if m == 3: touch(s + 1 + OPT["pflead"])
                    for _ in range(QI):
                        if rq: pend = rq.pop(0)()
                    m += 1
            assert not rq
    A.salu(f"s_lshr_b32 s3, s{sW}, 1")
    A.salu(f"s_cmp_eq_u32 s3, 0")
    A.salu(f"s_cselect_b32 s3, {xch[0]}, {xch[1]}")
    A.salu(f"s_lshl_b32 s3, s3, 14")
    A.salu(f"s_and_b32 s{sT}, s{sW}, 1")
    A.salu(f"s_lshl_b32 s{sT}, s{sT}, 13")
    A.salu(f"s_add_u32 s3, s3, s{sT}")
    V(f"v_lshlrev_b32 v{T6}, 4, v{L}", w={T6}, r={L})
    V(f"v_add_u32 v{T6}, s3, v{T6}", w={T6}, r={T6})
    for i in range(64):
        V(f"v_mul_f32 v{O+i}, s{sC}, v{O+i}", w={O + i}, r={O + i})
    for q in range(32):
        V(f"v_cvt_pk_bf16_f32 v{P+q}, v{O+2*q}, v{O+2*q+1}", w={P + q}, r={O + 2 * q, O + 2 * q + 1})
        if q % 4 == 3:
            A.ds_write_b128(T6, P + q - 3, (q // 4) * 1024)
    for i in range(64):
        V(f"v_mul_f32 v{S+i}, s{sC}, v{S+i}", w={S + i}, r={S + i})
    for q in range(32):
        V(f"v_cvt_pk_bf16_f32 v{QB+q}, v{S+2*q}, v{S+2*q+1}", w={QB + q}, r={S + 2 * q, S + 2 * q + 1})
    A.wait_ds_all()
    A.waitcnt(vm=0)
    A.vm_done = A.nvm
    if OPT["ld4"]:
        A.nvm, A.vm_done = ldr_vm
    A.label("K1_ATT")
    A.win = []
    A.salu("s_nop 4")
    if OPT["stag"]:
        A.salu(f"s_lshr_b32 s{sT2}, s{sW}, {OPT['stag'] - 1}")

    SETA = [AD + i for i in range(8)]
    SETB = [XO, XO + 1, WO, WO + 1, BW, BX, T4, T5]
    kx = [32 * ks for ks in range(8)]
    vx = [(t << 6) ^ (32 * jj) for t in range(4) for jj in range(2)]
    SB = lambda h: S + 32 * (h % 2)
    PB = lambda h: P + 16 * (h % 2)
    phases = [("qk", 0)] + [x for h in range(7) for x in (("qk", h + 1), ("pv", h))] + [("pv", 7)]
    pset = {}
    for ph in phases:
        pset[ph] = SETA if ph[0] == "qk" else SETB
    pset[("qk", 0)] = SETB; pset[("pv", 7)] = SETA
    punit = lambda ph: UK[ph[1]] if ph[0] == "qk" else UV[ph[1]]
    def paddr(ph):
        u = punit(ph)
        return addr_items(pset[ph], BK if ph[0] == "qk" else BV, unit_slot[u], kx if ph[0] == "qk" else vx)
    mf = [(ph, i) for ph in phases for i in range(16)]
    syncJ = list(range(0, 6, OPT["bstep"]))
    sync_pos = [phases.index(("pv", j)) * 16 + 12 for j in syncJ]
    first_read = {}
    for n, (ph, i) in enumerate(mf):
        first_read.setdefault(punit(ph), max(n - 4, -1))
    last_read = {}
    for n, (ph, i) in enumerate(mf):
        last_read[punit(ph)] = n - 4
    def publish_set(pos_from, pos_to):
        return [u for u, fr in first_read.items() if pos_from <= fr < pos_to]
    freed = set()
    dmaq = []
    def refill_att():
        while nkv[0] < 16 and free:
            dmaq.extend(dma_items(27 + nkv[0])); nkv[0] += 1

    pub = publish_set(-1, sync_pos[0])
    A.wait_vm(max(unit_last_vm[u] for u in pub))
    A.barrier()
    PF.stamp("a0")
    for u in stage_units[8]: free.append(unit_slot[u])
    A.salu(f"s_cmp_lt_u32 s{sW}, 4")
    A.salu(f"s_cbranch_scc1 K1_QGOT")
    if staged:
        A.salu(f"s_cmp_lt_u32 s{sW}, 6")
        A.salu(f"s_cbranch_scc1 K1_NODUMP")
        while staged:
            u, r_ = staged.pop(0)
            dump_unit(u, r_)
        A.label("K1_NODUMP")
    refill_att()
    A.salu(f"s_bfe_u32 s3, s{sW}, 0x10001")
    A.salu(f"s_cmp_eq_u32 s3, 0")
    A.salu(f"s_cselect_b32 s3, {xch[0]}, {xch[1]}")
    A.salu(f"s_lshl_b32 s3, s3, 14")
    A.salu(f"s_and_b32 s{sT}, s{sW}, 1")
    A.salu(f"s_lshl_b32 s{sT}, s{sT}, 13")
    A.salu(f"s_add_u32 s3, s3, s{sT}")
    V(f"v_lshlrev_b32 v{T6}, 4, v{L}", w={T6}, r={L})
    V(f"v_add_u32 v{T6}, s3, v{T6}", w={T6}, r={T6})
    for q in range(8):
        A.ds_read_b128(QB + 4 * q, T6, q * 1024)
    A.wait_ds_all()
    A.label("K1_QGOT")
    A.salu("s_nop 1")
    for it in paddr(("qk", 0)) + paddr(("qk", 1)): it()

    TT = [T0, T1, T2, T3]
    def max_items(regs, first, final):
        it = []
        r = list(regs)
        if first:
            a = r[:3]; b = r[3:6]; r = r[6:]
            it.append(lambda a=a: V(f"v_max3_f32 v{MX}, v{a[0]}, v{a[1]}, v{a[2]}", w={MX}, r=set(a)))
            it.append(lambda b=b: V(f"v_max3_f32 v{MX2}, v{b[0]}, v{b[1]}, v{b[2]}", w={MX2}, r=set(b)))
        k = 0
        while r:
            a = r[:2]; r = r[2:]
            d = MX if k % 2 == 0 else MX2
            it.append(lambda a=a, d=d: V(f"v_max3_f32 v{d}, v{d}, v{a[0]}, v{a[1]}", w={d}, r={d} | set(a)))
            k += 1
        if final:
            it.append(lambda: V(f"v_max_f32 v{MX}, v{MX}, v{MX2}", w={MX}, r={MX, MX2}))
            it.append(lambda: V(f"v_mov_b32 v{MX2}, v{MX}", w={MX2}, r={MX}))
            it.append(lambda: V(f"v_permlane32_swap_b32 v{MX}, v{MX2}", w={MX, MX2}, r={MX, MX2}, kind="perm"))
            it.append(lambda: V(f"v_max_f32 v{MX}, v{MX}, v{MX2}", w={MX}, r={MX, MX2}))
        return it
    def sm_items(h, lo, hi, sub):
        it = []
        sb, pb = SB(h), PB(h)
        if sub:
            it.append(lambda: V(f"v_sub_f32 v{sb+lo}, v{sb+lo}, v{MX}", w={sb + lo}, r={sb + lo, MX}))
        for e in range(lo, hi + 2):
            if sub and e + 1 < hi:
                it.append(lambda e=e: V(f"v_sub_f32 v{sb+e+1}, v{sb+e+1}, v{MX}", w={sb + e + 1}, r={sb + e + 1, MX}))
            if e < hi:
                it.append(lambda e=e: V(f"v_exp_f32 v{TT[e%4]}, v{sb+e}", w={TT[e % 4]}, r={sb + e}, kind="trans"))
            if lo <= e - 1 < hi:
                p = e - 1; acc = SUMA if p % 2 == 0 else SUMB
                if p < 2:
                    it.append(lambda p=p, acc=acc: V(f"v_mov_b32 v{acc}, v{TT[p%4]}", w={acc}, r={TT[p % 4]}))
                else:
                    it.append(lambda p=p, acc=acc: V(f"v_add_f32 v{acc}, v{acc}, v{TT[p%4]}", w={acc}, r={acc, TT[p % 4]}))
            if e - 2 >= lo and (e - 2) % 2 == 0 and e - 1 < hi:
                p = e - 2
                it.append(lambda p=p: V(f"v_cvt_pk_bf16_f32 v{pb+p//2}, v{TT[p%4]}, v{TT[(p+1)%4]}", w={pb + p // 2}, r={TT[p % 4], TT[(p + 1) % 4]}))
        return it
    def negm_items():
        return [lambda i=i: V(f"v_sub_f32 v{NEGM+i}, 0, v{MX}", w={NEGM + i}, r={MX}) for i in range(16)]
    def check(h):
        V(f"v_add_f32 v{SUMA}, v{SUMA}, v{SUMB}", w={SUMA}, r={SUMA, SUMB})
        if h > 0:
            V(f"v_cmp_nge_f32 vcc, s{sTHR}, v{SUMA}", r={SUMA}, sw={"vcc"})
            A.salu("s_nop 1")
            A.salu(f"s_cbranch_vccnz K1_SLOW{h}")
            A.label(f"K1_BACK{h}")
        V(f"v_add_f32 v{LSUM}, v{LSUM}, v{SUMA}", w={LSUM}, r={LSUM, SUMA})

    def side_for(ph):
        kind, h = ph
        if ph == ("qk", 0):
            return [], []
        if kind == "qk":
            hh = h - 1
            if hh == 0:
                main = max_items([SB(0) + i for i in range(32)], True, True) + sm_items(0, 0, 32, True)
            else:
                main = sm_items(hh, 16, 32, hh == 1)
            return main, paddr(("pv", hh))
        if h == 7: return [], []
        if h == 6:
            return sm_items(7, 0, 32, False), paddr(("pv", 7))
        main = sm_items(h + 1, 0, 16, h == 0)
        if h == 0: main = negm_items() + main
        return main, paddr(("qk", h + 2))

    rid = {}
    def issue_read(n):
        ph, i = mf[n]
        st = pset[ph]; fr = FR + 4 * (n % 4)
        if ph[0] == "qk":
            rid[n] = A.ds_read_b128(fr, st[i % 8], (i // 8) * 8192)
        else:
            g, t = i // 4, i % 4
            A.ds_read_tr(fr, st[2 * t], g * 4096)
            rid[n] = A.ds_read_tr(fr + 2, st[2 * t + 1], g * 4096 + 2048)
    for n in range(4): issue_read(n)
    gap = 0
    for n, (ph, i) in enumerate(mf):
        kind, h = ph
        if i == 0:
            main, adr = side_for(ph)
            plan = [[] for _ in range(16)]
            for k, it in enumerate(adr): plan[k * 12 // max(len(adr), 1)].append(it)
            s0 = 1 if ph == ("qk", 1) else 0
            for k, it in enumerate(main): plan[s0 + k * (16 - s0) // len(main)].append(it)
        A.wait_ds(rid[n])
        fr = FR + 4 * (n % 4)
        if kind == "qk":
            kt, ks = i // 8, i % 8
            c = None
            if ks == 0: c = "zero" if h <= 1 else NEGM
            A.mfma(SB(h) + 16 * kt, fr, QB + 4 * ks, c)
        else:
            g, t = i // 4, i % 4
            A.mfma(O + 16 * t, fr, PB(h) + 4 * g, "zero" if (h == 0 and g == 0) else None)
        if n in sync_pos:
            k = sync_pos.index(n)
            pub = publish_set(n, sync_pos[k + 1] if k + 1 < len(sync_pos) else 10**9)
            while dmaq: dmaq.pop(0)()
            A.wait_ds_all()
            A.wait_vm(max(unit_last_vm[u] for u in pub))
            A.barrier()
            PF.stamp(f"x{h}")
            if k == 0: free.extend(xch)
            for u, lr in last_read.items():
                if lr < n and u not in freed:
                    freed.add(u); free.append(unit_slot[u])
            refill_att()
            if OPT["wopf"] and h == OPT["wopf"] - 1:
                A.salu("s_load_dwordx2 s[60:61], s[0:1], 32")
                A.salu("s_load_dwordx2 s[62:63], s[0:1], 72")
                A.salu(f"s_lshl_b32 s3, s{sB}, 4")
                A.salu(f"s_add_u32 s3, s3, s{sKVH}")
                A.salu(f"s_mul_i32 s3, s3, 288")
                A.salu(f"s_lshl_b32 s{sT}, s{sW}, 6")
                A.salu(f"s_min_u32 s{sT}, s{sT}, 224")
                A.salu(f"s_add_u32 s3, s3, s{sT}")
                A.salu(f"s_lshl_b32 s3, s3, 7")
                V(f"v_mbcnt_lo_u32_b32 v{T6}, -1, 0", w={T6})
                V(f"v_mbcnt_hi_u32_b32 v{T6}, -1, v{T6}", w={T6}, r={T6})
                V(f"v_lshlrev_b32 v{T6}, 7, v{T6}", w={T6}, r={T6})
                A.salu("s_waitcnt lgkmcnt(0)")
                A.salu(f"s_cmp_eq_u32 s{sBLK}, 0")
                A.salu("s_cselect_b32 s60, s60, s62")
                A.salu("s_cselect_b32 s61, s61, s63")
                A.salu("s_and_b32 s61, s61, 0xffff")
                A.salu(f"s_mov_b32 s62, {4096*576*2}")
                A.salu("s_mov_b32 s63, 0x00020000")
                A.vmem(f"buffer_load_dword v{T7}, v{T6}, s[60:63], s3 offen", w={T7}, r={T6})
        if n + 4 < len(mf): issue_read(n + 4)
        for it in plan[i]: it()
        gap += 1
        if dmaq and gap >= OPT["dmagap"]:
            dmaq.pop(0)(); gap = 0
        if i == 15:
            if kind == "qk" and h >= 1: check(h - 1)
            if ph == ("pv", 6): check(7)
    assert not dmaq
    PF.stamp("pv7")
    V(f"v_mov_b32 v{T0}, v{LSUM}", w={T0}, r={LSUM})
    V(f"v_permlane32_swap_b32 v{T0}, v{LSUM}", w={T0, LSUM}, r={T0, LSUM}, kind="perm")
    V(f"v_add_f32 v{T0}, v{T0}, v{LSUM}", w={T0}, r={T0, LSUM})
    V(f"v_rcp_f32 v{T0}, v{T0}", w={T0}, r={T0}, kind="trans")
    A.salu(f"s_cmp_eq_u32 s{sRT}, 3")
    A.salu("s_cbranch_scc0 K1_NOMASK")
    A.salu("s_mov_b32 exec_lo, 0xffff")
    A.salu("s_mov_b32 exec_hi, 0xffff")
    A.label("K1_NOMASK")
    for f in range(8):
        b0 = O + 8 * f
        for i in range(8):
            V(f"v_mul_f32 v{b0+i}, v{T0}, v{b0+i}", w={b0 + i}, r={T0, b0 + i})
        d = P + 4 * f
        for q in range(4):
            V(f"v_cvt_pk_bf16_f32 v{d+q}, v{b0+2*q}, v{b0+2*q+1}", w={d + q}, r={b0 + 2 * q, b0 + 2 * q + 1})
        A.vmem(f"buffer_store_dwordx4 {vname(d,4)}, v{OST}, s[{SO}:{SO+3}], s{sOB} offen offset:{f*512}{' nt' if OPT['ntst'] else ''}", r=vr(d, 4) | {OST}, storedata=vr(d, 4))
    PF.dump(24, sW, 0)
    A.label("K1_END")
    A.salu("s_endpgm")
    for h in range(1, 8):
        A.label(f"K1_SLOW{h}")
        A.flush_hazards()
        sb = SB(h)
        for it in max_items([sb + i for i in range(32)], True, True): it()
        V(f"v_max_f32 v{MX}, 0, v{MX}", w={MX}, r={MX})
        V(f"v_sub_f32 v{MX2}, 0, v{MX}", w={MX2}, r={MX})
        V(f"v_exp_f32 v{MX2}, v{MX2}", w={MX2}, r={MX2}, kind="trans")
        for i in range(64):
            V(f"v_mul_f32 v{O+i}, v{MX2}, v{O+i}", w={O + i}, r={MX2, O + i})
        V(f"v_mul_f32 v{LSUM}, v{MX2}, v{LSUM}", w={LSUM}, r={MX2, LSUM})
        for i in range(16):
            V(f"v_sub_f32 v{NEGM+i}, v{NEGM+i}, v{MX}", w={NEGM + i}, r={NEGM + i, MX})
        if h < 7:
            s2 = SB(h + 1)
            for i in range(32):
                V(f"v_sub_f32 v{s2+i}, v{s2+i}, v{MX}", w={s2 + i}, r={s2 + i, MX})
        for it in sm_items(h, 0, 32, True): it()
        V(f"v_add_f32 v{SUMA}, v{SUMA}, v{SUMB}", w={SUMA}, r={SUMA, SUMB})
        A.flush_hazards()
        A.salu(f"s_branch K1_BACK{h}")

def gen_k2(A):
    V = A.valu
    T0, T1, T2, T3, T4, T5, T6, T7 = range(0, 8)
    WOFF = 8
    OOFF = 12
    BA = 13
    RED = 15
    AF = 16
    OF = 48
    ACC = 112
    sBLK, sMT, sNT, sW = 26, 27, 4, 5
    SW_, SO, SOUT = 28, 32, 36
    sWL, sWB, sO0, sO1, sT = 48, 49, 50, 51, 52
    A.win = []
    A.nds = A.ds_done = A.nvm = A.vm_done = 0
    A.raw(f".p2align 8\n.globl k2_kernel\n.type k2_kernel,@function\nk2_kernel:")
    A.salu("s_cmp_ge_u32 s2, 256")
    A.salu("s_cbranch_scc1 K2_END")
    A.salu("s_and_b32 s3, s2, 7")
    A.salu("s_lshl_b32 s3, s3, 5")
    A.salu("s_lshr_b32 s6, s2, 3")
    A.salu("s_add_u32 s3, s3, s6")
    A.salu("s_cmp_ge_u32 s3, 252")
    A.salu("s_cbranch_scc1 K2_END")
    A.salu("s_load_dwordx2 s[8:9], s[0:1], 32")
    A.salu("s_load_dwordx2 s[10:11], s[0:1], 72")
    A.salu("s_load_dwordx2 s[12:13], s[0:1], 80")
    A.salu("s_load_dwordx2 s[14:15], s[0:1], 96")
    A.salu("s_cmp_ge_u32 s3, 126")
    A.salu(f"s_cselect_b32 s{sBLK}, 1, 0")
    A.salu(f"s_mul_i32 s6, s{sBLK}, 126")
    A.salu("s_sub_u32 s3, s3, s6")
    A.salu("s_mul_i32 s6, s3, 57")
    A.salu(f"s_lshr_b32 s{sMT}, s6, 9")
    A.salu(f"s_mul_i32 s6, s{sMT}, 9")
    A.salu(f"s_sub_u32 s{sNT}, s3, s6")
    V(f"v_lshrrev_b32 v{T1}, 6, v0", w={T1}, r={0})
    A._emit(I(f"v_readfirstlane_b32 s{sW}, v{T1}", "rdlane", r={T1}, sw={sW}))
    V(f"v_and_b32 v{T0}, 63, v0", w={T0}, r={0})
    L = T0
    A.salu(f"s_lshl_b32 s{sWL}, s{sW}, 14", sr={sW})
    A.salu(f"s_mul_i32 s{sWB}, s{sW}, {512*1152}", sr={sW})
    A.salu(f"s_lshl_b32 s6, s{sNT}, 7")
    A.salu(f"s_add_u32 s{sWB}, s{sWB}, s6")
    A.salu(f"s_mul_i32 s{sO0}, s{sBLK}, {O_BLK}")
    A.salu(f"s_lshl_b32 s6, s{sMT}, 19")
    A.salu(f"s_add_u32 s{sO0}, s{sO0}, s6")
    A.salu(f"s_lshl_b32 s6, s{sW}, 14")
    A.salu(f"s_add_u32 s{sO0}, s{sO0}, s6")
    A.salu(f"s_add_u32 s{sO1}, s{sO0}, {2*131072}")
    V(f"v_lshrrev_b32 v{T1}, 3, v{L}", w={T1}, r={L})
    V(f"v_mul_u32_u24 v{T1}, 1152, v{T1}", w={T1}, r={T1})
    V(f"v_bfe_u32 v{T2}, v{L}, 4, 1", w={T2}, r={L})
    V(f"v_lshlrev_b32 v{T3}, 2, v{T2}", w={T3}, r={T2})
    V(f"v_and_b32 v{T4}, 7, v{L}", w={T4}, r={L})
    V(f"v_xor_b32 v{T4}, v{T4}, v{T3}", w={T4}, r={T4, T3})
    V(f"v_lshl_add_u32 v{WOFF}, v{T4}, 4, v{T1}", w={WOFF}, r={T4, T1})
    for i in range(1, 4):
        V(f"v_add_u32 v{WOFF+i}, {9216*i}, v{WOFF}", w={WOFF + i}, r={WOFF})
    V(f"v_lshrrev_b32 v{T1}, 5, v{L}", w={T1}, r={L})
    V(f"v_bfe_u32 v{T3}, v{L}, 2, 2", w={T3}, r={L})
    V(f"v_and_b32 v{T4}, 3, v{L}", w={T4}, r={L})
    V(f"v_lshlrev_b32 v{T6}, 17, v{T2}", w={T6}, r={T2})
    V(f"v_lshl_add_u32 v{T6}, v{T1}, 8, v{T6}", w={T6}, r={T1, T6})
    V(f"v_and_b32 v{T7}, 15, v{L}", w={T7}, r={L})
    V(f"v_lshl_add_u32 v{OOFF}, v{T7}, 4, v{T6}", w={OOFF}, r={T7, T6})
    V(f"v_lshl_add_u32 v{T6}, v{T1}, 2, v{T3}", w={T6}, r={T1, T3})
    V(f"v_lshlrev_b32 v{T6}, 7, v{T6}", w={T6}, r={T6})
    V(f"v_lshrrev_b32 v{T7}, 1, v{T4}", w={T7}, r={T4})
    V(f"v_lshl_add_u32 v{T7}, v{T2}, 1, v{T7}", w={T7}, r={T2, T7})
    V(f"v_lshrrev_b32 v{T5}, 1, v{T3}", w={T5}, r={T3})
    V(f"v_lshlrev_b32 v{T5}, 2, v{T5}", w={T5}, r={T5})
    V(f"v_xor_b32 v{T7}, v{T7}, v{T5}", w={T7}, r={T7, T5})
    V(f"v_lshl_add_u32 v{T6}, v{T7}, 4, v{T6}", w={T6}, r={T7, T6})
    V(f"v_and_b32 v{T7}, 1, v{T4}", w={T7}, r={T4})
    V(f"v_lshl_add_u32 v{T6}, v{T7}, 3, v{T6}", w={T6}, r={T7, T6})
    V(f"v_add_u32 v{BA}, s{sWL}, v{T6}", w={BA}, r={T6})
    V(f"v_xor_b32 v{BA+1}, 64, v{BA}", w={BA + 1}, r={BA})
    V(f"v_lshlrev_b32 v{RED}, 4, v{L}", w={RED}, r={L})
    A.waitcnt(lgkm=0)
    A.salu(f"s_cmp_eq_u32 s{sBLK}, 0")
    A.salu("s_cselect_b32 s8, s8, s10")
    A.salu("s_cselect_b32 s9, s9, s11")
    srd(A, SW_, 8, 4096 * 576 * 2)
    srd(A, SO, 14, 2 * O_BLK)
    srd(A, SOUT, 12, 896 * 1152 * 2)

    NU = 16; DEPTH = 4
    last_vm = {}
    def issue(u):
        slot = u % DEPTH
        A.salu(f"s_add_u32 s{sT}, s{sWB}, {u * 32 * 1152}")
        for i in range(4):
            A.salu(f"s_add_u32 m0, s{sWL}, {slot * 4096 + i * 1024}", m0w=True)
            A.vmem(f"buffer_load_dwordx4 v{WOFF+i}, s[{SW_}:{SW_+3}], s{sT} offen{' nt' if OPT['ntwo'] else ''} lds", kind="dma", r={WOFF + i}, m0r=True)
        for ks in range(2):
            for tm in range(2):
                d = OF + slot * 16 + (ks * 2 + tm) * 4
                off = (2 * u + ks) * 512
                sb = sO0 if tm == 0 else sO1
                if off >= 4096:
                    A.salu(f"s_add_u32 s{sT}, s{sb}, {off & ~4095}")
                    k = A.vmem(f"buffer_load_dwordx4 {vname(d,4)}, v{OOFF}, s[{SO}:{SO+3}], s{sT} offen offset:{off & 4095}{' nt' if OPT['nto'] else ''}", w=vr(d, 4), r={OOFF})
                else:
                    k = A.vmem(f"buffer_load_dwordx4 {vname(d,4)}, v{OOFF}, s[{SO}:{SO+3}], s{sb} offen offset:{off}{' nt' if OPT['nto'] else ''}", w=vr(d, 4), r={OOFF})
        last_vm[u] = k
    def dsreads(u):
        slot = u % DEPTH
        ab = AF + (u % 2) * 16
        for ks in range(2):
            for tn in range(2):
                for j in range(2):
                    k = A.ds_read_tr(ab + (ks * 2 + tn) * 4 + 2 * j, BA + tn, slot * 4096 + (16 * ks + 8 * j) * 128)
        return k
    PF = Prof(A, 1)
    PF.stamp("start")
    for u in range(DEPTH): issue(u)
    A.wait_vm(last_vm[0])
    pend = dsreads(0)
    for u in range(NU):
        A.wait_ds(pend)
        if u + 1 < NU:
            A.wait_vm(last_vm[u + 1])
            pend = dsreads(u + 1)
        ab = AF + (u % 2) * 16
        ob = OF + (u % DEPTH) * 16
        for ks in range(2):
            for tn in range(2):
                for tm in range(2):
                    c = "zero" if (u == 0 and ks == 0) else None
                    A.mfma(ACC + (tn * 2 + tm) * 16, ab + (ks * 2 + tn) * 4, ob + (ks * 2 + tm) * 4, c)
        if u + DEPTH < NU: issue(u + DEPTH)
        PF.stamp(f"u{u}")
    A.wait_ds_all()
    A.barrier()
    V(f"v_add_u32 v{T1}, s{sWL}, v{RED}", w={T1}, r={RED})
    for q in range(16):
        A.ds_write_b128(T1, ACC + 4 * q, q * 1024)
    A.wait_ds_all()
    A.barrier()
    A.salu(f"s_lshl_b32 s6, s{sW}, 11")
    V(f"v_add_u32 v{T1}, s6, v{RED}", w={T1}, r={RED})
    V(f"v_add_u32 v{T2}, 0x10000, v{T1}", w={T2}, r={T1})
    R = OF
    for ww in range(8):
        for q in range(2):
            A.ds_read_b128(R + (ww * 2 + q) * 4, T1 if ww < 4 else T2, (ww % 4) * 16384 + q * 1024)
            if ww == 6 and q == 1: pass
        if ww == 5:
            A.wait_ds_all()
    A.wait_ds_all()
    for ww in range(1, 8):
        for i in range(8):
            V(f"v_add_f32 v{R+i}, v{R+i}, v{R+ww*8+i}", w={R + i}, r={R + i, R + ww * 8 + i})
    for q in range(4):
        V(f"v_cvt_pk_bf16_f32 v{AF+q}, v{R+2*q}, v{R+2*q+1}", w={AF + q}, r={R + 2 * q, R + 2 * q + 1})
    A.salu(f"s_lshr_b32 s6, s{sW}, 1")
    A.salu("s_and_b32 s7, s6, 1")
    A.salu("s_lshr_b32 s6, s6, 1")
    A.salu(f"s_lshl_b32 s3, s{sMT}, 6")
    A.salu("s_lshl_b32 s7, s7, 5")
    A.salu("s_add_u32 s3, s3, s7")
    A.salu("s_mul_i32 s3, s3, 2304")
    A.salu(f"s_mul_i32 s7, s{sBLK}, 1152")
    A.salu("s_add_u32 s3, s3, s7")
    A.salu(f"s_lshl_b32 s7, s{sNT}, 7")
    A.salu("s_add_u32 s3, s3, s7")
    A.salu("s_lshl_b32 s7, s6, 6")
    A.salu("s_add_u32 s3, s3, s7")
    A.salu(f"s_and_b32 s7, s{sW}, 1")
    A.salu("s_lshl_b32 s7, s7, 5")
    A.salu("s_add_u32 s3, s3, s7")
    V(f"v_and_b32 v{T1}, 31, v{L}", w={T1}, r={L})
    V(f"v_mul_u32_u24 v{T1}, 2304, v{T1}", w={T1}, r={T1})
    V(f"v_lshrrev_b32 v{T2}, 5, v{L}", w={T2}, r={L})
    V(f"v_lshl_add_u32 v{T1}, v{T2}, 3, v{T1}", w={T1}, r={T2, T1})
    A.vmem(f"buffer_store_dwordx2 {vname(AF,2)}, v{T1}, s[{SOUT}:{SOUT+3}], s3 offen", r=vr(AF, 2) | {T1})
    A.vmem(f"buffer_store_dwordx2 {vname(AF+2,2)}, v{T1}, s[{SOUT}:{SOUT+3}], s3 offen offset:16", r=vr(AF + 2, 2) | {T1})
    PF.dump(14, sW, 0)
    A.label("K2_END")
    A.salu("s_endpgm")

def kd(name, vgpr, sgpr):
    return f""".amdhsa_kernel {name}
  .amdhsa_next_free_vgpr {vgpr}
  .amdhsa_next_free_sgpr {sgpr}
  .amdhsa_accum_offset {(vgpr + 3) // 4 * 4}
  .amdhsa_group_segment_fixed_size 0
  .amdhsa_kernarg_size 104
  .amdhsa_user_sgpr_count 2
  .amdhsa_user_sgpr_kernarg_segment_ptr 1
  .amdhsa_system_sgpr_workgroup_id_x 1
.end_amdhsa_kernel
"""

def main():
    A = Asm()
    gen_k1(A)
    gen_k2(A)
    head = """; Two-launch GQA block pair: k1 = Q projection + attention (o -> ws), k2 = output projection.
; @launch kernel=k1_kernel grid=(256,1,1) block=(512,1,1) lds=163840
; @launch kernel=k2_kernel grid=(256,1,1) block=(512,1,1) lds=131072
.amdgcn_target "amdgcn-amd-amdhsa--gfx950"
.text
"""
    tail = '\n.section .rodata,"a"\n.p2align 6\n' + kd("k1_kernel", 256, 102 if OPT["prof"] else 64) + ".p2align 6\n" + kd("k2_kernel", 176, 102 if OPT["prof"] else 64)
    txt = head + A.text() + tail
    if "CODE_BYTES" in txt:
        import subprocess, re
        open("_p1.s", "w").write(txt.replace("CODE_BYTES", "0x12345"))
        subprocess.check_call(["clang", "-x", "assembler", "-target", "amdgcn-amd-amdhsa", "-mcpu=gfx950", "-c", "_p1.s", "-o", "_p1.o"])
        o = subprocess.check_output(["llvm-objdump", "-h", "_p1.o"]).decode()
        n = int(re.search(r"\.text\s+([0-9a-f]+)", o).group(1), 16)
        txt = txt.replace("CODE_BYTES", str(n))
    open(sys.argv[1], "w").write(txt)
    print("nops inserted:", A.nops_inserted, "lines:", len(A.out))

main()
```

```python
import sys, math
sys.path.insert(0, "gen")
from asmlib import *

NAME = "concat_heads__gqa_block_cached__gqa_block_cached__near_ridge"
OPT = dict(prio=1, prof=0, ntkv=1, ntw=0, ntx=0, ntwo=0, nto=0, ntst=0, nq=6, kvrate=1, l2pf=1, wopf=4, fat=1, bstep=1, dmagap=1, pflead=4, kv0=2, nstg=4, kvt=0, ld4=1, cpf=0, mid=0, kvt0=1, kvtr=1, roll=0, pfrate=1, kvs=0, rot=0, stag=0, qi=0, tlbw=0)
for a in sys.argv[2:]:
    k, v = a.split("="); OPT[k] = int(v)

O_BLK = 896 * 4096 * 2
SLOT = 16384
NSLOT = 10

def srd(A, d, base, nbytes):
    A.salu(f"s_mov_b32 s{d}, s{base}")
    A.salu(f"s_and_b32 s{d+1}, s{base+1}, 0xffff")
    A.salu(f"s_mov_b32 s{d+2}, {nbytes}")
    A.salu(f"s_mov_b32 s{d+3}, 0x00020000")

class Prof:
    def __init__(self, A, kidx):
        self.A = A; self.n = 0; self.names = []; self.kidx = kidx
    def stamp(self, name):
        if not OPT["prof"]: return
        A = self.A
        assert self.n < 30
        A.salu("s_waitcnt lgkmcnt(0)")
        A.ds_done = A.nds
        A.salu("s_memtime s[96:97]")
        A.salu("s_waitcnt lgkmcnt(0)")
        A.salu(f"s_mov_b32 s{64+self.n}, s96")
        if self.n == 0:
            A.salu("s_memrealtime s[98:99]")
            A.salu("s_waitcnt lgkmcnt(0)")
        self.n += 1; self.names.append(name)
    def dump(self, wsreg, sW, tmp):
        if not OPT["prof"]: return
        A = self.A
        self.stamp("end")
        A.salu("s_memrealtime s[96:97]")
        A.salu("s_waitcnt lgkmcnt(0)")
        A.salu("s_mov_b64 exec, -1")
        A.salu("s_nop 4")
        for i in range(self.n):
            A.salu(f"v_writelane_b32 v{tmp}, s{64+i}, {i}")
        A.salu("s_getreg_b32 s97, hwreg(HW_REG_HW_ID)")
        A.salu(f"v_writelane_b32 v{tmp}, s97, 29")
        A.salu(f"v_writelane_b32 v{tmp}, s98, 30")
        A.salu(f"v_writelane_b32 v{tmp}, s96, 31")
        A.salu(f"s_mov_b32 s60, s{wsreg}")
        A.salu(f"s_and_b32 s61, s{wsreg+1}, 0xffff")
        A.salu("s_mov_b32 s62, 0x10000000")
        A.salu("s_mov_b32 s63, 0x00020000")
        A.salu("s_lshl_b32 s96, s2, 3")
        A.salu(f"s_add_u32 s96, s96, s{sW}")
        A.salu("s_lshl_b32 s96, s96, 7")
        A.salu(f"s_add_u32 s96, s96, {255*1024*1024 + self.kidx*512*1024}")
        A.salu(f"v_mbcnt_lo_u32_b32 v{tmp+1}, -1, 0")
        A.salu(f"v_mbcnt_hi_u32_b32 v{tmp+1}, -1, v{tmp+1}")
        A.salu(f"v_lshlrev_b32 v{tmp+1}, 2, v{tmp+1}")
        A.salu("s_mov_b64 exec, 0xffffffff")
        A.salu("s_nop 4")
        A.salu(f"buffer_store_dword v{tmp}, v{tmp+1}, s[60:63], s96 offen")
        print("stamps k%d:" % self.kidx, self.names)

def gen_k1(A):
    V = A.valu
    T0, T1, T2, T3, T4, T5, T6, T7 = range(0, 8)
    XO, WO, KO = 8, 10, 12
    BW, BX, BK, BV = 14, 15, 16, 17
    LSUM, OST = 18, 19
    SUMA, SUMB, MX, MX2 = 20, 21, 22, 23
    AD = 24
    FR = 32
    NEGM = 48
    QB = 64
    S = 96
    O = 160
    P = 224
    sBLK, sKVH, sB, sW, sHL, sRT = 26, 27, 4, 5, 6, 7
    SX, SW_, SK, SV, SO = 28, 32, 36, 40, 44
    sWL, sXB, sWB, sKVB, sT, sOB = 48, 49, 50, 51, 52, 53
    sMASK, sTHR, sC = 54, 56, 57
    sW3, sWL4, sT2 = 58, 59, 55

    A.raw(f".p2align 8\n.globl k1_kernel\n.type k1_kernel,@function\nk1_kernel:\nK1_BEGIN:")
    A.salu("s_cmp_ge_u32 s2, 256")
    A.salu("s_cbranch_scc1 K1_END")
    A.salu("s_load_dwordx8 s[8:15], s[0:1], 0")
    A.salu("s_load_dwordx8 s[16:23], s[0:1], 40")
    A.salu("s_load_dwordx2 s[24:25], s[0:1], 96")
    if OPT["cpf"]:
        A.salu("s_getpc_b64 s[60:61]")
        A.salu("s_and_b32 s60, s60, 0xffffff00")
        A.salu("s_and_b32 s61, s61, 0xffff")
        A.salu("s_mov_b32 s62, CODE_BYTES")
        A.salu("s_mov_b32 s63, 0x00020000")
        V(f"v_lshlrev_b32 v{T7}, 7, v0", w={T7}, r={0})
        A.vmem(f"buffer_load_dword v{NEGM+15}, v{T7}, s[60:63], 0 offen", w={NEGM+15}, r={T7})
    A.salu("s_and_b32 s3, s2, 7")
    A.salu(f"s_lshr_b32 s{sB}, s2, 3")
    A.salu(f"s_lshr_b32 s{sBLK}, s3, 2")
    A.salu("s_and_b32 s3, s3, 3")
    A.salu("s_lshl_b32 s3, s3, 2")
    A.salu(f"s_and_b32 s{sKVH}, s{sB}, 3")
    A.salu(f"s_add_u32 s{sKVH}, s{sKVH}, s3")
    A.salu(f"s_lshr_b32 s{sB}, s{sB}, 2")
    V(f"v_lshrrev_b32 v{T1}, 6, v0", w={T1}, r={0})
    A._emit(I(f"v_readfirstlane_b32 s{sW}, v{T1}", "rdlane", r={T1}, sw={sW}))
    V(f"v_and_b32 v{T0}, 63, v0", w={T0}, r={0})
    if OPT["fat"]:
        A.salu(f"s_bfe_u32 s{sHL}, s{sW}, 0x10001", sr={sW})
        A.salu(f"s_and_b32 s{sRT}, s{sW}, 1", sr={sW})
        A.salu(f"s_lshl_b32 s{sRT}, s{sRT}, 1")
        A.salu(f"s_lshr_b32 s3, s{sW}, 2", sr={sW})
        A.salu(f"s_add_u32 s{sRT}, s{sRT}, s3")
    else:
        A.salu(f"s_lshr_b32 s{sHL}, s{sW}, 2", sr={sW})
        A.salu(f"s_and_b32 s{sRT}, s{sW}, 3", sr={sW})
    A.salu(f"s_lshl_b32 s{sWL}, s{sW}, 11", sr={sW})
    A.salu(f"s_and_b32 s{sW3}, s{sW}, {3 if OPT['ld4'] else 1}", sr={sW})
    A.salu(f"s_lshl_b32 s{sWL4}, s{sW3}, 11")
    A.salu(f"s_mul_i32 s{sXB}, s{sB}, 129024")
    A.salu(f"s_lshl_b32 s{sWB}, s{sKVH}, 9")
    A.salu(f"s_lshl_b32 s{sKVB}, s{sB}, 4")
    A.salu(f"s_add_u32 s{sKVB}, s{sKVB}, s{sKVH}")
    if OPT["rot"] == 1:
        A.salu(f"s_and_b32 s{sMASK}, s{sKVB}, 7")
    elif OPT["rot"] == 2:
        A.salu(f"s_add_u32 s{sMASK}, s{sKVH}, s{sB}")
        A.salu(f"s_and_b32 s{sMASK}, s{sMASK}, 7")
    elif OPT["rot"] == 3:
        A.salu(f"s_and_b32 s{sMASK}, s{sB}, 7")
    A.salu(f"s_lshl_b32 s{sMASK}, s{sMASK}, 14")
    A.salu(f"s_lshl_b32 s{sKVB}, s{sKVB}, 17")
    A.salu(f"s_mov_b32 s{sTHR}, 0x4b800000")
    c = math.log2(math.e) / math.sqrt(128.0)
    import struct
    cbits = struct.unpack("<I", struct.pack("<f", c))[0]
    A.salu(f"s_mov_b32 s{sC}, {cbits:#x}")
    L = T0
    for q in range(2):
        V(f"v_lshrrev_b32 v{T1}, 3, v{L}", w={T1}, r={L})
        A.salu(f"s_lshl_b32 s3, s{sW3}, 4")
        A.salu(f"s_add_u32 s3, s3, {8*q}")
        V(f"v_add_u32 v{T1}, s3, v{T1}", w={T1}, r={T1})
        V(f"v_mul_u32_u24 v{T1}, 1152, v{T1}", w={T1}, r={T1})
        V(f"v_and_b32 v{T2}, 7, v{L}", w={T2}, r={L})
        V(f"v_lshrrev_b32 v{T3}, 4, v{L}", w={T3}, r={L})
        V(f"v_xor_b32 v{T2}, v{T2}, v{T3}", w={T2}, r={T2, T3})
        if q: V(f"v_xor_b32 v{T2}, 4, v{T2}", w={T2}, r={T2})
        V(f"v_lshl_add_u32 v{XO+q}, v{T2}, 4, v{T1}", w={XO+q}, r={T2, T1})
        V(f"v_lshrrev_b32 v{T3}, 5, v{L}", w={T3}, r={L})
        A.salu(f"s_lshl_b32 s3, s{sW3}, 2")
        A.salu(f"s_add_u32 s3, s3, {2*q}")
        V(f"v_add_u32 v{T1}, s3, v{T3}", w={T1}, r={T3})
        V(f"v_lshlrev_b32 v{T1}, 13, v{T1}", w={T1}, r={T1})
        V(f"v_or_b32 v{T3}, {2*q}, v{T3}", w={T3}, r={T3})
        V(f"v_lshlrev_b32 v{T3}, 2, v{T3}", w={T3}, r={T3})
        V(f"v_and_b32 v{T2}, 31, v{L}", w={T2}, r={L})
        V(f"v_xor_b32 v{T2}, v{T2}, v{T3}", w={T2}, r={T2, T3})
        V(f"v_lshl_add_u32 v{WO+q}, v{T2}, 4, v{T1}", w={WO+q}, r={T2, T1})
        V(f"v_lshrrev_b32 v{T3}, 4, v{L}", w={T3}, r={L})
        A.salu(f"s_lshl_b32 s3, s{sW}, 3")
        A.salu(f"s_add_u32 s3, s3, {4*q}")
        V(f"v_add_u32 v{T1}, s3, v{T3}", w={T1}, r={T3})
        V(f"v_lshlrev_b32 v{T1}, 8, v{T1}", w={T1}, r={T1})
        A.salu(f"s_and_b32 s3, s{sW}, 1")
        A.salu(f"s_lshl_b32 s3, s3, 1")
        A.salu(f"s_or_b32 s3, s3, {q}")
        V(f"v_lshlrev_b32 v{T3}, 2, v{T3}", w={T3}, r={T3})
        V(f"v_or_b32 v{T3}, s3, v{T3}", w={T3}, r={T3})
        V(f"v_and_b32 v{T2}, 15, v{L}", w={T2}, r={L})
        V(f"v_xor_b32 v{T2}, v{T2}, v{T3}", w={T2}, r={T2, T3})
        V(f"v_lshl_add_u32 v{KO+q}, v{T2}, 4, v{T1}", w={KO+q}, r={T2, T1})
    V(f"v_lshrrev_b32 v{T1}, 5, v{L}", w={T1}, r={L})
    V(f"v_bfe_u32 v{T2}, v{L}, 4, 1", w={T2}, r={L})
    V(f"v_bfe_u32 v{T3}, v{L}, 2, 2", w={T3}, r={L})
    V(f"v_and_b32 v{T4}, 3, v{L}", w={T4}, r={L})
    V(f"v_and_b32 v{T5}, 31, v{L}", w={T5}, r={L})
    V(f"v_lshl_add_u32 v{T6}, v{T1}, 3, v{T3}", w={T6}, r={T1, T3})
    V(f"v_lshlrev_b32 v{T6}, 9, v{T6}", w={T6}, r={T6})
    V(f"v_lshlrev_b32 v{T7}, 2, v{T3}", w={T7}, r={T3})
    V(f"v_lshl_add_u32 v{T7}, v{T2}, 1, v{T7}", w={T7}, r={T2, T7})
    V(f"v_and_b32 v{BW}, 1, v{T4}", w={BW}, r={T4})
    V(f"v_add_u32 v{T7}, v{T7}, v{BW}", w={T7}, r={T7, BW})
    A.salu(f"s_lshl_b32 s3, s{sHL}, 4")
    V(f"v_add_u32 v{T7}, s3, v{T7}", w={T7}, r={T7})
    V(f"v_lshl_add_u32 v{T6}, v{T7}, 4, v{T6}", w={T6}, r={T7, T6})
    V(f"v_lshrrev_b32 v{T7}, 1, v{T4}", w={T7}, r={T4})
    V(f"v_lshl_add_u32 v{BW}, v{T7}, 3, v{T6}", w={BW}, r={T7, T6})
    A.salu(f"s_lshl_b32 s3, s{sRT}, 5")
    V(f"v_add_u32 v{T6}, s3, v{T5}", w={T6}, r={T5})
    V(f"v_lshlrev_b32 v{T6}, 7, v{T6}", w={T6}, r={T6})
    V(f"v_bfe_u32 v{T7}, v{T5}, 1, 3", w={T7}, r={T5})
    V(f"v_xor_b32 v{T7}, v{T7}, v{T1}", w={T7}, r={T7, T1})
    V(f"v_lshl_add_u32 v{BX}, v{T7}, 4, v{T6}", w={BX}, r={T7, T6})
    V(f"v_lshlrev_b32 v{T6}, 2, v{T4}", w={T6}, r={T4})
    V(f"v_or_b32 v{T6}, v{T6}, v{T3}", w={T6}, r={T6, T3})
    V(f"v_xor_b32 v{T6}, v{T6}, v{T1}", w={T6}, r={T6, T1})
    V(f"v_lshlrev_b32 v{T7}, 8, v{T5}", w={T7}, r={T5})
    V(f"v_lshl_add_u32 v{BK}, v{T6}, 4, v{T7}", w={BK}, r={T6, T7})
    V(f"v_lshl_add_u32 v{T6}, v{T1}, 2, v{T3}", w={T6}, r={T1, T3})
    V(f"v_lshlrev_b32 v{T6}, 8, v{T6}", w={T6}, r={T6})
    V(f"v_lshrrev_b32 v{T7}, 1, v{T4}", w={T7}, r={T4})
    V(f"v_lshl_add_u32 v{T7}, v{T2}, 1, v{T7}", w={T7}, r={T2, T7})
    V(f"v_xor_b32 v{T7}, v{T7}, v{T1}", w={T7}, r={T7, T1})
    V(f"v_lshl_or_b32 v{T7}, v{T3}, 2, v{T7}", w={T7}, r={T3, T7})
    V(f"v_lshl_add_u32 v{T6}, v{T7}, 4, v{T6}", w={T6}, r={T7, T6})
    V(f"v_and_b32 v{T7}, 1, v{T4}", w={T7}, r={T4})
    V(f"v_lshl_add_u32 v{BV}, v{T7}, 3, v{T6}", w={BV}, r={T7, T6})
    V(f"v_lshlrev_b32 v{T6}, 17, v{T2}", w={T6}, r={T2})
    V(f"v_lshl_add_u32 v{T6}, v{T1}, 8, v{T6}", w={T6}, r={T1, T6})
    V(f"v_and_b32 v{T7}, 15, v{L}", w={T7}, r={L})
    V(f"v_lshl_add_u32 v{OST}, v{T7}, 4, v{T6}", w={OST}, r={T7, T6})
    V(f"v_mov_b32 v{LSUM}, 0", w={LSUM})
    A.waitcnt(lgkm=0)
    A.salu(f"s_cmp_eq_u32 s{sBLK}, 0")
    for k in range(8):
        A.salu(f"s_cselect_b32 s{8+k}, s{8+k}, s{16+k}")
    srd(A, SX, 8, 8 * 112 * 576 * 2)
    srd(A, SK, 10, 8 * 16 * 512 * 128 * 2)
    srd(A, SV, 12, 8 * 16 * 512 * 128 * 2)
    srd(A, SW_, 14, 576 * 4096 * 2)
    srd(A, SO, 24, 2 * O_BLK)
    A.salu(f"s_mul_i32 s{sOB}, s{sBLK}, {O_BLK}")
    A.salu(f"s_mul_i32 s3, s{sB}, 7")
    A.salu(f"s_lshl_b32 s{sT}, s{sRT}, 1")
    A.salu(f"s_add_u32 s3, s3, s{sT}")
    A.salu(f"s_lshl_b32 s3, s3, 17")
    A.salu(f"s_add_u32 s{sOB}, s{sOB}, s3")
    A.salu(f"s_lshl_b32 s3, s{sKVH}, 1")
    A.salu(f"s_add_u32 s3, s3, s{sHL}")
    A.salu(f"s_lshl_b32 s3, s3, 12")
    A.salu(f"s_add_u32 s{sOB}, s{sOB}, s3")
    if OPT["prio"]:
        A.salu(f"s_cmp_ge_u32 s{sW}, 4")
        A.salu("s_cbranch_scc0 K1_PRIO_DONE" if OPT["prio"] == 1 else "s_cbranch_scc1 K1_PRIO_DONE")
        A.salu("s_setprio 1")
        A.label("K1_PRIO_DONE")

    qunits = []
    for s_ in range(9):
        qunits += [("X", s_), ("W", 2 * s_), ("W", 2 * s_ + 1)]
    kvunits = [("K", 0)]
    for h in range(7):
        kvunits += [("K", h + 1), ("V", h)]
    kvunits += [("V", 7)]
    units = qunits + kvunits
    UK = {idx: 27 + i for i, (t_, idx) in enumerate(kvunits) if t_ == "K"}
    UV = {idx: 27 + i for i, (t_, idx) in enumerate(kvunits) if t_ == "V"}
    stage_units = [list(range(3 * s_, 3 * s_ + 3)) for s_ in range(9)]
    unit_last_vm = {}
    unit_slot = {}
    free = list(range(NSLOT))
    nq = [0]; nkv = [0]; xch = []
    KQ = FR
    DV = FR + 2
    NSTG = OPT["nstg"]
    STG = [S + 32, O, O + 32, P][:NSTG]

    def unit_info(u):
        typ, idx = units[u]
        if typ == "X": return sXB, idx * 128, SX, XO, 2 * 16 * 1152, "ntx"
        if typ == "W": return sWB, idx * 32 * 8192, SW_, WO, 2 * 4 * 8192, "ntw"
        if typ == "K": return sKVB, idx * 64 * 256, SK, KO, 4096, "ntkv"
        return sKVB, idx * 64 * 256, SV, KO, 4096, "ntkv"

    def sbase(base, const):
        if base == sKVB and OPT["rot"]:
            A.salu(f"s_add_u32 s{sT}, s{sMASK}, {const}")
            A.salu(f"s_and_b32 s{sT}, s{sT}, 0x1ffff")
            A.salu(f"s_or_b32 s{sT}, s{sT}, s{sKVB}")
        else:
            A.salu(f"s_add_u32 s{sT}, s{base}, {const}")

    def issue_unit_q(u, stage_reg=None):
        if stage_reg is None:
            slot = free.pop(0)
            unit_slot[u] = slot
        base, const, sr_, vo, delta, nto = unit_info(u)
        if vo == KO: vo = KQ
        nt = " nt" if OPT[nto] else ""
        for hv in range(4):
            A.salu(f"s_add_u32 s{sT}, s{base}, {const + delta * hv}")
            for q in range(2):
                if stage_reg is None:
                    A.salu(f"s_add_u32 m0, s{sWL4}, {slot * SLOT + hv * 4096 + q * 1024}", m0w=True)
                    k = A.vmem(f"buffer_load_dwordx4 v{vo+q}, s[{sr_}:{sr_+3}], s{sT} offen{nt} lds", kind="dma", r={vo + q}, m0r=True)
                else:
                    d = stage_reg + (hv * 2 + q) * 4
                    k = A.vmem(f"buffer_load_dwordx4 {vname(d,4)}, v{vo+q}, s[{sr_}:{sr_+3}], s{sT} offen{nt}", w=vr(d, 4), r={vo + q})
        unit_last_vm[u] = k

    def issue_unit_4(u):
        slot = free.pop(0)
        unit_slot[u] = slot
        base, const, sr_, vo, delta, nto = unit_info(u)
        nt = " nt" if OPT[nto] else ""
        sbase(base, const)
        if vo != KO: A.salu(f"s_add_u32 s{sT2}, s{base}, {const + 2 * delta}")
        for hv in range(2):
            for q in range(2):
                A.salu(f"s_add_u32 m0, s{sWL4}, {slot * SLOT + hv * 8192 + q * 1024}", m0w=True)
                if vo == KO:
                    va = (KQ if hv == 0 else KO) + q; so = sT
                else:
                    va = vo + q; so = sT if hv == 0 else sT2
                k = A.vmem(f"buffer_load_dwordx4 v{va}, s[{sr_}:{sr_+3}], s{so} offen{nt} lds", kind="dma", r={va}, m0r=True)
        unit_last_vm[u] = k

    def flood():
        if not OPT["l2pf"]: return
        V(f"v_lshrrev_b32 v{T1}, 2, v{L}", w={T1}, r={L})
        V(f"v_lshlrev_b32 v{T1}, 13, v{T1}", w={T1}, r={T1})
        V(f"v_and_b32 v{T2}, 3, v{L}", w={T2}, r={L})
        V(f"v_lshl_add_u32 v{T1}, v{T2}, 7, v{T1}", w={T1}, r={T2, T1})
        A.salu(f"s_lshl_b32 s3, s{sW}, 4")
        A.salu(f"s_min_u32 s3, s3, 56")
        A.salu(f"s_mul_i32 s{sT}, s{sB}, 72")
        A.salu(f"s_add_u32 s3, s3, s{sT}")
        A.salu(f"s_lshl_b32 s3, s3, 13")
        A.salu(f"s_add_u32 s3, s3, s{sWB}")
        A.vmem(f"buffer_load_dword v{T4}, v{T1}, s[{SW_}:{SW_+3}], s3 offen", w={T4}, r={T1})
        V(f"v_lshlrev_b32 v{T2}, 7, v{L}", w={T2}, r={L})
        A.salu(f"s_and_b32 s3, s{sKVH}, 3")
        A.salu(f"s_mul_i32 s3, s3, 32256")
        A.salu(f"s_and_b32 s{sT}, s{sW}, 3")
        A.salu(f"s_lshl_b32 s{sT}, s{sT}, 13")
        A.salu(f"s_add_u32 s3, s3, s{sT}")
        A.salu(f"s_add_u32 s3, s3, s{sXB}")
        A.vmem(f"buffer_load_dword v{T5}, v{T2}, s[{SX}:{SX+3}], s3 offen", w={T5}, r={T2})

    def dump_unit(u, stage_reg):
        slot = free.pop(0)
        unit_slot[u] = slot
        V(f"v_add_u32 v{DV+1}, {slot * SLOT}, v{DV}", w={DV + 1}, r={DV})
        for hv in range(4):
            for q in range(2):
                A.ds_write_b128(DV + 1, stage_reg + (hv * 2 + q) * 4, hv * 4096 + q * 1024)

    def dma_items(u):
        slot = free.pop(0)
        unit_slot[u] = slot
        base, const, sr_, vo, delta, nto = unit_info(u)
        nt = " nt" if OPT[nto] else ""
        def mk(q):
            def f():
                sbase(base, const)
                A.salu(f"s_add_u32 m0, s{sWL}, {slot * SLOT + q * 1024}", m0w=True)
                k = A.vmem(f"buffer_load_dwordx4 v{vo+q}, s[{sr_}:{sr_+3}], s{sT} offen{nt} lds", kind="dma", r={vo + q}, m0r=True)
                unit_last_vm[u] = k
            return f
        if not OPT["stag"]: return [mk(0), mk(1)]
        G = 8 // OPT["stag"]
        def cond(f, g):
            def h():
                lab = f"K1_D{nlab[0]}"; nlab[0] += 1
                A.salu(f"s_cmp_eq_u32 s{sT2}, {g}")
                A.salu(f"s_cbranch_scc0 {lab}")
                n0 = len(A.out)
                f()
                for o in A.out[n0:]: o.ws = 0
                A.label(lab)
                if g < G - 1: A.nvm -= 1
            return h
        return [cond(mk(q), g) for q in range(2) for g in range(G)]
    nlab = [0]

    NQ = OPT["nq"]
    PF = Prof(A, 0)
    PF.stamp("start")

    def addr_items(dst, base, slot, xors):
        it = [lambda: V(f"v_add_u32 v{dst[0]}, {slot * SLOT}, v{base}", w={dst[0]}, r={base})]
        for i, x in enumerate(xors):
            if i == 0: continue
            it.append(lambda i=i, x=x: V(f"v_xor_b32 v{dst[i]}, {x}, v{dst[0]}", w={dst[i]}, r={dst[0]}))
        return it

    A.salu(f"s_cmp_lt_u32 s{sW}, 4")
    A.salu("s_cbranch_scc1 K1_FAT")
    pf0 = PF.n
    staged = []
    if OPT["ld4"]:
        for q in range(2):
            V(f"v_subrev_u32 v{KQ+q}, {4*8*256}, v{KO+q}", w={KQ + q}, r={KO + q})
        NL = NSLOT - NQ
        def refill(s):
            done_q = 3 * max(s, 0)
            while nq[0] < 27 and nq[0] - done_q < NQ and free:
                issue_unit_4(nq[0]); nq[0] += 1
        def kv_issue():
            if nkv[0] < NL:
                if free:
                    issue_unit_4(27 + nkv[0]); nkv[0] += 1
        LW, LX = FR + 4, FR + 5
        nroll = [NQ // 3]
        def lroll(n):
            n = min(n, 9 - nroll[0])
            if n <= 0 or OPT["roll"] != 2: return
            a = nroll[0]; nroll[0] += n
            if n < 8:
                m = (1 << (8 * n)) - 1
                A.salu(f"s_mov_b32 exec_lo, {m & 0xffffffff}")
                A.salu(f"s_mov_b32 exec_hi, {m >> 32}")
            A.salu(f"s_add_u32 s3, s8, {a * 64 * 8192}")
            A.vmem(f"buffer_load_dword v{FR+6}, v{LW}, s[{SW_}:{SW_+3}], s3 offen", w={FR + 6}, r={LW})
            A.vmem(f"buffer_load_dword v{FR+7}, v{LX}, s[{SX}:{SX+3}], s9 offen offset:{a * 128}", w={FR + 7}, r={LX})
            if n < 8: A.salu("s_mov_b64 exec, -1")
        refill(-1)
        for _ in range(OPT["kv0"]): kv_issue()
        if not OPT["roll"]: flood()
        if OPT["roll"] == 2:
            V(f"v_bfe_u32 v{T1}, v{L}, 2, 1", w={T1}, r={L})
            A.salu(f"s_lshl_b32 s3, s{sW3}, 1")
            V(f"v_add_u32 v{T1}, s3, v{T1}", w={T1}, r={T1})
            V(f"v_lshrrev_b32 v{T3}, 3, v{L}", w={T3}, r={L})
            V(f"v_lshl_add_u32 v{T1}, v{T3}, 6, v{T1}", w={T1}, r={T3, T1})
            V(f"v_lshlrev_b32 v{T1}, 13, v{T1}", w={T1}, r={T1})
            V(f"v_and_b32 v{T2}, 3, v{L}", w={T2}, r={L})
            V(f"v_lshl_add_u32 v{LW}, v{T2}, 7, v{T1}", w={LW}, r={T2, T1})
            V(f"v_and_b32 v{T1}, 7, v{L}", w={T1}, r={L})
            V(f"v_min_u32 v{T1}, 6, v{T1}", w={T1}, r={T1})
            A.salu(f"s_mul_i32 s3, s{sW3}, 7")
            V(f"v_add_u32 v{T1}, s3, v{T1}", w={T1}, r={T1})
            V(f"v_mul_u32_u24 v{T1}, 1152, v{T1}", w={T1}, r={T1})
            V(f"v_lshl_add_u32 v{LX}, v{T3}, 7, v{T1}", w={LX}, r={T3, T1})
            A.salu(f"s_lshl_b32 s8, s{sB}, 16")
            A.salu(f"s_add_u32 s8, s8, s{sWB}")
            A.salu(f"s_and_b32 s9, s{sKVH}, 3")
            A.salu(f"s_mul_i32 s9, s9, {28*1152}")
            A.salu(f"s_add_u32 s9, s9, s{sXB}")
            lroll(OPT["pflead"] - nroll[0])
        for s in range(9):
            A.wait_vm(max(unit_last_vm[u] for u in stage_units[s]))
            A.barrier()
            PF.stamp(f"q{s}")
            if s > 0:
                for u in stage_units[s - 1]: free.append(unit_slot[u])
            refill(s)
            lroll(OPT["pfrate"])
            if s == 8:
                xch.append(free.pop(0)); xch.append(free.pop(0))
            elif s >= OPT["kvs"]:
                for _ in range(OPT["kvrate"]): kv_issue()
            if nq[0] == 27 and nkv[0] >= NL:
                while free:
                    issue_unit_4(27 + nkv[0]); nkv[0] += 1
        A.salu("s_branch K1_ATT")
        ldr_vm = (A.nvm, A.vm_done)
    else:
        A.salu(f"s_cmp_ge_u32 s{sW}, 6")
        A.salu("s_cbranch_scc1 K1_KVL")
        pf0 = PF.n
        kvslots = [free.pop() for _ in range(NSLOT - NQ)]
        def refill(s):
            done_q = 3 * max(s, 0)
            while nq[0] < 27 and nq[0] - done_q < NQ and free:
                issue_unit_q(nq[0]); nq[0] += 1
        refill(-1)
        for s in range(9):
            A.wait_vm(max(unit_last_vm[u] for u in stage_units[s]))
            A.barrier()
            PF.stamp(f"q{s}")
            if s > 0:
                for u in stage_units[s - 1]: free.append(unit_slot[u])
            refill(s)
            if s == 8:
                xch.append(free.pop(0)); xch.append(free.pop(0))
        A.waitcnt(vm=0)
        A.vm_done = A.nvm
        A.salu("s_branch K1_ATT")
        A.label("K1_KVL")
        A.win = []
        A.salu("s_nop 4")
        PF.n = pf0; PF.names = PF.names[:pf0]
        for q in range(2):
            V(f"v_subrev_u32 v{KQ+q}, {6*8*256}, v{KO+q}", w={KQ + q}, r={KO + q})
        V(f"v_lshlrev_b32 v{DV}, 4, v{L}", w={DV}, r={L})
        V(f"v_add_u32 v{DV}, s{sWL4}, v{DV}", w={DV}, r={DV})
        late_free = free[:]; free[:] = kvslots
        NL = len(kvslots)
        TV = FR + 4
        V(f"v_lshlrev_b32 v{TV}, 7, v{L}", w={TV}, r={L})
        A.salu(f"s_lshl_b32 s3, s{sW3}, 13")
        V(f"v_add_u32 v{TV}, s3, v{TV}", w={TV}, r={TV})
        NT = OPT["kvt"]
        ntouch = [0]
        def kv_issue():
            i = nkv[0]
            if i < NL: issue_unit_q(27 + i)
            elif i < NL + NSTG: issue_unit_q(27 + i, STG[i - NL])
            else:
                if ntouch[0] < NT:
                    u = 27 + NL + NSTG + ntouch[0]
                    base, const, sr_, vo, delta, nto = unit_info(u)
                    A.salu(f"s_add_u32 s{sT}, s{base}, {const}")
                    A.vmem(f"buffer_load_dword v{TV+1}, v{TV}, s[{sr_}:{sr_+3}], s{sT} offen", w={TV + 1}, r={TV})
                    ntouch[0] += 1
                return
            nkv[0] += 1
        for _ in range(OPT["kv0"]): kv_issue()
        for s in range(9):
            A.barrier()
            PF.stamp(f"q{s}")
            for _ in range(OPT["kvrate"]): kv_issue()
        assert nkv[0] == NL + NSTG
        free[:] = late_free
        staged = [(27 + NL + i, STG[i]) for i in range(NSTG)]
        while staged and free:
            u, r_ = staged.pop(0)
            A.wait_vm(unit_last_vm[u])
            dump_unit(u, r_)
        A.waitcnt(vm=0)
        A.vm_done = A.nvm
        A.wait_ds_all()
        A.salu("s_branch K1_ATT")
    A.label("K1_FAT")
    A.win = []
    A.salu("s_nop 4")
    PF.n = pf0; PF.names = PF.names[:pf0]
    TW, TX = XO, XO + 1
    if OPT["roll"] == 2:
        pass
    elif OPT["ld4"] and not OPT["roll"]:
        V(f"v_lshlrev_b32 v{TW}, 7, v{L}", w={TW}, r={L})
        A.salu(f"s_lshl_b32 s3, s{sW}, 13")
        V(f"v_add_u32 v{TW}, s3, v{TW}", w={TW}, r={TW})
    else:
        TW, TX = XO, XO + 1
        V(f"v_bfe_u32 v{T1}, v{L}, 2, 1", w={T1}, r={L})
        A.salu(f"s_lshl_b32 s3, s{sW}, 1")
        V(f"v_add_u32 v{T1}, s3, v{T1}", w={T1}, r={T1})
        V(f"v_lshlrev_b32 v{T1}, 13, v{T1}", w={T1}, r={T1})
        V(f"v_and_b32 v{T2}, 3, v{L}", w={T2}, r={L})
        V(f"v_lshl_add_u32 v{TW}, v{T2}, 7, v{T1}", w={TW}, r={T2, T1})
        V(f"v_and_b32 v{T1}, 7, v{L}", w={T1}, r={L})
        V(f"v_min_u32 v{T1}, 6, v{T1}", w={T1}, r={T1})
        A.salu(f"s_mul_i32 s3, s{sW}, 7")
        V(f"v_add_u32 v{T1}, s3, v{T1}", w={T1}, r={T1})
        V(f"v_mul_u32_u24 v{TX}, 1152, v{T1}", w={TX}, r={T1})
        A.salu(f"s_lshl_b32 s8, s{sB}, 16")
        A.salu(f"s_add_u32 s8, s8, s{sWB}")
        A.salu(f"s_and_b32 s9, s{sKVH}, 3")
        A.salu(f"s_mul_i32 s9, s9, {28*1152}")
        A.salu(f"s_add_u32 s9, s9, s{sXB}")
    def touch(s_):
        if not OPT["l2pf"] or s_ > 8: return
        A.salu(f"s_add_u32 s3, s8, {s_ * 64 * 8192}")
        A.vmem(f"buffer_load_dword v{T4}, v{TW}, s[{SW_}:{SW_+3}], s3 offen", w={T4}, r={TW})
        A.vmem(f"buffer_load_dword v{T5}, v{TX}, s[{SX}:{SX+3}], s9 offen offset:{s_ * 128}", w={T5}, r={TX})
    if OPT["roll"] == 2:
        touch = lambda s_: None
    elif OPT["roll"]:
        touch1 = touch
        nroll = [2]
        def roll(n):
            for _ in range(n):
                touch1(nroll[0]); nroll[0] += 1
        roll(OPT["pflead"] - 2)
        touch = lambda s_: roll(OPT["pfrate"])
    elif OPT["ld4"]:
        flood()
        ntouch = [0]
        def touch(s_):
            s_ -= OPT["pflead"]
            if s_ < OPT["kvt0"]: return
            for _ in range(OPT["kvtr"]):
                if ntouch[0] >= OPT["kvt"]: return
                ua = 27 + NL + 1 + ntouch[0]
                ia = unit_info(ua); ib = unit_info(ua + 1)
                A.salu(f"s_cmp_lt_u32 s{sW}, 2")
                A.salu(f"s_mov_b32 s3, {ib[1] - 16384}")
                A.salu(f"s_cselect_b32 s3, {ia[1]}, s3")
                A.salu(f"s_cselect_b32 s60, s{ia[2]}, s{ib[2]}")
                A.salu(f"s_cselect_b32 s61, s{ia[2]+1}, s{ib[2]+1}")
                A.salu(f"s_mov_b32 s62, s{ia[2]+2}")
                A.salu(f"s_mov_b32 s63, s{ia[2]+3}")
                A.salu(f"s_add_u32 s3, s3, s{sKVB}")
                A.vmem(f"buffer_load_dword v{T4}, v{TW}, s[60:63], s3 offen", w={T4}, r={TW})
                ntouch[0] += 2
    if not OPT["ld4"]:
        for s_ in range(2, OPT["pflead"]): touch(s_)
    if OPT["tlbw"]:
        A.salu("s_load_dwordx2 s[16:17], s[0:1], 32")
        A.salu("s_load_dwordx2 s[18:19], s[0:1], 72")
        A.salu("s_load_dwordx2 s[20:21], s[0:1], 80")
        D = NEGM
        V(f"v_lshlrev_b32 v{T1}, 12, v{L}", w={T1}, r={L})
        V(f"v_and_b32 v{T1}, 0x1ffff, v{T1}", w={T1}, r={T1})
        A.vmem(f"buffer_load_dword v{D}, v{T1}, s[{SV}:{SV+3}], s{sKVB} offen", w={D}, r={T1})
        if OPT["tlbw"] > 1:
            A.vmem(f"buffer_load_dword v{D+1}, v{T1}, s[{SK}:{SK+3}], s{sKVB} offen", w={D + 1}, r={T1})
        V(f"v_min_u32 v{T2}, 6, v{L}", w={T2}, r={L})
        V(f"v_lshlrev_b32 v{T2}, 17, v{T2}", w={T2}, r={T2})
        A.salu(f"s_mul_i32 s3, s{sBLK}, {O_BLK}")
        A.salu(f"s_mul_i32 s{sT}, s{sB}, {7*131072}")
        A.salu(f"s_add_u32 s3, s3, s{sT}")
        A.vmem(f"buffer_load_dword v{D+2}, v{T2}, s[{SO}:{SO+3}], s3 offen", w={D + 2}, r={T2})
        V(f"v_lshlrev_b32 v{T3}, 16, v{L}", w={T3}, r={L})
        A.salu("s_waitcnt lgkmcnt(0)")
        A.salu(f"s_cmp_eq_u32 s{sBLK}, 0")
        A.salu("s_cselect_b32 s60, s16, s18")
        A.salu("s_cselect_b32 s61, s17, s19")
        A.salu("s_and_b32 s61, s61, 0xffff")
        A.salu(f"s_mov_b32 s62, {4096*576*2}")
        A.salu("s_mov_b32 s63, 0x00020000")
        A.salu(f"s_mov_b32 s3, {8*65536}")
        A.vmem(f"buffer_load_dword v{D+3}, v{T3}, s[60:63], 0 offen", w={D + 3}, r={T3})
        A.vmem(f"buffer_load_dword v{D+4}, v{T3}, s[60:63], s3 offen", w={D + 4}, r={T3})
        A.salu("s_mov_b32 s16, s20")
        A.salu("s_and_b32 s17, s21, 0xffff")
        A.salu(f"s_mov_b32 s18, {896*1152*2}")
        A.salu("s_mov_b32 s19, 0x00020000")
        A.vmem(f"buffer_load_dword v{D+5}, v{T3}, s[16:19], 0 offen", w={D + 5}, r={T3})
    QA = [S, O]
    FBW = [P, QB]; FBX = [P + 16, QB + 16]
    AW = [FR, FR + 4]; AX = FR + 8
    def qaddr(s):
        u0 = 3 * s
        return (addr_items([AX + i for i in range(4)], BX, unit_slot[u0], [0, 32, 64, 96]) +
                addr_items([AW[0] + i for i in range(4)], BW, unit_slot[u0 + 1], [0, 64, 128, 192]) +
                addr_items([AW[1] + i for i in range(4)], BW, unit_slot[u0 + 2], [0, 64, 128, 192]))
    def qread_items(ks):
        it = [lambda: A.ds_read_b128(FBX[ks % 2], AX + ks), lambda: A.ds_read_b128(FBX[ks % 2] + 4, AX + ks, 4096)]
        for t in range(4):
            for j in range(2):
                it.append(lambda t=t, j=j: A.ds_read_tr(FBW[ks % 2] + 4 * t + 2 * j, AW[ks // 2] + t, ((ks % 2) * 16 + 4 * j) * 512))
        return it
    def qreads(ks):
        for it in qread_items(ks): last = it()
        return last
    for it in qaddr(0): it()
    A.barrier()
    PF.stamp("q0")
    pend = qreads(0)
    touch(OPT["pflead"])
    QI = OPT["qi"]
    for s in range(9):
        for ks in range(4):
            A.wait_ds(pend)
            rq = []
            if ks < 3:
                if QI: rq = qread_items(ks + 1)
                else: pend = qreads(ks + 1)
            nxt = qaddr(s + 1) if (ks == 3 and s < 8) else []
            m = 0
            for t in range(4):
                for r2 in range(2):
                    A.mfma(QA[r2] + 16 * t, FBW[ks % 2] + 4 * t, FBX[ks % 2] + 4 * r2, "zero" if (s == 0 and ks == 0) else None)
                    if nxt:
                        if m < 2:
                            for it in nxt[6 * m: 6 * m + 6]: it()
                        if m == 1:
                            A.barrier()
                            PF.stamp(f"q{s+1}")
                            if QI: rq = qread_items(0)
                            else: pend = qreads(0)
                        if m == 3: touch(s + 1 + OPT["pflead"])
                    for _ in range(QI):
                        if rq: pend = rq.pop(0)()
                    m += 1
            assert not rq
    A.salu(f"s_lshr_b32 s3, s{sW}, 1")
    A.salu(f"s_cmp_eq_u32 s3, 0")
    A.salu(f"s_cselect_b32 s3, {xch[0]}, {xch[1]}")
    A.salu(f"s_lshl_b32 s3, s3, 14")
    A.salu(f"s_and_b32 s{sT}, s{sW}, 1")
    A.salu(f"s_lshl_b32 s{sT}, s{sT}, 13")
    A.salu(f"s_add_u32 s3, s3, s{sT}")
    V(f"v_lshlrev_b32 v{T6}, 4, v{L}", w={T6}, r={L})
    V(f"v_add_u32 v{T6}, s3, v{T6}", w={T6}, r={T6})
    for i in range(64):
        V(f"v_mul_f32 v{O+i}, s{sC}, v{O+i}", w={O + i}, r={O + i})
    for q in range(32):
        V(f"v_cvt_pk_bf16_f32 v{P+q}, v{O+2*q}, v{O+2*q+1}", w={P + q}, r={O + 2 * q, O + 2 * q + 1})
        if q % 4 == 3:
            A.ds_write_b128(T6, P + q - 3, (q // 4) * 1024)
    for i in range(64):
        V(f"v_mul_f32 v{S+i}, s{sC}, v{S+i}", w={S + i}, r={S + i})
    for q in range(32):
        V(f"v_cvt_pk_bf16_f32 v{QB+q}, v{S+2*q}, v{S+2*q+1}", w={QB + q}, r={S + 2 * q, S + 2 * q + 1})
    A.wait_ds_all()
    A.waitcnt(vm=0)
    A.vm_done = A.nvm
    if OPT["ld4"]:
        A.nvm, A.vm_done = ldr_vm
    A.label("K1_ATT")
    A.win = []
    A.salu("s_nop 4")
    if OPT["stag"]:
        A.salu(f"s_lshr_b32 s{sT2}, s{sW}, {OPT['stag'] - 1}")

    SETA = [AD + i for i in range(8)]
    SETB = [XO, XO + 1, WO, WO + 1, BW, BX, T4, T5]
    kx = [32 * ks for ks in range(8)]
    vx = [(t << 6) ^ (32 * jj) for t in range(4) for jj in range(2)]
    SB = lambda h: S + 32 * (h % 2)
    PB = lambda h: P + 16 * (h % 2)
    phases = [("qk", 0)] + [x for h in range(7) for x in (("qk", h + 1), ("pv", h))] + [("pv", 7)]
    pset = {}
    for ph in phases:
        pset[ph] = SETA if ph[0] == "qk" else SETB
    pset[("qk", 0)] = SETB; pset[("pv", 7)] = SETA
    punit = lambda ph: UK[ph[1]] if ph[0] == "qk" else UV[ph[1]]
    def paddr(ph):
        u = punit(ph)
        return addr_items(pset[ph], BK if ph[0] == "qk" else BV, unit_slot[u], kx if ph[0] == "qk" else vx)
    mf = [(ph, i) for ph in phases for i in range(16)]
    syncJ = list(range(0, 6, OPT["bstep"]))
    sync_pos = [phases.index(("pv", j)) * 16 + 12 for j in syncJ]
    first_read = {}
    for n, (ph, i) in enumerate(mf):
        first_read.setdefault(punit(ph), max(n - 4, -1))
    last_read = {}
    for n, (ph, i) in enumerate(mf):
        last_read[punit(ph)] = n - 4
    def publish_set(pos_from, pos_to):
        return [u for u, fr in first_read.items() if pos_from <= fr < pos_to]
    freed = set()
    dmaq = []
    def refill_att():
        while nkv[0] < 16 and free:
            dmaq.extend(dma_items(27 + nkv[0])); nkv[0] += 1

    pub = publish_set(-1, sync_pos[0])
    A.wait_vm(max(unit_last_vm[u] for u in pub))
    A.barrier()
    PF.stamp("a0")
    for u in stage_units[8]: free.append(unit_slot[u])
    A.salu(f"s_cmp_lt_u32 s{sW}, 4")
    A.salu(f"s_cbranch_scc1 K1_QGOT")
    if staged:
        A.salu(f"s_cmp_lt_u32 s{sW}, 6")
        A.salu(f"s_cbranch_scc1 K1_NODUMP")
        while staged:
            u, r_ = staged.pop(0)
            dump_unit(u, r_)
        A.label("K1_NODUMP")
    refill_att()
    A.salu(f"s_bfe_u32 s3, s{sW}, 0x10001")
    A.salu(f"s_cmp_eq_u32 s3, 0")
    A.salu(f"s_cselect_b32 s3, {xch[0]}, {xch[1]}")
    A.salu(f"s_lshl_b32 s3, s3, 14")
    A.salu(f"s_and_b32 s{sT}, s{sW}, 1")
    A.salu(f"s_lshl_b32 s{sT}, s{sT}, 13")
    A.salu(f"s_add_u32 s3, s3, s{sT}")
    V(f"v_lshlrev_b32 v{T6}, 4, v{L}", w={T6}, r={L})
    V(f"v_add_u32 v{T6}, s3, v{T6}", w={T6}, r={T6})
    for q in range(8):
        A.ds_read_b128(QB + 4 * q, T6, q * 1024)
    A.wait_ds_all()
    A.label("K1_QGOT")
    A.salu("s_nop 1")
    for it in paddr(("qk", 0)) + paddr(("qk", 1)): it()

    TT = [T0, T1, T2, T3]
    def max_items(regs, first, final):
        it = []
        r = list(regs)
        if first:
            a = r[:3]; b = r[3:6]; r = r[6:]
            it.append(lambda a=a: V(f"v_max3_f32 v{MX}, v{a[0]}, v{a[1]}, v{a[2]}", w={MX}, r=set(a)))
            it.append(lambda b=b: V(f"v_max3_f32 v{MX2}, v{b[0]}, v{b[1]}, v{b[2]}", w={MX2}, r=set(b)))
        k = 0
        while r:
            a = r[:2]; r = r[2:]
            d = MX if k % 2 == 0 else MX2
            it.append(lambda a=a, d=d: V(f"v_max3_f32 v{d}, v{d}, v{a[0]}, v{a[1]}", w={d}, r={d} | set(a)))
            k += 1
        if final:
            it.append(lambda: V(f"v_max_f32 v{MX}, v{MX}, v{MX2}", w={MX}, r={MX, MX2}))
            it.append(lambda: V(f"v_mov_b32 v{MX2}, v{MX}", w={MX2}, r={MX}))
            it.append(lambda: V(f"v_permlane32_swap_b32 v{MX}, v{MX2}", w={MX, MX2}, r={MX, MX2}, kind="perm"))
            it.append(lambda: V(f"v_max_f32 v{MX}, v{MX}, v{MX2}", w={MX}, r={MX, MX2}))
        return it
    def sm_items(h, lo, hi, sub):
        it = []
        sb, pb = SB(h), PB(h)
        if sub:
            it.append(lambda: V(f"v_sub_f32 v{sb+lo}, v{sb+lo}, v{MX}", w={sb + lo}, r={sb + lo, MX}))
        for e in range(lo, hi + 2):
            if sub and e + 1 < hi:
                it.append(lambda e=e: V(f"v_sub_f32 v{sb+e+1}, v{sb+e+1}, v{MX}", w={sb + e + 1}, r={sb + e + 1, MX}))
            if e < hi:
                it.append(lambda e=e: V(f"v_exp_f32 v{TT[e%4]}, v{sb+e}", w={TT[e % 4]}, r={sb + e}, kind="trans"))
            if lo <= e - 1 < hi:
                p = e - 1; acc = SUMA if p % 2 == 0 else SUMB
                if p < 2:
                    it.append(lambda p=p, acc=acc: V(f"v_mov_b32 v{acc}, v{TT[p%4]}", w={acc}, r={TT[p % 4]}))
                else:
                    it.append(lambda p=p, acc=acc: V(f"v_add_f32 v{acc}, v{acc}, v{TT[p%4]}", w={acc}, r={acc, TT[p % 4]}))
            if e - 2 >= lo and (e - 2) % 2 == 0 and e - 1 < hi:
                p = e - 2
                it.append(lambda p=p: V(f"v_cvt_pk_bf16_f32 v{pb+p//2}, v{TT[p%4]}, v{TT[(p+1)%4]}", w={pb + p // 2}, r={TT[p % 4], TT[(p + 1) % 4]}))
        return it
    def negm_items():
        return [lambda i=i: V(f"v_sub_f32 v{NEGM+i}, 0, v{MX}", w={NEGM + i}, r={MX}) for i in range(16)]
    def check(h):
        V(f"v_add_f32 v{SUMA}, v{SUMA}, v{SUMB}", w={SUMA}, r={SUMA, SUMB})
        if h > 0:
            V(f"v_cmp_nge_f32 vcc, s{sTHR}, v{SUMA}", r={SUMA}, sw={"vcc"})
            A.salu("s_nop 1")
            A.salu(f"s_cbranch_vccnz K1_SLOW{h}")
            A.label(f"K1_BACK{h}")
        V(f"v_add_f32 v{LSUM}, v{LSUM}, v{SUMA}", w={LSUM}, r={LSUM, SUMA})

    def side_for(ph):
        kind, h = ph
        if ph == ("qk", 0):
            return [], []
        if kind == "qk":
            hh = h - 1
            if hh == 0:
                main = max_items([SB(0) + i for i in range(32)], True, True) + sm_items(0, 0, 32, True)
            else:
                main = sm_items(hh, 16, 32, hh == 1)
            return main, paddr(("pv", hh))
        if h == 7: return [], []
        if h == 6:
            return sm_items(7, 0, 32, False), paddr(("pv", 7))
        main = sm_items(h + 1, 0, 16, h == 0)
        if h == 0: main = negm_items() + main
        return main, paddr(("qk", h + 2))

    rid = {}
    def issue_read(n):
        ph, i = mf[n]
        st = pset[ph]; fr = FR + 4 * (n % 4)
        if ph[0] == "qk":
            rid[n] = A.ds_read_b128(fr, st[i % 8], (i // 8) * 8192)
        else:
            g, t = i // 4, i % 4
            A.ds_read_tr(fr, st[2 * t], g * 4096)
            rid[n] = A.ds_read_tr(fr + 2, st[2 * t + 1], g * 4096 + 2048)
    for n in range(4): issue_read(n)
    gap = 0
    for n, (ph, i) in enumerate(mf):
        kind, h = ph
        if i == 0:
            main, adr = side_for(ph)
            plan = [[] for _ in range(16)]
            for k, it in enumerate(adr): plan[k * 12 // max(len(adr), 1)].append(it)
            s0 = 1 if ph == ("qk", 1) else 0
            for k, it in enumerate(main): plan[s0 + k * (16 - s0) // len(main)].append(it)
        A.wait_ds(rid[n])
        fr = FR + 4 * (n % 4)
        if kind == "qk":
            kt, ks = i // 8, i % 8
            c = None
            if ks == 0: c = "zero" if h <= 1 else NEGM
            A.mfma(SB(h) + 16 * kt, fr, QB + 4 * ks, c)
        else:
            g, t = i // 4, i % 4
            A.mfma(O + 16 * t, fr, PB(h) + 4 * g, "zero" if (h == 0 and g == 0) else None)
        if n in sync_pos:
            k = sync_pos.index(n)
            pub = publish_set(n, sync_pos[k + 1] if k + 1 < len(sync_pos) else 10**9)
            while dmaq: dmaq.pop(0)()
            A.wait_ds_all()
            A.wait_vm(max(unit_last_vm[u] for u in pub))
            A.barrier()
            PF.stamp(f"x{h}")
            if k == 0: free.extend(xch)
            for u, lr in last_read.items():
                if lr < n and u not in freed:
                    freed.add(u); free.append(unit_slot[u])
            refill_att()
            if OPT["wopf"] and h == OPT["wopf"] - 1:
                A.salu("s_load_dwordx2 s[60:61], s[0:1], 32")
                A.salu("s_load_dwordx2 s[62:63], s[0:1], 72")
                A.salu(f"s_lshl_b32 s3, s{sB}, 4")
                A.salu(f"s_add_u32 s3, s3, s{sKVH}")
                A.salu(f"s_mul_i32 s3, s3, 288")
                A.salu(f"s_lshl_b32 s{sT}, s{sW}, 6")
                A.salu(f"s_min_u32 s{sT}, s{sT}, 224")
                A.salu(f"s_add_u32 s3, s3, s{sT}")
                A.salu(f"s_lshl_b32 s3, s3, 7")
                V(f"v_mbcnt_lo_u32_b32 v{T6}, -1, 0", w={T6})
                V(f"v_mbcnt_hi_u32_b32 v{T6}, -1, v{T6}", w={T6}, r={T6})
                V(f"v_lshlrev_b32 v{T6}, 7, v{T6}", w={T6}, r={T6})
                A.salu("s_waitcnt lgkmcnt(0)")
                A.salu(f"s_cmp_eq_u32 s{sBLK}, 0")
                A.salu("s_cselect_b32 s60, s60, s62")
                A.salu("s_cselect_b32 s61, s61, s63")
                A.salu("s_and_b32 s61, s61, 0xffff")
                A.salu(f"s_mov_b32 s62, {4096*576*2}")
                A.salu("s_mov_b32 s63, 0x00020000")
                A.vmem(f"buffer_load_dword v{T7}, v{T6}, s[60:63], s3 offen", w={T7}, r={T6})
        if n + 4 < len(mf): issue_read(n + 4)
        for it in plan[i]: it()
        gap += 1
        if dmaq and gap >= OPT["dmagap"]:
            dmaq.pop(0)(); gap = 0
        if i == 15:
            if kind == "qk" and h >= 1: check(h - 1)
            if ph == ("pv", 6): check(7)
    assert not dmaq
    PF.stamp("pv7")
    V(f"v_mov_b32 v{T0}, v{LSUM}", w={T0}, r={LSUM})
    V(f"v_permlane32_swap_b32 v{T0}, v{LSUM}", w={T0, LSUM}, r={T0, LSUM}, kind="perm")
    V(f"v_add_f32 v{T0}, v{T0}, v{LSUM}", w={T0}, r={T0, LSUM})
    V(f"v_rcp_f32 v{T0}, v{T0}", w={T0}, r={T0}, kind="trans")
    A.salu(f"s_cmp_eq_u32 s{sRT}, 3")
    A.salu("s_cbranch_scc0 K1_NOMASK")
    A.salu("s_mov_b32 exec_lo, 0xffff")
    A.salu("s_mov_b32 exec_hi, 0xffff")
    A.label("K1_NOMASK")
    for f in range(8):
        b0 = O + 8 * f
        for i in range(8):
            V(f"v_mul_f32 v{b0+i}, v{T0}, v{b0+i}", w={b0 + i}, r={T0, b0 + i})
        d = P + 4 * f
        for q in range(4):
            V(f"v_cvt_pk_bf16_f32 v{d+q}, v{b0+2*q}, v{b0+2*q+1}", w={d + q}, r={b0 + 2 * q, b0 + 2 * q + 1})
        A.vmem(f"buffer_store_dwordx4 {vname(d,4)}, v{OST}, s[{SO}:{SO+3}], s{sOB} offen offset:{f*512}{' nt' if OPT['ntst'] else ''}", r=vr(d, 4) | {OST}, storedata=vr(d, 4))
    PF.dump(24, sW, 0)
    A.label("K1_END")
    A.salu("s_endpgm")
    for h in range(1, 8):
        A.label(f"K1_SLOW{h}")
        A.flush_hazards()
        sb = SB(h)
        for it in max_items([sb + i for i in range(32)], True, True): it()
        V(f"v_max_f32 v{MX}, 0, v{MX}", w={MX}, r={MX})
        V(f"v_sub_f32 v{MX2}, 0, v{MX}", w={MX2}, r={MX})
        V(f"v_exp_f32 v{MX2}, v{MX2}", w={MX2}, r={MX2}, kind="trans")
        for i in range(64):
            V(f"v_mul_f32 v{O+i}, v{MX2}, v{O+i}", w={O + i}, r={MX2, O + i})
        V(f"v_mul_f32 v{LSUM}, v{MX2}, v{LSUM}", w={LSUM}, r={MX2, LSUM})
        for i in range(16):
            V(f"v_sub_f32 v{NEGM+i}, v{NEGM+i}, v{MX}", w={NEGM + i}, r={NEGM + i, MX})
        if h < 7:
            s2 = SB(h + 1)
            for i in range(32):
                V(f"v_sub_f32 v{s2+i}, v{s2+i}, v{MX}", w={s2 + i}, r={s2 + i, MX})
        for it in sm_items(h, 0, 32, True): it()
        V(f"v_add_f32 v{SUMA}, v{SUMA}, v{SUMB}", w={SUMA}, r={SUMA, SUMB})
        A.flush_hazards()
        A.salu(f"s_branch K1_BACK{h}")

def gen_k2(A):
    V = A.valu
    T0, T1, T2, T3, T4, T5, T6, T7 = range(0, 8)
    WOFF = 8
    OOFF = 12
    BA = 13
    RED = 15
    AF = 16
    OF = 48
    ACC = 112
    sBLK, sMT, sNT, sW = 26, 27, 4, 5
    SW_, SO, SOUT = 28, 32, 36
    sWL, sWB, sO0, sO1, sT = 48, 49, 50, 51, 52
    A.win = []
    A.nds = A.ds_done = A.nvm = A.vm_done = 0
    A.raw(f".p2align 8\n.globl k2_kernel\n.type k2_kernel,@function\nk2_kernel:")
    A.salu("s_cmp_ge_u32 s2, 256")
    A.salu("s_cbranch_scc1 K2_END")
    A.salu("s_and_b32 s3, s2, 7")
    A.salu("s_lshl_b32 s3, s3, 5")
    A.salu("s_lshr_b32 s6, s2, 3")
    A.salu("s_add_u32 s3, s3, s6")
    A.salu("s_cmp_ge_u32 s3, 252")
    A.salu("s_cbranch_scc1 K2_END")
    A.salu("s_load_dwordx2 s[8:9], s[0:1], 32")
    A.salu("s_load_dwordx2 s[10:11], s[0:1], 72")
    A.salu("s_load_dwordx2 s[12:13], s[0:1], 80")
    A.salu("s_load_dwordx2 s[14:15], s[0:1], 96")
    A.salu("s_cmp_ge_u32 s3, 126")
    A.salu(f"s_cselect_b32 s{sBLK}, 1, 0")
    A.salu(f"s_mul_i32 s6, s{sBLK}, 126")
    A.salu("s_sub_u32 s3, s3, s6")
    A.salu("s_mul_i32 s6, s3, 57")
    A.salu(f"s_lshr_b32 s{sMT}, s6, 9")
    A.salu(f"s_mul_i32 s6, s{sMT}, 9")
    A.salu(f"s_sub_u32 s{sNT}, s3, s6")
    V(f"v_lshrrev_b32 v{T1}, 6, v0", w={T1}, r={0})
    A._emit(I(f"v_readfirstlane_b32 s{sW}, v{T1}", "rdlane", r={T1}, sw={sW}))
    V(f"v_and_b32 v{T0}, 63, v0", w={T0}, r={0})
    L = T0
    A.salu(f"s_lshl_b32 s{sWL}, s{sW}, 14", sr={sW})
    A.salu(f"s_mul_i32 s{sWB}, s{sW}, {512*1152}", sr={sW})
    A.salu(f"s_lshl_b32 s6, s{sNT}, 7")
    A.salu(f"s_add_u32 s{sWB}, s{sWB}, s6")
    A.salu(f"s_mul_i32 s{sO0}, s{sBLK}, {O_BLK}")
    A.salu(f"s_lshl_b32 s6, s{sMT}, 19")
    A.salu(f"s_add_u32 s{sO0}, s{sO0}, s6")
    A.salu(f"s_lshl_b32 s6, s{sW}, 14")
    A.salu(f"s_add_u32 s{sO0}, s{sO0}, s6")
    A.salu(f"s_add_u32 s{sO1}, s{sO0}, {2*131072}")
    V(f"v_lshrrev_b32 v{T1}, 3, v{L}", w={T1}, r={L})
    V(f"v_mul_u32_u24 v{T1}, 1152, v{T1}", w={T1}, r={T1})
    V(f"v_bfe_u32 v{T2}, v{L}, 4, 1", w={T2}, r={L})
    V(f"v_lshlrev_b32 v{T3}, 2, v{T2}", w={T3}, r={T2})
    V(f"v_and_b32 v{T4}, 7, v{L}", w={T4}, r={L})
    V(f"v_xor_b32 v{T4}, v{T4}, v{T3}", w={T4}, r={T4, T3})
    V(f"v_lshl_add_u32 v{WOFF}, v{T4}, 4, v{T1}", w={WOFF}, r={T4, T1})
    for i in range(1, 4):
        V(f"v_add_u32 v{WOFF+i}, {9216*i}, v{WOFF}", w={WOFF + i}, r={WOFF})
    V(f"v_lshrrev_b32 v{T1}, 5, v{L}", w={T1}, r={L})
    V(f"v_bfe_u32 v{T3}, v{L}, 2, 2", w={T3}, r={L})
    V(f"v_and_b32 v{T4}, 3, v{L}", w={T4}, r={L})
    V(f"v_lshlrev_b32 v{T6}, 17, v{T2}", w={T6}, r={T2})
    V(f"v_lshl_add_u32 v{T6}, v{T1}, 8, v{T6}", w={T6}, r={T1, T6})
    V(f"v_and_b32 v{T7}, 15, v{L}", w={T7}, r={L})
    V(f"v_lshl_add_u32 v{OOFF}, v{T7}, 4, v{T6}", w={OOFF}, r={T7, T6})
    V(f"v_lshl_add_u32 v{T6}, v{T1}, 2, v{T3}", w={T6}, r={T1, T3})
    V(f"v_lshlrev_b32 v{T6}, 7, v{T6}", w={T6}, r={T6})
    V(f"v_lshrrev_b32 v{T7}, 1, v{T4}", w={T7}, r={T4})
    V(f"v_lshl_add_u32 v{T7}, v{T2}, 1, v{T7}", w={T7}, r={T2, T7})
    V(f"v_lshrrev_b32 v{T5}, 1, v{T3}", w={T5}, r={T3})
    V(f"v_lshlrev_b32 v{T5}, 2, v{T5}", w={T5}, r={T5})
    V(f"v_xor_b32 v{T7}, v{T7}, v{T5}", w={T7}, r={T7, T5})
    V(f"v_lshl_add_u32 v{T6}, v{T7}, 4, v{T6}", w={T6}, r={T7, T6})
    V(f"v_and_b32 v{T7}, 1, v{T4}", w={T7}, r={T4})
    V(f"v_lshl_add_u32 v{T6}, v{T7}, 3, v{T6}", w={T6}, r={T7, T6})
    V(f"v_add_u32 v{BA}, s{sWL}, v{T6}", w={BA}, r={T6})
    V(f"v_xor_b32 v{BA+1}, 64, v{BA}", w={BA + 1}, r={BA})
    V(f"v_lshlrev_b32 v{RED}, 4, v{L}", w={RED}, r={L})
    A.waitcnt(lgkm=0)
    A.salu(f"s_cmp_eq_u32 s{sBLK}, 0")
    A.salu("s_cselect_b32 s8, s8, s10")
    A.salu("s_cselect_b32 s9, s9, s11")
    srd(A, SW_, 8, 4096 * 576 * 2)
    srd(A, SO, 14, 2 * O_BLK)
    srd(A, SOUT, 12, 896 * 1152 * 2)

    NU = 16; DEPTH = 4
    last_vm = {}
    def issue(u):
        slot = u % DEPTH
        A.salu(f"s_add_u32 s{sT}, s{sWB}, {u * 32 * 1152}")
        for i in range(4):
            A.salu(f"s_add_u32 m0, s{sWL}, {slot * 4096 + i * 1024}", m0w=True)
            A.vmem(f"buffer_load_dwordx4 v{WOFF+i}, s[{SW_}:{SW_+3}], s{sT} offen{' nt' if OPT['ntwo'] else ''} lds", kind="dma", r={WOFF + i}, m0r=True)
        for ks in range(2):
            for tm in range(2):
                d = OF + slot * 16 + (ks * 2 + tm) * 4
                off = (2 * u + ks) * 512
                sb = sO0 if tm == 0 else sO1
                if off >= 4096:
                    A.salu(f"s_add_u32 s{sT}, s{sb}, {off & ~4095}")
                    k = A.vmem(f"buffer_load_dwordx4 {vname(d,4)}, v{OOFF}, s[{SO}:{SO+3}], s{sT} offen offset:{off & 4095}{' nt' if OPT['nto'] else ''}", w=vr(d, 4), r={OOFF})
                else:
                    k = A.vmem(f"buffer_load_dwordx4 {vname(d,4)}, v{OOFF}, s[{SO}:{SO+3}], s{sb} offen offset:{off}{' nt' if OPT['nto'] else ''}", w=vr(d, 4), r={OOFF})
        last_vm[u] = k
    def dsreads(u):
        slot = u % DEPTH
        ab = AF + (u % 2) * 16
        for ks in range(2):
            for tn in range(2):
                for j in range(2):
                    k = A.ds_read_tr(ab + (ks * 2 + tn) * 4 + 2 * j, BA + tn, slot * 4096 + (16 * ks + 8 * j) * 128)
        return k
    PF = Prof(A, 1)
    PF.stamp("start")
    for u in range(DEPTH): issue(u)
    A.wait_vm(last_vm[0])
    pend = dsreads(0)
    for u in range(NU):
        A.wait_ds(pend)
        if u + 1 < NU:
            A.wait_vm(last_vm[u + 1])
            pend = dsreads(u + 1)
        ab = AF + (u % 2) * 16
        ob = OF + (u % DEPTH) * 16
        for ks in range(2):
            for tn in range(2):
                for tm in range(2):
                    c = "zero" if (u == 0 and ks == 0) else None
                    A.mfma(ACC + (tn * 2 + tm) * 16, ab + (ks * 2 + tn) * 4, ob + (ks * 2 + tm) * 4, c)
        if u + DEPTH < NU: issue(u + DEPTH)
        PF.stamp(f"u{u}")
    A.wait_ds_all()
    A.barrier()
    V(f"v_add_u32 v{T1}, s{sWL}, v{RED}", w={T1}, r={RED})
    for q in range(16):
        A.ds_write_b128(T1, ACC + 4 * q, q * 1024)
    A.wait_ds_all()
    A.barrier()
    A.salu(f"s_lshl_b32 s6, s{sW}, 11")
    V(f"v_add_u32 v{T1}, s6, v{RED}", w={T1}, r={RED})
    V(f"v_add_u32 v{T2}, 0x10000, v{T1}", w={T2}, r={T1})
    R = OF
    for ww in range(8):
        for q in range(2):
            A.ds_read_b128(R + (ww * 2 + q) * 4, T1 if ww < 4 else T2, (ww % 4) * 16384 + q * 1024)
            if ww == 6 and q == 1: pass
        if ww == 5:
            A.wait_ds_all()
    A.wait_ds_all()
    for ww in range(1, 8):
        for i in range(8):
            V(f"v_add_f32 v{R+i}, v{R+i}, v{R+ww*8+i}", w={R + i}, r={R + i, R + ww * 8 + i})
    for q in range(4):
        V(f"v_cvt_pk_bf16_f32 v{AF+q}, v{R+2*q}, v{R+2*q+1}", w={AF + q}, r={R + 2 * q, R + 2 * q + 1})
    A.salu(f"s_lshr_b32 s6, s{sW}, 1")
    A.salu("s_and_b32 s7, s6, 1")
    A.salu("s_lshr_b32 s6, s6, 1")
    A.salu(f"s_lshl_b32 s3, s{sMT}, 6")
    A.salu("s_lshl_b32 s7, s7, 5")
    A.salu("s_add_u32 s3, s3, s7")
    A.salu("s_mul_i32 s3, s3, 2304")
    A.salu(f"s_mul_i32 s7, s{sBLK}, 1152")
    A.salu("s_add_u32 s3, s3, s7")
    A.salu(f"s_lshl_b32 s7, s{sNT}, 7")
    A.salu("s_add_u32 s3, s3, s7")
    A.salu("s_lshl_b32 s7, s6, 6")
    A.salu("s_add_u32 s3, s3, s7")
    A.salu(f"s_and_b32 s7, s{sW}, 1")
    A.salu("s_lshl_b32 s7, s7, 5")
    A.salu("s_add_u32 s3, s3, s7")
    V(f"v_and_b32 v{T1}, 31, v{L}", w={T1}, r={L})
    V(f"v_mul_u32_u24 v{T1}, 2304, v{T1}", w={T1}, r={T1})
    V(f"v_lshrrev_b32 v{T2}, 5, v{L}", w={T2}, r={L})
    V(f"v_lshl_add_u32 v{T1}, v{T2}, 3, v{T1}", w={T1}, r={T2, T1})
    A.vmem(f"buffer_store_dwordx2 {vname(AF,2)}, v{T1}, s[{SOUT}:{SOUT+3}], s3 offen", r=vr(AF, 2) | {T1})
    A.vmem(f"buffer_store_dwordx2 {vname(AF+2,2)}, v{T1}, s[{SOUT}:{SOUT+3}], s3 offen offset:16", r=vr(AF + 2, 2) | {T1})
    PF.dump(14, sW, 0)
    A.label("K2_END")
    A.salu("s_endpgm")

def kd(name, vgpr, sgpr):
    return f""".amdhsa_kernel {name}
  .amdhsa_next_free_vgpr {vgpr}
  .amdhsa_next_free_sgpr {sgpr}
  .amdhsa_accum_offset {(vgpr + 3) // 4 * 4}
  .amdhsa_group_segment_fixed_size 0
  .amdhsa_kernarg_size 104
  .amdhsa_user_sgpr_count 2
  .amdhsa_user_sgpr_kernarg_segment_ptr 1
  .amdhsa_system_sgpr_workgroup_id_x 1
.end_amdhsa_kernel
"""

def main():
    A = Asm()
    gen_k1(A)
    gen_k2(A)
    head = """; Two-launch GQA block pair: k1 = Q projection + attention (o -> ws), k2 = output projection.
; @launch kernel=k1_kernel grid=(256,1,1) block=(512,1,1) lds=163840
; @launch kernel=k2_kernel grid=(256,1,1) block=(512,1,1) lds=131072
.amdgcn_target "amdgcn-amd-amdhsa--gfx950"
.text
"""
    tail = '\n.section .rodata,"a"\n.p2align 6\n' + kd("k1_kernel", 256, 102 if OPT["prof"] else 64) + ".p2align 6\n" + kd("k2_kernel", 176, 102 if OPT["prof"] else 64)
    txt = head + A.text() + tail
    if "CODE_BYTES" in txt:
        import subprocess, re
        open("_p1.s", "w").write(txt.replace("CODE_BYTES", "0x12345"))
        subprocess.check_call(["clang", "-x", "assembler", "-target", "amdgcn-amd-amdhsa", "-mcpu=gfx950", "-c", "_p1.s", "-o", "_p1.o"])
        o = subprocess.check_output(["llvm-objdump", "-h", "_p1.o"]).decode()
        n = int(re.search(r"\.text\s+([0-9a-f]+)", o).group(1), 16)
        txt = txt.replace("CODE_BYTES", str(n))
    open(sys.argv[1], "w").write(txt)
    print("nops inserted:", A.nops_inserted, "lines:", len(A.out))

main()
```

```python
import sys, math
sys.path.insert(0, "gen")
from asmlib import *

NAME = "concat_heads__gqa_block_cached__gqa_block_cached__near_ridge"
OPT = dict(prio=1, prof=0, ntkv=1, ntw=0, ntx=0, ntwo=0, nto=0, ntst=0, nq=6, kvrate=1, l2pf=1, wopf=4, fat=1, bstep=1, dmagap=1, pflead=4, kv0=2, nstg=4, kvt=0, ld4=1, cpf=0, mid=0, kvt0=1, kvtr=1, roll=0, pfrate=1, kvs=0, rot=0, stag=0, qi=0, tlbw=0, ntt=0, fuse=0, slp=1)
for a in sys.argv[2:]:
    k, v = a.split("="); OPT[k] = int(v)

O_BLK = 896 * 4096 * 2
SLOT = 16384
NSLOT = 10

def srd(A, d, base, nbytes):
    A.salu(f"s_mov_b32 s{d}, s{base}")
    A.salu(f"s_and_b32 s{d+1}, s{base+1}, 0xffff")
    A.salu(f"s_mov_b32 s{d+2}, {nbytes}")
    A.salu(f"s_mov_b32 s{d+3}, 0x00020000")

class Prof:
    def __init__(self, A, kidx):
        self.A = A; self.n = 0; self.names = []; self.kidx = kidx
    def stamp(self, name):
        if not OPT["prof"]: return
        A = self.A
        assert self.n < 30
        A.salu("s_waitcnt lgkmcnt(0)")
        A.ds_done = A.nds
        A.salu("s_memtime s[96:97]")
        A.salu("s_waitcnt lgkmcnt(0)")
        A.salu(f"s_mov_b32 s{64+self.n}, s96")
        if self.n == 0:
            A.salu("s_memrealtime s[98:99]")
            A.salu("s_waitcnt lgkmcnt(0)")
        self.n += 1; self.names.append(name)
    def dump(self, wsreg, sW, tmp):
        if not OPT["prof"]: return
        A = self.A
        self.stamp("end")
        A.salu("s_memrealtime s[96:97]")
        A.salu("s_waitcnt lgkmcnt(0)")
        A.salu("s_mov_b64 exec, -1")
        A.salu("s_nop 4")
        for i in range(self.n):
            A.salu(f"v_writelane_b32 v{tmp}, s{64+i}, {i}")
        A.salu("s_getreg_b32 s97, hwreg(HW_REG_HW_ID)")
        A.salu(f"v_writelane_b32 v{tmp}, s97, 29")
        A.salu(f"v_writelane_b32 v{tmp}, s98, 30")
        A.salu(f"v_writelane_b32 v{tmp}, s96, 31")
        A.salu(f"s_mov_b32 s60, s{wsreg}")
        A.salu(f"s_and_b32 s61, s{wsreg+1}, 0xffff")
        A.salu("s_mov_b32 s62, 0x10000000")
        A.salu("s_mov_b32 s63, 0x00020000")
        A.salu("s_lshl_b32 s96, s2, 3")
        A.salu(f"s_add_u32 s96, s96, s{sW}")
        A.salu("s_lshl_b32 s96, s96, 7")
        A.salu(f"s_add_u32 s96, s96, {255*1024*1024 + self.kidx*512*1024}")
        A.salu(f"v_mbcnt_lo_u32_b32 v{tmp+1}, -1, 0")
        A.salu(f"v_mbcnt_hi_u32_b32 v{tmp+1}, -1, v{tmp+1}")
        A.salu(f"v_lshlrev_b32 v{tmp+1}, 2, v{tmp+1}")
        A.salu("s_mov_b64 exec, 0xffffffff")
        A.salu("s_nop 4")
        A.salu(f"buffer_store_dword v{tmp}, v{tmp+1}, s[60:63], s96 offen")
        print("stamps k%d:" % self.kidx, self.names)

def gen_k1(A):
    V = A.valu
    T0, T1, T2, T3, T4, T5, T6, T7 = range(0, 8)
    XO, WO, KO = 8, 10, 12
    BW, BX, BK, BV = 14, 15, 16, 17
    LSUM, OST = 18, 19
    SUMA, SUMB, MX, MX2 = 20, 21, 22, 23
    AD = 24
    FR = 32
    NEGM = 48
    QB = 64
    S = 96
    O = 160
    P = 224
    sBLK, sKVH, sB, sW, sHL, sRT = 26, 27, 4, 5, 6, 7
    SX, SW_, SK, SV, SO = 28, 32, 36, 40, 44
    sWL, sXB, sWB, sKVB, sT, sOB = 48, 49, 50, 51, 52, 53
    sMASK, sTHR, sC = 54, 56, 57
    sW3, sWL4, sT2 = 58, 59, 55

    A.raw(f".p2align 8\n.globl k1_kernel\n.type k1_kernel,@function\nk1_kernel:\nK1_BEGIN:")
    A.salu("s_cmp_ge_u32 s2, 256")
    A.salu("s_cbranch_scc1 K1_END")
    A.salu("s_load_dwordx8 s[8:15], s[0:1], 0")
    A.salu("s_load_dwordx8 s[16:23], s[0:1], 40")
    A.salu("s_load_dwordx2 s[24:25], s[0:1], 96")
    if OPT["cpf"]:
        A.salu("s_getpc_b64 s[60:61]")
        A.salu("s_and_b32 s60, s60, 0xffffff00")
        A.salu("s_and_b32 s61, s61, 0xffff")
        A.salu("s_mov_b32 s62, CODE_BYTES")
        A.salu("s_mov_b32 s63, 0x00020000")
        V(f"v_lshlrev_b32 v{T7}, 7, v0", w={T7}, r={0})
        A.vmem(f"buffer_load_dword v{NEGM+15}, v{T7}, s[60:63], 0 offen", w={NEGM+15}, r={T7})
    A.salu("s_and_b32 s3, s2, 7")
    A.salu(f"s_lshr_b32 s{sB}, s2, 3")
    A.salu(f"s_lshr_b32 s{sBLK}, s3, 2")
    A.salu("s_and_b32 s3, s3, 3")
    A.salu("s_lshl_b32 s3, s3, 2")
    A.salu(f"s_and_b32 s{sKVH}, s{sB}, 3")
    A.salu(f"s_add_u32 s{sKVH}, s{sKVH}, s3")
    A.salu(f"s_lshr_b32 s{sB}, s{sB}, 2")
    V(f"v_lshrrev_b32 v{T1}, 6, v0", w={T1}, r={0})
    A._emit(I(f"v_readfirstlane_b32 s{sW}, v{T1}", "rdlane", r={T1}, sw={sW}))
    V(f"v_and_b32 v{T0}, 63, v0", w={T0}, r={0})
    if OPT["fat"]:
        A.salu(f"s_bfe_u32 s{sHL}, s{sW}, 0x10001", sr={sW})
        A.salu(f"s_and_b32 s{sRT}, s{sW}, 1", sr={sW})
        A.salu(f"s_lshl_b32 s{sRT}, s{sRT}, 1")
        A.salu(f"s_lshr_b32 s3, s{sW}, 2", sr={sW})
        A.salu(f"s_add_u32 s{sRT}, s{sRT}, s3")
    else:
        A.salu(f"s_lshr_b32 s{sHL}, s{sW}, 2", sr={sW})
        A.salu(f"s_and_b32 s{sRT}, s{sW}, 3", sr={sW})
    A.salu(f"s_lshl_b32 s{sWL}, s{sW}, 11", sr={sW})
    A.salu(f"s_and_b32 s{sW3}, s{sW}, {3 if OPT['ld4'] else 1}", sr={sW})
    A.salu(f"s_lshl_b32 s{sWL4}, s{sW3}, 11")
    A.salu(f"s_mul_i32 s{sXB}, s{sB}, 129024")
    A.salu(f"s_lshl_b32 s{sWB}, s{sKVH}, 9")
    A.salu(f"s_lshl_b32 s{sKVB}, s{sB}, 4")
    A.salu(f"s_add_u32 s{sKVB}, s{sKVB}, s{sKVH}")
    if OPT["rot"] == 1:
        A.salu(f"s_and_b32 s{sMASK}, s{sKVB}, 7")
    elif OPT["rot"] == 2:
        A.salu(f"s_add_u32 s{sMASK}, s{sKVH}, s{sB}")
        A.salu(f"s_and_b32 s{sMASK}, s{sMASK}, 7")
    elif OPT["rot"] == 3:
        A.salu(f"s_and_b32 s{sMASK}, s{sB}, 7")
    A.salu(f"s_lshl_b32 s{sMASK}, s{sMASK}, 14")
    A.salu(f"s_lshl_b32 s{sKVB}, s{sKVB}, 17")
    A.salu(f"s_mov_b32 s{sTHR}, 0x4b800000")
    c = math.log2(math.e) / math.sqrt(128.0)
    import struct
    cbits = struct.unpack("<I", struct.pack("<f", c))[0]
    A.salu(f"s_mov_b32 s{sC}, {cbits:#x}")
    L = T0
    for q in range(2):
        V(f"v_lshrrev_b32 v{T1}, 3, v{L}", w={T1}, r={L})
        A.salu(f"s_lshl_b32 s3, s{sW3}, 4")
        A.salu(f"s_add_u32 s3, s3, {8*q}")
        V(f"v_add_u32 v{T1}, s3, v{T1}", w={T1}, r={T1})
        V(f"v_mul_u32_u24 v{T1}, 1152, v{T1}", w={T1}, r={T1})
        V(f"v_and_b32 v{T2}, 7, v{L}", w={T2}, r={L})
        V(f"v_lshrrev_b32 v{T3}, 4, v{L}", w={T3}, r={L})
        V(f"v_xor_b32 v{T2}, v{T2}, v{T3}", w={T2}, r={T2, T3})
        if q: V(f"v_xor_b32 v{T2}, 4, v{T2}", w={T2}, r={T2})
        V(f"v_lshl_add_u32 v{XO+q}, v{T2}, 4, v{T1}", w={XO+q}, r={T2, T1})
        V(f"v_lshrrev_b32 v{T3}, 5, v{L}", w={T3}, r={L})
        A.salu(f"s_lshl_b32 s3, s{sW3}, 2")
        A.salu(f"s_add_u32 s3, s3, {2*q}")
        V(f"v_add_u32 v{T1}, s3, v{T3}", w={T1}, r={T3})
        V(f"v_lshlrev_b32 v{T1}, 13, v{T1}", w={T1}, r={T1})
        V(f"v_or_b32 v{T3}, {2*q}, v{T3}", w={T3}, r={T3})
        V(f"v_lshlrev_b32 v{T3}, 2, v{T3}", w={T3}, r={T3})
        V(f"v_and_b32 v{T2}, 31, v{L}", w={T2}, r={L})
        V(f"v_xor_b32 v{T2}, v{T2}, v{T3}", w={T2}, r={T2, T3})
        V(f"v_lshl_add_u32 v{WO+q}, v{T2}, 4, v{T1}", w={WO+q}, r={T2, T1})
        V(f"v_lshrrev_b32 v{T3}, 4, v{L}", w={T3}, r={L})
        A.salu(f"s_lshl_b32 s3, s{sW}, 3")
        A.salu(f"s_add_u32 s3, s3, {4*q}")
        V(f"v_add_u32 v{T1}, s3, v{T3}", w={T1}, r={T3})
        V(f"v_lshlrev_b32 v{T1}, 8, v{T1}", w={T1}, r={T1})
        A.salu(f"s_and_b32 s3, s{sW}, 1")
        A.salu(f"s_lshl_b32 s3, s3, 1")
        A.salu(f"s_or_b32 s3, s3, {q}")
        V(f"v_lshlrev_b32 v{T3}, 2, v{T3}", w={T3}, r={T3})
        V(f"v_or_b32 v{T3}, s3, v{T3}", w={T3}, r={T3})
        V(f"v_and_b32 v{T2}, 15, v{L}", w={T2}, r={L})
        V(f"v_xor_b32 v{T2}, v{T2}, v{T3}", w={T2}, r={T2, T3})
        V(f"v_lshl_add_u32 v{KO+q}, v{T2}, 4, v{T1}", w={KO+q}, r={T2, T1})
    V(f"v_lshrrev_b32 v{T1}, 5, v{L}", w={T1}, r={L})
    V(f"v_bfe_u32 v{T2}, v{L}, 4, 1", w={T2}, r={L})
    V(f"v_bfe_u32 v{T3}, v{L}, 2, 2", w={T3}, r={L})
    V(f"v_and_b32 v{T4}, 3, v{L}", w={T4}, r={L})
    V(f"v_and_b32 v{T5}, 31, v{L}", w={T5}, r={L})
    V(f"v_lshl_add_u32 v{T6}, v{T1}, 3, v{T3}", w={T6}, r={T1, T3})
    V(f"v_lshlrev_b32 v{T6}, 9, v{T6}", w={T6}, r={T6})
    V(f"v_lshlrev_b32 v{T7}, 2, v{T3}", w={T7}, r={T3})
    V(f"v_lshl_add_u32 v{T7}, v{T2}, 1, v{T7}", w={T7}, r={T2, T7})
    V(f"v_and_b32 v{BW}, 1, v{T4}", w={BW}, r={T4})
    V(f"v_add_u32 v{T7}, v{T7}, v{BW}", w={T7}, r={T7, BW})
    A.salu(f"s_lshl_b32 s3, s{sHL}, 4")
    V(f"v_add_u32 v{T7}, s3, v{T7}", w={T7}, r={T7})
    V(f"v_lshl_add_u32 v{T6}, v{T7}, 4, v{T6}", w={T6}, r={T7, T6})
    V(f"v_lshrrev_b32 v{T7}, 1, v{T4}", w={T7}, r={T4})
    V(f"v_lshl_add_u32 v{BW}, v{T7}, 3, v{T6}", w={BW}, r={T7, T6})
    A.salu(f"s_lshl_b32 s3, s{sRT}, 5")
    V(f"v_add_u32 v{T6}, s3, v{T5}", w={T6}, r={T5})
    V(f"v_lshlrev_b32 v{T6}, 7, v{T6}", w={T6}, r={T6})
    V(f"v_bfe_u32 v{T7}, v{T5}, 1, 3", w={T7}, r={T5})
    V(f"v_xor_b32 v{T7}, v{T7}, v{T1}", w={T7}, r={T7, T1})
    V(f"v_lshl_add_u32 v{BX}, v{T7}, 4, v{T6}", w={BX}, r={T7, T6})
    V(f"v_lshlrev_b32 v{T6}, 2, v{T4}", w={T6}, r={T4})
    V(f"v_or_b32 v{T6}, v{T6}, v{T3}", w={T6}, r={T6, T3})
    V(f"v_xor_b32 v{T6}, v{T6}, v{T1}", w={T6}, r={T6, T1})
    V(f"v_lshlrev_b32 v{T7}, 8, v{T5}", w={T7}, r={T5})
    V(f"v_lshl_add_u32 v{BK}, v{T6}, 4, v{T7}", w={BK}, r={T6, T7})
    V(f"v_lshl_add_u32 v{T6}, v{T1}, 2, v{T3}", w={T6}, r={T1, T3})
    V(f"v_lshlrev_b32 v{T6}, 8, v{T6}", w={T6}, r={T6})
    V(f"v_lshrrev_b32 v{T7}, 1, v{T4}", w={T7}, r={T4})
    V(f"v_lshl_add_u32 v{T7}, v{T2}, 1, v{T7}", w={T7}, r={T2, T7})
    V(f"v_xor_b32 v{T7}, v{T7}, v{T1}", w={T7}, r={T7, T1})
    V(f"v_lshl_or_b32 v{T7}, v{T3}, 2, v{T7}", w={T7}, r={T3, T7})
    V(f"v_lshl_add_u32 v{T6}, v{T7}, 4, v{T6}", w={T6}, r={T7, T6})
    V(f"v_and_b32 v{T7}, 1, v{T4}", w={T7}, r={T4})
    V(f"v_lshl_add_u32 v{BV}, v{T7}, 3, v{T6}", w={BV}, r={T7, T6})
    V(f"v_lshlrev_b32 v{T6}, 17, v{T2}", w={T6}, r={T2})
    V(f"v_lshl_add_u32 v{T6}, v{T1}, 8, v{T6}", w={T6}, r={T1, T6})
    V(f"v_and_b32 v{T7}, 15, v{L}", w={T7}, r={L})
    V(f"v_lshl_add_u32 v{OST}, v{T7}, 4, v{T6}", w={OST}, r={T7, T6})
    V(f"v_mov_b32 v{LSUM}, 0", w={LSUM})
    A.waitcnt(lgkm=0)
    A.salu(f"s_cmp_eq_u32 s{sBLK}, 0")
    for k in range(8):
        A.salu(f"s_cselect_b32 s{8+k}, s{8+k}, s{16+k}")
    srd(A, SX, 8, 8 * 112 * 576 * 2)
    srd(A, SK, 10, 8 * 16 * 512 * 128 * 2)
    srd(A, SV, 12, 8 * 16 * 512 * 128 * 2)
    srd(A, SW_, 14, 576 * 4096 * 2)
    srd(A, SO, 24, 2 * O_BLK)
    A.salu(f"s_mul_i32 s{sOB}, s{sBLK}, {O_BLK}")
    A.salu(f"s_mul_i32 s3, s{sB}, 7")
    A.salu(f"s_lshl_b32 s{sT}, s{sRT}, 1")
    A.salu(f"s_add_u32 s3, s3, s{sT}")
    A.salu(f"s_lshl_b32 s3, s3, 17")
    A.salu(f"s_add_u32 s{sOB}, s{sOB}, s3")
    A.salu(f"s_lshl_b32 s3, s{sKVH}, 1")
    A.salu(f"s_add_u32 s3, s3, s{sHL}")
    A.salu(f"s_lshl_b32 s3, s3, 12")
    A.salu(f"s_add_u32 s{sOB}, s{sOB}, s3")
    if OPT["prio"]:
        A.salu(f"s_cmp_ge_u32 s{sW}, 4")
        A.salu("s_cbranch_scc0 K1_PRIO_DONE" if OPT["prio"] == 1 else "s_cbranch_scc1 K1_PRIO_DONE")
        A.salu("s_setprio 1")
        A.label("K1_PRIO_DONE")

    NTT = {0: "", 1: " nt", 2: " sc1", 3: " sc0 sc1", 4: " sc1 nt"}[OPT["ntt"]]
    qunits = []
    for s_ in range(9):
        qunits += [("X", s_), ("W", 2 * s_), ("W", 2 * s_ + 1)]
    kvunits = [("K", 0)]
    for h in range(7):
        kvunits += [("K", h + 1), ("V", h)]
    kvunits += [("V", 7)]
    units = qunits + kvunits
    UK = {idx: 27 + i for i, (t_, idx) in enumerate(kvunits) if t_ == "K"}
    UV = {idx: 27 + i for i, (t_, idx) in enumerate(kvunits) if t_ == "V"}
    stage_units = [list(range(3 * s_, 3 * s_ + 3)) for s_ in range(9)]
    unit_last_vm = {}
    unit_slot = {}
    free = list(range(NSLOT))
    nq = [0]; nkv = [0]; xch = []
    KQ = FR
    DV = FR + 2
    NSTG = OPT["nstg"]
    STG = [S + 32, O, O + 32, P][:NSTG]

    def unit_info(u):
        typ, idx = units[u]
        if typ == "X": return sXB, idx * 128, SX, XO, 2 * 16 * 1152, "ntx"
        if typ == "W": return sWB, idx * 32 * 8192, SW_, WO, 2 * 4 * 8192, "ntw"
        if typ == "K": return sKVB, idx * 64 * 256, SK, KO, 4096, "ntkv"
        return sKVB, idx * 64 * 256, SV, KO, 4096, "ntkv"

    def sbase(base, const):
        if base == sKVB and OPT["rot"]:
            A.salu(f"s_add_u32 s{sT}, s{sMASK}, {const}")
            A.salu(f"s_and_b32 s{sT}, s{sT}, 0x1ffff")
            A.salu(f"s_or_b32 s{sT}, s{sT}, s{sKVB}")
        else:
            A.salu(f"s_add_u32 s{sT}, s{base}, {const}")

    def issue_unit_q(u, stage_reg=None):
        if stage_reg is None:
            slot = free.pop(0)
            unit_slot[u] = slot
        base, const, sr_, vo, delta, nto = unit_info(u)
        if vo == KO: vo = KQ
        nt = " nt" if OPT[nto] else ""
        for hv in range(4):
            A.salu(f"s_add_u32 s{sT}, s{base}, {const + delta * hv}")
            for q in range(2):
                if stage_reg is None:
                    A.salu(f"s_add_u32 m0, s{sWL4}, {slot * SLOT + hv * 4096 + q * 1024}", m0w=True)
                    k = A.vmem(f"buffer_load_dwordx4 v{vo+q}, s[{sr_}:{sr_+3}], s{sT} offen{nt} lds", kind="dma", r={vo + q}, m0r=True)
                else:
                    d = stage_reg + (hv * 2 + q) * 4
                    k = A.vmem(f"buffer_load_dwordx4 {vname(d,4)}, v{vo+q}, s[{sr_}:{sr_+3}], s{sT} offen{nt}", w=vr(d, 4), r={vo + q})
        unit_last_vm[u] = k

    def issue_unit_4(u):
        slot = free.pop(0)
        unit_slot[u] = slot
        base, const, sr_, vo, delta, nto = unit_info(u)
        nt = " nt" if OPT[nto] else ""
        sbase(base, const)
        if vo != KO: A.salu(f"s_add_u32 s{sT2}, s{base}, {const + 2 * delta}")
        for hv in range(2):
            for q in range(2):
                A.salu(f"s_add_u32 m0, s{sWL4}, {slot * SLOT + hv * 8192 + q * 1024}", m0w=True)
                if vo == KO:
                    va = (KQ if hv == 0 else KO) + q; so = sT
                else:
                    va = vo + q; so = sT if hv == 0 else sT2
                k = A.vmem(f"buffer_load_dwordx4 v{va}, s[{sr_}:{sr_+3}], s{so} offen{nt} lds", kind="dma", r={va}, m0r=True)
        unit_last_vm[u] = k

    def flood():
        if not OPT["l2pf"]: return
        V(f"v_lshrrev_b32 v{T1}, 2, v{L}", w={T1}, r={L})
        V(f"v_lshlrev_b32 v{T1}, 13, v{T1}", w={T1}, r={T1})
        V(f"v_and_b32 v{T2}, 3, v{L}", w={T2}, r={L})
        V(f"v_lshl_add_u32 v{T1}, v{T2}, 7, v{T1}", w={T1}, r={T2, T1})
        A.salu(f"s_lshl_b32 s3, s{sW}, 4")
        A.salu(f"s_min_u32 s3, s3, 56")
        A.salu(f"s_mul_i32 s{sT}, s{sB}, 72")
        A.salu(f"s_add_u32 s3, s3, s{sT}")
        A.salu(f"s_lshl_b32 s3, s3, 13")
        A.salu(f"s_add_u32 s3, s3, s{sWB}")
        A.vmem(f"buffer_load_dword v{T4}, v{T1}, s[{SW_}:{SW_+3}], s3 offen{NTT}", w={T4}, r={T1})
        V(f"v_lshlrev_b32 v{T2}, 7, v{L}", w={T2}, r={L})
        A.salu(f"s_and_b32 s3, s{sKVH}, 3")
        A.salu(f"s_mul_i32 s3, s3, 32256")
        A.salu(f"s_and_b32 s{sT}, s{sW}, 3")
        A.salu(f"s_lshl_b32 s{sT}, s{sT}, 13")
        A.salu(f"s_add_u32 s3, s3, s{sT}")
        A.salu(f"s_add_u32 s3, s3, s{sXB}")
        A.vmem(f"buffer_load_dword v{T5}, v{T2}, s[{SX}:{SX+3}], s3 offen{NTT}", w={T5}, r={T2})

    def dump_unit(u, stage_reg):
        slot = free.pop(0)
        unit_slot[u] = slot
        V(f"v_add_u32 v{DV+1}, {slot * SLOT}, v{DV}", w={DV + 1}, r={DV})
        for hv in range(4):
            for q in range(2):
                A.ds_write_b128(DV + 1, stage_reg + (hv * 2 + q) * 4, hv * 4096 + q * 1024)

    def dma_items(u):
        slot = free.pop(0)
        unit_slot[u] = slot
        base, const, sr_, vo, delta, nto = unit_info(u)
        nt = " nt" if OPT[nto] else ""
        def mk(q):
            def f():
                sbase(base, const)
                A.salu(f"s_add_u32 m0, s{sWL}, {slot * SLOT + q * 1024}", m0w=True)
                k = A.vmem(f"buffer_load_dwordx4 v{vo+q}, s[{sr_}:{sr_+3}], s{sT} offen{nt} lds", kind="dma", r={vo + q}, m0r=True)
                unit_last_vm[u] = k
            return f
        if not OPT["stag"]: return [mk(0), mk(1)]
        G = 8 // OPT["stag"]
        def cond(f, g):
            def h():
                lab = f"K1_D{nlab[0]}"; nlab[0] += 1
                A.salu(f"s_cmp_eq_u32 s{sT2}, {g}")
                A.salu(f"s_cbranch_scc0 {lab}")
                n0 = len(A.out)
                f()
                for o in A.out[n0:]: o.ws = 0
                A.label(lab)
                if g < G - 1: A.nvm -= 1
            return h
        return [cond(mk(q), g) for q in range(2) for g in range(G)]
    nlab = [0]

    NQ = OPT["nq"]
    PF = Prof(A, 0)
    PF.stamp("start")

    def addr_items(dst, base, slot, xors):
        it = [lambda: V(f"v_add_u32 v{dst[0]}, {slot * SLOT}, v{base}", w={dst[0]}, r={base})]
        for i, x in enumerate(xors):
            if i == 0: continue
            it.append(lambda i=i, x=x: V(f"v_xor_b32 v{dst[i]}, {x}, v{dst[0]}", w={dst[i]}, r={dst[0]}))
        return it

    A.salu(f"s_cmp_lt_u32 s{sW}, 4")
    A.salu("s_cbranch_scc1 K1_FAT")
    pf0 = PF.n
    staged = []
    if OPT["ld4"]:
        for q in range(2):
            V(f"v_subrev_u32 v{KQ+q}, {4*8*256}, v{KO+q}", w={KQ + q}, r={KO + q})
        NL = NSLOT - NQ
        def refill(s):
            done_q = 3 * max(s, 0)
            while nq[0] < 27 and nq[0] - done_q < NQ and free:
                issue_unit_4(nq[0]); nq[0] += 1
        def kv_issue():
            if nkv[0] < NL:
                if free:
                    issue_unit_4(27 + nkv[0]); nkv[0] += 1
        LW, LX = FR + 4, FR + 5
        nroll = [NQ // 3]
        def lroll(n):
            n = min(n, 9 - nroll[0])
            if n <= 0 or OPT["roll"] != 2: return
            a = nroll[0]; nroll[0] += n
            if n < 8:
                m = (1 << (8 * n)) - 1
                A.salu(f"s_mov_b32 exec_lo, {m & 0xffffffff}")
                A.salu(f"s_mov_b32 exec_hi, {m >> 32}")
            A.salu(f"s_add_u32 s3, s8, {a * 64 * 8192}")
            A.vmem(f"buffer_load_dword v{FR+6}, v{LW}, s[{SW_}:{SW_+3}], s3 offen{NTT}", w={FR + 6}, r={LW})
            A.vmem(f"buffer_load_dword v{FR+7}, v{LX}, s[{SX}:{SX+3}], s9 offen offset:{a * 128}{NTT}", w={FR + 7}, r={LX})
            if n < 8: A.salu("s_mov_b64 exec, -1")
        refill(-1)
        for _ in range(OPT["kv0"]): kv_issue()
        if not OPT["roll"]: flood()
        if OPT["roll"] == 2:
            V(f"v_bfe_u32 v{T1}, v{L}, 2, 1", w={T1}, r={L})
            A.salu(f"s_lshl_b32 s3, s{sW3}, 1")
            V(f"v_add_u32 v{T1}, s3, v{T1}", w={T1}, r={T1})
            V(f"v_lshrrev_b32 v{T3}, 3, v{L}", w={T3}, r={L})
            V(f"v_lshl_add_u32 v{T1}, v{T3}, 6, v{T1}", w={T1}, r={T3, T1})
            V(f"v_lshlrev_b32 v{T1}, 13, v{T1}", w={T1}, r={T1})
            V(f"v_and_b32 v{T2}, 3, v{L}", w={T2}, r={L})
            V(f"v_lshl_add_u32 v{LW}, v{T2}, 7, v{T1}", w={LW}, r={T2, T1})
            V(f"v_and_b32 v{T1}, 7, v{L}", w={T1}, r={L})
            V(f"v_min_u32 v{T1}, 6, v{T1}", w={T1}, r={T1})
            A.salu(f"s_mul_i32 s3, s{sW3}, 7")
            V(f"v_add_u32 v{T1}, s3, v{T1}", w={T1}, r={T1})
            V(f"v_mul_u32_u24 v{T1}, 1152, v{T1}", w={T1}, r={T1})
            V(f"v_lshl_add_u32 v{LX}, v{T3}, 7, v{T1}", w={LX}, r={T3, T1})
            A.salu(f"s_lshl_b32 s8, s{sB}, 16")
            A.salu(f"s_add_u32 s8, s8, s{sWB}")
            A.salu(f"s_and_b32 s9, s{sKVH}, 3")
            A.salu(f"s_mul_i32 s9, s9, {28*1152}")
            A.salu(f"s_add_u32 s9, s9, s{sXB}")
            lroll(OPT["pflead"] - nroll[0])
        for s in range(9):
            A.wait_vm(max(unit_last_vm[u] for u in stage_units[s]))
            A.barrier()
            PF.stamp(f"q{s}")
            if s > 0:
                for u in stage_units[s - 1]: free.append(unit_slot[u])
            refill(s)
            lroll(OPT["pfrate"])
            if s == 8:
                xch.append(free.pop(0)); xch.append(free.pop(0))
            elif s >= OPT["kvs"]:
                for _ in range(OPT["kvrate"]): kv_issue()
            if nq[0] == 27 and nkv[0] >= NL:
                while free:
                    issue_unit_4(27 + nkv[0]); nkv[0] += 1
        A.salu("s_branch K1_ATT")
        ldr_vm = (A.nvm, A.vm_done)
    else:
        A.salu(f"s_cmp_ge_u32 s{sW}, 6")
        A.salu("s_cbranch_scc1 K1_KVL")
        pf0 = PF.n
        kvslots = [free.pop() for _ in range(NSLOT - NQ)]
        def refill(s):
            done_q = 3 * max(s, 0)
            while nq[0] < 27 and nq[0] - done_q < NQ and free:
                issue_unit_q(nq[0]); nq[0] += 1
        refill(-1)
        for s in range(9):
            A.wait_vm(max(unit_last_vm[u] for u in stage_units[s]))
            A.barrier()
            PF.stamp(f"q{s}")
            if s > 0:
                for u in stage_units[s - 1]: free.append(unit_slot[u])
            refill(s)
            if s == 8:
                xch.append(free.pop(0)); xch.append(free.pop(0))
        A.waitcnt(vm=0)
        A.vm_done = A.nvm
        A.salu("s_branch K1_ATT")
        A.label("K1_KVL")
        A.win = []
        A.salu("s_nop 4")
        PF.n = pf0; PF.names = PF.names[:pf0]
        for q in range(2):
            V(f"v_subrev_u32 v{KQ+q}, {6*8*256}, v{KO+q}", w={KQ + q}, r={KO + q})
        V(f"v_lshlrev_b32 v{DV}, 4, v{L}", w={DV}, r={L})
        V(f"v_add_u32 v{DV}, s{sWL4}, v{DV}", w={DV}, r={DV})
        late_free = free[:]; free[:] = kvslots
        NL = len(kvslots)
        TV = FR + 4
        V(f"v_lshlrev_b32 v{TV}, 7, v{L}", w={TV}, r={L})
        A.salu(f"s_lshl_b32 s3, s{sW3}, 13")
        V(f"v_add_u32 v{TV}, s3, v{TV}", w={TV}, r={TV})
        NT = OPT["kvt"]
        ntouch = [0]
        def kv_issue():
            i = nkv[0]
            if i < NL: issue_unit_q(27 + i)
            elif i < NL + NSTG: issue_unit_q(27 + i, STG[i - NL])
            else:
                if ntouch[0] < NT:
                    u = 27 + NL + NSTG + ntouch[0]
                    base, const, sr_, vo, delta, nto = unit_info(u)
                    A.salu(f"s_add_u32 s{sT}, s{base}, {const}")
                    A.vmem(f"buffer_load_dword v{TV+1}, v{TV}, s[{sr_}:{sr_+3}], s{sT} offen", w={TV + 1}, r={TV})
                    ntouch[0] += 1
                return
            nkv[0] += 1
        for _ in range(OPT["kv0"]): kv_issue()
        for s in range(9):
            A.barrier()
            PF.stamp(f"q{s}")
            for _ in range(OPT["kvrate"]): kv_issue()
        assert nkv[0] == NL + NSTG
        free[:] = late_free
        staged = [(27 + NL + i, STG[i]) for i in range(NSTG)]
        while staged and free:
            u, r_ = staged.pop(0)
            A.wait_vm(unit_last_vm[u])
            dump_unit(u, r_)
        A.waitcnt(vm=0)
        A.vm_done = A.nvm
        A.wait_ds_all()
        A.salu("s_branch K1_ATT")
    A.label("K1_FAT")
    A.win = []
    A.salu("s_nop 4")
    PF.n = pf0; PF.names = PF.names[:pf0]
    TW, TX = XO, XO + 1
    if OPT["roll"] == 2:
        pass
    elif OPT["ld4"] and not OPT["roll"]:
        V(f"v_lshlrev_b32 v{TW}, 7, v{L}", w={TW}, r={L})
        A.salu(f"s_lshl_b32 s3, s{sW}, 13")
        V(f"v_add_u32 v{TW}, s3, v{TW}", w={TW}, r={TW})
    else:
        TW, TX = XO, XO + 1
        V(f"v_bfe_u32 v{T1}, v{L}, 2, 1", w={T1}, r={L})
        A.salu(f"s_lshl_b32 s3, s{sW}, 1")
        V(f"v_add_u32 v{T1}, s3, v{T1}", w={T1}, r={T1})
        V(f"v_lshlrev_b32 v{T1}, 13, v{T1}", w={T1}, r={T1})
        V(f"v_and_b32 v{T2}, 3, v{L}", w={T2}, r={L})
        V(f"v_lshl_add_u32 v{TW}, v{T2}, 7, v{T1}", w={TW}, r={T2, T1})
        V(f"v_and_b32 v{T1}, 7, v{L}", w={T1}, r={L})
        V(f"v_min_u32 v{T1}, 6, v{T1}", w={T1}, r={T1})
        A.salu(f"s_mul_i32 s3, s{sW}, 7")
        V(f"v_add_u32 v{T1}, s3, v{T1}", w={T1}, r={T1})
        V(f"v_mul_u32_u24 v{TX}, 1152, v{T1}", w={TX}, r={T1})
        A.salu(f"s_lshl_b32 s8, s{sB}, 16")
        A.salu(f"s_add_u32 s8, s8, s{sWB}")
        A.salu(f"s_and_b32 s9, s{sKVH}, 3")
        A.salu(f"s_mul_i32 s9, s9, {28*1152}")
        A.salu(f"s_add_u32 s9, s9, s{sXB}")
    def touch(s_):
        if not OPT["l2pf"] or s_ > 8: return
        A.salu(f"s_add_u32 s3, s8, {s_ * 64 * 8192}")
        A.vmem(f"buffer_load_dword v{T4}, v{TW}, s[{SW_}:{SW_+3}], s3 offen{NTT}", w={T4}, r={TW})
        A.vmem(f"buffer_load_dword v{T5}, v{TX}, s[{SX}:{SX+3}], s9 offen offset:{s_ * 128}{NTT}", w={T5}, r={TX})
    if OPT["roll"] == 2:
        touch = lambda s_: None
    elif OPT["roll"]:
        touch1 = touch
        nroll = [2]
        def roll(n):
            for _ in range(n):
                touch1(nroll[0]); nroll[0] += 1
        roll(OPT["pflead"] - 2)
        touch = lambda s_: roll(OPT["pfrate"])
    elif OPT["ld4"]:
        flood()
        ntouch = [0]
        def touch(s_):
            s_ -= OPT["pflead"]
            if s_ < OPT["kvt0"]: return
            for _ in range(OPT["kvtr"]):
                if ntouch[0] >= OPT["kvt"]: return
                ua = 27 + NL + 1 + ntouch[0]
                ia = unit_info(ua); ib = unit_info(ua + 1)
                A.salu(f"s_cmp_lt_u32 s{sW}, 2")
                A.salu(f"s_mov_b32 s3, {ib[1] - 16384}")
                A.salu(f"s_cselect_b32 s3, {ia[1]}, s3")
                A.salu(f"s_cselect_b32 s60, s{ia[2]}, s{ib[2]}")
                A.salu(f"s_cselect_b32 s61, s{ia[2]+1}, s{ib[2]+1}")
                A.salu(f"s_mov_b32 s62, s{ia[2]+2}")
                A.salu(f"s_mov_b32 s63, s{ia[2]+3}")
                A.salu(f"s_add_u32 s3, s3, s{sKVB}")
                A.vmem(f"buffer_load_dword v{T4}, v{TW}, s[60:63], s3 offen", w={T4}, r={TW})
                ntouch[0] += 2
    if not OPT["ld4"]:
        for s_ in range(2, OPT["pflead"]): touch(s_)
    if OPT["tlbw"]:
        A.salu("s_load_dwordx2 s[16:17], s[0:1], 32")
        A.salu("s_load_dwordx2 s[18:19], s[0:1], 72")
        A.salu("s_load_dwordx2 s[20:21], s[0:1], 80")
        D = NEGM
        V(f"v_lshlrev_b32 v{T1}, 12, v{L}", w={T1}, r={L})
        V(f"v_and_b32 v{T1}, 0x1ffff, v{T1}", w={T1}, r={T1})
        A.vmem(f"buffer_load_dword v{D}, v{T1}, s[{SV}:{SV+3}], s{sKVB} offen", w={D}, r={T1})
        if OPT["tlbw"] > 1:
            A.vmem(f"buffer_load_dword v{D+1}, v{T1}, s[{SK}:{SK+3}], s{sKVB} offen", w={D + 1}, r={T1})
        V(f"v_min_u32 v{T2}, 6, v{L}", w={T2}, r={L})
        V(f"v_lshlrev_b32 v{T2}, 17, v{T2}", w={T2}, r={T2})
        A.salu(f"s_mul_i32 s3, s{sBLK}, {O_BLK}")
        A.salu(f"s_mul_i32 s{sT}, s{sB}, {7*131072}")
        A.salu(f"s_add_u32 s3, s3, s{sT}")
        if OPT["fuse"]:
            A.salu(f"s_lshl_b32 s{sT}, s{sKVH}, 13")
            A.salu(f"s_add_u32 s3, s3, s{sT}")
            A.vmem(f"buffer_store_dword v{T2}, v{T2}, s[{SO}:{SO+3}], s3 offen sc1", r={T2}, storedata={T2})
        else:
            A.vmem(f"buffer_load_dword v{D+2}, v{T2}, s[{SO}:{SO+3}], s3 offen", w={D + 2}, r={T2})
        V(f"v_lshlrev_b32 v{T3}, 16, v{L}", w={T3}, r={L})
        A.salu("s_waitcnt lgkmcnt(0)")
        A.salu(f"s_cmp_eq_u32 s{sBLK}, 0")
        A.salu("s_cselect_b32 s60, s16, s18")
        A.salu("s_cselect_b32 s61, s17, s19")
        A.salu("s_and_b32 s61, s61, 0xffff")
        A.salu(f"s_mov_b32 s62, {4096*576*2}")
        A.salu("s_mov_b32 s63, 0x00020000")
        A.salu(f"s_mov_b32 s3, {8*65536}")
        A.vmem(f"buffer_load_dword v{D+3}, v{T3}, s[60:63], 0 offen", w={D + 3}, r={T3})
        A.vmem(f"buffer_load_dword v{D+4}, v{T3}, s[60:63], s3 offen", w={D + 4}, r={T3})
        A.salu("s_mov_b32 s16, s20")
        A.salu("s_and_b32 s17, s21, 0xffff")
        A.salu(f"s_mov_b32 s18, {896*1152*2}")
        A.salu("s_mov_b32 s19, 0x00020000")
        A.vmem(f"buffer_load_dword v{D+5}, v{T3}, s[16:19], 0 offen", w={D + 5}, r={T3})
    QA = [S, O]
    FBW = [P, QB]; FBX = [P + 16, QB + 16]
    AW = [FR, FR + 4]; AX = FR + 8
    def qaddr(s):
        u0 = 3 * s
        return (addr_items([AX + i for i in range(4)], BX, unit_slot[u0], [0, 32, 64, 96]) +
                addr_items([AW[0] + i for i in range(4)], BW, unit_slot[u0 + 1], [0, 64, 128, 192]) +
                addr_items([AW[1] + i for i in range(4)], BW, unit_slot[u0 + 2], [0, 64, 128, 192]))
    def qread_items(ks):
        it = [lambda: A.ds_read_b128(FBX[ks % 2], AX + ks), lambda: A.ds_read_b128(FBX[ks % 2] + 4, AX + ks, 4096)]
        for t in range(4):
            for j in range(2):
                it.append(lambda t=t, j=j: A.ds_read_tr(FBW[ks % 2] + 4 * t + 2 * j, AW[ks // 2] + t, ((ks % 2) * 16 + 4 * j) * 512))
        return it
    def qreads(ks):
        for it in qread_items(ks): last = it()
        return last
    for it in qaddr(0): it()
    A.barrier()
    PF.stamp("q0")
    pend = qreads(0)
    touch(OPT["pflead"])
    QI = OPT["qi"]
    for s in range(9):
        for ks in range(4):
            A.wait_ds(pend)
            rq = []
            if ks < 3:
                if QI: rq = qread_items(ks + 1)
                else: pend = qreads(ks + 1)
            nxt = qaddr(s + 1) if (ks == 3 and s < 8) else []
            m = 0
            for t in range(4):
                for r2 in range(2):
                    A.mfma(QA[r2] + 16 * t, FBW[ks % 2] + 4 * t, FBX[ks % 2] + 4 * r2, "zero" if (s == 0 and ks == 0) else None)
                    if nxt:
                        if m < 2:
                            for it in nxt[6 * m: 6 * m + 6]: it()
                        if m == 1:
                            A.barrier()
                            PF.stamp(f"q{s+1}")
                            if QI: rq = qread_items(0)
                            else: pend = qreads(0)
                        if m == 3: touch(s + 1 + OPT["pflead"])
                    for _ in range(QI):
                        if rq: pend = rq.pop(0)()
                    m += 1
            assert not rq
    A.salu(f"s_lshr_b32 s3, s{sW}, 1")
    A.salu(f"s_cmp_eq_u32 s3, 0")
    A.salu(f"s_cselect_b32 s3, {xch[0]}, {xch[1]}")
    A.salu(f"s_lshl_b32 s3, s3, 14")
    A.salu(f"s_and_b32 s{sT}, s{sW}, 1")
    A.salu(f"s_lshl_b32 s{sT}, s{sT}, 13")
    A.salu(f"s_add_u32 s3, s3, s{sT}")
    V(f"v_lshlrev_b32 v{T6}, 4, v{L}", w={T6}, r={L})
    V(f"v_add_u32 v{T6}, s3, v{T6}", w={T6}, r={T6})
    for i in range(64):
        V(f"v_mul_f32 v{O+i}, s{sC}, v{O+i}", w={O + i}, r={O + i})
    for q in range(32):
        V(f"v_cvt_pk_bf16_f32 v{P+q}, v{O+2*q}, v{O+2*q+1}", w={P + q}, r={O + 2 * q, O + 2 * q + 1})
        if q % 4 == 3:
            A.ds_write_b128(T6, P + q - 3, (q // 4) * 1024)
    for i in range(64):
        V(f"v_mul_f32 v{S+i}, s{sC}, v{S+i}", w={S + i}, r={S + i})
    for q in range(32):
        V(f"v_cvt_pk_bf16_f32 v{QB+q}, v{S+2*q}, v{S+2*q+1}", w={QB + q}, r={S + 2 * q, S + 2 * q + 1})
    A.wait_ds_all()
    A.waitcnt(vm=0)
    A.vm_done = A.nvm
    if OPT["ld4"]:
        A.nvm, A.vm_done = ldr_vm
    A.label("K1_ATT")
    A.win = []
    A.salu("s_nop 4")
    if OPT["stag"]:
        A.salu(f"s_lshr_b32 s{sT2}, s{sW}, {OPT['stag'] - 1}")

    SETA = [AD + i for i in range(8)]
    SETB = [XO, XO + 1, WO, WO + 1, BW, BX, T4, T5]
    kx = [32 * ks for ks in range(8)]
    vx = [(t << 6) ^ (32 * jj) for t in range(4) for jj in range(2)]
    SB = lambda h: S + 32 * (h % 2)
    PB = lambda h: P + 16 * (h % 2)
    phases = [("qk", 0)] + [x for h in range(7) for x in (("qk", h + 1), ("pv", h))] + [("pv", 7)]
    pset = {}
    for ph in phases:
        pset[ph] = SETA if ph[0] == "qk" else SETB
    pset[("qk", 0)] = SETB; pset[("pv", 7)] = SETA
    punit = lambda ph: UK[ph[1]] if ph[0] == "qk" else UV[ph[1]]
    def paddr(ph):
        u = punit(ph)
        return addr_items(pset[ph], BK if ph[0] == "qk" else BV, unit_slot[u], kx if ph[0] == "qk" else vx)
    mf = [(ph, i) for ph in phases for i in range(16)]
    syncJ = list(range(0, 6, OPT["bstep"]))
    if OPT["fuse"]:
        syncJ.append(6)
        K2 = K2Fused(A, sW, SO, QB)
    sync_pos = [phases.index(("pv", j)) * 16 + 12 for j in syncJ]
    first_read = {}
    for n, (ph, i) in enumerate(mf):
        first_read.setdefault(punit(ph), max(n - 4, -1))
    last_read = {}
    for n, (ph, i) in enumerate(mf):
        last_read[punit(ph)] = n - 4
    def publish_set(pos_from, pos_to):
        return [u for u, fr in first_read.items() if pos_from <= fr < pos_to]
    freed = set()
    dmaq = []
    def refill_att():
        while nkv[0] < 16 and free:
            dmaq.extend(dma_items(27 + nkv[0])); nkv[0] += 1

    pub = publish_set(-1, sync_pos[0])
    A.wait_vm(max(unit_last_vm[u] for u in pub))
    A.barrier()
    PF.stamp("a0")
    for u in stage_units[8]: free.append(unit_slot[u])
    A.salu(f"s_cmp_lt_u32 s{sW}, 4")
    A.salu(f"s_cbranch_scc1 K1_QGOT")
    if staged:
        A.salu(f"s_cmp_lt_u32 s{sW}, 6")
        A.salu(f"s_cbranch_scc1 K1_NODUMP")
        while staged:
            u, r_ = staged.pop(0)
            dump_unit(u, r_)
        A.label("K1_NODUMP")
    refill_att()
    A.salu(f"s_bfe_u32 s3, s{sW}, 0x10001")
    A.salu(f"s_cmp_eq_u32 s3, 0")
    A.salu(f"s_cselect_b32 s3, {xch[0]}, {xch[1]}")
    A.salu(f"s_lshl_b32 s3, s3, 14")
    A.salu(f"s_and_b32 s{sT}, s{sW}, 1")
    A.salu(f"s_lshl_b32 s{sT}, s{sT}, 13")
    A.salu(f"s_add_u32 s3, s3, s{sT}")
    V(f"v_lshlrev_b32 v{T6}, 4, v{L}", w={T6}, r={L})
    V(f"v_add_u32 v{T6}, s3, v{T6}", w={T6}, r={T6})
    for q in range(8):
        A.ds_read_b128(QB + 4 * q, T6, q * 1024)
    A.wait_ds_all()
    A.label("K1_QGOT")
    A.salu("s_nop 1")
    for it in paddr(("qk", 0)) + paddr(("qk", 1)): it()

    TT = [T0, T1, T2, T3]
    def max_items(regs, first, final):
        it = []
        r = list(regs)
        if first:
            a = r[:3]; b = r[3:6]; r = r[6:]
            it.append(lambda a=a: V(f"v_max3_f32 v{MX}, v{a[0]}, v{a[1]}, v{a[2]}", w={MX}, r=set(a)))
            it.append(lambda b=b: V(f"v_max3_f32 v{MX2}, v{b[0]}, v{b[1]}, v{b[2]}", w={MX2}, r=set(b)))
        k = 0
        while r:
            a = r[:2]; r = r[2:]
            d = MX if k % 2 == 0 else MX2
            it.append(lambda a=a, d=d: V(f"v_max3_f32 v{d}, v{d}, v{a[0]}, v{a[1]}", w={d}, r={d} | set(a)))
            k += 1
        if final:
            it.append(lambda: V(f"v_max_f32 v{MX}, v{MX}, v{MX2}", w={MX}, r={MX, MX2}))
            it.append(lambda: V(f"v_mov_b32 v{MX2}, v{MX}", w={MX2}, r={MX}))
            it.append(lambda: V(f"v_permlane32_swap_b32 v{MX}, v{MX2}", w={MX, MX2}, r={MX, MX2}, kind="perm"))
            it.append(lambda: V(f"v_max_f32 v{MX}, v{MX}, v{MX2}", w={MX}, r={MX, MX2}))
        return it
    def sm_items(h, lo, hi, sub):
        it = []
        sb, pb = SB(h), PB(h)
        if sub:
            it.append(lambda: V(f"v_sub_f32 v{sb+lo}, v{sb+lo}, v{MX}", w={sb + lo}, r={sb + lo, MX}))
        for e in range(lo, hi + 2):
            if sub and e + 1 < hi:
                it.append(lambda e=e: V(f"v_sub_f32 v{sb+e+1}, v{sb+e+1}, v{MX}", w={sb + e + 1}, r={sb + e + 1, MX}))
            if e < hi:
                it.append(lambda e=e: V(f"v_exp_f32 v{TT[e%4]}, v{sb+e}", w={TT[e % 4]}, r={sb + e}, kind="trans"))
            if lo <= e - 1 < hi:
                p = e - 1; acc = SUMA if p % 2 == 0 else SUMB
                if p < 2:
                    it.append(lambda p=p, acc=acc: V(f"v_mov_b32 v{acc}, v{TT[p%4]}", w={acc}, r={TT[p % 4]}))
                else:
                    it.append(lambda p=p, acc=acc: V(f"v_add_f32 v{acc}, v{acc}, v{TT[p%4]}", w={acc}, r={acc, TT[p % 4]}))
            if e - 2 >= lo and (e - 2) % 2 == 0 and e - 1 < hi:
                p = e - 2
                it.append(lambda p=p: V(f"v_cvt_pk_bf16_f32 v{pb+p//2}, v{TT[p%4]}, v{TT[(p+1)%4]}", w={pb + p // 2}, r={TT[p % 4], TT[(p + 1) % 4]}))
        return it
    def negm_items():
        return [lambda i=i: V(f"v_sub_f32 v{NEGM+i}, 0, v{MX}", w={NEGM + i}, r={MX}) for i in range(16)]
    def check(h):
        V(f"v_add_f32 v{SUMA}, v{SUMA}, v{SUMB}", w={SUMA}, r={SUMA, SUMB})
        if h > 0:
            V(f"v_cmp_nge_f32 vcc, s{sTHR}, v{SUMA}", r={SUMA}, sw={"vcc"})
            A.salu("s_nop 1")
            A.salu(f"s_cbranch_vccnz K1_SLOW{h}")
            A.label(f"K1_BACK{h}")
        V(f"v_add_f32 v{LSUM}, v{LSUM}, v{SUMA}", w={LSUM}, r={LSUM, SUMA})

    def side_for(ph):
        kind, h = ph
        if ph == ("qk", 0):
            return [], []
        if kind == "qk":
            hh = h - 1
            if hh == 0:
                main = max_items([SB(0) + i for i in range(32)], True, True) + sm_items(0, 0, 32, True)
            else:
                main = sm_items(hh, 16, 32, hh == 1)
            return main, paddr(("pv", hh))
        if h == 7: return [], []
        if h == 6:
            return sm_items(7, 0, 32, False), paddr(("pv", 7)) + (K2.addr_items() if OPT["fuse"] else [])
        main = sm_items(h + 1, 0, 16, h == 0)
        if h == 0: main = negm_items() + main
        return main, paddr(("qk", h + 2))

    rid = {}
    def issue_read(n):
        ph, i = mf[n]
        st = pset[ph]; fr = FR + 4 * (n % 4)
        if ph[0] == "qk":
            rid[n] = A.ds_read_b128(fr, st[i % 8], (i // 8) * 8192)
        else:
            g, t = i // 4, i % 4
            A.ds_read_tr(fr, st[2 * t], g * 4096)
            rid[n] = A.ds_read_tr(fr + 2, st[2 * t + 1], g * 4096 + 2048)
    for n in range(4): issue_read(n)
    gap = 0
    for n, (ph, i) in enumerate(mf):
        kind, h = ph
        if i == 0:
            main, adr = side_for(ph)
            plan = [[] for _ in range(16)]
            for k, it in enumerate(adr): plan[k * 12 // max(len(adr), 1)].append(it)
            s0 = 1 if ph == ("qk", 1) else 0
            for k, it in enumerate(main): plan[s0 + k * (16 - s0) // len(main)].append(it)
        A.wait_ds(rid[n])
        fr = FR + 4 * (n % 4)
        if kind == "qk":
            kt, ks = i // 8, i % 8
            c = None
            if ks == 0: c = "zero" if h <= 1 else NEGM
            A.mfma(SB(h) + 16 * kt, fr, QB + 4 * ks, c)
        else:
            g, t = i // 4, i % 4
            A.mfma(O + 16 * t, fr, PB(h) + 4 * g, "zero" if (h == 0 and g == 0) else None)
        if n in sync_pos:
            k = sync_pos.index(n)
            pub = publish_set(n, sync_pos[k + 1] if k + 1 < len(sync_pos) else 10**9)
            while dmaq: dmaq.pop(0)()
            A.wait_ds_all()
            A.wait_vm(max(unit_last_vm[u] for u in pub))
            A.barrier()
            PF.stamp(f"x{h}")
            if k == 0: free.extend(xch)
            for u, lr in last_read.items():
                if lr < n and u not in freed:
                    freed.add(u); free.append(unit_slot[u])
            refill_att()
            if OPT["fuse"]:
                if h == 4: K2.loads()
                if h == 5: K2.scalars()
                if h == 6:
                    assert len(free) >= 8, free
                    its = K2.wo_items(free[:8])
                    if OPT["fuse"] < 3: dmaq.extend(its)
            if OPT["wopf"] and h == OPT["wopf"] - 1:
                A.salu("s_load_dwordx2 s[60:61], s[0:1], 32")
                A.salu("s_load_dwordx2 s[62:63], s[0:1], 72")
                A.salu(f"s_lshl_b32 s3, s{sB}, 4")
                A.salu(f"s_add_u32 s3, s3, s{sKVH}")
                A.salu(f"s_mul_i32 s3, s3, 288")
                A.salu(f"s_lshl_b32 s{sT}, s{sW}, 6")
                A.salu(f"s_min_u32 s{sT}, s{sT}, 224")
                A.salu(f"s_add_u32 s3, s3, s{sT}")
                A.salu(f"s_lshl_b32 s3, s3, 7")
                V(f"v_mbcnt_lo_u32_b32 v{T6}, -1, 0", w={T6})
                V(f"v_mbcnt_hi_u32_b32 v{T6}, -1, v{T6}", w={T6}, r={T6})
                V(f"v_lshlrev_b32 v{T6}, 7, v{T6}", w={T6}, r={T6})
                A.salu("s_waitcnt lgkmcnt(0)")
                A.salu(f"s_cmp_eq_u32 s{sBLK}, 0")
                A.salu("s_cselect_b32 s60, s60, s62")
                A.salu("s_cselect_b32 s61, s61, s63")
                A.salu("s_and_b32 s61, s61, 0xffff")
                A.salu(f"s_mov_b32 s62, {4096*576*2}")
                A.salu("s_mov_b32 s63, 0x00020000")
                A.vmem(f"buffer_load_dword v{T7}, v{T6}, s[60:63], s3 offen", w={T7}, r={T6})
        if n + 4 < len(mf): issue_read(n + 4)
        for it in plan[i]: it()
        gap += 1
        if dmaq and gap >= OPT["dmagap"]:
            dmaq.pop(0)(); gap = 0
        if i == 15:
            if kind == "qk" and h >= 1: check(h - 1)
            if ph == ("pv", 6): check(7)
    assert not dmaq
    PF.stamp("pv7")
    V(f"v_mov_b32 v{T0}, v{LSUM}", w={T0}, r={LSUM})
    V(f"v_permlane32_swap_b32 v{T0}, v{LSUM}", w={T0, LSUM}, r={T0, LSUM}, kind="perm")
    V(f"v_add_f32 v{T0}, v{T0}, v{LSUM}", w={T0}, r={T0, LSUM})
    V(f"v_rcp_f32 v{T0}, v{T0}", w={T0}, r={T0}, kind="trans")
    A.salu(f"s_cmp_eq_u32 s{sRT}, 3")
    A.salu("s_cbranch_scc0 K1_NOMASK")
    A.salu("s_mov_b32 exec_lo, 0xffff")
    A.salu("s_mov_b32 exec_hi, 0xffff")
    A.label("K1_NOMASK")
    for f in range(8):
        b0 = O + 8 * f
        for i in range(8):
            V(f"v_mul_f32 v{b0+i}, v{T0}, v{b0+i}", w={b0 + i}, r={T0, b0 + i})
        d = P + 4 * f
        for q in range(4):
            V(f"v_cvt_pk_bf16_f32 v{d+q}, v{b0+2*q}, v{b0+2*q+1}", w={d + q}, r={b0 + 2 * q, b0 + 2 * q + 1})
        A.vmem(f"buffer_store_dwordx4 {vname(d,4)}, v{OST}, s[{SO}:{SO+3}], s{sOB} offen offset:{f*512}{' sc1' if OPT['fuse'] else ' nt' if OPT['ntst'] else ''}", r=vr(d, 4) | {OST}, storedata=vr(d, 4))
    if OPT["fuse"]:
        K2.body(PF, sBLK, sB, sKVH)
    PF.dump(24, sW, 0)
    A.label("K1_END")
    A.salu("s_endpgm")
    for h in range(1, 8):
        A.label(f"K1_SLOW{h}")
        A.flush_hazards()
        sb = SB(h)
        for it in max_items([sb + i for i in range(32)], True, True): it()
        V(f"v_max_f32 v{MX}, 0, v{MX}", w={MX}, r={MX})
        V(f"v_sub_f32 v{MX2}, 0, v{MX}", w={MX2}, r={MX})
        V(f"v_exp_f32 v{MX2}, v{MX2}", w={MX2}, r={MX2}, kind="trans")
        for i in range(64):
            V(f"v_mul_f32 v{O+i}, v{MX2}, v{O+i}", w={O + i}, r={MX2, O + i})
        V(f"v_mul_f32 v{LSUM}, v{MX2}, v{LSUM}", w={LSUM}, r={MX2, LSUM})
        for i in range(16):
            V(f"v_sub_f32 v{NEGM+i}, v{NEGM+i}, v{MX}", w={NEGM + i}, r={NEGM + i, MX})
        if h < 7:
            s2 = SB(h + 1)
            for i in range(32):
                V(f"v_sub_f32 v{s2+i}, v{s2+i}, v{MX}", w={s2 + i}, r={s2 + i, MX})
        for it in sm_items(h, 0, 32, True): it()
        V(f"v_add_f32 v{SUMA}, v{SUMA}, v{SUMB}", w={SUMA}, r={SUMA, SUMB})
        A.flush_hazards()
        A.salu(f"s_branch K1_BACK{h}")

class K2Fused:
    def __init__(self, A, sW, SO, WOFF):
        self.A = A; self.sW = sW; self.SO = SO; self.WOFF = WOFF
        self.SWO, self.SOUT, self.SDBG = 28, 32, 20
        self.sBLK, self.sTT, self.sMT, self.sNT = 16, 17, 18, 19
        self.sWL, self.sWB, self.sO0, self.sO1, self.sT = 49, 50, 8, 9, 52
        self.sP0, self.sP1 = 10, 11
        self.last_vm = {}
    def loads(self):
        A = self.A
        A.salu("s_load_dwordx2 s[8:9], s[0:1], 32")
        A.salu("s_load_dwordx2 s[10:11], s[0:1], 72")
        A.salu("s_load_dwordx2 s[12:13], s[0:1], 80")
        A.salu("s_load_dwordx2 s[14:15], s[0:1], 88")
    def scalars(self):
        A = self.A; sW = self.sW
        sBLK, sTT, sMT, sNT = self.sBLK, self.sTT, self.sMT, self.sNT
        A.salu("s_waitcnt lgkmcnt(0)")
        A.salu("s_and_b32 s3, s2, 7")
        A.salu("s_lshl_b32 s3, s3, 5")
        A.salu(f"s_lshr_b32 s{sTT}, s2, 3")
        A.salu(f"s_add_u32 s{sTT}, s3, s{sTT}")
        A.salu(f"s_min_u32 s3, s{sTT}, 251")
        A.salu("s_cmp_ge_u32 s3, 126")
        A.salu(f"s_cselect_b32 s{sBLK}, 1, 0")
        A.salu("s_cselect_b32 s8, s10, s8")
        A.salu("s_cselect_b32 s9, s11, s9")
        srd(A, self.SWO, 8, 4096 * 576 * 2)
        srd(A, self.SOUT, 12, 896 * 1152 * 2)
        srd(A, self.SDBG, 14, 256)
        A.salu(f"s_mul_i32 s12, s{sBLK}, 126")
        A.salu("s_sub_u32 s3, s3, s12")
        A.salu("s_mul_i32 s12, s3, 57")
        A.salu(f"s_lshr_b32 s{sMT}, s12, 9")
        A.salu(f"s_mul_i32 s12, s{sMT}, 9")
        A.salu(f"s_sub_u32 s{sNT}, s3, s12")
        A.salu(f"s_mul_i32 s{self.sWB}, s{sW}, {512*1152}")
        A.salu(f"s_lshl_b32 s12, s{sNT}, 7")
        A.salu(f"s_add_u32 s{self.sWB}, s{self.sWB}, s12")
        A.salu(f"s_mul_i32 s{self.sO0}, s{sBLK}, {O_BLK}")
        A.salu(f"s_lshl_b32 s12, s{sMT}, 19")
        A.salu(f"s_add_u32 s{self.sO0}, s{self.sO0}, s12")
        A.salu(f"s_lshl_b32 s12, s{sW}, 14")
        A.salu(f"s_add_u32 s{self.sO0}, s{self.sO0}, s12")
        A.salu(f"s_add_u32 s{self.sO1}, s{self.sO0}, {2*131072}")
        A.salu(f"s_lshl_b32 s12, s{sBLK}, 7")
        A.salu(f"s_lshr_b32 s13, s{sW}, 1")
        A.salu("s_lshl_b32 s13, s13, 2")
        A.salu("s_add_u32 s12, s12, s13")
        A.salu(f"s_mul_i32 s13, s{sMT}, 148")
        A.salu(f"s_lshr_b32 s{self.sP0}, s13, 8")
        A.salu(f"s_lshl_b32 s{self.sP0}, s{self.sP0}, 4")
        A.salu(f"s_add_u32 s{self.sP0}, s{self.sP0}, s12")
        A.salu("s_add_u32 s13, s13, 111")
        A.salu(f"s_lshr_b32 s{self.sP1}, s13, 8")
        A.salu(f"s_lshl_b32 s{self.sP1}, s{self.sP1}, 4")
        A.salu(f"s_add_u32 s{self.sP1}, s{self.sP1}, s12")
    def addr_items(self):
        V = self.A.valu; W = self.WOFF
        L, T1, T2, T4 = W + 4, W + 5, W + 6, W + 7
        return [
            lambda: V(f"v_mbcnt_lo_u32_b32 v{L}, -1, 0", w={L}),
            lambda: V(f"v_mbcnt_hi_u32_b32 v{L}, -1, v{L}", w={L}, r={L}),
            lambda: V(f"v_lshrrev_b32 v{T1}, 3, v{L}", w={T1}, r={L}),
            lambda: V(f"v_mul_u32_u24 v{T1}, 1152, v{T1}", w={T1}, r={T1}),
            lambda: V(f"v_bfe_u32 v{T2}, v{L}, 4, 1", w={T2}, r={L}),
            lambda: V(f"v_lshlrev_b32 v{T2}, 2, v{T2}", w={T2}, r={T2}),
            lambda: V(f"v_and_b32 v{T4}, 7, v{L}", w={T4}, r={L}),
            lambda: V(f"v_xor_b32 v{T4}, v{T4}, v{T2}", w={T4}, r={T4, T2}),
            lambda: V(f"v_lshl_add_u32 v{W}, v{T4}, 4, v{T1}", w={W}, r={T4, T1}),
        ] + [lambda i=i: V(f"v_add_u32 v{W+i}, {9216*i}, v{W}", w={W + i}, r={W}) for i in range(1, 4)]
    def wo_piece(self, u, i):
        A = self.A; W = self.WOFF; S = self.SWO
        A.salu(f"s_add_u32 s{self.sT}, s{self.sWB}, {u * 32 * 1152}")
        A.salu(f"s_add_u32 m0, s{self.sWL}, {(u % 4) * 4096 + i * 1024}", m0w=True)
        A.vmem(f"buffer_load_dwordx4 v{W+i}, s[{S}:{S+3}], s{self.sT} offen{' nt' if OPT['ntwo'] else ''} lds", kind="dma", r={W + i}, m0r=True)
    def wo_items(self, slots):
        A = self.A
        tab = sum(s << (4 * w) for w, s in enumerate(slots))
        A.salu(f"s_lshl_b32 s3, s{self.sW}, 2")
        A.salu(f"s_lshr_b32 s3, {tab:#x}, s3")
        A.salu("s_and_b32 s3, s3, 15")
        A.salu(f"s_lshl_b32 s{self.sWL}, s3, 14")
        return [lambda u=u, i=i: self.wo_piece(u, i) for u in range(4) for i in range(4)]
    def body(self, PF, sBLK1, sB1, sKVH1):
        A = self.A; V = A.valu; sW = self.sW; SO = self.SO
        T0, T1, T2, T3, T4, T5, T6, T7 = range(0, 8)
        WOFF = self.WOFF; OOFF = 12; BA = 13; RED = 15; AF = 16; OF = 96; ACC = 160
        sBLK, sMT, sNT = self.sBLK, self.sMT, self.sNT
        SOUT, SDBG = self.SOUT, self.SDBG
        sWL, sO0, sO1, sT = self.sWL, self.sO0, self.sO1, self.sT
        L = T0
        A.salu("s_mov_b64 exec, -1")
        V(f"v_mbcnt_lo_u32_b32 v{L}, -1, 0", w={L})
        V(f"v_mbcnt_hi_u32_b32 v{L}, -1, v{L}", w={L}, r={L})
        V(f"v_bfe_u32 v{T2}, v{L}, 4, 1", w={T2}, r={L})
        V(f"v_lshrrev_b32 v{T1}, 5, v{L}", w={T1}, r={L})
        V(f"v_bfe_u32 v{T3}, v{L}, 2, 2", w={T3}, r={L})
        V(f"v_and_b32 v{T4}, 3, v{L}", w={T4}, r={L})
        V(f"v_lshlrev_b32 v{T6}, 17, v{T2}", w={T6}, r={T2})
        V(f"v_lshl_add_u32 v{T6}, v{T1}, 8, v{T6}", w={T6}, r={T1, T6})
        V(f"v_and_b32 v{T7}, 15, v{L}", w={T7}, r={L})
        V(f"v_lshl_add_u32 v{OOFF}, v{T7}, 4, v{T6}", w={OOFF}, r={T7, T6})
        V(f"v_lshl_add_u32 v{T6}, v{T1}, 2, v{T3}", w={T6}, r={T1, T3})
        V(f"v_lshlrev_b32 v{T6}, 7, v{T6}", w={T6}, r={T6})
        V(f"v_lshrrev_b32 v{T7}, 1, v{T4}", w={T7}, r={T4})
        V(f"v_lshl_add_u32 v{T7}, v{T2}, 1, v{T7}", w={T7}, r={T2, T7})
        V(f"v_lshrrev_b32 v{T5}, 1, v{T3}", w={T5}, r={T3})
        V(f"v_lshlrev_b32 v{T5}, 2, v{T5}", w={T5}, r={T5})
        V(f"v_xor_b32 v{T7}, v{T7}, v{T5}", w={T7}, r={T7, T5})
        V(f"v_lshl_add_u32 v{T6}, v{T7}, 4, v{T6}", w={T6}, r={T7, T6})
        V(f"v_and_b32 v{T7}, 1, v{T4}", w={T7}, r={T4})
        V(f"v_lshl_add_u32 v{T6}, v{T7}, 3, v{T6}", w={T6}, r={T7, T6})
        V(f"v_add_u32 v{BA}, s{sWL}, v{T6}", w={BA}, r={T6})
        V(f"v_xor_b32 v{BA+1}, 64, v{BA}", w={BA + 1}, r={BA})
        V(f"v_lshlrev_b32 v{RED}, 4, v{L}", w={RED}, r={L})
        A.salu(f"s_lshl_b32 s12, s{sBLK1}, 7")
        A.salu(f"s_lshl_b32 s13, s{sB1}, 4")
        A.salu("s_add_u32 s12, s12, s13")
        A.salu(f"s_and_b32 s13, s{sKVH1}, 12")
        A.salu("s_add_u32 s12, s12, s13")
        A.salu(f"s_and_b32 s13, s{sKVH1}, 3")
        A.salu("s_lshl_b32 s13, s13, 3")
        A.salu("s_lshl_b32 s13, 1, s13")
        V(f"v_mov_b32 v{T1}, s12", w={T1})
        V(f"v_mov_b32 v{T2}, s13", w={T2})
        if OPT["fuse"] == 1:
            V(f"v_mov_b32 v{T3}, s{self.sP1}", w={T3})
            V(f"v_writelane_b32 v{T3}, s{self.sP0}, 0", w={T3}, r={T3})
            A.salu(f"s_and_b32 s14, s{sW}, 1")
            A.salu("s_lshl_b32 s14, s14, 4")
            A.salu("s_lshl_b32 s14, 0x101, s14")
        else:
            V(f"v_mov_b32 v{T3}, s{self.sP1}", w={T3})
            V(f"v_mov_b32 v{T4}, s{self.sP0}", w={T4})
            V(f"v_cmp_gt_u32 vcc, 4, v{L}", r={L}, sw={"vcc"})
            V(f"v_cndmask_b32 v{T3}, v{T3}, v{T4}, vcc", w={T3}, r={T3, T4}, sr={"vcc"})
            V(f"v_and_b32 v{T4}, 3, v{L}", w={T4}, r={L})
            V(f"v_lshl_add_u32 v{T3}, v{T4}, 2, v{T3}", w={T3}, r={T3, T4})
            A.salu("s_mov_b32 s14, 0x01010101")
        A.salu("s_mov_b32 s15, 0x40000")
        A.waitcnt(vm=0); A.vm_done = A.nvm
        PF.stamp("st")
        A.barrier()
        A.salu(f"s_cmp_eq_u32 s{sW}, 0")
        A.salu("s_cbranch_scc0 K1_NOFLAG")
        A.salu("s_mov_b64 exec, 1")
        A.salu(f"buffer_atomic_add v{T2}, v{T1}, s[{SDBG}:{SDBG+3}], 0 offen sc1")
        A.label("K1_NOFLAG")
        A.salu(f"s_cmp_ge_u32 s{self.sTT}, 252")
        A.salu("s_cbranch_scc1 K1_END")
        if OPT["fuse"] == 1:
            A.salu("s_mov_b64 exec, 3")
        else:
            A.salu(f"s_cmp_eq_u32 s{sW}, 0")
            A.salu("s_cbranch_scc0 K1_GO" if OPT["fuse"] == 2 else "s_cbranch_scc0 K1_WO")
            A.salu("s_mov_b64 exec, 0xff")
        A.label("K1_POLL")
        A.salu(f"buffer_load_dword v{T4}, v{T3}, s[{SDBG}:{SDBG+3}], 0 offen sc1")
        A.salu("s_waitcnt vmcnt(0)")
        A.salu(f"v_and_b32 v{T4}, s14, v{T4}")
        A.salu(f"v_cmp_ne_u32 vcc, s14, v{T4}")
        A.salu("s_nop 1")
        A.salu("s_cbranch_vccz K1_GO")
        A.salu(f"s_sleep {OPT['slp']}")
        A.salu("s_sub_u32 s15, s15, 1")
        A.salu("s_cmp_lg_u32 s15, 0")
        A.salu("s_cbranch_scc1 K1_POLL")
        A.label("K1_GO")
        A.salu("s_mov_b64 exec, -1")
        if OPT["fuse"] == 3:
            A.barrier()
            A.label("K1_WO")
            for u in range(4):
                for i in range(4): self.wo_piece(u, i)
            A.salu(f"s_cmp_eq_u32 s{sW}, 0")
            A.salu("s_cbranch_scc1 K1_GO2")
            A.barrier()
            A.label("K1_GO2")
        elif OPT["fuse"] > 1: A.barrier()
        PF.stamp("go")
        NU = 16; DEPTH = 4
        last_vm = {}
        def issue(u, wo=True):
            slot = u % DEPTH
            if wo:
                for i in range(4): self.wo_piece(u, i)
            for ks in range(2):
                for tm in range(2):
                    d = OF + slot * 16 + (ks * 2 + tm) * 4
                    off = (2 * u + ks) * 512
                    sb = sO0 if tm == 0 else sO1
                    if off >= 4096:
                        A.salu(f"s_add_u32 s{sT}, s{sb}, {off & ~4095}")
                        sb = sT
                    k = A.vmem(f"buffer_load_dwordx4 {vname(d,4)}, v{OOFF}, s[{SO}:{SO+3}], s{sb} offen offset:{off & 4095} sc1", w=vr(d, 4), r={OOFF})
            last_vm[u] = k
        def dsreads(u):
            slot = u % DEPTH
            ab = AF + (u % 2) * 16
            for ks in range(2):
                for tn in range(2):
                    for j in range(2):
                        k = A.ds_read_tr(ab + (ks * 2 + tn) * 4 + 2 * j, BA + tn, slot * 4096 + (16 * ks + 8 * j) * 128)
            return k
        for u in range(DEPTH): issue(u, False)
        if OPT["fuse"] == 3: A.wait_vm(last_vm[0])
        pend = dsreads(0)
        A.wait_vm(last_vm[0])
        for u in range(NU):
            A.wait_ds(pend)
            if u + 1 < NU:
                A.wait_vm(last_vm[u + 1])
                pend = dsreads(u + 1)
            ab = AF + (u % 2) * 16
            ob = OF + (u % DEPTH) * 16
            for ks in range(2):
                for tn in range(2):
                    for tm in range(2):
                        c = "zero" if (u == 0 and ks == 0) else None
                        A.mfma(ACC + (tn * 2 + tm) * 16, ab + (ks * 2 + tn) * 4, ob + (ks * 2 + tm) * 4, c)
            if u + DEPTH < NU: issue(u + DEPTH)
            if u in (0, 7, 15): PF.stamp(f"u{u}")
        A.wait_ds_all()
        A.barrier()
        A.salu(f"s_lshl_b32 s12, s{sW}, 14")
        V(f"v_add_u32 v{T1}, s12, v{RED}", w={T1}, r={RED})
        for q in range(16):
            A.ds_write_b128(T1, ACC + 4 * q, q * 1024)
        A.wait_ds_all()
        A.barrier()
        A.salu(f"s_lshl_b32 s6, s{sW}, 11")
        V(f"v_add_u32 v{T1}, s6, v{RED}", w={T1}, r={RED})
        V(f"v_add_u32 v{T2}, 0x10000, v{T1}", w={T2}, r={T1})
        R = OF
        for ww in range(8):
            for q in range(2):
                A.ds_read_b128(R + (ww * 2 + q) * 4, T1 if ww < 4 else T2, (ww % 4) * 16384 + q * 1024)
            if ww == 5:
                A.wait_ds_all()
        A.wait_ds_all()
        for ww in range(1, 8):
            for i in range(8):
                V(f"v_add_f32 v{R+i}, v{R+i}, v{R+ww*8+i}", w={R + i}, r={R + i, R + ww * 8 + i})
        for q in range(4):
            V(f"v_cvt_pk_bf16_f32 v{AF+q}, v{R+2*q}, v{R+2*q+1}", w={AF + q}, r={R + 2 * q, R + 2 * q + 1})
        A.salu(f"s_lshr_b32 s6, s{sW}, 1")
        A.salu("s_and_b32 s7, s6, 1")
        A.salu("s_lshr_b32 s6, s6, 1")
        A.salu(f"s_lshl_b32 s3, s{sMT}, 6")
        A.salu("s_lshl_b32 s7, s7, 5")
        A.salu("s_add_u32 s3, s3, s7")
        A.salu("s_mul_i32 s3, s3, 2304")
        A.salu(f"s_mul_i32 s7, s{sBLK}, 1152")
        A.salu("s_add_u32 s3, s3, s7")
        A.salu(f"s_lshl_b32 s7, s{sNT}, 7")
        A.salu("s_add_u32 s3, s3, s7")
        A.salu("s_lshl_b32 s7, s6, 6")
        A.salu("s_add_u32 s3, s3, s7")
        A.salu(f"s_and_b32 s7, s{sW}, 1")
        A.salu("s_lshl_b32 s7, s7, 5")
        A.salu("s_add_u32 s3, s3, s7")
        V(f"v_and_b32 v{T1}, 31, v{L}", w={T1}, r={L})
        V(f"v_mul_u32_u24 v{T1}, 2304, v{T1}", w={T1}, r={T1})
        V(f"v_lshrrev_b32 v{T2}, 5, v{L}", w={T2}, r={L})
        V(f"v_lshl_add_u32 v{T1}, v{T2}, 3, v{T1}", w={T1}, r={T2, T1})
        A.vmem(f"buffer_store_dwordx2 {vname(AF,2)}, v{T1}, s[{SOUT}:{SOUT+3}], s3 offen", r=vr(AF, 2) | {T1})
        A.vmem(f"buffer_store_dwordx2 {vname(AF+2,2)}, v{T1}, s[{SOUT}:{SOUT+3}], s3 offen offset:16", r=vr(AF + 2, 2) | {T1})

def gen_k2(A):
    V = A.valu
    T0, T1, T2, T3, T4, T5, T6, T7 = range(0, 8)
    WOFF = 8
    OOFF = 12
    BA = 13
    RED = 15
    AF = 16
    OF = 48
    ACC = 112
    sBLK, sMT, sNT, sW = 26, 27, 4, 5
    SW_, SO, SOUT = 28, 32, 36
    sWL, sWB, sO0, sO1, sT = 48, 49, 50, 51, 52
    A.win = []
    A.nds = A.ds_done = A.nvm = A.vm_done = 0
    A.raw(f".p2align 8\n.globl k2_kernel\n.type k2_kernel,@function\nk2_kernel:")
    A.salu("s_cmp_ge_u32 s2, 256")
    A.salu("s_cbranch_scc1 K2_END")
    A.salu("s_and_b32 s3, s2, 7")
    A.salu("s_lshl_b32 s3, s3, 5")
    A.salu("s_lshr_b32 s6, s2, 3")
    A.salu("s_add_u32 s3, s3, s6")
    A.salu("s_cmp_ge_u32 s3, 252")
    A.salu("s_cbranch_scc1 K2_END")
    A.salu("s_load_dwordx2 s[8:9], s[0:1], 32")
    A.salu("s_load_dwordx2 s[10:11], s[0:1], 72")
    A.salu("s_load_dwordx2 s[12:13], s[0:1], 80")
    A.salu("s_load_dwordx2 s[14:15], s[0:1], 96")
    A.salu("s_cmp_ge_u32 s3, 126")
    A.salu(f"s_cselect_b32 s{sBLK}, 1, 0")
    A.salu(f"s_mul_i32 s6, s{sBLK}, 126")
    A.salu("s_sub_u32 s3, s3, s6")
    A.salu("s_mul_i32 s6, s3, 57")
    A.salu(f"s_lshr_b32 s{sMT}, s6, 9")
    A.salu(f"s_mul_i32 s6, s{sMT}, 9")
    A.salu(f"s_sub_u32 s{sNT}, s3, s6")
    V(f"v_lshrrev_b32 v{T1}, 6, v0", w={T1}, r={0})
    A._emit(I(f"v_readfirstlane_b32 s{sW}, v{T1}", "rdlane", r={T1}, sw={sW}))
    V(f"v_and_b32 v{T0}, 63, v0", w={T0}, r={0})
    L = T0
    A.salu(f"s_lshl_b32 s{sWL}, s{sW}, 14", sr={sW})
    A.salu(f"s_mul_i32 s{sWB}, s{sW}, {512*1152}", sr={sW})
    A.salu(f"s_lshl_b32 s6, s{sNT}, 7")
    A.salu(f"s_add_u32 s{sWB}, s{sWB}, s6")
    A.salu(f"s_mul_i32 s{sO0}, s{sBLK}, {O_BLK}")
    A.salu(f"s_lshl_b32 s6, s{sMT}, 19")
    A.salu(f"s_add_u32 s{sO0}, s{sO0}, s6")
    A.salu(f"s_lshl_b32 s6, s{sW}, 14")
    A.salu(f"s_add_u32 s{sO0}, s{sO0}, s6")
    A.salu(f"s_add_u32 s{sO1}, s{sO0}, {2*131072}")
    V(f"v_lshrrev_b32 v{T1}, 3, v{L}", w={T1}, r={L})
    V(f"v_mul_u32_u24 v{T1}, 1152, v{T1}", w={T1}, r={T1})
    V(f"v_bfe_u32 v{T2}, v{L}, 4, 1", w={T2}, r={L})
    V(f"v_lshlrev_b32 v{T3}, 2, v{T2}", w={T3}, r={T2})
    V(f"v_and_b32 v{T4}, 7, v{L}", w={T4}, r={L})
    V(f"v_xor_b32 v{T4}, v{T4}, v{T3}", w={T4}, r={T4, T3})
    V(f"v_lshl_add_u32 v{WOFF}, v{T4}, 4, v{T1}", w={WOFF}, r={T4, T1})
    for i in range(1, 4):
        V(f"v_add_u32 v{WOFF+i}, {9216*i}, v{WOFF}", w={WOFF + i}, r={WOFF})
    V(f"v_lshrrev_b32 v{T1}, 5, v{L}", w={T1}, r={L})
    V(f"v_bfe_u32 v{T3}, v{L}, 2, 2", w={T3}, r={L})
    V(f"v_and_b32 v{T4}, 3, v{L}", w={T4}, r={L})
    V(f"v_lshlrev_b32 v{T6}, 17, v{T2}", w={T6}, r={T2})
    V(f"v_lshl_add_u32 v{T6}, v{T1}, 8, v{T6}", w={T6}, r={T1, T6})
    V(f"v_and_b32 v{T7}, 15, v{L}", w={T7}, r={L})
    V(f"v_lshl_add_u32 v{OOFF}, v{T7}, 4, v{T6}", w={OOFF}, r={T7, T6})
    V(f"v_lshl_add_u32 v{T6}, v{T1}, 2, v{T3}", w={T6}, r={T1, T3})
    V(f"v_lshlrev_b32 v{T6}, 7, v{T6}", w={T6}, r={T6})
    V(f"v_lshrrev_b32 v{T7}, 1, v{T4}", w={T7}, r={T4})
    V(f"v_lshl_add_u32 v{T7}, v{T2}, 1, v{T7}", w={T7}, r={T2, T7})
    V(f"v_lshrrev_b32 v{T5}, 1, v{T3}", w={T5}, r={T3})
    V(f"v_lshlrev_b32 v{T5}, 2, v{T5}", w={T5}, r={T5})
    V(f"v_xor_b32 v{T7}, v{T7}, v{T5}", w={T7}, r={T7, T5})
    V(f"v_lshl_add_u32 v{T6}, v{T7}, 4, v{T6}", w={T6}, r={T7, T6})
    V(f"v_and_b32 v{T7}, 1, v{T4}", w={T7}, r={T4})
    V(f"v_lshl_add_u32 v{T6}, v{T7}, 3, v{T6}", w={T6}, r={T7, T6})
    V(f"v_add_u32 v{BA}, s{sWL}, v{T6}", w={BA}, r={T6})
    V(f"v_xor_b32 v{BA+1}, 64, v{BA}", w={BA + 1}, r={BA})
    V(f"v_lshlrev_b32 v{RED}, 4, v{L}", w={RED}, r={L})
    A.waitcnt(lgkm=0)
    A.salu(f"s_cmp_eq_u32 s{sBLK}, 0")
    A.salu("s_cselect_b32 s8, s8, s10")
    A.salu("s_cselect_b32 s9, s9, s11")
    srd(A, SW_, 8, 4096 * 576 * 2)
    srd(A, SO, 14, 2 * O_BLK)
    srd(A, SOUT, 12, 896 * 1152 * 2)

    NU = 16; DEPTH = 4
    last_vm = {}
    def issue(u):
        slot = u % DEPTH
        A.salu(f"s_add_u32 s{sT}, s{sWB}, {u * 32 * 1152}")
        for i in range(4):
            A.salu(f"s_add_u32 m0, s{sWL}, {slot * 4096 + i * 1024}", m0w=True)
            A.vmem(f"buffer_load_dwordx4 v{WOFF+i}, s[{SW_}:{SW_+3}], s{sT} offen{' nt' if OPT['ntwo'] else ''} lds", kind="dma", r={WOFF + i}, m0r=True)
        for ks in range(2):
            for tm in range(2):
                d = OF + slot * 16 + (ks * 2 + tm) * 4
                off = (2 * u + ks) * 512
                sb = sO0 if tm == 0 else sO1
                if off >= 4096:
                    A.salu(f"s_add_u32 s{sT}, s{sb}, {off & ~4095}")
                    k = A.vmem(f"buffer_load_dwordx4 {vname(d,4)}, v{OOFF}, s[{SO}:{SO+3}], s{sT} offen offset:{off & 4095}{' nt' if OPT['nto'] else ''}", w=vr(d, 4), r={OOFF})
                else:
                    k = A.vmem(f"buffer_load_dwordx4 {vname(d,4)}, v{OOFF}, s[{SO}:{SO+3}], s{sb} offen offset:{off}{' nt' if OPT['nto'] else ''}", w=vr(d, 4), r={OOFF})
        last_vm[u] = k
    def dsreads(u):
        slot = u % DEPTH
        ab = AF + (u % 2) * 16
        for ks in range(2):
            for tn in range(2):
                for j in range(2):
                    k = A.ds_read_tr(ab + (ks * 2 + tn) * 4 + 2 * j, BA + tn, slot * 4096 + (16 * ks + 8 * j) * 128)
        return k
    PF = Prof(A, 1)
    PF.stamp("start")
    for u in range(DEPTH): issue(u)
    A.wait_vm(last_vm[0])
    pend = dsreads(0)
    for u in range(NU):
        A.wait_ds(pend)
        if u + 1 < NU:
            A.wait_vm(last_vm[u + 1])
            pend = dsreads(u + 1)
        ab = AF + (u % 2) * 16
        ob = OF + (u % DEPTH) * 16
        for ks in range(2):
            for tn in range(2):
                for tm in range(2):
                    c = "zero" if (u == 0 and ks == 0) else None
                    A.mfma(ACC + (tn * 2 + tm) * 16, ab + (ks * 2 + tn) * 4, ob + (ks * 2 + tm) * 4, c)
        if u + DEPTH < NU: issue(u + DEPTH)
        PF.stamp(f"u{u}")
    A.wait_ds_all()
    A.barrier()
    V(f"v_add_u32 v{T1}, s{sWL}, v{RED}", w={T1}, r={RED})
    for q in range(16):
        A.ds_write_b128(T1, ACC + 4 * q, q * 1024)
    A.wait_ds_all()
    A.barrier()
    A.salu(f"s_lshl_b32 s6, s{sW}, 11")
    V(f"v_add_u32 v{T1}, s6, v{RED}", w={T1}, r={RED})
    V(f"v_add_u32 v{T2}, 0x10000, v{T1}", w={T2}, r={T1})
    R = OF
    for ww in range(8):
        for q in range(2):
            A.ds_read_b128(R + (ww * 2 + q) * 4, T1 if ww < 4 else T2, (ww % 4) * 16384 + q * 1024)
            if ww == 6 and q == 1: pass
        if ww == 5:
            A.wait_ds_all()
    A.wait_ds_all()
    for ww in range(1, 8):
        for i in range(8):
            V(f"v_add_f32 v{R+i}, v{R+i}, v{R+ww*8+i}", w={R + i}, r={R + i, R + ww * 8 + i})
    for q in range(4):
        V(f"v_cvt_pk_bf16_f32 v{AF+q}, v{R+2*q}, v{R+2*q+1}", w={AF + q}, r={R + 2 * q, R + 2 * q + 1})
    A.salu(f"s_lshr_b32 s6, s{sW}, 1")
    A.salu("s_and_b32 s7, s6, 1")
    A.salu("s_lshr_b32 s6, s6, 1")
    A.salu(f"s_lshl_b32 s3, s{sMT}, 6")
    A.salu("s_lshl_b32 s7, s7, 5")
    A.salu("s_add_u32 s3, s3, s7")
    A.salu("s_mul_i32 s3, s3, 2304")
    A.salu(f"s_mul_i32 s7, s{sBLK}, 1152")
    A.salu("s_add_u32 s3, s3, s7")
    A.salu(f"s_lshl_b32 s7, s{sNT}, 7")
    A.salu("s_add_u32 s3, s3, s7")
    A.salu("s_lshl_b32 s7, s6, 6")
    A.salu("s_add_u32 s3, s3, s7")
    A.salu(f"s_and_b32 s7, s{sW}, 1")
    A.salu("s_lshl_b32 s7, s7, 5")
    A.salu("s_add_u32 s3, s3, s7")
    V(f"v_and_b32 v{T1}, 31, v{L}", w={T1}, r={L})
    V(f"v_mul_u32_u24 v{T1}, 2304, v{T1}", w={T1}, r={T1})
    V(f"v_lshrrev_b32 v{T2}, 5, v{L}", w={T2}, r={L})
    V(f"v_lshl_add_u32 v{T1}, v{T2}, 3, v{T1}", w={T1}, r={T2, T1})
    A.vmem(f"buffer_store_dwordx2 {vname(AF,2)}, v{T1}, s[{SOUT}:{SOUT+3}], s3 offen", r=vr(AF, 2) | {T1})
    A.vmem(f"buffer_store_dwordx2 {vname(AF+2,2)}, v{T1}, s[{SOUT}:{SOUT+3}], s3 offen offset:16", r=vr(AF + 2, 2) | {T1})
    PF.dump(14, sW, 0)
    A.label("K2_END")
    A.salu("s_endpgm")

def kd(name, vgpr, sgpr):
    return f""".amdhsa_kernel {name}
  .amdhsa_next_free_vgpr {vgpr}
  .amdhsa_next_free_sgpr {sgpr}
  .amdhsa_accum_offset {(vgpr + 3) // 4 * 4}
  .amdhsa_group_segment_fixed_size 0
  .amdhsa_kernarg_size 104
  .amdhsa_user_sgpr_count 2
  .amdhsa_user_sgpr_kernarg_segment_ptr 1
  .amdhsa_system_sgpr_workgroup_id_x 1
.end_amdhsa_kernel
"""

def main():
    A = Asm()
    gen_k1(A)
    if not OPT["fuse"]: gen_k2(A)
    head = """; Two-launch GQA block pair: k1 = Q projection + attention (o -> ws), k2 = output projection.
; @launch kernel=k1_kernel grid=(256,1,1) block=(512,1,1) lds=163840
; @launch kernel=k2_kernel grid=(256,1,1) block=(512,1,1) lds=131072
.amdgcn_target "amdgcn-amd-amdhsa--gfx950"
.text
"""
    tail = '\n.section .rodata,"a"\n.p2align 6\n' + kd("k1_kernel", 256, 102 if OPT["prof"] else 64) + ".p2align 6\n" + kd("k2_kernel", 176, 102 if OPT["prof"] else 64)
    if OPT["fuse"]:
        head = """; GQA block pair in one launch: Q projection + attention, o handed over through ws, output projection.
; @launch kernel=k1_kernel grid=(256,1,1) block=(512,1,1) lds=163840
.amdgcn_target "amdgcn-amd-amdhsa--gfx950"
.text
"""
        tail = '\n.section .rodata,"a"\n.p2align 6\n' + kd("k1_kernel", 256, 102 if OPT["prof"] else 64)
    txt = head + A.text() + tail
    if "CODE_BYTES" in txt:
        import subprocess, re
        open("_p1.s", "w").write(txt.replace("CODE_BYTES", "0x12345"))
        subprocess.check_call(["clang", "-x", "assembler", "-target", "amdgcn-amd-amdhsa", "-mcpu=gfx950", "-c", "_p1.s", "-o", "_p1.o"])
        o = subprocess.check_output(["llvm-objdump", "-h", "_p1.o"]).decode()
        n = int(re.search(r"\.text\s+([0-9a-f]+)", o).group(1), 16)
        txt = txt.replace("CODE_BYTES", str(n))
    open(sys.argv[1], "w").write(txt)
    print("nops inserted:", A.nops_inserted, "lines:", len(A.out))

main()
```

```python
import sys, math
sys.path.insert(0, "gen")
from asmlib import *

NAME = "concat_heads__gqa_block_cached__gqa_block_cached__near_ridge"
OPT = dict(prio=1, prof=0, ntkv=1, ntw=0, ntx=0, ntwo=0, nto=0, ntst=0, nq=6, kvrate=1, l2pf=1, wopf=4, fat=1, bstep=1, dmagap=1, pflead=4, kv0=2, nstg=4, kvt=0, ld4=1, cpf=0, mid=0, kvt0=1, kvtr=1, roll=0, pfrate=1, kvs=0, rot=0, stag=0, qi=0, tlbw=0, ntt=0, fuse=0, slp=1, wox=0)
for a in sys.argv[2:]:
    k, v = a.split("="); OPT[k] = int(v)

O_BLK = 896 * 4096 * 2
SLOT = 16384
NSLOT = 10

def srd(A, d, base, nbytes):
    A.salu(f"s_mov_b32 s{d}, s{base}")
    A.salu(f"s_and_b32 s{d+1}, s{base+1}, 0xffff")
    A.salu(f"s_mov_b32 s{d+2}, {nbytes}")
    A.salu(f"s_mov_b32 s{d+3}, 0x00020000")

class Prof:
    def __init__(self, A, kidx):
        self.A = A; self.n = 0; self.names = []; self.kidx = kidx
    def stamp(self, name):
        if not OPT["prof"]: return
        A = self.A
        assert self.n < 30
        A.salu("s_waitcnt lgkmcnt(0)")
        A.ds_done = A.nds
        A.salu("s_memtime s[96:97]")
        A.salu("s_waitcnt lgkmcnt(0)")
        A.salu(f"s_mov_b32 s{64+self.n}, s96")
        if self.n == 0:
            A.salu("s_memrealtime s[98:99]")
            A.salu("s_waitcnt lgkmcnt(0)")
        self.n += 1; self.names.append(name)
    def dump(self, wsreg, sW, tmp):
        if not OPT["prof"]: return
        A = self.A
        self.stamp("end")
        A.salu("s_memrealtime s[96:97]")
        A.salu("s_waitcnt lgkmcnt(0)")
        A.salu("s_mov_b64 exec, -1")
        A.salu("s_nop 4")
        for i in range(self.n):
            A.salu(f"v_writelane_b32 v{tmp}, s{64+i}, {i}")
        A.salu("s_getreg_b32 s97, hwreg(HW_REG_HW_ID)")
        A.salu(f"v_writelane_b32 v{tmp}, s97, 29")
        A.salu(f"v_writelane_b32 v{tmp}, s98, 30")
        A.salu(f"v_writelane_b32 v{tmp}, s96, 31")
        A.salu(f"s_mov_b32 s60, s{wsreg}")
        A.salu(f"s_and_b32 s61, s{wsreg+1}, 0xffff")
        A.salu("s_mov_b32 s62, 0x10000000")
        A.salu("s_mov_b32 s63, 0x00020000")
        A.salu("s_lshl_b32 s96, s2, 3")
        A.salu(f"s_add_u32 s96, s96, s{sW}")
        A.salu("s_lshl_b32 s96, s96, 7")
        A.salu(f"s_add_u32 s96, s96, {255*1024*1024 + self.kidx*512*1024}")
        A.salu(f"v_mbcnt_lo_u32_b32 v{tmp+1}, -1, 0")
        A.salu(f"v_mbcnt_hi_u32_b32 v{tmp+1}, -1, v{tmp+1}")
        A.salu(f"v_lshlrev_b32 v{tmp+1}, 2, v{tmp+1}")
        A.salu("s_mov_b64 exec, 0xffffffff")
        A.salu("s_nop 4")
        A.salu(f"buffer_store_dword v{tmp}, v{tmp+1}, s[60:63], s96 offen")
        print("stamps k%d:" % self.kidx, self.names)

def gen_k1(A):
    V = A.valu
    T0, T1, T2, T3, T4, T5, T6, T7 = range(0, 8)
    XO, WO, KO = 8, 10, 12
    BW, BX, BK, BV = 14, 15, 16, 17
    LSUM, OST = 18, 19
    SUMA, SUMB, MX, MX2 = 20, 21, 22, 23
    AD = 24
    FR = 32
    NEGM = 48
    QB = 64
    S = 96
    O = 160
    P = 224
    sBLK, sKVH, sB, sW, sHL, sRT = 26, 27, 4, 5, 6, 7
    SX, SW_, SK, SV, SO = 28, 32, 36, 40, 44
    sWL, sXB, sWB, sKVB, sT, sOB = 48, 49, 50, 51, 52, 53
    sMASK, sTHR, sC = 54, 56, 57
    sW3, sWL4, sT2 = 58, 59, 55

    A.raw(f".p2align 8\n.globl k1_kernel\n.type k1_kernel,@function\nk1_kernel:\nK1_BEGIN:")
    A.salu("s_cmp_ge_u32 s2, 256")
    A.salu("s_cbranch_scc1 K1_END")
    A.salu("s_load_dwordx8 s[8:15], s[0:1], 0")
    A.salu("s_load_dwordx8 s[16:23], s[0:1], 40")
    A.salu("s_load_dwordx2 s[24:25], s[0:1], 96")
    if OPT["cpf"]:
        A.salu("s_getpc_b64 s[60:61]")
        A.salu("s_and_b32 s60, s60, 0xffffff00")
        A.salu("s_and_b32 s61, s61, 0xffff")
        A.salu("s_mov_b32 s62, CODE_BYTES")
        A.salu("s_mov_b32 s63, 0x00020000")
        V(f"v_lshlrev_b32 v{T7}, 7, v0", w={T7}, r={0})
        A.vmem(f"buffer_load_dword v{NEGM+15}, v{T7}, s[60:63], 0 offen", w={NEGM+15}, r={T7})
    A.salu("s_and_b32 s3, s2, 7")
    A.salu(f"s_lshr_b32 s{sB}, s2, 3")
    A.salu(f"s_lshr_b32 s{sBLK}, s3, 2")
    A.salu("s_and_b32 s3, s3, 3")
    A.salu("s_lshl_b32 s3, s3, 2")
    A.salu(f"s_and_b32 s{sKVH}, s{sB}, 3")
    A.salu(f"s_add_u32 s{sKVH}, s{sKVH}, s3")
    A.salu(f"s_lshr_b32 s{sB}, s{sB}, 2")
    V(f"v_lshrrev_b32 v{T1}, 6, v0", w={T1}, r={0})
    A._emit(I(f"v_readfirstlane_b32 s{sW}, v{T1}", "rdlane", r={T1}, sw={sW}))
    V(f"v_and_b32 v{T0}, 63, v0", w={T0}, r={0})
    if OPT["fat"]:
        A.salu(f"s_bfe_u32 s{sHL}, s{sW}, 0x10001", sr={sW})
        A.salu(f"s_and_b32 s{sRT}, s{sW}, 1", sr={sW})
        A.salu(f"s_lshl_b32 s{sRT}, s{sRT}, 1")
        A.salu(f"s_lshr_b32 s3, s{sW}, 2", sr={sW})
        A.salu(f"s_add_u32 s{sRT}, s{sRT}, s3")
    else:
        A.salu(f"s_lshr_b32 s{sHL}, s{sW}, 2", sr={sW})
        A.salu(f"s_and_b32 s{sRT}, s{sW}, 3", sr={sW})
    A.salu(f"s_lshl_b32 s{sWL}, s{sW}, 11", sr={sW})
    A.salu(f"s_and_b32 s{sW3}, s{sW}, {3 if OPT['ld4'] else 1}", sr={sW})
    A.salu(f"s_lshl_b32 s{sWL4}, s{sW3}, 11")
    A.salu(f"s_mul_i32 s{sXB}, s{sB}, 129024")
    A.salu(f"s_lshl_b32 s{sWB}, s{sKVH}, 9")
    A.salu(f"s_lshl_b32 s{sKVB}, s{sB}, 4")
    A.salu(f"s_add_u32 s{sKVB}, s{sKVB}, s{sKVH}")
    if OPT["rot"] == 1:
        A.salu(f"s_and_b32 s{sMASK}, s{sKVB}, 7")
    elif OPT["rot"] == 2:
        A.salu(f"s_add_u32 s{sMASK}, s{sKVH}, s{sB}")
        A.salu(f"s_and_b32 s{sMASK}, s{sMASK}, 7")
    elif OPT["rot"] == 3:
        A.salu(f"s_and_b32 s{sMASK}, s{sB}, 7")
    A.salu(f"s_lshl_b32 s{sMASK}, s{sMASK}, 14")
    A.salu(f"s_lshl_b32 s{sKVB}, s{sKVB}, 17")
    A.salu(f"s_mov_b32 s{sTHR}, 0x4b800000")
    c = math.log2(math.e) / math.sqrt(128.0)
    import struct
    cbits = struct.unpack("<I", struct.pack("<f", c))[0]
    A.salu(f"s_mov_b32 s{sC}, {cbits:#x}")
    L = T0
    for q in range(2):
        V(f"v_lshrrev_b32 v{T1}, 3, v{L}", w={T1}, r={L})
        A.salu(f"s_lshl_b32 s3, s{sW3}, 4")
        A.salu(f"s_add_u32 s3, s3, {8*q}")
        V(f"v_add_u32 v{T1}, s3, v{T1}", w={T1}, r={T1})
        V(f"v_mul_u32_u24 v{T1}, 1152, v{T1}", w={T1}, r={T1})
        V(f"v_and_b32 v{T2}, 7, v{L}", w={T2}, r={L})
        V(f"v_lshrrev_b32 v{T3}, 4, v{L}", w={T3}, r={L})
        V(f"v_xor_b32 v{T2}, v{T2}, v{T3}", w={T2}, r={T2, T3})
        if q: V(f"v_xor_b32 v{T2}, 4, v{T2}", w={T2}, r={T2})
        V(f"v_lshl_add_u32 v{XO+q}, v{T2}, 4, v{T1}", w={XO+q}, r={T2, T1})
        V(f"v_lshrrev_b32 v{T3}, 5, v{L}", w={T3}, r={L})
        A.salu(f"s_lshl_b32 s3, s{sW3}, 2")
        A.salu(f"s_add_u32 s3, s3, {2*q}")
        V(f"v_add_u32 v{T1}, s3, v{T3}", w={T1}, r={T3})
        V(f"v_lshlrev_b32 v{T1}, 13, v{T1}", w={T1}, r={T1})
        V(f"v_or_b32 v{T3}, {2*q}, v{T3}", w={T3}, r={T3})
        V(f"v_lshlrev_b32 v{T3}, 2, v{T3}", w={T3}, r={T3})
        V(f"v_and_b32 v{T2}, 31, v{L}", w={T2}, r={L})
        V(f"v_xor_b32 v{T2}, v{T2}, v{T3}", w={T2}, r={T2, T3})
        V(f"v_lshl_add_u32 v{WO+q}, v{T2}, 4, v{T1}", w={WO+q}, r={T2, T1})
        V(f"v_lshrrev_b32 v{T3}, 4, v{L}", w={T3}, r={L})
        A.salu(f"s_lshl_b32 s3, s{sW}, 3")
        A.salu(f"s_add_u32 s3, s3, {4*q}")
        V(f"v_add_u32 v{T1}, s3, v{T3}", w={T1}, r={T3})
        V(f"v_lshlrev_b32 v{T1}, 8, v{T1}", w={T1}, r={T1})
        A.salu(f"s_and_b32 s3, s{sW}, 1")
        A.salu(f"s_lshl_b32 s3, s3, 1")
        A.salu(f"s_or_b32 s3, s3, {q}")
        V(f"v_lshlrev_b32 v{T3}, 2, v{T3}", w={T3}, r={T3})
        V(f"v_or_b32 v{T3}, s3, v{T3}", w={T3}, r={T3})
        V(f"v_and_b32 v{T2}, 15, v{L}", w={T2}, r={L})
        V(f"v_xor_b32 v{T2}, v{T2}, v{T3}", w={T2}, r={T2, T3})
        V(f"v_lshl_add_u32 v{KO+q}, v{T2}, 4, v{T1}", w={KO+q}, r={T2, T1})
    V(f"v_lshrrev_b32 v{T1}, 5, v{L}", w={T1}, r={L})
    V(f"v_bfe_u32 v{T2}, v{L}, 4, 1", w={T2}, r={L})
    V(f"v_bfe_u32 v{T3}, v{L}, 2, 2", w={T3}, r={L})
    V(f"v_and_b32 v{T4}, 3, v{L}", w={T4}, r={L})
    V(f"v_and_b32 v{T5}, 31, v{L}", w={T5}, r={L})
    V(f"v_lshl_add_u32 v{T6}, v{T1}, 3, v{T3}", w={T6}, r={T1, T3})
    V(f"v_lshlrev_b32 v{T6}, 9, v{T6}", w={T6}, r={T6})
    V(f"v_lshlrev_b32 v{T7}, 2, v{T3}", w={T7}, r={T3})
    V(f"v_lshl_add_u32 v{T7}, v{T2}, 1, v{T7}", w={T7}, r={T2, T7})
    V(f"v_and_b32 v{BW}, 1, v{T4}", w={BW}, r={T4})
    V(f"v_add_u32 v{T7}, v{T7}, v{BW}", w={T7}, r={T7, BW})
    A.salu(f"s_lshl_b32 s3, s{sHL}, 4")
    V(f"v_add_u32 v{T7}, s3, v{T7}", w={T7}, r={T7})
    V(f"v_lshl_add_u32 v{T6}, v{T7}, 4, v{T6}", w={T6}, r={T7, T6})
    V(f"v_lshrrev_b32 v{T7}, 1, v{T4}", w={T7}, r={T4})
    V(f"v_lshl_add_u32 v{BW}, v{T7}, 3, v{T6}", w={BW}, r={T7, T6})
    A.salu(f"s_lshl_b32 s3, s{sRT}, 5")
    V(f"v_add_u32 v{T6}, s3, v{T5}", w={T6}, r={T5})
    V(f"v_lshlrev_b32 v{T6}, 7, v{T6}", w={T6}, r={T6})
    V(f"v_bfe_u32 v{T7}, v{T5}, 1, 3", w={T7}, r={T5})
    V(f"v_xor_b32 v{T7}, v{T7}, v{T1}", w={T7}, r={T7, T1})
    V(f"v_lshl_add_u32 v{BX}, v{T7}, 4, v{T6}", w={BX}, r={T7, T6})
    V(f"v_lshlrev_b32 v{T6}, 2, v{T4}", w={T6}, r={T4})
    V(f"v_or_b32 v{T6}, v{T6}, v{T3}", w={T6}, r={T6, T3})
    V(f"v_xor_b32 v{T6}, v{T6}, v{T1}", w={T6}, r={T6, T1})
    V(f"v_lshlrev_b32 v{T7}, 8, v{T5}", w={T7}, r={T5})
    V(f"v_lshl_add_u32 v{BK}, v{T6}, 4, v{T7}", w={BK}, r={T6, T7})
    V(f"v_lshl_add_u32 v{T6}, v{T1}, 2, v{T3}", w={T6}, r={T1, T3})
    V(f"v_lshlrev_b32 v{T6}, 8, v{T6}", w={T6}, r={T6})
    V(f"v_lshrrev_b32 v{T7}, 1, v{T4}", w={T7}, r={T4})
    V(f"v_lshl_add_u32 v{T7}, v{T2}, 1, v{T7}", w={T7}, r={T2, T7})
    V(f"v_xor_b32 v{T7}, v{T7}, v{T1}", w={T7}, r={T7, T1})
    V(f"v_lshl_or_b32 v{T7}, v{T3}, 2, v{T7}", w={T7}, r={T3, T7})
    V(f"v_lshl_add_u32 v{T6}, v{T7}, 4, v{T6}", w={T6}, r={T7, T6})
    V(f"v_and_b32 v{T7}, 1, v{T4}", w={T7}, r={T4})
    V(f"v_lshl_add_u32 v{BV}, v{T7}, 3, v{T6}", w={BV}, r={T7, T6})
    V(f"v_lshlrev_b32 v{T6}, 17, v{T2}", w={T6}, r={T2})
    V(f"v_lshl_add_u32 v{T6}, v{T1}, 8, v{T6}", w={T6}, r={T1, T6})
    V(f"v_and_b32 v{T7}, 15, v{L}", w={T7}, r={L})
    V(f"v_lshl_add_u32 v{OST}, v{T7}, 4, v{T6}", w={OST}, r={T7, T6})
    V(f"v_mov_b32 v{LSUM}, 0", w={LSUM})
    A.waitcnt(lgkm=0)
    A.salu(f"s_cmp_eq_u32 s{sBLK}, 0")
    for k in range(8):
        A.salu(f"s_cselect_b32 s{8+k}, s{8+k}, s{16+k}")
    srd(A, SX, 8, 8 * 112 * 576 * 2)
    srd(A, SK, 10, 8 * 16 * 512 * 128 * 2)
    srd(A, SV, 12, 8 * 16 * 512 * 128 * 2)
    srd(A, SW_, 14, 576 * 4096 * 2)
    srd(A, SO, 24, 2 * O_BLK)
    A.salu(f"s_mul_i32 s{sOB}, s{sBLK}, {O_BLK}")
    A.salu(f"s_mul_i32 s3, s{sB}, 7")
    A.salu(f"s_lshl_b32 s{sT}, s{sRT}, 1")
    A.salu(f"s_add_u32 s3, s3, s{sT}")
    A.salu(f"s_lshl_b32 s3, s3, 17")
    A.salu(f"s_add_u32 s{sOB}, s{sOB}, s3")
    A.salu(f"s_lshl_b32 s3, s{sKVH}, 1")
    A.salu(f"s_add_u32 s3, s3, s{sHL}")
    A.salu(f"s_lshl_b32 s3, s3, 12")
    A.salu(f"s_add_u32 s{sOB}, s{sOB}, s3")
    if OPT["prio"]:
        A.salu(f"s_cmp_ge_u32 s{sW}, 4")
        A.salu("s_cbranch_scc0 K1_PRIO_DONE" if OPT["prio"] == 1 else "s_cbranch_scc1 K1_PRIO_DONE")
        A.salu("s_setprio 1")
        A.label("K1_PRIO_DONE")

    NTT = {0: "", 1: " nt", 2: " sc1", 3: " sc0 sc1", 4: " sc1 nt"}[OPT["ntt"]]
    qunits = []
    for s_ in range(9):
        qunits += [("X", s_), ("W", 2 * s_), ("W", 2 * s_ + 1)]
    kvunits = [("K", 0)]
    for h in range(7):
        kvunits += [("K", h + 1), ("V", h)]
    kvunits += [("V", 7)]
    units = qunits + kvunits
    UK = {idx: 27 + i for i, (t_, idx) in enumerate(kvunits) if t_ == "K"}
    UV = {idx: 27 + i for i, (t_, idx) in enumerate(kvunits) if t_ == "V"}
    stage_units = [list(range(3 * s_, 3 * s_ + 3)) for s_ in range(9)]
    unit_last_vm = {}
    unit_slot = {}
    free = list(range(NSLOT))
    nq = [0]; nkv = [0]; xch = []
    KQ = FR
    DV = FR + 2
    NSTG = OPT["nstg"]
    STG = [S + 32, O, O + 32, P][:NSTG]

    def unit_info(u):
        typ, idx = units[u]
        if typ == "X": return sXB, idx * 128, SX, XO, 2 * 16 * 1152, "ntx"
        if typ == "W": return sWB, idx * 32 * 8192, SW_, WO, 2 * 4 * 8192, "ntw"
        if typ == "K": return sKVB, idx * 64 * 256, SK, KO, 4096, "ntkv"
        return sKVB, idx * 64 * 256, SV, KO, 4096, "ntkv"

    def sbase(base, const):
        if base == sKVB and OPT["rot"]:
            A.salu(f"s_add_u32 s{sT}, s{sMASK}, {const}")
            A.salu(f"s_and_b32 s{sT}, s{sT}, 0x1ffff")
            A.salu(f"s_or_b32 s{sT}, s{sT}, s{sKVB}")
        else:
            A.salu(f"s_add_u32 s{sT}, s{base}, {const}")

    def issue_unit_q(u, stage_reg=None):
        if stage_reg is None:
            slot = free.pop(0)
            unit_slot[u] = slot
        base, const, sr_, vo, delta, nto = unit_info(u)
        if vo == KO: vo = KQ
        nt = " nt" if OPT[nto] else ""
        for hv in range(4):
            A.salu(f"s_add_u32 s{sT}, s{base}, {const + delta * hv}")
            for q in range(2):
                if stage_reg is None:
                    A.salu(f"s_add_u32 m0, s{sWL4}, {slot * SLOT + hv * 4096 + q * 1024}", m0w=True)
                    k = A.vmem(f"buffer_load_dwordx4 v{vo+q}, s[{sr_}:{sr_+3}], s{sT} offen{nt} lds", kind="dma", r={vo + q}, m0r=True)
                else:
                    d = stage_reg + (hv * 2 + q) * 4
                    k = A.vmem(f"buffer_load_dwordx4 {vname(d,4)}, v{vo+q}, s[{sr_}:{sr_+3}], s{sT} offen{nt}", w=vr(d, 4), r={vo + q})
        unit_last_vm[u] = k

    def issue_unit_4(u):
        slot = free.pop(0)
        unit_slot[u] = slot
        base, const, sr_, vo, delta, nto = unit_info(u)
        nt = " nt" if OPT[nto] else ""
        sbase(base, const)
        if vo != KO: A.salu(f"s_add_u32 s{sT2}, s{base}, {const + 2 * delta}")
        for hv in range(2):
            for q in range(2):
                A.salu(f"s_add_u32 m0, s{sWL4}, {slot * SLOT + hv * 8192 + q * 1024}", m0w=True)
                if vo == KO:
                    va = (KQ if hv == 0 else KO) + q; so = sT
                else:
                    va = vo + q; so = sT if hv == 0 else sT2
                k = A.vmem(f"buffer_load_dwordx4 v{va}, s[{sr_}:{sr_+3}], s{so} offen{nt} lds", kind="dma", r={va}, m0r=True)
        unit_last_vm[u] = k

    def flood():
        if not OPT["l2pf"]: return
        V(f"v_lshrrev_b32 v{T1}, 2, v{L}", w={T1}, r={L})
        V(f"v_lshlrev_b32 v{T1}, 13, v{T1}", w={T1}, r={T1})
        V(f"v_and_b32 v{T2}, 3, v{L}", w={T2}, r={L})
        V(f"v_lshl_add_u32 v{T1}, v{T2}, 7, v{T1}", w={T1}, r={T2, T1})
        A.salu(f"s_lshl_b32 s3, s{sW}, 4")
        A.salu(f"s_min_u32 s3, s3, 56")
        A.salu(f"s_mul_i32 s{sT}, s{sB}, 72")
        A.salu(f"s_add_u32 s3, s3, s{sT}")
        A.salu(f"s_lshl_b32 s3, s3, 13")
        A.salu(f"s_add_u32 s3, s3, s{sWB}")
        A.vmem(f"buffer_load_dword v{T4}, v{T1}, s[{SW_}:{SW_+3}], s3 offen{NTT}", w={T4}, r={T1})
        V(f"v_lshlrev_b32 v{T2}, 7, v{L}", w={T2}, r={L})
        A.salu(f"s_and_b32 s3, s{sKVH}, 3")
        A.salu(f"s_mul_i32 s3, s3, 32256")
        A.salu(f"s_and_b32 s{sT}, s{sW}, 3")
        A.salu(f"s_lshl_b32 s{sT}, s{sT}, 13")
        A.salu(f"s_add_u32 s3, s3, s{sT}")
        A.salu(f"s_add_u32 s3, s3, s{sXB}")
        A.vmem(f"buffer_load_dword v{T5}, v{T2}, s[{SX}:{SX+3}], s3 offen{NTT}", w={T5}, r={T2})

    def dump_unit(u, stage_reg):
        slot = free.pop(0)
        unit_slot[u] = slot
        V(f"v_add_u32 v{DV+1}, {slot * SLOT}, v{DV}", w={DV + 1}, r={DV})
        for hv in range(4):
            for q in range(2):
                A.ds_write_b128(DV + 1, stage_reg + (hv * 2 + q) * 4, hv * 4096 + q * 1024)

    def dma_items(u):
        slot = free.pop(0)
        unit_slot[u] = slot
        base, const, sr_, vo, delta, nto = unit_info(u)
        nt = " nt" if OPT[nto] else ""
        def mk(q):
            def f():
                sbase(base, const)
                A.salu(f"s_add_u32 m0, s{sWL}, {slot * SLOT + q * 1024}", m0w=True)
                k = A.vmem(f"buffer_load_dwordx4 v{vo+q}, s[{sr_}:{sr_+3}], s{sT} offen{nt} lds", kind="dma", r={vo + q}, m0r=True)
                unit_last_vm[u] = k
            return f
        if not OPT["stag"]: return [mk(0), mk(1)]
        G = 8 // OPT["stag"]
        def cond(f, g):
            def h():
                lab = f"K1_D{nlab[0]}"; nlab[0] += 1
                A.salu(f"s_cmp_eq_u32 s{sT2}, {g}")
                A.salu(f"s_cbranch_scc0 {lab}")
                n0 = len(A.out)
                f()
                for o in A.out[n0:]: o.ws = 0
                A.label(lab)
                if g < G - 1: A.nvm -= 1
            return h
        return [cond(mk(q), g) for q in range(2) for g in range(G)]
    nlab = [0]

    NQ = OPT["nq"]
    PF = Prof(A, 0)
    PF.stamp("start")

    def addr_items(dst, base, slot, xors):
        it = [lambda: V(f"v_add_u32 v{dst[0]}, {slot * SLOT}, v{base}", w={dst[0]}, r={base})]
        for i, x in enumerate(xors):
            if i == 0: continue
            it.append(lambda i=i, x=x: V(f"v_xor_b32 v{dst[i]}, {x}, v{dst[0]}", w={dst[i]}, r={dst[0]}))
        return it

    A.salu(f"s_cmp_lt_u32 s{sW}, 4")
    A.salu("s_cbranch_scc1 K1_FAT")
    pf0 = PF.n
    staged = []
    if OPT["ld4"]:
        for q in range(2):
            V(f"v_subrev_u32 v{KQ+q}, {4*8*256}, v{KO+q}", w={KQ + q}, r={KO + q})
        NL = NSLOT - NQ
        def refill(s):
            done_q = 3 * max(s, 0)
            while nq[0] < 27 and nq[0] - done_q < NQ and free:
                issue_unit_4(nq[0]); nq[0] += 1
        def kv_issue():
            if nkv[0] < NL:
                if free:
                    issue_unit_4(27 + nkv[0]); nkv[0] += 1
        LW, LX = FR + 4, FR + 5
        nroll = [NQ // 3]
        def lroll(n):
            n = min(n, 9 - nroll[0])
            if n <= 0 or OPT["roll"] != 2: return
            a = nroll[0]; nroll[0] += n
            if n < 8:
                m = (1 << (8 * n)) - 1
                A.salu(f"s_mov_b32 exec_lo, {m & 0xffffffff}")
                A.salu(f"s_mov_b32 exec_hi, {m >> 32}")
            A.salu(f"s_add_u32 s3, s8, {a * 64 * 8192}")
            A.vmem(f"buffer_load_dword v{FR+6}, v{LW}, s[{SW_}:{SW_+3}], s3 offen{NTT}", w={FR + 6}, r={LW})
            A.vmem(f"buffer_load_dword v{FR+7}, v{LX}, s[{SX}:{SX+3}], s9 offen offset:{a * 128}{NTT}", w={FR + 7}, r={LX})
            if n < 8: A.salu("s_mov_b64 exec, -1")
        refill(-1)
        for _ in range(OPT["kv0"]): kv_issue()
        if not OPT["roll"]: flood()
        if OPT["roll"] == 2:
            V(f"v_bfe_u32 v{T1}, v{L}, 2, 1", w={T1}, r={L})
            A.salu(f"s_lshl_b32 s3, s{sW3}, 1")
            V(f"v_add_u32 v{T1}, s3, v{T1}", w={T1}, r={T1})
            V(f"v_lshrrev_b32 v{T3}, 3, v{L}", w={T3}, r={L})
            V(f"v_lshl_add_u32 v{T1}, v{T3}, 6, v{T1}", w={T1}, r={T3, T1})
            V(f"v_lshlrev_b32 v{T1}, 13, v{T1}", w={T1}, r={T1})
            V(f"v_and_b32 v{T2}, 3, v{L}", w={T2}, r={L})
            V(f"v_lshl_add_u32 v{LW}, v{T2}, 7, v{T1}", w={LW}, r={T2, T1})
            V(f"v_and_b32 v{T1}, 7, v{L}", w={T1}, r={L})
            V(f"v_min_u32 v{T1}, 6, v{T1}", w={T1}, r={T1})
            A.salu(f"s_mul_i32 s3, s{sW3}, 7")
            V(f"v_add_u32 v{T1}, s3, v{T1}", w={T1}, r={T1})
            V(f"v_mul_u32_u24 v{T1}, 1152, v{T1}", w={T1}, r={T1})
            V(f"v_lshl_add_u32 v{LX}, v{T3}, 7, v{T1}", w={LX}, r={T3, T1})
            A.salu(f"s_lshl_b32 s8, s{sB}, 16")
            A.salu(f"s_add_u32 s8, s8, s{sWB}")
            A.salu(f"s_and_b32 s9, s{sKVH}, 3")
            A.salu(f"s_mul_i32 s9, s9, {28*1152}")
            A.salu(f"s_add_u32 s9, s9, s{sXB}")
            lroll(OPT["pflead"] - nroll[0])
        for s in range(9):
            A.wait_vm(max(unit_last_vm[u] for u in stage_units[s]))
            A.barrier()
            PF.stamp(f"q{s}")
            if s > 0:
                for u in stage_units[s - 1]: free.append(unit_slot[u])
            refill(s)
            lroll(OPT["pfrate"])
            if s == 8:
                xch.append(free.pop(0)); xch.append(free.pop(0))
            elif s >= OPT["kvs"]:
                for _ in range(OPT["kvrate"]): kv_issue()
            if nq[0] == 27 and nkv[0] >= NL:
                while free:
                    issue_unit_4(27 + nkv[0]); nkv[0] += 1
        A.salu("s_branch K1_ATT")
        ldr_vm = (A.nvm, A.vm_done)
    else:
        A.salu(f"s_cmp_ge_u32 s{sW}, 6")
        A.salu("s_cbranch_scc1 K1_KVL")
        pf0 = PF.n
        kvslots = [free.pop() for _ in range(NSLOT - NQ)]
        def refill(s):
            done_q = 3 * max(s, 0)
            while nq[0] < 27 and nq[0] - done_q < NQ and free:
                issue_unit_q(nq[0]); nq[0] += 1
        refill(-1)
        for s in range(9):
            A.wait_vm(max(unit_last_vm[u] for u in stage_units[s]))
            A.barrier()
            PF.stamp(f"q{s}")
            if s > 0:
                for u in stage_units[s - 1]: free.append(unit_slot[u])
            refill(s)
            if s == 8:
                xch.append(free.pop(0)); xch.append(free.pop(0))
        A.waitcnt(vm=0)
        A.vm_done = A.nvm
        A.salu("s_branch K1_ATT")
        A.label("K1_KVL")
        A.win = []
        A.salu("s_nop 4")
        PF.n = pf0; PF.names = PF.names[:pf0]
        for q in range(2):
            V(f"v_subrev_u32 v{KQ+q}, {6*8*256}, v{KO+q}", w={KQ + q}, r={KO + q})
        V(f"v_lshlrev_b32 v{DV}, 4, v{L}", w={DV}, r={L})
        V(f"v_add_u32 v{DV}, s{sWL4}, v{DV}", w={DV}, r={DV})
        late_free = free[:]; free[:] = kvslots
        NL = len(kvslots)
        TV = FR + 4
        V(f"v_lshlrev_b32 v{TV}, 7, v{L}", w={TV}, r={L})
        A.salu(f"s_lshl_b32 s3, s{sW3}, 13")
        V(f"v_add_u32 v{TV}, s3, v{TV}", w={TV}, r={TV})
        NT = OPT["kvt"]
        ntouch = [0]
        def kv_issue():
            i = nkv[0]
            if i < NL: issue_unit_q(27 + i)
            elif i < NL + NSTG: issue_unit_q(27 + i, STG[i - NL])
            else:
                if ntouch[0] < NT:
                    u = 27 + NL + NSTG + ntouch[0]
                    base, const, sr_, vo, delta, nto = unit_info(u)
                    A.salu(f"s_add_u32 s{sT}, s{base}, {const}")
                    A.vmem(f"buffer_load_dword v{TV+1}, v{TV}, s[{sr_}:{sr_+3}], s{sT} offen", w={TV + 1}, r={TV})
                    ntouch[0] += 1
                return
            nkv[0] += 1
        for _ in range(OPT["kv0"]): kv_issue()
        for s in range(9):
            A.barrier()
            PF.stamp(f"q{s}")
            for _ in range(OPT["kvrate"]): kv_issue()
        assert nkv[0] == NL + NSTG
        free[:] = late_free
        staged = [(27 + NL + i, STG[i]) for i in range(NSTG)]
        while staged and free:
            u, r_ = staged.pop(0)
            A.wait_vm(unit_last_vm[u])
            dump_unit(u, r_)
        A.waitcnt(vm=0)
        A.vm_done = A.nvm
        A.wait_ds_all()
        A.salu("s_branch K1_ATT")
    A.label("K1_FAT")
    A.win = []
    A.salu("s_nop 4")
    PF.n = pf0; PF.names = PF.names[:pf0]
    TW, TX = XO, XO + 1
    if OPT["roll"] == 2:
        pass
    elif OPT["ld4"] and not OPT["roll"]:
        V(f"v_lshlrev_b32 v{TW}, 7, v{L}", w={TW}, r={L})
        A.salu(f"s_lshl_b32 s3, s{sW}, 13")
        V(f"v_add_u32 v{TW}, s3, v{TW}", w={TW}, r={TW})
    else:
        TW, TX = XO, XO + 1
        V(f"v_bfe_u32 v{T1}, v{L}, 2, 1", w={T1}, r={L})
        A.salu(f"s_lshl_b32 s3, s{sW}, 1")
        V(f"v_add_u32 v{T1}, s3, v{T1}", w={T1}, r={T1})
        V(f"v_lshlrev_b32 v{T1}, 13, v{T1}", w={T1}, r={T1})
        V(f"v_and_b32 v{T2}, 3, v{L}", w={T2}, r={L})
        V(f"v_lshl_add_u32 v{TW}, v{T2}, 7, v{T1}", w={TW}, r={T2, T1})
        V(f"v_and_b32 v{T1}, 7, v{L}", w={T1}, r={L})
        V(f"v_min_u32 v{T1}, 6, v{T1}", w={T1}, r={T1})
        A.salu(f"s_mul_i32 s3, s{sW}, 7")
        V(f"v_add_u32 v{T1}, s3, v{T1}", w={T1}, r={T1})
        V(f"v_mul_u32_u24 v{TX}, 1152, v{T1}", w={TX}, r={T1})
        A.salu(f"s_lshl_b32 s8, s{sB}, 16")
        A.salu(f"s_add_u32 s8, s8, s{sWB}")
        A.salu(f"s_and_b32 s9, s{sKVH}, 3")
        A.salu(f"s_mul_i32 s9, s9, {28*1152}")
        A.salu(f"s_add_u32 s9, s9, s{sXB}")
    def touch(s_):
        if not OPT["l2pf"] or s_ > 8: return
        A.salu(f"s_add_u32 s3, s8, {s_ * 64 * 8192}")
        A.vmem(f"buffer_load_dword v{T4}, v{TW}, s[{SW_}:{SW_+3}], s3 offen{NTT}", w={T4}, r={TW})
        A.vmem(f"buffer_load_dword v{T5}, v{TX}, s[{SX}:{SX+3}], s9 offen offset:{s_ * 128}{NTT}", w={T5}, r={TX})
    if OPT["roll"] == 2:
        touch = lambda s_: None
    elif OPT["roll"]:
        touch1 = touch
        nroll = [2]
        def roll(n):
            for _ in range(n):
                touch1(nroll[0]); nroll[0] += 1
        roll(OPT["pflead"] - 2)
        touch = lambda s_: roll(OPT["pfrate"])
    elif OPT["ld4"]:
        flood()
        ntouch = [0]
        def touch(s_):
            s_ -= OPT["pflead"]
            if s_ < OPT["kvt0"]: return
            for _ in range(OPT["kvtr"]):
                if ntouch[0] >= OPT["kvt"]: return
                ua = 27 + NL + 1 + ntouch[0]
                ia = unit_info(ua); ib = unit_info(ua + 1)
                A.salu(f"s_cmp_lt_u32 s{sW}, 2")
                A.salu(f"s_mov_b32 s3, {ib[1] - 16384}")
                A.salu(f"s_cselect_b32 s3, {ia[1]}, s3")
                A.salu(f"s_cselect_b32 s60, s{ia[2]}, s{ib[2]}")
                A.salu(f"s_cselect_b32 s61, s{ia[2]+1}, s{ib[2]+1}")
                A.salu(f"s_mov_b32 s62, s{ia[2]+2}")
                A.salu(f"s_mov_b32 s63, s{ia[2]+3}")
                A.salu(f"s_add_u32 s3, s3, s{sKVB}")
                A.vmem(f"buffer_load_dword v{T4}, v{TW}, s[60:63], s3 offen", w={T4}, r={TW})
                ntouch[0] += 2
    if not OPT["ld4"]:
        for s_ in range(2, OPT["pflead"]): touch(s_)
    if OPT["tlbw"]:
        A.salu("s_load_dwordx2 s[16:17], s[0:1], 32")
        A.salu("s_load_dwordx2 s[18:19], s[0:1], 72")
        A.salu("s_load_dwordx2 s[20:21], s[0:1], 80")
        D = NEGM
        V(f"v_lshlrev_b32 v{T1}, 12, v{L}", w={T1}, r={L})
        V(f"v_and_b32 v{T1}, 0x1ffff, v{T1}", w={T1}, r={T1})
        A.vmem(f"buffer_load_dword v{D}, v{T1}, s[{SV}:{SV+3}], s{sKVB} offen", w={D}, r={T1})
        if OPT["tlbw"] > 1:
            A.vmem(f"buffer_load_dword v{D+1}, v{T1}, s[{SK}:{SK+3}], s{sKVB} offen", w={D + 1}, r={T1})
        V(f"v_min_u32 v{T2}, 6, v{L}", w={T2}, r={L})
        V(f"v_lshlrev_b32 v{T2}, 17, v{T2}", w={T2}, r={T2})
        A.salu(f"s_mul_i32 s3, s{sBLK}, {O_BLK}")
        A.salu(f"s_mul_i32 s{sT}, s{sB}, {7*131072}")
        A.salu(f"s_add_u32 s3, s3, s{sT}")
        if OPT["fuse"]:
            A.salu(f"s_lshl_b32 s{sT}, s{sKVH}, 13")
            A.salu(f"s_add_u32 s3, s3, s{sT}")
            A.vmem(f"buffer_store_dword v{T2}, v{T2}, s[{SO}:{SO+3}], s3 offen sc1", r={T2}, storedata={T2})
        else:
            A.vmem(f"buffer_load_dword v{D+2}, v{T2}, s[{SO}:{SO+3}], s3 offen", w={D + 2}, r={T2})
        V(f"v_lshlrev_b32 v{T3}, 16, v{L}", w={T3}, r={L})
        A.salu("s_waitcnt lgkmcnt(0)")
        A.salu(f"s_cmp_eq_u32 s{sBLK}, 0")
        A.salu("s_cselect_b32 s60, s16, s18")
        A.salu("s_cselect_b32 s61, s17, s19")
        A.salu("s_and_b32 s61, s61, 0xffff")
        A.salu(f"s_mov_b32 s62, {4096*576*2}")
        A.salu("s_mov_b32 s63, 0x00020000")
        A.salu(f"s_mov_b32 s3, {8*65536}")
        A.vmem(f"buffer_load_dword v{D+3}, v{T3}, s[60:63], 0 offen", w={D + 3}, r={T3})
        A.vmem(f"buffer_load_dword v{D+4}, v{T3}, s[60:63], s3 offen", w={D + 4}, r={T3})
        A.salu("s_mov_b32 s16, s20")
        A.salu("s_and_b32 s17, s21, 0xffff")
        A.salu(f"s_mov_b32 s18, {896*1152*2}")
        A.salu("s_mov_b32 s19, 0x00020000")
        A.vmem(f"buffer_load_dword v{D+5}, v{T3}, s[16:19], 0 offen", w={D + 5}, r={T3})
    QA = [S, O]
    FBW = [P, QB]; FBX = [P + 16, QB + 16]
    AW = [FR, FR + 4]; AX = FR + 8
    def qaddr(s):
        u0 = 3 * s
        return (addr_items([AX + i for i in range(4)], BX, unit_slot[u0], [0, 32, 64, 96]) +
                addr_items([AW[0] + i for i in range(4)], BW, unit_slot[u0 + 1], [0, 64, 128, 192]) +
                addr_items([AW[1] + i for i in range(4)], BW, unit_slot[u0 + 2], [0, 64, 128, 192]))
    def qread_items(ks):
        it = [lambda: A.ds_read_b128(FBX[ks % 2], AX + ks), lambda: A.ds_read_b128(FBX[ks % 2] + 4, AX + ks, 4096)]
        for t in range(4):
            for j in range(2):
                it.append(lambda t=t, j=j: A.ds_read_tr(FBW[ks % 2] + 4 * t + 2 * j, AW[ks // 2] + t, ((ks % 2) * 16 + 4 * j) * 512))
        return it
    def qreads(ks):
        for it in qread_items(ks): last = it()
        return last
    for it in qaddr(0): it()
    A.barrier()
    PF.stamp("q0")
    pend = qreads(0)
    touch(OPT["pflead"])
    QI = OPT["qi"]
    for s in range(9):
        for ks in range(4):
            A.wait_ds(pend)
            rq = []
            if ks < 3:
                if QI: rq = qread_items(ks + 1)
                else: pend = qreads(ks + 1)
            nxt = qaddr(s + 1) if (ks == 3 and s < 8) else []
            m = 0
            for t in range(4):
                for r2 in range(2):
                    A.mfma(QA[r2] + 16 * t, FBW[ks % 2] + 4 * t, FBX[ks % 2] + 4 * r2, "zero" if (s == 0 and ks == 0) else None)
                    if nxt:
                        if m < 2:
                            for it in nxt[6 * m: 6 * m + 6]: it()
                        if m == 1:
                            A.barrier()
                            PF.stamp(f"q{s+1}")
                            if QI: rq = qread_items(0)
                            else: pend = qreads(0)
                        if m == 3: touch(s + 1 + OPT["pflead"])
                    for _ in range(QI):
                        if rq: pend = rq.pop(0)()
                    m += 1
            assert not rq
    A.salu(f"s_lshr_b32 s3, s{sW}, 1")
    A.salu(f"s_cmp_eq_u32 s3, 0")
    A.salu(f"s_cselect_b32 s3, {xch[0]}, {xch[1]}")
    A.salu(f"s_lshl_b32 s3, s3, 14")
    A.salu(f"s_and_b32 s{sT}, s{sW}, 1")
    A.salu(f"s_lshl_b32 s{sT}, s{sT}, 13")
    A.salu(f"s_add_u32 s3, s3, s{sT}")
    V(f"v_lshlrev_b32 v{T6}, 4, v{L}", w={T6}, r={L})
    V(f"v_add_u32 v{T6}, s3, v{T6}", w={T6}, r={T6})
    for i in range(64):
        V(f"v_mul_f32 v{O+i}, s{sC}, v{O+i}", w={O + i}, r={O + i})
    for q in range(32):
        V(f"v_cvt_pk_bf16_f32 v{P+q}, v{O+2*q}, v{O+2*q+1}", w={P + q}, r={O + 2 * q, O + 2 * q + 1})
        if q % 4 == 3:
            A.ds_write_b128(T6, P + q - 3, (q // 4) * 1024)
    for i in range(64):
        V(f"v_mul_f32 v{S+i}, s{sC}, v{S+i}", w={S + i}, r={S + i})
    for q in range(32):
        V(f"v_cvt_pk_bf16_f32 v{QB+q}, v{S+2*q}, v{S+2*q+1}", w={QB + q}, r={S + 2 * q, S + 2 * q + 1})
    A.wait_ds_all()
    A.waitcnt(vm=0)
    A.vm_done = A.nvm
    if OPT["ld4"]:
        A.nvm, A.vm_done = ldr_vm
    A.label("K1_ATT")
    A.win = []
    A.salu("s_nop 4")
    if OPT["stag"]:
        A.salu(f"s_lshr_b32 s{sT2}, s{sW}, {OPT['stag'] - 1}")

    SETA = [AD + i for i in range(8)]
    SETB = [XO, XO + 1, WO, WO + 1, BW, BX, T4, T5]
    kx = [32 * ks for ks in range(8)]
    vx = [(t << 6) ^ (32 * jj) for t in range(4) for jj in range(2)]
    SB = lambda h: S + 32 * (h % 2)
    PB = lambda h: P + 16 * (h % 2)
    phases = [("qk", 0)] + [x for h in range(7) for x in (("qk", h + 1), ("pv", h))] + [("pv", 7)]
    pset = {}
    for ph in phases:
        pset[ph] = SETA if ph[0] == "qk" else SETB
    pset[("qk", 0)] = SETB; pset[("pv", 7)] = SETA
    punit = lambda ph: UK[ph[1]] if ph[0] == "qk" else UV[ph[1]]
    def paddr(ph):
        u = punit(ph)
        return addr_items(pset[ph], BK if ph[0] == "qk" else BV, unit_slot[u], kx if ph[0] == "qk" else vx)
    mf = [(ph, i) for ph in phases for i in range(16)]
    syncJ = list(range(0, 6, OPT["bstep"]))
    if OPT["fuse"]:
        syncJ.append(6)
        K2 = K2Fused(A, sW, SO, QB)
    sync_pos = [phases.index(("pv", j)) * 16 + 12 for j in syncJ]
    first_read = {}
    for n, (ph, i) in enumerate(mf):
        first_read.setdefault(punit(ph), max(n - 4, -1))
    last_read = {}
    for n, (ph, i) in enumerate(mf):
        last_read[punit(ph)] = n - 4
    def publish_set(pos_from, pos_to):
        return [u for u, fr in first_read.items() if pos_from <= fr < pos_to]
    freed = set()
    dmaq = []
    def refill_att():
        while nkv[0] < 16 and free:
            dmaq.extend(dma_items(27 + nkv[0])); nkv[0] += 1

    pub = publish_set(-1, sync_pos[0])
    A.wait_vm(max(unit_last_vm[u] for u in pub))
    A.barrier()
    PF.stamp("a0")
    for u in stage_units[8]: free.append(unit_slot[u])
    A.salu(f"s_cmp_lt_u32 s{sW}, 4")
    A.salu(f"s_cbranch_scc1 K1_QGOT")
    if staged:
        A.salu(f"s_cmp_lt_u32 s{sW}, 6")
        A.salu(f"s_cbranch_scc1 K1_NODUMP")
        while staged:
            u, r_ = staged.pop(0)
            dump_unit(u, r_)
        A.label("K1_NODUMP")
    refill_att()
    A.salu(f"s_bfe_u32 s3, s{sW}, 0x10001")
    A.salu(f"s_cmp_eq_u32 s3, 0")
    A.salu(f"s_cselect_b32 s3, {xch[0]}, {xch[1]}")
    A.salu(f"s_lshl_b32 s3, s3, 14")
    A.salu(f"s_and_b32 s{sT}, s{sW}, 1")
    A.salu(f"s_lshl_b32 s{sT}, s{sT}, 13")
    A.salu(f"s_add_u32 s3, s3, s{sT}")
    V(f"v_lshlrev_b32 v{T6}, 4, v{L}", w={T6}, r={L})
    V(f"v_add_u32 v{T6}, s3, v{T6}", w={T6}, r={T6})
    for q in range(8):
        A.ds_read_b128(QB + 4 * q, T6, q * 1024)
    A.wait_ds_all()
    A.label("K1_QGOT")
    A.salu("s_nop 1")
    for it in paddr(("qk", 0)) + paddr(("qk", 1)): it()

    TT = [T0, T1, T2, T3]
    def max_items(regs, first, final):
        it = []
        r = list(regs)
        if first:
            a = r[:3]; b = r[3:6]; r = r[6:]
            it.append(lambda a=a: V(f"v_max3_f32 v{MX}, v{a[0]}, v{a[1]}, v{a[2]}", w={MX}, r=set(a)))
            it.append(lambda b=b: V(f"v_max3_f32 v{MX2}, v{b[0]}, v{b[1]}, v{b[2]}", w={MX2}, r=set(b)))
        k = 0
        while r:
            a = r[:2]; r = r[2:]
            d = MX if k % 2 == 0 else MX2
            it.append(lambda a=a, d=d: V(f"v_max3_f32 v{d}, v{d}, v{a[0]}, v{a[1]}", w={d}, r={d} | set(a)))
            k += 1
        if final:
            it.append(lambda: V(f"v_max_f32 v{MX}, v{MX}, v{MX2}", w={MX}, r={MX, MX2}))
            it.append(lambda: V(f"v_mov_b32 v{MX2}, v{MX}", w={MX2}, r={MX}))
            it.append(lambda: V(f"v_permlane32_swap_b32 v{MX}, v{MX2}", w={MX, MX2}, r={MX, MX2}, kind="perm"))
            it.append(lambda: V(f"v_max_f32 v{MX}, v{MX}, v{MX2}", w={MX}, r={MX, MX2}))
        return it
    def sm_items(h, lo, hi, sub):
        it = []
        sb, pb = SB(h), PB(h)
        if sub:
            it.append(lambda: V(f"v_sub_f32 v{sb+lo}, v{sb+lo}, v{MX}", w={sb + lo}, r={sb + lo, MX}))
        for e in range(lo, hi + 2):
            if sub and e + 1 < hi:
                it.append(lambda e=e: V(f"v_sub_f32 v{sb+e+1}, v{sb+e+1}, v{MX}", w={sb + e + 1}, r={sb + e + 1, MX}))
            if e < hi:
                it.append(lambda e=e: V(f"v_exp_f32 v{TT[e%4]}, v{sb+e}", w={TT[e % 4]}, r={sb + e}, kind="trans"))
            if lo <= e - 1 < hi:
                p = e - 1; acc = SUMA if p % 2 == 0 else SUMB
                if p < 2:
                    it.append(lambda p=p, acc=acc: V(f"v_mov_b32 v{acc}, v{TT[p%4]}", w={acc}, r={TT[p % 4]}))
                else:
                    it.append(lambda p=p, acc=acc: V(f"v_add_f32 v{acc}, v{acc}, v{TT[p%4]}", w={acc}, r={acc, TT[p % 4]}))
            if e - 2 >= lo and (e - 2) % 2 == 0 and e - 1 < hi:
                p = e - 2
                it.append(lambda p=p: V(f"v_cvt_pk_bf16_f32 v{pb+p//2}, v{TT[p%4]}, v{TT[(p+1)%4]}", w={pb + p // 2}, r={TT[p % 4], TT[(p + 1) % 4]}))
        return it
    def negm_items():
        return [lambda i=i: V(f"v_sub_f32 v{NEGM+i}, 0, v{MX}", w={NEGM + i}, r={MX}) for i in range(16)]
    def check(h):
        V(f"v_add_f32 v{SUMA}, v{SUMA}, v{SUMB}", w={SUMA}, r={SUMA, SUMB})
        if h > 0:
            V(f"v_cmp_nge_f32 vcc, s{sTHR}, v{SUMA}", r={SUMA}, sw={"vcc"})
            A.salu("s_nop 1")
            A.salu(f"s_cbranch_vccnz K1_SLOW{h}")
            A.label(f"K1_BACK{h}")
        V(f"v_add_f32 v{LSUM}, v{LSUM}, v{SUMA}", w={LSUM}, r={LSUM, SUMA})

    def side_for(ph):
        kind, h = ph
        if ph == ("qk", 0):
            return [], []
        if kind == "qk":
            hh = h - 1
            if hh == 0:
                main = max_items([SB(0) + i for i in range(32)], True, True) + sm_items(0, 0, 32, True)
            else:
                main = sm_items(hh, 16, 32, hh == 1)
            return main, paddr(("pv", hh))
        if h == 7: return [], []
        if h == 6:
            return sm_items(7, 0, 32, False), paddr(("pv", 7)) + (K2.addr_items() if OPT["fuse"] else [])
        main = sm_items(h + 1, 0, 16, h == 0)
        if h == 0: main = negm_items() + main
        return main, paddr(("qk", h + 2))

    rid = {}
    def issue_read(n):
        ph, i = mf[n]
        st = pset[ph]; fr = FR + 4 * (n % 4)
        if ph[0] == "qk":
            rid[n] = A.ds_read_b128(fr, st[i % 8], (i // 8) * 8192)
        else:
            g, t = i // 4, i % 4
            A.ds_read_tr(fr, st[2 * t], g * 4096)
            rid[n] = A.ds_read_tr(fr + 2, st[2 * t + 1], g * 4096 + 2048)
    for n in range(4): issue_read(n)
    gap = 0
    for n, (ph, i) in enumerate(mf):
        kind, h = ph
        if i == 0:
            main, adr = side_for(ph)
            plan = [[] for _ in range(16)]
            for k, it in enumerate(adr): plan[k * 12 // max(len(adr), 1)].append(it)
            s0 = 1 if ph == ("qk", 1) else 0
            for k, it in enumerate(main): plan[s0 + k * (16 - s0) // len(main)].append(it)
        A.wait_ds(rid[n])
        fr = FR + 4 * (n % 4)
        if kind == "qk":
            kt, ks = i // 8, i % 8
            c = None
            if ks == 0: c = "zero" if h <= 1 else NEGM
            A.mfma(SB(h) + 16 * kt, fr, QB + 4 * ks, c)
        else:
            g, t = i // 4, i % 4
            A.mfma(O + 16 * t, fr, PB(h) + 4 * g, "zero" if (h == 0 and g == 0) else None)
        if n in sync_pos:
            k = sync_pos.index(n)
            pub = publish_set(n, sync_pos[k + 1] if k + 1 < len(sync_pos) else 10**9)
            while dmaq: dmaq.pop(0)()
            A.wait_ds_all()
            A.wait_vm(max(unit_last_vm[u] for u in pub))
            A.barrier()
            PF.stamp(f"x{h}")
            if k == 0: free.extend(xch)
            for u, lr in last_read.items():
                if lr < n and u not in freed:
                    freed.add(u); free.append(unit_slot[u])
            refill_att()
            if OPT["fuse"]:
                if h == 4: K2.loads()
                if h == 5: K2.scalars()
                if h == 6:
                    assert len(free) >= 8, free
                    its = K2.wo_items(free[:8])
                    if OPT["fuse"] < 3: dmaq.extend(its)
            if OPT["wopf"] and h == OPT["wopf"] - 1:
                A.salu("s_load_dwordx2 s[60:61], s[0:1], 32")
                A.salu("s_load_dwordx2 s[62:63], s[0:1], 72")
                if OPT["wox"]:
                    A.salu(f"s_lshr_b32 s3, s2, 5")
                    A.salu(f"s_lshl_b32 s3, s3, 4")
                    A.salu(f"s_bfe_u32 s{sT}, s2, 0x20003")
                    A.salu(f"s_add_u32 s3, s3, s{sT}")
                else:
                    A.salu(f"s_lshl_b32 s3, s{sB}, 4")
                    A.salu(f"s_add_u32 s3, s3, s{sKVH}")
                A.salu(f"s_mul_i32 s3, s3, 288")
                A.salu(f"s_lshl_b32 s{sT}, s{sW}, 6")
                A.salu(f"s_min_u32 s{sT}, s{sT}, 224")
                A.salu(f"s_add_u32 s3, s3, s{sT}")
                A.salu(f"s_lshl_b32 s3, s3, 7")
                V(f"v_mbcnt_lo_u32_b32 v{T6}, -1, 0", w={T6})
                V(f"v_mbcnt_hi_u32_b32 v{T6}, -1, v{T6}", w={T6}, r={T6})
                V(f"v_lshlrev_b32 v{T6}, 7, v{T6}", w={T6}, r={T6})
                A.salu("s_waitcnt lgkmcnt(0)")
                A.salu(f"s_cmp_eq_u32 s{sBLK}, 0")
                A.salu("s_cselect_b32 s60, s60, s62")
                A.salu("s_cselect_b32 s61, s61, s63")
                A.salu("s_and_b32 s61, s61, 0xffff")
                A.salu(f"s_mov_b32 s62, {4096*576*2}")
                A.salu("s_mov_b32 s63, 0x00020000")
                A.vmem(f"buffer_load_dword v{T7}, v{T6}, s[60:63], s3 offen", w={T7}, r={T6})
        if n + 4 < len(mf): issue_read(n + 4)
        for it in plan[i]: it()
        gap += 1
        if dmaq and gap >= OPT["dmagap"]:
            dmaq.pop(0)(); gap = 0
        if i == 15:
            if kind == "qk" and h >= 1: check(h - 1)
            if ph == ("pv", 6): check(7)
    assert not dmaq
    PF.stamp("pv7")
    V(f"v_mov_b32 v{T0}, v{LSUM}", w={T0}, r={LSUM})
    V(f"v_permlane32_swap_b32 v{T0}, v{LSUM}", w={T0, LSUM}, r={T0, LSUM}, kind="perm")
    V(f"v_add_f32 v{T0}, v{T0}, v{LSUM}", w={T0}, r={T0, LSUM})
    V(f"v_rcp_f32 v{T0}, v{T0}", w={T0}, r={T0}, kind="trans")
    A.salu(f"s_cmp_eq_u32 s{sRT}, 3")
    A.salu("s_cbranch_scc0 K1_NOMASK")
    A.salu("s_mov_b32 exec_lo, 0xffff")
    A.salu("s_mov_b32 exec_hi, 0xffff")
    A.label("K1_NOMASK")
    for f in range(8):
        b0 = O + 8 * f
        for i in range(8):
            V(f"v_mul_f32 v{b0+i}, v{T0}, v{b0+i}", w={b0 + i}, r={T0, b0 + i})
        d = P + 4 * f
        for q in range(4):
            V(f"v_cvt_pk_bf16_f32 v{d+q}, v{b0+2*q}, v{b0+2*q+1}", w={d + q}, r={b0 + 2 * q, b0 + 2 * q + 1})
        A.vmem(f"buffer_store_dwordx4 {vname(d,4)}, v{OST}, s[{SO}:{SO+3}], s{sOB} offen offset:{f*512}{' sc1' if OPT['fuse'] else ' nt' if OPT['ntst'] else ''}", r=vr(d, 4) | {OST}, storedata=vr(d, 4))
    if OPT["fuse"]:
        K2.body(PF, sBLK, sB, sKVH)
    PF.dump(24, sW, 0)
    A.label("K1_END")
    A.salu("s_endpgm")
    for h in range(1, 8):
        A.label(f"K1_SLOW{h}")
        A.flush_hazards()
        sb = SB(h)
        for it in max_items([sb + i for i in range(32)], True, True): it()
        V(f"v_max_f32 v{MX}, 0, v{MX}", w={MX}, r={MX})
        V(f"v_sub_f32 v{MX2}, 0, v{MX}", w={MX2}, r={MX})
        V(f"v_exp_f32 v{MX2}, v{MX2}", w={MX2}, r={MX2}, kind="trans")
        for i in range(64):
            V(f"v_mul_f32 v{O+i}, v{MX2}, v{O+i}", w={O + i}, r={MX2, O + i})
        V(f"v_mul_f32 v{LSUM}, v{MX2}, v{LSUM}", w={LSUM}, r={MX2, LSUM})
        for i in range(16):
            V(f"v_sub_f32 v{NEGM+i}, v{NEGM+i}, v{MX}", w={NEGM + i}, r={NEGM + i, MX})
        if h < 7:
            s2 = SB(h + 1)
            for i in range(32):
                V(f"v_sub_f32 v{s2+i}, v{s2+i}, v{MX}", w={s2 + i}, r={s2 + i, MX})
        for it in sm_items(h, 0, 32, True): it()
        V(f"v_add_f32 v{SUMA}, v{SUMA}, v{SUMB}", w={SUMA}, r={SUMA, SUMB})
        A.flush_hazards()
        A.salu(f"s_branch K1_BACK{h}")

class K2Fused:
    def __init__(self, A, sW, SO, WOFF):
        self.A = A; self.sW = sW; self.SO = SO; self.WOFF = WOFF
        self.SWO, self.SOUT, self.SDBG = 28, 32, 20
        self.sBLK, self.sTT, self.sMT, self.sNT = 16, 17, 18, 19
        self.sWL, self.sWB, self.sO0, self.sO1, self.sT = 49, 50, 8, 9, 52
        self.sP0, self.sP1 = 10, 11
        self.last_vm = {}
    def loads(self):
        A = self.A
        A.salu("s_load_dwordx2 s[8:9], s[0:1], 32")
        A.salu("s_load_dwordx2 s[10:11], s[0:1], 72")
        A.salu("s_load_dwordx2 s[12:13], s[0:1], 80")
        A.salu("s_load_dwordx2 s[14:15], s[0:1], 88")
    def scalars(self):
        A = self.A; sW = self.sW
        sBLK, sTT, sMT, sNT = self.sBLK, self.sTT, self.sMT, self.sNT
        A.salu("s_waitcnt lgkmcnt(0)")
        A.salu("s_and_b32 s3, s2, 7")
        A.salu("s_lshl_b32 s3, s3, 5")
        A.salu(f"s_lshr_b32 s{sTT}, s2, 3")
        A.salu(f"s_add_u32 s{sTT}, s3, s{sTT}")
        A.salu(f"s_min_u32 s3, s{sTT}, 251")
        A.salu("s_cmp_ge_u32 s3, 126")
        A.salu(f"s_cselect_b32 s{sBLK}, 1, 0")
        A.salu("s_cselect_b32 s8, s10, s8")
        A.salu("s_cselect_b32 s9, s11, s9")
        srd(A, self.SWO, 8, 4096 * 576 * 2)
        srd(A, self.SOUT, 12, 896 * 1152 * 2)
        srd(A, self.SDBG, 14, 256)
        A.salu(f"s_mul_i32 s12, s{sBLK}, 126")
        A.salu("s_sub_u32 s3, s3, s12")
        A.salu("s_mul_i32 s12, s3, 57")
        A.salu(f"s_lshr_b32 s{sMT}, s12, 9")
        A.salu(f"s_mul_i32 s12, s{sMT}, 9")
        A.salu(f"s_sub_u32 s{sNT}, s3, s12")
        A.salu(f"s_mul_i32 s{self.sWB}, s{sW}, {512*1152}")
        A.salu(f"s_lshl_b32 s12, s{sNT}, 7")
        A.salu(f"s_add_u32 s{self.sWB}, s{self.sWB}, s12")
        A.salu(f"s_mul_i32 s{self.sO0}, s{sBLK}, {O_BLK}")
        A.salu(f"s_lshl_b32 s12, s{sMT}, 19")
        A.salu(f"s_add_u32 s{self.sO0}, s{self.sO0}, s12")
        A.salu(f"s_lshl_b32 s12, s{sW}, 14")
        A.salu(f"s_add_u32 s{self.sO0}, s{self.sO0}, s12")
        A.salu(f"s_add_u32 s{self.sO1}, s{self.sO0}, {2*131072}")
        A.salu(f"s_lshl_b32 s12, s{sBLK}, 7")
        A.salu(f"s_lshr_b32 s13, s{sW}, 1")
        A.salu("s_lshl_b32 s13, s13, 2")
        A.salu("s_add_u32 s12, s12, s13")
        A.salu(f"s_mul_i32 s13, s{sMT}, 148")
        A.salu(f"s_lshr_b32 s{self.sP0}, s13, 8")
        A.salu(f"s_lshl_b32 s{self.sP0}, s{self.sP0}, 4")
        A.salu(f"s_add_u32 s{self.sP0}, s{self.sP0}, s12")
        A.salu("s_add_u32 s13, s13, 111")
        A.salu(f"s_lshr_b32 s{self.sP1}, s13, 8")
        A.salu(f"s_lshl_b32 s{self.sP1}, s{self.sP1}, 4")
        A.salu(f"s_add_u32 s{self.sP1}, s{self.sP1}, s12")
    def addr_items(self):
        V = self.A.valu; W = self.WOFF
        L, T1, T2, T4 = W + 4, W + 5, W + 6, W + 7
        return [
            lambda: V(f"v_mbcnt_lo_u32_b32 v{L}, -1, 0", w={L}),
            lambda: V(f"v_mbcnt_hi_u32_b32 v{L}, -1, v{L}", w={L}, r={L}),
            lambda: V(f"v_lshrrev_b32 v{T1}, 3, v{L}", w={T1}, r={L}),
            lambda: V(f"v_mul_u32_u24 v{T1}, 1152, v{T1}", w={T1}, r={T1}),
            lambda: V(f"v_bfe_u32 v{T2}, v{L}, 4, 1", w={T2}, r={L}),
            lambda: V(f"v_lshlrev_b32 v{T2}, 2, v{T2}", w={T2}, r={T2}),
            lambda: V(f"v_and_b32 v{T4}, 7, v{L}", w={T4}, r={L}),
            lambda: V(f"v_xor_b32 v{T4}, v{T4}, v{T2}", w={T4}, r={T4, T2}),
            lambda: V(f"v_lshl_add_u32 v{W}, v{T4}, 4, v{T1}", w={W}, r={T4, T1}),
        ] + [lambda i=i: V(f"v_add_u32 v{W+i}, {9216*i}, v{W}", w={W + i}, r={W}) for i in range(1, 4)]
    def wo_piece(self, u, i):
        A = self.A; W = self.WOFF; S = self.SWO
        A.salu(f"s_add_u32 s{self.sT}, s{self.sWB}, {u * 32 * 1152}")
        A.salu(f"s_add_u32 m0, s{self.sWL}, {(u % 4) * 4096 + i * 1024}", m0w=True)
        A.vmem(f"buffer_load_dwordx4 v{W+i}, s[{S}:{S+3}], s{self.sT} offen{' nt' if OPT['ntwo'] else ''} lds", kind="dma", r={W + i}, m0r=True)
    def wo_items(self, slots):
        A = self.A
        tab = sum(s << (4 * w) for w, s in enumerate(slots))
        A.salu(f"s_lshl_b32 s3, s{self.sW}, 2")
        A.salu(f"s_lshr_b32 s3, {tab:#x}, s3")
        A.salu("s_and_b32 s3, s3, 15")
        A.salu(f"s_lshl_b32 s{self.sWL}, s3, 14")
        return [lambda u=u, i=i: self.wo_piece(u, i) for u in range(4) for i in range(4)]
    def body(self, PF, sBLK1, sB1, sKVH1):
        A = self.A; V = A.valu; sW = self.sW; SO = self.SO
        T0, T1, T2, T3, T4, T5, T6, T7 = range(0, 8)
        WOFF = self.WOFF; OOFF = 12; BA = 13; RED = 15; AF = 16; OF = 96; ACC = 160
        sBLK, sMT, sNT = self.sBLK, self.sMT, self.sNT
        SOUT, SDBG = self.SOUT, self.SDBG
        sWL, sO0, sO1, sT = self.sWL, self.sO0, self.sO1, self.sT
        L = T0
        A.salu("s_mov_b64 exec, -1")
        V(f"v_mbcnt_lo_u32_b32 v{L}, -1, 0", w={L})
        V(f"v_mbcnt_hi_u32_b32 v{L}, -1, v{L}", w={L}, r={L})
        V(f"v_bfe_u32 v{T2}, v{L}, 4, 1", w={T2}, r={L})
        V(f"v_lshrrev_b32 v{T1}, 5, v{L}", w={T1}, r={L})
        V(f"v_bfe_u32 v{T3}, v{L}, 2, 2", w={T3}, r={L})
        V(f"v_and_b32 v{T4}, 3, v{L}", w={T4}, r={L})
        V(f"v_lshlrev_b32 v{T6}, 17, v{T2}", w={T6}, r={T2})
        V(f"v_lshl_add_u32 v{T6}, v{T1}, 8, v{T6}", w={T6}, r={T1, T6})
        V(f"v_and_b32 v{T7}, 15, v{L}", w={T7}, r={L})
        V(f"v_lshl_add_u32 v{OOFF}, v{T7}, 4, v{T6}", w={OOFF}, r={T7, T6})
        V(f"v_lshl_add_u32 v{T6}, v{T1}, 2, v{T3}", w={T6}, r={T1, T3})
        V(f"v_lshlrev_b32 v{T6}, 7, v{T6}", w={T6}, r={T6})
        V(f"v_lshrrev_b32 v{T7}, 1, v{T4}", w={T7}, r={T4})
        V(f"v_lshl_add_u32 v{T7}, v{T2}, 1, v{T7}", w={T7}, r={T2, T7})
        V(f"v_lshrrev_b32 v{T5}, 1, v{T3}", w={T5}, r={T3})
        V(f"v_lshlrev_b32 v{T5}, 2, v{T5}", w={T5}, r={T5})
        V(f"v_xor_b32 v{T7}, v{T7}, v{T5}", w={T7}, r={T7, T5})
        V(f"v_lshl_add_u32 v{T6}, v{T7}, 4, v{T6}", w={T6}, r={T7, T6})
        V(f"v_and_b32 v{T7}, 1, v{T4}", w={T7}, r={T4})
        V(f"v_lshl_add_u32 v{T6}, v{T7}, 3, v{T6}", w={T6}, r={T7, T6})
        V(f"v_add_u32 v{BA}, s{sWL}, v{T6}", w={BA}, r={T6})
        V(f"v_xor_b32 v{BA+1}, 64, v{BA}", w={BA + 1}, r={BA})
        V(f"v_lshlrev_b32 v{RED}, 4, v{L}", w={RED}, r={L})
        A.salu(f"s_lshl_b32 s12, s{sBLK1}, 7")
        A.salu(f"s_lshl_b32 s13, s{sB1}, 4")
        A.salu("s_add_u32 s12, s12, s13")
        A.salu(f"s_and_b32 s13, s{sKVH1}, 12")
        A.salu("s_add_u32 s12, s12, s13")
        A.salu(f"s_and_b32 s13, s{sKVH1}, 3")
        A.salu("s_lshl_b32 s13, s13, 3")
        A.salu("s_lshl_b32 s13, 1, s13")
        V(f"v_mov_b32 v{T1}, s12", w={T1})
        V(f"v_mov_b32 v{T2}, s13", w={T2})
        if OPT["fuse"] == 1:
            V(f"v_mov_b32 v{T3}, s{self.sP1}", w={T3})
            V(f"v_writelane_b32 v{T3}, s{self.sP0}, 0", w={T3}, r={T3})
            A.salu(f"s_and_b32 s14, s{sW}, 1")
            A.salu("s_lshl_b32 s14, s14, 4")
            A.salu("s_lshl_b32 s14, 0x101, s14")
        else:
            V(f"v_mov_b32 v{T3}, s{self.sP1}", w={T3})
            V(f"v_mov_b32 v{T4}, s{self.sP0}", w={T4})
            V(f"v_cmp_gt_u32 vcc, 4, v{L}", r={L}, sw={"vcc"})
            V(f"v_cndmask_b32 v{T3}, v{T3}, v{T4}, vcc", w={T3}, r={T3, T4}, sr={"vcc"})
            V(f"v_and_b32 v{T4}, 3, v{L}", w={T4}, r={L})
            V(f"v_lshl_add_u32 v{T3}, v{T4}, 2, v{T3}", w={T3}, r={T3, T4})
            A.salu("s_mov_b32 s14, 0x01010101")
        A.salu("s_mov_b32 s15, 0x40000")
        A.waitcnt(vm=0); A.vm_done = A.nvm
        PF.stamp("st")
        A.barrier()
        A.salu(f"s_cmp_eq_u32 s{sW}, 0")
        A.salu("s_cbranch_scc0 K1_NOFLAG")
        A.salu("s_mov_b64 exec, 1")
        A.salu(f"buffer_atomic_add v{T2}, v{T1}, s[{SDBG}:{SDBG+3}], 0 offen sc1")
        A.label("K1_NOFLAG")
        A.salu(f"s_cmp_ge_u32 s{self.sTT}, 252")
        A.salu("s_cbranch_scc1 K1_END")
        if OPT["fuse"] == 1:
            A.salu("s_mov_b64 exec, 3")
        else:
            A.salu(f"s_cmp_eq_u32 s{sW}, 0")
            A.salu("s_cbranch_scc0 K1_GO" if OPT["fuse"] != 3 else "s_cbranch_scc0 K1_WO")
            A.salu("s_mov_b64 exec, 0xff")
        A.label("K1_POLL")
        A.salu(f"buffer_load_dword v{T4}, v{T3}, s[{SDBG}:{SDBG+3}], 0 offen sc1")
        A.salu("s_waitcnt vmcnt(0)")
        A.salu(f"v_and_b32 v{T4}, s14, v{T4}")
        A.salu(f"v_cmp_ne_u32 vcc, s14, v{T4}")
        A.salu("s_nop 1")
        A.salu("s_cbranch_vccz K1_GO")
        A.salu(f"s_sleep {OPT['slp']}")
        A.salu("s_sub_u32 s15, s15, 1")
        A.salu("s_cmp_lg_u32 s15, 0")
        A.salu("s_cbranch_scc1 K1_POLL")
        A.label("K1_GO")
        A.salu("s_mov_b64 exec, -1")
        if OPT["fuse"] == 3:
            A.barrier()
            A.label("K1_WO")
            for u in range(4):
                for i in range(4): self.wo_piece(u, i)
            A.salu(f"s_cmp_eq_u32 s{sW}, 0")
            A.salu("s_cbranch_scc1 K1_GO2")
            A.barrier()
            A.label("K1_GO2")
        elif OPT["fuse"] > 1: A.barrier()
        PF.stamp("go")
        NU = 16; DEPTH = 4
        last_vm = {}
        def issue(u, wo=True):
            slot = u % DEPTH
            if wo:
                for i in range(4): self.wo_piece(u, i)
            for ks in range(2):
                for tm in range(2):
                    d = OF + slot * 16 + (ks * 2 + tm) * 4
                    off = (2 * u + ks) * 512
                    sb = sO0 if tm == 0 else sO1
                    if off >= 4096:
                        A.salu(f"s_add_u32 s{sT}, s{sb}, {off & ~4095}")
                        sb = sT
                    k = A.vmem(f"buffer_load_dwordx4 {vname(d,4)}, v{OOFF}, s[{SO}:{SO+3}], s{sb} offen offset:{off & 4095} sc1", w=vr(d, 4), r={OOFF})
            last_vm[u] = k
        def dsreads(u):
            slot = u % DEPTH
            ab = AF + (u % 2) * 16
            for ks in range(2):
                for tn in range(2):
                    for j in range(2):
                        k = A.ds_read_tr(ab + (ks * 2 + tn) * 4 + 2 * j, BA + tn, slot * 4096 + (16 * ks + 8 * j) * 128)
            return k
        for u in range(DEPTH): issue(u, OPT["fuse"] == 4)
        if OPT["fuse"] in (3, 4): A.wait_vm(last_vm[0])
        pend = dsreads(0)
        A.wait_vm(last_vm[0])
        for u in range(NU):
            A.wait_ds(pend)
            if u + 1 < NU:
                A.wait_vm(last_vm[u + 1])
                pend = dsreads(u + 1)
            ab = AF + (u % 2) * 16
            ob = OF + (u % DEPTH) * 16
            for ks in range(2):
                for tn in range(2):
                    for tm in range(2):
                        c = "zero" if (u == 0 and ks == 0) else None
                        A.mfma(ACC + (tn * 2 + tm) * 16, ab + (ks * 2 + tn) * 4, ob + (ks * 2 + tm) * 4, c)
            if u + DEPTH < NU: issue(u + DEPTH)
            if u in (0, 7, 15): PF.stamp(f"u{u}")
        A.wait_ds_all()
        A.barrier()
        A.salu(f"s_lshl_b32 s12, s{sW}, 14")
        V(f"v_add_u32 v{T1}, s12, v{RED}", w={T1}, r={RED})
        for q in range(16):
            A.ds_write_b128(T1, ACC + 4 * q, q * 1024)
        A.wait_ds_all()
        A.barrier()
        A.salu(f"s_lshl_b32 s6, s{sW}, 11")
        V(f"v_add_u32 v{T1}, s6, v{RED}", w={T1}, r={RED})
        V(f"v_add_u32 v{T2}, 0x10000, v{T1}", w={T2}, r={T1})
        R = OF
        for ww in range(8):
            for q in range(2):
                A.ds_read_b128(R + (ww * 2 + q) * 4, T1 if ww < 4 else T2, (ww % 4) * 16384 + q * 1024)
            if ww == 5:
                A.wait_ds_all()
        A.wait_ds_all()
        for ww in range(1, 8):
            for i in range(8):
                V(f"v_add_f32 v{R+i}, v{R+i}, v{R+ww*8+i}", w={R + i}, r={R + i, R + ww * 8 + i})
        for q in range(4):
            V(f"v_cvt_pk_bf16_f32 v{AF+q}, v{R+2*q}, v{R+2*q+1}", w={AF + q}, r={R + 2 * q, R + 2 * q + 1})
        A.salu(f"s_lshr_b32 s6, s{sW}, 1")
        A.salu("s_and_b32 s7, s6, 1")
        A.salu("s_lshr_b32 s6, s6, 1")
        A.salu(f"s_lshl_b32 s3, s{sMT}, 6")
        A.salu("s_lshl_b32 s7, s7, 5")
        A.salu("s_add_u32 s3, s3, s7")
        A.salu("s_mul_i32 s3, s3, 2304")
        A.salu(f"s_mul_i32 s7, s{sBLK}, 1152")
        A.salu("s_add_u32 s3, s3, s7")
        A.salu(f"s_lshl_b32 s7, s{sNT}, 7")
        A.salu("s_add_u32 s3, s3, s7")
        A.salu("s_lshl_b32 s7, s6, 6")
        A.salu("s_add_u32 s3, s3, s7")
        A.salu(f"s_and_b32 s7, s{sW}, 1")
        A.salu("s_lshl_b32 s7, s7, 5")
        A.salu("s_add_u32 s3, s3, s7")
        V(f"v_and_b32 v{T1}, 31, v{L}", w={T1}, r={L})
        V(f"v_mul_u32_u24 v{T1}, 2304, v{T1}", w={T1}, r={T1})
        V(f"v_lshrrev_b32 v{T2}, 5, v{L}", w={T2}, r={L})
        V(f"v_lshl_add_u32 v{T1}, v{T2}, 3, v{T1}", w={T1}, r={T2, T1})
        A.vmem(f"buffer_store_dwordx2 {vname(AF,2)}, v{T1}, s[{SOUT}:{SOUT+3}], s3 offen", r=vr(AF, 2) | {T1})
        A.vmem(f"buffer_store_dwordx2 {vname(AF+2,2)}, v{T1}, s[{SOUT}:{SOUT+3}], s3 offen offset:16", r=vr(AF + 2, 2) | {T1})

def gen_k2(A):
    V = A.valu
    T0, T1, T2, T3, T4, T5, T6, T7 = range(0, 8)
    WOFF = 8
    OOFF = 12
    BA = 13
    RED = 15
    AF = 16
    OF = 48
    ACC = 112
    sBLK, sMT, sNT, sW = 26, 27, 4, 5
    SW_, SO, SOUT = 28, 32, 36
    sWL, sWB, sO0, sO1, sT = 48, 49, 50, 51, 52
    A.win = []
    A.nds = A.ds_done = A.nvm = A.vm_done = 0
    A.raw(f".p2align 8\n.globl k2_kernel\n.type k2_kernel,@function\nk2_kernel:")
    A.salu("s_cmp_ge_u32 s2, 256")
    A.salu("s_cbranch_scc1 K2_END")
    A.salu("s_and_b32 s3, s2, 7")
    A.salu("s_lshl_b32 s3, s3, 5")
    A.salu("s_lshr_b32 s6, s2, 3")
    A.salu("s_add_u32 s3, s3, s6")
    A.salu("s_cmp_ge_u32 s3, 252")
    A.salu("s_cbranch_scc1 K2_END")
    A.salu("s_load_dwordx2 s[8:9], s[0:1], 32")
    A.salu("s_load_dwordx2 s[10:11], s[0:1], 72")
    A.salu("s_load_dwordx2 s[12:13], s[0:1], 80")
    A.salu("s_load_dwordx2 s[14:15], s[0:1], 96")
    A.salu("s_cmp_ge_u32 s3, 126")
    A.salu(f"s_cselect_b32 s{sBLK}, 1, 0")
    A.salu(f"s_mul_i32 s6, s{sBLK}, 126")
    A.salu("s_sub_u32 s3, s3, s6")
    A.salu("s_mul_i32 s6, s3, 57")
    A.salu(f"s_lshr_b32 s{sMT}, s6, 9")
    A.salu(f"s_mul_i32 s6, s{sMT}, 9")
    A.salu(f"s_sub_u32 s{sNT}, s3, s6")
    V(f"v_lshrrev_b32 v{T1}, 6, v0", w={T1}, r={0})
    A._emit(I(f"v_readfirstlane_b32 s{sW}, v{T1}", "rdlane", r={T1}, sw={sW}))
    V(f"v_and_b32 v{T0}, 63, v0", w={T0}, r={0})
    L = T0
    A.salu(f"s_lshl_b32 s{sWL}, s{sW}, 14", sr={sW})
    A.salu(f"s_mul_i32 s{sWB}, s{sW}, {512*1152}", sr={sW})
    A.salu(f"s_lshl_b32 s6, s{sNT}, 7")
    A.salu(f"s_add_u32 s{sWB}, s{sWB}, s6")
    A.salu(f"s_mul_i32 s{sO0}, s{sBLK}, {O_BLK}")
    A.salu(f"s_lshl_b32 s6, s{sMT}, 19")
    A.salu(f"s_add_u32 s{sO0}, s{sO0}, s6")
    A.salu(f"s_lshl_b32 s6, s{sW}, 14")
    A.salu(f"s_add_u32 s{sO0}, s{sO0}, s6")
    A.salu(f"s_add_u32 s{sO1}, s{sO0}, {2*131072}")
    V(f"v_lshrrev_b32 v{T1}, 3, v{L}", w={T1}, r={L})
    V(f"v_mul_u32_u24 v{T1}, 1152, v{T1}", w={T1}, r={T1})
    V(f"v_bfe_u32 v{T2}, v{L}, 4, 1", w={T2}, r={L})
    V(f"v_lshlrev_b32 v{T3}, 2, v{T2}", w={T3}, r={T2})
    V(f"v_and_b32 v{T4}, 7, v{L}", w={T4}, r={L})
    V(f"v_xor_b32 v{T4}, v{T4}, v{T3}", w={T4}, r={T4, T3})
    V(f"v_lshl_add_u32 v{WOFF}, v{T4}, 4, v{T1}", w={WOFF}, r={T4, T1})
    for i in range(1, 4):
        V(f"v_add_u32 v{WOFF+i}, {9216*i}, v{WOFF}", w={WOFF + i}, r={WOFF})
    V(f"v_lshrrev_b32 v{T1}, 5, v{L}", w={T1}, r={L})
    V(f"v_bfe_u32 v{T3}, v{L}, 2, 2", w={T3}, r={L})
    V(f"v_and_b32 v{T4}, 3, v{L}", w={T4}, r={L})
    V(f"v_lshlrev_b32 v{T6}, 17, v{T2}", w={T6}, r={T2})
    V(f"v_lshl_add_u32 v{T6}, v{T1}, 8, v{T6}", w={T6}, r={T1, T6})
    V(f"v_and_b32 v{T7}, 15, v{L}", w={T7}, r={L})
    V(f"v_lshl_add_u32 v{OOFF}, v{T7}, 4, v{T6}", w={OOFF}, r={T7, T6})
    V(f"v_lshl_add_u32 v{T6}, v{T1}, 2, v{T3}", w={T6}, r={T1, T3})
    V(f"v_lshlrev_b32 v{T6}, 7, v{T6}", w={T6}, r={T6})
    V(f"v_lshrrev_b32 v{T7}, 1, v{T4}", w={T7}, r={T4})
    V(f"v_lshl_add_u32 v{T7}, v{T2}, 1, v{T7}", w={T7}, r={T2, T7})
    V(f"v_lshrrev_b32 v{T5}, 1, v{T3}", w={T5}, r={T3})
    V(f"v_lshlrev_b32 v{T5}, 2, v{T5}", w={T5}, r={T5})
    V(f"v_xor_b32 v{T7}, v{T7}, v{T5}", w={T7}, r={T7, T5})
    V(f"v_lshl_add_u32 v{T6}, v{T7}, 4, v{T6}", w={T6}, r={T7, T6})
    V(f"v_and_b32 v{T7}, 1, v{T4}", w={T7}, r={T4})
    V(f"v_lshl_add_u32 v{T6}, v{T7}, 3, v{T6}", w={T6}, r={T7, T6})
    V(f"v_add_u32 v{BA}, s{sWL}, v{T6}", w={BA}, r={T6})
    V(f"v_xor_b32 v{BA+1}, 64, v{BA}", w={BA + 1}, r={BA})
    V(f"v_lshlrev_b32 v{RED}, 4, v{L}", w={RED}, r={L})
    A.waitcnt(lgkm=0)
    A.salu(f"s_cmp_eq_u32 s{sBLK}, 0")
    A.salu("s_cselect_b32 s8, s8, s10")
    A.salu("s_cselect_b32 s9, s9, s11")
    srd(A, SW_, 8, 4096 * 576 * 2)
    srd(A, SO, 14, 2 * O_BLK)
    srd(A, SOUT, 12, 896 * 1152 * 2)

    NU = 16; DEPTH = 4
    last_vm = {}
    def issue(u):
        slot = u % DEPTH
        A.salu(f"s_add_u32 s{sT}, s{sWB}, {u * 32 * 1152}")
        for i in range(4):
            A.salu(f"s_add_u32 m0, s{sWL}, {slot * 4096 + i * 1024}", m0w=True)
            A.vmem(f"buffer_load_dwordx4 v{WOFF+i}, s[{SW_}:{SW_+3}], s{sT} offen{' nt' if OPT['ntwo'] else ''} lds", kind="dma", r={WOFF + i}, m0r=True)
        for ks in range(2):
            for tm in range(2):
                d = OF + slot * 16 + (ks * 2 + tm) * 4
                off = (2 * u + ks) * 512
                sb = sO0 if tm == 0 else sO1
                if off >= 4096:
                    A.salu(f"s_add_u32 s{sT}, s{sb}, {off & ~4095}")
                    k = A.vmem(f"buffer_load_dwordx4 {vname(d,4)}, v{OOFF}, s[{SO}:{SO+3}], s{sT} offen offset:{off & 4095}{' nt' if OPT['nto'] else ''}", w=vr(d, 4), r={OOFF})
                else:
                    k = A.vmem(f"buffer_load_dwordx4 {vname(d,4)}, v{OOFF}, s[{SO}:{SO+3}], s{sb} offen offset:{off}{' nt' if OPT['nto'] else ''}", w=vr(d, 4), r={OOFF})
        last_vm[u] = k
    def dsreads(u):
        slot = u % DEPTH
        ab = AF + (u % 2) * 16
        for ks in range(2):
            for tn in range(2):
                for j in range(2):
                    k = A.ds_read_tr(ab + (ks * 2 + tn) * 4 + 2 * j, BA + tn, slot * 4096 + (16 * ks + 8 * j) * 128)
        return k
    PF = Prof(A, 1)
    PF.stamp("start")
    for u in range(DEPTH): issue(u)
    A.wait_vm(last_vm[0])
    pend = dsreads(0)
    for u in range(NU):
        A.wait_ds(pend)
        if u + 1 < NU:
            A.wait_vm(last_vm[u + 1])
            pend = dsreads(u + 1)
        ab = AF + (u % 2) * 16
        ob = OF + (u % DEPTH) * 16
        for ks in range(2):
            for tn in range(2):
                for tm in range(2):
                    c = "zero" if (u == 0 and ks == 0) else None
                    A.mfma(ACC + (tn * 2 + tm) * 16, ab + (ks * 2 + tn) * 4, ob + (ks * 2 + tm) * 4, c)
        if u + DEPTH < NU: issue(u + DEPTH)
        PF.stamp(f"u{u}")
    A.wait_ds_all()
    A.barrier()
    V(f"v_add_u32 v{T1}, s{sWL}, v{RED}", w={T1}, r={RED})
    for q in range(16):
        A.ds_write_b128(T1, ACC + 4 * q, q * 1024)
    A.wait_ds_all()
    A.barrier()
    A.salu(f"s_lshl_b32 s6, s{sW}, 11")
    V(f"v_add_u32 v{T1}, s6, v{RED}", w={T1}, r={RED})
    V(f"v_add_u32 v{T2}, 0x10000, v{T1}", w={T2}, r={T1})
    R = OF
    for ww in range(8):
        for q in range(2):
            A.ds_read_b128(R + (ww * 2 + q) * 4, T1 if ww < 4 else T2, (ww % 4) * 16384 + q * 1024)
            if ww == 6 and q == 1: pass
        if ww == 5:
            A.wait_ds_all()
    A.wait_ds_all()
    for ww in range(1, 8):
        for i in range(8):
            V(f"v_add_f32 v{R+i}, v{R+i}, v{R+ww*8+i}", w={R + i}, r={R + i, R + ww * 8 + i})
    for q in range(4):
        V(f"v_cvt_pk_bf16_f32 v{AF+q}, v{R+2*q}, v{R+2*q+1}", w={AF + q}, r={R + 2 * q, R + 2 * q + 1})
    A.salu(f"s_lshr_b32 s6, s{sW}, 1")
    A.salu("s_and_b32 s7, s6, 1")
    A.salu("s_lshr_b32 s6, s6, 1")
    A.salu(f"s_lshl_b32 s3, s{sMT}, 6")
    A.salu("s_lshl_b32 s7, s7, 5")
    A.salu("s_add_u32 s3, s3, s7")
    A.salu("s_mul_i32 s3, s3, 2304")
    A.salu(f"s_mul_i32 s7, s{sBLK}, 1152")
    A.salu("s_add_u32 s3, s3, s7")
    A.salu(f"s_lshl_b32 s7, s{sNT}, 7")
    A.salu("s_add_u32 s3, s3, s7")
    A.salu("s_lshl_b32 s7, s6, 6")
    A.salu("s_add_u32 s3, s3, s7")
    A.salu(f"s_and_b32 s7, s{sW}, 1")
    A.salu("s_lshl_b32 s7, s7, 5")
    A.salu("s_add_u32 s3, s3, s7")
    V(f"v_and_b32 v{T1}, 31, v{L}", w={T1}, r={L})
    V(f"v_mul_u32_u24 v{T1}, 2304, v{T1}", w={T1}, r={T1})
    V(f"v_lshrrev_b32 v{T2}, 5, v{L}", w={T2}, r={L})
    V(f"v_lshl_add_u32 v{T1}, v{T2}, 3, v{T1}", w={T1}, r={T2, T1})
    A.vmem(f"buffer_store_dwordx2 {vname(AF,2)}, v{T1}, s[{SOUT}:{SOUT+3}], s3 offen", r=vr(AF, 2) | {T1})
    A.vmem(f"buffer_store_dwordx2 {vname(AF+2,2)}, v{T1}, s[{SOUT}:{SOUT+3}], s3 offen offset:16", r=vr(AF + 2, 2) | {T1})
    PF.dump(14, sW, 0)
    A.label("K2_END")
    A.salu("s_endpgm")

def kd(name, vgpr, sgpr):
    return f""".amdhsa_kernel {name}
  .amdhsa_next_free_vgpr {vgpr}
  .amdhsa_next_free_sgpr {sgpr}
  .amdhsa_accum_offset {(vgpr + 3) // 4 * 4}
  .amdhsa_group_segment_fixed_size 0
  .amdhsa_kernarg_size 104
  .amdhsa_user_sgpr_count 2
  .amdhsa_user_sgpr_kernarg_segment_ptr 1
  .amdhsa_system_sgpr_workgroup_id_x 1
.end_amdhsa_kernel
"""

def main():
    A = Asm()
    gen_k1(A)
    if not OPT["fuse"]: gen_k2(A)
    head = """; Two-launch GQA block pair: k1 = Q projection + attention (o -> ws), k2 = output projection.
; @launch kernel=k1_kernel grid=(256,1,1) block=(512,1,1) lds=163840
; @launch kernel=k2_kernel grid=(256,1,1) block=(512,1,1) lds=131072
.amdgcn_target "amdgcn-amd-amdhsa--gfx950"
.text
"""
    tail = '\n.section .rodata,"a"\n.p2align 6\n' + kd("k1_kernel", 256, 102 if OPT["prof"] else 64) + ".p2align 6\n" + kd("k2_kernel", 176, 102 if OPT["prof"] else 64)
    if OPT["fuse"]:
        head = """; GQA block pair in one launch: Q projection + attention, o handed over through ws, output projection.
; @launch kernel=k1_kernel grid=(256,1,1) block=(512,1,1) lds=163840
.amdgcn_target "amdgcn-amd-amdhsa--gfx950"
.text
"""
        tail = '\n.section .rodata,"a"\n.p2align 6\n' + kd("k1_kernel", 256, 102 if OPT["prof"] else 64)
    txt = head + A.text() + tail
    if "CODE_BYTES" in txt:
        import subprocess, re
        open("_p1.s", "w").write(txt.replace("CODE_BYTES", "0x12345"))
        subprocess.check_call(["clang", "-x", "assembler", "-target", "amdgcn-amd-amdhsa", "-mcpu=gfx950", "-c", "_p1.s", "-o", "_p1.o"])
        o = subprocess.check_output(["llvm-objdump", "-h", "_p1.o"]).decode()
        n = int(re.search(r"\.text\s+([0-9a-f]+)", o).group(1), 16)
        txt = txt.replace("CODE_BYTES", str(n))
    open(sys.argv[1], "w").write(txt)
    print("nops inserted:", A.nops_inserted, "lines:", len(A.out))

main()
```

```python
import sys, math
sys.path.insert(0, "gen")
from asmlib import *

NAME = "concat_heads__gqa_block_cached__gqa_block_cached__near_ridge"
OPT = dict(prio=1, prof=0, ntkv=1, ntw=0, ntx=0, ntwo=0, nto=0, ntst=0, nq=6, kvrate=1, l2pf=1, wopf=4, fat=1, bstep=1, dmagap=1, pflead=4, kv0=2, nstg=4, kvt=0, ld4=1, cpf=0, mid=0, kvt0=1, kvtr=1, roll=0, pfrate=1, kvs=0, rot=0, stag=0, qi=0, tlbw=0, ntt=0, fuse=0, slp=1, wox=0, xm=0)
for a in sys.argv[2:]:
    k, v = a.split("="); OPT[k] = int(v)

O_BLK = 896 * 4096 * 2
SLOT = 16384
NSLOT = 10

def srd(A, d, base, nbytes):
    A.salu(f"s_mov_b32 s{d}, s{base}")
    A.salu(f"s_and_b32 s{d+1}, s{base+1}, 0xffff")
    A.salu(f"s_mov_b32 s{d+2}, {nbytes}")
    A.salu(f"s_mov_b32 s{d+3}, 0x00020000")

class Prof:
    def __init__(self, A, kidx):
        self.A = A; self.n = 0; self.names = []; self.kidx = kidx
    def stamp(self, name):
        if not OPT["prof"]: return
        A = self.A
        assert self.n < 30
        A.salu("s_waitcnt lgkmcnt(0)")
        A.ds_done = A.nds
        A.salu("s_memtime s[96:97]")
        A.salu("s_waitcnt lgkmcnt(0)")
        A.salu(f"s_mov_b32 s{64+self.n}, s96")
        if self.n == 0:
            A.salu("s_memrealtime s[98:99]")
            A.salu("s_waitcnt lgkmcnt(0)")
        self.n += 1; self.names.append(name)
    def dump(self, wsreg, sW, tmp):
        if not OPT["prof"]: return
        A = self.A
        self.stamp("end")
        A.salu("s_memrealtime s[96:97]")
        A.salu("s_waitcnt lgkmcnt(0)")
        A.salu("s_mov_b64 exec, -1")
        A.salu("s_nop 4")
        for i in range(self.n):
            A.salu(f"v_writelane_b32 v{tmp}, s{64+i}, {i}")
        A.salu("s_getreg_b32 s97, hwreg(HW_REG_HW_ID)")
        A.salu(f"v_writelane_b32 v{tmp}, s97, 29")
        A.salu(f"v_writelane_b32 v{tmp}, s98, 30")
        A.salu(f"v_writelane_b32 v{tmp}, s96, 31")
        A.salu(f"s_mov_b32 s60, s{wsreg}")
        A.salu(f"s_and_b32 s61, s{wsreg+1}, 0xffff")
        A.salu("s_mov_b32 s62, 0x10000000")
        A.salu("s_mov_b32 s63, 0x00020000")
        A.salu("s_lshl_b32 s96, s2, 3")
        A.salu(f"s_add_u32 s96, s96, s{sW}")
        A.salu("s_lshl_b32 s96, s96, 7")
        A.salu(f"s_add_u32 s96, s96, {255*1024*1024 + self.kidx*512*1024}")
        A.salu(f"v_mbcnt_lo_u32_b32 v{tmp+1}, -1, 0")
        A.salu(f"v_mbcnt_hi_u32_b32 v{tmp+1}, -1, v{tmp+1}")
        A.salu(f"v_lshlrev_b32 v{tmp+1}, 2, v{tmp+1}")
        A.salu("s_mov_b64 exec, 0xffffffff")
        A.salu("s_nop 4")
        A.salu(f"buffer_store_dword v{tmp}, v{tmp+1}, s[60:63], s96 offen")
        print("stamps k%d:" % self.kidx, self.names)

def gen_k1(A):
    V = A.valu
    T0, T1, T2, T3, T4, T5, T6, T7 = range(0, 8)
    XO, WO, KO = 8, 10, 12
    BW, BX, BK, BV = 14, 15, 16, 17
    LSUM, OST = 18, 19
    SUMA, SUMB, MX, MX2 = 20, 21, 22, 23
    AD = 24
    FR = 32
    NEGM = 48
    QB = 64
    S = 96
    O = 160
    P = 224
    sBLK, sKVH, sB, sW, sHL, sRT = 26, 27, 4, 5, 6, 7
    SX, SW_, SK, SV, SO = 28, 32, 36, 40, 44
    sWL, sXB, sWB, sKVB, sT, sOB = 48, 49, 50, 51, 52, 53
    sMASK, sTHR, sC = 54, 56, 57
    sW3, sWL4, sT2 = 58, 59, 55

    A.raw(f".p2align 8\n.globl k1_kernel\n.type k1_kernel,@function\nk1_kernel:\nK1_BEGIN:")
    A.salu("s_cmp_ge_u32 s2, 256")
    A.salu("s_cbranch_scc1 K1_END")
    A.salu("s_load_dwordx8 s[8:15], s[0:1], 0")
    A.salu("s_load_dwordx8 s[16:23], s[0:1], 40")
    A.salu("s_load_dwordx2 s[24:25], s[0:1], 96")
    if OPT["cpf"]:
        A.salu("s_getpc_b64 s[60:61]")
        A.salu("s_and_b32 s60, s60, 0xffffff00")
        A.salu("s_and_b32 s61, s61, 0xffff")
        A.salu("s_mov_b32 s62, CODE_BYTES")
        A.salu("s_mov_b32 s63, 0x00020000")
        V(f"v_lshlrev_b32 v{T7}, 7, v0", w={T7}, r={0})
        A.vmem(f"buffer_load_dword v{NEGM+15}, v{T7}, s[60:63], 0 offen", w={NEGM+15}, r={T7})
    A.salu("s_and_b32 s3, s2, 7")
    A.salu(f"s_lshr_b32 s{sB}, s2, 3")
    A.salu(f"s_lshr_b32 s{sBLK}, s3, 2")
    A.salu("s_and_b32 s3, s3, 3")
    A.salu("s_lshl_b32 s3, s3, 2")
    A.salu(f"s_and_b32 s{sKVH}, s{sB}, 3")
    A.salu(f"s_add_u32 s{sKVH}, s{sKVH}, s3")
    A.salu(f"s_lshr_b32 s{sB}, s{sB}, 2")
    V(f"v_lshrrev_b32 v{T1}, 6, v0", w={T1}, r={0})
    A._emit(I(f"v_readfirstlane_b32 s{sW}, v{T1}", "rdlane", r={T1}, sw={sW}))
    V(f"v_and_b32 v{T0}, 63, v0", w={T0}, r={0})
    if OPT["fat"]:
        A.salu(f"s_bfe_u32 s{sHL}, s{sW}, 0x10001", sr={sW})
        A.salu(f"s_and_b32 s{sRT}, s{sW}, 1", sr={sW})
        A.salu(f"s_lshl_b32 s{sRT}, s{sRT}, 1")
        A.salu(f"s_lshr_b32 s3, s{sW}, 2", sr={sW})
        A.salu(f"s_add_u32 s{sRT}, s{sRT}, s3")
    else:
        A.salu(f"s_lshr_b32 s{sHL}, s{sW}, 2", sr={sW})
        A.salu(f"s_and_b32 s{sRT}, s{sW}, 3", sr={sW})
    A.salu(f"s_lshl_b32 s{sWL}, s{sW}, 11", sr={sW})
    A.salu(f"s_and_b32 s{sW3}, s{sW}, {3 if OPT['ld4'] else 1}", sr={sW})
    A.salu(f"s_lshl_b32 s{sWL4}, s{sW3}, 11")
    A.salu(f"s_mul_i32 s{sXB}, s{sB}, 129024")
    A.salu(f"s_lshl_b32 s{sWB}, s{sKVH}, 9")
    A.salu(f"s_lshl_b32 s{sKVB}, s{sB}, 4")
    A.salu(f"s_add_u32 s{sKVB}, s{sKVB}, s{sKVH}")
    if OPT["rot"] == 1:
        A.salu(f"s_and_b32 s{sMASK}, s{sKVB}, 7")
    elif OPT["rot"] == 2:
        A.salu(f"s_add_u32 s{sMASK}, s{sKVH}, s{sB}")
        A.salu(f"s_and_b32 s{sMASK}, s{sMASK}, 7")
    elif OPT["rot"] == 3:
        A.salu(f"s_and_b32 s{sMASK}, s{sB}, 7")
    A.salu(f"s_lshl_b32 s{sMASK}, s{sMASK}, 14")
    A.salu(f"s_lshl_b32 s{sKVB}, s{sKVB}, 17")
    A.salu(f"s_mov_b32 s{sTHR}, 0x4b800000")
    c = math.log2(math.e) / math.sqrt(128.0)
    import struct
    cbits = struct.unpack("<I", struct.pack("<f", c))[0]
    A.salu(f"s_mov_b32 s{sC}, {cbits:#x}")
    L = T0
    for q in range(2):
        V(f"v_lshrrev_b32 v{T1}, 3, v{L}", w={T1}, r={L})
        A.salu(f"s_lshl_b32 s3, s{sW3}, 4")
        A.salu(f"s_add_u32 s3, s3, {8*q}")
        V(f"v_add_u32 v{T1}, s3, v{T1}", w={T1}, r={T1})
        V(f"v_mul_u32_u24 v{T1}, 1152, v{T1}", w={T1}, r={T1})
        V(f"v_and_b32 v{T2}, 7, v{L}", w={T2}, r={L})
        V(f"v_lshrrev_b32 v{T3}, 4, v{L}", w={T3}, r={L})
        V(f"v_xor_b32 v{T2}, v{T2}, v{T3}", w={T2}, r={T2, T3})
        if q: V(f"v_xor_b32 v{T2}, 4, v{T2}", w={T2}, r={T2})
        V(f"v_lshl_add_u32 v{XO+q}, v{T2}, 4, v{T1}", w={XO+q}, r={T2, T1})
        V(f"v_lshrrev_b32 v{T3}, 5, v{L}", w={T3}, r={L})
        A.salu(f"s_lshl_b32 s3, s{sW3}, 2")
        A.salu(f"s_add_u32 s3, s3, {2*q}")
        V(f"v_add_u32 v{T1}, s3, v{T3}", w={T1}, r={T3})
        V(f"v_lshlrev_b32 v{T1}, 13, v{T1}", w={T1}, r={T1})
        V(f"v_or_b32 v{T3}, {2*q}, v{T3}", w={T3}, r={T3})
        V(f"v_lshlrev_b32 v{T3}, 2, v{T3}", w={T3}, r={T3})
        V(f"v_and_b32 v{T2}, 31, v{L}", w={T2}, r={L})
        V(f"v_xor_b32 v{T2}, v{T2}, v{T3}", w={T2}, r={T2, T3})
        V(f"v_lshl_add_u32 v{WO+q}, v{T2}, 4, v{T1}", w={WO+q}, r={T2, T1})
        V(f"v_lshrrev_b32 v{T3}, 4, v{L}", w={T3}, r={L})
        A.salu(f"s_lshl_b32 s3, s{sW}, 3")
        A.salu(f"s_add_u32 s3, s3, {4*q}")
        V(f"v_add_u32 v{T1}, s3, v{T3}", w={T1}, r={T3})
        V(f"v_lshlrev_b32 v{T1}, 8, v{T1}", w={T1}, r={T1})
        A.salu(f"s_and_b32 s3, s{sW}, 1")
        A.salu(f"s_lshl_b32 s3, s3, 1")
        A.salu(f"s_or_b32 s3, s3, {q}")
        V(f"v_lshlrev_b32 v{T3}, 2, v{T3}", w={T3}, r={T3})
        V(f"v_or_b32 v{T3}, s3, v{T3}", w={T3}, r={T3})
        V(f"v_and_b32 v{T2}, 15, v{L}", w={T2}, r={L})
        V(f"v_xor_b32 v{T2}, v{T2}, v{T3}", w={T2}, r={T2, T3})
        V(f"v_lshl_add_u32 v{KO+q}, v{T2}, 4, v{T1}", w={KO+q}, r={T2, T1})
    V(f"v_lshrrev_b32 v{T1}, 5, v{L}", w={T1}, r={L})
    V(f"v_bfe_u32 v{T2}, v{L}, 4, 1", w={T2}, r={L})
    V(f"v_bfe_u32 v{T3}, v{L}, 2, 2", w={T3}, r={L})
    V(f"v_and_b32 v{T4}, 3, v{L}", w={T4}, r={L})
    V(f"v_and_b32 v{T5}, 31, v{L}", w={T5}, r={L})
    V(f"v_lshl_add_u32 v{T6}, v{T1}, 3, v{T3}", w={T6}, r={T1, T3})
    V(f"v_lshlrev_b32 v{T6}, 9, v{T6}", w={T6}, r={T6})
    V(f"v_lshlrev_b32 v{T7}, 2, v{T3}", w={T7}, r={T3})
    V(f"v_lshl_add_u32 v{T7}, v{T2}, 1, v{T7}", w={T7}, r={T2, T7})
    V(f"v_and_b32 v{BW}, 1, v{T4}", w={BW}, r={T4})
    V(f"v_add_u32 v{T7}, v{T7}, v{BW}", w={T7}, r={T7, BW})
    A.salu(f"s_lshl_b32 s3, s{sHL}, 4")
    V(f"v_add_u32 v{T7}, s3, v{T7}", w={T7}, r={T7})
    V(f"v_lshl_add_u32 v{T6}, v{T7}, 4, v{T6}", w={T6}, r={T7, T6})
    V(f"v_lshrrev_b32 v{T7}, 1, v{T4}", w={T7}, r={T4})
    V(f"v_lshl_add_u32 v{BW}, v{T7}, 3, v{T6}", w={BW}, r={T7, T6})
    A.salu(f"s_lshl_b32 s3, s{sRT}, 5")
    V(f"v_add_u32 v{T6}, s3, v{T5}", w={T6}, r={T5})
    V(f"v_lshlrev_b32 v{T6}, 7, v{T6}", w={T6}, r={T6})
    V(f"v_bfe_u32 v{T7}, v{T5}, 1, 3", w={T7}, r={T5})
    V(f"v_xor_b32 v{T7}, v{T7}, v{T1}", w={T7}, r={T7, T1})
    V(f"v_lshl_add_u32 v{BX}, v{T7}, 4, v{T6}", w={BX}, r={T7, T6})
    V(f"v_lshlrev_b32 v{T6}, 2, v{T4}", w={T6}, r={T4})
    V(f"v_or_b32 v{T6}, v{T6}, v{T3}", w={T6}, r={T6, T3})
    V(f"v_xor_b32 v{T6}, v{T6}, v{T1}", w={T6}, r={T6, T1})
    V(f"v_lshlrev_b32 v{T7}, 8, v{T5}", w={T7}, r={T5})
    V(f"v_lshl_add_u32 v{BK}, v{T6}, 4, v{T7}", w={BK}, r={T6, T7})
    V(f"v_lshl_add_u32 v{T6}, v{T1}, 2, v{T3}", w={T6}, r={T1, T3})
    V(f"v_lshlrev_b32 v{T6}, 8, v{T6}", w={T6}, r={T6})
    V(f"v_lshrrev_b32 v{T7}, 1, v{T4}", w={T7}, r={T4})
    V(f"v_lshl_add_u32 v{T7}, v{T2}, 1, v{T7}", w={T7}, r={T2, T7})
    V(f"v_xor_b32 v{T7}, v{T7}, v{T1}", w={T7}, r={T7, T1})
    V(f"v_lshl_or_b32 v{T7}, v{T3}, 2, v{T7}", w={T7}, r={T3, T7})
    V(f"v_lshl_add_u32 v{T6}, v{T7}, 4, v{T6}", w={T6}, r={T7, T6})
    V(f"v_and_b32 v{T7}, 1, v{T4}", w={T7}, r={T4})
    V(f"v_lshl_add_u32 v{BV}, v{T7}, 3, v{T6}", w={BV}, r={T7, T6})
    V(f"v_lshlrev_b32 v{T6}, 17, v{T2}", w={T6}, r={T2})
    V(f"v_lshl_add_u32 v{T6}, v{T1}, 8, v{T6}", w={T6}, r={T1, T6})
    V(f"v_and_b32 v{T7}, 15, v{L}", w={T7}, r={L})
    V(f"v_lshl_add_u32 v{OST}, v{T7}, 4, v{T6}", w={OST}, r={T7, T6})
    V(f"v_mov_b32 v{LSUM}, 0", w={LSUM})
    A.waitcnt(lgkm=0)
    A.salu(f"s_cmp_eq_u32 s{sBLK}, 0")
    for k in range(8):
        A.salu(f"s_cselect_b32 s{8+k}, s{8+k}, s{16+k}")
    srd(A, SX, 8, 8 * 112 * 576 * 2)
    srd(A, SK, 10, 8 * 16 * 512 * 128 * 2)
    srd(A, SV, 12, 8 * 16 * 512 * 128 * 2)
    srd(A, SW_, 14, 576 * 4096 * 2)
    srd(A, SO, 24, 2 * O_BLK)
    A.salu(f"s_mul_i32 s{sOB}, s{sBLK}, {O_BLK}")
    A.salu(f"s_mul_i32 s3, s{sB}, 7")
    A.salu(f"s_lshl_b32 s{sT}, s{sRT}, 1")
    A.salu(f"s_add_u32 s3, s3, s{sT}")
    A.salu(f"s_lshl_b32 s3, s3, 17")
    A.salu(f"s_add_u32 s{sOB}, s{sOB}, s3")
    A.salu(f"s_lshl_b32 s3, s{sKVH}, 1")
    A.salu(f"s_add_u32 s3, s3, s{sHL}")
    A.salu(f"s_lshl_b32 s3, s3, 12")
    A.salu(f"s_add_u32 s{sOB}, s{sOB}, s3")
    if OPT["prio"]:
        A.salu(f"s_cmp_ge_u32 s{sW}, 4")
        A.salu("s_cbranch_scc0 K1_PRIO_DONE" if OPT["prio"] == 1 else "s_cbranch_scc1 K1_PRIO_DONE")
        A.salu("s_setprio 1")
        A.label("K1_PRIO_DONE")

    NTT = {0: "", 1: " nt", 2: " sc1", 3: " sc0 sc1", 4: " sc1 nt"}[OPT["ntt"]]
    qunits = []
    for s_ in range(9):
        qunits += [("X", s_), ("W", 2 * s_), ("W", 2 * s_ + 1)]
    kvunits = [("K", 0)]
    for h in range(7):
        kvunits += [("K", h + 1), ("V", h)]
    kvunits += [("V", 7)]
    units = qunits + kvunits
    UK = {idx: 27 + i for i, (t_, idx) in enumerate(kvunits) if t_ == "K"}
    UV = {idx: 27 + i for i, (t_, idx) in enumerate(kvunits) if t_ == "V"}
    stage_units = [list(range(3 * s_, 3 * s_ + 3)) for s_ in range(9)]
    unit_last_vm = {}
    unit_slot = {}
    free = list(range(NSLOT))
    nq = [0]; nkv = [0]; xch = []
    KQ = FR
    DV = FR + 2
    NSTG = OPT["nstg"]
    STG = [S + 32, O, O + 32, P][:NSTG]

    def unit_info(u):
        typ, idx = units[u]
        if typ == "X": return sXB, idx * 128, SX, XO, 2 * 16 * 1152, "ntx"
        if typ == "W": return sWB, idx * 32 * 8192, SW_, WO, 2 * 4 * 8192, "ntw"
        if typ == "K": return sKVB, idx * 64 * 256, SK, KO, 4096, "ntkv"
        return sKVB, idx * 64 * 256, SV, KO, 4096, "ntkv"

    def sbase(base, const):
        if base == sKVB and OPT["rot"]:
            A.salu(f"s_add_u32 s{sT}, s{sMASK}, {const}")
            A.salu(f"s_and_b32 s{sT}, s{sT}, 0x1ffff")
            A.salu(f"s_or_b32 s{sT}, s{sT}, s{sKVB}")
        else:
            A.salu(f"s_add_u32 s{sT}, s{base}, {const}")

    def issue_unit_q(u, stage_reg=None):
        if stage_reg is None:
            slot = free.pop(0)
            unit_slot[u] = slot
        base, const, sr_, vo, delta, nto = unit_info(u)
        if vo == KO: vo = KQ
        nt = " nt" if OPT[nto] else ""
        for hv in range(4):
            A.salu(f"s_add_u32 s{sT}, s{base}, {const + delta * hv}")
            for q in range(2):
                if stage_reg is None:
                    A.salu(f"s_add_u32 m0, s{sWL4}, {slot * SLOT + hv * 4096 + q * 1024}", m0w=True)
                    k = A.vmem(f"buffer_load_dwordx4 v{vo+q}, s[{sr_}:{sr_+3}], s{sT} offen{nt} lds", kind="dma", r={vo + q}, m0r=True)
                else:
                    d = stage_reg + (hv * 2 + q) * 4
                    k = A.vmem(f"buffer_load_dwordx4 {vname(d,4)}, v{vo+q}, s[{sr_}:{sr_+3}], s{sT} offen{nt}", w=vr(d, 4), r={vo + q})
        unit_last_vm[u] = k

    def issue_unit_4(u):
        slot = free.pop(0)
        unit_slot[u] = slot
        base, const, sr_, vo, delta, nto = unit_info(u)
        nt = " nt" if OPT[nto] else ""
        sbase(base, const)
        if vo != KO: A.salu(f"s_add_u32 s{sT2}, s{base}, {const + 2 * delta}")
        for hv in range(2):
            for q in range(2):
                A.salu(f"s_add_u32 m0, s{sWL4}, {slot * SLOT + hv * 8192 + q * 1024}", m0w=True)
                if vo == KO:
                    va = (KQ if hv == 0 else KO) + q; so = sT
                else:
                    va = vo + q; so = sT if hv == 0 else sT2
                k = A.vmem(f"buffer_load_dwordx4 v{va}, s[{sr_}:{sr_+3}], s{so} offen{nt} lds", kind="dma", r={va}, m0r=True)
        unit_last_vm[u] = k

    def flood():
        if not OPT["l2pf"]: return
        V(f"v_lshrrev_b32 v{T1}, 2, v{L}", w={T1}, r={L})
        V(f"v_lshlrev_b32 v{T1}, 13, v{T1}", w={T1}, r={T1})
        V(f"v_and_b32 v{T2}, 3, v{L}", w={T2}, r={L})
        V(f"v_lshl_add_u32 v{T1}, v{T2}, 7, v{T1}", w={T1}, r={T2, T1})
        A.salu(f"s_lshl_b32 s3, s{sW}, 4")
        A.salu(f"s_min_u32 s3, s3, 56")
        A.salu(f"s_mul_i32 s{sT}, s{sB}, 72")
        A.salu(f"s_add_u32 s3, s3, s{sT}")
        A.salu(f"s_lshl_b32 s3, s3, 13")
        A.salu(f"s_add_u32 s3, s3, s{sWB}")
        A.vmem(f"buffer_load_dword v{T4}, v{T1}, s[{SW_}:{SW_+3}], s3 offen{NTT}", w={T4}, r={T1})
        V(f"v_lshlrev_b32 v{T2}, 7, v{L}", w={T2}, r={L})
        A.salu(f"s_and_b32 s3, s{sKVH}, 3")
        A.salu(f"s_mul_i32 s3, s3, 32256")
        A.salu(f"s_and_b32 s{sT}, s{sW}, 3")
        A.salu(f"s_lshl_b32 s{sT}, s{sT}, 13")
        A.salu(f"s_add_u32 s3, s3, s{sT}")
        A.salu(f"s_add_u32 s3, s3, s{sXB}")
        A.vmem(f"buffer_load_dword v{T5}, v{T2}, s[{SX}:{SX+3}], s3 offen{NTT}", w={T5}, r={T2})

    def dump_unit(u, stage_reg):
        slot = free.pop(0)
        unit_slot[u] = slot
        V(f"v_add_u32 v{DV+1}, {slot * SLOT}, v{DV}", w={DV + 1}, r={DV})
        for hv in range(4):
            for q in range(2):
                A.ds_write_b128(DV + 1, stage_reg + (hv * 2 + q) * 4, hv * 4096 + q * 1024)

    def dma_items(u):
        slot = free.pop(0)
        unit_slot[u] = slot
        base, const, sr_, vo, delta, nto = unit_info(u)
        nt = " nt" if OPT[nto] else ""
        def mk(q):
            def f():
                sbase(base, const)
                A.salu(f"s_add_u32 m0, s{sWL}, {slot * SLOT + q * 1024}", m0w=True)
                k = A.vmem(f"buffer_load_dwordx4 v{vo+q}, s[{sr_}:{sr_+3}], s{sT} offen{nt} lds", kind="dma", r={vo + q}, m0r=True)
                unit_last_vm[u] = k
            return f
        if not OPT["stag"]: return [mk(0), mk(1)]
        G = 8 // OPT["stag"]
        def cond(f, g):
            def h():
                lab = f"K1_D{nlab[0]}"; nlab[0] += 1
                A.salu(f"s_cmp_eq_u32 s{sT2}, {g}")
                A.salu(f"s_cbranch_scc0 {lab}")
                n0 = len(A.out)
                f()
                for o in A.out[n0:]: o.ws = 0
                A.label(lab)
                if g < G - 1: A.nvm -= 1
            return h
        return [cond(mk(q), g) for q in range(2) for g in range(G)]
    nlab = [0]

    NQ = OPT["nq"]
    PF = Prof(A, 0)
    PF.stamp("start")

    def addr_items(dst, base, slot, xors):
        it = [lambda: V(f"v_add_u32 v{dst[0]}, {slot * SLOT}, v{base}", w={dst[0]}, r={base})]
        for i, x in enumerate(xors):
            if i == 0: continue
            it.append(lambda i=i, x=x: V(f"v_xor_b32 v{dst[i]}, {x}, v{dst[0]}", w={dst[i]}, r={dst[0]}))
        return it

    A.salu(f"s_cmp_lt_u32 s{sW}, 4")
    A.salu("s_cbranch_scc1 K1_FAT")
    pf0 = PF.n
    staged = []
    if OPT["ld4"]:
        for q in range(2):
            V(f"v_subrev_u32 v{KQ+q}, {4*8*256}, v{KO+q}", w={KQ + q}, r={KO + q})
        NL = NSLOT - NQ
        def refill(s):
            done_q = 3 * max(s, 0)
            while nq[0] < 27 and nq[0] - done_q < NQ and free:
                issue_unit_4(nq[0]); nq[0] += 1
        def kv_issue():
            if nkv[0] < NL:
                if free:
                    issue_unit_4(27 + nkv[0]); nkv[0] += 1
        LW, LX = FR + 4, FR + 5
        nroll = [NQ // 3]
        def lroll(n):
            n = min(n, 9 - nroll[0])
            if n <= 0 or OPT["roll"] != 2: return
            a = nroll[0]; nroll[0] += n
            if n < 8:
                m = (1 << (8 * n)) - 1
                A.salu(f"s_mov_b32 exec_lo, {m & 0xffffffff}")
                A.salu(f"s_mov_b32 exec_hi, {m >> 32}")
            A.salu(f"s_add_u32 s3, s8, {a * 64 * 8192}")
            A.vmem(f"buffer_load_dword v{FR+6}, v{LW}, s[{SW_}:{SW_+3}], s3 offen{NTT}", w={FR + 6}, r={LW})
            A.vmem(f"buffer_load_dword v{FR+7}, v{LX}, s[{SX}:{SX+3}], s9 offen offset:{a * 128}{NTT}", w={FR + 7}, r={LX})
            if n < 8: A.salu("s_mov_b64 exec, -1")
        refill(-1)
        for _ in range(OPT["kv0"]): kv_issue()
        if not OPT["roll"]: flood()
        if OPT["roll"] == 2:
            V(f"v_bfe_u32 v{T1}, v{L}, 2, 1", w={T1}, r={L})
            A.salu(f"s_lshl_b32 s3, s{sW3}, 1")
            V(f"v_add_u32 v{T1}, s3, v{T1}", w={T1}, r={T1})
            V(f"v_lshrrev_b32 v{T3}, 3, v{L}", w={T3}, r={L})
            V(f"v_lshl_add_u32 v{T1}, v{T3}, 6, v{T1}", w={T1}, r={T3, T1})
            V(f"v_lshlrev_b32 v{T1}, 13, v{T1}", w={T1}, r={T1})
            V(f"v_and_b32 v{T2}, 3, v{L}", w={T2}, r={L})
            V(f"v_lshl_add_u32 v{LW}, v{T2}, 7, v{T1}", w={LW}, r={T2, T1})
            V(f"v_and_b32 v{T1}, 7, v{L}", w={T1}, r={L})
            V(f"v_min_u32 v{T1}, 6, v{T1}", w={T1}, r={T1})
            A.salu(f"s_mul_i32 s3, s{sW3}, 7")
            V(f"v_add_u32 v{T1}, s3, v{T1}", w={T1}, r={T1})
            V(f"v_mul_u32_u24 v{T1}, 1152, v{T1}", w={T1}, r={T1})
            V(f"v_lshl_add_u32 v{LX}, v{T3}, 7, v{T1}", w={LX}, r={T3, T1})
            A.salu(f"s_lshl_b32 s8, s{sB}, 16")
            A.salu(f"s_add_u32 s8, s8, s{sWB}")
            A.salu(f"s_and_b32 s9, s{sKVH}, 3")
            A.salu(f"s_mul_i32 s9, s9, {28*1152}")
            A.salu(f"s_add_u32 s9, s9, s{sXB}")
            lroll(OPT["pflead"] - nroll[0])
        for s in range(9):
            A.wait_vm(max(unit_last_vm[u] for u in stage_units[s]))
            A.barrier()
            PF.stamp(f"q{s}")
            if s > 0:
                for u in stage_units[s - 1]: free.append(unit_slot[u])
            refill(s)
            lroll(OPT["pfrate"])
            if s == 8:
                xch.append(free.pop(0)); xch.append(free.pop(0))
            elif s >= OPT["kvs"]:
                for _ in range(OPT["kvrate"]): kv_issue()
            if nq[0] == 27 and nkv[0] >= NL:
                while free:
                    issue_unit_4(27 + nkv[0]); nkv[0] += 1
        A.salu("s_branch K1_ATT")
        ldr_vm = (A.nvm, A.vm_done)
    else:
        A.salu(f"s_cmp_ge_u32 s{sW}, 6")
        A.salu("s_cbranch_scc1 K1_KVL")
        pf0 = PF.n
        kvslots = [free.pop() for _ in range(NSLOT - NQ)]
        def refill(s):
            done_q = 3 * max(s, 0)
            while nq[0] < 27 and nq[0] - done_q < NQ and free:
                issue_unit_q(nq[0]); nq[0] += 1
        refill(-1)
        for s in range(9):
            A.wait_vm(max(unit_last_vm[u] for u in stage_units[s]))
            A.barrier()
            PF.stamp(f"q{s}")
            if s > 0:
                for u in stage_units[s - 1]: free.append(unit_slot[u])
            refill(s)
            if s == 8:
                xch.append(free.pop(0)); xch.append(free.pop(0))
        A.waitcnt(vm=0)
        A.vm_done = A.nvm
        A.salu("s_branch K1_ATT")
        A.label("K1_KVL")
        A.win = []
        A.salu("s_nop 4")
        PF.n = pf0; PF.names = PF.names[:pf0]
        for q in range(2):
            V(f"v_subrev_u32 v{KQ+q}, {6*8*256}, v{KO+q}", w={KQ + q}, r={KO + q})
        V(f"v_lshlrev_b32 v{DV}, 4, v{L}", w={DV}, r={L})
        V(f"v_add_u32 v{DV}, s{sWL4}, v{DV}", w={DV}, r={DV})
        late_free = free[:]; free[:] = kvslots
        NL = len(kvslots)
        TV = FR + 4
        V(f"v_lshlrev_b32 v{TV}, 7, v{L}", w={TV}, r={L})
        A.salu(f"s_lshl_b32 s3, s{sW3}, 13")
        V(f"v_add_u32 v{TV}, s3, v{TV}", w={TV}, r={TV})
        NT = OPT["kvt"]
        ntouch = [0]
        def kv_issue():
            i = nkv[0]
            if i < NL: issue_unit_q(27 + i)
            elif i < NL + NSTG: issue_unit_q(27 + i, STG[i - NL])
            else:
                if ntouch[0] < NT:
                    u = 27 + NL + NSTG + ntouch[0]
                    base, const, sr_, vo, delta, nto = unit_info(u)
                    A.salu(f"s_add_u32 s{sT}, s{base}, {const}")
                    A.vmem(f"buffer_load_dword v{TV+1}, v{TV}, s[{sr_}:{sr_+3}], s{sT} offen", w={TV + 1}, r={TV})
                    ntouch[0] += 1
                return
            nkv[0] += 1
        for _ in range(OPT["kv0"]): kv_issue()
        for s in range(9):
            A.barrier()
            PF.stamp(f"q{s}")
            for _ in range(OPT["kvrate"]): kv_issue()
        assert nkv[0] == NL + NSTG
        free[:] = late_free
        staged = [(27 + NL + i, STG[i]) for i in range(NSTG)]
        while staged and free:
            u, r_ = staged.pop(0)
            A.wait_vm(unit_last_vm[u])
            dump_unit(u, r_)
        A.waitcnt(vm=0)
        A.vm_done = A.nvm
        A.wait_ds_all()
        A.salu("s_branch K1_ATT")
    A.label("K1_FAT")
    A.win = []
    A.salu("s_nop 4")
    PF.n = pf0; PF.names = PF.names[:pf0]
    TW, TX = XO, XO + 1
    if OPT["roll"] == 2:
        pass
    elif OPT["ld4"] and not OPT["roll"]:
        V(f"v_lshlrev_b32 v{TW}, 7, v{L}", w={TW}, r={L})
        A.salu(f"s_lshl_b32 s3, s{sW}, 13")
        V(f"v_add_u32 v{TW}, s3, v{TW}", w={TW}, r={TW})
    else:
        TW, TX = XO, XO + 1
        V(f"v_bfe_u32 v{T1}, v{L}, 2, 1", w={T1}, r={L})
        A.salu(f"s_lshl_b32 s3, s{sW}, 1")
        V(f"v_add_u32 v{T1}, s3, v{T1}", w={T1}, r={T1})
        V(f"v_lshlrev_b32 v{T1}, 13, v{T1}", w={T1}, r={T1})
        V(f"v_and_b32 v{T2}, 3, v{L}", w={T2}, r={L})
        V(f"v_lshl_add_u32 v{TW}, v{T2}, 7, v{T1}", w={TW}, r={T2, T1})
        V(f"v_and_b32 v{T1}, 7, v{L}", w={T1}, r={L})
        V(f"v_min_u32 v{T1}, 6, v{T1}", w={T1}, r={T1})
        A.salu(f"s_mul_i32 s3, s{sW}, 7")
        V(f"v_add_u32 v{T1}, s3, v{T1}", w={T1}, r={T1})
        V(f"v_mul_u32_u24 v{TX}, 1152, v{T1}", w={TX}, r={T1})
        A.salu(f"s_lshl_b32 s8, s{sB}, 16")
        A.salu(f"s_add_u32 s8, s8, s{sWB}")
        A.salu(f"s_and_b32 s9, s{sKVH}, 3")
        A.salu(f"s_mul_i32 s9, s9, {28*1152}")
        A.salu(f"s_add_u32 s9, s9, s{sXB}")
    def touch(s_):
        if not OPT["l2pf"] or s_ > 8: return
        A.salu(f"s_add_u32 s3, s8, {s_ * 64 * 8192}")
        A.vmem(f"buffer_load_dword v{T4}, v{TW}, s[{SW_}:{SW_+3}], s3 offen{NTT}", w={T4}, r={TW})
        A.vmem(f"buffer_load_dword v{T5}, v{TX}, s[{SX}:{SX+3}], s9 offen offset:{s_ * 128}{NTT}", w={T5}, r={TX})
    if OPT["roll"] == 2:
        touch = lambda s_: None
    elif OPT["roll"]:
        touch1 = touch
        nroll = [2]
        def roll(n):
            for _ in range(n):
                touch1(nroll[0]); nroll[0] += 1
        roll(OPT["pflead"] - 2)
        touch = lambda s_: roll(OPT["pfrate"])
    elif OPT["ld4"]:
        flood()
        ntouch = [0]
        def touch(s_):
            s_ -= OPT["pflead"]
            if s_ < OPT["kvt0"]: return
            for _ in range(OPT["kvtr"]):
                if ntouch[0] >= OPT["kvt"]: return
                ua = 27 + NL + 1 + ntouch[0]
                ia = unit_info(ua); ib = unit_info(ua + 1)
                A.salu(f"s_cmp_lt_u32 s{sW}, 2")
                A.salu(f"s_mov_b32 s3, {ib[1] - 16384}")
                A.salu(f"s_cselect_b32 s3, {ia[1]}, s3")
                A.salu(f"s_cselect_b32 s60, s{ia[2]}, s{ib[2]}")
                A.salu(f"s_cselect_b32 s61, s{ia[2]+1}, s{ib[2]+1}")
                A.salu(f"s_mov_b32 s62, s{ia[2]+2}")
                A.salu(f"s_mov_b32 s63, s{ia[2]+3}")
                A.salu(f"s_add_u32 s3, s3, s{sKVB}")
                A.vmem(f"buffer_load_dword v{T4}, v{TW}, s[60:63], s3 offen", w={T4}, r={TW})
                ntouch[0] += 2
    if not OPT["ld4"]:
        for s_ in range(2, OPT["pflead"]): touch(s_)
    if OPT["tlbw"]:
        A.salu("s_load_dwordx2 s[16:17], s[0:1], 32")
        A.salu("s_load_dwordx2 s[18:19], s[0:1], 72")
        A.salu("s_load_dwordx2 s[20:21], s[0:1], 80")
        D = NEGM
        V(f"v_lshlrev_b32 v{T1}, 12, v{L}", w={T1}, r={L})
        V(f"v_and_b32 v{T1}, 0x1ffff, v{T1}", w={T1}, r={T1})
        A.vmem(f"buffer_load_dword v{D}, v{T1}, s[{SV}:{SV+3}], s{sKVB} offen", w={D}, r={T1})
        if OPT["tlbw"] > 1:
            A.vmem(f"buffer_load_dword v{D+1}, v{T1}, s[{SK}:{SK+3}], s{sKVB} offen", w={D + 1}, r={T1})
        V(f"v_min_u32 v{T2}, 6, v{L}", w={T2}, r={L})
        V(f"v_lshlrev_b32 v{T2}, 17, v{T2}", w={T2}, r={T2})
        A.salu(f"s_mul_i32 s3, s{sBLK}, {O_BLK}")
        A.salu(f"s_mul_i32 s{sT}, s{sB}, {7*131072}")
        A.salu(f"s_add_u32 s3, s3, s{sT}")
        if OPT["fuse"]:
            A.salu(f"s_lshl_b32 s{sT}, s{sKVH}, 13")
            A.salu(f"s_add_u32 s3, s3, s{sT}")
            A.vmem(f"buffer_store_dword v{T2}, v{T2}, s[{SO}:{SO+3}], s3 offen sc1", r={T2}, storedata={T2})
        else:
            A.vmem(f"buffer_load_dword v{D+2}, v{T2}, s[{SO}:{SO+3}], s3 offen", w={D + 2}, r={T2})
        V(f"v_lshlrev_b32 v{T3}, 16, v{L}", w={T3}, r={L})
        A.salu("s_waitcnt lgkmcnt(0)")
        A.salu(f"s_cmp_eq_u32 s{sBLK}, 0")
        A.salu("s_cselect_b32 s60, s16, s18")
        A.salu("s_cselect_b32 s61, s17, s19")
        A.salu("s_and_b32 s61, s61, 0xffff")
        A.salu(f"s_mov_b32 s62, {4096*576*2}")
        A.salu("s_mov_b32 s63, 0x00020000")
        A.salu(f"s_mov_b32 s3, {8*65536}")
        A.vmem(f"buffer_load_dword v{D+3}, v{T3}, s[60:63], 0 offen", w={D + 3}, r={T3})
        A.vmem(f"buffer_load_dword v{D+4}, v{T3}, s[60:63], s3 offen", w={D + 4}, r={T3})
        A.salu("s_mov_b32 s16, s20")
        A.salu("s_and_b32 s17, s21, 0xffff")
        A.salu(f"s_mov_b32 s18, {896*1152*2}")
        A.salu("s_mov_b32 s19, 0x00020000")
        A.vmem(f"buffer_load_dword v{D+5}, v{T3}, s[16:19], 0 offen", w={D + 5}, r={T3})
    QA = [S, O]
    FBW = [P, QB]; FBX = [P + 16, QB + 16]
    AW = [FR, FR + 4]; AX = FR + 8
    def qaddr(s):
        u0 = 3 * s
        return (addr_items([AX + i for i in range(4)], BX, unit_slot[u0], [0, 32, 64, 96]) +
                addr_items([AW[0] + i for i in range(4)], BW, unit_slot[u0 + 1], [0, 64, 128, 192]) +
                addr_items([AW[1] + i for i in range(4)], BW, unit_slot[u0 + 2], [0, 64, 128, 192]))
    def qread_items(ks):
        it = [lambda: A.ds_read_b128(FBX[ks % 2], AX + ks), lambda: A.ds_read_b128(FBX[ks % 2] + 4, AX + ks, 4096)]
        for t in range(4):
            for j in range(2):
                it.append(lambda t=t, j=j: A.ds_read_tr(FBW[ks % 2] + 4 * t + 2 * j, AW[ks // 2] + t, ((ks % 2) * 16 + 4 * j) * 512))
        return it
    def qreads(ks):
        for it in qread_items(ks): last = it()
        return last
    for it in qaddr(0): it()
    A.barrier()
    PF.stamp("q0")
    pend = qreads(0)
    touch(OPT["pflead"])
    QI = OPT["qi"]
    for s in range(9):
        for ks in range(4):
            A.wait_ds(pend)
            rq = []
            if ks < 3:
                if QI: rq = qread_items(ks + 1)
                else: pend = qreads(ks + 1)
            nxt = qaddr(s + 1) if (ks == 3 and s < 8) else []
            m = 0
            for t in range(4):
                for r2 in range(2):
                    A.mfma(QA[r2] + 16 * t, FBW[ks % 2] + 4 * t, FBX[ks % 2] + 4 * r2, "zero" if (s == 0 and ks == 0) else None)
                    if nxt:
                        if m < 2:
                            for it in nxt[6 * m: 6 * m + 6]: it()
                        if m == 1:
                            A.barrier()
                            PF.stamp(f"q{s+1}")
                            if QI: rq = qread_items(0)
                            else: pend = qreads(0)
                        if m == 3: touch(s + 1 + OPT["pflead"])
                    for _ in range(QI):
                        if rq: pend = rq.pop(0)()
                    m += 1
            assert not rq
    A.salu(f"s_lshr_b32 s3, s{sW}, 1")
    A.salu(f"s_cmp_eq_u32 s3, 0")
    A.salu(f"s_cselect_b32 s3, {xch[0]}, {xch[1]}")
    A.salu(f"s_lshl_b32 s3, s3, 14")
    A.salu(f"s_and_b32 s{sT}, s{sW}, 1")
    A.salu(f"s_lshl_b32 s{sT}, s{sT}, 13")
    A.salu(f"s_add_u32 s3, s3, s{sT}")
    V(f"v_lshlrev_b32 v{T6}, 4, v{L}", w={T6}, r={L})
    V(f"v_add_u32 v{T6}, s3, v{T6}", w={T6}, r={T6})
    for i in range(64):
        V(f"v_mul_f32 v{O+i}, s{sC}, v{O+i}", w={O + i}, r={O + i})
    for q in range(32):
        V(f"v_cvt_pk_bf16_f32 v{P+q}, v{O+2*q}, v{O+2*q+1}", w={P + q}, r={O + 2 * q, O + 2 * q + 1})
        if q % 4 == 3:
            A.ds_write_b128(T6, P + q - 3, (q // 4) * 1024)
    for i in range(64):
        V(f"v_mul_f32 v{S+i}, s{sC}, v{S+i}", w={S + i}, r={S + i})
    for q in range(32):
        V(f"v_cvt_pk_bf16_f32 v{QB+q}, v{S+2*q}, v{S+2*q+1}", w={QB + q}, r={S + 2 * q, S + 2 * q + 1})
    A.wait_ds_all()
    A.waitcnt(vm=0)
    A.vm_done = A.nvm
    if OPT["ld4"]:
        A.nvm, A.vm_done = ldr_vm
    A.label("K1_ATT")
    A.win = []
    A.salu("s_nop 4")
    if OPT["stag"]:
        A.salu(f"s_lshr_b32 s{sT2}, s{sW}, {OPT['stag'] - 1}")

    SETA = [AD + i for i in range(8)]
    SETB = [XO, XO + 1, WO, WO + 1, BW, BX, T4, T5]
    kx = [32 * ks for ks in range(8)]
    vx = [(t << 6) ^ (32 * jj) for t in range(4) for jj in range(2)]
    SB = lambda h: S + 32 * (h % 2)
    PB = lambda h: P + 16 * (h % 2)
    phases = [("qk", 0)] + [x for h in range(7) for x in (("qk", h + 1), ("pv", h))] + [("pv", 7)]
    pset = {}
    for ph in phases:
        pset[ph] = SETA if ph[0] == "qk" else SETB
    pset[("qk", 0)] = SETB; pset[("pv", 7)] = SETA
    punit = lambda ph: UK[ph[1]] if ph[0] == "qk" else UV[ph[1]]
    def paddr(ph):
        u = punit(ph)
        return addr_items(pset[ph], BK if ph[0] == "qk" else BV, unit_slot[u], kx if ph[0] == "qk" else vx)
    mf = [(ph, i) for ph in phases for i in range(16)]
    syncJ = list(range(0, 6, OPT["bstep"]))
    if OPT["fuse"]:
        syncJ.append(6)
        K2 = K2Fused(A, sW, SO, QB)
    sync_pos = [phases.index(("pv", j)) * 16 + 12 for j in syncJ]
    first_read = {}
    for n, (ph, i) in enumerate(mf):
        first_read.setdefault(punit(ph), max(n - 4, -1))
    last_read = {}
    for n, (ph, i) in enumerate(mf):
        last_read[punit(ph)] = n - 4
    def publish_set(pos_from, pos_to):
        return [u for u, fr in first_read.items() if pos_from <= fr < pos_to]
    freed = set()
    dmaq = []
    def refill_att():
        while nkv[0] < 16 and free:
            dmaq.extend(dma_items(27 + nkv[0])); nkv[0] += 1

    pub = publish_set(-1, sync_pos[0])
    A.wait_vm(max(unit_last_vm[u] for u in pub))
    A.barrier()
    PF.stamp("a0")
    for u in stage_units[8]: free.append(unit_slot[u])
    A.salu(f"s_cmp_lt_u32 s{sW}, 4")
    A.salu(f"s_cbranch_scc1 K1_QGOT")
    if staged:
        A.salu(f"s_cmp_lt_u32 s{sW}, 6")
        A.salu(f"s_cbranch_scc1 K1_NODUMP")
        while staged:
            u, r_ = staged.pop(0)
            dump_unit(u, r_)
        A.label("K1_NODUMP")
    refill_att()
    A.salu(f"s_bfe_u32 s3, s{sW}, 0x10001")
    A.salu(f"s_cmp_eq_u32 s3, 0")
    A.salu(f"s_cselect_b32 s3, {xch[0]}, {xch[1]}")
    A.salu(f"s_lshl_b32 s3, s3, 14")
    A.salu(f"s_and_b32 s{sT}, s{sW}, 1")
    A.salu(f"s_lshl_b32 s{sT}, s{sT}, 13")
    A.salu(f"s_add_u32 s3, s3, s{sT}")
    V(f"v_lshlrev_b32 v{T6}, 4, v{L}", w={T6}, r={L})
    V(f"v_add_u32 v{T6}, s3, v{T6}", w={T6}, r={T6})
    for q in range(8):
        A.ds_read_b128(QB + 4 * q, T6, q * 1024)
    A.wait_ds_all()
    A.label("K1_QGOT")
    A.salu("s_nop 1")
    for it in paddr(("qk", 0)) + paddr(("qk", 1)): it()

    TT = [T0, T1, T2, T3]
    def max_items(regs, first, final):
        it = []
        r = list(regs)
        if first:
            a = r[:3]; b = r[3:6]; r = r[6:]
            it.append(lambda a=a: V(f"v_max3_f32 v{MX}, v{a[0]}, v{a[1]}, v{a[2]}", w={MX}, r=set(a)))
            it.append(lambda b=b: V(f"v_max3_f32 v{MX2}, v{b[0]}, v{b[1]}, v{b[2]}", w={MX2}, r=set(b)))
        k = 0
        while r:
            a = r[:2]; r = r[2:]
            d = MX if k % 2 == 0 else MX2
            it.append(lambda a=a, d=d: V(f"v_max3_f32 v{d}, v{d}, v{a[0]}, v{a[1]}", w={d}, r={d} | set(a)))
            k += 1
        if final:
            it.append(lambda: V(f"v_max_f32 v{MX}, v{MX}, v{MX2}", w={MX}, r={MX, MX2}))
            it.append(lambda: V(f"v_mov_b32 v{MX2}, v{MX}", w={MX2}, r={MX}))
            it.append(lambda: V(f"v_permlane32_swap_b32 v{MX}, v{MX2}", w={MX, MX2}, r={MX, MX2}, kind="perm"))
            it.append(lambda: V(f"v_max_f32 v{MX}, v{MX}, v{MX2}", w={MX}, r={MX, MX2}))
        return it
    def sm_items(h, lo, hi, sub):
        it = []
        sb, pb = SB(h), PB(h)
        if sub:
            it.append(lambda: V(f"v_sub_f32 v{sb+lo}, v{sb+lo}, v{MX}", w={sb + lo}, r={sb + lo, MX}))
        for e in range(lo, hi + 2):
            if sub and e + 1 < hi:
                it.append(lambda e=e: V(f"v_sub_f32 v{sb+e+1}, v{sb+e+1}, v{MX}", w={sb + e + 1}, r={sb + e + 1, MX}))
            if e < hi:
                it.append(lambda e=e: V(f"v_exp_f32 v{TT[e%4]}, v{sb+e}", w={TT[e % 4]}, r={sb + e}, kind="trans"))
            if lo <= e - 1 < hi:
                p = e - 1; acc = SUMA if p % 2 == 0 else SUMB
                if p < 2:
                    it.append(lambda p=p, acc=acc: V(f"v_mov_b32 v{acc}, v{TT[p%4]}", w={acc}, r={TT[p % 4]}))
                else:
                    it.append(lambda p=p, acc=acc: V(f"v_add_f32 v{acc}, v{acc}, v{TT[p%4]}", w={acc}, r={acc, TT[p % 4]}))
            if e - 2 >= lo and (e - 2) % 2 == 0 and e - 1 < hi:
                p = e - 2
                it.append(lambda p=p: V(f"v_cvt_pk_bf16_f32 v{pb+p//2}, v{TT[p%4]}, v{TT[(p+1)%4]}", w={pb + p // 2}, r={TT[p % 4], TT[(p + 1) % 4]}))
        return it
    def negm_items():
        return [lambda i=i: V(f"v_sub_f32 v{NEGM+i}, 0, v{MX}", w={NEGM + i}, r={MX}) for i in range(16)]
    def check(h):
        V(f"v_add_f32 v{SUMA}, v{SUMA}, v{SUMB}", w={SUMA}, r={SUMA, SUMB})
        if h > 0:
            V(f"v_cmp_nge_f32 vcc, s{sTHR}, v{SUMA}", r={SUMA}, sw={"vcc"})
            A.salu("s_nop 1")
            A.salu(f"s_cbranch_vccnz K1_SLOW{h}")
            A.label(f"K1_BACK{h}")
        V(f"v_add_f32 v{LSUM}, v{LSUM}, v{SUMA}", w={LSUM}, r={LSUM, SUMA})

    def side_for(ph):
        kind, h = ph
        if ph == ("qk", 0):
            return [], []
        if kind == "qk":
            hh = h - 1
            if hh == 0:
                main = max_items([SB(0) + i for i in range(32)], True, True) + sm_items(0, 0, 32, True)
            else:
                main = sm_items(hh, 16, 32, hh == 1)
            return main, paddr(("pv", hh))
        if h == 7: return [], []
        if h == 6:
            return sm_items(7, 0, 32, False), paddr(("pv", 7)) + (K2.addr_items() if OPT["fuse"] else [])
        main = sm_items(h + 1, 0, 16, h == 0)
        if h == 0: main = negm_items() + main
        return main, paddr(("qk", h + 2))

    rid = {}
    def issue_read(n):
        ph, i = mf[n]
        st = pset[ph]; fr = FR + 4 * (n % 4)
        if ph[0] == "qk":
            rid[n] = A.ds_read_b128(fr, st[i % 8], (i // 8) * 8192)
        else:
            g, t = i // 4, i % 4
            A.ds_read_tr(fr, st[2 * t], g * 4096)
            rid[n] = A.ds_read_tr(fr + 2, st[2 * t + 1], g * 4096 + 2048)
    for n in range(4): issue_read(n)
    gap = 0
    for n, (ph, i) in enumerate(mf):
        kind, h = ph
        if i == 0:
            main, adr = side_for(ph)
            plan = [[] for _ in range(16)]
            for k, it in enumerate(adr): plan[k * 12 // max(len(adr), 1)].append(it)
            s0 = 1 if ph == ("qk", 1) else 0
            for k, it in enumerate(main): plan[s0 + k * (16 - s0) // len(main)].append(it)
        A.wait_ds(rid[n])
        fr = FR + 4 * (n % 4)
        if kind == "qk":
            kt, ks = i // 8, i % 8
            c = None
            if ks == 0: c = "zero" if h <= 1 else NEGM
            A.mfma(SB(h) + 16 * kt, fr, QB + 4 * ks, c)
        else:
            g, t = i // 4, i % 4
            A.mfma(O + 16 * t, fr, PB(h) + 4 * g, "zero" if (h == 0 and g == 0) else None)
        if n in sync_pos:
            k = sync_pos.index(n)
            pub = publish_set(n, sync_pos[k + 1] if k + 1 < len(sync_pos) else 10**9)
            while dmaq: dmaq.pop(0)()
            A.wait_ds_all()
            A.wait_vm(max(unit_last_vm[u] for u in pub))
            A.barrier()
            PF.stamp(f"x{h}")
            if k == 0: free.extend(xch)
            for u, lr in last_read.items():
                if lr < n and u not in freed:
                    freed.add(u); free.append(unit_slot[u])
            refill_att()
            if OPT["fuse"]:
                if h == 4: K2.loads()
                if h == 5: K2.scalars()
                if h == 6:
                    assert len(free) >= 8, free
                    its = K2.wo_items(free[:8])
                    K2.mslot = free[8]
                    if OPT["fuse"] < 3: dmaq.extend(its)
            if OPT["wopf"] and h == OPT["wopf"] - 1:
                A.salu("s_load_dwordx2 s[60:61], s[0:1], 32")
                A.salu("s_load_dwordx2 s[62:63], s[0:1], 72")
                if OPT["xm"]:
                    A.salu(f"s_lshr_b32 s3, s2, 3")
                    A.salu(f"s_lshl_b32 s3, s3, 3")
                    A.salu(f"s_add_u32 s3, s3, s{sW}")
                    A.salu(f"s_mul_i32 s3, s3, {16*1152}")
                    A.salu(f"s_and_b32 s{sT}, s2, 1")
                    A.salu(f"s_lshl_b32 s{sT}, s{sT}, 9")
                    A.salu(f"s_add_u32 s3, s3, s{sT}")
                    V(f"v_mbcnt_lo_u32_b32 v{T6}, -1, 0", w={T6})
                    V(f"v_mbcnt_hi_u32_b32 v{T6}, -1, v{T6}", w={T6}, r={T6})
                    V(f"v_lshrrev_b32 v{T7}, 2, v{T6}", w={T7}, r={T6})
                    V(f"v_mul_u32_u24 v{T7}, 1152, v{T7}", w={T7}, r={T7})
                    V(f"v_and_b32 v{T6}, 3, v{T6}", w={T6}, r={T6})
                    V(f"v_lshl_add_u32 v{T6}, v{T6}, 7, v{T7}", w={T6}, r={T6, T7})
                else:
                    if OPT["wox"]:
                        A.salu(f"s_lshr_b32 s3, s2, 5")
                        A.salu(f"s_lshl_b32 s3, s3, 4")
                        A.salu(f"s_bfe_u32 s{sT}, s2, 0x20003")
                        A.salu(f"s_add_u32 s3, s3, s{sT}")
                    else:
                        A.salu(f"s_lshl_b32 s3, s{sB}, 4")
                        A.salu(f"s_add_u32 s3, s3, s{sKVH}")
                    A.salu(f"s_mul_i32 s3, s3, 288")
                    A.salu(f"s_lshl_b32 s{sT}, s{sW}, 6")
                    A.salu(f"s_min_u32 s{sT}, s{sT}, 224")
                    A.salu(f"s_add_u32 s3, s3, s{sT}")
                    A.salu(f"s_lshl_b32 s3, s3, 7")
                    V(f"v_mbcnt_lo_u32_b32 v{T6}, -1, 0", w={T6})
                    V(f"v_mbcnt_hi_u32_b32 v{T6}, -1, v{T6}", w={T6}, r={T6})
                    V(f"v_lshlrev_b32 v{T6}, 7, v{T6}", w={T6}, r={T6})
                A.salu("s_waitcnt lgkmcnt(0)")
                A.salu(f"s_cmp_eq_u32 s{sBLK}, 0")
                A.salu("s_cselect_b32 s60, s60, s62")
                A.salu("s_cselect_b32 s61, s61, s63")
                A.salu("s_and_b32 s61, s61, 0xffff")
                A.salu(f"s_mov_b32 s62, {4096*576*2}")
                A.salu("s_mov_b32 s63, 0x00020000")
                if OPT["xm"]:
                    A.salu("s_mov_b32 exec_lo, 0x88888888")
                    A.salu("s_mov_b32 exec_hi, 0x88888888")
                    A.vmem(f"buffer_load_dword v{T7}, v{T6}, s[60:63], s3 offen offset:128", w={T7}, r={T6})
                    A.salu("s_mov_b64 exec, -1")
                A.vmem(f"buffer_load_dword v{T7}, v{T6}, s[60:63], s3 offen", w={T7}, r={T6})
        if n + 4 < len(mf): issue_read(n + 4)
        for it in plan[i]: it()
        gap += 1
        if dmaq and gap >= OPT["dmagap"]:
            dmaq.pop(0)(); gap = 0
        if i == 15:
            if kind == "qk" and h >= 1: check(h - 1)
            if ph == ("pv", 6): check(7)
    assert not dmaq
    PF.stamp("pv7")
    V(f"v_mov_b32 v{T0}, v{LSUM}", w={T0}, r={LSUM})
    V(f"v_permlane32_swap_b32 v{T0}, v{LSUM}", w={T0, LSUM}, r={T0, LSUM}, kind="perm")
    V(f"v_add_f32 v{T0}, v{T0}, v{LSUM}", w={T0}, r={T0, LSUM})
    V(f"v_rcp_f32 v{T0}, v{T0}", w={T0}, r={T0}, kind="trans")
    A.salu(f"s_cmp_eq_u32 s{sRT}, 3")
    A.salu("s_cbranch_scc0 K1_NOMASK")
    A.salu("s_mov_b32 exec_lo, 0xffff")
    A.salu("s_mov_b32 exec_hi, 0xffff")
    A.label("K1_NOMASK")
    for f in range(8):
        b0 = O + 8 * f
        for i in range(8):
            V(f"v_mul_f32 v{b0+i}, v{T0}, v{b0+i}", w={b0 + i}, r={T0, b0 + i})
        d = P + 4 * f
        for q in range(4):
            V(f"v_cvt_pk_bf16_f32 v{d+q}, v{b0+2*q}, v{b0+2*q+1}", w={d + q}, r={b0 + 2 * q, b0 + 2 * q + 1})
        A.vmem(f"buffer_store_dwordx4 {vname(d,4)}, v{OST}, s[{SO}:{SO+3}], s{sOB} offen offset:{f*512}{' sc1' if OPT['fuse'] else ' nt' if OPT['ntst'] else ''}", r=vr(d, 4) | {OST}, storedata=vr(d, 4))
    if OPT["fuse"]:
        K2.body(PF, sBLK, sB, sKVH)
    PF.dump(24, sW, 0)
    A.label("K1_END")
    A.salu("s_endpgm")
    for h in range(1, 8):
        A.label(f"K1_SLOW{h}")
        A.flush_hazards()
        sb = SB(h)
        for it in max_items([sb + i for i in range(32)], True, True): it()
        V(f"v_max_f32 v{MX}, 0, v{MX}", w={MX}, r={MX})
        V(f"v_sub_f32 v{MX2}, 0, v{MX}", w={MX2}, r={MX})
        V(f"v_exp_f32 v{MX2}, v{MX2}", w={MX2}, r={MX2}, kind="trans")
        for i in range(64):
            V(f"v_mul_f32 v{O+i}, v{MX2}, v{O+i}", w={O + i}, r={MX2, O + i})
        V(f"v_mul_f32 v{LSUM}, v{MX2}, v{LSUM}", w={LSUM}, r={MX2, LSUM})
        for i in range(16):
            V(f"v_sub_f32 v{NEGM+i}, v{NEGM+i}, v{MX}", w={NEGM + i}, r={NEGM + i, MX})
        if h < 7:
            s2 = SB(h + 1)
            for i in range(32):
                V(f"v_sub_f32 v{s2+i}, v{s2+i}, v{MX}", w={s2 + i}, r={s2 + i, MX})
        for it in sm_items(h, 0, 32, True): it()
        V(f"v_add_f32 v{SUMA}, v{SUMA}, v{SUMB}", w={SUMA}, r={SUMA, SUMB})
        A.flush_hazards()
        A.salu(f"s_branch K1_BACK{h}")

class K2Fused:
    def __init__(self, A, sW, SO, WOFF):
        self.A = A; self.sW = sW; self.SO = SO; self.WOFF = WOFF
        self.SWO, self.SOUT, self.SDBG = 28, 32, 20
        self.sBLK, self.sTT, self.sMT, self.sNT = 16, 17, 18, 19
        self.sWL, self.sWB, self.sO0, self.sO1, self.sT = 49, 50, 8, 9, 52
        self.sP0, self.sP1 = 10, 11
        self.last_vm = {}
    def loads(self):
        A = self.A
        A.salu("s_load_dwordx2 s[8:9], s[0:1], 32")
        A.salu("s_load_dwordx2 s[10:11], s[0:1], 72")
        A.salu("s_load_dwordx2 s[12:13], s[0:1], 80")
        A.salu("s_load_dwordx2 s[14:15], s[0:1], 88")
    def scalars(self):
        A = self.A; sW = self.sW
        sBLK, sTT, sMT, sNT = self.sBLK, self.sTT, self.sMT, self.sNT
        A.salu("s_waitcnt lgkmcnt(0)")
        if OPT["xm"]:
            A.salu("s_bitcmp1_b32 s2, 2")
            A.salu(f"s_cselect_b32 s{sBLK}, 1, 0")
            A.salu("s_cselect_b32 s8, s10, s8")
            A.salu("s_cselect_b32 s9, s11, s9")
            srd(A, self.SWO, 8, 4096 * 576 * 2)
            srd(A, self.SOUT, 12, 896 * 1152 * 2)
            srd(A, self.SDBG, 14, 256)
            A.salu("s_lshr_b32 s3, s2, 3")
            A.salu("s_and_b32 s12, s2, 1")
            A.salu(f"s_lshr_b32 s{sMT}, s3, 2")
            A.salu(f"s_and_b32 s{sNT}, s3, 3")
            A.salu("s_mul_i32 s13, s12, 5")
            A.salu(f"s_add_u32 s{sNT}, s{sNT}, s13")
            A.salu("s_lshl_b32 s13, s12, 2")
            A.salu("s_add_u32 s13, s13, s3")
            A.salu("s_sub_u32 s13, s13, 28")
            A.salu("s_cmp_ge_u32 s3, 28")
            A.salu(f"s_cselect_b32 s{sMT}, s13, s{sMT}")
            A.salu(f"s_cselect_b32 s{sNT}, 4, s{sNT}")
            A.salu(f"s_cmp_eq_u32 s{sMT}, 7")
            A.salu(f"s_cselect_b32 s{sTT}, 255, 0")
            A.salu(f"s_min_u32 s{sMT}, s{sMT}, 6")
            A.salu("s_bfe_u32 s13, s2, 0x10001")
            A.salu("s_mul_i32 s13, s13, 7")
            A.salu(f"s_add_u32 s{sMT}, s{sMT}, s13")
        else:
            A.salu("s_and_b32 s3, s2, 7")
            A.salu("s_lshl_b32 s3, s3, 5")
            A.salu(f"s_lshr_b32 s{sTT}, s2, 3")
            A.salu(f"s_add_u32 s{sTT}, s3, s{sTT}")
            A.salu(f"s_min_u32 s3, s{sTT}, 251")
            A.salu("s_cmp_ge_u32 s3, 126")
            A.salu(f"s_cselect_b32 s{sBLK}, 1, 0")
            A.salu("s_cselect_b32 s8, s10, s8")
            A.salu("s_cselect_b32 s9, s11, s9")
            srd(A, self.SWO, 8, 4096 * 576 * 2)
            srd(A, self.SOUT, 12, 896 * 1152 * 2)
            srd(A, self.SDBG, 14, 256)
            A.salu(f"s_mul_i32 s12, s{sBLK}, 126")
            A.salu("s_sub_u32 s3, s3, s12")
            A.salu("s_mul_i32 s12, s3, 57")
            A.salu(f"s_lshr_b32 s{sMT}, s12, 9")
            A.salu(f"s_mul_i32 s12, s{sMT}, 9")
            A.salu(f"s_sub_u32 s{sNT}, s3, s12")
        A.salu(f"s_mul_i32 s{self.sWB}, s{sW}, {(32 if OPT['fuse'] == 5 else 512)*1152}")
        A.salu(f"s_lshl_b32 s12, s{sNT}, 7")
        A.salu(f"s_add_u32 s{self.sWB}, s{self.sWB}, s12")
        A.salu(f"s_mul_i32 s{self.sO0}, s{sBLK}, {O_BLK}")
        A.salu(f"s_lshl_b32 s12, s{sMT}, 19")
        A.salu(f"s_add_u32 s{self.sO0}, s{self.sO0}, s12")
        A.salu(f"s_lshl_b32 s12, s{sW}, {10 if OPT['fuse'] == 5 else 14}")
        A.salu(f"s_add_u32 s{self.sO0}, s{self.sO0}, s12")
        A.salu(f"s_add_u32 s{self.sO1}, s{self.sO0}, {2*131072}")
        A.salu(f"s_lshl_b32 s12, s{sBLK}, 7")
        A.salu(f"s_lshr_b32 s13, s{sW}, 1")
        A.salu("s_lshl_b32 s13, s13, 2")
        A.salu("s_add_u32 s12, s12, s13")
        A.salu(f"s_mul_i32 s13, s{sMT}, 148")
        A.salu(f"s_lshr_b32 s{self.sP0}, s13, 8")
        A.salu(f"s_lshl_b32 s{self.sP0}, s{self.sP0}, 4")
        A.salu(f"s_add_u32 s{self.sP0}, s{self.sP0}, s12")
        A.salu("s_add_u32 s13, s13, 111")
        A.salu(f"s_lshr_b32 s{self.sP1}, s13, 8")
        A.salu(f"s_lshl_b32 s{self.sP1}, s{self.sP1}, 4")
        A.salu(f"s_add_u32 s{self.sP1}, s{self.sP1}, s12")
    def addr_items(self):
        V = self.A.valu; W = self.WOFF
        L, T1, T2, T4 = W + 4, W + 5, W + 6, W + 7
        return [
            lambda: V(f"v_mbcnt_lo_u32_b32 v{L}, -1, 0", w={L}),
            lambda: V(f"v_mbcnt_hi_u32_b32 v{L}, -1, v{L}", w={L}, r={L}),
            lambda: V(f"v_lshrrev_b32 v{T1}, 3, v{L}", w={T1}, r={L}),
            lambda: V(f"v_mul_u32_u24 v{T1}, 1152, v{T1}", w={T1}, r={T1}),
            lambda: V(f"v_bfe_u32 v{T2}, v{L}, 4, 1", w={T2}, r={L}),
            lambda: V(f"v_lshlrev_b32 v{T2}, 2, v{T2}", w={T2}, r={T2}),
            lambda: V(f"v_and_b32 v{T4}, 7, v{L}", w={T4}, r={L}),
            lambda: V(f"v_xor_b32 v{T4}, v{T4}, v{T2}", w={T4}, r={T4, T2}),
            lambda: V(f"v_lshl_add_u32 v{W}, v{T4}, 4, v{T1}", w={W}, r={T4, T1}),
        ] + [lambda i=i: V(f"v_add_u32 v{W+i}, {9216*i}, v{W}", w={W + i}, r={W}) for i in range(1, 4)]
    def wo_piece(self, u, i):
        A = self.A; W = self.WOFF; S = self.SWO
        A.salu(f"s_add_u32 s{self.sT}, s{self.sWB}, {u * 32 * 1152}")
        A.salu(f"s_add_u32 m0, s{self.sWL}, {(u % 4) * 4096 + i * 1024}", m0w=True)
        A.vmem(f"buffer_load_dwordx4 v{W+i}, s[{S}:{S+3}], s{self.sT} offen{' nt' if OPT['ntwo'] else ''} lds", kind="dma", r={W + i}, m0r=True)
    def wo_items(self, slots):
        A = self.A
        tab = sum(s << (4 * w) for w, s in enumerate(slots))
        A.salu(f"s_lshl_b32 s3, s{self.sW}, 2")
        A.salu(f"s_lshr_b32 s3, {tab:#x}, s3")
        A.salu("s_and_b32 s3, s3, 15")
        A.salu(f"s_lshl_b32 s{self.sWL}, s3, 14")
        return [lambda u=u, i=i: self.wo_piece(u, i) for u in range(4) for i in range(4)]
    def dyn(self, PF, L, OOFF, BA, AF, OF, ACC):
        A = self.A; V = A.valu; sW = self.sW; SO = self.SO; SDBG = self.SDBG; W = self.WOFF; S = self.SWO
        T1, T2, T3, T4 = 1, 2, 3, 4
        PD = 8
        vPA, vMA, vT, vM = W + 4, W + 5, W + 6, W + 7
        sPM, sCNT, sDONE, sJ, sA, sB_ = 60, 62, 63, 12, 13, 14
        V(f"v_mov_b32 v{vPA}, s{self.sP1}", w={vPA})
        V(f"v_mov_b32 v{T4}, s{self.sP0}", w={T4})
        V(f"v_cmp_gt_u32 vcc, 16, v{L}", r={L}, sw={"vcc"})
        V(f"v_cndmask_b32 v{vPA}, v{vPA}, v{T4}, vcc", w={vPA}, r={vPA, T4}, sr={"vcc"})
        V(f"v_and_b32 v{T4}, 15, v{L}", w={T4}, r={L})
        V(f"v_add_u32 v{vPA}, v{T4}, v{vPA}", w={vPA}, r={vPA, T4})
        V(f"v_mov_b32 v{vMA}, {self.mslot * SLOT}", w={vMA})
        V(f"v_mov_b32 v{vT}, 0", w={vT})
        A.ds(f"ds_write_b32 v{vMA}, v{vT}", r={vMA, vT})
        A.salu(f"s_cmp_eq_u32 s{sW}, 0")
        A.salu(f"s_cselect_b32 s{sPM}, -1, 0")
        A.salu(f"s_mov_b32 s{sPM+1}, 0")
        A.salu(f"s_mov_b32 s{sCNT}, 0x40000")
        A.salu(f"s_mov_b32 s{sDONE}, 0")
        A.salu(f"s_mov_b32 s15, 0")
        A.waitcnt(vm=0, lgkm=0); A.vm_done = A.nvm; A.ds_done = A.nds
        PF.stamp("st")
        A.barrier()
        A.salu("s_cbranch_scc0 K1_NOFLAG")
        A.salu("s_mov_b64 exec, 1")
        A.salu(f"buffer_atomic_add v{T2}, v{T1}, s[{SDBG}:{SDBG+3}], 0 offen sc1")
        A.salu("s_mov_b64 exec, -1")
        A.label("K1_NOFLAG")
        A.salu(f"s_cmp_ge_u32 s{self.sTT}, 252")
        A.salu("s_cbranch_scc1 K1_END")
        def poll(r, counted=True):
            A.salu(f"s_mov_b64 exec, s[{sPM}:{sPM+1}]")
            txt = f"buffer_load_ubyte v{PD+r}, v{vPA}, s[{SDBG}:{SDBG+3}], 0 offen sc1"
            if counted: A.vmem(txt, w={PD + r}, r={vPA})
            else: A.salu(txt)
            A.salu("s_mov_b64 exec, -1")
        def consume(r):
            A.salu(f"s_mov_b64 exec, s[{sPM}:{sPM+1}]")
            V(f"v_cmp_ne_u32 vcc, 0, v{PD+r}", r={PD + r}, sw={"vcc"})
            A.salu("s_nop 1")
            A.salu(f"s_lshr_b32 s{sA}, vcc_lo, 16")
            A.salu(f"s_and_b32 s{sA}, s{sA}, vcc_lo")
            A.salu(f"s_or_b32 s15, s15, s{sA}")
            V(f"v_mov_b32 v{vT}, s15", w={vT})
            A.ds(f"ds_write_b32 v{vMA}, v{vT}", r={vMA, vT})
            A.salu("s_mov_b64 exec, -1")
        def pick(k):
            A.label(f"K1_PK{k}")
            A.ds(f"ds_read_b32 v{vM}, v{vMA}", w={vM}, r={vMA})
            A.waitcnt(lgkm=0); A.ds_done = A.nds
            A._emit(I(f"v_readfirstlane_b32 s{sA}, v{vM}", "rdlane", r={vM}, sw={sA}))
            A.salu(f"s_andn2_b32 s{sA}, s{sA}, s{sDONE}", sr={sA})
            A.salu(f"s_cbranch_scc1 K1_PG{k}")
            poll(k % 4, False)
            A.salu("s_waitcnt vmcnt(0)")
            consume(k % 4)
            A.salu(f"s_sleep {OPT['slp']}")
            A.salu(f"s_sub_u32 s{sCNT}, s{sCNT}, 1")
            A.salu(f"s_cmp_lg_u32 s{sCNT}, 0")
            A.salu(f"s_cbranch_scc1 K1_PK{k}")
            A.salu(f"s_mov_b32 s{sCNT}, 1")
            A.salu(f"s_andn2_b32 s{sA}, 0xffff, s{sDONE}")
            A.label(f"K1_PG{k}")
            A.salu(f"s_ff1_i32_b32 s{sJ}, s{sA}")
            A.salu(f"s_bitset1_b32 s{sDONE}, s{sJ}")
        NU = 16; DEPTH = 4
        last_vm = {}
        def issue(u):
            slot = u % DEPTH
            pick(u)
            if self.first: PF.stamp("go"); self.first = False
            if 4 <= u: poll(u % 4)
            A.salu(f"s_mul_i32 s{sA}, s{sJ}, {256*1152}")
            A.salu(f"s_add_u32 s{sA}, s{sA}, s{self.sWB}")
            for i in range(4):
                A.salu(f"s_add_u32 m0, s{self.sWL}, {slot * 4096 + i * 1024}", m0w=True)
                A.vmem(f"buffer_load_dwordx4 v{W+i}, s[{S}:{S+3}], s{sA} offen{' nt' if OPT['ntwo'] else ''} lds", kind="dma", r={W + i}, m0r=True)
            A.salu(f"s_lshl_b32 s{sJ}, s{sJ}, 13")
            A.salu(f"s_add_u32 s{sA}, s{sJ}, s{self.sO0}")
            A.salu(f"s_add_u32 s{sB_}, s{sJ}, s{self.sO1}")
            for ks in range(2):
                for tm in range(2):
                    d = OF + slot * 16 + (ks * 2 + tm) * 4
                    k = A.vmem(f"buffer_load_dwordx4 {vname(d,4)}, v{OOFF}, s[{SO}:{SO+3}], s{sA if tm == 0 else sB_} offen offset:{ks*512} sc1", w=vr(d, 4), r={OOFF})
            last_vm[u] = k
        def dsreads(u):
            slot = u % DEPTH
            ab = AF + (u % 2) * 16
            for ks in range(2):
                for tn in range(2):
                    for j in range(2):
                        k = A.ds_read_tr(ab + (ks * 2 + tn) * 4 + 2 * j, BA + tn, slot * 4096 + (16 * ks + 8 * j) * 128)
            return k
        self.first = True
        for u in range(DEPTH): issue(u)
        A.wait_vm(last_vm[0])
        pend = dsreads(0)
        for u in range(NU):
            A.wait_ds(pend)
            if u + 1 < NU:
                A.wait_vm(last_vm[u + 1])
                if u + 1 >= 4 and u + DEPTH < NU: consume((u + 1) % 4)
                pend = dsreads(u + 1)
            ab = AF + (u % 2) * 16
            ob = OF + (u % DEPTH) * 16
            for ks in range(2):
                for tn in range(2):
                    for tm in range(2):
                        c = "zero" if (u == 0 and ks == 0) else None
                        A.mfma(ACC + (tn * 2 + tm) * 16, ab + (ks * 2 + tn) * 4, ob + (ks * 2 + tm) * 4, c)
            if u + DEPTH < NU: issue(u + DEPTH)
            if u in (0, 7, 15): PF.stamp(f"u{u}")
    def body(self, PF, sBLK1, sB1, sKVH1):
        A = self.A; V = A.valu; sW = self.sW; SO = self.SO
        T0, T1, T2, T3, T4, T5, T6, T7 = 0, 1, 2, 3, 4, 5, 6, 8
        WOFF = self.WOFF; OOFF = 12; BA = 13; RED = 15; AF = 16; OF = 96; ACC = 160
        sBLK, sMT, sNT = self.sBLK, self.sMT, self.sNT
        SOUT, SDBG = self.SOUT, self.SDBG
        sWL, sO0, sO1, sT = self.sWL, self.sO0, self.sO1, self.sT
        L = T0
        A.salu("s_mov_b64 exec, -1")
        V(f"v_mbcnt_lo_u32_b32 v{L}, -1, 0", w={L})
        V(f"v_mbcnt_hi_u32_b32 v{L}, -1, v{L}", w={L}, r={L})
        V(f"v_bfe_u32 v{T2}, v{L}, 4, 1", w={T2}, r={L})
        V(f"v_lshrrev_b32 v{T1}, 5, v{L}", w={T1}, r={L})
        V(f"v_bfe_u32 v{T3}, v{L}, 2, 2", w={T3}, r={L})
        V(f"v_and_b32 v{T4}, 3, v{L}", w={T4}, r={L})
        V(f"v_lshlrev_b32 v{T6}, 17, v{T2}", w={T6}, r={T2})
        V(f"v_lshl_add_u32 v{T6}, v{T1}, 8, v{T6}", w={T6}, r={T1, T6})
        V(f"v_and_b32 v{T7}, 15, v{L}", w={T7}, r={L})
        V(f"v_lshl_add_u32 v{OOFF}, v{T7}, 4, v{T6}", w={OOFF}, r={T7, T6})
        V(f"v_lshl_add_u32 v{T6}, v{T1}, 2, v{T3}", w={T6}, r={T1, T3})
        V(f"v_lshlrev_b32 v{T6}, 7, v{T6}", w={T6}, r={T6})
        V(f"v_lshrrev_b32 v{T7}, 1, v{T4}", w={T7}, r={T4})
        V(f"v_lshl_add_u32 v{T7}, v{T2}, 1, v{T7}", w={T7}, r={T2, T7})
        V(f"v_lshrrev_b32 v{T5}, 1, v{T3}", w={T5}, r={T3})
        V(f"v_lshlrev_b32 v{T5}, 2, v{T5}", w={T5}, r={T5})
        V(f"v_xor_b32 v{T7}, v{T7}, v{T5}", w={T7}, r={T7, T5})
        V(f"v_lshl_add_u32 v{T6}, v{T7}, 4, v{T6}", w={T6}, r={T7, T6})
        V(f"v_and_b32 v{T7}, 1, v{T4}", w={T7}, r={T4})
        V(f"v_lshl_add_u32 v{T6}, v{T7}, 3, v{T6}", w={T6}, r={T7, T6})
        V(f"v_add_u32 v{BA}, s{sWL}, v{T6}", w={BA}, r={T6})
        V(f"v_xor_b32 v{BA+1}, 64, v{BA}", w={BA + 1}, r={BA})
        V(f"v_lshlrev_b32 v{RED}, 4, v{L}", w={RED}, r={L})
        A.salu(f"s_lshl_b32 s12, s{sBLK1}, 7")
        A.salu(f"s_lshl_b32 s13, s{sB1}, 4")
        A.salu("s_add_u32 s12, s12, s13")
        A.salu(f"s_and_b32 s13, s{sKVH1}, 12")
        A.salu("s_add_u32 s12, s12, s13")
        A.salu(f"s_and_b32 s13, s{sKVH1}, 3")
        A.salu("s_lshl_b32 s13, s13, 3")
        A.salu("s_lshl_b32 s13, 1, s13")
        V(f"v_mov_b32 v{T1}, s12", w={T1})
        V(f"v_mov_b32 v{T2}, s13", w={T2})
        if OPT["fuse"] == 5:
            self.dyn(PF, L, OOFF, BA, AF, OF, ACC)
        elif OPT["fuse"] == 1:
            V(f"v_mov_b32 v{T3}, s{self.sP1}", w={T3})
            V(f"v_writelane_b32 v{T3}, s{self.sP0}, 0", w={T3}, r={T3})
            A.salu(f"s_and_b32 s14, s{sW}, 1")
            A.salu("s_lshl_b32 s14, s14, 4")
            A.salu("s_lshl_b32 s14, 0x101, s14")
        else:
            V(f"v_mov_b32 v{T3}, s{self.sP1}", w={T3})
            V(f"v_mov_b32 v{T4}, s{self.sP0}", w={T4})
            V(f"v_cmp_gt_u32 vcc, 4, v{L}", r={L}, sw={"vcc"})
            V(f"v_cndmask_b32 v{T3}, v{T3}, v{T4}, vcc", w={T3}, r={T3, T4}, sr={"vcc"})
            V(f"v_and_b32 v{T4}, 3, v{L}", w={T4}, r={L})
            V(f"v_lshl_add_u32 v{T3}, v{T4}, 2, v{T3}", w={T3}, r={T3, T4})
            A.salu("s_mov_b32 s14, 0x01010101")
        if OPT["fuse"] != 5:
            A.salu("s_mov_b32 s15, 0x40000")
            A.waitcnt(vm=0); A.vm_done = A.nvm
            PF.stamp("st")
            A.barrier()
            A.salu(f"s_cmp_eq_u32 s{sW}, 0")
            A.salu("s_cbranch_scc0 K1_NOFLAG")
            A.salu("s_mov_b64 exec, 1")
            A.salu(f"buffer_atomic_add v{T2}, v{T1}, s[{SDBG}:{SDBG+3}], 0 offen sc1")
            A.label("K1_NOFLAG")
            A.salu(f"s_cmp_ge_u32 s{self.sTT}, 252")
            A.salu("s_cbranch_scc1 K1_END")
            if OPT["fuse"] == 1:
                A.salu("s_mov_b64 exec, 3")
            else:
                A.salu(f"s_cmp_eq_u32 s{sW}, 0")
                A.salu("s_cbranch_scc0 K1_GO" if OPT["fuse"] != 3 else "s_cbranch_scc0 K1_WO")
                A.salu("s_mov_b64 exec, 0xff")
            A.label("K1_POLL")
            A.salu(f"buffer_load_dword v{T4}, v{T3}, s[{SDBG}:{SDBG+3}], 0 offen sc1")
            A.salu("s_waitcnt vmcnt(0)")
            A.salu(f"v_and_b32 v{T4}, s14, v{T4}")
            A.salu(f"v_cmp_ne_u32 vcc, s14, v{T4}")
            A.salu("s_nop 1")
            A.salu("s_cbranch_vccz K1_GO")
            A.salu(f"s_sleep {OPT['slp']}")
            A.salu("s_sub_u32 s15, s15, 1")
            A.salu("s_cmp_lg_u32 s15, 0")
            A.salu("s_cbranch_scc1 K1_POLL")
            A.label("K1_GO")
            A.salu("s_mov_b64 exec, -1")
            if OPT["fuse"] == 3:
                A.barrier()
                A.label("K1_WO")
                for u in range(4):
                    for i in range(4): self.wo_piece(u, i)
                A.salu(f"s_cmp_eq_u32 s{sW}, 0")
                A.salu("s_cbranch_scc1 K1_GO2")
                A.barrier()
                A.label("K1_GO2")
            elif OPT["fuse"] > 1: A.barrier()
            PF.stamp("go")
            NU = 16; DEPTH = 4
            last_vm = {}
            def issue(u, wo=True):
                slot = u % DEPTH
                if wo:
                    for i in range(4): self.wo_piece(u, i)
                for ks in range(2):
                    for tm in range(2):
                        d = OF + slot * 16 + (ks * 2 + tm) * 4
                        off = (2 * u + ks) * 512
                        sb = sO0 if tm == 0 else sO1
                        if off >= 4096:
                            A.salu(f"s_add_u32 s{sT}, s{sb}, {off & ~4095}")
                            sb = sT
                        k = A.vmem(f"buffer_load_dwordx4 {vname(d,4)}, v{OOFF}, s[{SO}:{SO+3}], s{sb} offen offset:{off & 4095} sc1", w=vr(d, 4), r={OOFF})
                last_vm[u] = k
            def dsreads(u):
                slot = u % DEPTH
                ab = AF + (u % 2) * 16
                for ks in range(2):
                    for tn in range(2):
                        for j in range(2):
                            k = A.ds_read_tr(ab + (ks * 2 + tn) * 4 + 2 * j, BA + tn, slot * 4096 + (16 * ks + 8 * j) * 128)
                return k
            for u in range(DEPTH): issue(u, OPT["fuse"] == 4)
            if OPT["fuse"] in (3, 4): A.wait_vm(last_vm[0])
            pend = dsreads(0)
            A.wait_vm(last_vm[0])
            for u in range(NU):
                A.wait_ds(pend)
                if u + 1 < NU:
                    A.wait_vm(last_vm[u + 1])
                    pend = dsreads(u + 1)
                ab = AF + (u % 2) * 16
                ob = OF + (u % DEPTH) * 16
                for ks in range(2):
                    for tn in range(2):
                        for tm in range(2):
                            c = "zero" if (u == 0 and ks == 0) else None
                            A.mfma(ACC + (tn * 2 + tm) * 16, ab + (ks * 2 + tn) * 4, ob + (ks * 2 + tm) * 4, c)
                if u + DEPTH < NU: issue(u + DEPTH)
                if u in (0, 7, 15): PF.stamp(f"u{u}")
        A.wait_ds_all()
        A.barrier()
        A.salu(f"s_lshl_b32 s12, s{sW}, 14")
        V(f"v_add_u32 v{T1}, s12, v{RED}", w={T1}, r={RED})
        for q in range(16):
            A.ds_write_b128(T1, ACC + 4 * q, q * 1024)
        A.wait_ds_all()
        A.barrier()
        A.salu(f"s_lshl_b32 s6, s{sW}, 11")
        V(f"v_add_u32 v{T1}, s6, v{RED}", w={T1}, r={RED})
        V(f"v_add_u32 v{T2}, 0x10000, v{T1}", w={T2}, r={T1})
        R = OF
        for ww in range(8):
            for q in range(2):
                A.ds_read_b128(R + (ww * 2 + q) * 4, T1 if ww < 4 else T2, (ww % 4) * 16384 + q * 1024)
            if ww == 5:
                A.wait_ds_all()
        A.wait_ds_all()
        for ww in range(1, 8):
            for i in range(8):
                V(f"v_add_f32 v{R+i}, v{R+i}, v{R+ww*8+i}", w={R + i}, r={R + i, R + ww * 8 + i})
        for q in range(4):
            V(f"v_cvt_pk_bf16_f32 v{AF+q}, v{R+2*q}, v{R+2*q+1}", w={AF + q}, r={R + 2 * q, R + 2 * q + 1})
        A.salu(f"s_lshr_b32 s6, s{sW}, 1")
        A.salu("s_and_b32 s7, s6, 1")
        A.salu("s_lshr_b32 s6, s6, 1")
        A.salu(f"s_lshl_b32 s3, s{sMT}, 6")
        A.salu("s_lshl_b32 s7, s7, 5")
        A.salu("s_add_u32 s3, s3, s7")
        A.salu("s_mul_i32 s3, s3, 2304")
        A.salu(f"s_mul_i32 s7, s{sBLK}, 1152")
        A.salu("s_add_u32 s3, s3, s7")
        A.salu(f"s_lshl_b32 s7, s{sNT}, 7")
        A.salu("s_add_u32 s3, s3, s7")
        A.salu("s_lshl_b32 s7, s6, 6")
        A.salu("s_add_u32 s3, s3, s7")
        A.salu(f"s_and_b32 s7, s{sW}, 1")
        A.salu("s_lshl_b32 s7, s7, 5")
        A.salu("s_add_u32 s3, s3, s7")
        V(f"v_and_b32 v{T1}, 31, v{L}", w={T1}, r={L})
        V(f"v_mul_u32_u24 v{T1}, 2304, v{T1}", w={T1}, r={T1})
        V(f"v_lshrrev_b32 v{T2}, 5, v{L}", w={T2}, r={L})
        V(f"v_lshl_add_u32 v{T1}, v{T2}, 3, v{T1}", w={T1}, r={T2, T1})
        A.vmem(f"buffer_store_dwordx2 {vname(AF,2)}, v{T1}, s[{SOUT}:{SOUT+3}], s3 offen", r=vr(AF, 2) | {T1})
        A.vmem(f"buffer_store_dwordx2 {vname(AF+2,2)}, v{T1}, s[{SOUT}:{SOUT+3}], s3 offen offset:16", r=vr(AF + 2, 2) | {T1})

def gen_k2(A):
    V = A.valu
    T0, T1, T2, T3, T4, T5, T6, T7 = range(0, 8)
    WOFF = 8
    OOFF = 12
    BA = 13
    RED = 15
    AF = 16
    OF = 48
    ACC = 112
    sBLK, sMT, sNT, sW = 26, 27, 4, 5
    SW_, SO, SOUT = 28, 32, 36
    sWL, sWB, sO0, sO1, sT = 48, 49, 50, 51, 52
    A.win = []
    A.nds = A.ds_done = A.nvm = A.vm_done = 0
    A.raw(f".p2align 8\n.globl k2_kernel\n.type k2_kernel,@function\nk2_kernel:")
    A.salu("s_cmp_ge_u32 s2, 256")
    A.salu("s_cbranch_scc1 K2_END")
    A.salu("s_and_b32 s3, s2, 7")
    A.salu("s_lshl_b32 s3, s3, 5")
    A.salu("s_lshr_b32 s6, s2, 3")
    A.salu("s_add_u32 s3, s3, s6")
    A.salu("s_cmp_ge_u32 s3, 252")
    A.salu("s_cbranch_scc1 K2_END")
    A.salu("s_load_dwordx2 s[8:9], s[0:1], 32")
    A.salu("s_load_dwordx2 s[10:11], s[0:1], 72")
    A.salu("s_load_dwordx2 s[12:13], s[0:1], 80")
    A.salu("s_load_dwordx2 s[14:15], s[0:1], 96")
    A.salu("s_cmp_ge_u32 s3, 126")
    A.salu(f"s_cselect_b32 s{sBLK}, 1, 0")
    A.salu(f"s_mul_i32 s6, s{sBLK}, 126")
    A.salu("s_sub_u32 s3, s3, s6")
    A.salu("s_mul_i32 s6, s3, 57")
    A.salu(f"s_lshr_b32 s{sMT}, s6, 9")
    A.salu(f"s_mul_i32 s6, s{sMT}, 9")
    A.salu(f"s_sub_u32 s{sNT}, s3, s6")
    V(f"v_lshrrev_b32 v{T1}, 6, v0", w={T1}, r={0})
    A._emit(I(f"v_readfirstlane_b32 s{sW}, v{T1}", "rdlane", r={T1}, sw={sW}))
    V(f"v_and_b32 v{T0}, 63, v0", w={T0}, r={0})
    L = T0
    A.salu(f"s_lshl_b32 s{sWL}, s{sW}, 14", sr={sW})
    A.salu(f"s_mul_i32 s{sWB}, s{sW}, {512*1152}", sr={sW})
    A.salu(f"s_lshl_b32 s6, s{sNT}, 7")
    A.salu(f"s_add_u32 s{sWB}, s{sWB}, s6")
    A.salu(f"s_mul_i32 s{sO0}, s{sBLK}, {O_BLK}")
    A.salu(f"s_lshl_b32 s6, s{sMT}, 19")
    A.salu(f"s_add_u32 s{sO0}, s{sO0}, s6")
    A.salu(f"s_lshl_b32 s6, s{sW}, 14")
    A.salu(f"s_add_u32 s{sO0}, s{sO0}, s6")
    A.salu(f"s_add_u32 s{sO1}, s{sO0}, {2*131072}")
    V(f"v_lshrrev_b32 v{T1}, 3, v{L}", w={T1}, r={L})
    V(f"v_mul_u32_u24 v{T1}, 1152, v{T1}", w={T1}, r={T1})
    V(f"v_bfe_u32 v{T2}, v{L}, 4, 1", w={T2}, r={L})
    V(f"v_lshlrev_b32 v{T3}, 2, v{T2}", w={T3}, r={T2})
    V(f"v_and_b32 v{T4}, 7, v{L}", w={T4}, r={L})
    V(f"v_xor_b32 v{T4}, v{T4}, v{T3}", w={T4}, r={T4, T3})
    V(f"v_lshl_add_u32 v{WOFF}, v{T4}, 4, v{T1}", w={WOFF}, r={T4, T1})
    for i in range(1, 4):
        V(f"v_add_u32 v{WOFF+i}, {9216*i}, v{WOFF}", w={WOFF + i}, r={WOFF})
    V(f"v_lshrrev_b32 v{T1}, 5, v{L}", w={T1}, r={L})
    V(f"v_bfe_u32 v{T3}, v{L}, 2, 2", w={T3}, r={L})
    V(f"v_and_b32 v{T4}, 3, v{L}", w={T4}, r={L})
    V(f"v_lshlrev_b32 v{T6}, 17, v{T2}", w={T6}, r={T2})
    V(f"v_lshl_add_u32 v{T6}, v{T1}, 8, v{T6}", w={T6}, r={T1, T6})
    V(f"v_and_b32 v{T7}, 15, v{L}", w={T7}, r={L})
    V(f"v_lshl_add_u32 v{OOFF}, v{T7}, 4, v{T6}", w={OOFF}, r={T7, T6})
    V(f"v_lshl_add_u32 v{T6}, v{T1}, 2, v{T3}", w={T6}, r={T1, T3})
    V(f"v_lshlrev_b32 v{T6}, 7, v{T6}", w={T6}, r={T6})
    V(f"v_lshrrev_b32 v{T7}, 1, v{T4}", w={T7}, r={T4})
    V(f"v_lshl_add_u32 v{T7}, v{T2}, 1, v{T7}", w={T7}, r={T2, T7})
    V(f"v_lshrrev_b32 v{T5}, 1, v{T3}", w={T5}, r={T3})
    V(f"v_lshlrev_b32 v{T5}, 2, v{T5}", w={T5}, r={T5})
    V(f"v_xor_b32 v{T7}, v{T7}, v{T5}", w={T7}, r={T7, T5})
    V(f"v_lshl_add_u32 v{T6}, v{T7}, 4, v{T6}", w={T6}, r={T7, T6})
    V(f"v_and_b32 v{T7}, 1, v{T4}", w={T7}, r={T4})
    V(f"v_lshl_add_u32 v{T6}, v{T7}, 3, v{T6}", w={T6}, r={T7, T6})
    V(f"v_add_u32 v{BA}, s{sWL}, v{T6}", w={BA}, r={T6})
    V(f"v_xor_b32 v{BA+1}, 64, v{BA}", w={BA + 1}, r={BA})
    V(f"v_lshlrev_b32 v{RED}, 4, v{L}", w={RED}, r={L})
    A.waitcnt(lgkm=0)
    A.salu(f"s_cmp_eq_u32 s{sBLK}, 0")
    A.salu("s_cselect_b32 s8, s8, s10")
    A.salu("s_cselect_b32 s9, s9, s11")
    srd(A, SW_, 8, 4096 * 576 * 2)
    srd(A, SO, 14, 2 * O_BLK)
    srd(A, SOUT, 12, 896 * 1152 * 2)

    NU = 16; DEPTH = 4
    last_vm = {}
    def issue(u):
        slot = u % DEPTH
        A.salu(f"s_add_u32 s{sT}, s{sWB}, {u * 32 * 1152}")
        for i in range(4):
            A.salu(f"s_add_u32 m0, s{sWL}, {slot * 4096 + i * 1024}", m0w=True)
            A.vmem(f"buffer_load_dwordx4 v{WOFF+i}, s[{SW_}:{SW_+3}], s{sT} offen{' nt' if OPT['ntwo'] else ''} lds", kind="dma", r={WOFF + i}, m0r=True)
        for ks in range(2):
            for tm in range(2):
                d = OF + slot * 16 + (ks * 2 + tm) * 4
                off = (2 * u + ks) * 512
                sb = sO0 if tm == 0 else sO1
                if off >= 4096:
                    A.salu(f"s_add_u32 s{sT}, s{sb}, {off & ~4095}")
                    k = A.vmem(f"buffer_load_dwordx4 {vname(d,4)}, v{OOFF}, s[{SO}:{SO+3}], s{sT} offen offset:{off & 4095}{' nt' if OPT['nto'] else ''}", w=vr(d, 4), r={OOFF})
                else:
                    k = A.vmem(f"buffer_load_dwordx4 {vname(d,4)}, v{OOFF}, s[{SO}:{SO+3}], s{sb} offen offset:{off}{' nt' if OPT['nto'] else ''}", w=vr(d, 4), r={OOFF})
        last_vm[u] = k
    def dsreads(u):
        slot = u % DEPTH
        ab = AF + (u % 2) * 16
        for ks in range(2):
            for tn in range(2):
                for j in range(2):
                    k = A.ds_read_tr(ab + (ks * 2 + tn) * 4 + 2 * j, BA + tn, slot * 4096 + (16 * ks + 8 * j) * 128)
        return k
    PF = Prof(A, 1)
    PF.stamp("start")
    for u in range(DEPTH): issue(u)
    A.wait_vm(last_vm[0])
    pend = dsreads(0)
    for u in range(NU):
        A.wait_ds(pend)
        if u + 1 < NU:
            A.wait_vm(last_vm[u + 1])
            pend = dsreads(u + 1)
        ab = AF + (u % 2) * 16
        ob = OF + (u % DEPTH) * 16
        for ks in range(2):
            for tn in range(2):
                for tm in range(2):
                    c = "zero" if (u == 0 and ks == 0) else None
                    A.mfma(ACC + (tn * 2 + tm) * 16, ab + (ks * 2 + tn) * 4, ob + (ks * 2 + tm) * 4, c)
        if u + DEPTH < NU: issue(u + DEPTH)
        PF.stamp(f"u{u}")
    A.wait_ds_all()
    A.barrier()
    V(f"v_add_u32 v{T1}, s{sWL}, v{RED}", w={T1}, r={RED})
    for q in range(16):
        A.ds_write_b128(T1, ACC + 4 * q, q * 1024)
    A.wait_ds_all()
    A.barrier()
    A.salu(f"s_lshl_b32 s6, s{sW}, 11")
    V(f"v_add_u32 v{T1}, s6, v{RED}", w={T1}, r={RED})
    V(f"v_add_u32 v{T2}, 0x10000, v{T1}", w={T2}, r={T1})
    R = OF
    for ww in range(8):
        for q in range(2):
            A.ds_read_b128(R + (ww * 2 + q) * 4, T1 if ww < 4 else T2, (ww % 4) * 16384 + q * 1024)
            if ww == 6 and q == 1: pass
        if ww == 5:
            A.wait_ds_all()
    A.wait_ds_all()
    for ww in range(1, 8):
        for i in range(8):
            V(f"v_add_f32 v{R+i}, v{R+i}, v{R+ww*8+i}", w={R + i}, r={R + i, R + ww * 8 + i})
    for q in range(4):
        V(f"v_cvt_pk_bf16_f32 v{AF+q}, v{R+2*q}, v{R+2*q+1}", w={AF + q}, r={R + 2 * q, R + 2 * q + 1})
    A.salu(f"s_lshr_b32 s6, s{sW}, 1")
    A.salu("s_and_b32 s7, s6, 1")
    A.salu("s_lshr_b32 s6, s6, 1")
    A.salu(f"s_lshl_b32 s3, s{sMT}, 6")
    A.salu("s_lshl_b32 s7, s7, 5")
    A.salu("s_add_u32 s3, s3, s7")
    A.salu("s_mul_i32 s3, s3, 2304")
    A.salu(f"s_mul_i32 s7, s{sBLK}, 1152")
    A.salu("s_add_u32 s3, s3, s7")
    A.salu(f"s_lshl_b32 s7, s{sNT}, 7")
    A.salu("s_add_u32 s3, s3, s7")
    A.salu("s_lshl_b32 s7, s6, 6")
    A.salu("s_add_u32 s3, s3, s7")
    A.salu(f"s_and_b32 s7, s{sW}, 1")
    A.salu("s_lshl_b32 s7, s7, 5")
    A.salu("s_add_u32 s3, s3, s7")
    V(f"v_and_b32 v{T1}, 31, v{L}", w={T1}, r={L})
    V(f"v_mul_u32_u24 v{T1}, 2304, v{T1}", w={T1}, r={T1})
    V(f"v_lshrrev_b32 v{T2}, 5, v{L}", w={T2}, r={L})
    V(f"v_lshl_add_u32 v{T1}, v{T2}, 3, v{T1}", w={T1}, r={T2, T1})
    A.vmem(f"buffer_store_dwordx2 {vname(AF,2)}, v{T1}, s[{SOUT}:{SOUT+3}], s3 offen", r=vr(AF, 2) | {T1})
    A.vmem(f"buffer_store_dwordx2 {vname(AF+2,2)}, v{T1}, s[{SOUT}:{SOUT+3}], s3 offen offset:16", r=vr(AF + 2, 2) | {T1})
    PF.dump(14, sW, 0)
    A.label("K2_END")
    A.salu("s_endpgm")

def kd(name, vgpr, sgpr):
    return f""".amdhsa_kernel {name}
  .amdhsa_next_free_vgpr {vgpr}
  .amdhsa_next_free_sgpr {sgpr}
  .amdhsa_accum_offset {(vgpr + 3) // 4 * 4}
  .amdhsa_group_segment_fixed_size 0
  .amdhsa_kernarg_size 104
  .amdhsa_user_sgpr_count 2
  .amdhsa_user_sgpr_kernarg_segment_ptr 1
  .amdhsa_system_sgpr_workgroup_id_x 1
.end_amdhsa_kernel
"""

def main():
    A = Asm()
    gen_k1(A)
    if not OPT["fuse"]: gen_k2(A)
    head = """; Two-launch GQA block pair: k1 = Q projection + attention (o -> ws), k2 = output projection.
; @launch kernel=k1_kernel grid=(256,1,1) block=(512,1,1) lds=163840
; @launch kernel=k2_kernel grid=(256,1,1) block=(512,1,1) lds=131072
.amdgcn_target "amdgcn-amd-amdhsa--gfx950"
.text
"""
    tail = '\n.section .rodata,"a"\n.p2align 6\n' + kd("k1_kernel", 256, 102 if OPT["prof"] else 64) + ".p2align 6\n" + kd("k2_kernel", 176, 102 if OPT["prof"] else 64)
    if OPT["fuse"]:
        head = """; GQA block pair in one launch: Q projection + attention, o handed over through ws, output projection.
; @launch kernel=k1_kernel grid=(256,1,1) block=(512,1,1) lds=163840
.amdgcn_target "amdgcn-amd-amdhsa--gfx950"
.text
"""
        tail = '\n.section .rodata,"a"\n.p2align 6\n' + kd("k1_kernel", 256, 102 if OPT["prof"] else 64)
    txt = head + A.text() + tail
    if "CODE_BYTES" in txt:
        import subprocess, re
        open("_p1.s", "w").write(txt.replace("CODE_BYTES", "0x12345"))
        subprocess.check_call(["clang", "-x", "assembler", "-target", "amdgcn-amd-amdhsa", "-mcpu=gfx950", "-c", "_p1.s", "-o", "_p1.o"])
        o = subprocess.check_output(["llvm-objdump", "-h", "_p1.o"]).decode()
        n = int(re.search(r"\.text\s+([0-9a-f]+)", o).group(1), 16)
        txt = txt.replace("CODE_BYTES", str(n))
    open(sys.argv[1], "w").write(txt)
    print("nops inserted:", A.nops_inserted, "lines:", len(A.out))

main()
```

```python
import sys, math
sys.path.insert(0, "gen")
from asmlib import *

NAME = "concat_heads__gqa_block_cached__gqa_block_cached__near_ridge"
OPT = dict(prio=1, prof=0, ntkv=1, ntw=0, ntx=0, ntwo=0, nto=0, ntst=0, nq=6, kvrate=1, l2pf=1, wopf=4, fat=1, bstep=1, dmagap=1, pflead=4, kv0=2, nstg=4, kvt=0, ld4=1, cpf=0, mid=0, kvt0=1, kvtr=1, roll=0, pfrate=1, kvs=0, rot=0, stag=0, qi=0, tlbw=0, ntt=0, fuse=0, slp=1, wox=0, xm=0, wo0=3, wo6=0, exp=0, ntf=0)
for a in sys.argv[2:]:
    k, v = a.split("="); OPT[k] = int(v)

O_BLK = 896 * 4096 * 2
SLOT = 16384
NSLOT = 10

def srd(A, d, base, nbytes):
    A.salu(f"s_mov_b32 s{d}, s{base}")
    A.salu(f"s_and_b32 s{d+1}, s{base+1}, 0xffff")
    A.salu(f"s_mov_b32 s{d+2}, {nbytes}")
    A.salu(f"s_mov_b32 s{d+3}, 0x00020000")

class Prof:
    def __init__(self, A, kidx):
        self.A = A; self.n = 0; self.names = []; self.kidx = kidx
    def stamp(self, name):
        if not OPT["prof"]: return
        A = self.A
        assert self.n < 30
        A.salu("s_waitcnt lgkmcnt(0)")
        A.ds_done = A.nds
        A.salu("s_memtime s[96:97]")
        A.salu("s_waitcnt lgkmcnt(0)")
        A.salu(f"s_mov_b32 s{64+self.n}, s96")
        if self.n == 0:
            A.salu("s_memrealtime s[98:99]")
            A.salu("s_waitcnt lgkmcnt(0)")
        self.n += 1; self.names.append(name)
    def dump(self, wsreg, sW, tmp):
        if not OPT["prof"]: return
        A = self.A
        self.stamp("end")
        A.salu("s_memrealtime s[96:97]")
        A.salu("s_waitcnt lgkmcnt(0)")
        A.salu("s_mov_b64 exec, -1")
        A.salu("s_nop 4")
        for i in range(self.n):
            A.salu(f"v_writelane_b32 v{tmp}, s{64+i}, {i}")
        A.salu("s_getreg_b32 s97, hwreg(HW_REG_HW_ID)")
        A.salu(f"v_writelane_b32 v{tmp}, s97, 29")
        A.salu(f"v_writelane_b32 v{tmp}, s98, 30")
        A.salu(f"v_writelane_b32 v{tmp}, s96, 31")
        A.salu(f"s_mov_b32 s60, s{wsreg}")
        A.salu(f"s_and_b32 s61, s{wsreg+1}, 0xffff")
        A.salu("s_mov_b32 s62, 0x10000000")
        A.salu("s_mov_b32 s63, 0x00020000")
        A.salu("s_lshl_b32 s96, s2, 3")
        A.salu(f"s_add_u32 s96, s96, s{sW}")
        A.salu("s_lshl_b32 s96, s96, 7")
        A.salu(f"s_add_u32 s96, s96, {255*1024*1024 + self.kidx*512*1024}")
        A.salu(f"v_mbcnt_lo_u32_b32 v{tmp+1}, -1, 0")
        A.salu(f"v_mbcnt_hi_u32_b32 v{tmp+1}, -1, v{tmp+1}")
        A.salu(f"v_lshlrev_b32 v{tmp+1}, 2, v{tmp+1}")
        A.salu("s_mov_b64 exec, 0xffffffff")
        A.salu("s_nop 4")
        A.salu(f"buffer_store_dword v{tmp}, v{tmp+1}, s[60:63], s96 offen")
        print("stamps k%d:" % self.kidx, self.names)

def gen_k1(A):
    V = A.valu
    T0, T1, T2, T3, T4, T5, T6, T7 = range(0, 8)
    XO, WO, KO = 8, 10, 12
    BW, BX, BK, BV = 14, 15, 16, 17
    LSUM, OST = 18, 19
    SUMA, SUMB, MX, MX2 = 20, 21, 22, 23
    AD = 24
    FR = 32
    NEGM = 48
    QB = 64
    S = 96
    O = 160
    P = 224
    sBLK, sKVH, sB, sW, sHL, sRT = 26, 27, 4, 5, 6, 7
    SX, SW_, SK, SV, SO = 28, 32, 36, 40, 44
    sWL, sXB, sWB, sKVB, sT, sOB = 48, 49, 50, 51, 52, 53
    sMASK, sTHR, sC = 54, 56, 57
    sW3, sWL4, sT2 = 58, 59, 55

    A.raw(f".p2align 8\n.globl k1_kernel\n.type k1_kernel,@function\nk1_kernel:\nK1_BEGIN:")
    A.salu("s_cmp_ge_u32 s2, 256")
    A.salu("s_cbranch_scc1 K1_END")
    A.salu("s_load_dwordx8 s[8:15], s[0:1], 0")
    A.salu("s_load_dwordx8 s[16:23], s[0:1], 40")
    A.salu("s_load_dwordx2 s[24:25], s[0:1], 96")
    if OPT["cpf"]:
        A.salu("s_getpc_b64 s[60:61]")
        A.salu("s_and_b32 s60, s60, 0xffffff00")
        A.salu("s_and_b32 s61, s61, 0xffff")
        A.salu("s_mov_b32 s62, CODE_BYTES")
        A.salu("s_mov_b32 s63, 0x00020000")
        V(f"v_lshlrev_b32 v{T7}, 7, v0", w={T7}, r={0})
        A.vmem(f"buffer_load_dword v{NEGM+15}, v{T7}, s[60:63], 0 offen", w={NEGM+15}, r={T7})
    A.salu("s_and_b32 s3, s2, 7")
    A.salu(f"s_lshr_b32 s{sB}, s2, 3")
    A.salu(f"s_lshr_b32 s{sBLK}, s3, 2")
    A.salu("s_and_b32 s3, s3, 3")
    A.salu("s_lshl_b32 s3, s3, 2")
    A.salu(f"s_and_b32 s{sKVH}, s{sB}, 3")
    A.salu(f"s_add_u32 s{sKVH}, s{sKVH}, s3")
    A.salu(f"s_lshr_b32 s{sB}, s{sB}, 2")
    V(f"v_lshrrev_b32 v{T1}, 6, v0", w={T1}, r={0})
    A._emit(I(f"v_readfirstlane_b32 s{sW}, v{T1}", "rdlane", r={T1}, sw={sW}))
    V(f"v_and_b32 v{T0}, 63, v0", w={T0}, r={0})
    if OPT["fat"]:
        A.salu(f"s_bfe_u32 s{sHL}, s{sW}, 0x10001", sr={sW})
        A.salu(f"s_and_b32 s{sRT}, s{sW}, 1", sr={sW})
        A.salu(f"s_lshl_b32 s{sRT}, s{sRT}, 1")
        A.salu(f"s_lshr_b32 s3, s{sW}, 2", sr={sW})
        A.salu(f"s_add_u32 s{sRT}, s{sRT}, s3")
    else:
        A.salu(f"s_lshr_b32 s{sHL}, s{sW}, 2", sr={sW})
        A.salu(f"s_and_b32 s{sRT}, s{sW}, 3", sr={sW})
    A.salu(f"s_lshl_b32 s{sWL}, s{sW}, 11", sr={sW})
    A.salu(f"s_and_b32 s{sW3}, s{sW}, {3 if OPT['ld4'] else 1}", sr={sW})
    A.salu(f"s_lshl_b32 s{sWL4}, s{sW3}, 11")
    A.salu(f"s_mul_i32 s{sXB}, s{sB}, 129024")
    A.salu(f"s_lshl_b32 s{sWB}, s{sKVH}, 9")
    A.salu(f"s_lshl_b32 s{sKVB}, s{sB}, 4")
    A.salu(f"s_add_u32 s{sKVB}, s{sKVB}, s{sKVH}")
    if OPT["rot"] == 1:
        A.salu(f"s_and_b32 s{sMASK}, s{sKVB}, 7")
    elif OPT["rot"] == 2:
        A.salu(f"s_add_u32 s{sMASK}, s{sKVH}, s{sB}")
        A.salu(f"s_and_b32 s{sMASK}, s{sMASK}, 7")
    elif OPT["rot"] == 3:
        A.salu(f"s_and_b32 s{sMASK}, s{sB}, 7")
    A.salu(f"s_lshl_b32 s{sMASK}, s{sMASK}, 14")
    A.salu(f"s_lshl_b32 s{sKVB}, s{sKVB}, 17")
    A.salu(f"s_mov_b32 s{sTHR}, 0x4b800000")
    c = math.log2(math.e) / math.sqrt(128.0)
    import struct
    cbits = struct.unpack("<I", struct.pack("<f", c))[0]
    A.salu(f"s_mov_b32 s{sC}, {cbits:#x}")
    L = T0
    for q in range(2):
        V(f"v_lshrrev_b32 v{T1}, 3, v{L}", w={T1}, r={L})
        A.salu(f"s_lshl_b32 s3, s{sW3}, 4")
        A.salu(f"s_add_u32 s3, s3, {8*q}")
        V(f"v_add_u32 v{T1}, s3, v{T1}", w={T1}, r={T1})
        V(f"v_mul_u32_u24 v{T1}, 1152, v{T1}", w={T1}, r={T1})
        V(f"v_and_b32 v{T2}, 7, v{L}", w={T2}, r={L})
        V(f"v_lshrrev_b32 v{T3}, 4, v{L}", w={T3}, r={L})
        V(f"v_xor_b32 v{T2}, v{T2}, v{T3}", w={T2}, r={T2, T3})
        if q: V(f"v_xor_b32 v{T2}, 4, v{T2}", w={T2}, r={T2})
        V(f"v_lshl_add_u32 v{XO+q}, v{T2}, 4, v{T1}", w={XO+q}, r={T2, T1})
        V(f"v_lshrrev_b32 v{T3}, 5, v{L}", w={T3}, r={L})
        A.salu(f"s_lshl_b32 s3, s{sW3}, 2")
        A.salu(f"s_add_u32 s3, s3, {2*q}")
        V(f"v_add_u32 v{T1}, s3, v{T3}", w={T1}, r={T3})
        V(f"v_lshlrev_b32 v{T1}, 13, v{T1}", w={T1}, r={T1})
        V(f"v_or_b32 v{T3}, {2*q}, v{T3}", w={T3}, r={T3})
        V(f"v_lshlrev_b32 v{T3}, 2, v{T3}", w={T3}, r={T3})
        V(f"v_and_b32 v{T2}, 31, v{L}", w={T2}, r={L})
        V(f"v_xor_b32 v{T2}, v{T2}, v{T3}", w={T2}, r={T2, T3})
        V(f"v_lshl_add_u32 v{WO+q}, v{T2}, 4, v{T1}", w={WO+q}, r={T2, T1})
        V(f"v_lshrrev_b32 v{T3}, 4, v{L}", w={T3}, r={L})
        A.salu(f"s_lshl_b32 s3, s{sW}, 3")
        A.salu(f"s_add_u32 s3, s3, {4*q}")
        V(f"v_add_u32 v{T1}, s3, v{T3}", w={T1}, r={T3})
        V(f"v_lshlrev_b32 v{T1}, 8, v{T1}", w={T1}, r={T1})
        A.salu(f"s_and_b32 s3, s{sW}, 1")
        A.salu(f"s_lshl_b32 s3, s3, 1")
        A.salu(f"s_or_b32 s3, s3, {q}")
        V(f"v_lshlrev_b32 v{T3}, 2, v{T3}", w={T3}, r={T3})
        V(f"v_or_b32 v{T3}, s3, v{T3}", w={T3}, r={T3})
        V(f"v_and_b32 v{T2}, 15, v{L}", w={T2}, r={L})
        V(f"v_xor_b32 v{T2}, v{T2}, v{T3}", w={T2}, r={T2, T3})
        V(f"v_lshl_add_u32 v{KO+q}, v{T2}, 4, v{T1}", w={KO+q}, r={T2, T1})
    V(f"v_lshrrev_b32 v{T1}, 5, v{L}", w={T1}, r={L})
    V(f"v_bfe_u32 v{T2}, v{L}, 4, 1", w={T2}, r={L})
    V(f"v_bfe_u32 v{T3}, v{L}, 2, 2", w={T3}, r={L})
    V(f"v_and_b32 v{T4}, 3, v{L}", w={T4}, r={L})
    V(f"v_and_b32 v{T5}, 31, v{L}", w={T5}, r={L})
    V(f"v_lshl_add_u32 v{T6}, v{T1}, 3, v{T3}", w={T6}, r={T1, T3})
    V(f"v_lshlrev_b32 v{T6}, 9, v{T6}", w={T6}, r={T6})
    V(f"v_lshlrev_b32 v{T7}, 2, v{T3}", w={T7}, r={T3})
    V(f"v_lshl_add_u32 v{T7}, v{T2}, 1, v{T7}", w={T7}, r={T2, T7})
    V(f"v_and_b32 v{BW}, 1, v{T4}", w={BW}, r={T4})
    V(f"v_add_u32 v{T7}, v{T7}, v{BW}", w={T7}, r={T7, BW})
    A.salu(f"s_lshl_b32 s3, s{sHL}, 4")
    V(f"v_add_u32 v{T7}, s3, v{T7}", w={T7}, r={T7})
    V(f"v_lshl_add_u32 v{T6}, v{T7}, 4, v{T6}", w={T6}, r={T7, T6})
    V(f"v_lshrrev_b32 v{T7}, 1, v{T4}", w={T7}, r={T4})
    V(f"v_lshl_add_u32 v{BW}, v{T7}, 3, v{T6}", w={BW}, r={T7, T6})
    A.salu(f"s_lshl_b32 s3, s{sRT}, 5")
    V(f"v_add_u32 v{T6}, s3, v{T5}", w={T6}, r={T5})
    V(f"v_lshlrev_b32 v{T6}, 7, v{T6}", w={T6}, r={T6})
    V(f"v_bfe_u32 v{T7}, v{T5}, 1, 3", w={T7}, r={T5})
    V(f"v_xor_b32 v{T7}, v{T7}, v{T1}", w={T7}, r={T7, T1})
    V(f"v_lshl_add_u32 v{BX}, v{T7}, 4, v{T6}", w={BX}, r={T7, T6})
    V(f"v_lshlrev_b32 v{T6}, 2, v{T4}", w={T6}, r={T4})
    V(f"v_or_b32 v{T6}, v{T6}, v{T3}", w={T6}, r={T6, T3})
    V(f"v_xor_b32 v{T6}, v{T6}, v{T1}", w={T6}, r={T6, T1})
    V(f"v_lshlrev_b32 v{T7}, 8, v{T5}", w={T7}, r={T5})
    V(f"v_lshl_add_u32 v{BK}, v{T6}, 4, v{T7}", w={BK}, r={T6, T7})
    V(f"v_lshl_add_u32 v{T6}, v{T1}, 2, v{T3}", w={T6}, r={T1, T3})
    V(f"v_lshlrev_b32 v{T6}, 8, v{T6}", w={T6}, r={T6})
    V(f"v_lshrrev_b32 v{T7}, 1, v{T4}", w={T7}, r={T4})
    V(f"v_lshl_add_u32 v{T7}, v{T2}, 1, v{T7}", w={T7}, r={T2, T7})
    V(f"v_xor_b32 v{T7}, v{T7}, v{T1}", w={T7}, r={T7, T1})
    V(f"v_lshl_or_b32 v{T7}, v{T3}, 2, v{T7}", w={T7}, r={T3, T7})
    V(f"v_lshl_add_u32 v{T6}, v{T7}, 4, v{T6}", w={T6}, r={T7, T6})
    V(f"v_and_b32 v{T7}, 1, v{T4}", w={T7}, r={T4})
    V(f"v_lshl_add_u32 v{BV}, v{T7}, 3, v{T6}", w={BV}, r={T7, T6})
    V(f"v_lshlrev_b32 v{T6}, 17, v{T2}", w={T6}, r={T2})
    V(f"v_lshl_add_u32 v{T6}, v{T1}, 8, v{T6}", w={T6}, r={T1, T6})
    V(f"v_and_b32 v{T7}, 15, v{L}", w={T7}, r={L})
    V(f"v_lshl_add_u32 v{OST}, v{T7}, 4, v{T6}", w={OST}, r={T7, T6})
    V(f"v_mov_b32 v{LSUM}, 0", w={LSUM})
    A.waitcnt(lgkm=0)
    A.salu(f"s_cmp_eq_u32 s{sBLK}, 0")
    for k in range(8):
        A.salu(f"s_cselect_b32 s{8+k}, s{8+k}, s{16+k}")
    srd(A, SX, 8, 8 * 112 * 576 * 2)
    srd(A, SK, 10, 8 * 16 * 512 * 128 * 2)
    srd(A, SV, 12, 8 * 16 * 512 * 128 * 2)
    srd(A, SW_, 14, 576 * 4096 * 2)
    srd(A, SO, 24, 2 * O_BLK)
    A.salu(f"s_mul_i32 s{sOB}, s{sBLK}, {O_BLK}")
    A.salu(f"s_mul_i32 s3, s{sB}, 7")
    A.salu(f"s_lshl_b32 s{sT}, s{sRT}, 1")
    A.salu(f"s_add_u32 s3, s3, s{sT}")
    A.salu(f"s_lshl_b32 s3, s3, 17")
    A.salu(f"s_add_u32 s{sOB}, s{sOB}, s3")
    A.salu(f"s_lshl_b32 s3, s{sKVH}, 1")
    A.salu(f"s_add_u32 s3, s3, s{sHL}")
    A.salu(f"s_lshl_b32 s3, s3, 12")
    A.salu(f"s_add_u32 s{sOB}, s{sOB}, s3")
    if OPT["prio"]:
        A.salu(f"s_cmp_ge_u32 s{sW}, 4")
        A.salu("s_cbranch_scc0 K1_PRIO_DONE" if OPT["prio"] == 1 else "s_cbranch_scc1 K1_PRIO_DONE")
        A.salu("s_setprio 1")
        A.label("K1_PRIO_DONE")

    NTT = {0: "", 1: " nt", 2: " sc1", 3: " sc0 sc1", 4: " sc1 nt"}[OPT["ntt"]]
    qunits = []
    for s_ in range(9):
        qunits += [("X", s_), ("W", 2 * s_), ("W", 2 * s_ + 1)]
    kvunits = [("K", 0)]
    for h in range(7):
        kvunits += [("K", h + 1), ("V", h)]
    kvunits += [("V", 7)]
    units = qunits + kvunits
    UK = {idx: 27 + i for i, (t_, idx) in enumerate(kvunits) if t_ == "K"}
    UV = {idx: 27 + i for i, (t_, idx) in enumerate(kvunits) if t_ == "V"}
    stage_units = [list(range(3 * s_, 3 * s_ + 3)) for s_ in range(9)]
    unit_last_vm = {}
    unit_slot = {}
    free = list(range(NSLOT))
    nq = [0]; nkv = [0]; xch = []
    KQ = FR
    DV = FR + 2
    NSTG = OPT["nstg"]
    STG = [S + 32, O, O + 32, P][:NSTG]

    def unit_info(u):
        typ, idx = units[u]
        if typ == "X": return sXB, idx * 128, SX, XO, 2 * 16 * 1152, "ntx"
        if typ == "W": return sWB, idx * 32 * 8192, SW_, WO, 2 * 4 * 8192, "ntw"
        if typ == "K": return sKVB, idx * 64 * 256, SK, KO, 4096, "ntkv"
        return sKVB, idx * 64 * 256, SV, KO, 4096, "ntkv"

    def sbase(base, const):
        if base == sKVB and OPT["rot"]:
            A.salu(f"s_add_u32 s{sT}, s{sMASK}, {const}")
            A.salu(f"s_and_b32 s{sT}, s{sT}, 0x1ffff")
            A.salu(f"s_or_b32 s{sT}, s{sT}, s{sKVB}")
        else:
            A.salu(f"s_add_u32 s{sT}, s{base}, {const}")

    def issue_unit_q(u, stage_reg=None):
        if stage_reg is None:
            slot = free.pop(0)
            unit_slot[u] = slot
        base, const, sr_, vo, delta, nto = unit_info(u)
        if vo == KO: vo = KQ
        nt = " nt" if OPT[nto] else ""
        for hv in range(4):
            A.salu(f"s_add_u32 s{sT}, s{base}, {const + delta * hv}")
            for q in range(2):
                if stage_reg is None:
                    A.salu(f"s_add_u32 m0, s{sWL4}, {slot * SLOT + hv * 4096 + q * 1024}", m0w=True)
                    k = A.vmem(f"buffer_load_dwordx4 v{vo+q}, s[{sr_}:{sr_+3}], s{sT} offen{nt} lds", kind="dma", r={vo + q}, m0r=True)
                else:
                    d = stage_reg + (hv * 2 + q) * 4
                    k = A.vmem(f"buffer_load_dwordx4 {vname(d,4)}, v{vo+q}, s[{sr_}:{sr_+3}], s{sT} offen{nt}", w=vr(d, 4), r={vo + q})
        unit_last_vm[u] = k

    def issue_unit_4(u):
        slot = free.pop(0)
        unit_slot[u] = slot
        base, const, sr_, vo, delta, nto = unit_info(u)
        nt = " nt" if OPT[nto] else ""
        sbase(base, const)
        if vo != KO: A.salu(f"s_add_u32 s{sT2}, s{base}, {const + 2 * delta}")
        for hv in range(2):
            for q in range(2):
                A.salu(f"s_add_u32 m0, s{sWL4}, {slot * SLOT + hv * 8192 + q * 1024}", m0w=True)
                if vo == KO:
                    va = (KQ if hv == 0 else KO) + q; so = sT
                else:
                    va = vo + q; so = sT if hv == 0 else sT2
                k = A.vmem(f"buffer_load_dwordx4 v{va}, s[{sr_}:{sr_+3}], s{so} offen{nt} lds", kind="dma", r={va}, m0r=True)
        unit_last_vm[u] = k

    def flood():
        if not OPT["l2pf"]: return
        V(f"v_lshrrev_b32 v{T1}, 2, v{L}", w={T1}, r={L})
        V(f"v_lshlrev_b32 v{T1}, 13, v{T1}", w={T1}, r={T1})
        V(f"v_and_b32 v{T2}, 3, v{L}", w={T2}, r={L})
        V(f"v_lshl_add_u32 v{T1}, v{T2}, 7, v{T1}", w={T1}, r={T2, T1})
        A.salu(f"s_lshl_b32 s3, s{sW}, 4")
        A.salu(f"s_min_u32 s3, s3, 56")
        A.salu(f"s_mul_i32 s{sT}, s{sB}, 72")
        A.salu(f"s_add_u32 s3, s3, s{sT}")
        A.salu(f"s_lshl_b32 s3, s3, 13")
        A.salu(f"s_add_u32 s3, s3, s{sWB}")
        A.vmem(f"buffer_load_dword v{T4}, v{T1}, s[{SW_}:{SW_+3}], s3 offen{NTT}", w={T4}, r={T1})
        V(f"v_lshlrev_b32 v{T2}, 7, v{L}", w={T2}, r={L})
        A.salu(f"s_and_b32 s3, s{sKVH}, 3")
        A.salu(f"s_mul_i32 s3, s3, 32256")
        A.salu(f"s_and_b32 s{sT}, s{sW}, 3")
        A.salu(f"s_lshl_b32 s{sT}, s{sT}, 13")
        A.salu(f"s_add_u32 s3, s3, s{sT}")
        A.salu(f"s_add_u32 s3, s3, s{sXB}")
        A.vmem(f"buffer_load_dword v{T5}, v{T2}, s[{SX}:{SX+3}], s3 offen{NTT}", w={T5}, r={T2})

    def dump_unit(u, stage_reg):
        slot = free.pop(0)
        unit_slot[u] = slot
        V(f"v_add_u32 v{DV+1}, {slot * SLOT}, v{DV}", w={DV + 1}, r={DV})
        for hv in range(4):
            for q in range(2):
                A.ds_write_b128(DV + 1, stage_reg + (hv * 2 + q) * 4, hv * 4096 + q * 1024)

    def dma_items(u):
        slot = free.pop(0)
        unit_slot[u] = slot
        base, const, sr_, vo, delta, nto = unit_info(u)
        nt = " nt" if OPT[nto] else ""
        def mk(q):
            def f():
                sbase(base, const)
                A.salu(f"s_add_u32 m0, s{sWL}, {slot * SLOT + q * 1024}", m0w=True)
                k = A.vmem(f"buffer_load_dwordx4 v{vo+q}, s[{sr_}:{sr_+3}], s{sT} offen{nt} lds", kind="dma", r={vo + q}, m0r=True)
                unit_last_vm[u] = k
            return f
        if not OPT["stag"]: return [mk(0), mk(1)]
        G = 8 // OPT["stag"]
        def cond(f, g):
            def h():
                lab = f"K1_D{nlab[0]}"; nlab[0] += 1
                A.salu(f"s_cmp_eq_u32 s{sT2}, {g}")
                A.salu(f"s_cbranch_scc0 {lab}")
                n0 = len(A.out)
                f()
                for o in A.out[n0:]: o.ws = 0
                A.label(lab)
                if g < G - 1: A.nvm -= 1
            return h
        return [cond(mk(q), g) for q in range(2) for g in range(G)]
    nlab = [0]

    NQ = OPT["nq"]
    PF = Prof(A, 0)
    PF.stamp("start")

    def addr_items(dst, base, slot, xors):
        it = [lambda: V(f"v_add_u32 v{dst[0]}, {slot * SLOT}, v{base}", w={dst[0]}, r={base})]
        for i, x in enumerate(xors):
            if i == 0: continue
            it.append(lambda i=i, x=x: V(f"v_xor_b32 v{dst[i]}, {x}, v{dst[0]}", w={dst[i]}, r={dst[0]}))
        return it

    A.salu(f"s_cmp_lt_u32 s{sW}, 4")
    A.salu("s_cbranch_scc1 K1_FAT")
    pf0 = PF.n
    staged = []
    if OPT["ld4"]:
        for q in range(2):
            V(f"v_subrev_u32 v{KQ+q}, {4*8*256}, v{KO+q}", w={KQ + q}, r={KO + q})
        NL = NSLOT - NQ
        def refill(s):
            done_q = 3 * max(s, 0)
            while nq[0] < 27 and nq[0] - done_q < NQ and free:
                issue_unit_4(nq[0]); nq[0] += 1
        def kv_issue():
            if nkv[0] < NL:
                if free:
                    issue_unit_4(27 + nkv[0]); nkv[0] += 1
        LW, LX = FR + 4, FR + 5
        nroll = [NQ // 3]
        def lroll(n):
            n = min(n, 9 - nroll[0])
            if n <= 0 or OPT["roll"] != 2: return
            a = nroll[0]; nroll[0] += n
            if n < 8:
                m = (1 << (8 * n)) - 1
                A.salu(f"s_mov_b32 exec_lo, {m & 0xffffffff}")
                A.salu(f"s_mov_b32 exec_hi, {m >> 32}")
            A.salu(f"s_add_u32 s3, s8, {a * 64 * 8192}")
            A.vmem(f"buffer_load_dword v{FR+6}, v{LW}, s[{SW_}:{SW_+3}], s3 offen{NTT}", w={FR + 6}, r={LW})
            A.vmem(f"buffer_load_dword v{FR+7}, v{LX}, s[{SX}:{SX+3}], s9 offen offset:{a * 128}{NTT}", w={FR + 7}, r={LX})
            if n < 8: A.salu("s_mov_b64 exec, -1")
        refill(-1)
        for _ in range(OPT["kv0"]): kv_issue()
        if not OPT["roll"]: flood()
        if OPT["roll"] == 2:
            V(f"v_bfe_u32 v{T1}, v{L}, 2, 1", w={T1}, r={L})
            A.salu(f"s_lshl_b32 s3, s{sW3}, 1")
            V(f"v_add_u32 v{T1}, s3, v{T1}", w={T1}, r={T1})
            V(f"v_lshrrev_b32 v{T3}, 3, v{L}", w={T3}, r={L})
            V(f"v_lshl_add_u32 v{T1}, v{T3}, 6, v{T1}", w={T1}, r={T3, T1})
            V(f"v_lshlrev_b32 v{T1}, 13, v{T1}", w={T1}, r={T1})
            V(f"v_and_b32 v{T2}, 3, v{L}", w={T2}, r={L})
            V(f"v_lshl_add_u32 v{LW}, v{T2}, 7, v{T1}", w={LW}, r={T2, T1})
            V(f"v_and_b32 v{T1}, 7, v{L}", w={T1}, r={L})
            V(f"v_min_u32 v{T1}, 6, v{T1}", w={T1}, r={T1})
            A.salu(f"s_mul_i32 s3, s{sW3}, 7")
            V(f"v_add_u32 v{T1}, s3, v{T1}", w={T1}, r={T1})
            V(f"v_mul_u32_u24 v{T1}, 1152, v{T1}", w={T1}, r={T1})
            V(f"v_lshl_add_u32 v{LX}, v{T3}, 7, v{T1}", w={LX}, r={T3, T1})
            A.salu(f"s_lshl_b32 s8, s{sB}, 16")
            A.salu(f"s_add_u32 s8, s8, s{sWB}")
            A.salu(f"s_and_b32 s9, s{sKVH}, 3")
            A.salu(f"s_mul_i32 s9, s9, {28*1152}")
            A.salu(f"s_add_u32 s9, s9, s{sXB}")
            lroll(OPT["pflead"] - nroll[0])
        for s in range(9):
            A.wait_vm(max(unit_last_vm[u] for u in stage_units[s]))
            A.barrier()
            PF.stamp(f"q{s}")
            if s > 0:
                for u in stage_units[s - 1]: free.append(unit_slot[u])
            refill(s)
            lroll(OPT["pfrate"])
            if s == 8:
                xch.append(free.pop(0)); xch.append(free.pop(0))
            elif s >= OPT["kvs"]:
                for _ in range(OPT["kvrate"]): kv_issue()
            if nq[0] == 27 and nkv[0] >= NL:
                while free:
                    issue_unit_4(27 + nkv[0]); nkv[0] += 1
        A.salu("s_branch K1_ATT")
        ldr_vm = (A.nvm, A.vm_done)
    else:
        A.salu(f"s_cmp_ge_u32 s{sW}, 6")
        A.salu("s_cbranch_scc1 K1_KVL")
        pf0 = PF.n
        kvslots = [free.pop() for _ in range(NSLOT - NQ)]
        def refill(s):
            done_q = 3 * max(s, 0)
            while nq[0] < 27 and nq[0] - done_q < NQ and free:
                issue_unit_q(nq[0]); nq[0] += 1
        refill(-1)
        for s in range(9):
            A.wait_vm(max(unit_last_vm[u] for u in stage_units[s]))
            A.barrier()
            PF.stamp(f"q{s}")
            if s > 0:
                for u in stage_units[s - 1]: free.append(unit_slot[u])
            refill(s)
            if s == 8:
                xch.append(free.pop(0)); xch.append(free.pop(0))
        A.waitcnt(vm=0)
        A.vm_done = A.nvm
        A.salu("s_branch K1_ATT")
        A.label("K1_KVL")
        A.win = []
        A.salu("s_nop 4")
        PF.n = pf0; PF.names = PF.names[:pf0]
        for q in range(2):
            V(f"v_subrev_u32 v{KQ+q}, {6*8*256}, v{KO+q}", w={KQ + q}, r={KO + q})
        V(f"v_lshlrev_b32 v{DV}, 4, v{L}", w={DV}, r={L})
        V(f"v_add_u32 v{DV}, s{sWL4}, v{DV}", w={DV}, r={DV})
        late_free = free[:]; free[:] = kvslots
        NL = len(kvslots)
        TV = FR + 4
        V(f"v_lshlrev_b32 v{TV}, 7, v{L}", w={TV}, r={L})
        A.salu(f"s_lshl_b32 s3, s{sW3}, 13")
        V(f"v_add_u32 v{TV}, s3, v{TV}", w={TV}, r={TV})
        NT = OPT["kvt"]
        ntouch = [0]
        def kv_issue():
            i = nkv[0]
            if i < NL: issue_unit_q(27 + i)
            elif i < NL + NSTG: issue_unit_q(27 + i, STG[i - NL])
            else:
                if ntouch[0] < NT:
                    u = 27 + NL + NSTG + ntouch[0]
                    base, const, sr_, vo, delta, nto = unit_info(u)
                    A.salu(f"s_add_u32 s{sT}, s{base}, {const}")
                    A.vmem(f"buffer_load_dword v{TV+1}, v{TV}, s[{sr_}:{sr_+3}], s{sT} offen", w={TV + 1}, r={TV})
                    ntouch[0] += 1
                return
            nkv[0] += 1
        for _ in range(OPT["kv0"]): kv_issue()
        for s in range(9):
            A.barrier()
            PF.stamp(f"q{s}")
            for _ in range(OPT["kvrate"]): kv_issue()
        assert nkv[0] == NL + NSTG
        free[:] = late_free
        staged = [(27 + NL + i, STG[i]) for i in range(NSTG)]
        while staged and free:
            u, r_ = staged.pop(0)
            A.wait_vm(unit_last_vm[u])
            dump_unit(u, r_)
        A.waitcnt(vm=0)
        A.vm_done = A.nvm
        A.wait_ds_all()
        A.salu("s_branch K1_ATT")
    A.label("K1_FAT")
    A.win = []
    A.salu("s_nop 4")
    PF.n = pf0; PF.names = PF.names[:pf0]
    TW, TX = XO, XO + 1
    if OPT["roll"] == 2:
        pass
    elif OPT["ld4"] and not OPT["roll"]:
        V(f"v_lshlrev_b32 v{TW}, 7, v{L}", w={TW}, r={L})
        A.salu(f"s_lshl_b32 s3, s{sW}, 13")
        V(f"v_add_u32 v{TW}, s3, v{TW}", w={TW}, r={TW})
    else:
        TW, TX = XO, XO + 1
        V(f"v_bfe_u32 v{T1}, v{L}, 2, 1", w={T1}, r={L})
        A.salu(f"s_lshl_b32 s3, s{sW}, 1")
        V(f"v_add_u32 v{T1}, s3, v{T1}", w={T1}, r={T1})
        V(f"v_lshlrev_b32 v{T1}, 13, v{T1}", w={T1}, r={T1})
        V(f"v_and_b32 v{T2}, 3, v{L}", w={T2}, r={L})
        V(f"v_lshl_add_u32 v{TW}, v{T2}, 7, v{T1}", w={TW}, r={T2, T1})
        V(f"v_and_b32 v{T1}, 7, v{L}", w={T1}, r={L})
        V(f"v_min_u32 v{T1}, 6, v{T1}", w={T1}, r={T1})
        A.salu(f"s_mul_i32 s3, s{sW}, 7")
        V(f"v_add_u32 v{T1}, s3, v{T1}", w={T1}, r={T1})
        V(f"v_mul_u32_u24 v{TX}, 1152, v{T1}", w={TX}, r={T1})
        A.salu(f"s_lshl_b32 s8, s{sB}, 16")
        A.salu(f"s_add_u32 s8, s8, s{sWB}")
        A.salu(f"s_and_b32 s9, s{sKVH}, 3")
        A.salu(f"s_mul_i32 s9, s9, {28*1152}")
        A.salu(f"s_add_u32 s9, s9, s{sXB}")
    def touch(s_):
        if not OPT["l2pf"] or s_ > 8: return
        A.salu(f"s_add_u32 s3, s8, {s_ * 64 * 8192}")
        A.vmem(f"buffer_load_dword v{T4}, v{TW}, s[{SW_}:{SW_+3}], s3 offen{NTT}", w={T4}, r={TW})
        A.vmem(f"buffer_load_dword v{T5}, v{TX}, s[{SX}:{SX+3}], s9 offen offset:{s_ * 128}{NTT}", w={T5}, r={TX})
    if OPT["roll"] == 2:
        touch = lambda s_: None
    elif OPT["roll"]:
        touch1 = touch
        nroll = [2]
        def roll(n):
            for _ in range(n):
                touch1(nroll[0]); nroll[0] += 1
        roll(OPT["pflead"] - 2)
        touch = lambda s_: roll(OPT["pfrate"])
    elif OPT["ld4"]:
        flood()
        ntouch = [0]
        def touch(s_):
            s_ -= OPT["pflead"]
            if s_ < OPT["kvt0"]: return
            for _ in range(OPT["kvtr"]):
                if ntouch[0] >= OPT["kvt"]: return
                ua = 27 + NL + 1 + ntouch[0]
                ia = unit_info(ua); ib = unit_info(ua + 1)
                A.salu(f"s_cmp_lt_u32 s{sW}, 2")
                A.salu(f"s_mov_b32 s3, {ib[1] - 16384}")
                A.salu(f"s_cselect_b32 s3, {ia[1]}, s3")
                A.salu(f"s_cselect_b32 s60, s{ia[2]}, s{ib[2]}")
                A.salu(f"s_cselect_b32 s61, s{ia[2]+1}, s{ib[2]+1}")
                A.salu(f"s_mov_b32 s62, s{ia[2]+2}")
                A.salu(f"s_mov_b32 s63, s{ia[2]+3}")
                A.salu(f"s_add_u32 s3, s3, s{sKVB}")
                A.vmem(f"buffer_load_dword v{T4}, v{TW}, s[60:63], s3 offen", w={T4}, r={TW})
                ntouch[0] += 2
    if not OPT["ld4"]:
        for s_ in range(2, OPT["pflead"]): touch(s_)
    if OPT["tlbw"]:
        A.salu("s_load_dwordx2 s[16:17], s[0:1], 32")
        A.salu("s_load_dwordx2 s[18:19], s[0:1], 72")
        A.salu("s_load_dwordx2 s[20:21], s[0:1], 80")
        D = NEGM
        V(f"v_lshlrev_b32 v{T1}, 12, v{L}", w={T1}, r={L})
        V(f"v_and_b32 v{T1}, 0x1ffff, v{T1}", w={T1}, r={T1})
        A.vmem(f"buffer_load_dword v{D}, v{T1}, s[{SV}:{SV+3}], s{sKVB} offen", w={D}, r={T1})
        if OPT["tlbw"] > 1:
            A.vmem(f"buffer_load_dword v{D+1}, v{T1}, s[{SK}:{SK+3}], s{sKVB} offen", w={D + 1}, r={T1})
        V(f"v_min_u32 v{T2}, 6, v{L}", w={T2}, r={L})
        V(f"v_lshlrev_b32 v{T2}, 17, v{T2}", w={T2}, r={T2})
        A.salu(f"s_mul_i32 s3, s{sBLK}, {O_BLK}")
        A.salu(f"s_mul_i32 s{sT}, s{sB}, {7*131072}")
        A.salu(f"s_add_u32 s3, s3, s{sT}")
        if OPT["fuse"]:
            A.salu(f"s_lshl_b32 s{sT}, s{sKVH}, 13")
            A.salu(f"s_add_u32 s3, s3, s{sT}")
            A.vmem(f"buffer_store_dword v{T2}, v{T2}, s[{SO}:{SO+3}], s3 offen sc1", r={T2}, storedata={T2})
        else:
            A.vmem(f"buffer_load_dword v{D+2}, v{T2}, s[{SO}:{SO+3}], s3 offen", w={D + 2}, r={T2})
        V(f"v_lshlrev_b32 v{T3}, 16, v{L}", w={T3}, r={L})
        A.salu("s_waitcnt lgkmcnt(0)")
        A.salu(f"s_cmp_eq_u32 s{sBLK}, 0")
        A.salu("s_cselect_b32 s60, s16, s18")
        A.salu("s_cselect_b32 s61, s17, s19")
        A.salu("s_and_b32 s61, s61, 0xffff")
        A.salu(f"s_mov_b32 s62, {4096*576*2}")
        A.salu("s_mov_b32 s63, 0x00020000")
        A.salu(f"s_mov_b32 s3, {8*65536}")
        A.vmem(f"buffer_load_dword v{D+3}, v{T3}, s[60:63], 0 offen", w={D + 3}, r={T3})
        A.vmem(f"buffer_load_dword v{D+4}, v{T3}, s[60:63], s3 offen", w={D + 4}, r={T3})
        A.salu("s_mov_b32 s16, s20")
        A.salu("s_and_b32 s17, s21, 0xffff")
        A.salu(f"s_mov_b32 s18, {896*1152*2}")
        A.salu("s_mov_b32 s19, 0x00020000")
        A.vmem(f"buffer_load_dword v{D+5}, v{T3}, s[16:19], 0 offen", w={D + 5}, r={T3})
    QA = [S, O]
    FBW = [P, QB]; FBX = [P + 16, QB + 16]
    AW = [FR, FR + 4]; AX = FR + 8
    def qaddr(s):
        u0 = 3 * s
        return (addr_items([AX + i for i in range(4)], BX, unit_slot[u0], [0, 32, 64, 96]) +
                addr_items([AW[0] + i for i in range(4)], BW, unit_slot[u0 + 1], [0, 64, 128, 192]) +
                addr_items([AW[1] + i for i in range(4)], BW, unit_slot[u0 + 2], [0, 64, 128, 192]))
    def qread_items(ks):
        it = [lambda: A.ds_read_b128(FBX[ks % 2], AX + ks), lambda: A.ds_read_b128(FBX[ks % 2] + 4, AX + ks, 4096)]
        for t in range(4):
            for j in range(2):
                it.append(lambda t=t, j=j: A.ds_read_tr(FBW[ks % 2] + 4 * t + 2 * j, AW[ks // 2] + t, ((ks % 2) * 16 + 4 * j) * 512))
        return it
    def qreads(ks):
        for it in qread_items(ks): last = it()
        return last
    for it in qaddr(0): it()
    A.barrier()
    PF.stamp("q0")
    pend = qreads(0)
    touch(OPT["pflead"])
    QI = OPT["qi"]
    for s in range(9):
        for ks in range(4):
            A.wait_ds(pend)
            rq = []
            if ks < 3:
                if QI: rq = qread_items(ks + 1)
                else: pend = qreads(ks + 1)
            nxt = qaddr(s + 1) if (ks == 3 and s < 8) else []
            m = 0
            for t in range(4):
                for r2 in range(2):
                    A.mfma(QA[r2] + 16 * t, FBW[ks % 2] + 4 * t, FBX[ks % 2] + 4 * r2, "zero" if (s == 0 and ks == 0) else None)
                    if nxt:
                        if m < 2:
                            for it in nxt[6 * m: 6 * m + 6]: it()
                        if m == 1:
                            A.barrier()
                            PF.stamp(f"q{s+1}")
                            if QI: rq = qread_items(0)
                            else: pend = qreads(0)
                        if m == 3: touch(s + 1 + OPT["pflead"])
                    for _ in range(QI):
                        if rq: pend = rq.pop(0)()
                    m += 1
            assert not rq
    A.salu(f"s_lshr_b32 s3, s{sW}, 1")
    A.salu(f"s_cmp_eq_u32 s3, 0")
    A.salu(f"s_cselect_b32 s3, {xch[0]}, {xch[1]}")
    A.salu(f"s_lshl_b32 s3, s3, 14")
    A.salu(f"s_and_b32 s{sT}, s{sW}, 1")
    A.salu(f"s_lshl_b32 s{sT}, s{sT}, 13")
    A.salu(f"s_add_u32 s3, s3, s{sT}")
    V(f"v_lshlrev_b32 v{T6}, 4, v{L}", w={T6}, r={L})
    V(f"v_add_u32 v{T6}, s3, v{T6}", w={T6}, r={T6})
    for i in range(64):
        V(f"v_mul_f32 v{O+i}, s{sC}, v{O+i}", w={O + i}, r={O + i})
    for q in range(32):
        V(f"v_cvt_pk_bf16_f32 v{P+q}, v{O+2*q}, v{O+2*q+1}", w={P + q}, r={O + 2 * q, O + 2 * q + 1})
        if q % 4 == 3:
            A.ds_write_b128(T6, P + q - 3, (q // 4) * 1024)
    for i in range(64):
        V(f"v_mul_f32 v{S+i}, s{sC}, v{S+i}", w={S + i}, r={S + i})
    for q in range(32):
        V(f"v_cvt_pk_bf16_f32 v{QB+q}, v{S+2*q}, v{S+2*q+1}", w={QB + q}, r={S + 2 * q, S + 2 * q + 1})
    A.wait_ds_all()
    A.waitcnt(vm=0)
    A.vm_done = A.nvm
    if OPT["ld4"]:
        A.nvm, A.vm_done = ldr_vm
    A.label("K1_ATT")
    A.win = []
    A.salu("s_nop 4")
    if OPT["stag"]:
        A.salu(f"s_lshr_b32 s{sT2}, s{sW}, {OPT['stag'] - 1}")

    SETA = [AD + i for i in range(8)]
    SETB = [XO, XO + 1, WO, WO + 1, BW, BX, T4, T5]
    kx = [32 * ks for ks in range(8)]
    vx = [(t << 6) ^ (32 * jj) for t in range(4) for jj in range(2)]
    SB = lambda h: S + 32 * (h % 2)
    PB = lambda h: P + 16 * (h % 2)
    phases = [("qk", 0)] + [x for h in range(7) for x in (("qk", h + 1), ("pv", h))] + [("pv", 7)]
    pset = {}
    for ph in phases:
        pset[ph] = SETA if ph[0] == "qk" else SETB
    pset[("qk", 0)] = SETB; pset[("pv", 7)] = SETA
    punit = lambda ph: UK[ph[1]] if ph[0] == "qk" else UV[ph[1]]
    def paddr(ph):
        u = punit(ph)
        return addr_items(pset[ph], BK if ph[0] == "qk" else BV, unit_slot[u], kx if ph[0] == "qk" else vx)
    mf = [(ph, i) for ph in phases for i in range(16)]
    syncJ = list(range(0, 6, OPT["bstep"]))
    if OPT["fuse"]:
        syncJ.append(6)
        K2 = K2Fused(A, sW, SO, QB)
    sync_pos = [phases.index(("pv", j)) * 16 + 12 for j in syncJ]
    first_read = {}
    for n, (ph, i) in enumerate(mf):
        first_read.setdefault(punit(ph), max(n - 4, -1))
    last_read = {}
    for n, (ph, i) in enumerate(mf):
        last_read[punit(ph)] = n - 4
    def publish_set(pos_from, pos_to):
        return [u for u, fr in first_read.items() if pos_from <= fr < pos_to]
    freed = set()
    dmaq = []
    def refill_att():
        while nkv[0] < 16 and free:
            dmaq.extend(dma_items(27 + nkv[0])); nkv[0] += 1

    pub = publish_set(-1, sync_pos[0])
    A.wait_vm(max(unit_last_vm[u] for u in pub))
    A.barrier()
    PF.stamp("a0")
    for u in stage_units[8]: free.append(unit_slot[u])
    A.salu(f"s_cmp_lt_u32 s{sW}, 4")
    A.salu(f"s_cbranch_scc1 K1_QGOT")
    if staged:
        A.salu(f"s_cmp_lt_u32 s{sW}, 6")
        A.salu(f"s_cbranch_scc1 K1_NODUMP")
        while staged:
            u, r_ = staged.pop(0)
            dump_unit(u, r_)
        A.label("K1_NODUMP")
    refill_att()
    A.salu(f"s_bfe_u32 s3, s{sW}, 0x10001")
    A.salu(f"s_cmp_eq_u32 s3, 0")
    A.salu(f"s_cselect_b32 s3, {xch[0]}, {xch[1]}")
    A.salu(f"s_lshl_b32 s3, s3, 14")
    A.salu(f"s_and_b32 s{sT}, s{sW}, 1")
    A.salu(f"s_lshl_b32 s{sT}, s{sT}, 13")
    A.salu(f"s_add_u32 s3, s3, s{sT}")
    V(f"v_lshlrev_b32 v{T6}, 4, v{L}", w={T6}, r={L})
    V(f"v_add_u32 v{T6}, s3, v{T6}", w={T6}, r={T6})
    for q in range(8):
        A.ds_read_b128(QB + 4 * q, T6, q * 1024)
    A.wait_ds_all()
    A.label("K1_QGOT")
    A.salu("s_nop 1")
    for it in paddr(("qk", 0)) + paddr(("qk", 1)): it()

    TT = [T0, T1, T2, T3]
    def max_items(regs, first, final):
        it = []
        r = list(regs)
        if first:
            a = r[:3]; b = r[3:6]; r = r[6:]
            it.append(lambda a=a: V(f"v_max3_f32 v{MX}, v{a[0]}, v{a[1]}, v{a[2]}", w={MX}, r=set(a)))
            it.append(lambda b=b: V(f"v_max3_f32 v{MX2}, v{b[0]}, v{b[1]}, v{b[2]}", w={MX2}, r=set(b)))
        k = 0
        while r:
            a = r[:2]; r = r[2:]
            d = MX if k % 2 == 0 else MX2
            it.append(lambda a=a, d=d: V(f"v_max3_f32 v{d}, v{d}, v{a[0]}, v{a[1]}", w={d}, r={d} | set(a)))
            k += 1
        if final:
            it.append(lambda: V(f"v_max_f32 v{MX}, v{MX}, v{MX2}", w={MX}, r={MX, MX2}))
            it.append(lambda: V(f"v_mov_b32 v{MX2}, v{MX}", w={MX2}, r={MX}))
            it.append(lambda: V(f"v_permlane32_swap_b32 v{MX}, v{MX2}", w={MX, MX2}, r={MX, MX2}, kind="perm"))
            it.append(lambda: V(f"v_max_f32 v{MX}, v{MX}, v{MX2}", w={MX}, r={MX, MX2}))
        return it
    def sm_items(h, lo, hi, sub):
        it = []
        sb, pb = SB(h), PB(h)
        if sub:
            it.append(lambda: V(f"v_sub_f32 v{sb+lo}, v{sb+lo}, v{MX}", w={sb + lo}, r={sb + lo, MX}))
        for e in range(lo, hi + 2):
            if sub and e + 1 < hi:
                it.append(lambda e=e: V(f"v_sub_f32 v{sb+e+1}, v{sb+e+1}, v{MX}", w={sb + e + 1}, r={sb + e + 1, MX}))
            if e < hi:
                it.append(lambda e=e: V(f"v_exp_f32 v{TT[e%4]}, v{sb+e}", w={TT[e % 4]}, r={sb + e}, kind="trans"))
            if lo <= e - 1 < hi:
                p = e - 1; acc = SUMA if p % 2 == 0 else SUMB
                if p < 2:
                    it.append(lambda p=p, acc=acc: V(f"v_mov_b32 v{acc}, v{TT[p%4]}", w={acc}, r={TT[p % 4]}))
                else:
                    it.append(lambda p=p, acc=acc: V(f"v_add_f32 v{acc}, v{acc}, v{TT[p%4]}", w={acc}, r={acc, TT[p % 4]}))
            if e - 2 >= lo and (e - 2) % 2 == 0 and e - 1 < hi:
                p = e - 2
                it.append(lambda p=p: V(f"v_cvt_pk_bf16_f32 v{pb+p//2}, v{TT[p%4]}, v{TT[(p+1)%4]}", w={pb + p // 2}, r={TT[p % 4], TT[(p + 1) % 4]}))
        return it
    def negm_items():
        return [lambda i=i: V(f"v_sub_f32 v{NEGM+i}, 0, v{MX}", w={NEGM + i}, r={MX}) for i in range(16)]
    def check(h):
        V(f"v_add_f32 v{SUMA}, v{SUMA}, v{SUMB}", w={SUMA}, r={SUMA, SUMB})
        if h > 0:
            V(f"v_cmp_nge_f32 vcc, s{sTHR}, v{SUMA}", r={SUMA}, sw={"vcc"})
            A.salu("s_nop 1")
            A.salu(f"s_cbranch_vccnz K1_SLOW{h}")
            A.label(f"K1_BACK{h}")
        V(f"v_add_f32 v{LSUM}, v{LSUM}, v{SUMA}", w={LSUM}, r={LSUM, SUMA})

    def side_for(ph):
        kind, h = ph
        if ph == ("qk", 0):
            return [], []
        if kind == "qk":
            hh = h - 1
            if hh == 0:
                main = max_items([SB(0) + i for i in range(32)], True, True) + sm_items(0, 0, 32, True)
            else:
                main = sm_items(hh, 16, 32, hh == 1)
            return main, paddr(("pv", hh))
        if h == 7: return [], []
        if h == 6:
            return sm_items(7, 0, 32, False), paddr(("pv", 7)) + (K2.addr_items() if OPT["fuse"] and OPT["fuse"] != 6 else [])
        main = sm_items(h + 1, 0, 16, h == 0)
        if h == 0: main = negm_items() + main
        return main, paddr(("qk", h + 2))

    rid = {}
    def issue_read(n):
        ph, i = mf[n]
        st = pset[ph]; fr = FR + 4 * (n % 4)
        if ph[0] == "qk":
            rid[n] = A.ds_read_b128(fr, st[i % 8], (i // 8) * 8192)
        else:
            g, t = i // 4, i % 4
            A.ds_read_tr(fr, st[2 * t], g * 4096)
            rid[n] = A.ds_read_tr(fr + 2, st[2 * t + 1], g * 4096 + 2048)
    for n in range(4): issue_read(n)
    gap = 0
    for n, (ph, i) in enumerate(mf):
        kind, h = ph
        if i == 0:
            main, adr = side_for(ph)
            plan = [[] for _ in range(16)]
            for k, it in enumerate(adr): plan[k * 12 // max(len(adr), 1)].append(it)
            s0 = 1 if ph == ("qk", 1) else 0
            for k, it in enumerate(main): plan[s0 + k * (16 - s0) // len(main)].append(it)
        A.wait_ds(rid[n])
        fr = FR + 4 * (n % 4)
        if kind == "qk":
            kt, ks = i // 8, i % 8
            c = None
            if ks == 0: c = "zero" if h <= 1 else NEGM
            A.mfma(SB(h) + 16 * kt, fr, QB + 4 * ks, c)
        else:
            g, t = i // 4, i % 4
            A.mfma(O + 16 * t, fr, PB(h) + 4 * g, "zero" if (h == 0 and g == 0) else None)
        if n in sync_pos:
            k = sync_pos.index(n)
            pub = publish_set(n, sync_pos[k + 1] if k + 1 < len(sync_pos) else 10**9)
            while dmaq: dmaq.pop(0)()
            A.wait_ds_all()
            A.wait_vm(max(unit_last_vm[u] for u in pub))
            A.barrier()
            PF.stamp(f"x{h}")
            if k == 0: free.extend(xch)
            for u, lr in last_read.items():
                if lr < n and u not in freed:
                    freed.add(u); free.append(unit_slot[u])
            refill_att()
            if OPT["fuse"] == 6:
                if h == 1: K2.loads()
                if h == 2: K2.scalars()
                if h == 3: K2.addr6()
                if h >= OPT["wo0"]:
                    assert nkv[0] == 16
                    while free and len(K2.slots6) < 8:
                        j = len(K2.slots6); K2.slots6.append(free.pop(0))
                        if h < 6 or OPT["wo6"]:
                            dmaq.extend([lambda j=j, q=q: K2.wo_piece(j >> 1, (j & 1) * 2 + q) for q in range(2)])
                            K2.done6 = j + 1
            elif OPT["fuse"]:
                if h == 4: K2.loads()
                if h == 5: K2.scalars()
                if h == 6:
                    assert len(free) >= 8, free
                    its = K2.wo_items(free[:8])
                    K2.mslot = free[8]
                    if OPT["fuse"] < 3: dmaq.extend(its)
            if OPT["wopf"] and h == OPT["wopf"] - 1:
                A.salu("s_load_dwordx2 s[60:61], s[0:1], 32")
                A.salu("s_load_dwordx2 s[62:63], s[0:1], 72")
                if OPT["xm"]:
                    A.salu(f"s_lshr_b32 s3, s2, 3")
                    A.salu(f"s_lshl_b32 s3, s3, 3")
                    A.salu(f"s_add_u32 s3, s3, s{sW}")
                    A.salu(f"s_mul_i32 s3, s3, {16*1152}")
                    A.salu(f"s_and_b32 s{sT}, s2, 1")
                    A.salu(f"s_lshl_b32 s{sT}, s{sT}, 9")
                    A.salu(f"s_add_u32 s3, s3, s{sT}")
                    V(f"v_mbcnt_lo_u32_b32 v{T6}, -1, 0", w={T6})
                    V(f"v_mbcnt_hi_u32_b32 v{T6}, -1, v{T6}", w={T6}, r={T6})
                    V(f"v_lshrrev_b32 v{T7}, 2, v{T6}", w={T7}, r={T6})
                    V(f"v_mul_u32_u24 v{T7}, 1152, v{T7}", w={T7}, r={T7})
                    V(f"v_and_b32 v{T6}, 3, v{T6}", w={T6}, r={T6})
                    V(f"v_lshl_add_u32 v{T6}, v{T6}, 7, v{T7}", w={T6}, r={T6, T7})
                else:
                    if OPT["wox"]:
                        A.salu(f"s_lshr_b32 s3, s2, 5")
                        A.salu(f"s_lshl_b32 s3, s3, 4")
                        A.salu(f"s_bfe_u32 s{sT}, s2, 0x20003")
                        A.salu(f"s_add_u32 s3, s3, s{sT}")
                    else:
                        A.salu(f"s_lshl_b32 s3, s{sB}, 4")
                        A.salu(f"s_add_u32 s3, s3, s{sKVH}")
                    A.salu(f"s_mul_i32 s3, s3, 288")
                    A.salu(f"s_lshl_b32 s{sT}, s{sW}, 6")
                    A.salu(f"s_min_u32 s{sT}, s{sT}, 224")
                    A.salu(f"s_add_u32 s3, s3, s{sT}")
                    A.salu(f"s_lshl_b32 s3, s3, 7")
                    V(f"v_mbcnt_lo_u32_b32 v{T7}, -1, 0", w={T7})
                    V(f"v_mbcnt_hi_u32_b32 v{T7}, -1, v{T7}", w={T7}, r={T7})
                    V(f"v_lshlrev_b32 v{T7}, 7, v{T7}", w={T7}, r={T7})
                A.salu("s_waitcnt lgkmcnt(0)")
                A.salu(f"s_cmp_eq_u32 s{sBLK}, 0")
                A.salu("s_cselect_b32 s60, s60, s62")
                A.salu("s_cselect_b32 s61, s61, s63")
                A.salu("s_and_b32 s61, s61, 0xffff")
                A.salu(f"s_mov_b32 s62, {4096*576*2}")
                A.salu("s_mov_b32 s63, 0x00020000")
                if OPT["xm"]:
                    A.salu("s_mov_b32 exec_lo, 0x88888888")
                    A.salu("s_mov_b32 exec_hi, 0x88888888")
                    A.vmem(f"buffer_load_dword v{T7}, v{T6}, s[60:63], s3 offen offset:128", w={T7}, r={T6})
                    A.salu("s_mov_b64 exec, -1")
                TA_ = T6 if OPT["xm"] else T7
                A.vmem(f"buffer_load_dword v{T7}, v{TA_}, s[60:63], s3 offen", w={T7}, r={TA_})
        if n + 4 < len(mf): issue_read(n + 4)
        for it in plan[i]: it()
        gap += 1
        if dmaq and gap >= OPT["dmagap"]:
            dmaq.pop(0)(); gap = 0
        if i == 15:
            if kind == "qk" and h >= 1: check(h - 1)
            if ph == ("pv", 6): check(7)
    assert not dmaq
    PF.stamp("pv7")
    V(f"v_mov_b32 v{T0}, v{LSUM}", w={T0}, r={LSUM})
    V(f"v_permlane32_swap_b32 v{T0}, v{LSUM}", w={T0, LSUM}, r={T0, LSUM}, kind="perm")
    V(f"v_add_f32 v{T0}, v{T0}, v{LSUM}", w={T0}, r={T0, LSUM})
    V(f"v_rcp_f32 v{T0}, v{T0}", w={T0}, r={T0}, kind="trans")
    A.salu(f"s_cmp_eq_u32 s{sRT}, 3")
    A.salu("s_cbranch_scc0 K1_NOMASK")
    A.salu("s_mov_b32 exec_lo, 0xffff")
    A.salu("s_mov_b32 exec_hi, 0xffff")
    A.label("K1_NOMASK")
    for f in range(8):
        b0 = O + 8 * f
        for i in range(8):
            V(f"v_mul_f32 v{b0+i}, v{T0}, v{b0+i}", w={b0 + i}, r={T0, b0 + i})
        d = P + 4 * f
        for q in range(4):
            V(f"v_cvt_pk_bf16_f32 v{d+q}, v{b0+2*q}, v{b0+2*q+1}", w={d + q}, r={b0 + 2 * q, b0 + 2 * q + 1})
        A.vmem(f"buffer_store_dwordx4 {vname(d,4)}, v{OST}, s[{SO}:{SO+3}], s{sOB} offen offset:{f*512}{' sc1' if OPT['fuse'] else ' nt' if OPT['ntst'] else ''}", r=vr(d, 4) | {OST}, storedata=vr(d, 4))
    if OPT["fuse"]:
        K2.body(PF, sBLK, sB, sKVH)
    PF.dump(24, sW, 0)
    A.label("K1_END")
    A.salu("s_endpgm")
    for h in range(1, 8):
        A.label(f"K1_SLOW{h}")
        A.flush_hazards()
        sb = SB(h)
        for it in max_items([sb + i for i in range(32)], True, True): it()
        V(f"v_max_f32 v{MX}, 0, v{MX}", w={MX}, r={MX})
        V(f"v_sub_f32 v{MX2}, 0, v{MX}", w={MX2}, r={MX})
        V(f"v_exp_f32 v{MX2}, v{MX2}", w={MX2}, r={MX2}, kind="trans")
        for i in range(64):
            V(f"v_mul_f32 v{O+i}, v{MX2}, v{O+i}", w={O + i}, r={MX2, O + i})
        V(f"v_mul_f32 v{LSUM}, v{MX2}, v{LSUM}", w={LSUM}, r={MX2, LSUM})
        for i in range(16):
            V(f"v_sub_f32 v{NEGM+i}, v{NEGM+i}, v{MX}", w={NEGM + i}, r={NEGM + i, MX})
        if h < 7:
            s2 = SB(h + 1)
            for i in range(32):
                V(f"v_sub_f32 v{s2+i}, v{s2+i}, v{MX}", w={s2 + i}, r={s2 + i, MX})
        for it in sm_items(h, 0, 32, True): it()
        V(f"v_add_f32 v{SUMA}, v{SUMA}, v{SUMB}", w={SUMA}, r={SUMA, SUMB})
        A.flush_hazards()
        A.salu(f"s_branch K1_BACK{h}")

class K2Fused:
    def __init__(self, A, sW, SO, WOFF):
        self.A = A; self.sW = sW; self.SO = SO; self.WOFF = WOFF
        self.SWO, self.SOUT, self.SDBG = 28, 32, 20
        self.sBLK, self.sTT, self.sMT, self.sNT = 16, 17, 18, 19
        self.sWL, self.sWB, self.sO0, self.sO1, self.sT = 49, 50, 8, 9, 52
        self.sP0, self.sP1 = 10, 11
        self.last_vm = {}
    def loads(self):
        A = self.A
        A.salu("s_load_dwordx2 s[8:9], s[0:1], 32")
        A.salu("s_load_dwordx2 s[10:11], s[0:1], 72")
        A.salu("s_load_dwordx2 s[12:13], s[0:1], 80")
        A.salu("s_load_dwordx2 s[14:15], s[0:1], 88")
    def scalars(self):
        A = self.A; sW = self.sW
        sBLK, sTT, sMT, sNT = self.sBLK, self.sTT, self.sMT, self.sNT
        A.salu("s_waitcnt lgkmcnt(0)")
        if OPT["xm"]:
            A.salu("s_bitcmp1_b32 s2, 2")
            A.salu(f"s_cselect_b32 s{sBLK}, 1, 0")
            A.salu("s_cselect_b32 s8, s10, s8")
            A.salu("s_cselect_b32 s9, s11, s9")
            srd(A, self.SWO, 8, 4096 * 576 * 2)
            srd(A, self.SOUT, 12, 896 * 1152 * 2)
            srd(A, self.SDBG, 14, 256)
            A.salu("s_lshr_b32 s3, s2, 3")
            A.salu("s_and_b32 s12, s2, 1")
            A.salu(f"s_lshr_b32 s{sMT}, s3, 2")
            A.salu(f"s_and_b32 s{sNT}, s3, 3")
            A.salu("s_mul_i32 s13, s12, 5")
            A.salu(f"s_add_u32 s{sNT}, s{sNT}, s13")
            A.salu("s_lshl_b32 s13, s12, 2")
            A.salu("s_add_u32 s13, s13, s3")
            A.salu("s_sub_u32 s13, s13, 28")
            A.salu("s_cmp_ge_u32 s3, 28")
            A.salu(f"s_cselect_b32 s{sMT}, s13, s{sMT}")
            A.salu(f"s_cselect_b32 s{sNT}, 4, s{sNT}")
            A.salu(f"s_cmp_eq_u32 s{sMT}, 7")
            A.salu(f"s_cselect_b32 s{sTT}, 255, 0")
            A.salu(f"s_min_u32 s{sMT}, s{sMT}, 6")
            A.salu("s_bfe_u32 s13, s2, 0x10001")
            A.salu("s_mul_i32 s13, s13, 7")
            A.salu(f"s_add_u32 s{sMT}, s{sMT}, s13")
        else:
            A.salu("s_and_b32 s3, s2, 7")
            A.salu("s_lshl_b32 s3, s3, 5")
            A.salu(f"s_lshr_b32 s{sTT}, s2, 3")
            A.salu(f"s_add_u32 s{sTT}, s3, s{sTT}")
            A.salu(f"s_min_u32 s3, s{sTT}, 251")
            A.salu("s_cmp_ge_u32 s3, 126")
            A.salu(f"s_cselect_b32 s{sBLK}, 1, 0")
            A.salu("s_cselect_b32 s8, s10, s8")
            A.salu("s_cselect_b32 s9, s11, s9")
            srd(A, self.SWO, 8, 4096 * 576 * 2)
            srd(A, self.SOUT, 12, 896 * 1152 * 2)
            srd(A, self.SDBG, 14, 256)
            A.salu(f"s_mul_i32 s12, s{sBLK}, 126")
            A.salu("s_sub_u32 s3, s3, s12")
            A.salu("s_mul_i32 s12, s3, 57")
            A.salu(f"s_lshr_b32 s{sMT}, s12, 9")
            A.salu(f"s_mul_i32 s12, s{sMT}, 9")
            A.salu(f"s_sub_u32 s{sNT}, s3, s12")
        A.salu(f"s_mul_i32 s{self.sWB}, s{sW}, {(32 if OPT['fuse'] == 5 else 512)*1152}")
        A.salu(f"s_lshl_b32 s12, s{sNT}, 7")
        A.salu(f"s_add_u32 s{self.sWB}, s{self.sWB}, s12")
        A.salu(f"s_mul_i32 s{self.sO0}, s{sBLK}, {O_BLK}")
        A.salu(f"s_lshl_b32 s12, s{sMT}, 19")
        A.salu(f"s_add_u32 s{self.sO0}, s{self.sO0}, s12")
        A.salu(f"s_lshl_b32 s12, s{sW}, {10 if OPT['fuse'] == 5 else 14}")
        A.salu(f"s_add_u32 s{self.sO0}, s{self.sO0}, s12")
        A.salu(f"s_add_u32 s{self.sO1}, s{self.sO0}, {2*131072}")
        if OPT["ntf"]:
            A.salu(f"s_lshl_b32 s12, s{sBLK}, 6")
            A.salu("s_add_u32 s12, s12, 128")
        else:
            A.salu(f"s_lshl_b32 s12, s{sBLK}, 7")
            A.salu(f"s_lshr_b32 s13, s{sW}, 1")
            A.salu("s_lshl_b32 s13, s13, 2")
            A.salu("s_add_u32 s12, s12, s13")
        sh = 2 if OPT["ntf"] else 4
        A.salu(f"s_mul_i32 s13, s{sMT}, 148")
        A.salu(f"s_lshr_b32 s{self.sP0}, s13, 8")
        A.salu(f"s_lshl_b32 s{self.sP0}, s{self.sP0}, {sh}")
        A.salu(f"s_add_u32 s{self.sP0}, s{self.sP0}, s12")
        A.salu("s_add_u32 s13, s13, 111")
        A.salu(f"s_lshr_b32 s{self.sP1}, s13, 8")
        A.salu(f"s_lshl_b32 s{self.sP1}, s{self.sP1}, {sh}")
        A.salu(f"s_add_u32 s{self.sP1}, s{self.sP1}, s12")
    def addr_items(self):
        V = self.A.valu; W = self.WOFF
        L, T1, T2, T4 = W + 4, W + 5, W + 6, W + 7
        return [
            lambda: V(f"v_mbcnt_lo_u32_b32 v{L}, -1, 0", w={L}),
            lambda: V(f"v_mbcnt_hi_u32_b32 v{L}, -1, v{L}", w={L}, r={L}),
            lambda: V(f"v_lshrrev_b32 v{T1}, 3, v{L}", w={T1}, r={L}),
            lambda: V(f"v_mul_u32_u24 v{T1}, 1152, v{T1}", w={T1}, r={T1}),
            lambda: V(f"v_bfe_u32 v{T2}, v{L}, 4, 1", w={T2}, r={L}),
            lambda: V(f"v_lshlrev_b32 v{T2}, 2, v{T2}", w={T2}, r={T2}),
            lambda: V(f"v_and_b32 v{T4}, 7, v{L}", w={T4}, r={L}),
            lambda: V(f"v_xor_b32 v{T4}, v{T4}, v{T2}", w={T4}, r={T4, T2}),
            lambda: V(f"v_lshl_add_u32 v{W}, v{T4}, 4, v{T1}", w={W}, r={T4, T1}),
        ] + [lambda i=i: V(f"v_add_u32 v{W+i}, {9216*i}, v{W}", w={W + i}, r={W}) for i in range(1, 4)]
    def addr6(self):
        V = self.A.valu
        W, L, T1 = 6, 13, 12
        V(f"v_mbcnt_lo_u32_b32 v{L}, -1, 0", w={L})
        V(f"v_mbcnt_hi_u32_b32 v{L}, -1, v{L}", w={L}, r={L})
        V(f"v_lshrrev_b32 v{T1}, 3, v{L}", w={T1}, r={L})
        V(f"v_mul_u32_u24 v{T1}, 1152, v{T1}", w={T1}, r={T1})
        V(f"v_and_b32 v{W}, 7, v{L}", w={W}, r={L})
        V(f"v_bfe_u32 v{L}, v{L}, 4, 1", w={L}, r={L})
        V(f"v_lshlrev_b32 v{L}, 2, v{L}", w={L}, r={L})
        V(f"v_xor_b32 v{W}, v{W}, v{L}", w={W}, r={W, L})
        V(f"v_lshl_add_u32 v{W}, v{W}, 4, v{T1}", w={W}, r={W, T1})
        self.A.salu(f"s_lshl_b32 s{self.sWL}, s{self.sW}, 11")
        self.slots6 = []
    def wo_piece(self, u, i):
        A = self.A; W = self.WOFF; S = self.SWO
        if OPT["fuse"] == 6:
            A.salu(f"s_add_u32 s{self.sT}, s{self.sWB}, {u * 32 * 1152 + i * 9216}")
            A.salu(f"s_add_u32 m0, s{self.sWL}, {self.slots6[2 * (u % 4) + (i >> 1)] * SLOT + (i & 1) * 1024}", m0w=True)
            A.vmem(f"buffer_load_dwordx4 v6, s[{S}:{S+3}], s{self.sT} offen{' nt' if OPT['ntwo'] else ''} lds", kind="dma", r={6}, m0r=True)
            return
        A.salu(f"s_add_u32 s{self.sT}, s{self.sWB}, {u * 32 * 1152}")
        A.salu(f"s_add_u32 m0, s{self.sWL}, {(u % 4) * 4096 + i * 1024}", m0w=True)
        A.vmem(f"buffer_load_dwordx4 v{W+i}, s[{S}:{S+3}], s{self.sT} offen{' nt' if OPT['ntwo'] else ''} lds", kind="dma", r={W + i}, m0r=True)
    def wo_items(self, slots):
        A = self.A
        tab = sum(s << (4 * w) for w, s in enumerate(slots))
        A.salu(f"s_lshl_b32 s3, s{self.sW}, 2")
        A.salu(f"s_lshr_b32 s3, {tab:#x}, s3")
        A.salu("s_and_b32 s3, s3, 15")
        A.salu(f"s_lshl_b32 s{self.sWL}, s3, 14")
        return [lambda u=u, i=i: self.wo_piece(u, i) for u in range(4) for i in range(4)]
    def dyn(self, PF, L, OOFF, BA, AF, OF, ACC):
        A = self.A; V = A.valu; sW = self.sW; SO = self.SO; SDBG = self.SDBG; W = self.WOFF; S = self.SWO
        T1, T2, T3, T4 = 1, 2, 3, 4
        PD = 8
        vPA, vMA, vT, vM = W + 4, W + 5, W + 6, W + 7
        sPM, sCNT, sDONE, sJ, sA, sB_ = 60, 62, 63, 12, 13, 14
        V(f"v_mov_b32 v{vPA}, s{self.sP1}", w={vPA})
        V(f"v_mov_b32 v{T4}, s{self.sP0}", w={T4})
        V(f"v_cmp_gt_u32 vcc, 16, v{L}", r={L}, sw={"vcc"})
        V(f"v_cndmask_b32 v{vPA}, v{vPA}, v{T4}, vcc", w={vPA}, r={vPA, T4}, sr={"vcc"})
        V(f"v_and_b32 v{T4}, 15, v{L}", w={T4}, r={L})
        V(f"v_add_u32 v{vPA}, v{T4}, v{vPA}", w={vPA}, r={vPA, T4})
        V(f"v_mov_b32 v{vMA}, {self.mslot * SLOT}", w={vMA})
        V(f"v_mov_b32 v{vT}, 0", w={vT})
        A.ds(f"ds_write_b32 v{vMA}, v{vT}", r={vMA, vT})
        A.salu(f"s_cmp_eq_u32 s{sW}, 0")
        A.salu(f"s_cselect_b32 s{sPM}, -1, 0")
        A.salu(f"s_mov_b32 s{sPM+1}, 0")
        A.salu(f"s_mov_b32 s{sCNT}, 0x40000")
        A.salu(f"s_mov_b32 s{sDONE}, 0")
        A.salu(f"s_mov_b32 s15, 0")
        A.waitcnt(vm=0, lgkm=0); A.vm_done = A.nvm; A.ds_done = A.nds
        PF.stamp("st")
        A.barrier()
        A.salu("s_cbranch_scc0 K1_NOFLAG")
        A.salu("s_mov_b64 exec, 1")
        A.salu(f"buffer_atomic_add v{T2}, v{T1}, s[{SDBG}:{SDBG+3}], 0 offen sc1")
        A.salu("s_mov_b64 exec, -1")
        A.label("K1_NOFLAG")
        A.salu(f"s_cmp_ge_u32 s{self.sTT}, 252")
        A.salu("s_cbranch_scc1 K1_END")
        def poll(r, counted=True):
            A.salu(f"s_mov_b64 exec, s[{sPM}:{sPM+1}]")
            txt = f"buffer_load_ubyte v{PD+r}, v{vPA}, s[{SDBG}:{SDBG+3}], 0 offen sc1"
            if counted: A.vmem(txt, w={PD + r}, r={vPA})
            else: A.salu(txt)
            A.salu("s_mov_b64 exec, -1")
        def consume(r):
            A.salu(f"s_mov_b64 exec, s[{sPM}:{sPM+1}]")
            V(f"v_cmp_ne_u32 vcc, 0, v{PD+r}", r={PD + r}, sw={"vcc"})
            A.salu("s_nop 1")
            A.salu(f"s_lshr_b32 s{sA}, vcc_lo, 16")
            A.salu(f"s_and_b32 s{sA}, s{sA}, vcc_lo")
            A.salu(f"s_or_b32 s15, s15, s{sA}")
            V(f"v_mov_b32 v{vT}, s15", w={vT})
            A.ds(f"ds_write_b32 v{vMA}, v{vT}", r={vMA, vT})
            A.salu("s_mov_b64 exec, -1")
        def pick(k):
            A.label(f"K1_PK{k}")
            A.ds(f"ds_read_b32 v{vM}, v{vMA}", w={vM}, r={vMA})
            A.waitcnt(lgkm=0); A.ds_done = A.nds
            A._emit(I(f"v_readfirstlane_b32 s{sA}, v{vM}", "rdlane", r={vM}, sw={sA}))
            A.salu(f"s_andn2_b32 s{sA}, s{sA}, s{sDONE}", sr={sA})
            A.salu(f"s_cbranch_scc1 K1_PG{k}")
            poll(k % 4, False)
            A.salu("s_waitcnt vmcnt(0)")
            consume(k % 4)
            A.salu(f"s_sleep {OPT['slp']}")
            A.salu(f"s_sub_u32 s{sCNT}, s{sCNT}, 1")
            A.salu(f"s_cmp_lg_u32 s{sCNT}, 0")
            A.salu(f"s_cbranch_scc1 K1_PK{k}")
            A.salu(f"s_mov_b32 s{sCNT}, 1")
            A.salu(f"s_andn2_b32 s{sA}, 0xffff, s{sDONE}")
            A.label(f"K1_PG{k}")
            A.salu(f"s_ff1_i32_b32 s{sJ}, s{sA}")
            A.salu(f"s_bitset1_b32 s{sDONE}, s{sJ}")
        NU = 16; DEPTH = 4
        last_vm = {}
        def issue(u):
            slot = u % DEPTH
            pick(u)
            if self.first: PF.stamp("go"); self.first = False
            if 4 <= u: poll(u % 4)
            A.salu(f"s_mul_i32 s{sA}, s{sJ}, {256*1152}")
            A.salu(f"s_add_u32 s{sA}, s{sA}, s{self.sWB}")
            for i in range(4):
                A.salu(f"s_add_u32 m0, s{self.sWL}, {slot * 4096 + i * 1024}", m0w=True)
                A.vmem(f"buffer_load_dwordx4 v{W+i}, s[{S}:{S+3}], s{sA} offen{' nt' if OPT['ntwo'] else ''} lds", kind="dma", r={W + i}, m0r=True)
            A.salu(f"s_lshl_b32 s{sJ}, s{sJ}, 13")
            A.salu(f"s_add_u32 s{sA}, s{sJ}, s{self.sO0}")
            A.salu(f"s_add_u32 s{sB_}, s{sJ}, s{self.sO1}")
            for ks in range(2):
                for tm in range(2):
                    d = OF + slot * 16 + (ks * 2 + tm) * 4
                    k = A.vmem(f"buffer_load_dwordx4 {vname(d,4)}, v{OOFF}, s[{SO}:{SO+3}], s{sA if tm == 0 else sB_} offen offset:{ks*512} sc1", w=vr(d, 4), r={OOFF})
            last_vm[u] = k
        def dsreads(u):
            slot = u % DEPTH
            ab = AF + (u % 2) * 16
            for ks in range(2):
                for tn in range(2):
                    for j in range(2):
                        k = A.ds_read_tr(ab + (ks * 2 + tn) * 4 + 2 * j, BA + tn, slot * 4096 + (16 * ks + 8 * j) * 128)
            return k
        self.first = True
        for u in range(DEPTH): issue(u)
        A.wait_vm(last_vm[0])
        pend = dsreads(0)
        for u in range(NU):
            A.wait_ds(pend)
            if u + 1 < NU:
                A.wait_vm(last_vm[u + 1])
                if u + 1 >= 4 and u + DEPTH < NU: consume((u + 1) % 4)
                pend = dsreads(u + 1)
            ab = AF + (u % 2) * 16
            ob = OF + (u % DEPTH) * 16
            for ks in range(2):
                for tn in range(2):
                    for tm in range(2):
                        c = "zero" if (u == 0 and ks == 0) else None
                        A.mfma(ACC + (tn * 2 + tm) * 16, ab + (ks * 2 + tn) * 4, ob + (ks * 2 + tm) * 4, c)
            if u + DEPTH < NU: issue(u + DEPTH)
            if u in (0, 7, 15): PF.stamp(f"u{u}")
    def body(self, PF, sBLK1, sB1, sKVH1):
        A = self.A; V = A.valu; sW = self.sW; SO = self.SO
        T0, T1, T2, T3, T4, T5, T6, T7 = 0, 1, 2, 3, 4, 5, 9, 8
        WOFF = self.WOFF; OOFF = 12; BA = 13; RED = 15; AF = 16; OF = 96; ACC = 160
        sBLK, sMT, sNT = self.sBLK, self.sMT, self.sNT
        SOUT, SDBG = self.SOUT, self.SDBG
        sWL, sO0, sO1, sT = self.sWL, self.sO0, self.sO1, self.sT
        L = T0
        A.salu("s_mov_b64 exec, -1")
        V(f"v_mbcnt_lo_u32_b32 v{L}, -1, 0", w={L})
        V(f"v_mbcnt_hi_u32_b32 v{L}, -1, v{L}", w={L}, r={L})
        V(f"v_bfe_u32 v{T2}, v{L}, 4, 1", w={T2}, r={L})
        V(f"v_lshrrev_b32 v{T1}, 5, v{L}", w={T1}, r={L})
        V(f"v_bfe_u32 v{T3}, v{L}, 2, 2", w={T3}, r={L})
        V(f"v_and_b32 v{T4}, 3, v{L}", w={T4}, r={L})
        V(f"v_lshlrev_b32 v{T6}, 17, v{T2}", w={T6}, r={T2})
        V(f"v_lshl_add_u32 v{T6}, v{T1}, 8, v{T6}", w={T6}, r={T1, T6})
        V(f"v_and_b32 v{T7}, 15, v{L}", w={T7}, r={L})
        V(f"v_lshl_add_u32 v{OOFF}, v{T7}, 4, v{T6}", w={OOFF}, r={T7, T6})
        V(f"v_lshl_add_u32 v{T6}, v{T1}, 2, v{T3}", w={T6}, r={T1, T3})
        V(f"v_lshlrev_b32 v{T6}, 7, v{T6}", w={T6}, r={T6})
        V(f"v_lshrrev_b32 v{T7}, 1, v{T4}", w={T7}, r={T4})
        V(f"v_lshl_add_u32 v{T7}, v{T2}, 1, v{T7}", w={T7}, r={T2, T7})
        V(f"v_lshrrev_b32 v{T5}, 1, v{T3}", w={T5}, r={T3})
        V(f"v_lshlrev_b32 v{T5}, 2, v{T5}", w={T5}, r={T5})
        V(f"v_xor_b32 v{T7}, v{T7}, v{T5}", w={T7}, r={T7, T5})
        V(f"v_lshl_add_u32 v{T6}, v{T7}, 4, v{T6}", w={T6}, r={T7, T6})
        V(f"v_and_b32 v{T7}, 1, v{T4}", w={T7}, r={T4})
        V(f"v_lshl_add_u32 v{T6}, v{T7}, 3, v{T6}", w={T6}, r={T7, T6})
        V(f"v_add_u32 v{BA}, s{sWL}, v{T6}", w={BA}, r={T6})
        V(f"v_xor_b32 v{BA+1}, 64, v{BA}", w={BA + 1}, r={BA})
        if OPT["fuse"] == 6:
            for q in range(1, 3):
                for tn in range(2):
                    V(f"v_add_u32 v{64+2*q+tn}, {q*65536}, v{BA+tn}", w={64 + 2 * q + tn}, r={BA + tn})
        V(f"v_lshlrev_b32 v{RED}, 4, v{L}", w={RED}, r={L})
        if OPT["ntf"]:
            A.salu(f"s_lshl_b32 s12, s{sBLK1}, 6")
            A.salu(f"s_lshl_b32 s13, s{sB1}, 2")
            A.salu("s_add_u32 s12, s12, s13")
            A.salu("s_mov_b32 s13, 1")
        else:
            A.salu(f"s_lshl_b32 s12, s{sBLK1}, 7")
            A.salu(f"s_lshl_b32 s13, s{sB1}, 4")
            A.salu("s_add_u32 s12, s12, s13")
            A.salu(f"s_and_b32 s13, s{sKVH1}, 12")
            A.salu("s_add_u32 s12, s12, s13")
            A.salu(f"s_and_b32 s13, s{sKVH1}, 3")
            A.salu("s_lshl_b32 s13, s13, 3")
            A.salu("s_lshl_b32 s13, 1, s13")
        V(f"v_mov_b32 v{T1}, s12", w={T1})
        V(f"v_mov_b32 v{T2}, s13", w={T2})
        if OPT["ntf"]:
            V(f"v_mov_b32 v{T3}, s{self.sP1}", w={T3})
            V(f"v_writelane_b32 v{T3}, s{self.sP0}, 0", w={T3}, r={T3})
            V(f"v_mov_b32 v{T5}, 1", w={T5})
            A.salu("s_mov_b32 s14, 1")
        elif OPT["fuse"] == 5:
            self.dyn(PF, L, OOFF, BA, AF, OF, ACC)
        elif OPT["fuse"] == 1:
            V(f"v_mov_b32 v{T3}, s{self.sP1}", w={T3})
            V(f"v_writelane_b32 v{T3}, s{self.sP0}, 0", w={T3}, r={T3})
            A.salu(f"s_and_b32 s14, s{sW}, 1")
            A.salu("s_lshl_b32 s14, s14, 4")
            A.salu("s_lshl_b32 s14, 0x101, s14")
        else:
            V(f"v_mov_b32 v{T3}, s{self.sP1}", w={T3})
            V(f"v_mov_b32 v{T4}, s{self.sP0}", w={T4})
            V(f"v_cmp_gt_u32 vcc, 4, v{L}", r={L}, sw={"vcc"})
            V(f"v_cndmask_b32 v{T3}, v{T3}, v{T4}, vcc", w={T3}, r={T3, T4}, sr={"vcc"})
            V(f"v_and_b32 v{T4}, 3, v{L}", w={T4}, r={L})
            V(f"v_lshl_add_u32 v{T3}, v{T4}, 2, v{T3}", w={T3}, r={T3, T4})
            A.salu("s_mov_b32 s14, 0x01010101")
        if OPT["fuse"] != 5:
            A.salu("s_mov_b32 s15, 0x40000")
            A.waitcnt(vm=0); A.vm_done = A.nvm
            PF.stamp("st")
            A.barrier()
            A.salu(f"s_cmp_eq_u32 s{sW}, 0")
            A.salu("s_cbranch_scc0 K1_NOFLAG")
            A.salu("s_mov_b64 exec, 1")
            if OPT["ntf"]:
                A.salu(f"buffer_atomic_add v{T2}, v{T1}, s[{SDBG}:{SDBG+3}], 0 offen sc0 sc1")
                A.salu("s_waitcnt vmcnt(0)")
                A.salu(f"v_cmp_eq_u32 vcc, 15, v{T2}")
                A.salu("s_nop 1")
                A.salu("s_cbranch_vccz K1_NOFLAG")
                A.salu(f"buffer_store_dword v{T5}, v{T1}, s[{SDBG}:{SDBG+3}], 0 offen offset:128 sc1")
            elif OPT["exp"] != 1: A.salu(f"buffer_atomic_add v{T2}, v{T1}, s[{SDBG}:{SDBG+3}], 0 offen sc1")
            A.label("K1_NOFLAG")
            A.salu(f"s_cmp_ge_u32 s{self.sTT}, 252")
            A.salu("s_cbranch_scc1 K1_END")
            if OPT["exp"]:
                for _ in range(3): A.salu("s_sleep 64")
                A.salu("s_branch K1_GO")
            if OPT["fuse"] == 6:
                A.salu("s_mov_b64 exec, -1")
                for j in range(self.done6, 8):
                    for q in range(2): self.wo_piece(j >> 1, (j & 1) * 2 + q)
            if OPT["fuse"] == 1:
                A.salu("s_mov_b64 exec, 3")
            else:
                A.salu(f"s_cmp_eq_u32 s{sW}, 0")
                A.salu("s_cbranch_scc0 K1_GO" if OPT["fuse"] != 3 else "s_cbranch_scc0 K1_WO")
                A.salu("s_mov_b64 exec, 3" if OPT["ntf"] else "s_mov_b64 exec, 0xff")
            A.label("K1_POLL")
            A.salu(f"buffer_load_dword v{T4}, v{T3}, s[{SDBG}:{SDBG+3}], 0 offen sc1")
            A.salu("s_waitcnt vmcnt(0)")
            A.salu(f"v_and_b32 v{T4}, s14, v{T4}")
            A.salu(f"v_cmp_ne_u32 vcc, s14, v{T4}")
            A.salu("s_nop 1")
            A.salu("s_cbranch_vccz K1_GO")
            A.salu(f"s_sleep {OPT['slp']}")
            A.salu("s_sub_u32 s15, s15, 1")
            A.salu("s_cmp_lg_u32 s15, 0")
            A.salu("s_cbranch_scc1 K1_POLL")
            A.label("K1_GO")
            A.salu("s_mov_b64 exec, -1")
            if OPT["fuse"] == 3:
                A.barrier()
                A.label("K1_WO")
                for u in range(4):
                    for i in range(4): self.wo_piece(u, i)
                A.salu(f"s_cmp_eq_u32 s{sW}, 0")
                A.salu("s_cbranch_scc1 K1_GO2")
                A.barrier()
                A.label("K1_GO2")
            elif OPT["fuse"] > 1: A.barrier()
            PF.stamp("go")
            NU = 16; DEPTH = 4
            last_vm = {}
            def issue(u, wo=True):
                slot = u % DEPTH
                if wo:
                    for i in range(4): self.wo_piece(u, i)
                for ks in range(2):
                    for tm in range(2):
                        d = OF + slot * 16 + (ks * 2 + tm) * 4
                        off = (2 * u + ks) * 512
                        sb = sO0 if tm == 0 else sO1
                        if off >= 4096:
                            A.salu(f"s_add_u32 s{sT}, s{sb}, {off & ~4095}")
                            sb = sT
                        k = A.vmem(f"buffer_load_dwordx4 {vname(d,4)}, v{OOFF}, s[{SO}:{SO+3}], s{sb} offen offset:{off & 4095} sc1", w=vr(d, 4), r={OOFF})
                last_vm[u] = k
            def dsreads(u):
                slot = u % DEPTH
                ab = AF + (u % 2) * 16
                for ks in range(2):
                    for tn in range(2):
                        for j in range(2):
                            if OPT["fuse"] == 6:
                                o_ = self.slots6[2 * slot + ks] * SLOT + j * 1024
                                k = A.ds_read_tr(ab + (ks * 2 + tn) * 4 + 2 * j, (BA if o_ < 65536 else 64 + 2 * (o_ >> 16)) + tn, o_ & 65535)
                            else:
                                k = A.ds_read_tr(ab + (ks * 2 + tn) * 4 + 2 * j, BA + tn, slot * 4096 + (16 * ks + 8 * j) * 128)
                return k
            for u in range(DEPTH): issue(u, OPT["fuse"] == 4)
            if OPT["fuse"] in (3, 4): A.wait_vm(last_vm[0])
            pend = dsreads(0)
            A.wait_vm(last_vm[0])
            for u in range(NU):
                A.wait_ds(pend)
                if u + 1 < NU:
                    A.wait_vm(last_vm[u + 1])
                    pend = dsreads(u + 1)
                ab = AF + (u % 2) * 16
                ob = OF + (u % DEPTH) * 16
                for ks in range(2):
                    for tn in range(2):
                        for tm in range(2):
                            c = "zero" if (u == 0 and ks == 0) else None
                            A.mfma(ACC + (tn * 2 + tm) * 16, ab + (ks * 2 + tn) * 4, ob + (ks * 2 + tm) * 4, c)
                if u + DEPTH < NU: issue(u + DEPTH)
                if u in (0, 7, 15): PF.stamp(f"u{u}")
        A.wait_ds_all()
        A.barrier()
        A.salu(f"s_lshl_b32 s12, s{sW}, 14")
        V(f"v_add_u32 v{T1}, s12, v{RED}", w={T1}, r={RED})
        for q in range(16):
            A.ds_write_b128(T1, ACC + 4 * q, q * 1024)
        A.wait_ds_all()
        A.barrier()
        A.salu(f"s_lshl_b32 s6, s{sW}, 11")
        V(f"v_add_u32 v{T1}, s6, v{RED}", w={T1}, r={RED})
        V(f"v_add_u32 v{T2}, 0x10000, v{T1}", w={T2}, r={T1})
        R = OF
        for ww in range(8):
            for q in range(2):
                A.ds_read_b128(R + (ww * 2 + q) * 4, T1 if ww < 4 else T2, (ww % 4) * 16384 + q * 1024)
            if ww == 5:
                A.wait_ds_all()
        A.wait_ds_all()
        for ww in range(1, 8):
            for i in range(8):
                V(f"v_add_f32 v{R+i}, v{R+i}, v{R+ww*8+i}", w={R + i}, r={R + i, R + ww * 8 + i})
        for q in range(4):
            V(f"v_cvt_pk_bf16_f32 v{AF+q}, v{R+2*q}, v{R+2*q+1}", w={AF + q}, r={R + 2 * q, R + 2 * q + 1})
        A.salu(f"s_lshr_b32 s6, s{sW}, 1")
        A.salu("s_and_b32 s7, s6, 1")
        A.salu("s_lshr_b32 s6, s6, 1")
        A.salu(f"s_lshl_b32 s3, s{sMT}, 6")
        A.salu("s_lshl_b32 s7, s7, 5")
        A.salu("s_add_u32 s3, s3, s7")
        A.salu("s_mul_i32 s3, s3, 2304")
        A.salu(f"s_mul_i32 s7, s{sBLK}, 1152")
        A.salu("s_add_u32 s3, s3, s7")
        A.salu(f"s_lshl_b32 s7, s{sNT}, 7")
        A.salu("s_add_u32 s3, s3, s7")
        A.salu("s_lshl_b32 s7, s6, 6")
        A.salu("s_add_u32 s3, s3, s7")
        A.salu(f"s_and_b32 s7, s{sW}, 1")
        A.salu("s_lshl_b32 s7, s7, 5")
        A.salu("s_add_u32 s3, s3, s7")
        V(f"v_and_b32 v{T1}, 31, v{L}", w={T1}, r={L})
        V(f"v_mul_u32_u24 v{T1}, 2304, v{T1}", w={T1}, r={T1})
        V(f"v_lshrrev_b32 v{T2}, 5, v{L}", w={T2}, r={L})
        V(f"v_lshl_add_u32 v{T1}, v{T2}, 3, v{T1}", w={T1}, r={T2, T1})
        A.vmem(f"buffer_store_dwordx2 {vname(AF,2)}, v{T1}, s[{SOUT}:{SOUT+3}], s3 offen", r=vr(AF, 2) | {T1})
        A.vmem(f"buffer_store_dwordx2 {vname(AF+2,2)}, v{T1}, s[{SOUT}:{SOUT+3}], s3 offen offset:16", r=vr(AF + 2, 2) | {T1})

def gen_k2(A):
    V = A.valu
    T0, T1, T2, T3, T4, T5, T6, T7 = range(0, 8)
    WOFF = 8
    OOFF = 12
    BA = 13
    RED = 15
    AF = 16
    OF = 48
    ACC = 112
    sBLK, sMT, sNT, sW = 26, 27, 4, 5
    SW_, SO, SOUT = 28, 32, 36
    sWL, sWB, sO0, sO1, sT = 48, 49, 50, 51, 52
    A.win = []
    A.nds = A.ds_done = A.nvm = A.vm_done = 0
    A.raw(f".p2align 8\n.globl k2_kernel\n.type k2_kernel,@function\nk2_kernel:")
    A.salu("s_cmp_ge_u32 s2, 256")
    A.salu("s_cbranch_scc1 K2_END")
    A.salu("s_and_b32 s3, s2, 7")
    A.salu("s_lshl_b32 s3, s3, 5")
    A.salu("s_lshr_b32 s6, s2, 3")
    A.salu("s_add_u32 s3, s3, s6")
    A.salu("s_cmp_ge_u32 s3, 252")
    A.salu("s_cbranch_scc1 K2_END")
    A.salu("s_load_dwordx2 s[8:9], s[0:1], 32")
    A.salu("s_load_dwordx2 s[10:11], s[0:1], 72")
    A.salu("s_load_dwordx2 s[12:13], s[0:1], 80")
    A.salu("s_load_dwordx2 s[14:15], s[0:1], 96")
    A.salu("s_cmp_ge_u32 s3, 126")
    A.salu(f"s_cselect_b32 s{sBLK}, 1, 0")
    A.salu(f"s_mul_i32 s6, s{sBLK}, 126")
    A.salu("s_sub_u32 s3, s3, s6")
    A.salu("s_mul_i32 s6, s3, 57")
    A.salu(f"s_lshr_b32 s{sMT}, s6, 9")
    A.salu(f"s_mul_i32 s6, s{sMT}, 9")
    A.salu(f"s_sub_u32 s{sNT}, s3, s6")
    V(f"v_lshrrev_b32 v{T1}, 6, v0", w={T1}, r={0})
    A._emit(I(f"v_readfirstlane_b32 s{sW}, v{T1}", "rdlane", r={T1}, sw={sW}))
    V(f"v_and_b32 v{T0}, 63, v0", w={T0}, r={0})
    L = T0
    A.salu(f"s_lshl_b32 s{sWL}, s{sW}, 14", sr={sW})
    A.salu(f"s_mul_i32 s{sWB}, s{sW}, {512*1152}", sr={sW})
    A.salu(f"s_lshl_b32 s6, s{sNT}, 7")
    A.salu(f"s_add_u32 s{sWB}, s{sWB}, s6")
    A.salu(f"s_mul_i32 s{sO0}, s{sBLK}, {O_BLK}")
    A.salu(f"s_lshl_b32 s6, s{sMT}, 19")
    A.salu(f"s_add_u32 s{sO0}, s{sO0}, s6")
    A.salu(f"s_lshl_b32 s6, s{sW}, 14")
    A.salu(f"s_add_u32 s{sO0}, s{sO0}, s6")
    A.salu(f"s_add_u32 s{sO1}, s{sO0}, {2*131072}")
    V(f"v_lshrrev_b32 v{T1}, 3, v{L}", w={T1}, r={L})
    V(f"v_mul_u32_u24 v{T1}, 1152, v{T1}", w={T1}, r={T1})
    V(f"v_bfe_u32 v{T2}, v{L}, 4, 1", w={T2}, r={L})
    V(f"v_lshlrev_b32 v{T3}, 2, v{T2}", w={T3}, r={T2})
    V(f"v_and_b32 v{T4}, 7, v{L}", w={T4}, r={L})
    V(f"v_xor_b32 v{T4}, v{T4}, v{T3}", w={T4}, r={T4, T3})
    V(f"v_lshl_add_u32 v{WOFF}, v{T4}, 4, v{T1}", w={WOFF}, r={T4, T1})
    for i in range(1, 4):
        V(f"v_add_u32 v{WOFF+i}, {9216*i}, v{WOFF}", w={WOFF + i}, r={WOFF})
    V(f"v_lshrrev_b32 v{T1}, 5, v{L}", w={T1}, r={L})
    V(f"v_bfe_u32 v{T3}, v{L}, 2, 2", w={T3}, r={L})
    V(f"v_and_b32 v{T4}, 3, v{L}", w={T4}, r={L})
    V(f"v_lshlrev_b32 v{T6}, 17, v{T2}", w={T6}, r={T2})
    V(f"v_lshl_add_u32 v{T6}, v{T1}, 8, v{T6}", w={T6}, r={T1, T6})
    V(f"v_and_b32 v{T7}, 15, v{L}", w={T7}, r={L})
    V(f"v_lshl_add_u32 v{OOFF}, v{T7}, 4, v{T6}", w={OOFF}, r={T7, T6})
    V(f"v_lshl_add_u32 v{T6}, v{T1}, 2, v{T3}", w={T6}, r={T1, T3})
    V(f"v_lshlrev_b32 v{T6}, 7, v{T6}", w={T6}, r={T6})
    V(f"v_lshrrev_b32 v{T7}, 1, v{T4}", w={T7}, r={T4})
    V(f"v_lshl_add_u32 v{T7}, v{T2}, 1, v{T7}", w={T7}, r={T2, T7})
    V(f"v_lshrrev_b32 v{T5}, 1, v{T3}", w={T5}, r={T3})
    V(f"v_lshlrev_b32 v{T5}, 2, v{T5}", w={T5}, r={T5})
    V(f"v_xor_b32 v{T7}, v{T7}, v{T5}", w={T7}, r={T7, T5})
    V(f"v_lshl_add_u32 v{T6}, v{T7}, 4, v{T6}", w={T6}, r={T7, T6})
    V(f"v_and_b32 v{T7}, 1, v{T4}", w={T7}, r={T4})
    V(f"v_lshl_add_u32 v{T6}, v{T7}, 3, v{T6}", w={T6}, r={T7, T6})
    V(f"v_add_u32 v{BA}, s{sWL}, v{T6}", w={BA}, r={T6})
    V(f"v_xor_b32 v{BA+1}, 64, v{BA}", w={BA + 1}, r={BA})
    V(f"v_lshlrev_b32 v{RED}, 4, v{L}", w={RED}, r={L})
    A.waitcnt(lgkm=0)
    A.salu(f"s_cmp_eq_u32 s{sBLK}, 0")
    A.salu("s_cselect_b32 s8, s8, s10")
    A.salu("s_cselect_b32 s9, s9, s11")
    srd(A, SW_, 8, 4096 * 576 * 2)
    srd(A, SO, 14, 2 * O_BLK)
    srd(A, SOUT, 12, 896 * 1152 * 2)

    NU = 16; DEPTH = 4
    last_vm = {}
    def issue(u):
        slot = u % DEPTH
        A.salu(f"s_add_u32 s{sT}, s{sWB}, {u * 32 * 1152}")
        for i in range(4):
            A.salu(f"s_add_u32 m0, s{sWL}, {slot * 4096 + i * 1024}", m0w=True)
            A.vmem(f"buffer_load_dwordx4 v{WOFF+i}, s[{SW_}:{SW_+3}], s{sT} offen{' nt' if OPT['ntwo'] else ''} lds", kind="dma", r={WOFF + i}, m0r=True)
        for ks in range(2):
            for tm in range(2):
                d = OF + slot * 16 + (ks * 2 + tm) * 4
                off = (2 * u + ks) * 512
                sb = sO0 if tm == 0 else sO1
                if off >= 4096:
                    A.salu(f"s_add_u32 s{sT}, s{sb}, {off & ~4095}")
                    k = A.vmem(f"buffer_load_dwordx4 {vname(d,4)}, v{OOFF}, s[{SO}:{SO+3}], s{sT} offen offset:{off & 4095}{' nt' if OPT['nto'] else ''}", w=vr(d, 4), r={OOFF})
                else:
                    k = A.vmem(f"buffer_load_dwordx4 {vname(d,4)}, v{OOFF}, s[{SO}:{SO+3}], s{sb} offen offset:{off}{' nt' if OPT['nto'] else ''}", w=vr(d, 4), r={OOFF})
        last_vm[u] = k
    def dsreads(u):
        slot = u % DEPTH
        ab = AF + (u % 2) * 16
        for ks in range(2):
            for tn in range(2):
                for j in range(2):
                    k = A.ds_read_tr(ab + (ks * 2 + tn) * 4 + 2 * j, BA + tn, slot * 4096 + (16 * ks + 8 * j) * 128)
        return k
    PF = Prof(A, 1)
    PF.stamp("start")
    for u in range(DEPTH): issue(u)
    A.wait_vm(last_vm[0])
    pend = dsreads(0)
    for u in range(NU):
        A.wait_ds(pend)
        if u + 1 < NU:
            A.wait_vm(last_vm[u + 1])
            pend = dsreads(u + 1)
        ab = AF + (u % 2) * 16
        ob = OF + (u % DEPTH) * 16
        for ks in range(2):
            for tn in range(2):
                for tm in range(2):
                    c = "zero" if (u == 0 and ks == 0) else None
                    A.mfma(ACC + (tn * 2 + tm) * 16, ab + (ks * 2 + tn) * 4, ob + (ks * 2 + tm) * 4, c)
        if u + DEPTH < NU: issue(u + DEPTH)
        PF.stamp(f"u{u}")
    A.wait_ds_all()
    A.barrier()
    V(f"v_add_u32 v{T1}, s{sWL}, v{RED}", w={T1}, r={RED})
    for q in range(16):
        A.ds_write_b128(T1, ACC + 4 * q, q * 1024)
    A.wait_ds_all()
    A.barrier()
    A.salu(f"s_lshl_b32 s6, s{sW}, 11")
    V(f"v_add_u32 v{T1}, s6, v{RED}", w={T1}, r={RED})
    V(f"v_add_u32 v{T2}, 0x10000, v{T1}", w={T2}, r={T1})
    R = OF
    for ww in range(8):
        for q in range(2):
            A.ds_read_b128(R + (ww * 2 + q) * 4, T1 if ww < 4 else T2, (ww % 4) * 16384 + q * 1024)
            if ww == 6 and q == 1: pass
        if ww == 5:
            A.wait_ds_all()
    A.wait_ds_all()
    for ww in range(1, 8):
        for i in range(8):
            V(f"v_add_f32 v{R+i}, v{R+i}, v{R+ww*8+i}", w={R + i}, r={R + i, R + ww * 8 + i})
    for q in range(4):
        V(f"v_cvt_pk_bf16_f32 v{AF+q}, v{R+2*q}, v{R+2*q+1}", w={AF + q}, r={R + 2 * q, R + 2 * q + 1})
    A.salu(f"s_lshr_b32 s6, s{sW}, 1")
    A.salu("s_and_b32 s7, s6, 1")
    A.salu("s_lshr_b32 s6, s6, 1")
    A.salu(f"s_lshl_b32 s3, s{sMT}, 6")
    A.salu("s_lshl_b32 s7, s7, 5")
    A.salu("s_add_u32 s3, s3, s7")
    A.salu("s_mul_i32 s3, s3, 2304")
    A.salu(f"s_mul_i32 s7, s{sBLK}, 1152")
    A.salu("s_add_u32 s3, s3, s7")
    A.salu(f"s_lshl_b32 s7, s{sNT}, 7")
    A.salu("s_add_u32 s3, s3, s7")
    A.salu("s_lshl_b32 s7, s6, 6")
    A.salu("s_add_u32 s3, s3, s7")
    A.salu(f"s_and_b32 s7, s{sW}, 1")
    A.salu("s_lshl_b32 s7, s7, 5")
    A.salu("s_add_u32 s3, s3, s7")
    V(f"v_and_b32 v{T1}, 31, v{L}", w={T1}, r={L})
    V(f"v_mul_u32_u24 v{T1}, 2304, v{T1}", w={T1}, r={T1})
    V(f"v_lshrrev_b32 v{T2}, 5, v{L}", w={T2}, r={L})
    V(f"v_lshl_add_u32 v{T1}, v{T2}, 3, v{T1}", w={T1}, r={T2, T1})
    A.vmem(f"buffer_store_dwordx2 {vname(AF,2)}, v{T1}, s[{SOUT}:{SOUT+3}], s3 offen", r=vr(AF, 2) | {T1})
    A.vmem(f"buffer_store_dwordx2 {vname(AF+2,2)}, v{T1}, s[{SOUT}:{SOUT+3}], s3 offen offset:16", r=vr(AF + 2, 2) | {T1})
    PF.dump(14, sW, 0)
    A.label("K2_END")
    A.salu("s_endpgm")

def kd(name, vgpr, sgpr):
    return f""".amdhsa_kernel {name}
  .amdhsa_next_free_vgpr {vgpr}
  .amdhsa_next_free_sgpr {sgpr}
  .amdhsa_accum_offset {(vgpr + 3) // 4 * 4}
  .amdhsa_group_segment_fixed_size 0
  .amdhsa_kernarg_size 104
  .amdhsa_user_sgpr_count 2
  .amdhsa_user_sgpr_kernarg_segment_ptr 1
  .amdhsa_system_sgpr_workgroup_id_x 1
.end_amdhsa_kernel
"""

def main():
    A = Asm()
    gen_k1(A)
    if not OPT["fuse"]: gen_k2(A)
    head = """; Two-launch GQA block pair: k1 = Q projection + attention (o -> ws), k2 = output projection.
; @launch kernel=k1_kernel grid=(256,1,1) block=(512,1,1) lds=163840
; @launch kernel=k2_kernel grid=(256,1,1) block=(512,1,1) lds=131072
.amdgcn_target "amdgcn-amd-amdhsa--gfx950"
.text
"""
    tail = '\n.section .rodata,"a"\n.p2align 6\n' + kd("k1_kernel", 256, 102 if OPT["prof"] else 64) + ".p2align 6\n" + kd("k2_kernel", 176, 102 if OPT["prof"] else 64)
    if OPT["fuse"]:
        head = """; GQA block pair in one launch: Q projection + attention, o handed over through ws, output projection.
; @launch kernel=k1_kernel grid=(256,1,1) block=(512,1,1) lds=163840
.amdgcn_target "amdgcn-amd-amdhsa--gfx950"
.text
"""
        tail = '\n.section .rodata,"a"\n.p2align 6\n' + kd("k1_kernel", 256, 102 if OPT["prof"] else 64)
    txt = head + A.text() + tail
    if "CODE_BYTES" in txt:
        import subprocess, re
        open("_p1.s", "w").write(txt.replace("CODE_BYTES", "0x12345"))
        subprocess.check_call(["clang", "-x", "assembler", "-target", "amdgcn-amd-amdhsa", "-mcpu=gfx950", "-c", "_p1.s", "-o", "_p1.o"])
        o = subprocess.check_output(["llvm-objdump", "-h", "_p1.o"]).decode()
        n = int(re.search(r"\.text\s+([0-9a-f]+)", o).group(1), 16)
        txt = txt.replace("CODE_BYTES", str(n))
    open(sys.argv[1], "w").write(txt)
    print("nops inserted:", A.nops_inserted, "lines:", len(A.out))

main()
```

```python
import sys, math
sys.path.insert(0, "gen")
from asmlib import *

NAME = "concat_heads__gqa_block_cached__gqa_block_cached__near_ridge"
OPT = dict(prio=1, prof=0, ntkv=1, ntw=0, ntx=0, ntwo=0, nto=0, ntst=0, nq=6, kvrate=1, l2pf=1, wopf=4, fat=1, bstep=1, dmagap=1, pflead=4, kv0=2, nstg=4, kvt=0, ld4=1, cpf=0, mid=0, kvt0=1, kvtr=1, roll=0, pfrate=1, kvs=0, rot=0, stag=0, qi=0, tlbw=0, ntt=0, fuse=0, slp=1, wox=0, xm=0, wo0=3, wo6=0, exp=0, ntf=0)
for a in sys.argv[2:]:
    k, v = a.split("="); OPT[k] = int(v)

O_BLK = 896 * 4096 * 2
SLOT = 16384
NSLOT = 10

def srd(A, d, base, nbytes):
    A.salu(f"s_mov_b32 s{d}, s{base}")
    A.salu(f"s_and_b32 s{d+1}, s{base+1}, 0xffff")
    A.salu(f"s_mov_b32 s{d+2}, {nbytes}")
    A.salu(f"s_mov_b32 s{d+3}, 0x00020000")

class Prof:
    def __init__(self, A, kidx):
        self.A = A; self.n = 0; self.names = []; self.kidx = kidx
    def stamp(self, name):
        A = self.A
        if OPT["prof"] == 2:
            sel = ["start", "q0", "a0", "pv7", "st", "go", "u15", "end"]
            if name in sel:
                A.salu("s_waitcnt lgkmcnt(0)")
                A.ds_done = A.nds
                A.salu("s_memrealtime s[96:97]")
                A.salu("s_waitcnt lgkmcnt(0)")
                if name == "start": A.salu("s_not_b32 s96, s96")
                A.salu(f"s_mov_b32 s{64+sel.index(name)}, s96")
            return
        if not OPT["prof"]: return
        assert self.n < 30
        A.salu("s_waitcnt lgkmcnt(0)")
        A.ds_done = A.nds
        A.salu("s_memtime s[96:97]")
        A.salu("s_waitcnt lgkmcnt(0)")
        A.salu(f"s_mov_b32 s{64+self.n}, s96")
        if self.n == 0:
            A.salu("s_memrealtime s[98:99]")
            A.salu("s_waitcnt lgkmcnt(0)")
        self.n += 1; self.names.append(name)
    def dump(self, wsreg, sW, tmp):
        if not OPT["prof"]: return
        A = self.A
        self.stamp("end")
        if OPT["prof"] == 2:
            A.salu("s_mov_b64 exec, -1")
            A.salu("s_nop 4")
            for i in range(8):
                A.salu(f"v_writelane_b32 v{tmp}, s{64+i}, {i}")
            A.salu(f"v_mbcnt_lo_u32_b32 v{tmp+1}, -1, 0")
            A.salu(f"v_lshlrev_b32 v{tmp+1}, 2, v{tmp+1}")
            A.salu("s_mov_b64 exec, 0xff")
            A.salu("s_nop 4")
            A.salu(f"buffer_atomic_umax v{tmp}, v{tmp+1}, s[20:23], 0 offen offset:32 sc1")
            return
        A.salu("s_memrealtime s[96:97]")
        A.salu("s_waitcnt lgkmcnt(0)")
        A.salu("s_mov_b64 exec, -1")
        A.salu("s_nop 4")
        for i in range(self.n):
            A.salu(f"v_writelane_b32 v{tmp}, s{64+i}, {i}")
        A.salu("s_getreg_b32 s97, hwreg(HW_REG_HW_ID)")
        A.salu(f"v_writelane_b32 v{tmp}, s97, 29")
        A.salu(f"v_writelane_b32 v{tmp}, s98, 30")
        A.salu(f"v_writelane_b32 v{tmp}, s96, 31")
        A.salu(f"s_mov_b32 s60, s{wsreg}")
        A.salu(f"s_and_b32 s61, s{wsreg+1}, 0xffff")
        A.salu("s_mov_b32 s62, 0x10000000")
        A.salu("s_mov_b32 s63, 0x00020000")
        A.salu("s_lshl_b32 s96, s2, 3")
        A.salu(f"s_add_u32 s96, s96, s{sW}")
        A.salu("s_lshl_b32 s96, s96, 7")
        A.salu(f"s_add_u32 s96, s96, {255*1024*1024 + self.kidx*512*1024}")
        A.salu(f"v_mbcnt_lo_u32_b32 v{tmp+1}, -1, 0")
        A.salu(f"v_mbcnt_hi_u32_b32 v{tmp+1}, -1, v{tmp+1}")
        A.salu(f"v_lshlrev_b32 v{tmp+1}, 2, v{tmp+1}")
        A.salu("s_mov_b64 exec, 0xffffffff")
        A.salu("s_nop 4")
        A.salu(f"buffer_store_dword v{tmp}, v{tmp+1}, s[60:63], s96 offen")
        print("stamps k%d:" % self.kidx, self.names)

def gen_k1(A):
    V = A.valu
    T0, T1, T2, T3, T4, T5, T6, T7 = range(0, 8)
    XO, WO, KO = 8, 10, 12
    BW, BX, BK, BV = 14, 15, 16, 17
    LSUM, OST = 18, 19
    SUMA, SUMB, MX, MX2 = 20, 21, 22, 23
    AD = 24
    FR = 32
    NEGM = 48
    QB = 64
    S = 96
    O = 160
    P = 224
    sBLK, sKVH, sB, sW, sHL, sRT = 26, 27, 4, 5, 6, 7
    SX, SW_, SK, SV, SO = 28, 32, 36, 40, 44
    sWL, sXB, sWB, sKVB, sT, sOB = 48, 49, 50, 51, 52, 53
    sMASK, sTHR, sC = 54, 56, 57
    sW3, sWL4, sT2 = 58, 59, 55

    A.raw(f".p2align 8\n.globl k1_kernel\n.type k1_kernel,@function\nk1_kernel:\nK1_BEGIN:")
    A.salu("s_cmp_ge_u32 s2, 256")
    A.salu("s_cbranch_scc1 K1_END")
    A.salu("s_load_dwordx8 s[8:15], s[0:1], 0")
    A.salu("s_load_dwordx8 s[16:23], s[0:1], 40")
    A.salu("s_load_dwordx2 s[24:25], s[0:1], 96")
    if OPT["cpf"]:
        A.salu("s_getpc_b64 s[60:61]")
        A.salu("s_and_b32 s60, s60, 0xffffff00")
        A.salu("s_and_b32 s61, s61, 0xffff")
        A.salu("s_mov_b32 s62, CODE_BYTES")
        A.salu("s_mov_b32 s63, 0x00020000")
        V(f"v_lshlrev_b32 v{T7}, 7, v0", w={T7}, r={0})
        A.vmem(f"buffer_load_dword v{NEGM+15}, v{T7}, s[60:63], 0 offen", w={NEGM+15}, r={T7})
    A.salu("s_and_b32 s3, s2, 7")
    A.salu(f"s_lshr_b32 s{sB}, s2, 3")
    A.salu(f"s_lshr_b32 s{sBLK}, s3, 2")
    A.salu("s_and_b32 s3, s3, 3")
    A.salu("s_lshl_b32 s3, s3, 2")
    A.salu(f"s_and_b32 s{sKVH}, s{sB}, 3")
    A.salu(f"s_add_u32 s{sKVH}, s{sKVH}, s3")
    A.salu(f"s_lshr_b32 s{sB}, s{sB}, 2")
    V(f"v_lshrrev_b32 v{T1}, 6, v0", w={T1}, r={0})
    A._emit(I(f"v_readfirstlane_b32 s{sW}, v{T1}", "rdlane", r={T1}, sw={sW}))
    V(f"v_and_b32 v{T0}, 63, v0", w={T0}, r={0})
    if OPT["fat"]:
        A.salu(f"s_bfe_u32 s{sHL}, s{sW}, 0x10001", sr={sW})
        A.salu(f"s_and_b32 s{sRT}, s{sW}, 1", sr={sW})
        A.salu(f"s_lshl_b32 s{sRT}, s{sRT}, 1")
        A.salu(f"s_lshr_b32 s3, s{sW}, 2", sr={sW})
        A.salu(f"s_add_u32 s{sRT}, s{sRT}, s3")
    else:
        A.salu(f"s_lshr_b32 s{sHL}, s{sW}, 2", sr={sW})
        A.salu(f"s_and_b32 s{sRT}, s{sW}, 3", sr={sW})
    A.salu(f"s_lshl_b32 s{sWL}, s{sW}, 11", sr={sW})
    A.salu(f"s_and_b32 s{sW3}, s{sW}, {3 if OPT['ld4'] else 1}", sr={sW})
    A.salu(f"s_lshl_b32 s{sWL4}, s{sW3}, 11")
    A.salu(f"s_mul_i32 s{sXB}, s{sB}, 129024")
    A.salu(f"s_lshl_b32 s{sWB}, s{sKVH}, 9")
    A.salu(f"s_lshl_b32 s{sKVB}, s{sB}, 4")
    A.salu(f"s_add_u32 s{sKVB}, s{sKVB}, s{sKVH}")
    if OPT["rot"] == 1:
        A.salu(f"s_and_b32 s{sMASK}, s{sKVB}, 7")
    elif OPT["rot"] == 2:
        A.salu(f"s_add_u32 s{sMASK}, s{sKVH}, s{sB}")
        A.salu(f"s_and_b32 s{sMASK}, s{sMASK}, 7")
    elif OPT["rot"] == 3:
        A.salu(f"s_and_b32 s{sMASK}, s{sB}, 7")
    A.salu(f"s_lshl_b32 s{sMASK}, s{sMASK}, 14")
    A.salu(f"s_lshl_b32 s{sKVB}, s{sKVB}, 17")
    A.salu(f"s_mov_b32 s{sTHR}, 0x4b800000")
    c = math.log2(math.e) / math.sqrt(128.0)
    import struct
    cbits = struct.unpack("<I", struct.pack("<f", c))[0]
    A.salu(f"s_mov_b32 s{sC}, {cbits:#x}")
    L = T0
    for q in range(2):
        V(f"v_lshrrev_b32 v{T1}, 3, v{L}", w={T1}, r={L})
        A.salu(f"s_lshl_b32 s3, s{sW3}, 4")
        A.salu(f"s_add_u32 s3, s3, {8*q}")
        V(f"v_add_u32 v{T1}, s3, v{T1}", w={T1}, r={T1})
        V(f"v_mul_u32_u24 v{T1}, 1152, v{T1}", w={T1}, r={T1})
        V(f"v_and_b32 v{T2}, 7, v{L}", w={T2}, r={L})
        V(f"v_lshrrev_b32 v{T3}, 4, v{L}", w={T3}, r={L})
        V(f"v_xor_b32 v{T2}, v{T2}, v{T3}", w={T2}, r={T2, T3})
        if q: V(f"v_xor_b32 v{T2}, 4, v{T2}", w={T2}, r={T2})
        V(f"v_lshl_add_u32 v{XO+q}, v{T2}, 4, v{T1}", w={XO+q}, r={T2, T1})
        V(f"v_lshrrev_b32 v{T3}, 5, v{L}", w={T3}, r={L})
        A.salu(f"s_lshl_b32 s3, s{sW3}, 2")
        A.salu(f"s_add_u32 s3, s3, {2*q}")
        V(f"v_add_u32 v{T1}, s3, v{T3}", w={T1}, r={T3})
        V(f"v_lshlrev_b32 v{T1}, 13, v{T1}", w={T1}, r={T1})
        V(f"v_or_b32 v{T3}, {2*q}, v{T3}", w={T3}, r={T3})
        V(f"v_lshlrev_b32 v{T3}, 2, v{T3}", w={T3}, r={T3})
        V(f"v_and_b32 v{T2}, 31, v{L}", w={T2}, r={L})
        V(f"v_xor_b32 v{T2}, v{T2}, v{T3}", w={T2}, r={T2, T3})
        V(f"v_lshl_add_u32 v{WO+q}, v{T2}, 4, v{T1}", w={WO+q}, r={T2, T1})
        V(f"v_lshrrev_b32 v{T3}, 4, v{L}", w={T3}, r={L})
        A.salu(f"s_lshl_b32 s3, s{sW}, 3")
        A.salu(f"s_add_u32 s3, s3, {4*q}")
        V(f"v_add_u32 v{T1}, s3, v{T3}", w={T1}, r={T3})
        V(f"v_lshlrev_b32 v{T1}, 8, v{T1}", w={T1}, r={T1})
        A.salu(f"s_and_b32 s3, s{sW}, 1")
        A.salu(f"s_lshl_b32 s3, s3, 1")
        A.salu(f"s_or_b32 s3, s3, {q}")
        V(f"v_lshlrev_b32 v{T3}, 2, v{T3}", w={T3}, r={T3})
        V(f"v_or_b32 v{T3}, s3, v{T3}", w={T3}, r={T3})
        V(f"v_and_b32 v{T2}, 15, v{L}", w={T2}, r={L})
        V(f"v_xor_b32 v{T2}, v{T2}, v{T3}", w={T2}, r={T2, T3})
        V(f"v_lshl_add_u32 v{KO+q}, v{T2}, 4, v{T1}", w={KO+q}, r={T2, T1})
    V(f"v_lshrrev_b32 v{T1}, 5, v{L}", w={T1}, r={L})
    V(f"v_bfe_u32 v{T2}, v{L}, 4, 1", w={T2}, r={L})
    V(f"v_bfe_u32 v{T3}, v{L}, 2, 2", w={T3}, r={L})
    V(f"v_and_b32 v{T4}, 3, v{L}", w={T4}, r={L})
    V(f"v_and_b32 v{T5}, 31, v{L}", w={T5}, r={L})
    V(f"v_lshl_add_u32 v{T6}, v{T1}, 3, v{T3}", w={T6}, r={T1, T3})
    V(f"v_lshlrev_b32 v{T6}, 9, v{T6}", w={T6}, r={T6})
    V(f"v_lshlrev_b32 v{T7}, 2, v{T3}", w={T7}, r={T3})
    V(f"v_lshl_add_u32 v{T7}, v{T2}, 1, v{T7}", w={T7}, r={T2, T7})
    V(f"v_and_b32 v{BW}, 1, v{T4}", w={BW}, r={T4})
    V(f"v_add_u32 v{T7}, v{T7}, v{BW}", w={T7}, r={T7, BW})
    A.salu(f"s_lshl_b32 s3, s{sHL}, 4")
    V(f"v_add_u32 v{T7}, s3, v{T7}", w={T7}, r={T7})
    V(f"v_lshl_add_u32 v{T6}, v{T7}, 4, v{T6}", w={T6}, r={T7, T6})
    V(f"v_lshrrev_b32 v{T7}, 1, v{T4}", w={T7}, r={T4})
    V(f"v_lshl_add_u32 v{BW}, v{T7}, 3, v{T6}", w={BW}, r={T7, T6})
    A.salu(f"s_lshl_b32 s3, s{sRT}, 5")
    V(f"v_add_u32 v{T6}, s3, v{T5}", w={T6}, r={T5})
    V(f"v_lshlrev_b32 v{T6}, 7, v{T6}", w={T6}, r={T6})
    V(f"v_bfe_u32 v{T7}, v{T5}, 1, 3", w={T7}, r={T5})
    V(f"v_xor_b32 v{T7}, v{T7}, v{T1}", w={T7}, r={T7, T1})
    V(f"v_lshl_add_u32 v{BX}, v{T7}, 4, v{T6}", w={BX}, r={T7, T6})
    V(f"v_lshlrev_b32 v{T6}, 2, v{T4}", w={T6}, r={T4})
    V(f"v_or_b32 v{T6}, v{T6}, v{T3}", w={T6}, r={T6, T3})
    V(f"v_xor_b32 v{T6}, v{T6}, v{T1}", w={T6}, r={T6, T1})
    V(f"v_lshlrev_b32 v{T7}, 8, v{T5}", w={T7}, r={T5})
    V(f"v_lshl_add_u32 v{BK}, v{T6}, 4, v{T7}", w={BK}, r={T6, T7})
    V(f"v_lshl_add_u32 v{T6}, v{T1}, 2, v{T3}", w={T6}, r={T1, T3})
    V(f"v_lshlrev_b32 v{T6}, 8, v{T6}", w={T6}, r={T6})
    V(f"v_lshrrev_b32 v{T7}, 1, v{T4}", w={T7}, r={T4})
    V(f"v_lshl_add_u32 v{T7}, v{T2}, 1, v{T7}", w={T7}, r={T2, T7})
    V(f"v_xor_b32 v{T7}, v{T7}, v{T1}", w={T7}, r={T7, T1})
    V(f"v_lshl_or_b32 v{T7}, v{T3}, 2, v{T7}", w={T7}, r={T3, T7})
    V(f"v_lshl_add_u32 v{T6}, v{T7}, 4, v{T6}", w={T6}, r={T7, T6})
    V(f"v_and_b32 v{T7}, 1, v{T4}", w={T7}, r={T4})
    V(f"v_lshl_add_u32 v{BV}, v{T7}, 3, v{T6}", w={BV}, r={T7, T6})
    V(f"v_lshlrev_b32 v{T6}, 17, v{T2}", w={T6}, r={T2})
    V(f"v_lshl_add_u32 v{T6}, v{T1}, 8, v{T6}", w={T6}, r={T1, T6})
    V(f"v_and_b32 v{T7}, 15, v{L}", w={T7}, r={L})
    V(f"v_lshl_add_u32 v{OST}, v{T7}, 4, v{T6}", w={OST}, r={T7, T6})
    V(f"v_mov_b32 v{LSUM}, 0", w={LSUM})
    A.waitcnt(lgkm=0)
    A.salu(f"s_cmp_eq_u32 s{sBLK}, 0")
    for k in range(8):
        A.salu(f"s_cselect_b32 s{8+k}, s{8+k}, s{16+k}")
    srd(A, SX, 8, 8 * 112 * 576 * 2)
    srd(A, SK, 10, 8 * 16 * 512 * 128 * 2)
    srd(A, SV, 12, 8 * 16 * 512 * 128 * 2)
    srd(A, SW_, 14, 576 * 4096 * 2)
    srd(A, SO, 24, 2 * O_BLK)
    A.salu(f"s_mul_i32 s{sOB}, s{sBLK}, {O_BLK}")
    A.salu(f"s_mul_i32 s3, s{sB}, 7")
    A.salu(f"s_lshl_b32 s{sT}, s{sRT}, 1")
    A.salu(f"s_add_u32 s3, s3, s{sT}")
    A.salu(f"s_lshl_b32 s3, s3, 17")
    A.salu(f"s_add_u32 s{sOB}, s{sOB}, s3")
    A.salu(f"s_lshl_b32 s3, s{sKVH}, 1")
    A.salu(f"s_add_u32 s3, s3, s{sHL}")
    A.salu(f"s_lshl_b32 s3, s3, 12")
    A.salu(f"s_add_u32 s{sOB}, s{sOB}, s3")
    if OPT["prio"]:
        A.salu(f"s_cmp_ge_u32 s{sW}, 4")
        A.salu("s_cbranch_scc0 K1_PRIO_DONE" if OPT["prio"] == 1 else "s_cbranch_scc1 K1_PRIO_DONE")
        A.salu("s_setprio 1")
        A.label("K1_PRIO_DONE")

    NTT = {0: "", 1: " nt", 2: " sc1", 3: " sc0 sc1", 4: " sc1 nt"}[OPT["ntt"]]
    qunits = []
    for s_ in range(9):
        qunits += [("X", s_), ("W", 2 * s_), ("W", 2 * s_ + 1)]
    kvunits = [("K", 0)]
    for h in range(7):
        kvunits += [("K", h + 1), ("V", h)]
    kvunits += [("V", 7)]
    units = qunits + kvunits
    UK = {idx: 27 + i for i, (t_, idx) in enumerate(kvunits) if t_ == "K"}
    UV = {idx: 27 + i for i, (t_, idx) in enumerate(kvunits) if t_ == "V"}
    stage_units = [list(range(3 * s_, 3 * s_ + 3)) for s_ in range(9)]
    unit_last_vm = {}
    unit_slot = {}
    free = list(range(NSLOT))
    nq = [0]; nkv = [0]; xch = []
    KQ = FR
    DV = FR + 2
    NSTG = OPT["nstg"]
    STG = [S + 32, O, O + 32, P][:NSTG]

    def unit_info(u):
        typ, idx = units[u]
        if typ == "X": return sXB, idx * 128, SX, XO, 2 * 16 * 1152, "ntx"
        if typ == "W": return sWB, idx * 32 * 8192, SW_, WO, 2 * 4 * 8192, "ntw"
        if typ == "K": return sKVB, idx * 64 * 256, SK, KO, 4096, "ntkv"
        return sKVB, idx * 64 * 256, SV, KO, 4096, "ntkv"

    def sbase(base, const):
        if base == sKVB and OPT["rot"]:
            A.salu(f"s_add_u32 s{sT}, s{sMASK}, {const}")
            A.salu(f"s_and_b32 s{sT}, s{sT}, 0x1ffff")
            A.salu(f"s_or_b32 s{sT}, s{sT}, s{sKVB}")
        else:
            A.salu(f"s_add_u32 s{sT}, s{base}, {const}")

    def issue_unit_q(u, stage_reg=None):
        if stage_reg is None:
            slot = free.pop(0)
            unit_slot[u] = slot
        base, const, sr_, vo, delta, nto = unit_info(u)
        if vo == KO: vo = KQ
        nt = " nt" if OPT[nto] else ""
        for hv in range(4):
            A.salu(f"s_add_u32 s{sT}, s{base}, {const + delta * hv}")
            for q in range(2):
                if stage_reg is None:
                    A.salu(f"s_add_u32 m0, s{sWL4}, {slot * SLOT + hv * 4096 + q * 1024}", m0w=True)
                    k = A.vmem(f"buffer_load_dwordx4 v{vo+q}, s[{sr_}:{sr_+3}], s{sT} offen{nt} lds", kind="dma", r={vo + q}, m0r=True)
                else:
                    d = stage_reg + (hv * 2 + q) * 4
                    k = A.vmem(f"buffer_load_dwordx4 {vname(d,4)}, v{vo+q}, s[{sr_}:{sr_+3}], s{sT} offen{nt}", w=vr(d, 4), r={vo + q})
        unit_last_vm[u] = k

    def issue_unit_4(u):
        slot = free.pop(0)
        unit_slot[u] = slot
        base, const, sr_, vo, delta, nto = unit_info(u)
        nt = " nt" if OPT[nto] else ""
        sbase(base, const)
        if vo != KO: A.salu(f"s_add_u32 s{sT2}, s{base}, {const + 2 * delta}")
        for hv in range(2):
            for q in range(2):
                A.salu(f"s_add_u32 m0, s{sWL4}, {slot * SLOT + hv * 8192 + q * 1024}", m0w=True)
                if vo == KO:
                    va = (KQ if hv == 0 else KO) + q; so = sT
                else:
                    va = vo + q; so = sT if hv == 0 else sT2
                k = A.vmem(f"buffer_load_dwordx4 v{va}, s[{sr_}:{sr_+3}], s{so} offen{nt} lds", kind="dma", r={va}, m0r=True)
        unit_last_vm[u] = k

    def flood():
        if not OPT["l2pf"]: return
        V(f"v_lshrrev_b32 v{T1}, 2, v{L}", w={T1}, r={L})
        V(f"v_lshlrev_b32 v{T1}, 13, v{T1}", w={T1}, r={T1})
        V(f"v_and_b32 v{T2}, 3, v{L}", w={T2}, r={L})
        V(f"v_lshl_add_u32 v{T1}, v{T2}, 7, v{T1}", w={T1}, r={T2, T1})
        A.salu(f"s_lshl_b32 s3, s{sW}, 4")
        A.salu(f"s_min_u32 s3, s3, 56")
        A.salu(f"s_mul_i32 s{sT}, s{sB}, 72")
        A.salu(f"s_add_u32 s3, s3, s{sT}")
        A.salu(f"s_lshl_b32 s3, s3, 13")
        A.salu(f"s_add_u32 s3, s3, s{sWB}")
        A.vmem(f"buffer_load_dword v{T4}, v{T1}, s[{SW_}:{SW_+3}], s3 offen{NTT}", w={T4}, r={T1})
        V(f"v_lshlrev_b32 v{T2}, 7, v{L}", w={T2}, r={L})
        A.salu(f"s_and_b32 s3, s{sKVH}, 3")
        A.salu(f"s_mul_i32 s3, s3, 32256")
        A.salu(f"s_and_b32 s{sT}, s{sW}, 3")
        A.salu(f"s_lshl_b32 s{sT}, s{sT}, 13")
        A.salu(f"s_add_u32 s3, s3, s{sT}")
        A.salu(f"s_add_u32 s3, s3, s{sXB}")
        A.vmem(f"buffer_load_dword v{T5}, v{T2}, s[{SX}:{SX+3}], s3 offen{NTT}", w={T5}, r={T2})

    def dump_unit(u, stage_reg):
        slot = free.pop(0)
        unit_slot[u] = slot
        V(f"v_add_u32 v{DV+1}, {slot * SLOT}, v{DV}", w={DV + 1}, r={DV})
        for hv in range(4):
            for q in range(2):
                A.ds_write_b128(DV + 1, stage_reg + (hv * 2 + q) * 4, hv * 4096 + q * 1024)

    def dma_items(u):
        slot = free.pop(0)
        unit_slot[u] = slot
        base, const, sr_, vo, delta, nto = unit_info(u)
        nt = " nt" if OPT[nto] else ""
        def mk(q):
            def f():
                sbase(base, const)
                A.salu(f"s_add_u32 m0, s{sWL}, {slot * SLOT + q * 1024}", m0w=True)
                k = A.vmem(f"buffer_load_dwordx4 v{vo+q}, s[{sr_}:{sr_+3}], s{sT} offen{nt} lds", kind="dma", r={vo + q}, m0r=True)
                unit_last_vm[u] = k
            return f
        if not OPT["stag"]: return [mk(0), mk(1)]
        G = 8 // OPT["stag"]
        def cond(f, g):
            def h():
                lab = f"K1_D{nlab[0]}"; nlab[0] += 1
                A.salu(f"s_cmp_eq_u32 s{sT2}, {g}")
                A.salu(f"s_cbranch_scc0 {lab}")
                n0 = len(A.out)
                f()
                for o in A.out[n0:]: o.ws = 0
                A.label(lab)
                if g < G - 1: A.nvm -= 1
            return h
        return [cond(mk(q), g) for q in range(2) for g in range(G)]
    nlab = [0]

    NQ = OPT["nq"]
    PF = Prof(A, 0)
    PF.stamp("start")

    def addr_items(dst, base, slot, xors):
        it = [lambda: V(f"v_add_u32 v{dst[0]}, {slot * SLOT}, v{base}", w={dst[0]}, r={base})]
        for i, x in enumerate(xors):
            if i == 0: continue
            it.append(lambda i=i, x=x: V(f"v_xor_b32 v{dst[i]}, {x}, v{dst[0]}", w={dst[i]}, r={dst[0]}))
        return it

    A.salu(f"s_cmp_lt_u32 s{sW}, 4")
    A.salu("s_cbranch_scc1 K1_FAT")
    pf0 = PF.n
    staged = []
    if OPT["ld4"]:
        for q in range(2):
            V(f"v_subrev_u32 v{KQ+q}, {4*8*256}, v{KO+q}", w={KQ + q}, r={KO + q})
        NL = NSLOT - NQ
        def refill(s):
            done_q = 3 * max(s, 0)
            while nq[0] < 27 and nq[0] - done_q < NQ and free:
                issue_unit_4(nq[0]); nq[0] += 1
        def kv_issue():
            if nkv[0] < NL:
                if free:
                    issue_unit_4(27 + nkv[0]); nkv[0] += 1
        LW, LX = FR + 4, FR + 5
        nroll = [NQ // 3]
        def lroll(n):
            n = min(n, 9 - nroll[0])
            if n <= 0 or OPT["roll"] != 2: return
            a = nroll[0]; nroll[0] += n
            if n < 8:
                m = (1 << (8 * n)) - 1
                A.salu(f"s_mov_b32 exec_lo, {m & 0xffffffff}")
                A.salu(f"s_mov_b32 exec_hi, {m >> 32}")
            A.salu(f"s_add_u32 s3, s8, {a * 64 * 8192}")
            A.vmem(f"buffer_load_dword v{FR+6}, v{LW}, s[{SW_}:{SW_+3}], s3 offen{NTT}", w={FR + 6}, r={LW})
            A.vmem(f"buffer_load_dword v{FR+7}, v{LX}, s[{SX}:{SX+3}], s9 offen offset:{a * 128}{NTT}", w={FR + 7}, r={LX})
            if n < 8: A.salu("s_mov_b64 exec, -1")
        refill(-1)
        for _ in range(OPT["kv0"]): kv_issue()
        if not OPT["roll"]: flood()
        if OPT["roll"] == 2:
            V(f"v_bfe_u32 v{T1}, v{L}, 2, 1", w={T1}, r={L})
            A.salu(f"s_lshl_b32 s3, s{sW3}, 1")
            V(f"v_add_u32 v{T1}, s3, v{T1}", w={T1}, r={T1})
            V(f"v_lshrrev_b32 v{T3}, 3, v{L}", w={T3}, r={L})
            V(f"v_lshl_add_u32 v{T1}, v{T3}, 6, v{T1}", w={T1}, r={T3, T1})
            V(f"v_lshlrev_b32 v{T1}, 13, v{T1}", w={T1}, r={T1})
            V(f"v_and_b32 v{T2}, 3, v{L}", w={T2}, r={L})
            V(f"v_lshl_add_u32 v{LW}, v{T2}, 7, v{T1}", w={LW}, r={T2, T1})
            V(f"v_and_b32 v{T1}, 7, v{L}", w={T1}, r={L})
            V(f"v_min_u32 v{T1}, 6, v{T1}", w={T1}, r={T1})
            A.salu(f"s_mul_i32 s3, s{sW3}, 7")
            V(f"v_add_u32 v{T1}, s3, v{T1}", w={T1}, r={T1})
            V(f"v_mul_u32_u24 v{T1}, 1152, v{T1}", w={T1}, r={T1})
            V(f"v_lshl_add_u32 v{LX}, v{T3}, 7, v{T1}", w={LX}, r={T3, T1})
            A.salu(f"s_lshl_b32 s8, s{sB}, 16")
            A.salu(f"s_add_u32 s8, s8, s{sWB}")
            A.salu(f"s_and_b32 s9, s{sKVH}, 3")
            A.salu(f"s_mul_i32 s9, s9, {28*1152}")
            A.salu(f"s_add_u32 s9, s9, s{sXB}")
            lroll(OPT["pflead"] - nroll[0])
        for s in range(9):
            A.wait_vm(max(unit_last_vm[u] for u in stage_units[s]))
            A.barrier()
            PF.stamp(f"q{s}")
            if s > 0:
                for u in stage_units[s - 1]: free.append(unit_slot[u])
            refill(s)
            lroll(OPT["pfrate"])
            if s == 8:
                xch.append(free.pop(0)); xch.append(free.pop(0))
            elif s >= OPT["kvs"]:
                for _ in range(OPT["kvrate"]): kv_issue()
            if nq[0] == 27 and nkv[0] >= NL:
                while free:
                    issue_unit_4(27 + nkv[0]); nkv[0] += 1
        A.salu("s_branch K1_ATT")
        ldr_vm = (A.nvm, A.vm_done)
    else:
        A.salu(f"s_cmp_ge_u32 s{sW}, 6")
        A.salu("s_cbranch_scc1 K1_KVL")
        pf0 = PF.n
        kvslots = [free.pop() for _ in range(NSLOT - NQ)]
        def refill(s):
            done_q = 3 * max(s, 0)
            while nq[0] < 27 and nq[0] - done_q < NQ and free:
                issue_unit_q(nq[0]); nq[0] += 1
        refill(-1)
        for s in range(9):
            A.wait_vm(max(unit_last_vm[u] for u in stage_units[s]))
            A.barrier()
            PF.stamp(f"q{s}")
            if s > 0:
                for u in stage_units[s - 1]: free.append(unit_slot[u])
            refill(s)
            if s == 8:
                xch.append(free.pop(0)); xch.append(free.pop(0))
        A.waitcnt(vm=0)
        A.vm_done = A.nvm
        A.salu("s_branch K1_ATT")
        A.label("K1_KVL")
        A.win = []
        A.salu("s_nop 4")
        PF.n = pf0; PF.names = PF.names[:pf0]
        for q in range(2):
            V(f"v_subrev_u32 v{KQ+q}, {6*8*256}, v{KO+q}", w={KQ + q}, r={KO + q})
        V(f"v_lshlrev_b32 v{DV}, 4, v{L}", w={DV}, r={L})
        V(f"v_add_u32 v{DV}, s{sWL4}, v{DV}", w={DV}, r={DV})
        late_free = free[:]; free[:] = kvslots
        NL = len(kvslots)
        TV = FR + 4
        V(f"v_lshlrev_b32 v{TV}, 7, v{L}", w={TV}, r={L})
        A.salu(f"s_lshl_b32 s3, s{sW3}, 13")
        V(f"v_add_u32 v{TV}, s3, v{TV}", w={TV}, r={TV})
        NT = OPT["kvt"]
        ntouch = [0]
        def kv_issue():
            i = nkv[0]
            if i < NL: issue_unit_q(27 + i)
            elif i < NL + NSTG: issue_unit_q(27 + i, STG[i - NL])
            else:
                if ntouch[0] < NT:
                    u = 27 + NL + NSTG + ntouch[0]
                    base, const, sr_, vo, delta, nto = unit_info(u)
                    A.salu(f"s_add_u32 s{sT}, s{base}, {const}")
                    A.vmem(f"buffer_load_dword v{TV+1}, v{TV}, s[{sr_}:{sr_+3}], s{sT} offen", w={TV + 1}, r={TV})
                    ntouch[0] += 1
                return
            nkv[0] += 1
        for _ in range(OPT["kv0"]): kv_issue()
        for s in range(9):
            A.barrier()
            PF.stamp(f"q{s}")
            for _ in range(OPT["kvrate"]): kv_issue()
        assert nkv[0] == NL + NSTG
        free[:] = late_free
        staged = [(27 + NL + i, STG[i]) for i in range(NSTG)]
        while staged and free:
            u, r_ = staged.pop(0)
            A.wait_vm(unit_last_vm[u])
            dump_unit(u, r_)
        A.waitcnt(vm=0)
        A.vm_done = A.nvm
        A.wait_ds_all()
        A.salu("s_branch K1_ATT")
    A.label("K1_FAT")
    A.win = []
    A.salu("s_nop 4")
    PF.n = pf0; PF.names = PF.names[:pf0]
    TW, TX = XO, XO + 1
    if OPT["roll"] == 2:
        pass
    elif OPT["ld4"] and not OPT["roll"]:
        V(f"v_lshlrev_b32 v{TW}, 7, v{L}", w={TW}, r={L})
        A.salu(f"s_lshl_b32 s3, s{sW}, 13")
        V(f"v_add_u32 v{TW}, s3, v{TW}", w={TW}, r={TW})
    else:
        TW, TX = XO, XO + 1
        V(f"v_bfe_u32 v{T1}, v{L}, 2, 1", w={T1}, r={L})
        A.salu(f"s_lshl_b32 s3, s{sW}, 1")
        V(f"v_add_u32 v{T1}, s3, v{T1}", w={T1}, r={T1})
        V(f"v_lshlrev_b32 v{T1}, 13, v{T1}", w={T1}, r={T1})
        V(f"v_and_b32 v{T2}, 3, v{L}", w={T2}, r={L})
        V(f"v_lshl_add_u32 v{TW}, v{T2}, 7, v{T1}", w={TW}, r={T2, T1})
        V(f"v_and_b32 v{T1}, 7, v{L}", w={T1}, r={L})
        V(f"v_min_u32 v{T1}, 6, v{T1}", w={T1}, r={T1})
        A.salu(f"s_mul_i32 s3, s{sW}, 7")
        V(f"v_add_u32 v{T1}, s3, v{T1}", w={T1}, r={T1})
        V(f"v_mul_u32_u24 v{TX}, 1152, v{T1}", w={TX}, r={T1})
        A.salu(f"s_lshl_b32 s8, s{sB}, 16")
        A.salu(f"s_add_u32 s8, s8, s{sWB}")
        A.salu(f"s_and_b32 s9, s{sKVH}, 3")
        A.salu(f"s_mul_i32 s9, s9, {28*1152}")
        A.salu(f"s_add_u32 s9, s9, s{sXB}")
    def touch(s_):
        if not OPT["l2pf"] or s_ > 8: return
        A.salu(f"s_add_u32 s3, s8, {s_ * 64 * 8192}")
        A.vmem(f"buffer_load_dword v{T4}, v{TW}, s[{SW_}:{SW_+3}], s3 offen{NTT}", w={T4}, r={TW})
        A.vmem(f"buffer_load_dword v{T5}, v{TX}, s[{SX}:{SX+3}], s9 offen offset:{s_ * 128}{NTT}", w={T5}, r={TX})
    if OPT["roll"] == 2:
        touch = lambda s_: None
    elif OPT["roll"]:
        touch1 = touch
        nroll = [2]
        def roll(n):
            for _ in range(n):
                touch1(nroll[0]); nroll[0] += 1
        roll(OPT["pflead"] - 2)
        touch = lambda s_: roll(OPT["pfrate"])
    elif OPT["ld4"]:
        flood()
        ntouch = [0]
        def touch(s_):
            s_ -= OPT["pflead"]
            if s_ < OPT["kvt0"]: return
            for _ in range(OPT["kvtr"]):
                if ntouch[0] >= OPT["kvt"]: return
                ua = 27 + NL + 1 + ntouch[0]
                ia = unit_info(ua); ib = unit_info(ua + 1)
                A.salu(f"s_cmp_lt_u32 s{sW}, 2")
                A.salu(f"s_mov_b32 s3, {ib[1] - 16384}")
                A.salu(f"s_cselect_b32 s3, {ia[1]}, s3")
                A.salu(f"s_cselect_b32 s60, s{ia[2]}, s{ib[2]}")
                A.salu(f"s_cselect_b32 s61, s{ia[2]+1}, s{ib[2]+1}")
                A.salu(f"s_mov_b32 s62, s{ia[2]+2}")
                A.salu(f"s_mov_b32 s63, s{ia[2]+3}")
                A.salu(f"s_add_u32 s3, s3, s{sKVB}")
                A.vmem(f"buffer_load_dword v{T4}, v{TW}, s[60:63], s3 offen", w={T4}, r={TW})
                ntouch[0] += 2
    if not OPT["ld4"]:
        for s_ in range(2, OPT["pflead"]): touch(s_)
    if OPT["tlbw"]:
        A.salu("s_load_dwordx2 s[16:17], s[0:1], 32")
        A.salu("s_load_dwordx2 s[18:19], s[0:1], 72")
        A.salu("s_load_dwordx2 s[20:21], s[0:1], 80")
        D = NEGM
        V(f"v_lshlrev_b32 v{T1}, 12, v{L}", w={T1}, r={L})
        V(f"v_and_b32 v{T1}, 0x1ffff, v{T1}", w={T1}, r={T1})
        A.vmem(f"buffer_load_dword v{D}, v{T1}, s[{SV}:{SV+3}], s{sKVB} offen", w={D}, r={T1})
        if OPT["tlbw"] > 1:
            A.vmem(f"buffer_load_dword v{D+1}, v{T1}, s[{SK}:{SK+3}], s{sKVB} offen", w={D + 1}, r={T1})
        V(f"v_min_u32 v{T2}, 6, v{L}", w={T2}, r={L})
        V(f"v_lshlrev_b32 v{T2}, 17, v{T2}", w={T2}, r={T2})
        A.salu(f"s_mul_i32 s3, s{sBLK}, {O_BLK}")
        A.salu(f"s_mul_i32 s{sT}, s{sB}, {7*131072}")
        A.salu(f"s_add_u32 s3, s3, s{sT}")
        if OPT["fuse"]:
            A.salu(f"s_lshl_b32 s{sT}, s{sKVH}, 13")
            A.salu(f"s_add_u32 s3, s3, s{sT}")
            A.vmem(f"buffer_store_dword v{T2}, v{T2}, s[{SO}:{SO+3}], s3 offen sc1", r={T2}, storedata={T2})
        else:
            A.vmem(f"buffer_load_dword v{D+2}, v{T2}, s[{SO}:{SO+3}], s3 offen", w={D + 2}, r={T2})
        V(f"v_lshlrev_b32 v{T3}, 16, v{L}", w={T3}, r={L})
        A.salu("s_waitcnt lgkmcnt(0)")
        A.salu(f"s_cmp_eq_u32 s{sBLK}, 0")
        A.salu("s_cselect_b32 s60, s16, s18")
        A.salu("s_cselect_b32 s61, s17, s19")
        A.salu("s_and_b32 s61, s61, 0xffff")
        A.salu(f"s_mov_b32 s62, {4096*576*2}")
        A.salu("s_mov_b32 s63, 0x00020000")
        A.salu(f"s_mov_b32 s3, {8*65536}")
        A.vmem(f"buffer_load_dword v{D+3}, v{T3}, s[60:63], 0 offen", w={D + 3}, r={T3})
        A.vmem(f"buffer_load_dword v{D+4}, v{T3}, s[60:63], s3 offen", w={D + 4}, r={T3})
        A.salu("s_mov_b32 s16, s20")
        A.salu("s_and_b32 s17, s21, 0xffff")
        A.salu(f"s_mov_b32 s18, {896*1152*2}")
        A.salu("s_mov_b32 s19, 0x00020000")
        A.vmem(f"buffer_load_dword v{D+5}, v{T3}, s[16:19], 0 offen", w={D + 5}, r={T3})
    QA = [S, O]
    FBW = [P, QB]; FBX = [P + 16, QB + 16]
    AW = [FR, FR + 4]; AX = FR + 8
    def qaddr(s):
        u0 = 3 * s
        return (addr_items([AX + i for i in range(4)], BX, unit_slot[u0], [0, 32, 64, 96]) +
                addr_items([AW[0] + i for i in range(4)], BW, unit_slot[u0 + 1], [0, 64, 128, 192]) +
                addr_items([AW[1] + i for i in range(4)], BW, unit_slot[u0 + 2], [0, 64, 128, 192]))
    def qread_items(ks):
        it = [lambda: A.ds_read_b128(FBX[ks % 2], AX + ks), lambda: A.ds_read_b128(FBX[ks % 2] + 4, AX + ks, 4096)]
        for t in range(4):
            for j in range(2):
                it.append(lambda t=t, j=j: A.ds_read_tr(FBW[ks % 2] + 4 * t + 2 * j, AW[ks // 2] + t, ((ks % 2) * 16 + 4 * j) * 512))
        return it
    def qreads(ks):
        for it in qread_items(ks): last = it()
        return last
    for it in qaddr(0): it()
    A.barrier()
    PF.stamp("q0")
    pend = qreads(0)
    touch(OPT["pflead"])
    QI = OPT["qi"]
    for s in range(9):
        for ks in range(4):
            A.wait_ds(pend)
            rq = []
            if ks < 3:
                if QI: rq = qread_items(ks + 1)
                else: pend = qreads(ks + 1)
            nxt = qaddr(s + 1) if (ks == 3 and s < 8) else []
            m = 0
            for t in range(4):
                for r2 in range(2):
                    A.mfma(QA[r2] + 16 * t, FBW[ks % 2] + 4 * t, FBX[ks % 2] + 4 * r2, "zero" if (s == 0 and ks == 0) else None)
                    if nxt:
                        if m < 2:
                            for it in nxt[6 * m: 6 * m + 6]: it()
                        if m == 1:
                            A.barrier()
                            PF.stamp(f"q{s+1}")
                            if QI: rq = qread_items(0)
                            else: pend = qreads(0)
                        if m == 3: touch(s + 1 + OPT["pflead"])
                    for _ in range(QI):
                        if rq: pend = rq.pop(0)()
                    m += 1
            assert not rq
    A.salu(f"s_lshr_b32 s3, s{sW}, 1")
    A.salu(f"s_cmp_eq_u32 s3, 0")
    A.salu(f"s_cselect_b32 s3, {xch[0]}, {xch[1]}")
    A.salu(f"s_lshl_b32 s3, s3, 14")
    A.salu(f"s_and_b32 s{sT}, s{sW}, 1")
    A.salu(f"s_lshl_b32 s{sT}, s{sT}, 13")
    A.salu(f"s_add_u32 s3, s3, s{sT}")
    V(f"v_lshlrev_b32 v{T6}, 4, v{L}", w={T6}, r={L})
    V(f"v_add_u32 v{T6}, s3, v{T6}", w={T6}, r={T6})
    for i in range(64):
        V(f"v_mul_f32 v{O+i}, s{sC}, v{O+i}", w={O + i}, r={O + i})
    for q in range(32):
        V(f"v_cvt_pk_bf16_f32 v{P+q}, v{O+2*q}, v{O+2*q+1}", w={P + q}, r={O + 2 * q, O + 2 * q + 1})
        if q % 4 == 3:
            A.ds_write_b128(T6, P + q - 3, (q // 4) * 1024)
    for i in range(64):
        V(f"v_mul_f32 v{S+i}, s{sC}, v{S+i}", w={S + i}, r={S + i})
    for q in range(32):
        V(f"v_cvt_pk_bf16_f32 v{QB+q}, v{S+2*q}, v{S+2*q+1}", w={QB + q}, r={S + 2 * q, S + 2 * q + 1})
    A.wait_ds_all()
    A.waitcnt(vm=0)
    A.vm_done = A.nvm
    if OPT["ld4"]:
        A.nvm, A.vm_done = ldr_vm
    A.label("K1_ATT")
    A.win = []
    A.salu("s_nop 4")
    if OPT["stag"]:
        A.salu(f"s_lshr_b32 s{sT2}, s{sW}, {OPT['stag'] - 1}")

    SETA = [AD + i for i in range(8)]
    SETB = [XO, XO + 1, WO, WO + 1, BW, BX, T4, T5]
    kx = [32 * ks for ks in range(8)]
    vx = [(t << 6) ^ (32 * jj) for t in range(4) for jj in range(2)]
    SB = lambda h: S + 32 * (h % 2)
    PB = lambda h: P + 16 * (h % 2)
    phases = [("qk", 0)] + [x for h in range(7) for x in (("qk", h + 1), ("pv", h))] + [("pv", 7)]
    pset = {}
    for ph in phases:
        pset[ph] = SETA if ph[0] == "qk" else SETB
    pset[("qk", 0)] = SETB; pset[("pv", 7)] = SETA
    punit = lambda ph: UK[ph[1]] if ph[0] == "qk" else UV[ph[1]]
    def paddr(ph):
        u = punit(ph)
        return addr_items(pset[ph], BK if ph[0] == "qk" else BV, unit_slot[u], kx if ph[0] == "qk" else vx)
    mf = [(ph, i) for ph in phases for i in range(16)]
    syncJ = list(range(0, 6, OPT["bstep"]))
    if OPT["fuse"]:
        syncJ.append(6)
        K2 = K2Fused(A, sW, SO, QB)
    sync_pos = [phases.index(("pv", j)) * 16 + 12 for j in syncJ]
    first_read = {}
    for n, (ph, i) in enumerate(mf):
        first_read.setdefault(punit(ph), max(n - 4, -1))
    last_read = {}
    for n, (ph, i) in enumerate(mf):
        last_read[punit(ph)] = n - 4
    def publish_set(pos_from, pos_to):
        return [u for u, fr in first_read.items() if pos_from <= fr < pos_to]
    freed = set()
    dmaq = []
    def refill_att():
        while nkv[0] < 16 and free:
            dmaq.extend(dma_items(27 + nkv[0])); nkv[0] += 1

    pub = publish_set(-1, sync_pos[0])
    A.wait_vm(max(unit_last_vm[u] for u in pub))
    A.barrier()
    PF.stamp("a0")
    for u in stage_units[8]: free.append(unit_slot[u])
    A.salu(f"s_cmp_lt_u32 s{sW}, 4")
    A.salu(f"s_cbranch_scc1 K1_QGOT")
    if staged:
        A.salu(f"s_cmp_lt_u32 s{sW}, 6")
        A.salu(f"s_cbranch_scc1 K1_NODUMP")
        while staged:
            u, r_ = staged.pop(0)
            dump_unit(u, r_)
        A.label("K1_NODUMP")
    refill_att()
    A.salu(f"s_bfe_u32 s3, s{sW}, 0x10001")
    A.salu(f"s_cmp_eq_u32 s3, 0")
    A.salu(f"s_cselect_b32 s3, {xch[0]}, {xch[1]}")
    A.salu(f"s_lshl_b32 s3, s3, 14")
    A.salu(f"s_and_b32 s{sT}, s{sW}, 1")
    A.salu(f"s_lshl_b32 s{sT}, s{sT}, 13")
    A.salu(f"s_add_u32 s3, s3, s{sT}")
    V(f"v_lshlrev_b32 v{T6}, 4, v{L}", w={T6}, r={L})
    V(f"v_add_u32 v{T6}, s3, v{T6}", w={T6}, r={T6})
    for q in range(8):
        A.ds_read_b128(QB + 4 * q, T6, q * 1024)
    A.wait_ds_all()
    A.label("K1_QGOT")
    A.salu("s_nop 1")
    for it in paddr(("qk", 0)) + paddr(("qk", 1)): it()

    TT = [T0, T1, T2, T3]
    def max_items(regs, first, final):
        it = []
        r = list(regs)
        if first:
            a = r[:3]; b = r[3:6]; r = r[6:]
            it.append(lambda a=a: V(f"v_max3_f32 v{MX}, v{a[0]}, v{a[1]}, v{a[2]}", w={MX}, r=set(a)))
            it.append(lambda b=b: V(f"v_max3_f32 v{MX2}, v{b[0]}, v{b[1]}, v{b[2]}", w={MX2}, r=set(b)))
        k = 0
        while r:
            a = r[:2]; r = r[2:]
            d = MX if k % 2 == 0 else MX2
            it.append(lambda a=a, d=d: V(f"v_max3_f32 v{d}, v{d}, v{a[0]}, v{a[1]}", w={d}, r={d} | set(a)))
            k += 1
        if final:
            it.append(lambda: V(f"v_max_f32 v{MX}, v{MX}, v{MX2}", w={MX}, r={MX, MX2}))
            it.append(lambda: V(f"v_mov_b32 v{MX2}, v{MX}", w={MX2}, r={MX}))
            it.append(lambda: V(f"v_permlane32_swap_b32 v{MX}, v{MX2}", w={MX, MX2}, r={MX, MX2}, kind="perm"))
            it.append(lambda: V(f"v_max_f32 v{MX}, v{MX}, v{MX2}", w={MX}, r={MX, MX2}))
        return it
    def sm_items(h, lo, hi, sub):
        it = []
        sb, pb = SB(h), PB(h)
        if sub:
            it.append(lambda: V(f"v_sub_f32 v{sb+lo}, v{sb+lo}, v{MX}", w={sb + lo}, r={sb + lo, MX}))
        for e in range(lo, hi + 2):
            if sub and e + 1 < hi:
                it.append(lambda e=e: V(f"v_sub_f32 v{sb+e+1}, v{sb+e+1}, v{MX}", w={sb + e + 1}, r={sb + e + 1, MX}))
            if e < hi:
                it.append(lambda e=e: V(f"v_exp_f32 v{TT[e%4]}, v{sb+e}", w={TT[e % 4]}, r={sb + e}, kind="trans"))
            if lo <= e - 1 < hi:
                p = e - 1; acc = SUMA if p % 2 == 0 else SUMB
                if p < 2:
                    it.append(lambda p=p, acc=acc: V(f"v_mov_b32 v{acc}, v{TT[p%4]}", w={acc}, r={TT[p % 4]}))
                else:
                    it.append(lambda p=p, acc=acc: V(f"v_add_f32 v{acc}, v{acc}, v{TT[p%4]}", w={acc}, r={acc, TT[p % 4]}))
            if e - 2 >= lo and (e - 2) % 2 == 0 and e - 1 < hi:
                p = e - 2
                it.append(lambda p=p: V(f"v_cvt_pk_bf16_f32 v{pb+p//2}, v{TT[p%4]}, v{TT[(p+1)%4]}", w={pb + p // 2}, r={TT[p % 4], TT[(p + 1) % 4]}))
        return it
    def negm_items():
        return [lambda i=i: V(f"v_sub_f32 v{NEGM+i}, 0, v{MX}", w={NEGM + i}, r={MX}) for i in range(16)]
    def check(h):
        V(f"v_add_f32 v{SUMA}, v{SUMA}, v{SUMB}", w={SUMA}, r={SUMA, SUMB})
        if h > 0:
            V(f"v_cmp_nge_f32 vcc, s{sTHR}, v{SUMA}", r={SUMA}, sw={"vcc"})
            A.salu("s_nop 1")
            A.salu(f"s_cbranch_vccnz K1_SLOW{h}")
            A.label(f"K1_BACK{h}")
        V(f"v_add_f32 v{LSUM}, v{LSUM}, v{SUMA}", w={LSUM}, r={LSUM, SUMA})

    def side_for(ph):
        kind, h = ph
        if ph == ("qk", 0):
            return [], []
        if kind == "qk":
            hh = h - 1
            if hh == 0:
                main = max_items([SB(0) + i for i in range(32)], True, True) + sm_items(0, 0, 32, True)
            else:
                main = sm_items(hh, 16, 32, hh == 1)
            return main, paddr(("pv", hh))
        if h == 7: return [], []
        if h == 6:
            return sm_items(7, 0, 32, False), paddr(("pv", 7)) + (K2.addr_items() if OPT["fuse"] and OPT["fuse"] != 6 else [])
        main = sm_items(h + 1, 0, 16, h == 0)
        if h == 0: main = negm_items() + main
        return main, paddr(("qk", h + 2))

    rid = {}
    def issue_read(n):
        ph, i = mf[n]
        st = pset[ph]; fr = FR + 4 * (n % 4)
        if ph[0] == "qk":
            rid[n] = A.ds_read_b128(fr, st[i % 8], (i // 8) * 8192)
        else:
            g, t = i // 4, i % 4
            A.ds_read_tr(fr, st[2 * t], g * 4096)
            rid[n] = A.ds_read_tr(fr + 2, st[2 * t + 1], g * 4096 + 2048)
    for n in range(4): issue_read(n)
    gap = 0
    for n, (ph, i) in enumerate(mf):
        kind, h = ph
        if i == 0:
            main, adr = side_for(ph)
            plan = [[] for _ in range(16)]
            for k, it in enumerate(adr): plan[k * 12 // max(len(adr), 1)].append(it)
            s0 = 1 if ph == ("qk", 1) else 0
            for k, it in enumerate(main): plan[s0 + k * (16 - s0) // len(main)].append(it)
        A.wait_ds(rid[n])
        fr = FR + 4 * (n % 4)
        if kind == "qk":
            kt, ks = i // 8, i % 8
            c = None
            if ks == 0: c = "zero" if h <= 1 else NEGM
            A.mfma(SB(h) + 16 * kt, fr, QB + 4 * ks, c)
        else:
            g, t = i // 4, i % 4
            A.mfma(O + 16 * t, fr, PB(h) + 4 * g, "zero" if (h == 0 and g == 0) else None)
        if n in sync_pos:
            k = sync_pos.index(n)
            pub = publish_set(n, sync_pos[k + 1] if k + 1 < len(sync_pos) else 10**9)
            while dmaq: dmaq.pop(0)()
            A.wait_ds_all()
            A.wait_vm(max(unit_last_vm[u] for u in pub))
            A.barrier()
            PF.stamp(f"x{h}")
            if k == 0: free.extend(xch)
            for u, lr in last_read.items():
                if lr < n and u not in freed:
                    freed.add(u); free.append(unit_slot[u])
            refill_att()
            if OPT["fuse"] == 6:
                if h == 1: K2.loads()
                if h == 2: K2.scalars()
                if h == 3: K2.addr6()
                if h >= OPT["wo0"]:
                    assert nkv[0] == 16
                    while free and len(K2.slots6) < 8:
                        j = len(K2.slots6); K2.slots6.append(free.pop(0))
                        if h < 6 or OPT["wo6"]:
                            dmaq.extend([lambda j=j, q=q: K2.wo_piece(j >> 1, (j & 1) * 2 + q) for q in range(2)])
                            K2.done6 = j + 1
            elif OPT["fuse"]:
                if h == 4: K2.loads()
                if h == 5: K2.scalars()
                if h == 6:
                    assert len(free) >= 8, free
                    its = K2.wo_items(free[:8])
                    K2.mslot = free[8]
                    if OPT["fuse"] < 3: dmaq.extend(its)
            if OPT["wopf"] and h == OPT["wopf"] - 1:
                A.salu("s_load_dwordx2 s[60:61], s[0:1], 32")
                A.salu("s_load_dwordx2 s[62:63], s[0:1], 72")
                if OPT["xm"]:
                    A.salu(f"s_lshr_b32 s3, s2, 3")
                    A.salu(f"s_lshl_b32 s3, s3, 3")
                    A.salu(f"s_add_u32 s3, s3, s{sW}")
                    A.salu(f"s_mul_i32 s3, s3, {16*1152}")
                    A.salu(f"s_and_b32 s{sT}, s2, 1")
                    A.salu(f"s_lshl_b32 s{sT}, s{sT}, 9")
                    A.salu(f"s_add_u32 s3, s3, s{sT}")
                    V(f"v_mbcnt_lo_u32_b32 v{T6}, -1, 0", w={T6})
                    V(f"v_mbcnt_hi_u32_b32 v{T6}, -1, v{T6}", w={T6}, r={T6})
                    V(f"v_lshrrev_b32 v{T7}, 2, v{T6}", w={T7}, r={T6})
                    V(f"v_mul_u32_u24 v{T7}, 1152, v{T7}", w={T7}, r={T7})
                    V(f"v_and_b32 v{T6}, 3, v{T6}", w={T6}, r={T6})
                    V(f"v_lshl_add_u32 v{T6}, v{T6}, 7, v{T7}", w={T6}, r={T6, T7})
                else:
                    if OPT["wox"]:
                        A.salu(f"s_lshr_b32 s3, s2, 5")
                        A.salu(f"s_lshl_b32 s3, s3, 4")
                        A.salu(f"s_bfe_u32 s{sT}, s2, 0x20003")
                        A.salu(f"s_add_u32 s3, s3, s{sT}")
                    else:
                        A.salu(f"s_lshl_b32 s3, s{sB}, 4")
                        A.salu(f"s_add_u32 s3, s3, s{sKVH}")
                    A.salu(f"s_mul_i32 s3, s3, 288")
                    A.salu(f"s_lshl_b32 s{sT}, s{sW}, 6")
                    A.salu(f"s_min_u32 s{sT}, s{sT}, 224")
                    A.salu(f"s_add_u32 s3, s3, s{sT}")
                    A.salu(f"s_lshl_b32 s3, s3, 7")
                    V(f"v_mbcnt_lo_u32_b32 v{T7}, -1, 0", w={T7})
                    V(f"v_mbcnt_hi_u32_b32 v{T7}, -1, v{T7}", w={T7}, r={T7})
                    V(f"v_lshlrev_b32 v{T7}, 7, v{T7}", w={T7}, r={T7})
                A.salu("s_waitcnt lgkmcnt(0)")
                A.salu(f"s_cmp_eq_u32 s{sBLK}, 0")
                A.salu("s_cselect_b32 s60, s60, s62")
                A.salu("s_cselect_b32 s61, s61, s63")
                A.salu("s_and_b32 s61, s61, 0xffff")
                A.salu(f"s_mov_b32 s62, {4096*576*2}")
                A.salu("s_mov_b32 s63, 0x00020000")
                if OPT["xm"]:
                    A.salu("s_mov_b32 exec_lo, 0x88888888")
                    A.salu("s_mov_b32 exec_hi, 0x88888888")
                    A.vmem(f"buffer_load_dword v{T7}, v{T6}, s[60:63], s3 offen offset:128", w={T7}, r={T6})
                    A.salu("s_mov_b64 exec, -1")
                TA_ = T6 if OPT["xm"] else T7
                A.vmem(f"buffer_load_dword v{T7}, v{TA_}, s[60:63], s3 offen", w={T7}, r={TA_})
        if n + 4 < len(mf): issue_read(n + 4)
        for it in plan[i]: it()
        gap += 1
        if dmaq and gap >= OPT["dmagap"]:
            dmaq.pop(0)(); gap = 0
        if i == 15:
            if kind == "qk" and h >= 1: check(h - 1)
            if ph == ("pv", 6): check(7)
    assert not dmaq
    PF.stamp("pv7")
    V(f"v_mov_b32 v{T0}, v{LSUM}", w={T0}, r={LSUM})
    V(f"v_permlane32_swap_b32 v{T0}, v{LSUM}", w={T0, LSUM}, r={T0, LSUM}, kind="perm")
    V(f"v_add_f32 v{T0}, v{T0}, v{LSUM}", w={T0}, r={T0, LSUM})
    V(f"v_rcp_f32 v{T0}, v{T0}", w={T0}, r={T0}, kind="trans")
    A.salu(f"s_cmp_eq_u32 s{sRT}, 3")
    A.salu("s_cbranch_scc0 K1_NOMASK")
    A.salu("s_mov_b32 exec_lo, 0xffff")
    A.salu("s_mov_b32 exec_hi, 0xffff")
    A.label("K1_NOMASK")
    for f in range(8):
        b0 = O + 8 * f
        for i in range(8):
            V(f"v_mul_f32 v{b0+i}, v{T0}, v{b0+i}", w={b0 + i}, r={T0, b0 + i})
        d = P + 4 * f
        for q in range(4):
            V(f"v_cvt_pk_bf16_f32 v{d+q}, v{b0+2*q}, v{b0+2*q+1}", w={d + q}, r={b0 + 2 * q, b0 + 2 * q + 1})
        A.vmem(f"buffer_store_dwordx4 {vname(d,4)}, v{OST}, s[{SO}:{SO+3}], s{sOB} offen offset:{f*512}{' sc1' if OPT['fuse'] else ' nt' if OPT['ntst'] else ''}", r=vr(d, 4) | {OST}, storedata=vr(d, 4))
    if OPT["fuse"]:
        K2.body(PF, sBLK, sB, sKVH)
    PF.dump(24, sW, 0)
    A.label("K1_END")
    A.salu("s_endpgm")
    for h in range(1, 8):
        A.label(f"K1_SLOW{h}")
        A.flush_hazards()
        sb = SB(h)
        for it in max_items([sb + i for i in range(32)], True, True): it()
        V(f"v_max_f32 v{MX}, 0, v{MX}", w={MX}, r={MX})
        V(f"v_sub_f32 v{MX2}, 0, v{MX}", w={MX2}, r={MX})
        V(f"v_exp_f32 v{MX2}, v{MX2}", w={MX2}, r={MX2}, kind="trans")
        for i in range(64):
            V(f"v_mul_f32 v{O+i}, v{MX2}, v{O+i}", w={O + i}, r={MX2, O + i})
        V(f"v_mul_f32 v{LSUM}, v{MX2}, v{LSUM}", w={LSUM}, r={MX2, LSUM})
        for i in range(16):
            V(f"v_sub_f32 v{NEGM+i}, v{NEGM+i}, v{MX}", w={NEGM + i}, r={NEGM + i, MX})
        if h < 7:
            s2 = SB(h + 1)
            for i in range(32):
                V(f"v_sub_f32 v{s2+i}, v{s2+i}, v{MX}", w={s2 + i}, r={s2 + i, MX})
        for it in sm_items(h, 0, 32, True): it()
        V(f"v_add_f32 v{SUMA}, v{SUMA}, v{SUMB}", w={SUMA}, r={SUMA, SUMB})
        A.flush_hazards()
        A.salu(f"s_branch K1_BACK{h}")

class K2Fused:
    def __init__(self, A, sW, SO, WOFF):
        self.A = A; self.sW = sW; self.SO = SO; self.WOFF = WOFF
        self.SWO, self.SOUT, self.SDBG = 28, 32, 20
        self.sBLK, self.sTT, self.sMT, self.sNT = 16, 17, 18, 19
        self.sWL, self.sWB, self.sO0, self.sO1, self.sT = 49, 50, 8, 9, 52
        self.sP0, self.sP1 = 10, 11
        self.last_vm = {}
    def loads(self):
        A = self.A
        A.salu("s_load_dwordx2 s[8:9], s[0:1], 32")
        A.salu("s_load_dwordx2 s[10:11], s[0:1], 72")
        A.salu("s_load_dwordx2 s[12:13], s[0:1], 80")
        A.salu("s_load_dwordx2 s[14:15], s[0:1], 88")
    def scalars(self):
        A = self.A; sW = self.sW
        sBLK, sTT, sMT, sNT = self.sBLK, self.sTT, self.sMT, self.sNT
        A.salu("s_waitcnt lgkmcnt(0)")
        if OPT["xm"]:
            A.salu("s_bitcmp1_b32 s2, 2")
            A.salu(f"s_cselect_b32 s{sBLK}, 1, 0")
            A.salu("s_cselect_b32 s8, s10, s8")
            A.salu("s_cselect_b32 s9, s11, s9")
            srd(A, self.SWO, 8, 4096 * 576 * 2)
            srd(A, self.SOUT, 12, 896 * 1152 * 2)
            srd(A, self.SDBG, 14, 256)
            A.salu("s_lshr_b32 s3, s2, 3")
            A.salu("s_and_b32 s12, s2, 1")
            A.salu(f"s_lshr_b32 s{sMT}, s3, 2")
            A.salu(f"s_and_b32 s{sNT}, s3, 3")
            A.salu("s_mul_i32 s13, s12, 5")
            A.salu(f"s_add_u32 s{sNT}, s{sNT}, s13")
            A.salu("s_lshl_b32 s13, s12, 2")
            A.salu("s_add_u32 s13, s13, s3")
            A.salu("s_sub_u32 s13, s13, 28")
            A.salu("s_cmp_ge_u32 s3, 28")
            A.salu(f"s_cselect_b32 s{sMT}, s13, s{sMT}")
            A.salu(f"s_cselect_b32 s{sNT}, 4, s{sNT}")
            A.salu(f"s_cmp_eq_u32 s{sMT}, 7")
            A.salu(f"s_cselect_b32 s{sTT}, 255, 0")
            A.salu(f"s_min_u32 s{sMT}, s{sMT}, 6")
            A.salu("s_bfe_u32 s13, s2, 0x10001")
            A.salu("s_mul_i32 s13, s13, 7")
            A.salu(f"s_add_u32 s{sMT}, s{sMT}, s13")
        else:
            A.salu("s_and_b32 s3, s2, 7")
            A.salu("s_lshl_b32 s3, s3, 5")
            A.salu(f"s_lshr_b32 s{sTT}, s2, 3")
            A.salu(f"s_add_u32 s{sTT}, s3, s{sTT}")
            A.salu(f"s_min_u32 s3, s{sTT}, 251")
            A.salu("s_cmp_ge_u32 s3, 126")
            A.salu(f"s_cselect_b32 s{sBLK}, 1, 0")
            A.salu("s_cselect_b32 s8, s10, s8")
            A.salu("s_cselect_b32 s9, s11, s9")
            srd(A, self.SWO, 8, 4096 * 576 * 2)
            srd(A, self.SOUT, 12, 896 * 1152 * 2)
            srd(A, self.SDBG, 14, 256)
            A.salu(f"s_mul_i32 s12, s{sBLK}, 126")
            A.salu("s_sub_u32 s3, s3, s12")
            A.salu("s_mul_i32 s12, s3, 57")
            A.salu(f"s_lshr_b32 s{sMT}, s12, 9")
            A.salu(f"s_mul_i32 s12, s{sMT}, 9")
            A.salu(f"s_sub_u32 s{sNT}, s3, s12")
        A.salu(f"s_mul_i32 s{self.sWB}, s{sW}, {(32 if OPT['fuse'] == 5 else 512)*1152}")
        A.salu(f"s_lshl_b32 s12, s{sNT}, 7")
        A.salu(f"s_add_u32 s{self.sWB}, s{self.sWB}, s12")
        A.salu(f"s_mul_i32 s{self.sO0}, s{sBLK}, {O_BLK}")
        A.salu(f"s_lshl_b32 s12, s{sMT}, 19")
        A.salu(f"s_add_u32 s{self.sO0}, s{self.sO0}, s12")
        A.salu(f"s_lshl_b32 s12, s{sW}, {10 if OPT['fuse'] == 5 else 14}")
        A.salu(f"s_add_u32 s{self.sO0}, s{self.sO0}, s12")
        A.salu(f"s_add_u32 s{self.sO1}, s{self.sO0}, {2*131072}")
        if OPT["ntf"]:
            A.salu(f"s_lshl_b32 s12, s{sBLK}, 6")
            A.salu("s_add_u32 s12, s12, 128")
        else:
            A.salu(f"s_lshl_b32 s12, s{sBLK}, 7")
            A.salu(f"s_lshr_b32 s13, s{sW}, 1")
            A.salu("s_lshl_b32 s13, s13, 2")
            A.salu("s_add_u32 s12, s12, s13")
        sh = 2 if OPT["ntf"] else 4
        A.salu(f"s_mul_i32 s13, s{sMT}, 148")
        A.salu(f"s_lshr_b32 s{self.sP0}, s13, 8")
        A.salu(f"s_lshl_b32 s{self.sP0}, s{self.sP0}, {sh}")
        A.salu(f"s_add_u32 s{self.sP0}, s{self.sP0}, s12")
        A.salu("s_add_u32 s13, s13, 111")
        A.salu(f"s_lshr_b32 s{self.sP1}, s13, 8")
        A.salu(f"s_lshl_b32 s{self.sP1}, s{self.sP1}, {sh}")
        A.salu(f"s_add_u32 s{self.sP1}, s{self.sP1}, s12")
    def addr_items(self):
        V = self.A.valu; W = self.WOFF
        L, T1, T2, T4 = W + 4, W + 5, W + 6, W + 7
        return [
            lambda: V(f"v_mbcnt_lo_u32_b32 v{L}, -1, 0", w={L}),
            lambda: V(f"v_mbcnt_hi_u32_b32 v{L}, -1, v{L}", w={L}, r={L}),
            lambda: V(f"v_lshrrev_b32 v{T1}, 3, v{L}", w={T1}, r={L}),
            lambda: V(f"v_mul_u32_u24 v{T1}, 1152, v{T1}", w={T1}, r={T1}),
            lambda: V(f"v_bfe_u32 v{T2}, v{L}, 4, 1", w={T2}, r={L}),
            lambda: V(f"v_lshlrev_b32 v{T2}, 2, v{T2}", w={T2}, r={T2}),
            lambda: V(f"v_and_b32 v{T4}, 7, v{L}", w={T4}, r={L}),
            lambda: V(f"v_xor_b32 v{T4}, v{T4}, v{T2}", w={T4}, r={T4, T2}),
            lambda: V(f"v_lshl_add_u32 v{W}, v{T4}, 4, v{T1}", w={W}, r={T4, T1}),
        ] + [lambda i=i: V(f"v_add_u32 v{W+i}, {9216*i}, v{W}", w={W + i}, r={W}) for i in range(1, 4)]
    def addr6(self):
        V = self.A.valu
        W, L, T1 = 6, 13, 12
        V(f"v_mbcnt_lo_u32_b32 v{L}, -1, 0", w={L})
        V(f"v_mbcnt_hi_u32_b32 v{L}, -1, v{L}", w={L}, r={L})
        V(f"v_lshrrev_b32 v{T1}, 3, v{L}", w={T1}, r={L})
        V(f"v_mul_u32_u24 v{T1}, 1152, v{T1}", w={T1}, r={T1})
        V(f"v_and_b32 v{W}, 7, v{L}", w={W}, r={L})
        V(f"v_bfe_u32 v{L}, v{L}, 4, 1", w={L}, r={L})
        V(f"v_lshlrev_b32 v{L}, 2, v{L}", w={L}, r={L})
        V(f"v_xor_b32 v{W}, v{W}, v{L}", w={W}, r={W, L})
        V(f"v_lshl_add_u32 v{W}, v{W}, 4, v{T1}", w={W}, r={W, T1})
        self.A.salu(f"s_lshl_b32 s{self.sWL}, s{self.sW}, 11")
        self.slots6 = []
    def wo_piece(self, u, i):
        A = self.A; W = self.WOFF; S = self.SWO
        if OPT["fuse"] == 6:
            A.salu(f"s_add_u32 s{self.sT}, s{self.sWB}, {u * 32 * 1152 + i * 9216}")
            A.salu(f"s_add_u32 m0, s{self.sWL}, {self.slots6[2 * (u % 4) + (i >> 1)] * SLOT + (i & 1) * 1024}", m0w=True)
            A.vmem(f"buffer_load_dwordx4 v6, s[{S}:{S+3}], s{self.sT} offen{' nt' if OPT['ntwo'] else ''} lds", kind="dma", r={6}, m0r=True)
            return
        A.salu(f"s_add_u32 s{self.sT}, s{self.sWB}, {u * 32 * 1152}")
        A.salu(f"s_add_u32 m0, s{self.sWL}, {(u % 4) * 4096 + i * 1024}", m0w=True)
        A.vmem(f"buffer_load_dwordx4 v{W+i}, s[{S}:{S+3}], s{self.sT} offen{' nt' if OPT['ntwo'] else ''} lds", kind="dma", r={W + i}, m0r=True)
    def wo_items(self, slots):
        A = self.A
        tab = sum(s << (4 * w) for w, s in enumerate(slots))
        A.salu(f"s_lshl_b32 s3, s{self.sW}, 2")
        A.salu(f"s_lshr_b32 s3, {tab:#x}, s3")
        A.salu("s_and_b32 s3, s3, 15")
        A.salu(f"s_lshl_b32 s{self.sWL}, s3, 14")
        return [lambda u=u, i=i: self.wo_piece(u, i) for u in range(4) for i in range(4)]
    def dyn(self, PF, L, OOFF, BA, AF, OF, ACC):
        A = self.A; V = A.valu; sW = self.sW; SO = self.SO; SDBG = self.SDBG; W = self.WOFF; S = self.SWO
        T1, T2, T3, T4 = 1, 2, 3, 4
        PD = 8
        vPA, vMA, vT, vM = W + 4, W + 5, W + 6, W + 7
        sPM, sCNT, sDONE, sJ, sA, sB_ = 60, 62, 63, 12, 13, 14
        V(f"v_mov_b32 v{vPA}, s{self.sP1}", w={vPA})
        V(f"v_mov_b32 v{T4}, s{self.sP0}", w={T4})
        V(f"v_cmp_gt_u32 vcc, 16, v{L}", r={L}, sw={"vcc"})
        V(f"v_cndmask_b32 v{vPA}, v{vPA}, v{T4}, vcc", w={vPA}, r={vPA, T4}, sr={"vcc"})
        V(f"v_and_b32 v{T4}, 15, v{L}", w={T4}, r={L})
        V(f"v_add_u32 v{vPA}, v{T4}, v{vPA}", w={vPA}, r={vPA, T4})
        V(f"v_mov_b32 v{vMA}, {self.mslot * SLOT}", w={vMA})
        V(f"v_mov_b32 v{vT}, 0", w={vT})
        A.ds(f"ds_write_b32 v{vMA}, v{vT}", r={vMA, vT})
        A.salu(f"s_cmp_eq_u32 s{sW}, 0")
        A.salu(f"s_cselect_b32 s{sPM}, -1, 0")
        A.salu(f"s_mov_b32 s{sPM+1}, 0")
        A.salu(f"s_mov_b32 s{sCNT}, 0x40000")
        A.salu(f"s_mov_b32 s{sDONE}, 0")
        A.salu(f"s_mov_b32 s15, 0")
        A.waitcnt(vm=0, lgkm=0); A.vm_done = A.nvm; A.ds_done = A.nds
        PF.stamp("st")
        A.barrier()
        A.salu("s_cbranch_scc0 K1_NOFLAG")
        A.salu("s_mov_b64 exec, 1")
        A.salu(f"buffer_atomic_add v{T2}, v{T1}, s[{SDBG}:{SDBG+3}], 0 offen sc1")
        A.salu("s_mov_b64 exec, -1")
        A.label("K1_NOFLAG")
        A.salu(f"s_cmp_ge_u32 s{self.sTT}, 252")
        A.salu("s_cbranch_scc1 K1_END")
        def poll(r, counted=True):
            A.salu(f"s_mov_b64 exec, s[{sPM}:{sPM+1}]")
            txt = f"buffer_load_ubyte v{PD+r}, v{vPA}, s[{SDBG}:{SDBG+3}], 0 offen sc1"
            if counted: A.vmem(txt, w={PD + r}, r={vPA})
            else: A.salu(txt)
            A.salu("s_mov_b64 exec, -1")
        def consume(r):
            A.salu(f"s_mov_b64 exec, s[{sPM}:{sPM+1}]")
            V(f"v_cmp_ne_u32 vcc, 0, v{PD+r}", r={PD + r}, sw={"vcc"})
            A.salu("s_nop 1")
            A.salu(f"s_lshr_b32 s{sA}, vcc_lo, 16")
            A.salu(f"s_and_b32 s{sA}, s{sA}, vcc_lo")
            A.salu(f"s_or_b32 s15, s15, s{sA}")
            V(f"v_mov_b32 v{vT}, s15", w={vT})
            A.ds(f"ds_write_b32 v{vMA}, v{vT}", r={vMA, vT})
            A.salu("s_mov_b64 exec, -1")
        def pick(k):
            A.label(f"K1_PK{k}")
            A.ds(f"ds_read_b32 v{vM}, v{vMA}", w={vM}, r={vMA})
            A.waitcnt(lgkm=0); A.ds_done = A.nds
            A._emit(I(f"v_readfirstlane_b32 s{sA}, v{vM}", "rdlane", r={vM}, sw={sA}))
            A.salu(f"s_andn2_b32 s{sA}, s{sA}, s{sDONE}", sr={sA})
            A.salu(f"s_cbranch_scc1 K1_PG{k}")
            poll(k % 4, False)
            A.salu("s_waitcnt vmcnt(0)")
            consume(k % 4)
            A.salu(f"s_sleep {OPT['slp']}")
            A.salu(f"s_sub_u32 s{sCNT}, s{sCNT}, 1")
            A.salu(f"s_cmp_lg_u32 s{sCNT}, 0")
            A.salu(f"s_cbranch_scc1 K1_PK{k}")
            A.salu(f"s_mov_b32 s{sCNT}, 1")
            A.salu(f"s_andn2_b32 s{sA}, 0xffff, s{sDONE}")
            A.label(f"K1_PG{k}")
            A.salu(f"s_ff1_i32_b32 s{sJ}, s{sA}")
            A.salu(f"s_bitset1_b32 s{sDONE}, s{sJ}")
        NU = 16; DEPTH = 4
        last_vm = {}
        def issue(u):
            slot = u % DEPTH
            pick(u)
            if self.first: PF.stamp("go"); self.first = False
            if 4 <= u: poll(u % 4)
            A.salu(f"s_mul_i32 s{sA}, s{sJ}, {256*1152}")
            A.salu(f"s_add_u32 s{sA}, s{sA}, s{self.sWB}")
            for i in range(4):
                A.salu(f"s_add_u32 m0, s{self.sWL}, {slot * 4096 + i * 1024}", m0w=True)
                A.vmem(f"buffer_load_dwordx4 v{W+i}, s[{S}:{S+3}], s{sA} offen{' nt' if OPT['ntwo'] else ''} lds", kind="dma", r={W + i}, m0r=True)
            A.salu(f"s_lshl_b32 s{sJ}, s{sJ}, 13")
            A.salu(f"s_add_u32 s{sA}, s{sJ}, s{self.sO0}")
            A.salu(f"s_add_u32 s{sB_}, s{sJ}, s{self.sO1}")
            for ks in range(2):
                for tm in range(2):
                    d = OF + slot * 16 + (ks * 2 + tm) * 4
                    k = A.vmem(f"buffer_load_dwordx4 {vname(d,4)}, v{OOFF}, s[{SO}:{SO+3}], s{sA if tm == 0 else sB_} offen offset:{ks*512} sc1", w=vr(d, 4), r={OOFF})
            last_vm[u] = k
        def dsreads(u):
            slot = u % DEPTH
            ab = AF + (u % 2) * 16
            for ks in range(2):
                for tn in range(2):
                    for j in range(2):
                        k = A.ds_read_tr(ab + (ks * 2 + tn) * 4 + 2 * j, BA + tn, slot * 4096 + (16 * ks + 8 * j) * 128)
            return k
        self.first = True
        for u in range(DEPTH): issue(u)
        A.wait_vm(last_vm[0])
        pend = dsreads(0)
        for u in range(NU):
            A.wait_ds(pend)
            if u + 1 < NU:
                A.wait_vm(last_vm[u + 1])
                if u + 1 >= 4 and u + DEPTH < NU: consume((u + 1) % 4)
                pend = dsreads(u + 1)
            ab = AF + (u % 2) * 16
            ob = OF + (u % DEPTH) * 16
            for ks in range(2):
                for tn in range(2):
                    for tm in range(2):
                        c = "zero" if (u == 0 and ks == 0) else None
                        A.mfma(ACC + (tn * 2 + tm) * 16, ab + (ks * 2 + tn) * 4, ob + (ks * 2 + tm) * 4, c)
            if u + DEPTH < NU: issue(u + DEPTH)
            if u in (0, 7, 15): PF.stamp(f"u{u}")
    def body(self, PF, sBLK1, sB1, sKVH1):
        A = self.A; V = A.valu; sW = self.sW; SO = self.SO
        T0, T1, T2, T3, T4, T5, T6, T7 = 0, 1, 2, 3, 4, 5, 9, 8
        WOFF = self.WOFF; OOFF = 12; BA = 13; RED = 15; AF = 16; OF = 96; ACC = 160
        sBLK, sMT, sNT = self.sBLK, self.sMT, self.sNT
        SOUT, SDBG = self.SOUT, self.SDBG
        sWL, sO0, sO1, sT = self.sWL, self.sO0, self.sO1, self.sT
        L = T0
        A.salu("s_mov_b64 exec, -1")
        V(f"v_mbcnt_lo_u32_b32 v{L}, -1, 0", w={L})
        V(f"v_mbcnt_hi_u32_b32 v{L}, -1, v{L}", w={L}, r={L})
        V(f"v_bfe_u32 v{T2}, v{L}, 4, 1", w={T2}, r={L})
        V(f"v_lshrrev_b32 v{T1}, 5, v{L}", w={T1}, r={L})
        V(f"v_bfe_u32 v{T3}, v{L}, 2, 2", w={T3}, r={L})
        V(f"v_and_b32 v{T4}, 3, v{L}", w={T4}, r={L})
        V(f"v_lshlrev_b32 v{T6}, 17, v{T2}", w={T6}, r={T2})
        V(f"v_lshl_add_u32 v{T6}, v{T1}, 8, v{T6}", w={T6}, r={T1, T6})
        V(f"v_and_b32 v{T7}, 15, v{L}", w={T7}, r={L})
        V(f"v_lshl_add_u32 v{OOFF}, v{T7}, 4, v{T6}", w={OOFF}, r={T7, T6})
        V(f"v_lshl_add_u32 v{T6}, v{T1}, 2, v{T3}", w={T6}, r={T1, T3})
        V(f"v_lshlrev_b32 v{T6}, 7, v{T6}", w={T6}, r={T6})
        V(f"v_lshrrev_b32 v{T7}, 1, v{T4}", w={T7}, r={T4})
        V(f"v_lshl_add_u32 v{T7}, v{T2}, 1, v{T7}", w={T7}, r={T2, T7})
        V(f"v_lshrrev_b32 v{T5}, 1, v{T3}", w={T5}, r={T3})
        V(f"v_lshlrev_b32 v{T5}, 2, v{T5}", w={T5}, r={T5})
        V(f"v_xor_b32 v{T7}, v{T7}, v{T5}", w={T7}, r={T7, T5})
        V(f"v_lshl_add_u32 v{T6}, v{T7}, 4, v{T6}", w={T6}, r={T7, T6})
        V(f"v_and_b32 v{T7}, 1, v{T4}", w={T7}, r={T4})
        V(f"v_lshl_add_u32 v{T6}, v{T7}, 3, v{T6}", w={T6}, r={T7, T6})
        V(f"v_add_u32 v{BA}, s{sWL}, v{T6}", w={BA}, r={T6})
        V(f"v_xor_b32 v{BA+1}, 64, v{BA}", w={BA + 1}, r={BA})
        if OPT["fuse"] == 6:
            for q in range(1, 3):
                for tn in range(2):
                    V(f"v_add_u32 v{64+2*q+tn}, {q*65536}, v{BA+tn}", w={64 + 2 * q + tn}, r={BA + tn})
        V(f"v_lshlrev_b32 v{RED}, 4, v{L}", w={RED}, r={L})
        if OPT["ntf"]:
            A.salu(f"s_lshl_b32 s12, s{sBLK1}, 6")
            A.salu(f"s_lshl_b32 s13, s{sB1}, 2")
            A.salu("s_add_u32 s12, s12, s13")
            A.salu("s_mov_b32 s13, 1")
        else:
            A.salu(f"s_lshl_b32 s12, s{sBLK1}, 7")
            A.salu(f"s_lshl_b32 s13, s{sB1}, 4")
            A.salu("s_add_u32 s12, s12, s13")
            A.salu(f"s_and_b32 s13, s{sKVH1}, 12")
            A.salu("s_add_u32 s12, s12, s13")
            A.salu(f"s_and_b32 s13, s{sKVH1}, 3")
            A.salu("s_lshl_b32 s13, s13, 3")
            A.salu("s_lshl_b32 s13, 1, s13")
        V(f"v_mov_b32 v{T1}, s12", w={T1})
        V(f"v_mov_b32 v{T2}, s13", w={T2})
        if OPT["ntf"]:
            V(f"v_mov_b32 v{T3}, s{self.sP1}", w={T3})
            V(f"v_writelane_b32 v{T3}, s{self.sP0}, 0", w={T3}, r={T3})
            V(f"v_mov_b32 v{T5}, 1", w={T5})
            A.salu("s_mov_b32 s14, 1")
        elif OPT["fuse"] == 5:
            self.dyn(PF, L, OOFF, BA, AF, OF, ACC)
        elif OPT["fuse"] == 1:
            V(f"v_mov_b32 v{T3}, s{self.sP1}", w={T3})
            V(f"v_writelane_b32 v{T3}, s{self.sP0}, 0", w={T3}, r={T3})
            A.salu(f"s_and_b32 s14, s{sW}, 1")
            A.salu("s_lshl_b32 s14, s14, 4")
            A.salu("s_lshl_b32 s14, 0x101, s14")
        else:
            V(f"v_mov_b32 v{T3}, s{self.sP1}", w={T3})
            V(f"v_mov_b32 v{T4}, s{self.sP0}", w={T4})
            V(f"v_cmp_gt_u32 vcc, 4, v{L}", r={L}, sw={"vcc"})
            V(f"v_cndmask_b32 v{T3}, v{T3}, v{T4}, vcc", w={T3}, r={T3, T4}, sr={"vcc"})
            V(f"v_and_b32 v{T4}, 3, v{L}", w={T4}, r={L})
            V(f"v_lshl_add_u32 v{T3}, v{T4}, 2, v{T3}", w={T3}, r={T3, T4})
            A.salu("s_mov_b32 s14, 0x01010101")
        if OPT["fuse"] != 5:
            A.salu("s_mov_b32 s15, 0x40000")
            A.waitcnt(vm=0); A.vm_done = A.nvm
            PF.stamp("st")
            A.barrier()
            A.salu(f"s_cmp_eq_u32 s{sW}, 0")
            A.salu("s_cbranch_scc0 K1_NOFLAG")
            A.salu("s_mov_b64 exec, 1")
            if OPT["ntf"]:
                A.salu(f"buffer_atomic_add v{T2}, v{T1}, s[{SDBG}:{SDBG+3}], 0 offen sc0 sc1")
                A.salu("s_waitcnt vmcnt(0)")
                A.salu(f"v_cmp_eq_u32 vcc, 15, v{T2}")
                A.salu("s_nop 1")
                A.salu("s_cbranch_vccz K1_NOFLAG")
                A.salu(f"buffer_store_dword v{T5}, v{T1}, s[{SDBG}:{SDBG+3}], 0 offen offset:128 sc1")
            elif OPT["exp"] != 1: A.salu(f"buffer_atomic_add v{T2}, v{T1}, s[{SDBG}:{SDBG+3}], 0 offen sc1")
            A.label("K1_NOFLAG")
            A.salu(f"s_cmp_ge_u32 s{self.sTT}, 252")
            A.salu("s_cbranch_scc1 K1_END")
            if OPT["exp"]:
                for _ in range(3): A.salu("s_sleep 64")
                A.salu("s_branch K1_GO")
            if OPT["fuse"] == 6:
                A.salu("s_mov_b64 exec, -1")
                for j in range(self.done6, 8):
                    for q in range(2): self.wo_piece(j >> 1, (j & 1) * 2 + q)
            if OPT["fuse"] == 1:
                A.salu("s_mov_b64 exec, 3")
            else:
                A.salu(f"s_cmp_eq_u32 s{sW}, 0")
                A.salu("s_cbranch_scc0 K1_GO" if OPT["fuse"] != 3 else "s_cbranch_scc0 K1_WO")
                A.salu("s_mov_b64 exec, 3" if OPT["ntf"] else "s_mov_b64 exec, 0xff")
            A.label("K1_POLL")
            A.salu(f"buffer_load_dword v{T4}, v{T3}, s[{SDBG}:{SDBG+3}], 0 offen sc1")
            A.salu("s_waitcnt vmcnt(0)")
            A.salu(f"v_and_b32 v{T4}, s14, v{T4}")
            A.salu(f"v_cmp_ne_u32 vcc, s14, v{T4}")
            A.salu("s_nop 1")
            A.salu("s_cbranch_vccz K1_GO")
            A.salu(f"s_sleep {OPT['slp']}")
            A.salu("s_sub_u32 s15, s15, 1")
            A.salu("s_cmp_lg_u32 s15, 0")
            A.salu("s_cbranch_scc1 K1_POLL")
            A.label("K1_GO")
            A.salu("s_mov_b64 exec, -1")
            if OPT["fuse"] == 3:
                A.barrier()
                A.label("K1_WO")
                for u in range(4):
                    for i in range(4): self.wo_piece(u, i)
                A.salu(f"s_cmp_eq_u32 s{sW}, 0")
                A.salu("s_cbranch_scc1 K1_GO2")
                A.barrier()
                A.label("K1_GO2")
            elif OPT["fuse"] > 1: A.barrier()
            PF.stamp("go")
            NU = 16; DEPTH = 4
            last_vm = {}
            def issue(u, wo=True):
                slot = u % DEPTH
                if wo:
                    for i in range(4): self.wo_piece(u, i)
                for ks in range(2):
                    for tm in range(2):
                        d = OF + slot * 16 + (ks * 2 + tm) * 4
                        off = (2 * u + ks) * 512
                        sb = sO0 if tm == 0 else sO1
                        if off >= 4096:
                            A.salu(f"s_add_u32 s{sT}, s{sb}, {off & ~4095}")
                            sb = sT
                        k = A.vmem(f"buffer_load_dwordx4 {vname(d,4)}, v{OOFF}, s[{SO}:{SO+3}], s{sb} offen offset:{off & 4095} sc1", w=vr(d, 4), r={OOFF})
                last_vm[u] = k
            def dsreads(u):
                slot = u % DEPTH
                ab = AF + (u % 2) * 16
                for ks in range(2):
                    for tn in range(2):
                        for j in range(2):
                            if OPT["fuse"] == 6:
                                o_ = self.slots6[2 * slot + ks] * SLOT + j * 1024
                                k = A.ds_read_tr(ab + (ks * 2 + tn) * 4 + 2 * j, (BA if o_ < 65536 else 64 + 2 * (o_ >> 16)) + tn, o_ & 65535)
                            else:
                                k = A.ds_read_tr(ab + (ks * 2 + tn) * 4 + 2 * j, BA + tn, slot * 4096 + (16 * ks + 8 * j) * 128)
                return k
            for u in range(DEPTH): issue(u, OPT["fuse"] == 4)
            if OPT["fuse"] in (3, 4): A.wait_vm(last_vm[0])
            pend = dsreads(0)
            A.wait_vm(last_vm[0])
            for u in range(NU):
                A.wait_ds(pend)
                if u + 1 < NU:
                    A.wait_vm(last_vm[u + 1])
                    pend = dsreads(u + 1)
                ab = AF + (u % 2) * 16
                ob = OF + (u % DEPTH) * 16
                for ks in range(2):
                    for tn in range(2):
                        for tm in range(2):
                            c = "zero" if (u == 0 and ks == 0) else None
                            A.mfma(ACC + (tn * 2 + tm) * 16, ab + (ks * 2 + tn) * 4, ob + (ks * 2 + tm) * 4, c)
                if u + DEPTH < NU: issue(u + DEPTH)
                if u in (0, 7, 15): PF.stamp(f"u{u}")
        A.wait_ds_all()
        A.barrier()
        A.salu(f"s_lshl_b32 s12, s{sW}, 14")
        V(f"v_add_u32 v{T1}, s12, v{RED}", w={T1}, r={RED})
        for q in range(16):
            A.ds_write_b128(T1, ACC + 4 * q, q * 1024)
        A.wait_ds_all()
        A.barrier()
        A.salu(f"s_lshl_b32 s6, s{sW}, 11")
        V(f"v_add_u32 v{T1}, s6, v{RED}", w={T1}, r={RED})
        V(f"v_add_u32 v{T2}, 0x10000, v{T1}", w={T2}, r={T1})
        R = OF
        for ww in range(8):
            for q in range(2):
                A.ds_read_b128(R + (ww * 2 + q) * 4, T1 if ww < 4 else T2, (ww % 4) * 16384 + q * 1024)
            if ww == 5:
                A.wait_ds_all()
        A.wait_ds_all()
        for ww in range(1, 8):
            for i in range(8):
                V(f"v_add_f32 v{R+i}, v{R+i}, v{R+ww*8+i}", w={R + i}, r={R + i, R + ww * 8 + i})
        for q in range(4):
            V(f"v_cvt_pk_bf16_f32 v{AF+q}, v{R+2*q}, v{R+2*q+1}", w={AF + q}, r={R + 2 * q, R + 2 * q + 1})
        A.salu(f"s_lshr_b32 s6, s{sW}, 1")
        A.salu("s_and_b32 s7, s6, 1")
        A.salu("s_lshr_b32 s6, s6, 1")
        A.salu(f"s_lshl_b32 s3, s{sMT}, 6")
        A.salu("s_lshl_b32 s7, s7, 5")
        A.salu("s_add_u32 s3, s3, s7")
        A.salu("s_mul_i32 s3, s3, 2304")
        A.salu(f"s_mul_i32 s7, s{sBLK}, 1152")
        A.salu("s_add_u32 s3, s3, s7")
        A.salu(f"s_lshl_b32 s7, s{sNT}, 7")
        A.salu("s_add_u32 s3, s3, s7")
        A.salu("s_lshl_b32 s7, s6, 6")
        A.salu("s_add_u32 s3, s3, s7")
        A.salu(f"s_and_b32 s7, s{sW}, 1")
        A.salu("s_lshl_b32 s7, s7, 5")
        A.salu("s_add_u32 s3, s3, s7")
        V(f"v_and_b32 v{T1}, 31, v{L}", w={T1}, r={L})
        V(f"v_mul_u32_u24 v{T1}, 2304, v{T1}", w={T1}, r={T1})
        V(f"v_lshrrev_b32 v{T2}, 5, v{L}", w={T2}, r={L})
        V(f"v_lshl_add_u32 v{T1}, v{T2}, 3, v{T1}", w={T1}, r={T2, T1})
        A.vmem(f"buffer_store_dwordx2 {vname(AF,2)}, v{T1}, s[{SOUT}:{SOUT+3}], s3 offen", r=vr(AF, 2) | {T1})
        A.vmem(f"buffer_store_dwordx2 {vname(AF+2,2)}, v{T1}, s[{SOUT}:{SOUT+3}], s3 offen offset:16", r=vr(AF + 2, 2) | {T1})

def gen_k2(A):
    V = A.valu
    T0, T1, T2, T3, T4, T5, T6, T7 = range(0, 8)
    WOFF = 8
    OOFF = 12
    BA = 13
    RED = 15
    AF = 16
    OF = 48
    ACC = 112
    sBLK, sMT, sNT, sW = 26, 27, 4, 5
    SW_, SO, SOUT = 28, 32, 36
    sWL, sWB, sO0, sO1, sT = 48, 49, 50, 51, 52
    A.win = []
    A.nds = A.ds_done = A.nvm = A.vm_done = 0
    A.raw(f".p2align 8\n.globl k2_kernel\n.type k2_kernel,@function\nk2_kernel:")
    A.salu("s_cmp_ge_u32 s2, 256")
    A.salu("s_cbranch_scc1 K2_END")
    A.salu("s_and_b32 s3, s2, 7")
    A.salu("s_lshl_b32 s3, s3, 5")
    A.salu("s_lshr_b32 s6, s2, 3")
    A.salu("s_add_u32 s3, s3, s6")
    A.salu("s_cmp_ge_u32 s3, 252")
    A.salu("s_cbranch_scc1 K2_END")
    A.salu("s_load_dwordx2 s[8:9], s[0:1], 32")
    A.salu("s_load_dwordx2 s[10:11], s[0:1], 72")
    A.salu("s_load_dwordx2 s[12:13], s[0:1], 80")
    A.salu("s_load_dwordx2 s[14:15], s[0:1], 96")
    A.salu("s_cmp_ge_u32 s3, 126")
    A.salu(f"s_cselect_b32 s{sBLK}, 1, 0")
    A.salu(f"s_mul_i32 s6, s{sBLK}, 126")
    A.salu("s_sub_u32 s3, s3, s6")
    A.salu("s_mul_i32 s6, s3, 57")
    A.salu(f"s_lshr_b32 s{sMT}, s6, 9")
    A.salu(f"s_mul_i32 s6, s{sMT}, 9")
    A.salu(f"s_sub_u32 s{sNT}, s3, s6")
    V(f"v_lshrrev_b32 v{T1}, 6, v0", w={T1}, r={0})
    A._emit(I(f"v_readfirstlane_b32 s{sW}, v{T1}", "rdlane", r={T1}, sw={sW}))
    V(f"v_and_b32 v{T0}, 63, v0", w={T0}, r={0})
    L = T0
    A.salu(f"s_lshl_b32 s{sWL}, s{sW}, 14", sr={sW})
    A.salu(f"s_mul_i32 s{sWB}, s{sW}, {512*1152}", sr={sW})
    A.salu(f"s_lshl_b32 s6, s{sNT}, 7")
    A.salu(f"s_add_u32 s{sWB}, s{sWB}, s6")
    A.salu(f"s_mul_i32 s{sO0}, s{sBLK}, {O_BLK}")
    A.salu(f"s_lshl_b32 s6, s{sMT}, 19")
    A.salu(f"s_add_u32 s{sO0}, s{sO0}, s6")
    A.salu(f"s_lshl_b32 s6, s{sW}, 14")
    A.salu(f"s_add_u32 s{sO0}, s{sO0}, s6")
    A.salu(f"s_add_u32 s{sO1}, s{sO0}, {2*131072}")
    V(f"v_lshrrev_b32 v{T1}, 3, v{L}", w={T1}, r={L})
    V(f"v_mul_u32_u24 v{T1}, 1152, v{T1}", w={T1}, r={T1})
    V(f"v_bfe_u32 v{T2}, v{L}, 4, 1", w={T2}, r={L})
    V(f"v_lshlrev_b32 v{T3}, 2, v{T2}", w={T3}, r={T2})
    V(f"v_and_b32 v{T4}, 7, v{L}", w={T4}, r={L})
    V(f"v_xor_b32 v{T4}, v{T4}, v{T3}", w={T4}, r={T4, T3})
    V(f"v_lshl_add_u32 v{WOFF}, v{T4}, 4, v{T1}", w={WOFF}, r={T4, T1})
    for i in range(1, 4):
        V(f"v_add_u32 v{WOFF+i}, {9216*i}, v{WOFF}", w={WOFF + i}, r={WOFF})
    V(f"v_lshrrev_b32 v{T1}, 5, v{L}", w={T1}, r={L})
    V(f"v_bfe_u32 v{T3}, v{L}, 2, 2", w={T3}, r={L})
    V(f"v_and_b32 v{T4}, 3, v{L}", w={T4}, r={L})
    V(f"v_lshlrev_b32 v{T6}, 17, v{T2}", w={T6}, r={T2})
    V(f"v_lshl_add_u32 v{T6}, v{T1}, 8, v{T6}", w={T6}, r={T1, T6})
    V(f"v_and_b32 v{T7}, 15, v{L}", w={T7}, r={L})
    V(f"v_lshl_add_u32 v{OOFF}, v{T7}, 4, v{T6}", w={OOFF}, r={T7, T6})
    V(f"v_lshl_add_u32 v{T6}, v{T1}, 2, v{T3}", w={T6}, r={T1, T3})
    V(f"v_lshlrev_b32 v{T6}, 7, v{T6}", w={T6}, r={T6})
    V(f"v_lshrrev_b32 v{T7}, 1, v{T4}", w={T7}, r={T4})
    V(f"v_lshl_add_u32 v{T7}, v{T2}, 1, v{T7}", w={T7}, r={T2, T7})
    V(f"v_lshrrev_b32 v{T5}, 1, v{T3}", w={T5}, r={T3})
    V(f"v_lshlrev_b32 v{T5}, 2, v{T5}", w={T5}, r={T5})
    V(f"v_xor_b32 v{T7}, v{T7}, v{T5}", w={T7}, r={T7, T5})
    V(f"v_lshl_add_u32 v{T6}, v{T7}, 4, v{T6}", w={T6}, r={T7, T6})
    V(f"v_and_b32 v{T7}, 1, v{T4}", w={T7}, r={T4})
    V(f"v_lshl_add_u32 v{T6}, v{T7}, 3, v{T6}", w={T6}, r={T7, T6})
    V(f"v_add_u32 v{BA}, s{sWL}, v{T6}", w={BA}, r={T6})
    V(f"v_xor_b32 v{BA+1}, 64, v{BA}", w={BA + 1}, r={BA})
    V(f"v_lshlrev_b32 v{RED}, 4, v{L}", w={RED}, r={L})
    A.waitcnt(lgkm=0)
    A.salu(f"s_cmp_eq_u32 s{sBLK}, 0")
    A.salu("s_cselect_b32 s8, s8, s10")
    A.salu("s_cselect_b32 s9, s9, s11")
    srd(A, SW_, 8, 4096 * 576 * 2)
    srd(A, SO, 14, 2 * O_BLK)
    srd(A, SOUT, 12, 896 * 1152 * 2)

    NU = 16; DEPTH = 4
    last_vm = {}
    def issue(u):
        slot = u % DEPTH
        A.salu(f"s_add_u32 s{sT}, s{sWB}, {u * 32 * 1152}")
        for i in range(4):
            A.salu(f"s_add_u32 m0, s{sWL}, {slot * 4096 + i * 1024}", m0w=True)
            A.vmem(f"buffer_load_dwordx4 v{WOFF+i}, s[{SW_}:{SW_+3}], s{sT} offen{' nt' if OPT['ntwo'] else ''} lds", kind="dma", r={WOFF + i}, m0r=True)
        for ks in range(2):
            for tm in range(2):
                d = OF + slot * 16 + (ks * 2 + tm) * 4
                off = (2 * u + ks) * 512
                sb = sO0 if tm == 0 else sO1
                if off >= 4096:
                    A.salu(f"s_add_u32 s{sT}, s{sb}, {off & ~4095}")
                    k = A.vmem(f"buffer_load_dwordx4 {vname(d,4)}, v{OOFF}, s[{SO}:{SO+3}], s{sT} offen offset:{off & 4095}{' nt' if OPT['nto'] else ''}", w=vr(d, 4), r={OOFF})
                else:
                    k = A.vmem(f"buffer_load_dwordx4 {vname(d,4)}, v{OOFF}, s[{SO}:{SO+3}], s{sb} offen offset:{off}{' nt' if OPT['nto'] else ''}", w=vr(d, 4), r={OOFF})
        last_vm[u] = k
    def dsreads(u):
        slot = u % DEPTH
        ab = AF + (u % 2) * 16
        for ks in range(2):
            for tn in range(2):
                for j in range(2):
                    k = A.ds_read_tr(ab + (ks * 2 + tn) * 4 + 2 * j, BA + tn, slot * 4096 + (16 * ks + 8 * j) * 128)
        return k
    PF = Prof(A, 1)
    PF.stamp("start")
    for u in range(DEPTH): issue(u)
    A.wait_vm(last_vm[0])
    pend = dsreads(0)
    for u in range(NU):
        A.wait_ds(pend)
        if u + 1 < NU:
            A.wait_vm(last_vm[u + 1])
            pend = dsreads(u + 1)
        ab = AF + (u % 2) * 16
        ob = OF + (u % DEPTH) * 16
        for ks in range(2):
            for tn in range(2):
                for tm in range(2):
                    c = "zero" if (u == 0 and ks == 0) else None
                    A.mfma(ACC + (tn * 2 + tm) * 16, ab + (ks * 2 + tn) * 4, ob + (ks * 2 + tm) * 4, c)
        if u + DEPTH < NU: issue(u + DEPTH)
        PF.stamp(f"u{u}")
    A.wait_ds_all()
    A.barrier()
    V(f"v_add_u32 v{T1}, s{sWL}, v{RED}", w={T1}, r={RED})
    for q in range(16):
        A.ds_write_b128(T1, ACC + 4 * q, q * 1024)
    A.wait_ds_all()
    A.barrier()
    A.salu(f"s_lshl_b32 s6, s{sW}, 11")
    V(f"v_add_u32 v{T1}, s6, v{RED}", w={T1}, r={RED})
    V(f"v_add_u32 v{T2}, 0x10000, v{T1}", w={T2}, r={T1})
    R = OF
    for ww in range(8):
        for q in range(2):
            A.ds_read_b128(R + (ww * 2 + q) * 4, T1 if ww < 4 else T2, (ww % 4) * 16384 + q * 1024)
            if ww == 6 and q == 1: pass
        if ww == 5:
            A.wait_ds_all()
    A.wait_ds_all()
    for ww in range(1, 8):
        for i in range(8):
            V(f"v_add_f32 v{R+i}, v{R+i}, v{R+ww*8+i}", w={R + i}, r={R + i, R + ww * 8 + i})
    for q in range(4):
        V(f"v_cvt_pk_bf16_f32 v{AF+q}, v{R+2*q}, v{R+2*q+1}", w={AF + q}, r={R + 2 * q, R + 2 * q + 1})
    A.salu(f"s_lshr_b32 s6, s{sW}, 1")
    A.salu("s_and_b32 s7, s6, 1")
    A.salu("s_lshr_b32 s6, s6, 1")
    A.salu(f"s_lshl_b32 s3, s{sMT}, 6")
    A.salu("s_lshl_b32 s7, s7, 5")
    A.salu("s_add_u32 s3, s3, s7")
    A.salu("s_mul_i32 s3, s3, 2304")
    A.salu(f"s_mul_i32 s7, s{sBLK}, 1152")
    A.salu("s_add_u32 s3, s3, s7")
    A.salu(f"s_lshl_b32 s7, s{sNT}, 7")
    A.salu("s_add_u32 s3, s3, s7")
    A.salu("s_lshl_b32 s7, s6, 6")
    A.salu("s_add_u32 s3, s3, s7")
    A.salu(f"s_and_b32 s7, s{sW}, 1")
    A.salu("s_lshl_b32 s7, s7, 5")
    A.salu("s_add_u32 s3, s3, s7")
    V(f"v_and_b32 v{T1}, 31, v{L}", w={T1}, r={L})
    V(f"v_mul_u32_u24 v{T1}, 2304, v{T1}", w={T1}, r={T1})
    V(f"v_lshrrev_b32 v{T2}, 5, v{L}", w={T2}, r={L})
    V(f"v_lshl_add_u32 v{T1}, v{T2}, 3, v{T1}", w={T1}, r={T2, T1})
    A.vmem(f"buffer_store_dwordx2 {vname(AF,2)}, v{T1}, s[{SOUT}:{SOUT+3}], s3 offen", r=vr(AF, 2) | {T1})
    A.vmem(f"buffer_store_dwordx2 {vname(AF+2,2)}, v{T1}, s[{SOUT}:{SOUT+3}], s3 offen offset:16", r=vr(AF + 2, 2) | {T1})
    PF.dump(14, sW, 0)
    A.label("K2_END")
    A.salu("s_endpgm")

def kd(name, vgpr, sgpr):
    return f""".amdhsa_kernel {name}
  .amdhsa_next_free_vgpr {vgpr}
  .amdhsa_next_free_sgpr {sgpr}
  .amdhsa_accum_offset {(vgpr + 3) // 4 * 4}
  .amdhsa_group_segment_fixed_size 0
  .amdhsa_kernarg_size 104
  .amdhsa_user_sgpr_count 2
  .amdhsa_user_sgpr_kernarg_segment_ptr 1
  .amdhsa_system_sgpr_workgroup_id_x 1
.end_amdhsa_kernel
"""

def main():
    A = Asm()
    gen_k1(A)
    if not OPT["fuse"]: gen_k2(A)
    head = """; Two-launch GQA block pair: k1 = Q projection + attention (o -> ws), k2 = output projection.
; @launch kernel=k1_kernel grid=(256,1,1) block=(512,1,1) lds=163840
; @launch kernel=k2_kernel grid=(256,1,1) block=(512,1,1) lds=131072
.amdgcn_target "amdgcn-amd-amdhsa--gfx950"
.text
"""
    tail = '\n.section .rodata,"a"\n.p2align 6\n' + kd("k1_kernel", 256, 102 if OPT["prof"] else 64) + ".p2align 6\n" + kd("k2_kernel", 176, 102 if OPT["prof"] else 64)
    if OPT["fuse"]:
        head = """; GQA block pair in one launch: Q projection + attention, o handed over through ws, output projection.
; @launch kernel=k1_kernel grid=(256,1,1) block=(512,1,1) lds=163840
.amdgcn_target "amdgcn-amd-amdhsa--gfx950"
.text
"""
        tail = '\n.section .rodata,"a"\n.p2align 6\n' + kd("k1_kernel", 256, 102 if OPT["prof"] else 64)
    txt = head + A.text() + tail
    if "CODE_BYTES" in txt:
        import subprocess, re
        open("_p1.s", "w").write(txt.replace("CODE_BYTES", "0x12345"))
        subprocess.check_call(["clang", "-x", "assembler", "-target", "amdgcn-amd-amdhsa", "-mcpu=gfx950", "-c", "_p1.s", "-o", "_p1.o"])
        o = subprocess.check_output(["llvm-objdump", "-h", "_p1.o"]).decode()
        n = int(re.search(r"\.text\s+([0-9a-f]+)", o).group(1), 16)
        txt = txt.replace("CODE_BYTES", str(n))
    open(sys.argv[1], "w").write(txt)
    print("nops inserted:", A.nops_inserted, "lines:", len(A.out))

main()
```

```python
import sys, math
sys.path.insert(0, "gen")
from asmlib import *

NAME = "concat_heads__gqa_block_cached__gqa_block_cached__near_ridge"
OPT = dict(prio=1, prof=0, ntkv=1, ntw=0, ntx=0, ntwo=0, nto=0, ntst=0, nq=6, kvrate=1, l2pf=1, wopf=4, fat=1, bstep=1, dmagap=1, pflead=4, kv0=2, nstg=4, kvt=0, ld4=1, cpf=0, mid=0, kvt0=1, kvtr=1, roll=0, pfrate=1, kvs=0, rot=0, stag=0, qi=0, tlbw=0, ntt=0, fuse=0, slp=1, wox=0, xm=0, wo0=3, wo6=0, exp=0, ntf=0, pv=0)
for a in sys.argv[2:]:
    k, v = a.split("="); OPT[k] = int(v)

O_BLK = 896 * 4096 * 2
SLOT = 16384
NSLOT = 10

def srd(A, d, base, nbytes):
    A.salu(f"s_mov_b32 s{d}, s{base}")
    A.salu(f"s_and_b32 s{d+1}, s{base+1}, 0xffff")
    A.salu(f"s_mov_b32 s{d+2}, {nbytes}")
    A.salu(f"s_mov_b32 s{d+3}, 0x00020000")

class Prof:
    def __init__(self, A, kidx):
        self.A = A; self.n = 0; self.names = []; self.kidx = kidx
    def stamp(self, name):
        A = self.A
        if OPT["prof"] == 3:
            sel = ["start", "q0", "a0", "pv7", "st", "go", "u15", "end"]
            if name == "start" or name == sel[OPT["pv"]]:
                A.salu("s_waitcnt lgkmcnt(0)")
                A.ds_done = A.nds
                A.salu("s_memrealtime s[96:97]")
                A.salu("s_waitcnt lgkmcnt(0)")
                if name == "start": A.salu("s_not_b32 s64, s96")
                if name == sel[OPT["pv"]]: A.salu(f"s_mov_b32 s65, s96")
            return
        if OPT["prof"] == 2:
            sel = ["start", "q0", "a0", "pv7", "st", "go", "u15", "end"]
            if name in sel:
                A.salu("s_waitcnt lgkmcnt(0)")
                A.ds_done = A.nds
                A.salu("s_memrealtime s[96:97]")
                A.salu("s_waitcnt lgkmcnt(0)")
                if name == "start": A.salu("s_not_b32 s96, s96")
                A.salu(f"s_mov_b32 s{64+sel.index(name)}, s96")
            return
        if not OPT["prof"]: return
        assert self.n < 30
        A.salu("s_waitcnt lgkmcnt(0)")
        A.ds_done = A.nds
        A.salu("s_memtime s[96:97]")
        A.salu("s_waitcnt lgkmcnt(0)")
        A.salu(f"s_mov_b32 s{64+self.n}, s96")
        if self.n == 0:
            A.salu("s_memrealtime s[98:99]")
            A.salu("s_waitcnt lgkmcnt(0)")
        self.n += 1; self.names.append(name)
    def dump(self, wsreg, sW, tmp):
        if not OPT["prof"]: return
        A = self.A
        self.stamp("end")
        if OPT["prof"] == 3:
            A.salu(f"s_cmp_eq_u32 s{sW}, 0")
            A.salu("s_cbranch_scc0 K1_END")
            A.salu("s_mov_b64 exec, -1")
            A.salu("s_nop 4")
            for i in range(2):
                A.salu(f"v_writelane_b32 v{tmp}, s{64+i}, {i}")
            A.salu(f"v_mbcnt_lo_u32_b32 v{tmp+1}, -1, 0")
            A.salu(f"v_lshlrev_b32 v{tmp+1}, 2, v{tmp+1}")
            A.salu(f"v_mov_b32 v{tmp+2}, 1")
            A.salu("s_mov_b64 exec, 3")
            A.salu("s_nop 4")
            A.salu(f"buffer_atomic_umax v{tmp}, v{tmp+1}, s[20:23], 0 offen offset:32 sc1")
            A.salu("s_waitcnt vmcnt(0)")
            A.salu("s_mov_b64 exec, 1")
            A.salu(f"buffer_atomic_add v{tmp+2}, v{tmp+1}, s[20:23], 0 offen offset:40 sc0 sc1")
            A.salu("s_waitcnt vmcnt(0)")
            A.salu(f"v_readfirstlane_b32 s66, v{tmp+2}")
            A.salu("s_cmp_eq_u32 s66, 251")
            A.salu("s_cbranch_scc0 K1_END")
            A.salu("s_mov_b64 exec, 3")
            A.salu(f"buffer_load_dword v{tmp}, v{tmp+1}, s[20:23], 0 offen offset:32 sc1")
            A.salu("s_waitcnt vmcnt(0)")
            A.salu(f"v_readlane_b32 s66, v{tmp}, 0")
            A.salu(f"v_readlane_b32 s67, v{tmp}, 1")
            A.salu("s_not_b32 s66, s66")
            A.salu("s_sub_u32 s66, s67, s66")
            A.salu("s_min_u32 s66, s66, 10000")
            A.salu("s_lshl_b32 s66, s66, 3")
            A.salu("s_memrealtime s[96:97]")
            A.salu("s_waitcnt lgkmcnt(0)")
            A.salu("s_mov_b32 s67, s96")
            A.label("K1_DLY")
            A.salu("s_memrealtime s[96:97]")
            A.salu("s_waitcnt lgkmcnt(0)")
            A.salu("s_sub_u32 s96, s96, s67")
            A.salu("s_cmp_lt_u32 s96, s66")
            A.salu("s_cbranch_scc1 K1_DLY")
            return
        if OPT["prof"] == 2:
            A.salu("s_mov_b64 exec, -1")
            A.salu("s_nop 4")
            for i in range(8):
                A.salu(f"v_writelane_b32 v{tmp}, s{64+i}, {i}")
            A.salu(f"v_mbcnt_lo_u32_b32 v{tmp+1}, -1, 0")
            A.salu(f"v_lshlrev_b32 v{tmp+1}, 2, v{tmp+1}")
            A.salu("s_mov_b64 exec, 0xff")
            A.salu("s_nop 4")
            A.salu(f"buffer_atomic_umax v{tmp}, v{tmp+1}, s[20:23], 0 offen offset:32 sc1")
            return
        A.salu("s_memrealtime s[96:97]")
        A.salu("s_waitcnt lgkmcnt(0)")
        A.salu("s_mov_b64 exec, -1")
        A.salu("s_nop 4")
        for i in range(self.n):
            A.salu(f"v_writelane_b32 v{tmp}, s{64+i}, {i}")
        A.salu("s_getreg_b32 s97, hwreg(HW_REG_HW_ID)")
        A.salu(f"v_writelane_b32 v{tmp}, s97, 29")
        A.salu(f"v_writelane_b32 v{tmp}, s98, 30")
        A.salu(f"v_writelane_b32 v{tmp}, s96, 31")
        A.salu(f"s_mov_b32 s60, s{wsreg}")
        A.salu(f"s_and_b32 s61, s{wsreg+1}, 0xffff")
        A.salu("s_mov_b32 s62, 0x10000000")
        A.salu("s_mov_b32 s63, 0x00020000")
        A.salu("s_lshl_b32 s96, s2, 3")
        A.salu(f"s_add_u32 s96, s96, s{sW}")
        A.salu("s_lshl_b32 s96, s96, 7")
        A.salu(f"s_add_u32 s96, s96, {255*1024*1024 + self.kidx*512*1024}")
        A.salu(f"v_mbcnt_lo_u32_b32 v{tmp+1}, -1, 0")
        A.salu(f"v_mbcnt_hi_u32_b32 v{tmp+1}, -1, v{tmp+1}")
        A.salu(f"v_lshlrev_b32 v{tmp+1}, 2, v{tmp+1}")
        A.salu("s_mov_b64 exec, 0xffffffff")
        A.salu("s_nop 4")
        A.salu(f"buffer_store_dword v{tmp}, v{tmp+1}, s[60:63], s96 offen")
        print("stamps k%d:" % self.kidx, self.names)

def gen_k1(A):
    V = A.valu
    T0, T1, T2, T3, T4, T5, T6, T7 = range(0, 8)
    XO, WO, KO = 8, 10, 12
    BW, BX, BK, BV = 14, 15, 16, 17
    LSUM, OST = 18, 19
    SUMA, SUMB, MX, MX2 = 20, 21, 22, 23
    AD = 24
    FR = 32
    NEGM = 48
    QB = 64
    S = 96
    O = 160
    P = 224
    sBLK, sKVH, sB, sW, sHL, sRT = 26, 27, 4, 5, 6, 7
    SX, SW_, SK, SV, SO = 28, 32, 36, 40, 44
    sWL, sXB, sWB, sKVB, sT, sOB = 48, 49, 50, 51, 52, 53
    sMASK, sTHR, sC = 54, 56, 57
    sW3, sWL4, sT2 = 58, 59, 55

    A.raw(f".p2align 8\n.globl k1_kernel\n.type k1_kernel,@function\nk1_kernel:\nK1_BEGIN:")
    A.salu("s_cmp_ge_u32 s2, 256")
    A.salu("s_cbranch_scc1 K1_END")
    A.salu("s_load_dwordx8 s[8:15], s[0:1], 0")
    A.salu("s_load_dwordx8 s[16:23], s[0:1], 40")
    A.salu("s_load_dwordx2 s[24:25], s[0:1], 96")
    if OPT["cpf"]:
        A.salu("s_getpc_b64 s[60:61]")
        A.salu("s_and_b32 s60, s60, 0xffffff00")
        A.salu("s_and_b32 s61, s61, 0xffff")
        A.salu("s_mov_b32 s62, CODE_BYTES")
        A.salu("s_mov_b32 s63, 0x00020000")
        V(f"v_lshlrev_b32 v{T7}, 7, v0", w={T7}, r={0})
        A.vmem(f"buffer_load_dword v{NEGM+15}, v{T7}, s[60:63], 0 offen", w={NEGM+15}, r={T7})
    A.salu("s_and_b32 s3, s2, 7")
    A.salu(f"s_lshr_b32 s{sB}, s2, 3")
    A.salu(f"s_lshr_b32 s{sBLK}, s3, 2")
    A.salu("s_and_b32 s3, s3, 3")
    A.salu("s_lshl_b32 s3, s3, 2")
    A.salu(f"s_and_b32 s{sKVH}, s{sB}, 3")
    A.salu(f"s_add_u32 s{sKVH}, s{sKVH}, s3")
    A.salu(f"s_lshr_b32 s{sB}, s{sB}, 2")
    V(f"v_lshrrev_b32 v{T1}, 6, v0", w={T1}, r={0})
    A._emit(I(f"v_readfirstlane_b32 s{sW}, v{T1}", "rdlane", r={T1}, sw={sW}))
    V(f"v_and_b32 v{T0}, 63, v0", w={T0}, r={0})
    if OPT["fat"]:
        A.salu(f"s_bfe_u32 s{sHL}, s{sW}, 0x10001", sr={sW})
        A.salu(f"s_and_b32 s{sRT}, s{sW}, 1", sr={sW})
        A.salu(f"s_lshl_b32 s{sRT}, s{sRT}, 1")
        A.salu(f"s_lshr_b32 s3, s{sW}, 2", sr={sW})
        A.salu(f"s_add_u32 s{sRT}, s{sRT}, s3")
    else:
        A.salu(f"s_lshr_b32 s{sHL}, s{sW}, 2", sr={sW})
        A.salu(f"s_and_b32 s{sRT}, s{sW}, 3", sr={sW})
    A.salu(f"s_lshl_b32 s{sWL}, s{sW}, 11", sr={sW})
    A.salu(f"s_and_b32 s{sW3}, s{sW}, {3 if OPT['ld4'] else 1}", sr={sW})
    A.salu(f"s_lshl_b32 s{sWL4}, s{sW3}, 11")
    A.salu(f"s_mul_i32 s{sXB}, s{sB}, 129024")
    A.salu(f"s_lshl_b32 s{sWB}, s{sKVH}, 9")
    A.salu(f"s_lshl_b32 s{sKVB}, s{sB}, 4")
    A.salu(f"s_add_u32 s{sKVB}, s{sKVB}, s{sKVH}")
    if OPT["rot"] == 1:
        A.salu(f"s_and_b32 s{sMASK}, s{sKVB}, 7")
    elif OPT["rot"] == 2:
        A.salu(f"s_add_u32 s{sMASK}, s{sKVH}, s{sB}")
        A.salu(f"s_and_b32 s{sMASK}, s{sMASK}, 7")
    elif OPT["rot"] == 3:
        A.salu(f"s_and_b32 s{sMASK}, s{sB}, 7")
    A.salu(f"s_lshl_b32 s{sMASK}, s{sMASK}, 14")
    A.salu(f"s_lshl_b32 s{sKVB}, s{sKVB}, 17")
    A.salu(f"s_mov_b32 s{sTHR}, 0x4b800000")
    c = math.log2(math.e) / math.sqrt(128.0)
    import struct
    cbits = struct.unpack("<I", struct.pack("<f", c))[0]
    A.salu(f"s_mov_b32 s{sC}, {cbits:#x}")
    L = T0
    for q in range(2):
        V(f"v_lshrrev_b32 v{T1}, 3, v{L}", w={T1}, r={L})
        A.salu(f"s_lshl_b32 s3, s{sW3}, 4")
        A.salu(f"s_add_u32 s3, s3, {8*q}")
        V(f"v_add_u32 v{T1}, s3, v{T1}", w={T1}, r={T1})
        V(f"v_mul_u32_u24 v{T1}, 1152, v{T1}", w={T1}, r={T1})
        V(f"v_and_b32 v{T2}, 7, v{L}", w={T2}, r={L})
        V(f"v_lshrrev_b32 v{T3}, 4, v{L}", w={T3}, r={L})
        V(f"v_xor_b32 v{T2}, v{T2}, v{T3}", w={T2}, r={T2, T3})
        if q: V(f"v_xor_b32 v{T2}, 4, v{T2}", w={T2}, r={T2})
        V(f"v_lshl_add_u32 v{XO+q}, v{T2}, 4, v{T1}", w={XO+q}, r={T2, T1})
        V(f"v_lshrrev_b32 v{T3}, 5, v{L}", w={T3}, r={L})
        A.salu(f"s_lshl_b32 s3, s{sW3}, 2")
        A.salu(f"s_add_u32 s3, s3, {2*q}")
        V(f"v_add_u32 v{T1}, s3, v{T3}", w={T1}, r={T3})
        V(f"v_lshlrev_b32 v{T1}, 13, v{T1}", w={T1}, r={T1})
        V(f"v_or_b32 v{T3}, {2*q}, v{T3}", w={T3}, r={T3})
        V(f"v_lshlrev_b32 v{T3}, 2, v{T3}", w={T3}, r={T3})
        V(f"v_and_b32 v{T2}, 31, v{L}", w={T2}, r={L})
        V(f"v_xor_b32 v{T2}, v{T2}, v{T3}", w={T2}, r={T2, T3})
        V(f"v_lshl_add_u32 v{WO+q}, v{T2}, 4, v{T1}", w={WO+q}, r={T2, T1})
        V(f"v_lshrrev_b32 v{T3}, 4, v{L}", w={T3}, r={L})
        A.salu(f"s_lshl_b32 s3, s{sW}, 3")
        A.salu(f"s_add_u32 s3, s3, {4*q}")
        V(f"v_add_u32 v{T1}, s3, v{T3}", w={T1}, r={T3})
        V(f"v_lshlrev_b32 v{T1}, 8, v{T1}", w={T1}, r={T1})
        A.salu(f"s_and_b32 s3, s{sW}, 1")
        A.salu(f"s_lshl_b32 s3, s3, 1")
        A.salu(f"s_or_b32 s3, s3, {q}")
        V(f"v_lshlrev_b32 v{T3}, 2, v{T3}", w={T3}, r={T3})
        V(f"v_or_b32 v{T3}, s3, v{T3}", w={T3}, r={T3})
        V(f"v_and_b32 v{T2}, 15, v{L}", w={T2}, r={L})
        V(f"v_xor_b32 v{T2}, v{T2}, v{T3}", w={T2}, r={T2, T3})
        V(f"v_lshl_add_u32 v{KO+q}, v{T2}, 4, v{T1}", w={KO+q}, r={T2, T1})
    V(f"v_lshrrev_b32 v{T1}, 5, v{L}", w={T1}, r={L})
    V(f"v_bfe_u32 v{T2}, v{L}, 4, 1", w={T2}, r={L})
    V(f"v_bfe_u32 v{T3}, v{L}, 2, 2", w={T3}, r={L})
    V(f"v_and_b32 v{T4}, 3, v{L}", w={T4}, r={L})
    V(f"v_and_b32 v{T5}, 31, v{L}", w={T5}, r={L})
    V(f"v_lshl_add_u32 v{T6}, v{T1}, 3, v{T3}", w={T6}, r={T1, T3})
    V(f"v_lshlrev_b32 v{T6}, 9, v{T6}", w={T6}, r={T6})
    V(f"v_lshlrev_b32 v{T7}, 2, v{T3}", w={T7}, r={T3})
    V(f"v_lshl_add_u32 v{T7}, v{T2}, 1, v{T7}", w={T7}, r={T2, T7})
    V(f"v_and_b32 v{BW}, 1, v{T4}", w={BW}, r={T4})
    V(f"v_add_u32 v{T7}, v{T7}, v{BW}", w={T7}, r={T7, BW})
    A.salu(f"s_lshl_b32 s3, s{sHL}, 4")
    V(f"v_add_u32 v{T7}, s3, v{T7}", w={T7}, r={T7})
    V(f"v_lshl_add_u32 v{T6}, v{T7}, 4, v{T6}", w={T6}, r={T7, T6})
    V(f"v_lshrrev_b32 v{T7}, 1, v{T4}", w={T7}, r={T4})
    V(f"v_lshl_add_u32 v{BW}, v{T7}, 3, v{T6}", w={BW}, r={T7, T6})
    A.salu(f"s_lshl_b32 s3, s{sRT}, 5")
    V(f"v_add_u32 v{T6}, s3, v{T5}", w={T6}, r={T5})
    V(f"v_lshlrev_b32 v{T6}, 7, v{T6}", w={T6}, r={T6})
    V(f"v_bfe_u32 v{T7}, v{T5}, 1, 3", w={T7}, r={T5})
    V(f"v_xor_b32 v{T7}, v{T7}, v{T1}", w={T7}, r={T7, T1})
    V(f"v_lshl_add_u32 v{BX}, v{T7}, 4, v{T6}", w={BX}, r={T7, T6})
    V(f"v_lshlrev_b32 v{T6}, 2, v{T4}", w={T6}, r={T4})
    V(f"v_or_b32 v{T6}, v{T6}, v{T3}", w={T6}, r={T6, T3})
    V(f"v_xor_b32 v{T6}, v{T6}, v{T1}", w={T6}, r={T6, T1})
    V(f"v_lshlrev_b32 v{T7}, 8, v{T5}", w={T7}, r={T5})
    V(f"v_lshl_add_u32 v{BK}, v{T6}, 4, v{T7}", w={BK}, r={T6, T7})
    V(f"v_lshl_add_u32 v{T6}, v{T1}, 2, v{T3}", w={T6}, r={T1, T3})
    V(f"v_lshlrev_b32 v{T6}, 8, v{T6}", w={T6}, r={T6})
    V(f"v_lshrrev_b32 v{T7}, 1, v{T4}", w={T7}, r={T4})
    V(f"v_lshl_add_u32 v{T7}, v{T2}, 1, v{T7}", w={T7}, r={T2, T7})
    V(f"v_xor_b32 v{T7}, v{T7}, v{T1}", w={T7}, r={T7, T1})
    V(f"v_lshl_or_b32 v{T7}, v{T3}, 2, v{T7}", w={T7}, r={T3, T7})
    V(f"v_lshl_add_u32 v{T6}, v{T7}, 4, v{T6}", w={T6}, r={T7, T6})
    V(f"v_and_b32 v{T7}, 1, v{T4}", w={T7}, r={T4})
    V(f"v_lshl_add_u32 v{BV}, v{T7}, 3, v{T6}", w={BV}, r={T7, T6})
    V(f"v_lshlrev_b32 v{T6}, 17, v{T2}", w={T6}, r={T2})
    V(f"v_lshl_add_u32 v{T6}, v{T1}, 8, v{T6}", w={T6}, r={T1, T6})
    V(f"v_and_b32 v{T7}, 15, v{L}", w={T7}, r={L})
    V(f"v_lshl_add_u32 v{OST}, v{T7}, 4, v{T6}", w={OST}, r={T7, T6})
    V(f"v_mov_b32 v{LSUM}, 0", w={LSUM})
    A.waitcnt(lgkm=0)
    A.salu(f"s_cmp_eq_u32 s{sBLK}, 0")
    for k in range(8):
        A.salu(f"s_cselect_b32 s{8+k}, s{8+k}, s{16+k}")
    srd(A, SX, 8, 8 * 112 * 576 * 2)
    srd(A, SK, 10, 8 * 16 * 512 * 128 * 2)
    srd(A, SV, 12, 8 * 16 * 512 * 128 * 2)
    srd(A, SW_, 14, 576 * 4096 * 2)
    srd(A, SO, 24, 2 * O_BLK)
    A.salu(f"s_mul_i32 s{sOB}, s{sBLK}, {O_BLK}")
    A.salu(f"s_mul_i32 s3, s{sB}, 7")
    A.salu(f"s_lshl_b32 s{sT}, s{sRT}, 1")
    A.salu(f"s_add_u32 s3, s3, s{sT}")
    A.salu(f"s_lshl_b32 s3, s3, 17")
    A.salu(f"s_add_u32 s{sOB}, s{sOB}, s3")
    A.salu(f"s_lshl_b32 s3, s{sKVH}, 1")
    A.salu(f"s_add_u32 s3, s3, s{sHL}")
    A.salu(f"s_lshl_b32 s3, s3, 12")
    A.salu(f"s_add_u32 s{sOB}, s{sOB}, s3")
    if OPT["prio"]:
        A.salu(f"s_cmp_ge_u32 s{sW}, 4")
        A.salu("s_cbranch_scc0 K1_PRIO_DONE" if OPT["prio"] == 1 else "s_cbranch_scc1 K1_PRIO_DONE")
        A.salu("s_setprio 1")
        A.label("K1_PRIO_DONE")

    NTT = {0: "", 1: " nt", 2: " sc1", 3: " sc0 sc1", 4: " sc1 nt"}[OPT["ntt"]]
    qunits = []
    for s_ in range(9):
        qunits += [("X", s_), ("W", 2 * s_), ("W", 2 * s_ + 1)]
    kvunits = [("K", 0)]
    for h in range(7):
        kvunits += [("K", h + 1), ("V", h)]
    kvunits += [("V", 7)]
    units = qunits + kvunits
    UK = {idx: 27 + i for i, (t_, idx) in enumerate(kvunits) if t_ == "K"}
    UV = {idx: 27 + i for i, (t_, idx) in enumerate(kvunits) if t_ == "V"}
    stage_units = [list(range(3 * s_, 3 * s_ + 3)) for s_ in range(9)]
    unit_last_vm = {}
    unit_slot = {}
    free = list(range(NSLOT))
    nq = [0]; nkv = [0]; xch = []
    KQ = FR
    DV = FR + 2
    NSTG = OPT["nstg"]
    STG = [S + 32, O, O + 32, P][:NSTG]

    def unit_info(u):
        typ, idx = units[u]
        if typ == "X": return sXB, idx * 128, SX, XO, 2 * 16 * 1152, "ntx"
        if typ == "W": return sWB, idx * 32 * 8192, SW_, WO, 2 * 4 * 8192, "ntw"
        if typ == "K": return sKVB, idx * 64 * 256, SK, KO, 4096, "ntkv"
        return sKVB, idx * 64 * 256, SV, KO, 4096, "ntkv"

    def sbase(base, const):
        if base == sKVB and OPT["rot"]:
            A.salu(f"s_add_u32 s{sT}, s{sMASK}, {const}")
            A.salu(f"s_and_b32 s{sT}, s{sT}, 0x1ffff")
            A.salu(f"s_or_b32 s{sT}, s{sT}, s{sKVB}")
        else:
            A.salu(f"s_add_u32 s{sT}, s{base}, {const}")

    def issue_unit_q(u, stage_reg=None):
        if stage_reg is None:
            slot = free.pop(0)
            unit_slot[u] = slot
        base, const, sr_, vo, delta, nto = unit_info(u)
        if vo == KO: vo = KQ
        nt = " nt" if OPT[nto] else ""
        for hv in range(4):
            A.salu(f"s_add_u32 s{sT}, s{base}, {const + delta * hv}")
            for q in range(2):
                if stage_reg is None:
                    A.salu(f"s_add_u32 m0, s{sWL4}, {slot * SLOT + hv * 4096 + q * 1024}", m0w=True)
                    k = A.vmem(f"buffer_load_dwordx4 v{vo+q}, s[{sr_}:{sr_+3}], s{sT} offen{nt} lds", kind="dma", r={vo + q}, m0r=True)
                else:
                    d = stage_reg + (hv * 2 + q) * 4
                    k = A.vmem(f"buffer_load_dwordx4 {vname(d,4)}, v{vo+q}, s[{sr_}:{sr_+3}], s{sT} offen{nt}", w=vr(d, 4), r={vo + q})
        unit_last_vm[u] = k

    def issue_unit_4(u):
        slot = free.pop(0)
        unit_slot[u] = slot
        base, const, sr_, vo, delta, nto = unit_info(u)
        nt = " nt" if OPT[nto] else ""
        sbase(base, const)
        if vo != KO: A.salu(f"s_add_u32 s{sT2}, s{base}, {const + 2 * delta}")
        for hv in range(2):
            for q in range(2):
                A.salu(f"s_add_u32 m0, s{sWL4}, {slot * SLOT + hv * 8192 + q * 1024}", m0w=True)
                if vo == KO:
                    va = (KQ if hv == 0 else KO) + q; so = sT
                else:
                    va = vo + q; so = sT if hv == 0 else sT2
                k = A.vmem(f"buffer_load_dwordx4 v{va}, s[{sr_}:{sr_+3}], s{so} offen{nt} lds", kind="dma", r={va}, m0r=True)
        unit_last_vm[u] = k

    def flood():
        if not OPT["l2pf"]: return
        V(f"v_lshrrev_b32 v{T1}, 2, v{L}", w={T1}, r={L})
        V(f"v_lshlrev_b32 v{T1}, 13, v{T1}", w={T1}, r={T1})
        V(f"v_and_b32 v{T2}, 3, v{L}", w={T2}, r={L})
        V(f"v_lshl_add_u32 v{T1}, v{T2}, 7, v{T1}", w={T1}, r={T2, T1})
        A.salu(f"s_lshl_b32 s3, s{sW}, 4")
        A.salu(f"s_min_u32 s3, s3, 56")
        A.salu(f"s_mul_i32 s{sT}, s{sB}, 72")
        A.salu(f"s_add_u32 s3, s3, s{sT}")
        A.salu(f"s_lshl_b32 s3, s3, 13")
        A.salu(f"s_add_u32 s3, s3, s{sWB}")
        A.vmem(f"buffer_load_dword v{T4}, v{T1}, s[{SW_}:{SW_+3}], s3 offen{NTT}", w={T4}, r={T1})
        V(f"v_lshlrev_b32 v{T2}, 7, v{L}", w={T2}, r={L})
        A.salu(f"s_and_b32 s3, s{sKVH}, 3")
        A.salu(f"s_mul_i32 s3, s3, 32256")
        A.salu(f"s_and_b32 s{sT}, s{sW}, 3")
        A.salu(f"s_lshl_b32 s{sT}, s{sT}, 13")
        A.salu(f"s_add_u32 s3, s3, s{sT}")
        A.salu(f"s_add_u32 s3, s3, s{sXB}")
        A.vmem(f"buffer_load_dword v{T5}, v{T2}, s[{SX}:{SX+3}], s3 offen{NTT}", w={T5}, r={T2})

    def dump_unit(u, stage_reg):
        slot = free.pop(0)
        unit_slot[u] = slot
        V(f"v_add_u32 v{DV+1}, {slot * SLOT}, v{DV}", w={DV + 1}, r={DV})
        for hv in range(4):
            for q in range(2):
                A.ds_write_b128(DV + 1, stage_reg + (hv * 2 + q) * 4, hv * 4096 + q * 1024)

    def dma_items(u):
        slot = free.pop(0)
        unit_slot[u] = slot
        base, const, sr_, vo, delta, nto = unit_info(u)
        nt = " nt" if OPT[nto] else ""
        def mk(q):
            def f():
                sbase(base, const)
                A.salu(f"s_add_u32 m0, s{sWL}, {slot * SLOT + q * 1024}", m0w=True)
                k = A.vmem(f"buffer_load_dwordx4 v{vo+q}, s[{sr_}:{sr_+3}], s{sT} offen{nt} lds", kind="dma", r={vo + q}, m0r=True)
                unit_last_vm[u] = k
            return f
        if not OPT["stag"]: return [mk(0), mk(1)]
        G = 8 // OPT["stag"]
        def cond(f, g):
            def h():
                lab = f"K1_D{nlab[0]}"; nlab[0] += 1
                A.salu(f"s_cmp_eq_u32 s{sT2}, {g}")
                A.salu(f"s_cbranch_scc0 {lab}")
                n0 = len(A.out)
                f()
                for o in A.out[n0:]: o.ws = 0
                A.label(lab)
                if g < G - 1: A.nvm -= 1
            return h
        return [cond(mk(q), g) for q in range(2) for g in range(G)]
    nlab = [0]

    NQ = OPT["nq"]
    PF = Prof(A, 0)
    PF.stamp("start")

    def addr_items(dst, base, slot, xors):
        it = [lambda: V(f"v_add_u32 v{dst[0]}, {slot * SLOT}, v{base}", w={dst[0]}, r={base})]
        for i, x in enumerate(xors):
            if i == 0: continue
            it.append(lambda i=i, x=x: V(f"v_xor_b32 v{dst[i]}, {x}, v{dst[0]}", w={dst[i]}, r={dst[0]}))
        return it

    A.salu(f"s_cmp_lt_u32 s{sW}, 4")
    A.salu("s_cbranch_scc1 K1_FAT")
    pf0 = PF.n
    staged = []
    if OPT["ld4"]:
        for q in range(2):
            V(f"v_subrev_u32 v{KQ+q}, {4*8*256}, v{KO+q}", w={KQ + q}, r={KO + q})
        NL = NSLOT - NQ
        def refill(s):
            done_q = 3 * max(s, 0)
            while nq[0] < 27 and nq[0] - done_q < NQ and free:
                issue_unit_4(nq[0]); nq[0] += 1
        def kv_issue():
            if nkv[0] < NL:
                if free:
                    issue_unit_4(27 + nkv[0]); nkv[0] += 1
        LW, LX = FR + 4, FR + 5
        nroll = [NQ // 3]
        def lroll(n):
            n = min(n, 9 - nroll[0])
            if n <= 0 or OPT["roll"] != 2: return
            a = nroll[0]; nroll[0] += n
            if n < 8:
                m = (1 << (8 * n)) - 1
                A.salu(f"s_mov_b32 exec_lo, {m & 0xffffffff}")
                A.salu(f"s_mov_b32 exec_hi, {m >> 32}")
            A.salu(f"s_add_u32 s3, s8, {a * 64 * 8192}")
            A.vmem(f"buffer_load_dword v{FR+6}, v{LW}, s[{SW_}:{SW_+3}], s3 offen{NTT}", w={FR + 6}, r={LW})
            A.vmem(f"buffer_load_dword v{FR+7}, v{LX}, s[{SX}:{SX+3}], s9 offen offset:{a * 128}{NTT}", w={FR + 7}, r={LX})
            if n < 8: A.salu("s_mov_b64 exec, -1")
        refill(-1)
        for _ in range(OPT["kv0"]): kv_issue()
        if not OPT["roll"]: flood()
        if OPT["roll"] == 2:
            V(f"v_bfe_u32 v{T1}, v{L}, 2, 1", w={T1}, r={L})
            A.salu(f"s_lshl_b32 s3, s{sW3}, 1")
            V(f"v_add_u32 v{T1}, s3, v{T1}", w={T1}, r={T1})
            V(f"v_lshrrev_b32 v{T3}, 3, v{L}", w={T3}, r={L})
            V(f"v_lshl_add_u32 v{T1}, v{T3}, 6, v{T1}", w={T1}, r={T3, T1})
            V(f"v_lshlrev_b32 v{T1}, 13, v{T1}", w={T1}, r={T1})
            V(f"v_and_b32 v{T2}, 3, v{L}", w={T2}, r={L})
            V(f"v_lshl_add_u32 v{LW}, v{T2}, 7, v{T1}", w={LW}, r={T2, T1})
            V(f"v_and_b32 v{T1}, 7, v{L}", w={T1}, r={L})
            V(f"v_min_u32 v{T1}, 6, v{T1}", w={T1}, r={T1})
            A.salu(f"s_mul_i32 s3, s{sW3}, 7")
            V(f"v_add_u32 v{T1}, s3, v{T1}", w={T1}, r={T1})
            V(f"v_mul_u32_u24 v{T1}, 1152, v{T1}", w={T1}, r={T1})
            V(f"v_lshl_add_u32 v{LX}, v{T3}, 7, v{T1}", w={LX}, r={T3, T1})
            A.salu(f"s_lshl_b32 s8, s{sB}, 16")
            A.salu(f"s_add_u32 s8, s8, s{sWB}")
            A.salu(f"s_and_b32 s9, s{sKVH}, 3")
            A.salu(f"s_mul_i32 s9, s9, {28*1152}")
            A.salu(f"s_add_u32 s9, s9, s{sXB}")
            lroll(OPT["pflead"] - nroll[0])
        for s in range(9):
            A.wait_vm(max(unit_last_vm[u] for u in stage_units[s]))
            A.barrier()
            PF.stamp(f"q{s}")
            if s > 0:
                for u in stage_units[s - 1]: free.append(unit_slot[u])
            refill(s)
            lroll(OPT["pfrate"])
            if s == 8:
                xch.append(free.pop(0)); xch.append(free.pop(0))
            elif s >= OPT["kvs"]:
                for _ in range(OPT["kvrate"]): kv_issue()
            if nq[0] == 27 and nkv[0] >= NL:
                while free:
                    issue_unit_4(27 + nkv[0]); nkv[0] += 1
        A.salu("s_branch K1_ATT")
        ldr_vm = (A.nvm, A.vm_done)
    else:
        A.salu(f"s_cmp_ge_u32 s{sW}, 6")
        A.salu("s_cbranch_scc1 K1_KVL")
        pf0 = PF.n
        kvslots = [free.pop() for _ in range(NSLOT - NQ)]
        def refill(s):
            done_q = 3 * max(s, 0)
            while nq[0] < 27 and nq[0] - done_q < NQ and free:
                issue_unit_q(nq[0]); nq[0] += 1
        refill(-1)
        for s in range(9):
            A.wait_vm(max(unit_last_vm[u] for u in stage_units[s]))
            A.barrier()
            PF.stamp(f"q{s}")
            if s > 0:
                for u in stage_units[s - 1]: free.append(unit_slot[u])
            refill(s)
            if s == 8:
                xch.append(free.pop(0)); xch.append(free.pop(0))
        A.waitcnt(vm=0)
        A.vm_done = A.nvm
        A.salu("s_branch K1_ATT")
        A.label("K1_KVL")
        A.win = []
        A.salu("s_nop 4")
        PF.n = pf0; PF.names = PF.names[:pf0]
        for q in range(2):
            V(f"v_subrev_u32 v{KQ+q}, {6*8*256}, v{KO+q}", w={KQ + q}, r={KO + q})
        V(f"v_lshlrev_b32 v{DV}, 4, v{L}", w={DV}, r={L})
        V(f"v_add_u32 v{DV}, s{sWL4}, v{DV}", w={DV}, r={DV})
        late_free = free[:]; free[:] = kvslots
        NL = len(kvslots)
        TV = FR + 4
        V(f"v_lshlrev_b32 v{TV}, 7, v{L}", w={TV}, r={L})
        A.salu(f"s_lshl_b32 s3, s{sW3}, 13")
        V(f"v_add_u32 v{TV}, s3, v{TV}", w={TV}, r={TV})
        NT = OPT["kvt"]
        ntouch = [0]
        def kv_issue():
            i = nkv[0]
            if i < NL: issue_unit_q(27 + i)
            elif i < NL + NSTG: issue_unit_q(27 + i, STG[i - NL])
            else:
                if ntouch[0] < NT:
                    u = 27 + NL + NSTG + ntouch[0]
                    base, const, sr_, vo, delta, nto = unit_info(u)
                    A.salu(f"s_add_u32 s{sT}, s{base}, {const}")
                    A.vmem(f"buffer_load_dword v{TV+1}, v{TV}, s[{sr_}:{sr_+3}], s{sT} offen", w={TV + 1}, r={TV})
                    ntouch[0] += 1
                return
            nkv[0] += 1
        for _ in range(OPT["kv0"]): kv_issue()
        for s in range(9):
            A.barrier()
            PF.stamp(f"q{s}")
            for _ in range(OPT["kvrate"]): kv_issue()
        assert nkv[0] == NL + NSTG
        free[:] = late_free
        staged = [(27 + NL + i, STG[i]) for i in range(NSTG)]
        while staged and free:
            u, r_ = staged.pop(0)
            A.wait_vm(unit_last_vm[u])
            dump_unit(u, r_)
        A.waitcnt(vm=0)
        A.vm_done = A.nvm
        A.wait_ds_all()
        A.salu("s_branch K1_ATT")
    A.label("K1_FAT")
    A.win = []
    A.salu("s_nop 4")
    PF.n = pf0; PF.names = PF.names[:pf0]
    TW, TX = XO, XO + 1
    if OPT["roll"] == 2:
        pass
    elif OPT["ld4"] and not OPT["roll"]:
        V(f"v_lshlrev_b32 v{TW}, 7, v{L}", w={TW}, r={L})
        A.salu(f"s_lshl_b32 s3, s{sW}, 13")
        V(f"v_add_u32 v{TW}, s3, v{TW}", w={TW}, r={TW})
    else:
        TW, TX = XO, XO + 1
        V(f"v_bfe_u32 v{T1}, v{L}, 2, 1", w={T1}, r={L})
        A.salu(f"s_lshl_b32 s3, s{sW}, 1")
        V(f"v_add_u32 v{T1}, s3, v{T1}", w={T1}, r={T1})
        V(f"v_lshlrev_b32 v{T1}, 13, v{T1}", w={T1}, r={T1})
        V(f"v_and_b32 v{T2}, 3, v{L}", w={T2}, r={L})
        V(f"v_lshl_add_u32 v{TW}, v{T2}, 7, v{T1}", w={TW}, r={T2, T1})
        V(f"v_and_b32 v{T1}, 7, v{L}", w={T1}, r={L})
        V(f"v_min_u32 v{T1}, 6, v{T1}", w={T1}, r={T1})
        A.salu(f"s_mul_i32 s3, s{sW}, 7")
        V(f"v_add_u32 v{T1}, s3, v{T1}", w={T1}, r={T1})
        V(f"v_mul_u32_u24 v{TX}, 1152, v{T1}", w={TX}, r={T1})
        A.salu(f"s_lshl_b32 s8, s{sB}, 16")
        A.salu(f"s_add_u32 s8, s8, s{sWB}")
        A.salu(f"s_and_b32 s9, s{sKVH}, 3")
        A.salu(f"s_mul_i32 s9, s9, {28*1152}")
        A.salu(f"s_add_u32 s9, s9, s{sXB}")
    def touch(s_):
        if not OPT["l2pf"] or s_ > 8: return
        A.salu(f"s_add_u32 s3, s8, {s_ * 64 * 8192}")
        A.vmem(f"buffer_load_dword v{T4}, v{TW}, s[{SW_}:{SW_+3}], s3 offen{NTT}", w={T4}, r={TW})
        A.vmem(f"buffer_load_dword v{T5}, v{TX}, s[{SX}:{SX+3}], s9 offen offset:{s_ * 128}{NTT}", w={T5}, r={TX})
    if OPT["roll"] == 2:
        touch = lambda s_: None
    elif OPT["roll"]:
        touch1 = touch
        nroll = [2]
        def roll(n):
            for _ in range(n):
                touch1(nroll[0]); nroll[0] += 1
        roll(OPT["pflead"] - 2)
        touch = lambda s_: roll(OPT["pfrate"])
    elif OPT["ld4"]:
        flood()
        ntouch = [0]
        def touch(s_):
            s_ -= OPT["pflead"]
            if s_ < OPT["kvt0"]: return
            for _ in range(OPT["kvtr"]):
                if ntouch[0] >= OPT["kvt"]: return
                ua = 27 + NL + 1 + ntouch[0]
                ia = unit_info(ua); ib = unit_info(ua + 1)
                A.salu(f"s_cmp_lt_u32 s{sW}, 2")
                A.salu(f"s_mov_b32 s3, {ib[1] - 16384}")
                A.salu(f"s_cselect_b32 s3, {ia[1]}, s3")
                A.salu(f"s_cselect_b32 s60, s{ia[2]}, s{ib[2]}")
                A.salu(f"s_cselect_b32 s61, s{ia[2]+1}, s{ib[2]+1}")
                A.salu(f"s_mov_b32 s62, s{ia[2]+2}")
                A.salu(f"s_mov_b32 s63, s{ia[2]+3}")
                A.salu(f"s_add_u32 s3, s3, s{sKVB}")
                A.vmem(f"buffer_load_dword v{T4}, v{TW}, s[60:63], s3 offen", w={T4}, r={TW})
                ntouch[0] += 2
    if not OPT["ld4"]:
        for s_ in range(2, OPT["pflead"]): touch(s_)
    if OPT["tlbw"]:
        A.salu("s_load_dwordx2 s[16:17], s[0:1], 32")
        A.salu("s_load_dwordx2 s[18:19], s[0:1], 72")
        A.salu("s_load_dwordx2 s[20:21], s[0:1], 80")
        D = NEGM
        V(f"v_lshlrev_b32 v{T1}, 12, v{L}", w={T1}, r={L})
        V(f"v_and_b32 v{T1}, 0x1ffff, v{T1}", w={T1}, r={T1})
        A.vmem(f"buffer_load_dword v{D}, v{T1}, s[{SV}:{SV+3}], s{sKVB} offen", w={D}, r={T1})
        if OPT["tlbw"] > 1:
            A.vmem(f"buffer_load_dword v{D+1}, v{T1}, s[{SK}:{SK+3}], s{sKVB} offen", w={D + 1}, r={T1})
        V(f"v_min_u32 v{T2}, 6, v{L}", w={T2}, r={L})
        V(f"v_lshlrev_b32 v{T2}, 17, v{T2}", w={T2}, r={T2})
        A.salu(f"s_mul_i32 s3, s{sBLK}, {O_BLK}")
        A.salu(f"s_mul_i32 s{sT}, s{sB}, {7*131072}")
        A.salu(f"s_add_u32 s3, s3, s{sT}")
        if OPT["fuse"]:
            A.salu(f"s_lshl_b32 s{sT}, s{sKVH}, 13")
            A.salu(f"s_add_u32 s3, s3, s{sT}")
            A.vmem(f"buffer_store_dword v{T2}, v{T2}, s[{SO}:{SO+3}], s3 offen sc1", r={T2}, storedata={T2})
        else:
            A.vmem(f"buffer_load_dword v{D+2}, v{T2}, s[{SO}:{SO+3}], s3 offen", w={D + 2}, r={T2})
        V(f"v_lshlrev_b32 v{T3}, 16, v{L}", w={T3}, r={L})
        A.salu("s_waitcnt lgkmcnt(0)")
        A.salu(f"s_cmp_eq_u32 s{sBLK}, 0")
        A.salu("s_cselect_b32 s60, s16, s18")
        A.salu("s_cselect_b32 s61, s17, s19")
        A.salu("s_and_b32 s61, s61, 0xffff")
        A.salu(f"s_mov_b32 s62, {4096*576*2}")
        A.salu("s_mov_b32 s63, 0x00020000")
        A.salu(f"s_mov_b32 s3, {8*65536}")
        A.vmem(f"buffer_load_dword v{D+3}, v{T3}, s[60:63], 0 offen", w={D + 3}, r={T3})
        A.vmem(f"buffer_load_dword v{D+4}, v{T3}, s[60:63], s3 offen", w={D + 4}, r={T3})
        A.salu("s_mov_b32 s16, s20")
        A.salu("s_and_b32 s17, s21, 0xffff")
        A.salu(f"s_mov_b32 s18, {896*1152*2}")
        A.salu("s_mov_b32 s19, 0x00020000")
        A.vmem(f"buffer_load_dword v{D+5}, v{T3}, s[16:19], 0 offen", w={D + 5}, r={T3})
    QA = [S, O]
    FBW = [P, QB]; FBX = [P + 16, QB + 16]
    AW = [FR, FR + 4]; AX = FR + 8
    def qaddr(s):
        u0 = 3 * s
        return (addr_items([AX + i for i in range(4)], BX, unit_slot[u0], [0, 32, 64, 96]) +
                addr_items([AW[0] + i for i in range(4)], BW, unit_slot[u0 + 1], [0, 64, 128, 192]) +
                addr_items([AW[1] + i for i in range(4)], BW, unit_slot[u0 + 2], [0, 64, 128, 192]))
    def qread_items(ks):
        it = [lambda: A.ds_read_b128(FBX[ks % 2], AX + ks), lambda: A.ds_read_b128(FBX[ks % 2] + 4, AX + ks, 4096)]
        for t in range(4):
            for j in range(2):
                it.append(lambda t=t, j=j: A.ds_read_tr(FBW[ks % 2] + 4 * t + 2 * j, AW[ks // 2] + t, ((ks % 2) * 16 + 4 * j) * 512))
        return it
    def qreads(ks):
        for it in qread_items(ks): last = it()
        return last
    for it in qaddr(0): it()
    A.barrier()
    PF.stamp("q0")
    pend = qreads(0)
    touch(OPT["pflead"])
    QI = OPT["qi"]
    for s in range(9):
        for ks in range(4):
            A.wait_ds(pend)
            rq = []
            if ks < 3:
                if QI: rq = qread_items(ks + 1)
                else: pend = qreads(ks + 1)
            nxt = qaddr(s + 1) if (ks == 3 and s < 8) else []
            m = 0
            for t in range(4):
                for r2 in range(2):
                    A.mfma(QA[r2] + 16 * t, FBW[ks % 2] + 4 * t, FBX[ks % 2] + 4 * r2, "zero" if (s == 0 and ks == 0) else None)
                    if nxt:
                        if m < 2:
                            for it in nxt[6 * m: 6 * m + 6]: it()
                        if m == 1:
                            A.barrier()
                            PF.stamp(f"q{s+1}")
                            if QI: rq = qread_items(0)
                            else: pend = qreads(0)
                        if m == 3: touch(s + 1 + OPT["pflead"])
                    for _ in range(QI):
                        if rq: pend = rq.pop(0)()
                    m += 1
            assert not rq
    A.salu(f"s_lshr_b32 s3, s{sW}, 1")
    A.salu(f"s_cmp_eq_u32 s3, 0")
    A.salu(f"s_cselect_b32 s3, {xch[0]}, {xch[1]}")
    A.salu(f"s_lshl_b32 s3, s3, 14")
    A.salu(f"s_and_b32 s{sT}, s{sW}, 1")
    A.salu(f"s_lshl_b32 s{sT}, s{sT}, 13")
    A.salu(f"s_add_u32 s3, s3, s{sT}")
    V(f"v_lshlrev_b32 v{T6}, 4, v{L}", w={T6}, r={L})
    V(f"v_add_u32 v{T6}, s3, v{T6}", w={T6}, r={T6})
    for i in range(64):
        V(f"v_mul_f32 v{O+i}, s{sC}, v{O+i}", w={O + i}, r={O + i})
    for q in range(32):
        V(f"v_cvt_pk_bf16_f32 v{P+q}, v{O+2*q}, v{O+2*q+1}", w={P + q}, r={O + 2 * q, O + 2 * q + 1})
        if q % 4 == 3:
            A.ds_write_b128(T6, P + q - 3, (q // 4) * 1024)
    for i in range(64):
        V(f"v_mul_f32 v{S+i}, s{sC}, v{S+i}", w={S + i}, r={S + i})
    for q in range(32):
        V(f"v_cvt_pk_bf16_f32 v{QB+q}, v{S+2*q}, v{S+2*q+1}", w={QB + q}, r={S + 2 * q, S + 2 * q + 1})
    A.wait_ds_all()
    A.waitcnt(vm=0)
    A.vm_done = A.nvm
    if OPT["ld4"]:
        A.nvm, A.vm_done = ldr_vm
    A.label("K1_ATT")
    A.win = []
    A.salu("s_nop 4")
    if OPT["stag"]:
        A.salu(f"s_lshr_b32 s{sT2}, s{sW}, {OPT['stag'] - 1}")

    SETA = [AD + i for i in range(8)]
    SETB = [XO, XO + 1, WO, WO + 1, BW, BX, T4, T5]
    kx = [32 * ks for ks in range(8)]
    vx = [(t << 6) ^ (32 * jj) for t in range(4) for jj in range(2)]
    SB = lambda h: S + 32 * (h % 2)
    PB = lambda h: P + 16 * (h % 2)
    phases = [("qk", 0)] + [x for h in range(7) for x in (("qk", h + 1), ("pv", h))] + [("pv", 7)]
    pset = {}
    for ph in phases:
        pset[ph] = SETA if ph[0] == "qk" else SETB
    pset[("qk", 0)] = SETB; pset[("pv", 7)] = SETA
    punit = lambda ph: UK[ph[1]] if ph[0] == "qk" else UV[ph[1]]
    def paddr(ph):
        u = punit(ph)
        return addr_items(pset[ph], BK if ph[0] == "qk" else BV, unit_slot[u], kx if ph[0] == "qk" else vx)
    mf = [(ph, i) for ph in phases for i in range(16)]
    syncJ = list(range(0, 6, OPT["bstep"]))
    if OPT["fuse"]:
        syncJ.append(6)
        K2 = K2Fused(A, sW, SO, QB)
    sync_pos = [phases.index(("pv", j)) * 16 + 12 for j in syncJ]
    first_read = {}
    for n, (ph, i) in enumerate(mf):
        first_read.setdefault(punit(ph), max(n - 4, -1))
    last_read = {}
    for n, (ph, i) in enumerate(mf):
        last_read[punit(ph)] = n - 4
    def publish_set(pos_from, pos_to):
        return [u for u, fr in first_read.items() if pos_from <= fr < pos_to]
    freed = set()
    dmaq = []
    def refill_att():
        while nkv[0] < 16 and free:
            dmaq.extend(dma_items(27 + nkv[0])); nkv[0] += 1

    pub = publish_set(-1, sync_pos[0])
    A.wait_vm(max(unit_last_vm[u] for u in pub))
    A.barrier()
    PF.stamp("a0")
    for u in stage_units[8]: free.append(unit_slot[u])
    A.salu(f"s_cmp_lt_u32 s{sW}, 4")
    A.salu(f"s_cbranch_scc1 K1_QGOT")
    if staged:
        A.salu(f"s_cmp_lt_u32 s{sW}, 6")
        A.salu(f"s_cbranch_scc1 K1_NODUMP")
        while staged:
            u, r_ = staged.pop(0)
            dump_unit(u, r_)
        A.label("K1_NODUMP")
    refill_att()
    A.salu(f"s_bfe_u32 s3, s{sW}, 0x10001")
    A.salu(f"s_cmp_eq_u32 s3, 0")
    A.salu(f"s_cselect_b32 s3, {xch[0]}, {xch[1]}")
    A.salu(f"s_lshl_b32 s3, s3, 14")
    A.salu(f"s_and_b32 s{sT}, s{sW}, 1")
    A.salu(f"s_lshl_b32 s{sT}, s{sT}, 13")
    A.salu(f"s_add_u32 s3, s3, s{sT}")
    V(f"v_lshlrev_b32 v{T6}, 4, v{L}", w={T6}, r={L})
    V(f"v_add_u32 v{T6}, s3, v{T6}", w={T6}, r={T6})
    for q in range(8):
        A.ds_read_b128(QB + 4 * q, T6, q * 1024)
    A.wait_ds_all()
    A.label("K1_QGOT")
    A.salu("s_nop 1")
    for it in paddr(("qk", 0)) + paddr(("qk", 1)): it()

    TT = [T0, T1, T2, T3]
    def max_items(regs, first, final):
        it = []
        r = list(regs)
        if first:
            a = r[:3]; b = r[3:6]; r = r[6:]
            it.append(lambda a=a: V(f"v_max3_f32 v{MX}, v{a[0]}, v{a[1]}, v{a[2]}", w={MX}, r=set(a)))
            it.append(lambda b=b: V(f"v_max3_f32 v{MX2}, v{b[0]}, v{b[1]}, v{b[2]}", w={MX2}, r=set(b)))
        k = 0
        while r:
            a = r[:2]; r = r[2:]
            d = MX if k % 2 == 0 else MX2
            it.append(lambda a=a, d=d: V(f"v_max3_f32 v{d}, v{d}, v{a[0]}, v{a[1]}", w={d}, r={d} | set(a)))
            k += 1
        if final:
            it.append(lambda: V(f"v_max_f32 v{MX}, v{MX}, v{MX2}", w={MX}, r={MX, MX2}))
            it.append(lambda: V(f"v_mov_b32 v{MX2}, v{MX}", w={MX2}, r={MX}))
            it.append(lambda: V(f"v_permlane32_swap_b32 v{MX}, v{MX2}", w={MX, MX2}, r={MX, MX2}, kind="perm"))
            it.append(lambda: V(f"v_max_f32 v{MX}, v{MX}, v{MX2}", w={MX}, r={MX, MX2}))
        return it
    def sm_items(h, lo, hi, sub):
        it = []
        sb, pb = SB(h), PB(h)
        if sub:
            it.append(lambda: V(f"v_sub_f32 v{sb+lo}, v{sb+lo}, v{MX}", w={sb + lo}, r={sb + lo, MX}))
        for e in range(lo, hi + 2):
            if sub and e + 1 < hi:
                it.append(lambda e=e: V(f"v_sub_f32 v{sb+e+1}, v{sb+e+1}, v{MX}", w={sb + e + 1}, r={sb + e + 1, MX}))
            if e < hi:
                it.append(lambda e=e: V(f"v_exp_f32 v{TT[e%4]}, v{sb+e}", w={TT[e % 4]}, r={sb + e}, kind="trans"))
            if lo <= e - 1 < hi:
                p = e - 1; acc = SUMA if p % 2 == 0 else SUMB
                if p < 2:
                    it.append(lambda p=p, acc=acc: V(f"v_mov_b32 v{acc}, v{TT[p%4]}", w={acc}, r={TT[p % 4]}))
                else:
                    it.append(lambda p=p, acc=acc: V(f"v_add_f32 v{acc}, v{acc}, v{TT[p%4]}", w={acc}, r={acc, TT[p % 4]}))
            if e - 2 >= lo and (e - 2) % 2 == 0 and e - 1 < hi:
                p = e - 2
                it.append(lambda p=p: V(f"v_cvt_pk_bf16_f32 v{pb+p//2}, v{TT[p%4]}, v{TT[(p+1)%4]}", w={pb + p // 2}, r={TT[p % 4], TT[(p + 1) % 4]}))
        return it
    def negm_items():
        return [lambda i=i: V(f"v_sub_f32 v{NEGM+i}, 0, v{MX}", w={NEGM + i}, r={MX}) for i in range(16)]
    def check(h):
        V(f"v_add_f32 v{SUMA}, v{SUMA}, v{SUMB}", w={SUMA}, r={SUMA, SUMB})
        if h > 0:
            V(f"v_cmp_nge_f32 vcc, s{sTHR}, v{SUMA}", r={SUMA}, sw={"vcc"})
            A.salu("s_nop 1")
            A.salu(f"s_cbranch_vccnz K1_SLOW{h}")
            A.label(f"K1_BACK{h}")
        V(f"v_add_f32 v{LSUM}, v{LSUM}, v{SUMA}", w={LSUM}, r={LSUM, SUMA})

    def side_for(ph):
        kind, h = ph
        if ph == ("qk", 0):
            return [], []
        if kind == "qk":
            hh = h - 1
            if hh == 0:
                main = max_items([SB(0) + i for i in range(32)], True, True) + sm_items(0, 0, 32, True)
            else:
                main = sm_items(hh, 16, 32, hh == 1)
            return main, paddr(("pv", hh))
        if h == 7: return [], []
        if h == 6:
            return sm_items(7, 0, 32, False), paddr(("pv", 7)) + (K2.addr_items() if OPT["fuse"] and OPT["fuse"] != 6 else [])
        main = sm_items(h + 1, 0, 16, h == 0)
        if h == 0: main = negm_items() + main
        return main, paddr(("qk", h + 2))

    rid = {}
    def issue_read(n):
        ph, i = mf[n]
        st = pset[ph]; fr = FR + 4 * (n % 4)
        if ph[0] == "qk":
            rid[n] = A.ds_read_b128(fr, st[i % 8], (i // 8) * 8192)
        else:
            g, t = i // 4, i % 4
            A.ds_read_tr(fr, st[2 * t], g * 4096)
            rid[n] = A.ds_read_tr(fr + 2, st[2 * t + 1], g * 4096 + 2048)
    for n in range(4): issue_read(n)
    gap = 0
    for n, (ph, i) in enumerate(mf):
        kind, h = ph
        if i == 0:
            main, adr = side_for(ph)
            plan = [[] for _ in range(16)]
            for k, it in enumerate(adr): plan[k * 12 // max(len(adr), 1)].append(it)
            s0 = 1 if ph == ("qk", 1) else 0
            for k, it in enumerate(main): plan[s0 + k * (16 - s0) // len(main)].append(it)
        A.wait_ds(rid[n])
        fr = FR + 4 * (n % 4)
        if kind == "qk":
            kt, ks = i // 8, i % 8
            c = None
            if ks == 0: c = "zero" if h <= 1 else NEGM
            A.mfma(SB(h) + 16 * kt, fr, QB + 4 * ks, c)
        else:
            g, t = i // 4, i % 4
            A.mfma(O + 16 * t, fr, PB(h) + 4 * g, "zero" if (h == 0 and g == 0) else None)
        if n in sync_pos:
            k = sync_pos.index(n)
            pub = publish_set(n, sync_pos[k + 1] if k + 1 < len(sync_pos) else 10**9)
            while dmaq: dmaq.pop(0)()
            A.wait_ds_all()
            A.wait_vm(max(unit_last_vm[u] for u in pub))
            A.barrier()
            PF.stamp(f"x{h}")
            if k == 0: free.extend(xch)
            for u, lr in last_read.items():
                if lr < n and u not in freed:
                    freed.add(u); free.append(unit_slot[u])
            refill_att()
            if OPT["fuse"] == 6:
                if h == 1: K2.loads()
                if h == 2: K2.scalars()
                if h == 3: K2.addr6()
                if h >= OPT["wo0"]:
                    assert nkv[0] == 16
                    while free and len(K2.slots6) < 8:
                        j = len(K2.slots6); K2.slots6.append(free.pop(0))
                        if h < 6 or OPT["wo6"]:
                            dmaq.extend([lambda j=j, q=q: K2.wo_piece(j >> 1, (j & 1) * 2 + q) for q in range(2)])
                            K2.done6 = j + 1
            elif OPT["fuse"]:
                if h == 4: K2.loads()
                if h == 5: K2.scalars()
                if h == 6:
                    assert len(free) >= 8, free
                    its = K2.wo_items(free[:8])
                    K2.mslot = free[8]
                    if OPT["fuse"] < 3: dmaq.extend(its)
            if OPT["wopf"] and h == OPT["wopf"] - 1:
                A.salu("s_load_dwordx2 s[60:61], s[0:1], 32")
                A.salu("s_load_dwordx2 s[62:63], s[0:1], 72")
                if OPT["xm"]:
                    A.salu(f"s_lshr_b32 s3, s2, 3")
                    A.salu(f"s_lshl_b32 s3, s3, 3")
                    A.salu(f"s_add_u32 s3, s3, s{sW}")
                    A.salu(f"s_mul_i32 s3, s3, {16*1152}")
                    A.salu(f"s_and_b32 s{sT}, s2, 1")
                    A.salu(f"s_lshl_b32 s{sT}, s{sT}, 9")
                    A.salu(f"s_add_u32 s3, s3, s{sT}")
                    V(f"v_mbcnt_lo_u32_b32 v{T6}, -1, 0", w={T6})
                    V(f"v_mbcnt_hi_u32_b32 v{T6}, -1, v{T6}", w={T6}, r={T6})
                    V(f"v_lshrrev_b32 v{T7}, 2, v{T6}", w={T7}, r={T6})
                    V(f"v_mul_u32_u24 v{T7}, 1152, v{T7}", w={T7}, r={T7})
                    V(f"v_and_b32 v{T6}, 3, v{T6}", w={T6}, r={T6})
                    V(f"v_lshl_add_u32 v{T6}, v{T6}, 7, v{T7}", w={T6}, r={T6, T7})
                else:
                    if OPT["wox"]:
                        A.salu(f"s_lshr_b32 s3, s2, 5")
                        A.salu(f"s_lshl_b32 s3, s3, 4")
                        A.salu(f"s_bfe_u32 s{sT}, s2, 0x20003")
                        A.salu(f"s_add_u32 s3, s3, s{sT}")
                    else:
                        A.salu(f"s_lshl_b32 s3, s{sB}, 4")
                        A.salu(f"s_add_u32 s3, s3, s{sKVH}")
                    A.salu(f"s_mul_i32 s3, s3, 288")
                    A.salu(f"s_lshl_b32 s{sT}, s{sW}, 6")
                    A.salu(f"s_min_u32 s{sT}, s{sT}, 224")
                    A.salu(f"s_add_u32 s3, s3, s{sT}")
                    A.salu(f"s_lshl_b32 s3, s3, 7")
                    V(f"v_mbcnt_lo_u32_b32 v{T7}, -1, 0", w={T7})
                    V(f"v_mbcnt_hi_u32_b32 v{T7}, -1, v{T7}", w={T7}, r={T7})
                    V(f"v_lshlrev_b32 v{T7}, 7, v{T7}", w={T7}, r={T7})
                A.salu("s_waitcnt lgkmcnt(0)")
                A.salu(f"s_cmp_eq_u32 s{sBLK}, 0")
                A.salu("s_cselect_b32 s60, s60, s62")
                A.salu("s_cselect_b32 s61, s61, s63")
                A.salu("s_and_b32 s61, s61, 0xffff")
                A.salu(f"s_mov_b32 s62, {4096*576*2}")
                A.salu("s_mov_b32 s63, 0x00020000")
                if OPT["xm"]:
                    A.salu("s_mov_b32 exec_lo, 0x88888888")
                    A.salu("s_mov_b32 exec_hi, 0x88888888")
                    A.vmem(f"buffer_load_dword v{T7}, v{T6}, s[60:63], s3 offen offset:128", w={T7}, r={T6})
                    A.salu("s_mov_b64 exec, -1")
                TA_ = T6 if OPT["xm"] else T7
                A.vmem(f"buffer_load_dword v{T7}, v{TA_}, s[60:63], s3 offen", w={T7}, r={TA_})
        if n + 4 < len(mf): issue_read(n + 4)
        for it in plan[i]: it()
        gap += 1
        if dmaq and gap >= OPT["dmagap"]:
            dmaq.pop(0)(); gap = 0
        if i == 15:
            if kind == "qk" and h >= 1: check(h - 1)
            if ph == ("pv", 6): check(7)
    assert not dmaq
    PF.stamp("pv7")
    V(f"v_mov_b32 v{T0}, v{LSUM}", w={T0}, r={LSUM})
    V(f"v_permlane32_swap_b32 v{T0}, v{LSUM}", w={T0, LSUM}, r={T0, LSUM}, kind="perm")
    V(f"v_add_f32 v{T0}, v{T0}, v{LSUM}", w={T0}, r={T0, LSUM})
    V(f"v_rcp_f32 v{T0}, v{T0}", w={T0}, r={T0}, kind="trans")
    A.salu(f"s_cmp_eq_u32 s{sRT}, 3")
    A.salu("s_cbranch_scc0 K1_NOMASK")
    A.salu("s_mov_b32 exec_lo, 0xffff")
    A.salu("s_mov_b32 exec_hi, 0xffff")
    A.label("K1_NOMASK")
    for f in range(8):
        b0 = O + 8 * f
        for i in range(8):
            V(f"v_mul_f32 v{b0+i}, v{T0}, v{b0+i}", w={b0 + i}, r={T0, b0 + i})
        d = P + 4 * f
        for q in range(4):
            V(f"v_cvt_pk_bf16_f32 v{d+q}, v{b0+2*q}, v{b0+2*q+1}", w={d + q}, r={b0 + 2 * q, b0 + 2 * q + 1})
        A.vmem(f"buffer_store_dwordx4 {vname(d,4)}, v{OST}, s[{SO}:{SO+3}], s{sOB} offen offset:{f*512}{' sc1' if OPT['fuse'] else ' nt' if OPT['ntst'] else ''}", r=vr(d, 4) | {OST}, storedata=vr(d, 4))
    if OPT["fuse"]:
        K2.body(PF, sBLK, sB, sKVH)
    PF.dump(24, sW, 0)
    A.label("K1_END")
    A.salu("s_endpgm")
    for h in range(1, 8):
        A.label(f"K1_SLOW{h}")
        A.flush_hazards()
        sb = SB(h)
        for it in max_items([sb + i for i in range(32)], True, True): it()
        V(f"v_max_f32 v{MX}, 0, v{MX}", w={MX}, r={MX})
        V(f"v_sub_f32 v{MX2}, 0, v{MX}", w={MX2}, r={MX})
        V(f"v_exp_f32 v{MX2}, v{MX2}", w={MX2}, r={MX2}, kind="trans")
        for i in range(64):
            V(f"v_mul_f32 v{O+i}, v{MX2}, v{O+i}", w={O + i}, r={MX2, O + i})
        V(f"v_mul_f32 v{LSUM}, v{MX2}, v{LSUM}", w={LSUM}, r={MX2, LSUM})
        for i in range(16):
            V(f"v_sub_f32 v{NEGM+i}, v{NEGM+i}, v{MX}", w={NEGM + i}, r={NEGM + i, MX})
        if h < 7:
            s2 = SB(h + 1)
            for i in range(32):
                V(f"v_sub_f32 v{s2+i}, v{s2+i}, v{MX}", w={s2 + i}, r={s2 + i, MX})
        for it in sm_items(h, 0, 32, True): it()
        V(f"v_add_f32 v{SUMA}, v{SUMA}, v{SUMB}", w={SUMA}, r={SUMA, SUMB})
        A.flush_hazards()
        A.salu(f"s_branch K1_BACK{h}")

class K2Fused:
    def __init__(self, A, sW, SO, WOFF):
        self.A = A; self.sW = sW; self.SO = SO; self.WOFF = WOFF
        self.SWO, self.SOUT, self.SDBG = 28, 32, 20
        self.sBLK, self.sTT, self.sMT, self.sNT = 16, 17, 18, 19
        self.sWL, self.sWB, self.sO0, self.sO1, self.sT = 49, 50, 8, 9, 52
        self.sP0, self.sP1 = 10, 11
        self.last_vm = {}
    def loads(self):
        A = self.A
        A.salu("s_load_dwordx2 s[8:9], s[0:1], 32")
        A.salu("s_load_dwordx2 s[10:11], s[0:1], 72")
        A.salu("s_load_dwordx2 s[12:13], s[0:1], 80")
        A.salu("s_load_dwordx2 s[14:15], s[0:1], 88")
    def scalars(self):
        A = self.A; sW = self.sW
        sBLK, sTT, sMT, sNT = self.sBLK, self.sTT, self.sMT, self.sNT
        A.salu("s_waitcnt lgkmcnt(0)")
        if OPT["xm"]:
            A.salu("s_bitcmp1_b32 s2, 2")
            A.salu(f"s_cselect_b32 s{sBLK}, 1, 0")
            A.salu("s_cselect_b32 s8, s10, s8")
            A.salu("s_cselect_b32 s9, s11, s9")
            srd(A, self.SWO, 8, 4096 * 576 * 2)
            srd(A, self.SOUT, 12, 896 * 1152 * 2)
            srd(A, self.SDBG, 14, 256)
            A.salu("s_lshr_b32 s3, s2, 3")
            A.salu("s_and_b32 s12, s2, 1")
            A.salu(f"s_lshr_b32 s{sMT}, s3, 2")
            A.salu(f"s_and_b32 s{sNT}, s3, 3")
            A.salu("s_mul_i32 s13, s12, 5")
            A.salu(f"s_add_u32 s{sNT}, s{sNT}, s13")
            A.salu("s_lshl_b32 s13, s12, 2")
            A.salu("s_add_u32 s13, s13, s3")
            A.salu("s_sub_u32 s13, s13, 28")
            A.salu("s_cmp_ge_u32 s3, 28")
            A.salu(f"s_cselect_b32 s{sMT}, s13, s{sMT}")
            A.salu(f"s_cselect_b32 s{sNT}, 4, s{sNT}")
            A.salu(f"s_cmp_eq_u32 s{sMT}, 7")
            A.salu(f"s_cselect_b32 s{sTT}, 255, 0")
            A.salu(f"s_min_u32 s{sMT}, s{sMT}, 6")
            A.salu("s_bfe_u32 s13, s2, 0x10001")
            A.salu("s_mul_i32 s13, s13, 7")
            A.salu(f"s_add_u32 s{sMT}, s{sMT}, s13")
        else:
            A.salu("s_and_b32 s3, s2, 7")
            A.salu("s_lshl_b32 s3, s3, 5")
            A.salu(f"s_lshr_b32 s{sTT}, s2, 3")
            A.salu(f"s_add_u32 s{sTT}, s3, s{sTT}")
            A.salu(f"s_min_u32 s3, s{sTT}, 251")
            A.salu("s_cmp_ge_u32 s3, 126")
            A.salu(f"s_cselect_b32 s{sBLK}, 1, 0")
            A.salu("s_cselect_b32 s8, s10, s8")
            A.salu("s_cselect_b32 s9, s11, s9")
            srd(A, self.SWO, 8, 4096 * 576 * 2)
            srd(A, self.SOUT, 12, 896 * 1152 * 2)
            srd(A, self.SDBG, 14, 256)
            A.salu(f"s_mul_i32 s12, s{sBLK}, 126")
            A.salu("s_sub_u32 s3, s3, s12")
            A.salu("s_mul_i32 s12, s3, 57")
            A.salu(f"s_lshr_b32 s{sMT}, s12, 9")
            A.salu(f"s_mul_i32 s12, s{sMT}, 9")
            A.salu(f"s_sub_u32 s{sNT}, s3, s12")
        A.salu(f"s_mul_i32 s{self.sWB}, s{sW}, {(32 if OPT['fuse'] == 5 else 512)*1152}")
        A.salu(f"s_lshl_b32 s12, s{sNT}, 7")
        A.salu(f"s_add_u32 s{self.sWB}, s{self.sWB}, s12")
        A.salu(f"s_mul_i32 s{self.sO0}, s{sBLK}, {O_BLK}")
        A.salu(f"s_lshl_b32 s12, s{sMT}, 19")
        A.salu(f"s_add_u32 s{self.sO0}, s{self.sO0}, s12")
        A.salu(f"s_lshl_b32 s12, s{sW}, {10 if OPT['fuse'] == 5 else 14}")
        A.salu(f"s_add_u32 s{self.sO0}, s{self.sO0}, s12")
        A.salu(f"s_add_u32 s{self.sO1}, s{self.sO0}, {2*131072}")
        if OPT["ntf"]:
            A.salu(f"s_lshl_b32 s12, s{sBLK}, 6")
            A.salu("s_add_u32 s12, s12, 128")
        else:
            A.salu(f"s_lshl_b32 s12, s{sBLK}, 7")
            A.salu(f"s_lshr_b32 s13, s{sW}, 1")
            A.salu("s_lshl_b32 s13, s13, 2")
            A.salu("s_add_u32 s12, s12, s13")
        sh = 2 if OPT["ntf"] else 4
        A.salu(f"s_mul_i32 s13, s{sMT}, 148")
        A.salu(f"s_lshr_b32 s{self.sP0}, s13, 8")
        A.salu(f"s_lshl_b32 s{self.sP0}, s{self.sP0}, {sh}")
        A.salu(f"s_add_u32 s{self.sP0}, s{self.sP0}, s12")
        A.salu("s_add_u32 s13, s13, 111")
        A.salu(f"s_lshr_b32 s{self.sP1}, s13, 8")
        A.salu(f"s_lshl_b32 s{self.sP1}, s{self.sP1}, {sh}")
        A.salu(f"s_add_u32 s{self.sP1}, s{self.sP1}, s12")
    def addr_items(self):
        V = self.A.valu; W = self.WOFF
        L, T1, T2, T4 = W + 4, W + 5, W + 6, W + 7
        return [
            lambda: V(f"v_mbcnt_lo_u32_b32 v{L}, -1, 0", w={L}),
            lambda: V(f"v_mbcnt_hi_u32_b32 v{L}, -1, v{L}", w={L}, r={L}),
            lambda: V(f"v_lshrrev_b32 v{T1}, 3, v{L}", w={T1}, r={L}),
            lambda: V(f"v_mul_u32_u24 v{T1}, 1152, v{T1}", w={T1}, r={T1}),
            lambda: V(f"v_bfe_u32 v{T2}, v{L}, 4, 1", w={T2}, r={L}),
            lambda: V(f"v_lshlrev_b32 v{T2}, 2, v{T2}", w={T2}, r={T2}),
            lambda: V(f"v_and_b32 v{T4}, 7, v{L}", w={T4}, r={L}),
            lambda: V(f"v_xor_b32 v{T4}, v{T4}, v{T2}", w={T4}, r={T4, T2}),
            lambda: V(f"v_lshl_add_u32 v{W}, v{T4}, 4, v{T1}", w={W}, r={T4, T1}),
        ] + [lambda i=i: V(f"v_add_u32 v{W+i}, {9216*i}, v{W}", w={W + i}, r={W}) for i in range(1, 4)]
    def addr6(self):
        V = self.A.valu
        W, L, T1 = 6, 13, 12
        V(f"v_mbcnt_lo_u32_b32 v{L}, -1, 0", w={L})
        V(f"v_mbcnt_hi_u32_b32 v{L}, -1, v{L}", w={L}, r={L})
        V(f"v_lshrrev_b32 v{T1}, 3, v{L}", w={T1}, r={L})
        V(f"v_mul_u32_u24 v{T1}, 1152, v{T1}", w={T1}, r={T1})
        V(f"v_and_b32 v{W}, 7, v{L}", w={W}, r={L})
        V(f"v_bfe_u32 v{L}, v{L}, 4, 1", w={L}, r={L})
        V(f"v_lshlrev_b32 v{L}, 2, v{L}", w={L}, r={L})
        V(f"v_xor_b32 v{W}, v{W}, v{L}", w={W}, r={W, L})
        V(f"v_lshl_add_u32 v{W}, v{W}, 4, v{T1}", w={W}, r={W, T1})
        self.A.salu(f"s_lshl_b32 s{self.sWL}, s{self.sW}, 11")
        self.slots6 = []
    def wo_piece(self, u, i):
        A = self.A; W = self.WOFF; S = self.SWO
        if OPT["fuse"] == 6:
            A.salu(f"s_add_u32 s{self.sT}, s{self.sWB}, {u * 32 * 1152 + i * 9216}")
            A.salu(f"s_add_u32 m0, s{self.sWL}, {self.slots6[2 * (u % 4) + (i >> 1)] * SLOT + (i & 1) * 1024}", m0w=True)
            A.vmem(f"buffer_load_dwordx4 v6, s[{S}:{S+3}], s{self.sT} offen{' nt' if OPT['ntwo'] else ''} lds", kind="dma", r={6}, m0r=True)
            return
        A.salu(f"s_add_u32 s{self.sT}, s{self.sWB}, {u * 32 * 1152}")
        A.salu(f"s_add_u32 m0, s{self.sWL}, {(u % 4) * 4096 + i * 1024}", m0w=True)
        A.vmem(f"buffer_load_dwordx4 v{W+i}, s[{S}:{S+3}], s{self.sT} offen{' nt' if OPT['ntwo'] else ''} lds", kind="dma", r={W + i}, m0r=True)
    def wo_items(self, slots):
        A = self.A
        tab = sum(s << (4 * w) for w, s in enumerate(slots))
        A.salu(f"s_lshl_b32 s3, s{self.sW}, 2")
        A.salu(f"s_lshr_b32 s3, {tab:#x}, s3")
        A.salu("s_and_b32 s3, s3, 15")
        A.salu(f"s_lshl_b32 s{self.sWL}, s3, 14")
        return [lambda u=u, i=i: self.wo_piece(u, i) for u in range(4) for i in range(4)]
    def dyn(self, PF, L, OOFF, BA, AF, OF, ACC):
        A = self.A; V = A.valu; sW = self.sW; SO = self.SO; SDBG = self.SDBG; W = self.WOFF; S = self.SWO
        T1, T2, T3, T4 = 1, 2, 3, 4
        PD = 8
        vPA, vMA, vT, vM = W + 4, W + 5, W + 6, W + 7
        sPM, sCNT, sDONE, sJ, sA, sB_ = 60, 62, 63, 12, 13, 14
        V(f"v_mov_b32 v{vPA}, s{self.sP1}", w={vPA})
        V(f"v_mov_b32 v{T4}, s{self.sP0}", w={T4})
        V(f"v_cmp_gt_u32 vcc, 16, v{L}", r={L}, sw={"vcc"})
        V(f"v_cndmask_b32 v{vPA}, v{vPA}, v{T4}, vcc", w={vPA}, r={vPA, T4}, sr={"vcc"})
        V(f"v_and_b32 v{T4}, 15, v{L}", w={T4}, r={L})
        V(f"v_add_u32 v{vPA}, v{T4}, v{vPA}", w={vPA}, r={vPA, T4})
        V(f"v_mov_b32 v{vMA}, {self.mslot * SLOT}", w={vMA})
        V(f"v_mov_b32 v{vT}, 0", w={vT})
        A.ds(f"ds_write_b32 v{vMA}, v{vT}", r={vMA, vT})
        A.salu(f"s_cmp_eq_u32 s{sW}, 0")
        A.salu(f"s_cselect_b32 s{sPM}, -1, 0")
        A.salu(f"s_mov_b32 s{sPM+1}, 0")
        A.salu(f"s_mov_b32 s{sCNT}, 0x40000")
        A.salu(f"s_mov_b32 s{sDONE}, 0")
        A.salu(f"s_mov_b32 s15, 0")
        A.waitcnt(vm=0, lgkm=0); A.vm_done = A.nvm; A.ds_done = A.nds
        PF.stamp("st")
        A.barrier()
        A.salu("s_cbranch_scc0 K1_NOFLAG")
        A.salu("s_mov_b64 exec, 1")
        A.salu(f"buffer_atomic_add v{T2}, v{T1}, s[{SDBG}:{SDBG+3}], 0 offen sc1")
        A.salu("s_mov_b64 exec, -1")
        A.label("K1_NOFLAG")
        A.salu(f"s_cmp_ge_u32 s{self.sTT}, 252")
        A.salu("s_cbranch_scc1 K1_END")
        def poll(r, counted=True):
            A.salu(f"s_mov_b64 exec, s[{sPM}:{sPM+1}]")
            txt = f"buffer_load_ubyte v{PD+r}, v{vPA}, s[{SDBG}:{SDBG+3}], 0 offen sc1"
            if counted: A.vmem(txt, w={PD + r}, r={vPA})
            else: A.salu(txt)
            A.salu("s_mov_b64 exec, -1")
        def consume(r):
            A.salu(f"s_mov_b64 exec, s[{sPM}:{sPM+1}]")
            V(f"v_cmp_ne_u32 vcc, 0, v{PD+r}", r={PD + r}, sw={"vcc"})
            A.salu("s_nop 1")
            A.salu(f"s_lshr_b32 s{sA}, vcc_lo, 16")
            A.salu(f"s_and_b32 s{sA}, s{sA}, vcc_lo")
            A.salu(f"s_or_b32 s15, s15, s{sA}")
            V(f"v_mov_b32 v{vT}, s15", w={vT})
            A.ds(f"ds_write_b32 v{vMA}, v{vT}", r={vMA, vT})
            A.salu("s_mov_b64 exec, -1")
        def pick(k):
            A.label(f"K1_PK{k}")
            A.ds(f"ds_read_b32 v{vM}, v{vMA}", w={vM}, r={vMA})
            A.waitcnt(lgkm=0); A.ds_done = A.nds
            A._emit(I(f"v_readfirstlane_b32 s{sA}, v{vM}", "rdlane", r={vM}, sw={sA}))
            A.salu(f"s_andn2_b32 s{sA}, s{sA}, s{sDONE}", sr={sA})
            A.salu(f"s_cbranch_scc1 K1_PG{k}")
            poll(k % 4, False)
            A.salu("s_waitcnt vmcnt(0)")
            consume(k % 4)
            A.salu(f"s_sleep {OPT['slp']}")
            A.salu(f"s_sub_u32 s{sCNT}, s{sCNT}, 1")
            A.salu(f"s_cmp_lg_u32 s{sCNT}, 0")
            A.salu(f"s_cbranch_scc1 K1_PK{k}")
            A.salu(f"s_mov_b32 s{sCNT}, 1")
            A.salu(f"s_andn2_b32 s{sA}, 0xffff, s{sDONE}")
            A.label(f"K1_PG{k}")
            A.salu(f"s_ff1_i32_b32 s{sJ}, s{sA}")
            A.salu(f"s_bitset1_b32 s{sDONE}, s{sJ}")
        NU = 16; DEPTH = 4
        last_vm = {}
        def issue(u):
            slot = u % DEPTH
            pick(u)
            if self.first: PF.stamp("go"); self.first = False
            if 4 <= u: poll(u % 4)
            A.salu(f"s_mul_i32 s{sA}, s{sJ}, {256*1152}")
            A.salu(f"s_add_u32 s{sA}, s{sA}, s{self.sWB}")
            for i in range(4):
                A.salu(f"s_add_u32 m0, s{self.sWL}, {slot * 4096 + i * 1024}", m0w=True)
                A.vmem(f"buffer_load_dwordx4 v{W+i}, s[{S}:{S+3}], s{sA} offen{' nt' if OPT['ntwo'] else ''} lds", kind="dma", r={W + i}, m0r=True)
            A.salu(f"s_lshl_b32 s{sJ}, s{sJ}, 13")
            A.salu(f"s_add_u32 s{sA}, s{sJ}, s{self.sO0}")
            A.salu(f"s_add_u32 s{sB_}, s{sJ}, s{self.sO1}")
            for ks in range(2):
                for tm in range(2):
                    d = OF + slot * 16 + (ks * 2 + tm) * 4
                    k = A.vmem(f"buffer_load_dwordx4 {vname(d,4)}, v{OOFF}, s[{SO}:{SO+3}], s{sA if tm == 0 else sB_} offen offset:{ks*512} sc1", w=vr(d, 4), r={OOFF})
            last_vm[u] = k
        def dsreads(u):
            slot = u % DEPTH
            ab = AF + (u % 2) * 16
            for ks in range(2):
                for tn in range(2):
                    for j in range(2):
                        k = A.ds_read_tr(ab + (ks * 2 + tn) * 4 + 2 * j, BA + tn, slot * 4096 + (16 * ks + 8 * j) * 128)
            return k
        self.first = True
        for u in range(DEPTH): issue(u)
        A.wait_vm(last_vm[0])
        pend = dsreads(0)
        for u in range(NU):
            A.wait_ds(pend)
            if u + 1 < NU:
                A.wait_vm(last_vm[u + 1])
                if u + 1 >= 4 and u + DEPTH < NU: consume((u + 1) % 4)
                pend = dsreads(u + 1)
            ab = AF + (u % 2) * 16
            ob = OF + (u % DEPTH) * 16
            for ks in range(2):
                for tn in range(2):
                    for tm in range(2):
                        c = "zero" if (u == 0 and ks == 0) else None
                        A.mfma(ACC + (tn * 2 + tm) * 16, ab + (ks * 2 + tn) * 4, ob + (ks * 2 + tm) * 4, c)
            if u + DEPTH < NU: issue(u + DEPTH)
            if u in (0, 7, 15): PF.stamp(f"u{u}")
    def body(self, PF, sBLK1, sB1, sKVH1):
        A = self.A; V = A.valu; sW = self.sW; SO = self.SO
        T0, T1, T2, T3, T4, T5, T6, T7 = 0, 1, 2, 3, 4, 5, 9, 8
        WOFF = self.WOFF; OOFF = 12; BA = 13; RED = 15; AF = 16; OF = 96; ACC = 160
        sBLK, sMT, sNT = self.sBLK, self.sMT, self.sNT
        SOUT, SDBG = self.SOUT, self.SDBG
        sWL, sO0, sO1, sT = self.sWL, self.sO0, self.sO1, self.sT
        L = T0
        A.salu("s_mov_b64 exec, -1")
        V(f"v_mbcnt_lo_u32_b32 v{L}, -1, 0", w={L})
        V(f"v_mbcnt_hi_u32_b32 v{L}, -1, v{L}", w={L}, r={L})
        V(f"v_bfe_u32 v{T2}, v{L}, 4, 1", w={T2}, r={L})
        V(f"v_lshrrev_b32 v{T1}, 5, v{L}", w={T1}, r={L})
        V(f"v_bfe_u32 v{T3}, v{L}, 2, 2", w={T3}, r={L})
        V(f"v_and_b32 v{T4}, 3, v{L}", w={T4}, r={L})
        V(f"v_lshlrev_b32 v{T6}, 17, v{T2}", w={T6}, r={T2})
        V(f"v_lshl_add_u32 v{T6}, v{T1}, 8, v{T6}", w={T6}, r={T1, T6})
        V(f"v_and_b32 v{T7}, 15, v{L}", w={T7}, r={L})
        V(f"v_lshl_add_u32 v{OOFF}, v{T7}, 4, v{T6}", w={OOFF}, r={T7, T6})
        V(f"v_lshl_add_u32 v{T6}, v{T1}, 2, v{T3}", w={T6}, r={T1, T3})
        V(f"v_lshlrev_b32 v{T6}, 7, v{T6}", w={T6}, r={T6})
        V(f"v_lshrrev_b32 v{T7}, 1, v{T4}", w={T7}, r={T4})
        V(f"v_lshl_add_u32 v{T7}, v{T2}, 1, v{T7}", w={T7}, r={T2, T7})
        V(f"v_lshrrev_b32 v{T5}, 1, v{T3}", w={T5}, r={T3})
        V(f"v_lshlrev_b32 v{T5}, 2, v{T5}", w={T5}, r={T5})
        V(f"v_xor_b32 v{T7}, v{T7}, v{T5}", w={T7}, r={T7, T5})
        V(f"v_lshl_add_u32 v{T6}, v{T7}, 4, v{T6}", w={T6}, r={T7, T6})
        V(f"v_and_b32 v{T7}, 1, v{T4}", w={T7}, r={T4})
        V(f"v_lshl_add_u32 v{T6}, v{T7}, 3, v{T6}", w={T6}, r={T7, T6})
        V(f"v_add_u32 v{BA}, s{sWL}, v{T6}", w={BA}, r={T6})
        V(f"v_xor_b32 v{BA+1}, 64, v{BA}", w={BA + 1}, r={BA})
        if OPT["fuse"] == 6:
            for q in range(1, 3):
                for tn in range(2):
                    V(f"v_add_u32 v{64+2*q+tn}, {q*65536}, v{BA+tn}", w={64 + 2 * q + tn}, r={BA + tn})
        V(f"v_lshlrev_b32 v{RED}, 4, v{L}", w={RED}, r={L})
        if OPT["ntf"]:
            A.salu(f"s_lshl_b32 s12, s{sBLK1}, 6")
            A.salu(f"s_lshl_b32 s13, s{sB1}, 2")
            A.salu("s_add_u32 s12, s12, s13")
            A.salu("s_mov_b32 s13, 1")
        else:
            A.salu(f"s_lshl_b32 s12, s{sBLK1}, 7")
            A.salu(f"s_lshl_b32 s13, s{sB1}, 4")
            A.salu("s_add_u32 s12, s12, s13")
            A.salu(f"s_and_b32 s13, s{sKVH1}, 12")
            A.salu("s_add_u32 s12, s12, s13")
            A.salu(f"s_and_b32 s13, s{sKVH1}, 3")
            A.salu("s_lshl_b32 s13, s13, 3")
            A.salu("s_lshl_b32 s13, 1, s13")
        V(f"v_mov_b32 v{T1}, s12", w={T1})
        V(f"v_mov_b32 v{T2}, s13", w={T2})
        if OPT["ntf"]:
            V(f"v_mov_b32 v{T3}, s{self.sP1}", w={T3})
            V(f"v_writelane_b32 v{T3}, s{self.sP0}, 0", w={T3}, r={T3})
            V(f"v_mov_b32 v{T5}, 1", w={T5})
            A.salu("s_mov_b32 s14, 1")
        elif OPT["fuse"] == 5:
            self.dyn(PF, L, OOFF, BA, AF, OF, ACC)
        elif OPT["fuse"] == 1:
            V(f"v_mov_b32 v{T3}, s{self.sP1}", w={T3})
            V(f"v_writelane_b32 v{T3}, s{self.sP0}, 0", w={T3}, r={T3})
            A.salu(f"s_and_b32 s14, s{sW}, 1")
            A.salu("s_lshl_b32 s14, s14, 4")
            A.salu("s_lshl_b32 s14, 0x101, s14")
        else:
            V(f"v_mov_b32 v{T3}, s{self.sP1}", w={T3})
            V(f"v_mov_b32 v{T4}, s{self.sP0}", w={T4})
            V(f"v_cmp_gt_u32 vcc, 4, v{L}", r={L}, sw={"vcc"})
            V(f"v_cndmask_b32 v{T3}, v{T3}, v{T4}, vcc", w={T3}, r={T3, T4}, sr={"vcc"})
            V(f"v_and_b32 v{T4}, 3, v{L}", w={T4}, r={L})
            V(f"v_lshl_add_u32 v{T3}, v{T4}, 2, v{T3}", w={T3}, r={T3, T4})
            A.salu("s_mov_b32 s14, 0x01010101")
        if OPT["fuse"] != 5:
            A.salu("s_mov_b32 s15, 0x40000")
            A.waitcnt(vm=0); A.vm_done = A.nvm
            PF.stamp("st")
            A.barrier()
            A.salu(f"s_cmp_eq_u32 s{sW}, 0")
            A.salu("s_cbranch_scc0 K1_NOFLAG")
            A.salu("s_mov_b64 exec, 1")
            if OPT["ntf"]:
                A.salu(f"buffer_atomic_add v{T2}, v{T1}, s[{SDBG}:{SDBG+3}], 0 offen sc0 sc1")
                A.salu("s_waitcnt vmcnt(0)")
                A.salu(f"v_cmp_eq_u32 vcc, 15, v{T2}")
                A.salu("s_nop 1")
                A.salu("s_cbranch_vccz K1_NOFLAG")
                A.salu(f"buffer_store_dword v{T5}, v{T1}, s[{SDBG}:{SDBG+3}], 0 offen offset:128 sc1")
            elif OPT["exp"] != 1: A.salu(f"buffer_atomic_add v{T2}, v{T1}, s[{SDBG}:{SDBG+3}], 0 offen sc1")
            A.label("K1_NOFLAG")
            A.salu(f"s_cmp_ge_u32 s{self.sTT}, 252")
            A.salu("s_cbranch_scc1 K1_END")
            if OPT["exp"]:
                for _ in range(3): A.salu("s_sleep 64")
                A.salu("s_branch K1_GO")
            if OPT["fuse"] == 6:
                A.salu("s_mov_b64 exec, -1")
                for j in range(self.done6, 8):
                    for q in range(2): self.wo_piece(j >> 1, (j & 1) * 2 + q)
            if OPT["fuse"] == 1:
                A.salu("s_mov_b64 exec, 3")
            else:
                A.salu(f"s_cmp_eq_u32 s{sW}, 0")
                A.salu("s_cbranch_scc0 K1_GO" if OPT["fuse"] != 3 else "s_cbranch_scc0 K1_WO")
                A.salu("s_mov_b64 exec, 3" if OPT["ntf"] else "s_mov_b64 exec, 0xff")
            A.label("K1_POLL")
            A.salu(f"buffer_load_dword v{T4}, v{T3}, s[{SDBG}:{SDBG+3}], 0 offen sc1")
            A.salu("s_waitcnt vmcnt(0)")
            A.salu(f"v_and_b32 v{T4}, s14, v{T4}")
            A.salu(f"v_cmp_ne_u32 vcc, s14, v{T4}")
            A.salu("s_nop 1")
            A.salu("s_cbranch_vccz K1_GO")
            A.salu(f"s_sleep {OPT['slp']}")
            A.salu("s_sub_u32 s15, s15, 1")
            A.salu("s_cmp_lg_u32 s15, 0")
            A.salu("s_cbranch_scc1 K1_POLL")
            A.label("K1_GO")
            A.salu("s_mov_b64 exec, -1")
            if OPT["fuse"] == 3:
                A.barrier()
                A.label("K1_WO")
                for u in range(4):
                    for i in range(4): self.wo_piece(u, i)
                A.salu(f"s_cmp_eq_u32 s{sW}, 0")
                A.salu("s_cbranch_scc1 K1_GO2")
                A.barrier()
                A.label("K1_GO2")
            elif OPT["fuse"] > 1: A.barrier()
            PF.stamp("go")
            NU = 16; DEPTH = 4
            last_vm = {}
            def issue(u, wo=True):
                slot = u % DEPTH
                if wo:
                    for i in range(4): self.wo_piece(u, i)
                for ks in range(2):
                    for tm in range(2):
                        d = OF + slot * 16 + (ks * 2 + tm) * 4
                        off = (2 * u + ks) * 512
                        sb = sO0 if tm == 0 else sO1
                        if off >= 4096:
                            A.salu(f"s_add_u32 s{sT}, s{sb}, {off & ~4095}")
                            sb = sT
                        k = A.vmem(f"buffer_load_dwordx4 {vname(d,4)}, v{OOFF}, s[{SO}:{SO+3}], s{sb} offen offset:{off & 4095} sc1", w=vr(d, 4), r={OOFF})
                last_vm[u] = k
            def dsreads(u):
                slot = u % DEPTH
                ab = AF + (u % 2) * 16
                for ks in range(2):
                    for tn in range(2):
                        for j in range(2):
                            if OPT["fuse"] == 6:
                                o_ = self.slots6[2 * slot + ks] * SLOT + j * 1024
                                k = A.ds_read_tr(ab + (ks * 2 + tn) * 4 + 2 * j, (BA if o_ < 65536 else 64 + 2 * (o_ >> 16)) + tn, o_ & 65535)
                            else:
                                k = A.ds_read_tr(ab + (ks * 2 + tn) * 4 + 2 * j, BA + tn, slot * 4096 + (16 * ks + 8 * j) * 128)
                return k
            for u in range(DEPTH): issue(u, OPT["fuse"] == 4)
            if OPT["fuse"] in (3, 4): A.wait_vm(last_vm[0])
            pend = dsreads(0)
            A.wait_vm(last_vm[0])
            for u in range(NU):
                A.wait_ds(pend)
                if u + 1 < NU:
                    A.wait_vm(last_vm[u + 1])
                    pend = dsreads(u + 1)
                ab = AF + (u % 2) * 16
                ob = OF + (u % DEPTH) * 16
                for ks in range(2):
                    for tn in range(2):
                        for tm in range(2):
                            c = "zero" if (u == 0 and ks == 0) else None
                            A.mfma(ACC + (tn * 2 + tm) * 16, ab + (ks * 2 + tn) * 4, ob + (ks * 2 + tm) * 4, c)
                if u + DEPTH < NU: issue(u + DEPTH)
                if u in (0, 7, 15): PF.stamp(f"u{u}")
        A.wait_ds_all()
        A.barrier()
        A.salu(f"s_lshl_b32 s12, s{sW}, 14")
        V(f"v_add_u32 v{T1}, s12, v{RED}", w={T1}, r={RED})
        for q in range(16):
            A.ds_write_b128(T1, ACC + 4 * q, q * 1024)
        A.wait_ds_all()
        A.barrier()
        A.salu(f"s_lshl_b32 s6, s{sW}, 11")
        V(f"v_add_u32 v{T1}, s6, v{RED}", w={T1}, r={RED})
        V(f"v_add_u32 v{T2}, 0x10000, v{T1}", w={T2}, r={T1})
        R = OF
        for ww in range(8):
            for q in range(2):
                A.ds_read_b128(R + (ww * 2 + q) * 4, T1 if ww < 4 else T2, (ww % 4) * 16384 + q * 1024)
            if ww == 5:
                A.wait_ds_all()
        A.wait_ds_all()
        for ww in range(1, 8):
            for i in range(8):
                V(f"v_add_f32 v{R+i}, v{R+i}, v{R+ww*8+i}", w={R + i}, r={R + i, R + ww * 8 + i})
        for q in range(4):
            V(f"v_cvt_pk_bf16_f32 v{AF+q}, v{R+2*q}, v{R+2*q+1}", w={AF + q}, r={R + 2 * q, R + 2 * q + 1})
        A.salu(f"s_lshr_b32 s6, s{sW}, 1")
        A.salu("s_and_b32 s7, s6, 1")
        A.salu("s_lshr_b32 s6, s6, 1")
        A.salu(f"s_lshl_b32 s3, s{sMT}, 6")
        A.salu("s_lshl_b32 s7, s7, 5")
        A.salu("s_add_u32 s3, s3, s7")
        A.salu("s_mul_i32 s3, s3, 2304")
        A.salu(f"s_mul_i32 s7, s{sBLK}, 1152")
        A.salu("s_add_u32 s3, s3, s7")
        A.salu(f"s_lshl_b32 s7, s{sNT}, 7")
        A.salu("s_add_u32 s3, s3, s7")
        A.salu("s_lshl_b32 s7, s6, 6")
        A.salu("s_add_u32 s3, s3, s7")
        A.salu(f"s_and_b32 s7, s{sW}, 1")
        A.salu("s_lshl_b32 s7, s7, 5")
        A.salu("s_add_u32 s3, s3, s7")
        V(f"v_and_b32 v{T1}, 31, v{L}", w={T1}, r={L})
        V(f"v_mul_u32_u24 v{T1}, 2304, v{T1}", w={T1}, r={T1})
        V(f"v_lshrrev_b32 v{T2}, 5, v{L}", w={T2}, r={L})
        V(f"v_lshl_add_u32 v{T1}, v{T2}, 3, v{T1}", w={T1}, r={T2, T1})
        A.vmem(f"buffer_store_dwordx2 {vname(AF,2)}, v{T1}, s[{SOUT}:{SOUT+3}], s3 offen", r=vr(AF, 2) | {T1})
        A.vmem(f"buffer_store_dwordx2 {vname(AF+2,2)}, v{T1}, s[{SOUT}:{SOUT+3}], s3 offen offset:16", r=vr(AF + 2, 2) | {T1})

def gen_k2(A):
    V = A.valu
    T0, T1, T2, T3, T4, T5, T6, T7 = range(0, 8)
    WOFF = 8
    OOFF = 12
    BA = 13
    RED = 15
    AF = 16
    OF = 48
    ACC = 112
    sBLK, sMT, sNT, sW = 26, 27, 4, 5
    SW_, SO, SOUT = 28, 32, 36
    sWL, sWB, sO0, sO1, sT = 48, 49, 50, 51, 52
    A.win = []
    A.nds = A.ds_done = A.nvm = A.vm_done = 0
    A.raw(f".p2align 8\n.globl k2_kernel\n.type k2_kernel,@function\nk2_kernel:")
    A.salu("s_cmp_ge_u32 s2, 256")
    A.salu("s_cbranch_scc1 K2_END")
    A.salu("s_and_b32 s3, s2, 7")
    A.salu("s_lshl_b32 s3, s3, 5")
    A.salu("s_lshr_b32 s6, s2, 3")
    A.salu("s_add_u32 s3, s3, s6")
    A.salu("s_cmp_ge_u32 s3, 252")
    A.salu("s_cbranch_scc1 K2_END")
    A.salu("s_load_dwordx2 s[8:9], s[0:1], 32")
    A.salu("s_load_dwordx2 s[10:11], s[0:1], 72")
    A.salu("s_load_dwordx2 s[12:13], s[0:1], 80")
    A.salu("s_load_dwordx2 s[14:15], s[0:1], 96")
    A.salu("s_cmp_ge_u32 s3, 126")
    A.salu(f"s_cselect_b32 s{sBLK}, 1, 0")
    A.salu(f"s_mul_i32 s6, s{sBLK}, 126")
    A.salu("s_sub_u32 s3, s3, s6")
    A.salu("s_mul_i32 s6, s3, 57")
    A.salu(f"s_lshr_b32 s{sMT}, s6, 9")
    A.salu(f"s_mul_i32 s6, s{sMT}, 9")
    A.salu(f"s_sub_u32 s{sNT}, s3, s6")
    V(f"v_lshrrev_b32 v{T1}, 6, v0", w={T1}, r={0})
    A._emit(I(f"v_readfirstlane_b32 s{sW}, v{T1}", "rdlane", r={T1}, sw={sW}))
    V(f"v_and_b32 v{T0}, 63, v0", w={T0}, r={0})
    L = T0
    A.salu(f"s_lshl_b32 s{sWL}, s{sW}, 14", sr={sW})
    A.salu(f"s_mul_i32 s{sWB}, s{sW}, {512*1152}", sr={sW})
    A.salu(f"s_lshl_b32 s6, s{sNT}, 7")
    A.salu(f"s_add_u32 s{sWB}, s{sWB}, s6")
    A.salu(f"s_mul_i32 s{sO0}, s{sBLK}, {O_BLK}")
    A.salu(f"s_lshl_b32 s6, s{sMT}, 19")
    A.salu(f"s_add_u32 s{sO0}, s{sO0}, s6")
    A.salu(f"s_lshl_b32 s6, s{sW}, 14")
    A.salu(f"s_add_u32 s{sO0}, s{sO0}, s6")
    A.salu(f"s_add_u32 s{sO1}, s{sO0}, {2*131072}")
    V(f"v_lshrrev_b32 v{T1}, 3, v{L}", w={T1}, r={L})
    V(f"v_mul_u32_u24 v{T1}, 1152, v{T1}", w={T1}, r={T1})
    V(f"v_bfe_u32 v{T2}, v{L}, 4, 1", w={T2}, r={L})
    V(f"v_lshlrev_b32 v{T3}, 2, v{T2}", w={T3}, r={T2})
    V(f"v_and_b32 v{T4}, 7, v{L}", w={T4}, r={L})
    V(f"v_xor_b32 v{T4}, v{T4}, v{T3}", w={T4}, r={T4, T3})
    V(f"v_lshl_add_u32 v{WOFF}, v{T4}, 4, v{T1}", w={WOFF}, r={T4, T1})
    for i in range(1, 4):
        V(f"v_add_u32 v{WOFF+i}, {9216*i}, v{WOFF}", w={WOFF + i}, r={WOFF})
    V(f"v_lshrrev_b32 v{T1}, 5, v{L}", w={T1}, r={L})
    V(f"v_bfe_u32 v{T3}, v{L}, 2, 2", w={T3}, r={L})
    V(f"v_and_b32 v{T4}, 3, v{L}", w={T4}, r={L})
    V(f"v_lshlrev_b32 v{T6}, 17, v{T2}", w={T6}, r={T2})
    V(f"v_lshl_add_u32 v{T6}, v{T1}, 8, v{T6}", w={T6}, r={T1, T6})
    V(f"v_and_b32 v{T7}, 15, v{L}", w={T7}, r={L})
    V(f"v_lshl_add_u32 v{OOFF}, v{T7}, 4, v{T6}", w={OOFF}, r={T7, T6})
    V(f"v_lshl_add_u32 v{T6}, v{T1}, 2, v{T3}", w={T6}, r={T1, T3})
    V(f"v_lshlrev_b32 v{T6}, 7, v{T6}", w={T6}, r={T6})
    V(f"v_lshrrev_b32 v{T7}, 1, v{T4}", w={T7}, r={T4})
    V(f"v_lshl_add_u32 v{T7}, v{T2}, 1, v{T7}", w={T7}, r={T2, T7})
    V(f"v_lshrrev_b32 v{T5}, 1, v{T3}", w={T5}, r={T3})
    V(f"v_lshlrev_b32 v{T5}, 2, v{T5}", w={T5}, r={T5})
    V(f"v_xor_b32 v{T7}, v{T7}, v{T5}", w={T7}, r={T7, T5})
    V(f"v_lshl_add_u32 v{T6}, v{T7}, 4, v{T6}", w={T6}, r={T7, T6})
    V(f"v_and_b32 v{T7}, 1, v{T4}", w={T7}, r={T4})
    V(f"v_lshl_add_u32 v{T6}, v{T7}, 3, v{T6}", w={T6}, r={T7, T6})
    V(f"v_add_u32 v{BA}, s{sWL}, v{T6}", w={BA}, r={T6})
    V(f"v_xor_b32 v{BA+1}, 64, v{BA}", w={BA + 1}, r={BA})
    V(f"v_lshlrev_b32 v{RED}, 4, v{L}", w={RED}, r={L})
    A.waitcnt(lgkm=0)
    A.salu(f"s_cmp_eq_u32 s{sBLK}, 0")
    A.salu("s_cselect_b32 s8, s8, s10")
    A.salu("s_cselect_b32 s9, s9, s11")
    srd(A, SW_, 8, 4096 * 576 * 2)
    srd(A, SO, 14, 2 * O_BLK)
    srd(A, SOUT, 12, 896 * 1152 * 2)

    NU = 16; DEPTH = 4
    last_vm = {}
    def issue(u):
        slot = u % DEPTH
        A.salu(f"s_add_u32 s{sT}, s{sWB}, {u * 32 * 1152}")
        for i in range(4):
            A.salu(f"s_add_u32 m0, s{sWL}, {slot * 4096 + i * 1024}", m0w=True)
            A.vmem(f"buffer_load_dwordx4 v{WOFF+i}, s[{SW_}:{SW_+3}], s{sT} offen{' nt' if OPT['ntwo'] else ''} lds", kind="dma", r={WOFF + i}, m0r=True)
        for ks in range(2):
            for tm in range(2):
                d = OF + slot * 16 + (ks * 2 + tm) * 4
                off = (2 * u + ks) * 512
                sb = sO0 if tm == 0 else sO1
                if off >= 4096:
                    A.salu(f"s_add_u32 s{sT}, s{sb}, {off & ~4095}")
                    k = A.vmem(f"buffer_load_dwordx4 {vname(d,4)}, v{OOFF}, s[{SO}:{SO+3}], s{sT} offen offset:{off & 4095}{' nt' if OPT['nto'] else ''}", w=vr(d, 4), r={OOFF})
                else:
                    k = A.vmem(f"buffer_load_dwordx4 {vname(d,4)}, v{OOFF}, s[{SO}:{SO+3}], s{sb} offen offset:{off}{' nt' if OPT['nto'] else ''}", w=vr(d, 4), r={OOFF})
        last_vm[u] = k
    def dsreads(u):
        slot = u % DEPTH
        ab = AF + (u % 2) * 16
        for ks in range(2):
            for tn in range(2):
                for j in range(2):
                    k = A.ds_read_tr(ab + (ks * 2 + tn) * 4 + 2 * j, BA + tn, slot * 4096 + (16 * ks + 8 * j) * 128)
        return k
    PF = Prof(A, 1)
    PF.stamp("start")
    for u in range(DEPTH): issue(u)
    A.wait_vm(last_vm[0])
    pend = dsreads(0)
    for u in range(NU):
        A.wait_ds(pend)
        if u + 1 < NU:
            A.wait_vm(last_vm[u + 1])
            pend = dsreads(u + 1)
        ab = AF + (u % 2) * 16
        ob = OF + (u % DEPTH) * 16
        for ks in range(2):
            for tn in range(2):
                for tm in range(2):
                    c = "zero" if (u == 0 and ks == 0) else None
                    A.mfma(ACC + (tn * 2 + tm) * 16, ab + (ks * 2 + tn) * 4, ob + (ks * 2 + tm) * 4, c)
        if u + DEPTH < NU: issue(u + DEPTH)
        PF.stamp(f"u{u}")
    A.wait_ds_all()
    A.barrier()
    V(f"v_add_u32 v{T1}, s{sWL}, v{RED}", w={T1}, r={RED})
    for q in range(16):
        A.ds_write_b128(T1, ACC + 4 * q, q * 1024)
    A.wait_ds_all()
    A.barrier()
    A.salu(f"s_lshl_b32 s6, s{sW}, 11")
    V(f"v_add_u32 v{T1}, s6, v{RED}", w={T1}, r={RED})
    V(f"v_add_u32 v{T2}, 0x10000, v{T1}", w={T2}, r={T1})
    R = OF
    for ww in range(8):
        for q in range(2):
            A.ds_read_b128(R + (ww * 2 + q) * 4, T1 if ww < 4 else T2, (ww % 4) * 16384 + q * 1024)
            if ww == 6 and q == 1: pass
        if ww == 5:
            A.wait_ds_all()
    A.wait_ds_all()
    for ww in range(1, 8):
        for i in range(8):
            V(f"v_add_f32 v{R+i}, v{R+i}, v{R+ww*8+i}", w={R + i}, r={R + i, R + ww * 8 + i})
    for q in range(4):
        V(f"v_cvt_pk_bf16_f32 v{AF+q}, v{R+2*q}, v{R+2*q+1}", w={AF + q}, r={R + 2 * q, R + 2 * q + 1})
    A.salu(f"s_lshr_b32 s6, s{sW}, 1")
    A.salu("s_and_b32 s7, s6, 1")
    A.salu("s_lshr_b32 s6, s6, 1")
    A.salu(f"s_lshl_b32 s3, s{sMT}, 6")
    A.salu("s_lshl_b32 s7, s7, 5")
    A.salu("s_add_u32 s3, s3, s7")
    A.salu("s_mul_i32 s3, s3, 2304")
    A.salu(f"s_mul_i32 s7, s{sBLK}, 1152")
    A.salu("s_add_u32 s3, s3, s7")
    A.salu(f"s_lshl_b32 s7, s{sNT}, 7")
    A.salu("s_add_u32 s3, s3, s7")
    A.salu("s_lshl_b32 s7, s6, 6")
    A.salu("s_add_u32 s3, s3, s7")
    A.salu(f"s_and_b32 s7, s{sW}, 1")
    A.salu("s_lshl_b32 s7, s7, 5")
    A.salu("s_add_u32 s3, s3, s7")
    V(f"v_and_b32 v{T1}, 31, v{L}", w={T1}, r={L})
    V(f"v_mul_u32_u24 v{T1}, 2304, v{T1}", w={T1}, r={T1})
    V(f"v_lshrrev_b32 v{T2}, 5, v{L}", w={T2}, r={L})
    V(f"v_lshl_add_u32 v{T1}, v{T2}, 3, v{T1}", w={T1}, r={T2, T1})
    A.vmem(f"buffer_store_dwordx2 {vname(AF,2)}, v{T1}, s[{SOUT}:{SOUT+3}], s3 offen", r=vr(AF, 2) | {T1})
    A.vmem(f"buffer_store_dwordx2 {vname(AF+2,2)}, v{T1}, s[{SOUT}:{SOUT+3}], s3 offen offset:16", r=vr(AF + 2, 2) | {T1})
    PF.dump(14, sW, 0)
    A.label("K2_END")
    A.salu("s_endpgm")

def kd(name, vgpr, sgpr):
    return f""".amdhsa_kernel {name}
  .amdhsa_next_free_vgpr {vgpr}
  .amdhsa_next_free_sgpr {sgpr}
  .amdhsa_accum_offset {(vgpr + 3) // 4 * 4}
  .amdhsa_group_segment_fixed_size 0
  .amdhsa_kernarg_size 104
  .amdhsa_user_sgpr_count 2
  .amdhsa_user_sgpr_kernarg_segment_ptr 1
  .amdhsa_system_sgpr_workgroup_id_x 1
.end_amdhsa_kernel
"""

def main():
    A = Asm()
    gen_k1(A)
    if not OPT["fuse"]: gen_k2(A)
    head = """; Two-launch GQA block pair: k1 = Q projection + attention (o -> ws), k2 = output projection.
; @launch kernel=k1_kernel grid=(256,1,1) block=(512,1,1) lds=163840
; @launch kernel=k2_kernel grid=(256,1,1) block=(512,1,1) lds=131072
.amdgcn_target "amdgcn-amd-amdhsa--gfx950"
.text
"""
    tail = '\n.section .rodata,"a"\n.p2align 6\n' + kd("k1_kernel", 256, 102 if OPT["prof"] else 64) + ".p2align 6\n" + kd("k2_kernel", 176, 102 if OPT["prof"] else 64)
    if OPT["fuse"]:
        head = """; GQA block pair in one launch: Q projection + attention, o handed over through ws, output projection.
; @launch kernel=k1_kernel grid=(256,1,1) block=(512,1,1) lds=163840
.amdgcn_target "amdgcn-amd-amdhsa--gfx950"
.text
"""
        tail = '\n.section .rodata,"a"\n.p2align 6\n' + kd("k1_kernel", 256, 102 if OPT["prof"] else 64)
    txt = head + A.text() + tail
    if "CODE_BYTES" in txt:
        import subprocess, re
        open("_p1.s", "w").write(txt.replace("CODE_BYTES", "0x12345"))
        subprocess.check_call(["clang", "-x", "assembler", "-target", "amdgcn-amd-amdhsa", "-mcpu=gfx950", "-c", "_p1.s", "-o", "_p1.o"])
        o = subprocess.check_output(["llvm-objdump", "-h", "_p1.o"]).decode()
        n = int(re.search(r"\.text\s+([0-9a-f]+)", o).group(1), 16)
        txt = txt.replace("CODE_BYTES", str(n))
    open(sys.argv[1], "w").write(txt)
    print("nops inserted:", A.nops_inserted, "lines:", len(A.out))

main()
```

```python
import sys, math
sys.path.insert(0, "gen")
from asmlib import *

NAME = "concat_heads__gqa_block_cached__gqa_block_cached__near_ridge"
OPT = dict(prio=1, prof=0, ntkv=1, ntw=0, ntx=0, ntwo=0, nto=0, ntst=0, nq=6, kvrate=1, l2pf=1, wopf=4, fat=1, bstep=1, dmagap=1, pflead=4, kv0=2, nstg=4, kvt=0, ld4=1, cpf=0, mid=0, kvt0=1, kvtr=1, roll=0, pfrate=1, kvs=0, rot=0, stag=0, qi=0, tlbw=0, ntt=0, fuse=0, slp=1, wox=0, xm=0, wo0=3, wo6=0, exp=0, ntf=0, pv=0, ost=0)
for a in sys.argv[2:]:
    k, v = a.split("="); OPT[k] = int(v)

O_BLK = 896 * 4096 * 2
SLOT = 16384
NSLOT = 10

def srd(A, d, base, nbytes):
    A.salu(f"s_mov_b32 s{d}, s{base}")
    A.salu(f"s_and_b32 s{d+1}, s{base+1}, 0xffff")
    A.salu(f"s_mov_b32 s{d+2}, {nbytes}")
    A.salu(f"s_mov_b32 s{d+3}, 0x00020000")

class Prof:
    def __init__(self, A, kidx):
        self.A = A; self.n = 0; self.names = []; self.kidx = kidx
    def stamp(self, name):
        A = self.A
        if OPT["prof"] == 3:
            sel = ["start", "q0", "a0", "pv7", "st", "go", "u15", "end"]
            if name == "start" or name == sel[OPT["pv"]]:
                A.salu("s_waitcnt lgkmcnt(0)")
                A.ds_done = A.nds
                A.salu("s_memrealtime s[96:97]")
                A.salu("s_waitcnt lgkmcnt(0)")
                if name == "start": A.salu("s_not_b32 s64, s96")
                if name == sel[OPT["pv"]]: A.salu(f"s_mov_b32 s65, s96")
            return
        if OPT["prof"] == 2:
            sel = ["start", "q0", "a0", "pv7", "st", "go", "u15", "end"]
            if name in sel:
                A.salu("s_waitcnt lgkmcnt(0)")
                A.ds_done = A.nds
                A.salu("s_memrealtime s[96:97]")
                A.salu("s_waitcnt lgkmcnt(0)")
                if name == "start": A.salu("s_not_b32 s96, s96")
                A.salu(f"s_mov_b32 s{64+sel.index(name)}, s96")
            return
        if not OPT["prof"]: return
        assert self.n < 30
        A.salu("s_waitcnt lgkmcnt(0)")
        A.ds_done = A.nds
        A.salu("s_memtime s[96:97]")
        A.salu("s_waitcnt lgkmcnt(0)")
        A.salu(f"s_mov_b32 s{64+self.n}, s96")
        if self.n == 0:
            A.salu("s_memrealtime s[98:99]")
            A.salu("s_waitcnt lgkmcnt(0)")
        self.n += 1; self.names.append(name)
    def dump(self, wsreg, sW, tmp):
        if not OPT["prof"]: return
        A = self.A
        self.stamp("end")
        if OPT["prof"] == 3:
            A.salu(f"s_cmp_eq_u32 s{sW}, 0")
            A.salu("s_cbranch_scc0 K1_END")
            A.salu("s_mov_b64 exec, -1")
            A.salu("s_nop 4")
            for i in range(2):
                A.salu(f"v_writelane_b32 v{tmp}, s{64+i}, {i}")
            A.salu(f"v_mbcnt_lo_u32_b32 v{tmp+1}, -1, 0")
            A.salu(f"v_lshlrev_b32 v{tmp+1}, 2, v{tmp+1}")
            A.salu(f"v_mov_b32 v{tmp+2}, 1")
            A.salu("s_mov_b64 exec, 3")
            A.salu("s_nop 4")
            A.salu(f"buffer_atomic_umax v{tmp}, v{tmp+1}, s[20:23], 0 offen offset:32 sc1")
            A.salu("s_waitcnt vmcnt(0)")
            A.salu("s_mov_b64 exec, 1")
            A.salu(f"buffer_atomic_add v{tmp+2}, v{tmp+1}, s[20:23], 0 offen offset:40 sc0 sc1")
            A.salu("s_waitcnt vmcnt(0)")
            A.salu(f"v_readfirstlane_b32 s66, v{tmp+2}")
            A.salu("s_cmp_eq_u32 s66, 251")
            A.salu("s_cbranch_scc0 K1_END")
            A.salu("s_mov_b64 exec, 3")
            A.salu(f"buffer_load_dword v{tmp}, v{tmp+1}, s[20:23], 0 offen offset:32 sc1")
            A.salu("s_waitcnt vmcnt(0)")
            A.salu(f"v_readlane_b32 s66, v{tmp}, 0")
            A.salu(f"v_readlane_b32 s67, v{tmp}, 1")
            A.salu("s_not_b32 s66, s66")
            A.salu("s_sub_u32 s66, s67, s66")
            A.salu("s_min_u32 s66, s66, 10000")
            A.salu("s_lshl_b32 s66, s66, 3")
            A.salu("s_memrealtime s[96:97]")
            A.salu("s_waitcnt lgkmcnt(0)")
            A.salu("s_mov_b32 s67, s96")
            A.label("K1_DLY")
            A.salu("s_memrealtime s[96:97]")
            A.salu("s_waitcnt lgkmcnt(0)")
            A.salu("s_sub_u32 s96, s96, s67")
            A.salu("s_cmp_lt_u32 s96, s66")
            A.salu("s_cbranch_scc1 K1_DLY")
            return
        if OPT["prof"] == 2:
            A.salu("s_mov_b64 exec, -1")
            A.salu("s_nop 4")
            for i in range(8):
                A.salu(f"v_writelane_b32 v{tmp}, s{64+i}, {i}")
            A.salu(f"v_mbcnt_lo_u32_b32 v{tmp+1}, -1, 0")
            A.salu(f"v_lshlrev_b32 v{tmp+1}, 2, v{tmp+1}")
            A.salu("s_mov_b64 exec, 0xff")
            A.salu("s_nop 4")
            A.salu(f"buffer_atomic_umax v{tmp}, v{tmp+1}, s[20:23], 0 offen offset:32 sc1")
            return
        A.salu("s_memrealtime s[96:97]")
        A.salu("s_waitcnt lgkmcnt(0)")
        A.salu("s_mov_b64 exec, -1")
        A.salu("s_nop 4")
        for i in range(self.n):
            A.salu(f"v_writelane_b32 v{tmp}, s{64+i}, {i}")
        A.salu("s_getreg_b32 s97, hwreg(HW_REG_HW_ID)")
        A.salu(f"v_writelane_b32 v{tmp}, s97, 29")
        A.salu(f"v_writelane_b32 v{tmp}, s98, 30")
        A.salu(f"v_writelane_b32 v{tmp}, s96, 31")
        A.salu(f"s_mov_b32 s60, s{wsreg}")
        A.salu(f"s_and_b32 s61, s{wsreg+1}, 0xffff")
        A.salu("s_mov_b32 s62, 0x10000000")
        A.salu("s_mov_b32 s63, 0x00020000")
        A.salu("s_lshl_b32 s96, s2, 3")
        A.salu(f"s_add_u32 s96, s96, s{sW}")
        A.salu("s_lshl_b32 s96, s96, 7")
        A.salu(f"s_add_u32 s96, s96, {255*1024*1024 + self.kidx*512*1024}")
        A.salu(f"v_mbcnt_lo_u32_b32 v{tmp+1}, -1, 0")
        A.salu(f"v_mbcnt_hi_u32_b32 v{tmp+1}, -1, v{tmp+1}")
        A.salu(f"v_lshlrev_b32 v{tmp+1}, 2, v{tmp+1}")
        A.salu("s_mov_b64 exec, 0xffffffff")
        A.salu("s_nop 4")
        A.salu(f"buffer_store_dword v{tmp}, v{tmp+1}, s[60:63], s96 offen")
        print("stamps k%d:" % self.kidx, self.names)

def gen_k1(A):
    V = A.valu
    T0, T1, T2, T3, T4, T5, T6, T7 = range(0, 8)
    XO, WO, KO = 8, 10, 12
    BW, BX, BK, BV = 14, 15, 16, 17
    LSUM, OST = 18, 19
    SUMA, SUMB, MX, MX2 = 20, 21, 22, 23
    AD = 24
    FR = 32
    NEGM = 48
    QB = 64
    S = 96
    O = 160
    P = 224
    sBLK, sKVH, sB, sW, sHL, sRT = 26, 27, 4, 5, 6, 7
    SX, SW_, SK, SV, SO = 28, 32, 36, 40, 44
    sWL, sXB, sWB, sKVB, sT, sOB = 48, 49, 50, 51, 52, 53
    sMASK, sTHR, sC = 54, 56, 57
    sW3, sWL4, sT2 = 58, 59, 55

    A.raw(f".p2align 8\n.globl k1_kernel\n.type k1_kernel,@function\nk1_kernel:\nK1_BEGIN:")
    A.salu("s_cmp_ge_u32 s2, 256")
    A.salu("s_cbranch_scc1 K1_END")
    A.salu("s_load_dwordx8 s[8:15], s[0:1], 0")
    A.salu("s_load_dwordx8 s[16:23], s[0:1], 40")
    A.salu("s_load_dwordx2 s[24:25], s[0:1], 96")
    if OPT["cpf"]:
        A.salu("s_getpc_b64 s[60:61]")
        A.salu("s_and_b32 s60, s60, 0xffffff00")
        A.salu("s_and_b32 s61, s61, 0xffff")
        A.salu("s_mov_b32 s62, CODE_BYTES")
        A.salu("s_mov_b32 s63, 0x00020000")
        V(f"v_lshlrev_b32 v{T7}, 7, v0", w={T7}, r={0})
        A.vmem(f"buffer_load_dword v{NEGM+15}, v{T7}, s[60:63], 0 offen", w={NEGM+15}, r={T7})
    A.salu("s_and_b32 s3, s2, 7")
    A.salu(f"s_lshr_b32 s{sB}, s2, 3")
    A.salu(f"s_lshr_b32 s{sBLK}, s3, 2")
    A.salu("s_and_b32 s3, s3, 3")
    A.salu("s_lshl_b32 s3, s3, 2")
    A.salu(f"s_and_b32 s{sKVH}, s{sB}, 3")
    A.salu(f"s_add_u32 s{sKVH}, s{sKVH}, s3")
    A.salu(f"s_lshr_b32 s{sB}, s{sB}, 2")
    V(f"v_lshrrev_b32 v{T1}, 6, v0", w={T1}, r={0})
    A._emit(I(f"v_readfirstlane_b32 s{sW}, v{T1}", "rdlane", r={T1}, sw={sW}))
    V(f"v_and_b32 v{T0}, 63, v0", w={T0}, r={0})
    if OPT["fat"]:
        A.salu(f"s_bfe_u32 s{sHL}, s{sW}, 0x10001", sr={sW})
        A.salu(f"s_and_b32 s{sRT}, s{sW}, 1", sr={sW})
        A.salu(f"s_lshl_b32 s{sRT}, s{sRT}, 1")
        A.salu(f"s_lshr_b32 s3, s{sW}, 2", sr={sW})
        A.salu(f"s_add_u32 s{sRT}, s{sRT}, s3")
    else:
        A.salu(f"s_lshr_b32 s{sHL}, s{sW}, 2", sr={sW})
        A.salu(f"s_and_b32 s{sRT}, s{sW}, 3", sr={sW})
    A.salu(f"s_lshl_b32 s{sWL}, s{sW}, 11", sr={sW})
    A.salu(f"s_and_b32 s{sW3}, s{sW}, {3 if OPT['ld4'] else 1}", sr={sW})
    A.salu(f"s_lshl_b32 s{sWL4}, s{sW3}, 11")
    A.salu(f"s_mul_i32 s{sXB}, s{sB}, 129024")
    A.salu(f"s_lshl_b32 s{sWB}, s{sKVH}, 9")
    A.salu(f"s_lshl_b32 s{sKVB}, s{sB}, 4")
    A.salu(f"s_add_u32 s{sKVB}, s{sKVB}, s{sKVH}")
    if OPT["rot"] == 1:
        A.salu(f"s_and_b32 s{sMASK}, s{sKVB}, 7")
    elif OPT["rot"] == 2:
        A.salu(f"s_add_u32 s{sMASK}, s{sKVH}, s{sB}")
        A.salu(f"s_and_b32 s{sMASK}, s{sMASK}, 7")
    elif OPT["rot"] == 3:
        A.salu(f"s_and_b32 s{sMASK}, s{sB}, 7")
    A.salu(f"s_lshl_b32 s{sMASK}, s{sMASK}, 14")
    A.salu(f"s_lshl_b32 s{sKVB}, s{sKVB}, 17")
    A.salu(f"s_mov_b32 s{sTHR}, 0x4b800000")
    c = math.log2(math.e) / math.sqrt(128.0)
    import struct
    cbits = struct.unpack("<I", struct.pack("<f", c))[0]
    A.salu(f"s_mov_b32 s{sC}, {cbits:#x}")
    L = T0
    for q in range(2):
        V(f"v_lshrrev_b32 v{T1}, 3, v{L}", w={T1}, r={L})
        A.salu(f"s_lshl_b32 s3, s{sW3}, 4")
        A.salu(f"s_add_u32 s3, s3, {8*q}")
        V(f"v_add_u32 v{T1}, s3, v{T1}", w={T1}, r={T1})
        V(f"v_mul_u32_u24 v{T1}, 1152, v{T1}", w={T1}, r={T1})
        V(f"v_and_b32 v{T2}, 7, v{L}", w={T2}, r={L})
        V(f"v_lshrrev_b32 v{T3}, 4, v{L}", w={T3}, r={L})
        V(f"v_xor_b32 v{T2}, v{T2}, v{T3}", w={T2}, r={T2, T3})
        if q: V(f"v_xor_b32 v{T2}, 4, v{T2}", w={T2}, r={T2})
        V(f"v_lshl_add_u32 v{XO+q}, v{T2}, 4, v{T1}", w={XO+q}, r={T2, T1})
        V(f"v_lshrrev_b32 v{T3}, 5, v{L}", w={T3}, r={L})
        A.salu(f"s_lshl_b32 s3, s{sW3}, 2")
        A.salu(f"s_add_u32 s3, s3, {2*q}")
        V(f"v_add_u32 v{T1}, s3, v{T3}", w={T1}, r={T3})
        V(f"v_lshlrev_b32 v{T1}, 13, v{T1}", w={T1}, r={T1})
        V(f"v_or_b32 v{T3}, {2*q}, v{T3}", w={T3}, r={T3})
        V(f"v_lshlrev_b32 v{T3}, 2, v{T3}", w={T3}, r={T3})
        V(f"v_and_b32 v{T2}, 31, v{L}", w={T2}, r={L})
        V(f"v_xor_b32 v{T2}, v{T2}, v{T3}", w={T2}, r={T2, T3})
        V(f"v_lshl_add_u32 v{WO+q}, v{T2}, 4, v{T1}", w={WO+q}, r={T2, T1})
        V(f"v_lshrrev_b32 v{T3}, 4, v{L}", w={T3}, r={L})
        A.salu(f"s_lshl_b32 s3, s{sW}, 3")
        A.salu(f"s_add_u32 s3, s3, {4*q}")
        V(f"v_add_u32 v{T1}, s3, v{T3}", w={T1}, r={T3})
        V(f"v_lshlrev_b32 v{T1}, 8, v{T1}", w={T1}, r={T1})
        A.salu(f"s_and_b32 s3, s{sW}, 1")
        A.salu(f"s_lshl_b32 s3, s3, 1")
        A.salu(f"s_or_b32 s3, s3, {q}")
        V(f"v_lshlrev_b32 v{T3}, 2, v{T3}", w={T3}, r={T3})
        V(f"v_or_b32 v{T3}, s3, v{T3}", w={T3}, r={T3})
        V(f"v_and_b32 v{T2}, 15, v{L}", w={T2}, r={L})
        V(f"v_xor_b32 v{T2}, v{T2}, v{T3}", w={T2}, r={T2, T3})
        V(f"v_lshl_add_u32 v{KO+q}, v{T2}, 4, v{T1}", w={KO+q}, r={T2, T1})
    V(f"v_lshrrev_b32 v{T1}, 5, v{L}", w={T1}, r={L})
    V(f"v_bfe_u32 v{T2}, v{L}, 4, 1", w={T2}, r={L})
    V(f"v_bfe_u32 v{T3}, v{L}, 2, 2", w={T3}, r={L})
    V(f"v_and_b32 v{T4}, 3, v{L}", w={T4}, r={L})
    V(f"v_and_b32 v{T5}, 31, v{L}", w={T5}, r={L})
    V(f"v_lshl_add_u32 v{T6}, v{T1}, 3, v{T3}", w={T6}, r={T1, T3})
    V(f"v_lshlrev_b32 v{T6}, 9, v{T6}", w={T6}, r={T6})
    V(f"v_lshlrev_b32 v{T7}, 2, v{T3}", w={T7}, r={T3})
    V(f"v_lshl_add_u32 v{T7}, v{T2}, 1, v{T7}", w={T7}, r={T2, T7})
    V(f"v_and_b32 v{BW}, 1, v{T4}", w={BW}, r={T4})
    V(f"v_add_u32 v{T7}, v{T7}, v{BW}", w={T7}, r={T7, BW})
    A.salu(f"s_lshl_b32 s3, s{sHL}, 4")
    V(f"v_add_u32 v{T7}, s3, v{T7}", w={T7}, r={T7})
    V(f"v_lshl_add_u32 v{T6}, v{T7}, 4, v{T6}", w={T6}, r={T7, T6})
    V(f"v_lshrrev_b32 v{T7}, 1, v{T4}", w={T7}, r={T4})
    V(f"v_lshl_add_u32 v{BW}, v{T7}, 3, v{T6}", w={BW}, r={T7, T6})
    A.salu(f"s_lshl_b32 s3, s{sRT}, 5")
    V(f"v_add_u32 v{T6}, s3, v{T5}", w={T6}, r={T5})
    V(f"v_lshlrev_b32 v{T6}, 7, v{T6}", w={T6}, r={T6})
    V(f"v_bfe_u32 v{T7}, v{T5}, 1, 3", w={T7}, r={T5})
    V(f"v_xor_b32 v{T7}, v{T7}, v{T1}", w={T7}, r={T7, T1})
    V(f"v_lshl_add_u32 v{BX}, v{T7}, 4, v{T6}", w={BX}, r={T7, T6})
    V(f"v_lshlrev_b32 v{T6}, 2, v{T4}", w={T6}, r={T4})
    V(f"v_or_b32 v{T6}, v{T6}, v{T3}", w={T6}, r={T6, T3})
    V(f"v_xor_b32 v{T6}, v{T6}, v{T1}", w={T6}, r={T6, T1})
    V(f"v_lshlrev_b32 v{T7}, 8, v{T5}", w={T7}, r={T5})
    V(f"v_lshl_add_u32 v{BK}, v{T6}, 4, v{T7}", w={BK}, r={T6, T7})
    V(f"v_lshl_add_u32 v{T6}, v{T1}, 2, v{T3}", w={T6}, r={T1, T3})
    V(f"v_lshlrev_b32 v{T6}, 8, v{T6}", w={T6}, r={T6})
    V(f"v_lshrrev_b32 v{T7}, 1, v{T4}", w={T7}, r={T4})
    V(f"v_lshl_add_u32 v{T7}, v{T2}, 1, v{T7}", w={T7}, r={T2, T7})
    V(f"v_xor_b32 v{T7}, v{T7}, v{T1}", w={T7}, r={T7, T1})
    V(f"v_lshl_or_b32 v{T7}, v{T3}, 2, v{T7}", w={T7}, r={T3, T7})
    V(f"v_lshl_add_u32 v{T6}, v{T7}, 4, v{T6}", w={T6}, r={T7, T6})
    V(f"v_and_b32 v{T7}, 1, v{T4}", w={T7}, r={T4})
    V(f"v_lshl_add_u32 v{BV}, v{T7}, 3, v{T6}", w={BV}, r={T7, T6})
    V(f"v_lshlrev_b32 v{T6}, 17, v{T2}", w={T6}, r={T2})
    V(f"v_lshl_add_u32 v{T6}, v{T1}, 8, v{T6}", w={T6}, r={T1, T6})
    V(f"v_and_b32 v{T7}, 15, v{L}", w={T7}, r={L})
    V(f"v_lshl_add_u32 v{OST}, v{T7}, 4, v{T6}", w={OST}, r={T7, T6})
    V(f"v_mov_b32 v{LSUM}, 0", w={LSUM})
    A.waitcnt(lgkm=0)
    A.salu(f"s_cmp_eq_u32 s{sBLK}, 0")
    for k in range(8):
        A.salu(f"s_cselect_b32 s{8+k}, s{8+k}, s{16+k}")
    srd(A, SX, 8, 8 * 112 * 576 * 2)
    srd(A, SK, 10, 8 * 16 * 512 * 128 * 2)
    srd(A, SV, 12, 8 * 16 * 512 * 128 * 2)
    srd(A, SW_, 14, 576 * 4096 * 2)
    srd(A, SO, 24, 2 * O_BLK)
    A.salu(f"s_mul_i32 s{sOB}, s{sBLK}, {O_BLK}")
    A.salu(f"s_mul_i32 s3, s{sB}, 7")
    A.salu(f"s_lshl_b32 s{sT}, s{sRT}, 1")
    A.salu(f"s_add_u32 s3, s3, s{sT}")
    A.salu(f"s_lshl_b32 s3, s3, 17")
    A.salu(f"s_add_u32 s{sOB}, s{sOB}, s3")
    A.salu(f"s_lshl_b32 s3, s{sKVH}, 1")
    A.salu(f"s_add_u32 s3, s3, s{sHL}")
    A.salu(f"s_lshl_b32 s3, s3, 12")
    A.salu(f"s_add_u32 s{sOB}, s{sOB}, s3")
    if OPT["prio"]:
        A.salu(f"s_cmp_ge_u32 s{sW}, 4")
        A.salu("s_cbranch_scc0 K1_PRIO_DONE" if OPT["prio"] == 1 else "s_cbranch_scc1 K1_PRIO_DONE")
        A.salu("s_setprio 1")
        A.label("K1_PRIO_DONE")

    NTT = {0: "", 1: " nt", 2: " sc1", 3: " sc0 sc1", 4: " sc1 nt"}[OPT["ntt"]]
    qunits = []
    for s_ in range(9):
        qunits += [("X", s_), ("W", 2 * s_), ("W", 2 * s_ + 1)]
    kvunits = [("K", 0)]
    for h in range(7):
        kvunits += [("K", h + 1), ("V", h)]
    kvunits += [("V", 7)]
    units = qunits + kvunits
    UK = {idx: 27 + i for i, (t_, idx) in enumerate(kvunits) if t_ == "K"}
    UV = {idx: 27 + i for i, (t_, idx) in enumerate(kvunits) if t_ == "V"}
    stage_units = [list(range(3 * s_, 3 * s_ + 3)) for s_ in range(9)]
    unit_last_vm = {}
    unit_slot = {}
    free = list(range(NSLOT))
    nq = [0]; nkv = [0]; xch = []
    KQ = FR
    DV = FR + 2
    NSTG = OPT["nstg"]
    STG = [S + 32, O, O + 32, P][:NSTG]

    def unit_info(u):
        typ, idx = units[u]
        if typ == "X": return sXB, idx * 128, SX, XO, 2 * 16 * 1152, "ntx"
        if typ == "W": return sWB, idx * 32 * 8192, SW_, WO, 2 * 4 * 8192, "ntw"
        if typ == "K": return sKVB, idx * 64 * 256, SK, KO, 4096, "ntkv"
        return sKVB, idx * 64 * 256, SV, KO, 4096, "ntkv"

    def sbase(base, const):
        if base == sKVB and OPT["rot"]:
            A.salu(f"s_add_u32 s{sT}, s{sMASK}, {const}")
            A.salu(f"s_and_b32 s{sT}, s{sT}, 0x1ffff")
            A.salu(f"s_or_b32 s{sT}, s{sT}, s{sKVB}")
        else:
            A.salu(f"s_add_u32 s{sT}, s{base}, {const}")

    def issue_unit_q(u, stage_reg=None):
        if stage_reg is None:
            slot = free.pop(0)
            unit_slot[u] = slot
        base, const, sr_, vo, delta, nto = unit_info(u)
        if vo == KO: vo = KQ
        nt = " nt" if OPT[nto] else ""
        for hv in range(4):
            A.salu(f"s_add_u32 s{sT}, s{base}, {const + delta * hv}")
            for q in range(2):
                if stage_reg is None:
                    A.salu(f"s_add_u32 m0, s{sWL4}, {slot * SLOT + hv * 4096 + q * 1024}", m0w=True)
                    k = A.vmem(f"buffer_load_dwordx4 v{vo+q}, s[{sr_}:{sr_+3}], s{sT} offen{nt} lds", kind="dma", r={vo + q}, m0r=True)
                else:
                    d = stage_reg + (hv * 2 + q) * 4
                    k = A.vmem(f"buffer_load_dwordx4 {vname(d,4)}, v{vo+q}, s[{sr_}:{sr_+3}], s{sT} offen{nt}", w=vr(d, 4), r={vo + q})
        unit_last_vm[u] = k

    def issue_unit_4(u):
        slot = free.pop(0)
        unit_slot[u] = slot
        base, const, sr_, vo, delta, nto = unit_info(u)
        nt = " nt" if OPT[nto] else ""
        sbase(base, const)
        if vo != KO: A.salu(f"s_add_u32 s{sT2}, s{base}, {const + 2 * delta}")
        for hv in range(2):
            for q in range(2):
                A.salu(f"s_add_u32 m0, s{sWL4}, {slot * SLOT + hv * 8192 + q * 1024}", m0w=True)
                if vo == KO:
                    va = (KQ if hv == 0 else KO) + q; so = sT
                else:
                    va = vo + q; so = sT if hv == 0 else sT2
                k = A.vmem(f"buffer_load_dwordx4 v{va}, s[{sr_}:{sr_+3}], s{so} offen{nt} lds", kind="dma", r={va}, m0r=True)
        unit_last_vm[u] = k

    def flood():
        if not OPT["l2pf"]: return
        V(f"v_lshrrev_b32 v{T1}, 2, v{L}", w={T1}, r={L})
        V(f"v_lshlrev_b32 v{T1}, 13, v{T1}", w={T1}, r={T1})
        V(f"v_and_b32 v{T2}, 3, v{L}", w={T2}, r={L})
        V(f"v_lshl_add_u32 v{T1}, v{T2}, 7, v{T1}", w={T1}, r={T2, T1})
        A.salu(f"s_lshl_b32 s3, s{sW}, 4")
        A.salu(f"s_min_u32 s3, s3, 56")
        A.salu(f"s_mul_i32 s{sT}, s{sB}, 72")
        A.salu(f"s_add_u32 s3, s3, s{sT}")
        A.salu(f"s_lshl_b32 s3, s3, 13")
        A.salu(f"s_add_u32 s3, s3, s{sWB}")
        A.vmem(f"buffer_load_dword v{T4}, v{T1}, s[{SW_}:{SW_+3}], s3 offen{NTT}", w={T4}, r={T1})
        V(f"v_lshlrev_b32 v{T2}, 7, v{L}", w={T2}, r={L})
        A.salu(f"s_and_b32 s3, s{sKVH}, 3")
        A.salu(f"s_mul_i32 s3, s3, 32256")
        A.salu(f"s_and_b32 s{sT}, s{sW}, 3")
        A.salu(f"s_lshl_b32 s{sT}, s{sT}, 13")
        A.salu(f"s_add_u32 s3, s3, s{sT}")
        A.salu(f"s_add_u32 s3, s3, s{sXB}")
        A.vmem(f"buffer_load_dword v{T5}, v{T2}, s[{SX}:{SX+3}], s3 offen{NTT}", w={T5}, r={T2})

    def dump_unit(u, stage_reg):
        slot = free.pop(0)
        unit_slot[u] = slot
        V(f"v_add_u32 v{DV+1}, {slot * SLOT}, v{DV}", w={DV + 1}, r={DV})
        for hv in range(4):
            for q in range(2):
                A.ds_write_b128(DV + 1, stage_reg + (hv * 2 + q) * 4, hv * 4096 + q * 1024)

    def dma_items(u):
        slot = free.pop(0)
        unit_slot[u] = slot
        base, const, sr_, vo, delta, nto = unit_info(u)
        nt = " nt" if OPT[nto] else ""
        def mk(q):
            def f():
                sbase(base, const)
                A.salu(f"s_add_u32 m0, s{sWL}, {slot * SLOT + q * 1024}", m0w=True)
                k = A.vmem(f"buffer_load_dwordx4 v{vo+q}, s[{sr_}:{sr_+3}], s{sT} offen{nt} lds", kind="dma", r={vo + q}, m0r=True)
                unit_last_vm[u] = k
            return f
        if not OPT["stag"]: return [mk(0), mk(1)]
        G = 8 // OPT["stag"]
        def cond(f, g):
            def h():
                lab = f"K1_D{nlab[0]}"; nlab[0] += 1
                A.salu(f"s_cmp_eq_u32 s{sT2}, {g}")
                A.salu(f"s_cbranch_scc0 {lab}")
                n0 = len(A.out)
                f()
                for o in A.out[n0:]: o.ws = 0
                A.label(lab)
                if g < G - 1: A.nvm -= 1
            return h
        return [cond(mk(q), g) for q in range(2) for g in range(G)]
    nlab = [0]

    NQ = OPT["nq"]
    PF = Prof(A, 0)
    PF.stamp("start")

    def addr_items(dst, base, slot, xors):
        it = [lambda: V(f"v_add_u32 v{dst[0]}, {slot * SLOT}, v{base}", w={dst[0]}, r={base})]
        for i, x in enumerate(xors):
            if i == 0: continue
            it.append(lambda i=i, x=x: V(f"v_xor_b32 v{dst[i]}, {x}, v{dst[0]}", w={dst[i]}, r={dst[0]}))
        return it

    A.salu(f"s_cmp_lt_u32 s{sW}, 4")
    A.salu("s_cbranch_scc1 K1_FAT")
    pf0 = PF.n
    staged = []
    if OPT["ld4"]:
        for q in range(2):
            V(f"v_subrev_u32 v{KQ+q}, {4*8*256}, v{KO+q}", w={KQ + q}, r={KO + q})
        NL = NSLOT - NQ
        def refill(s):
            done_q = 3 * max(s, 0)
            while nq[0] < 27 and nq[0] - done_q < NQ and free:
                issue_unit_4(nq[0]); nq[0] += 1
        def kv_issue():
            if nkv[0] < NL:
                if free:
                    issue_unit_4(27 + nkv[0]); nkv[0] += 1
        LW, LX = FR + 4, FR + 5
        nroll = [NQ // 3]
        def lroll(n):
            n = min(n, 9 - nroll[0])
            if n <= 0 or OPT["roll"] != 2: return
            a = nroll[0]; nroll[0] += n
            if n < 8:
                m = (1 << (8 * n)) - 1
                A.salu(f"s_mov_b32 exec_lo, {m & 0xffffffff}")
                A.salu(f"s_mov_b32 exec_hi, {m >> 32}")
            A.salu(f"s_add_u32 s3, s8, {a * 64 * 8192}")
            A.vmem(f"buffer_load_dword v{FR+6}, v{LW}, s[{SW_}:{SW_+3}], s3 offen{NTT}", w={FR + 6}, r={LW})
            A.vmem(f"buffer_load_dword v{FR+7}, v{LX}, s[{SX}:{SX+3}], s9 offen offset:{a * 128}{NTT}", w={FR + 7}, r={LX})
            if n < 8: A.salu("s_mov_b64 exec, -1")
        refill(-1)
        for _ in range(OPT["kv0"]): kv_issue()
        if not OPT["roll"]: flood()
        if OPT["roll"] == 2:
            V(f"v_bfe_u32 v{T1}, v{L}, 2, 1", w={T1}, r={L})
            A.salu(f"s_lshl_b32 s3, s{sW3}, 1")
            V(f"v_add_u32 v{T1}, s3, v{T1}", w={T1}, r={T1})
            V(f"v_lshrrev_b32 v{T3}, 3, v{L}", w={T3}, r={L})
            V(f"v_lshl_add_u32 v{T1}, v{T3}, 6, v{T1}", w={T1}, r={T3, T1})
            V(f"v_lshlrev_b32 v{T1}, 13, v{T1}", w={T1}, r={T1})
            V(f"v_and_b32 v{T2}, 3, v{L}", w={T2}, r={L})
            V(f"v_lshl_add_u32 v{LW}, v{T2}, 7, v{T1}", w={LW}, r={T2, T1})
            V(f"v_and_b32 v{T1}, 7, v{L}", w={T1}, r={L})
            V(f"v_min_u32 v{T1}, 6, v{T1}", w={T1}, r={T1})
            A.salu(f"s_mul_i32 s3, s{sW3}, 7")
            V(f"v_add_u32 v{T1}, s3, v{T1}", w={T1}, r={T1})
            V(f"v_mul_u32_u24 v{T1}, 1152, v{T1}", w={T1}, r={T1})
            V(f"v_lshl_add_u32 v{LX}, v{T3}, 7, v{T1}", w={LX}, r={T3, T1})
            A.salu(f"s_lshl_b32 s8, s{sB}, 16")
            A.salu(f"s_add_u32 s8, s8, s{sWB}")
            A.salu(f"s_and_b32 s9, s{sKVH}, 3")
            A.salu(f"s_mul_i32 s9, s9, {28*1152}")
            A.salu(f"s_add_u32 s9, s9, s{sXB}")
            lroll(OPT["pflead"] - nroll[0])
        for s in range(9):
            A.wait_vm(max(unit_last_vm[u] for u in stage_units[s]))
            A.barrier()
            PF.stamp(f"q{s}")
            if s > 0:
                for u in stage_units[s - 1]: free.append(unit_slot[u])
            refill(s)
            lroll(OPT["pfrate"])
            if s == 8:
                xch.append(free.pop(0)); xch.append(free.pop(0))
            elif s >= OPT["kvs"]:
                for _ in range(OPT["kvrate"]): kv_issue()
            if nq[0] == 27 and nkv[0] >= NL:
                while free:
                    issue_unit_4(27 + nkv[0]); nkv[0] += 1
        A.salu("s_branch K1_ATT")
        ldr_vm = (A.nvm, A.vm_done)
    else:
        A.salu(f"s_cmp_ge_u32 s{sW}, 6")
        A.salu("s_cbranch_scc1 K1_KVL")
        pf0 = PF.n
        kvslots = [free.pop() for _ in range(NSLOT - NQ)]
        def refill(s):
            done_q = 3 * max(s, 0)
            while nq[0] < 27 and nq[0] - done_q < NQ and free:
                issue_unit_q(nq[0]); nq[0] += 1
        refill(-1)
        for s in range(9):
            A.wait_vm(max(unit_last_vm[u] for u in stage_units[s]))
            A.barrier()
            PF.stamp(f"q{s}")
            if s > 0:
                for u in stage_units[s - 1]: free.append(unit_slot[u])
            refill(s)
            if s == 8:
                xch.append(free.pop(0)); xch.append(free.pop(0))
        A.waitcnt(vm=0)
        A.vm_done = A.nvm
        A.salu("s_branch K1_ATT")
        A.label("K1_KVL")
        A.win = []
        A.salu("s_nop 4")
        PF.n = pf0; PF.names = PF.names[:pf0]
        for q in range(2):
            V(f"v_subrev_u32 v{KQ+q}, {6*8*256}, v{KO+q}", w={KQ + q}, r={KO + q})
        V(f"v_lshlrev_b32 v{DV}, 4, v{L}", w={DV}, r={L})
        V(f"v_add_u32 v{DV}, s{sWL4}, v{DV}", w={DV}, r={DV})
        late_free = free[:]; free[:] = kvslots
        NL = len(kvslots)
        TV = FR + 4
        V(f"v_lshlrev_b32 v{TV}, 7, v{L}", w={TV}, r={L})
        A.salu(f"s_lshl_b32 s3, s{sW3}, 13")
        V(f"v_add_u32 v{TV}, s3, v{TV}", w={TV}, r={TV})
        NT = OPT["kvt"]
        ntouch = [0]
        def kv_issue():
            i = nkv[0]
            if i < NL: issue_unit_q(27 + i)
            elif i < NL + NSTG: issue_unit_q(27 + i, STG[i - NL])
            else:
                if ntouch[0] < NT:
                    u = 27 + NL + NSTG + ntouch[0]
                    base, const, sr_, vo, delta, nto = unit_info(u)
                    A.salu(f"s_add_u32 s{sT}, s{base}, {const}")
                    A.vmem(f"buffer_load_dword v{TV+1}, v{TV}, s[{sr_}:{sr_+3}], s{sT} offen", w={TV + 1}, r={TV})
                    ntouch[0] += 1
                return
            nkv[0] += 1
        for _ in range(OPT["kv0"]): kv_issue()
        for s in range(9):
            A.barrier()
            PF.stamp(f"q{s}")
            for _ in range(OPT["kvrate"]): kv_issue()
        assert nkv[0] == NL + NSTG
        free[:] = late_free
        staged = [(27 + NL + i, STG[i]) for i in range(NSTG)]
        while staged and free:
            u, r_ = staged.pop(0)
            A.wait_vm(unit_last_vm[u])
            dump_unit(u, r_)
        A.waitcnt(vm=0)
        A.vm_done = A.nvm
        A.wait_ds_all()
        A.salu("s_branch K1_ATT")
    A.label("K1_FAT")
    A.win = []
    A.salu("s_nop 4")
    PF.n = pf0; PF.names = PF.names[:pf0]
    TW, TX = XO, XO + 1
    if OPT["roll"] == 2:
        pass
    elif OPT["ld4"] and not OPT["roll"]:
        V(f"v_lshlrev_b32 v{TW}, 7, v{L}", w={TW}, r={L})
        A.salu(f"s_lshl_b32 s3, s{sW}, 13")
        V(f"v_add_u32 v{TW}, s3, v{TW}", w={TW}, r={TW})
    else:
        TW, TX = XO, XO + 1
        V(f"v_bfe_u32 v{T1}, v{L}, 2, 1", w={T1}, r={L})
        A.salu(f"s_lshl_b32 s3, s{sW}, 1")
        V(f"v_add_u32 v{T1}, s3, v{T1}", w={T1}, r={T1})
        V(f"v_lshlrev_b32 v{T1}, 13, v{T1}", w={T1}, r={T1})
        V(f"v_and_b32 v{T2}, 3, v{L}", w={T2}, r={L})
        V(f"v_lshl_add_u32 v{TW}, v{T2}, 7, v{T1}", w={TW}, r={T2, T1})
        V(f"v_and_b32 v{T1}, 7, v{L}", w={T1}, r={L})
        V(f"v_min_u32 v{T1}, 6, v{T1}", w={T1}, r={T1})
        A.salu(f"s_mul_i32 s3, s{sW}, 7")
        V(f"v_add_u32 v{T1}, s3, v{T1}", w={T1}, r={T1})
        V(f"v_mul_u32_u24 v{TX}, 1152, v{T1}", w={TX}, r={T1})
        A.salu(f"s_lshl_b32 s8, s{sB}, 16")
        A.salu(f"s_add_u32 s8, s8, s{sWB}")
        A.salu(f"s_and_b32 s9, s{sKVH}, 3")
        A.salu(f"s_mul_i32 s9, s9, {28*1152}")
        A.salu(f"s_add_u32 s9, s9, s{sXB}")
    def touch(s_):
        if not OPT["l2pf"] or s_ > 8: return
        A.salu(f"s_add_u32 s3, s8, {s_ * 64 * 8192}")
        A.vmem(f"buffer_load_dword v{T4}, v{TW}, s[{SW_}:{SW_+3}], s3 offen{NTT}", w={T4}, r={TW})
        A.vmem(f"buffer_load_dword v{T5}, v{TX}, s[{SX}:{SX+3}], s9 offen offset:{s_ * 128}{NTT}", w={T5}, r={TX})
    if OPT["roll"] == 2:
        touch = lambda s_: None
    elif OPT["roll"]:
        touch1 = touch
        nroll = [2]
        def roll(n):
            for _ in range(n):
                touch1(nroll[0]); nroll[0] += 1
        roll(OPT["pflead"] - 2)
        touch = lambda s_: roll(OPT["pfrate"])
    elif OPT["ld4"]:
        flood()
        ntouch = [0]
        def touch(s_):
            s_ -= OPT["pflead"]
            if s_ < OPT["kvt0"]: return
            for _ in range(OPT["kvtr"]):
                if ntouch[0] >= OPT["kvt"]: return
                ua = 27 + NL + 1 + ntouch[0]
                ia = unit_info(ua); ib = unit_info(ua + 1)
                A.salu(f"s_cmp_lt_u32 s{sW}, 2")
                A.salu(f"s_mov_b32 s3, {ib[1] - 16384}")
                A.salu(f"s_cselect_b32 s3, {ia[1]}, s3")
                A.salu(f"s_cselect_b32 s60, s{ia[2]}, s{ib[2]}")
                A.salu(f"s_cselect_b32 s61, s{ia[2]+1}, s{ib[2]+1}")
                A.salu(f"s_mov_b32 s62, s{ia[2]+2}")
                A.salu(f"s_mov_b32 s63, s{ia[2]+3}")
                A.salu(f"s_add_u32 s3, s3, s{sKVB}")
                A.vmem(f"buffer_load_dword v{T4}, v{TW}, s[60:63], s3 offen", w={T4}, r={TW})
                ntouch[0] += 2
    if not OPT["ld4"]:
        for s_ in range(2, OPT["pflead"]): touch(s_)
    if OPT["tlbw"]:
        A.salu("s_load_dwordx2 s[16:17], s[0:1], 32")
        A.salu("s_load_dwordx2 s[18:19], s[0:1], 72")
        A.salu("s_load_dwordx2 s[20:21], s[0:1], 80")
        D = NEGM
        V(f"v_lshlrev_b32 v{T1}, 12, v{L}", w={T1}, r={L})
        V(f"v_and_b32 v{T1}, 0x1ffff, v{T1}", w={T1}, r={T1})
        A.vmem(f"buffer_load_dword v{D}, v{T1}, s[{SV}:{SV+3}], s{sKVB} offen", w={D}, r={T1})
        if OPT["tlbw"] > 1:
            A.vmem(f"buffer_load_dword v{D+1}, v{T1}, s[{SK}:{SK+3}], s{sKVB} offen", w={D + 1}, r={T1})
        V(f"v_min_u32 v{T2}, 6, v{L}", w={T2}, r={L})
        V(f"v_lshlrev_b32 v{T2}, 17, v{T2}", w={T2}, r={T2})
        A.salu(f"s_mul_i32 s3, s{sBLK}, {O_BLK}")
        A.salu(f"s_mul_i32 s{sT}, s{sB}, {7*131072}")
        A.salu(f"s_add_u32 s3, s3, s{sT}")
        if OPT["fuse"]:
            A.salu(f"s_lshl_b32 s{sT}, s{sKVH}, 13")
            A.salu(f"s_add_u32 s3, s3, s{sT}")
            A.vmem(f"buffer_store_dword v{T2}, v{T2}, s[{SO}:{SO+3}], s3 offen sc1", r={T2}, storedata={T2})
        else:
            A.vmem(f"buffer_load_dword v{D+2}, v{T2}, s[{SO}:{SO+3}], s3 offen", w={D + 2}, r={T2})
        V(f"v_lshlrev_b32 v{T3}, 16, v{L}", w={T3}, r={L})
        A.salu("s_waitcnt lgkmcnt(0)")
        A.salu(f"s_cmp_eq_u32 s{sBLK}, 0")
        A.salu("s_cselect_b32 s60, s16, s18")
        A.salu("s_cselect_b32 s61, s17, s19")
        A.salu("s_and_b32 s61, s61, 0xffff")
        A.salu(f"s_mov_b32 s62, {4096*576*2}")
        A.salu("s_mov_b32 s63, 0x00020000")
        A.salu(f"s_mov_b32 s3, {8*65536}")
        A.vmem(f"buffer_load_dword v{D+3}, v{T3}, s[60:63], 0 offen", w={D + 3}, r={T3})
        A.vmem(f"buffer_load_dword v{D+4}, v{T3}, s[60:63], s3 offen", w={D + 4}, r={T3})
        A.salu("s_mov_b32 s16, s20")
        A.salu("s_and_b32 s17, s21, 0xffff")
        A.salu(f"s_mov_b32 s18, {896*1152*2}")
        A.salu("s_mov_b32 s19, 0x00020000")
        A.vmem(f"buffer_load_dword v{D+5}, v{T3}, s[16:19], 0 offen", w={D + 5}, r={T3})
    QA = [S, O]
    FBW = [P, QB]; FBX = [P + 16, QB + 16]
    AW = [FR, FR + 4]; AX = FR + 8
    def qaddr(s):
        u0 = 3 * s
        return (addr_items([AX + i for i in range(4)], BX, unit_slot[u0], [0, 32, 64, 96]) +
                addr_items([AW[0] + i for i in range(4)], BW, unit_slot[u0 + 1], [0, 64, 128, 192]) +
                addr_items([AW[1] + i for i in range(4)], BW, unit_slot[u0 + 2], [0, 64, 128, 192]))
    def qread_items(ks):
        it = [lambda: A.ds_read_b128(FBX[ks % 2], AX + ks), lambda: A.ds_read_b128(FBX[ks % 2] + 4, AX + ks, 4096)]
        for t in range(4):
            for j in range(2):
                it.append(lambda t=t, j=j: A.ds_read_tr(FBW[ks % 2] + 4 * t + 2 * j, AW[ks // 2] + t, ((ks % 2) * 16 + 4 * j) * 512))
        return it
    def qreads(ks):
        for it in qread_items(ks): last = it()
        return last
    for it in qaddr(0): it()
    A.barrier()
    PF.stamp("q0")
    pend = qreads(0)
    touch(OPT["pflead"])
    QI = OPT["qi"]
    for s in range(9):
        for ks in range(4):
            A.wait_ds(pend)
            rq = []
            if ks < 3:
                if QI: rq = qread_items(ks + 1)
                else: pend = qreads(ks + 1)
            nxt = qaddr(s + 1) if (ks == 3 and s < 8) else []
            m = 0
            for t in range(4):
                for r2 in range(2):
                    A.mfma(QA[r2] + 16 * t, FBW[ks % 2] + 4 * t, FBX[ks % 2] + 4 * r2, "zero" if (s == 0 and ks == 0) else None)
                    if nxt:
                        if m < 2:
                            for it in nxt[6 * m: 6 * m + 6]: it()
                        if m == 1:
                            A.barrier()
                            PF.stamp(f"q{s+1}")
                            if QI: rq = qread_items(0)
                            else: pend = qreads(0)
                        if m == 3: touch(s + 1 + OPT["pflead"])
                    for _ in range(QI):
                        if rq: pend = rq.pop(0)()
                    m += 1
            assert not rq
    A.salu(f"s_lshr_b32 s3, s{sW}, 1")
    A.salu(f"s_cmp_eq_u32 s3, 0")
    A.salu(f"s_cselect_b32 s3, {xch[0]}, {xch[1]}")
    A.salu(f"s_lshl_b32 s3, s3, 14")
    A.salu(f"s_and_b32 s{sT}, s{sW}, 1")
    A.salu(f"s_lshl_b32 s{sT}, s{sT}, 13")
    A.salu(f"s_add_u32 s3, s3, s{sT}")
    V(f"v_lshlrev_b32 v{T6}, 4, v{L}", w={T6}, r={L})
    V(f"v_add_u32 v{T6}, s3, v{T6}", w={T6}, r={T6})
    for i in range(64):
        V(f"v_mul_f32 v{O+i}, s{sC}, v{O+i}", w={O + i}, r={O + i})
    for q in range(32):
        V(f"v_cvt_pk_bf16_f32 v{P+q}, v{O+2*q}, v{O+2*q+1}", w={P + q}, r={O + 2 * q, O + 2 * q + 1})
        if q % 4 == 3:
            A.ds_write_b128(T6, P + q - 3, (q // 4) * 1024)
    for i in range(64):
        V(f"v_mul_f32 v{S+i}, s{sC}, v{S+i}", w={S + i}, r={S + i})
    for q in range(32):
        V(f"v_cvt_pk_bf16_f32 v{QB+q}, v{S+2*q}, v{S+2*q+1}", w={QB + q}, r={S + 2 * q, S + 2 * q + 1})
    A.wait_ds_all()
    A.waitcnt(vm=0)
    A.vm_done = A.nvm
    if OPT["ld4"]:
        A.nvm, A.vm_done = ldr_vm
    A.label("K1_ATT")
    A.win = []
    A.salu("s_nop 4")
    if OPT["stag"]:
        A.salu(f"s_lshr_b32 s{sT2}, s{sW}, {OPT['stag'] - 1}")

    SETA = [AD + i for i in range(8)]
    SETB = [XO, XO + 1, WO, WO + 1, BW, BX, T4, T5]
    kx = [32 * ks for ks in range(8)]
    vx = [(t << 6) ^ (32 * jj) for t in range(4) for jj in range(2)]
    SB = lambda h: S + 32 * (h % 2)
    PB = lambda h: P + 16 * (h % 2)
    phases = [("qk", 0)] + [x for h in range(7) for x in (("qk", h + 1), ("pv", h))] + [("pv", 7)]
    pset = {}
    for ph in phases:
        pset[ph] = SETA if ph[0] == "qk" else SETB
    pset[("qk", 0)] = SETB; pset[("pv", 7)] = SETA
    punit = lambda ph: UK[ph[1]] if ph[0] == "qk" else UV[ph[1]]
    def paddr(ph):
        u = punit(ph)
        return addr_items(pset[ph], BK if ph[0] == "qk" else BV, unit_slot[u], kx if ph[0] == "qk" else vx)
    mf = [(ph, i) for ph in phases for i in range(16)]
    syncJ = list(range(0, 6, OPT["bstep"]))
    if OPT["fuse"]:
        syncJ.append(6)
        K2 = K2Fused(A, sW, SO, QB)
    sync_pos = [phases.index(("pv", j)) * 16 + 12 for j in syncJ]
    first_read = {}
    for n, (ph, i) in enumerate(mf):
        first_read.setdefault(punit(ph), max(n - 4, -1))
    last_read = {}
    for n, (ph, i) in enumerate(mf):
        last_read[punit(ph)] = n - 4
    def publish_set(pos_from, pos_to):
        return [u for u, fr in first_read.items() if pos_from <= fr < pos_to]
    freed = set()
    dmaq = []
    def refill_att():
        while nkv[0] < 16 and free:
            dmaq.extend(dma_items(27 + nkv[0])); nkv[0] += 1

    pub = publish_set(-1, sync_pos[0])
    A.wait_vm(max(unit_last_vm[u] for u in pub))
    A.barrier()
    PF.stamp("a0")
    for u in stage_units[8]: free.append(unit_slot[u])
    A.salu(f"s_cmp_lt_u32 s{sW}, 4")
    A.salu(f"s_cbranch_scc1 K1_QGOT")
    if staged:
        A.salu(f"s_cmp_lt_u32 s{sW}, 6")
        A.salu(f"s_cbranch_scc1 K1_NODUMP")
        while staged:
            u, r_ = staged.pop(0)
            dump_unit(u, r_)
        A.label("K1_NODUMP")
    refill_att()
    A.salu(f"s_bfe_u32 s3, s{sW}, 0x10001")
    A.salu(f"s_cmp_eq_u32 s3, 0")
    A.salu(f"s_cselect_b32 s3, {xch[0]}, {xch[1]}")
    A.salu(f"s_lshl_b32 s3, s3, 14")
    A.salu(f"s_and_b32 s{sT}, s{sW}, 1")
    A.salu(f"s_lshl_b32 s{sT}, s{sT}, 13")
    A.salu(f"s_add_u32 s3, s3, s{sT}")
    V(f"v_lshlrev_b32 v{T6}, 4, v{L}", w={T6}, r={L})
    V(f"v_add_u32 v{T6}, s3, v{T6}", w={T6}, r={T6})
    for q in range(8):
        A.ds_read_b128(QB + 4 * q, T6, q * 1024)
    A.wait_ds_all()
    A.label("K1_QGOT")
    A.salu("s_nop 1")
    for it in paddr(("qk", 0)) + paddr(("qk", 1)): it()

    TT = [T0, T1, T2, T3]
    def max_items(regs, first, final):
        it = []
        r = list(regs)
        if first:
            a = r[:3]; b = r[3:6]; r = r[6:]
            it.append(lambda a=a: V(f"v_max3_f32 v{MX}, v{a[0]}, v{a[1]}, v{a[2]}", w={MX}, r=set(a)))
            it.append(lambda b=b: V(f"v_max3_f32 v{MX2}, v{b[0]}, v{b[1]}, v{b[2]}", w={MX2}, r=set(b)))
        k = 0
        while r:
            a = r[:2]; r = r[2:]
            d = MX if k % 2 == 0 else MX2
            it.append(lambda a=a, d=d: V(f"v_max3_f32 v{d}, v{d}, v{a[0]}, v{a[1]}", w={d}, r={d} | set(a)))
            k += 1
        if final:
            it.append(lambda: V(f"v_max_f32 v{MX}, v{MX}, v{MX2}", w={MX}, r={MX, MX2}))
            it.append(lambda: V(f"v_mov_b32 v{MX2}, v{MX}", w={MX2}, r={MX}))
            it.append(lambda: V(f"v_permlane32_swap_b32 v{MX}, v{MX2}", w={MX, MX2}, r={MX, MX2}, kind="perm"))
            it.append(lambda: V(f"v_max_f32 v{MX}, v{MX}, v{MX2}", w={MX}, r={MX, MX2}))
        return it
    def sm_items(h, lo, hi, sub):
        it = []
        sb, pb = SB(h), PB(h)
        if sub:
            it.append(lambda: V(f"v_sub_f32 v{sb+lo}, v{sb+lo}, v{MX}", w={sb + lo}, r={sb + lo, MX}))
        for e in range(lo, hi + 2):
            if sub and e + 1 < hi:
                it.append(lambda e=e: V(f"v_sub_f32 v{sb+e+1}, v{sb+e+1}, v{MX}", w={sb + e + 1}, r={sb + e + 1, MX}))
            if e < hi:
                it.append(lambda e=e: V(f"v_exp_f32 v{TT[e%4]}, v{sb+e}", w={TT[e % 4]}, r={sb + e}, kind="trans"))
            if lo <= e - 1 < hi:
                p = e - 1; acc = SUMA if p % 2 == 0 else SUMB
                if p < 2:
                    it.append(lambda p=p, acc=acc: V(f"v_mov_b32 v{acc}, v{TT[p%4]}", w={acc}, r={TT[p % 4]}))
                else:
                    it.append(lambda p=p, acc=acc: V(f"v_add_f32 v{acc}, v{acc}, v{TT[p%4]}", w={acc}, r={acc, TT[p % 4]}))
            if e - 2 >= lo and (e - 2) % 2 == 0 and e - 1 < hi:
                p = e - 2
                it.append(lambda p=p: V(f"v_cvt_pk_bf16_f32 v{pb+p//2}, v{TT[p%4]}, v{TT[(p+1)%4]}", w={pb + p // 2}, r={TT[p % 4], TT[(p + 1) % 4]}))
        return it
    def negm_items():
        return [lambda i=i: V(f"v_sub_f32 v{NEGM+i}, 0, v{MX}", w={NEGM + i}, r={MX}) for i in range(16)]
    def check(h):
        V(f"v_add_f32 v{SUMA}, v{SUMA}, v{SUMB}", w={SUMA}, r={SUMA, SUMB})
        if h > 0:
            V(f"v_cmp_nge_f32 vcc, s{sTHR}, v{SUMA}", r={SUMA}, sw={"vcc"})
            A.salu("s_nop 1")
            A.salu(f"s_cbranch_vccnz K1_SLOW{h}")
            A.label(f"K1_BACK{h}")
        V(f"v_add_f32 v{LSUM}, v{LSUM}, v{SUMA}", w={LSUM}, r={LSUM, SUMA})

    def side_for(ph):
        kind, h = ph
        if ph == ("qk", 0):
            return [], []
        if kind == "qk":
            hh = h - 1
            if hh == 0:
                main = max_items([SB(0) + i for i in range(32)], True, True) + sm_items(0, 0, 32, True)
            else:
                main = sm_items(hh, 16, 32, hh == 1)
            return main, paddr(("pv", hh))
        if h == 7: return [], []
        if h == 6:
            return sm_items(7, 0, 32, False), paddr(("pv", 7)) + (K2.addr_items() if OPT["fuse"] and OPT["fuse"] != 6 else [])
        main = sm_items(h + 1, 0, 16, h == 0)
        if h == 0: main = negm_items() + main
        return main, paddr(("qk", h + 2))

    rid = {}
    def issue_read(n):
        ph, i = mf[n]
        st = pset[ph]; fr = FR + 4 * (n % 4)
        if ph[0] == "qk":
            rid[n] = A.ds_read_b128(fr, st[i % 8], (i // 8) * 8192)
        else:
            g, t = i // 4, i % 4
            A.ds_read_tr(fr, st[2 * t], g * 4096)
            rid[n] = A.ds_read_tr(fr + 2, st[2 * t + 1], g * 4096 + 2048)
    for n in range(4): issue_read(n)
    gap = 0
    for n, (ph, i) in enumerate(mf):
        kind, h = ph
        if i == 0:
            main, adr = side_for(ph)
            plan = [[] for _ in range(16)]
            for k, it in enumerate(adr): plan[k * 12 // max(len(adr), 1)].append(it)
            s0 = 1 if ph == ("qk", 1) else 0
            for k, it in enumerate(main): plan[s0 + k * (16 - s0) // len(main)].append(it)
        A.wait_ds(rid[n])
        fr = FR + 4 * (n % 4)
        if kind == "qk":
            kt, ks = i // 8, i % 8
            c = None
            if ks == 0: c = "zero" if h <= 1 else NEGM
            A.mfma(SB(h) + 16 * kt, fr, QB + 4 * ks, c)
        else:
            g, t = i // 4, i % 4
            A.mfma(O + 16 * t, fr, PB(h) + 4 * g, "zero" if (h == 0 and g == 0) else None)
        if n in sync_pos:
            k = sync_pos.index(n)
            pub = publish_set(n, sync_pos[k + 1] if k + 1 < len(sync_pos) else 10**9)
            while dmaq: dmaq.pop(0)()
            A.wait_ds_all()
            A.wait_vm(max(unit_last_vm[u] for u in pub))
            A.barrier()
            PF.stamp(f"x{h}")
            if k == 0: free.extend(xch)
            for u, lr in last_read.items():
                if lr < n and u not in freed:
                    freed.add(u); free.append(unit_slot[u])
            refill_att()
            if OPT["fuse"] == 6:
                if h == 1: K2.loads()
                if h == 2: K2.scalars()
                if h == 3: K2.addr6()
                if h >= OPT["wo0"]:
                    assert nkv[0] == 16
                    while free and len(K2.slots6) < 8:
                        j = len(K2.slots6); K2.slots6.append(free.pop(0))
                        if h < 6 or OPT["wo6"]:
                            dmaq.extend([lambda j=j, q=q: K2.wo_piece(j >> 1, (j & 1) * 2 + q) for q in range(2)])
                            K2.done6 = j + 1
            elif OPT["fuse"]:
                if h == 4: K2.loads()
                if h == 5: K2.scalars()
                if h == 6:
                    assert len(free) >= 8, free
                    its = K2.wo_items(free[:8])
                    K2.mslot = free[8]
                    if OPT["fuse"] < 3: dmaq.extend(its)
            if OPT["wopf"] and h == OPT["wopf"] - 1:
                A.salu("s_load_dwordx2 s[60:61], s[0:1], 32")
                A.salu("s_load_dwordx2 s[62:63], s[0:1], 72")
                if OPT["xm"]:
                    A.salu(f"s_lshr_b32 s3, s2, 3")
                    A.salu(f"s_lshl_b32 s3, s3, 3")
                    A.salu(f"s_add_u32 s3, s3, s{sW}")
                    A.salu(f"s_mul_i32 s3, s3, {16*1152}")
                    A.salu(f"s_and_b32 s{sT}, s2, 1")
                    A.salu(f"s_lshl_b32 s{sT}, s{sT}, 9")
                    A.salu(f"s_add_u32 s3, s3, s{sT}")
                    V(f"v_mbcnt_lo_u32_b32 v{T6}, -1, 0", w={T6})
                    V(f"v_mbcnt_hi_u32_b32 v{T6}, -1, v{T6}", w={T6}, r={T6})
                    V(f"v_lshrrev_b32 v{T7}, 2, v{T6}", w={T7}, r={T6})
                    V(f"v_mul_u32_u24 v{T7}, 1152, v{T7}", w={T7}, r={T7})
                    V(f"v_and_b32 v{T6}, 3, v{T6}", w={T6}, r={T6})
                    V(f"v_lshl_add_u32 v{T6}, v{T6}, 7, v{T7}", w={T6}, r={T6, T7})
                else:
                    if OPT["wox"]:
                        A.salu(f"s_lshr_b32 s3, s2, 5")
                        A.salu(f"s_lshl_b32 s3, s3, 4")
                        A.salu(f"s_bfe_u32 s{sT}, s2, 0x20003")
                        A.salu(f"s_add_u32 s3, s3, s{sT}")
                    else:
                        A.salu(f"s_lshl_b32 s3, s{sB}, 4")
                        A.salu(f"s_add_u32 s3, s3, s{sKVH}")
                    A.salu(f"s_mul_i32 s3, s3, 288")
                    A.salu(f"s_lshl_b32 s{sT}, s{sW}, 6")
                    A.salu(f"s_min_u32 s{sT}, s{sT}, 224")
                    A.salu(f"s_add_u32 s3, s3, s{sT}")
                    A.salu(f"s_lshl_b32 s3, s3, 7")
                    V(f"v_mbcnt_lo_u32_b32 v{T7}, -1, 0", w={T7})
                    V(f"v_mbcnt_hi_u32_b32 v{T7}, -1, v{T7}", w={T7}, r={T7})
                    V(f"v_lshlrev_b32 v{T7}, 7, v{T7}", w={T7}, r={T7})
                A.salu("s_waitcnt lgkmcnt(0)")
                A.salu(f"s_cmp_eq_u32 s{sBLK}, 0")
                A.salu("s_cselect_b32 s60, s60, s62")
                A.salu("s_cselect_b32 s61, s61, s63")
                A.salu("s_and_b32 s61, s61, 0xffff")
                A.salu(f"s_mov_b32 s62, {4096*576*2}")
                A.salu("s_mov_b32 s63, 0x00020000")
                if OPT["xm"]:
                    A.salu("s_mov_b32 exec_lo, 0x88888888")
                    A.salu("s_mov_b32 exec_hi, 0x88888888")
                    A.vmem(f"buffer_load_dword v{T7}, v{T6}, s[60:63], s3 offen offset:128", w={T7}, r={T6})
                    A.salu("s_mov_b64 exec, -1")
                TA_ = T6 if OPT["xm"] else T7
                A.vmem(f"buffer_load_dword v{T7}, v{TA_}, s[60:63], s3 offen", w={T7}, r={TA_})
        if n + 4 < len(mf): issue_read(n + 4)
        for it in plan[i]: it()
        gap += 1
        if dmaq and gap >= OPT["dmagap"]:
            dmaq.pop(0)(); gap = 0
        if i == 15:
            if kind == "qk" and h >= 1: check(h - 1)
            if ph == ("pv", 6): check(7)
    assert not dmaq
    PF.stamp("pv7")
    V(f"v_mov_b32 v{T0}, v{LSUM}", w={T0}, r={LSUM})
    V(f"v_permlane32_swap_b32 v{T0}, v{LSUM}", w={T0, LSUM}, r={T0, LSUM}, kind="perm")
    V(f"v_add_f32 v{T0}, v{T0}, v{LSUM}", w={T0}, r={T0, LSUM})
    V(f"v_rcp_f32 v{T0}, v{T0}", w={T0}, r={T0}, kind="trans")
    A.salu(f"s_cmp_eq_u32 s{sRT}, 3")
    A.salu("s_cbranch_scc0 K1_NOMASK")
    A.salu("s_mov_b32 exec_lo, 0xffff")
    A.salu("s_mov_b32 exec_hi, 0xffff")
    A.label("K1_NOMASK")
    for f in range(8):
        b0 = O + 8 * f
        for i in range(8):
            V(f"v_mul_f32 v{b0+i}, v{T0}, v{b0+i}", w={b0 + i}, r={T0, b0 + i})
        d = P + 4 * f
        for q in range(4):
            V(f"v_cvt_pk_bf16_f32 v{d+q}, v{b0+2*q}, v{b0+2*q+1}", w={d + q}, r={b0 + 2 * q, b0 + 2 * q + 1})
        A.vmem(f"buffer_store_dwordx4 {vname(d,4)}, v{OST}, s[{SO}:{SO+3}], s{sOB} offen offset:{f*512}{' sc1' if OPT['fuse'] else ' nt' if OPT['ntst'] else ''}", r=vr(d, 4) | {OST}, storedata=vr(d, 4))
    if OPT["fuse"]:
        K2.body(PF, sBLK, sB, sKVH)
    PF.dump(24, sW, 0)
    A.label("K1_END")
    A.salu("s_endpgm")
    for h in range(1, 8):
        A.label(f"K1_SLOW{h}")
        A.flush_hazards()
        sb = SB(h)
        for it in max_items([sb + i for i in range(32)], True, True): it()
        V(f"v_max_f32 v{MX}, 0, v{MX}", w={MX}, r={MX})
        V(f"v_sub_f32 v{MX2}, 0, v{MX}", w={MX2}, r={MX})
        V(f"v_exp_f32 v{MX2}, v{MX2}", w={MX2}, r={MX2}, kind="trans")
        for i in range(64):
            V(f"v_mul_f32 v{O+i}, v{MX2}, v{O+i}", w={O + i}, r={MX2, O + i})
        V(f"v_mul_f32 v{LSUM}, v{MX2}, v{LSUM}", w={LSUM}, r={MX2, LSUM})
        for i in range(16):
            V(f"v_sub_f32 v{NEGM+i}, v{NEGM+i}, v{MX}", w={NEGM + i}, r={NEGM + i, MX})
        if h < 7:
            s2 = SB(h + 1)
            for i in range(32):
                V(f"v_sub_f32 v{s2+i}, v{s2+i}, v{MX}", w={s2 + i}, r={s2 + i, MX})
        for it in sm_items(h, 0, 32, True): it()
        V(f"v_add_f32 v{SUMA}, v{SUMA}, v{SUMB}", w={SUMA}, r={SUMA, SUMB})
        A.flush_hazards()
        A.salu(f"s_branch K1_BACK{h}")

class K2Fused:
    def __init__(self, A, sW, SO, WOFF):
        self.A = A; self.sW = sW; self.SO = SO; self.WOFF = WOFF
        self.SWO, self.SOUT, self.SDBG = 28, 32, 20
        self.sBLK, self.sTT, self.sMT, self.sNT = 16, 17, 18, 19
        self.sWL, self.sWB, self.sO0, self.sO1, self.sT = 49, 50, 8, 9, 52
        self.sP0, self.sP1 = 10, 11
        self.last_vm = {}
    def loads(self):
        A = self.A
        A.salu("s_load_dwordx2 s[8:9], s[0:1], 32")
        A.salu("s_load_dwordx2 s[10:11], s[0:1], 72")
        A.salu("s_load_dwordx2 s[12:13], s[0:1], 80")
        A.salu("s_load_dwordx2 s[14:15], s[0:1], 88")
    def scalars(self):
        A = self.A; sW = self.sW
        sBLK, sTT, sMT, sNT = self.sBLK, self.sTT, self.sMT, self.sNT
        A.salu("s_waitcnt lgkmcnt(0)")
        if OPT["xm"]:
            A.salu("s_bitcmp1_b32 s2, 2")
            A.salu(f"s_cselect_b32 s{sBLK}, 1, 0")
            A.salu("s_cselect_b32 s8, s10, s8")
            A.salu("s_cselect_b32 s9, s11, s9")
            srd(A, self.SWO, 8, 4096 * 576 * 2)
            srd(A, self.SOUT, 12, 896 * 1152 * 2)
            srd(A, self.SDBG, 14, 256)
            A.salu("s_lshr_b32 s3, s2, 3")
            A.salu("s_and_b32 s12, s2, 1")
            A.salu(f"s_lshr_b32 s{sMT}, s3, 2")
            A.salu(f"s_and_b32 s{sNT}, s3, 3")
            A.salu("s_mul_i32 s13, s12, 5")
            A.salu(f"s_add_u32 s{sNT}, s{sNT}, s13")
            A.salu("s_lshl_b32 s13, s12, 2")
            A.salu("s_add_u32 s13, s13, s3")
            A.salu("s_sub_u32 s13, s13, 28")
            A.salu("s_cmp_ge_u32 s3, 28")
            A.salu(f"s_cselect_b32 s{sMT}, s13, s{sMT}")
            A.salu(f"s_cselect_b32 s{sNT}, 4, s{sNT}")
            A.salu(f"s_cmp_eq_u32 s{sMT}, 7")
            A.salu(f"s_cselect_b32 s{sTT}, 255, 0")
            A.salu(f"s_min_u32 s{sMT}, s{sMT}, 6")
            A.salu("s_bfe_u32 s13, s2, 0x10001")
            A.salu("s_mul_i32 s13, s13, 7")
            A.salu(f"s_add_u32 s{sMT}, s{sMT}, s13")
        else:
            A.salu("s_and_b32 s3, s2, 7")
            A.salu("s_lshl_b32 s3, s3, 5")
            A.salu(f"s_lshr_b32 s{sTT}, s2, 3")
            A.salu(f"s_add_u32 s{sTT}, s3, s{sTT}")
            A.salu(f"s_min_u32 s3, s{sTT}, 251")
            A.salu("s_cmp_ge_u32 s3, 126")
            A.salu(f"s_cselect_b32 s{sBLK}, 1, 0")
            A.salu("s_cselect_b32 s8, s10, s8")
            A.salu("s_cselect_b32 s9, s11, s9")
            srd(A, self.SWO, 8, 4096 * 576 * 2)
            srd(A, self.SOUT, 12, 896 * 1152 * 2)
            srd(A, self.SDBG, 14, 256)
            A.salu(f"s_mul_i32 s12, s{sBLK}, 126")
            A.salu("s_sub_u32 s3, s3, s12")
            A.salu("s_mul_i32 s12, s3, 57")
            A.salu(f"s_lshr_b32 s{sMT}, s12, 9")
            A.salu(f"s_mul_i32 s12, s{sMT}, 9")
            A.salu(f"s_sub_u32 s{sNT}, s3, s12")
        A.salu(f"s_mul_i32 s{self.sWB}, s{sW}, {(32 if OPT['fuse'] == 5 else 512)*1152}")
        A.salu(f"s_lshl_b32 s12, s{sNT}, 7")
        A.salu(f"s_add_u32 s{self.sWB}, s{self.sWB}, s12")
        A.salu(f"s_mul_i32 s{self.sO0}, s{sBLK}, {O_BLK}")
        A.salu(f"s_lshl_b32 s12, s{sMT}, 19")
        A.salu(f"s_add_u32 s{self.sO0}, s{self.sO0}, s12")
        A.salu(f"s_lshl_b32 s12, s{sW}, {10 if OPT['fuse'] == 5 else 14}")
        A.salu(f"s_add_u32 s{self.sO0}, s{self.sO0}, s12")
        A.salu(f"s_add_u32 s{self.sO1}, s{self.sO0}, {2*131072}")
        if OPT["ntf"]:
            A.salu(f"s_lshl_b32 s12, s{sBLK}, 6")
            A.salu("s_add_u32 s12, s12, 128")
        else:
            A.salu(f"s_lshl_b32 s12, s{sBLK}, 7")
            A.salu(f"s_lshr_b32 s13, s{sW}, 1")
            A.salu("s_lshl_b32 s13, s13, 2")
            A.salu("s_add_u32 s12, s12, s13")
        sh = 2 if OPT["ntf"] else 4
        A.salu(f"s_mul_i32 s13, s{sMT}, 148")
        A.salu(f"s_lshr_b32 s{self.sP0}, s13, 8")
        A.salu(f"s_lshl_b32 s{self.sP0}, s{self.sP0}, {sh}")
        A.salu(f"s_add_u32 s{self.sP0}, s{self.sP0}, s12")
        A.salu("s_add_u32 s13, s13, 111")
        A.salu(f"s_lshr_b32 s{self.sP1}, s13, 8")
        A.salu(f"s_lshl_b32 s{self.sP1}, s{self.sP1}, {sh}")
        A.salu(f"s_add_u32 s{self.sP1}, s{self.sP1}, s12")
    def addr_items(self):
        V = self.A.valu; W = self.WOFF
        L, T1, T2, T4 = W + 4, W + 5, W + 6, W + 7
        return [
            lambda: V(f"v_mbcnt_lo_u32_b32 v{L}, -1, 0", w={L}),
            lambda: V(f"v_mbcnt_hi_u32_b32 v{L}, -1, v{L}", w={L}, r={L}),
            lambda: V(f"v_lshrrev_b32 v{T1}, 3, v{L}", w={T1}, r={L}),
            lambda: V(f"v_mul_u32_u24 v{T1}, 1152, v{T1}", w={T1}, r={T1}),
            lambda: V(f"v_bfe_u32 v{T2}, v{L}, 4, 1", w={T2}, r={L}),
            lambda: V(f"v_lshlrev_b32 v{T2}, 2, v{T2}", w={T2}, r={T2}),
            lambda: V(f"v_and_b32 v{T4}, 7, v{L}", w={T4}, r={L}),
            lambda: V(f"v_xor_b32 v{T4}, v{T4}, v{T2}", w={T4}, r={T4, T2}),
            lambda: V(f"v_lshl_add_u32 v{W}, v{T4}, 4, v{T1}", w={W}, r={T4, T1}),
        ] + [lambda i=i: V(f"v_add_u32 v{W+i}, {9216*i}, v{W}", w={W + i}, r={W}) for i in range(1, 4)]
    def addr6(self):
        V = self.A.valu
        W, L, T1 = 6, 13, 12
        V(f"v_mbcnt_lo_u32_b32 v{L}, -1, 0", w={L})
        V(f"v_mbcnt_hi_u32_b32 v{L}, -1, v{L}", w={L}, r={L})
        V(f"v_lshrrev_b32 v{T1}, 3, v{L}", w={T1}, r={L})
        V(f"v_mul_u32_u24 v{T1}, 1152, v{T1}", w={T1}, r={T1})
        V(f"v_and_b32 v{W}, 7, v{L}", w={W}, r={L})
        V(f"v_bfe_u32 v{L}, v{L}, 4, 1", w={L}, r={L})
        V(f"v_lshlrev_b32 v{L}, 2, v{L}", w={L}, r={L})
        V(f"v_xor_b32 v{W}, v{W}, v{L}", w={W}, r={W, L})
        V(f"v_lshl_add_u32 v{W}, v{W}, 4, v{T1}", w={W}, r={W, T1})
        self.A.salu(f"s_lshl_b32 s{self.sWL}, s{self.sW}, 11")
        self.slots6 = []
    def wo_piece(self, u, i):
        A = self.A; W = self.WOFF; S = self.SWO
        if OPT["fuse"] == 6:
            A.salu(f"s_add_u32 s{self.sT}, s{self.sWB}, {u * 32 * 1152 + i * 9216}")
            A.salu(f"s_add_u32 m0, s{self.sWL}, {self.slots6[2 * (u % 4) + (i >> 1)] * SLOT + (i & 1) * 1024}", m0w=True)
            A.vmem(f"buffer_load_dwordx4 v6, s[{S}:{S+3}], s{self.sT} offen{' nt' if OPT['ntwo'] else ''} lds", kind="dma", r={6}, m0r=True)
            return
        A.salu(f"s_add_u32 s{self.sT}, s{self.sWB}, {u * 32 * 1152}")
        A.salu(f"s_add_u32 m0, s{self.sWL}, {(u % 4) * 4096 + i * 1024}", m0w=True)
        A.vmem(f"buffer_load_dwordx4 v{W+i}, s[{S}:{S+3}], s{self.sT} offen{' nt' if OPT['ntwo'] else ''} lds", kind="dma", r={W + i}, m0r=True)
    def wo_items(self, slots):
        A = self.A
        tab = sum(s << (4 * w) for w, s in enumerate(slots))
        A.salu(f"s_lshl_b32 s3, s{self.sW}, 2")
        A.salu(f"s_lshr_b32 s3, {tab:#x}, s3")
        A.salu("s_and_b32 s3, s3, 15")
        A.salu(f"s_lshl_b32 s{self.sWL}, s3, 14")
        return [lambda u=u, i=i: self.wo_piece(u, i) for u in range(4) for i in range(4)]
    def dyn(self, PF, L, OOFF, BA, AF, OF, ACC):
        A = self.A; V = A.valu; sW = self.sW; SO = self.SO; SDBG = self.SDBG; W = self.WOFF; S = self.SWO
        T1, T2, T3, T4 = 1, 2, 3, 4
        PD = 8
        vPA, vMA, vT, vM = W + 4, W + 5, W + 6, W + 7
        sPM, sCNT, sDONE, sJ, sA, sB_ = 60, 62, 63, 12, 13, 14
        V(f"v_mov_b32 v{vPA}, s{self.sP1}", w={vPA})
        V(f"v_mov_b32 v{T4}, s{self.sP0}", w={T4})
        V(f"v_cmp_gt_u32 vcc, 16, v{L}", r={L}, sw={"vcc"})
        V(f"v_cndmask_b32 v{vPA}, v{vPA}, v{T4}, vcc", w={vPA}, r={vPA, T4}, sr={"vcc"})
        V(f"v_and_b32 v{T4}, 15, v{L}", w={T4}, r={L})
        V(f"v_add_u32 v{vPA}, v{T4}, v{vPA}", w={vPA}, r={vPA, T4})
        V(f"v_mov_b32 v{vMA}, {self.mslot * SLOT}", w={vMA})
        V(f"v_mov_b32 v{vT}, 0", w={vT})
        A.ds(f"ds_write_b32 v{vMA}, v{vT}", r={vMA, vT})
        A.salu(f"s_cmp_eq_u32 s{sW}, 0")
        A.salu(f"s_cselect_b32 s{sPM}, -1, 0")
        A.salu(f"s_mov_b32 s{sPM+1}, 0")
        A.salu(f"s_mov_b32 s{sCNT}, 0x40000")
        A.salu(f"s_mov_b32 s{sDONE}, 0")
        A.salu(f"s_mov_b32 s15, 0")
        A.waitcnt(vm=0, lgkm=0); A.vm_done = A.nvm; A.ds_done = A.nds
        PF.stamp("st")
        A.barrier()
        A.salu("s_cbranch_scc0 K1_NOFLAG")
        A.salu("s_mov_b64 exec, 1")
        A.salu(f"buffer_atomic_add v{T2}, v{T1}, s[{SDBG}:{SDBG+3}], 0 offen sc1")
        A.salu("s_mov_b64 exec, -1")
        A.label("K1_NOFLAG")
        A.salu(f"s_cmp_ge_u32 s{self.sTT}, 252")
        A.salu("s_cbranch_scc1 K1_END")
        def poll(r, counted=True):
            A.salu(f"s_mov_b64 exec, s[{sPM}:{sPM+1}]")
            txt = f"buffer_load_ubyte v{PD+r}, v{vPA}, s[{SDBG}:{SDBG+3}], 0 offen sc1"
            if counted: A.vmem(txt, w={PD + r}, r={vPA})
            else: A.salu(txt)
            A.salu("s_mov_b64 exec, -1")
        def consume(r):
            A.salu(f"s_mov_b64 exec, s[{sPM}:{sPM+1}]")
            V(f"v_cmp_ne_u32 vcc, 0, v{PD+r}", r={PD + r}, sw={"vcc"})
            A.salu("s_nop 1")
            A.salu(f"s_lshr_b32 s{sA}, vcc_lo, 16")
            A.salu(f"s_and_b32 s{sA}, s{sA}, vcc_lo")
            A.salu(f"s_or_b32 s15, s15, s{sA}")
            V(f"v_mov_b32 v{vT}, s15", w={vT})
            A.ds(f"ds_write_b32 v{vMA}, v{vT}", r={vMA, vT})
            A.salu("s_mov_b64 exec, -1")
        def pick(k):
            A.label(f"K1_PK{k}")
            A.ds(f"ds_read_b32 v{vM}, v{vMA}", w={vM}, r={vMA})
            A.waitcnt(lgkm=0); A.ds_done = A.nds
            A._emit(I(f"v_readfirstlane_b32 s{sA}, v{vM}", "rdlane", r={vM}, sw={sA}))
            A.salu(f"s_andn2_b32 s{sA}, s{sA}, s{sDONE}", sr={sA})
            A.salu(f"s_cbranch_scc1 K1_PG{k}")
            poll(k % 4, False)
            A.salu("s_waitcnt vmcnt(0)")
            consume(k % 4)
            A.salu(f"s_sleep {OPT['slp']}")
            A.salu(f"s_sub_u32 s{sCNT}, s{sCNT}, 1")
            A.salu(f"s_cmp_lg_u32 s{sCNT}, 0")
            A.salu(f"s_cbranch_scc1 K1_PK{k}")
            A.salu(f"s_mov_b32 s{sCNT}, 1")
            A.salu(f"s_andn2_b32 s{sA}, 0xffff, s{sDONE}")
            A.label(f"K1_PG{k}")
            A.salu(f"s_ff1_i32_b32 s{sJ}, s{sA}")
            A.salu(f"s_bitset1_b32 s{sDONE}, s{sJ}")
        NU = 16; DEPTH = 4
        last_vm = {}
        def issue(u):
            slot = u % DEPTH
            pick(u)
            if self.first: PF.stamp("go"); self.first = False
            if 4 <= u: poll(u % 4)
            A.salu(f"s_mul_i32 s{sA}, s{sJ}, {256*1152}")
            A.salu(f"s_add_u32 s{sA}, s{sA}, s{self.sWB}")
            for i in range(4):
                A.salu(f"s_add_u32 m0, s{self.sWL}, {slot * 4096 + i * 1024}", m0w=True)
                A.vmem(f"buffer_load_dwordx4 v{W+i}, s[{S}:{S+3}], s{sA} offen{' nt' if OPT['ntwo'] else ''} lds", kind="dma", r={W + i}, m0r=True)
            A.salu(f"s_lshl_b32 s{sJ}, s{sJ}, 13")
            A.salu(f"s_add_u32 s{sA}, s{sJ}, s{self.sO0}")
            A.salu(f"s_add_u32 s{sB_}, s{sJ}, s{self.sO1}")
            for ks in range(2):
                for tm in range(2):
                    d = OF + slot * 16 + (ks * 2 + tm) * 4
                    k = A.vmem(f"buffer_load_dwordx4 {vname(d,4)}, v{OOFF}, s[{SO}:{SO+3}], s{sA if tm == 0 else sB_} offen offset:{ks*512} sc1", w=vr(d, 4), r={OOFF})
            last_vm[u] = k
        def dsreads(u):
            slot = u % DEPTH
            ab = AF + (u % 2) * 16
            for ks in range(2):
                for tn in range(2):
                    for j in range(2):
                        k = A.ds_read_tr(ab + (ks * 2 + tn) * 4 + 2 * j, BA + tn, slot * 4096 + (16 * ks + 8 * j) * 128)
            return k
        self.first = True
        for u in range(DEPTH): issue(u)
        A.wait_vm(last_vm[0])
        pend = dsreads(0)
        for u in range(NU):
            A.wait_ds(pend)
            if u + 1 < NU:
                A.wait_vm(last_vm[u + 1])
                if u + 1 >= 4 and u + DEPTH < NU: consume((u + 1) % 4)
                pend = dsreads(u + 1)
            ab = AF + (u % 2) * 16
            ob = OF + (u % DEPTH) * 16
            for ks in range(2):
                for tn in range(2):
                    for tm in range(2):
                        c = "zero" if (u == 0 and ks == 0) else None
                        A.mfma(ACC + (tn * 2 + tm) * 16, ab + (ks * 2 + tn) * 4, ob + (ks * 2 + tm) * 4, c)
            if u + DEPTH < NU: issue(u + DEPTH)
            if u in (0, 7, 15): PF.stamp(f"u{u}")
    def body(self, PF, sBLK1, sB1, sKVH1):
        A = self.A; V = A.valu; sW = self.sW; SO = self.SO
        T0, T1, T2, T3, T4, T5, T6, T7 = 0, 1, 2, 3, 4, 5, 9, 8
        WOFF = self.WOFF; OOFF = 12; BA = 13; RED = 15; AF = 16; OF = 96; ACC = 160
        sBLK, sMT, sNT = self.sBLK, self.sMT, self.sNT
        SOUT, SDBG = self.SOUT, self.SDBG
        sWL, sO0, sO1, sT = self.sWL, self.sO0, self.sO1, self.sT
        L = T0
        A.salu("s_mov_b64 exec, -1")
        V(f"v_mbcnt_lo_u32_b32 v{L}, -1, 0", w={L})
        V(f"v_mbcnt_hi_u32_b32 v{L}, -1, v{L}", w={L}, r={L})
        V(f"v_bfe_u32 v{T2}, v{L}, 4, 1", w={T2}, r={L})
        V(f"v_lshrrev_b32 v{T1}, 5, v{L}", w={T1}, r={L})
        V(f"v_bfe_u32 v{T3}, v{L}, 2, 2", w={T3}, r={L})
        V(f"v_and_b32 v{T4}, 3, v{L}", w={T4}, r={L})
        V(f"v_lshlrev_b32 v{T6}, 17, v{T2}", w={T6}, r={T2})
        V(f"v_lshl_add_u32 v{T6}, v{T1}, 8, v{T6}", w={T6}, r={T1, T6})
        V(f"v_and_b32 v{T7}, 15, v{L}", w={T7}, r={L})
        V(f"v_lshl_add_u32 v{OOFF}, v{T7}, 4, v{T6}", w={OOFF}, r={T7, T6})
        V(f"v_lshl_add_u32 v{T6}, v{T1}, 2, v{T3}", w={T6}, r={T1, T3})
        V(f"v_lshlrev_b32 v{T6}, 7, v{T6}", w={T6}, r={T6})
        V(f"v_lshrrev_b32 v{T7}, 1, v{T4}", w={T7}, r={T4})
        V(f"v_lshl_add_u32 v{T7}, v{T2}, 1, v{T7}", w={T7}, r={T2, T7})
        V(f"v_lshrrev_b32 v{T5}, 1, v{T3}", w={T5}, r={T3})
        V(f"v_lshlrev_b32 v{T5}, 2, v{T5}", w={T5}, r={T5})
        V(f"v_xor_b32 v{T7}, v{T7}, v{T5}", w={T7}, r={T7, T5})
        V(f"v_lshl_add_u32 v{T6}, v{T7}, 4, v{T6}", w={T6}, r={T7, T6})
        V(f"v_and_b32 v{T7}, 1, v{T4}", w={T7}, r={T4})
        V(f"v_lshl_add_u32 v{T6}, v{T7}, 3, v{T6}", w={T6}, r={T7, T6})
        V(f"v_add_u32 v{BA}, s{sWL}, v{T6}", w={BA}, r={T6})
        V(f"v_xor_b32 v{BA+1}, 64, v{BA}", w={BA + 1}, r={BA})
        if OPT["fuse"] == 6:
            for q in range(1, 3):
                for tn in range(2):
                    V(f"v_add_u32 v{64+2*q+tn}, {q*65536}, v{BA+tn}", w={64 + 2 * q + tn}, r={BA + tn})
        V(f"v_lshlrev_b32 v{RED}, 4, v{L}", w={RED}, r={L})
        if OPT["ntf"]:
            A.salu(f"s_lshl_b32 s12, s{sBLK1}, 6")
            A.salu(f"s_lshl_b32 s13, s{sB1}, 2")
            A.salu("s_add_u32 s12, s12, s13")
            A.salu("s_mov_b32 s13, 1")
        else:
            A.salu(f"s_lshl_b32 s12, s{sBLK1}, 7")
            A.salu(f"s_lshl_b32 s13, s{sB1}, 4")
            A.salu("s_add_u32 s12, s12, s13")
            A.salu(f"s_and_b32 s13, s{sKVH1}, 12")
            A.salu("s_add_u32 s12, s12, s13")
            A.salu(f"s_and_b32 s13, s{sKVH1}, 3")
            A.salu("s_lshl_b32 s13, s13, 3")
            A.salu("s_lshl_b32 s13, 1, s13")
        V(f"v_mov_b32 v{T1}, s12", w={T1})
        V(f"v_mov_b32 v{T2}, s13", w={T2})
        if OPT["ntf"]:
            V(f"v_mov_b32 v{T3}, s{self.sP1}", w={T3})
            V(f"v_writelane_b32 v{T3}, s{self.sP0}, 0", w={T3}, r={T3})
            V(f"v_mov_b32 v{T5}, 1", w={T5})
            A.salu("s_mov_b32 s14, 1")
        elif OPT["fuse"] == 5:
            self.dyn(PF, L, OOFF, BA, AF, OF, ACC)
        elif OPT["fuse"] == 1:
            V(f"v_mov_b32 v{T3}, s{self.sP1}", w={T3})
            V(f"v_writelane_b32 v{T3}, s{self.sP0}, 0", w={T3}, r={T3})
            A.salu(f"s_and_b32 s14, s{sW}, 1")
            A.salu("s_lshl_b32 s14, s14, 4")
            A.salu("s_lshl_b32 s14, 0x101, s14")
        else:
            V(f"v_mov_b32 v{T3}, s{self.sP1}", w={T3})
            V(f"v_mov_b32 v{T4}, s{self.sP0}", w={T4})
            V(f"v_cmp_gt_u32 vcc, 4, v{L}", r={L}, sw={"vcc"})
            V(f"v_cndmask_b32 v{T3}, v{T3}, v{T4}, vcc", w={T3}, r={T3, T4}, sr={"vcc"})
            V(f"v_and_b32 v{T4}, 3, v{L}", w={T4}, r={L})
            V(f"v_lshl_add_u32 v{T3}, v{T4}, 2, v{T3}", w={T3}, r={T3, T4})
            A.salu("s_mov_b32 s14, 0x01010101")
        if OPT["fuse"] != 5:
            A.salu("s_mov_b32 s15, 0x40000")
            A.waitcnt(vm=0); A.vm_done = A.nvm
            PF.stamp("st")
            A.barrier()
            A.salu(f"s_cmp_eq_u32 s{sW}, 0")
            A.salu("s_cbranch_scc0 K1_NOFLAG")
            A.salu("s_mov_b64 exec, 1")
            if OPT["ntf"]:
                A.salu(f"buffer_atomic_add v{T2}, v{T1}, s[{SDBG}:{SDBG+3}], 0 offen sc0 sc1")
                A.salu("s_waitcnt vmcnt(0)")
                A.salu(f"v_cmp_eq_u32 vcc, 15, v{T2}")
                A.salu("s_nop 1")
                A.salu("s_cbranch_vccz K1_NOFLAG")
                A.salu(f"buffer_store_dword v{T5}, v{T1}, s[{SDBG}:{SDBG+3}], 0 offen offset:128 sc1")
            elif OPT["exp"] != 1: A.salu(f"buffer_atomic_add v{T2}, v{T1}, s[{SDBG}:{SDBG+3}], 0 offen sc1")
            A.label("K1_NOFLAG")
            A.salu(f"s_cmp_ge_u32 s{self.sTT}, 252")
            A.salu("s_cbranch_scc1 K1_END")
            if OPT["exp"]:
                for _ in range(3): A.salu("s_sleep 64")
                A.salu("s_branch K1_GO")
            if OPT["fuse"] == 6:
                A.salu("s_mov_b64 exec, -1")
                for j in range(self.done6, 8):
                    for q in range(2): self.wo_piece(j >> 1, (j & 1) * 2 + q)
            if OPT["fuse"] == 1:
                A.salu("s_mov_b64 exec, 3")
            else:
                A.salu(f"s_cmp_eq_u32 s{sW}, 0")
                A.salu("s_cbranch_scc0 K1_GO" if OPT["fuse"] != 3 else "s_cbranch_scc0 K1_WO")
                A.salu("s_mov_b64 exec, 3" if OPT["ntf"] else "s_mov_b64 exec, 0xff")
            A.label("K1_POLL")
            A.salu(f"buffer_load_dword v{T4}, v{T3}, s[{SDBG}:{SDBG+3}], 0 offen sc1")
            A.salu("s_waitcnt vmcnt(0)")
            A.salu(f"v_and_b32 v{T4}, s14, v{T4}")
            A.salu(f"v_cmp_ne_u32 vcc, s14, v{T4}")
            A.salu("s_nop 1")
            A.salu("s_cbranch_vccz K1_GO")
            A.salu(f"s_sleep {OPT['slp']}")
            A.salu("s_sub_u32 s15, s15, 1")
            A.salu("s_cmp_lg_u32 s15, 0")
            A.salu("s_cbranch_scc1 K1_POLL")
            A.label("K1_GO")
            A.salu("s_mov_b64 exec, -1")
            if OPT["fuse"] == 3:
                A.barrier()
                A.label("K1_WO")
                for u in range(4):
                    for i in range(4): self.wo_piece(u, i)
                A.salu(f"s_cmp_eq_u32 s{sW}, 0")
                A.salu("s_cbranch_scc1 K1_GO2")
                A.barrier()
                A.label("K1_GO2")
            elif OPT["fuse"] > 1: A.barrier()
            PF.stamp("go")
            NU = 16; DEPTH = 4
            last_vm = {}
            def issue(u, wo=True):
                slot = u % DEPTH
                if wo:
                    for i in range(4): self.wo_piece(u, i)
                for ks in range(2):
                    for tm in range(2):
                        d = OF + slot * 16 + (ks * 2 + tm) * 4
                        off = (2 * u + ks) * 512
                        sb = sO0 if tm == 0 else sO1
                        if off >= 4096:
                            A.salu(f"s_add_u32 s{sT}, s{sb}, {off & ~4095}")
                            sb = sT
                        k = A.vmem(f"buffer_load_dwordx4 {vname(d,4)}, v{OOFF}, s[{SO}:{SO+3}], s{sb} offen offset:{off & 4095} sc1", w=vr(d, 4), r={OOFF})
                last_vm[u] = k
            def dsreads(u):
                slot = u % DEPTH
                ab = AF + (u % 2) * 16
                for ks in range(2):
                    for tn in range(2):
                        for j in range(2):
                            if OPT["fuse"] == 6:
                                o_ = self.slots6[2 * slot + ks] * SLOT + j * 1024
                                k = A.ds_read_tr(ab + (ks * 2 + tn) * 4 + 2 * j, (BA if o_ < 65536 else 64 + 2 * (o_ >> 16)) + tn, o_ & 65535)
                            else:
                                k = A.ds_read_tr(ab + (ks * 2 + tn) * 4 + 2 * j, BA + tn, slot * 4096 + (16 * ks + 8 * j) * 128)
                return k
            for u in range(DEPTH): issue(u, OPT["fuse"] == 4)
            if OPT["fuse"] in (3, 4): A.wait_vm(last_vm[0])
            pend = dsreads(0)
            A.wait_vm(last_vm[0])
            for u in range(NU):
                A.wait_ds(pend)
                if u + 1 < NU:
                    A.wait_vm(last_vm[u + 1])
                    pend = dsreads(u + 1)
                ab = AF + (u % 2) * 16
                ob = OF + (u % DEPTH) * 16
                for ks in range(2):
                    for tn in range(2):
                        for tm in range(2):
                            c = "zero" if (u == 0 and ks == 0) else None
                            A.mfma(ACC + (tn * 2 + tm) * 16, ab + (ks * 2 + tn) * 4, ob + (ks * 2 + tm) * 4, c)
                if u + DEPTH < NU: issue(u + DEPTH)
                if u in (0, 7, 15): PF.stamp(f"u{u}")
        A.wait_ds_all()
        A.barrier()
        A.salu(f"s_lshl_b32 s12, s{sW}, 14")
        V(f"v_add_u32 v{T1}, s12, v{RED}", w={T1}, r={RED})
        for q in range(16):
            A.ds_write_b128(T1, ACC + 4 * q, q * 1024)
        A.wait_ds_all()
        A.barrier()
        A.salu(f"s_lshl_b32 s6, s{sW}, 11")
        V(f"v_add_u32 v{T1}, s6, v{RED}", w={T1}, r={RED})
        V(f"v_add_u32 v{T2}, 0x10000, v{T1}", w={T2}, r={T1})
        R = OF
        for ww in range(8):
            for q in range(2):
                A.ds_read_b128(R + (ww * 2 + q) * 4, T1 if ww < 4 else T2, (ww % 4) * 16384 + q * 1024)
            if ww == 5:
                A.wait_ds_all()
        A.wait_ds_all()
        for ww in range(1, 8):
            for i in range(8):
                V(f"v_add_f32 v{R+i}, v{R+i}, v{R+ww*8+i}", w={R + i}, r={R + i, R + ww * 8 + i})
        for q in range(4):
            V(f"v_cvt_pk_bf16_f32 v{AF+q}, v{R+2*q}, v{R+2*q+1}", w={AF + q}, r={R + 2 * q, R + 2 * q + 1})
        A.salu(f"s_lshr_b32 s6, s{sW}, 1")
        A.salu("s_and_b32 s7, s6, 1")
        A.salu("s_lshr_b32 s6, s6, 1")
        A.salu(f"s_lshl_b32 s3, s{sMT}, 6")
        A.salu("s_lshl_b32 s7, s7, 5")
        A.salu("s_add_u32 s3, s3, s7")
        A.salu("s_mul_i32 s3, s3, 2304")
        A.salu(f"s_mul_i32 s7, s{sBLK}, 1152")
        A.salu("s_add_u32 s3, s3, s7")
        A.salu(f"s_lshl_b32 s7, s{sNT}, 7")
        A.salu("s_add_u32 s3, s3, s7")
        A.salu("s_lshl_b32 s7, s6, 6")
        A.salu("s_add_u32 s3, s3, s7")
        A.salu(f"s_and_b32 s7, s{sW}, 1")
        A.salu("s_lshl_b32 s7, s7, 5")
        A.salu("s_add_u32 s3, s3, s7")
        V(f"v_and_b32 v{T1}, 31, v{L}", w={T1}, r={L})
        V(f"v_mul_u32_u24 v{T1}, 2304, v{T1}", w={T1}, r={T1})
        V(f"v_lshrrev_b32 v{T2}, 5, v{L}", w={T2}, r={L})
        V(f"v_lshl_add_u32 v{T1}, v{T2}, 3, v{T1}", w={T1}, r={T2, T1})
        fl = ["", " sc1", " nt", " sc0 sc1"][OPT["ost"]]
        A.vmem(f"buffer_store_dwordx2 {vname(AF,2)}, v{T1}, s[{SOUT}:{SOUT+3}], s3 offen{fl}", r=vr(AF, 2) | {T1})
        A.vmem(f"buffer_store_dwordx2 {vname(AF+2,2)}, v{T1}, s[{SOUT}:{SOUT+3}], s3 offen offset:16{fl}", r=vr(AF + 2, 2) | {T1})

def gen_k2(A):
    V = A.valu
    T0, T1, T2, T3, T4, T5, T6, T7 = range(0, 8)
    WOFF = 8
    OOFF = 12
    BA = 13
    RED = 15
    AF = 16
    OF = 48
    ACC = 112
    sBLK, sMT, sNT, sW = 26, 27, 4, 5
    SW_, SO, SOUT = 28, 32, 36
    sWL, sWB, sO0, sO1, sT = 48, 49, 50, 51, 52
    A.win = []
    A.nds = A.ds_done = A.nvm = A.vm_done = 0
    A.raw(f".p2align 8\n.globl k2_kernel\n.type k2_kernel,@function\nk2_kernel:")
    A.salu("s_cmp_ge_u32 s2, 256")
    A.salu("s_cbranch_scc1 K2_END")
    A.salu("s_and_b32 s3, s2, 7")
    A.salu("s_lshl_b32 s3, s3, 5")
    A.salu("s_lshr_b32 s6, s2, 3")
    A.salu("s_add_u32 s3, s3, s6")
    A.salu("s_cmp_ge_u32 s3, 252")
    A.salu("s_cbranch_scc1 K2_END")
    A.salu("s_load_dwordx2 s[8:9], s[0:1], 32")
    A.salu("s_load_dwordx2 s[10:11], s[0:1], 72")
    A.salu("s_load_dwordx2 s[12:13], s[0:1], 80")
    A.salu("s_load_dwordx2 s[14:15], s[0:1], 96")
    A.salu("s_cmp_ge_u32 s3, 126")
    A.salu(f"s_cselect_b32 s{sBLK}, 1, 0")
    A.salu(f"s_mul_i32 s6, s{sBLK}, 126")
    A.salu("s_sub_u32 s3, s3, s6")
    A.salu("s_mul_i32 s6, s3, 57")
    A.salu(f"s_lshr_b32 s{sMT}, s6, 9")
    A.salu(f"s_mul_i32 s6, s{sMT}, 9")
    A.salu(f"s_sub_u32 s{sNT}, s3, s6")
    V(f"v_lshrrev_b32 v{T1}, 6, v0", w={T1}, r={0})
    A._emit(I(f"v_readfirstlane_b32 s{sW}, v{T1}", "rdlane", r={T1}, sw={sW}))
    V(f"v_and_b32 v{T0}, 63, v0", w={T0}, r={0})
    L = T0
    A.salu(f"s_lshl_b32 s{sWL}, s{sW}, 14", sr={sW})
    A.salu(f"s_mul_i32 s{sWB}, s{sW}, {512*1152}", sr={sW})
    A.salu(f"s_lshl_b32 s6, s{sNT}, 7")
    A.salu(f"s_add_u32 s{sWB}, s{sWB}, s6")
    A.salu(f"s_mul_i32 s{sO0}, s{sBLK}, {O_BLK}")
    A.salu(f"s_lshl_b32 s6, s{sMT}, 19")
    A.salu(f"s_add_u32 s{sO0}, s{sO0}, s6")
    A.salu(f"s_lshl_b32 s6, s{sW}, 14")
    A.salu(f"s_add_u32 s{sO0}, s{sO0}, s6")
    A.salu(f"s_add_u32 s{sO1}, s{sO0}, {2*131072}")
    V(f"v_lshrrev_b32 v{T1}, 3, v{L}", w={T1}, r={L})
    V(f"v_mul_u32_u24 v{T1}, 1152, v{T1}", w={T1}, r={T1})
    V(f"v_bfe_u32 v{T2}, v{L}, 4, 1", w={T2}, r={L})
    V(f"v_lshlrev_b32 v{T3}, 2, v{T2}", w={T3}, r={T2})
    V(f"v_and_b32 v{T4}, 7, v{L}", w={T4}, r={L})
    V(f"v_xor_b32 v{T4}, v{T4}, v{T3}", w={T4}, r={T4, T3})
    V(f"v_lshl_add_u32 v{WOFF}, v{T4}, 4, v{T1}", w={WOFF}, r={T4, T1})
    for i in range(1, 4):
        V(f"v_add_u32 v{WOFF+i}, {9216*i}, v{WOFF}", w={WOFF + i}, r={WOFF})
    V(f"v_lshrrev_b32 v{T1}, 5, v{L}", w={T1}, r={L})
    V(f"v_bfe_u32 v{T3}, v{L}, 2, 2", w={T3}, r={L})
    V(f"v_and_b32 v{T4}, 3, v{L}", w={T4}, r={L})
    V(f"v_lshlrev_b32 v{T6}, 17, v{T2}", w={T6}, r={T2})
    V(f"v_lshl_add_u32 v{T6}, v{T1}, 8, v{T6}", w={T6}, r={T1, T6})
    V(f"v_and_b32 v{T7}, 15, v{L}", w={T7}, r={L})
    V(f"v_lshl_add_u32 v{OOFF}, v{T7}, 4, v{T6}", w={OOFF}, r={T7, T6})
    V(f"v_lshl_add_u32 v{T6}, v{T1}, 2, v{T3}", w={T6}, r={T1, T3})
    V(f"v_lshlrev_b32 v{T6}, 7, v{T6}", w={T6}, r={T6})
    V(f"v_lshrrev_b32 v{T7}, 1, v{T4}", w={T7}, r={T4})
    V(f"v_lshl_add_u32 v{T7}, v{T2}, 1, v{T7}", w={T7}, r={T2, T7})
    V(f"v_lshrrev_b32 v{T5}, 1, v{T3}", w={T5}, r={T3})
    V(f"v_lshlrev_b32 v{T5}, 2, v{T5}", w={T5}, r={T5})
    V(f"v_xor_b32 v{T7}, v{T7}, v{T5}", w={T7}, r={T7, T5})
    V(f"v_lshl_add_u32 v{T6}, v{T7}, 4, v{T6}", w={T6}, r={T7, T6})
    V(f"v_and_b32 v{T7}, 1, v{T4}", w={T7}, r={T4})
    V(f"v_lshl_add_u32 v{T6}, v{T7}, 3, v{T6}", w={T6}, r={T7, T6})
    V(f"v_add_u32 v{BA}, s{sWL}, v{T6}", w={BA}, r={T6})
    V(f"v_xor_b32 v{BA+1}, 64, v{BA}", w={BA + 1}, r={BA})
    V(f"v_lshlrev_b32 v{RED}, 4, v{L}", w={RED}, r={L})
    A.waitcnt(lgkm=0)
    A.salu(f"s_cmp_eq_u32 s{sBLK}, 0")
    A.salu("s_cselect_b32 s8, s8, s10")
    A.salu("s_cselect_b32 s9, s9, s11")
    srd(A, SW_, 8, 4096 * 576 * 2)
    srd(A, SO, 14, 2 * O_BLK)
    srd(A, SOUT, 12, 896 * 1152 * 2)

    NU = 16; DEPTH = 4
    last_vm = {}
    def issue(u):
        slot = u % DEPTH
        A.salu(f"s_add_u32 s{sT}, s{sWB}, {u * 32 * 1152}")
        for i in range(4):
            A.salu(f"s_add_u32 m0, s{sWL}, {slot * 4096 + i * 1024}", m0w=True)
            A.vmem(f"buffer_load_dwordx4 v{WOFF+i}, s[{SW_}:{SW_+3}], s{sT} offen{' nt' if OPT['ntwo'] else ''} lds", kind="dma", r={WOFF + i}, m0r=True)
        for ks in range(2):
            for tm in range(2):
                d = OF + slot * 16 + (ks * 2 + tm) * 4
                off = (2 * u + ks) * 512
                sb = sO0 if tm == 0 else sO1
                if off >= 4096:
                    A.salu(f"s_add_u32 s{sT}, s{sb}, {off & ~4095}")
                    k = A.vmem(f"buffer_load_dwordx4 {vname(d,4)}, v{OOFF}, s[{SO}:{SO+3}], s{sT} offen offset:{off & 4095}{' nt' if OPT['nto'] else ''}", w=vr(d, 4), r={OOFF})
                else:
                    k = A.vmem(f"buffer_load_dwordx4 {vname(d,4)}, v{OOFF}, s[{SO}:{SO+3}], s{sb} offen offset:{off}{' nt' if OPT['nto'] else ''}", w=vr(d, 4), r={OOFF})
        last_vm[u] = k
    def dsreads(u):
        slot = u % DEPTH
        ab = AF + (u % 2) * 16
        for ks in range(2):
            for tn in range(2):
                for j in range(2):
                    k = A.ds_read_tr(ab + (ks * 2 + tn) * 4 + 2 * j, BA + tn, slot * 4096 + (16 * ks + 8 * j) * 128)
        return k
    PF = Prof(A, 1)
    PF.stamp("start")
    for u in range(DEPTH): issue(u)
    A.wait_vm(last_vm[0])
    pend = dsreads(0)
    for u in range(NU):
        A.wait_ds(pend)
        if u + 1 < NU:
            A.wait_vm(last_vm[u + 1])
            pend = dsreads(u + 1)
        ab = AF + (u % 2) * 16
        ob = OF + (u % DEPTH) * 16
        for ks in range(2):
            for tn in range(2):
                for tm in range(2):
                    c = "zero" if (u == 0 and ks == 0) else None
                    A.mfma(ACC + (tn * 2 + tm) * 16, ab + (ks * 2 + tn) * 4, ob + (ks * 2 + tm) * 4, c)
        if u + DEPTH < NU: issue(u + DEPTH)
        PF.stamp(f"u{u}")
    A.wait_ds_all()
    A.barrier()
    V(f"v_add_u32 v{T1}, s{sWL}, v{RED}", w={T1}, r={RED})
    for q in range(16):
        A.ds_write_b128(T1, ACC + 4 * q, q * 1024)
    A.wait_ds_all()
    A.barrier()
    A.salu(f"s_lshl_b32 s6, s{sW}, 11")
    V(f"v_add_u32 v{T1}, s6, v{RED}", w={T1}, r={RED})
    V(f"v_add_u32 v{T2}, 0x10000, v{T1}", w={T2}, r={T1})
    R = OF
    for ww in range(8):
        for q in range(2):
            A.ds_read_b128(R + (ww * 2 + q) * 4, T1 if ww < 4 else T2, (ww % 4) * 16384 + q * 1024)
            if ww == 6 and q == 1: pass
        if ww == 5:
            A.wait_ds_all()
    A.wait_ds_all()
    for ww in range(1, 8):
        for i in range(8):
            V(f"v_add_f32 v{R+i}, v{R+i}, v{R+ww*8+i}", w={R + i}, r={R + i, R + ww * 8 + i})
    for q in range(4):
        V(f"v_cvt_pk_bf16_f32 v{AF+q}, v{R+2*q}, v{R+2*q+1}", w={AF + q}, r={R + 2 * q, R + 2 * q + 1})
    A.salu(f"s_lshr_b32 s6, s{sW}, 1")
    A.salu("s_and_b32 s7, s6, 1")
    A.salu("s_lshr_b32 s6, s6, 1")
    A.salu(f"s_lshl_b32 s3, s{sMT}, 6")
    A.salu("s_lshl_b32 s7, s7, 5")
    A.salu("s_add_u32 s3, s3, s7")
    A.salu("s_mul_i32 s3, s3, 2304")
    A.salu(f"s_mul_i32 s7, s{sBLK}, 1152")
    A.salu("s_add_u32 s3, s3, s7")
    A.salu(f"s_lshl_b32 s7, s{sNT}, 7")
    A.salu("s_add_u32 s3, s3, s7")
    A.salu("s_lshl_b32 s7, s6, 6")
    A.salu("s_add_u32 s3, s3, s7")
    A.salu(f"s_and_b32 s7, s{sW}, 1")
    A.salu("s_lshl_b32 s7, s7, 5")
    A.salu("s_add_u32 s3, s3, s7")
    V(f"v_and_b32 v{T1}, 31, v{L}", w={T1}, r={L})
    V(f"v_mul_u32_u24 v{T1}, 2304, v{T1}", w={T1}, r={T1})
    V(f"v_lshrrev_b32 v{T2}, 5, v{L}", w={T2}, r={L})
    V(f"v_lshl_add_u32 v{T1}, v{T2}, 3, v{T1}", w={T1}, r={T2, T1})
    A.vmem(f"buffer_store_dwordx2 {vname(AF,2)}, v{T1}, s[{SOUT}:{SOUT+3}], s3 offen", r=vr(AF, 2) | {T1})
    A.vmem(f"buffer_store_dwordx2 {vname(AF+2,2)}, v{T1}, s[{SOUT}:{SOUT+3}], s3 offen offset:16", r=vr(AF + 2, 2) | {T1})
    PF.dump(14, sW, 0)
    A.label("K2_END")
    A.salu("s_endpgm")

def kd(name, vgpr, sgpr):
    return f""".amdhsa_kernel {name}
  .amdhsa_next_free_vgpr {vgpr}
  .amdhsa_next_free_sgpr {sgpr}
  .amdhsa_accum_offset {(vgpr + 3) // 4 * 4}
  .amdhsa_group_segment_fixed_size 0
  .amdhsa_kernarg_size 104
  .amdhsa_user_sgpr_count 2
  .amdhsa_user_sgpr_kernarg_segment_ptr 1
  .amdhsa_system_sgpr_workgroup_id_x 1
.end_amdhsa_kernel
"""

def main():
    A = Asm()
    gen_k1(A)
    if not OPT["fuse"]: gen_k2(A)
    head = """; Two-launch GQA block pair: k1 = Q projection + attention (o -> ws), k2 = output projection.
; @launch kernel=k1_kernel grid=(256,1,1) block=(512,1,1) lds=163840
; @launch kernel=k2_kernel grid=(256,1,1) block=(512,1,1) lds=131072
.amdgcn_target "amdgcn-amd-amdhsa--gfx950"
.text
"""
    tail = '\n.section .rodata,"a"\n.p2align 6\n' + kd("k1_kernel", 256, 102 if OPT["prof"] else 64) + ".p2align 6\n" + kd("k2_kernel", 176, 102 if OPT["prof"] else 64)
    if OPT["fuse"]:
        head = """; GQA block pair in one launch: Q projection + attention, o handed over through ws, output projection.
; @launch kernel=k1_kernel grid=(256,1,1) block=(512,1,1) lds=163840
.amdgcn_target "amdgcn-amd-amdhsa--gfx950"
.text
"""
        tail = '\n.section .rodata,"a"\n.p2align 6\n' + kd("k1_kernel", 256, 102 if OPT["prof"] else 64)
    txt = head + A.text() + tail
    if "CODE_BYTES" in txt:
        import subprocess, re
        open("_p1.s", "w").write(txt.replace("CODE_BYTES", "0x12345"))
        subprocess.check_call(["clang", "-x", "assembler", "-target", "amdgcn-amd-amdhsa", "-mcpu=gfx950", "-c", "_p1.s", "-o", "_p1.o"])
        o = subprocess.check_output(["llvm-objdump", "-h", "_p1.o"]).decode()
        n = int(re.search(r"\.text\s+([0-9a-f]+)", o).group(1), 16)
        txt = txt.replace("CODE_BYTES", str(n))
    open(sys.argv[1], "w").write(txt)
    print("nops inserted:", A.nops_inserted, "lines:", len(A.out))

main()
```

```python
import sys, math
sys.path.insert(0, "gen")
from asmlib import *

NAME = "concat_heads__gqa_block_cached__gqa_block_cached__near_ridge"
OPT = dict(prio=1, prof=0, ntkv=1, ntw=0, ntx=0, ntwo=0, nto=0, ntst=0, nq=6, kvrate=1, l2pf=1, wopf=4, fat=1, bstep=1, dmagap=1, pflead=4, kv0=2, nstg=4, kvt=0, ld4=1, cpf=0, mid=0, kvt0=1, kvtr=1, roll=0, pfrate=1, kvs=0, rot=0, stag=0, qi=0, tlbw=0, ntt=0, fuse=0, slp=1, wox=0, xm=0, wo0=3, wo6=0, exp=0, ntf=0, pv=0, ost=0, red=0, pre=0)
for a in sys.argv[2:]:
    k, v = a.split("="); OPT[k] = int(v)

O_BLK = 896 * 4096 * 2
SLOT = 16384
NSLOT = 10

def srd(A, d, base, nbytes):
    A.salu(f"s_mov_b32 s{d}, s{base}")
    A.salu(f"s_and_b32 s{d+1}, s{base+1}, 0xffff")
    A.salu(f"s_mov_b32 s{d+2}, {nbytes}")
    A.salu(f"s_mov_b32 s{d+3}, 0x00020000")

class Prof:
    def __init__(self, A, kidx):
        self.A = A; self.n = 0; self.names = []; self.kidx = kidx
    def stamp(self, name):
        A = self.A
        if OPT["prof"] == 3:
            sel = ["start", "q0", "a0", "pv7", "st", "go", "u15", "end"]
            if name == "start" or name == sel[OPT["pv"]]:
                A.salu("s_waitcnt lgkmcnt(0)")
                A.ds_done = A.nds
                A.salu("s_memrealtime s[96:97]")
                A.salu("s_waitcnt lgkmcnt(0)")
                if name == "start": A.salu("s_not_b32 s64, s96")
                if name == sel[OPT["pv"]]: A.salu(f"s_mov_b32 s65, s96")
            return
        if OPT["prof"] == 2:
            sel = ["start", "q0", "a0", "pv7", "st", "go", "u15", "end"]
            if name in sel:
                A.salu("s_waitcnt lgkmcnt(0)")
                A.ds_done = A.nds
                A.salu("s_memrealtime s[96:97]")
                A.salu("s_waitcnt lgkmcnt(0)")
                if name == "start": A.salu("s_not_b32 s96, s96")
                A.salu(f"s_mov_b32 s{64+sel.index(name)}, s96")
            return
        if not OPT["prof"]: return
        assert self.n < 30
        A.salu("s_waitcnt lgkmcnt(0)")
        A.ds_done = A.nds
        A.salu("s_memtime s[96:97]")
        A.salu("s_waitcnt lgkmcnt(0)")
        A.salu(f"s_mov_b32 s{64+self.n}, s96")
        if self.n == 0:
            A.salu("s_memrealtime s[98:99]")
            A.salu("s_waitcnt lgkmcnt(0)")
        self.n += 1; self.names.append(name)
    def dump(self, wsreg, sW, tmp):
        if not OPT["prof"]: return
        A = self.A
        self.stamp("end")
        if OPT["prof"] == 3:
            A.salu(f"s_cmp_eq_u32 s{sW}, 0")
            A.salu("s_cbranch_scc0 K1_END")
            A.salu("s_mov_b64 exec, -1")
            A.salu("s_nop 4")
            for i in range(2):
                A.salu(f"v_writelane_b32 v{tmp}, s{64+i}, {i}")
            A.salu(f"v_mbcnt_lo_u32_b32 v{tmp+1}, -1, 0")
            A.salu(f"v_lshlrev_b32 v{tmp+1}, 2, v{tmp+1}")
            A.salu(f"v_mov_b32 v{tmp+2}, 1")
            A.salu("s_mov_b64 exec, 3")
            A.salu("s_nop 4")
            A.salu(f"buffer_atomic_umax v{tmp}, v{tmp+1}, s[20:23], 0 offen offset:32 sc1")
            A.salu("s_waitcnt vmcnt(0)")
            A.salu("s_mov_b64 exec, 1")
            A.salu(f"buffer_atomic_add v{tmp+2}, v{tmp+1}, s[20:23], 0 offen offset:40 sc0 sc1")
            A.salu("s_waitcnt vmcnt(0)")
            A.salu(f"v_readfirstlane_b32 s66, v{tmp+2}")
            A.salu("s_cmp_eq_u32 s66, 251")
            A.salu("s_cbranch_scc0 K1_END")
            A.salu("s_mov_b64 exec, 3")
            A.salu(f"buffer_load_dword v{tmp}, v{tmp+1}, s[20:23], 0 offen offset:32 sc1")
            A.salu("s_waitcnt vmcnt(0)")
            A.salu(f"v_readlane_b32 s66, v{tmp}, 0")
            A.salu(f"v_readlane_b32 s67, v{tmp}, 1")
            A.salu("s_not_b32 s66, s66")
            A.salu("s_sub_u32 s66, s67, s66")
            A.salu("s_min_u32 s66, s66, 10000")
            A.salu("s_lshl_b32 s66, s66, 3")
            A.salu("s_memrealtime s[96:97]")
            A.salu("s_waitcnt lgkmcnt(0)")
            A.salu("s_mov_b32 s67, s96")
            A.label("K1_DLY")
            A.salu("s_memrealtime s[96:97]")
            A.salu("s_waitcnt lgkmcnt(0)")
            A.salu("s_sub_u32 s96, s96, s67")
            A.salu("s_cmp_lt_u32 s96, s66")
            A.salu("s_cbranch_scc1 K1_DLY")
            return
        if OPT["prof"] == 2:
            A.salu("s_mov_b64 exec, -1")
            A.salu("s_nop 4")
            for i in range(8):
                A.salu(f"v_writelane_b32 v{tmp}, s{64+i}, {i}")
            A.salu(f"v_mbcnt_lo_u32_b32 v{tmp+1}, -1, 0")
            A.salu(f"v_lshlrev_b32 v{tmp+1}, 2, v{tmp+1}")
            A.salu("s_mov_b64 exec, 0xff")
            A.salu("s_nop 4")
            A.salu(f"buffer_atomic_umax v{tmp}, v{tmp+1}, s[20:23], 0 offen offset:32 sc1")
            return
        A.salu("s_memrealtime s[96:97]")
        A.salu("s_waitcnt lgkmcnt(0)")
        A.salu("s_mov_b64 exec, -1")
        A.salu("s_nop 4")
        for i in range(self.n):
            A.salu(f"v_writelane_b32 v{tmp}, s{64+i}, {i}")
        A.salu("s_getreg_b32 s97, hwreg(HW_REG_HW_ID)")
        A.salu(f"v_writelane_b32 v{tmp}, s97, 29")
        A.salu(f"v_writelane_b32 v{tmp}, s98, 30")
        A.salu(f"v_writelane_b32 v{tmp}, s96, 31")
        A.salu(f"s_mov_b32 s60, s{wsreg}")
        A.salu(f"s_and_b32 s61, s{wsreg+1}, 0xffff")
        A.salu("s_mov_b32 s62, 0x10000000")
        A.salu("s_mov_b32 s63, 0x00020000")
        A.salu("s_lshl_b32 s96, s2, 3")
        A.salu(f"s_add_u32 s96, s96, s{sW}")
        A.salu("s_lshl_b32 s96, s96, 7")
        A.salu(f"s_add_u32 s96, s96, {255*1024*1024 + self.kidx*512*1024}")
        A.salu(f"v_mbcnt_lo_u32_b32 v{tmp+1}, -1, 0")
        A.salu(f"v_mbcnt_hi_u32_b32 v{tmp+1}, -1, v{tmp+1}")
        A.salu(f"v_lshlrev_b32 v{tmp+1}, 2, v{tmp+1}")
        A.salu("s_mov_b64 exec, 0xffffffff")
        A.salu("s_nop 4")
        A.salu(f"buffer_store_dword v{tmp}, v{tmp+1}, s[60:63], s96 offen")
        print("stamps k%d:" % self.kidx, self.names)

def gen_k1(A):
    V = A.valu
    T0, T1, T2, T3, T4, T5, T6, T7 = range(0, 8)
    XO, WO, KO = 8, 10, 12
    BW, BX, BK, BV = 14, 15, 16, 17
    LSUM, OST = 18, 19
    SUMA, SUMB, MX, MX2 = 20, 21, 22, 23
    AD = 24
    FR = 32
    NEGM = 48
    QB = 64
    S = 96
    O = 160
    P = 224
    sBLK, sKVH, sB, sW, sHL, sRT = 26, 27, 4, 5, 6, 7
    SX, SW_, SK, SV, SO = 28, 32, 36, 40, 44
    sWL, sXB, sWB, sKVB, sT, sOB = 48, 49, 50, 51, 52, 53
    sMASK, sTHR, sC = 54, 56, 57
    sW3, sWL4, sT2 = 58, 59, 55

    A.raw(f".p2align 8\n.globl k1_kernel\n.type k1_kernel,@function\nk1_kernel:\nK1_BEGIN:")
    A.salu("s_cmp_ge_u32 s2, 256")
    A.salu("s_cbranch_scc1 K1_END")
    A.salu("s_load_dwordx8 s[8:15], s[0:1], 0")
    A.salu("s_load_dwordx8 s[16:23], s[0:1], 40")
    A.salu("s_load_dwordx2 s[24:25], s[0:1], 96")
    if OPT["cpf"]:
        A.salu("s_getpc_b64 s[60:61]")
        A.salu("s_and_b32 s60, s60, 0xffffff00")
        A.salu("s_and_b32 s61, s61, 0xffff")
        A.salu("s_mov_b32 s62, CODE_BYTES")
        A.salu("s_mov_b32 s63, 0x00020000")
        V(f"v_lshlrev_b32 v{T7}, 7, v0", w={T7}, r={0})
        A.vmem(f"buffer_load_dword v{NEGM+15}, v{T7}, s[60:63], 0 offen", w={NEGM+15}, r={T7})
    A.salu("s_and_b32 s3, s2, 7")
    A.salu(f"s_lshr_b32 s{sB}, s2, 3")
    A.salu(f"s_lshr_b32 s{sBLK}, s3, 2")
    A.salu("s_and_b32 s3, s3, 3")
    A.salu("s_lshl_b32 s3, s3, 2")
    A.salu(f"s_and_b32 s{sKVH}, s{sB}, 3")
    A.salu(f"s_add_u32 s{sKVH}, s{sKVH}, s3")
    A.salu(f"s_lshr_b32 s{sB}, s{sB}, 2")
    V(f"v_lshrrev_b32 v{T1}, 6, v0", w={T1}, r={0})
    A._emit(I(f"v_readfirstlane_b32 s{sW}, v{T1}", "rdlane", r={T1}, sw={sW}))
    V(f"v_and_b32 v{T0}, 63, v0", w={T0}, r={0})
    if OPT["fat"]:
        A.salu(f"s_bfe_u32 s{sHL}, s{sW}, 0x10001", sr={sW})
        A.salu(f"s_and_b32 s{sRT}, s{sW}, 1", sr={sW})
        A.salu(f"s_lshl_b32 s{sRT}, s{sRT}, 1")
        A.salu(f"s_lshr_b32 s3, s{sW}, 2", sr={sW})
        A.salu(f"s_add_u32 s{sRT}, s{sRT}, s3")
    else:
        A.salu(f"s_lshr_b32 s{sHL}, s{sW}, 2", sr={sW})
        A.salu(f"s_and_b32 s{sRT}, s{sW}, 3", sr={sW})
    A.salu(f"s_lshl_b32 s{sWL}, s{sW}, 11", sr={sW})
    A.salu(f"s_and_b32 s{sW3}, s{sW}, {3 if OPT['ld4'] else 1}", sr={sW})
    A.salu(f"s_lshl_b32 s{sWL4}, s{sW3}, 11")
    A.salu(f"s_mul_i32 s{sXB}, s{sB}, 129024")
    A.salu(f"s_lshl_b32 s{sWB}, s{sKVH}, 9")
    A.salu(f"s_lshl_b32 s{sKVB}, s{sB}, 4")
    A.salu(f"s_add_u32 s{sKVB}, s{sKVB}, s{sKVH}")
    if OPT["rot"] == 1:
        A.salu(f"s_and_b32 s{sMASK}, s{sKVB}, 7")
    elif OPT["rot"] == 2:
        A.salu(f"s_add_u32 s{sMASK}, s{sKVH}, s{sB}")
        A.salu(f"s_and_b32 s{sMASK}, s{sMASK}, 7")
    elif OPT["rot"] == 3:
        A.salu(f"s_and_b32 s{sMASK}, s{sB}, 7")
    A.salu(f"s_lshl_b32 s{sMASK}, s{sMASK}, 14")
    A.salu(f"s_lshl_b32 s{sKVB}, s{sKVB}, 17")
    A.salu(f"s_mov_b32 s{sTHR}, 0x4b800000")
    c = math.log2(math.e) / math.sqrt(128.0)
    import struct
    cbits = struct.unpack("<I", struct.pack("<f", c))[0]
    A.salu(f"s_mov_b32 s{sC}, {cbits:#x}")
    L = T0
    for q in range(2):
        V(f"v_lshrrev_b32 v{T1}, 3, v{L}", w={T1}, r={L})
        A.salu(f"s_lshl_b32 s3, s{sW3}, 4")
        A.salu(f"s_add_u32 s3, s3, {8*q}")
        V(f"v_add_u32 v{T1}, s3, v{T1}", w={T1}, r={T1})
        V(f"v_mul_u32_u24 v{T1}, 1152, v{T1}", w={T1}, r={T1})
        V(f"v_and_b32 v{T2}, 7, v{L}", w={T2}, r={L})
        V(f"v_lshrrev_b32 v{T3}, 4, v{L}", w={T3}, r={L})
        V(f"v_xor_b32 v{T2}, v{T2}, v{T3}", w={T2}, r={T2, T3})
        if q: V(f"v_xor_b32 v{T2}, 4, v{T2}", w={T2}, r={T2})
        V(f"v_lshl_add_u32 v{XO+q}, v{T2}, 4, v{T1}", w={XO+q}, r={T2, T1})
        V(f"v_lshrrev_b32 v{T3}, 5, v{L}", w={T3}, r={L})
        A.salu(f"s_lshl_b32 s3, s{sW3}, 2")
        A.salu(f"s_add_u32 s3, s3, {2*q}")
        V(f"v_add_u32 v{T1}, s3, v{T3}", w={T1}, r={T3})
        V(f"v_lshlrev_b32 v{T1}, 13, v{T1}", w={T1}, r={T1})
        V(f"v_or_b32 v{T3}, {2*q}, v{T3}", w={T3}, r={T3})
        V(f"v_lshlrev_b32 v{T3}, 2, v{T3}", w={T3}, r={T3})
        V(f"v_and_b32 v{T2}, 31, v{L}", w={T2}, r={L})
        V(f"v_xor_b32 v{T2}, v{T2}, v{T3}", w={T2}, r={T2, T3})
        V(f"v_lshl_add_u32 v{WO+q}, v{T2}, 4, v{T1}", w={WO+q}, r={T2, T1})
        V(f"v_lshrrev_b32 v{T3}, 4, v{L}", w={T3}, r={L})
        A.salu(f"s_lshl_b32 s3, s{sW}, 3")
        A.salu(f"s_add_u32 s3, s3, {4*q}")
        V(f"v_add_u32 v{T1}, s3, v{T3}", w={T1}, r={T3})
        V(f"v_lshlrev_b32 v{T1}, 8, v{T1}", w={T1}, r={T1})
        A.salu(f"s_and_b32 s3, s{sW}, 1")
        A.salu(f"s_lshl_b32 s3, s3, 1")
        A.salu(f"s_or_b32 s3, s3, {q}")
        V(f"v_lshlrev_b32 v{T3}, 2, v{T3}", w={T3}, r={T3})
        V(f"v_or_b32 v{T3}, s3, v{T3}", w={T3}, r={T3})
        V(f"v_and_b32 v{T2}, 15, v{L}", w={T2}, r={L})
        V(f"v_xor_b32 v{T2}, v{T2}, v{T3}", w={T2}, r={T2, T3})
        V(f"v_lshl_add_u32 v{KO+q}, v{T2}, 4, v{T1}", w={KO+q}, r={T2, T1})
    V(f"v_lshrrev_b32 v{T1}, 5, v{L}", w={T1}, r={L})
    V(f"v_bfe_u32 v{T2}, v{L}, 4, 1", w={T2}, r={L})
    V(f"v_bfe_u32 v{T3}, v{L}, 2, 2", w={T3}, r={L})
    V(f"v_and_b32 v{T4}, 3, v{L}", w={T4}, r={L})
    V(f"v_and_b32 v{T5}, 31, v{L}", w={T5}, r={L})
    V(f"v_lshl_add_u32 v{T6}, v{T1}, 3, v{T3}", w={T6}, r={T1, T3})
    V(f"v_lshlrev_b32 v{T6}, 9, v{T6}", w={T6}, r={T6})
    V(f"v_lshlrev_b32 v{T7}, 2, v{T3}", w={T7}, r={T3})
    V(f"v_lshl_add_u32 v{T7}, v{T2}, 1, v{T7}", w={T7}, r={T2, T7})
    V(f"v_and_b32 v{BW}, 1, v{T4}", w={BW}, r={T4})
    V(f"v_add_u32 v{T7}, v{T7}, v{BW}", w={T7}, r={T7, BW})
    A.salu(f"s_lshl_b32 s3, s{sHL}, 4")
    V(f"v_add_u32 v{T7}, s3, v{T7}", w={T7}, r={T7})
    V(f"v_lshl_add_u32 v{T6}, v{T7}, 4, v{T6}", w={T6}, r={T7, T6})
    V(f"v_lshrrev_b32 v{T7}, 1, v{T4}", w={T7}, r={T4})
    V(f"v_lshl_add_u32 v{BW}, v{T7}, 3, v{T6}", w={BW}, r={T7, T6})
    A.salu(f"s_lshl_b32 s3, s{sRT}, 5")
    V(f"v_add_u32 v{T6}, s3, v{T5}", w={T6}, r={T5})
    V(f"v_lshlrev_b32 v{T6}, 7, v{T6}", w={T6}, r={T6})
    V(f"v_bfe_u32 v{T7}, v{T5}, 1, 3", w={T7}, r={T5})
    V(f"v_xor_b32 v{T7}, v{T7}, v{T1}", w={T7}, r={T7, T1})
    V(f"v_lshl_add_u32 v{BX}, v{T7}, 4, v{T6}", w={BX}, r={T7, T6})
    V(f"v_lshlrev_b32 v{T6}, 2, v{T4}", w={T6}, r={T4})
    V(f"v_or_b32 v{T6}, v{T6}, v{T3}", w={T6}, r={T6, T3})
    V(f"v_xor_b32 v{T6}, v{T6}, v{T1}", w={T6}, r={T6, T1})
    V(f"v_lshlrev_b32 v{T7}, 8, v{T5}", w={T7}, r={T5})
    V(f"v_lshl_add_u32 v{BK}, v{T6}, 4, v{T7}", w={BK}, r={T6, T7})
    V(f"v_lshl_add_u32 v{T6}, v{T1}, 2, v{T3}", w={T6}, r={T1, T3})
    V(f"v_lshlrev_b32 v{T6}, 8, v{T6}", w={T6}, r={T6})
    V(f"v_lshrrev_b32 v{T7}, 1, v{T4}", w={T7}, r={T4})
    V(f"v_lshl_add_u32 v{T7}, v{T2}, 1, v{T7}", w={T7}, r={T2, T7})
    V(f"v_xor_b32 v{T7}, v{T7}, v{T1}", w={T7}, r={T7, T1})
    V(f"v_lshl_or_b32 v{T7}, v{T3}, 2, v{T7}", w={T7}, r={T3, T7})
    V(f"v_lshl_add_u32 v{T6}, v{T7}, 4, v{T6}", w={T6}, r={T7, T6})
    V(f"v_and_b32 v{T7}, 1, v{T4}", w={T7}, r={T4})
    V(f"v_lshl_add_u32 v{BV}, v{T7}, 3, v{T6}", w={BV}, r={T7, T6})
    V(f"v_lshlrev_b32 v{T6}, 17, v{T2}", w={T6}, r={T2})
    V(f"v_lshl_add_u32 v{T6}, v{T1}, 8, v{T6}", w={T6}, r={T1, T6})
    V(f"v_and_b32 v{T7}, 15, v{L}", w={T7}, r={L})
    V(f"v_lshl_add_u32 v{OST}, v{T7}, 4, v{T6}", w={OST}, r={T7, T6})
    V(f"v_mov_b32 v{LSUM}, 0", w={LSUM})
    A.waitcnt(lgkm=0)
    A.salu(f"s_cmp_eq_u32 s{sBLK}, 0")
    for k in range(8):
        A.salu(f"s_cselect_b32 s{8+k}, s{8+k}, s{16+k}")
    srd(A, SX, 8, 8 * 112 * 576 * 2)
    srd(A, SK, 10, 8 * 16 * 512 * 128 * 2)
    srd(A, SV, 12, 8 * 16 * 512 * 128 * 2)
    srd(A, SW_, 14, 576 * 4096 * 2)
    srd(A, SO, 24, 2 * O_BLK)
    A.salu(f"s_mul_i32 s{sOB}, s{sBLK}, {O_BLK}")
    A.salu(f"s_mul_i32 s3, s{sB}, 7")
    A.salu(f"s_lshl_b32 s{sT}, s{sRT}, 1")
    A.salu(f"s_add_u32 s3, s3, s{sT}")
    A.salu(f"s_lshl_b32 s3, s3, 17")
    A.salu(f"s_add_u32 s{sOB}, s{sOB}, s3")
    A.salu(f"s_lshl_b32 s3, s{sKVH}, 1")
    A.salu(f"s_add_u32 s3, s3, s{sHL}")
    A.salu(f"s_lshl_b32 s3, s3, 12")
    A.salu(f"s_add_u32 s{sOB}, s{sOB}, s3")
    if OPT["prio"]:
        A.salu(f"s_cmp_ge_u32 s{sW}, 4")
        A.salu("s_cbranch_scc0 K1_PRIO_DONE" if OPT["prio"] == 1 else "s_cbranch_scc1 K1_PRIO_DONE")
        A.salu("s_setprio 1")
        A.label("K1_PRIO_DONE")

    NTT = {0: "", 1: " nt", 2: " sc1", 3: " sc0 sc1", 4: " sc1 nt"}[OPT["ntt"]]
    qunits = []
    for s_ in range(9):
        qunits += [("X", s_), ("W", 2 * s_), ("W", 2 * s_ + 1)]
    kvunits = [("K", 0)]
    for h in range(7):
        kvunits += [("K", h + 1), ("V", h)]
    kvunits += [("V", 7)]
    units = qunits + kvunits
    UK = {idx: 27 + i for i, (t_, idx) in enumerate(kvunits) if t_ == "K"}
    UV = {idx: 27 + i for i, (t_, idx) in enumerate(kvunits) if t_ == "V"}
    stage_units = [list(range(3 * s_, 3 * s_ + 3)) for s_ in range(9)]
    unit_last_vm = {}
    unit_slot = {}
    free = list(range(NSLOT))
    nq = [0]; nkv = [0]; xch = []
    KQ = FR
    DV = FR + 2
    NSTG = OPT["nstg"]
    STG = [S + 32, O, O + 32, P][:NSTG]

    def unit_info(u):
        typ, idx = units[u]
        if typ == "X": return sXB, idx * 128, SX, XO, 2 * 16 * 1152, "ntx"
        if typ == "W": return sWB, idx * 32 * 8192, SW_, WO, 2 * 4 * 8192, "ntw"
        if typ == "K": return sKVB, idx * 64 * 256, SK, KO, 4096, "ntkv"
        return sKVB, idx * 64 * 256, SV, KO, 4096, "ntkv"

    def sbase(base, const):
        if base == sKVB and OPT["rot"]:
            A.salu(f"s_add_u32 s{sT}, s{sMASK}, {const}")
            A.salu(f"s_and_b32 s{sT}, s{sT}, 0x1ffff")
            A.salu(f"s_or_b32 s{sT}, s{sT}, s{sKVB}")
        else:
            A.salu(f"s_add_u32 s{sT}, s{base}, {const}")

    def issue_unit_q(u, stage_reg=None):
        if stage_reg is None:
            slot = free.pop(0)
            unit_slot[u] = slot
        base, const, sr_, vo, delta, nto = unit_info(u)
        if vo == KO: vo = KQ
        nt = " nt" if OPT[nto] else ""
        for hv in range(4):
            A.salu(f"s_add_u32 s{sT}, s{base}, {const + delta * hv}")
            for q in range(2):
                if stage_reg is None:
                    A.salu(f"s_add_u32 m0, s{sWL4}, {slot * SLOT + hv * 4096 + q * 1024}", m0w=True)
                    k = A.vmem(f"buffer_load_dwordx4 v{vo+q}, s[{sr_}:{sr_+3}], s{sT} offen{nt} lds", kind="dma", r={vo + q}, m0r=True)
                else:
                    d = stage_reg + (hv * 2 + q) * 4
                    k = A.vmem(f"buffer_load_dwordx4 {vname(d,4)}, v{vo+q}, s[{sr_}:{sr_+3}], s{sT} offen{nt}", w=vr(d, 4), r={vo + q})
        unit_last_vm[u] = k

    def issue_unit_4(u):
        slot = free.pop(0)
        unit_slot[u] = slot
        base, const, sr_, vo, delta, nto = unit_info(u)
        nt = " nt" if OPT[nto] else ""
        sbase(base, const)
        if vo != KO: A.salu(f"s_add_u32 s{sT2}, s{base}, {const + 2 * delta}")
        for hv in range(2):
            for q in range(2):
                A.salu(f"s_add_u32 m0, s{sWL4}, {slot * SLOT + hv * 8192 + q * 1024}", m0w=True)
                if vo == KO:
                    va = (KQ if hv == 0 else KO) + q; so = sT
                else:
                    va = vo + q; so = sT if hv == 0 else sT2
                k = A.vmem(f"buffer_load_dwordx4 v{va}, s[{sr_}:{sr_+3}], s{so} offen{nt} lds", kind="dma", r={va}, m0r=True)
        unit_last_vm[u] = k

    def flood():
        if not OPT["l2pf"]: return
        V(f"v_lshrrev_b32 v{T1}, 2, v{L}", w={T1}, r={L})
        V(f"v_lshlrev_b32 v{T1}, 13, v{T1}", w={T1}, r={T1})
        V(f"v_and_b32 v{T2}, 3, v{L}", w={T2}, r={L})
        V(f"v_lshl_add_u32 v{T1}, v{T2}, 7, v{T1}", w={T1}, r={T2, T1})
        A.salu(f"s_lshl_b32 s3, s{sW}, 4")
        A.salu(f"s_min_u32 s3, s3, 56")
        A.salu(f"s_mul_i32 s{sT}, s{sB}, 72")
        A.salu(f"s_add_u32 s3, s3, s{sT}")
        A.salu(f"s_lshl_b32 s3, s3, 13")
        A.salu(f"s_add_u32 s3, s3, s{sWB}")
        A.vmem(f"buffer_load_dword v{T4}, v{T1}, s[{SW_}:{SW_+3}], s3 offen{NTT}", w={T4}, r={T1})
        V(f"v_lshlrev_b32 v{T2}, 7, v{L}", w={T2}, r={L})
        A.salu(f"s_and_b32 s3, s{sKVH}, 3")
        A.salu(f"s_mul_i32 s3, s3, 32256")
        A.salu(f"s_and_b32 s{sT}, s{sW}, 3")
        A.salu(f"s_lshl_b32 s{sT}, s{sT}, 13")
        A.salu(f"s_add_u32 s3, s3, s{sT}")
        A.salu(f"s_add_u32 s3, s3, s{sXB}")
        A.vmem(f"buffer_load_dword v{T5}, v{T2}, s[{SX}:{SX+3}], s3 offen{NTT}", w={T5}, r={T2})

    def dump_unit(u, stage_reg):
        slot = free.pop(0)
        unit_slot[u] = slot
        V(f"v_add_u32 v{DV+1}, {slot * SLOT}, v{DV}", w={DV + 1}, r={DV})
        for hv in range(4):
            for q in range(2):
                A.ds_write_b128(DV + 1, stage_reg + (hv * 2 + q) * 4, hv * 4096 + q * 1024)

    def dma_items(u):
        slot = free.pop(0)
        unit_slot[u] = slot
        base, const, sr_, vo, delta, nto = unit_info(u)
        nt = " nt" if OPT[nto] else ""
        def mk(q):
            def f():
                sbase(base, const)
                A.salu(f"s_add_u32 m0, s{sWL}, {slot * SLOT + q * 1024}", m0w=True)
                k = A.vmem(f"buffer_load_dwordx4 v{vo+q}, s[{sr_}:{sr_+3}], s{sT} offen{nt} lds", kind="dma", r={vo + q}, m0r=True)
                unit_last_vm[u] = k
            return f
        if not OPT["stag"]: return [mk(0), mk(1)]
        G = 8 // OPT["stag"]
        def cond(f, g):
            def h():
                lab = f"K1_D{nlab[0]}"; nlab[0] += 1
                A.salu(f"s_cmp_eq_u32 s{sT2}, {g}")
                A.salu(f"s_cbranch_scc0 {lab}")
                n0 = len(A.out)
                f()
                for o in A.out[n0:]: o.ws = 0
                A.label(lab)
                if g < G - 1: A.nvm -= 1
            return h
        return [cond(mk(q), g) for q in range(2) for g in range(G)]
    nlab = [0]

    NQ = OPT["nq"]
    PF = Prof(A, 0)
    PF.stamp("start")

    def addr_items(dst, base, slot, xors):
        it = [lambda: V(f"v_add_u32 v{dst[0]}, {slot * SLOT}, v{base}", w={dst[0]}, r={base})]
        for i, x in enumerate(xors):
            if i == 0: continue
            it.append(lambda i=i, x=x: V(f"v_xor_b32 v{dst[i]}, {x}, v{dst[0]}", w={dst[i]}, r={dst[0]}))
        return it

    A.salu(f"s_cmp_lt_u32 s{sW}, 4")
    A.salu("s_cbranch_scc1 K1_FAT")
    pf0 = PF.n
    staged = []
    if OPT["ld4"]:
        for q in range(2):
            V(f"v_subrev_u32 v{KQ+q}, {4*8*256}, v{KO+q}", w={KQ + q}, r={KO + q})
        NL = NSLOT - NQ
        def refill(s):
            done_q = 3 * max(s, 0)
            while nq[0] < 27 and nq[0] - done_q < NQ and free:
                issue_unit_4(nq[0]); nq[0] += 1
        def kv_issue():
            if nkv[0] < NL:
                if free:
                    issue_unit_4(27 + nkv[0]); nkv[0] += 1
        LW, LX = FR + 4, FR + 5
        nroll = [NQ // 3]
        def lroll(n):
            n = min(n, 9 - nroll[0])
            if n <= 0 or OPT["roll"] != 2: return
            a = nroll[0]; nroll[0] += n
            if n < 8:
                m = (1 << (8 * n)) - 1
                A.salu(f"s_mov_b32 exec_lo, {m & 0xffffffff}")
                A.salu(f"s_mov_b32 exec_hi, {m >> 32}")
            A.salu(f"s_add_u32 s3, s8, {a * 64 * 8192}")
            A.vmem(f"buffer_load_dword v{FR+6}, v{LW}, s[{SW_}:{SW_+3}], s3 offen{NTT}", w={FR + 6}, r={LW})
            A.vmem(f"buffer_load_dword v{FR+7}, v{LX}, s[{SX}:{SX+3}], s9 offen offset:{a * 128}{NTT}", w={FR + 7}, r={LX})
            if n < 8: A.salu("s_mov_b64 exec, -1")
        refill(-1)
        for _ in range(OPT["kv0"]): kv_issue()
        if not OPT["roll"]: flood()
        if OPT["roll"] == 2:
            V(f"v_bfe_u32 v{T1}, v{L}, 2, 1", w={T1}, r={L})
            A.salu(f"s_lshl_b32 s3, s{sW3}, 1")
            V(f"v_add_u32 v{T1}, s3, v{T1}", w={T1}, r={T1})
            V(f"v_lshrrev_b32 v{T3}, 3, v{L}", w={T3}, r={L})
            V(f"v_lshl_add_u32 v{T1}, v{T3}, 6, v{T1}", w={T1}, r={T3, T1})
            V(f"v_lshlrev_b32 v{T1}, 13, v{T1}", w={T1}, r={T1})
            V(f"v_and_b32 v{T2}, 3, v{L}", w={T2}, r={L})
            V(f"v_lshl_add_u32 v{LW}, v{T2}, 7, v{T1}", w={LW}, r={T2, T1})
            V(f"v_and_b32 v{T1}, 7, v{L}", w={T1}, r={L})
            V(f"v_min_u32 v{T1}, 6, v{T1}", w={T1}, r={T1})
            A.salu(f"s_mul_i32 s3, s{sW3}, 7")
            V(f"v_add_u32 v{T1}, s3, v{T1}", w={T1}, r={T1})
            V(f"v_mul_u32_u24 v{T1}, 1152, v{T1}", w={T1}, r={T1})
            V(f"v_lshl_add_u32 v{LX}, v{T3}, 7, v{T1}", w={LX}, r={T3, T1})
            A.salu(f"s_lshl_b32 s8, s{sB}, 16")
            A.salu(f"s_add_u32 s8, s8, s{sWB}")
            A.salu(f"s_and_b32 s9, s{sKVH}, 3")
            A.salu(f"s_mul_i32 s9, s9, {28*1152}")
            A.salu(f"s_add_u32 s9, s9, s{sXB}")
            lroll(OPT["pflead"] - nroll[0])
        for s in range(9):
            A.wait_vm(max(unit_last_vm[u] for u in stage_units[s]))
            A.barrier()
            PF.stamp(f"q{s}")
            if s > 0:
                for u in stage_units[s - 1]: free.append(unit_slot[u])
            refill(s)
            lroll(OPT["pfrate"])
            if s == 8:
                xch.append(free.pop(0)); xch.append(free.pop(0))
            elif s >= OPT["kvs"]:
                for _ in range(OPT["kvrate"]): kv_issue()
            if nq[0] == 27 and nkv[0] >= NL:
                while free:
                    issue_unit_4(27 + nkv[0]); nkv[0] += 1
        A.salu("s_branch K1_ATT")
        ldr_vm = (A.nvm, A.vm_done)
    else:
        A.salu(f"s_cmp_ge_u32 s{sW}, 6")
        A.salu("s_cbranch_scc1 K1_KVL")
        pf0 = PF.n
        kvslots = [free.pop() for _ in range(NSLOT - NQ)]
        def refill(s):
            done_q = 3 * max(s, 0)
            while nq[0] < 27 and nq[0] - done_q < NQ and free:
                issue_unit_q(nq[0]); nq[0] += 1
        refill(-1)
        for s in range(9):
            A.wait_vm(max(unit_last_vm[u] for u in stage_units[s]))
            A.barrier()
            PF.stamp(f"q{s}")
            if s > 0:
                for u in stage_units[s - 1]: free.append(unit_slot[u])
            refill(s)
            if s == 8:
                xch.append(free.pop(0)); xch.append(free.pop(0))
        A.waitcnt(vm=0)
        A.vm_done = A.nvm
        A.salu("s_branch K1_ATT")
        A.label("K1_KVL")
        A.win = []
        A.salu("s_nop 4")
        PF.n = pf0; PF.names = PF.names[:pf0]
        for q in range(2):
            V(f"v_subrev_u32 v{KQ+q}, {6*8*256}, v{KO+q}", w={KQ + q}, r={KO + q})
        V(f"v_lshlrev_b32 v{DV}, 4, v{L}", w={DV}, r={L})
        V(f"v_add_u32 v{DV}, s{sWL4}, v{DV}", w={DV}, r={DV})
        late_free = free[:]; free[:] = kvslots
        NL = len(kvslots)
        TV = FR + 4
        V(f"v_lshlrev_b32 v{TV}, 7, v{L}", w={TV}, r={L})
        A.salu(f"s_lshl_b32 s3, s{sW3}, 13")
        V(f"v_add_u32 v{TV}, s3, v{TV}", w={TV}, r={TV})
        NT = OPT["kvt"]
        ntouch = [0]
        def kv_issue():
            i = nkv[0]
            if i < NL: issue_unit_q(27 + i)
            elif i < NL + NSTG: issue_unit_q(27 + i, STG[i - NL])
            else:
                if ntouch[0] < NT:
                    u = 27 + NL + NSTG + ntouch[0]
                    base, const, sr_, vo, delta, nto = unit_info(u)
                    A.salu(f"s_add_u32 s{sT}, s{base}, {const}")
                    A.vmem(f"buffer_load_dword v{TV+1}, v{TV}, s[{sr_}:{sr_+3}], s{sT} offen", w={TV + 1}, r={TV})
                    ntouch[0] += 1
                return
            nkv[0] += 1
        for _ in range(OPT["kv0"]): kv_issue()
        for s in range(9):
            A.barrier()
            PF.stamp(f"q{s}")
            for _ in range(OPT["kvrate"]): kv_issue()
        assert nkv[0] == NL + NSTG
        free[:] = late_free
        staged = [(27 + NL + i, STG[i]) for i in range(NSTG)]
        while staged and free:
            u, r_ = staged.pop(0)
            A.wait_vm(unit_last_vm[u])
            dump_unit(u, r_)
        A.waitcnt(vm=0)
        A.vm_done = A.nvm
        A.wait_ds_all()
        A.salu("s_branch K1_ATT")
    A.label("K1_FAT")
    A.win = []
    A.salu("s_nop 4")
    PF.n = pf0; PF.names = PF.names[:pf0]
    TW, TX = XO, XO + 1
    if OPT["roll"] == 2:
        pass
    elif OPT["ld4"] and not OPT["roll"]:
        V(f"v_lshlrev_b32 v{TW}, 7, v{L}", w={TW}, r={L})
        A.salu(f"s_lshl_b32 s3, s{sW}, 13")
        V(f"v_add_u32 v{TW}, s3, v{TW}", w={TW}, r={TW})
    else:
        TW, TX = XO, XO + 1
        V(f"v_bfe_u32 v{T1}, v{L}, 2, 1", w={T1}, r={L})
        A.salu(f"s_lshl_b32 s3, s{sW}, 1")
        V(f"v_add_u32 v{T1}, s3, v{T1}", w={T1}, r={T1})
        V(f"v_lshlrev_b32 v{T1}, 13, v{T1}", w={T1}, r={T1})
        V(f"v_and_b32 v{T2}, 3, v{L}", w={T2}, r={L})
        V(f"v_lshl_add_u32 v{TW}, v{T2}, 7, v{T1}", w={TW}, r={T2, T1})
        V(f"v_and_b32 v{T1}, 7, v{L}", w={T1}, r={L})
        V(f"v_min_u32 v{T1}, 6, v{T1}", w={T1}, r={T1})
        A.salu(f"s_mul_i32 s3, s{sW}, 7")
        V(f"v_add_u32 v{T1}, s3, v{T1}", w={T1}, r={T1})
        V(f"v_mul_u32_u24 v{TX}, 1152, v{T1}", w={TX}, r={T1})
        A.salu(f"s_lshl_b32 s8, s{sB}, 16")
        A.salu(f"s_add_u32 s8, s8, s{sWB}")
        A.salu(f"s_and_b32 s9, s{sKVH}, 3")
        A.salu(f"s_mul_i32 s9, s9, {28*1152}")
        A.salu(f"s_add_u32 s9, s9, s{sXB}")
    def touch(s_):
        if not OPT["l2pf"] or s_ > 8: return
        A.salu(f"s_add_u32 s3, s8, {s_ * 64 * 8192}")
        A.vmem(f"buffer_load_dword v{T4}, v{TW}, s[{SW_}:{SW_+3}], s3 offen{NTT}", w={T4}, r={TW})
        A.vmem(f"buffer_load_dword v{T5}, v{TX}, s[{SX}:{SX+3}], s9 offen offset:{s_ * 128}{NTT}", w={T5}, r={TX})
    if OPT["roll"] == 2:
        touch = lambda s_: None
    elif OPT["roll"]:
        touch1 = touch
        nroll = [2]
        def roll(n):
            for _ in range(n):
                touch1(nroll[0]); nroll[0] += 1
        roll(OPT["pflead"] - 2)
        touch = lambda s_: roll(OPT["pfrate"])
    elif OPT["ld4"]:
        flood()
        ntouch = [0]
        def touch(s_):
            s_ -= OPT["pflead"]
            if s_ < OPT["kvt0"]: return
            for _ in range(OPT["kvtr"]):
                if ntouch[0] >= OPT["kvt"]: return
                ua = 27 + NL + 1 + ntouch[0]
                ia = unit_info(ua); ib = unit_info(ua + 1)
                A.salu(f"s_cmp_lt_u32 s{sW}, 2")
                A.salu(f"s_mov_b32 s3, {ib[1] - 16384}")
                A.salu(f"s_cselect_b32 s3, {ia[1]}, s3")
                A.salu(f"s_cselect_b32 s60, s{ia[2]}, s{ib[2]}")
                A.salu(f"s_cselect_b32 s61, s{ia[2]+1}, s{ib[2]+1}")
                A.salu(f"s_mov_b32 s62, s{ia[2]+2}")
                A.salu(f"s_mov_b32 s63, s{ia[2]+3}")
                A.salu(f"s_add_u32 s3, s3, s{sKVB}")
                A.vmem(f"buffer_load_dword v{T4}, v{TW}, s[60:63], s3 offen", w={T4}, r={TW})
                ntouch[0] += 2
    if not OPT["ld4"]:
        for s_ in range(2, OPT["pflead"]): touch(s_)
    if OPT["tlbw"]:
        A.salu("s_load_dwordx2 s[16:17], s[0:1], 32")
        A.salu("s_load_dwordx2 s[18:19], s[0:1], 72")
        A.salu("s_load_dwordx2 s[20:21], s[0:1], 80")
        D = NEGM
        V(f"v_lshlrev_b32 v{T1}, 12, v{L}", w={T1}, r={L})
        V(f"v_and_b32 v{T1}, 0x1ffff, v{T1}", w={T1}, r={T1})
        A.vmem(f"buffer_load_dword v{D}, v{T1}, s[{SV}:{SV+3}], s{sKVB} offen", w={D}, r={T1})
        if OPT["tlbw"] > 1:
            A.vmem(f"buffer_load_dword v{D+1}, v{T1}, s[{SK}:{SK+3}], s{sKVB} offen", w={D + 1}, r={T1})
        V(f"v_min_u32 v{T2}, 6, v{L}", w={T2}, r={L})
        V(f"v_lshlrev_b32 v{T2}, 17, v{T2}", w={T2}, r={T2})
        A.salu(f"s_mul_i32 s3, s{sBLK}, {O_BLK}")
        A.salu(f"s_mul_i32 s{sT}, s{sB}, {7*131072}")
        A.salu(f"s_add_u32 s3, s3, s{sT}")
        if OPT["fuse"]:
            A.salu(f"s_lshl_b32 s{sT}, s{sKVH}, 13")
            A.salu(f"s_add_u32 s3, s3, s{sT}")
            A.vmem(f"buffer_store_dword v{T2}, v{T2}, s[{SO}:{SO+3}], s3 offen sc1", r={T2}, storedata={T2})
        else:
            A.vmem(f"buffer_load_dword v{D+2}, v{T2}, s[{SO}:{SO+3}], s3 offen", w={D + 2}, r={T2})
        V(f"v_lshlrev_b32 v{T3}, 16, v{L}", w={T3}, r={L})
        A.salu("s_waitcnt lgkmcnt(0)")
        A.salu(f"s_cmp_eq_u32 s{sBLK}, 0")
        A.salu("s_cselect_b32 s60, s16, s18")
        A.salu("s_cselect_b32 s61, s17, s19")
        A.salu("s_and_b32 s61, s61, 0xffff")
        A.salu(f"s_mov_b32 s62, {4096*576*2}")
        A.salu("s_mov_b32 s63, 0x00020000")
        A.salu(f"s_mov_b32 s3, {8*65536}")
        A.vmem(f"buffer_load_dword v{D+3}, v{T3}, s[60:63], 0 offen", w={D + 3}, r={T3})
        A.vmem(f"buffer_load_dword v{D+4}, v{T3}, s[60:63], s3 offen", w={D + 4}, r={T3})
        A.salu("s_mov_b32 s16, s20")
        A.salu("s_and_b32 s17, s21, 0xffff")
        A.salu(f"s_mov_b32 s18, {896*1152*2}")
        A.salu("s_mov_b32 s19, 0x00020000")
        A.vmem(f"buffer_load_dword v{D+5}, v{T3}, s[16:19], 0 offen", w={D + 5}, r={T3})
    QA = [S, O]
    FBW = [P, QB]; FBX = [P + 16, QB + 16]
    AW = [FR, FR + 4]; AX = FR + 8
    def qaddr(s):
        u0 = 3 * s
        return (addr_items([AX + i for i in range(4)], BX, unit_slot[u0], [0, 32, 64, 96]) +
                addr_items([AW[0] + i for i in range(4)], BW, unit_slot[u0 + 1], [0, 64, 128, 192]) +
                addr_items([AW[1] + i for i in range(4)], BW, unit_slot[u0 + 2], [0, 64, 128, 192]))
    def qread_items(ks):
        it = [lambda: A.ds_read_b128(FBX[ks % 2], AX + ks), lambda: A.ds_read_b128(FBX[ks % 2] + 4, AX + ks, 4096)]
        for t in range(4):
            for j in range(2):
                it.append(lambda t=t, j=j: A.ds_read_tr(FBW[ks % 2] + 4 * t + 2 * j, AW[ks // 2] + t, ((ks % 2) * 16 + 4 * j) * 512))
        return it
    def qreads(ks):
        for it in qread_items(ks): last = it()
        return last
    for it in qaddr(0): it()
    A.barrier()
    PF.stamp("q0")
    pend = qreads(0)
    touch(OPT["pflead"])
    QI = OPT["qi"]
    for s in range(9):
        for ks in range(4):
            A.wait_ds(pend)
            rq = []
            if ks < 3:
                if QI: rq = qread_items(ks + 1)
                else: pend = qreads(ks + 1)
            nxt = qaddr(s + 1) if (ks == 3 and s < 8) else []
            m = 0
            for t in range(4):
                for r2 in range(2):
                    A.mfma(QA[r2] + 16 * t, FBW[ks % 2] + 4 * t, FBX[ks % 2] + 4 * r2, "zero" if (s == 0 and ks == 0) else None)
                    if nxt:
                        if m < 2:
                            for it in nxt[6 * m: 6 * m + 6]: it()
                        if m == 1:
                            A.barrier()
                            PF.stamp(f"q{s+1}")
                            if QI: rq = qread_items(0)
                            else: pend = qreads(0)
                        if m == 3: touch(s + 1 + OPT["pflead"])
                    for _ in range(QI):
                        if rq: pend = rq.pop(0)()
                    m += 1
            assert not rq
    A.salu(f"s_lshr_b32 s3, s{sW}, 1")
    A.salu(f"s_cmp_eq_u32 s3, 0")
    A.salu(f"s_cselect_b32 s3, {xch[0]}, {xch[1]}")
    A.salu(f"s_lshl_b32 s3, s3, 14")
    A.salu(f"s_and_b32 s{sT}, s{sW}, 1")
    A.salu(f"s_lshl_b32 s{sT}, s{sT}, 13")
    A.salu(f"s_add_u32 s3, s3, s{sT}")
    V(f"v_lshlrev_b32 v{T6}, 4, v{L}", w={T6}, r={L})
    V(f"v_add_u32 v{T6}, s3, v{T6}", w={T6}, r={T6})
    for i in range(64):
        V(f"v_mul_f32 v{O+i}, s{sC}, v{O+i}", w={O + i}, r={O + i})
    for q in range(32):
        V(f"v_cvt_pk_bf16_f32 v{P+q}, v{O+2*q}, v{O+2*q+1}", w={P + q}, r={O + 2 * q, O + 2 * q + 1})
        if q % 4 == 3:
            A.ds_write_b128(T6, P + q - 3, (q // 4) * 1024)
    for i in range(64):
        V(f"v_mul_f32 v{S+i}, s{sC}, v{S+i}", w={S + i}, r={S + i})
    for q in range(32):
        V(f"v_cvt_pk_bf16_f32 v{QB+q}, v{S+2*q}, v{S+2*q+1}", w={QB + q}, r={S + 2 * q, S + 2 * q + 1})
    A.wait_ds_all()
    A.waitcnt(vm=0)
    A.vm_done = A.nvm
    if OPT["ld4"]:
        A.nvm, A.vm_done = ldr_vm
    A.label("K1_ATT")
    A.win = []
    A.salu("s_nop 4")
    if OPT["stag"]:
        A.salu(f"s_lshr_b32 s{sT2}, s{sW}, {OPT['stag'] - 1}")

    SETA = [AD + i for i in range(8)]
    SETB = [XO, XO + 1, WO, WO + 1, BW, BX, T4, T5]
    kx = [32 * ks for ks in range(8)]
    vx = [(t << 6) ^ (32 * jj) for t in range(4) for jj in range(2)]
    SB = lambda h: S + 32 * (h % 2)
    PB = lambda h: P + 16 * (h % 2)
    phases = [("qk", 0)] + [x for h in range(7) for x in (("qk", h + 1), ("pv", h))] + [("pv", 7)]
    pset = {}
    for ph in phases:
        pset[ph] = SETA if ph[0] == "qk" else SETB
    pset[("qk", 0)] = SETB; pset[("pv", 7)] = SETA
    punit = lambda ph: UK[ph[1]] if ph[0] == "qk" else UV[ph[1]]
    def paddr(ph):
        u = punit(ph)
        return addr_items(pset[ph], BK if ph[0] == "qk" else BV, unit_slot[u], kx if ph[0] == "qk" else vx)
    mf = [(ph, i) for ph in phases for i in range(16)]
    syncJ = list(range(0, 6, OPT["bstep"]))
    if OPT["fuse"]:
        syncJ.append(6)
        K2 = K2Fused(A, sW, SO, QB)
    sync_pos = [phases.index(("pv", j)) * 16 + 12 for j in syncJ]
    first_read = {}
    for n, (ph, i) in enumerate(mf):
        first_read.setdefault(punit(ph), max(n - 4, -1))
    last_read = {}
    for n, (ph, i) in enumerate(mf):
        last_read[punit(ph)] = n - 4
    def publish_set(pos_from, pos_to):
        return [u for u, fr in first_read.items() if pos_from <= fr < pos_to]
    freed = set()
    dmaq = []
    def refill_att():
        while nkv[0] < 16 and free:
            dmaq.extend(dma_items(27 + nkv[0])); nkv[0] += 1

    pub = publish_set(-1, sync_pos[0])
    A.wait_vm(max(unit_last_vm[u] for u in pub))
    A.barrier()
    PF.stamp("a0")
    for u in stage_units[8]: free.append(unit_slot[u])
    A.salu(f"s_cmp_lt_u32 s{sW}, 4")
    A.salu(f"s_cbranch_scc1 K1_QGOT")
    if staged:
        A.salu(f"s_cmp_lt_u32 s{sW}, 6")
        A.salu(f"s_cbranch_scc1 K1_NODUMP")
        while staged:
            u, r_ = staged.pop(0)
            dump_unit(u, r_)
        A.label("K1_NODUMP")
    refill_att()
    A.salu(f"s_bfe_u32 s3, s{sW}, 0x10001")
    A.salu(f"s_cmp_eq_u32 s3, 0")
    A.salu(f"s_cselect_b32 s3, {xch[0]}, {xch[1]}")
    A.salu(f"s_lshl_b32 s3, s3, 14")
    A.salu(f"s_and_b32 s{sT}, s{sW}, 1")
    A.salu(f"s_lshl_b32 s{sT}, s{sT}, 13")
    A.salu(f"s_add_u32 s3, s3, s{sT}")
    V(f"v_lshlrev_b32 v{T6}, 4, v{L}", w={T6}, r={L})
    V(f"v_add_u32 v{T6}, s3, v{T6}", w={T6}, r={T6})
    for q in range(8):
        A.ds_read_b128(QB + 4 * q, T6, q * 1024)
    A.wait_ds_all()
    A.label("K1_QGOT")
    A.salu("s_nop 1")
    for it in paddr(("qk", 0)) + paddr(("qk", 1)): it()

    TT = [T0, T1, T2, T3]
    def max_items(regs, first, final):
        it = []
        r = list(regs)
        if first:
            a = r[:3]; b = r[3:6]; r = r[6:]
            it.append(lambda a=a: V(f"v_max3_f32 v{MX}, v{a[0]}, v{a[1]}, v{a[2]}", w={MX}, r=set(a)))
            it.append(lambda b=b: V(f"v_max3_f32 v{MX2}, v{b[0]}, v{b[1]}, v{b[2]}", w={MX2}, r=set(b)))
        k = 0
        while r:
            a = r[:2]; r = r[2:]
            d = MX if k % 2 == 0 else MX2
            it.append(lambda a=a, d=d: V(f"v_max3_f32 v{d}, v{d}, v{a[0]}, v{a[1]}", w={d}, r={d} | set(a)))
            k += 1
        if final:
            it.append(lambda: V(f"v_max_f32 v{MX}, v{MX}, v{MX2}", w={MX}, r={MX, MX2}))
            it.append(lambda: V(f"v_mov_b32 v{MX2}, v{MX}", w={MX2}, r={MX}))
            it.append(lambda: V(f"v_permlane32_swap_b32 v{MX}, v{MX2}", w={MX, MX2}, r={MX, MX2}, kind="perm"))
            it.append(lambda: V(f"v_max_f32 v{MX}, v{MX}, v{MX2}", w={MX}, r={MX, MX2}))
        return it
    def sm_items(h, lo, hi, sub):
        it = []
        sb, pb = SB(h), PB(h)
        if sub:
            it.append(lambda: V(f"v_sub_f32 v{sb+lo}, v{sb+lo}, v{MX}", w={sb + lo}, r={sb + lo, MX}))
        for e in range(lo, hi + 2):
            if sub and e + 1 < hi:
                it.append(lambda e=e: V(f"v_sub_f32 v{sb+e+1}, v{sb+e+1}, v{MX}", w={sb + e + 1}, r={sb + e + 1, MX}))
            if e < hi:
                it.append(lambda e=e: V(f"v_exp_f32 v{TT[e%4]}, v{sb+e}", w={TT[e % 4]}, r={sb + e}, kind="trans"))
            if lo <= e - 1 < hi:
                p = e - 1; acc = SUMA if p % 2 == 0 else SUMB
                if p < 2:
                    it.append(lambda p=p, acc=acc: V(f"v_mov_b32 v{acc}, v{TT[p%4]}", w={acc}, r={TT[p % 4]}))
                else:
                    it.append(lambda p=p, acc=acc: V(f"v_add_f32 v{acc}, v{acc}, v{TT[p%4]}", w={acc}, r={acc, TT[p % 4]}))
            if e - 2 >= lo and (e - 2) % 2 == 0 and e - 1 < hi:
                p = e - 2
                it.append(lambda p=p: V(f"v_cvt_pk_bf16_f32 v{pb+p//2}, v{TT[p%4]}, v{TT[(p+1)%4]}", w={pb + p // 2}, r={TT[p % 4], TT[(p + 1) % 4]}))
        return it
    def negm_items():
        return [lambda i=i: V(f"v_sub_f32 v{NEGM+i}, 0, v{MX}", w={NEGM + i}, r={MX}) for i in range(16)]
    def check(h):
        V(f"v_add_f32 v{SUMA}, v{SUMA}, v{SUMB}", w={SUMA}, r={SUMA, SUMB})
        if h > 0:
            V(f"v_cmp_nge_f32 vcc, s{sTHR}, v{SUMA}", r={SUMA}, sw={"vcc"})
            A.salu("s_nop 1")
            A.salu(f"s_cbranch_vccnz K1_SLOW{h}")
            A.label(f"K1_BACK{h}")
        V(f"v_add_f32 v{LSUM}, v{LSUM}, v{SUMA}", w={LSUM}, r={LSUM, SUMA})

    def side_for(ph):
        kind, h = ph
        if ph == ("qk", 0):
            return [], []
        if kind == "qk":
            hh = h - 1
            if hh == 0:
                main = max_items([SB(0) + i for i in range(32)], True, True) + sm_items(0, 0, 32, True)
            else:
                main = sm_items(hh, 16, 32, hh == 1)
            return main, paddr(("pv", hh))
        if h == 7: return [], []
        if h == 6:
            return sm_items(7, 0, 32, False), paddr(("pv", 7)) + (K2.addr_items() if OPT["fuse"] and OPT["fuse"] != 6 else [])
        main = sm_items(h + 1, 0, 16, h == 0)
        if h == 0: main = negm_items() + main
        return main, paddr(("qk", h + 2))

    rid = {}
    def issue_read(n):
        ph, i = mf[n]
        st = pset[ph]; fr = FR + 4 * (n % 4)
        if ph[0] == "qk":
            rid[n] = A.ds_read_b128(fr, st[i % 8], (i // 8) * 8192)
        else:
            g, t = i // 4, i % 4
            A.ds_read_tr(fr, st[2 * t], g * 4096)
            rid[n] = A.ds_read_tr(fr + 2, st[2 * t + 1], g * 4096 + 2048)
    for n in range(4): issue_read(n)
    gap = 0
    for n, (ph, i) in enumerate(mf):
        kind, h = ph
        if i == 0:
            main, adr = side_for(ph)
            plan = [[] for _ in range(16)]
            for k, it in enumerate(adr): plan[k * 12 // max(len(adr), 1)].append(it)
            s0 = 1 if ph == ("qk", 1) else 0
            for k, it in enumerate(main): plan[s0 + k * (16 - s0) // len(main)].append(it)
        A.wait_ds(rid[n])
        fr = FR + 4 * (n % 4)
        if kind == "qk":
            kt, ks = i // 8, i % 8
            c = None
            if ks == 0: c = "zero" if h <= 1 else NEGM
            A.mfma(SB(h) + 16 * kt, fr, QB + 4 * ks, c)
        else:
            g, t = i // 4, i % 4
            A.mfma(O + 16 * t, fr, PB(h) + 4 * g, "zero" if (h == 0 and g == 0) else None)
        if n in sync_pos:
            k = sync_pos.index(n)
            pub = publish_set(n, sync_pos[k + 1] if k + 1 < len(sync_pos) else 10**9)
            while dmaq: dmaq.pop(0)()
            A.wait_ds_all()
            A.wait_vm(max(unit_last_vm[u] for u in pub))
            A.barrier()
            PF.stamp(f"x{h}")
            if k == 0: free.extend(xch)
            for u, lr in last_read.items():
                if lr < n and u not in freed:
                    freed.add(u); free.append(unit_slot[u])
            refill_att()
            if OPT["fuse"] == 6:
                if h == 1: K2.loads()
                if h == 2: K2.scalars()
                if h == 3: K2.addr6()
                if h >= OPT["wo0"]:
                    assert nkv[0] == 16
                    while free and len(K2.slots6) < 8:
                        j = len(K2.slots6); K2.slots6.append(free.pop(0))
                        if h < 6 or OPT["wo6"]:
                            dmaq.extend([lambda j=j, q=q: K2.wo_piece(j >> 1, (j & 1) * 2 + q) for q in range(2)])
                            K2.done6 = j + 1
            elif OPT["fuse"]:
                if h == 4: K2.loads()
                if h == 5: K2.scalars()
                if h == 6:
                    assert len(free) >= 8, free
                    its = K2.wo_items(free[:8])
                    K2.mslot = free[8]
                    if OPT["fuse"] < 3: dmaq.extend(its)
            if OPT["wopf"] and h == OPT["wopf"] - 1:
                A.salu("s_load_dwordx2 s[60:61], s[0:1], 32")
                A.salu("s_load_dwordx2 s[62:63], s[0:1], 72")
                if OPT["xm"]:
                    A.salu(f"s_lshr_b32 s3, s2, 3")
                    A.salu(f"s_lshl_b32 s3, s3, 3")
                    A.salu(f"s_add_u32 s3, s3, s{sW}")
                    A.salu(f"s_mul_i32 s3, s3, {16*1152}")
                    A.salu(f"s_and_b32 s{sT}, s2, 1")
                    A.salu(f"s_lshl_b32 s{sT}, s{sT}, 9")
                    A.salu(f"s_add_u32 s3, s3, s{sT}")
                    V(f"v_mbcnt_lo_u32_b32 v{T6}, -1, 0", w={T6})
                    V(f"v_mbcnt_hi_u32_b32 v{T6}, -1, v{T6}", w={T6}, r={T6})
                    V(f"v_lshrrev_b32 v{T7}, 2, v{T6}", w={T7}, r={T6})
                    V(f"v_mul_u32_u24 v{T7}, 1152, v{T7}", w={T7}, r={T7})
                    V(f"v_and_b32 v{T6}, 3, v{T6}", w={T6}, r={T6})
                    V(f"v_lshl_add_u32 v{T6}, v{T6}, 7, v{T7}", w={T6}, r={T6, T7})
                else:
                    if OPT["wox"]:
                        A.salu(f"s_lshr_b32 s3, s2, 5")
                        A.salu(f"s_lshl_b32 s3, s3, 4")
                        A.salu(f"s_bfe_u32 s{sT}, s2, 0x20003")
                        A.salu(f"s_add_u32 s3, s3, s{sT}")
                    else:
                        A.salu(f"s_lshl_b32 s3, s{sB}, 4")
                        A.salu(f"s_add_u32 s3, s3, s{sKVH}")
                    A.salu(f"s_mul_i32 s3, s3, 288")
                    A.salu(f"s_lshl_b32 s{sT}, s{sW}, 6")
                    A.salu(f"s_min_u32 s{sT}, s{sT}, 224")
                    A.salu(f"s_add_u32 s3, s3, s{sT}")
                    A.salu(f"s_lshl_b32 s3, s3, 7")
                    V(f"v_mbcnt_lo_u32_b32 v{T7}, -1, 0", w={T7})
                    V(f"v_mbcnt_hi_u32_b32 v{T7}, -1, v{T7}", w={T7}, r={T7})
                    V(f"v_lshlrev_b32 v{T7}, 7, v{T7}", w={T7}, r={T7})
                A.salu("s_waitcnt lgkmcnt(0)")
                A.salu(f"s_cmp_eq_u32 s{sBLK}, 0")
                A.salu("s_cselect_b32 s60, s60, s62")
                A.salu("s_cselect_b32 s61, s61, s63")
                A.salu("s_and_b32 s61, s61, 0xffff")
                A.salu(f"s_mov_b32 s62, {4096*576*2}")
                A.salu("s_mov_b32 s63, 0x00020000")
                if OPT["xm"]:
                    A.salu("s_mov_b32 exec_lo, 0x88888888")
                    A.salu("s_mov_b32 exec_hi, 0x88888888")
                    A.vmem(f"buffer_load_dword v{T7}, v{T6}, s[60:63], s3 offen offset:128", w={T7}, r={T6})
                    A.salu("s_mov_b64 exec, -1")
                TA_ = T6 if OPT["xm"] else T7
                A.vmem(f"buffer_load_dword v{T7}, v{TA_}, s[60:63], s3 offen", w={T7}, r={TA_})
        if n + 4 < len(mf): issue_read(n + 4)
        for it in plan[i]: it()
        gap += 1
        if dmaq and gap >= OPT["dmagap"]:
            dmaq.pop(0)(); gap = 0
        if i == 15:
            if kind == "qk" and h >= 1: check(h - 1)
            if ph == ("pv", 6): check(7)
    assert not dmaq
    PF.stamp("pv7")
    V(f"v_mov_b32 v{T0}, v{LSUM}", w={T0}, r={LSUM})
    V(f"v_permlane32_swap_b32 v{T0}, v{LSUM}", w={T0, LSUM}, r={T0, LSUM}, kind="perm")
    V(f"v_add_f32 v{T0}, v{T0}, v{LSUM}", w={T0}, r={T0, LSUM})
    V(f"v_rcp_f32 v{T0}, v{T0}", w={T0}, r={T0}, kind="trans")
    A.salu(f"s_cmp_eq_u32 s{sRT}, 3")
    A.salu("s_cbranch_scc0 K1_NOMASK")
    A.salu("s_mov_b32 exec_lo, 0xffff")
    A.salu("s_mov_b32 exec_hi, 0xffff")
    A.label("K1_NOMASK")
    for f in range(8):
        b0 = O + 8 * f
        for i in range(8):
            V(f"v_mul_f32 v{b0+i}, v{T0}, v{b0+i}", w={b0 + i}, r={T0, b0 + i})
        d = P + 4 * f
        for q in range(4):
            V(f"v_cvt_pk_bf16_f32 v{d+q}, v{b0+2*q}, v{b0+2*q+1}", w={d + q}, r={b0 + 2 * q, b0 + 2 * q + 1})
        A.vmem(f"buffer_store_dwordx4 {vname(d,4)}, v{OST}, s[{SO}:{SO+3}], s{sOB} offen offset:{f*512}{' sc1' if OPT['fuse'] else ' nt' if OPT['ntst'] else ''}", r=vr(d, 4) | {OST}, storedata=vr(d, 4))
    if OPT["fuse"]:
        K2.body(PF, sBLK, sB, sKVH)
    PF.dump(24, sW, 0)
    A.label("K1_END")
    A.salu("s_endpgm")
    for h in range(1, 8):
        A.label(f"K1_SLOW{h}")
        A.flush_hazards()
        sb = SB(h)
        for it in max_items([sb + i for i in range(32)], True, True): it()
        V(f"v_max_f32 v{MX}, 0, v{MX}", w={MX}, r={MX})
        V(f"v_sub_f32 v{MX2}, 0, v{MX}", w={MX2}, r={MX})
        V(f"v_exp_f32 v{MX2}, v{MX2}", w={MX2}, r={MX2}, kind="trans")
        for i in range(64):
            V(f"v_mul_f32 v{O+i}, v{MX2}, v{O+i}", w={O + i}, r={MX2, O + i})
        V(f"v_mul_f32 v{LSUM}, v{MX2}, v{LSUM}", w={LSUM}, r={MX2, LSUM})
        for i in range(16):
            V(f"v_sub_f32 v{NEGM+i}, v{NEGM+i}, v{MX}", w={NEGM + i}, r={NEGM + i, MX})
        if h < 7:
            s2 = SB(h + 1)
            for i in range(32):
                V(f"v_sub_f32 v{s2+i}, v{s2+i}, v{MX}", w={s2 + i}, r={s2 + i, MX})
        for it in sm_items(h, 0, 32, True): it()
        V(f"v_add_f32 v{SUMA}, v{SUMA}, v{SUMB}", w={SUMA}, r={SUMA, SUMB})
        A.flush_hazards()
        A.salu(f"s_branch K1_BACK{h}")

class K2Fused:
    def __init__(self, A, sW, SO, WOFF):
        self.A = A; self.sW = sW; self.SO = SO; self.WOFF = WOFF
        self.SWO, self.SOUT, self.SDBG = 28, 32, 20
        self.sBLK, self.sTT, self.sMT, self.sNT = 16, 17, 18, 19
        self.sWL, self.sWB, self.sO0, self.sO1, self.sT = 49, 50, 8, 9, 52
        self.sP0, self.sP1 = 10, 11
        self.last_vm = {}
    def loads(self):
        A = self.A
        A.salu("s_load_dwordx2 s[8:9], s[0:1], 32")
        A.salu("s_load_dwordx2 s[10:11], s[0:1], 72")
        A.salu("s_load_dwordx2 s[12:13], s[0:1], 80")
        A.salu("s_load_dwordx2 s[14:15], s[0:1], 88")
    def scalars(self):
        A = self.A; sW = self.sW
        sBLK, sTT, sMT, sNT = self.sBLK, self.sTT, self.sMT, self.sNT
        A.salu("s_waitcnt lgkmcnt(0)")
        if OPT["xm"]:
            A.salu("s_bitcmp1_b32 s2, 2")
            A.salu(f"s_cselect_b32 s{sBLK}, 1, 0")
            A.salu("s_cselect_b32 s8, s10, s8")
            A.salu("s_cselect_b32 s9, s11, s9")
            srd(A, self.SWO, 8, 4096 * 576 * 2)
            srd(A, self.SOUT, 12, 896 * 1152 * 2)
            srd(A, self.SDBG, 14, 256)
            A.salu("s_lshr_b32 s3, s2, 3")
            A.salu("s_and_b32 s12, s2, 1")
            A.salu(f"s_lshr_b32 s{sMT}, s3, 2")
            A.salu(f"s_and_b32 s{sNT}, s3, 3")
            A.salu("s_mul_i32 s13, s12, 5")
            A.salu(f"s_add_u32 s{sNT}, s{sNT}, s13")
            A.salu("s_lshl_b32 s13, s12, 2")
            A.salu("s_add_u32 s13, s13, s3")
            A.salu("s_sub_u32 s13, s13, 28")
            A.salu("s_cmp_ge_u32 s3, 28")
            A.salu(f"s_cselect_b32 s{sMT}, s13, s{sMT}")
            A.salu(f"s_cselect_b32 s{sNT}, 4, s{sNT}")
            A.salu(f"s_cmp_eq_u32 s{sMT}, 7")
            A.salu(f"s_cselect_b32 s{sTT}, 255, 0")
            A.salu(f"s_min_u32 s{sMT}, s{sMT}, 6")
            A.salu("s_bfe_u32 s13, s2, 0x10001")
            A.salu("s_mul_i32 s13, s13, 7")
            A.salu(f"s_add_u32 s{sMT}, s{sMT}, s13")
        else:
            A.salu("s_and_b32 s3, s2, 7")
            A.salu("s_lshl_b32 s3, s3, 5")
            A.salu(f"s_lshr_b32 s{sTT}, s2, 3")
            A.salu(f"s_add_u32 s{sTT}, s3, s{sTT}")
            A.salu(f"s_min_u32 s3, s{sTT}, 251")
            A.salu("s_cmp_ge_u32 s3, 126")
            A.salu(f"s_cselect_b32 s{sBLK}, 1, 0")
            A.salu("s_cselect_b32 s8, s10, s8")
            A.salu("s_cselect_b32 s9, s11, s9")
            srd(A, self.SWO, 8, 4096 * 576 * 2)
            srd(A, self.SOUT, 12, 896 * 1152 * 2)
            srd(A, self.SDBG, 14, 256)
            A.salu(f"s_mul_i32 s12, s{sBLK}, 126")
            A.salu("s_sub_u32 s3, s3, s12")
            A.salu("s_mul_i32 s12, s3, 57")
            A.salu(f"s_lshr_b32 s{sMT}, s12, 9")
            A.salu(f"s_mul_i32 s12, s{sMT}, 9")
            A.salu(f"s_sub_u32 s{sNT}, s3, s12")
        A.salu(f"s_mul_i32 s{self.sWB}, s{sW}, {(32 if OPT['fuse'] == 5 else 512)*1152}")
        A.salu(f"s_lshl_b32 s12, s{sNT}, 7")
        A.salu(f"s_add_u32 s{self.sWB}, s{self.sWB}, s12")
        A.salu(f"s_mul_i32 s{self.sO0}, s{sBLK}, {O_BLK}")
        A.salu(f"s_lshl_b32 s12, s{sMT}, 19")
        A.salu(f"s_add_u32 s{self.sO0}, s{self.sO0}, s12")
        A.salu(f"s_lshl_b32 s12, s{sW}, {10 if OPT['fuse'] == 5 else 14}")
        A.salu(f"s_add_u32 s{self.sO0}, s{self.sO0}, s12")
        A.salu(f"s_add_u32 s{self.sO1}, s{self.sO0}, {2*131072}")
        if OPT["ntf"]:
            A.salu(f"s_lshl_b32 s12, s{sBLK}, 6")
            A.salu("s_add_u32 s12, s12, 128")
        else:
            A.salu(f"s_lshl_b32 s12, s{sBLK}, 7")
            A.salu(f"s_lshr_b32 s13, s{sW}, 1")
            A.salu("s_lshl_b32 s13, s13, 2")
            A.salu("s_add_u32 s12, s12, s13")
        sh = 2 if OPT["ntf"] else 4
        A.salu(f"s_mul_i32 s13, s{sMT}, 148")
        A.salu(f"s_lshr_b32 s{self.sP0}, s13, 8")
        A.salu(f"s_lshl_b32 s{self.sP0}, s{self.sP0}, {sh}")
        A.salu(f"s_add_u32 s{self.sP0}, s{self.sP0}, s12")
        A.salu("s_add_u32 s13, s13, 111")
        A.salu(f"s_lshr_b32 s{self.sP1}, s13, 8")
        A.salu(f"s_lshl_b32 s{self.sP1}, s{self.sP1}, {sh}")
        A.salu(f"s_add_u32 s{self.sP1}, s{self.sP1}, s12")
    def addr_items(self):
        V = self.A.valu; W = self.WOFF
        L, T1, T2, T4 = W + 4, W + 5, W + 6, W + 7
        return [
            lambda: V(f"v_mbcnt_lo_u32_b32 v{L}, -1, 0", w={L}),
            lambda: V(f"v_mbcnt_hi_u32_b32 v{L}, -1, v{L}", w={L}, r={L}),
            lambda: V(f"v_lshrrev_b32 v{T1}, 3, v{L}", w={T1}, r={L}),
            lambda: V(f"v_mul_u32_u24 v{T1}, 1152, v{T1}", w={T1}, r={T1}),
            lambda: V(f"v_bfe_u32 v{T2}, v{L}, 4, 1", w={T2}, r={L}),
            lambda: V(f"v_lshlrev_b32 v{T2}, 2, v{T2}", w={T2}, r={T2}),
            lambda: V(f"v_and_b32 v{T4}, 7, v{L}", w={T4}, r={L}),
            lambda: V(f"v_xor_b32 v{T4}, v{T4}, v{T2}", w={T4}, r={T4, T2}),
            lambda: V(f"v_lshl_add_u32 v{W}, v{T4}, 4, v{T1}", w={W}, r={T4, T1}),
        ] + [lambda i=i: V(f"v_add_u32 v{W+i}, {9216*i}, v{W}", w={W + i}, r={W}) for i in range(1, 4)]
    def addr6(self):
        V = self.A.valu
        W, L, T1 = 6, 13, 12
        V(f"v_mbcnt_lo_u32_b32 v{L}, -1, 0", w={L})
        V(f"v_mbcnt_hi_u32_b32 v{L}, -1, v{L}", w={L}, r={L})
        V(f"v_lshrrev_b32 v{T1}, 3, v{L}", w={T1}, r={L})
        V(f"v_mul_u32_u24 v{T1}, 1152, v{T1}", w={T1}, r={T1})
        V(f"v_and_b32 v{W}, 7, v{L}", w={W}, r={L})
        V(f"v_bfe_u32 v{L}, v{L}, 4, 1", w={L}, r={L})
        V(f"v_lshlrev_b32 v{L}, 2, v{L}", w={L}, r={L})
        V(f"v_xor_b32 v{W}, v{W}, v{L}", w={W}, r={W, L})
        V(f"v_lshl_add_u32 v{W}, v{W}, 4, v{T1}", w={W}, r={W, T1})
        self.A.salu(f"s_lshl_b32 s{self.sWL}, s{self.sW}, 11")
        self.slots6 = []
    def wo_piece(self, u, i):
        A = self.A; W = self.WOFF; S = self.SWO
        if OPT["fuse"] == 6:
            A.salu(f"s_add_u32 s{self.sT}, s{self.sWB}, {u * 32 * 1152 + i * 9216}")
            A.salu(f"s_add_u32 m0, s{self.sWL}, {self.slots6[2 * (u % 4) + (i >> 1)] * SLOT + (i & 1) * 1024}", m0w=True)
            A.vmem(f"buffer_load_dwordx4 v6, s[{S}:{S+3}], s{self.sT} offen{' nt' if OPT['ntwo'] else ''} lds", kind="dma", r={6}, m0r=True)
            return
        A.salu(f"s_add_u32 s{self.sT}, s{self.sWB}, {u * 32 * 1152}")
        A.salu(f"s_add_u32 m0, s{self.sWL}, {(u % 4) * 4096 + i * 1024}", m0w=True)
        A.vmem(f"buffer_load_dwordx4 v{W+i}, s[{S}:{S+3}], s{self.sT} offen{' nt' if OPT['ntwo'] else ''} lds", kind="dma", r={W + i}, m0r=True)
    def wo_items(self, slots):
        A = self.A
        tab = sum(s << (4 * w) for w, s in enumerate(slots))
        A.salu(f"s_lshl_b32 s3, s{self.sW}, 2")
        A.salu(f"s_lshr_b32 s3, {tab:#x}, s3")
        A.salu("s_and_b32 s3, s3, 15")
        A.salu(f"s_lshl_b32 s{self.sWL}, s3, 14")
        return [lambda u=u, i=i: self.wo_piece(u, i) for u in range(4) for i in range(4)]
    def dyn(self, PF, L, OOFF, BA, AF, OF, ACC):
        A = self.A; V = A.valu; sW = self.sW; SO = self.SO; SDBG = self.SDBG; W = self.WOFF; S = self.SWO
        T1, T2, T3, T4 = 1, 2, 3, 4
        PD = 8
        vPA, vMA, vT, vM = W + 4, W + 5, W + 6, W + 7
        sPM, sCNT, sDONE, sJ, sA, sB_ = 60, 62, 63, 12, 13, 14
        V(f"v_mov_b32 v{vPA}, s{self.sP1}", w={vPA})
        V(f"v_mov_b32 v{T4}, s{self.sP0}", w={T4})
        V(f"v_cmp_gt_u32 vcc, 16, v{L}", r={L}, sw={"vcc"})
        V(f"v_cndmask_b32 v{vPA}, v{vPA}, v{T4}, vcc", w={vPA}, r={vPA, T4}, sr={"vcc"})
        V(f"v_and_b32 v{T4}, 15, v{L}", w={T4}, r={L})
        V(f"v_add_u32 v{vPA}, v{T4}, v{vPA}", w={vPA}, r={vPA, T4})
        V(f"v_mov_b32 v{vMA}, {self.mslot * SLOT}", w={vMA})
        V(f"v_mov_b32 v{vT}, 0", w={vT})
        A.ds(f"ds_write_b32 v{vMA}, v{vT}", r={vMA, vT})
        A.salu(f"s_cmp_eq_u32 s{sW}, 0")
        A.salu(f"s_cselect_b32 s{sPM}, -1, 0")
        A.salu(f"s_mov_b32 s{sPM+1}, 0")
        A.salu(f"s_mov_b32 s{sCNT}, 0x40000")
        A.salu(f"s_mov_b32 s{sDONE}, 0")
        A.salu(f"s_mov_b32 s15, 0")
        A.waitcnt(vm=0, lgkm=0); A.vm_done = A.nvm; A.ds_done = A.nds
        PF.stamp("st")
        A.barrier()
        A.salu("s_cbranch_scc0 K1_NOFLAG")
        A.salu("s_mov_b64 exec, 1")
        A.salu(f"buffer_atomic_add v{T2}, v{T1}, s[{SDBG}:{SDBG+3}], 0 offen sc1")
        A.salu("s_mov_b64 exec, -1")
        A.label("K1_NOFLAG")
        A.salu(f"s_cmp_ge_u32 s{self.sTT}, 252")
        A.salu("s_cbranch_scc1 K1_END")
        def poll(r, counted=True):
            A.salu(f"s_mov_b64 exec, s[{sPM}:{sPM+1}]")
            txt = f"buffer_load_ubyte v{PD+r}, v{vPA}, s[{SDBG}:{SDBG+3}], 0 offen sc1"
            if counted: A.vmem(txt, w={PD + r}, r={vPA})
            else: A.salu(txt)
            A.salu("s_mov_b64 exec, -1")
        def consume(r):
            A.salu(f"s_mov_b64 exec, s[{sPM}:{sPM+1}]")
            V(f"v_cmp_ne_u32 vcc, 0, v{PD+r}", r={PD + r}, sw={"vcc"})
            A.salu("s_nop 1")
            A.salu(f"s_lshr_b32 s{sA}, vcc_lo, 16")
            A.salu(f"s_and_b32 s{sA}, s{sA}, vcc_lo")
            A.salu(f"s_or_b32 s15, s15, s{sA}")
            V(f"v_mov_b32 v{vT}, s15", w={vT})
            A.ds(f"ds_write_b32 v{vMA}, v{vT}", r={vMA, vT})
            A.salu("s_mov_b64 exec, -1")
        def pick(k):
            A.label(f"K1_PK{k}")
            A.ds(f"ds_read_b32 v{vM}, v{vMA}", w={vM}, r={vMA})
            A.waitcnt(lgkm=0); A.ds_done = A.nds
            A._emit(I(f"v_readfirstlane_b32 s{sA}, v{vM}", "rdlane", r={vM}, sw={sA}))
            A.salu(f"s_andn2_b32 s{sA}, s{sA}, s{sDONE}", sr={sA})
            A.salu(f"s_cbranch_scc1 K1_PG{k}")
            poll(k % 4, False)
            A.salu("s_waitcnt vmcnt(0)")
            consume(k % 4)
            A.salu(f"s_sleep {OPT['slp']}")
            A.salu(f"s_sub_u32 s{sCNT}, s{sCNT}, 1")
            A.salu(f"s_cmp_lg_u32 s{sCNT}, 0")
            A.salu(f"s_cbranch_scc1 K1_PK{k}")
            A.salu(f"s_mov_b32 s{sCNT}, 1")
            A.salu(f"s_andn2_b32 s{sA}, 0xffff, s{sDONE}")
            A.label(f"K1_PG{k}")
            A.salu(f"s_ff1_i32_b32 s{sJ}, s{sA}")
            A.salu(f"s_bitset1_b32 s{sDONE}, s{sJ}")
        NU = 16; DEPTH = 4
        last_vm = {}
        def issue(u):
            slot = u % DEPTH
            pick(u)
            if self.first: PF.stamp("go"); self.first = False
            if 4 <= u: poll(u % 4)
            A.salu(f"s_mul_i32 s{sA}, s{sJ}, {256*1152}")
            A.salu(f"s_add_u32 s{sA}, s{sA}, s{self.sWB}")
            for i in range(4):
                A.salu(f"s_add_u32 m0, s{self.sWL}, {slot * 4096 + i * 1024}", m0w=True)
                A.vmem(f"buffer_load_dwordx4 v{W+i}, s[{S}:{S+3}], s{sA} offen{' nt' if OPT['ntwo'] else ''} lds", kind="dma", r={W + i}, m0r=True)
            A.salu(f"s_lshl_b32 s{sJ}, s{sJ}, 13")
            A.salu(f"s_add_u32 s{sA}, s{sJ}, s{self.sO0}")
            A.salu(f"s_add_u32 s{sB_}, s{sJ}, s{self.sO1}")
            for ks in range(2):
                for tm in range(2):
                    d = OF + slot * 16 + (ks * 2 + tm) * 4
                    k = A.vmem(f"buffer_load_dwordx4 {vname(d,4)}, v{OOFF}, s[{SO}:{SO+3}], s{sA if tm == 0 else sB_} offen offset:{ks*512} sc1", w=vr(d, 4), r={OOFF})
            last_vm[u] = k
        def dsreads(u):
            slot = u % DEPTH
            ab = AF + (u % 2) * 16
            for ks in range(2):
                for tn in range(2):
                    for j in range(2):
                        k = A.ds_read_tr(ab + (ks * 2 + tn) * 4 + 2 * j, BA + tn, slot * 4096 + (16 * ks + 8 * j) * 128)
            return k
        self.first = True
        for u in range(DEPTH): issue(u)
        A.wait_vm(last_vm[0])
        pend = dsreads(0)
        for u in range(NU):
            A.wait_ds(pend)
            if u + 1 < NU:
                A.wait_vm(last_vm[u + 1])
                if u + 1 >= 4 and u + DEPTH < NU: consume((u + 1) % 4)
                pend = dsreads(u + 1)
            ab = AF + (u % 2) * 16
            ob = OF + (u % DEPTH) * 16
            for ks in range(2):
                for tn in range(2):
                    for tm in range(2):
                        c = "zero" if (u == 0 and ks == 0) else None
                        A.mfma(ACC + (tn * 2 + tm) * 16, ab + (ks * 2 + tn) * 4, ob + (ks * 2 + tm) * 4, c)
            if u + DEPTH < NU: issue(u + DEPTH)
            if u in (0, 7, 15): PF.stamp(f"u{u}")
    def body(self, PF, sBLK1, sB1, sKVH1):
        A = self.A; V = A.valu; sW = self.sW; SO = self.SO
        T0, T1, T2, T3, T4, T5, T6, T7 = 0, 1, 2, 3, 4, 5, 9, 8
        WOFF = self.WOFF; OOFF = 12; BA = 13; RED = 15; AF = 16; OF = 96; ACC = 160
        sBLK, sMT, sNT = self.sBLK, self.sMT, self.sNT
        SOUT, SDBG = self.SOUT, self.SDBG
        sWL, sO0, sO1, sT = self.sWL, self.sO0, self.sO1, self.sT
        L = T0
        A.salu("s_mov_b64 exec, -1")
        V(f"v_mbcnt_lo_u32_b32 v{L}, -1, 0", w={L})
        V(f"v_mbcnt_hi_u32_b32 v{L}, -1, v{L}", w={L}, r={L})
        V(f"v_bfe_u32 v{T2}, v{L}, 4, 1", w={T2}, r={L})
        V(f"v_lshrrev_b32 v{T1}, 5, v{L}", w={T1}, r={L})
        V(f"v_bfe_u32 v{T3}, v{L}, 2, 2", w={T3}, r={L})
        V(f"v_and_b32 v{T4}, 3, v{L}", w={T4}, r={L})
        V(f"v_lshlrev_b32 v{T6}, 17, v{T2}", w={T6}, r={T2})
        V(f"v_lshl_add_u32 v{T6}, v{T1}, 8, v{T6}", w={T6}, r={T1, T6})
        V(f"v_and_b32 v{T7}, 15, v{L}", w={T7}, r={L})
        V(f"v_lshl_add_u32 v{OOFF}, v{T7}, 4, v{T6}", w={OOFF}, r={T7, T6})
        V(f"v_lshl_add_u32 v{T6}, v{T1}, 2, v{T3}", w={T6}, r={T1, T3})
        V(f"v_lshlrev_b32 v{T6}, 7, v{T6}", w={T6}, r={T6})
        V(f"v_lshrrev_b32 v{T7}, 1, v{T4}", w={T7}, r={T4})
        V(f"v_lshl_add_u32 v{T7}, v{T2}, 1, v{T7}", w={T7}, r={T2, T7})
        V(f"v_lshrrev_b32 v{T5}, 1, v{T3}", w={T5}, r={T3})
        V(f"v_lshlrev_b32 v{T5}, 2, v{T5}", w={T5}, r={T5})
        V(f"v_xor_b32 v{T7}, v{T7}, v{T5}", w={T7}, r={T7, T5})
        V(f"v_lshl_add_u32 v{T6}, v{T7}, 4, v{T6}", w={T6}, r={T7, T6})
        V(f"v_and_b32 v{T7}, 1, v{T4}", w={T7}, r={T4})
        V(f"v_lshl_add_u32 v{T6}, v{T7}, 3, v{T6}", w={T6}, r={T7, T6})
        V(f"v_add_u32 v{BA}, s{sWL}, v{T6}", w={BA}, r={T6})
        V(f"v_xor_b32 v{BA+1}, 64, v{BA}", w={BA + 1}, r={BA})
        if OPT["fuse"] == 6:
            for q in range(1, 3):
                for tn in range(2):
                    V(f"v_add_u32 v{64+2*q+tn}, {q*65536}, v{BA+tn}", w={64 + 2 * q + tn}, r={BA + tn})
        V(f"v_lshlrev_b32 v{RED}, 4, v{L}", w={RED}, r={L})
        if OPT["ntf"]:
            A.salu(f"s_lshl_b32 s12, s{sBLK1}, 6")
            A.salu(f"s_lshl_b32 s13, s{sB1}, 2")
            A.salu("s_add_u32 s12, s12, s13")
            A.salu("s_mov_b32 s13, 1")
        else:
            A.salu(f"s_lshl_b32 s12, s{sBLK1}, 7")
            A.salu(f"s_lshl_b32 s13, s{sB1}, 4")
            A.salu("s_add_u32 s12, s12, s13")
            A.salu(f"s_and_b32 s13, s{sKVH1}, 12")
            A.salu("s_add_u32 s12, s12, s13")
            A.salu(f"s_and_b32 s13, s{sKVH1}, 3")
            A.salu("s_lshl_b32 s13, s13, 3")
            A.salu("s_lshl_b32 s13, 1, s13")
        V(f"v_mov_b32 v{T1}, s12", w={T1})
        V(f"v_mov_b32 v{T2}, s13", w={T2})
        if OPT["ntf"]:
            V(f"v_mov_b32 v{T3}, s{self.sP1}", w={T3})
            V(f"v_writelane_b32 v{T3}, s{self.sP0}, 0", w={T3}, r={T3})
            V(f"v_mov_b32 v{T5}, 1", w={T5})
            A.salu("s_mov_b32 s14, 1")
        elif OPT["fuse"] == 5:
            self.dyn(PF, L, OOFF, BA, AF, OF, ACC)
        elif OPT["fuse"] == 1:
            V(f"v_mov_b32 v{T3}, s{self.sP1}", w={T3})
            V(f"v_writelane_b32 v{T3}, s{self.sP0}, 0", w={T3}, r={T3})
            A.salu(f"s_and_b32 s14, s{sW}, 1")
            A.salu("s_lshl_b32 s14, s14, 4")
            A.salu("s_lshl_b32 s14, 0x101, s14")
        else:
            V(f"v_mov_b32 v{T3}, s{self.sP1}", w={T3})
            V(f"v_mov_b32 v{T4}, s{self.sP0}", w={T4})
            V(f"v_cmp_gt_u32 vcc, 4, v{L}", r={L}, sw={"vcc"})
            V(f"v_cndmask_b32 v{T3}, v{T3}, v{T4}, vcc", w={T3}, r={T3, T4}, sr={"vcc"})
            V(f"v_and_b32 v{T4}, 3, v{L}", w={T4}, r={L})
            V(f"v_lshl_add_u32 v{T3}, v{T4}, 2, v{T3}", w={T3}, r={T3, T4})
            A.salu("s_mov_b32 s14, 0x01010101")
        if OPT["fuse"] != 5:
            A.salu("s_mov_b32 s15, 0x40000")
            A.waitcnt(vm=0); A.vm_done = A.nvm
            PF.stamp("st")
            A.barrier()
            A.salu(f"s_cmp_eq_u32 s{sW}, 0")
            A.salu("s_cbranch_scc0 K1_NOFLAG")
            A.salu("s_mov_b64 exec, 1")
            if OPT["ntf"]:
                A.salu(f"buffer_atomic_add v{T2}, v{T1}, s[{SDBG}:{SDBG+3}], 0 offen sc0 sc1")
                A.salu("s_waitcnt vmcnt(0)")
                A.salu(f"v_cmp_eq_u32 vcc, 15, v{T2}")
                A.salu("s_nop 1")
                A.salu("s_cbranch_vccz K1_NOFLAG")
                A.salu(f"buffer_store_dword v{T5}, v{T1}, s[{SDBG}:{SDBG+3}], 0 offen offset:128 sc1")
            elif OPT["exp"] != 1: A.salu(f"buffer_atomic_add v{T2}, v{T1}, s[{SDBG}:{SDBG+3}], 0 offen sc1")
            A.label("K1_NOFLAG")
            A.salu(f"s_cmp_ge_u32 s{self.sTT}, 252")
            A.salu("s_cbranch_scc1 K1_END")
            if OPT["exp"]:
                for _ in range(3): A.salu("s_sleep 64")
                A.salu("s_branch K1_GO")
            if OPT["fuse"] == 6:
                A.salu("s_mov_b64 exec, -1")
                for j in range(self.done6, 8):
                    for q in range(2): self.wo_piece(j >> 1, (j & 1) * 2 + q)
            if OPT["fuse"] == 1:
                A.salu("s_mov_b64 exec, 3")
            else:
                A.salu(f"s_cmp_eq_u32 s{sW}, 0")
                A.salu("s_cbranch_scc0 K1_GO" if not (OPT["fuse"] == 3 or OPT["pre"]) else "s_cbranch_scc0 K1_WO")
                A.salu("s_mov_b64 exec, 3" if OPT["ntf"] else "s_mov_b64 exec, 0xff")
            A.label("K1_POLL")
            A.salu(f"buffer_load_dword v{T4}, v{T3}, s[{SDBG}:{SDBG+3}], 0 offen sc1")
            A.salu("s_waitcnt vmcnt(0)")
            A.salu(f"v_and_b32 v{T4}, s14, v{T4}")
            A.salu(f"v_cmp_ne_u32 vcc, s14, v{T4}")
            A.salu("s_nop 1")
            A.salu("s_cbranch_vccz K1_GO")
            A.salu(f"s_sleep {OPT['slp']}")
            A.salu("s_sub_u32 s15, s15, 1")
            A.salu("s_cmp_lg_u32 s15, 0")
            A.salu("s_cbranch_scc1 K1_POLL")
            A.label("K1_GO")
            A.salu("s_mov_b64 exec, -1")
            PRE = [224, 240, 48, 72][:OPT["pre"]]
            def dsreads(u, ab=None):
                slot = u % 4
                if ab is None: ab = AF + (u % 2) * 16
                for ks in range(2):
                    for tn in range(2):
                        for j in range(2):
                            if OPT["fuse"] == 6:
                                o_ = self.slots6[2 * slot + ks] * SLOT + j * 1024
                                k = A.ds_read_tr(ab + (ks * 2 + tn) * 4 + 2 * j, (BA if o_ < 65536 else 64 + 2 * (o_ >> 16)) + tn, o_ & 65535)
                            else:
                                k = A.ds_read_tr(ab + (ks * 2 + tn) * 4 + 2 * j, BA + tn, slot * 4096 + (16 * ks + 8 * j) * 128)
                return k
            if OPT["pre"]:
                A.barrier()
                A.label("K1_WO")
                A.flush_hazards()
                for u in range(len(PRE)):
                    dsreads(u, PRE[u])
                    A.wait_ds_all()
                for u in range(4, 4 + len(PRE)):
                    for i in range(4): self.wo_piece(u, i)
                A.salu(f"s_cmp_eq_u32 s{sW}, 0")
                A.salu("s_cbranch_scc1 K1_GO2")
                A.barrier()
                A.label("K1_GO2")
            elif OPT["fuse"] == 3:
                A.barrier()
                A.label("K1_WO")
                for u in range(4):
                    for i in range(4): self.wo_piece(u, i)
                A.salu(f"s_cmp_eq_u32 s{sW}, 0")
                A.salu("s_cbranch_scc1 K1_GO2")
                A.barrier()
                A.label("K1_GO2")
            elif OPT["fuse"] > 1: A.barrier()
            PF.stamp("go")
            NU = 16; DEPTH = 4
            last_vm = {}
            def issue(u, wo=True):
                slot = u % DEPTH
                if wo:
                    for i in range(4): self.wo_piece(u, i)
                for ks in range(2):
                    for tm in range(2):
                        d = OF + slot * 16 + (ks * 2 + tm) * 4
                        off = (2 * u + ks) * 512
                        sb = sO0 if tm == 0 else sO1
                        if off >= 4096:
                            A.salu(f"s_add_u32 s{sT}, s{sb}, {off & ~4095}")
                            sb = sT
                        k = A.vmem(f"buffer_load_dwordx4 {vname(d,4)}, v{OOFF}, s[{SO}:{SO+3}], s{sb} offen offset:{off & 4095} sc1", w=vr(d, 4), r={OOFF})
                last_vm[u] = k
            for u in range(DEPTH): issue(u, OPT["fuse"] == 4)
            if OPT["fuse"] in (3, 4): A.wait_vm(last_vm[0])
            NP = len(PRE)
            pend = dsreads(0) if NP == 0 else None
            A.wait_vm(last_vm[0])
            for u in range(NU):
                if pend is not None: A.wait_ds(pend)
                if u + 1 < NU:
                    A.wait_vm(last_vm[u + 1])
                    pend = dsreads(u + 1) if u + 1 >= NP else None
                ab = AF + (u % 2) * 16 if u >= NP else PRE[u]
                ob = OF + (u % DEPTH) * 16
                for ks in range(2):
                    for tn in range(2):
                        for tm in range(2):
                            c = "zero" if (u == 0 and ks == 0) else None
                            A.mfma(ACC + (tn * 2 + tm) * 16, ab + (ks * 2 + tn) * 4, ob + (ks * 2 + tm) * 4, c)
                if u + DEPTH < NU: issue(u + DEPTH, u >= NP)
                if u in (0, 7, 15): PF.stamp(f"u{u}")
        R = OF
        if OPT["fuse"] == 6 and OPT["red"]:
            A.wait_ds_all()
            V(f"v_add_u32 v{T1}, s{sWL}, v{RED}", w={T1}, r={RED})
            V(f"v_add_u32 v{T2}, 0x10000, v{T1}", w={T2}, r={T1})
            V(f"v_add_u32 v{T3}, 0x20000, v{T1}", w={T3}, r={T1})
            for q in range(16):
                o_ = self.slots6[q >> 1] * SLOT + (q & 1) * 1024
                A.ds_write_b128([T1, T2, T3][o_ >> 16], ACC + 4 * q, o_ & 65535)
            tab = sum(s_ << (4 * w_) for w_, s_ in enumerate(self.slots6))
            A.salu(f"s_lshl_b32 s6, s{sW}, 2")
            A.salu(f"s_lshr_b32 s6, {tab:#x}, s6")
            A.salu("s_and_b32 s6, s6, 15")
            A.salu("s_lshl_b32 s6, s6, 14")
            V(f"v_add_u32 v{T4}, s6, v{RED}", w={T4}, r={RED})
            A.wait_ds_all()
            A.barrier()
            for ww in range(8):
                for q in range(2):
                    A.ds_read_b128(R + (ww * 2 + q) * 4, T4, ww * 2048 + q * 1024)
                if ww == 5:
                    A.wait_ds_all()
            A.wait_ds_all()
        else:
            A.wait_ds_all()
            A.barrier()
            A.salu(f"s_lshl_b32 s12, s{sW}, 14")
            V(f"v_add_u32 v{T1}, s12, v{RED}", w={T1}, r={RED})
            for q in range(16):
                A.ds_write_b128(T1, ACC + 4 * q, q * 1024)
            A.wait_ds_all()
            A.barrier()
            A.salu(f"s_lshl_b32 s6, s{sW}, 11")
            V(f"v_add_u32 v{T1}, s6, v{RED}", w={T1}, r={RED})
            V(f"v_add_u32 v{T2}, 0x10000, v{T1}", w={T2}, r={T1})
            for ww in range(8):
                for q in range(2):
                    A.ds_read_b128(R + (ww * 2 + q) * 4, T1 if ww < 4 else T2, (ww % 4) * 16384 + q * 1024)
                if ww == 5:
                    A.wait_ds_all()
            A.wait_ds_all()
        for ww in range(1, 8):
            for i in range(8):
                V(f"v_add_f32 v{R+i}, v{R+i}, v{R+ww*8+i}", w={R + i}, r={R + i, R + ww * 8 + i})
        for q in range(4):
            V(f"v_cvt_pk_bf16_f32 v{AF+q}, v{R+2*q}, v{R+2*q+1}", w={AF + q}, r={R + 2 * q, R + 2 * q + 1})
        A.salu(f"s_lshr_b32 s6, s{sW}, 1")
        A.salu("s_and_b32 s7, s6, 1")
        A.salu("s_lshr_b32 s6, s6, 1")
        A.salu(f"s_lshl_b32 s3, s{sMT}, 6")
        A.salu("s_lshl_b32 s7, s7, 5")
        A.salu("s_add_u32 s3, s3, s7")
        A.salu("s_mul_i32 s3, s3, 2304")
        A.salu(f"s_mul_i32 s7, s{sBLK}, 1152")
        A.salu("s_add_u32 s3, s3, s7")
        A.salu(f"s_lshl_b32 s7, s{sNT}, 7")
        A.salu("s_add_u32 s3, s3, s7")
        A.salu("s_lshl_b32 s7, s6, 6")
        A.salu("s_add_u32 s3, s3, s7")
        A.salu(f"s_and_b32 s7, s{sW}, 1")
        A.salu("s_lshl_b32 s7, s7, 5")
        A.salu("s_add_u32 s3, s3, s7")
        V(f"v_and_b32 v{T1}, 31, v{L}", w={T1}, r={L})
        V(f"v_mul_u32_u24 v{T1}, 2304, v{T1}", w={T1}, r={T1})
        V(f"v_lshrrev_b32 v{T2}, 5, v{L}", w={T2}, r={L})
        V(f"v_lshl_add_u32 v{T1}, v{T2}, 3, v{T1}", w={T1}, r={T2, T1})
        fl = ["", " sc1", " nt", " sc0 sc1"][OPT["ost"]]
        A.vmem(f"buffer_store_dwordx2 {vname(AF,2)}, v{T1}, s[{SOUT}:{SOUT+3}], s3 offen{fl}", r=vr(AF, 2) | {T1})
        A.vmem(f"buffer_store_dwordx2 {vname(AF+2,2)}, v{T1}, s[{SOUT}:{SOUT+3}], s3 offen offset:16{fl}", r=vr(AF + 2, 2) | {T1})

def gen_k2(A):
    V = A.valu
    T0, T1, T2, T3, T4, T5, T6, T7 = range(0, 8)
    WOFF = 8
    OOFF = 12
    BA = 13
    RED = 15
    AF = 16
    OF = 48
    ACC = 112
    sBLK, sMT, sNT, sW = 26, 27, 4, 5
    SW_, SO, SOUT = 28, 32, 36
    sWL, sWB, sO0, sO1, sT = 48, 49, 50, 51, 52
    A.win = []
    A.nds = A.ds_done = A.nvm = A.vm_done = 0
    A.raw(f".p2align 8\n.globl k2_kernel\n.type k2_kernel,@function\nk2_kernel:")
    A.salu("s_cmp_ge_u32 s2, 256")
    A.salu("s_cbranch_scc1 K2_END")
    A.salu("s_and_b32 s3, s2, 7")
    A.salu("s_lshl_b32 s3, s3, 5")
    A.salu("s_lshr_b32 s6, s2, 3")
    A.salu("s_add_u32 s3, s3, s6")
    A.salu("s_cmp_ge_u32 s3, 252")
    A.salu("s_cbranch_scc1 K2_END")
    A.salu("s_load_dwordx2 s[8:9], s[0:1], 32")
    A.salu("s_load_dwordx2 s[10:11], s[0:1], 72")
    A.salu("s_load_dwordx2 s[12:13], s[0:1], 80")
    A.salu("s_load_dwordx2 s[14:15], s[0:1], 96")
    A.salu("s_cmp_ge_u32 s3, 126")
    A.salu(f"s_cselect_b32 s{sBLK}, 1, 0")
    A.salu(f"s_mul_i32 s6, s{sBLK}, 126")
    A.salu("s_sub_u32 s3, s3, s6")
    A.salu("s_mul_i32 s6, s3, 57")
    A.salu(f"s_lshr_b32 s{sMT}, s6, 9")
    A.salu(f"s_mul_i32 s6, s{sMT}, 9")
    A.salu(f"s_sub_u32 s{sNT}, s3, s6")
    V(f"v_lshrrev_b32 v{T1}, 6, v0", w={T1}, r={0})
    A._emit(I(f"v_readfirstlane_b32 s{sW}, v{T1}", "rdlane", r={T1}, sw={sW}))
    V(f"v_and_b32 v{T0}, 63, v0", w={T0}, r={0})
    L = T0
    A.salu(f"s_lshl_b32 s{sWL}, s{sW}, 14", sr={sW})
    A.salu(f"s_mul_i32 s{sWB}, s{sW}, {512*1152}", sr={sW})
    A.salu(f"s_lshl_b32 s6, s{sNT}, 7")
    A.salu(f"s_add_u32 s{sWB}, s{sWB}, s6")
    A.salu(f"s_mul_i32 s{sO0}, s{sBLK}, {O_BLK}")
    A.salu(f"s_lshl_b32 s6, s{sMT}, 19")
    A.salu(f"s_add_u32 s{sO0}, s{sO0}, s6")
    A.salu(f"s_lshl_b32 s6, s{sW}, 14")
    A.salu(f"s_add_u32 s{sO0}, s{sO0}, s6")
    A.salu(f"s_add_u32 s{sO1}, s{sO0}, {2*131072}")
    V(f"v_lshrrev_b32 v{T1}, 3, v{L}", w={T1}, r={L})
    V(f"v_mul_u32_u24 v{T1}, 1152, v{T1}", w={T1}, r={T1})
    V(f"v_bfe_u32 v{T2}, v{L}, 4, 1", w={T2}, r={L})
    V(f"v_lshlrev_b32 v{T3}, 2, v{T2}", w={T3}, r={T2})
    V(f"v_and_b32 v{T4}, 7, v{L}", w={T4}, r={L})
    V(f"v_xor_b32 v{T4}, v{T4}, v{T3}", w={T4}, r={T4, T3})
    V(f"v_lshl_add_u32 v{WOFF}, v{T4}, 4, v{T1}", w={WOFF}, r={T4, T1})
    for i in range(1, 4):
        V(f"v_add_u32 v{WOFF+i}, {9216*i}, v{WOFF}", w={WOFF + i}, r={WOFF})
    V(f"v_lshrrev_b32 v{T1}, 5, v{L}", w={T1}, r={L})
    V(f"v_bfe_u32 v{T3}, v{L}, 2, 2", w={T3}, r={L})
    V(f"v_and_b32 v{T4}, 3, v{L}", w={T4}, r={L})
    V(f"v_lshlrev_b32 v{T6}, 17, v{T2}", w={T6}, r={T2})
    V(f"v_lshl_add_u32 v{T6}, v{T1}, 8, v{T6}", w={T6}, r={T1, T6})
    V(f"v_and_b32 v{T7}, 15, v{L}", w={T7}, r={L})
    V(f"v_lshl_add_u32 v{OOFF}, v{T7}, 4, v{T6}", w={OOFF}, r={T7, T6})
    V(f"v_lshl_add_u32 v{T6}, v{T1}, 2, v{T3}", w={T6}, r={T1, T3})
    V(f"v_lshlrev_b32 v{T6}, 7, v{T6}", w={T6}, r={T6})
    V(f"v_lshrrev_b32 v{T7}, 1, v{T4}", w={T7}, r={T4})
    V(f"v_lshl_add_u32 v{T7}, v{T2}, 1, v{T7}", w={T7}, r={T2, T7})
    V(f"v_lshrrev_b32 v{T5}, 1, v{T3}", w={T5}, r={T3})
    V(f"v_lshlrev_b32 v{T5}, 2, v{T5}", w={T5}, r={T5})
    V(f"v_xor_b32 v{T7}, v{T7}, v{T5}", w={T7}, r={T7, T5})
    V(f"v_lshl_add_u32 v{T6}, v{T7}, 4, v{T6}", w={T6}, r={T7, T6})
    V(f"v_and_b32 v{T7}, 1, v{T4}", w={T7}, r={T4})
    V(f"v_lshl_add_u32 v{T6}, v{T7}, 3, v{T6}", w={T6}, r={T7, T6})
    V(f"v_add_u32 v{BA}, s{sWL}, v{T6}", w={BA}, r={T6})
    V(f"v_xor_b32 v{BA+1}, 64, v{BA}", w={BA + 1}, r={BA})
    V(f"v_lshlrev_b32 v{RED}, 4, v{L}", w={RED}, r={L})
    A.waitcnt(lgkm=0)
    A.salu(f"s_cmp_eq_u32 s{sBLK}, 0")
    A.salu("s_cselect_b32 s8, s8, s10")
    A.salu("s_cselect_b32 s9, s9, s11")
    srd(A, SW_, 8, 4096 * 576 * 2)
    srd(A, SO, 14, 2 * O_BLK)
    srd(A, SOUT, 12, 896 * 1152 * 2)

    NU = 16; DEPTH = 4
    last_vm = {}
    def issue(u):
        slot = u % DEPTH
        A.salu(f"s_add_u32 s{sT}, s{sWB}, {u * 32 * 1152}")
        for i in range(4):
            A.salu(f"s_add_u32 m0, s{sWL}, {slot * 4096 + i * 1024}", m0w=True)
            A.vmem(f"buffer_load_dwordx4 v{WOFF+i}, s[{SW_}:{SW_+3}], s{sT} offen{' nt' if OPT['ntwo'] else ''} lds", kind="dma", r={WOFF + i}, m0r=True)
        for ks in range(2):
            for tm in range(2):
                d = OF + slot * 16 + (ks * 2 + tm) * 4
                off = (2 * u + ks) * 512
                sb = sO0 if tm == 0 else sO1
                if off >= 4096:
                    A.salu(f"s_add_u32 s{sT}, s{sb}, {off & ~4095}")
                    k = A.vmem(f"buffer_load_dwordx4 {vname(d,4)}, v{OOFF}, s[{SO}:{SO+3}], s{sT} offen offset:{off & 4095}{' nt' if OPT['nto'] else ''}", w=vr(d, 4), r={OOFF})
                else:
                    k = A.vmem(f"buffer_load_dwordx4 {vname(d,4)}, v{OOFF}, s[{SO}:{SO+3}], s{sb} offen offset:{off}{' nt' if OPT['nto'] else ''}", w=vr(d, 4), r={OOFF})
        last_vm[u] = k
    def dsreads(u):
        slot = u % DEPTH
        ab = AF + (u % 2) * 16
        for ks in range(2):
            for tn in range(2):
                for j in range(2):
                    k = A.ds_read_tr(ab + (ks * 2 + tn) * 4 + 2 * j, BA + tn, slot * 4096 + (16 * ks + 8 * j) * 128)
        return k
    PF = Prof(A, 1)
    PF.stamp("start")
    for u in range(DEPTH): issue(u)
    A.wait_vm(last_vm[0])
    pend = dsreads(0)
    for u in range(NU):
        A.wait_ds(pend)
        if u + 1 < NU:
            A.wait_vm(last_vm[u + 1])
            pend = dsreads(u + 1)
        ab = AF + (u % 2) * 16
        ob = OF + (u % DEPTH) * 16
        for ks in range(2):
            for tn in range(2):
                for tm in range(2):
                    c = "zero" if (u == 0 and ks == 0) else None
                    A.mfma(ACC + (tn * 2 + tm) * 16, ab + (ks * 2 + tn) * 4, ob + (ks * 2 + tm) * 4, c)
        if u + DEPTH < NU: issue(u + DEPTH)
        PF.stamp(f"u{u}")
    A.wait_ds_all()
    A.barrier()
    V(f"v_add_u32 v{T1}, s{sWL}, v{RED}", w={T1}, r={RED})
    for q in range(16):
        A.ds_write_b128(T1, ACC + 4 * q, q * 1024)
    A.wait_ds_all()
    A.barrier()
    A.salu(f"s_lshl_b32 s6, s{sW}, 11")
    V(f"v_add_u32 v{T1}, s6, v{RED}", w={T1}, r={RED})
    V(f"v_add_u32 v{T2}, 0x10000, v{T1}", w={T2}, r={T1})
    R = OF
    for ww in range(8):
        for q in range(2):
            A.ds_read_b128(R + (ww * 2 + q) * 4, T1 if ww < 4 else T2, (ww % 4) * 16384 + q * 1024)
            if ww == 6 and q == 1: pass
        if ww == 5:
            A.wait_ds_all()
    A.wait_ds_all()
    for ww in range(1, 8):
        for i in range(8):
            V(f"v_add_f32 v{R+i}, v{R+i}, v{R+ww*8+i}", w={R + i}, r={R + i, R + ww * 8 + i})
    for q in range(4):
        V(f"v_cvt_pk_bf16_f32 v{AF+q}, v{R+2*q}, v{R+2*q+1}", w={AF + q}, r={R + 2 * q, R + 2 * q + 1})
    A.salu(f"s_lshr_b32 s6, s{sW}, 1")
    A.salu("s_and_b32 s7, s6, 1")
    A.salu("s_lshr_b32 s6, s6, 1")
    A.salu(f"s_lshl_b32 s3, s{sMT}, 6")
    A.salu("s_lshl_b32 s7, s7, 5")
    A.salu("s_add_u32 s3, s3, s7")
    A.salu("s_mul_i32 s3, s3, 2304")
    A.salu(f"s_mul_i32 s7, s{sBLK}, 1152")
    A.salu("s_add_u32 s3, s3, s7")
    A.salu(f"s_lshl_b32 s7, s{sNT}, 7")
    A.salu("s_add_u32 s3, s3, s7")
    A.salu("s_lshl_b32 s7, s6, 6")
    A.salu("s_add_u32 s3, s3, s7")
    A.salu(f"s_and_b32 s7, s{sW}, 1")
    A.salu("s_lshl_b32 s7, s7, 5")
    A.salu("s_add_u32 s3, s3, s7")
    V(f"v_and_b32 v{T1}, 31, v{L}", w={T1}, r={L})
    V(f"v_mul_u32_u24 v{T1}, 2304, v{T1}", w={T1}, r={T1})
    V(f"v_lshrrev_b32 v{T2}, 5, v{L}", w={T2}, r={L})
    V(f"v_lshl_add_u32 v{T1}, v{T2}, 3, v{T1}", w={T1}, r={T2, T1})
    A.vmem(f"buffer_store_dwordx2 {vname(AF,2)}, v{T1}, s[{SOUT}:{SOUT+3}], s3 offen", r=vr(AF, 2) | {T1})
    A.vmem(f"buffer_store_dwordx2 {vname(AF+2,2)}, v{T1}, s[{SOUT}:{SOUT+3}], s3 offen offset:16", r=vr(AF + 2, 2) | {T1})
    PF.dump(14, sW, 0)
    A.label("K2_END")
    A.salu("s_endpgm")

def kd(name, vgpr, sgpr):
    return f""".amdhsa_kernel {name}
  .amdhsa_next_free_vgpr {vgpr}
  .amdhsa_next_free_sgpr {sgpr}
  .amdhsa_accum_offset {(vgpr + 3) // 4 * 4}
  .amdhsa_group_segment_fixed_size 0
  .amdhsa_kernarg_size 104
  .amdhsa_user_sgpr_count 2
  .amdhsa_user_sgpr_kernarg_segment_ptr 1
  .amdhsa_system_sgpr_workgroup_id_x 1
.end_amdhsa_kernel
"""

def main():
    A = Asm()
    gen_k1(A)
    if not OPT["fuse"]: gen_k2(A)
    head = """; Two-launch GQA block pair: k1 = Q projection + attention (o -> ws), k2 = output projection.
; @launch kernel=k1_kernel grid=(256,1,1) block=(512,1,1) lds=163840
; @launch kernel=k2_kernel grid=(256,1,1) block=(512,1,1) lds=131072
.amdgcn_target "amdgcn-amd-amdhsa--gfx950"
.text
"""
    tail = '\n.section .rodata,"a"\n.p2align 6\n' + kd("k1_kernel", 256, 102 if OPT["prof"] else 64) + ".p2align 6\n" + kd("k2_kernel", 176, 102 if OPT["prof"] else 64)
    if OPT["fuse"]:
        head = """; GQA block pair in one launch: Q projection + attention, o handed over through ws, output projection.
; @launch kernel=k1_kernel grid=(256,1,1) block=(512,1,1) lds=163840
.amdgcn_target "amdgcn-amd-amdhsa--gfx950"
.text
"""
        tail = '\n.section .rodata,"a"\n.p2align 6\n' + kd("k1_kernel", 256, 102 if OPT["prof"] else 64)
    txt = head + A.text() + tail
    if "CODE_BYTES" in txt:
        import subprocess, re
        open("_p1.s", "w").write(txt.replace("CODE_BYTES", "0x12345"))
        subprocess.check_call(["clang", "-x", "assembler", "-target", "amdgcn-amd-amdhsa", "-mcpu=gfx950", "-c", "_p1.s", "-o", "_p1.o"])
        o = subprocess.check_output(["llvm-objdump", "-h", "_p1.o"]).decode()
        n = int(re.search(r"\.text\s+([0-9a-f]+)", o).group(1), 16)
        txt = txt.replace("CODE_BYTES", str(n))
    open(sys.argv[1], "w").write(txt)
    print("nops inserted:", A.nops_inserted, "lines:", len(A.out))

main()
```

```python
import sys, math
sys.path.insert(0, "gen")
from asmlib import *

NAME = "concat_heads__gqa_block_cached__gqa_block_cached__near_ridge"
OPT = dict(prio=1, prof=0, ntkv=1, ntw=0, ntx=0, ntwo=0, nto=0, ntst=0, nq=6, kvrate=1, l2pf=1, wopf=4, fat=1, bstep=1, dmagap=1, pflead=4, kv0=2, nstg=4, kvt=0, ld4=1, cpf=0, mid=0, kvt0=1, kvtr=1, roll=0, pfrate=1, kvs=0, rot=0, stag=0, qi=0, tlbw=0, ntt=0, fuse=0, slp=1, wox=0, xm=0, wo0=3, wo6=0, exp=0, ntf=0, pv=0, ost=0, red=0)
for a in sys.argv[2:]:
    k, v = a.split("="); OPT[k] = int(v)

O_BLK = 896 * 4096 * 2
SLOT = 16384
NSLOT = 10

def srd(A, d, base, nbytes):
    A.salu(f"s_mov_b32 s{d}, s{base}")
    A.salu(f"s_and_b32 s{d+1}, s{base+1}, 0xffff")
    A.salu(f"s_mov_b32 s{d+2}, {nbytes}")
    A.salu(f"s_mov_b32 s{d+3}, 0x00020000")

class Prof:
    def __init__(self, A, kidx):
        self.A = A; self.n = 0; self.names = []; self.kidx = kidx
    def stamp(self, name):
        A = self.A
        if OPT["prof"] == 3:
            sel = ["start", "q0", "a0", "pv7", "st", "go", "u15", "end"]
            if name == "start" or name == sel[OPT["pv"]]:
                A.salu("s_waitcnt lgkmcnt(0)")
                A.ds_done = A.nds
                A.salu("s_memrealtime s[96:97]")
                A.salu("s_waitcnt lgkmcnt(0)")
                if name == "start": A.salu("s_not_b32 s64, s96")
                if name == sel[OPT["pv"]]: A.salu(f"s_mov_b32 s65, s96")
            return
        if OPT["prof"] == 2:
            sel = ["start", "q0", "a0", "pv7", "st", "go", "u15", "end"]
            if name in sel:
                A.salu("s_waitcnt lgkmcnt(0)")
                A.ds_done = A.nds
                A.salu("s_memrealtime s[96:97]")
                A.salu("s_waitcnt lgkmcnt(0)")
                if name == "start": A.salu("s_not_b32 s96, s96")
                A.salu(f"s_mov_b32 s{64+sel.index(name)}, s96")
            return
        if not OPT["prof"]: return
        assert self.n < 30
        A.salu("s_waitcnt lgkmcnt(0)")
        A.ds_done = A.nds
        A.salu("s_memtime s[96:97]")
        A.salu("s_waitcnt lgkmcnt(0)")
        A.salu(f"s_mov_b32 s{64+self.n}, s96")
        if self.n == 0:
            A.salu("s_memrealtime s[98:99]")
            A.salu("s_waitcnt lgkmcnt(0)")
        self.n += 1; self.names.append(name)
    def dump(self, wsreg, sW, tmp):
        if not OPT["prof"]: return
        A = self.A
        self.stamp("end")
        if OPT["prof"] == 3:
            A.salu(f"s_cmp_eq_u32 s{sW}, 0")
            A.salu("s_cbranch_scc0 K1_END")
            A.salu("s_mov_b64 exec, -1")
            A.salu("s_nop 4")
            for i in range(2):
                A.salu(f"v_writelane_b32 v{tmp}, s{64+i}, {i}")
            A.salu(f"v_mbcnt_lo_u32_b32 v{tmp+1}, -1, 0")
            A.salu(f"v_lshlrev_b32 v{tmp+1}, 2, v{tmp+1}")
            A.salu(f"v_mov_b32 v{tmp+2}, 1")
            A.salu("s_mov_b64 exec, 3")
            A.salu("s_nop 4")
            A.salu(f"buffer_atomic_umax v{tmp}, v{tmp+1}, s[20:23], 0 offen offset:32 sc1")
            A.salu("s_waitcnt vmcnt(0)")
            A.salu("s_mov_b64 exec, 1")
            A.salu(f"buffer_atomic_add v{tmp+2}, v{tmp+1}, s[20:23], 0 offen offset:40 sc0 sc1")
            A.salu("s_waitcnt vmcnt(0)")
            A.salu(f"v_readfirstlane_b32 s66, v{tmp+2}")
            A.salu("s_cmp_eq_u32 s66, 251")
            A.salu("s_cbranch_scc0 K1_END")
            A.salu("s_mov_b64 exec, 3")
            A.salu(f"buffer_load_dword v{tmp}, v{tmp+1}, s[20:23], 0 offen offset:32 sc1")
            A.salu("s_waitcnt vmcnt(0)")
            A.salu(f"v_readlane_b32 s66, v{tmp}, 0")
            A.salu(f"v_readlane_b32 s67, v{tmp}, 1")
            A.salu("s_not_b32 s66, s66")
            A.salu("s_sub_u32 s66, s67, s66")
            A.salu("s_min_u32 s66, s66, 10000")
            A.salu("s_lshl_b32 s66, s66, 3")
            A.salu("s_memrealtime s[96:97]")
            A.salu("s_waitcnt lgkmcnt(0)")
            A.salu("s_mov_b32 s67, s96")
            A.label("K1_DLY")
            A.salu("s_memrealtime s[96:97]")
            A.salu("s_waitcnt lgkmcnt(0)")
            A.salu("s_sub_u32 s96, s96, s67")
            A.salu("s_cmp_lt_u32 s96, s66")
            A.salu("s_cbranch_scc1 K1_DLY")
            return
        if OPT["prof"] == 2:
            A.salu("s_mov_b64 exec, -1")
            A.salu("s_nop 4")
            for i in range(8):
                A.salu(f"v_writelane_b32 v{tmp}, s{64+i}, {i}")
            A.salu(f"v_mbcnt_lo_u32_b32 v{tmp+1}, -1, 0")
            A.salu(f"v_lshlrev_b32 v{tmp+1}, 2, v{tmp+1}")
            A.salu("s_mov_b64 exec, 0xff")
            A.salu("s_nop 4")
            A.salu(f"buffer_atomic_umax v{tmp}, v{tmp+1}, s[20:23], 0 offen offset:32 sc1")
            return
        A.salu("s_memrealtime s[96:97]")
        A.salu("s_waitcnt lgkmcnt(0)")
        A.salu("s_mov_b64 exec, -1")
        A.salu("s_nop 4")
        for i in range(self.n):
            A.salu(f"v_writelane_b32 v{tmp}, s{64+i}, {i}")
        A.salu("s_getreg_b32 s97, hwreg(HW_REG_HW_ID)")
        A.salu(f"v_writelane_b32 v{tmp}, s97, 29")
        A.salu(f"v_writelane_b32 v{tmp}, s98, 30")
        A.salu(f"v_writelane_b32 v{tmp}, s96, 31")
        A.salu(f"s_mov_b32 s60, s{wsreg}")
        A.salu(f"s_and_b32 s61, s{wsreg+1}, 0xffff")
        A.salu("s_mov_b32 s62, 0x10000000")
        A.salu("s_mov_b32 s63, 0x00020000")
        A.salu("s_lshl_b32 s96, s2, 3")
        A.salu(f"s_add_u32 s96, s96, s{sW}")
        A.salu("s_lshl_b32 s96, s96, 7")
        A.salu(f"s_add_u32 s96, s96, {255*1024*1024 + self.kidx*512*1024}")
        A.salu(f"v_mbcnt_lo_u32_b32 v{tmp+1}, -1, 0")
        A.salu(f"v_mbcnt_hi_u32_b32 v{tmp+1}, -1, v{tmp+1}")
        A.salu(f"v_lshlrev_b32 v{tmp+1}, 2, v{tmp+1}")
        A.salu("s_mov_b64 exec, 0xffffffff")
        A.salu("s_nop 4")
        A.salu(f"buffer_store_dword v{tmp}, v{tmp+1}, s[60:63], s96 offen")
        print("stamps k%d:" % self.kidx, self.names)

def gen_k1(A):
    V = A.valu
    T0, T1, T2, T3, T4, T5, T6, T7 = range(0, 8)
    XO, WO, KO = 8, 10, 12
    BW, BX, BK, BV = 14, 15, 16, 17
    LSUM, OST = 18, 19
    SUMA, SUMB, MX, MX2 = 20, 21, 22, 23
    AD = 24
    FR = 32
    NEGM = 48
    QB = 64
    S = 96
    O = 160
    P = 224
    sBLK, sKVH, sB, sW, sHL, sRT = 26, 27, 4, 5, 6, 7
    SX, SW_, SK, SV, SO = 28, 32, 36, 40, 44
    sWL, sXB, sWB, sKVB, sT, sOB = 48, 49, 50, 51, 52, 53
    sMASK, sTHR, sC = 54, 56, 57
    sW3, sWL4, sT2 = 58, 59, 55

    A.raw(f".p2align 8\n.globl k1_kernel\n.type k1_kernel,@function\nk1_kernel:\nK1_BEGIN:")
    A.salu("s_cmp_ge_u32 s2, 256")
    A.salu("s_cbranch_scc1 K1_END")
    A.salu("s_load_dwordx8 s[8:15], s[0:1], 0")
    A.salu("s_load_dwordx8 s[16:23], s[0:1], 40")
    A.salu("s_load_dwordx2 s[24:25], s[0:1], 96")
    if OPT["cpf"]:
        A.salu("s_getpc_b64 s[60:61]")
        A.salu("s_and_b32 s60, s60, 0xffffff00")
        A.salu("s_and_b32 s61, s61, 0xffff")
        A.salu("s_mov_b32 s62, CODE_BYTES")
        A.salu("s_mov_b32 s63, 0x00020000")
        V(f"v_lshlrev_b32 v{T7}, 7, v0", w={T7}, r={0})
        A.vmem(f"buffer_load_dword v{NEGM+15}, v{T7}, s[60:63], 0 offen", w={NEGM+15}, r={T7})
    A.salu("s_and_b32 s3, s2, 7")
    A.salu(f"s_lshr_b32 s{sB}, s2, 3")
    A.salu(f"s_lshr_b32 s{sBLK}, s3, 2")
    A.salu("s_and_b32 s3, s3, 3")
    A.salu("s_lshl_b32 s3, s3, 2")
    A.salu(f"s_and_b32 s{sKVH}, s{sB}, 3")
    A.salu(f"s_add_u32 s{sKVH}, s{sKVH}, s3")
    A.salu(f"s_lshr_b32 s{sB}, s{sB}, 2")
    V(f"v_lshrrev_b32 v{T1}, 6, v0", w={T1}, r={0})
    A._emit(I(f"v_readfirstlane_b32 s{sW}, v{T1}", "rdlane", r={T1}, sw={sW}))
    V(f"v_and_b32 v{T0}, 63, v0", w={T0}, r={0})
    if OPT["fat"]:
        A.salu(f"s_bfe_u32 s{sHL}, s{sW}, 0x10001", sr={sW})
        A.salu(f"s_and_b32 s{sRT}, s{sW}, 1", sr={sW})
        A.salu(f"s_lshl_b32 s{sRT}, s{sRT}, 1")
        A.salu(f"s_lshr_b32 s3, s{sW}, 2", sr={sW})
        A.salu(f"s_add_u32 s{sRT}, s{sRT}, s3")
    else:
        A.salu(f"s_lshr_b32 s{sHL}, s{sW}, 2", sr={sW})
        A.salu(f"s_and_b32 s{sRT}, s{sW}, 3", sr={sW})
    A.salu(f"s_lshl_b32 s{sWL}, s{sW}, 11", sr={sW})
    A.salu(f"s_and_b32 s{sW3}, s{sW}, {3 if OPT['ld4'] else 1}", sr={sW})
    A.salu(f"s_lshl_b32 s{sWL4}, s{sW3}, 11")
    A.salu(f"s_mul_i32 s{sXB}, s{sB}, 129024")
    A.salu(f"s_lshl_b32 s{sWB}, s{sKVH}, 9")
    A.salu(f"s_lshl_b32 s{sKVB}, s{sB}, 4")
    A.salu(f"s_add_u32 s{sKVB}, s{sKVB}, s{sKVH}")
    if OPT["rot"] == 1:
        A.salu(f"s_and_b32 s{sMASK}, s{sKVB}, 7")
    elif OPT["rot"] == 2:
        A.salu(f"s_add_u32 s{sMASK}, s{sKVH}, s{sB}")
        A.salu(f"s_and_b32 s{sMASK}, s{sMASK}, 7")
    elif OPT["rot"] == 3:
        A.salu(f"s_and_b32 s{sMASK}, s{sB}, 7")
    A.salu(f"s_lshl_b32 s{sMASK}, s{sMASK}, 14")
    A.salu(f"s_lshl_b32 s{sKVB}, s{sKVB}, 17")
    A.salu(f"s_mov_b32 s{sTHR}, 0x4b800000")
    c = math.log2(math.e) / math.sqrt(128.0)
    import struct
    cbits = struct.unpack("<I", struct.pack("<f", c))[0]
    A.salu(f"s_mov_b32 s{sC}, {cbits:#x}")
    L = T0
    for q in range(2):
        V(f"v_lshrrev_b32 v{T1}, 3, v{L}", w={T1}, r={L})
        A.salu(f"s_lshl_b32 s3, s{sW3}, 4")
        A.salu(f"s_add_u32 s3, s3, {8*q}")
        V(f"v_add_u32 v{T1}, s3, v{T1}", w={T1}, r={T1})
        V(f"v_mul_u32_u24 v{T1}, 1152, v{T1}", w={T1}, r={T1})
        V(f"v_and_b32 v{T2}, 7, v{L}", w={T2}, r={L})
        V(f"v_lshrrev_b32 v{T3}, 4, v{L}", w={T3}, r={L})
        V(f"v_xor_b32 v{T2}, v{T2}, v{T3}", w={T2}, r={T2, T3})
        if q: V(f"v_xor_b32 v{T2}, 4, v{T2}", w={T2}, r={T2})
        V(f"v_lshl_add_u32 v{XO+q}, v{T2}, 4, v{T1}", w={XO+q}, r={T2, T1})
        V(f"v_lshrrev_b32 v{T3}, 5, v{L}", w={T3}, r={L})
        A.salu(f"s_lshl_b32 s3, s{sW3}, 2")
        A.salu(f"s_add_u32 s3, s3, {2*q}")
        V(f"v_add_u32 v{T1}, s3, v{T3}", w={T1}, r={T3})
        V(f"v_lshlrev_b32 v{T1}, 13, v{T1}", w={T1}, r={T1})
        V(f"v_or_b32 v{T3}, {2*q}, v{T3}", w={T3}, r={T3})
        V(f"v_lshlrev_b32 v{T3}, 2, v{T3}", w={T3}, r={T3})
        V(f"v_and_b32 v{T2}, 31, v{L}", w={T2}, r={L})
        V(f"v_xor_b32 v{T2}, v{T2}, v{T3}", w={T2}, r={T2, T3})
        V(f"v_lshl_add_u32 v{WO+q}, v{T2}, 4, v{T1}", w={WO+q}, r={T2, T1})
        V(f"v_lshrrev_b32 v{T3}, 4, v{L}", w={T3}, r={L})
        A.salu(f"s_lshl_b32 s3, s{sW}, 3")
        A.salu(f"s_add_u32 s3, s3, {4*q}")
        V(f"v_add_u32 v{T1}, s3, v{T3}", w={T1}, r={T3})
        V(f"v_lshlrev_b32 v{T1}, 8, v{T1}", w={T1}, r={T1})
        A.salu(f"s_and_b32 s3, s{sW}, 1")
        A.salu(f"s_lshl_b32 s3, s3, 1")
        A.salu(f"s_or_b32 s3, s3, {q}")
        V(f"v_lshlrev_b32 v{T3}, 2, v{T3}", w={T3}, r={T3})
        V(f"v_or_b32 v{T3}, s3, v{T3}", w={T3}, r={T3})
        V(f"v_and_b32 v{T2}, 15, v{L}", w={T2}, r={L})
        V(f"v_xor_b32 v{T2}, v{T2}, v{T3}", w={T2}, r={T2, T3})
        V(f"v_lshl_add_u32 v{KO+q}, v{T2}, 4, v{T1}", w={KO+q}, r={T2, T1})
    V(f"v_lshrrev_b32 v{T1}, 5, v{L}", w={T1}, r={L})
    V(f"v_bfe_u32 v{T2}, v{L}, 4, 1", w={T2}, r={L})
    V(f"v_bfe_u32 v{T3}, v{L}, 2, 2", w={T3}, r={L})
    V(f"v_and_b32 v{T4}, 3, v{L}", w={T4}, r={L})
    V(f"v_and_b32 v{T5}, 31, v{L}", w={T5}, r={L})
    V(f"v_lshl_add_u32 v{T6}, v{T1}, 3, v{T3}", w={T6}, r={T1, T3})
    V(f"v_lshlrev_b32 v{T6}, 9, v{T6}", w={T6}, r={T6})
    V(f"v_lshlrev_b32 v{T7}, 2, v{T3}", w={T7}, r={T3})
    V(f"v_lshl_add_u32 v{T7}, v{T2}, 1, v{T7}", w={T7}, r={T2, T7})
    V(f"v_and_b32 v{BW}, 1, v{T4}", w={BW}, r={T4})
    V(f"v_add_u32 v{T7}, v{T7}, v{BW}", w={T7}, r={T7, BW})
    A.salu(f"s_lshl_b32 s3, s{sHL}, 4")
    V(f"v_add_u32 v{T7}, s3, v{T7}", w={T7}, r={T7})
    V(f"v_lshl_add_u32 v{T6}, v{T7}, 4, v{T6}", w={T6}, r={T7, T6})
    V(f"v_lshrrev_b32 v{T7}, 1, v{T4}", w={T7}, r={T4})
    V(f"v_lshl_add_u32 v{BW}, v{T7}, 3, v{T6}", w={BW}, r={T7, T6})
    A.salu(f"s_lshl_b32 s3, s{sRT}, 5")
    V(f"v_add_u32 v{T6}, s3, v{T5}", w={T6}, r={T5})
    V(f"v_lshlrev_b32 v{T6}, 7, v{T6}", w={T6}, r={T6})
    V(f"v_bfe_u32 v{T7}, v{T5}, 1, 3", w={T7}, r={T5})
    V(f"v_xor_b32 v{T7}, v{T7}, v{T1}", w={T7}, r={T7, T1})
    V(f"v_lshl_add_u32 v{BX}, v{T7}, 4, v{T6}", w={BX}, r={T7, T6})
    V(f"v_lshlrev_b32 v{T6}, 2, v{T4}", w={T6}, r={T4})
    V(f"v_or_b32 v{T6}, v{T6}, v{T3}", w={T6}, r={T6, T3})
    V(f"v_xor_b32 v{T6}, v{T6}, v{T1}", w={T6}, r={T6, T1})
    V(f"v_lshlrev_b32 v{T7}, 8, v{T5}", w={T7}, r={T5})
    V(f"v_lshl_add_u32 v{BK}, v{T6}, 4, v{T7}", w={BK}, r={T6, T7})
    V(f"v_lshl_add_u32 v{T6}, v{T1}, 2, v{T3}", w={T6}, r={T1, T3})
    V(f"v_lshlrev_b32 v{T6}, 8, v{T6}", w={T6}, r={T6})
    V(f"v_lshrrev_b32 v{T7}, 1, v{T4}", w={T7}, r={T4})
    V(f"v_lshl_add_u32 v{T7}, v{T2}, 1, v{T7}", w={T7}, r={T2, T7})
    V(f"v_xor_b32 v{T7}, v{T7}, v{T1}", w={T7}, r={T7, T1})
    V(f"v_lshl_or_b32 v{T7}, v{T3}, 2, v{T7}", w={T7}, r={T3, T7})
    V(f"v_lshl_add_u32 v{T6}, v{T7}, 4, v{T6}", w={T6}, r={T7, T6})
    V(f"v_and_b32 v{T7}, 1, v{T4}", w={T7}, r={T4})
    V(f"v_lshl_add_u32 v{BV}, v{T7}, 3, v{T6}", w={BV}, r={T7, T6})
    V(f"v_lshlrev_b32 v{T6}, 17, v{T2}", w={T6}, r={T2})
    V(f"v_lshl_add_u32 v{T6}, v{T1}, 8, v{T6}", w={T6}, r={T1, T6})
    V(f"v_and_b32 v{T7}, 15, v{L}", w={T7}, r={L})
    V(f"v_lshl_add_u32 v{OST}, v{T7}, 4, v{T6}", w={OST}, r={T7, T6})
    V(f"v_mov_b32 v{LSUM}, 0", w={LSUM})
    A.waitcnt(lgkm=0)
    A.salu(f"s_cmp_eq_u32 s{sBLK}, 0")
    for k in range(8):
        A.salu(f"s_cselect_b32 s{8+k}, s{8+k}, s{16+k}")
    srd(A, SX, 8, 8 * 112 * 576 * 2)
    srd(A, SK, 10, 8 * 16 * 512 * 128 * 2)
    srd(A, SV, 12, 8 * 16 * 512 * 128 * 2)
    srd(A, SW_, 14, 576 * 4096 * 2)
    srd(A, SO, 24, 2 * O_BLK)
    A.salu(f"s_mul_i32 s{sOB}, s{sBLK}, {O_BLK}")
    A.salu(f"s_mul_i32 s3, s{sB}, 7")
    A.salu(f"s_lshl_b32 s{sT}, s{sRT}, 1")
    A.salu(f"s_add_u32 s3, s3, s{sT}")
    A.salu(f"s_lshl_b32 s3, s3, 17")
    A.salu(f"s_add_u32 s{sOB}, s{sOB}, s3")
    A.salu(f"s_lshl_b32 s3, s{sKVH}, 1")
    A.salu(f"s_add_u32 s3, s3, s{sHL}")
    A.salu(f"s_lshl_b32 s3, s3, 12")
    A.salu(f"s_add_u32 s{sOB}, s{sOB}, s3")
    if OPT["prio"]:
        A.salu(f"s_cmp_ge_u32 s{sW}, 4")
        A.salu("s_cbranch_scc0 K1_PRIO_DONE" if OPT["prio"] == 1 else "s_cbranch_scc1 K1_PRIO_DONE")
        A.salu("s_setprio 1")
        A.label("K1_PRIO_DONE")

    NTT = {0: "", 1: " nt", 2: " sc1", 3: " sc0 sc1", 4: " sc1 nt"}[OPT["ntt"]]
    qunits = []
    for s_ in range(9):
        qunits += [("X", s_), ("W", 2 * s_), ("W", 2 * s_ + 1)]
    kvunits = [("K", 0)]
    for h in range(7):
        kvunits += [("K", h + 1), ("V", h)]
    kvunits += [("V", 7)]
    units = qunits + kvunits
    UK = {idx: 27 + i for i, (t_, idx) in enumerate(kvunits) if t_ == "K"}
    UV = {idx: 27 + i for i, (t_, idx) in enumerate(kvunits) if t_ == "V"}
    stage_units = [list(range(3 * s_, 3 * s_ + 3)) for s_ in range(9)]
    unit_last_vm = {}
    unit_slot = {}
    free = list(range(NSLOT))
    nq = [0]; nkv = [0]; xch = []
    KQ = FR
    DV = FR + 2
    NSTG = OPT["nstg"]
    STG = [S + 32, O, O + 32, P][:NSTG]

    def unit_info(u):
        typ, idx = units[u]
        if typ == "X": return sXB, idx * 128, SX, XO, 2 * 16 * 1152, "ntx"
        if typ == "W": return sWB, idx * 32 * 8192, SW_, WO, 2 * 4 * 8192, "ntw"
        if typ == "K": return sKVB, idx * 64 * 256, SK, KO, 4096, "ntkv"
        return sKVB, idx * 64 * 256, SV, KO, 4096, "ntkv"

    def sbase(base, const):
        if base == sKVB and OPT["rot"]:
            A.salu(f"s_add_u32 s{sT}, s{sMASK}, {const}")
            A.salu(f"s_and_b32 s{sT}, s{sT}, 0x1ffff")
            A.salu(f"s_or_b32 s{sT}, s{sT}, s{sKVB}")
        else:
            A.salu(f"s_add_u32 s{sT}, s{base}, {const}")

    def issue_unit_q(u, stage_reg=None):
        if stage_reg is None:
            slot = free.pop(0)
            unit_slot[u] = slot
        base, const, sr_, vo, delta, nto = unit_info(u)
        if vo == KO: vo = KQ
        nt = " nt" if OPT[nto] else ""
        for hv in range(4):
            A.salu(f"s_add_u32 s{sT}, s{base}, {const + delta * hv}")
            for q in range(2):
                if stage_reg is None:
                    A.salu(f"s_add_u32 m0, s{sWL4}, {slot * SLOT + hv * 4096 + q * 1024}", m0w=True)
                    k = A.vmem(f"buffer_load_dwordx4 v{vo+q}, s[{sr_}:{sr_+3}], s{sT} offen{nt} lds", kind="dma", r={vo + q}, m0r=True)
                else:
                    d = stage_reg + (hv * 2 + q) * 4
                    k = A.vmem(f"buffer_load_dwordx4 {vname(d,4)}, v{vo+q}, s[{sr_}:{sr_+3}], s{sT} offen{nt}", w=vr(d, 4), r={vo + q})
        unit_last_vm[u] = k

    def issue_unit_4(u):
        slot = free.pop(0)
        unit_slot[u] = slot
        base, const, sr_, vo, delta, nto = unit_info(u)
        nt = " nt" if OPT[nto] else ""
        sbase(base, const)
        if vo != KO: A.salu(f"s_add_u32 s{sT2}, s{base}, {const + 2 * delta}")
        for hv in range(2):
            for q in range(2):
                A.salu(f"s_add_u32 m0, s{sWL4}, {slot * SLOT + hv * 8192 + q * 1024}", m0w=True)
                if vo == KO:
                    va = (KQ if hv == 0 else KO) + q; so = sT
                else:
                    va = vo + q; so = sT if hv == 0 else sT2
                k = A.vmem(f"buffer_load_dwordx4 v{va}, s[{sr_}:{sr_+3}], s{so} offen{nt} lds", kind="dma", r={va}, m0r=True)
        unit_last_vm[u] = k

    def flood():
        if not OPT["l2pf"]: return
        V(f"v_lshrrev_b32 v{T1}, 2, v{L}", w={T1}, r={L})
        V(f"v_lshlrev_b32 v{T1}, 13, v{T1}", w={T1}, r={T1})
        V(f"v_and_b32 v{T2}, 3, v{L}", w={T2}, r={L})
        V(f"v_lshl_add_u32 v{T1}, v{T2}, 7, v{T1}", w={T1}, r={T2, T1})
        A.salu(f"s_lshl_b32 s3, s{sW}, 4")
        A.salu(f"s_min_u32 s3, s3, 56")
        A.salu(f"s_mul_i32 s{sT}, s{sB}, 72")
        A.salu(f"s_add_u32 s3, s3, s{sT}")
        A.salu(f"s_lshl_b32 s3, s3, 13")
        A.salu(f"s_add_u32 s3, s3, s{sWB}")
        A.vmem(f"buffer_load_dword v{T4}, v{T1}, s[{SW_}:{SW_+3}], s3 offen{NTT}", w={T4}, r={T1})
        V(f"v_lshlrev_b32 v{T2}, 7, v{L}", w={T2}, r={L})
        A.salu(f"s_and_b32 s3, s{sKVH}, 3")
        A.salu(f"s_mul_i32 s3, s3, 32256")
        A.salu(f"s_and_b32 s{sT}, s{sW}, 3")
        A.salu(f"s_lshl_b32 s{sT}, s{sT}, 13")
        A.salu(f"s_add_u32 s3, s3, s{sT}")
        A.salu(f"s_add_u32 s3, s3, s{sXB}")
        A.vmem(f"buffer_load_dword v{T5}, v{T2}, s[{SX}:{SX+3}], s3 offen{NTT}", w={T5}, r={T2})

    def dump_unit(u, stage_reg):
        slot = free.pop(0)
        unit_slot[u] = slot
        V(f"v_add_u32 v{DV+1}, {slot * SLOT}, v{DV}", w={DV + 1}, r={DV})
        for hv in range(4):
            for q in range(2):
                A.ds_write_b128(DV + 1, stage_reg + (hv * 2 + q) * 4, hv * 4096 + q * 1024)

    def dma_items(u):
        slot = free.pop(0)
        unit_slot[u] = slot
        base, const, sr_, vo, delta, nto = unit_info(u)
        nt = " nt" if OPT[nto] else ""
        def mk(q):
            def f():
                sbase(base, const)
                A.salu(f"s_add_u32 m0, s{sWL}, {slot * SLOT + q * 1024}", m0w=True)
                k = A.vmem(f"buffer_load_dwordx4 v{vo+q}, s[{sr_}:{sr_+3}], s{sT} offen{nt} lds", kind="dma", r={vo + q}, m0r=True)
                unit_last_vm[u] = k
            return f
        if not OPT["stag"]: return [mk(0), mk(1)]
        G = 8 // OPT["stag"]
        def cond(f, g):
            def h():
                lab = f"K1_D{nlab[0]}"; nlab[0] += 1
                A.salu(f"s_cmp_eq_u32 s{sT2}, {g}")
                A.salu(f"s_cbranch_scc0 {lab}")
                n0 = len(A.out)
                f()
                for o in A.out[n0:]: o.ws = 0
                A.label(lab)
                if g < G - 1: A.nvm -= 1
            return h
        return [cond(mk(q), g) for q in range(2) for g in range(G)]
    nlab = [0]

    NQ = OPT["nq"]
    PF = Prof(A, 0)
    PF.stamp("start")

    def addr_items(dst, base, slot, xors):
        it = [lambda: V(f"v_add_u32 v{dst[0]}, {slot * SLOT}, v{base}", w={dst[0]}, r={base})]
        for i, x in enumerate(xors):
            if i == 0: continue
            it.append(lambda i=i, x=x: V(f"v_xor_b32 v{dst[i]}, {x}, v{dst[0]}", w={dst[i]}, r={dst[0]}))
        return it

    A.salu(f"s_cmp_lt_u32 s{sW}, 4")
    A.salu("s_cbranch_scc1 K1_FAT")
    pf0 = PF.n
    staged = []
    if OPT["ld4"]:
        for q in range(2):
            V(f"v_subrev_u32 v{KQ+q}, {4*8*256}, v{KO+q}", w={KQ + q}, r={KO + q})
        NL = NSLOT - NQ
        def refill(s):
            done_q = 3 * max(s, 0)
            while nq[0] < 27 and nq[0] - done_q < NQ and free:
                issue_unit_4(nq[0]); nq[0] += 1
        def kv_issue():
            if nkv[0] < NL:
                if free:
                    issue_unit_4(27 + nkv[0]); nkv[0] += 1
        LW, LX = FR + 4, FR + 5
        nroll = [NQ // 3]
        def lroll(n):
            n = min(n, 9 - nroll[0])
            if n <= 0 or OPT["roll"] != 2: return
            a = nroll[0]; nroll[0] += n
            if n < 8:
                m = (1 << (8 * n)) - 1
                A.salu(f"s_mov_b32 exec_lo, {m & 0xffffffff}")
                A.salu(f"s_mov_b32 exec_hi, {m >> 32}")
            A.salu(f"s_add_u32 s3, s8, {a * 64 * 8192}")
            A.vmem(f"buffer_load_dword v{FR+6}, v{LW}, s[{SW_}:{SW_+3}], s3 offen{NTT}", w={FR + 6}, r={LW})
            A.vmem(f"buffer_load_dword v{FR+7}, v{LX}, s[{SX}:{SX+3}], s9 offen offset:{a * 128}{NTT}", w={FR + 7}, r={LX})
            if n < 8: A.salu("s_mov_b64 exec, -1")
        refill(-1)
        for _ in range(OPT["kv0"]): kv_issue()
        if not OPT["roll"]: flood()
        if OPT["roll"] == 2:
            V(f"v_bfe_u32 v{T1}, v{L}, 2, 1", w={T1}, r={L})
            A.salu(f"s_lshl_b32 s3, s{sW3}, 1")
            V(f"v_add_u32 v{T1}, s3, v{T1}", w={T1}, r={T1})
            V(f"v_lshrrev_b32 v{T3}, 3, v{L}", w={T3}, r={L})
            V(f"v_lshl_add_u32 v{T1}, v{T3}, 6, v{T1}", w={T1}, r={T3, T1})
            V(f"v_lshlrev_b32 v{T1}, 13, v{T1}", w={T1}, r={T1})
            V(f"v_and_b32 v{T2}, 3, v{L}", w={T2}, r={L})
            V(f"v_lshl_add_u32 v{LW}, v{T2}, 7, v{T1}", w={LW}, r={T2, T1})
            V(f"v_and_b32 v{T1}, 7, v{L}", w={T1}, r={L})
            V(f"v_min_u32 v{T1}, 6, v{T1}", w={T1}, r={T1})
            A.salu(f"s_mul_i32 s3, s{sW3}, 7")
            V(f"v_add_u32 v{T1}, s3, v{T1}", w={T1}, r={T1})
            V(f"v_mul_u32_u24 v{T1}, 1152, v{T1}", w={T1}, r={T1})
            V(f"v_lshl_add_u32 v{LX}, v{T3}, 7, v{T1}", w={LX}, r={T3, T1})
            A.salu(f"s_lshl_b32 s8, s{sB}, 16")
            A.salu(f"s_add_u32 s8, s8, s{sWB}")
            A.salu(f"s_and_b32 s9, s{sKVH}, 3")
            A.salu(f"s_mul_i32 s9, s9, {28*1152}")
            A.salu(f"s_add_u32 s9, s9, s{sXB}")
            lroll(OPT["pflead"] - nroll[0])
        for s in range(9):
            A.wait_vm(max(unit_last_vm[u] for u in stage_units[s]))
            A.barrier()
            PF.stamp(f"q{s}")
            if s > 0:
                for u in stage_units[s - 1]: free.append(unit_slot[u])
            refill(s)
            lroll(OPT["pfrate"])
            if s == 8:
                xch.append(free.pop(0)); xch.append(free.pop(0))
            elif s >= OPT["kvs"]:
                for _ in range(OPT["kvrate"]): kv_issue()
            if nq[0] == 27 and nkv[0] >= NL:
                while free:
                    issue_unit_4(27 + nkv[0]); nkv[0] += 1
        A.salu("s_branch K1_ATT")
        ldr_vm = (A.nvm, A.vm_done)
    else:
        A.salu(f"s_cmp_ge_u32 s{sW}, 6")
        A.salu("s_cbranch_scc1 K1_KVL")
        pf0 = PF.n
        kvslots = [free.pop() for _ in range(NSLOT - NQ)]
        def refill(s):
            done_q = 3 * max(s, 0)
            while nq[0] < 27 and nq[0] - done_q < NQ and free:
                issue_unit_q(nq[0]); nq[0] += 1
        refill(-1)
        for s in range(9):
            A.wait_vm(max(unit_last_vm[u] for u in stage_units[s]))
            A.barrier()
            PF.stamp(f"q{s}")
            if s > 0:
                for u in stage_units[s - 1]: free.append(unit_slot[u])
            refill(s)
            if s == 8:
                xch.append(free.pop(0)); xch.append(free.pop(0))
        A.waitcnt(vm=0)
        A.vm_done = A.nvm
        A.salu("s_branch K1_ATT")
        A.label("K1_KVL")
        A.win = []
        A.salu("s_nop 4")
        PF.n = pf0; PF.names = PF.names[:pf0]
        for q in range(2):
            V(f"v_subrev_u32 v{KQ+q}, {6*8*256}, v{KO+q}", w={KQ + q}, r={KO + q})
        V(f"v_lshlrev_b32 v{DV}, 4, v{L}", w={DV}, r={L})
        V(f"v_add_u32 v{DV}, s{sWL4}, v{DV}", w={DV}, r={DV})
        late_free = free[:]; free[:] = kvslots
        NL = len(kvslots)
        TV = FR + 4
        V(f"v_lshlrev_b32 v{TV}, 7, v{L}", w={TV}, r={L})
        A.salu(f"s_lshl_b32 s3, s{sW3}, 13")
        V(f"v_add_u32 v{TV}, s3, v{TV}", w={TV}, r={TV})
        NT = OPT["kvt"]
        ntouch = [0]
        def kv_issue():
            i = nkv[0]
            if i < NL: issue_unit_q(27 + i)
            elif i < NL + NSTG: issue_unit_q(27 + i, STG[i - NL])
            else:
                if ntouch[0] < NT:
                    u = 27 + NL + NSTG + ntouch[0]
                    base, const, sr_, vo, delta, nto = unit_info(u)
                    A.salu(f"s_add_u32 s{sT}, s{base}, {const}")
                    A.vmem(f"buffer_load_dword v{TV+1}, v{TV}, s[{sr_}:{sr_+3}], s{sT} offen", w={TV + 1}, r={TV})
                    ntouch[0] += 1
                return
            nkv[0] += 1
        for _ in range(OPT["kv0"]): kv_issue()
        for s in range(9):
            A.barrier()
            PF.stamp(f"q{s}")
            for _ in range(OPT["kvrate"]): kv_issue()
        assert nkv[0] == NL + NSTG
        free[:] = late_free
        staged = [(27 + NL + i, STG[i]) for i in range(NSTG)]
        while staged and free:
            u, r_ = staged.pop(0)
            A.wait_vm(unit_last_vm[u])
            dump_unit(u, r_)
        A.waitcnt(vm=0)
        A.vm_done = A.nvm
        A.wait_ds_all()
        A.salu("s_branch K1_ATT")
    A.label("K1_FAT")
    A.win = []
    A.salu("s_nop 4")
    PF.n = pf0; PF.names = PF.names[:pf0]
    TW, TX = XO, XO + 1
    if OPT["roll"] == 2:
        pass
    elif OPT["ld4"] and not OPT["roll"]:
        V(f"v_lshlrev_b32 v{TW}, 7, v{L}", w={TW}, r={L})
        A.salu(f"s_lshl_b32 s3, s{sW}, 13")
        V(f"v_add_u32 v{TW}, s3, v{TW}", w={TW}, r={TW})
    else:
        TW, TX = XO, XO + 1
        V(f"v_bfe_u32 v{T1}, v{L}, 2, 1", w={T1}, r={L})
        A.salu(f"s_lshl_b32 s3, s{sW}, 1")
        V(f"v_add_u32 v{T1}, s3, v{T1}", w={T1}, r={T1})
        V(f"v_lshlrev_b32 v{T1}, 13, v{T1}", w={T1}, r={T1})
        V(f"v_and_b32 v{T2}, 3, v{L}", w={T2}, r={L})
        V(f"v_lshl_add_u32 v{TW}, v{T2}, 7, v{T1}", w={TW}, r={T2, T1})
        V(f"v_and_b32 v{T1}, 7, v{L}", w={T1}, r={L})
        V(f"v_min_u32 v{T1}, 6, v{T1}", w={T1}, r={T1})
        A.salu(f"s_mul_i32 s3, s{sW}, 7")
        V(f"v_add_u32 v{T1}, s3, v{T1}", w={T1}, r={T1})
        V(f"v_mul_u32_u24 v{TX}, 1152, v{T1}", w={TX}, r={T1})
        A.salu(f"s_lshl_b32 s8, s{sB}, 16")
        A.salu(f"s_add_u32 s8, s8, s{sWB}")
        A.salu(f"s_and_b32 s9, s{sKVH}, 3")
        A.salu(f"s_mul_i32 s9, s9, {28*1152}")
        A.salu(f"s_add_u32 s9, s9, s{sXB}")
    def touch(s_):
        if not OPT["l2pf"] or s_ > 8: return
        A.salu(f"s_add_u32 s3, s8, {s_ * 64 * 8192}")
        A.vmem(f"buffer_load_dword v{T4}, v{TW}, s[{SW_}:{SW_+3}], s3 offen{NTT}", w={T4}, r={TW})
        A.vmem(f"buffer_load_dword v{T5}, v{TX}, s[{SX}:{SX+3}], s9 offen offset:{s_ * 128}{NTT}", w={T5}, r={TX})
    if OPT["roll"] == 2:
        touch = lambda s_: None
    elif OPT["roll"]:
        touch1 = touch
        nroll = [2]
        def roll(n):
            for _ in range(n):
                touch1(nroll[0]); nroll[0] += 1
        roll(OPT["pflead"] - 2)
        touch = lambda s_: roll(OPT["pfrate"])
    elif OPT["ld4"]:
        flood()
        ntouch = [0]
        def touch(s_):
            s_ -= OPT["pflead"]
            if s_ < OPT["kvt0"]: return
            for _ in range(OPT["kvtr"]):
                if ntouch[0] >= OPT["kvt"]: return
                ua = 27 + NL + 1 + ntouch[0]
                ia = unit_info(ua); ib = unit_info(ua + 1)
                A.salu(f"s_cmp_lt_u32 s{sW}, 2")
                A.salu(f"s_mov_b32 s3, {ib[1] - 16384}")
                A.salu(f"s_cselect_b32 s3, {ia[1]}, s3")
                A.salu(f"s_cselect_b32 s60, s{ia[2]}, s{ib[2]}")
                A.salu(f"s_cselect_b32 s61, s{ia[2]+1}, s{ib[2]+1}")
                A.salu(f"s_mov_b32 s62, s{ia[2]+2}")
                A.salu(f"s_mov_b32 s63, s{ia[2]+3}")
                A.salu(f"s_add_u32 s3, s3, s{sKVB}")
                A.vmem(f"buffer_load_dword v{T4}, v{TW}, s[60:63], s3 offen", w={T4}, r={TW})
                ntouch[0] += 2
    if not OPT["ld4"]:
        for s_ in range(2, OPT["pflead"]): touch(s_)
    if OPT["tlbw"]:
        A.salu("s_load_dwordx2 s[16:17], s[0:1], 32")
        A.salu("s_load_dwordx2 s[18:19], s[0:1], 72")
        A.salu("s_load_dwordx2 s[20:21], s[0:1], 80")
        D = NEGM
        V(f"v_lshlrev_b32 v{T1}, 12, v{L}", w={T1}, r={L})
        V(f"v_and_b32 v{T1}, 0x1ffff, v{T1}", w={T1}, r={T1})
        A.vmem(f"buffer_load_dword v{D}, v{T1}, s[{SV}:{SV+3}], s{sKVB} offen", w={D}, r={T1})
        if OPT["tlbw"] > 1:
            A.vmem(f"buffer_load_dword v{D+1}, v{T1}, s[{SK}:{SK+3}], s{sKVB} offen", w={D + 1}, r={T1})
        V(f"v_min_u32 v{T2}, 6, v{L}", w={T2}, r={L})
        V(f"v_lshlrev_b32 v{T2}, 17, v{T2}", w={T2}, r={T2})
        A.salu(f"s_mul_i32 s3, s{sBLK}, {O_BLK}")
        A.salu(f"s_mul_i32 s{sT}, s{sB}, {7*131072}")
        A.salu(f"s_add_u32 s3, s3, s{sT}")
        if OPT["fuse"]:
            A.salu(f"s_lshl_b32 s{sT}, s{sKVH}, 13")
            A.salu(f"s_add_u32 s3, s3, s{sT}")
            A.vmem(f"buffer_store_dword v{T2}, v{T2}, s[{SO}:{SO+3}], s3 offen sc1", r={T2}, storedata={T2})
        else:
            A.vmem(f"buffer_load_dword v{D+2}, v{T2}, s[{SO}:{SO+3}], s3 offen", w={D + 2}, r={T2})
        V(f"v_lshlrev_b32 v{T3}, 16, v{L}", w={T3}, r={L})
        A.salu("s_waitcnt lgkmcnt(0)")
        A.salu(f"s_cmp_eq_u32 s{sBLK}, 0")
        A.salu("s_cselect_b32 s60, s16, s18")
        A.salu("s_cselect_b32 s61, s17, s19")
        A.salu("s_and_b32 s61, s61, 0xffff")
        A.salu(f"s_mov_b32 s62, {4096*576*2}")
        A.salu("s_mov_b32 s63, 0x00020000")
        A.salu(f"s_mov_b32 s3, {8*65536}")
        A.vmem(f"buffer_load_dword v{D+3}, v{T3}, s[60:63], 0 offen", w={D + 3}, r={T3})
        A.vmem(f"buffer_load_dword v{D+4}, v{T3}, s[60:63], s3 offen", w={D + 4}, r={T3})
        A.salu("s_mov_b32 s16, s20")
        A.salu("s_and_b32 s17, s21, 0xffff")
        A.salu(f"s_mov_b32 s18, {896*1152*2}")
        A.salu("s_mov_b32 s19, 0x00020000")
        A.vmem(f"buffer_load_dword v{D+5}, v{T3}, s[16:19], 0 offen", w={D + 5}, r={T3})
    QA = [S, O]
    FBW = [P, QB]; FBX = [P + 16, QB + 16]
    AW = [FR, FR + 4]; AX = FR + 8
    def qaddr(s):
        u0 = 3 * s
        return (addr_items([AX + i for i in range(4)], BX, unit_slot[u0], [0, 32, 64, 96]) +
                addr_items([AW[0] + i for i in range(4)], BW, unit_slot[u0 + 1], [0, 64, 128, 192]) +
                addr_items([AW[1] + i for i in range(4)], BW, unit_slot[u0 + 2], [0, 64, 128, 192]))
    def qread_items(ks):
        it = [lambda: A.ds_read_b128(FBX[ks % 2], AX + ks), lambda: A.ds_read_b128(FBX[ks % 2] + 4, AX + ks, 4096)]
        for t in range(4):
            for j in range(2):
                it.append(lambda t=t, j=j: A.ds_read_tr(FBW[ks % 2] + 4 * t + 2 * j, AW[ks // 2] + t, ((ks % 2) * 16 + 4 * j) * 512))
        return it
    def qreads(ks):
        for it in qread_items(ks): last = it()
        return last
    for it in qaddr(0): it()
    A.barrier()
    PF.stamp("q0")
    pend = qreads(0)
    touch(OPT["pflead"])
    QI = OPT["qi"]
    for s in range(9):
        for ks in range(4):
            A.wait_ds(pend)
            rq = []
            if ks < 3:
                if QI: rq = qread_items(ks + 1)
                else: pend = qreads(ks + 1)
            nxt = qaddr(s + 1) if (ks == 3 and s < 8) else []
            m = 0
            for t in range(4):
                for r2 in range(2):
                    A.mfma(QA[r2] + 16 * t, FBW[ks % 2] + 4 * t, FBX[ks % 2] + 4 * r2, "zero" if (s == 0 and ks == 0) else None)
                    if nxt:
                        if m < 2:
                            for it in nxt[6 * m: 6 * m + 6]: it()
                        if m == 1:
                            A.barrier()
                            PF.stamp(f"q{s+1}")
                            if QI: rq = qread_items(0)
                            else: pend = qreads(0)
                        if m == 3: touch(s + 1 + OPT["pflead"])
                    for _ in range(QI):
                        if rq: pend = rq.pop(0)()
                    m += 1
            assert not rq
    A.salu(f"s_lshr_b32 s3, s{sW}, 1")
    A.salu(f"s_cmp_eq_u32 s3, 0")
    A.salu(f"s_cselect_b32 s3, {xch[0]}, {xch[1]}")
    A.salu(f"s_lshl_b32 s3, s3, 14")
    A.salu(f"s_and_b32 s{sT}, s{sW}, 1")
    A.salu(f"s_lshl_b32 s{sT}, s{sT}, 13")
    A.salu(f"s_add_u32 s3, s3, s{sT}")
    V(f"v_lshlrev_b32 v{T6}, 4, v{L}", w={T6}, r={L})
    V(f"v_add_u32 v{T6}, s3, v{T6}", w={T6}, r={T6})
    for i in range(64):
        V(f"v_mul_f32 v{O+i}, s{sC}, v{O+i}", w={O + i}, r={O + i})
    for q in range(32):
        V(f"v_cvt_pk_bf16_f32 v{P+q}, v{O+2*q}, v{O+2*q+1}", w={P + q}, r={O + 2 * q, O + 2 * q + 1})
        if q % 4 == 3:
            A.ds_write_b128(T6, P + q - 3, (q // 4) * 1024)
    for i in range(64):
        V(f"v_mul_f32 v{S+i}, s{sC}, v{S+i}", w={S + i}, r={S + i})
    for q in range(32):
        V(f"v_cvt_pk_bf16_f32 v{QB+q}, v{S+2*q}, v{S+2*q+1}", w={QB + q}, r={S + 2 * q, S + 2 * q + 1})
    A.wait_ds_all()
    A.waitcnt(vm=0)
    A.vm_done = A.nvm
    if OPT["ld4"]:
        A.nvm, A.vm_done = ldr_vm
    A.label("K1_ATT")
    A.win = []
    A.salu("s_nop 4")
    if OPT["stag"]:
        A.salu(f"s_lshr_b32 s{sT2}, s{sW}, {OPT['stag'] - 1}")

    SETA = [AD + i for i in range(8)]
    SETB = [XO, XO + 1, WO, WO + 1, BW, BX, T4, T5]
    kx = [32 * ks for ks in range(8)]
    vx = [(t << 6) ^ (32 * jj) for t in range(4) for jj in range(2)]
    SB = lambda h: S + 32 * (h % 2)
    PB = lambda h: P + 16 * (h % 2)
    phases = [("qk", 0)] + [x for h in range(7) for x in (("qk", h + 1), ("pv", h))] + [("pv", 7)]
    pset = {}
    for ph in phases:
        pset[ph] = SETA if ph[0] == "qk" else SETB
    pset[("qk", 0)] = SETB; pset[("pv", 7)] = SETA
    punit = lambda ph: UK[ph[1]] if ph[0] == "qk" else UV[ph[1]]
    def paddr(ph):
        u = punit(ph)
        return addr_items(pset[ph], BK if ph[0] == "qk" else BV, unit_slot[u], kx if ph[0] == "qk" else vx)
    mf = [(ph, i) for ph in phases for i in range(16)]
    syncJ = list(range(0, 6, OPT["bstep"]))
    if OPT["fuse"]:
        syncJ.append(6)
        K2 = K2Fused(A, sW, SO, QB)
    sync_pos = [phases.index(("pv", j)) * 16 + 12 for j in syncJ]
    first_read = {}
    for n, (ph, i) in enumerate(mf):
        first_read.setdefault(punit(ph), max(n - 4, -1))
    last_read = {}
    for n, (ph, i) in enumerate(mf):
        last_read[punit(ph)] = n - 4
    def publish_set(pos_from, pos_to):
        return [u for u, fr in first_read.items() if pos_from <= fr < pos_to]
    freed = set()
    dmaq = []
    def refill_att():
        while nkv[0] < 16 and free:
            dmaq.extend(dma_items(27 + nkv[0])); nkv[0] += 1

    pub = publish_set(-1, sync_pos[0])
    A.wait_vm(max(unit_last_vm[u] for u in pub))
    A.barrier()
    PF.stamp("a0")
    for u in stage_units[8]: free.append(unit_slot[u])
    A.salu(f"s_cmp_lt_u32 s{sW}, 4")
    A.salu(f"s_cbranch_scc1 K1_QGOT")
    if staged:
        A.salu(f"s_cmp_lt_u32 s{sW}, 6")
        A.salu(f"s_cbranch_scc1 K1_NODUMP")
        while staged:
            u, r_ = staged.pop(0)
            dump_unit(u, r_)
        A.label("K1_NODUMP")
    refill_att()
    A.salu(f"s_bfe_u32 s3, s{sW}, 0x10001")
    A.salu(f"s_cmp_eq_u32 s3, 0")
    A.salu(f"s_cselect_b32 s3, {xch[0]}, {xch[1]}")
    A.salu(f"s_lshl_b32 s3, s3, 14")
    A.salu(f"s_and_b32 s{sT}, s{sW}, 1")
    A.salu(f"s_lshl_b32 s{sT}, s{sT}, 13")
    A.salu(f"s_add_u32 s3, s3, s{sT}")
    V(f"v_lshlrev_b32 v{T6}, 4, v{L}", w={T6}, r={L})
    V(f"v_add_u32 v{T6}, s3, v{T6}", w={T6}, r={T6})
    for q in range(8):
        A.ds_read_b128(QB + 4 * q, T6, q * 1024)
    A.wait_ds_all()
    A.label("K1_QGOT")
    A.salu("s_nop 1")
    for it in paddr(("qk", 0)) + paddr(("qk", 1)): it()

    TT = [T0, T1, T2, T3]
    def max_items(regs, first, final):
        it = []
        r = list(regs)
        if first:
            a = r[:3]; b = r[3:6]; r = r[6:]
            it.append(lambda a=a: V(f"v_max3_f32 v{MX}, v{a[0]}, v{a[1]}, v{a[2]}", w={MX}, r=set(a)))
            it.append(lambda b=b: V(f"v_max3_f32 v{MX2}, v{b[0]}, v{b[1]}, v{b[2]}", w={MX2}, r=set(b)))
        k = 0
        while r:
            a = r[:2]; r = r[2:]
            d = MX if k % 2 == 0 else MX2
            it.append(lambda a=a, d=d: V(f"v_max3_f32 v{d}, v{d}, v{a[0]}, v{a[1]}", w={d}, r={d} | set(a)))
            k += 1
        if final:
            it.append(lambda: V(f"v_max_f32 v{MX}, v{MX}, v{MX2}", w={MX}, r={MX, MX2}))
            it.append(lambda: V(f"v_mov_b32 v{MX2}, v{MX}", w={MX2}, r={MX}))
            it.append(lambda: V(f"v_permlane32_swap_b32 v{MX}, v{MX2}", w={MX, MX2}, r={MX, MX2}, kind="perm"))
            it.append(lambda: V(f"v_max_f32 v{MX}, v{MX}, v{MX2}", w={MX}, r={MX, MX2}))
        return it
    def sm_items(h, lo, hi, sub):
        it = []
        sb, pb = SB(h), PB(h)
        if sub:
            it.append(lambda: V(f"v_sub_f32 v{sb+lo}, v{sb+lo}, v{MX}", w={sb + lo}, r={sb + lo, MX}))
        for e in range(lo, hi + 2):
            if sub and e + 1 < hi:
                it.append(lambda e=e: V(f"v_sub_f32 v{sb+e+1}, v{sb+e+1}, v{MX}", w={sb + e + 1}, r={sb + e + 1, MX}))
            if e < hi:
                it.append(lambda e=e: V(f"v_exp_f32 v{TT[e%4]}, v{sb+e}", w={TT[e % 4]}, r={sb + e}, kind="trans"))
            if lo <= e - 1 < hi:
                p = e - 1; acc = SUMA if p % 2 == 0 else SUMB
                if p < 2:
                    it.append(lambda p=p, acc=acc: V(f"v_mov_b32 v{acc}, v{TT[p%4]}", w={acc}, r={TT[p % 4]}))
                else:
                    it.append(lambda p=p, acc=acc: V(f"v_add_f32 v{acc}, v{acc}, v{TT[p%4]}", w={acc}, r={acc, TT[p % 4]}))
            if e - 2 >= lo and (e - 2) % 2 == 0 and e - 1 < hi:
                p = e - 2
                it.append(lambda p=p: V(f"v_cvt_pk_bf16_f32 v{pb+p//2}, v{TT[p%4]}, v{TT[(p+1)%4]}", w={pb + p // 2}, r={TT[p % 4], TT[(p + 1) % 4]}))
        return it
    def negm_items():
        return [lambda i=i: V(f"v_sub_f32 v{NEGM+i}, 0, v{MX}", w={NEGM + i}, r={MX}) for i in range(16)]
    def check(h):
        V(f"v_add_f32 v{SUMA}, v{SUMA}, v{SUMB}", w={SUMA}, r={SUMA, SUMB})
        if h > 0:
            V(f"v_cmp_nge_f32 vcc, s{sTHR}, v{SUMA}", r={SUMA}, sw={"vcc"})
            A.salu("s_nop 1")
            A.salu(f"s_cbranch_vccnz K1_SLOW{h}")
            A.label(f"K1_BACK{h}")
        V(f"v_add_f32 v{LSUM}, v{LSUM}, v{SUMA}", w={LSUM}, r={LSUM, SUMA})

    def side_for(ph):
        kind, h = ph
        if ph == ("qk", 0):
            return [], []
        if kind == "qk":
            hh = h - 1
            if hh == 0:
                main = max_items([SB(0) + i for i in range(32)], True, True) + sm_items(0, 0, 32, True)
            else:
                main = sm_items(hh, 16, 32, hh == 1)
            return main, paddr(("pv", hh))
        if h == 7: return [], []
        if h == 6:
            return sm_items(7, 0, 32, False), paddr(("pv", 7)) + (K2.addr_items() if OPT["fuse"] and OPT["fuse"] != 6 else [])
        main = sm_items(h + 1, 0, 16, h == 0)
        if h == 0: main = negm_items() + main
        return main, paddr(("qk", h + 2))

    rid = {}
    def issue_read(n):
        ph, i = mf[n]
        st = pset[ph]; fr = FR + 4 * (n % 4)
        if ph[0] == "qk":
            rid[n] = A.ds_read_b128(fr, st[i % 8], (i // 8) * 8192)
        else:
            g, t = i // 4, i % 4
            A.ds_read_tr(fr, st[2 * t], g * 4096)
            rid[n] = A.ds_read_tr(fr + 2, st[2 * t + 1], g * 4096 + 2048)
    for n in range(4): issue_read(n)
    gap = 0
    for n, (ph, i) in enumerate(mf):
        kind, h = ph
        if i == 0:
            main, adr = side_for(ph)
            plan = [[] for _ in range(16)]
            for k, it in enumerate(adr): plan[k * 12 // max(len(adr), 1)].append(it)
            s0 = 1 if ph == ("qk", 1) else 0
            for k, it in enumerate(main): plan[s0 + k * (16 - s0) // len(main)].append(it)
        A.wait_ds(rid[n])
        fr = FR + 4 * (n % 4)
        if kind == "qk":
            kt, ks = i // 8, i % 8
            c = None
            if ks == 0: c = "zero" if h <= 1 else NEGM
            A.mfma(SB(h) + 16 * kt, fr, QB + 4 * ks, c)
        else:
            g, t = i // 4, i % 4
            A.mfma(O + 16 * t, fr, PB(h) + 4 * g, "zero" if (h == 0 and g == 0) else None)
        if n in sync_pos:
            k = sync_pos.index(n)
            pub = publish_set(n, sync_pos[k + 1] if k + 1 < len(sync_pos) else 10**9)
            while dmaq: dmaq.pop(0)()
            A.wait_ds_all()
            A.wait_vm(max(unit_last_vm[u] for u in pub))
            A.barrier()
            PF.stamp(f"x{h}")
            if k == 0: free.extend(xch)
            for u, lr in last_read.items():
                if lr < n and u not in freed:
                    freed.add(u); free.append(unit_slot[u])
            refill_att()
            if OPT["fuse"] == 6:
                if h == 1: K2.loads()
                if h == 2: K2.scalars()
                if h == 3: K2.addr6()
                if h >= OPT["wo0"]:
                    assert nkv[0] == 16
                    while free and len(K2.slots6) < 8:
                        j = len(K2.slots6); K2.slots6.append(free.pop(0))
                        if h < 6 or OPT["wo6"]:
                            dmaq.extend([lambda j=j, q=q: K2.wo_piece(j >> 1, (j & 1) * 2 + q) for q in range(2)])
                            K2.done6 = j + 1
            elif OPT["fuse"]:
                if h == 4: K2.loads()
                if h == 5: K2.scalars()
                if h == 6:
                    assert len(free) >= 8, free
                    its = K2.wo_items(free[:8])
                    K2.mslot = free[8]
                    if OPT["fuse"] < 3: dmaq.extend(its)
            if OPT["wopf"] and h == OPT["wopf"] - 1:
                A.salu("s_load_dwordx2 s[60:61], s[0:1], 32")
                A.salu("s_load_dwordx2 s[62:63], s[0:1], 72")
                if OPT["xm"]:
                    A.salu(f"s_lshr_b32 s3, s2, 3")
                    A.salu(f"s_lshl_b32 s3, s3, 3")
                    A.salu(f"s_add_u32 s3, s3, s{sW}")
                    A.salu(f"s_mul_i32 s3, s3, {16*1152}")
                    A.salu(f"s_and_b32 s{sT}, s2, 1")
                    A.salu(f"s_lshl_b32 s{sT}, s{sT}, 9")
                    A.salu(f"s_add_u32 s3, s3, s{sT}")
                    V(f"v_mbcnt_lo_u32_b32 v{T6}, -1, 0", w={T6})
                    V(f"v_mbcnt_hi_u32_b32 v{T6}, -1, v{T6}", w={T6}, r={T6})
                    V(f"v_lshrrev_b32 v{T7}, 2, v{T6}", w={T7}, r={T6})
                    V(f"v_mul_u32_u24 v{T7}, 1152, v{T7}", w={T7}, r={T7})
                    V(f"v_and_b32 v{T6}, 3, v{T6}", w={T6}, r={T6})
                    V(f"v_lshl_add_u32 v{T6}, v{T6}, 7, v{T7}", w={T6}, r={T6, T7})
                else:
                    if OPT["wox"]:
                        A.salu(f"s_lshr_b32 s3, s2, 5")
                        A.salu(f"s_lshl_b32 s3, s3, 4")
                        A.salu(f"s_bfe_u32 s{sT}, s2, 0x20003")
                        A.salu(f"s_add_u32 s3, s3, s{sT}")
                    else:
                        A.salu(f"s_lshl_b32 s3, s{sB}, 4")
                        A.salu(f"s_add_u32 s3, s3, s{sKVH}")
                    A.salu(f"s_mul_i32 s3, s3, 288")
                    A.salu(f"s_lshl_b32 s{sT}, s{sW}, 6")
                    A.salu(f"s_min_u32 s{sT}, s{sT}, 224")
                    A.salu(f"s_add_u32 s3, s3, s{sT}")
                    A.salu(f"s_lshl_b32 s3, s3, 7")
                    V(f"v_mbcnt_lo_u32_b32 v{T7}, -1, 0", w={T7})
                    V(f"v_mbcnt_hi_u32_b32 v{T7}, -1, v{T7}", w={T7}, r={T7})
                    V(f"v_lshlrev_b32 v{T7}, 7, v{T7}", w={T7}, r={T7})
                A.salu("s_waitcnt lgkmcnt(0)")
                A.salu(f"s_cmp_eq_u32 s{sBLK}, 0")
                A.salu("s_cselect_b32 s60, s60, s62")
                A.salu("s_cselect_b32 s61, s61, s63")
                A.salu("s_and_b32 s61, s61, 0xffff")
                A.salu(f"s_mov_b32 s62, {4096*576*2}")
                A.salu("s_mov_b32 s63, 0x00020000")
                if OPT["xm"]:
                    A.salu("s_mov_b32 exec_lo, 0x88888888")
                    A.salu("s_mov_b32 exec_hi, 0x88888888")
                    A.vmem(f"buffer_load_dword v{T7}, v{T6}, s[60:63], s3 offen offset:128", w={T7}, r={T6})
                    A.salu("s_mov_b64 exec, -1")
                TA_ = T6 if OPT["xm"] else T7
                A.vmem(f"buffer_load_dword v{T7}, v{TA_}, s[60:63], s3 offen", w={T7}, r={TA_})
        if n + 4 < len(mf): issue_read(n + 4)
        for it in plan[i]: it()
        gap += 1
        if dmaq and gap >= OPT["dmagap"]:
            dmaq.pop(0)(); gap = 0
        if i == 15:
            if kind == "qk" and h >= 1: check(h - 1)
            if ph == ("pv", 6): check(7)
    assert not dmaq
    PF.stamp("pv7")
    V(f"v_mov_b32 v{T0}, v{LSUM}", w={T0}, r={LSUM})
    V(f"v_permlane32_swap_b32 v{T0}, v{LSUM}", w={T0, LSUM}, r={T0, LSUM}, kind="perm")
    V(f"v_add_f32 v{T0}, v{T0}, v{LSUM}", w={T0}, r={T0, LSUM})
    V(f"v_rcp_f32 v{T0}, v{T0}", w={T0}, r={T0}, kind="trans")
    A.salu(f"s_cmp_eq_u32 s{sRT}, 3")
    A.salu("s_cbranch_scc0 K1_NOMASK")
    A.salu("s_mov_b32 exec_lo, 0xffff")
    A.salu("s_mov_b32 exec_hi, 0xffff")
    A.label("K1_NOMASK")
    for f in range(8):
        b0 = O + 8 * f
        for i in range(8):
            V(f"v_mul_f32 v{b0+i}, v{T0}, v{b0+i}", w={b0 + i}, r={T0, b0 + i})
        d = P + 4 * f
        for q in range(4):
            V(f"v_cvt_pk_bf16_f32 v{d+q}, v{b0+2*q}, v{b0+2*q+1}", w={d + q}, r={b0 + 2 * q, b0 + 2 * q + 1})
        A.vmem(f"buffer_store_dwordx4 {vname(d,4)}, v{OST}, s[{SO}:{SO+3}], s{sOB} offen offset:{f*512}{' sc1' if OPT['fuse'] else ' nt' if OPT['ntst'] else ''}", r=vr(d, 4) | {OST}, storedata=vr(d, 4))
    if OPT["fuse"]:
        K2.body(PF, sBLK, sB, sKVH)
    PF.dump(24, sW, 0)
    A.label("K1_END")
    A.salu("s_endpgm")
    for h in range(1, 8):
        A.label(f"K1_SLOW{h}")
        A.flush_hazards()
        sb = SB(h)
        for it in max_items([sb + i for i in range(32)], True, True): it()
        V(f"v_max_f32 v{MX}, 0, v{MX}", w={MX}, r={MX})
        V(f"v_sub_f32 v{MX2}, 0, v{MX}", w={MX2}, r={MX})
        V(f"v_exp_f32 v{MX2}, v{MX2}", w={MX2}, r={MX2}, kind="trans")
        for i in range(64):
            V(f"v_mul_f32 v{O+i}, v{MX2}, v{O+i}", w={O + i}, r={MX2, O + i})
        V(f"v_mul_f32 v{LSUM}, v{MX2}, v{LSUM}", w={LSUM}, r={MX2, LSUM})
        for i in range(16):
            V(f"v_sub_f32 v{NEGM+i}, v{NEGM+i}, v{MX}", w={NEGM + i}, r={NEGM + i, MX})
        if h < 7:
            s2 = SB(h + 1)
            for i in range(32):
                V(f"v_sub_f32 v{s2+i}, v{s2+i}, v{MX}", w={s2 + i}, r={s2 + i, MX})
        for it in sm_items(h, 0, 32, True): it()
        V(f"v_add_f32 v{SUMA}, v{SUMA}, v{SUMB}", w={SUMA}, r={SUMA, SUMB})
        A.flush_hazards()
        A.salu(f"s_branch K1_BACK{h}")

class K2Fused:
    def __init__(self, A, sW, SO, WOFF):
        self.A = A; self.sW = sW; self.SO = SO; self.WOFF = WOFF
        self.SWO, self.SOUT, self.SDBG = 28, 32, 20
        self.sBLK, self.sTT, self.sMT, self.sNT = 16, 17, 18, 19
        self.sWL, self.sWB, self.sO0, self.sO1, self.sT = 49, 50, 8, 9, 52
        self.sP0, self.sP1 = 10, 11
        self.last_vm = {}
    def loads(self):
        A = self.A
        A.salu("s_load_dwordx2 s[8:9], s[0:1], 32")
        A.salu("s_load_dwordx2 s[10:11], s[0:1], 72")
        A.salu("s_load_dwordx2 s[12:13], s[0:1], 80")
        A.salu("s_load_dwordx2 s[14:15], s[0:1], 88")
    def scalars(self):
        A = self.A; sW = self.sW
        sBLK, sTT, sMT, sNT = self.sBLK, self.sTT, self.sMT, self.sNT
        A.salu("s_waitcnt lgkmcnt(0)")
        if OPT["xm"]:
            A.salu("s_bitcmp1_b32 s2, 2")
            A.salu(f"s_cselect_b32 s{sBLK}, 1, 0")
            A.salu("s_cselect_b32 s8, s10, s8")
            A.salu("s_cselect_b32 s9, s11, s9")
            srd(A, self.SWO, 8, 4096 * 576 * 2)
            srd(A, self.SOUT, 12, 896 * 1152 * 2)
            srd(A, self.SDBG, 14, 256)
            A.salu("s_lshr_b32 s3, s2, 3")
            A.salu("s_and_b32 s12, s2, 1")
            A.salu(f"s_lshr_b32 s{sMT}, s3, 2")
            A.salu(f"s_and_b32 s{sNT}, s3, 3")
            A.salu("s_mul_i32 s13, s12, 5")
            A.salu(f"s_add_u32 s{sNT}, s{sNT}, s13")
            A.salu("s_lshl_b32 s13, s12, 2")
            A.salu("s_add_u32 s13, s13, s3")
            A.salu("s_sub_u32 s13, s13, 28")
            A.salu("s_cmp_ge_u32 s3, 28")
            A.salu(f"s_cselect_b32 s{sMT}, s13, s{sMT}")
            A.salu(f"s_cselect_b32 s{sNT}, 4, s{sNT}")
            A.salu(f"s_cmp_eq_u32 s{sMT}, 7")
            A.salu(f"s_cselect_b32 s{sTT}, 255, 0")
            A.salu(f"s_min_u32 s{sMT}, s{sMT}, 6")
            A.salu("s_bfe_u32 s13, s2, 0x10001")
            A.salu("s_mul_i32 s13, s13, 7")
            A.salu(f"s_add_u32 s{sMT}, s{sMT}, s13")
        else:
            A.salu("s_and_b32 s3, s2, 7")
            A.salu("s_lshl_b32 s3, s3, 5")
            A.salu(f"s_lshr_b32 s{sTT}, s2, 3")
            A.salu(f"s_add_u32 s{sTT}, s3, s{sTT}")
            A.salu(f"s_min_u32 s3, s{sTT}, 251")
            A.salu("s_cmp_ge_u32 s3, 126")
            A.salu(f"s_cselect_b32 s{sBLK}, 1, 0")
            A.salu("s_cselect_b32 s8, s10, s8")
            A.salu("s_cselect_b32 s9, s11, s9")
            srd(A, self.SWO, 8, 4096 * 576 * 2)
            srd(A, self.SOUT, 12, 896 * 1152 * 2)
            srd(A, self.SDBG, 14, 256)
            A.salu(f"s_mul_i32 s12, s{sBLK}, 126")
            A.salu("s_sub_u32 s3, s3, s12")
            A.salu("s_mul_i32 s12, s3, 57")
            A.salu(f"s_lshr_b32 s{sMT}, s12, 9")
            A.salu(f"s_mul_i32 s12, s{sMT}, 9")
            A.salu(f"s_sub_u32 s{sNT}, s3, s12")
        A.salu(f"s_mul_i32 s{self.sWB}, s{sW}, {(32 if OPT['fuse'] == 5 else 512)*1152}")
        A.salu(f"s_lshl_b32 s12, s{sNT}, 7")
        A.salu(f"s_add_u32 s{self.sWB}, s{self.sWB}, s12")
        A.salu(f"s_mul_i32 s{self.sO0}, s{sBLK}, {O_BLK}")
        A.salu(f"s_lshl_b32 s12, s{sMT}, 19")
        A.salu(f"s_add_u32 s{self.sO0}, s{self.sO0}, s12")
        A.salu(f"s_lshl_b32 s12, s{sW}, {10 if OPT['fuse'] == 5 else 14}")
        A.salu(f"s_add_u32 s{self.sO0}, s{self.sO0}, s12")
        A.salu(f"s_add_u32 s{self.sO1}, s{self.sO0}, {2*131072}")
        if OPT["ntf"]:
            A.salu(f"s_lshl_b32 s12, s{sBLK}, 6")
            A.salu("s_add_u32 s12, s12, 128")
        else:
            A.salu(f"s_lshl_b32 s12, s{sBLK}, 7")
            A.salu(f"s_lshr_b32 s13, s{sW}, 1")
            A.salu("s_lshl_b32 s13, s13, 2")
            A.salu("s_add_u32 s12, s12, s13")
        sh = 2 if OPT["ntf"] else 4
        A.salu(f"s_mul_i32 s13, s{sMT}, 148")
        A.salu(f"s_lshr_b32 s{self.sP0}, s13, 8")
        A.salu(f"s_lshl_b32 s{self.sP0}, s{self.sP0}, {sh}")
        A.salu(f"s_add_u32 s{self.sP0}, s{self.sP0}, s12")
        A.salu("s_add_u32 s13, s13, 111")
        A.salu(f"s_lshr_b32 s{self.sP1}, s13, 8")
        A.salu(f"s_lshl_b32 s{self.sP1}, s{self.sP1}, {sh}")
        A.salu(f"s_add_u32 s{self.sP1}, s{self.sP1}, s12")
    def addr_items(self):
        V = self.A.valu; W = self.WOFF
        L, T1, T2, T4 = W + 4, W + 5, W + 6, W + 7
        return [
            lambda: V(f"v_mbcnt_lo_u32_b32 v{L}, -1, 0", w={L}),
            lambda: V(f"v_mbcnt_hi_u32_b32 v{L}, -1, v{L}", w={L}, r={L}),
            lambda: V(f"v_lshrrev_b32 v{T1}, 3, v{L}", w={T1}, r={L}),
            lambda: V(f"v_mul_u32_u24 v{T1}, 1152, v{T1}", w={T1}, r={T1}),
            lambda: V(f"v_bfe_u32 v{T2}, v{L}, 4, 1", w={T2}, r={L}),
            lambda: V(f"v_lshlrev_b32 v{T2}, 2, v{T2}", w={T2}, r={T2}),
            lambda: V(f"v_and_b32 v{T4}, 7, v{L}", w={T4}, r={L}),
            lambda: V(f"v_xor_b32 v{T4}, v{T4}, v{T2}", w={T4}, r={T4, T2}),
            lambda: V(f"v_lshl_add_u32 v{W}, v{T4}, 4, v{T1}", w={W}, r={T4, T1}),
        ] + [lambda i=i: V(f"v_add_u32 v{W+i}, {9216*i}, v{W}", w={W + i}, r={W}) for i in range(1, 4)]
    def addr6(self):
        V = self.A.valu
        W, L, T1 = 6, 13, 12
        V(f"v_mbcnt_lo_u32_b32 v{L}, -1, 0", w={L})
        V(f"v_mbcnt_hi_u32_b32 v{L}, -1, v{L}", w={L}, r={L})
        V(f"v_lshrrev_b32 v{T1}, 3, v{L}", w={T1}, r={L})
        V(f"v_mul_u32_u24 v{T1}, 1152, v{T1}", w={T1}, r={T1})
        V(f"v_and_b32 v{W}, 7, v{L}", w={W}, r={L})
        V(f"v_bfe_u32 v{L}, v{L}, 4, 1", w={L}, r={L})
        V(f"v_lshlrev_b32 v{L}, 2, v{L}", w={L}, r={L})
        V(f"v_xor_b32 v{W}, v{W}, v{L}", w={W}, r={W, L})
        V(f"v_lshl_add_u32 v{W}, v{W}, 4, v{T1}", w={W}, r={W, T1})
        self.A.salu(f"s_lshl_b32 s{self.sWL}, s{self.sW}, 11")
        self.slots6 = []
    def wo_piece(self, u, i):
        A = self.A; W = self.WOFF; S = self.SWO
        if OPT["fuse"] == 6:
            A.salu(f"s_add_u32 s{self.sT}, s{self.sWB}, {u * 32 * 1152 + i * 9216}")
            A.salu(f"s_add_u32 m0, s{self.sWL}, {self.slots6[2 * (u % 4) + (i >> 1)] * SLOT + (i & 1) * 1024}", m0w=True)
            A.vmem(f"buffer_load_dwordx4 v6, s[{S}:{S+3}], s{self.sT} offen{' nt' if OPT['ntwo'] else ''} lds", kind="dma", r={6}, m0r=True)
            return
        A.salu(f"s_add_u32 s{self.sT}, s{self.sWB}, {u * 32 * 1152}")
        A.salu(f"s_add_u32 m0, s{self.sWL}, {(u % 4) * 4096 + i * 1024}", m0w=True)
        A.vmem(f"buffer_load_dwordx4 v{W+i}, s[{S}:{S+3}], s{self.sT} offen{' nt' if OPT['ntwo'] else ''} lds", kind="dma", r={W + i}, m0r=True)
    def wo_items(self, slots):
        A = self.A
        tab = sum(s << (4 * w) for w, s in enumerate(slots))
        A.salu(f"s_lshl_b32 s3, s{self.sW}, 2")
        A.salu(f"s_lshr_b32 s3, {tab:#x}, s3")
        A.salu("s_and_b32 s3, s3, 15")
        A.salu(f"s_lshl_b32 s{self.sWL}, s3, 14")
        return [lambda u=u, i=i: self.wo_piece(u, i) for u in range(4) for i in range(4)]
    def dyn(self, PF, L, OOFF, BA, AF, OF, ACC):
        A = self.A; V = A.valu; sW = self.sW; SO = self.SO; SDBG = self.SDBG; W = self.WOFF; S = self.SWO
        T1, T2, T3, T4 = 1, 2, 3, 4
        PD = 8
        vPA, vMA, vT, vM = W + 4, W + 5, W + 6, W + 7
        sPM, sCNT, sDONE, sJ, sA, sB_ = 60, 62, 63, 12, 13, 14
        V(f"v_mov_b32 v{vPA}, s{self.sP1}", w={vPA})
        V(f"v_mov_b32 v{T4}, s{self.sP0}", w={T4})
        V(f"v_cmp_gt_u32 vcc, 16, v{L}", r={L}, sw={"vcc"})
        V(f"v_cndmask_b32 v{vPA}, v{vPA}, v{T4}, vcc", w={vPA}, r={vPA, T4}, sr={"vcc"})
        V(f"v_and_b32 v{T4}, 15, v{L}", w={T4}, r={L})
        V(f"v_add_u32 v{vPA}, v{T4}, v{vPA}", w={vPA}, r={vPA, T4})
        V(f"v_mov_b32 v{vMA}, {self.mslot * SLOT}", w={vMA})
        V(f"v_mov_b32 v{vT}, 0", w={vT})
        A.ds(f"ds_write_b32 v{vMA}, v{vT}", r={vMA, vT})
        A.salu(f"s_cmp_eq_u32 s{sW}, 0")
        A.salu(f"s_cselect_b32 s{sPM}, -1, 0")
        A.salu(f"s_mov_b32 s{sPM+1}, 0")
        A.salu(f"s_mov_b32 s{sCNT}, 0x40000")
        A.salu(f"s_mov_b32 s{sDONE}, 0")
        A.salu(f"s_mov_b32 s15, 0")
        A.waitcnt(vm=0, lgkm=0); A.vm_done = A.nvm; A.ds_done = A.nds
        PF.stamp("st")
        A.barrier()
        A.salu("s_cbranch_scc0 K1_NOFLAG")
        A.salu("s_mov_b64 exec, 1")
        A.salu(f"buffer_atomic_add v{T2}, v{T1}, s[{SDBG}:{SDBG+3}], 0 offen sc1")
        A.salu("s_mov_b64 exec, -1")
        A.label("K1_NOFLAG")
        A.salu(f"s_cmp_ge_u32 s{self.sTT}, 252")
        A.salu("s_cbranch_scc1 K1_END")
        def poll(r, counted=True):
            A.salu(f"s_mov_b64 exec, s[{sPM}:{sPM+1}]")
            txt = f"buffer_load_ubyte v{PD+r}, v{vPA}, s[{SDBG}:{SDBG+3}], 0 offen sc1"
            if counted: A.vmem(txt, w={PD + r}, r={vPA})
            else: A.salu(txt)
            A.salu("s_mov_b64 exec, -1")
        def consume(r):
            A.salu(f"s_mov_b64 exec, s[{sPM}:{sPM+1}]")
            V(f"v_cmp_ne_u32 vcc, 0, v{PD+r}", r={PD + r}, sw={"vcc"})
            A.salu("s_nop 1")
            A.salu(f"s_lshr_b32 s{sA}, vcc_lo, 16")
            A.salu(f"s_and_b32 s{sA}, s{sA}, vcc_lo")
            A.salu(f"s_or_b32 s15, s15, s{sA}")
            V(f"v_mov_b32 v{vT}, s15", w={vT})
            A.ds(f"ds_write_b32 v{vMA}, v{vT}", r={vMA, vT})
            A.salu("s_mov_b64 exec, -1")
        def pick(k):
            A.label(f"K1_PK{k}")
            A.ds(f"ds_read_b32 v{vM}, v{vMA}", w={vM}, r={vMA})
            A.waitcnt(lgkm=0); A.ds_done = A.nds
            A._emit(I(f"v_readfirstlane_b32 s{sA}, v{vM}", "rdlane", r={vM}, sw={sA}))
            A.salu(f"s_andn2_b32 s{sA}, s{sA}, s{sDONE}", sr={sA})
            A.salu(f"s_cbranch_scc1 K1_PG{k}")
            poll(k % 4, False)
            A.salu("s_waitcnt vmcnt(0)")
            consume(k % 4)
            A.salu(f"s_sleep {OPT['slp']}")
            A.salu(f"s_sub_u32 s{sCNT}, s{sCNT}, 1")
            A.salu(f"s_cmp_lg_u32 s{sCNT}, 0")
            A.salu(f"s_cbranch_scc1 K1_PK{k}")
            A.salu(f"s_mov_b32 s{sCNT}, 1")
            A.salu(f"s_andn2_b32 s{sA}, 0xffff, s{sDONE}")
            A.label(f"K1_PG{k}")
            A.salu(f"s_ff1_i32_b32 s{sJ}, s{sA}")
            A.salu(f"s_bitset1_b32 s{sDONE}, s{sJ}")
        NU = 16; DEPTH = 4
        last_vm = {}
        def issue(u):
            slot = u % DEPTH
            pick(u)
            if self.first: PF.stamp("go"); self.first = False
            if 4 <= u: poll(u % 4)
            A.salu(f"s_mul_i32 s{sA}, s{sJ}, {256*1152}")
            A.salu(f"s_add_u32 s{sA}, s{sA}, s{self.sWB}")
            for i in range(4):
                A.salu(f"s_add_u32 m0, s{self.sWL}, {slot * 4096 + i * 1024}", m0w=True)
                A.vmem(f"buffer_load_dwordx4 v{W+i}, s[{S}:{S+3}], s{sA} offen{' nt' if OPT['ntwo'] else ''} lds", kind="dma", r={W + i}, m0r=True)
            A.salu(f"s_lshl_b32 s{sJ}, s{sJ}, 13")
            A.salu(f"s_add_u32 s{sA}, s{sJ}, s{self.sO0}")
            A.salu(f"s_add_u32 s{sB_}, s{sJ}, s{self.sO1}")
            for ks in range(2):
                for tm in range(2):
                    d = OF + slot * 16 + (ks * 2 + tm) * 4
                    k = A.vmem(f"buffer_load_dwordx4 {vname(d,4)}, v{OOFF}, s[{SO}:{SO+3}], s{sA if tm == 0 else sB_} offen offset:{ks*512} sc1", w=vr(d, 4), r={OOFF})
            last_vm[u] = k
        def dsreads(u):
            slot = u % DEPTH
            ab = AF + (u % 2) * 16
            for ks in range(2):
                for tn in range(2):
                    for j in range(2):
                        k = A.ds_read_tr(ab + (ks * 2 + tn) * 4 + 2 * j, BA + tn, slot * 4096 + (16 * ks + 8 * j) * 128)
            return k
        self.first = True
        for u in range(DEPTH): issue(u)
        A.wait_vm(last_vm[0])
        pend = dsreads(0)
        for u in range(NU):
            A.wait_ds(pend)
            if u + 1 < NU:
                A.wait_vm(last_vm[u + 1])
                if u + 1 >= 4 and u + DEPTH < NU: consume((u + 1) % 4)
                pend = dsreads(u + 1)
            ab = AF + (u % 2) * 16
            ob = OF + (u % DEPTH) * 16
            for ks in range(2):
                for tn in range(2):
                    for tm in range(2):
                        c = "zero" if (u == 0 and ks == 0) else None
                        A.mfma(ACC + (tn * 2 + tm) * 16, ab + (ks * 2 + tn) * 4, ob + (ks * 2 + tm) * 4, c)
            if u + DEPTH < NU: issue(u + DEPTH)
            if u in (0, 7, 15): PF.stamp(f"u{u}")
    def body(self, PF, sBLK1, sB1, sKVH1):
        A = self.A; V = A.valu; sW = self.sW; SO = self.SO
        T0, T1, T2, T3, T4, T5, T6, T7 = 0, 1, 2, 3, 4, 5, 9, 8
        WOFF = self.WOFF; OOFF = 12; BA = 13; RED = 15; AF = 16; OF = 96; ACC = 160
        sBLK, sMT, sNT = self.sBLK, self.sMT, self.sNT
        SOUT, SDBG = self.SOUT, self.SDBG
        sWL, sO0, sO1, sT = self.sWL, self.sO0, self.sO1, self.sT
        L = T0
        A.salu("s_mov_b64 exec, -1")
        V(f"v_mbcnt_lo_u32_b32 v{L}, -1, 0", w={L})
        V(f"v_mbcnt_hi_u32_b32 v{L}, -1, v{L}", w={L}, r={L})
        V(f"v_bfe_u32 v{T2}, v{L}, 4, 1", w={T2}, r={L})
        V(f"v_lshrrev_b32 v{T1}, 5, v{L}", w={T1}, r={L})
        V(f"v_bfe_u32 v{T3}, v{L}, 2, 2", w={T3}, r={L})
        V(f"v_and_b32 v{T4}, 3, v{L}", w={T4}, r={L})
        V(f"v_lshlrev_b32 v{T6}, 17, v{T2}", w={T6}, r={T2})
        V(f"v_lshl_add_u32 v{T6}, v{T1}, 8, v{T6}", w={T6}, r={T1, T6})
        V(f"v_and_b32 v{T7}, 15, v{L}", w={T7}, r={L})
        V(f"v_lshl_add_u32 v{OOFF}, v{T7}, 4, v{T6}", w={OOFF}, r={T7, T6})
        V(f"v_lshl_add_u32 v{T6}, v{T1}, 2, v{T3}", w={T6}, r={T1, T3})
        V(f"v_lshlrev_b32 v{T6}, 7, v{T6}", w={T6}, r={T6})
        V(f"v_lshrrev_b32 v{T7}, 1, v{T4}", w={T7}, r={T4})
        V(f"v_lshl_add_u32 v{T7}, v{T2}, 1, v{T7}", w={T7}, r={T2, T7})
        V(f"v_lshrrev_b32 v{T5}, 1, v{T3}", w={T5}, r={T3})
        V(f"v_lshlrev_b32 v{T5}, 2, v{T5}", w={T5}, r={T5})
        V(f"v_xor_b32 v{T7}, v{T7}, v{T5}", w={T7}, r={T7, T5})
        V(f"v_lshl_add_u32 v{T6}, v{T7}, 4, v{T6}", w={T6}, r={T7, T6})
        V(f"v_and_b32 v{T7}, 1, v{T4}", w={T7}, r={T4})
        V(f"v_lshl_add_u32 v{T6}, v{T7}, 3, v{T6}", w={T6}, r={T7, T6})
        V(f"v_add_u32 v{BA}, s{sWL}, v{T6}", w={BA}, r={T6})
        V(f"v_xor_b32 v{BA+1}, 64, v{BA}", w={BA + 1}, r={BA})
        if OPT["fuse"] == 6:
            for q in range(1, 3):
                for tn in range(2):
                    V(f"v_add_u32 v{64+2*q+tn}, {q*65536}, v{BA+tn}", w={64 + 2 * q + tn}, r={BA + tn})
        V(f"v_lshlrev_b32 v{RED}, 4, v{L}", w={RED}, r={L})
        if OPT["ntf"]:
            A.salu(f"s_lshl_b32 s12, s{sBLK1}, 6")
            A.salu(f"s_lshl_b32 s13, s{sB1}, 2")
            A.salu("s_add_u32 s12, s12, s13")
            A.salu("s_mov_b32 s13, 1")
        else:
            A.salu(f"s_lshl_b32 s12, s{sBLK1}, 7")
            A.salu(f"s_lshl_b32 s13, s{sB1}, 4")
            A.salu("s_add_u32 s12, s12, s13")
            A.salu(f"s_and_b32 s13, s{sKVH1}, 12")
            A.salu("s_add_u32 s12, s12, s13")
            A.salu(f"s_and_b32 s13, s{sKVH1}, 3")
            A.salu("s_lshl_b32 s13, s13, 3")
            A.salu("s_lshl_b32 s13, 1, s13")
        V(f"v_mov_b32 v{T1}, s12", w={T1})
        V(f"v_mov_b32 v{T2}, s13", w={T2})
        if OPT["ntf"]:
            V(f"v_mov_b32 v{T3}, s{self.sP1}", w={T3})
            V(f"v_writelane_b32 v{T3}, s{self.sP0}, 0", w={T3}, r={T3})
            V(f"v_mov_b32 v{T5}, 1", w={T5})
            A.salu("s_mov_b32 s14, 1")
        elif OPT["fuse"] == 5:
            self.dyn(PF, L, OOFF, BA, AF, OF, ACC)
        elif OPT["fuse"] == 1:
            V(f"v_mov_b32 v{T3}, s{self.sP1}", w={T3})
            V(f"v_writelane_b32 v{T3}, s{self.sP0}, 0", w={T3}, r={T3})
            A.salu(f"s_and_b32 s14, s{sW}, 1")
            A.salu("s_lshl_b32 s14, s14, 4")
            A.salu("s_lshl_b32 s14, 0x101, s14")
        else:
            V(f"v_mov_b32 v{T3}, s{self.sP1}", w={T3})
            V(f"v_mov_b32 v{T4}, s{self.sP0}", w={T4})
            V(f"v_cmp_gt_u32 vcc, 4, v{L}", r={L}, sw={"vcc"})
            V(f"v_cndmask_b32 v{T3}, v{T3}, v{T4}, vcc", w={T3}, r={T3, T4}, sr={"vcc"})
            V(f"v_and_b32 v{T4}, 3, v{L}", w={T4}, r={L})
            V(f"v_lshl_add_u32 v{T3}, v{T4}, 2, v{T3}", w={T3}, r={T3, T4})
            A.salu("s_mov_b32 s14, 0x01010101")
        if OPT["fuse"] != 5:
            A.salu("s_mov_b32 s15, 0x40000")
            A.waitcnt(vm=0); A.vm_done = A.nvm
            PF.stamp("st")
            A.barrier()
            A.salu(f"s_cmp_eq_u32 s{sW}, 0")
            A.salu("s_cbranch_scc0 K1_NOFLAG")
            A.salu("s_mov_b64 exec, 1")
            if OPT["ntf"]:
                A.salu(f"buffer_atomic_add v{T2}, v{T1}, s[{SDBG}:{SDBG+3}], 0 offen sc0 sc1")
                A.salu("s_waitcnt vmcnt(0)")
                A.salu(f"v_cmp_eq_u32 vcc, 15, v{T2}")
                A.salu("s_nop 1")
                A.salu("s_cbranch_vccz K1_NOFLAG")
                A.salu(f"buffer_store_dword v{T5}, v{T1}, s[{SDBG}:{SDBG+3}], 0 offen offset:128 sc1")
            elif OPT["exp"] != 1: A.salu(f"buffer_atomic_add v{T2}, v{T1}, s[{SDBG}:{SDBG+3}], 0 offen sc1")
            A.label("K1_NOFLAG")
            A.salu(f"s_cmp_ge_u32 s{self.sTT}, 252")
            A.salu("s_cbranch_scc1 K1_END")
            if OPT["exp"]:
                for _ in range(3): A.salu("s_sleep 64")
                A.salu("s_branch K1_GO")
            if OPT["fuse"] == 6:
                A.salu("s_mov_b64 exec, -1")
                for j in range(self.done6, 8):
                    for q in range(2): self.wo_piece(j >> 1, (j & 1) * 2 + q)
            if OPT["fuse"] == 1:
                A.salu("s_mov_b64 exec, 3")
            else:
                A.salu(f"s_cmp_eq_u32 s{sW}, 0")
                A.salu("s_cbranch_scc0 K1_GO" if OPT["fuse"] != 3 else "s_cbranch_scc0 K1_WO")
                A.salu("s_mov_b64 exec, 3" if OPT["ntf"] else "s_mov_b64 exec, 0xff")
            A.label("K1_POLL")
            A.salu(f"buffer_load_dword v{T4}, v{T3}, s[{SDBG}:{SDBG+3}], 0 offen sc1")
            A.salu("s_waitcnt vmcnt(0)")
            A.salu(f"v_and_b32 v{T4}, s14, v{T4}")
            A.salu(f"v_cmp_ne_u32 vcc, s14, v{T4}")
            A.salu("s_nop 1")
            A.salu("s_cbranch_vccz K1_GO")
            A.salu(f"s_sleep {OPT['slp']}")
            A.salu("s_sub_u32 s15, s15, 1")
            A.salu("s_cmp_lg_u32 s15, 0")
            A.salu("s_cbranch_scc1 K1_POLL")
            A.label("K1_GO")
            A.salu("s_mov_b64 exec, -1")
            if OPT["fuse"] == 3:
                A.barrier()
                A.label("K1_WO")
                for u in range(4):
                    for i in range(4): self.wo_piece(u, i)
                A.salu(f"s_cmp_eq_u32 s{sW}, 0")
                A.salu("s_cbranch_scc1 K1_GO2")
                A.barrier()
                A.label("K1_GO2")
            elif OPT["fuse"] > 1: A.barrier()
            PF.stamp("go")
            NU = 16; DEPTH = 4
            last_vm = {}
            def issue(u, wo=True):
                slot = u % DEPTH
                if wo:
                    for i in range(4): self.wo_piece(u, i)
                for ks in range(2):
                    for tm in range(2):
                        d = OF + slot * 16 + (ks * 2 + tm) * 4
                        off = (2 * u + ks) * 512
                        sb = sO0 if tm == 0 else sO1
                        if off >= 4096:
                            A.salu(f"s_add_u32 s{sT}, s{sb}, {off & ~4095}")
                            sb = sT
                        k = A.vmem(f"buffer_load_dwordx4 {vname(d,4)}, v{OOFF}, s[{SO}:{SO+3}], s{sb} offen offset:{off & 4095} sc1", w=vr(d, 4), r={OOFF})
                last_vm[u] = k
            def dsreads(u):
                slot = u % DEPTH
                ab = AF + (u % 2) * 16
                for ks in range(2):
                    for tn in range(2):
                        for j in range(2):
                            if OPT["fuse"] == 6:
                                o_ = self.slots6[2 * slot + ks] * SLOT + j * 1024
                                k = A.ds_read_tr(ab + (ks * 2 + tn) * 4 + 2 * j, (BA if o_ < 65536 else 64 + 2 * (o_ >> 16)) + tn, o_ & 65535)
                            else:
                                k = A.ds_read_tr(ab + (ks * 2 + tn) * 4 + 2 * j, BA + tn, slot * 4096 + (16 * ks + 8 * j) * 128)
                return k
            for u in range(DEPTH): issue(u, OPT["fuse"] == 4)
            if OPT["fuse"] in (3, 4): A.wait_vm(last_vm[0])
            pend = dsreads(0)
            A.wait_vm(last_vm[0])
            for u in range(NU):
                A.wait_ds(pend)
                if u + 1 < NU:
                    A.wait_vm(last_vm[u + 1])
                    pend = dsreads(u + 1)
                ab = AF + (u % 2) * 16
                ob = OF + (u % DEPTH) * 16
                for ks in range(2):
                    for tn in range(2):
                        for tm in range(2):
                            c = "zero" if (u == 0 and ks == 0) else None
                            A.mfma(ACC + (tn * 2 + tm) * 16, ab + (ks * 2 + tn) * 4, ob + (ks * 2 + tm) * 4, c)
                if u + DEPTH < NU: issue(u + DEPTH)
                if u in (0, 7, 15): PF.stamp(f"u{u}")
        R = OF
        if OPT["fuse"] == 6 and OPT["red"]:
            A.wait_ds_all()
            V(f"v_add_u32 v{T1}, s{sWL}, v{RED}", w={T1}, r={RED})
            V(f"v_add_u32 v{T2}, 0x10000, v{T1}", w={T2}, r={T1})
            V(f"v_add_u32 v{T3}, 0x20000, v{T1}", w={T3}, r={T1})
            for q in range(16):
                o_ = self.slots6[q >> 1] * SLOT + (q & 1) * 1024
                A.ds_write_b128([T1, T2, T3][o_ >> 16], ACC + 4 * q, o_ & 65535)
            tab = sum(s_ << (4 * w_) for w_, s_ in enumerate(self.slots6))
            A.salu(f"s_lshl_b32 s6, s{sW}, 2")
            A.salu(f"s_lshr_b32 s6, {tab:#x}, s6")
            A.salu("s_and_b32 s6, s6, 15")
            A.salu("s_lshl_b32 s6, s6, 14")
            V(f"v_add_u32 v{T4}, s6, v{RED}", w={T4}, r={RED})
            A.wait_ds_all()
            A.barrier()
            for ww in range(8):
                for q in range(2):
                    A.ds_read_b128(R + (ww * 2 + q) * 4, T4, ww * 2048 + q * 1024)
                if ww == 5:
                    A.wait_ds_all()
            A.wait_ds_all()
        else:
            A.wait_ds_all()
            A.barrier()
            A.salu(f"s_lshl_b32 s12, s{sW}, 14")
            V(f"v_add_u32 v{T1}, s12, v{RED}", w={T1}, r={RED})
            for q in range(16):
                A.ds_write_b128(T1, ACC + 4 * q, q * 1024)
            A.wait_ds_all()
            A.barrier()
            A.salu(f"s_lshl_b32 s6, s{sW}, 11")
            V(f"v_add_u32 v{T1}, s6, v{RED}", w={T1}, r={RED})
            V(f"v_add_u32 v{T2}, 0x10000, v{T1}", w={T2}, r={T1})
            for ww in range(8):
                for q in range(2):
                    A.ds_read_b128(R + (ww * 2 + q) * 4, T1 if ww < 4 else T2, (ww % 4) * 16384 + q * 1024)
                if ww == 5:
                    A.wait_ds_all()
            A.wait_ds_all()
        for ww in range(1, 8):
            for i in range(8):
                V(f"v_add_f32 v{R+i}, v{R+i}, v{R+ww*8+i}", w={R + i}, r={R + i, R + ww * 8 + i})
        for q in range(4):
            V(f"v_cvt_pk_bf16_f32 v{AF+q}, v{R+2*q}, v{R+2*q+1}", w={AF + q}, r={R + 2 * q, R + 2 * q + 1})
        A.salu(f"s_lshr_b32 s6, s{sW}, 1")
        A.salu("s_and_b32 s7, s6, 1")
        A.salu("s_lshr_b32 s6, s6, 1")
        A.salu(f"s_lshl_b32 s3, s{sMT}, 6")
        A.salu("s_lshl_b32 s7, s7, 5")
        A.salu("s_add_u32 s3, s3, s7")
        A.salu("s_mul_i32 s3, s3, 2304")
        A.salu(f"s_mul_i32 s7, s{sBLK}, 1152")
        A.salu("s_add_u32 s3, s3, s7")
        A.salu(f"s_lshl_b32 s7, s{sNT}, 7")
        A.salu("s_add_u32 s3, s3, s7")
        A.salu("s_lshl_b32 s7, s6, 6")
        A.salu("s_add_u32 s3, s3, s7")
        A.salu(f"s_and_b32 s7, s{sW}, 1")
        A.salu("s_lshl_b32 s7, s7, 5")
        A.salu("s_add_u32 s3, s3, s7")
        V(f"v_and_b32 v{T1}, 31, v{L}", w={T1}, r={L})
        V(f"v_mul_u32_u24 v{T1}, 2304, v{T1}", w={T1}, r={T1})
        V(f"v_lshrrev_b32 v{T2}, 5, v{L}", w={T2}, r={L})
        V(f"v_lshl_add_u32 v{T1}, v{T2}, 3, v{T1}", w={T1}, r={T2, T1})
        fl = ["", " sc1", " nt", " sc0 sc1"][OPT["ost"]]
        A.vmem(f"buffer_store_dwordx2 {vname(AF,2)}, v{T1}, s[{SOUT}:{SOUT+3}], s3 offen{fl}", r=vr(AF, 2) | {T1})
        A.vmem(f"buffer_store_dwordx2 {vname(AF+2,2)}, v{T1}, s[{SOUT}:{SOUT+3}], s3 offen offset:16{fl}", r=vr(AF + 2, 2) | {T1})

def gen_k2(A):
    V = A.valu
    T0, T1, T2, T3, T4, T5, T6, T7 = range(0, 8)
    WOFF = 8
    OOFF = 12
    BA = 13
    RED = 15
    AF = 16
    OF = 48
    ACC = 112
    sBLK, sMT, sNT, sW = 26, 27, 4, 5
    SW_, SO, SOUT = 28, 32, 36
    sWL, sWB, sO0, sO1, sT = 48, 49, 50, 51, 52
    A.win = []
    A.nds = A.ds_done = A.nvm = A.vm_done = 0
    A.raw(f".p2align 8\n.globl k2_kernel\n.type k2_kernel,@function\nk2_kernel:")
    A.salu("s_cmp_ge_u32 s2, 256")
    A.salu("s_cbranch_scc1 K2_END")
    A.salu("s_and_b32 s3, s2, 7")
    A.salu("s_lshl_b32 s3, s3, 5")
    A.salu("s_lshr_b32 s6, s2, 3")
    A.salu("s_add_u32 s3, s3, s6")
    A.salu("s_cmp_ge_u32 s3, 252")
    A.salu("s_cbranch_scc1 K2_END")
    A.salu("s_load_dwordx2 s[8:9], s[0:1], 32")
    A.salu("s_load_dwordx2 s[10:11], s[0:1], 72")
    A.salu("s_load_dwordx2 s[12:13], s[0:1], 80")
    A.salu("s_load_dwordx2 s[14:15], s[0:1], 96")
    A.salu("s_cmp_ge_u32 s3, 126")
    A.salu(f"s_cselect_b32 s{sBLK}, 1, 0")
    A.salu(f"s_mul_i32 s6, s{sBLK}, 126")
    A.salu("s_sub_u32 s3, s3, s6")
    A.salu("s_mul_i32 s6, s3, 57")
    A.salu(f"s_lshr_b32 s{sMT}, s6, 9")
    A.salu(f"s_mul_i32 s6, s{sMT}, 9")
    A.salu(f"s_sub_u32 s{sNT}, s3, s6")
    V(f"v_lshrrev_b32 v{T1}, 6, v0", w={T1}, r={0})
    A._emit(I(f"v_readfirstlane_b32 s{sW}, v{T1}", "rdlane", r={T1}, sw={sW}))
    V(f"v_and_b32 v{T0}, 63, v0", w={T0}, r={0})
    L = T0
    A.salu(f"s_lshl_b32 s{sWL}, s{sW}, 14", sr={sW})
    A.salu(f"s_mul_i32 s{sWB}, s{sW}, {512*1152}", sr={sW})
    A.salu(f"s_lshl_b32 s6, s{sNT}, 7")
    A.salu(f"s_add_u32 s{sWB}, s{sWB}, s6")
    A.salu(f"s_mul_i32 s{sO0}, s{sBLK}, {O_BLK}")
    A.salu(f"s_lshl_b32 s6, s{sMT}, 19")
    A.salu(f"s_add_u32 s{sO0}, s{sO0}, s6")
    A.salu(f"s_lshl_b32 s6, s{sW}, 14")
    A.salu(f"s_add_u32 s{sO0}, s{sO0}, s6")
    A.salu(f"s_add_u32 s{sO1}, s{sO0}, {2*131072}")
    V(f"v_lshrrev_b32 v{T1}, 3, v{L}", w={T1}, r={L})
    V(f"v_mul_u32_u24 v{T1}, 1152, v{T1}", w={T1}, r={T1})
    V(f"v_bfe_u32 v{T2}, v{L}, 4, 1", w={T2}, r={L})
    V(f"v_lshlrev_b32 v{T3}, 2, v{T2}", w={T3}, r={T2})
    V(f"v_and_b32 v{T4}, 7, v{L}", w={T4}, r={L})
    V(f"v_xor_b32 v{T4}, v{T4}, v{T3}", w={T4}, r={T4, T3})
    V(f"v_lshl_add_u32 v{WOFF}, v{T4}, 4, v{T1}", w={WOFF}, r={T4, T1})
    for i in range(1, 4):
        V(f"v_add_u32 v{WOFF+i}, {9216*i}, v{WOFF}", w={WOFF + i}, r={WOFF})
    V(f"v_lshrrev_b32 v{T1}, 5, v{L}", w={T1}, r={L})
    V(f"v_bfe_u32 v{T3}, v{L}, 2, 2", w={T3}, r={L})
    V(f"v_and_b32 v{T4}, 3, v{L}", w={T4}, r={L})
    V(f"v_lshlrev_b32 v{T6}, 17, v{T2}", w={T6}, r={T2})
    V(f"v_lshl_add_u32 v{T6}, v{T1}, 8, v{T6}", w={T6}, r={T1, T6})
    V(f"v_and_b32 v{T7}, 15, v{L}", w={T7}, r={L})
    V(f"v_lshl_add_u32 v{OOFF}, v{T7}, 4, v{T6}", w={OOFF}, r={T7, T6})
    V(f"v_lshl_add_u32 v{T6}, v{T1}, 2, v{T3}", w={T6}, r={T1, T3})
    V(f"v_lshlrev_b32 v{T6}, 7, v{T6}", w={T6}, r={T6})
    V(f"v_lshrrev_b32 v{T7}, 1, v{T4}", w={T7}, r={T4})
    V(f"v_lshl_add_u32 v{T7}, v{T2}, 1, v{T7}", w={T7}, r={T2, T7})
    V(f"v_lshrrev_b32 v{T5}, 1, v{T3}", w={T5}, r={T3})
    V(f"v_lshlrev_b32 v{T5}, 2, v{T5}", w={T5}, r={T5})
    V(f"v_xor_b32 v{T7}, v{T7}, v{T5}", w={T7}, r={T7, T5})
    V(f"v_lshl_add_u32 v{T6}, v{T7}, 4, v{T6}", w={T6}, r={T7, T6})
    V(f"v_and_b32 v{T7}, 1, v{T4}", w={T7}, r={T4})
    V(f"v_lshl_add_u32 v{T6}, v{T7}, 3, v{T6}", w={T6}, r={T7, T6})
    V(f"v_add_u32 v{BA}, s{sWL}, v{T6}", w={BA}, r={T6})
    V(f"v_xor_b32 v{BA+1}, 64, v{BA}", w={BA + 1}, r={BA})
    V(f"v_lshlrev_b32 v{RED}, 4, v{L}", w={RED}, r={L})
    A.waitcnt(lgkm=0)
    A.salu(f"s_cmp_eq_u32 s{sBLK}, 0")
    A.salu("s_cselect_b32 s8, s8, s10")
    A.salu("s_cselect_b32 s9, s9, s11")
    srd(A, SW_, 8, 4096 * 576 * 2)
    srd(A, SO, 14, 2 * O_BLK)
    srd(A, SOUT, 12, 896 * 1152 * 2)

    NU = 16; DEPTH = 4
    last_vm = {}
    def issue(u):
        slot = u % DEPTH
        A.salu(f"s_add_u32 s{sT}, s{sWB}, {u * 32 * 1152}")
        for i in range(4):
            A.salu(f"s_add_u32 m0, s{sWL}, {slot * 4096 + i * 1024}", m0w=True)
            A.vmem(f"buffer_load_dwordx4 v{WOFF+i}, s[{SW_}:{SW_+3}], s{sT} offen{' nt' if OPT['ntwo'] else ''} lds", kind="dma", r={WOFF + i}, m0r=True)
        for ks in range(2):
            for tm in range(2):
                d = OF + slot * 16 + (ks * 2 + tm) * 4
                off = (2 * u + ks) * 512
                sb = sO0 if tm == 0 else sO1
                if off >= 4096:
                    A.salu(f"s_add_u32 s{sT}, s{sb}, {off & ~4095}")
                    k = A.vmem(f"buffer_load_dwordx4 {vname(d,4)}, v{OOFF}, s[{SO}:{SO+3}], s{sT} offen offset:{off & 4095}{' nt' if OPT['nto'] else ''}", w=vr(d, 4), r={OOFF})
                else:
                    k = A.vmem(f"buffer_load_dwordx4 {vname(d,4)}, v{OOFF}, s[{SO}:{SO+3}], s{sb} offen offset:{off}{' nt' if OPT['nto'] else ''}", w=vr(d, 4), r={OOFF})
        last_vm[u] = k
    def dsreads(u):
        slot = u % DEPTH
        ab = AF + (u % 2) * 16
        for ks in range(2):
            for tn in range(2):
                for j in range(2):
                    k = A.ds_read_tr(ab + (ks * 2 + tn) * 4 + 2 * j, BA + tn, slot * 4096 + (16 * ks + 8 * j) * 128)
        return k
    PF = Prof(A, 1)
    PF.stamp("start")
    for u in range(DEPTH): issue(u)
    A.wait_vm(last_vm[0])
    pend = dsreads(0)
    for u in range(NU):
        A.wait_ds(pend)
        if u + 1 < NU:
            A.wait_vm(last_vm[u + 1])
            pend = dsreads(u + 1)
        ab = AF + (u % 2) * 16
        ob = OF + (u % DEPTH) * 16
        for ks in range(2):
            for tn in range(2):
                for tm in range(2):
                    c = "zero" if (u == 0 and ks == 0) else None
                    A.mfma(ACC + (tn * 2 + tm) * 16, ab + (ks * 2 + tn) * 4, ob + (ks * 2 + tm) * 4, c)
        if u + DEPTH < NU: issue(u + DEPTH)
        PF.stamp(f"u{u}")
    A.wait_ds_all()
    A.barrier()
    V(f"v_add_u32 v{T1}, s{sWL}, v{RED}", w={T1}, r={RED})
    for q in range(16):
        A.ds_write_b128(T1, ACC + 4 * q, q * 1024)
    A.wait_ds_all()
    A.barrier()
    A.salu(f"s_lshl_b32 s6, s{sW}, 11")
    V(f"v_add_u32 v{T1}, s6, v{RED}", w={T1}, r={RED})
    V(f"v_add_u32 v{T2}, 0x10000, v{T1}", w={T2}, r={T1})
    R = OF
    for ww in range(8):
        for q in range(2):
            A.ds_read_b128(R + (ww * 2 + q) * 4, T1 if ww < 4 else T2, (ww % 4) * 16384 + q * 1024)
            if ww == 6 and q == 1: pass
        if ww == 5:
            A.wait_ds_all()
    A.wait_ds_all()
    for ww in range(1, 8):
        for i in range(8):
            V(f"v_add_f32 v{R+i}, v{R+i}, v{R+ww*8+i}", w={R + i}, r={R + i, R + ww * 8 + i})
    for q in range(4):
        V(f"v_cvt_pk_bf16_f32 v{AF+q}, v{R+2*q}, v{R+2*q+1}", w={AF + q}, r={R + 2 * q, R + 2 * q + 1})
    A.salu(f"s_lshr_b32 s6, s{sW}, 1")
    A.salu("s_and_b32 s7, s6, 1")
    A.salu("s_lshr_b32 s6, s6, 1")
    A.salu(f"s_lshl_b32 s3, s{sMT}, 6")
    A.salu("s_lshl_b32 s7, s7, 5")
    A.salu("s_add_u32 s3, s3, s7")
    A.salu("s_mul_i32 s3, s3, 2304")
    A.salu(f"s_mul_i32 s7, s{sBLK}, 1152")
    A.salu("s_add_u32 s3, s3, s7")
    A.salu(f"s_lshl_b32 s7, s{sNT}, 7")
    A.salu("s_add_u32 s3, s3, s7")
    A.salu("s_lshl_b32 s7, s6, 6")
    A.salu("s_add_u32 s3, s3, s7")
    A.salu(f"s_and_b32 s7, s{sW}, 1")
    A.salu("s_lshl_b32 s7, s7, 5")
    A.salu("s_add_u32 s3, s3, s7")
    V(f"v_and_b32 v{T1}, 31, v{L}", w={T1}, r={L})
    V(f"v_mul_u32_u24 v{T1}, 2304, v{T1}", w={T1}, r={T1})
    V(f"v_lshrrev_b32 v{T2}, 5, v{L}", w={T2}, r={L})
    V(f"v_lshl_add_u32 v{T1}, v{T2}, 3, v{T1}", w={T1}, r={T2, T1})
    A.vmem(f"buffer_store_dwordx2 {vname(AF,2)}, v{T1}, s[{SOUT}:{SOUT+3}], s3 offen", r=vr(AF, 2) | {T1})
    A.vmem(f"buffer_store_dwordx2 {vname(AF+2,2)}, v{T1}, s[{SOUT}:{SOUT+3}], s3 offen offset:16", r=vr(AF + 2, 2) | {T1})
    PF.dump(14, sW, 0)
    A.label("K2_END")
    A.salu("s_endpgm")

def kd(name, vgpr, sgpr):
    return f""".amdhsa_kernel {name}
  .amdhsa_next_free_vgpr {vgpr}
  .amdhsa_next_free_sgpr {sgpr}
  .amdhsa_accum_offset {(vgpr + 3) // 4 * 4}
  .amdhsa_group_segment_fixed_size 0
  .amdhsa_kernarg_size 104
  .amdhsa_user_sgpr_count 2
  .amdhsa_user_sgpr_kernarg_segment_ptr 1
  .amdhsa_system_sgpr_workgroup_id_x 1
.end_amdhsa_kernel
"""

def main():
    A = Asm()
    gen_k1(A)
    if not OPT["fuse"]: gen_k2(A)
    head = """; Two-launch GQA block pair: k1 = Q projection + attention (o -> ws), k2 = output projection.
; @launch kernel=k1_kernel grid=(256,1,1) block=(512,1,1) lds=163840
; @launch kernel=k2_kernel grid=(256,1,1) block=(512,1,1) lds=131072
.amdgcn_target "amdgcn-amd-amdhsa--gfx950"
.text
"""
    tail = '\n.section .rodata,"a"\n.p2align 6\n' + kd("k1_kernel", 256, 102 if OPT["prof"] else 64) + ".p2align 6\n" + kd("k2_kernel", 176, 102 if OPT["prof"] else 64)
    if OPT["fuse"]:
        head = """; GQA block pair in one launch: Q projection + attention, o handed over through ws, output projection.
; @launch kernel=k1_kernel grid=(256,1,1) block=(512,1,1) lds=163840
.amdgcn_target "amdgcn-amd-amdhsa--gfx950"
.text
"""
        tail = '\n.section .rodata,"a"\n.p2align 6\n' + kd("k1_kernel", 256, 102 if OPT["prof"] else 64)
    txt = head + A.text() + tail
    if "CODE_BYTES" in txt:
        import subprocess, re
        open("_p1.s", "w").write(txt.replace("CODE_BYTES", "0x12345"))
        subprocess.check_call(["clang", "-x", "assembler", "-target", "amdgcn-amd-amdhsa", "-mcpu=gfx950", "-c", "_p1.s", "-o", "_p1.o"])
        o = subprocess.check_output(["llvm-objdump", "-h", "_p1.o"]).decode()
        n = int(re.search(r"\.text\s+([0-9a-f]+)", o).group(1), 16)
        txt = txt.replace("CODE_BYTES", str(n))
    open(sys.argv[1], "w").write(txt)
    print("nops inserted:", A.nops_inserted, "lines:", len(A.out))

main()
```

```python
import sys, math
sys.path.insert(0, "gen")
from asmlib import *

NAME = "concat_heads__gqa_block_cached__gqa_block_cached__near_ridge"
OPT = dict(prio=1, prof=0, ntkv=1, ntw=0, ntx=0, ntwo=0, nto=0, ntst=0, nq=6, kvrate=1, l2pf=1, wopf=4, fat=1, bstep=1, dmagap=1, pflead=4, kv0=2, nstg=4, kvt=0, ld4=1, cpf=0, mid=0, kvt0=1, kvtr=1, roll=0, pfrate=1, kvs=0, rot=0, stag=0, qi=0, tlbw=0, ntt=0, fuse=0, slp=1, wox=0, xm=0, wo0=3, wo6=0, exp=0, ntf=0, pv=0, ost=0, red=0, pre=0, ring=4, lp=0, pre0=0)
for a in sys.argv[2:]:
    k, v = a.split("="); OPT[k] = int(v)

O_BLK = 896 * 4096 * 2
SLOT = 16384
NSLOT = 10

def srd(A, d, base, nbytes):
    A.salu(f"s_mov_b32 s{d}, s{base}")
    A.salu(f"s_and_b32 s{d+1}, s{base+1}, 0xffff")
    A.salu(f"s_mov_b32 s{d+2}, {nbytes}")
    A.salu(f"s_mov_b32 s{d+3}, 0x00020000")

class Prof:
    def __init__(self, A, kidx):
        self.A = A; self.n = 0; self.names = []; self.kidx = kidx
    def stamp(self, name):
        A = self.A
        if OPT["prof"] == 3:
            sel = ["start", "q0", "a0", "pv7", "st", "go", "u15", "end"]
            if name == "start" or name == sel[OPT["pv"]]:
                A.salu("s_waitcnt lgkmcnt(0)")
                A.ds_done = A.nds
                A.salu("s_memrealtime s[96:97]")
                A.salu("s_waitcnt lgkmcnt(0)")
                if name == "start": A.salu("s_not_b32 s64, s96")
                if name == sel[OPT["pv"]]: A.salu(f"s_mov_b32 s65, s96")
            return
        if OPT["prof"] == 2:
            sel = ["start", "q0", "a0", "pv7", "st", "go", "u15", "end"]
            if name in sel:
                A.salu("s_waitcnt lgkmcnt(0)")
                A.ds_done = A.nds
                A.salu("s_memrealtime s[96:97]")
                A.salu("s_waitcnt lgkmcnt(0)")
                if name == "start": A.salu("s_not_b32 s96, s96")
                A.salu(f"s_mov_b32 s{64+sel.index(name)}, s96")
            return
        if not OPT["prof"]: return
        assert self.n < 30
        A.salu("s_waitcnt lgkmcnt(0)")
        A.ds_done = A.nds
        A.salu("s_memtime s[96:97]")
        A.salu("s_waitcnt lgkmcnt(0)")
        A.salu(f"s_mov_b32 s{64+self.n}, s96")
        if self.n == 0:
            A.salu("s_memrealtime s[98:99]")
            A.salu("s_waitcnt lgkmcnt(0)")
        self.n += 1; self.names.append(name)
    def dump(self, wsreg, sW, tmp):
        if not OPT["prof"]: return
        A = self.A
        self.stamp("end")
        if OPT["prof"] == 3:
            A.salu(f"s_cmp_eq_u32 s{sW}, 0")
            A.salu("s_cbranch_scc0 K1_END")
            A.salu("s_mov_b64 exec, -1")
            A.salu("s_nop 4")
            for i in range(2):
                A.salu(f"v_writelane_b32 v{tmp}, s{64+i}, {i}")
            A.salu(f"v_mbcnt_lo_u32_b32 v{tmp+1}, -1, 0")
            A.salu(f"v_lshlrev_b32 v{tmp+1}, 2, v{tmp+1}")
            A.salu(f"v_mov_b32 v{tmp+2}, 1")
            A.salu("s_mov_b64 exec, 3")
            A.salu("s_nop 4")
            A.salu(f"buffer_atomic_umax v{tmp}, v{tmp+1}, s[20:23], 0 offen offset:32 sc1")
            A.salu("s_waitcnt vmcnt(0)")
            A.salu("s_mov_b64 exec, 1")
            A.salu(f"buffer_atomic_add v{tmp+2}, v{tmp+1}, s[20:23], 0 offen offset:40 sc0 sc1")
            A.salu("s_waitcnt vmcnt(0)")
            A.salu(f"v_readfirstlane_b32 s66, v{tmp+2}")
            A.salu("s_cmp_eq_u32 s66, 251")
            A.salu("s_cbranch_scc0 K1_END")
            A.salu("s_mov_b64 exec, 3")
            A.salu(f"buffer_load_dword v{tmp}, v{tmp+1}, s[20:23], 0 offen offset:32 sc1")
            A.salu("s_waitcnt vmcnt(0)")
            A.salu(f"v_readlane_b32 s66, v{tmp}, 0")
            A.salu(f"v_readlane_b32 s67, v{tmp}, 1")
            A.salu("s_not_b32 s66, s66")
            A.salu("s_sub_u32 s66, s67, s66")
            A.salu("s_min_u32 s66, s66, 10000")
            A.salu("s_lshl_b32 s66, s66, 3")
            A.salu("s_memrealtime s[96:97]")
            A.salu("s_waitcnt lgkmcnt(0)")
            A.salu("s_mov_b32 s67, s96")
            A.label("K1_DLY")
            A.salu("s_memrealtime s[96:97]")
            A.salu("s_waitcnt lgkmcnt(0)")
            A.salu("s_sub_u32 s96, s96, s67")
            A.salu("s_cmp_lt_u32 s96, s66")
            A.salu("s_cbranch_scc1 K1_DLY")
            return
        if OPT["prof"] == 2:
            A.salu("s_mov_b64 exec, -1")
            A.salu("s_nop 4")
            for i in range(8):
                A.salu(f"v_writelane_b32 v{tmp}, s{64+i}, {i}")
            A.salu(f"v_mbcnt_lo_u32_b32 v{tmp+1}, -1, 0")
            A.salu(f"v_lshlrev_b32 v{tmp+1}, 2, v{tmp+1}")
            A.salu("s_mov_b64 exec, 0xff")
            A.salu("s_nop 4")
            A.salu(f"buffer_atomic_umax v{tmp}, v{tmp+1}, s[20:23], 0 offen offset:32 sc1")
            return
        A.salu("s_memrealtime s[96:97]")
        A.salu("s_waitcnt lgkmcnt(0)")
        A.salu("s_mov_b64 exec, -1")
        A.salu("s_nop 4")
        for i in range(self.n):
            A.salu(f"v_writelane_b32 v{tmp}, s{64+i}, {i}")
        A.salu("s_getreg_b32 s97, hwreg(HW_REG_HW_ID)")
        A.salu(f"v_writelane_b32 v{tmp}, s97, 29")
        A.salu(f"v_writelane_b32 v{tmp}, s98, 30")
        A.salu(f"v_writelane_b32 v{tmp}, s96, 31")
        A.salu(f"s_mov_b32 s60, s{wsreg}")
        A.salu(f"s_and_b32 s61, s{wsreg+1}, 0xffff")
        A.salu("s_mov_b32 s62, 0x10000000")
        A.salu("s_mov_b32 s63, 0x00020000")
        A.salu("s_lshl_b32 s96, s2, 3")
        A.salu(f"s_add_u32 s96, s96, s{sW}")
        A.salu("s_lshl_b32 s96, s96, 7")
        A.salu(f"s_add_u32 s96, s96, {255*1024*1024 + self.kidx*512*1024}")
        A.salu(f"v_mbcnt_lo_u32_b32 v{tmp+1}, -1, 0")
        A.salu(f"v_mbcnt_hi_u32_b32 v{tmp+1}, -1, v{tmp+1}")
        A.salu(f"v_lshlrev_b32 v{tmp+1}, 2, v{tmp+1}")
        A.salu("s_mov_b64 exec, 0xffffffff")
        A.salu("s_nop 4")
        A.salu(f"buffer_store_dword v{tmp}, v{tmp+1}, s[60:63], s96 offen")
        print("stamps k%d:" % self.kidx, self.names)

def gen_k1(A):
    V = A.valu
    T0, T1, T2, T3, T4, T5, T6, T7 = range(0, 8)
    XO, WO, KO = 8, 10, 12
    BW, BX, BK, BV = 14, 15, 16, 17
    LSUM, OST = 18, 19
    SUMA, SUMB, MX, MX2 = 20, 21, 22, 23
    AD = 24
    FR = 32
    NEGM = 48
    QB = 64
    S = 96
    O = 160
    P = 224
    sBLK, sKVH, sB, sW, sHL, sRT = 26, 27, 4, 5, 6, 7
    SX, SW_, SK, SV, SO = 28, 32, 36, 40, 44
    sWL, sXB, sWB, sKVB, sT, sOB = 48, 49, 50, 51, 52, 53
    sMASK, sTHR, sC = 54, 56, 57
    sW3, sWL4, sT2 = 58, 59, 55

    A.raw(f".p2align 8\n.globl k1_kernel\n.type k1_kernel,@function\nk1_kernel:\nK1_BEGIN:")
    A.salu("s_cmp_ge_u32 s2, 256")
    A.salu("s_cbranch_scc1 K1_END")
    A.salu("s_load_dwordx8 s[8:15], s[0:1], 0")
    A.salu("s_load_dwordx8 s[16:23], s[0:1], 40")
    A.salu("s_load_dwordx2 s[24:25], s[0:1], 96")
    if OPT["cpf"]:
        A.salu("s_getpc_b64 s[60:61]")
        A.salu("s_and_b32 s60, s60, 0xffffff00")
        A.salu("s_and_b32 s61, s61, 0xffff")
        A.salu("s_mov_b32 s62, CODE_BYTES")
        A.salu("s_mov_b32 s63, 0x00020000")
        V(f"v_lshlrev_b32 v{T7}, 7, v0", w={T7}, r={0})
        A.vmem(f"buffer_load_dword v{NEGM+15}, v{T7}, s[60:63], 0 offen", w={NEGM+15}, r={T7})
    A.salu("s_and_b32 s3, s2, 7")
    A.salu(f"s_lshr_b32 s{sB}, s2, 3")
    A.salu(f"s_lshr_b32 s{sBLK}, s3, 2")
    A.salu("s_and_b32 s3, s3, 3")
    A.salu("s_lshl_b32 s3, s3, 2")
    A.salu(f"s_and_b32 s{sKVH}, s{sB}, 3")
    A.salu(f"s_add_u32 s{sKVH}, s{sKVH}, s3")
    A.salu(f"s_lshr_b32 s{sB}, s{sB}, 2")
    V(f"v_lshrrev_b32 v{T1}, 6, v0", w={T1}, r={0})
    A._emit(I(f"v_readfirstlane_b32 s{sW}, v{T1}", "rdlane", r={T1}, sw={sW}))
    V(f"v_and_b32 v{T0}, 63, v0", w={T0}, r={0})
    if OPT["fat"]:
        A.salu(f"s_bfe_u32 s{sHL}, s{sW}, 0x10001", sr={sW})
        A.salu(f"s_and_b32 s{sRT}, s{sW}, 1", sr={sW})
        A.salu(f"s_lshl_b32 s{sRT}, s{sRT}, 1")
        A.salu(f"s_lshr_b32 s3, s{sW}, 2", sr={sW})
        A.salu(f"s_add_u32 s{sRT}, s{sRT}, s3")
    else:
        A.salu(f"s_lshr_b32 s{sHL}, s{sW}, 2", sr={sW})
        A.salu(f"s_and_b32 s{sRT}, s{sW}, 3", sr={sW})
    A.salu(f"s_lshl_b32 s{sWL}, s{sW}, 11", sr={sW})
    A.salu(f"s_and_b32 s{sW3}, s{sW}, {3 if OPT['ld4'] else 1}", sr={sW})
    A.salu(f"s_lshl_b32 s{sWL4}, s{sW3}, 11")
    A.salu(f"s_mul_i32 s{sXB}, s{sB}, 129024")
    A.salu(f"s_lshl_b32 s{sWB}, s{sKVH}, 9")
    A.salu(f"s_lshl_b32 s{sKVB}, s{sB}, 4")
    A.salu(f"s_add_u32 s{sKVB}, s{sKVB}, s{sKVH}")
    if OPT["rot"] == 1:
        A.salu(f"s_and_b32 s{sMASK}, s{sKVB}, 7")
    elif OPT["rot"] == 2:
        A.salu(f"s_add_u32 s{sMASK}, s{sKVH}, s{sB}")
        A.salu(f"s_and_b32 s{sMASK}, s{sMASK}, 7")
    elif OPT["rot"] == 3:
        A.salu(f"s_and_b32 s{sMASK}, s{sB}, 7")
    A.salu(f"s_lshl_b32 s{sMASK}, s{sMASK}, 14")
    A.salu(f"s_lshl_b32 s{sKVB}, s{sKVB}, 17")
    A.salu(f"s_mov_b32 s{sTHR}, 0x4b800000")
    c = math.log2(math.e) / math.sqrt(128.0)
    import struct
    cbits = struct.unpack("<I", struct.pack("<f", c))[0]
    A.salu(f"s_mov_b32 s{sC}, {cbits:#x}")
    L = T0
    for q in range(2):
        V(f"v_lshrrev_b32 v{T1}, 3, v{L}", w={T1}, r={L})
        A.salu(f"s_lshl_b32 s3, s{sW3}, 4")
        A.salu(f"s_add_u32 s3, s3, {8*q}")
        V(f"v_add_u32 v{T1}, s3, v{T1}", w={T1}, r={T1})
        V(f"v_mul_u32_u24 v{T1}, 1152, v{T1}", w={T1}, r={T1})
        V(f"v_and_b32 v{T2}, 7, v{L}", w={T2}, r={L})
        V(f"v_lshrrev_b32 v{T3}, 4, v{L}", w={T3}, r={L})
        V(f"v_xor_b32 v{T2}, v{T2}, v{T3}", w={T2}, r={T2, T3})
        if q: V(f"v_xor_b32 v{T2}, 4, v{T2}", w={T2}, r={T2})
        V(f"v_lshl_add_u32 v{XO+q}, v{T2}, 4, v{T1}", w={XO+q}, r={T2, T1})
        V(f"v_lshrrev_b32 v{T3}, 5, v{L}", w={T3}, r={L})
        A.salu(f"s_lshl_b32 s3, s{sW3}, 2")
        A.salu(f"s_add_u32 s3, s3, {2*q}")
        V(f"v_add_u32 v{T1}, s3, v{T3}", w={T1}, r={T3})
        V(f"v_lshlrev_b32 v{T1}, 13, v{T1}", w={T1}, r={T1})
        V(f"v_or_b32 v{T3}, {2*q}, v{T3}", w={T3}, r={T3})
        V(f"v_lshlrev_b32 v{T3}, 2, v{T3}", w={T3}, r={T3})
        V(f"v_and_b32 v{T2}, 31, v{L}", w={T2}, r={L})
        V(f"v_xor_b32 v{T2}, v{T2}, v{T3}", w={T2}, r={T2, T3})
        V(f"v_lshl_add_u32 v{WO+q}, v{T2}, 4, v{T1}", w={WO+q}, r={T2, T1})
        V(f"v_lshrrev_b32 v{T3}, 4, v{L}", w={T3}, r={L})
        A.salu(f"s_lshl_b32 s3, s{sW}, 3")
        A.salu(f"s_add_u32 s3, s3, {4*q}")
        V(f"v_add_u32 v{T1}, s3, v{T3}", w={T1}, r={T3})
        V(f"v_lshlrev_b32 v{T1}, 8, v{T1}", w={T1}, r={T1})
        A.salu(f"s_and_b32 s3, s{sW}, 1")
        A.salu(f"s_lshl_b32 s3, s3, 1")
        A.salu(f"s_or_b32 s3, s3, {q}")
        V(f"v_lshlrev_b32 v{T3}, 2, v{T3}", w={T3}, r={T3})
        V(f"v_or_b32 v{T3}, s3, v{T3}", w={T3}, r={T3})
        V(f"v_and_b32 v{T2}, 15, v{L}", w={T2}, r={L})
        V(f"v_xor_b32 v{T2}, v{T2}, v{T3}", w={T2}, r={T2, T3})
        V(f"v_lshl_add_u32 v{KO+q}, v{T2}, 4, v{T1}", w={KO+q}, r={T2, T1})
    V(f"v_lshrrev_b32 v{T1}, 5, v{L}", w={T1}, r={L})
    V(f"v_bfe_u32 v{T2}, v{L}, 4, 1", w={T2}, r={L})
    V(f"v_bfe_u32 v{T3}, v{L}, 2, 2", w={T3}, r={L})
    V(f"v_and_b32 v{T4}, 3, v{L}", w={T4}, r={L})
    V(f"v_and_b32 v{T5}, 31, v{L}", w={T5}, r={L})
    V(f"v_lshl_add_u32 v{T6}, v{T1}, 3, v{T3}", w={T6}, r={T1, T3})
    V(f"v_lshlrev_b32 v{T6}, 9, v{T6}", w={T6}, r={T6})
    V(f"v_lshlrev_b32 v{T7}, 2, v{T3}", w={T7}, r={T3})
    V(f"v_lshl_add_u32 v{T7}, v{T2}, 1, v{T7}", w={T7}, r={T2, T7})
    V(f"v_and_b32 v{BW}, 1, v{T4}", w={BW}, r={T4})
    V(f"v_add_u32 v{T7}, v{T7}, v{BW}", w={T7}, r={T7, BW})
    A.salu(f"s_lshl_b32 s3, s{sHL}, 4")
    V(f"v_add_u32 v{T7}, s3, v{T7}", w={T7}, r={T7})
    V(f"v_lshl_add_u32 v{T6}, v{T7}, 4, v{T6}", w={T6}, r={T7, T6})
    V(f"v_lshrrev_b32 v{T7}, 1, v{T4}", w={T7}, r={T4})
    V(f"v_lshl_add_u32 v{BW}, v{T7}, 3, v{T6}", w={BW}, r={T7, T6})
    A.salu(f"s_lshl_b32 s3, s{sRT}, 5")
    V(f"v_add_u32 v{T6}, s3, v{T5}", w={T6}, r={T5})
    V(f"v_lshlrev_b32 v{T6}, 7, v{T6}", w={T6}, r={T6})
    V(f"v_bfe_u32 v{T7}, v{T5}, 1, 3", w={T7}, r={T5})
    V(f"v_xor_b32 v{T7}, v{T7}, v{T1}", w={T7}, r={T7, T1})
    V(f"v_lshl_add_u32 v{BX}, v{T7}, 4, v{T6}", w={BX}, r={T7, T6})
    V(f"v_lshlrev_b32 v{T6}, 2, v{T4}", w={T6}, r={T4})
    V(f"v_or_b32 v{T6}, v{T6}, v{T3}", w={T6}, r={T6, T3})
    V(f"v_xor_b32 v{T6}, v{T6}, v{T1}", w={T6}, r={T6, T1})
    V(f"v_lshlrev_b32 v{T7}, 8, v{T5}", w={T7}, r={T5})
    V(f"v_lshl_add_u32 v{BK}, v{T6}, 4, v{T7}", w={BK}, r={T6, T7})
    V(f"v_lshl_add_u32 v{T6}, v{T1}, 2, v{T3}", w={T6}, r={T1, T3})
    V(f"v_lshlrev_b32 v{T6}, 8, v{T6}", w={T6}, r={T6})
    V(f"v_lshrrev_b32 v{T7}, 1, v{T4}", w={T7}, r={T4})
    V(f"v_lshl_add_u32 v{T7}, v{T2}, 1, v{T7}", w={T7}, r={T2, T7})
    V(f"v_xor_b32 v{T7}, v{T7}, v{T1}", w={T7}, r={T7, T1})
    V(f"v_lshl_or_b32 v{T7}, v{T3}, 2, v{T7}", w={T7}, r={T3, T7})
    V(f"v_lshl_add_u32 v{T6}, v{T7}, 4, v{T6}", w={T6}, r={T7, T6})
    V(f"v_and_b32 v{T7}, 1, v{T4}", w={T7}, r={T4})
    V(f"v_lshl_add_u32 v{BV}, v{T7}, 3, v{T6}", w={BV}, r={T7, T6})
    V(f"v_lshlrev_b32 v{T6}, 17, v{T2}", w={T6}, r={T2})
    V(f"v_lshl_add_u32 v{T6}, v{T1}, 8, v{T6}", w={T6}, r={T1, T6})
    V(f"v_and_b32 v{T7}, 15, v{L}", w={T7}, r={L})
    V(f"v_lshl_add_u32 v{OST}, v{T7}, 4, v{T6}", w={OST}, r={T7, T6})
    V(f"v_mov_b32 v{LSUM}, 0", w={LSUM})
    A.waitcnt(lgkm=0)
    A.salu(f"s_cmp_eq_u32 s{sBLK}, 0")
    for k in range(8):
        A.salu(f"s_cselect_b32 s{8+k}, s{8+k}, s{16+k}")
    srd(A, SX, 8, 8 * 112 * 576 * 2)
    srd(A, SK, 10, 8 * 16 * 512 * 128 * 2)
    srd(A, SV, 12, 8 * 16 * 512 * 128 * 2)
    srd(A, SW_, 14, 576 * 4096 * 2)
    srd(A, SO, 24, 2 * O_BLK)
    A.salu(f"s_mul_i32 s{sOB}, s{sBLK}, {O_BLK}")
    A.salu(f"s_mul_i32 s3, s{sB}, 7")
    A.salu(f"s_lshl_b32 s{sT}, s{sRT}, 1")
    A.salu(f"s_add_u32 s3, s3, s{sT}")
    A.salu(f"s_lshl_b32 s3, s3, 17")
    A.salu(f"s_add_u32 s{sOB}, s{sOB}, s3")
    A.salu(f"s_lshl_b32 s3, s{sKVH}, 1")
    A.salu(f"s_add_u32 s3, s3, s{sHL}")
    A.salu(f"s_lshl_b32 s3, s3, 12")
    A.salu(f"s_add_u32 s{sOB}, s{sOB}, s3")
    if OPT["prio"]:
        A.salu(f"s_cmp_ge_u32 s{sW}, 4")
        A.salu("s_cbranch_scc0 K1_PRIO_DONE" if OPT["prio"] == 1 else "s_cbranch_scc1 K1_PRIO_DONE")
        A.salu("s_setprio 1")
        A.label("K1_PRIO_DONE")

    NTT = {0: "", 1: " nt", 2: " sc1", 3: " sc0 sc1", 4: " sc1 nt"}[OPT["ntt"]]
    qunits = []
    for s_ in range(9):
        qunits += [("X", s_), ("W", 2 * s_), ("W", 2 * s_ + 1)]
    kvunits = [("K", 0)]
    for h in range(7):
        kvunits += [("K", h + 1), ("V", h)]
    kvunits += [("V", 7)]
    units = qunits + kvunits
    UK = {idx: 27 + i for i, (t_, idx) in enumerate(kvunits) if t_ == "K"}
    UV = {idx: 27 + i for i, (t_, idx) in enumerate(kvunits) if t_ == "V"}
    stage_units = [list(range(3 * s_, 3 * s_ + 3)) for s_ in range(9)]
    unit_last_vm = {}
    unit_slot = {}
    free = list(range(NSLOT))
    nq = [0]; nkv = [0]; xch = []
    KQ = FR
    DV = FR + 2
    NSTG = OPT["nstg"]
    STG = [S + 32, O, O + 32, P][:NSTG]

    def unit_info(u):
        typ, idx = units[u]
        if typ == "X": return sXB, idx * 128, SX, XO, 2 * 16 * 1152, "ntx"
        if typ == "W": return sWB, idx * 32 * 8192, SW_, WO, 2 * 4 * 8192, "ntw"
        if typ == "K": return sKVB, idx * 64 * 256, SK, KO, 4096, "ntkv"
        return sKVB, idx * 64 * 256, SV, KO, 4096, "ntkv"

    def sbase(base, const):
        if base == sKVB and OPT["rot"]:
            A.salu(f"s_add_u32 s{sT}, s{sMASK}, {const}")
            A.salu(f"s_and_b32 s{sT}, s{sT}, 0x1ffff")
            A.salu(f"s_or_b32 s{sT}, s{sT}, s{sKVB}")
        else:
            A.salu(f"s_add_u32 s{sT}, s{base}, {const}")

    def issue_unit_q(u, stage_reg=None):
        if stage_reg is None:
            slot = free.pop(0)
            unit_slot[u] = slot
        base, const, sr_, vo, delta, nto = unit_info(u)
        if vo == KO: vo = KQ
        nt = " nt" if OPT[nto] else ""
        for hv in range(4):
            A.salu(f"s_add_u32 s{sT}, s{base}, {const + delta * hv}")
            for q in range(2):
                if stage_reg is None:
                    A.salu(f"s_add_u32 m0, s{sWL4}, {slot * SLOT + hv * 4096 + q * 1024}", m0w=True)
                    k = A.vmem(f"buffer_load_dwordx4 v{vo+q}, s[{sr_}:{sr_+3}], s{sT} offen{nt} lds", kind="dma", r={vo + q}, m0r=True)
                else:
                    d = stage_reg + (hv * 2 + q) * 4
                    k = A.vmem(f"buffer_load_dwordx4 {vname(d,4)}, v{vo+q}, s[{sr_}:{sr_+3}], s{sT} offen{nt}", w=vr(d, 4), r={vo + q})
        unit_last_vm[u] = k

    def issue_unit_4(u):
        slot = free.pop(0)
        unit_slot[u] = slot
        base, const, sr_, vo, delta, nto = unit_info(u)
        nt = " nt" if OPT[nto] else ""
        sbase(base, const)
        if vo != KO: A.salu(f"s_add_u32 s{sT2}, s{base}, {const + 2 * delta}")
        for hv in range(2):
            for q in range(2):
                A.salu(f"s_add_u32 m0, s{sWL4}, {slot * SLOT + hv * 8192 + q * 1024}", m0w=True)
                if vo == KO:
                    va = (KQ if hv == 0 else KO) + q; so = sT
                else:
                    va = vo + q; so = sT if hv == 0 else sT2
                k = A.vmem(f"buffer_load_dwordx4 v{va}, s[{sr_}:{sr_+3}], s{so} offen{nt} lds", kind="dma", r={va}, m0r=True)
        unit_last_vm[u] = k

    def flood():
        if not OPT["l2pf"]: return
        V(f"v_lshrrev_b32 v{T1}, 2, v{L}", w={T1}, r={L})
        V(f"v_lshlrev_b32 v{T1}, 13, v{T1}", w={T1}, r={T1})
        V(f"v_and_b32 v{T2}, 3, v{L}", w={T2}, r={L})
        V(f"v_lshl_add_u32 v{T1}, v{T2}, 7, v{T1}", w={T1}, r={T2, T1})
        A.salu(f"s_lshl_b32 s3, s{sW}, 4")
        A.salu(f"s_min_u32 s3, s3, 56")
        A.salu(f"s_mul_i32 s{sT}, s{sB}, 72")
        A.salu(f"s_add_u32 s3, s3, s{sT}")
        A.salu(f"s_lshl_b32 s3, s3, 13")
        A.salu(f"s_add_u32 s3, s3, s{sWB}")
        A.vmem(f"buffer_load_dword v{T4}, v{T1}, s[{SW_}:{SW_+3}], s3 offen{NTT}", w={T4}, r={T1})
        V(f"v_lshlrev_b32 v{T2}, 7, v{L}", w={T2}, r={L})
        A.salu(f"s_and_b32 s3, s{sKVH}, 3")
        A.salu(f"s_mul_i32 s3, s3, 32256")
        A.salu(f"s_and_b32 s{sT}, s{sW}, 3")
        A.salu(f"s_lshl_b32 s{sT}, s{sT}, 13")
        A.salu(f"s_add_u32 s3, s3, s{sT}")
        A.salu(f"s_add_u32 s3, s3, s{sXB}")
        A.vmem(f"buffer_load_dword v{T5}, v{T2}, s[{SX}:{SX+3}], s3 offen{NTT}", w={T5}, r={T2})

    def dump_unit(u, stage_reg):
        slot = free.pop(0)
        unit_slot[u] = slot
        V(f"v_add_u32 v{DV+1}, {slot * SLOT}, v{DV}", w={DV + 1}, r={DV})
        for hv in range(4):
            for q in range(2):
                A.ds_write_b128(DV + 1, stage_reg + (hv * 2 + q) * 4, hv * 4096 + q * 1024)

    def dma_items(u):
        slot = free.pop(0)
        unit_slot[u] = slot
        base, const, sr_, vo, delta, nto = unit_info(u)
        nt = " nt" if OPT[nto] else ""
        def mk(q):
            def f():
                sbase(base, const)
                A.salu(f"s_add_u32 m0, s{sWL}, {slot * SLOT + q * 1024}", m0w=True)
                k = A.vmem(f"buffer_load_dwordx4 v{vo+q}, s[{sr_}:{sr_+3}], s{sT} offen{nt} lds", kind="dma", r={vo + q}, m0r=True)
                unit_last_vm[u] = k
            return f
        if not OPT["stag"]: return [mk(0), mk(1)]
        G = 8 // OPT["stag"]
        def cond(f, g):
            def h():
                lab = f"K1_D{nlab[0]}"; nlab[0] += 1
                A.salu(f"s_cmp_eq_u32 s{sT2}, {g}")
                A.salu(f"s_cbranch_scc0 {lab}")
                n0 = len(A.out)
                f()
                for o in A.out[n0:]: o.ws = 0
                A.label(lab)
                if g < G - 1: A.nvm -= 1
            return h
        return [cond(mk(q), g) for q in range(2) for g in range(G)]
    nlab = [0]

    NQ = OPT["nq"]
    PF = Prof(A, 0)
    PF.stamp("start")

    def addr_items(dst, base, slot, xors):
        it = [lambda: V(f"v_add_u32 v{dst[0]}, {slot * SLOT}, v{base}", w={dst[0]}, r={base})]
        for i, x in enumerate(xors):
            if i == 0: continue
            it.append(lambda i=i, x=x: V(f"v_xor_b32 v{dst[i]}, {x}, v{dst[0]}", w={dst[i]}, r={dst[0]}))
        return it

    A.salu(f"s_cmp_lt_u32 s{sW}, 4")
    A.salu("s_cbranch_scc1 K1_FAT")
    pf0 = PF.n
    staged = []
    if OPT["ld4"]:
        for q in range(2):
            V(f"v_subrev_u32 v{KQ+q}, {4*8*256}, v{KO+q}", w={KQ + q}, r={KO + q})
        NL = NSLOT - NQ
        def refill(s):
            done_q = 3 * max(s, 0)
            while nq[0] < 27 and nq[0] - done_q < NQ and free:
                issue_unit_4(nq[0]); nq[0] += 1
        def kv_issue():
            if nkv[0] < NL:
                if free:
                    issue_unit_4(27 + nkv[0]); nkv[0] += 1
        LW, LX = FR + 4, FR + 5
        nroll = [NQ // 3]
        def lroll(n):
            n = min(n, 9 - nroll[0])
            if n <= 0 or OPT["roll"] != 2: return
            a = nroll[0]; nroll[0] += n
            if n < 8:
                m = (1 << (8 * n)) - 1
                A.salu(f"s_mov_b32 exec_lo, {m & 0xffffffff}")
                A.salu(f"s_mov_b32 exec_hi, {m >> 32}")
            A.salu(f"s_add_u32 s3, s8, {a * 64 * 8192}")
            A.vmem(f"buffer_load_dword v{FR+6}, v{LW}, s[{SW_}:{SW_+3}], s3 offen{NTT}", w={FR + 6}, r={LW})
            A.vmem(f"buffer_load_dword v{FR+7}, v{LX}, s[{SX}:{SX+3}], s9 offen offset:{a * 128}{NTT}", w={FR + 7}, r={LX})
            if n < 8: A.salu("s_mov_b64 exec, -1")
        refill(-1)
        for _ in range(OPT["kv0"]): kv_issue()
        if not OPT["roll"]: flood()
        if OPT["roll"] == 2:
            V(f"v_bfe_u32 v{T1}, v{L}, 2, 1", w={T1}, r={L})
            A.salu(f"s_lshl_b32 s3, s{sW3}, 1")
            V(f"v_add_u32 v{T1}, s3, v{T1}", w={T1}, r={T1})
            V(f"v_lshrrev_b32 v{T3}, 3, v{L}", w={T3}, r={L})
            V(f"v_lshl_add_u32 v{T1}, v{T3}, 6, v{T1}", w={T1}, r={T3, T1})
            V(f"v_lshlrev_b32 v{T1}, 13, v{T1}", w={T1}, r={T1})
            V(f"v_and_b32 v{T2}, 3, v{L}", w={T2}, r={L})
            V(f"v_lshl_add_u32 v{LW}, v{T2}, 7, v{T1}", w={LW}, r={T2, T1})
            V(f"v_and_b32 v{T1}, 7, v{L}", w={T1}, r={L})
            V(f"v_min_u32 v{T1}, 6, v{T1}", w={T1}, r={T1})
            A.salu(f"s_mul_i32 s3, s{sW3}, 7")
            V(f"v_add_u32 v{T1}, s3, v{T1}", w={T1}, r={T1})
            V(f"v_mul_u32_u24 v{T1}, 1152, v{T1}", w={T1}, r={T1})
            V(f"v_lshl_add_u32 v{LX}, v{T3}, 7, v{T1}", w={LX}, r={T3, T1})
            A.salu(f"s_lshl_b32 s8, s{sB}, 16")
            A.salu(f"s_add_u32 s8, s8, s{sWB}")
            A.salu(f"s_and_b32 s9, s{sKVH}, 3")
            A.salu(f"s_mul_i32 s9, s9, {28*1152}")
            A.salu(f"s_add_u32 s9, s9, s{sXB}")
            lroll(OPT["pflead"] - nroll[0])
        for s in range(9):
            A.wait_vm(max(unit_last_vm[u] for u in stage_units[s]))
            A.barrier()
            PF.stamp(f"q{s}")
            if s > 0:
                for u in stage_units[s - 1]: free.append(unit_slot[u])
            refill(s)
            lroll(OPT["pfrate"])
            if s == 8:
                xch.append(free.pop(0)); xch.append(free.pop(0))
            elif s >= OPT["kvs"]:
                for _ in range(OPT["kvrate"]): kv_issue()
            if nq[0] == 27 and nkv[0] >= NL:
                while free:
                    issue_unit_4(27 + nkv[0]); nkv[0] += 1
        A.salu("s_branch K1_ATT")
        ldr_vm = (A.nvm, A.vm_done)
    else:
        A.salu(f"s_cmp_ge_u32 s{sW}, 6")
        A.salu("s_cbranch_scc1 K1_KVL")
        pf0 = PF.n
        kvslots = [free.pop() for _ in range(NSLOT - NQ)]
        def refill(s):
            done_q = 3 * max(s, 0)
            while nq[0] < 27 and nq[0] - done_q < NQ and free:
                issue_unit_q(nq[0]); nq[0] += 1
        refill(-1)
        for s in range(9):
            A.wait_vm(max(unit_last_vm[u] for u in stage_units[s]))
            A.barrier()
            PF.stamp(f"q{s}")
            if s > 0:
                for u in stage_units[s - 1]: free.append(unit_slot[u])
            refill(s)
            if s == 8:
                xch.append(free.pop(0)); xch.append(free.pop(0))
        A.waitcnt(vm=0)
        A.vm_done = A.nvm
        A.salu("s_branch K1_ATT")
        A.label("K1_KVL")
        A.win = []
        A.salu("s_nop 4")
        PF.n = pf0; PF.names = PF.names[:pf0]
        for q in range(2):
            V(f"v_subrev_u32 v{KQ+q}, {6*8*256}, v{KO+q}", w={KQ + q}, r={KO + q})
        V(f"v_lshlrev_b32 v{DV}, 4, v{L}", w={DV}, r={L})
        V(f"v_add_u32 v{DV}, s{sWL4}, v{DV}", w={DV}, r={DV})
        late_free = free[:]; free[:] = kvslots
        NL = len(kvslots)
        TV = FR + 4
        V(f"v_lshlrev_b32 v{TV}, 7, v{L}", w={TV}, r={L})
        A.salu(f"s_lshl_b32 s3, s{sW3}, 13")
        V(f"v_add_u32 v{TV}, s3, v{TV}", w={TV}, r={TV})
        NT = OPT["kvt"]
        ntouch = [0]
        def kv_issue():
            i = nkv[0]
            if i < NL: issue_unit_q(27 + i)
            elif i < NL + NSTG: issue_unit_q(27 + i, STG[i - NL])
            else:
                if ntouch[0] < NT:
                    u = 27 + NL + NSTG + ntouch[0]
                    base, const, sr_, vo, delta, nto = unit_info(u)
                    A.salu(f"s_add_u32 s{sT}, s{base}, {const}")
                    A.vmem(f"buffer_load_dword v{TV+1}, v{TV}, s[{sr_}:{sr_+3}], s{sT} offen", w={TV + 1}, r={TV})
                    ntouch[0] += 1
                return
            nkv[0] += 1
        for _ in range(OPT["kv0"]): kv_issue()
        for s in range(9):
            A.barrier()
            PF.stamp(f"q{s}")
            for _ in range(OPT["kvrate"]): kv_issue()
        assert nkv[0] == NL + NSTG
        free[:] = late_free
        staged = [(27 + NL + i, STG[i]) for i in range(NSTG)]
        while staged and free:
            u, r_ = staged.pop(0)
            A.wait_vm(unit_last_vm[u])
            dump_unit(u, r_)
        A.waitcnt(vm=0)
        A.vm_done = A.nvm
        A.wait_ds_all()
        A.salu("s_branch K1_ATT")
    A.label("K1_FAT")
    A.win = []
    A.salu("s_nop 4")
    PF.n = pf0; PF.names = PF.names[:pf0]
    TW, TX = XO, XO + 1
    if OPT["roll"] == 2:
        pass
    elif OPT["ld4"] and not OPT["roll"]:
        V(f"v_lshlrev_b32 v{TW}, 7, v{L}", w={TW}, r={L})
        A.salu(f"s_lshl_b32 s3, s{sW}, 13")
        V(f"v_add_u32 v{TW}, s3, v{TW}", w={TW}, r={TW})
    else:
        TW, TX = XO, XO + 1
        V(f"v_bfe_u32 v{T1}, v{L}, 2, 1", w={T1}, r={L})
        A.salu(f"s_lshl_b32 s3, s{sW}, 1")
        V(f"v_add_u32 v{T1}, s3, v{T1}", w={T1}, r={T1})
        V(f"v_lshlrev_b32 v{T1}, 13, v{T1}", w={T1}, r={T1})
        V(f"v_and_b32 v{T2}, 3, v{L}", w={T2}, r={L})
        V(f"v_lshl_add_u32 v{TW}, v{T2}, 7, v{T1}", w={TW}, r={T2, T1})
        V(f"v_and_b32 v{T1}, 7, v{L}", w={T1}, r={L})
        V(f"v_min_u32 v{T1}, 6, v{T1}", w={T1}, r={T1})
        A.salu(f"s_mul_i32 s3, s{sW}, 7")
        V(f"v_add_u32 v{T1}, s3, v{T1}", w={T1}, r={T1})
        V(f"v_mul_u32_u24 v{TX}, 1152, v{T1}", w={TX}, r={T1})
        A.salu(f"s_lshl_b32 s8, s{sB}, 16")
        A.salu(f"s_add_u32 s8, s8, s{sWB}")
        A.salu(f"s_and_b32 s9, s{sKVH}, 3")
        A.salu(f"s_mul_i32 s9, s9, {28*1152}")
        A.salu(f"s_add_u32 s9, s9, s{sXB}")
    def touch(s_):
        if not OPT["l2pf"] or s_ > 8: return
        A.salu(f"s_add_u32 s3, s8, {s_ * 64 * 8192}")
        A.vmem(f"buffer_load_dword v{T4}, v{TW}, s[{SW_}:{SW_+3}], s3 offen{NTT}", w={T4}, r={TW})
        A.vmem(f"buffer_load_dword v{T5}, v{TX}, s[{SX}:{SX+3}], s9 offen offset:{s_ * 128}{NTT}", w={T5}, r={TX})
    if OPT["roll"] == 2:
        touch = lambda s_: None
    elif OPT["roll"]:
        touch1 = touch
        nroll = [2]
        def roll(n):
            for _ in range(n):
                touch1(nroll[0]); nroll[0] += 1
        roll(OPT["pflead"] - 2)
        touch = lambda s_: roll(OPT["pfrate"])
    elif OPT["ld4"]:
        flood()
        ntouch = [0]
        def touch(s_):
            s_ -= OPT["pflead"]
            if s_ < OPT["kvt0"]: return
            for _ in range(OPT["kvtr"]):
                if ntouch[0] >= OPT["kvt"]: return
                ua = 27 + NL + 1 + ntouch[0]
                ia = unit_info(ua); ib = unit_info(ua + 1)
                A.salu(f"s_cmp_lt_u32 s{sW}, 2")
                A.salu(f"s_mov_b32 s3, {ib[1] - 16384}")
                A.salu(f"s_cselect_b32 s3, {ia[1]}, s3")
                A.salu(f"s_cselect_b32 s60, s{ia[2]}, s{ib[2]}")
                A.salu(f"s_cselect_b32 s61, s{ia[2]+1}, s{ib[2]+1}")
                A.salu(f"s_mov_b32 s62, s{ia[2]+2}")
                A.salu(f"s_mov_b32 s63, s{ia[2]+3}")
                A.salu(f"s_add_u32 s3, s3, s{sKVB}")
                A.vmem(f"buffer_load_dword v{T4}, v{TW}, s[60:63], s3 offen", w={T4}, r={TW})
                ntouch[0] += 2
    if not OPT["ld4"]:
        for s_ in range(2, OPT["pflead"]): touch(s_)
    if OPT["tlbw"]:
        A.salu("s_load_dwordx2 s[16:17], s[0:1], 32")
        A.salu("s_load_dwordx2 s[18:19], s[0:1], 72")
        A.salu("s_load_dwordx2 s[20:21], s[0:1], 80")
        D = NEGM
        V(f"v_lshlrev_b32 v{T1}, 12, v{L}", w={T1}, r={L})
        V(f"v_and_b32 v{T1}, 0x1ffff, v{T1}", w={T1}, r={T1})
        A.vmem(f"buffer_load_dword v{D}, v{T1}, s[{SV}:{SV+3}], s{sKVB} offen", w={D}, r={T1})
        if OPT["tlbw"] > 1:
            A.vmem(f"buffer_load_dword v{D+1}, v{T1}, s[{SK}:{SK+3}], s{sKVB} offen", w={D + 1}, r={T1})
        V(f"v_min_u32 v{T2}, 6, v{L}", w={T2}, r={L})
        V(f"v_lshlrev_b32 v{T2}, 17, v{T2}", w={T2}, r={T2})
        A.salu(f"s_mul_i32 s3, s{sBLK}, {O_BLK}")
        A.salu(f"s_mul_i32 s{sT}, s{sB}, {7*131072}")
        A.salu(f"s_add_u32 s3, s3, s{sT}")
        if OPT["fuse"]:
            A.salu(f"s_lshl_b32 s{sT}, s{sKVH}, 13")
            A.salu(f"s_add_u32 s3, s3, s{sT}")
            A.vmem(f"buffer_store_dword v{T2}, v{T2}, s[{SO}:{SO+3}], s3 offen sc1", r={T2}, storedata={T2})
        else:
            A.vmem(f"buffer_load_dword v{D+2}, v{T2}, s[{SO}:{SO+3}], s3 offen", w={D + 2}, r={T2})
        V(f"v_lshlrev_b32 v{T3}, 16, v{L}", w={T3}, r={L})
        A.salu("s_waitcnt lgkmcnt(0)")
        A.salu(f"s_cmp_eq_u32 s{sBLK}, 0")
        A.salu("s_cselect_b32 s60, s16, s18")
        A.salu("s_cselect_b32 s61, s17, s19")
        A.salu("s_and_b32 s61, s61, 0xffff")
        A.salu(f"s_mov_b32 s62, {4096*576*2}")
        A.salu("s_mov_b32 s63, 0x00020000")
        A.salu(f"s_mov_b32 s3, {8*65536}")
        A.vmem(f"buffer_load_dword v{D+3}, v{T3}, s[60:63], 0 offen", w={D + 3}, r={T3})
        A.vmem(f"buffer_load_dword v{D+4}, v{T3}, s[60:63], s3 offen", w={D + 4}, r={T3})
        A.salu("s_mov_b32 s16, s20")
        A.salu("s_and_b32 s17, s21, 0xffff")
        A.salu(f"s_mov_b32 s18, {896*1152*2}")
        A.salu("s_mov_b32 s19, 0x00020000")
        A.vmem(f"buffer_load_dword v{D+5}, v{T3}, s[16:19], 0 offen", w={D + 5}, r={T3})
    QA = [S, O]
    FBW = [P, QB]; FBX = [P + 16, QB + 16]
    AW = [FR, FR + 4]; AX = FR + 8
    def qaddr(s):
        u0 = 3 * s
        return (addr_items([AX + i for i in range(4)], BX, unit_slot[u0], [0, 32, 64, 96]) +
                addr_items([AW[0] + i for i in range(4)], BW, unit_slot[u0 + 1], [0, 64, 128, 192]) +
                addr_items([AW[1] + i for i in range(4)], BW, unit_slot[u0 + 2], [0, 64, 128, 192]))
    def qread_items(ks):
        it = [lambda: A.ds_read_b128(FBX[ks % 2], AX + ks), lambda: A.ds_read_b128(FBX[ks % 2] + 4, AX + ks, 4096)]
        for t in range(4):
            for j in range(2):
                it.append(lambda t=t, j=j: A.ds_read_tr(FBW[ks % 2] + 4 * t + 2 * j, AW[ks // 2] + t, ((ks % 2) * 16 + 4 * j) * 512))
        return it
    def qreads(ks):
        for it in qread_items(ks): last = it()
        return last
    for it in qaddr(0): it()
    A.barrier()
    PF.stamp("q0")
    pend = qreads(0)
    touch(OPT["pflead"])
    QI = OPT["qi"]
    for s in range(9):
        for ks in range(4):
            A.wait_ds(pend)
            rq = []
            if ks < 3:
                if QI: rq = qread_items(ks + 1)
                else: pend = qreads(ks + 1)
            nxt = qaddr(s + 1) if (ks == 3 and s < 8) else []
            m = 0
            for t in range(4):
                for r2 in range(2):
                    A.mfma(QA[r2] + 16 * t, FBW[ks % 2] + 4 * t, FBX[ks % 2] + 4 * r2, "zero" if (s == 0 and ks == 0) else None)
                    if nxt:
                        if m < 2:
                            for it in nxt[6 * m: 6 * m + 6]: it()
                        if m == 1:
                            A.barrier()
                            PF.stamp(f"q{s+1}")
                            if QI: rq = qread_items(0)
                            else: pend = qreads(0)
                        if m == 3: touch(s + 1 + OPT["pflead"])
                    for _ in range(QI):
                        if rq: pend = rq.pop(0)()
                    m += 1
            assert not rq
    A.salu(f"s_lshr_b32 s3, s{sW}, 1")
    A.salu(f"s_cmp_eq_u32 s3, 0")
    A.salu(f"s_cselect_b32 s3, {xch[0]}, {xch[1]}")
    A.salu(f"s_lshl_b32 s3, s3, 14")
    A.salu(f"s_and_b32 s{sT}, s{sW}, 1")
    A.salu(f"s_lshl_b32 s{sT}, s{sT}, 13")
    A.salu(f"s_add_u32 s3, s3, s{sT}")
    V(f"v_lshlrev_b32 v{T6}, 4, v{L}", w={T6}, r={L})
    V(f"v_add_u32 v{T6}, s3, v{T6}", w={T6}, r={T6})
    for i in range(64):
        V(f"v_mul_f32 v{O+i}, s{sC}, v{O+i}", w={O + i}, r={O + i})
    for q in range(32):
        V(f"v_cvt_pk_bf16_f32 v{P+q}, v{O+2*q}, v{O+2*q+1}", w={P + q}, r={O + 2 * q, O + 2 * q + 1})
        if q % 4 == 3:
            A.ds_write_b128(T6, P + q - 3, (q // 4) * 1024)
    for i in range(64):
        V(f"v_mul_f32 v{S+i}, s{sC}, v{S+i}", w={S + i}, r={S + i})
    for q in range(32):
        V(f"v_cvt_pk_bf16_f32 v{QB+q}, v{S+2*q}, v{S+2*q+1}", w={QB + q}, r={S + 2 * q, S + 2 * q + 1})
    A.wait_ds_all()
    A.waitcnt(vm=0)
    A.vm_done = A.nvm
    if OPT["ld4"]:
        A.nvm, A.vm_done = ldr_vm
    A.label("K1_ATT")
    A.win = []
    A.salu("s_nop 4")
    if OPT["stag"]:
        A.salu(f"s_lshr_b32 s{sT2}, s{sW}, {OPT['stag'] - 1}")

    SETA = [AD + i for i in range(8)]
    SETB = [XO, XO + 1, WO, WO + 1, BW, BX, T4, T5]
    kx = [32 * ks for ks in range(8)]
    vx = [(t << 6) ^ (32 * jj) for t in range(4) for jj in range(2)]
    SB = lambda h: S + 32 * (h % 2)
    PB = lambda h: P + 16 * (h % 2)
    phases = [("qk", 0)] + [x for h in range(7) for x in (("qk", h + 1), ("pv", h))] + [("pv", 7)]
    pset = {}
    for ph in phases:
        pset[ph] = SETA if ph[0] == "qk" else SETB
    pset[("qk", 0)] = SETB; pset[("pv", 7)] = SETA
    punit = lambda ph: UK[ph[1]] if ph[0] == "qk" else UV[ph[1]]
    def paddr(ph):
        u = punit(ph)
        return addr_items(pset[ph], BK if ph[0] == "qk" else BV, unit_slot[u], kx if ph[0] == "qk" else vx)
    mf = [(ph, i) for ph in phases for i in range(16)]
    syncJ = list(range(0, 6, OPT["bstep"]))
    if OPT["fuse"]:
        syncJ.append(6)
        K2 = K2Fused(A, sW, SO, QB)
    sync_pos = [phases.index(("pv", j)) * 16 + 12 for j in syncJ]
    first_read = {}
    for n, (ph, i) in enumerate(mf):
        first_read.setdefault(punit(ph), max(n - 4, -1))
    last_read = {}
    for n, (ph, i) in enumerate(mf):
        last_read[punit(ph)] = n - 4
    def publish_set(pos_from, pos_to):
        return [u for u, fr in first_read.items() if pos_from <= fr < pos_to]
    freed = set()
    dmaq = []
    def refill_att():
        while nkv[0] < 16 and free:
            dmaq.extend(dma_items(27 + nkv[0])); nkv[0] += 1

    pub = publish_set(-1, sync_pos[0])
    A.wait_vm(max(unit_last_vm[u] for u in pub))
    A.barrier()
    PF.stamp("a0")
    for u in stage_units[8]: free.append(unit_slot[u])
    A.salu(f"s_cmp_lt_u32 s{sW}, 4")
    A.salu(f"s_cbranch_scc1 K1_QGOT")
    if staged:
        A.salu(f"s_cmp_lt_u32 s{sW}, 6")
        A.salu(f"s_cbranch_scc1 K1_NODUMP")
        while staged:
            u, r_ = staged.pop(0)
            dump_unit(u, r_)
        A.label("K1_NODUMP")
    refill_att()
    A.salu(f"s_bfe_u32 s3, s{sW}, 0x10001")
    A.salu(f"s_cmp_eq_u32 s3, 0")
    A.salu(f"s_cselect_b32 s3, {xch[0]}, {xch[1]}")
    A.salu(f"s_lshl_b32 s3, s3, 14")
    A.salu(f"s_and_b32 s{sT}, s{sW}, 1")
    A.salu(f"s_lshl_b32 s{sT}, s{sT}, 13")
    A.salu(f"s_add_u32 s3, s3, s{sT}")
    V(f"v_lshlrev_b32 v{T6}, 4, v{L}", w={T6}, r={L})
    V(f"v_add_u32 v{T6}, s3, v{T6}", w={T6}, r={T6})
    for q in range(8):
        A.ds_read_b128(QB + 4 * q, T6, q * 1024)
    A.wait_ds_all()
    A.label("K1_QGOT")
    A.salu("s_nop 1")
    for it in paddr(("qk", 0)) + paddr(("qk", 1)): it()

    TT = [T0, T1, T2, T3]
    def max_items(regs, first, final):
        it = []
        r = list(regs)
        if first:
            a = r[:3]; b = r[3:6]; r = r[6:]
            it.append(lambda a=a: V(f"v_max3_f32 v{MX}, v{a[0]}, v{a[1]}, v{a[2]}", w={MX}, r=set(a)))
            it.append(lambda b=b: V(f"v_max3_f32 v{MX2}, v{b[0]}, v{b[1]}, v{b[2]}", w={MX2}, r=set(b)))
        k = 0
        while r:
            a = r[:2]; r = r[2:]
            d = MX if k % 2 == 0 else MX2
            it.append(lambda a=a, d=d: V(f"v_max3_f32 v{d}, v{d}, v{a[0]}, v{a[1]}", w={d}, r={d} | set(a)))
            k += 1
        if final:
            it.append(lambda: V(f"v_max_f32 v{MX}, v{MX}, v{MX2}", w={MX}, r={MX, MX2}))
            it.append(lambda: V(f"v_mov_b32 v{MX2}, v{MX}", w={MX2}, r={MX}))
            it.append(lambda: V(f"v_permlane32_swap_b32 v{MX}, v{MX2}", w={MX, MX2}, r={MX, MX2}, kind="perm"))
            it.append(lambda: V(f"v_max_f32 v{MX}, v{MX}, v{MX2}", w={MX}, r={MX, MX2}))
        return it
    def sm_items(h, lo, hi, sub):
        it = []
        sb, pb = SB(h), PB(h)
        if sub:
            it.append(lambda: V(f"v_sub_f32 v{sb+lo}, v{sb+lo}, v{MX}", w={sb + lo}, r={sb + lo, MX}))
        for e in range(lo, hi + 2):
            if sub and e + 1 < hi:
                it.append(lambda e=e: V(f"v_sub_f32 v{sb+e+1}, v{sb+e+1}, v{MX}", w={sb + e + 1}, r={sb + e + 1, MX}))
            if e < hi:
                it.append(lambda e=e: V(f"v_exp_f32 v{TT[e%4]}, v{sb+e}", w={TT[e % 4]}, r={sb + e}, kind="trans"))
            if lo <= e - 1 < hi:
                p = e - 1; acc = SUMA if p % 2 == 0 else SUMB
                if p < 2:
                    it.append(lambda p=p, acc=acc: V(f"v_mov_b32 v{acc}, v{TT[p%4]}", w={acc}, r={TT[p % 4]}))
                else:
                    it.append(lambda p=p, acc=acc: V(f"v_add_f32 v{acc}, v{acc}, v{TT[p%4]}", w={acc}, r={acc, TT[p % 4]}))
            if e - 2 >= lo and (e - 2) % 2 == 0 and e - 1 < hi:
                p = e - 2
                it.append(lambda p=p: V(f"v_cvt_pk_bf16_f32 v{pb+p//2}, v{TT[p%4]}, v{TT[(p+1)%4]}", w={pb + p // 2}, r={TT[p % 4], TT[(p + 1) % 4]}))
        return it
    def negm_items():
        return [lambda i=i: V(f"v_sub_f32 v{NEGM+i}, 0, v{MX}", w={NEGM + i}, r={MX}) for i in range(16)]
    def check(h):
        V(f"v_add_f32 v{SUMA}, v{SUMA}, v{SUMB}", w={SUMA}, r={SUMA, SUMB})
        if h > 0:
            V(f"v_cmp_nge_f32 vcc, s{sTHR}, v{SUMA}", r={SUMA}, sw={"vcc"})
            A.salu("s_nop 1")
            A.salu(f"s_cbranch_vccnz K1_SLOW{h}")
            A.label(f"K1_BACK{h}")
        V(f"v_add_f32 v{LSUM}, v{LSUM}, v{SUMA}", w={LSUM}, r={LSUM, SUMA})

    def side_for(ph):
        kind, h = ph
        if ph == ("qk", 0):
            return [], []
        if kind == "qk":
            hh = h - 1
            if hh == 0:
                main = max_items([SB(0) + i for i in range(32)], True, True) + sm_items(0, 0, 32, True)
            else:
                main = sm_items(hh, 16, 32, hh == 1)
            return main, paddr(("pv", hh))
        if h == 7: return [], []
        if h == 6:
            return sm_items(7, 0, 32, False), paddr(("pv", 7)) + (K2.addr_items() if OPT["fuse"] and OPT["fuse"] != 6 else [])
        main = sm_items(h + 1, 0, 16, h == 0)
        if h == 0: main = negm_items() + main
        return main, paddr(("qk", h + 2))

    rid = {}
    def issue_read(n):
        ph, i = mf[n]
        st = pset[ph]; fr = FR + 4 * (n % 4)
        if ph[0] == "qk":
            rid[n] = A.ds_read_b128(fr, st[i % 8], (i // 8) * 8192)
        else:
            g, t = i // 4, i % 4
            A.ds_read_tr(fr, st[2 * t], g * 4096)
            rid[n] = A.ds_read_tr(fr + 2, st[2 * t + 1], g * 4096 + 2048)
    for n in range(4): issue_read(n)
    gap = 0
    for n, (ph, i) in enumerate(mf):
        kind, h = ph
        if i == 0:
            main, adr = side_for(ph)
            plan = [[] for _ in range(16)]
            for k, it in enumerate(adr): plan[k * 12 // max(len(adr), 1)].append(it)
            s0 = 1 if ph == ("qk", 1) else 0
            for k, it in enumerate(main): plan[s0 + k * (16 - s0) // len(main)].append(it)
        A.wait_ds(rid[n])
        fr = FR + 4 * (n % 4)
        if kind == "qk":
            kt, ks = i // 8, i % 8
            c = None
            if ks == 0: c = "zero" if h <= 1 else NEGM
            A.mfma(SB(h) + 16 * kt, fr, QB + 4 * ks, c)
        else:
            g, t = i // 4, i % 4
            A.mfma(O + 16 * t, fr, PB(h) + 4 * g, "zero" if (h == 0 and g == 0) else None)
        if n in sync_pos:
            k = sync_pos.index(n)
            pub = publish_set(n, sync_pos[k + 1] if k + 1 < len(sync_pos) else 10**9)
            while dmaq: dmaq.pop(0)()
            A.wait_ds_all()
            A.wait_vm(max(unit_last_vm[u] for u in pub))
            A.barrier()
            PF.stamp(f"x{h}")
            if k == 0: free.extend(xch)
            for u, lr in last_read.items():
                if lr < n and u not in freed:
                    freed.add(u); free.append(unit_slot[u])
            refill_att()
            if OPT["fuse"] == 6:
                if h == 1: K2.loads()
                if h == 2: K2.scalars()
                if h == 3: K2.addr6()
                if h >= OPT["wo0"]:
                    assert nkv[0] == 16
                    while free and len(K2.slots6) < 8:
                        j = len(K2.slots6); K2.slots6.append(free.pop(0))
                        if h < 6 or OPT["wo6"]:
                            dmaq.extend([lambda j=j, q=q: K2.wo_piece(j >> 1, (j & 1) * 2 + q) for q in range(2)])
                            K2.done6 = j + 1
            elif OPT["fuse"]:
                if h == 4: K2.loads()
                if h == 5: K2.scalars()
                if h == 6:
                    assert len(free) >= 8, free
                    its = K2.wo_items(free[:8])
                    K2.mslot = free[8]
                    if OPT["fuse"] < 3: dmaq.extend(its)
            if OPT["wopf"] and h == OPT["wopf"] - 1:
                A.salu("s_load_dwordx2 s[60:61], s[0:1], 32")
                A.salu("s_load_dwordx2 s[62:63], s[0:1], 72")
                if OPT["xm"]:
                    A.salu(f"s_lshr_b32 s3, s2, 3")
                    A.salu(f"s_lshl_b32 s3, s3, 3")
                    A.salu(f"s_add_u32 s3, s3, s{sW}")
                    A.salu(f"s_mul_i32 s3, s3, {16*1152}")
                    A.salu(f"s_and_b32 s{sT}, s2, 1")
                    A.salu(f"s_lshl_b32 s{sT}, s{sT}, 9")
                    A.salu(f"s_add_u32 s3, s3, s{sT}")
                    V(f"v_mbcnt_lo_u32_b32 v{T6}, -1, 0", w={T6})
                    V(f"v_mbcnt_hi_u32_b32 v{T6}, -1, v{T6}", w={T6}, r={T6})
                    V(f"v_lshrrev_b32 v{T7}, 2, v{T6}", w={T7}, r={T6})
                    V(f"v_mul_u32_u24 v{T7}, 1152, v{T7}", w={T7}, r={T7})
                    V(f"v_and_b32 v{T6}, 3, v{T6}", w={T6}, r={T6})
                    V(f"v_lshl_add_u32 v{T6}, v{T6}, 7, v{T7}", w={T6}, r={T6, T7})
                else:
                    if OPT["wox"]:
                        A.salu(f"s_lshr_b32 s3, s2, 5")
                        A.salu(f"s_lshl_b32 s3, s3, 4")
                        A.salu(f"s_bfe_u32 s{sT}, s2, 0x20003")
                        A.salu(f"s_add_u32 s3, s3, s{sT}")
                    else:
                        A.salu(f"s_lshl_b32 s3, s{sB}, 4")
                        A.salu(f"s_add_u32 s3, s3, s{sKVH}")
                    A.salu(f"s_mul_i32 s3, s3, 288")
                    A.salu(f"s_lshl_b32 s{sT}, s{sW}, 6")
                    A.salu(f"s_min_u32 s{sT}, s{sT}, 224")
                    A.salu(f"s_add_u32 s3, s3, s{sT}")
                    A.salu(f"s_lshl_b32 s3, s3, 7")
                    V(f"v_mbcnt_lo_u32_b32 v{T7}, -1, 0", w={T7})
                    V(f"v_mbcnt_hi_u32_b32 v{T7}, -1, v{T7}", w={T7}, r={T7})
                    V(f"v_lshlrev_b32 v{T7}, 7, v{T7}", w={T7}, r={T7})
                A.salu("s_waitcnt lgkmcnt(0)")
                A.salu(f"s_cmp_eq_u32 s{sBLK}, 0")
                A.salu("s_cselect_b32 s60, s60, s62")
                A.salu("s_cselect_b32 s61, s61, s63")
                A.salu("s_and_b32 s61, s61, 0xffff")
                A.salu(f"s_mov_b32 s62, {4096*576*2}")
                A.salu("s_mov_b32 s63, 0x00020000")
                if OPT["xm"]:
                    A.salu("s_mov_b32 exec_lo, 0x88888888")
                    A.salu("s_mov_b32 exec_hi, 0x88888888")
                    A.vmem(f"buffer_load_dword v{T7}, v{T6}, s[60:63], s3 offen offset:128", w={T7}, r={T6})
                    A.salu("s_mov_b64 exec, -1")
                TA_ = T6 if OPT["xm"] else T7
                A.vmem(f"buffer_load_dword v{T7}, v{TA_}, s[60:63], s3 offen", w={T7}, r={TA_})
        if n + 4 < len(mf): issue_read(n + 4)
        for it in plan[i]: it()
        gap += 1
        if dmaq and gap >= OPT["dmagap"]:
            dmaq.pop(0)(); gap = 0
        if i == 15:
            if kind == "qk" and h >= 1: check(h - 1)
            if ph == ("pv", 6): check(7)
    assert not dmaq
    PF.stamp("pv7")
    V(f"v_mov_b32 v{T0}, v{LSUM}", w={T0}, r={LSUM})
    V(f"v_permlane32_swap_b32 v{T0}, v{LSUM}", w={T0, LSUM}, r={T0, LSUM}, kind="perm")
    V(f"v_add_f32 v{T0}, v{T0}, v{LSUM}", w={T0}, r={T0, LSUM})
    V(f"v_rcp_f32 v{T0}, v{T0}", w={T0}, r={T0}, kind="trans")
    A.salu(f"s_cmp_eq_u32 s{sRT}, 3")
    A.salu("s_cbranch_scc0 K1_NOMASK")
    A.salu("s_mov_b32 exec_lo, 0xffff")
    A.salu("s_mov_b32 exec_hi, 0xffff")
    A.label("K1_NOMASK")
    for f in range(8):
        b0 = O + 8 * f
        for i in range(8):
            V(f"v_mul_f32 v{b0+i}, v{T0}, v{b0+i}", w={b0 + i}, r={T0, b0 + i})
        d = P + 4 * f
        for q in range(4):
            V(f"v_cvt_pk_bf16_f32 v{d+q}, v{b0+2*q}, v{b0+2*q+1}", w={d + q}, r={b0 + 2 * q, b0 + 2 * q + 1})
        A.vmem(f"buffer_store_dwordx4 {vname(d,4)}, v{OST}, s[{SO}:{SO+3}], s{sOB} offen offset:{f*512}{' sc1' if OPT['fuse'] else ' nt' if OPT['ntst'] else ''}", r=vr(d, 4) | {OST}, storedata=vr(d, 4))
    if OPT["fuse"]:
        K2.body(PF, sBLK, sB, sKVH)
    PF.dump(24, sW, 0)
    A.label("K1_END")
    A.salu("s_endpgm")
    for h in range(1, 8):
        A.label(f"K1_SLOW{h}")
        A.flush_hazards()
        sb = SB(h)
        for it in max_items([sb + i for i in range(32)], True, True): it()
        V(f"v_max_f32 v{MX}, 0, v{MX}", w={MX}, r={MX})
        V(f"v_sub_f32 v{MX2}, 0, v{MX}", w={MX2}, r={MX})
        V(f"v_exp_f32 v{MX2}, v{MX2}", w={MX2}, r={MX2}, kind="trans")
        for i in range(64):
            V(f"v_mul_f32 v{O+i}, v{MX2}, v{O+i}", w={O + i}, r={MX2, O + i})
        V(f"v_mul_f32 v{LSUM}, v{MX2}, v{LSUM}", w={LSUM}, r={MX2, LSUM})
        for i in range(16):
            V(f"v_sub_f32 v{NEGM+i}, v{NEGM+i}, v{MX}", w={NEGM + i}, r={NEGM + i, MX})
        if h < 7:
            s2 = SB(h + 1)
            for i in range(32):
                V(f"v_sub_f32 v{s2+i}, v{s2+i}, v{MX}", w={s2 + i}, r={s2 + i, MX})
        for it in sm_items(h, 0, 32, True): it()
        V(f"v_add_f32 v{SUMA}, v{SUMA}, v{SUMB}", w={SUMA}, r={SUMA, SUMB})
        A.flush_hazards()
        A.salu(f"s_branch K1_BACK{h}")

class K2Fused:
    def __init__(self, A, sW, SO, WOFF):
        self.A = A; self.sW = sW; self.SO = SO; self.WOFF = WOFF
        self.SWO, self.SOUT, self.SDBG = 28, 32, 20
        self.sBLK, self.sTT, self.sMT, self.sNT = 16, 17, 18, 19
        self.sWL, self.sWB, self.sO0, self.sO1, self.sT = 49, 50, 8, 9, 52
        self.sP0, self.sP1 = 10, 11
        self.last_vm = {}
    def loads(self):
        A = self.A
        A.salu("s_load_dwordx2 s[8:9], s[0:1], 32")
        A.salu("s_load_dwordx2 s[10:11], s[0:1], 72")
        A.salu("s_load_dwordx2 s[12:13], s[0:1], 80")
        A.salu("s_load_dwordx2 s[14:15], s[0:1], 88")
    def scalars(self):
        A = self.A; sW = self.sW
        sBLK, sTT, sMT, sNT = self.sBLK, self.sTT, self.sMT, self.sNT
        A.salu("s_waitcnt lgkmcnt(0)")
        if OPT["xm"]:
            A.salu("s_bitcmp1_b32 s2, 2")
            A.salu(f"s_cselect_b32 s{sBLK}, 1, 0")
            A.salu("s_cselect_b32 s8, s10, s8")
            A.salu("s_cselect_b32 s9, s11, s9")
            srd(A, self.SWO, 8, 4096 * 576 * 2)
            srd(A, self.SOUT, 12, 896 * 1152 * 2)
            srd(A, self.SDBG, 14, 256)
            A.salu("s_lshr_b32 s3, s2, 3")
            A.salu("s_and_b32 s12, s2, 1")
            A.salu(f"s_lshr_b32 s{sMT}, s3, 2")
            A.salu(f"s_and_b32 s{sNT}, s3, 3")
            A.salu("s_mul_i32 s13, s12, 5")
            A.salu(f"s_add_u32 s{sNT}, s{sNT}, s13")
            A.salu("s_lshl_b32 s13, s12, 2")
            A.salu("s_add_u32 s13, s13, s3")
            A.salu("s_sub_u32 s13, s13, 28")
            A.salu("s_cmp_ge_u32 s3, 28")
            A.salu(f"s_cselect_b32 s{sMT}, s13, s{sMT}")
            A.salu(f"s_cselect_b32 s{sNT}, 4, s{sNT}")
            A.salu(f"s_cmp_eq_u32 s{sMT}, 7")
            A.salu(f"s_cselect_b32 s{sTT}, 255, 0")
            A.salu(f"s_min_u32 s{sMT}, s{sMT}, 6")
            A.salu("s_bfe_u32 s13, s2, 0x10001")
            A.salu("s_mul_i32 s13, s13, 7")
            A.salu(f"s_add_u32 s{sMT}, s{sMT}, s13")
        else:
            A.salu("s_and_b32 s3, s2, 7")
            A.salu("s_lshl_b32 s3, s3, 5")
            A.salu(f"s_lshr_b32 s{sTT}, s2, 3")
            A.salu(f"s_add_u32 s{sTT}, s3, s{sTT}")
            A.salu(f"s_min_u32 s3, s{sTT}, 251")
            A.salu("s_cmp_ge_u32 s3, 126")
            A.salu(f"s_cselect_b32 s{sBLK}, 1, 0")
            A.salu("s_cselect_b32 s8, s10, s8")
            A.salu("s_cselect_b32 s9, s11, s9")
            srd(A, self.SWO, 8, 4096 * 576 * 2)
            srd(A, self.SOUT, 12, 896 * 1152 * 2)
            srd(A, self.SDBG, 14, 256)
            A.salu(f"s_mul_i32 s12, s{sBLK}, 126")
            A.salu("s_sub_u32 s3, s3, s12")
            A.salu("s_mul_i32 s12, s3, 57")
            A.salu(f"s_lshr_b32 s{sMT}, s12, 9")
            A.salu(f"s_mul_i32 s12, s{sMT}, 9")
            A.salu(f"s_sub_u32 s{sNT}, s3, s12")
        A.salu(f"s_mul_i32 s{self.sWB}, s{sW}, {(32 if OPT['fuse'] == 5 else 512)*1152}")
        A.salu(f"s_lshl_b32 s12, s{sNT}, 7")
        A.salu(f"s_add_u32 s{self.sWB}, s{self.sWB}, s12")
        A.salu(f"s_mul_i32 s{self.sO0}, s{sBLK}, {O_BLK}")
        A.salu(f"s_lshl_b32 s12, s{sMT}, 19")
        A.salu(f"s_add_u32 s{self.sO0}, s{self.sO0}, s12")
        A.salu(f"s_lshl_b32 s12, s{sW}, {10 if OPT['fuse'] == 5 else 14}")
        A.salu(f"s_add_u32 s{self.sO0}, s{self.sO0}, s12")
        A.salu(f"s_add_u32 s{self.sO1}, s{self.sO0}, {2*131072}")
        if OPT["ntf"]:
            A.salu(f"s_lshl_b32 s12, s{sBLK}, 6")
            A.salu("s_add_u32 s12, s12, 128")
        else:
            A.salu(f"s_lshl_b32 s12, s{sBLK}, 7")
            A.salu(f"s_lshr_b32 s13, s{sW}, 1")
            A.salu("s_lshl_b32 s13, s13, 2")
            A.salu("s_add_u32 s12, s12, s13")
        sh = 2 if OPT["ntf"] else 4
        A.salu(f"s_mul_i32 s13, s{sMT}, 148")
        A.salu(f"s_lshr_b32 s{self.sP0}, s13, 8")
        A.salu(f"s_lshl_b32 s{self.sP0}, s{self.sP0}, {sh}")
        A.salu(f"s_add_u32 s{self.sP0}, s{self.sP0}, s12")
        A.salu("s_add_u32 s13, s13, 111")
        A.salu(f"s_lshr_b32 s{self.sP1}, s13, 8")
        A.salu(f"s_lshl_b32 s{self.sP1}, s{self.sP1}, {sh}")
        A.salu(f"s_add_u32 s{self.sP1}, s{self.sP1}, s12")
    def addr_items(self):
        V = self.A.valu; W = self.WOFF
        L, T1, T2, T4 = W + 4, W + 5, W + 6, W + 7
        return [
            lambda: V(f"v_mbcnt_lo_u32_b32 v{L}, -1, 0", w={L}),
            lambda: V(f"v_mbcnt_hi_u32_b32 v{L}, -1, v{L}", w={L}, r={L}),
            lambda: V(f"v_lshrrev_b32 v{T1}, 3, v{L}", w={T1}, r={L}),
            lambda: V(f"v_mul_u32_u24 v{T1}, 1152, v{T1}", w={T1}, r={T1}),
            lambda: V(f"v_bfe_u32 v{T2}, v{L}, 4, 1", w={T2}, r={L}),
            lambda: V(f"v_lshlrev_b32 v{T2}, 2, v{T2}", w={T2}, r={T2}),
            lambda: V(f"v_and_b32 v{T4}, 7, v{L}", w={T4}, r={L}),
            lambda: V(f"v_xor_b32 v{T4}, v{T4}, v{T2}", w={T4}, r={T4, T2}),
            lambda: V(f"v_lshl_add_u32 v{W}, v{T4}, 4, v{T1}", w={W}, r={T4, T1}),
        ] + [lambda i=i: V(f"v_add_u32 v{W+i}, {9216*i}, v{W}", w={W + i}, r={W}) for i in range(1, 4)]
    def addr6(self):
        V = self.A.valu
        W, L, T1 = 6, 13, 12
        V(f"v_mbcnt_lo_u32_b32 v{L}, -1, 0", w={L})
        V(f"v_mbcnt_hi_u32_b32 v{L}, -1, v{L}", w={L}, r={L})
        V(f"v_lshrrev_b32 v{T1}, 3, v{L}", w={T1}, r={L})
        V(f"v_mul_u32_u24 v{T1}, 1152, v{T1}", w={T1}, r={T1})
        V(f"v_and_b32 v{W}, 7, v{L}", w={W}, r={L})
        V(f"v_bfe_u32 v{L}, v{L}, 4, 1", w={L}, r={L})
        V(f"v_lshlrev_b32 v{L}, 2, v{L}", w={L}, r={L})
        V(f"v_xor_b32 v{W}, v{W}, v{L}", w={W}, r={W, L})
        V(f"v_lshl_add_u32 v{W}, v{W}, 4, v{T1}", w={W}, r={W, T1})
        self.A.salu(f"s_lshl_b32 s{self.sWL}, s{self.sW}, 11")
        self.slots6 = []
    def wo_piece(self, u, i):
        A = self.A; W = self.WOFF; S = self.SWO
        if OPT["fuse"] == 6:
            A.salu(f"s_add_u32 s{self.sT}, s{self.sWB}, {u * 32 * 1152 + i * 9216}")
            A.salu(f"s_add_u32 m0, s{self.sWL}, {self.slots6[2 * (u % OPT['ring']) + (i >> 1)] * SLOT + (i & 1) * 1024}", m0w=True)
            return A.vmem(f"buffer_load_dwordx4 v6, s[{S}:{S+3}], s{self.sT} offen{' nt' if OPT['ntwo'] else ''} lds", kind="dma", r={6}, m0r=True)
        A.salu(f"s_add_u32 s{self.sT}, s{self.sWB}, {u * 32 * 1152}")
        A.salu(f"s_add_u32 m0, s{self.sWL}, {(u % 4) * 4096 + i * 1024}", m0w=True)
        A.vmem(f"buffer_load_dwordx4 v{W+i}, s[{S}:{S+3}], s{self.sT} offen{' nt' if OPT['ntwo'] else ''} lds", kind="dma", r={W + i}, m0r=True)
    def wo_items(self, slots):
        A = self.A
        tab = sum(s << (4 * w) for w, s in enumerate(slots))
        A.salu(f"s_lshl_b32 s3, s{self.sW}, 2")
        A.salu(f"s_lshr_b32 s3, {tab:#x}, s3")
        A.salu("s_and_b32 s3, s3, 15")
        A.salu(f"s_lshl_b32 s{self.sWL}, s3, 14")
        return [lambda u=u, i=i: self.wo_piece(u, i) for u in range(4) for i in range(4)]
    def dyn(self, PF, L, OOFF, BA, AF, OF, ACC):
        A = self.A; V = A.valu; sW = self.sW; SO = self.SO; SDBG = self.SDBG; W = self.WOFF; S = self.SWO
        T1, T2, T3, T4 = 1, 2, 3, 4
        PD = 8
        vPA, vMA, vT, vM = W + 4, W + 5, W + 6, W + 7
        sPM, sCNT, sDONE, sJ, sA, sB_ = 60, 62, 63, 12, 13, 14
        V(f"v_mov_b32 v{vPA}, s{self.sP1}", w={vPA})
        V(f"v_mov_b32 v{T4}, s{self.sP0}", w={T4})
        V(f"v_cmp_gt_u32 vcc, 16, v{L}", r={L}, sw={"vcc"})
        V(f"v_cndmask_b32 v{vPA}, v{vPA}, v{T4}, vcc", w={vPA}, r={vPA, T4}, sr={"vcc"})
        V(f"v_and_b32 v{T4}, 15, v{L}", w={T4}, r={L})
        V(f"v_add_u32 v{vPA}, v{T4}, v{vPA}", w={vPA}, r={vPA, T4})
        V(f"v_mov_b32 v{vMA}, {self.mslot * SLOT}", w={vMA})
        V(f"v_mov_b32 v{vT}, 0", w={vT})
        A.ds(f"ds_write_b32 v{vMA}, v{vT}", r={vMA, vT})
        A.salu(f"s_cmp_eq_u32 s{sW}, 0")
        A.salu(f"s_cselect_b32 s{sPM}, -1, 0")
        A.salu(f"s_mov_b32 s{sPM+1}, 0")
        A.salu(f"s_mov_b32 s{sCNT}, 0x40000")
        A.salu(f"s_mov_b32 s{sDONE}, 0")
        A.salu(f"s_mov_b32 s15, 0")
        A.waitcnt(vm=0, lgkm=0); A.vm_done = A.nvm; A.ds_done = A.nds
        PF.stamp("st")
        A.barrier()
        A.salu("s_cbranch_scc0 K1_NOFLAG")
        A.salu("s_mov_b64 exec, 1")
        A.salu(f"buffer_atomic_add v{T2}, v{T1}, s[{SDBG}:{SDBG+3}], 0 offen sc1")
        A.salu("s_mov_b64 exec, -1")
        A.label("K1_NOFLAG")
        A.salu(f"s_cmp_ge_u32 s{self.sTT}, 252")
        A.salu("s_cbranch_scc1 K1_END")
        def poll(r, counted=True):
            A.salu(f"s_mov_b64 exec, s[{sPM}:{sPM+1}]")
            txt = f"buffer_load_ubyte v{PD+r}, v{vPA}, s[{SDBG}:{SDBG+3}], 0 offen sc1"
            if counted: A.vmem(txt, w={PD + r}, r={vPA})
            else: A.salu(txt)
            A.salu("s_mov_b64 exec, -1")
        def consume(r):
            A.salu(f"s_mov_b64 exec, s[{sPM}:{sPM+1}]")
            V(f"v_cmp_ne_u32 vcc, 0, v{PD+r}", r={PD + r}, sw={"vcc"})
            A.salu("s_nop 1")
            A.salu(f"s_lshr_b32 s{sA}, vcc_lo, 16")
            A.salu(f"s_and_b32 s{sA}, s{sA}, vcc_lo")
            A.salu(f"s_or_b32 s15, s15, s{sA}")
            V(f"v_mov_b32 v{vT}, s15", w={vT})
            A.ds(f"ds_write_b32 v{vMA}, v{vT}", r={vMA, vT})
            A.salu("s_mov_b64 exec, -1")
        def pick(k):
            A.label(f"K1_PK{k}")
            A.ds(f"ds_read_b32 v{vM}, v{vMA}", w={vM}, r={vMA})
            A.waitcnt(lgkm=0); A.ds_done = A.nds
            A._emit(I(f"v_readfirstlane_b32 s{sA}, v{vM}", "rdlane", r={vM}, sw={sA}))
            A.salu(f"s_andn2_b32 s{sA}, s{sA}, s{sDONE}", sr={sA})
            A.salu(f"s_cbranch_scc1 K1_PG{k}")
            poll(k % 4, False)
            A.salu("s_waitcnt vmcnt(0)")
            consume(k % 4)
            A.salu(f"s_sleep {OPT['slp']}")
            A.salu(f"s_sub_u32 s{sCNT}, s{sCNT}, 1")
            A.salu(f"s_cmp_lg_u32 s{sCNT}, 0")
            A.salu(f"s_cbranch_scc1 K1_PK{k}")
            A.salu(f"s_mov_b32 s{sCNT}, 1")
            A.salu(f"s_andn2_b32 s{sA}, 0xffff, s{sDONE}")
            A.label(f"K1_PG{k}")
            A.salu(f"s_ff1_i32_b32 s{sJ}, s{sA}")
            A.salu(f"s_bitset1_b32 s{sDONE}, s{sJ}")
        NU = 16; DEPTH = 4
        last_vm = {}
        def issue(u):
            slot = u % DEPTH
            pick(u)
            if self.first: PF.stamp("go"); self.first = False
            if 4 <= u: poll(u % 4)
            A.salu(f"s_mul_i32 s{sA}, s{sJ}, {256*1152}")
            A.salu(f"s_add_u32 s{sA}, s{sA}, s{self.sWB}")
            for i in range(4):
                A.salu(f"s_add_u32 m0, s{self.sWL}, {slot * 4096 + i * 1024}", m0w=True)
                A.vmem(f"buffer_load_dwordx4 v{W+i}, s[{S}:{S+3}], s{sA} offen{' nt' if OPT['ntwo'] else ''} lds", kind="dma", r={W + i}, m0r=True)
            A.salu(f"s_lshl_b32 s{sJ}, s{sJ}, 13")
            A.salu(f"s_add_u32 s{sA}, s{sJ}, s{self.sO0}")
            A.salu(f"s_add_u32 s{sB_}, s{sJ}, s{self.sO1}")
            for ks in range(2):
                for tm in range(2):
                    d = OF + slot * 16 + (ks * 2 + tm) * 4
                    k = A.vmem(f"buffer_load_dwordx4 {vname(d,4)}, v{OOFF}, s[{SO}:{SO+3}], s{sA if tm == 0 else sB_} offen offset:{ks*512} sc1", w=vr(d, 4), r={OOFF})
            last_vm[u] = k
        def dsreads(u):
            slot = u % DEPTH
            ab = AF + (u % 2) * 16
            for ks in range(2):
                for tn in range(2):
                    for j in range(2):
                        k = A.ds_read_tr(ab + (ks * 2 + tn) * 4 + 2 * j, BA + tn, slot * 4096 + (16 * ks + 8 * j) * 128)
            return k
        self.first = True
        for u in range(DEPTH): issue(u)
        A.wait_vm(last_vm[0])
        pend = dsreads(0)
        for u in range(NU):
            A.wait_ds(pend)
            if u + 1 < NU:
                A.wait_vm(last_vm[u + 1])
                if u + 1 >= 4 and u + DEPTH < NU: consume((u + 1) % 4)
                pend = dsreads(u + 1)
            ab = AF + (u % 2) * 16
            ob = OF + (u % DEPTH) * 16
            for ks in range(2):
                for tn in range(2):
                    for tm in range(2):
                        c = "zero" if (u == 0 and ks == 0) else None
                        A.mfma(ACC + (tn * 2 + tm) * 16, ab + (ks * 2 + tn) * 4, ob + (ks * 2 + tm) * 4, c)
            if u + DEPTH < NU: issue(u + DEPTH)
            if u in (0, 7, 15): PF.stamp(f"u{u}")
    def body(self, PF, sBLK1, sB1, sKVH1):
        A = self.A; V = A.valu; sW = self.sW; SO = self.SO
        T0, T1, T2, T3, T4, T5, T6, T7 = 0, 1, 2, 3, 4, 5, 9, 8
        WOFF = self.WOFF; OOFF = 12; BA = 13; RED = 15; AF = 16; OF = 96; ACC = 160
        sBLK, sMT, sNT = self.sBLK, self.sMT, self.sNT
        SOUT, SDBG = self.SOUT, self.SDBG
        sWL, sO0, sO1, sT = self.sWL, self.sO0, self.sO1, self.sT
        L = T0
        A.salu("s_mov_b64 exec, -1")
        V(f"v_mbcnt_lo_u32_b32 v{L}, -1, 0", w={L})
        V(f"v_mbcnt_hi_u32_b32 v{L}, -1, v{L}", w={L}, r={L})
        V(f"v_bfe_u32 v{T2}, v{L}, 4, 1", w={T2}, r={L})
        V(f"v_lshrrev_b32 v{T1}, 5, v{L}", w={T1}, r={L})
        V(f"v_bfe_u32 v{T3}, v{L}, 2, 2", w={T3}, r={L})
        V(f"v_and_b32 v{T4}, 3, v{L}", w={T4}, r={L})
        V(f"v_lshlrev_b32 v{T6}, 17, v{T2}", w={T6}, r={T2})
        V(f"v_lshl_add_u32 v{T6}, v{T1}, 8, v{T6}", w={T6}, r={T1, T6})
        V(f"v_and_b32 v{T7}, 15, v{L}", w={T7}, r={L})
        V(f"v_lshl_add_u32 v{OOFF}, v{T7}, 4, v{T6}", w={OOFF}, r={T7, T6})
        V(f"v_lshl_add_u32 v{T6}, v{T1}, 2, v{T3}", w={T6}, r={T1, T3})
        V(f"v_lshlrev_b32 v{T6}, 7, v{T6}", w={T6}, r={T6})
        V(f"v_lshrrev_b32 v{T7}, 1, v{T4}", w={T7}, r={T4})
        V(f"v_lshl_add_u32 v{T7}, v{T2}, 1, v{T7}", w={T7}, r={T2, T7})
        V(f"v_lshrrev_b32 v{T5}, 1, v{T3}", w={T5}, r={T3})
        V(f"v_lshlrev_b32 v{T5}, 2, v{T5}", w={T5}, r={T5})
        V(f"v_xor_b32 v{T7}, v{T7}, v{T5}", w={T7}, r={T7, T5})
        V(f"v_lshl_add_u32 v{T6}, v{T7}, 4, v{T6}", w={T6}, r={T7, T6})
        V(f"v_and_b32 v{T7}, 1, v{T4}", w={T7}, r={T4})
        V(f"v_lshl_add_u32 v{T6}, v{T7}, 3, v{T6}", w={T6}, r={T7, T6})
        V(f"v_add_u32 v{BA}, s{sWL}, v{T6}", w={BA}, r={T6})
        V(f"v_xor_b32 v{BA+1}, 64, v{BA}", w={BA + 1}, r={BA})
        if OPT["fuse"] == 6:
            for q in range(1, 3):
                for tn in range(2):
                    V(f"v_add_u32 v{64+2*q+tn}, {q*65536}, v{BA+tn}", w={64 + 2 * q + tn}, r={BA + tn})
        V(f"v_lshlrev_b32 v{RED}, 4, v{L}", w={RED}, r={L})
        if OPT["ntf"]:
            A.salu(f"s_lshl_b32 s12, s{sBLK1}, 6")
            A.salu(f"s_lshl_b32 s13, s{sB1}, 2")
            A.salu("s_add_u32 s12, s12, s13")
            A.salu("s_mov_b32 s13, 1")
        else:
            A.salu(f"s_lshl_b32 s12, s{sBLK1}, 7")
            A.salu(f"s_lshl_b32 s13, s{sB1}, 4")
            A.salu("s_add_u32 s12, s12, s13")
            A.salu(f"s_and_b32 s13, s{sKVH1}, 12")
            A.salu("s_add_u32 s12, s12, s13")
            A.salu(f"s_and_b32 s13, s{sKVH1}, 3")
            A.salu("s_lshl_b32 s13, s13, 3")
            A.salu("s_lshl_b32 s13, 1, s13")
        V(f"v_mov_b32 v{T1}, s12", w={T1})
        V(f"v_mov_b32 v{T2}, s13", w={T2})
        if OPT["ntf"]:
            V(f"v_mov_b32 v{T3}, s{self.sP1}", w={T3})
            V(f"v_writelane_b32 v{T3}, s{self.sP0}, 0", w={T3}, r={T3})
            V(f"v_mov_b32 v{T5}, 1", w={T5})
            A.salu("s_mov_b32 s14, 1")
        elif OPT["fuse"] == 5:
            self.dyn(PF, L, OOFF, BA, AF, OF, ACC)
        elif OPT["fuse"] == 1:
            V(f"v_mov_b32 v{T3}, s{self.sP1}", w={T3})
            V(f"v_writelane_b32 v{T3}, s{self.sP0}, 0", w={T3}, r={T3})
            A.salu(f"s_and_b32 s14, s{sW}, 1")
            A.salu("s_lshl_b32 s14, s14, 4")
            A.salu("s_lshl_b32 s14, 0x101, s14")
        else:
            V(f"v_mov_b32 v{T3}, s{self.sP1}", w={T3})
            V(f"v_mov_b32 v{T4}, s{self.sP0}", w={T4})
            V(f"v_cmp_gt_u32 vcc, 4, v{L}", r={L}, sw={"vcc"})
            V(f"v_cndmask_b32 v{T3}, v{T3}, v{T4}, vcc", w={T3}, r={T3, T4}, sr={"vcc"})
            V(f"v_and_b32 v{T4}, 3, v{L}", w={T4}, r={L})
            V(f"v_lshl_add_u32 v{T3}, v{T4}, 2, v{T3}", w={T3}, r={T3, T4})
            A.salu("s_mov_b32 s14, 0x01010101")
        if OPT["fuse"] != 5:
            PRE = [224, 240, 48, 72][:OPT["pre"]]
            def dsreads(u, ab=None):
                slot = u % OPT["ring"]
                if ab is None: ab = AF + (u % 2) * 16
                for ks in range(2):
                    for tn in range(2):
                        for j in range(2):
                            if OPT["fuse"] == 6:
                                o_ = self.slots6[2 * slot + ks] * SLOT + j * 1024
                                k = A.ds_read_tr(ab + (ks * 2 + tn) * 4 + 2 * j, (BA if o_ < 65536 else 64 + 2 * (o_ >> 16)) + tn, o_ & 65535)
                            else:
                                k = A.ds_read_tr(ab + (ks * 2 + tn) * 4 + 2 * j, BA + tn, slot * 4096 + (16 * ks + 8 * j) * 128)
                return k
            A.salu("s_mov_b32 s15, 0x40000")
            A.waitcnt(vm=0); A.vm_done = A.nvm
            PF.stamp("st")
            A.barrier()
            A.salu(f"s_cmp_eq_u32 s{sW}, 0")
            A.salu("s_cbranch_scc0 K1_NOFLAG")
            A.salu("s_mov_b64 exec, 1")
            if OPT["ntf"]:
                A.salu(f"buffer_atomic_add v{T2}, v{T1}, s[{SDBG}:{SDBG+3}], 0 offen sc0 sc1")
                A.salu("s_waitcnt vmcnt(0)")
                A.salu(f"v_cmp_eq_u32 vcc, 15, v{T2}")
                A.salu("s_nop 1")
                A.salu("s_cbranch_vccz K1_NOFLAG")
                A.salu(f"buffer_store_dword v{T5}, v{T1}, s[{SDBG}:{SDBG+3}], 0 offen offset:128 sc1")
            elif OPT["exp"] != 1: A.salu(f"buffer_atomic_add v{T2}, v{T1}, s[{SDBG}:{SDBG+3}], 0 offen sc1")
            A.label("K1_NOFLAG")
            A.salu(f"s_cmp_ge_u32 s{self.sTT}, 252")
            A.salu("s_cbranch_scc1 K1_END")
            if OPT["exp"]:
                for _ in range(3): A.salu("s_sleep 64")
                A.salu("s_branch K1_GO")
            if OPT["fuse"] == 6:
                A.salu("s_mov_b64 exec, -1")
                self.slots6 += [s_ for s_ in range(NSLOT) if s_ not in self.slots6]
                for j in range(self.done6, 2 * OPT["ring"]):
                    for q in range(2): self.wo_piece(j >> 1, (j & 1) * 2 + q)
                if OPT["pre0"]:
                    A.flush_hazards()
                    for u in range(len(PRE)):
                        dsreads(u, PRE[u])
                        A.wait_ds_all()
                    for u in range(4, 4 + len(PRE)):
                        for i in range(4): self.wo_piece(u, i)
            if OPT["fuse"] == 1:
                A.salu("s_mov_b64 exec, 3")
            else:
                A.salu(f"s_cmp_eq_u32 s{sW}, 0")
                A.salu("s_cbranch_scc0 K1_GO" if not (OPT["fuse"] == 3 or (OPT["pre"] and not OPT["pre0"])) else "s_cbranch_scc0 K1_WO")
                A.salu("s_mov_b64 exec, 3" if OPT["ntf"] else "s_mov_b64 exec, 0xff")
            A.label("K1_POLL")
            A.salu(f"buffer_load_dword v{T4}, v{T3}, s[{SDBG}:{SDBG+3}], 0 offen sc1")
            A.salu("s_waitcnt vmcnt(0)")
            A.salu(f"v_and_b32 v{T4}, s14, v{T4}")
            A.salu(f"v_cmp_ne_u32 vcc, s14, v{T4}")
            A.salu("s_nop 1")
            A.salu("s_cbranch_vccz K1_GO")
            A.salu(f"s_sleep {OPT['slp']}")
            A.salu("s_sub_u32 s15, s15, 1")
            A.salu("s_cmp_lg_u32 s15, 0")
            A.salu("s_cbranch_scc1 K1_POLL")
            A.label("K1_GO")
            A.salu("s_mov_b64 exec, -1")
            if OPT["pre"] and not OPT["pre0"]:
                A.barrier()
                A.label("K1_WO")
                A.flush_hazards()
                for u in range(len(PRE)):
                    dsreads(u, PRE[u])
                    A.wait_ds_all()
                for u in range(4, 4 + len(PRE)):
                    for i in range(4): self.wo_piece(u, i)
                A.salu(f"s_cmp_eq_u32 s{sW}, 0")
                A.salu("s_cbranch_scc1 K1_GO2")
                A.barrier()
                A.label("K1_GO2")
            elif OPT["fuse"] == 3:
                A.barrier()
                A.label("K1_WO")
                for u in range(4):
                    for i in range(4): self.wo_piece(u, i)
                A.salu(f"s_cmp_eq_u32 s{sW}, 0")
                A.salu("s_cbranch_scc1 K1_GO2")
                A.barrier()
                A.label("K1_GO2")
            elif OPT["fuse"] > 1: A.barrier()
            PF.stamp("go")
            NU = 16; DEPTH = 4
            last_vm = {}
            def issue(u, wo=True):
                slot = u % DEPTH
                if wo:
                    for i in range(4): self.wo_piece(u, i)
                for ks in range(2):
                    for tm in range(2):
                        d = OF + slot * 16 + (ks * 2 + tm) * 4
                        off = (2 * u + ks) * 512
                        sb = sO0 if tm == 0 else sO1
                        if off >= 4096:
                            A.salu(f"s_add_u32 s{sT}, s{sb}, {off & ~4095}")
                            sb = sT
                        k = A.vmem(f"buffer_load_dwordx4 {vname(d,4)}, v{OOFF}, s[{SO}:{SO+3}], s{sb} offen offset:{off & 4095} sc1", w=vr(d, 4), r={OOFF})
                last_vm[u] = k
            if OPT["lp"]:
                RG = OPT["ring"]
                OB = [OF, OF + 16, OF + 32, OF + 48, 224, 240][:RG]
                wo_vm = {}; o_vm = {}
                def issue_o(u):
                    for ks in range(2):
                        for tm in range(2):
                            d = OB[u % RG] + (ks * 2 + tm) * 4
                            off = (2 * u + ks) * 512
                            sb = sO0 if tm == 0 else sO1
                            if off >= 4096:
                                A.salu(f"s_add_u32 s{sT}, s{sb}, {off & ~4095}")
                                sb = sT
                            o_vm[u] = A.vmem(f"buffer_load_dwordx4 {vname(d,4)}, v{OOFF}, s[{SO}:{SO+3}], s{sb} offen offset:{off & 4095} sc1", w=vr(d, 4), r={OOFF})
                wo_first = A.nvm - 1
                for u in range(RG): issue_o(u)
                pend = dsreads(0)
                for u in range(NU):
                    A.wait_ds(pend)
                    if u + RG < NU:
                        for i in range(4): wo_vm[u + RG] = self.wo_piece(u + RG, i)
                    if u + 1 < NU:
                        if u + 1 in wo_vm: A.wait_vm(wo_vm[u + 1])
                        elif u + 1 >= 3: A.wait_vm(wo_first)
                        pend = dsreads(u + 1)
                    A.wait_vm(o_vm[u])
                    ab = AF + (u % 2) * 16
                    ob = OB[u % RG]
                    for ks in range(2):
                        for tn in range(2):
                            for tm in range(2):
                                c = "zero" if (u == 0 and ks == 0) else None
                                A.mfma(ACC + (tn * 2 + tm) * 16, ab + (ks * 2 + tn) * 4, ob + (ks * 2 + tm) * 4, c)
                    if u + RG < NU: issue_o(u + RG)
                    if u in (0, 7, 15): PF.stamp(f"u{u}")
                NU = 0
            for u in range(DEPTH if NU else 0): issue(u, OPT["fuse"] == 4)
            if OPT["fuse"] in (3, 4): A.wait_vm(last_vm[0])
            NP = len(PRE)
            pend = dsreads(0) if NP == 0 and NU else None
            if NU: A.wait_vm(last_vm[0])
            for u in range(NU):
                if pend is not None: A.wait_ds(pend)
                if u + 1 < NU:
                    A.wait_vm(last_vm[u + 1])
                    pend = dsreads(u + 1) if u + 1 >= NP else None
                ab = AF + (u % 2) * 16 if u >= NP else PRE[u]
                ob = OF + (u % DEPTH) * 16
                for ks in range(2):
                    for tn in range(2):
                        for tm in range(2):
                            c = "zero" if (u == 0 and ks == 0) else None
                            A.mfma(ACC + (tn * 2 + tm) * 16, ab + (ks * 2 + tn) * 4, ob + (ks * 2 + tm) * 4, c)
                if u + DEPTH < NU: issue(u + DEPTH, u >= NP)
                if u in (0, 7, 15): PF.stamp(f"u{u}")
        R = OF
        if OPT["fuse"] == 6 and OPT["red"]:
            A.wait_ds_all()
            V(f"v_add_u32 v{T1}, s{sWL}, v{RED}", w={T1}, r={RED})
            V(f"v_add_u32 v{T2}, 0x10000, v{T1}", w={T2}, r={T1})
            V(f"v_add_u32 v{T3}, 0x20000, v{T1}", w={T3}, r={T1})
            for q in range(16):
                o_ = self.slots6[q >> 1] * SLOT + (q & 1) * 1024
                A.ds_write_b128([T1, T2, T3][o_ >> 16], ACC + 4 * q, o_ & 65535)
            tab = sum(s_ << (4 * w_) for w_, s_ in enumerate(self.slots6[:8]))
            A.salu(f"s_lshl_b32 s6, s{sW}, 2")
            A.salu(f"s_lshr_b32 s6, {tab:#x}, s6")
            A.salu("s_and_b32 s6, s6, 15")
            A.salu("s_lshl_b32 s6, s6, 14")
            V(f"v_add_u32 v{T4}, s6, v{RED}", w={T4}, r={RED})
            A.wait_ds_all()
            A.barrier()
            for ww in range(8):
                for q in range(2):
                    A.ds_read_b128(R + (ww * 2 + q) * 4, T4, ww * 2048 + q * 1024)
                if ww == 5:
                    A.wait_ds_all()
            A.wait_ds_all()
        else:
            A.wait_ds_all()
            A.barrier()
            A.salu(f"s_lshl_b32 s12, s{sW}, 14")
            V(f"v_add_u32 v{T1}, s12, v{RED}", w={T1}, r={RED})
            for q in range(16):
                A.ds_write_b128(T1, ACC + 4 * q, q * 1024)
            A.wait_ds_all()
            A.barrier()
            A.salu(f"s_lshl_b32 s6, s{sW}, 11")
            V(f"v_add_u32 v{T1}, s6, v{RED}", w={T1}, r={RED})
            V(f"v_add_u32 v{T2}, 0x10000, v{T1}", w={T2}, r={T1})
            for ww in range(8):
                for q in range(2):
                    A.ds_read_b128(R + (ww * 2 + q) * 4, T1 if ww < 4 else T2, (ww % 4) * 16384 + q * 1024)
                if ww == 5:
                    A.wait_ds_all()
            A.wait_ds_all()
        for ww in range(1, 8):
            for i in range(8):
                V(f"v_add_f32 v{R+i}, v{R+i}, v{R+ww*8+i}", w={R + i}, r={R + i, R + ww * 8 + i})
        for q in range(4):
            V(f"v_cvt_pk_bf16_f32 v{AF+q}, v{R+2*q}, v{R+2*q+1}", w={AF + q}, r={R + 2 * q, R + 2 * q + 1})
        A.salu(f"s_lshr_b32 s6, s{sW}, 1")
        A.salu("s_and_b32 s7, s6, 1")
        A.salu("s_lshr_b32 s6, s6, 1")
        A.salu(f"s_lshl_b32 s3, s{sMT}, 6")
        A.salu("s_lshl_b32 s7, s7, 5")
        A.salu("s_add_u32 s3, s3, s7")
        A.salu("s_mul_i32 s3, s3, 2304")
        A.salu(f"s_mul_i32 s7, s{sBLK}, 1152")
        A.salu("s_add_u32 s3, s3, s7")
        A.salu(f"s_lshl_b32 s7, s{sNT}, 7")
        A.salu("s_add_u32 s3, s3, s7")
        A.salu("s_lshl_b32 s7, s6, 6")
        A.salu("s_add_u32 s3, s3, s7")
        A.salu(f"s_and_b32 s7, s{sW}, 1")
        A.salu("s_lshl_b32 s7, s7, 5")
        A.salu("s_add_u32 s3, s3, s7")
        V(f"v_and_b32 v{T1}, 31, v{L}", w={T1}, r={L})
        V(f"v_mul_u32_u24 v{T1}, 2304, v{T1}", w={T1}, r={T1})
        V(f"v_lshrrev_b32 v{T2}, 5, v{L}", w={T2}, r={L})
        V(f"v_lshl_add_u32 v{T1}, v{T2}, 3, v{T1}", w={T1}, r={T2, T1})
        fl = ["", " sc1", " nt", " sc0 sc1"][OPT["ost"]]
        A.vmem(f"buffer_store_dwordx2 {vname(AF,2)}, v{T1}, s[{SOUT}:{SOUT+3}], s3 offen{fl}", r=vr(AF, 2) | {T1})
        A.vmem(f"buffer_store_dwordx2 {vname(AF+2,2)}, v{T1}, s[{SOUT}:{SOUT+3}], s3 offen offset:16{fl}", r=vr(AF + 2, 2) | {T1})

def gen_k2(A):
    V = A.valu
    T0, T1, T2, T3, T4, T5, T6, T7 = range(0, 8)
    WOFF = 8
    OOFF = 12
    BA = 13
    RED = 15
    AF = 16
    OF = 48
    ACC = 112
    sBLK, sMT, sNT, sW = 26, 27, 4, 5
    SW_, SO, SOUT = 28, 32, 36
    sWL, sWB, sO0, sO1, sT = 48, 49, 50, 51, 52
    A.win = []
    A.nds = A.ds_done = A.nvm = A.vm_done = 0
    A.raw(f".p2align 8\n.globl k2_kernel\n.type k2_kernel,@function\nk2_kernel:")
    A.salu("s_cmp_ge_u32 s2, 256")
    A.salu("s_cbranch_scc1 K2_END")
    A.salu("s_and_b32 s3, s2, 7")
    A.salu("s_lshl_b32 s3, s3, 5")
    A.salu("s_lshr_b32 s6, s2, 3")
    A.salu("s_add_u32 s3, s3, s6")
    A.salu("s_cmp_ge_u32 s3, 252")
    A.salu("s_cbranch_scc1 K2_END")
    A.salu("s_load_dwordx2 s[8:9], s[0:1], 32")
    A.salu("s_load_dwordx2 s[10:11], s[0:1], 72")
    A.salu("s_load_dwordx2 s[12:13], s[0:1], 80")
    A.salu("s_load_dwordx2 s[14:15], s[0:1], 96")
    A.salu("s_cmp_ge_u32 s3, 126")
    A.salu(f"s_cselect_b32 s{sBLK}, 1, 0")
    A.salu(f"s_mul_i32 s6, s{sBLK}, 126")
    A.salu("s_sub_u32 s3, s3, s6")
    A.salu("s_mul_i32 s6, s3, 57")
    A.salu(f"s_lshr_b32 s{sMT}, s6, 9")
    A.salu(f"s_mul_i32 s6, s{sMT}, 9")
    A.salu(f"s_sub_u32 s{sNT}, s3, s6")
    V(f"v_lshrrev_b32 v{T1}, 6, v0", w={T1}, r={0})
    A._emit(I(f"v_readfirstlane_b32 s{sW}, v{T1}", "rdlane", r={T1}, sw={sW}))
    V(f"v_and_b32 v{T0}, 63, v0", w={T0}, r={0})
    L = T0
    A.salu(f"s_lshl_b32 s{sWL}, s{sW}, 14", sr={sW})
    A.salu(f"s_mul_i32 s{sWB}, s{sW}, {512*1152}", sr={sW})
    A.salu(f"s_lshl_b32 s6, s{sNT}, 7")
    A.salu(f"s_add_u32 s{sWB}, s{sWB}, s6")
    A.salu(f"s_mul_i32 s{sO0}, s{sBLK}, {O_BLK}")
    A.salu(f"s_lshl_b32 s6, s{sMT}, 19")
    A.salu(f"s_add_u32 s{sO0}, s{sO0}, s6")
    A.salu(f"s_lshl_b32 s6, s{sW}, 14")
    A.salu(f"s_add_u32 s{sO0}, s{sO0}, s6")
    A.salu(f"s_add_u32 s{sO1}, s{sO0}, {2*131072}")
    V(f"v_lshrrev_b32 v{T1}, 3, v{L}", w={T1}, r={L})
    V(f"v_mul_u32_u24 v{T1}, 1152, v{T1}", w={T1}, r={T1})
    V(f"v_bfe_u32 v{T2}, v{L}, 4, 1", w={T2}, r={L})
    V(f"v_lshlrev_b32 v{T3}, 2, v{T2}", w={T3}, r={T2})
    V(f"v_and_b32 v{T4}, 7, v{L}", w={T4}, r={L})
    V(f"v_xor_b32 v{T4}, v{T4}, v{T3}", w={T4}, r={T4, T3})
    V(f"v_lshl_add_u32 v{WOFF}, v{T4}, 4, v{T1}", w={WOFF}, r={T4, T1})
    for i in range(1, 4):
        V(f"v_add_u32 v{WOFF+i}, {9216*i}, v{WOFF}", w={WOFF + i}, r={WOFF})
    V(f"v_lshrrev_b32 v{T1}, 5, v{L}", w={T1}, r={L})
    V(f"v_bfe_u32 v{T3}, v{L}, 2, 2", w={T3}, r={L})
    V(f"v_and_b32 v{T4}, 3, v{L}", w={T4}, r={L})
    V(f"v_lshlrev_b32 v{T6}, 17, v{T2}", w={T6}, r={T2})
    V(f"v_lshl_add_u32 v{T6}, v{T1}, 8, v{T6}", w={T6}, r={T1, T6})
    V(f"v_and_b32 v{T7}, 15, v{L}", w={T7}, r={L})
    V(f"v_lshl_add_u32 v{OOFF}, v{T7}, 4, v{T6}", w={OOFF}, r={T7, T6})
    V(f"v_lshl_add_u32 v{T6}, v{T1}, 2, v{T3}", w={T6}, r={T1, T3})
    V(f"v_lshlrev_b32 v{T6}, 7, v{T6}", w={T6}, r={T6})
    V(f"v_lshrrev_b32 v{T7}, 1, v{T4}", w={T7}, r={T4})
    V(f"v_lshl_add_u32 v{T7}, v{T2}, 1, v{T7}", w={T7}, r={T2, T7})
    V(f"v_lshrrev_b32 v{T5}, 1, v{T3}", w={T5}, r={T3})
    V(f"v_lshlrev_b32 v{T5}, 2, v{T5}", w={T5}, r={T5})
    V(f"v_xor_b32 v{T7}, v{T7}, v{T5}", w={T7}, r={T7, T5})
    V(f"v_lshl_add_u32 v{T6}, v{T7}, 4, v{T6}", w={T6}, r={T7, T6})
    V(f"v_and_b32 v{T7}, 1, v{T4}", w={T7}, r={T4})
    V(f"v_lshl_add_u32 v{T6}, v{T7}, 3, v{T6}", w={T6}, r={T7, T6})
    V(f"v_add_u32 v{BA}, s{sWL}, v{T6}", w={BA}, r={T6})
    V(f"v_xor_b32 v{BA+1}, 64, v{BA}", w={BA + 1}, r={BA})
    V(f"v_lshlrev_b32 v{RED}, 4, v{L}", w={RED}, r={L})
    A.waitcnt(lgkm=0)
    A.salu(f"s_cmp_eq_u32 s{sBLK}, 0")
    A.salu("s_cselect_b32 s8, s8, s10")
    A.salu("s_cselect_b32 s9, s9, s11")
    srd(A, SW_, 8, 4096 * 576 * 2)
    srd(A, SO, 14, 2 * O_BLK)
    srd(A, SOUT, 12, 896 * 1152 * 2)

    NU = 16; DEPTH = 4
    last_vm = {}
    def issue(u):
        slot = u % DEPTH
        A.salu(f"s_add_u32 s{sT}, s{sWB}, {u * 32 * 1152}")
        for i in range(4):
            A.salu(f"s_add_u32 m0, s{sWL}, {slot * 4096 + i * 1024}", m0w=True)
            A.vmem(f"buffer_load_dwordx4 v{WOFF+i}, s[{SW_}:{SW_+3}], s{sT} offen{' nt' if OPT['ntwo'] else ''} lds", kind="dma", r={WOFF + i}, m0r=True)
        for ks in range(2):
            for tm in range(2):
                d = OF + slot * 16 + (ks * 2 + tm) * 4
                off = (2 * u + ks) * 512
                sb = sO0 if tm == 0 else sO1
                if off >= 4096:
                    A.salu(f"s_add_u32 s{sT}, s{sb}, {off & ~4095}")
                    k = A.vmem(f"buffer_load_dwordx4 {vname(d,4)}, v{OOFF}, s[{SO}:{SO+3}], s{sT} offen offset:{off & 4095}{' nt' if OPT['nto'] else ''}", w=vr(d, 4), r={OOFF})
                else:
                    k = A.vmem(f"buffer_load_dwordx4 {vname(d,4)}, v{OOFF}, s[{SO}:{SO+3}], s{sb} offen offset:{off}{' nt' if OPT['nto'] else ''}", w=vr(d, 4), r={OOFF})
        last_vm[u] = k
    def dsreads(u):
        slot = u % DEPTH
        ab = AF + (u % 2) * 16
        for ks in range(2):
            for tn in range(2):
                for j in range(2):
                    k = A.ds_read_tr(ab + (ks * 2 + tn) * 4 + 2 * j, BA + tn, slot * 4096 + (16 * ks + 8 * j) * 128)
        return k
    PF = Prof(A, 1)
    PF.stamp("start")
    for u in range(DEPTH): issue(u)
    A.wait_vm(last_vm[0])
    pend = dsreads(0)
    for u in range(NU):
        A.wait_ds(pend)
        if u + 1 < NU:
            A.wait_vm(last_vm[u + 1])
            pend = dsreads(u + 1)
        ab = AF + (u % 2) * 16
        ob = OF + (u % DEPTH) * 16
        for ks in range(2):
            for tn in range(2):
                for tm in range(2):
                    c = "zero" if (u == 0 and ks == 0) else None
                    A.mfma(ACC + (tn * 2 + tm) * 16, ab + (ks * 2 + tn) * 4, ob + (ks * 2 + tm) * 4, c)
        if u + DEPTH < NU: issue(u + DEPTH)
        PF.stamp(f"u{u}")
    A.wait_ds_all()
    A.barrier()
    V(f"v_add_u32 v{T1}, s{sWL}, v{RED}", w={T1}, r={RED})
    for q in range(16):
        A.ds_write_b128(T1, ACC + 4 * q, q * 1024)
    A.wait_ds_all()
    A.barrier()
    A.salu(f"s_lshl_b32 s6, s{sW}, 11")
    V(f"v_add_u32 v{T1}, s6, v{RED}", w={T1}, r={RED})
    V(f"v_add_u32 v{T2}, 0x10000, v{T1}", w={T2}, r={T1})
    R = OF
    for ww in range(8):
        for q in range(2):
            A.ds_read_b128(R + (ww * 2 + q) * 4, T1 if ww < 4 else T2, (ww % 4) * 16384 + q * 1024)
            if ww == 6 and q == 1: pass
        if ww == 5:
            A.wait_ds_all()
    A.wait_ds_all()
    for ww in range(1, 8):
        for i in range(8):
            V(f"v_add_f32 v{R+i}, v{R+i}, v{R+ww*8+i}", w={R + i}, r={R + i, R + ww * 8 + i})
    for q in range(4):
        V(f"v_cvt_pk_bf16_f32 v{AF+q}, v{R+2*q}, v{R+2*q+1}", w={AF + q}, r={R + 2 * q, R + 2 * q + 1})
    A.salu(f"s_lshr_b32 s6, s{sW}, 1")
    A.salu("s_and_b32 s7, s6, 1")
    A.salu("s_lshr_b32 s6, s6, 1")
    A.salu(f"s_lshl_b32 s3, s{sMT}, 6")
    A.salu("s_lshl_b32 s7, s7, 5")
    A.salu("s_add_u32 s3, s3, s7")
    A.salu("s_mul_i32 s3, s3, 2304")
    A.salu(f"s_mul_i32 s7, s{sBLK}, 1152")
    A.salu("s_add_u32 s3, s3, s7")
    A.salu(f"s_lshl_b32 s7, s{sNT}, 7")
    A.salu("s_add_u32 s3, s3, s7")
    A.salu("s_lshl_b32 s7, s6, 6")
    A.salu("s_add_u32 s3, s3, s7")
    A.salu(f"s_and_b32 s7, s{sW}, 1")
    A.salu("s_lshl_b32 s7, s7, 5")
    A.salu("s_add_u32 s3, s3, s7")
    V(f"v_and_b32 v{T1}, 31, v{L}", w={T1}, r={L})
    V(f"v_mul_u32_u24 v{T1}, 2304, v{T1}", w={T1}, r={T1})
    V(f"v_lshrrev_b32 v{T2}, 5, v{L}", w={T2}, r={L})
    V(f"v_lshl_add_u32 v{T1}, v{T2}, 3, v{T1}", w={T1}, r={T2, T1})
    A.vmem(f"buffer_store_dwordx2 {vname(AF,2)}, v{T1}, s[{SOUT}:{SOUT+3}], s3 offen", r=vr(AF, 2) | {T1})
    A.vmem(f"buffer_store_dwordx2 {vname(AF+2,2)}, v{T1}, s[{SOUT}:{SOUT+3}], s3 offen offset:16", r=vr(AF + 2, 2) | {T1})
    PF.dump(14, sW, 0)
    A.label("K2_END")
    A.salu("s_endpgm")

def kd(name, vgpr, sgpr):
    return f""".amdhsa_kernel {name}
  .amdhsa_next_free_vgpr {vgpr}
  .amdhsa_next_free_sgpr {sgpr}
  .amdhsa_accum_offset {(vgpr + 3) // 4 * 4}
  .amdhsa_group_segment_fixed_size 0
  .amdhsa_kernarg_size 104
  .amdhsa_user_sgpr_count 2
  .amdhsa_user_sgpr_kernarg_segment_ptr 1
  .amdhsa_system_sgpr_workgroup_id_x 1
.end_amdhsa_kernel
"""

def main():
    A = Asm()
    gen_k1(A)
    if not OPT["fuse"]: gen_k2(A)
    head = """; Two-launch GQA block pair: k1 = Q projection + attention (o -> ws), k2 = output projection.
; @launch kernel=k1_kernel grid=(256,1,1) block=(512,1,1) lds=163840
; @launch kernel=k2_kernel grid=(256,1,1) block=(512,1,1) lds=131072
.amdgcn_target "amdgcn-amd-amdhsa--gfx950"
.text
"""
    tail = '\n.section .rodata,"a"\n.p2align 6\n' + kd("k1_kernel", 256, 102 if OPT["prof"] else 64) + ".p2align 6\n" + kd("k2_kernel", 176, 102 if OPT["prof"] else 64)
    if OPT["fuse"]:
        head = """; GQA block pair in one launch: Q projection + attention, o handed over through ws, output projection.
; @launch kernel=k1_kernel grid=(256,1,1) block=(512,1,1) lds=163840
.amdgcn_target "amdgcn-amd-amdhsa--gfx950"
.text
"""
        tail = '\n.section .rodata,"a"\n.p2align 6\n' + kd("k1_kernel", 256, 102 if OPT["prof"] else 64)
    txt = head + A.text() + tail
    if "CODE_BYTES" in txt:
        import subprocess, re
        open("_p1.s", "w").write(txt.replace("CODE_BYTES", "0x12345"))
        subprocess.check_call(["clang", "-x", "assembler", "-target", "amdgcn-amd-amdhsa", "-mcpu=gfx950", "-c", "_p1.s", "-o", "_p1.o"])
        o = subprocess.check_output(["llvm-objdump", "-h", "_p1.o"]).decode()
        n = int(re.search(r"\.text\s+([0-9a-f]+)", o).group(1), 16)
        txt = txt.replace("CODE_BYTES", str(n))
    open(sys.argv[1], "w").write(txt)
    print("nops inserted:", A.nops_inserted, "lines:", len(A.out))

main()
```

```python
import sys, math
sys.path.insert(0, "gen")
from asmlib import *

NAME = "concat_heads__gqa_block_cached__gqa_block_cached__near_ridge"
OPT = dict(prio=1, prof=0, ntkv=1, ntw=0, ntx=0, ntwo=0, nto=0, ntst=0, nq=6, kvrate=1, l2pf=1, wopf=4, fat=1, bstep=1, dmagap=1, pflead=4, kv0=2, nstg=4, kvt=0, ld4=1, cpf=0, mid=0, kvt0=1, kvtr=1, roll=0, pfrate=1, kvs=0, rot=0, stag=0, qi=0, tlbw=0, ntt=0, fuse=0, slp=1, wox=0, xm=0, wo0=3, wo6=0, exp=0, ntf=0, pv=0, ost=0, red=0, pre=0, ring=4, lp=0, pre0=0, pr2=0, xb=0, pro=0, prg=3)
for a in sys.argv[2:]:
    k, v = a.split("="); OPT[k] = int(v)

O_BLK = 896 * 4096 * 2
SLOT = 16384
NSLOT = 10

def srd(A, d, base, nbytes):
    A.salu(f"s_mov_b32 s{d}, s{base}")
    A.salu(f"s_and_b32 s{d+1}, s{base+1}, 0xffff")
    A.salu(f"s_mov_b32 s{d+2}, {nbytes}")
    A.salu(f"s_mov_b32 s{d+3}, 0x00020000")

class Prof:
    def __init__(self, A, kidx):
        self.A = A; self.n = 0; self.names = []; self.kidx = kidx
    def stamp(self, name):
        A = self.A
        if OPT["prof"] == 3:
            sel = ["start", "q0", "a0", "pv7", "st", "go", "u15", "end"]
            if name == "start" or name == sel[OPT["pv"]]:
                A.salu("s_waitcnt lgkmcnt(0)")
                A.ds_done = A.nds
                A.salu("s_memrealtime s[96:97]")
                A.salu("s_waitcnt lgkmcnt(0)")
                if name == "start": A.salu("s_not_b32 s64, s96")
                if name == sel[OPT["pv"]]: A.salu(f"s_mov_b32 s65, s96")
            return
        if OPT["prof"] == 2:
            sel = ["start", "q0", "a0", "pv7", "st", "go", "u15", "end"]
            if name in sel:
                A.salu("s_waitcnt lgkmcnt(0)")
                A.ds_done = A.nds
                A.salu("s_memrealtime s[96:97]")
                A.salu("s_waitcnt lgkmcnt(0)")
                if name == "start": A.salu("s_not_b32 s96, s96")
                A.salu(f"s_mov_b32 s{64+sel.index(name)}, s96")
            return
        if not OPT["prof"]: return
        assert self.n < 30
        A.salu("s_waitcnt lgkmcnt(0)")
        A.ds_done = A.nds
        A.salu("s_memtime s[96:97]")
        A.salu("s_waitcnt lgkmcnt(0)")
        A.salu(f"s_mov_b32 s{64+self.n}, s96")
        if self.n == 0:
            A.salu("s_memrealtime s[98:99]")
            A.salu("s_waitcnt lgkmcnt(0)")
        self.n += 1; self.names.append(name)
    def dump(self, wsreg, sW, tmp):
        if not OPT["prof"]: return
        A = self.A
        self.stamp("end")
        if OPT["prof"] == 3:
            A.salu(f"s_cmp_eq_u32 s{sW}, 0")
            A.salu("s_cbranch_scc0 K1_END")
            A.salu("s_mov_b64 exec, -1")
            A.salu("s_nop 4")
            for i in range(2):
                A.salu(f"v_writelane_b32 v{tmp}, s{64+i}, {i}")
            A.salu(f"v_mbcnt_lo_u32_b32 v{tmp+1}, -1, 0")
            A.salu(f"v_lshlrev_b32 v{tmp+1}, 2, v{tmp+1}")
            A.salu(f"v_mov_b32 v{tmp+2}, 1")
            A.salu("s_mov_b64 exec, 3")
            A.salu("s_nop 4")
            A.salu(f"buffer_atomic_umax v{tmp}, v{tmp+1}, s[20:23], 0 offen offset:32 sc1")
            A.salu("s_waitcnt vmcnt(0)")
            A.salu("s_mov_b64 exec, 1")
            A.salu(f"buffer_atomic_add v{tmp+2}, v{tmp+1}, s[20:23], 0 offen offset:40 sc0 sc1")
            A.salu("s_waitcnt vmcnt(0)")
            A.salu(f"v_readfirstlane_b32 s66, v{tmp+2}")
            A.salu("s_cmp_eq_u32 s66, 251")
            A.salu("s_cbranch_scc0 K1_END")
            A.salu("s_mov_b64 exec, 3")
            A.salu(f"buffer_load_dword v{tmp}, v{tmp+1}, s[20:23], 0 offen offset:32 sc1")
            A.salu("s_waitcnt vmcnt(0)")
            A.salu(f"v_readlane_b32 s66, v{tmp}, 0")
            A.salu(f"v_readlane_b32 s67, v{tmp}, 1")
            A.salu("s_not_b32 s66, s66")
            A.salu("s_sub_u32 s66, s67, s66")
            A.salu("s_min_u32 s66, s66, 10000")
            A.salu("s_lshl_b32 s66, s66, 3")
            A.salu("s_memrealtime s[96:97]")
            A.salu("s_waitcnt lgkmcnt(0)")
            A.salu("s_mov_b32 s67, s96")
            A.label("K1_DLY")
            A.salu("s_memrealtime s[96:97]")
            A.salu("s_waitcnt lgkmcnt(0)")
            A.salu("s_sub_u32 s96, s96, s67")
            A.salu("s_cmp_lt_u32 s96, s66")
            A.salu("s_cbranch_scc1 K1_DLY")
            return
        if OPT["prof"] == 2:
            A.salu("s_mov_b64 exec, -1")
            A.salu("s_nop 4")
            for i in range(8):
                A.salu(f"v_writelane_b32 v{tmp}, s{64+i}, {i}")
            A.salu(f"v_mbcnt_lo_u32_b32 v{tmp+1}, -1, 0")
            A.salu(f"v_lshlrev_b32 v{tmp+1}, 2, v{tmp+1}")
            A.salu("s_mov_b64 exec, 0xff")
            A.salu("s_nop 4")
            A.salu(f"buffer_atomic_umax v{tmp}, v{tmp+1}, s[20:23], 0 offen offset:32 sc1")
            return
        A.salu("s_memrealtime s[96:97]")
        A.salu("s_waitcnt lgkmcnt(0)")
        A.salu("s_mov_b64 exec, -1")
        A.salu("s_nop 4")
        for i in range(self.n):
            A.salu(f"v_writelane_b32 v{tmp}, s{64+i}, {i}")
        A.salu("s_getreg_b32 s97, hwreg(HW_REG_HW_ID)")
        A.salu(f"v_writelane_b32 v{tmp}, s97, 29")
        A.salu(f"v_writelane_b32 v{tmp}, s98, 30")
        A.salu(f"v_writelane_b32 v{tmp}, s96, 31")
        A.salu(f"s_mov_b32 s60, s{wsreg}")
        A.salu(f"s_and_b32 s61, s{wsreg+1}, 0xffff")
        A.salu("s_mov_b32 s62, 0x10000000")
        A.salu("s_mov_b32 s63, 0x00020000")
        A.salu("s_lshl_b32 s96, s2, 3")
        A.salu(f"s_add_u32 s96, s96, s{sW}")
        A.salu("s_lshl_b32 s96, s96, 7")
        A.salu(f"s_add_u32 s96, s96, {255*1024*1024 + self.kidx*512*1024}")
        A.salu(f"v_mbcnt_lo_u32_b32 v{tmp+1}, -1, 0")
        A.salu(f"v_mbcnt_hi_u32_b32 v{tmp+1}, -1, v{tmp+1}")
        A.salu(f"v_lshlrev_b32 v{tmp+1}, 2, v{tmp+1}")
        A.salu("s_mov_b64 exec, 0xffffffff")
        A.salu("s_nop 4")
        A.salu(f"buffer_store_dword v{tmp}, v{tmp+1}, s[60:63], s96 offen")
        print("stamps k%d:" % self.kidx, self.names)

def gen_k1(A):
    V = A.valu
    T0, T1, T2, T3, T4, T5, T6, T7 = range(0, 8)
    XO, WO, KO = 8, 10, 12
    BW, BX, BK, BV = 14, 15, 16, 17
    LSUM, OST = 18, 19
    SUMA, SUMB, MX, MX2 = 20, 21, 22, 23
    AD = 24
    FR = 32
    NEGM = 48
    QB = 64
    S = 96
    O = 160
    P = 224
    sBLK, sKVH, sB, sW, sHL, sRT = 26, 27, 4, 5, 6, 7
    SX, SW_, SK, SV, SO = 28, 32, 36, 40, 44
    sWL, sXB, sWB, sKVB, sT, sOB = 48, 49, 50, 51, 52, 53
    sMASK, sTHR, sC = 54, 56, 57
    sW3, sWL4, sT2 = 58, 59, 55

    A.raw(f".p2align 8\n.globl k1_kernel\n.type k1_kernel,@function\nk1_kernel:\nK1_BEGIN:")
    A.salu("s_cmp_ge_u32 s2, 256")
    A.salu("s_cbranch_scc1 K1_END")
    A.salu("s_load_dwordx8 s[8:15], s[0:1], 0")
    A.salu("s_load_dwordx8 s[16:23], s[0:1], 40")
    A.salu("s_load_dwordx2 s[24:25], s[0:1], 96")
    if OPT["cpf"]:
        A.salu("s_getpc_b64 s[60:61]")
        A.salu("s_and_b32 s60, s60, 0xffffff00")
        A.salu("s_and_b32 s61, s61, 0xffff")
        A.salu("s_mov_b32 s62, CODE_BYTES")
        A.salu("s_mov_b32 s63, 0x00020000")
        V(f"v_lshlrev_b32 v{T7}, 7, v0", w={T7}, r={0})
        A.vmem(f"buffer_load_dword v{NEGM+15}, v{T7}, s[60:63], 0 offen", w={NEGM+15}, r={T7})
    A.salu("s_and_b32 s3, s2, 7")
    A.salu(f"s_lshr_b32 s{sB}, s2, 3")
    A.salu(f"s_lshr_b32 s{sBLK}, s3, 2")
    A.salu("s_and_b32 s3, s3, 3")
    A.salu("s_lshl_b32 s3, s3, 2")
    A.salu(f"s_and_b32 s{sKVH}, s{sB}, 3")
    A.salu(f"s_add_u32 s{sKVH}, s{sKVH}, s3")
    A.salu(f"s_lshr_b32 s{sB}, s{sB}, 2")
    V(f"v_lshrrev_b32 v{T1}, 6, v0", w={T1}, r={0})
    A._emit(I(f"v_readfirstlane_b32 s{sW}, v{T1}", "rdlane", r={T1}, sw={sW}))
    V(f"v_and_b32 v{T0}, 63, v0", w={T0}, r={0})
    if OPT["fat"]:
        A.salu(f"s_bfe_u32 s{sHL}, s{sW}, 0x10001", sr={sW})
        A.salu(f"s_and_b32 s{sRT}, s{sW}, 1", sr={sW})
        A.salu(f"s_lshl_b32 s{sRT}, s{sRT}, 1")
        A.salu(f"s_lshr_b32 s3, s{sW}, 2", sr={sW})
        A.salu(f"s_add_u32 s{sRT}, s{sRT}, s3")
    else:
        A.salu(f"s_lshr_b32 s{sHL}, s{sW}, 2", sr={sW})
        A.salu(f"s_and_b32 s{sRT}, s{sW}, 3", sr={sW})
    A.salu(f"s_lshl_b32 s{sWL}, s{sW}, 11", sr={sW})
    A.salu(f"s_and_b32 s{sW3}, s{sW}, {3 if OPT['ld4'] else 1}", sr={sW})
    A.salu(f"s_lshl_b32 s{sWL4}, s{sW3}, 11")
    A.salu(f"s_mul_i32 s{sXB}, s{sB}, 129024")
    A.salu(f"s_lshl_b32 s{sWB}, s{sKVH}, 9")
    A.salu(f"s_lshl_b32 s{sKVB}, s{sB}, 4")
    A.salu(f"s_add_u32 s{sKVB}, s{sKVB}, s{sKVH}")
    if OPT["rot"] == 1:
        A.salu(f"s_and_b32 s{sMASK}, s{sKVB}, 7")
    elif OPT["rot"] == 2:
        A.salu(f"s_add_u32 s{sMASK}, s{sKVH}, s{sB}")
        A.salu(f"s_and_b32 s{sMASK}, s{sMASK}, 7")
    elif OPT["rot"] == 3:
        A.salu(f"s_and_b32 s{sMASK}, s{sB}, 7")
    A.salu(f"s_lshl_b32 s{sMASK}, s{sMASK}, 14")
    A.salu(f"s_lshl_b32 s{sKVB}, s{sKVB}, 17")
    A.salu(f"s_mov_b32 s{sTHR}, 0x4b800000")
    c = math.log2(math.e) / math.sqrt(128.0)
    import struct
    cbits = struct.unpack("<I", struct.pack("<f", c))[0]
    A.salu(f"s_mov_b32 s{sC}, {cbits:#x}")
    L = T0
    for q in range(2):
        V(f"v_lshrrev_b32 v{T1}, 3, v{L}", w={T1}, r={L})
        A.salu(f"s_lshl_b32 s3, s{sW3}, 4")
        A.salu(f"s_add_u32 s3, s3, {8*q}")
        V(f"v_add_u32 v{T1}, s3, v{T1}", w={T1}, r={T1})
        V(f"v_mul_u32_u24 v{T1}, 1152, v{T1}", w={T1}, r={T1})
        V(f"v_and_b32 v{T2}, 7, v{L}", w={T2}, r={L})
        V(f"v_lshrrev_b32 v{T3}, 4, v{L}", w={T3}, r={L})
        V(f"v_xor_b32 v{T2}, v{T2}, v{T3}", w={T2}, r={T2, T3})
        if q: V(f"v_xor_b32 v{T2}, 4, v{T2}", w={T2}, r={T2})
        V(f"v_lshl_add_u32 v{XO+q}, v{T2}, 4, v{T1}", w={XO+q}, r={T2, T1})
        V(f"v_lshrrev_b32 v{T3}, 5, v{L}", w={T3}, r={L})
        A.salu(f"s_lshl_b32 s3, s{sW3}, 2")
        A.salu(f"s_add_u32 s3, s3, {2*q}")
        V(f"v_add_u32 v{T1}, s3, v{T3}", w={T1}, r={T3})
        V(f"v_lshlrev_b32 v{T1}, 13, v{T1}", w={T1}, r={T1})
        V(f"v_or_b32 v{T3}, {2*q}, v{T3}", w={T3}, r={T3})
        V(f"v_lshlrev_b32 v{T3}, 2, v{T3}", w={T3}, r={T3})
        V(f"v_and_b32 v{T2}, 31, v{L}", w={T2}, r={L})
        V(f"v_xor_b32 v{T2}, v{T2}, v{T3}", w={T2}, r={T2, T3})
        V(f"v_lshl_add_u32 v{WO+q}, v{T2}, 4, v{T1}", w={WO+q}, r={T2, T1})
        V(f"v_lshrrev_b32 v{T3}, 4, v{L}", w={T3}, r={L})
        A.salu(f"s_lshl_b32 s3, s{sW}, 3")
        A.salu(f"s_add_u32 s3, s3, {4*q}")
        V(f"v_add_u32 v{T1}, s3, v{T3}", w={T1}, r={T3})
        V(f"v_lshlrev_b32 v{T1}, 8, v{T1}", w={T1}, r={T1})
        A.salu(f"s_and_b32 s3, s{sW}, 1")
        A.salu(f"s_lshl_b32 s3, s3, 1")
        A.salu(f"s_or_b32 s3, s3, {q}")
        V(f"v_lshlrev_b32 v{T3}, 2, v{T3}", w={T3}, r={T3})
        V(f"v_or_b32 v{T3}, s3, v{T3}", w={T3}, r={T3})
        V(f"v_and_b32 v{T2}, 15, v{L}", w={T2}, r={L})
        V(f"v_xor_b32 v{T2}, v{T2}, v{T3}", w={T2}, r={T2, T3})
        V(f"v_lshl_add_u32 v{KO+q}, v{T2}, 4, v{T1}", w={KO+q}, r={T2, T1})
    V(f"v_lshrrev_b32 v{T1}, 5, v{L}", w={T1}, r={L})
    V(f"v_bfe_u32 v{T2}, v{L}, 4, 1", w={T2}, r={L})
    V(f"v_bfe_u32 v{T3}, v{L}, 2, 2", w={T3}, r={L})
    V(f"v_and_b32 v{T4}, 3, v{L}", w={T4}, r={L})
    V(f"v_and_b32 v{T5}, 31, v{L}", w={T5}, r={L})
    V(f"v_lshl_add_u32 v{T6}, v{T1}, 3, v{T3}", w={T6}, r={T1, T3})
    V(f"v_lshlrev_b32 v{T6}, 9, v{T6}", w={T6}, r={T6})
    V(f"v_lshlrev_b32 v{T7}, 2, v{T3}", w={T7}, r={T3})
    V(f"v_lshl_add_u32 v{T7}, v{T2}, 1, v{T7}", w={T7}, r={T2, T7})
    V(f"v_and_b32 v{BW}, 1, v{T4}", w={BW}, r={T4})
    V(f"v_add_u32 v{T7}, v{T7}, v{BW}", w={T7}, r={T7, BW})
    A.salu(f"s_lshl_b32 s3, s{sHL}, 4")
    V(f"v_add_u32 v{T7}, s3, v{T7}", w={T7}, r={T7})
    V(f"v_lshl_add_u32 v{T6}, v{T7}, 4, v{T6}", w={T6}, r={T7, T6})
    V(f"v_lshrrev_b32 v{T7}, 1, v{T4}", w={T7}, r={T4})
    V(f"v_lshl_add_u32 v{BW}, v{T7}, 3, v{T6}", w={BW}, r={T7, T6})
    A.salu(f"s_lshl_b32 s3, s{sRT}, 5")
    V(f"v_add_u32 v{T6}, s3, v{T5}", w={T6}, r={T5})
    V(f"v_lshlrev_b32 v{T6}, 7, v{T6}", w={T6}, r={T6})
    V(f"v_bfe_u32 v{T7}, v{T5}, 1, 3", w={T7}, r={T5})
    V(f"v_xor_b32 v{T7}, v{T7}, v{T1}", w={T7}, r={T7, T1})
    V(f"v_lshl_add_u32 v{BX}, v{T7}, 4, v{T6}", w={BX}, r={T7, T6})
    V(f"v_lshlrev_b32 v{T6}, 2, v{T4}", w={T6}, r={T4})
    V(f"v_or_b32 v{T6}, v{T6}, v{T3}", w={T6}, r={T6, T3})
    V(f"v_xor_b32 v{T6}, v{T6}, v{T1}", w={T6}, r={T6, T1})
    V(f"v_lshlrev_b32 v{T7}, 8, v{T5}", w={T7}, r={T5})
    V(f"v_lshl_add_u32 v{BK}, v{T6}, 4, v{T7}", w={BK}, r={T6, T7})
    V(f"v_lshl_add_u32 v{T6}, v{T1}, 2, v{T3}", w={T6}, r={T1, T3})
    V(f"v_lshlrev_b32 v{T6}, 8, v{T6}", w={T6}, r={T6})
    V(f"v_lshrrev_b32 v{T7}, 1, v{T4}", w={T7}, r={T4})
    V(f"v_lshl_add_u32 v{T7}, v{T2}, 1, v{T7}", w={T7}, r={T2, T7})
    V(f"v_xor_b32 v{T7}, v{T7}, v{T1}", w={T7}, r={T7, T1})
    V(f"v_lshl_or_b32 v{T7}, v{T3}, 2, v{T7}", w={T7}, r={T3, T7})
    V(f"v_lshl_add_u32 v{T6}, v{T7}, 4, v{T6}", w={T6}, r={T7, T6})
    V(f"v_and_b32 v{T7}, 1, v{T4}", w={T7}, r={T4})
    V(f"v_lshl_add_u32 v{BV}, v{T7}, 3, v{T6}", w={BV}, r={T7, T6})
    V(f"v_lshlrev_b32 v{T6}, 17, v{T2}", w={T6}, r={T2})
    V(f"v_lshl_add_u32 v{T6}, v{T1}, 8, v{T6}", w={T6}, r={T1, T6})
    V(f"v_and_b32 v{T7}, 15, v{L}", w={T7}, r={L})
    V(f"v_lshl_add_u32 v{OST}, v{T7}, 4, v{T6}", w={OST}, r={T7, T6})
    V(f"v_mov_b32 v{LSUM}, 0", w={LSUM})
    A.waitcnt(lgkm=0)
    A.salu(f"s_cmp_eq_u32 s{sBLK}, 0")
    for k in range(8):
        A.salu(f"s_cselect_b32 s{8+k}, s{8+k}, s{16+k}")
    srd(A, SX, 8, 8 * 112 * 576 * 2)
    srd(A, SK, 10, 8 * 16 * 512 * 128 * 2)
    srd(A, SV, 12, 8 * 16 * 512 * 128 * 2)
    srd(A, SW_, 14, 576 * 4096 * 2)
    srd(A, SO, 24, 2 * O_BLK)
    A.salu(f"s_mul_i32 s{sOB}, s{sBLK}, {O_BLK}")
    A.salu(f"s_mul_i32 s3, s{sB}, 7")
    A.salu(f"s_lshl_b32 s{sT}, s{sRT}, 1")
    A.salu(f"s_add_u32 s3, s3, s{sT}")
    A.salu(f"s_lshl_b32 s3, s3, 17")
    A.salu(f"s_add_u32 s{sOB}, s{sOB}, s3")
    A.salu(f"s_lshl_b32 s3, s{sKVH}, 1")
    A.salu(f"s_add_u32 s3, s3, s{sHL}")
    A.salu(f"s_lshl_b32 s3, s3, 12")
    A.salu(f"s_add_u32 s{sOB}, s{sOB}, s3")
    if OPT["prio"]:
        A.salu(f"s_cmp_ge_u32 s{sW}, 4")
        A.salu("s_cbranch_scc0 K1_PRIO_DONE" if OPT["prio"] == 1 else "s_cbranch_scc1 K1_PRIO_DONE")
        A.salu("s_setprio 1")
        A.label("K1_PRIO_DONE")

    NTT = {0: "", 1: " nt", 2: " sc1", 3: " sc0 sc1", 4: " sc1 nt"}[OPT["ntt"]]
    qunits = []
    for s_ in range(9):
        qunits += [("X", s_), ("W", 2 * s_), ("W", 2 * s_ + 1)]
    kvunits = [("K", 0)]
    for h in range(7):
        kvunits += [("K", h + 1), ("V", h)]
    kvunits += [("V", 7)]
    units = qunits + kvunits
    UK = {idx: 27 + i for i, (t_, idx) in enumerate(kvunits) if t_ == "K"}
    UV = {idx: 27 + i for i, (t_, idx) in enumerate(kvunits) if t_ == "V"}
    stage_units = [list(range(3 * s_, 3 * s_ + 3)) for s_ in range(9)]
    unit_last_vm = {}
    unit_slot = {}
    free = list(range(NSLOT))
    nq = [0]; nkv = [0]; xch = []
    KQ = FR
    DV = FR + 2
    NSTG = OPT["nstg"]
    STG = [S + 32, O, O + 32, P][:NSTG]

    def unit_info(u):
        typ, idx = units[u]
        if typ == "X": return sXB, idx * 128, SX, XO, 2 * 16 * 1152, "ntx"
        if typ == "W": return sWB, idx * 32 * 8192, SW_, WO, 2 * 4 * 8192, "ntw"
        if typ == "K": return sKVB, idx * 64 * 256, SK, KO, 4096, "ntkv"
        return sKVB, idx * 64 * 256, SV, KO, 4096, "ntkv"

    def sbase(base, const):
        if base == sKVB and OPT["rot"]:
            A.salu(f"s_add_u32 s{sT}, s{sMASK}, {const}")
            A.salu(f"s_and_b32 s{sT}, s{sT}, 0x1ffff")
            A.salu(f"s_or_b32 s{sT}, s{sT}, s{sKVB}")
        else:
            A.salu(f"s_add_u32 s{sT}, s{base}, {const}")

    def issue_unit_q(u, stage_reg=None):
        if stage_reg is None:
            slot = free.pop(0)
            unit_slot[u] = slot
        base, const, sr_, vo, delta, nto = unit_info(u)
        if vo == KO: vo = KQ
        nt = " nt" if OPT[nto] else ""
        for hv in range(4):
            A.salu(f"s_add_u32 s{sT}, s{base}, {const + delta * hv}")
            for q in range(2):
                if stage_reg is None:
                    A.salu(f"s_add_u32 m0, s{sWL4}, {slot * SLOT + hv * 4096 + q * 1024}", m0w=True)
                    k = A.vmem(f"buffer_load_dwordx4 v{vo+q}, s[{sr_}:{sr_+3}], s{sT} offen{nt} lds", kind="dma", r={vo + q}, m0r=True)
                else:
                    d = stage_reg + (hv * 2 + q) * 4
                    k = A.vmem(f"buffer_load_dwordx4 {vname(d,4)}, v{vo+q}, s[{sr_}:{sr_+3}], s{sT} offen{nt}", w=vr(d, 4), r={vo + q})
        unit_last_vm[u] = k

    def issue_unit_4(u):
        slot = free.pop(0)
        unit_slot[u] = slot
        base, const, sr_, vo, delta, nto = unit_info(u)
        nt = " nt" if OPT[nto] else ""
        sbase(base, const)
        if vo != KO: A.salu(f"s_add_u32 s{sT2}, s{base}, {const + 2 * delta}")
        for hv in range(2):
            for q in range(2):
                A.salu(f"s_add_u32 m0, s{sWL4}, {slot * SLOT + hv * 8192 + q * 1024}", m0w=True)
                if vo == KO:
                    va = (KQ if hv == 0 else KO) + q; so = sT
                else:
                    va = vo + q; so = sT if hv == 0 else sT2
                k = A.vmem(f"buffer_load_dwordx4 v{va}, s[{sr_}:{sr_+3}], s{so} offen{nt} lds", kind="dma", r={va}, m0r=True)
        unit_last_vm[u] = k

    def flood():
        if not OPT["l2pf"]: return
        V(f"v_lshrrev_b32 v{T1}, 2, v{L}", w={T1}, r={L})
        V(f"v_lshlrev_b32 v{T1}, 13, v{T1}", w={T1}, r={T1})
        V(f"v_and_b32 v{T2}, 3, v{L}", w={T2}, r={L})
        V(f"v_lshl_add_u32 v{T1}, v{T2}, 7, v{T1}", w={T1}, r={T2, T1})
        A.salu(f"s_lshl_b32 s3, s{sW}, 4")
        A.salu(f"s_min_u32 s3, s3, 56")
        A.salu(f"s_mul_i32 s{sT}, s{sB}, 72")
        A.salu(f"s_add_u32 s3, s3, s{sT}")
        A.salu(f"s_lshl_b32 s3, s3, 13")
        A.salu(f"s_add_u32 s3, s3, s{sWB}")
        A.vmem(f"buffer_load_dword v{T4}, v{T1}, s[{SW_}:{SW_+3}], s3 offen{NTT}", w={T4}, r={T1})
        V(f"v_lshlrev_b32 v{T2}, 7, v{L}", w={T2}, r={L})
        A.salu(f"s_and_b32 s3, s{sKVH}, 3")
        A.salu(f"s_mul_i32 s3, s3, 32256")
        A.salu(f"s_and_b32 s{sT}, s{sW}, 3")
        A.salu(f"s_lshl_b32 s{sT}, s{sT}, 13")
        A.salu(f"s_add_u32 s3, s3, s{sT}")
        A.salu(f"s_add_u32 s3, s3, s{sXB}")
        A.vmem(f"buffer_load_dword v{T5}, v{T2}, s[{SX}:{SX+3}], s3 offen{NTT}", w={T5}, r={T2})

    def dump_unit(u, stage_reg):
        slot = free.pop(0)
        unit_slot[u] = slot
        V(f"v_add_u32 v{DV+1}, {slot * SLOT}, v{DV}", w={DV + 1}, r={DV})
        for hv in range(4):
            for q in range(2):
                A.ds_write_b128(DV + 1, stage_reg + (hv * 2 + q) * 4, hv * 4096 + q * 1024)

    def dma_items(u):
        slot = free.pop(0)
        unit_slot[u] = slot
        base, const, sr_, vo, delta, nto = unit_info(u)
        nt = " nt" if OPT[nto] else ""
        def mk(q):
            def f():
                sbase(base, const)
                A.salu(f"s_add_u32 m0, s{sWL}, {slot * SLOT + q * 1024}", m0w=True)
                k = A.vmem(f"buffer_load_dwordx4 v{vo+q}, s[{sr_}:{sr_+3}], s{sT} offen{nt} lds", kind="dma", r={vo + q}, m0r=True)
                unit_last_vm[u] = k
            return f
        if not OPT["stag"]: return [mk(0), mk(1)]
        G = 8 // OPT["stag"]
        def cond(f, g):
            def h():
                lab = f"K1_D{nlab[0]}"; nlab[0] += 1
                A.salu(f"s_cmp_eq_u32 s{sT2}, {g}")
                A.salu(f"s_cbranch_scc0 {lab}")
                n0 = len(A.out)
                f()
                for o in A.out[n0:]: o.ws = 0
                A.label(lab)
                if g < G - 1: A.nvm -= 1
            return h
        return [cond(mk(q), g) for q in range(2) for g in range(G)]
    nlab = [0]

    NQ = OPT["nq"]
    PF = Prof(A, 0)
    PF.stamp("start")

    def addr_items(dst, base, slot, xors):
        it = [lambda: V(f"v_add_u32 v{dst[0]}, {slot * SLOT}, v{base}", w={dst[0]}, r={base})]
        for i, x in enumerate(xors):
            if i == 0: continue
            it.append(lambda i=i, x=x: V(f"v_xor_b32 v{dst[i]}, {x}, v{dst[0]}", w={dst[i]}, r={dst[0]}))
        return it

    A.salu(f"s_cmp_lt_u32 s{sW}, 4")
    A.salu("s_cbranch_scc1 K1_FAT")
    pf0 = PF.n
    staged = []
    if OPT["ld4"]:
        for q in range(2):
            V(f"v_subrev_u32 v{KQ+q}, {4*8*256}, v{KO+q}", w={KQ + q}, r={KO + q})
        NL = NSLOT - NQ
        def refill(s):
            done_q = 3 * max(s, 0)
            while nq[0] < 27 and nq[0] - done_q < NQ and free:
                issue_unit_4(nq[0]); nq[0] += 1
        def kv_issue():
            if nkv[0] < NL:
                if free:
                    issue_unit_4(27 + nkv[0]); nkv[0] += 1
        LW, LX = FR + 4, FR + 5
        nroll = [NQ // 3]
        def lroll(n):
            n = min(n, 9 - nroll[0])
            if n <= 0 or OPT["roll"] != 2: return
            a = nroll[0]; nroll[0] += n
            if n < 8:
                m = (1 << (8 * n)) - 1
                A.salu(f"s_mov_b32 exec_lo, {m & 0xffffffff}")
                A.salu(f"s_mov_b32 exec_hi, {m >> 32}")
            A.salu(f"s_add_u32 s3, s8, {a * 64 * 8192}")
            A.vmem(f"buffer_load_dword v{FR+6}, v{LW}, s[{SW_}:{SW_+3}], s3 offen{NTT}", w={FR + 6}, r={LW})
            A.vmem(f"buffer_load_dword v{FR+7}, v{LX}, s[{SX}:{SX+3}], s9 offen offset:{a * 128}{NTT}", w={FR + 7}, r={LX})
            if n < 8: A.salu("s_mov_b64 exec, -1")
        refill(-1)
        for _ in range(OPT["kv0"]): kv_issue()
        if not OPT["roll"]: flood()
        if OPT["roll"] == 2:
            V(f"v_bfe_u32 v{T1}, v{L}, 2, 1", w={T1}, r={L})
            A.salu(f"s_lshl_b32 s3, s{sW3}, 1")
            V(f"v_add_u32 v{T1}, s3, v{T1}", w={T1}, r={T1})
            V(f"v_lshrrev_b32 v{T3}, 3, v{L}", w={T3}, r={L})
            V(f"v_lshl_add_u32 v{T1}, v{T3}, 6, v{T1}", w={T1}, r={T3, T1})
            V(f"v_lshlrev_b32 v{T1}, 13, v{T1}", w={T1}, r={T1})
            V(f"v_and_b32 v{T2}, 3, v{L}", w={T2}, r={L})
            V(f"v_lshl_add_u32 v{LW}, v{T2}, 7, v{T1}", w={LW}, r={T2, T1})
            V(f"v_and_b32 v{T1}, 7, v{L}", w={T1}, r={L})
            V(f"v_min_u32 v{T1}, 6, v{T1}", w={T1}, r={T1})
            A.salu(f"s_mul_i32 s3, s{sW3}, 7")
            V(f"v_add_u32 v{T1}, s3, v{T1}", w={T1}, r={T1})
            V(f"v_mul_u32_u24 v{T1}, 1152, v{T1}", w={T1}, r={T1})
            V(f"v_lshl_add_u32 v{LX}, v{T3}, 7, v{T1}", w={LX}, r={T3, T1})
            A.salu(f"s_lshl_b32 s8, s{sB}, 16")
            A.salu(f"s_add_u32 s8, s8, s{sWB}")
            A.salu(f"s_and_b32 s9, s{sKVH}, 3")
            A.salu(f"s_mul_i32 s9, s9, {28*1152}")
            A.salu(f"s_add_u32 s9, s9, s{sXB}")
            lroll(OPT["pflead"] - nroll[0])
        for s in range(9):
            A.wait_vm(max(unit_last_vm[u] for u in stage_units[s]))
            A.barrier()
            PF.stamp(f"q{s}")
            if s > 0:
                for u in stage_units[s - 1]: free.append(unit_slot[u])
            refill(s)
            lroll(OPT["pfrate"])
            if s == 8:
                xch.append(free.pop(0)); xch.append(free.pop(0))
            elif s >= OPT["kvs"]:
                for _ in range(OPT["kvrate"]): kv_issue()
            if nq[0] == 27 and nkv[0] >= NL:
                while free:
                    issue_unit_4(27 + nkv[0]); nkv[0] += 1
        A.salu("s_branch K1_ATT")
        ldr_vm = (A.nvm, A.vm_done)
    else:
        A.salu(f"s_cmp_ge_u32 s{sW}, 6")
        A.salu("s_cbranch_scc1 K1_KVL")
        pf0 = PF.n
        kvslots = [free.pop() for _ in range(NSLOT - NQ)]
        def refill(s):
            done_q = 3 * max(s, 0)
            while nq[0] < 27 and nq[0] - done_q < NQ and free:
                issue_unit_q(nq[0]); nq[0] += 1
        refill(-1)
        for s in range(9):
            A.wait_vm(max(unit_last_vm[u] for u in stage_units[s]))
            A.barrier()
            PF.stamp(f"q{s}")
            if s > 0:
                for u in stage_units[s - 1]: free.append(unit_slot[u])
            refill(s)
            if s == 8:
                xch.append(free.pop(0)); xch.append(free.pop(0))
        A.waitcnt(vm=0)
        A.vm_done = A.nvm
        A.salu("s_branch K1_ATT")
        A.label("K1_KVL")
        A.win = []
        A.salu("s_nop 4")
        PF.n = pf0; PF.names = PF.names[:pf0]
        for q in range(2):
            V(f"v_subrev_u32 v{KQ+q}, {6*8*256}, v{KO+q}", w={KQ + q}, r={KO + q})
        V(f"v_lshlrev_b32 v{DV}, 4, v{L}", w={DV}, r={L})
        V(f"v_add_u32 v{DV}, s{sWL4}, v{DV}", w={DV}, r={DV})
        late_free = free[:]; free[:] = kvslots
        NL = len(kvslots)
        TV = FR + 4
        V(f"v_lshlrev_b32 v{TV}, 7, v{L}", w={TV}, r={L})
        A.salu(f"s_lshl_b32 s3, s{sW3}, 13")
        V(f"v_add_u32 v{TV}, s3, v{TV}", w={TV}, r={TV})
        NT = OPT["kvt"]
        ntouch = [0]
        def kv_issue():
            i = nkv[0]
            if i < NL: issue_unit_q(27 + i)
            elif i < NL + NSTG: issue_unit_q(27 + i, STG[i - NL])
            else:
                if ntouch[0] < NT:
                    u = 27 + NL + NSTG + ntouch[0]
                    base, const, sr_, vo, delta, nto = unit_info(u)
                    A.salu(f"s_add_u32 s{sT}, s{base}, {const}")
                    A.vmem(f"buffer_load_dword v{TV+1}, v{TV}, s[{sr_}:{sr_+3}], s{sT} offen", w={TV + 1}, r={TV})
                    ntouch[0] += 1
                return
            nkv[0] += 1
        for _ in range(OPT["kv0"]): kv_issue()
        for s in range(9):
            A.barrier()
            PF.stamp(f"q{s}")
            for _ in range(OPT["kvrate"]): kv_issue()
        assert nkv[0] == NL + NSTG
        free[:] = late_free
        staged = [(27 + NL + i, STG[i]) for i in range(NSTG)]
        while staged and free:
            u, r_ = staged.pop(0)
            A.wait_vm(unit_last_vm[u])
            dump_unit(u, r_)
        A.waitcnt(vm=0)
        A.vm_done = A.nvm
        A.wait_ds_all()
        A.salu("s_branch K1_ATT")
    A.label("K1_FAT")
    A.win = []
    A.salu("s_nop 4")
    PF.n = pf0; PF.names = PF.names[:pf0]
    TW, TX = XO, XO + 1
    if OPT["roll"] == 2:
        pass
    elif OPT["ld4"] and not OPT["roll"]:
        V(f"v_lshlrev_b32 v{TW}, 7, v{L}", w={TW}, r={L})
        A.salu(f"s_lshl_b32 s3, s{sW}, 13")
        V(f"v_add_u32 v{TW}, s3, v{TW}", w={TW}, r={TW})
    else:
        TW, TX = XO, XO + 1
        V(f"v_bfe_u32 v{T1}, v{L}, 2, 1", w={T1}, r={L})
        A.salu(f"s_lshl_b32 s3, s{sW}, 1")
        V(f"v_add_u32 v{T1}, s3, v{T1}", w={T1}, r={T1})
        V(f"v_lshlrev_b32 v{T1}, 13, v{T1}", w={T1}, r={T1})
        V(f"v_and_b32 v{T2}, 3, v{L}", w={T2}, r={L})
        V(f"v_lshl_add_u32 v{TW}, v{T2}, 7, v{T1}", w={TW}, r={T2, T1})
        V(f"v_and_b32 v{T1}, 7, v{L}", w={T1}, r={L})
        V(f"v_min_u32 v{T1}, 6, v{T1}", w={T1}, r={T1})
        A.salu(f"s_mul_i32 s3, s{sW}, 7")
        V(f"v_add_u32 v{T1}, s3, v{T1}", w={T1}, r={T1})
        V(f"v_mul_u32_u24 v{TX}, 1152, v{T1}", w={TX}, r={T1})
        A.salu(f"s_lshl_b32 s8, s{sB}, 16")
        A.salu(f"s_add_u32 s8, s8, s{sWB}")
        A.salu(f"s_and_b32 s9, s{sKVH}, 3")
        A.salu(f"s_mul_i32 s9, s9, {28*1152}")
        A.salu(f"s_add_u32 s9, s9, s{sXB}")
    def touch(s_):
        if not OPT["l2pf"] or s_ > 8: return
        A.salu(f"s_add_u32 s3, s8, {s_ * 64 * 8192}")
        A.vmem(f"buffer_load_dword v{T4}, v{TW}, s[{SW_}:{SW_+3}], s3 offen{NTT}", w={T4}, r={TW})
        A.vmem(f"buffer_load_dword v{T5}, v{TX}, s[{SX}:{SX+3}], s9 offen offset:{s_ * 128}{NTT}", w={T5}, r={TX})
    if OPT["roll"] == 2:
        touch = lambda s_: None
    elif OPT["roll"]:
        touch1 = touch
        nroll = [2]
        def roll(n):
            for _ in range(n):
                touch1(nroll[0]); nroll[0] += 1
        roll(OPT["pflead"] - 2)
        touch = lambda s_: roll(OPT["pfrate"])
    elif OPT["ld4"]:
        flood()
        ntouch = [0]
        def touch(s_):
            s_ -= OPT["pflead"]
            if s_ < OPT["kvt0"]: return
            for _ in range(OPT["kvtr"]):
                if ntouch[0] >= OPT["kvt"]: return
                ua = 27 + NL + 1 + ntouch[0]
                ia = unit_info(ua); ib = unit_info(ua + 1)
                A.salu(f"s_cmp_lt_u32 s{sW}, 2")
                A.salu(f"s_mov_b32 s3, {ib[1] - 16384}")
                A.salu(f"s_cselect_b32 s3, {ia[1]}, s3")
                A.salu(f"s_cselect_b32 s60, s{ia[2]}, s{ib[2]}")
                A.salu(f"s_cselect_b32 s61, s{ia[2]+1}, s{ib[2]+1}")
                A.salu(f"s_mov_b32 s62, s{ia[2]+2}")
                A.salu(f"s_mov_b32 s63, s{ia[2]+3}")
                A.salu(f"s_add_u32 s3, s3, s{sKVB}")
                A.vmem(f"buffer_load_dword v{T4}, v{TW}, s[60:63], s3 offen", w={T4}, r={TW})
                ntouch[0] += 2
    if not OPT["ld4"]:
        for s_ in range(2, OPT["pflead"]): touch(s_)
    if OPT["tlbw"]:
        A.salu("s_load_dwordx2 s[16:17], s[0:1], 32")
        A.salu("s_load_dwordx2 s[18:19], s[0:1], 72")
        A.salu("s_load_dwordx2 s[20:21], s[0:1], 80")
        D = NEGM
        V(f"v_lshlrev_b32 v{T1}, 12, v{L}", w={T1}, r={L})
        V(f"v_and_b32 v{T1}, 0x1ffff, v{T1}", w={T1}, r={T1})
        A.vmem(f"buffer_load_dword v{D}, v{T1}, s[{SV}:{SV+3}], s{sKVB} offen", w={D}, r={T1})
        if OPT["tlbw"] > 1:
            A.vmem(f"buffer_load_dword v{D+1}, v{T1}, s[{SK}:{SK+3}], s{sKVB} offen", w={D + 1}, r={T1})
        V(f"v_min_u32 v{T2}, 6, v{L}", w={T2}, r={L})
        V(f"v_lshlrev_b32 v{T2}, 17, v{T2}", w={T2}, r={T2})
        A.salu(f"s_mul_i32 s3, s{sBLK}, {O_BLK}")
        A.salu(f"s_mul_i32 s{sT}, s{sB}, {7*131072}")
        A.salu(f"s_add_u32 s3, s3, s{sT}")
        if OPT["fuse"]:
            A.salu(f"s_lshl_b32 s{sT}, s{sKVH}, 13")
            A.salu(f"s_add_u32 s3, s3, s{sT}")
            A.vmem(f"buffer_store_dword v{T2}, v{T2}, s[{SO}:{SO+3}], s3 offen sc1", r={T2}, storedata={T2})
        else:
            A.vmem(f"buffer_load_dword v{D+2}, v{T2}, s[{SO}:{SO+3}], s3 offen", w={D + 2}, r={T2})
        V(f"v_lshlrev_b32 v{T3}, 16, v{L}", w={T3}, r={L})
        A.salu("s_waitcnt lgkmcnt(0)")
        A.salu(f"s_cmp_eq_u32 s{sBLK}, 0")
        A.salu("s_cselect_b32 s60, s16, s18")
        A.salu("s_cselect_b32 s61, s17, s19")
        A.salu("s_and_b32 s61, s61, 0xffff")
        A.salu(f"s_mov_b32 s62, {4096*576*2}")
        A.salu("s_mov_b32 s63, 0x00020000")
        A.salu(f"s_mov_b32 s3, {8*65536}")
        A.vmem(f"buffer_load_dword v{D+3}, v{T3}, s[60:63], 0 offen", w={D + 3}, r={T3})
        A.vmem(f"buffer_load_dword v{D+4}, v{T3}, s[60:63], s3 offen", w={D + 4}, r={T3})
        A.salu("s_mov_b32 s16, s20")
        A.salu("s_and_b32 s17, s21, 0xffff")
        A.salu(f"s_mov_b32 s18, {896*1152*2}")
        A.salu("s_mov_b32 s19, 0x00020000")
        A.vmem(f"buffer_load_dword v{D+5}, v{T3}, s[16:19], 0 offen", w={D + 5}, r={T3})
    QA = [S, O]
    FBW = [P, QB]; FBX = [P + 16, QB + 16]
    AW = [FR, FR + 4]; AX = FR + 8
    def qaddr(s):
        u0 = 3 * s
        return (addr_items([AX + i for i in range(4)], BX, unit_slot[u0], [0, 32, 64, 96]) +
                addr_items([AW[0] + i for i in range(4)], BW, unit_slot[u0 + 1], [0, 64, 128, 192]) +
                addr_items([AW[1] + i for i in range(4)], BW, unit_slot[u0 + 2], [0, 64, 128, 192]))
    def qread_items(ks):
        it = [lambda: A.ds_read_b128(FBX[ks % 2], AX + ks), lambda: A.ds_read_b128(FBX[ks % 2] + 4, AX + ks, 4096)]
        for t in range(4):
            for j in range(2):
                it.append(lambda t=t, j=j: A.ds_read_tr(FBW[ks % 2] + 4 * t + 2 * j, AW[ks // 2] + t, ((ks % 2) * 16 + 4 * j) * 512))
        return it
    def qreads(ks):
        for it in qread_items(ks): last = it()
        return last
    for it in qaddr(0): it()
    A.barrier()
    PF.stamp("q0")
    pend = qreads(0)
    touch(OPT["pflead"])
    QI = OPT["qi"]
    for s in range(9):
        for ks in range(4):
            A.wait_ds(pend)
            rq = []
            if ks < 3:
                if QI: rq = qread_items(ks + 1)
                else: pend = qreads(ks + 1)
            nxt = qaddr(s + 1) if (ks == 3 and s < 8) else []
            m = 0
            for t in range(4):
                for r2 in range(2):
                    A.mfma(QA[r2] + 16 * t, FBW[ks % 2] + 4 * t, FBX[ks % 2] + 4 * r2, "zero" if (s == 0 and ks == 0) else None)
                    if nxt:
                        if m < 2:
                            for it in nxt[6 * m: 6 * m + 6]: it()
                        if m == 1:
                            A.barrier()
                            PF.stamp(f"q{s+1}")
                            if QI: rq = qread_items(0)
                            else: pend = qreads(0)
                        if m == 3: touch(s + 1 + OPT["pflead"])
                    for _ in range(QI):
                        if rq: pend = rq.pop(0)()
                    m += 1
            assert not rq
    A.salu(f"s_lshr_b32 s3, s{sW}, 1")
    A.salu(f"s_cmp_eq_u32 s3, 0")
    A.salu(f"s_cselect_b32 s3, {xch[0]}, {xch[1]}")
    A.salu(f"s_lshl_b32 s3, s3, 14")
    A.salu(f"s_and_b32 s{sT}, s{sW}, 1")
    A.salu(f"s_lshl_b32 s{sT}, s{sT}, 13")
    A.salu(f"s_add_u32 s3, s3, s{sT}")
    V(f"v_lshlrev_b32 v{T6}, 4, v{L}", w={T6}, r={L})
    V(f"v_add_u32 v{T6}, s3, v{T6}", w={T6}, r={T6})
    for i in range(64):
        V(f"v_mul_f32 v{O+i}, s{sC}, v{O+i}", w={O + i}, r={O + i})
    for q in range(32):
        V(f"v_cvt_pk_bf16_f32 v{P+q}, v{O+2*q}, v{O+2*q+1}", w={P + q}, r={O + 2 * q, O + 2 * q + 1})
        if q % 4 == 3:
            A.ds_write_b128(T6, P + q - 3, (q // 4) * 1024)
    for i in range(64):
        V(f"v_mul_f32 v{S+i}, s{sC}, v{S+i}", w={S + i}, r={S + i})
    for q in range(32):
        V(f"v_cvt_pk_bf16_f32 v{QB+q}, v{S+2*q}, v{S+2*q+1}", w={QB + q}, r={S + 2 * q, S + 2 * q + 1})
    A.wait_ds_all()
    A.waitcnt(vm=0)
    A.vm_done = A.nvm
    if OPT["ld4"]:
        A.nvm, A.vm_done = ldr_vm
    A.label("K1_ATT")
    A.win = []
    A.salu("s_nop 4")
    if OPT["stag"]:
        A.salu(f"s_lshr_b32 s{sT2}, s{sW}, {OPT['stag'] - 1}")

    SETA = [AD + i for i in range(8)]
    SETB = [XO, XO + 1, WO, WO + 1, BW, BX, T4, T5]
    kx = [32 * ks for ks in range(8)]
    vx = [(t << 6) ^ (32 * jj) for t in range(4) for jj in range(2)]
    SB = lambda h: S + 32 * (h % 2)
    PB = lambda h: P + 16 * (h % 2)
    phases = [("qk", 0)] + [x for h in range(7) for x in (("qk", h + 1), ("pv", h))] + [("pv", 7)]
    pset = {}
    for ph in phases:
        pset[ph] = SETA if ph[0] == "qk" else SETB
    pset[("qk", 0)] = SETB; pset[("pv", 7)] = SETA
    punit = lambda ph: UK[ph[1]] if ph[0] == "qk" else UV[ph[1]]
    def paddr(ph):
        u = punit(ph)
        return addr_items(pset[ph], BK if ph[0] == "qk" else BV, unit_slot[u], kx if ph[0] == "qk" else vx)
    mf = [(ph, i) for ph in phases for i in range(16)]
    syncJ = list(range(0, 6, OPT["bstep"]))
    if OPT["fuse"]:
        syncJ.append(6)
        K2 = K2Fused(A, sW, SO, QB)
    sync_pos = [phases.index(("pv", j)) * 16 + 12 for j in syncJ]
    first_read = {}
    for n, (ph, i) in enumerate(mf):
        first_read.setdefault(punit(ph), max(n - 4, -1))
    last_read = {}
    for n, (ph, i) in enumerate(mf):
        last_read[punit(ph)] = n - 4
    def publish_set(pos_from, pos_to):
        return [u for u, fr in first_read.items() if pos_from <= fr < pos_to]
    freed = set()
    dmaq = []
    def refill_att():
        while nkv[0] < 16 and free:
            dmaq.extend(dma_items(27 + nkv[0])); nkv[0] += 1

    pub = publish_set(-1, sync_pos[0])
    A.wait_vm(max(unit_last_vm[u] for u in pub))
    A.barrier()
    PF.stamp("a0")
    for u in stage_units[8]: free.append(unit_slot[u])
    A.salu(f"s_cmp_lt_u32 s{sW}, 4")
    A.salu(f"s_cbranch_scc1 K1_QGOT")
    if staged:
        A.salu(f"s_cmp_lt_u32 s{sW}, 6")
        A.salu(f"s_cbranch_scc1 K1_NODUMP")
        while staged:
            u, r_ = staged.pop(0)
            dump_unit(u, r_)
        A.label("K1_NODUMP")
    refill_att()
    A.salu(f"s_bfe_u32 s3, s{sW}, 0x10001")
    A.salu(f"s_cmp_eq_u32 s3, 0")
    A.salu(f"s_cselect_b32 s3, {xch[0]}, {xch[1]}")
    A.salu(f"s_lshl_b32 s3, s3, 14")
    A.salu(f"s_and_b32 s{sT}, s{sW}, 1")
    A.salu(f"s_lshl_b32 s{sT}, s{sT}, 13")
    A.salu(f"s_add_u32 s3, s3, s{sT}")
    V(f"v_lshlrev_b32 v{T6}, 4, v{L}", w={T6}, r={L})
    V(f"v_add_u32 v{T6}, s3, v{T6}", w={T6}, r={T6})
    for q in range(8):
        A.ds_read_b128(QB + 4 * q, T6, q * 1024)
    A.wait_ds_all()
    A.label("K1_QGOT")
    A.salu("s_nop 1")
    for it in paddr(("qk", 0)) + paddr(("qk", 1)): it()

    TT = [T0, T1, T2, T3]
    def max_items(regs, first, final):
        it = []
        r = list(regs)
        if first:
            a = r[:3]; b = r[3:6]; r = r[6:]
            it.append(lambda a=a: V(f"v_max3_f32 v{MX}, v{a[0]}, v{a[1]}, v{a[2]}", w={MX}, r=set(a)))
            it.append(lambda b=b: V(f"v_max3_f32 v{MX2}, v{b[0]}, v{b[1]}, v{b[2]}", w={MX2}, r=set(b)))
        k = 0
        while r:
            a = r[:2]; r = r[2:]
            d = MX if k % 2 == 0 else MX2
            it.append(lambda a=a, d=d: V(f"v_max3_f32 v{d}, v{d}, v{a[0]}, v{a[1]}", w={d}, r={d} | set(a)))
            k += 1
        if final:
            it.append(lambda: V(f"v_max_f32 v{MX}, v{MX}, v{MX2}", w={MX}, r={MX, MX2}))
            it.append(lambda: V(f"v_mov_b32 v{MX2}, v{MX}", w={MX2}, r={MX}))
            it.append(lambda: V(f"v_permlane32_swap_b32 v{MX}, v{MX2}", w={MX, MX2}, r={MX, MX2}, kind="perm"))
            it.append(lambda: V(f"v_max_f32 v{MX}, v{MX}, v{MX2}", w={MX}, r={MX, MX2}))
        return it
    def sm_items(h, lo, hi, sub):
        it = []
        sb, pb = SB(h), PB(h)
        if sub:
            it.append(lambda: V(f"v_sub_f32 v{sb+lo}, v{sb+lo}, v{MX}", w={sb + lo}, r={sb + lo, MX}))
        for e in range(lo, hi + 2):
            if sub and e + 1 < hi:
                it.append(lambda e=e: V(f"v_sub_f32 v{sb+e+1}, v{sb+e+1}, v{MX}", w={sb + e + 1}, r={sb + e + 1, MX}))
            if e < hi:
                it.append(lambda e=e: V(f"v_exp_f32 v{TT[e%4]}, v{sb+e}", w={TT[e % 4]}, r={sb + e}, kind="trans"))
            if lo <= e - 1 < hi:
                p = e - 1; acc = SUMA if p % 2 == 0 else SUMB
                if p < 2:
                    it.append(lambda p=p, acc=acc: V(f"v_mov_b32 v{acc}, v{TT[p%4]}", w={acc}, r={TT[p % 4]}))
                else:
                    it.append(lambda p=p, acc=acc: V(f"v_add_f32 v{acc}, v{acc}, v{TT[p%4]}", w={acc}, r={acc, TT[p % 4]}))
            if e - 2 >= lo and (e - 2) % 2 == 0 and e - 1 < hi:
                p = e - 2
                it.append(lambda p=p: V(f"v_cvt_pk_bf16_f32 v{pb+p//2}, v{TT[p%4]}, v{TT[(p+1)%4]}", w={pb + p // 2}, r={TT[p % 4], TT[(p + 1) % 4]}))
        return it
    def negm_items():
        return [lambda i=i: V(f"v_sub_f32 v{NEGM+i}, 0, v{MX}", w={NEGM + i}, r={MX}) for i in range(16)]
    def check(h):
        V(f"v_add_f32 v{SUMA}, v{SUMA}, v{SUMB}", w={SUMA}, r={SUMA, SUMB})
        if h > 0:
            V(f"v_cmp_nge_f32 vcc, s{sTHR}, v{SUMA}", r={SUMA}, sw={"vcc"})
            A.salu("s_nop 1")
            A.salu(f"s_cbranch_vccnz K1_SLOW{h}")
            A.label(f"K1_BACK{h}")
        V(f"v_add_f32 v{LSUM}, v{LSUM}, v{SUMA}", w={LSUM}, r={LSUM, SUMA})

    def side_for(ph):
        kind, h = ph
        if ph == ("qk", 0):
            return [], []
        if kind == "qk":
            hh = h - 1
            if hh == 0:
                main = max_items([SB(0) + i for i in range(32)], True, True) + sm_items(0, 0, 32, True)
            else:
                main = sm_items(hh, 16, 32, hh == 1)
            return main, paddr(("pv", hh))
        if h == 7: return [], []
        if h == 6:
            return sm_items(7, 0, 32, False), paddr(("pv", 7)) + (K2.addr_items() if OPT["fuse"] and OPT["fuse"] != 6 else [])
        main = sm_items(h + 1, 0, 16, h == 0)
        if h == 0: main = negm_items() + main
        return main, paddr(("qk", h + 2))

    rid = {}
    def issue_read(n):
        ph, i = mf[n]
        st = pset[ph]; fr = FR + 4 * (n % 4)
        if ph[0] == "qk":
            rid[n] = A.ds_read_b128(fr, st[i % 8], (i // 8) * 8192)
        else:
            g, t = i // 4, i % 4
            A.ds_read_tr(fr, st[2 * t], g * 4096)
            rid[n] = A.ds_read_tr(fr + 2, st[2 * t + 1], g * 4096 + 2048)
    for n in range(4): issue_read(n)
    gap = 0
    for n, (ph, i) in enumerate(mf):
        kind, h = ph
        if i == 0:
            main, adr = side_for(ph)
            plan = [[] for _ in range(16)]
            for k, it in enumerate(adr): plan[k * 12 // max(len(adr), 1)].append(it)
            s0 = 1 if ph == ("qk", 1) else 0
            for k, it in enumerate(main): plan[s0 + k * (16 - s0) // len(main)].append(it)
        A.wait_ds(rid[n])
        fr = FR + 4 * (n % 4)
        if kind == "qk":
            kt, ks = i // 8, i % 8
            c = None
            if ks == 0: c = "zero" if h <= 1 else NEGM
            A.mfma(SB(h) + 16 * kt, fr, QB + 4 * ks, c)
        else:
            g, t = i // 4, i % 4
            A.mfma(O + 16 * t, fr, PB(h) + 4 * g, "zero" if (h == 0 and g == 0) else None)
        if n in sync_pos:
            k = sync_pos.index(n)
            pub = publish_set(n, sync_pos[k + 1] if k + 1 < len(sync_pos) else 10**9)
            while dmaq: dmaq.pop(0)()
            A.wait_ds_all()
            A.wait_vm(max(unit_last_vm[u] for u in pub))
            A.barrier()
            PF.stamp(f"x{h}")
            if k == 0: free.extend(xch)
            for u, lr in last_read.items():
                if lr < n and u not in freed:
                    freed.add(u); free.append(unit_slot[u])
            refill_att()
            if OPT["fuse"] == 6:
                if h == 1: K2.loads()
                if h == 2: K2.scalars()
                if h == 3: K2.addr6()
                if h >= OPT["wo0"]:
                    assert nkv[0] == 16
                    while free and len(K2.slots6) < 8:
                        j = len(K2.slots6); K2.slots6.append(free.pop(0))
                        if h < 6 or OPT["wo6"]:
                            dmaq.extend([lambda j=j, q=q: K2.wo_piece(j >> 1, (j & 1) * 2 + q) for q in range(2)])
                            K2.done6 = j + 1
            elif OPT["fuse"]:
                if h == 4: K2.loads()
                if h == 5: K2.scalars()
                if h == 6:
                    assert len(free) >= 8, free
                    its = K2.wo_items(free[:8])
                    K2.mslot = free[8]
                    if OPT["fuse"] < 3: dmaq.extend(its)
            if OPT["wopf"] and h == OPT["wopf"] - 1:
                A.salu("s_load_dwordx2 s[60:61], s[0:1], 32")
                A.salu("s_load_dwordx2 s[62:63], s[0:1], 72")
                if OPT["xm"]:
                    A.salu(f"s_lshr_b32 s3, s2, 3")
                    A.salu(f"s_lshl_b32 s3, s3, 3")
                    A.salu(f"s_add_u32 s3, s3, s{sW}")
                    A.salu(f"s_mul_i32 s3, s3, {16*1152}")
                    A.salu(f"s_and_b32 s{sT}, s2, 1")
                    A.salu(f"s_lshl_b32 s{sT}, s{sT}, 9")
                    A.salu(f"s_add_u32 s3, s3, s{sT}")
                    V(f"v_mbcnt_lo_u32_b32 v{T6}, -1, 0", w={T6})
                    V(f"v_mbcnt_hi_u32_b32 v{T6}, -1, v{T6}", w={T6}, r={T6})
                    V(f"v_lshrrev_b32 v{T7}, 2, v{T6}", w={T7}, r={T6})
                    V(f"v_mul_u32_u24 v{T7}, 1152, v{T7}", w={T7}, r={T7})
                    V(f"v_and_b32 v{T6}, 3, v{T6}", w={T6}, r={T6})
                    V(f"v_lshl_add_u32 v{T6}, v{T6}, 7, v{T7}", w={T6}, r={T6, T7})
                else:
                    if OPT["wox"]:
                        A.salu(f"s_lshr_b32 s3, s2, 5")
                        A.salu(f"s_lshl_b32 s3, s3, 4")
                        A.salu(f"s_bfe_u32 s{sT}, s2, 0x20003")
                        A.salu(f"s_add_u32 s3, s3, s{sT}")
                    else:
                        A.salu(f"s_lshl_b32 s3, s{sB}, 4")
                        A.salu(f"s_add_u32 s3, s3, s{sKVH}")
                    A.salu(f"s_mul_i32 s3, s3, 288")
                    A.salu(f"s_lshl_b32 s{sT}, s{sW}, 6")
                    A.salu(f"s_min_u32 s{sT}, s{sT}, 224")
                    A.salu(f"s_add_u32 s3, s3, s{sT}")
                    A.salu(f"s_lshl_b32 s3, s3, 7")
                    V(f"v_mbcnt_lo_u32_b32 v{T7}, -1, 0", w={T7})
                    V(f"v_mbcnt_hi_u32_b32 v{T7}, -1, v{T7}", w={T7}, r={T7})
                    V(f"v_lshlrev_b32 v{T7}, 7, v{T7}", w={T7}, r={T7})
                A.salu("s_waitcnt lgkmcnt(0)")
                A.salu(f"s_cmp_eq_u32 s{sBLK}, 0")
                A.salu("s_cselect_b32 s60, s60, s62")
                A.salu("s_cselect_b32 s61, s61, s63")
                A.salu("s_and_b32 s61, s61, 0xffff")
                A.salu(f"s_mov_b32 s62, {4096*576*2}")
                A.salu("s_mov_b32 s63, 0x00020000")
                if OPT["xm"]:
                    A.salu("s_mov_b32 exec_lo, 0x88888888")
                    A.salu("s_mov_b32 exec_hi, 0x88888888")
                    A.vmem(f"buffer_load_dword v{T7}, v{T6}, s[60:63], s3 offen offset:128", w={T7}, r={T6})
                    A.salu("s_mov_b64 exec, -1")
                TA_ = T6 if OPT["xm"] else T7
                A.vmem(f"buffer_load_dword v{T7}, v{TA_}, s[60:63], s3 offen", w={T7}, r={TA_})
        if n + 4 < len(mf): issue_read(n + 4)
        for it in plan[i]: it()
        gap += 1
        if dmaq and gap >= OPT["dmagap"]:
            dmaq.pop(0)(); gap = 0
        if i == 15:
            if kind == "qk" and h >= 1: check(h - 1)
            if ph == ("pv", 6): check(7)
    assert not dmaq
    PF.stamp("pv7")
    V(f"v_mov_b32 v{T0}, v{LSUM}", w={T0}, r={LSUM})
    V(f"v_permlane32_swap_b32 v{T0}, v{LSUM}", w={T0, LSUM}, r={T0, LSUM}, kind="perm")
    V(f"v_add_f32 v{T0}, v{T0}, v{LSUM}", w={T0}, r={T0, LSUM})
    V(f"v_rcp_f32 v{T0}, v{T0}", w={T0}, r={T0}, kind="trans")
    A.salu(f"s_cmp_eq_u32 s{sRT}, 3")
    A.salu("s_cbranch_scc0 K1_NOMASK")
    A.salu("s_mov_b32 exec_lo, 0xffff")
    A.salu("s_mov_b32 exec_hi, 0xffff")
    A.label("K1_NOMASK")
    for f in range(8):
        b0 = O + 8 * f
        for i in range(8):
            V(f"v_mul_f32 v{b0+i}, v{T0}, v{b0+i}", w={b0 + i}, r={T0, b0 + i})
        d = P + 4 * f
        for q in range(4):
            V(f"v_cvt_pk_bf16_f32 v{d+q}, v{b0+2*q}, v{b0+2*q+1}", w={d + q}, r={b0 + 2 * q, b0 + 2 * q + 1})
        A.vmem(f"buffer_store_dwordx4 {vname(d,4)}, v{OST}, s[{SO}:{SO+3}], s{sOB} offen offset:{f*512}{' sc1' if OPT['fuse'] else ' nt' if OPT['ntst'] else ''}", r=vr(d, 4) | {OST}, storedata=vr(d, 4))
    if OPT["fuse"]:
        K2.body(PF, sBLK, sB, sKVH)
    PF.dump(24, sW, 0)
    A.label("K1_END")
    A.salu("s_endpgm")
    for h in range(1, 8):
        A.label(f"K1_SLOW{h}")
        A.flush_hazards()
        sb = SB(h)
        for it in max_items([sb + i for i in range(32)], True, True): it()
        V(f"v_max_f32 v{MX}, 0, v{MX}", w={MX}, r={MX})
        V(f"v_sub_f32 v{MX2}, 0, v{MX}", w={MX2}, r={MX})
        V(f"v_exp_f32 v{MX2}, v{MX2}", w={MX2}, r={MX2}, kind="trans")
        for i in range(64):
            V(f"v_mul_f32 v{O+i}, v{MX2}, v{O+i}", w={O + i}, r={MX2, O + i})
        V(f"v_mul_f32 v{LSUM}, v{MX2}, v{LSUM}", w={LSUM}, r={MX2, LSUM})
        for i in range(16):
            V(f"v_sub_f32 v{NEGM+i}, v{NEGM+i}, v{MX}", w={NEGM + i}, r={NEGM + i, MX})
        if h < 7:
            s2 = SB(h + 1)
            for i in range(32):
                V(f"v_sub_f32 v{s2+i}, v{s2+i}, v{MX}", w={s2 + i}, r={s2 + i, MX})
        for it in sm_items(h, 0, 32, True): it()
        V(f"v_add_f32 v{SUMA}, v{SUMA}, v{SUMB}", w={SUMA}, r={SUMA, SUMB})
        A.flush_hazards()
        A.salu(f"s_branch K1_BACK{h}")

class K2Fused:
    def __init__(self, A, sW, SO, WOFF):
        self.A = A; self.sW = sW; self.SO = SO; self.WOFF = WOFF
        self.SWO, self.SOUT, self.SDBG = 28, 32, 20
        self.sBLK, self.sTT, self.sMT, self.sNT = 16, 17, 18, 19
        self.sWL, self.sWB, self.sO0, self.sO1, self.sT = 49, 50, 8, 9, 52
        self.sP0, self.sP1 = 10, 11
        self.last_vm = {}
    def loads(self):
        A = self.A
        A.salu("s_load_dwordx2 s[8:9], s[0:1], 32")
        A.salu("s_load_dwordx2 s[10:11], s[0:1], 72")
        A.salu("s_load_dwordx2 s[12:13], s[0:1], 80")
        A.salu("s_load_dwordx2 s[14:15], s[0:1], 88")
    def scalars(self):
        A = self.A; sW = self.sW
        sBLK, sTT, sMT, sNT = self.sBLK, self.sTT, self.sMT, self.sNT
        A.salu("s_waitcnt lgkmcnt(0)")
        if OPT["xm"]:
            A.salu("s_bitcmp1_b32 s2, 2")
            A.salu(f"s_cselect_b32 s{sBLK}, 1, 0")
            A.salu("s_cselect_b32 s8, s10, s8")
            A.salu("s_cselect_b32 s9, s11, s9")
            srd(A, self.SWO, 8, 4096 * 576 * 2)
            srd(A, self.SOUT, 12, 896 * 1152 * 2)
            srd(A, self.SDBG, 14, 256)
            A.salu("s_lshr_b32 s3, s2, 3")
            A.salu("s_and_b32 s12, s2, 1")
            A.salu(f"s_lshr_b32 s{sMT}, s3, 2")
            A.salu(f"s_and_b32 s{sNT}, s3, 3")
            A.salu("s_mul_i32 s13, s12, 5")
            A.salu(f"s_add_u32 s{sNT}, s{sNT}, s13")
            A.salu("s_lshl_b32 s13, s12, 2")
            A.salu("s_add_u32 s13, s13, s3")
            A.salu("s_sub_u32 s13, s13, 28")
            A.salu("s_cmp_ge_u32 s3, 28")
            A.salu(f"s_cselect_b32 s{sMT}, s13, s{sMT}")
            A.salu(f"s_cselect_b32 s{sNT}, 4, s{sNT}")
            A.salu(f"s_cmp_eq_u32 s{sMT}, 7")
            A.salu(f"s_cselect_b32 s{sTT}, 255, 0")
            A.salu(f"s_min_u32 s{sMT}, s{sMT}, 6")
            A.salu("s_bfe_u32 s13, s2, 0x10001")
            A.salu("s_mul_i32 s13, s13, 7")
            A.salu(f"s_add_u32 s{sMT}, s{sMT}, s13")
        else:
            A.salu("s_and_b32 s3, s2, 7")
            A.salu("s_lshl_b32 s3, s3, 5")
            A.salu(f"s_lshr_b32 s{sTT}, s2, 3")
            A.salu(f"s_add_u32 s{sTT}, s3, s{sTT}")
            A.salu(f"s_min_u32 s3, s{sTT}, 251")
            A.salu("s_cmp_ge_u32 s3, 126")
            A.salu(f"s_cselect_b32 s{sBLK}, 1, 0")
            A.salu("s_cselect_b32 s8, s10, s8")
            A.salu("s_cselect_b32 s9, s11, s9")
            srd(A, self.SWO, 8, 4096 * 576 * 2)
            srd(A, self.SOUT, 12, 896 * 1152 * 2)
            srd(A, self.SDBG, 14, 256)
            A.salu(f"s_mul_i32 s12, s{sBLK}, 126")
            A.salu("s_sub_u32 s3, s3, s12")
            A.salu("s_mul_i32 s12, s3, 57")
            A.salu(f"s_lshr_b32 s{sMT}, s12, 9")
            A.salu(f"s_mul_i32 s12, s{sMT}, 9")
            A.salu(f"s_sub_u32 s{sNT}, s3, s12")
        A.salu(f"s_mul_i32 s{self.sWB}, s{sW}, {(32 if OPT['fuse'] == 5 else 512)*1152}")
        A.salu(f"s_lshl_b32 s12, s{sNT}, 7")
        A.salu(f"s_add_u32 s{self.sWB}, s{self.sWB}, s12")
        A.salu(f"s_mul_i32 s{self.sO0}, s{sBLK}, {O_BLK}")
        A.salu(f"s_lshl_b32 s12, s{sMT}, 19")
        A.salu(f"s_add_u32 s{self.sO0}, s{self.sO0}, s12")
        A.salu(f"s_lshl_b32 s12, s{sW}, {10 if OPT['fuse'] == 5 else 14}")
        A.salu(f"s_add_u32 s{self.sO0}, s{self.sO0}, s12")
        A.salu(f"s_add_u32 s{self.sO1}, s{self.sO0}, {2*131072}")
        if OPT["ntf"]:
            A.salu(f"s_lshl_b32 s12, s{sBLK}, 6")
            A.salu("s_add_u32 s12, s12, 128")
        else:
            A.salu(f"s_lshl_b32 s12, s{sBLK}, 7")
            A.salu(f"s_lshr_b32 s13, s{sW}, 1")
            A.salu("s_lshl_b32 s13, s13, 2")
            A.salu("s_add_u32 s12, s12, s13")
        sh = 2 if OPT["ntf"] else 4
        A.salu(f"s_mul_i32 s13, s{sMT}, 148")
        A.salu(f"s_lshr_b32 s{self.sP0}, s13, 8")
        A.salu(f"s_lshl_b32 s{self.sP0}, s{self.sP0}, {sh}")
        A.salu(f"s_add_u32 s{self.sP0}, s{self.sP0}, s12")
        A.salu("s_add_u32 s13, s13, 111")
        A.salu(f"s_lshr_b32 s{self.sP1}, s13, 8")
        A.salu(f"s_lshl_b32 s{self.sP1}, s{self.sP1}, {sh}")
        A.salu(f"s_add_u32 s{self.sP1}, s{self.sP1}, s12")
    def addr_items(self):
        V = self.A.valu; W = self.WOFF
        L, T1, T2, T4 = W + 4, W + 5, W + 6, W + 7
        return [
            lambda: V(f"v_mbcnt_lo_u32_b32 v{L}, -1, 0", w={L}),
            lambda: V(f"v_mbcnt_hi_u32_b32 v{L}, -1, v{L}", w={L}, r={L}),
            lambda: V(f"v_lshrrev_b32 v{T1}, 3, v{L}", w={T1}, r={L}),
            lambda: V(f"v_mul_u32_u24 v{T1}, 1152, v{T1}", w={T1}, r={T1}),
            lambda: V(f"v_bfe_u32 v{T2}, v{L}, 4, 1", w={T2}, r={L}),
            lambda: V(f"v_lshlrev_b32 v{T2}, 2, v{T2}", w={T2}, r={T2}),
            lambda: V(f"v_and_b32 v{T4}, 7, v{L}", w={T4}, r={L}),
            lambda: V(f"v_xor_b32 v{T4}, v{T4}, v{T2}", w={T4}, r={T4, T2}),
            lambda: V(f"v_lshl_add_u32 v{W}, v{T4}, 4, v{T1}", w={W}, r={T4, T1}),
        ] + [lambda i=i: V(f"v_add_u32 v{W+i}, {9216*i}, v{W}", w={W + i}, r={W}) for i in range(1, 4)]
    def addr6(self):
        V = self.A.valu
        W, L, T1 = 6, 13, 12
        V(f"v_mbcnt_lo_u32_b32 v{L}, -1, 0", w={L})
        V(f"v_mbcnt_hi_u32_b32 v{L}, -1, v{L}", w={L}, r={L})
        V(f"v_lshrrev_b32 v{T1}, 3, v{L}", w={T1}, r={L})
        V(f"v_mul_u32_u24 v{T1}, 1152, v{T1}", w={T1}, r={T1})
        V(f"v_and_b32 v{W}, 7, v{L}", w={W}, r={L})
        V(f"v_bfe_u32 v{L}, v{L}, 4, 1", w={L}, r={L})
        V(f"v_lshlrev_b32 v{L}, 2, v{L}", w={L}, r={L})
        V(f"v_xor_b32 v{W}, v{W}, v{L}", w={W}, r={W, L})
        V(f"v_lshl_add_u32 v{W}, v{W}, 4, v{T1}", w={W}, r={W, T1})
        self.A.salu(f"s_lshl_b32 s{self.sWL}, s{self.sW}, 11")
        self.slots6 = []
    def wo_piece(self, u, i):
        A = self.A; W = self.WOFF; S = self.SWO
        if OPT["fuse"] == 6:
            A.salu(f"s_add_u32 s{self.sT}, s{self.sWB}, {u * 32 * 1152 + i * 9216}")
            A.salu(f"s_add_u32 m0, s{self.sWL}, {self.slots6[2 * (u % OPT['ring']) + (i >> 1)] * SLOT + (i & 1) * 1024}", m0w=True)
            return A.vmem(f"buffer_load_dwordx4 v6, s[{S}:{S+3}], s{self.sT} offen{' nt' if OPT['ntwo'] else ''} lds", kind="dma", r={6}, m0r=True)
        A.salu(f"s_add_u32 s{self.sT}, s{self.sWB}, {u * 32 * 1152}")
        A.salu(f"s_add_u32 m0, s{self.sWL}, {(u % 4) * 4096 + i * 1024}", m0w=True)
        A.vmem(f"buffer_load_dwordx4 v{W+i}, s[{S}:{S+3}], s{self.sT} offen{' nt' if OPT['ntwo'] else ''} lds", kind="dma", r={W + i}, m0r=True)
    def wo_items(self, slots):
        A = self.A
        tab = sum(s << (4 * w) for w, s in enumerate(slots))
        A.salu(f"s_lshl_b32 s3, s{self.sW}, 2")
        A.salu(f"s_lshr_b32 s3, {tab:#x}, s3")
        A.salu("s_and_b32 s3, s3, 15")
        A.salu(f"s_lshl_b32 s{self.sWL}, s3, 14")
        return [lambda u=u, i=i: self.wo_piece(u, i) for u in range(4) for i in range(4)]
    def dyn(self, PF, L, OOFF, BA, AF, OF, ACC):
        A = self.A; V = A.valu; sW = self.sW; SO = self.SO; SDBG = self.SDBG; W = self.WOFF; S = self.SWO
        T1, T2, T3, T4 = 1, 2, 3, 4
        PD = 8
        vPA, vMA, vT, vM = W + 4, W + 5, W + 6, W + 7
        sPM, sCNT, sDONE, sJ, sA, sB_ = 60, 62, 63, 12, 13, 14
        V(f"v_mov_b32 v{vPA}, s{self.sP1}", w={vPA})
        V(f"v_mov_b32 v{T4}, s{self.sP0}", w={T4})
        V(f"v_cmp_gt_u32 vcc, 16, v{L}", r={L}, sw={"vcc"})
        V(f"v_cndmask_b32 v{vPA}, v{vPA}, v{T4}, vcc", w={vPA}, r={vPA, T4}, sr={"vcc"})
        V(f"v_and_b32 v{T4}, 15, v{L}", w={T4}, r={L})
        V(f"v_add_u32 v{vPA}, v{T4}, v{vPA}", w={vPA}, r={vPA, T4})
        V(f"v_mov_b32 v{vMA}, {self.mslot * SLOT}", w={vMA})
        V(f"v_mov_b32 v{vT}, 0", w={vT})
        A.ds(f"ds_write_b32 v{vMA}, v{vT}", r={vMA, vT})
        A.salu(f"s_cmp_eq_u32 s{sW}, 0")
        A.salu(f"s_cselect_b32 s{sPM}, -1, 0")
        A.salu(f"s_mov_b32 s{sPM+1}, 0")
        A.salu(f"s_mov_b32 s{sCNT}, 0x40000")
        A.salu(f"s_mov_b32 s{sDONE}, 0")
        A.salu(f"s_mov_b32 s15, 0")
        A.waitcnt(vm=0, lgkm=0); A.vm_done = A.nvm; A.ds_done = A.nds
        PF.stamp("st")
        A.barrier()
        A.salu("s_cbranch_scc0 K1_NOFLAG")
        A.salu("s_mov_b64 exec, 1")
        A.salu(f"buffer_atomic_add v{T2}, v{T1}, s[{SDBG}:{SDBG+3}], 0 offen sc1")
        A.salu("s_mov_b64 exec, -1")
        A.label("K1_NOFLAG")
        A.salu(f"s_cmp_ge_u32 s{self.sTT}, 252")
        A.salu("s_cbranch_scc1 K1_END")
        def poll(r, counted=True):
            A.salu(f"s_mov_b64 exec, s[{sPM}:{sPM+1}]")
            txt = f"buffer_load_ubyte v{PD+r}, v{vPA}, s[{SDBG}:{SDBG+3}], 0 offen sc1"
            if counted: A.vmem(txt, w={PD + r}, r={vPA})
            else: A.salu(txt)
            A.salu("s_mov_b64 exec, -1")
        def consume(r):
            A.salu(f"s_mov_b64 exec, s[{sPM}:{sPM+1}]")
            V(f"v_cmp_ne_u32 vcc, 0, v{PD+r}", r={PD + r}, sw={"vcc"})
            A.salu("s_nop 1")
            A.salu(f"s_lshr_b32 s{sA}, vcc_lo, 16")
            A.salu(f"s_and_b32 s{sA}, s{sA}, vcc_lo")
            A.salu(f"s_or_b32 s15, s15, s{sA}")
            V(f"v_mov_b32 v{vT}, s15", w={vT})
            A.ds(f"ds_write_b32 v{vMA}, v{vT}", r={vMA, vT})
            A.salu("s_mov_b64 exec, -1")
        def pick(k):
            A.label(f"K1_PK{k}")
            A.ds(f"ds_read_b32 v{vM}, v{vMA}", w={vM}, r={vMA})
            A.waitcnt(lgkm=0); A.ds_done = A.nds
            A._emit(I(f"v_readfirstlane_b32 s{sA}, v{vM}", "rdlane", r={vM}, sw={sA}))
            A.salu(f"s_andn2_b32 s{sA}, s{sA}, s{sDONE}", sr={sA})
            A.salu(f"s_cbranch_scc1 K1_PG{k}")
            poll(k % 4, False)
            A.salu("s_waitcnt vmcnt(0)")
            consume(k % 4)
            A.salu(f"s_sleep {OPT['slp']}")
            A.salu(f"s_sub_u32 s{sCNT}, s{sCNT}, 1")
            A.salu(f"s_cmp_lg_u32 s{sCNT}, 0")
            A.salu(f"s_cbranch_scc1 K1_PK{k}")
            A.salu(f"s_mov_b32 s{sCNT}, 1")
            A.salu(f"s_andn2_b32 s{sA}, 0xffff, s{sDONE}")
            A.label(f"K1_PG{k}")
            A.salu(f"s_ff1_i32_b32 s{sJ}, s{sA}")
            A.salu(f"s_bitset1_b32 s{sDONE}, s{sJ}")
        NU = 16; DEPTH = 4
        last_vm = {}
        def issue(u):
            slot = u % DEPTH
            pick(u)
            if self.first: PF.stamp("go"); self.first = False
            if 4 <= u: poll(u % 4)
            A.salu(f"s_mul_i32 s{sA}, s{sJ}, {256*1152}")
            A.salu(f"s_add_u32 s{sA}, s{sA}, s{self.sWB}")
            for i in range(4):
                A.salu(f"s_add_u32 m0, s{self.sWL}, {slot * 4096 + i * 1024}", m0w=True)
                A.vmem(f"buffer_load_dwordx4 v{W+i}, s[{S}:{S+3}], s{sA} offen{' nt' if OPT['ntwo'] else ''} lds", kind="dma", r={W + i}, m0r=True)
            A.salu(f"s_lshl_b32 s{sJ}, s{sJ}, 13")
            A.salu(f"s_add_u32 s{sA}, s{sJ}, s{self.sO0}")
            A.salu(f"s_add_u32 s{sB_}, s{sJ}, s{self.sO1}")
            for ks in range(2):
                for tm in range(2):
                    d = OF + slot * 16 + (ks * 2 + tm) * 4
                    k = A.vmem(f"buffer_load_dwordx4 {vname(d,4)}, v{OOFF}, s[{SO}:{SO+3}], s{sA if tm == 0 else sB_} offen offset:{ks*512} sc1", w=vr(d, 4), r={OOFF})
            last_vm[u] = k
        def dsreads(u):
            slot = u % DEPTH
            ab = AF + (u % 2) * 16
            for ks in range(2):
                for tn in range(2):
                    for j in range(2):
                        k = A.ds_read_tr(ab + (ks * 2 + tn) * 4 + 2 * j, BA + tn, slot * 4096 + (16 * ks + 8 * j) * 128)
            return k
        self.first = True
        for u in range(DEPTH): issue(u)
        A.wait_vm(last_vm[0])
        pend = dsreads(0)
        for u in range(NU):
            A.wait_ds(pend)
            if u + 1 < NU:
                A.wait_vm(last_vm[u + 1])
                if u + 1 >= 4 and u + DEPTH < NU: consume((u + 1) % 4)
                pend = dsreads(u + 1)
            ab = AF + (u % 2) * 16
            ob = OF + (u % DEPTH) * 16
            for ks in range(2):
                for tn in range(2):
                    for tm in range(2):
                        c = "zero" if (u == 0 and ks == 0) else None
                        A.mfma(ACC + (tn * 2 + tm) * 16, ab + (ks * 2 + tn) * 4, ob + (ks * 2 + tm) * 4, c)
            if u + DEPTH < NU: issue(u + DEPTH)
            if u in (0, 7, 15): PF.stamp(f"u{u}")
    def body(self, PF, sBLK1, sB1, sKVH1):
        A = self.A; V = A.valu; sW = self.sW; SO = self.SO
        T0, T1, T2, T3, T4, T5, T6, T7 = 0, 1, 2, 3, 4, 5, 9, 8
        WOFF = self.WOFF; OOFF = 12; BA = 13; RED = 15; AF = 16; OF = 96; ACC = 160
        sBLK, sMT, sNT = self.sBLK, self.sMT, self.sNT
        SOUT, SDBG = self.SOUT, self.SDBG
        sWL, sO0, sO1, sT = self.sWL, self.sO0, self.sO1, self.sT
        L = T0
        A.salu("s_mov_b64 exec, -1")
        V(f"v_mbcnt_lo_u32_b32 v{L}, -1, 0", w={L})
        V(f"v_mbcnt_hi_u32_b32 v{L}, -1, v{L}", w={L}, r={L})
        V(f"v_bfe_u32 v{T2}, v{L}, 4, 1", w={T2}, r={L})
        V(f"v_lshrrev_b32 v{T1}, 5, v{L}", w={T1}, r={L})
        V(f"v_bfe_u32 v{T3}, v{L}, 2, 2", w={T3}, r={L})
        V(f"v_and_b32 v{T4}, 3, v{L}", w={T4}, r={L})
        V(f"v_lshlrev_b32 v{T6}, 17, v{T2}", w={T6}, r={T2})
        V(f"v_lshl_add_u32 v{T6}, v{T1}, 8, v{T6}", w={T6}, r={T1, T6})
        V(f"v_and_b32 v{T7}, 15, v{L}", w={T7}, r={L})
        V(f"v_lshl_add_u32 v{OOFF}, v{T7}, 4, v{T6}", w={OOFF}, r={T7, T6})
        V(f"v_lshl_add_u32 v{T6}, v{T1}, 2, v{T3}", w={T6}, r={T1, T3})
        V(f"v_lshlrev_b32 v{T6}, 7, v{T6}", w={T6}, r={T6})
        V(f"v_lshrrev_b32 v{T7}, 1, v{T4}", w={T7}, r={T4})
        V(f"v_lshl_add_u32 v{T7}, v{T2}, 1, v{T7}", w={T7}, r={T2, T7})
        V(f"v_lshrrev_b32 v{T5}, 1, v{T3}", w={T5}, r={T3})
        V(f"v_lshlrev_b32 v{T5}, 2, v{T5}", w={T5}, r={T5})
        V(f"v_xor_b32 v{T7}, v{T7}, v{T5}", w={T7}, r={T7, T5})
        V(f"v_lshl_add_u32 v{T6}, v{T7}, 4, v{T6}", w={T6}, r={T7, T6})
        V(f"v_and_b32 v{T7}, 1, v{T4}", w={T7}, r={T4})
        V(f"v_lshl_add_u32 v{T6}, v{T7}, 3, v{T6}", w={T6}, r={T7, T6})
        V(f"v_add_u32 v{BA}, s{sWL}, v{T6}", w={BA}, r={T6})
        V(f"v_xor_b32 v{BA+1}, 64, v{BA}", w={BA + 1}, r={BA})
        XB = 6 if OPT["xb"] else 64
        def xb_addr():
            for q in range(1, 3):
                for tn in range(2):
                    V(f"v_add_u32 v{XB+2*q+tn}, {q*65536}, v{BA+tn}", w={XB + 2 * q + tn}, r={BA + tn})
        if OPT["fuse"] == 6 and not OPT["xb"]: xb_addr()
        V(f"v_lshlrev_b32 v{RED}, 4, v{L}", w={RED}, r={L})
        if OPT["ntf"]:
            A.salu(f"s_lshl_b32 s12, s{sBLK1}, 6")
            A.salu(f"s_lshl_b32 s13, s{sB1}, 2")
            A.salu("s_add_u32 s12, s12, s13")
            A.salu("s_mov_b32 s13, 1")
        else:
            A.salu(f"s_lshl_b32 s12, s{sBLK1}, 7")
            A.salu(f"s_lshl_b32 s13, s{sB1}, 4")
            A.salu("s_add_u32 s12, s12, s13")
            A.salu(f"s_and_b32 s13, s{sKVH1}, 12")
            A.salu("s_add_u32 s12, s12, s13")
            A.salu(f"s_and_b32 s13, s{sKVH1}, 3")
            A.salu("s_lshl_b32 s13, s13, 3")
            A.salu("s_lshl_b32 s13, 1, s13")
        V(f"v_mov_b32 v{T1}, s12", w={T1})
        V(f"v_mov_b32 v{T2}, s13", w={T2})
        if OPT["ntf"]:
            V(f"v_mov_b32 v{T3}, s{self.sP1}", w={T3})
            V(f"v_writelane_b32 v{T3}, s{self.sP0}, 0", w={T3}, r={T3})
            V(f"v_mov_b32 v{T5}, 1", w={T5})
            A.salu("s_mov_b32 s14, 1")
        elif OPT["fuse"] == 5:
            self.dyn(PF, L, OOFF, BA, AF, OF, ACC)
        elif OPT["fuse"] == 1:
            V(f"v_mov_b32 v{T3}, s{self.sP1}", w={T3})
            V(f"v_writelane_b32 v{T3}, s{self.sP0}, 0", w={T3}, r={T3})
            A.salu(f"s_and_b32 s14, s{sW}, 1")
            A.salu("s_lshl_b32 s14, s14, 4")
            A.salu("s_lshl_b32 s14, 0x101, s14")
        else:
            V(f"v_mov_b32 v{T3}, s{self.sP1}", w={T3})
            V(f"v_mov_b32 v{T4}, s{self.sP0}", w={T4})
            V(f"v_cmp_gt_u32 vcc, 4, v{L}", r={L}, sw={"vcc"})
            V(f"v_cndmask_b32 v{T3}, v{T3}, v{T4}, vcc", w={T3}, r={T3, T4}, sr={"vcc"})
            V(f"v_and_b32 v{T4}, 3, v{L}", w={T4}, r={L})
            V(f"v_lshl_add_u32 v{T3}, v{T4}, 2, v{T3}", w={T3}, r={T3, T4})
            A.salu("s_mov_b32 s14, 0x01010101")
        if OPT["fuse"] != 5:
            PRE = [224, 240, 48, 72][:OPT["pre"]]
            if OPT["pr2"]: PRE = [AF, AF + 16, 224, 240, 48, 72][:OPT["pr2"]]
            if OPT["pr2"] and OPT["xb"]:
                PRE = ([OF + 32, OF + 48][2 - OPT["pro"]:] + [AF, AF + 16, 224, 240, 48, 64, 80])[:OPT["pr2"]]
            wo_vm = {}
            def dsreads(u, ab=None):
                slot = u % OPT["ring"]
                if ab is None: ab = AF + (u % 2) * 16
                for ks in range(2):
                    for tn in range(2):
                        for j in range(2):
                            if OPT["fuse"] == 6:
                                o_ = self.slots6[2 * slot + ks] * SLOT + j * 1024
                                k = A.ds_read_tr(ab + (ks * 2 + tn) * 4 + 2 * j, (BA if o_ < 65536 else XB + 2 * (o_ >> 16)) + tn, o_ & 65535)
                            else:
                                k = A.ds_read_tr(ab + (ks * 2 + tn) * 4 + 2 * j, BA + tn, slot * 4096 + (16 * ks + 8 * j) * 128)
                return k
            A.salu("s_mov_b32 s15, 0x40000")
            A.waitcnt(vm=0); A.vm_done = A.nvm
            PF.stamp("st")
            A.barrier()
            A.salu(f"s_cmp_eq_u32 s{sW}, 0")
            A.salu("s_cbranch_scc0 K1_NOFLAG")
            A.salu("s_mov_b64 exec, 1")
            if OPT["ntf"]:
                A.salu(f"buffer_atomic_add v{T2}, v{T1}, s[{SDBG}:{SDBG+3}], 0 offen sc0 sc1")
                A.salu("s_waitcnt vmcnt(0)")
                A.salu(f"v_cmp_eq_u32 vcc, 15, v{T2}")
                A.salu("s_nop 1")
                A.salu("s_cbranch_vccz K1_NOFLAG")
                A.salu(f"buffer_store_dword v{T5}, v{T1}, s[{SDBG}:{SDBG+3}], 0 offen offset:128 sc1")
            elif OPT["exp"] != 1: A.salu(f"buffer_atomic_add v{T2}, v{T1}, s[{SDBG}:{SDBG+3}], 0 offen sc1")
            A.label("K1_NOFLAG")
            A.salu(f"s_cmp_ge_u32 s{self.sTT}, 252")
            A.salu("s_cbranch_scc1 K1_END")
            if OPT["exp"]:
                for _ in range(3): A.salu("s_sleep 64")
                A.salu("s_branch K1_GO")
            if OPT["fuse"] == 6:
                A.salu("s_mov_b64 exec, -1")
                if OPT["xb"]: xb_addr()
                self.slots6 += [s_ for s_ in range(NSLOT) if s_ not in self.slots6]
                for j in range(self.done6, 2 * OPT["ring"]):
                    for q in range(2): wo_vm[j >> 1] = self.wo_piece(j >> 1, (j & 1) * 2 + q)
                if OPT["pr2"]:
                    A.flush_hazards()
                    for u0 in range(0, len(PRE), OPT["prg"]):
                        us = range(u0, min(u0 + OPT["prg"], len(PRE)))
                        for u in us:
                            if u in wo_vm: A.wait_vm(wo_vm[u])
                            dsreads(u, PRE[u])
                            A.wait_ds_all()
                        for u in us:
                            if u + OPT["ring"] >= 16: continue
                            for i in range(4): wo_vm[u + OPT["ring"]] = self.wo_piece(u + OPT["ring"], i)
                if OPT["pre0"]:
                    A.flush_hazards()
                    for u in range(len(PRE)):
                        dsreads(u, PRE[u])
                        A.wait_ds_all()
                    for u in range(4, 4 + len(PRE)):
                        for i in range(4): self.wo_piece(u, i)
            if OPT["fuse"] == 1:
                A.salu("s_mov_b64 exec, 3")
            else:
                A.salu(f"s_cmp_eq_u32 s{sW}, 0")
                A.salu("s_cbranch_scc0 K1_GO" if not (OPT["fuse"] == 3 or (OPT["pre"] and not OPT["pre0"])) else "s_cbranch_scc0 K1_WO")
                A.salu("s_mov_b64 exec, 3" if OPT["ntf"] else "s_mov_b64 exec, 0xff")
            A.label("K1_POLL")
            A.salu(f"buffer_load_dword v{T4}, v{T3}, s[{SDBG}:{SDBG+3}], 0 offen sc1")
            A.salu("s_waitcnt vmcnt(0)")
            A.salu(f"v_and_b32 v{T4}, s14, v{T4}")
            A.salu(f"v_cmp_ne_u32 vcc, s14, v{T4}")
            A.salu("s_nop 1")
            A.salu("s_cbranch_vccz K1_GO")
            A.salu(f"s_sleep {OPT['slp']}")
            A.salu("s_sub_u32 s15, s15, 1")
            A.salu("s_cmp_lg_u32 s15, 0")
            A.salu("s_cbranch_scc1 K1_POLL")
            A.label("K1_GO")
            A.salu("s_mov_b64 exec, -1")
            if OPT["pre"] and not OPT["pre0"]:
                A.barrier()
                A.label("K1_WO")
                A.flush_hazards()
                for u in range(len(PRE)):
                    dsreads(u, PRE[u])
                    A.wait_ds_all()
                for u in range(4, 4 + len(PRE)):
                    for i in range(4): self.wo_piece(u, i)
                A.salu(f"s_cmp_eq_u32 s{sW}, 0")
                A.salu("s_cbranch_scc1 K1_GO2")
                A.barrier()
                A.label("K1_GO2")
            elif OPT["fuse"] == 3:
                A.barrier()
                A.label("K1_WO")
                for u in range(4):
                    for i in range(4): self.wo_piece(u, i)
                A.salu(f"s_cmp_eq_u32 s{sW}, 0")
                A.salu("s_cbranch_scc1 K1_GO2")
                A.barrier()
                A.label("K1_GO2")
            elif OPT["fuse"] > 1: A.barrier()
            PF.stamp("go")
            NU = 16; DEPTH = 4
            last_vm = {}
            def issue(u, wo=True):
                slot = u % DEPTH
                if wo:
                    for i in range(4): self.wo_piece(u, i)
                for ks in range(2):
                    for tm in range(2):
                        d = OF + slot * 16 + (ks * 2 + tm) * 4
                        off = (2 * u + ks) * 512
                        sb = sO0 if tm == 0 else sO1
                        if off >= 4096:
                            A.salu(f"s_add_u32 s{sT}, s{sb}, {off & ~4095}")
                            sb = sT
                        k = A.vmem(f"buffer_load_dwordx4 {vname(d,4)}, v{OOFF}, s[{SO}:{SO+3}], s{sb} offen offset:{off & 4095} sc1", w=vr(d, 4), r={OOFF})
                last_vm[u] = k
            if OPT["pr2"]:
                RG = OPT["ring"]; NP = len(PRE)
                KO = OPT["pro"]
                for u in range(DEPTH - KO): issue(u, False)
                pend = None
                for u in range(NU):
                    if pend is not None: A.wait_ds(pend)
                    if u + 1 < NU and u + 1 >= NP:
                        A.wait_vm(wo_vm[u + 1])
                        pend = dsreads(u + 1)
                    A.wait_vm(last_vm[u])
                    ab = AF + (u % 2) * 16 if u >= NP else PRE[u]
                    ob = OF + (u % DEPTH) * 16
                    for ks in range(2):
                        for tn in range(2):
                            for tm in range(2):
                                c = "zero" if (u == 0 and ks == 0) else None
                                A.mfma(ACC + (tn * 2 + tm) * 16, ab + (ks * 2 + tn) * 4, ob + (ks * 2 + tm) * 4, c)
                    if u >= NP and u + RG < NU:
                        for i in range(4): wo_vm[u + RG] = self.wo_piece(u + RG, i)
                    if u < KO: issue(DEPTH - KO + u, False)
                    if u + DEPTH < NU: issue(u + DEPTH, False)
                    if u in (0, 7, 15): PF.stamp(f"u{u}")
                NU = 0
            if OPT["lp"]:
                RG = OPT["ring"]
                OB = [OF, OF + 16, OF + 32, OF + 48, 224, 240][:RG]
                o_vm = {}; wo_vm.clear()
                def issue_o(u):
                    for ks in range(2):
                        for tm in range(2):
                            d = OB[u % RG] + (ks * 2 + tm) * 4
                            off = (2 * u + ks) * 512
                            sb = sO0 if tm == 0 else sO1
                            if off >= 4096:
                                A.salu(f"s_add_u32 s{sT}, s{sb}, {off & ~4095}")
                                sb = sT
                            o_vm[u] = A.vmem(f"buffer_load_dwordx4 {vname(d,4)}, v{OOFF}, s[{SO}:{SO+3}], s{sb} offen offset:{off & 4095} sc1", w=vr(d, 4), r={OOFF})
                wo_first = A.nvm - 1
                for u in range(RG): issue_o(u)
                pend = dsreads(0)
                for u in range(NU):
                    A.wait_ds(pend)
                    if u + RG < NU:
                        for i in range(4): wo_vm[u + RG] = self.wo_piece(u + RG, i)
                    if u + 1 < NU:
                        if u + 1 in wo_vm: A.wait_vm(wo_vm[u + 1])
                        elif u + 1 >= 3: A.wait_vm(wo_first)
                        pend = dsreads(u + 1)
                    A.wait_vm(o_vm[u])
                    ab = AF + (u % 2) * 16
                    ob = OB[u % RG]
                    for ks in range(2):
                        for tn in range(2):
                            for tm in range(2):
                                c = "zero" if (u == 0 and ks == 0) else None
                                A.mfma(ACC + (tn * 2 + tm) * 16, ab + (ks * 2 + tn) * 4, ob + (ks * 2 + tm) * 4, c)
                    if u + RG < NU: issue_o(u + RG)
                    if u in (0, 7, 15): PF.stamp(f"u{u}")
                NU = 0
            for u in range(DEPTH if NU else 0): issue(u, OPT["fuse"] == 4)
            if OPT["fuse"] in (3, 4): A.wait_vm(last_vm[0])
            NP = len(PRE)
            pend = dsreads(0) if NP == 0 and NU else None
            if NU: A.wait_vm(last_vm[0])
            for u in range(NU):
                if pend is not None: A.wait_ds(pend)
                if u + 1 < NU:
                    A.wait_vm(last_vm[u + 1])
                    pend = dsreads(u + 1) if u + 1 >= NP else None
                ab = AF + (u % 2) * 16 if u >= NP else PRE[u]
                ob = OF + (u % DEPTH) * 16
                for ks in range(2):
                    for tn in range(2):
                        for tm in range(2):
                            c = "zero" if (u == 0 and ks == 0) else None
                            A.mfma(ACC + (tn * 2 + tm) * 16, ab + (ks * 2 + tn) * 4, ob + (ks * 2 + tm) * 4, c)
                if u + DEPTH < NU: issue(u + DEPTH, u >= NP)
                if u in (0, 7, 15): PF.stamp(f"u{u}")
        R = OF
        if OPT["fuse"] == 6 and OPT["red"]:
            A.wait_ds_all()
            V(f"v_add_u32 v{T1}, s{sWL}, v{RED}", w={T1}, r={RED})
            V(f"v_add_u32 v{T2}, 0x10000, v{T1}", w={T2}, r={T1})
            V(f"v_add_u32 v{T3}, 0x20000, v{T1}", w={T3}, r={T1})
            for q in range(16):
                o_ = self.slots6[q >> 1] * SLOT + (q & 1) * 1024
                A.ds_write_b128([T1, T2, T3][o_ >> 16], ACC + 4 * q, o_ & 65535)
            tab = sum(s_ << (4 * w_) for w_, s_ in enumerate(self.slots6[:8]))
            A.salu(f"s_lshl_b32 s6, s{sW}, 2")
            A.salu(f"s_lshr_b32 s6, {tab:#x}, s6")
            A.salu("s_and_b32 s6, s6, 15")
            A.salu("s_lshl_b32 s6, s6, 14")
            V(f"v_add_u32 v{T4}, s6, v{RED}", w={T4}, r={RED})
            A.wait_ds_all()
            A.barrier()
            for ww in range(8):
                for q in range(2):
                    A.ds_read_b128(R + (ww * 2 + q) * 4, T4, ww * 2048 + q * 1024)
                if ww == 5:
                    A.wait_ds_all()
            A.wait_ds_all()
        else:
            A.wait_ds_all()
            A.barrier()
            A.salu(f"s_lshl_b32 s12, s{sW}, 14")
            V(f"v_add_u32 v{T1}, s12, v{RED}", w={T1}, r={RED})
            for q in range(16):
                A.ds_write_b128(T1, ACC + 4 * q, q * 1024)
            A.wait_ds_all()
            A.barrier()
            A.salu(f"s_lshl_b32 s6, s{sW}, 11")
            V(f"v_add_u32 v{T1}, s6, v{RED}", w={T1}, r={RED})
            V(f"v_add_u32 v{T2}, 0x10000, v{T1}", w={T2}, r={T1})
            for ww in range(8):
                for q in range(2):
                    A.ds_read_b128(R + (ww * 2 + q) * 4, T1 if ww < 4 else T2, (ww % 4) * 16384 + q * 1024)
                if ww == 5:
                    A.wait_ds_all()
            A.wait_ds_all()
        for ww in range(1, 8):
            for i in range(8):
                V(f"v_add_f32 v{R+i}, v{R+i}, v{R+ww*8+i}", w={R + i}, r={R + i, R + ww * 8 + i})
        for q in range(4):
            V(f"v_cvt_pk_bf16_f32 v{AF+q}, v{R+2*q}, v{R+2*q+1}", w={AF + q}, r={R + 2 * q, R + 2 * q + 1})
        A.salu(f"s_lshr_b32 s6, s{sW}, 1")
        A.salu("s_and_b32 s7, s6, 1")
        A.salu("s_lshr_b32 s6, s6, 1")
        A.salu(f"s_lshl_b32 s3, s{sMT}, 6")
        A.salu("s_lshl_b32 s7, s7, 5")
        A.salu("s_add_u32 s3, s3, s7")
        A.salu("s_mul_i32 s3, s3, 2304")
        A.salu(f"s_mul_i32 s7, s{sBLK}, 1152")
        A.salu("s_add_u32 s3, s3, s7")
        A.salu(f"s_lshl_b32 s7, s{sNT}, 7")
        A.salu("s_add_u32 s3, s3, s7")
        A.salu("s_lshl_b32 s7, s6, 6")
        A.salu("s_add_u32 s3, s3, s7")
        A.salu(f"s_and_b32 s7, s{sW}, 1")
        A.salu("s_lshl_b32 s7, s7, 5")
        A.salu("s_add_u32 s3, s3, s7")
        V(f"v_and_b32 v{T1}, 31, v{L}", w={T1}, r={L})
        V(f"v_mul_u32_u24 v{T1}, 2304, v{T1}", w={T1}, r={T1})
        V(f"v_lshrrev_b32 v{T2}, 5, v{L}", w={T2}, r={L})
        V(f"v_lshl_add_u32 v{T1}, v{T2}, 3, v{T1}", w={T1}, r={T2, T1})
        fl = ["", " sc1", " nt", " sc0 sc1"][OPT["ost"]]
        A.vmem(f"buffer_store_dwordx2 {vname(AF,2)}, v{T1}, s[{SOUT}:{SOUT+3}], s3 offen{fl}", r=vr(AF, 2) | {T1})
        A.vmem(f"buffer_store_dwordx2 {vname(AF+2,2)}, v{T1}, s[{SOUT}:{SOUT+3}], s3 offen offset:16{fl}", r=vr(AF + 2, 2) | {T1})

def gen_k2(A):
    V = A.valu
    T0, T1, T2, T3, T4, T5, T6, T7 = range(0, 8)
    WOFF = 8
    OOFF = 12
    BA = 13
    RED = 15
    AF = 16
    OF = 48
    ACC = 112
    sBLK, sMT, sNT, sW = 26, 27, 4, 5
    SW_, SO, SOUT = 28, 32, 36
    sWL, sWB, sO0, sO1, sT = 48, 49, 50, 51, 52
    A.win = []
    A.nds = A.ds_done = A.nvm = A.vm_done = 0
    A.raw(f".p2align 8\n.globl k2_kernel\n.type k2_kernel,@function\nk2_kernel:")
    A.salu("s_cmp_ge_u32 s2, 256")
    A.salu("s_cbranch_scc1 K2_END")
    A.salu("s_and_b32 s3, s2, 7")
    A.salu("s_lshl_b32 s3, s3, 5")
    A.salu("s_lshr_b32 s6, s2, 3")
    A.salu("s_add_u32 s3, s3, s6")
    A.salu("s_cmp_ge_u32 s3, 252")
    A.salu("s_cbranch_scc1 K2_END")
    A.salu("s_load_dwordx2 s[8:9], s[0:1], 32")
    A.salu("s_load_dwordx2 s[10:11], s[0:1], 72")
    A.salu("s_load_dwordx2 s[12:13], s[0:1], 80")
    A.salu("s_load_dwordx2 s[14:15], s[0:1], 96")
    A.salu("s_cmp_ge_u32 s3, 126")
    A.salu(f"s_cselect_b32 s{sBLK}, 1, 0")
    A.salu(f"s_mul_i32 s6, s{sBLK}, 126")
    A.salu("s_sub_u32 s3, s3, s6")
    A.salu("s_mul_i32 s6, s3, 57")
    A.salu(f"s_lshr_b32 s{sMT}, s6, 9")
    A.salu(f"s_mul_i32 s6, s{sMT}, 9")
    A.salu(f"s_sub_u32 s{sNT}, s3, s6")
    V(f"v_lshrrev_b32 v{T1}, 6, v0", w={T1}, r={0})
    A._emit(I(f"v_readfirstlane_b32 s{sW}, v{T1}", "rdlane", r={T1}, sw={sW}))
    V(f"v_and_b32 v{T0}, 63, v0", w={T0}, r={0})
    L = T0
    A.salu(f"s_lshl_b32 s{sWL}, s{sW}, 14", sr={sW})
    A.salu(f"s_mul_i32 s{sWB}, s{sW}, {512*1152}", sr={sW})
    A.salu(f"s_lshl_b32 s6, s{sNT}, 7")
    A.salu(f"s_add_u32 s{sWB}, s{sWB}, s6")
    A.salu(f"s_mul_i32 s{sO0}, s{sBLK}, {O_BLK}")
    A.salu(f"s_lshl_b32 s6, s{sMT}, 19")
    A.salu(f"s_add_u32 s{sO0}, s{sO0}, s6")
    A.salu(f"s_lshl_b32 s6, s{sW}, 14")
    A.salu(f"s_add_u32 s{sO0}, s{sO0}, s6")
    A.salu(f"s_add_u32 s{sO1}, s{sO0}, {2*131072}")
    V(f"v_lshrrev_b32 v{T1}, 3, v{L}", w={T1}, r={L})
    V(f"v_mul_u32_u24 v{T1}, 1152, v{T1}", w={T1}, r={T1})
    V(f"v_bfe_u32 v{T2}, v{L}, 4, 1", w={T2}, r={L})
    V(f"v_lshlrev_b32 v{T3}, 2, v{T2}", w={T3}, r={T2})
    V(f"v_and_b32 v{T4}, 7, v{L}", w={T4}, r={L})
    V(f"v_xor_b32 v{T4}, v{T4}, v{T3}", w={T4}, r={T4, T3})
    V(f"v_lshl_add_u32 v{WOFF}, v{T4}, 4, v{T1}", w={WOFF}, r={T4, T1})
    for i in range(1, 4):
        V(f"v_add_u32 v{WOFF+i}, {9216*i}, v{WOFF}", w={WOFF + i}, r={WOFF})
    V(f"v_lshrrev_b32 v{T1}, 5, v{L}", w={T1}, r={L})
    V(f"v_bfe_u32 v{T3}, v{L}, 2, 2", w={T3}, r={L})
    V(f"v_and_b32 v{T4}, 3, v{L}", w={T4}, r={L})
    V(f"v_lshlrev_b32 v{T6}, 17, v{T2}", w={T6}, r={T2})
    V(f"v_lshl_add_u32 v{T6}, v{T1}, 8, v{T6}", w={T6}, r={T1, T6})
    V(f"v_and_b32 v{T7}, 15, v{L}", w={T7}, r={L})
    V(f"v_lshl_add_u32 v{OOFF}, v{T7}, 4, v{T6}", w={OOFF}, r={T7, T6})
    V(f"v_lshl_add_u32 v{T6}, v{T1}, 2, v{T3}", w={T6}, r={T1, T3})
    V(f"v_lshlrev_b32 v{T6}, 7, v{T6}", w={T6}, r={T6})
    V(f"v_lshrrev_b32 v{T7}, 1, v{T4}", w={T7}, r={T4})
    V(f"v_lshl_add_u32 v{T7}, v{T2}, 1, v{T7}", w={T7}, r={T2, T7})
    V(f"v_lshrrev_b32 v{T5}, 1, v{T3}", w={T5}, r={T3})
    V(f"v_lshlrev_b32 v{T5}, 2, v{T5}", w={T5}, r={T5})
    V(f"v_xor_b32 v{T7}, v{T7}, v{T5}", w={T7}, r={T7, T5})
    V(f"v_lshl_add_u32 v{T6}, v{T7}, 4, v{T6}", w={T6}, r={T7, T6})
    V(f"v_and_b32 v{T7}, 1, v{T4}", w={T7}, r={T4})
    V(f"v_lshl_add_u32 v{T6}, v{T7}, 3, v{T6}", w={T6}, r={T7, T6})
    V(f"v_add_u32 v{BA}, s{sWL}, v{T6}", w={BA}, r={T6})
    V(f"v_xor_b32 v{BA+1}, 64, v{BA}", w={BA + 1}, r={BA})
    V(f"v_lshlrev_b32 v{RED}, 4, v{L}", w={RED}, r={L})
    A.waitcnt(lgkm=0)
    A.salu(f"s_cmp_eq_u32 s{sBLK}, 0")
    A.salu("s_cselect_b32 s8, s8, s10")
    A.salu("s_cselect_b32 s9, s9, s11")
    srd(A, SW_, 8, 4096 * 576 * 2)
    srd(A, SO, 14, 2 * O_BLK)
    srd(A, SOUT, 12, 896 * 1152 * 2)

    NU = 16; DEPTH = 4
    last_vm = {}
    def issue(u):
        slot = u % DEPTH
        A.salu(f"s_add_u32 s{sT}, s{sWB}, {u * 32 * 1152}")
        for i in range(4):
            A.salu(f"s_add_u32 m0, s{sWL}, {slot * 4096 + i * 1024}", m0w=True)
            A.vmem(f"buffer_load_dwordx4 v{WOFF+i}, s[{SW_}:{SW_+3}], s{sT} offen{' nt' if OPT['ntwo'] else ''} lds", kind="dma", r={WOFF + i}, m0r=True)
        for ks in range(2):
            for tm in range(2):
                d = OF + slot * 16 + (ks * 2 + tm) * 4
                off = (2 * u + ks) * 512
                sb = sO0 if tm == 0 else sO1
                if off >= 4096:
                    A.salu(f"s_add_u32 s{sT}, s{sb}, {off & ~4095}")
                    k = A.vmem(f"buffer_load_dwordx4 {vname(d,4)}, v{OOFF}, s[{SO}:{SO+3}], s{sT} offen offset:{off & 4095}{' nt' if OPT['nto'] else ''}", w=vr(d, 4), r={OOFF})
                else:
                    k = A.vmem(f"buffer_load_dwordx4 {vname(d,4)}, v{OOFF}, s[{SO}:{SO+3}], s{sb} offen offset:{off}{' nt' if OPT['nto'] else ''}", w=vr(d, 4), r={OOFF})
        last_vm[u] = k
    def dsreads(u):
        slot = u % DEPTH
        ab = AF + (u % 2) * 16
        for ks in range(2):
            for tn in range(2):
                for j in range(2):
                    k = A.ds_read_tr(ab + (ks * 2 + tn) * 4 + 2 * j, BA + tn, slot * 4096 + (16 * ks + 8 * j) * 128)
        return k
    PF = Prof(A, 1)
    PF.stamp("start")
    for u in range(DEPTH): issue(u)
    A.wait_vm(last_vm[0])
    pend = dsreads(0)
    for u in range(NU):
        A.wait_ds(pend)
        if u + 1 < NU:
            A.wait_vm(last_vm[u + 1])
            pend = dsreads(u + 1)
        ab = AF + (u % 2) * 16
        ob = OF + (u % DEPTH) * 16
        for ks in range(2):
            for tn in range(2):
                for tm in range(2):
                    c = "zero" if (u == 0 and ks == 0) else None
                    A.mfma(ACC + (tn * 2 + tm) * 16, ab + (ks * 2 + tn) * 4, ob + (ks * 2 + tm) * 4, c)
        if u + DEPTH < NU: issue(u + DEPTH)
        PF.stamp(f"u{u}")
    A.wait_ds_all()
    A.barrier()
    V(f"v_add_u32 v{T1}, s{sWL}, v{RED}", w={T1}, r={RED})
    for q in range(16):
        A.ds_write_b128(T1, ACC + 4 * q, q * 1024)
    A.wait_ds_all()
    A.barrier()
    A.salu(f"s_lshl_b32 s6, s{sW}, 11")
    V(f"v_add_u32 v{T1}, s6, v{RED}", w={T1}, r={RED})
    V(f"v_add_u32 v{T2}, 0x10000, v{T1}", w={T2}, r={T1})
    R = OF
    for ww in range(8):
        for q in range(2):
            A.ds_read_b128(R + (ww * 2 + q) * 4, T1 if ww < 4 else T2, (ww % 4) * 16384 + q * 1024)
            if ww == 6 and q == 1: pass
        if ww == 5:
            A.wait_ds_all()
    A.wait_ds_all()
    for ww in range(1, 8):
        for i in range(8):
            V(f"v_add_f32 v{R+i}, v{R+i}, v{R+ww*8+i}", w={R + i}, r={R + i, R + ww * 8 + i})
    for q in range(4):
        V(f"v_cvt_pk_bf16_f32 v{AF+q}, v{R+2*q}, v{R+2*q+1}", w={AF + q}, r={R + 2 * q, R + 2 * q + 1})
    A.salu(f"s_lshr_b32 s6, s{sW}, 1")
    A.salu("s_and_b32 s7, s6, 1")
    A.salu("s_lshr_b32 s6, s6, 1")
    A.salu(f"s_lshl_b32 s3, s{sMT}, 6")
    A.salu("s_lshl_b32 s7, s7, 5")
    A.salu("s_add_u32 s3, s3, s7")
    A.salu("s_mul_i32 s3, s3, 2304")
    A.salu(f"s_mul_i32 s7, s{sBLK}, 1152")
    A.salu("s_add_u32 s3, s3, s7")
    A.salu(f"s_lshl_b32 s7, s{sNT}, 7")
    A.salu("s_add_u32 s3, s3, s7")
    A.salu("s_lshl_b32 s7, s6, 6")
    A.salu("s_add_u32 s3, s3, s7")
    A.salu(f"s_and_b32 s7, s{sW}, 1")
    A.salu("s_lshl_b32 s7, s7, 5")
    A.salu("s_add_u32 s3, s3, s7")
    V(f"v_and_b32 v{T1}, 31, v{L}", w={T1}, r={L})
    V(f"v_mul_u32_u24 v{T1}, 2304, v{T1}", w={T1}, r={T1})
    V(f"v_lshrrev_b32 v{T2}, 5, v{L}", w={T2}, r={L})
    V(f"v_lshl_add_u32 v{T1}, v{T2}, 3, v{T1}", w={T1}, r={T2, T1})
    A.vmem(f"buffer_store_dwordx2 {vname(AF,2)}, v{T1}, s[{SOUT}:{SOUT+3}], s3 offen", r=vr(AF, 2) | {T1})
    A.vmem(f"buffer_store_dwordx2 {vname(AF+2,2)}, v{T1}, s[{SOUT}:{SOUT+3}], s3 offen offset:16", r=vr(AF + 2, 2) | {T1})
    PF.dump(14, sW, 0)
    A.label("K2_END")
    A.salu("s_endpgm")

def kd(name, vgpr, sgpr):
    return f""".amdhsa_kernel {name}
  .amdhsa_next_free_vgpr {vgpr}
  .amdhsa_next_free_sgpr {sgpr}
  .amdhsa_accum_offset {(vgpr + 3) // 4 * 4}
  .amdhsa_group_segment_fixed_size 0
  .amdhsa_kernarg_size 104
  .amdhsa_user_sgpr_count 2
  .amdhsa_user_sgpr_kernarg_segment_ptr 1
  .amdhsa_system_sgpr_workgroup_id_x 1
.end_amdhsa_kernel
"""

def main():
    A = Asm()
    gen_k1(A)
    if not OPT["fuse"]: gen_k2(A)
    head = """; Two-launch GQA block pair: k1 = Q projection + attention (o -> ws), k2 = output projection.
; @launch kernel=k1_kernel grid=(256,1,1) block=(512,1,1) lds=163840
; @launch kernel=k2_kernel grid=(256,1,1) block=(512,1,1) lds=131072
.amdgcn_target "amdgcn-amd-amdhsa--gfx950"
.text
"""
    tail = '\n.section .rodata,"a"\n.p2align 6\n' + kd("k1_kernel", 256, 102 if OPT["prof"] else 64) + ".p2align 6\n" + kd("k2_kernel", 176, 102 if OPT["prof"] else 64)
    if OPT["fuse"]:
        head = """; GQA block pair in one launch: Q projection + attention, o handed over through ws, output projection.
; @launch kernel=k1_kernel grid=(256,1,1) block=(512,1,1) lds=163840
.amdgcn_target "amdgcn-amd-amdhsa--gfx950"
.text
"""
        tail = '\n.section .rodata,"a"\n.p2align 6\n' + kd("k1_kernel", 256, 102 if OPT["prof"] else 64)
    txt = head + A.text() + tail
    if "CODE_BYTES" in txt:
        import subprocess, re
        open("_p1.s", "w").write(txt.replace("CODE_BYTES", "0x12345"))
        subprocess.check_call(["clang", "-x", "assembler", "-target", "amdgcn-amd-amdhsa", "-mcpu=gfx950", "-c", "_p1.s", "-o", "_p1.o"])
        o = subprocess.check_output(["llvm-objdump", "-h", "_p1.o"]).decode()
        n = int(re.search(r"\.text\s+([0-9a-f]+)", o).group(1), 16)
        txt = txt.replace("CODE_BYTES", str(n))
    open(sys.argv[1], "w").write(txt)
    print("nops inserted:", A.nops_inserted, "lines:", len(A.out))

main()
```

```python
import sys, math
sys.path.insert(0, "gen")
from asmlib import *

NAME = "concat_heads__gqa_block_cached__gqa_block_cached__near_ridge"
OPT = dict(prio=1, prof=0, ntkv=1, ntw=0, ntx=0, ntwo=0, nto=0, ntst=0, nq=6, kvrate=1, l2pf=1, wopf=4, fat=1, bstep=1, dmagap=1, pflead=4, kv0=2, nstg=4, kvt=0, ld4=1, cpf=0, mid=0, kvt0=1, kvtr=1, roll=0, pfrate=1, kvs=0, rot=0, stag=0, qi=0, tlbw=0, ntt=0, fuse=0, slp=1, wox=0, xm=0, wo0=3, wo6=0, exp=0, ntf=0, pv=0, ost=0, red=0, pre=0, ring=4, lp=0, pre0=0, pr2=0, xb=0, pro=0, prg=3, ea=0, ep=0, fb=0, pw=0)
for a in sys.argv[2:]:
    k, v = a.split("="); OPT[k] = int(v)

O_BLK = 896 * 4096 * 2
SLOT = 16384
NSLOT = 10

def srd(A, d, base, nbytes):
    A.salu(f"s_mov_b32 s{d}, s{base}")
    A.salu(f"s_and_b32 s{d+1}, s{base+1}, 0xffff")
    A.salu(f"s_mov_b32 s{d+2}, {nbytes}")
    A.salu(f"s_mov_b32 s{d+3}, 0x00020000")

class Prof:
    def __init__(self, A, kidx):
        self.A = A; self.n = 0; self.names = []; self.kidx = kidx
    def stamp(self, name):
        A = self.A
        if OPT["prof"] == 3:
            sel = ["start", "q0", "a0", "pv7", "st", "go", "u15", "end"]
            if name == "start" or name == sel[OPT["pv"]]:
                A.salu("s_waitcnt lgkmcnt(0)")
                A.ds_done = A.nds
                A.salu("s_memrealtime s[96:97]")
                A.salu("s_waitcnt lgkmcnt(0)")
                if name == "start": A.salu("s_not_b32 s64, s96")
                if name == sel[OPT["pv"]]: A.salu(f"s_mov_b32 s65, s96")
            return
        if OPT["prof"] == 2:
            sel = ["start", "q0", "a0", "pv7", "st", "go", "u15", "end"]
            if name in sel:
                A.salu("s_waitcnt lgkmcnt(0)")
                A.ds_done = A.nds
                A.salu("s_memrealtime s[96:97]")
                A.salu("s_waitcnt lgkmcnt(0)")
                if name == "start": A.salu("s_not_b32 s96, s96")
                A.salu(f"s_mov_b32 s{64+sel.index(name)}, s96")
            return
        if not OPT["prof"]: return
        assert self.n < 30
        A.salu("s_waitcnt lgkmcnt(0)")
        A.ds_done = A.nds
        A.salu("s_memtime s[96:97]")
        A.salu("s_waitcnt lgkmcnt(0)")
        A.salu(f"s_mov_b32 s{64+self.n}, s96")
        if self.n == 0:
            A.salu("s_memrealtime s[98:99]")
            A.salu("s_waitcnt lgkmcnt(0)")
        self.n += 1; self.names.append(name)
    def dump(self, wsreg, sW, tmp):
        if not OPT["prof"]: return
        A = self.A
        self.stamp("end")
        if OPT["prof"] == 3:
            A.salu(f"s_cmp_eq_u32 s{sW}, 0")
            A.salu("s_cbranch_scc0 K1_END")
            A.salu("s_mov_b64 exec, -1")
            A.salu("s_nop 4")
            for i in range(2):
                A.salu(f"v_writelane_b32 v{tmp}, s{64+i}, {i}")
            A.salu(f"v_mbcnt_lo_u32_b32 v{tmp+1}, -1, 0")
            A.salu(f"v_lshlrev_b32 v{tmp+1}, 2, v{tmp+1}")
            A.salu(f"v_mov_b32 v{tmp+2}, 1")
            A.salu("s_mov_b64 exec, 3")
            A.salu("s_nop 4")
            A.salu(f"buffer_atomic_umax v{tmp}, v{tmp+1}, s[20:23], 0 offen offset:32 sc1")
            A.salu("s_waitcnt vmcnt(0)")
            A.salu("s_mov_b64 exec, 1")
            A.salu(f"buffer_atomic_add v{tmp+2}, v{tmp+1}, s[20:23], 0 offen offset:40 sc0 sc1")
            A.salu("s_waitcnt vmcnt(0)")
            A.salu(f"v_readfirstlane_b32 s66, v{tmp+2}")
            A.salu("s_cmp_eq_u32 s66, 251")
            A.salu("s_cbranch_scc0 K1_END")
            A.salu("s_mov_b64 exec, 3")
            A.salu(f"buffer_load_dword v{tmp}, v{tmp+1}, s[20:23], 0 offen offset:32 sc1")
            A.salu("s_waitcnt vmcnt(0)")
            A.salu(f"v_readlane_b32 s66, v{tmp}, 0")
            A.salu(f"v_readlane_b32 s67, v{tmp}, 1")
            A.salu("s_not_b32 s66, s66")
            A.salu("s_sub_u32 s66, s67, s66")
            A.salu("s_min_u32 s66, s66, 10000")
            A.salu("s_lshl_b32 s66, s66, 3")
            A.salu("s_memrealtime s[96:97]")
            A.salu("s_waitcnt lgkmcnt(0)")
            A.salu("s_mov_b32 s67, s96")
            A.label("K1_DLY")
            A.salu("s_memrealtime s[96:97]")
            A.salu("s_waitcnt lgkmcnt(0)")
            A.salu("s_sub_u32 s96, s96, s67")
            A.salu("s_cmp_lt_u32 s96, s66")
            A.salu("s_cbranch_scc1 K1_DLY")
            return
        if OPT["prof"] == 2:
            A.salu("s_mov_b64 exec, -1")
            A.salu("s_nop 4")
            for i in range(8):
                A.salu(f"v_writelane_b32 v{tmp}, s{64+i}, {i}")
            A.salu(f"v_mbcnt_lo_u32_b32 v{tmp+1}, -1, 0")
            A.salu(f"v_lshlrev_b32 v{tmp+1}, 2, v{tmp+1}")
            A.salu("s_mov_b64 exec, 0xff")
            A.salu("s_nop 4")
            A.salu(f"buffer_atomic_umax v{tmp}, v{tmp+1}, s[20:23], 0 offen offset:32 sc1")
            return
        A.salu("s_memrealtime s[96:97]")
        A.salu("s_waitcnt lgkmcnt(0)")
        A.salu("s_mov_b64 exec, -1")
        A.salu("s_nop 4")
        for i in range(self.n):
            A.salu(f"v_writelane_b32 v{tmp}, s{64+i}, {i}")
        A.salu("s_getreg_b32 s97, hwreg(HW_REG_HW_ID)")
        A.salu(f"v_writelane_b32 v{tmp}, s97, 29")
        A.salu(f"v_writelane_b32 v{tmp}, s98, 30")
        A.salu(f"v_writelane_b32 v{tmp}, s96, 31")
        A.salu(f"s_mov_b32 s60, s{wsreg}")
        A.salu(f"s_and_b32 s61, s{wsreg+1}, 0xffff")
        A.salu("s_mov_b32 s62, 0x10000000")
        A.salu("s_mov_b32 s63, 0x00020000")
        A.salu("s_lshl_b32 s96, s2, 3")
        A.salu(f"s_add_u32 s96, s96, s{sW}")
        A.salu("s_lshl_b32 s96, s96, 7")
        A.salu(f"s_add_u32 s96, s96, {255*1024*1024 + self.kidx*512*1024}")
        A.salu(f"v_mbcnt_lo_u32_b32 v{tmp+1}, -1, 0")
        A.salu(f"v_mbcnt_hi_u32_b32 v{tmp+1}, -1, v{tmp+1}")
        A.salu(f"v_lshlrev_b32 v{tmp+1}, 2, v{tmp+1}")
        A.salu("s_mov_b64 exec, 0xffffffff")
        A.salu("s_nop 4")
        A.salu(f"buffer_store_dword v{tmp}, v{tmp+1}, s[60:63], s96 offen")
        print("stamps k%d:" % self.kidx, self.names)

def gen_k1(A):
    V = A.valu
    T0, T1, T2, T3, T4, T5, T6, T7 = range(0, 8)
    XO, WO, KO = 8, 10, 12
    BW, BX, BK, BV = 14, 15, 16, 17
    LSUM, OST = 18, 19
    SUMA, SUMB, MX, MX2 = 20, 21, 22, 23
    AD = 24
    FR = 32
    NEGM = 48
    QB = 64
    S = 96
    O = 160
    P = 224
    sBLK, sKVH, sB, sW, sHL, sRT = 26, 27, 4, 5, 6, 7
    SX, SW_, SK, SV, SO = 28, 32, 36, 40, 44
    sWL, sXB, sWB, sKVB, sT, sOB = 48, 49, 50, 51, 52, 53
    sMASK, sTHR, sC = 54, 56, 57
    sW3, sWL4, sT2 = 58, 59, 55

    A.raw(f".p2align 8\n.globl k1_kernel\n.type k1_kernel,@function\nk1_kernel:\nK1_BEGIN:")
    A.salu("s_cmp_ge_u32 s2, 256")
    A.salu("s_cbranch_scc1 K1_END")
    A.salu("s_load_dwordx8 s[8:15], s[0:1], 0")
    A.salu("s_load_dwordx8 s[16:23], s[0:1], 40")
    A.salu("s_load_dwordx2 s[24:25], s[0:1], 96")
    if OPT["cpf"]:
        A.salu("s_getpc_b64 s[60:61]")
        A.salu("s_and_b32 s60, s60, 0xffffff00")
        A.salu("s_and_b32 s61, s61, 0xffff")
        A.salu("s_mov_b32 s62, CODE_BYTES")
        A.salu("s_mov_b32 s63, 0x00020000")
        V(f"v_lshlrev_b32 v{T7}, 7, v0", w={T7}, r={0})
        A.vmem(f"buffer_load_dword v{NEGM+15}, v{T7}, s[60:63], 0 offen", w={NEGM+15}, r={T7})
    A.salu("s_and_b32 s3, s2, 7")
    A.salu(f"s_lshr_b32 s{sB}, s2, 3")
    A.salu(f"s_lshr_b32 s{sBLK}, s3, 2")
    A.salu("s_and_b32 s3, s3, 3")
    A.salu("s_lshl_b32 s3, s3, 2")
    A.salu(f"s_and_b32 s{sKVH}, s{sB}, 3")
    A.salu(f"s_add_u32 s{sKVH}, s{sKVH}, s3")
    A.salu(f"s_lshr_b32 s{sB}, s{sB}, 2")
    V(f"v_lshrrev_b32 v{T1}, 6, v0", w={T1}, r={0})
    A._emit(I(f"v_readfirstlane_b32 s{sW}, v{T1}", "rdlane", r={T1}, sw={sW}))
    V(f"v_and_b32 v{T0}, 63, v0", w={T0}, r={0})
    if OPT["fat"]:
        A.salu(f"s_bfe_u32 s{sHL}, s{sW}, 0x10001", sr={sW})
        A.salu(f"s_and_b32 s{sRT}, s{sW}, 1", sr={sW})
        A.salu(f"s_lshl_b32 s{sRT}, s{sRT}, 1")
        A.salu(f"s_lshr_b32 s3, s{sW}, 2", sr={sW})
        A.salu(f"s_add_u32 s{sRT}, s{sRT}, s3")
    else:
        A.salu(f"s_lshr_b32 s{sHL}, s{sW}, 2", sr={sW})
        A.salu(f"s_and_b32 s{sRT}, s{sW}, 3", sr={sW})
    A.salu(f"s_lshl_b32 s{sWL}, s{sW}, 11", sr={sW})
    A.salu(f"s_and_b32 s{sW3}, s{sW}, {3 if OPT['ld4'] else 1}", sr={sW})
    A.salu(f"s_lshl_b32 s{sWL4}, s{sW3}, 11")
    A.salu(f"s_mul_i32 s{sXB}, s{sB}, 129024")
    A.salu(f"s_lshl_b32 s{sWB}, s{sKVH}, 9")
    A.salu(f"s_lshl_b32 s{sKVB}, s{sB}, 4")
    A.salu(f"s_add_u32 s{sKVB}, s{sKVB}, s{sKVH}")
    if OPT["rot"] == 1:
        A.salu(f"s_and_b32 s{sMASK}, s{sKVB}, 7")
    elif OPT["rot"] == 2:
        A.salu(f"s_add_u32 s{sMASK}, s{sKVH}, s{sB}")
        A.salu(f"s_and_b32 s{sMASK}, s{sMASK}, 7")
    elif OPT["rot"] == 3:
        A.salu(f"s_and_b32 s{sMASK}, s{sB}, 7")
    A.salu(f"s_lshl_b32 s{sMASK}, s{sMASK}, 14")
    A.salu(f"s_lshl_b32 s{sKVB}, s{sKVB}, 17")
    A.salu(f"s_mov_b32 s{sTHR}, 0x4b800000")
    c = math.log2(math.e) / math.sqrt(128.0)
    import struct
    cbits = struct.unpack("<I", struct.pack("<f", c))[0]
    A.salu(f"s_mov_b32 s{sC}, {cbits:#x}")
    L = T0
    for q in range(2):
        V(f"v_lshrrev_b32 v{T1}, 3, v{L}", w={T1}, r={L})
        A.salu(f"s_lshl_b32 s3, s{sW3}, 4")
        A.salu(f"s_add_u32 s3, s3, {8*q}")
        V(f"v_add_u32 v{T1}, s3, v{T1}", w={T1}, r={T1})
        V(f"v_mul_u32_u24 v{T1}, 1152, v{T1}", w={T1}, r={T1})
        V(f"v_and_b32 v{T2}, 7, v{L}", w={T2}, r={L})
        V(f"v_lshrrev_b32 v{T3}, 4, v{L}", w={T3}, r={L})
        V(f"v_xor_b32 v{T2}, v{T2}, v{T3}", w={T2}, r={T2, T3})
        if q: V(f"v_xor_b32 v{T2}, 4, v{T2}", w={T2}, r={T2})
        V(f"v_lshl_add_u32 v{XO+q}, v{T2}, 4, v{T1}", w={XO+q}, r={T2, T1})
        V(f"v_lshrrev_b32 v{T3}, 5, v{L}", w={T3}, r={L})
        A.salu(f"s_lshl_b32 s3, s{sW3}, 2")
        A.salu(f"s_add_u32 s3, s3, {2*q}")
        V(f"v_add_u32 v{T1}, s3, v{T3}", w={T1}, r={T3})
        V(f"v_lshlrev_b32 v{T1}, 13, v{T1}", w={T1}, r={T1})
        V(f"v_or_b32 v{T3}, {2*q}, v{T3}", w={T3}, r={T3})
        V(f"v_lshlrev_b32 v{T3}, 2, v{T3}", w={T3}, r={T3})
        V(f"v_and_b32 v{T2}, 31, v{L}", w={T2}, r={L})
        V(f"v_xor_b32 v{T2}, v{T2}, v{T3}", w={T2}, r={T2, T3})
        V(f"v_lshl_add_u32 v{WO+q}, v{T2}, 4, v{T1}", w={WO+q}, r={T2, T1})
        V(f"v_lshrrev_b32 v{T3}, 4, v{L}", w={T3}, r={L})
        A.salu(f"s_lshl_b32 s3, s{sW}, 3")
        A.salu(f"s_add_u32 s3, s3, {4*q}")
        V(f"v_add_u32 v{T1}, s3, v{T3}", w={T1}, r={T3})
        V(f"v_lshlrev_b32 v{T1}, 8, v{T1}", w={T1}, r={T1})
        A.salu(f"s_and_b32 s3, s{sW}, 1")
        A.salu(f"s_lshl_b32 s3, s3, 1")
        A.salu(f"s_or_b32 s3, s3, {q}")
        V(f"v_lshlrev_b32 v{T3}, 2, v{T3}", w={T3}, r={T3})
        V(f"v_or_b32 v{T3}, s3, v{T3}", w={T3}, r={T3})
        V(f"v_and_b32 v{T2}, 15, v{L}", w={T2}, r={L})
        V(f"v_xor_b32 v{T2}, v{T2}, v{T3}", w={T2}, r={T2, T3})
        V(f"v_lshl_add_u32 v{KO+q}, v{T2}, 4, v{T1}", w={KO+q}, r={T2, T1})
    V(f"v_lshrrev_b32 v{T1}, 5, v{L}", w={T1}, r={L})
    V(f"v_bfe_u32 v{T2}, v{L}, 4, 1", w={T2}, r={L})
    V(f"v_bfe_u32 v{T3}, v{L}, 2, 2", w={T3}, r={L})
    V(f"v_and_b32 v{T4}, 3, v{L}", w={T4}, r={L})
    V(f"v_and_b32 v{T5}, 31, v{L}", w={T5}, r={L})
    V(f"v_lshl_add_u32 v{T6}, v{T1}, 3, v{T3}", w={T6}, r={T1, T3})
    V(f"v_lshlrev_b32 v{T6}, 9, v{T6}", w={T6}, r={T6})
    V(f"v_lshlrev_b32 v{T7}, 2, v{T3}", w={T7}, r={T3})
    V(f"v_lshl_add_u32 v{T7}, v{T2}, 1, v{T7}", w={T7}, r={T2, T7})
    V(f"v_and_b32 v{BW}, 1, v{T4}", w={BW}, r={T4})
    V(f"v_add_u32 v{T7}, v{T7}, v{BW}", w={T7}, r={T7, BW})
    A.salu(f"s_lshl_b32 s3, s{sHL}, 4")
    V(f"v_add_u32 v{T7}, s3, v{T7}", w={T7}, r={T7})
    V(f"v_lshl_add_u32 v{T6}, v{T7}, 4, v{T6}", w={T6}, r={T7, T6})
    V(f"v_lshrrev_b32 v{T7}, 1, v{T4}", w={T7}, r={T4})
    V(f"v_lshl_add_u32 v{BW}, v{T7}, 3, v{T6}", w={BW}, r={T7, T6})
    A.salu(f"s_lshl_b32 s3, s{sRT}, 5")
    V(f"v_add_u32 v{T6}, s3, v{T5}", w={T6}, r={T5})
    V(f"v_lshlrev_b32 v{T6}, 7, v{T6}", w={T6}, r={T6})
    V(f"v_bfe_u32 v{T7}, v{T5}, 1, 3", w={T7}, r={T5})
    V(f"v_xor_b32 v{T7}, v{T7}, v{T1}", w={T7}, r={T7, T1})
    V(f"v_lshl_add_u32 v{BX}, v{T7}, 4, v{T6}", w={BX}, r={T7, T6})
    V(f"v_lshlrev_b32 v{T6}, 2, v{T4}", w={T6}, r={T4})
    V(f"v_or_b32 v{T6}, v{T6}, v{T3}", w={T6}, r={T6, T3})
    V(f"v_xor_b32 v{T6}, v{T6}, v{T1}", w={T6}, r={T6, T1})
    V(f"v_lshlrev_b32 v{T7}, 8, v{T5}", w={T7}, r={T5})
    V(f"v_lshl_add_u32 v{BK}, v{T6}, 4, v{T7}", w={BK}, r={T6, T7})
    V(f"v_lshl_add_u32 v{T6}, v{T1}, 2, v{T3}", w={T6}, r={T1, T3})
    V(f"v_lshlrev_b32 v{T6}, 8, v{T6}", w={T6}, r={T6})
    V(f"v_lshrrev_b32 v{T7}, 1, v{T4}", w={T7}, r={T4})
    V(f"v_lshl_add_u32 v{T7}, v{T2}, 1, v{T7}", w={T7}, r={T2, T7})
    V(f"v_xor_b32 v{T7}, v{T7}, v{T1}", w={T7}, r={T7, T1})
    V(f"v_lshl_or_b32 v{T7}, v{T3}, 2, v{T7}", w={T7}, r={T3, T7})
    V(f"v_lshl_add_u32 v{T6}, v{T7}, 4, v{T6}", w={T6}, r={T7, T6})
    V(f"v_and_b32 v{T7}, 1, v{T4}", w={T7}, r={T4})
    V(f"v_lshl_add_u32 v{BV}, v{T7}, 3, v{T6}", w={BV}, r={T7, T6})
    V(f"v_lshlrev_b32 v{T6}, 17, v{T2}", w={T6}, r={T2})
    V(f"v_lshl_add_u32 v{T6}, v{T1}, 8, v{T6}", w={T6}, r={T1, T6})
    V(f"v_and_b32 v{T7}, 15, v{L}", w={T7}, r={L})
    V(f"v_lshl_add_u32 v{OST}, v{T7}, 4, v{T6}", w={OST}, r={T7, T6})
    V(f"v_mov_b32 v{LSUM}, 0", w={LSUM})
    A.waitcnt(lgkm=0)
    A.salu(f"s_cmp_eq_u32 s{sBLK}, 0")
    for k in range(8):
        A.salu(f"s_cselect_b32 s{8+k}, s{8+k}, s{16+k}")
    srd(A, SX, 8, 8 * 112 * 576 * 2)
    srd(A, SK, 10, 8 * 16 * 512 * 128 * 2)
    srd(A, SV, 12, 8 * 16 * 512 * 128 * 2)
    srd(A, SW_, 14, 576 * 4096 * 2)
    srd(A, SO, 24, 2 * O_BLK)
    A.salu(f"s_mul_i32 s{sOB}, s{sBLK}, {O_BLK}")
    A.salu(f"s_mul_i32 s3, s{sB}, 7")
    A.salu(f"s_lshl_b32 s{sT}, s{sRT}, 1")
    A.salu(f"s_add_u32 s3, s3, s{sT}")
    A.salu(f"s_lshl_b32 s3, s3, 17")
    A.salu(f"s_add_u32 s{sOB}, s{sOB}, s3")
    A.salu(f"s_lshl_b32 s3, s{sKVH}, 1")
    A.salu(f"s_add_u32 s3, s3, s{sHL}")
    A.salu(f"s_lshl_b32 s3, s3, 12")
    A.salu(f"s_add_u32 s{sOB}, s{sOB}, s3")
    if OPT["prio"]:
        A.salu(f"s_cmp_ge_u32 s{sW}, 4")
        A.salu("s_cbranch_scc0 K1_PRIO_DONE" if OPT["prio"] == 1 else "s_cbranch_scc1 K1_PRIO_DONE")
        A.salu("s_setprio 1")
        A.label("K1_PRIO_DONE")

    NTT = {0: "", 1: " nt", 2: " sc1", 3: " sc0 sc1", 4: " sc1 nt"}[OPT["ntt"]]
    qunits = []
    for s_ in range(9):
        qunits += [("X", s_), ("W", 2 * s_), ("W", 2 * s_ + 1)]
    kvunits = [("K", 0)]
    for h in range(7):
        kvunits += [("K", h + 1), ("V", h)]
    kvunits += [("V", 7)]
    units = qunits + kvunits
    UK = {idx: 27 + i for i, (t_, idx) in enumerate(kvunits) if t_ == "K"}
    UV = {idx: 27 + i for i, (t_, idx) in enumerate(kvunits) if t_ == "V"}
    stage_units = [list(range(3 * s_, 3 * s_ + 3)) for s_ in range(9)]
    unit_last_vm = {}
    unit_slot = {}
    free = list(range(NSLOT))
    nq = [0]; nkv = [0]; xch = []
    KQ = FR
    DV = FR + 2
    NSTG = OPT["nstg"]
    STG = [S + 32, O, O + 32, P][:NSTG]

    def unit_info(u):
        typ, idx = units[u]
        if typ == "X": return sXB, idx * 128, SX, XO, 2 * 16 * 1152, "ntx"
        if typ == "W": return sWB, idx * 32 * 8192, SW_, WO, 2 * 4 * 8192, "ntw"
        if typ == "K": return sKVB, idx * 64 * 256, SK, KO, 4096, "ntkv"
        return sKVB, idx * 64 * 256, SV, KO, 4096, "ntkv"

    def sbase(base, const):
        if base == sKVB and OPT["rot"]:
            A.salu(f"s_add_u32 s{sT}, s{sMASK}, {const}")
            A.salu(f"s_and_b32 s{sT}, s{sT}, 0x1ffff")
            A.salu(f"s_or_b32 s{sT}, s{sT}, s{sKVB}")
        else:
            A.salu(f"s_add_u32 s{sT}, s{base}, {const}")

    def issue_unit_q(u, stage_reg=None):
        if stage_reg is None:
            slot = free.pop(0)
            unit_slot[u] = slot
        base, const, sr_, vo, delta, nto = unit_info(u)
        if vo == KO: vo = KQ
        nt = " nt" if OPT[nto] else ""
        for hv in range(4):
            A.salu(f"s_add_u32 s{sT}, s{base}, {const + delta * hv}")
            for q in range(2):
                if stage_reg is None:
                    A.salu(f"s_add_u32 m0, s{sWL4}, {slot * SLOT + hv * 4096 + q * 1024}", m0w=True)
                    k = A.vmem(f"buffer_load_dwordx4 v{vo+q}, s[{sr_}:{sr_+3}], s{sT} offen{nt} lds", kind="dma", r={vo + q}, m0r=True)
                else:
                    d = stage_reg + (hv * 2 + q) * 4
                    k = A.vmem(f"buffer_load_dwordx4 {vname(d,4)}, v{vo+q}, s[{sr_}:{sr_+3}], s{sT} offen{nt}", w=vr(d, 4), r={vo + q})
        unit_last_vm[u] = k

    def issue_unit_4(u):
        slot = free.pop(0)
        unit_slot[u] = slot
        base, const, sr_, vo, delta, nto = unit_info(u)
        nt = " nt" if OPT[nto] else ""
        sbase(base, const)
        if vo != KO: A.salu(f"s_add_u32 s{sT2}, s{base}, {const + 2 * delta}")
        for hv in range(2):
            for q in range(2):
                A.salu(f"s_add_u32 m0, s{sWL4}, {slot * SLOT + hv * 8192 + q * 1024}", m0w=True)
                if vo == KO:
                    va = (KQ if hv == 0 else KO) + q; so = sT
                else:
                    va = vo + q; so = sT if hv == 0 else sT2
                k = A.vmem(f"buffer_load_dwordx4 v{va}, s[{sr_}:{sr_+3}], s{so} offen{nt} lds", kind="dma", r={va}, m0r=True)
        unit_last_vm[u] = k

    def flood():
        if not OPT["l2pf"]: return
        V(f"v_lshrrev_b32 v{T1}, 2, v{L}", w={T1}, r={L})
        V(f"v_lshlrev_b32 v{T1}, 13, v{T1}", w={T1}, r={T1})
        V(f"v_and_b32 v{T2}, 3, v{L}", w={T2}, r={L})
        V(f"v_lshl_add_u32 v{T1}, v{T2}, 7, v{T1}", w={T1}, r={T2, T1})
        A.salu(f"s_lshl_b32 s3, s{sW}, 4")
        A.salu(f"s_min_u32 s3, s3, 56")
        A.salu(f"s_mul_i32 s{sT}, s{sB}, 72")
        A.salu(f"s_add_u32 s3, s3, s{sT}")
        A.salu(f"s_lshl_b32 s3, s3, 13")
        A.salu(f"s_add_u32 s3, s3, s{sWB}")
        A.vmem(f"buffer_load_dword v{T4}, v{T1}, s[{SW_}:{SW_+3}], s3 offen{NTT}", w={T4}, r={T1})
        V(f"v_lshlrev_b32 v{T2}, 7, v{L}", w={T2}, r={L})
        A.salu(f"s_and_b32 s3, s{sKVH}, 3")
        A.salu(f"s_mul_i32 s3, s3, 32256")
        A.salu(f"s_and_b32 s{sT}, s{sW}, 3")
        A.salu(f"s_lshl_b32 s{sT}, s{sT}, 13")
        A.salu(f"s_add_u32 s3, s3, s{sT}")
        A.salu(f"s_add_u32 s3, s3, s{sXB}")
        A.vmem(f"buffer_load_dword v{T5}, v{T2}, s[{SX}:{SX+3}], s3 offen{NTT}", w={T5}, r={T2})

    def dump_unit(u, stage_reg):
        slot = free.pop(0)
        unit_slot[u] = slot
        V(f"v_add_u32 v{DV+1}, {slot * SLOT}, v{DV}", w={DV + 1}, r={DV})
        for hv in range(4):
            for q in range(2):
                A.ds_write_b128(DV + 1, stage_reg + (hv * 2 + q) * 4, hv * 4096 + q * 1024)

    def dma_items(u):
        slot = free.pop(0)
        unit_slot[u] = slot
        base, const, sr_, vo, delta, nto = unit_info(u)
        nt = " nt" if OPT[nto] else ""
        def mk(q):
            def f():
                sbase(base, const)
                A.salu(f"s_add_u32 m0, s{sWL}, {slot * SLOT + q * 1024}", m0w=True)
                k = A.vmem(f"buffer_load_dwordx4 v{vo+q}, s[{sr_}:{sr_+3}], s{sT} offen{nt} lds", kind="dma", r={vo + q}, m0r=True)
                unit_last_vm[u] = k
            return f
        if not OPT["stag"]: return [mk(0), mk(1)]
        G = 8 // OPT["stag"]
        def cond(f, g):
            def h():
                lab = f"K1_D{nlab[0]}"; nlab[0] += 1
                A.salu(f"s_cmp_eq_u32 s{sT2}, {g}")
                A.salu(f"s_cbranch_scc0 {lab}")
                n0 = len(A.out)
                f()
                for o in A.out[n0:]: o.ws = 0
                A.label(lab)
                if g < G - 1: A.nvm -= 1
            return h
        return [cond(mk(q), g) for q in range(2) for g in range(G)]
    nlab = [0]

    NQ = OPT["nq"]
    PF = Prof(A, 0)
    PF.stamp("start")

    def addr_items(dst, base, slot, xors):
        it = [lambda: V(f"v_add_u32 v{dst[0]}, {slot * SLOT}, v{base}", w={dst[0]}, r={base})]
        for i, x in enumerate(xors):
            if i == 0: continue
            it.append(lambda i=i, x=x: V(f"v_xor_b32 v{dst[i]}, {x}, v{dst[0]}", w={dst[i]}, r={dst[0]}))
        return it

    A.salu(f"s_cmp_lt_u32 s{sW}, 4")
    A.salu("s_cbranch_scc1 K1_FAT")
    pf0 = PF.n
    staged = []
    if OPT["ld4"]:
        for q in range(2):
            V(f"v_subrev_u32 v{KQ+q}, {4*8*256}, v{KO+q}", w={KQ + q}, r={KO + q})
        NL = NSLOT - NQ
        def refill(s):
            done_q = 3 * max(s, 0)
            while nq[0] < 27 and nq[0] - done_q < NQ and free:
                issue_unit_4(nq[0]); nq[0] += 1
        def kv_issue():
            if nkv[0] < NL:
                if free:
                    issue_unit_4(27 + nkv[0]); nkv[0] += 1
        LW, LX = FR + 4, FR + 5
        nroll = [NQ // 3]
        def lroll(n):
            n = min(n, 9 - nroll[0])
            if n <= 0 or OPT["roll"] != 2: return
            a = nroll[0]; nroll[0] += n
            if n < 8:
                m = (1 << (8 * n)) - 1
                A.salu(f"s_mov_b32 exec_lo, {m & 0xffffffff}")
                A.salu(f"s_mov_b32 exec_hi, {m >> 32}")
            A.salu(f"s_add_u32 s3, s8, {a * 64 * 8192}")
            A.vmem(f"buffer_load_dword v{FR+6}, v{LW}, s[{SW_}:{SW_+3}], s3 offen{NTT}", w={FR + 6}, r={LW})
            A.vmem(f"buffer_load_dword v{FR+7}, v{LX}, s[{SX}:{SX+3}], s9 offen offset:{a * 128}{NTT}", w={FR + 7}, r={LX})
            if n < 8: A.salu("s_mov_b64 exec, -1")
        refill(-1)
        for _ in range(OPT["kv0"]): kv_issue()
        if not OPT["roll"]: flood()
        if OPT["roll"] == 2:
            V(f"v_bfe_u32 v{T1}, v{L}, 2, 1", w={T1}, r={L})
            A.salu(f"s_lshl_b32 s3, s{sW3}, 1")
            V(f"v_add_u32 v{T1}, s3, v{T1}", w={T1}, r={T1})
            V(f"v_lshrrev_b32 v{T3}, 3, v{L}", w={T3}, r={L})
            V(f"v_lshl_add_u32 v{T1}, v{T3}, 6, v{T1}", w={T1}, r={T3, T1})
            V(f"v_lshlrev_b32 v{T1}, 13, v{T1}", w={T1}, r={T1})
            V(f"v_and_b32 v{T2}, 3, v{L}", w={T2}, r={L})
            V(f"v_lshl_add_u32 v{LW}, v{T2}, 7, v{T1}", w={LW}, r={T2, T1})
            V(f"v_and_b32 v{T1}, 7, v{L}", w={T1}, r={L})
            V(f"v_min_u32 v{T1}, 6, v{T1}", w={T1}, r={T1})
            A.salu(f"s_mul_i32 s3, s{sW3}, 7")
            V(f"v_add_u32 v{T1}, s3, v{T1}", w={T1}, r={T1})
            V(f"v_mul_u32_u24 v{T1}, 1152, v{T1}", w={T1}, r={T1})
            V(f"v_lshl_add_u32 v{LX}, v{T3}, 7, v{T1}", w={LX}, r={T3, T1})
            A.salu(f"s_lshl_b32 s8, s{sB}, 16")
            A.salu(f"s_add_u32 s8, s8, s{sWB}")
            A.salu(f"s_and_b32 s9, s{sKVH}, 3")
            A.salu(f"s_mul_i32 s9, s9, {28*1152}")
            A.salu(f"s_add_u32 s9, s9, s{sXB}")
            lroll(OPT["pflead"] - nroll[0])
        for s in range(9):
            A.wait_vm(max(unit_last_vm[u] for u in stage_units[s]))
            A.barrier()
            PF.stamp(f"q{s}")
            if s > 0:
                for u in stage_units[s - 1]: free.append(unit_slot[u])
            refill(s)
            lroll(OPT["pfrate"])
            if s == 8:
                xch.append(free.pop(0)); xch.append(free.pop(0))
            elif s >= OPT["kvs"]:
                for _ in range(OPT["kvrate"]): kv_issue()
            if nq[0] == 27 and nkv[0] >= NL:
                while free:
                    issue_unit_4(27 + nkv[0]); nkv[0] += 1
        A.salu("s_branch K1_ATT")
        ldr_vm = (A.nvm, A.vm_done)
    else:
        A.salu(f"s_cmp_ge_u32 s{sW}, 6")
        A.salu("s_cbranch_scc1 K1_KVL")
        pf0 = PF.n
        kvslots = [free.pop() for _ in range(NSLOT - NQ)]
        def refill(s):
            done_q = 3 * max(s, 0)
            while nq[0] < 27 and nq[0] - done_q < NQ and free:
                issue_unit_q(nq[0]); nq[0] += 1
        refill(-1)
        for s in range(9):
            A.wait_vm(max(unit_last_vm[u] for u in stage_units[s]))
            A.barrier()
            PF.stamp(f"q{s}")
            if s > 0:
                for u in stage_units[s - 1]: free.append(unit_slot[u])
            refill(s)
            if s == 8:
                xch.append(free.pop(0)); xch.append(free.pop(0))
        A.waitcnt(vm=0)
        A.vm_done = A.nvm
        A.salu("s_branch K1_ATT")
        A.label("K1_KVL")
        A.win = []
        A.salu("s_nop 4")
        PF.n = pf0; PF.names = PF.names[:pf0]
        for q in range(2):
            V(f"v_subrev_u32 v{KQ+q}, {6*8*256}, v{KO+q}", w={KQ + q}, r={KO + q})
        V(f"v_lshlrev_b32 v{DV}, 4, v{L}", w={DV}, r={L})
        V(f"v_add_u32 v{DV}, s{sWL4}, v{DV}", w={DV}, r={DV})
        late_free = free[:]; free[:] = kvslots
        NL = len(kvslots)
        TV = FR + 4
        V(f"v_lshlrev_b32 v{TV}, 7, v{L}", w={TV}, r={L})
        A.salu(f"s_lshl_b32 s3, s{sW3}, 13")
        V(f"v_add_u32 v{TV}, s3, v{TV}", w={TV}, r={TV})
        NT = OPT["kvt"]
        ntouch = [0]
        def kv_issue():
            i = nkv[0]
            if i < NL: issue_unit_q(27 + i)
            elif i < NL + NSTG: issue_unit_q(27 + i, STG[i - NL])
            else:
                if ntouch[0] < NT:
                    u = 27 + NL + NSTG + ntouch[0]
                    base, const, sr_, vo, delta, nto = unit_info(u)
                    A.salu(f"s_add_u32 s{sT}, s{base}, {const}")
                    A.vmem(f"buffer_load_dword v{TV+1}, v{TV}, s[{sr_}:{sr_+3}], s{sT} offen", w={TV + 1}, r={TV})
                    ntouch[0] += 1
                return
            nkv[0] += 1
        for _ in range(OPT["kv0"]): kv_issue()
        for s in range(9):
            A.barrier()
            PF.stamp(f"q{s}")
            for _ in range(OPT["kvrate"]): kv_issue()
        assert nkv[0] == NL + NSTG
        free[:] = late_free
        staged = [(27 + NL + i, STG[i]) for i in range(NSTG)]
        while staged and free:
            u, r_ = staged.pop(0)
            A.wait_vm(unit_last_vm[u])
            dump_unit(u, r_)
        A.waitcnt(vm=0)
        A.vm_done = A.nvm
        A.wait_ds_all()
        A.salu("s_branch K1_ATT")
    A.label("K1_FAT")
    A.win = []
    A.salu("s_nop 4")
    PF.n = pf0; PF.names = PF.names[:pf0]
    TW, TX = XO, XO + 1
    if OPT["roll"] == 2:
        pass
    elif OPT["ld4"] and not OPT["roll"]:
        V(f"v_lshlrev_b32 v{TW}, 7, v{L}", w={TW}, r={L})
        A.salu(f"s_lshl_b32 s3, s{sW}, 13")
        V(f"v_add_u32 v{TW}, s3, v{TW}", w={TW}, r={TW})
    else:
        TW, TX = XO, XO + 1
        V(f"v_bfe_u32 v{T1}, v{L}, 2, 1", w={T1}, r={L})
        A.salu(f"s_lshl_b32 s3, s{sW}, 1")
        V(f"v_add_u32 v{T1}, s3, v{T1}", w={T1}, r={T1})
        V(f"v_lshlrev_b32 v{T1}, 13, v{T1}", w={T1}, r={T1})
        V(f"v_and_b32 v{T2}, 3, v{L}", w={T2}, r={L})
        V(f"v_lshl_add_u32 v{TW}, v{T2}, 7, v{T1}", w={TW}, r={T2, T1})
        V(f"v_and_b32 v{T1}, 7, v{L}", w={T1}, r={L})
        V(f"v_min_u32 v{T1}, 6, v{T1}", w={T1}, r={T1})
        A.salu(f"s_mul_i32 s3, s{sW}, 7")
        V(f"v_add_u32 v{T1}, s3, v{T1}", w={T1}, r={T1})
        V(f"v_mul_u32_u24 v{TX}, 1152, v{T1}", w={TX}, r={T1})
        A.salu(f"s_lshl_b32 s8, s{sB}, 16")
        A.salu(f"s_add_u32 s8, s8, s{sWB}")
        A.salu(f"s_and_b32 s9, s{sKVH}, 3")
        A.salu(f"s_mul_i32 s9, s9, {28*1152}")
        A.salu(f"s_add_u32 s9, s9, s{sXB}")
    def touch(s_):
        if not OPT["l2pf"] or s_ > 8: return
        A.salu(f"s_add_u32 s3, s8, {s_ * 64 * 8192}")
        A.vmem(f"buffer_load_dword v{T4}, v{TW}, s[{SW_}:{SW_+3}], s3 offen{NTT}", w={T4}, r={TW})
        A.vmem(f"buffer_load_dword v{T5}, v{TX}, s[{SX}:{SX+3}], s9 offen offset:{s_ * 128}{NTT}", w={T5}, r={TX})
    if OPT["roll"] == 2:
        touch = lambda s_: None
    elif OPT["roll"]:
        touch1 = touch
        nroll = [2]
        def roll(n):
            for _ in range(n):
                touch1(nroll[0]); nroll[0] += 1
        roll(OPT["pflead"] - 2)
        touch = lambda s_: roll(OPT["pfrate"])
    elif OPT["ld4"]:
        flood()
        ntouch = [0]
        def touch(s_):
            s_ -= OPT["pflead"]
            if s_ < OPT["kvt0"]: return
            for _ in range(OPT["kvtr"]):
                if ntouch[0] >= OPT["kvt"]: return
                ua = 27 + NL + 1 + ntouch[0]
                ia = unit_info(ua); ib = unit_info(ua + 1)
                A.salu(f"s_cmp_lt_u32 s{sW}, 2")
                A.salu(f"s_mov_b32 s3, {ib[1] - 16384}")
                A.salu(f"s_cselect_b32 s3, {ia[1]}, s3")
                A.salu(f"s_cselect_b32 s60, s{ia[2]}, s{ib[2]}")
                A.salu(f"s_cselect_b32 s61, s{ia[2]+1}, s{ib[2]+1}")
                A.salu(f"s_mov_b32 s62, s{ia[2]+2}")
                A.salu(f"s_mov_b32 s63, s{ia[2]+3}")
                A.salu(f"s_add_u32 s3, s3, s{sKVB}")
                A.vmem(f"buffer_load_dword v{T4}, v{TW}, s[60:63], s3 offen", w={T4}, r={TW})
                ntouch[0] += 2
    if not OPT["ld4"]:
        for s_ in range(2, OPT["pflead"]): touch(s_)
    if OPT["tlbw"]:
        A.salu("s_load_dwordx2 s[16:17], s[0:1], 32")
        A.salu("s_load_dwordx2 s[18:19], s[0:1], 72")
        A.salu("s_load_dwordx2 s[20:21], s[0:1], 80")
        D = NEGM
        V(f"v_lshlrev_b32 v{T1}, 12, v{L}", w={T1}, r={L})
        V(f"v_and_b32 v{T1}, 0x1ffff, v{T1}", w={T1}, r={T1})
        A.vmem(f"buffer_load_dword v{D}, v{T1}, s[{SV}:{SV+3}], s{sKVB} offen", w={D}, r={T1})
        if OPT["tlbw"] > 1:
            A.vmem(f"buffer_load_dword v{D+1}, v{T1}, s[{SK}:{SK+3}], s{sKVB} offen", w={D + 1}, r={T1})
        V(f"v_min_u32 v{T2}, 6, v{L}", w={T2}, r={L})
        V(f"v_lshlrev_b32 v{T2}, 17, v{T2}", w={T2}, r={T2})
        A.salu(f"s_mul_i32 s3, s{sBLK}, {O_BLK}")
        A.salu(f"s_mul_i32 s{sT}, s{sB}, {7*131072}")
        A.salu(f"s_add_u32 s3, s3, s{sT}")
        if OPT["fuse"]:
            A.salu(f"s_lshl_b32 s{sT}, s{sKVH}, 13")
            A.salu(f"s_add_u32 s3, s3, s{sT}")
            A.vmem(f"buffer_store_dword v{T2}, v{T2}, s[{SO}:{SO+3}], s3 offen sc1", r={T2}, storedata={T2})
        else:
            A.vmem(f"buffer_load_dword v{D+2}, v{T2}, s[{SO}:{SO+3}], s3 offen", w={D + 2}, r={T2})
        V(f"v_lshlrev_b32 v{T3}, 16, v{L}", w={T3}, r={L})
        A.salu("s_waitcnt lgkmcnt(0)")
        A.salu(f"s_cmp_eq_u32 s{sBLK}, 0")
        A.salu("s_cselect_b32 s60, s16, s18")
        A.salu("s_cselect_b32 s61, s17, s19")
        A.salu("s_and_b32 s61, s61, 0xffff")
        A.salu(f"s_mov_b32 s62, {4096*576*2}")
        A.salu("s_mov_b32 s63, 0x00020000")
        A.salu(f"s_mov_b32 s3, {8*65536}")
        A.vmem(f"buffer_load_dword v{D+3}, v{T3}, s[60:63], 0 offen", w={D + 3}, r={T3})
        A.vmem(f"buffer_load_dword v{D+4}, v{T3}, s[60:63], s3 offen", w={D + 4}, r={T3})
        A.salu("s_mov_b32 s16, s20")
        A.salu("s_and_b32 s17, s21, 0xffff")
        A.salu(f"s_mov_b32 s18, {896*1152*2}")
        A.salu("s_mov_b32 s19, 0x00020000")
        A.vmem(f"buffer_load_dword v{D+5}, v{T3}, s[16:19], 0 offen", w={D + 5}, r={T3})
    QA = [S, O]
    FBW = [P, QB]; FBX = [P + 16, QB + 16]
    AW = [FR, FR + 4]; AX = FR + 8
    def qaddr(s):
        u0 = 3 * s
        return (addr_items([AX + i for i in range(4)], BX, unit_slot[u0], [0, 32, 64, 96]) +
                addr_items([AW[0] + i for i in range(4)], BW, unit_slot[u0 + 1], [0, 64, 128, 192]) +
                addr_items([AW[1] + i for i in range(4)], BW, unit_slot[u0 + 2], [0, 64, 128, 192]))
    def qread_items(ks):
        it = [lambda: A.ds_read_b128(FBX[ks % 2], AX + ks), lambda: A.ds_read_b128(FBX[ks % 2] + 4, AX + ks, 4096)]
        for t in range(4):
            for j in range(2):
                it.append(lambda t=t, j=j: A.ds_read_tr(FBW[ks % 2] + 4 * t + 2 * j, AW[ks // 2] + t, ((ks % 2) * 16 + 4 * j) * 512))
        return it
    def qreads(ks):
        for it in qread_items(ks): last = it()
        return last
    for it in qaddr(0): it()
    A.barrier()
    PF.stamp("q0")
    pend = qreads(0)
    touch(OPT["pflead"])
    QI = OPT["qi"]
    for s in range(9):
        for ks in range(4):
            A.wait_ds(pend)
            rq = []
            if ks < 3:
                if QI: rq = qread_items(ks + 1)
                else: pend = qreads(ks + 1)
            nxt = qaddr(s + 1) if (ks == 3 and s < 8) else []
            m = 0
            for t in range(4):
                for r2 in range(2):
                    A.mfma(QA[r2] + 16 * t, FBW[ks % 2] + 4 * t, FBX[ks % 2] + 4 * r2, "zero" if (s == 0 and ks == 0) else None)
                    if nxt:
                        if m < 2:
                            for it in nxt[6 * m: 6 * m + 6]: it()
                        if m == 1:
                            A.barrier()
                            PF.stamp(f"q{s+1}")
                            if QI: rq = qread_items(0)
                            else: pend = qreads(0)
                        if m == 3: touch(s + 1 + OPT["pflead"])
                    for _ in range(QI):
                        if rq: pend = rq.pop(0)()
                    m += 1
            assert not rq
    A.salu(f"s_lshr_b32 s3, s{sW}, 1")
    A.salu(f"s_cmp_eq_u32 s3, 0")
    A.salu(f"s_cselect_b32 s3, {xch[0]}, {xch[1]}")
    A.salu(f"s_lshl_b32 s3, s3, 14")
    A.salu(f"s_and_b32 s{sT}, s{sW}, 1")
    A.salu(f"s_lshl_b32 s{sT}, s{sT}, 13")
    A.salu(f"s_add_u32 s3, s3, s{sT}")
    V(f"v_lshlrev_b32 v{T6}, 4, v{L}", w={T6}, r={L})
    V(f"v_add_u32 v{T6}, s3, v{T6}", w={T6}, r={T6})
    for i in range(64):
        V(f"v_mul_f32 v{O+i}, s{sC}, v{O+i}", w={O + i}, r={O + i})
    for q in range(32):
        V(f"v_cvt_pk_bf16_f32 v{P+q}, v{O+2*q}, v{O+2*q+1}", w={P + q}, r={O + 2 * q, O + 2 * q + 1})
        if q % 4 == 3:
            A.ds_write_b128(T6, P + q - 3, (q // 4) * 1024)
    for i in range(64):
        V(f"v_mul_f32 v{S+i}, s{sC}, v{S+i}", w={S + i}, r={S + i})
    for q in range(32):
        V(f"v_cvt_pk_bf16_f32 v{QB+q}, v{S+2*q}, v{S+2*q+1}", w={QB + q}, r={S + 2 * q, S + 2 * q + 1})
    A.wait_ds_all()
    A.waitcnt(vm=0)
    A.vm_done = A.nvm
    if OPT["ld4"]:
        A.nvm, A.vm_done = ldr_vm
    A.label("K1_ATT")
    A.win = []
    A.salu("s_nop 4")
    if OPT["stag"]:
        A.salu(f"s_lshr_b32 s{sT2}, s{sW}, {OPT['stag'] - 1}")

    SETA = [AD + i for i in range(8)]
    SETB = [XO, XO + 1, WO, WO + 1, BW, BX, T4, T5]
    kx = [32 * ks for ks in range(8)]
    vx = [(t << 6) ^ (32 * jj) for t in range(4) for jj in range(2)]
    SB = lambda h: S + 32 * (h % 2)
    PB = lambda h: P + 16 * (h % 2)
    phases = [("qk", 0)] + [x for h in range(7) for x in (("qk", h + 1), ("pv", h))] + [("pv", 7)]
    pset = {}
    for ph in phases:
        pset[ph] = SETA if ph[0] == "qk" else SETB
    pset[("qk", 0)] = SETB; pset[("pv", 7)] = SETA
    punit = lambda ph: UK[ph[1]] if ph[0] == "qk" else UV[ph[1]]
    def paddr(ph):
        u = punit(ph)
        return addr_items(pset[ph], BK if ph[0] == "qk" else BV, unit_slot[u], kx if ph[0] == "qk" else vx)
    mf = [(ph, i) for ph in phases for i in range(16)]
    syncJ = list(range(0, 6, OPT["bstep"]))
    if OPT["fuse"]:
        syncJ.append(6)
        K2 = K2Fused(A, sW, SO, QB)
    sync_pos = [phases.index(("pv", j)) * 16 + 12 for j in syncJ]
    first_read = {}
    for n, (ph, i) in enumerate(mf):
        first_read.setdefault(punit(ph), max(n - 4, -1))
    last_read = {}
    for n, (ph, i) in enumerate(mf):
        last_read[punit(ph)] = n - 4
    def publish_set(pos_from, pos_to):
        return [u for u, fr in first_read.items() if pos_from <= fr < pos_to]
    freed = set()
    dmaq = []
    def refill_att():
        while nkv[0] < 16 and free:
            dmaq.extend(dma_items(27 + nkv[0])); nkv[0] += 1

    pub = publish_set(-1, sync_pos[0])
    A.wait_vm(max(unit_last_vm[u] for u in pub))
    A.barrier()
    PF.stamp("a0")
    for u in stage_units[8]: free.append(unit_slot[u])
    A.salu(f"s_cmp_lt_u32 s{sW}, 4")
    A.salu(f"s_cbranch_scc1 K1_QGOT")
    if staged:
        A.salu(f"s_cmp_lt_u32 s{sW}, 6")
        A.salu(f"s_cbranch_scc1 K1_NODUMP")
        while staged:
            u, r_ = staged.pop(0)
            dump_unit(u, r_)
        A.label("K1_NODUMP")
    refill_att()
    A.salu(f"s_bfe_u32 s3, s{sW}, 0x10001")
    A.salu(f"s_cmp_eq_u32 s3, 0")
    A.salu(f"s_cselect_b32 s3, {xch[0]}, {xch[1]}")
    A.salu(f"s_lshl_b32 s3, s3, 14")
    A.salu(f"s_and_b32 s{sT}, s{sW}, 1")
    A.salu(f"s_lshl_b32 s{sT}, s{sT}, 13")
    A.salu(f"s_add_u32 s3, s3, s{sT}")
    V(f"v_lshlrev_b32 v{T6}, 4, v{L}", w={T6}, r={L})
    V(f"v_add_u32 v{T6}, s3, v{T6}", w={T6}, r={T6})
    for q in range(8):
        A.ds_read_b128(QB + 4 * q, T6, q * 1024)
    A.wait_ds_all()
    A.label("K1_QGOT")
    A.salu("s_nop 1")
    for it in paddr(("qk", 0)) + paddr(("qk", 1)): it()

    TT = [T0, T1, T2, T3]
    def max_items(regs, first, final):
        it = []
        r = list(regs)
        if first:
            a = r[:3]; b = r[3:6]; r = r[6:]
            it.append(lambda a=a: V(f"v_max3_f32 v{MX}, v{a[0]}, v{a[1]}, v{a[2]}", w={MX}, r=set(a)))
            it.append(lambda b=b: V(f"v_max3_f32 v{MX2}, v{b[0]}, v{b[1]}, v{b[2]}", w={MX2}, r=set(b)))
        k = 0
        while r:
            a = r[:2]; r = r[2:]
            d = MX if k % 2 == 0 else MX2
            it.append(lambda a=a, d=d: V(f"v_max3_f32 v{d}, v{d}, v{a[0]}, v{a[1]}", w={d}, r={d} | set(a)))
            k += 1
        if final:
            it.append(lambda: V(f"v_max_f32 v{MX}, v{MX}, v{MX2}", w={MX}, r={MX, MX2}))
            it.append(lambda: V(f"v_mov_b32 v{MX2}, v{MX}", w={MX2}, r={MX}))
            it.append(lambda: V(f"v_permlane32_swap_b32 v{MX}, v{MX2}", w={MX, MX2}, r={MX, MX2}, kind="perm"))
            it.append(lambda: V(f"v_max_f32 v{MX}, v{MX}, v{MX2}", w={MX}, r={MX, MX2}))
        return it
    def sm_items(h, lo, hi, sub):
        it = []
        sb, pb = SB(h), PB(h)
        if sub:
            it.append(lambda: V(f"v_sub_f32 v{sb+lo}, v{sb+lo}, v{MX}", w={sb + lo}, r={sb + lo, MX}))
        for e in range(lo, hi + 2):
            if sub and e + 1 < hi:
                it.append(lambda e=e: V(f"v_sub_f32 v{sb+e+1}, v{sb+e+1}, v{MX}", w={sb + e + 1}, r={sb + e + 1, MX}))
            if e < hi:
                it.append(lambda e=e: V(f"v_exp_f32 v{TT[e%4]}, v{sb+e}", w={TT[e % 4]}, r={sb + e}, kind="trans"))
            if lo <= e - 1 < hi:
                p = e - 1; acc = SUMA if p % 2 == 0 else SUMB
                if p < 2:
                    it.append(lambda p=p, acc=acc: V(f"v_mov_b32 v{acc}, v{TT[p%4]}", w={acc}, r={TT[p % 4]}))
                else:
                    it.append(lambda p=p, acc=acc: V(f"v_add_f32 v{acc}, v{acc}, v{TT[p%4]}", w={acc}, r={acc, TT[p % 4]}))
            if e - 2 >= lo and (e - 2) % 2 == 0 and e - 1 < hi:
                p = e - 2
                it.append(lambda p=p: V(f"v_cvt_pk_bf16_f32 v{pb+p//2}, v{TT[p%4]}, v{TT[(p+1)%4]}", w={pb + p // 2}, r={TT[p % 4], TT[(p + 1) % 4]}))
        return it
    def negm_items():
        return [lambda i=i: V(f"v_sub_f32 v{NEGM+i}, 0, v{MX}", w={NEGM + i}, r={MX}) for i in range(16)]
    def check(h):
        V(f"v_add_f32 v{SUMA}, v{SUMA}, v{SUMB}", w={SUMA}, r={SUMA, SUMB})
        if h > 0:
            V(f"v_cmp_nge_f32 vcc, s{sTHR}, v{SUMA}", r={SUMA}, sw={"vcc"})
            A.salu("s_nop 1")
            A.salu(f"s_cbranch_vccnz K1_SLOW{h}")
            A.label(f"K1_BACK{h}")
        V(f"v_add_f32 v{LSUM}, v{LSUM}, v{SUMA}", w={LSUM}, r={LSUM, SUMA})

    def side_for(ph):
        kind, h = ph
        if ph == ("qk", 0):
            return [], []
        if kind == "qk":
            hh = h - 1
            if hh == 0:
                main = max_items([SB(0) + i for i in range(32)], True, True) + sm_items(0, 0, 32, True)
            else:
                main = sm_items(hh, 16, 32, hh == 1)
            return main, paddr(("pv", hh))
        if h == 7: return [], []
        if h == 6:
            return sm_items(7, 0, 32, False), paddr(("pv", 7)) + (K2.addr_items() if OPT["fuse"] and OPT["fuse"] != 6 else [])
        main = sm_items(h + 1, 0, 16, h == 0)
        if h == 0: main = negm_items() + main
        return main, paddr(("qk", h + 2))

    rid = {}
    def issue_read(n):
        ph, i = mf[n]
        st = pset[ph]; fr = FR + 4 * (n % 4)
        if ph[0] == "qk":
            rid[n] = A.ds_read_b128(fr, st[i % 8], (i // 8) * 8192)
        else:
            g, t = i // 4, i % 4
            A.ds_read_tr(fr, st[2 * t], g * 4096)
            rid[n] = A.ds_read_tr(fr + 2, st[2 * t + 1], g * 4096 + 2048)
    for n in range(4): issue_read(n)
    gap = 0
    for n, (ph, i) in enumerate(mf):
        kind, h = ph
        if i == 0:
            main, adr = side_for(ph)
            plan = [[] for _ in range(16)]
            for k, it in enumerate(adr): plan[k * 12 // max(len(adr), 1)].append(it)
            s0 = 1 if ph == ("qk", 1) else 0
            for k, it in enumerate(main): plan[s0 + k * (16 - s0) // len(main)].append(it)
        A.wait_ds(rid[n])
        fr = FR + 4 * (n % 4)
        if kind == "qk":
            kt, ks = i // 8, i % 8
            c = None
            if ks == 0: c = "zero" if h <= 1 else NEGM
            A.mfma(SB(h) + 16 * kt, fr, QB + 4 * ks, c)
        else:
            g, t = i // 4, i % 4
            A.mfma(O + 16 * t, fr, PB(h) + 4 * g, "zero" if (h == 0 and g == 0) else None)
        if n in sync_pos:
            k = sync_pos.index(n)
            pub = publish_set(n, sync_pos[k + 1] if k + 1 < len(sync_pos) else 10**9)
            while dmaq: dmaq.pop(0)()
            A.wait_ds_all()
            A.wait_vm(max(unit_last_vm[u] for u in pub))
            A.barrier()
            PF.stamp(f"x{h}")
            if k == 0: free.extend(xch)
            for u, lr in last_read.items():
                if lr < n and u not in freed:
                    freed.add(u); free.append(unit_slot[u])
            refill_att()
            if OPT["fuse"] == 6:
                if h == 1: K2.loads()
                if h == 2: K2.scalars()
                if h == 3: K2.addr6()
                if h >= OPT["wo0"]:
                    assert nkv[0] == 16
                    while free and len(K2.slots6) < 8:
                        j = len(K2.slots6); K2.slots6.append(free.pop(0))
                        if h < 6 or OPT["wo6"]:
                            dmaq.extend([lambda j=j, q=q: K2.wo_piece(j >> 1, (j & 1) * 2 + q) for q in range(2)])
                            K2.done6 = j + 1
            elif OPT["fuse"]:
                if h == 4: K2.loads()
                if h == 5: K2.scalars()
                if h == 6:
                    assert len(free) >= 8, free
                    its = K2.wo_items(free[:8])
                    K2.mslot = free[8]
                    if OPT["fuse"] < 3: dmaq.extend(its)
            if OPT["wopf"] and h == OPT["wopf"] - 1:
                A.salu("s_load_dwordx2 s[60:61], s[0:1], 32")
                A.salu("s_load_dwordx2 s[62:63], s[0:1], 72")
                if OPT["xm"]:
                    A.salu(f"s_lshr_b32 s3, s2, 3")
                    A.salu(f"s_lshl_b32 s3, s3, 3")
                    A.salu(f"s_add_u32 s3, s3, s{sW}")
                    A.salu(f"s_mul_i32 s3, s3, {16*1152}")
                    A.salu(f"s_and_b32 s{sT}, s2, 1")
                    A.salu(f"s_lshl_b32 s{sT}, s{sT}, 9")
                    A.salu(f"s_add_u32 s3, s3, s{sT}")
                    V(f"v_mbcnt_lo_u32_b32 v{T6}, -1, 0", w={T6})
                    V(f"v_mbcnt_hi_u32_b32 v{T6}, -1, v{T6}", w={T6}, r={T6})
                    V(f"v_lshrrev_b32 v{T7}, 2, v{T6}", w={T7}, r={T6})
                    V(f"v_mul_u32_u24 v{T7}, 1152, v{T7}", w={T7}, r={T7})
                    V(f"v_and_b32 v{T6}, 3, v{T6}", w={T6}, r={T6})
                    V(f"v_lshl_add_u32 v{T6}, v{T6}, 7, v{T7}", w={T6}, r={T6, T7})
                else:
                    if OPT["wox"]:
                        A.salu(f"s_lshr_b32 s3, s2, 5")
                        A.salu(f"s_lshl_b32 s3, s3, 4")
                        A.salu(f"s_bfe_u32 s{sT}, s2, 0x20003")
                        A.salu(f"s_add_u32 s3, s3, s{sT}")
                    else:
                        A.salu(f"s_lshl_b32 s3, s{sB}, 4")
                        A.salu(f"s_add_u32 s3, s3, s{sKVH}")
                    A.salu(f"s_mul_i32 s3, s3, 288")
                    A.salu(f"s_lshl_b32 s{sT}, s{sW}, 6")
                    A.salu(f"s_min_u32 s{sT}, s{sT}, 224")
                    A.salu(f"s_add_u32 s3, s3, s{sT}")
                    A.salu(f"s_lshl_b32 s3, s3, 7")
                    V(f"v_mbcnt_lo_u32_b32 v{T7}, -1, 0", w={T7})
                    V(f"v_mbcnt_hi_u32_b32 v{T7}, -1, v{T7}", w={T7}, r={T7})
                    V(f"v_lshlrev_b32 v{T7}, 7, v{T7}", w={T7}, r={T7})
                A.salu("s_waitcnt lgkmcnt(0)")
                A.salu(f"s_cmp_eq_u32 s{sBLK}, 0")
                A.salu("s_cselect_b32 s60, s60, s62")
                A.salu("s_cselect_b32 s61, s61, s63")
                A.salu("s_and_b32 s61, s61, 0xffff")
                A.salu(f"s_mov_b32 s62, {4096*576*2}")
                A.salu("s_mov_b32 s63, 0x00020000")
                if OPT["xm"]:
                    A.salu("s_mov_b32 exec_lo, 0x88888888")
                    A.salu("s_mov_b32 exec_hi, 0x88888888")
                    A.vmem(f"buffer_load_dword v{T7}, v{T6}, s[60:63], s3 offen offset:128", w={T7}, r={T6})
                    A.salu("s_mov_b64 exec, -1")
                TA_ = T6 if OPT["xm"] else T7
                A.vmem(f"buffer_load_dword v{T7}, v{TA_}, s[60:63], s3 offen", w={T7}, r={TA_})
        if n + 4 < len(mf): issue_read(n + 4)
        for it in plan[i]: it()
        gap += 1
        if dmaq and gap >= OPT["dmagap"]:
            dmaq.pop(0)(); gap = 0
        if i == 15:
            if kind == "qk" and h >= 1: check(h - 1)
            if ph == ("pv", 6): check(7)
    assert not dmaq
    PF.stamp("pv7")
    V(f"v_mov_b32 v{T0}, v{LSUM}", w={T0}, r={LSUM})
    V(f"v_permlane32_swap_b32 v{T0}, v{LSUM}", w={T0, LSUM}, r={T0, LSUM}, kind="perm")
    V(f"v_add_f32 v{T0}, v{T0}, v{LSUM}", w={T0}, r={T0, LSUM})
    V(f"v_rcp_f32 v{T0}, v{T0}", w={T0}, r={T0}, kind="trans")
    A.salu(f"s_cmp_eq_u32 s{sRT}, 3")
    A.salu("s_cbranch_scc0 K1_NOMASK")
    A.salu("s_mov_b32 exec_lo, 0xffff")
    A.salu("s_mov_b32 exec_hi, 0xffff")
    A.label("K1_NOMASK")
    for f in range(8):
        b0 = O + 8 * f
        for i in range(8):
            V(f"v_mul_f32 v{b0+i}, v{T0}, v{b0+i}", w={b0 + i}, r={T0, b0 + i})
        d = P + 4 * f
        for q in range(4):
            V(f"v_cvt_pk_bf16_f32 v{d+q}, v{b0+2*q}, v{b0+2*q+1}", w={d + q}, r={b0 + 2 * q, b0 + 2 * q + 1})
        A.vmem(f"buffer_store_dwordx4 {vname(d,4)}, v{OST}, s[{SO}:{SO+3}], s{sOB} offen offset:{f*512}{' sc1' if OPT['fuse'] else ' nt' if OPT['ntst'] else ''}", r=vr(d, 4) | {OST}, storedata=vr(d, 4))
    if OPT["fuse"]:
        K2.body(PF, sBLK, sB, sKVH)
    PF.dump(24, sW, 0)
    A.label("K1_END")
    A.salu("s_endpgm")
    for h in range(1, 8):
        A.label(f"K1_SLOW{h}")
        A.flush_hazards()
        sb = SB(h)
        for it in max_items([sb + i for i in range(32)], True, True): it()
        V(f"v_max_f32 v{MX}, 0, v{MX}", w={MX}, r={MX})
        V(f"v_sub_f32 v{MX2}, 0, v{MX}", w={MX2}, r={MX})
        V(f"v_exp_f32 v{MX2}, v{MX2}", w={MX2}, r={MX2}, kind="trans")
        for i in range(64):
            V(f"v_mul_f32 v{O+i}, v{MX2}, v{O+i}", w={O + i}, r={MX2, O + i})
        V(f"v_mul_f32 v{LSUM}, v{MX2}, v{LSUM}", w={LSUM}, r={MX2, LSUM})
        for i in range(16):
            V(f"v_sub_f32 v{NEGM+i}, v{NEGM+i}, v{MX}", w={NEGM + i}, r={NEGM + i, MX})
        if h < 7:
            s2 = SB(h + 1)
            for i in range(32):
                V(f"v_sub_f32 v{s2+i}, v{s2+i}, v{MX}", w={s2 + i}, r={s2 + i, MX})
        for it in sm_items(h, 0, 32, True): it()
        V(f"v_add_f32 v{SUMA}, v{SUMA}, v{SUMB}", w={SUMA}, r={SUMA, SUMB})
        A.flush_hazards()
        A.salu(f"s_branch K1_BACK{h}")

class K2Fused:
    def __init__(self, A, sW, SO, WOFF):
        self.A = A; self.sW = sW; self.SO = SO; self.WOFF = WOFF
        self.SWO, self.SOUT, self.SDBG = 28, 32, 20
        self.sBLK, self.sTT, self.sMT, self.sNT = 16, 17, 18, 19
        self.sWL, self.sWB, self.sO0, self.sO1, self.sT = 49, 50, 8, 9, 52
        self.sP0, self.sP1 = 10, 11
        self.last_vm = {}
    def loads(self):
        A = self.A
        A.salu("s_load_dwordx2 s[8:9], s[0:1], 32")
        A.salu("s_load_dwordx2 s[10:11], s[0:1], 72")
        A.salu("s_load_dwordx2 s[12:13], s[0:1], 80")
        A.salu("s_load_dwordx2 s[14:15], s[0:1], 88")
    def scalars(self):
        A = self.A; sW = self.sW
        sBLK, sTT, sMT, sNT = self.sBLK, self.sTT, self.sMT, self.sNT
        A.salu("s_waitcnt lgkmcnt(0)")
        if OPT["xm"]:
            A.salu("s_bitcmp1_b32 s2, 2")
            A.salu(f"s_cselect_b32 s{sBLK}, 1, 0")
            A.salu("s_cselect_b32 s8, s10, s8")
            A.salu("s_cselect_b32 s9, s11, s9")
            srd(A, self.SWO, 8, 4096 * 576 * 2)
            srd(A, self.SOUT, 12, 896 * 1152 * 2)
            srd(A, self.SDBG, 14, 256)
            A.salu("s_lshr_b32 s3, s2, 3")
            A.salu("s_and_b32 s12, s2, 1")
            A.salu(f"s_lshr_b32 s{sMT}, s3, 2")
            A.salu(f"s_and_b32 s{sNT}, s3, 3")
            A.salu("s_mul_i32 s13, s12, 5")
            A.salu(f"s_add_u32 s{sNT}, s{sNT}, s13")
            A.salu("s_lshl_b32 s13, s12, 2")
            A.salu("s_add_u32 s13, s13, s3")
            A.salu("s_sub_u32 s13, s13, 28")
            A.salu("s_cmp_ge_u32 s3, 28")
            A.salu(f"s_cselect_b32 s{sMT}, s13, s{sMT}")
            A.salu(f"s_cselect_b32 s{sNT}, 4, s{sNT}")
            A.salu(f"s_cmp_eq_u32 s{sMT}, 7")
            A.salu(f"s_cselect_b32 s{sTT}, 255, 0")
            A.salu(f"s_min_u32 s{sMT}, s{sMT}, 6")
            A.salu("s_bfe_u32 s13, s2, 0x10001")
            A.salu("s_mul_i32 s13, s13, 7")
            A.salu(f"s_add_u32 s{sMT}, s{sMT}, s13")
        else:
            A.salu("s_and_b32 s3, s2, 7")
            A.salu("s_lshl_b32 s3, s3, 5")
            A.salu(f"s_lshr_b32 s{sTT}, s2, 3")
            A.salu(f"s_add_u32 s{sTT}, s3, s{sTT}")
            A.salu(f"s_min_u32 s3, s{sTT}, 251")
            A.salu("s_cmp_ge_u32 s3, 126")
            A.salu(f"s_cselect_b32 s{sBLK}, 1, 0")
            A.salu("s_cselect_b32 s8, s10, s8")
            A.salu("s_cselect_b32 s9, s11, s9")
            srd(A, self.SWO, 8, 4096 * 576 * 2)
            srd(A, self.SOUT, 12, 896 * 1152 * 2)
            srd(A, self.SDBG, 14, 256)
            A.salu(f"s_mul_i32 s12, s{sBLK}, 126")
            A.salu("s_sub_u32 s3, s3, s12")
            A.salu("s_mul_i32 s12, s3, 57")
            A.salu(f"s_lshr_b32 s{sMT}, s12, 9")
            A.salu(f"s_mul_i32 s12, s{sMT}, 9")
            A.salu(f"s_sub_u32 s{sNT}, s3, s12")
        A.salu(f"s_mul_i32 s{self.sWB}, s{sW}, {(32 if OPT['fuse'] == 5 else 512)*1152}")
        A.salu(f"s_lshl_b32 s12, s{sNT}, 7")
        A.salu(f"s_add_u32 s{self.sWB}, s{self.sWB}, s12")
        A.salu(f"s_mul_i32 s{self.sO0}, s{sBLK}, {O_BLK}")
        A.salu(f"s_lshl_b32 s12, s{sMT}, 19")
        A.salu(f"s_add_u32 s{self.sO0}, s{self.sO0}, s12")
        A.salu(f"s_lshl_b32 s12, s{sW}, {10 if OPT['fuse'] == 5 else 14}")
        A.salu(f"s_add_u32 s{self.sO0}, s{self.sO0}, s12")
        A.salu(f"s_add_u32 s{self.sO1}, s{self.sO0}, {2*131072}")
        if OPT["ntf"]:
            A.salu(f"s_lshl_b32 s12, s{sBLK}, 6")
            A.salu("s_add_u32 s12, s12, 128")
        else:
            A.salu(f"s_lshl_b32 s12, s{sBLK}, 7")
            A.salu(f"s_lshr_b32 s13, s{sW}, 1")
            A.salu("s_lshl_b32 s13, s13, 2")
            A.salu("s_add_u32 s12, s12, s13")
        sh = 2 if OPT["ntf"] else 4
        A.salu(f"s_mul_i32 s13, s{sMT}, 148")
        A.salu(f"s_lshr_b32 s{self.sP0}, s13, 8")
        A.salu(f"s_lshl_b32 s{self.sP0}, s{self.sP0}, {sh}")
        A.salu(f"s_add_u32 s{self.sP0}, s{self.sP0}, s12")
        A.salu("s_add_u32 s13, s13, 111")
        A.salu(f"s_lshr_b32 s{self.sP1}, s13, 8")
        A.salu(f"s_lshl_b32 s{self.sP1}, s{self.sP1}, {sh}")
        A.salu(f"s_add_u32 s{self.sP1}, s{self.sP1}, s12")
    def addr_items(self):
        V = self.A.valu; W = self.WOFF
        L, T1, T2, T4 = W + 4, W + 5, W + 6, W + 7
        return [
            lambda: V(f"v_mbcnt_lo_u32_b32 v{L}, -1, 0", w={L}),
            lambda: V(f"v_mbcnt_hi_u32_b32 v{L}, -1, v{L}", w={L}, r={L}),
            lambda: V(f"v_lshrrev_b32 v{T1}, 3, v{L}", w={T1}, r={L}),
            lambda: V(f"v_mul_u32_u24 v{T1}, 1152, v{T1}", w={T1}, r={T1}),
            lambda: V(f"v_bfe_u32 v{T2}, v{L}, 4, 1", w={T2}, r={L}),
            lambda: V(f"v_lshlrev_b32 v{T2}, 2, v{T2}", w={T2}, r={T2}),
            lambda: V(f"v_and_b32 v{T4}, 7, v{L}", w={T4}, r={L}),
            lambda: V(f"v_xor_b32 v{T4}, v{T4}, v{T2}", w={T4}, r={T4, T2}),
            lambda: V(f"v_lshl_add_u32 v{W}, v{T4}, 4, v{T1}", w={W}, r={T4, T1}),
        ] + [lambda i=i: V(f"v_add_u32 v{W+i}, {9216*i}, v{W}", w={W + i}, r={W}) for i in range(1, 4)]
    def addr6(self):
        V = self.A.valu
        W, L, T1 = 6, 13, 12
        V(f"v_mbcnt_lo_u32_b32 v{L}, -1, 0", w={L})
        V(f"v_mbcnt_hi_u32_b32 v{L}, -1, v{L}", w={L}, r={L})
        V(f"v_lshrrev_b32 v{T1}, 3, v{L}", w={T1}, r={L})
        V(f"v_mul_u32_u24 v{T1}, 1152, v{T1}", w={T1}, r={T1})
        V(f"v_and_b32 v{W}, 7, v{L}", w={W}, r={L})
        V(f"v_bfe_u32 v{L}, v{L}, 4, 1", w={L}, r={L})
        V(f"v_lshlrev_b32 v{L}, 2, v{L}", w={L}, r={L})
        V(f"v_xor_b32 v{W}, v{W}, v{L}", w={W}, r={W, L})
        V(f"v_lshl_add_u32 v{W}, v{W}, 4, v{T1}", w={W}, r={W, T1})
        self.A.salu(f"s_lshl_b32 s{self.sWL}, s{self.sW}, 11")
        self.slots6 = []
    def wo_piece(self, u, i):
        A = self.A; W = self.WOFF; S = self.SWO
        if OPT["fuse"] == 6:
            A.salu(f"s_add_u32 s{self.sT}, s{self.sWB}, {u * 32 * 1152 + i * 9216}")
            A.salu(f"s_add_u32 m0, s{self.sWL}, {self.slots6[2 * (u % OPT['ring']) + (i >> 1)] * SLOT + (i & 1) * 1024}", m0w=True)
            return A.vmem(f"buffer_load_dwordx4 v6, s[{S}:{S+3}], s{self.sT} offen{' nt' if OPT['ntwo'] else ''} lds", kind="dma", r={6}, m0r=True)
        A.salu(f"s_add_u32 s{self.sT}, s{self.sWB}, {u * 32 * 1152}")
        A.salu(f"s_add_u32 m0, s{self.sWL}, {(u % 4) * 4096 + i * 1024}", m0w=True)
        A.vmem(f"buffer_load_dwordx4 v{W+i}, s[{S}:{S+3}], s{self.sT} offen{' nt' if OPT['ntwo'] else ''} lds", kind="dma", r={W + i}, m0r=True)
    def wo_items(self, slots):
        A = self.A
        tab = sum(s << (4 * w) for w, s in enumerate(slots))
        A.salu(f"s_lshl_b32 s3, s{self.sW}, 2")
        A.salu(f"s_lshr_b32 s3, {tab:#x}, s3")
        A.salu("s_and_b32 s3, s3, 15")
        A.salu(f"s_lshl_b32 s{self.sWL}, s3, 14")
        return [lambda u=u, i=i: self.wo_piece(u, i) for u in range(4) for i in range(4)]
    def dyn(self, PF, L, OOFF, BA, AF, OF, ACC):
        A = self.A; V = A.valu; sW = self.sW; SO = self.SO; SDBG = self.SDBG; W = self.WOFF; S = self.SWO
        T1, T2, T3, T4 = 1, 2, 3, 4
        PD = 8
        vPA, vMA, vT, vM = W + 4, W + 5, W + 6, W + 7
        sPM, sCNT, sDONE, sJ, sA, sB_ = 60, 62, 63, 12, 13, 14
        V(f"v_mov_b32 v{vPA}, s{self.sP1}", w={vPA})
        V(f"v_mov_b32 v{T4}, s{self.sP0}", w={T4})
        V(f"v_cmp_gt_u32 vcc, 16, v{L}", r={L}, sw={"vcc"})
        V(f"v_cndmask_b32 v{vPA}, v{vPA}, v{T4}, vcc", w={vPA}, r={vPA, T4}, sr={"vcc"})
        V(f"v_and_b32 v{T4}, 15, v{L}", w={T4}, r={L})
        V(f"v_add_u32 v{vPA}, v{T4}, v{vPA}", w={vPA}, r={vPA, T4})
        V(f"v_mov_b32 v{vMA}, {self.mslot * SLOT}", w={vMA})
        V(f"v_mov_b32 v{vT}, 0", w={vT})
        A.ds(f"ds_write_b32 v{vMA}, v{vT}", r={vMA, vT})
        A.salu(f"s_cmp_eq_u32 s{sW}, 0")
        A.salu(f"s_cselect_b32 s{sPM}, -1, 0")
        A.salu(f"s_mov_b32 s{sPM+1}, 0")
        A.salu(f"s_mov_b32 s{sCNT}, 0x40000")
        A.salu(f"s_mov_b32 s{sDONE}, 0")
        A.salu(f"s_mov_b32 s15, 0")
        A.waitcnt(vm=0, lgkm=0); A.vm_done = A.nvm; A.ds_done = A.nds
        PF.stamp("st")
        A.barrier()
        A.salu("s_cbranch_scc0 K1_NOFLAG")
        A.salu("s_mov_b64 exec, 1")
        A.salu(f"buffer_atomic_add v{T2}, v{T1}, s[{SDBG}:{SDBG+3}], 0 offen sc1")
        A.salu("s_mov_b64 exec, -1")
        A.label("K1_NOFLAG")
        A.salu(f"s_cmp_ge_u32 s{self.sTT}, 252")
        A.salu("s_cbranch_scc1 K1_END")
        def poll(r, counted=True):
            A.salu(f"s_mov_b64 exec, s[{sPM}:{sPM+1}]")
            txt = f"buffer_load_ubyte v{PD+r}, v{vPA}, s[{SDBG}:{SDBG+3}], 0 offen sc1"
            if counted: A.vmem(txt, w={PD + r}, r={vPA})
            else: A.salu(txt)
            A.salu("s_mov_b64 exec, -1")
        def consume(r):
            A.salu(f"s_mov_b64 exec, s[{sPM}:{sPM+1}]")
            V(f"v_cmp_ne_u32 vcc, 0, v{PD+r}", r={PD + r}, sw={"vcc"})
            A.salu("s_nop 1")
            A.salu(f"s_lshr_b32 s{sA}, vcc_lo, 16")
            A.salu(f"s_and_b32 s{sA}, s{sA}, vcc_lo")
            A.salu(f"s_or_b32 s15, s15, s{sA}")
            V(f"v_mov_b32 v{vT}, s15", w={vT})
            A.ds(f"ds_write_b32 v{vMA}, v{vT}", r={vMA, vT})
            A.salu("s_mov_b64 exec, -1")
        def pick(k):
            A.label(f"K1_PK{k}")
            A.ds(f"ds_read_b32 v{vM}, v{vMA}", w={vM}, r={vMA})
            A.waitcnt(lgkm=0); A.ds_done = A.nds
            A._emit(I(f"v_readfirstlane_b32 s{sA}, v{vM}", "rdlane", r={vM}, sw={sA}))
            A.salu(f"s_andn2_b32 s{sA}, s{sA}, s{sDONE}", sr={sA})
            A.salu(f"s_cbranch_scc1 K1_PG{k}")
            poll(k % 4, False)
            A.salu("s_waitcnt vmcnt(0)")
            consume(k % 4)
            A.salu(f"s_sleep {OPT['slp']}")
            A.salu(f"s_sub_u32 s{sCNT}, s{sCNT}, 1")
            A.salu(f"s_cmp_lg_u32 s{sCNT}, 0")
            A.salu(f"s_cbranch_scc1 K1_PK{k}")
            A.salu(f"s_mov_b32 s{sCNT}, 1")
            A.salu(f"s_andn2_b32 s{sA}, 0xffff, s{sDONE}")
            A.label(f"K1_PG{k}")
            A.salu(f"s_ff1_i32_b32 s{sJ}, s{sA}")
            A.salu(f"s_bitset1_b32 s{sDONE}, s{sJ}")
        NU = 16; DEPTH = 4
        last_vm = {}
        def issue(u):
            slot = u % DEPTH
            pick(u)
            if self.first: PF.stamp("go"); self.first = False
            if 4 <= u: poll(u % 4)
            A.salu(f"s_mul_i32 s{sA}, s{sJ}, {256*1152}")
            A.salu(f"s_add_u32 s{sA}, s{sA}, s{self.sWB}")
            for i in range(4):
                A.salu(f"s_add_u32 m0, s{self.sWL}, {slot * 4096 + i * 1024}", m0w=True)
                A.vmem(f"buffer_load_dwordx4 v{W+i}, s[{S}:{S+3}], s{sA} offen{' nt' if OPT['ntwo'] else ''} lds", kind="dma", r={W + i}, m0r=True)
            A.salu(f"s_lshl_b32 s{sJ}, s{sJ}, 13")
            A.salu(f"s_add_u32 s{sA}, s{sJ}, s{self.sO0}")
            A.salu(f"s_add_u32 s{sB_}, s{sJ}, s{self.sO1}")
            for ks in range(2):
                for tm in range(2):
                    d = OF + slot * 16 + (ks * 2 + tm) * 4
                    k = A.vmem(f"buffer_load_dwordx4 {vname(d,4)}, v{OOFF}, s[{SO}:{SO+3}], s{sA if tm == 0 else sB_} offen offset:{ks*512} sc1", w=vr(d, 4), r={OOFF})
            last_vm[u] = k
        def dsreads(u):
            slot = u % DEPTH
            ab = AF + (u % 2) * 16
            for ks in range(2):
                for tn in range(2):
                    for j in range(2):
                        k = A.ds_read_tr(ab + (ks * 2 + tn) * 4 + 2 * j, BA + tn, slot * 4096 + (16 * ks + 8 * j) * 128)
            return k
        self.first = True
        for u in range(DEPTH): issue(u)
        A.wait_vm(last_vm[0])
        pend = dsreads(0)
        for u in range(NU):
            A.wait_ds(pend)
            if u + 1 < NU:
                A.wait_vm(last_vm[u + 1])
                if u + 1 >= 4 and u + DEPTH < NU: consume((u + 1) % 4)
                pend = dsreads(u + 1)
            ab = AF + (u % 2) * 16
            ob = OF + (u % DEPTH) * 16
            for ks in range(2):
                for tn in range(2):
                    for tm in range(2):
                        c = "zero" if (u == 0 and ks == 0) else None
                        A.mfma(ACC + (tn * 2 + tm) * 16, ab + (ks * 2 + tn) * 4, ob + (ks * 2 + tm) * 4, c)
            if u + DEPTH < NU: issue(u + DEPTH)
            if u in (0, 7, 15): PF.stamp(f"u{u}")
    def body(self, PF, sBLK1, sB1, sKVH1):
        A = self.A; V = A.valu; sW = self.sW; SO = self.SO
        T0, T1, T2, T3, T4, T5, T6, T7 = 0, 1, 2, 3, 4, 5, 9, 8
        WOFF = self.WOFF; OOFF = 12; BA = 13; RED = 15; AF = 16; OF = 96; ACC = 160
        sBLK, sMT, sNT = self.sBLK, self.sMT, self.sNT
        SOUT, SDBG = self.SOUT, self.SDBG
        sWL, sO0, sO1, sT = self.sWL, self.sO0, self.sO1, self.sT
        L = T0
        A.salu("s_mov_b64 exec, -1")
        V(f"v_mbcnt_lo_u32_b32 v{L}, -1, 0", w={L})
        V(f"v_mbcnt_hi_u32_b32 v{L}, -1, v{L}", w={L}, r={L})
        V(f"v_bfe_u32 v{T2}, v{L}, 4, 1", w={T2}, r={L})
        V(f"v_lshrrev_b32 v{T1}, 5, v{L}", w={T1}, r={L})
        V(f"v_bfe_u32 v{T3}, v{L}, 2, 2", w={T3}, r={L})
        V(f"v_and_b32 v{T4}, 3, v{L}", w={T4}, r={L})
        V(f"v_lshlrev_b32 v{T6}, 17, v{T2}", w={T6}, r={T2})
        V(f"v_lshl_add_u32 v{T6}, v{T1}, 8, v{T6}", w={T6}, r={T1, T6})
        V(f"v_and_b32 v{T7}, 15, v{L}", w={T7}, r={L})
        V(f"v_lshl_add_u32 v{OOFF}, v{T7}, 4, v{T6}", w={OOFF}, r={T7, T6})
        V(f"v_lshl_add_u32 v{T6}, v{T1}, 2, v{T3}", w={T6}, r={T1, T3})
        V(f"v_lshlrev_b32 v{T6}, 7, v{T6}", w={T6}, r={T6})
        V(f"v_lshrrev_b32 v{T7}, 1, v{T4}", w={T7}, r={T4})
        V(f"v_lshl_add_u32 v{T7}, v{T2}, 1, v{T7}", w={T7}, r={T2, T7})
        V(f"v_lshrrev_b32 v{T5}, 1, v{T3}", w={T5}, r={T3})
        V(f"v_lshlrev_b32 v{T5}, 2, v{T5}", w={T5}, r={T5})
        V(f"v_xor_b32 v{T7}, v{T7}, v{T5}", w={T7}, r={T7, T5})
        V(f"v_lshl_add_u32 v{T6}, v{T7}, 4, v{T6}", w={T6}, r={T7, T6})
        V(f"v_and_b32 v{T7}, 1, v{T4}", w={T7}, r={T4})
        V(f"v_lshl_add_u32 v{T6}, v{T7}, 3, v{T6}", w={T6}, r={T7, T6})
        V(f"v_add_u32 v{BA}, s{sWL}, v{T6}", w={BA}, r={T6})
        V(f"v_xor_b32 v{BA+1}, 64, v{BA}", w={BA + 1}, r={BA})
        XB = 6 if OPT["xb"] else 64
        def xb_addr():
            for q in range(1, 3):
                for tn in range(2):
                    V(f"v_add_u32 v{XB+2*q+tn}, {q*65536}, v{BA+tn}", w={XB + 2 * q + tn}, r={BA + tn})
        if OPT["fuse"] == 6 and not OPT["xb"]: xb_addr()
        V(f"v_lshlrev_b32 v{RED}, 4, v{L}", w={RED}, r={L})
        if OPT["ntf"]:
            A.salu(f"s_lshl_b32 s12, s{sBLK1}, 6")
            A.salu(f"s_lshl_b32 s13, s{sB1}, 2")
            A.salu("s_add_u32 s12, s12, s13")
            A.salu("s_mov_b32 s13, 1")
        else:
            A.salu(f"s_lshl_b32 s12, s{sBLK1}, 7")
            A.salu(f"s_lshl_b32 s13, s{sB1}, 4")
            A.salu("s_add_u32 s12, s12, s13")
            A.salu(f"s_and_b32 s13, s{sKVH1}, 12")
            A.salu("s_add_u32 s12, s12, s13")
            A.salu(f"s_and_b32 s13, s{sKVH1}, 3")
            A.salu("s_lshl_b32 s13, s13, 3")
            A.salu("s_lshl_b32 s13, 1, s13")
        V(f"v_mov_b32 v{T1}, s12", w={T1})
        V(f"v_mov_b32 v{T2}, s13", w={T2})
        if OPT["ntf"]:
            V(f"v_mov_b32 v{T3}, s{self.sP1}", w={T3})
            V(f"v_writelane_b32 v{T3}, s{self.sP0}, 0", w={T3}, r={T3})
            V(f"v_mov_b32 v{T5}, 1", w={T5})
            A.salu("s_mov_b32 s14, 1")
        elif OPT["fuse"] == 5:
            self.dyn(PF, L, OOFF, BA, AF, OF, ACC)
        elif OPT["fuse"] == 1:
            V(f"v_mov_b32 v{T3}, s{self.sP1}", w={T3})
            V(f"v_writelane_b32 v{T3}, s{self.sP0}, 0", w={T3}, r={T3})
            A.salu(f"s_and_b32 s14, s{sW}, 1")
            A.salu("s_lshl_b32 s14, s14, 4")
            A.salu("s_lshl_b32 s14, 0x101, s14")
        else:
            V(f"v_mov_b32 v{T3}, s{self.sP1}", w={T3})
            V(f"v_mov_b32 v{T4}, s{self.sP0}", w={T4})
            V(f"v_cmp_gt_u32 vcc, 4, v{L}", r={L}, sw={"vcc"})
            V(f"v_cndmask_b32 v{T3}, v{T3}, v{T4}, vcc", w={T3}, r={T3, T4}, sr={"vcc"})
            V(f"v_and_b32 v{T4}, 3, v{L}", w={T4}, r={L})
            V(f"v_lshl_add_u32 v{T3}, v{T4}, 2, v{T3}", w={T3}, r={T3, T4})
            A.salu("s_mov_b32 s14, 0x01010101")
        if OPT["fuse"] != 5:
            PRE = [224, 240, 48, 72][:OPT["pre"]]
            if OPT["pr2"]: PRE = [AF, AF + 16, 224, 240, 48, 72][:OPT["pr2"]]
            if OPT["pr2"] and OPT["xb"]:
                PRE = ([OF + 32, OF + 48][2 - OPT["pro"]:] + [AF, AF + 16, 224, 240, 48, 64, 80])[:OPT["pr2"]]
            wo_vm = {}
            def dsreads(u, ab=None):
                slot = u % OPT["ring"]
                if ab is None: ab = AF + (u % 2) * 16
                for ks in range(2):
                    for tn in range(2):
                        for j in range(2):
                            if OPT["fuse"] == 6:
                                o_ = self.slots6[2 * slot + ks] * SLOT + j * 1024
                                k = A.ds_read_tr(ab + (ks * 2 + tn) * 4 + 2 * j, (BA if o_ < 65536 else XB + 2 * (o_ >> 16)) + tn, o_ & 65535)
                            else:
                                k = A.ds_read_tr(ab + (ks * 2 + tn) * 4 + 2 * j, BA + tn, slot * 4096 + (16 * ks + 8 * j) * 128)
                return k
            A.salu("s_mov_b32 s15, 0x40000")
            A.waitcnt(vm=0); A.vm_done = A.nvm
            PF.stamp("st")
            A.barrier()
            A.salu(f"s_cmp_eq_u32 s{sW}, 0")
            A.salu("s_cbranch_scc0 K1_NOFLAG")
            A.salu("s_mov_b64 exec, 1")
            if OPT["ea"]:
                A.salu(f"buffer_atomic_add v{T2}, v{T1}, s[{SDBG}:{SDBG+3}], 0 offen sc0 sc1")
                A.salu(f"s_cmp_ge_u32 s{self.sTT}, 252")
                A.salu("s_cbranch_scc0 K1_NOFLAG")
                A.salu("s_waitcnt vmcnt(0)")
                A.salu(f"v_cmp_eq_u32 vcc, 15, v{T2}")
                A.salu("s_nop 1")
                A.salu("s_cbranch_vccz K1_NOFLAG")
                A.salu(f"buffer_store_dword v{T5}, v{T1}, s[{SDBG}:{SDBG+3}], 0 offen offset:128 sc1")
                ea_base = A.nvm
            elif OPT["ntf"]:
                A.salu(f"buffer_atomic_add v{T2}, v{T1}, s[{SDBG}:{SDBG+3}], 0 offen sc0 sc1")
                A.salu("s_waitcnt vmcnt(0)")
                A.salu(f"v_cmp_eq_u32 vcc, 15, v{T2}")
                A.salu("s_nop 1")
                A.salu("s_cbranch_vccz K1_NOFLAG")
                A.salu(f"buffer_store_dword v{T5}, v{T1}, s[{SDBG}:{SDBG+3}], 0 offen offset:128 sc1")
            elif OPT["exp"] != 1: A.salu(f"buffer_atomic_add v{T2}, v{T1}, s[{SDBG}:{SDBG+3}], 0 offen sc1")
            A.label("K1_NOFLAG")
            A.salu(f"s_cmp_ge_u32 s{self.sTT}, 252")
            A.salu("s_cbranch_scc1 K1_END")
            if OPT["exp"]:
                for _ in range(3): A.salu("s_sleep 64")
                A.salu("s_branch K1_GO")
            if OPT["fuse"] == 6:
                A.salu("s_mov_b64 exec, -1")
                if OPT["xb"]: xb_addr()
                if OPT["fb"]:
                    A.salu(f"s_cmp_eq_u32 s{sW}, 0")
                    A.salu("s_cbranch_scc0 K1_FB0")
                    A.salu("s_barrier")
                    A.label("K1_FB0")
                self.slots6 += [s_ for s_ in range(NSLOT) if s_ not in self.slots6]
                for j in range(self.done6, 2 * OPT["ring"]):
                    for q in range(2): wo_vm[j >> 1] = self.wo_piece(j >> 1, (j & 1) * 2 + q)
                if OPT["pr2"]:
                    A.flush_hazards()
                    for u0 in range(0, len(PRE), OPT["prg"]):
                        us = range(u0, min(u0 + OPT["prg"], len(PRE)))
                        for u in us:
                            if u in wo_vm: A.wait_vm(wo_vm[u])
                            dsreads(u, PRE[u])
                            A.wait_ds_all()
                        last_round = u0 + OPT["prg"] >= len(PRE)
                        if OPT["fb"] and u0 == 0:
                            us = list(us)
                            for u in us[:OPT["fb"] - 1]:
                                for i in range(4): wo_vm[u + OPT["ring"]] = self.wo_piece(u + OPT["ring"], i)
                            us = us[OPT["fb"] - 1:]
                            A.salu(f"s_cmp_eq_u32 s{sW}, 0")
                            A.salu("s_cbranch_scc1 K1_FB1")
                            A.salu("s_barrier")
                            A.label("K1_FB1")
                        if OPT["ep"] and last_round:
                            A.salu(f"s_cmp_eq_u32 s{sW}, {OPT['pw']}")
                            A.salu("s_cbranch_scc0 K1_EP")
                            A.salu("s_mov_b64 exec, 3")
                            A.salu(f"buffer_load_dword v{T4}, v{T3}, s[{SDBG}:{SDBG+3}], 0 offen sc1")
                            A.salu("s_mov_b64 exec, -1")
                            A.label("K1_EP")
                            ep_base = A.nvm
                        for u in us:
                            if u + OPT["ring"] >= 16: continue
                            for i in range(4): wo_vm[u + OPT["ring"]] = self.wo_piece(u + OPT["ring"], i)
                        if OPT["ea"] and u0 == 0:
                            A.salu(f"s_cmp_eq_u32 s{sW}, 0")
                            A.salu("s_cbranch_scc0 K1_EA")
                            A.salu("s_mov_b64 exec, 1")
                            A.salu(f"s_waitcnt vmcnt({A.nvm - ea_base})")
                            A.salu(f"v_cmp_eq_u32 vcc, 15, v{T2}")
                            A.salu("s_nop 1")
                            A.salu("s_cbranch_vccz K1_EA")
                            A.salu(f"buffer_store_dword v{T5}, v{T1}, s[{SDBG}:{SDBG+3}], 0 offen offset:128 sc1")
                            A.label("K1_EA")
                            A.salu("s_mov_b64 exec, -1")
                if OPT["pre0"]:
                    A.flush_hazards()
                    for u in range(len(PRE)):
                        dsreads(u, PRE[u])
                        A.wait_ds_all()
                    for u in range(4, 4 + len(PRE)):
                        for i in range(4): self.wo_piece(u, i)
            if OPT["fuse"] == 1:
                A.salu("s_mov_b64 exec, 3")
            else:
                A.salu(f"s_cmp_eq_u32 s{sW}, {OPT['pw']}")
                A.salu("s_cbranch_scc0 K1_GO" if not (OPT["fuse"] == 3 or (OPT["pre"] and not OPT["pre0"])) else "s_cbranch_scc0 K1_WO")
                A.salu("s_mov_b64 exec, 3" if OPT["ntf"] else "s_mov_b64 exec, 0xff")
            if OPT["ep"]:
                A.salu(f"s_waitcnt vmcnt({A.nvm - ep_base})")
                A.salu(f"v_and_b32 v{T4}, s14, v{T4}")
                A.salu(f"v_cmp_ne_u32 vcc, s14, v{T4}")
                A.salu("s_nop 1")
                A.salu("s_cbranch_vccz K1_GO")
            A.label("K1_POLL")
            A.salu(f"buffer_load_dword v{T4}, v{T3}, s[{SDBG}:{SDBG+3}], 0 offen sc1")
            A.salu("s_waitcnt vmcnt(0)")
            A.salu(f"v_and_b32 v{T4}, s14, v{T4}")
            A.salu(f"v_cmp_ne_u32 vcc, s14, v{T4}")
            A.salu("s_nop 1")
            A.salu("s_cbranch_vccz K1_GO")
            A.salu(f"s_sleep {OPT['slp']}")
            A.salu("s_sub_u32 s15, s15, 1")
            A.salu("s_cmp_lg_u32 s15, 0")
            A.salu("s_cbranch_scc1 K1_POLL")
            A.label("K1_GO")
            A.salu("s_mov_b64 exec, -1")
            if OPT["pre"] and not OPT["pre0"]:
                A.barrier()
                A.label("K1_WO")
                A.flush_hazards()
                for u in range(len(PRE)):
                    dsreads(u, PRE[u])
                    A.wait_ds_all()
                for u in range(4, 4 + len(PRE)):
                    for i in range(4): self.wo_piece(u, i)
                A.salu(f"s_cmp_eq_u32 s{sW}, 0")
                A.salu("s_cbranch_scc1 K1_GO2")
                A.barrier()
                A.label("K1_GO2")
            elif OPT["fuse"] == 3:
                A.barrier()
                A.label("K1_WO")
                for u in range(4):
                    for i in range(4): self.wo_piece(u, i)
                A.salu(f"s_cmp_eq_u32 s{sW}, 0")
                A.salu("s_cbranch_scc1 K1_GO2")
                A.barrier()
                A.label("K1_GO2")
            elif OPT["fuse"] > 1: A.barrier()
            PF.stamp("go")
            NU = 16; DEPTH = 4
            last_vm = {}
            def issue(u, wo=True):
                slot = u % DEPTH
                if wo:
                    for i in range(4): self.wo_piece(u, i)
                for ks in range(2):
                    for tm in range(2):
                        d = OF + slot * 16 + (ks * 2 + tm) * 4
                        off = (2 * u + ks) * 512
                        sb = sO0 if tm == 0 else sO1
                        if off >= 4096:
                            A.salu(f"s_add_u32 s{sT}, s{sb}, {off & ~4095}")
                            sb = sT
                        k = A.vmem(f"buffer_load_dwordx4 {vname(d,4)}, v{OOFF}, s[{SO}:{SO+3}], s{sb} offen offset:{off & 4095} sc1", w=vr(d, 4), r={OOFF})
                last_vm[u] = k
            if OPT["pr2"]:
                RG = OPT["ring"]; NP = len(PRE)
                KO = OPT["pro"]
                for u in range(DEPTH - KO): issue(u, False)
                pend = None
                for u in range(NU):
                    if pend is not None: A.wait_ds(pend)
                    if u + 1 < NU and u + 1 >= NP:
                        A.wait_vm(wo_vm[u + 1])
                        pend = dsreads(u + 1)
                    A.wait_vm(last_vm[u])
                    ab = AF + (u % 2) * 16 if u >= NP else PRE[u]
                    ob = OF + (u % DEPTH) * 16
                    for ks in range(2):
                        for tn in range(2):
                            for tm in range(2):
                                c = "zero" if (u == 0 and ks == 0) else None
                                A.mfma(ACC + (tn * 2 + tm) * 16, ab + (ks * 2 + tn) * 4, ob + (ks * 2 + tm) * 4, c)
                    if u >= NP and u + RG < NU:
                        for i in range(4): wo_vm[u + RG] = self.wo_piece(u + RG, i)
                    if u < KO: issue(DEPTH - KO + u, False)
                    if u + DEPTH < NU: issue(u + DEPTH, False)
                    if u in (0, 7, 15): PF.stamp(f"u{u}")
                NU = 0
            if OPT["lp"]:
                RG = OPT["ring"]
                OB = [OF, OF + 16, OF + 32, OF + 48, 224, 240][:RG]
                o_vm = {}; wo_vm.clear()
                def issue_o(u):
                    for ks in range(2):
                        for tm in range(2):
                            d = OB[u % RG] + (ks * 2 + tm) * 4
                            off = (2 * u + ks) * 512
                            sb = sO0 if tm == 0 else sO1
                            if off >= 4096:
                                A.salu(f"s_add_u32 s{sT}, s{sb}, {off & ~4095}")
                                sb = sT
                            o_vm[u] = A.vmem(f"buffer_load_dwordx4 {vname(d,4)}, v{OOFF}, s[{SO}:{SO+3}], s{sb} offen offset:{off & 4095} sc1", w=vr(d, 4), r={OOFF})
                wo_first = A.nvm - 1
                for u in range(RG): issue_o(u)
                pend = dsreads(0)
                for u in range(NU):
                    A.wait_ds(pend)
                    if u + RG < NU:
                        for i in range(4): wo_vm[u + RG] = self.wo_piece(u + RG, i)
                    if u + 1 < NU:
                        if u + 1 in wo_vm: A.wait_vm(wo_vm[u + 1])
                        elif u + 1 >= 3: A.wait_vm(wo_first)
                        pend = dsreads(u + 1)
                    A.wait_vm(o_vm[u])
                    ab = AF + (u % 2) * 16
                    ob = OB[u % RG]
                    for ks in range(2):
                        for tn in range(2):
                            for tm in range(2):
                                c = "zero" if (u == 0 and ks == 0) else None
                                A.mfma(ACC + (tn * 2 + tm) * 16, ab + (ks * 2 + tn) * 4, ob + (ks * 2 + tm) * 4, c)
                    if u + RG < NU: issue_o(u + RG)
                    if u in (0, 7, 15): PF.stamp(f"u{u}")
                NU = 0
            for u in range(DEPTH if NU else 0): issue(u, OPT["fuse"] == 4)
            if OPT["fuse"] in (3, 4): A.wait_vm(last_vm[0])
            NP = len(PRE)
            pend = dsreads(0) if NP == 0 and NU else None
            if NU: A.wait_vm(last_vm[0])
            for u in range(NU):
                if pend is not None: A.wait_ds(pend)
                if u + 1 < NU:
                    A.wait_vm(last_vm[u + 1])
                    pend = dsreads(u + 1) if u + 1 >= NP else None
                ab = AF + (u % 2) * 16 if u >= NP else PRE[u]
                ob = OF + (u % DEPTH) * 16
                for ks in range(2):
                    for tn in range(2):
                        for tm in range(2):
                            c = "zero" if (u == 0 and ks == 0) else None
                            A.mfma(ACC + (tn * 2 + tm) * 16, ab + (ks * 2 + tn) * 4, ob + (ks * 2 + tm) * 4, c)
                if u + DEPTH < NU: issue(u + DEPTH, u >= NP)
                if u in (0, 7, 15): PF.stamp(f"u{u}")
        R = OF
        if OPT["fuse"] == 6 and OPT["red"]:
            A.wait_ds_all()
            V(f"v_add_u32 v{T1}, s{sWL}, v{RED}", w={T1}, r={RED})
            V(f"v_add_u32 v{T2}, 0x10000, v{T1}", w={T2}, r={T1})
            V(f"v_add_u32 v{T3}, 0x20000, v{T1}", w={T3}, r={T1})
            for q in range(16):
                o_ = self.slots6[q >> 1] * SLOT + (q & 1) * 1024
                A.ds_write_b128([T1, T2, T3][o_ >> 16], ACC + 4 * q, o_ & 65535)
            tab = sum(s_ << (4 * w_) for w_, s_ in enumerate(self.slots6[:8]))
            A.salu(f"s_lshl_b32 s6, s{sW}, 2")
            A.salu(f"s_lshr_b32 s6, {tab:#x}, s6")
            A.salu("s_and_b32 s6, s6, 15")
            A.salu("s_lshl_b32 s6, s6, 14")
            V(f"v_add_u32 v{T4}, s6, v{RED}", w={T4}, r={RED})
            A.wait_ds_all()
            A.barrier()
            for ww in range(8):
                for q in range(2):
                    A.ds_read_b128(R + (ww * 2 + q) * 4, T4, ww * 2048 + q * 1024)
                if ww == 5:
                    A.wait_ds_all()
            A.wait_ds_all()
        else:
            A.wait_ds_all()
            A.barrier()
            A.salu(f"s_lshl_b32 s12, s{sW}, 14")
            V(f"v_add_u32 v{T1}, s12, v{RED}", w={T1}, r={RED})
            for q in range(16):
                A.ds_write_b128(T1, ACC + 4 * q, q * 1024)
            A.wait_ds_all()
            A.barrier()
            A.salu(f"s_lshl_b32 s6, s{sW}, 11")
            V(f"v_add_u32 v{T1}, s6, v{RED}", w={T1}, r={RED})
            V(f"v_add_u32 v{T2}, 0x10000, v{T1}", w={T2}, r={T1})
            for ww in range(8):
                for q in range(2):
                    A.ds_read_b128(R + (ww * 2 + q) * 4, T1 if ww < 4 else T2, (ww % 4) * 16384 + q * 1024)
                if ww == 5:
                    A.wait_ds_all()
            A.wait_ds_all()
        for ww in range(1, 8):
            for i in range(8):
                V(f"v_add_f32 v{R+i}, v{R+i}, v{R+ww*8+i}", w={R + i}, r={R + i, R + ww * 8 + i})
        for q in range(4):
            V(f"v_cvt_pk_bf16_f32 v{AF+q}, v{R+2*q}, v{R+2*q+1}", w={AF + q}, r={R + 2 * q, R + 2 * q + 1})
        A.salu(f"s_lshr_b32 s6, s{sW}, 1")
        A.salu("s_and_b32 s7, s6, 1")
        A.salu("s_lshr_b32 s6, s6, 1")
        A.salu(f"s_lshl_b32 s3, s{sMT}, 6")
        A.salu("s_lshl_b32 s7, s7, 5")
        A.salu("s_add_u32 s3, s3, s7")
        A.salu("s_mul_i32 s3, s3, 2304")
        A.salu(f"s_mul_i32 s7, s{sBLK}, 1152")
        A.salu("s_add_u32 s3, s3, s7")
        A.salu(f"s_lshl_b32 s7, s{sNT}, 7")
        A.salu("s_add_u32 s3, s3, s7")
        A.salu("s_lshl_b32 s7, s6, 6")
        A.salu("s_add_u32 s3, s3, s7")
        A.salu(f"s_and_b32 s7, s{sW}, 1")
        A.salu("s_lshl_b32 s7, s7, 5")
        A.salu("s_add_u32 s3, s3, s7")
        V(f"v_and_b32 v{T1}, 31, v{L}", w={T1}, r={L})
        V(f"v_mul_u32_u24 v{T1}, 2304, v{T1}", w={T1}, r={T1})
        V(f"v_lshrrev_b32 v{T2}, 5, v{L}", w={T2}, r={L})
        V(f"v_lshl_add_u32 v{T1}, v{T2}, 3, v{T1}", w={T1}, r={T2, T1})
        fl = ["", " sc1", " nt", " sc0 sc1"][OPT["ost"]]
        A.vmem(f"buffer_store_dwordx2 {vname(AF,2)}, v{T1}, s[{SOUT}:{SOUT+3}], s3 offen{fl}", r=vr(AF, 2) | {T1})
        A.vmem(f"buffer_store_dwordx2 {vname(AF+2,2)}, v{T1}, s[{SOUT}:{SOUT+3}], s3 offen offset:16{fl}", r=vr(AF + 2, 2) | {T1})

def gen_k2(A):
    V = A.valu
    T0, T1, T2, T3, T4, T5, T6, T7 = range(0, 8)
    WOFF = 8
    OOFF = 12
    BA = 13
    RED = 15
    AF = 16
    OF = 48
    ACC = 112
    sBLK, sMT, sNT, sW = 26, 27, 4, 5
    SW_, SO, SOUT = 28, 32, 36
    sWL, sWB, sO0, sO1, sT = 48, 49, 50, 51, 52
    A.win = []
    A.nds = A.ds_done = A.nvm = A.vm_done = 0
    A.raw(f".p2align 8\n.globl k2_kernel\n.type k2_kernel,@function\nk2_kernel:")
    A.salu("s_cmp_ge_u32 s2, 256")
    A.salu("s_cbranch_scc1 K2_END")
    A.salu("s_and_b32 s3, s2, 7")
    A.salu("s_lshl_b32 s3, s3, 5")
    A.salu("s_lshr_b32 s6, s2, 3")
    A.salu("s_add_u32 s3, s3, s6")
    A.salu("s_cmp_ge_u32 s3, 252")
    A.salu("s_cbranch_scc1 K2_END")
    A.salu("s_load_dwordx2 s[8:9], s[0:1], 32")
    A.salu("s_load_dwordx2 s[10:11], s[0:1], 72")
    A.salu("s_load_dwordx2 s[12:13], s[0:1], 80")
    A.salu("s_load_dwordx2 s[14:15], s[0:1], 96")
    A.salu("s_cmp_ge_u32 s3, 126")
    A.salu(f"s_cselect_b32 s{sBLK}, 1, 0")
    A.salu(f"s_mul_i32 s6, s{sBLK}, 126")
    A.salu("s_sub_u32 s3, s3, s6")
    A.salu("s_mul_i32 s6, s3, 57")
    A.salu(f"s_lshr_b32 s{sMT}, s6, 9")
    A.salu(f"s_mul_i32 s6, s{sMT}, 9")
    A.salu(f"s_sub_u32 s{sNT}, s3, s6")
    V(f"v_lshrrev_b32 v{T1}, 6, v0", w={T1}, r={0})
    A._emit(I(f"v_readfirstlane_b32 s{sW}, v{T1}", "rdlane", r={T1}, sw={sW}))
    V(f"v_and_b32 v{T0}, 63, v0", w={T0}, r={0})
    L = T0
    A.salu(f"s_lshl_b32 s{sWL}, s{sW}, 14", sr={sW})
    A.salu(f"s_mul_i32 s{sWB}, s{sW}, {512*1152}", sr={sW})
    A.salu(f"s_lshl_b32 s6, s{sNT}, 7")
    A.salu(f"s_add_u32 s{sWB}, s{sWB}, s6")
    A.salu(f"s_mul_i32 s{sO0}, s{sBLK}, {O_BLK}")
    A.salu(f"s_lshl_b32 s6, s{sMT}, 19")
    A.salu(f"s_add_u32 s{sO0}, s{sO0}, s6")
    A.salu(f"s_lshl_b32 s6, s{sW}, 14")
    A.salu(f"s_add_u32 s{sO0}, s{sO0}, s6")
    A.salu(f"s_add_u32 s{sO1}, s{sO0}, {2*131072}")
    V(f"v_lshrrev_b32 v{T1}, 3, v{L}", w={T1}, r={L})
    V(f"v_mul_u32_u24 v{T1}, 1152, v{T1}", w={T1}, r={T1})
    V(f"v_bfe_u32 v{T2}, v{L}, 4, 1", w={T2}, r={L})
    V(f"v_lshlrev_b32 v{T3}, 2, v{T2}", w={T3}, r={T2})
    V(f"v_and_b32 v{T4}, 7, v{L}", w={T4}, r={L})
    V(f"v_xor_b32 v{T4}, v{T4}, v{T3}", w={T4}, r={T4, T3})
    V(f"v_lshl_add_u32 v{WOFF}, v{T4}, 4, v{T1}", w={WOFF}, r={T4, T1})
    for i in range(1, 4):
        V(f"v_add_u32 v{WOFF+i}, {9216*i}, v{WOFF}", w={WOFF + i}, r={WOFF})
    V(f"v_lshrrev_b32 v{T1}, 5, v{L}", w={T1}, r={L})
    V(f"v_bfe_u32 v{T3}, v{L}, 2, 2", w={T3}, r={L})
    V(f"v_and_b32 v{T4}, 3, v{L}", w={T4}, r={L})
    V(f"v_lshlrev_b32 v{T6}, 17, v{T2}", w={T6}, r={T2})
    V(f"v_lshl_add_u32 v{T6}, v{T1}, 8, v{T6}", w={T6}, r={T1, T6})
    V(f"v_and_b32 v{T7}, 15, v{L}", w={T7}, r={L})
    V(f"v_lshl_add_u32 v{OOFF}, v{T7}, 4, v{T6}", w={OOFF}, r={T7, T6})
    V(f"v_lshl_add_u32 v{T6}, v{T1}, 2, v{T3}", w={T6}, r={T1, T3})
    V(f"v_lshlrev_b32 v{T6}, 7, v{T6}", w={T6}, r={T6})
    V(f"v_lshrrev_b32 v{T7}, 1, v{T4}", w={T7}, r={T4})
    V(f"v_lshl_add_u32 v{T7}, v{T2}, 1, v{T7}", w={T7}, r={T2, T7})
    V(f"v_lshrrev_b32 v{T5}, 1, v{T3}", w={T5}, r={T3})
    V(f"v_lshlrev_b32 v{T5}, 2, v{T5}", w={T5}, r={T5})
    V(f"v_xor_b32 v{T7}, v{T7}, v{T5}", w={T7}, r={T7, T5})
    V(f"v_lshl_add_u32 v{T6}, v{T7}, 4, v{T6}", w={T6}, r={T7, T6})
    V(f"v_and_b32 v{T7}, 1, v{T4}", w={T7}, r={T4})
    V(f"v_lshl_add_u32 v{T6}, v{T7}, 3, v{T6}", w={T6}, r={T7, T6})
    V(f"v_add_u32 v{BA}, s{sWL}, v{T6}", w={BA}, r={T6})
    V(f"v_xor_b32 v{BA+1}, 64, v{BA}", w={BA + 1}, r={BA})
    V(f"v_lshlrev_b32 v{RED}, 4, v{L}", w={RED}, r={L})
    A.waitcnt(lgkm=0)
    A.salu(f"s_cmp_eq_u32 s{sBLK}, 0")
    A.salu("s_cselect_b32 s8, s8, s10")
    A.salu("s_cselect_b32 s9, s9, s11")
    srd(A, SW_, 8, 4096 * 576 * 2)
    srd(A, SO, 14, 2 * O_BLK)
    srd(A, SOUT, 12, 896 * 1152 * 2)

    NU = 16; DEPTH = 4
    last_vm = {}
    def issue(u):
        slot = u % DEPTH
        A.salu(f"s_add_u32 s{sT}, s{sWB}, {u * 32 * 1152}")
        for i in range(4):
            A.salu(f"s_add_u32 m0, s{sWL}, {slot * 4096 + i * 1024}", m0w=True)
            A.vmem(f"buffer_load_dwordx4 v{WOFF+i}, s[{SW_}:{SW_+3}], s{sT} offen{' nt' if OPT['ntwo'] else ''} lds", kind="dma", r={WOFF + i}, m0r=True)
        for ks in range(2):
            for tm in range(2):
                d = OF + slot * 16 + (ks * 2 + tm) * 4
                off = (2 * u + ks) * 512
                sb = sO0 if tm == 0 else sO1
                if off >= 4096:
                    A.salu(f"s_add_u32 s{sT}, s{sb}, {off & ~4095}")
                    k = A.vmem(f"buffer_load_dwordx4 {vname(d,4)}, v{OOFF}, s[{SO}:{SO+3}], s{sT} offen offset:{off & 4095}{' nt' if OPT['nto'] else ''}", w=vr(d, 4), r={OOFF})
                else:
                    k = A.vmem(f"buffer_load_dwordx4 {vname(d,4)}, v{OOFF}, s[{SO}:{SO+3}], s{sb} offen offset:{off}{' nt' if OPT['nto'] else ''}", w=vr(d, 4), r={OOFF})
        last_vm[u] = k
    def dsreads(u):
        slot = u % DEPTH
        ab = AF + (u % 2) * 16
        for ks in range(2):
            for tn in range(2):
                for j in range(2):
                    k = A.ds_read_tr(ab + (ks * 2 + tn) * 4 + 2 * j, BA + tn, slot * 4096 + (16 * ks + 8 * j) * 128)
        return k
    PF = Prof(A, 1)
    PF.stamp("start")
    for u in range(DEPTH): issue(u)
    A.wait_vm(last_vm[0])
    pend = dsreads(0)
    for u in range(NU):
        A.wait_ds(pend)
        if u + 1 < NU:
            A.wait_vm(last_vm[u + 1])
            pend = dsreads(u + 1)
        ab = AF + (u % 2) * 16
        ob = OF + (u % DEPTH) * 16
        for ks in range(2):
            for tn in range(2):
                for tm in range(2):
                    c = "zero" if (u == 0 and ks == 0) else None
                    A.mfma(ACC + (tn * 2 + tm) * 16, ab + (ks * 2 + tn) * 4, ob + (ks * 2 + tm) * 4, c)
        if u + DEPTH < NU: issue(u + DEPTH)
        PF.stamp(f"u{u}")
    A.wait_ds_all()
    A.barrier()
    V(f"v_add_u32 v{T1}, s{sWL}, v{RED}", w={T1}, r={RED})
    for q in range(16):
        A.ds_write_b128(T1, ACC + 4 * q, q * 1024)
    A.wait_ds_all()
    A.barrier()
    A.salu(f"s_lshl_b32 s6, s{sW}, 11")
    V(f"v_add_u32 v{T1}, s6, v{RED}", w={T1}, r={RED})
    V(f"v_add_u32 v{T2}, 0x10000, v{T1}", w={T2}, r={T1})
    R = OF
    for ww in range(8):
        for q in range(2):
            A.ds_read_b128(R + (ww * 2 + q) * 4, T1 if ww < 4 else T2, (ww % 4) * 16384 + q * 1024)
            if ww == 6 and q == 1: pass
        if ww == 5:
            A.wait_ds_all()
    A.wait_ds_all()
    for ww in range(1, 8):
        for i in range(8):
            V(f"v_add_f32 v{R+i}, v{R+i}, v{R+ww*8+i}", w={R + i}, r={R + i, R + ww * 8 + i})
    for q in range(4):
        V(f"v_cvt_pk_bf16_f32 v{AF+q}, v{R+2*q}, v{R+2*q+1}", w={AF + q}, r={R + 2 * q, R + 2 * q + 1})
    A.salu(f"s_lshr_b32 s6, s{sW}, 1")
    A.salu("s_and_b32 s7, s6, 1")
    A.salu("s_lshr_b32 s6, s6, 1")
    A.salu(f"s_lshl_b32 s3, s{sMT}, 6")
    A.salu("s_lshl_b32 s7, s7, 5")
    A.salu("s_add_u32 s3, s3, s7")
    A.salu("s_mul_i32 s3, s3, 2304")
    A.salu(f"s_mul_i32 s7, s{sBLK}, 1152")
    A.salu("s_add_u32 s3, s3, s7")
    A.salu(f"s_lshl_b32 s7, s{sNT}, 7")
    A.salu("s_add_u32 s3, s3, s7")
    A.salu("s_lshl_b32 s7, s6, 6")
    A.salu("s_add_u32 s3, s3, s7")
    A.salu(f"s_and_b32 s7, s{sW}, 1")
    A.salu("s_lshl_b32 s7, s7, 5")
    A.salu("s_add_u32 s3, s3, s7")
    V(f"v_and_b32 v{T1}, 31, v{L}", w={T1}, r={L})
    V(f"v_mul_u32_u24 v{T1}, 2304, v{T1}", w={T1}, r={T1})
    V(f"v_lshrrev_b32 v{T2}, 5, v{L}", w={T2}, r={L})
    V(f"v_lshl_add_u32 v{T1}, v{T2}, 3, v{T1}", w={T1}, r={T2, T1})
    A.vmem(f"buffer_store_dwordx2 {vname(AF,2)}, v{T1}, s[{SOUT}:{SOUT+3}], s3 offen", r=vr(AF, 2) | {T1})
    A.vmem(f"buffer_store_dwordx2 {vname(AF+2,2)}, v{T1}, s[{SOUT}:{SOUT+3}], s3 offen offset:16", r=vr(AF + 2, 2) | {T1})
    PF.dump(14, sW, 0)
    A.label("K2_END")
    A.salu("s_endpgm")

def kd(name, vgpr, sgpr):
    return f""".amdhsa_kernel {name}
  .amdhsa_next_free_vgpr {vgpr}
  .amdhsa_next_free_sgpr {sgpr}
  .amdhsa_accum_offset {(vgpr + 3) // 4 * 4}
  .amdhsa_group_segment_fixed_size 0
  .amdhsa_kernarg_size 104
  .amdhsa_user_sgpr_count 2
  .amdhsa_user_sgpr_kernarg_segment_ptr 1
  .amdhsa_system_sgpr_workgroup_id_x 1
.end_amdhsa_kernel
"""

def main():
    A = Asm()
    gen_k1(A)
    if not OPT["fuse"]: gen_k2(A)
    head = """; Two-launch GQA block pair: k1 = Q projection + attention (o -> ws), k2 = output projection.
; @launch kernel=k1_kernel grid=(256,1,1) block=(512,1,1) lds=163840
; @launch kernel=k2_kernel grid=(256,1,1) block=(512,1,1) lds=131072
.amdgcn_target "amdgcn-amd-amdhsa--gfx950"
.text
"""
    tail = '\n.section .rodata,"a"\n.p2align 6\n' + kd("k1_kernel", 256, 102 if OPT["prof"] else 64) + ".p2align 6\n" + kd("k2_kernel", 176, 102 if OPT["prof"] else 64)
    if OPT["fuse"]:
        head = """; GQA block pair in one launch: Q projection + attention, o handed over through ws, output projection.
; @launch kernel=k1_kernel grid=(256,1,1) block=(512,1,1) lds=163840
.amdgcn_target "amdgcn-amd-amdhsa--gfx950"
.text
"""
        tail = '\n.section .rodata,"a"\n.p2align 6\n' + kd("k1_kernel", 256, 102 if OPT["prof"] else 64)
    txt = head + A.text() + tail
    if "CODE_BYTES" in txt:
        import subprocess, re
        open("_p1.s", "w").write(txt.replace("CODE_BYTES", "0x12345"))
        subprocess.check_call(["clang", "-x", "assembler", "-target", "amdgcn-amd-amdhsa", "-mcpu=gfx950", "-c", "_p1.s", "-o", "_p1.o"])
        o = subprocess.check_output(["llvm-objdump", "-h", "_p1.o"]).decode()
        n = int(re.search(r"\.text\s+([0-9a-f]+)", o).group(1), 16)
        txt = txt.replace("CODE_BYTES", str(n))
    open(sys.argv[1], "w").write(txt)
    print("nops inserted:", A.nops_inserted, "lines:", len(A.out))

main()
```

```python
import sys, math
sys.path.insert(0, "gen")
from asmlib import *

NAME = "concat_heads__gqa_block_cached__gqa_block_cached__near_ridge"
OPT = dict(prio=1, prof=0, ntkv=1, ntw=0, ntx=0, ntwo=0, nto=0, ntst=0, nq=6, kvrate=1, l2pf=1, wopf=4, fat=1, bstep=1, dmagap=1, pflead=4, kv0=2, nstg=4, kvt=0, ld4=1, cpf=0, mid=0, kvt0=1, kvtr=1, roll=0, pfrate=1, kvs=0, rot=0, stag=0, qi=0, tlbw=0, ntt=0, fuse=0, slp=1, wox=0, xm=0, wo0=3, wo6=0, exp=0, ntf=0, pv=0, ost=0, red=0, pre=0, ring=4, lp=0, pre0=0, pr2=0, xb=0, pro=0, prg=3, ea=0, ep=0, fb=0, pw=0, dc=0)
for a in sys.argv[2:]:
    k, v = a.split("="); OPT[k] = int(v)

O_BLK = 896 * 4096 * 2
SLOT = 16384
NSLOT = 10

def srd(A, d, base, nbytes):
    A.salu(f"s_mov_b32 s{d}, s{base}")
    A.salu(f"s_and_b32 s{d+1}, s{base+1}, 0xffff")
    A.salu(f"s_mov_b32 s{d+2}, {nbytes}")
    A.salu(f"s_mov_b32 s{d+3}, 0x00020000")

class Prof:
    def __init__(self, A, kidx):
        self.A = A; self.n = 0; self.names = []; self.kidx = kidx
    def stamp(self, name):
        A = self.A
        if OPT["prof"] == 3:
            sel = ["start", "q0", "a0", "pv7", "st", "go", "u15", "end"]
            if name == "start" or name == sel[OPT["pv"]]:
                A.salu("s_waitcnt lgkmcnt(0)")
                A.ds_done = A.nds
                A.salu("s_memrealtime s[96:97]")
                A.salu("s_waitcnt lgkmcnt(0)")
                if name == "start": A.salu("s_not_b32 s64, s96")
                if name == sel[OPT["pv"]]: A.salu(f"s_mov_b32 s65, s96")
            return
        if OPT["prof"] == 2:
            sel = ["start", "q0", "a0", "pv7", "st", "go", "u15", "end"]
            if name in sel:
                A.salu("s_waitcnt lgkmcnt(0)")
                A.ds_done = A.nds
                A.salu("s_memrealtime s[96:97]")
                A.salu("s_waitcnt lgkmcnt(0)")
                if name == "start": A.salu("s_not_b32 s96, s96")
                A.salu(f"s_mov_b32 s{64+sel.index(name)}, s96")
            return
        if not OPT["prof"]: return
        assert self.n < 30
        A.salu("s_waitcnt lgkmcnt(0)")
        A.ds_done = A.nds
        A.salu("s_memtime s[96:97]")
        A.salu("s_waitcnt lgkmcnt(0)")
        A.salu(f"s_mov_b32 s{64+self.n}, s96")
        if self.n == 0:
            A.salu("s_memrealtime s[98:99]")
            A.salu("s_waitcnt lgkmcnt(0)")
        self.n += 1; self.names.append(name)
    def dump(self, wsreg, sW, tmp):
        if not OPT["prof"]: return
        A = self.A
        self.stamp("end")
        if OPT["prof"] == 3:
            A.salu(f"s_cmp_eq_u32 s{sW}, 0")
            A.salu("s_cbranch_scc0 K1_END")
            A.salu("s_mov_b64 exec, -1")
            A.salu("s_nop 4")
            for i in range(2):
                A.salu(f"v_writelane_b32 v{tmp}, s{64+i}, {i}")
            A.salu(f"v_mbcnt_lo_u32_b32 v{tmp+1}, -1, 0")
            A.salu(f"v_lshlrev_b32 v{tmp+1}, 2, v{tmp+1}")
            A.salu(f"v_mov_b32 v{tmp+2}, 1")
            A.salu("s_mov_b64 exec, 3")
            A.salu("s_nop 4")
            A.salu(f"buffer_atomic_umax v{tmp}, v{tmp+1}, s[20:23], 0 offen offset:32 sc1")
            A.salu("s_waitcnt vmcnt(0)")
            A.salu("s_mov_b64 exec, 1")
            A.salu(f"buffer_atomic_add v{tmp+2}, v{tmp+1}, s[20:23], 0 offen offset:40 sc0 sc1")
            A.salu("s_waitcnt vmcnt(0)")
            A.salu(f"v_readfirstlane_b32 s66, v{tmp+2}")
            A.salu("s_cmp_eq_u32 s66, 251")
            A.salu("s_cbranch_scc0 K1_END")
            A.salu("s_mov_b64 exec, 3")
            A.salu(f"buffer_load_dword v{tmp}, v{tmp+1}, s[20:23], 0 offen offset:32 sc1")
            A.salu("s_waitcnt vmcnt(0)")
            A.salu(f"v_readlane_b32 s66, v{tmp}, 0")
            A.salu(f"v_readlane_b32 s67, v{tmp}, 1")
            A.salu("s_not_b32 s66, s66")
            A.salu("s_sub_u32 s66, s67, s66")
            A.salu("s_min_u32 s66, s66, 10000")
            A.salu("s_lshl_b32 s66, s66, 3")
            A.salu("s_memrealtime s[96:97]")
            A.salu("s_waitcnt lgkmcnt(0)")
            A.salu("s_mov_b32 s67, s96")
            A.label("K1_DLY")
            A.salu("s_memrealtime s[96:97]")
            A.salu("s_waitcnt lgkmcnt(0)")
            A.salu("s_sub_u32 s96, s96, s67")
            A.salu("s_cmp_lt_u32 s96, s66")
            A.salu("s_cbranch_scc1 K1_DLY")
            return
        if OPT["prof"] == 2:
            A.salu("s_mov_b64 exec, -1")
            A.salu("s_nop 4")
            for i in range(8):
                A.salu(f"v_writelane_b32 v{tmp}, s{64+i}, {i}")
            A.salu(f"v_mbcnt_lo_u32_b32 v{tmp+1}, -1, 0")
            A.salu(f"v_lshlrev_b32 v{tmp+1}, 2, v{tmp+1}")
            A.salu("s_mov_b64 exec, 0xff")
            A.salu("s_nop 4")
            A.salu(f"buffer_atomic_umax v{tmp}, v{tmp+1}, s[20:23], 0 offen offset:32 sc1")
            return
        A.salu("s_memrealtime s[96:97]")
        A.salu("s_waitcnt lgkmcnt(0)")
        A.salu("s_mov_b64 exec, -1")
        A.salu("s_nop 4")
        for i in range(self.n):
            A.salu(f"v_writelane_b32 v{tmp}, s{64+i}, {i}")
        A.salu("s_getreg_b32 s97, hwreg(HW_REG_HW_ID)")
        A.salu(f"v_writelane_b32 v{tmp}, s97, 29")
        A.salu(f"v_writelane_b32 v{tmp}, s98, 30")
        A.salu(f"v_writelane_b32 v{tmp}, s96, 31")
        A.salu(f"s_mov_b32 s60, s{wsreg}")
        A.salu(f"s_and_b32 s61, s{wsreg+1}, 0xffff")
        A.salu("s_mov_b32 s62, 0x10000000")
        A.salu("s_mov_b32 s63, 0x00020000")
        A.salu("s_lshl_b32 s96, s2, 3")
        A.salu(f"s_add_u32 s96, s96, s{sW}")
        A.salu("s_lshl_b32 s96, s96, 7")
        A.salu(f"s_add_u32 s96, s96, {255*1024*1024 + self.kidx*512*1024}")
        A.salu(f"v_mbcnt_lo_u32_b32 v{tmp+1}, -1, 0")
        A.salu(f"v_mbcnt_hi_u32_b32 v{tmp+1}, -1, v{tmp+1}")
        A.salu(f"v_lshlrev_b32 v{tmp+1}, 2, v{tmp+1}")
        A.salu("s_mov_b64 exec, 0xffffffff")
        A.salu("s_nop 4")
        A.salu(f"buffer_store_dword v{tmp}, v{tmp+1}, s[60:63], s96 offen")
        print("stamps k%d:" % self.kidx, self.names)

def gen_k1(A):
    V = A.valu
    T0, T1, T2, T3, T4, T5, T6, T7 = range(0, 8)
    XO, WO, KO = 8, 10, 12
    BW, BX, BK, BV = 14, 15, 16, 17
    LSUM, OST = 18, 19
    SUMA, SUMB, MX, MX2 = 20, 21, 22, 23
    AD = 24
    FR = 32
    NEGM = 48
    QB = 64
    S = 96
    O = 160
    P = 224
    sBLK, sKVH, sB, sW, sHL, sRT = 26, 27, 4, 5, 6, 7
    SX, SW_, SK, SV, SO = 28, 32, 36, 40, 44
    sWL, sXB, sWB, sKVB, sT, sOB = 48, 49, 50, 51, 52, 53
    sMASK, sTHR, sC = 54, 56, 57
    sW3, sWL4, sT2 = 58, 59, 55

    A.raw(f".p2align 8\n.globl k1_kernel\n.type k1_kernel,@function\nk1_kernel:\nK1_BEGIN:")
    A.salu("s_cmp_ge_u32 s2, 256")
    A.salu("s_cbranch_scc1 K1_END")
    A.salu("s_load_dwordx8 s[8:15], s[0:1], 0")
    A.salu("s_load_dwordx8 s[16:23], s[0:1], 40")
    A.salu("s_load_dwordx2 s[24:25], s[0:1], 96")
    if OPT["cpf"]:
        A.salu("s_getpc_b64 s[60:61]")
        A.salu("s_and_b32 s60, s60, 0xffffff00")
        A.salu("s_and_b32 s61, s61, 0xffff")
        A.salu("s_mov_b32 s62, CODE_BYTES")
        A.salu("s_mov_b32 s63, 0x00020000")
        V(f"v_lshlrev_b32 v{T7}, 7, v0", w={T7}, r={0})
        A.vmem(f"buffer_load_dword v{NEGM+15}, v{T7}, s[60:63], 0 offen", w={NEGM+15}, r={T7})
    A.salu("s_and_b32 s3, s2, 7")
    A.salu(f"s_lshr_b32 s{sB}, s2, 3")
    A.salu(f"s_lshr_b32 s{sBLK}, s3, 2")
    A.salu("s_and_b32 s3, s3, 3")
    A.salu("s_lshl_b32 s3, s3, 2")
    A.salu(f"s_and_b32 s{sKVH}, s{sB}, 3")
    A.salu(f"s_add_u32 s{sKVH}, s{sKVH}, s3")
    A.salu(f"s_lshr_b32 s{sB}, s{sB}, 2")
    V(f"v_lshrrev_b32 v{T1}, 6, v0", w={T1}, r={0})
    A._emit(I(f"v_readfirstlane_b32 s{sW}, v{T1}", "rdlane", r={T1}, sw={sW}))
    V(f"v_and_b32 v{T0}, 63, v0", w={T0}, r={0})
    if OPT["fat"]:
        A.salu(f"s_bfe_u32 s{sHL}, s{sW}, 0x10001", sr={sW})
        A.salu(f"s_and_b32 s{sRT}, s{sW}, 1", sr={sW})
        A.salu(f"s_lshl_b32 s{sRT}, s{sRT}, 1")
        A.salu(f"s_lshr_b32 s3, s{sW}, 2", sr={sW})
        A.salu(f"s_add_u32 s{sRT}, s{sRT}, s3")
    else:
        A.salu(f"s_lshr_b32 s{sHL}, s{sW}, 2", sr={sW})
        A.salu(f"s_and_b32 s{sRT}, s{sW}, 3", sr={sW})
    A.salu(f"s_lshl_b32 s{sWL}, s{sW}, 11", sr={sW})
    A.salu(f"s_and_b32 s{sW3}, s{sW}, {3 if OPT['ld4'] else 1}", sr={sW})
    A.salu(f"s_lshl_b32 s{sWL4}, s{sW3}, 11")
    A.salu(f"s_mul_i32 s{sXB}, s{sB}, 129024")
    A.salu(f"s_lshl_b32 s{sWB}, s{sKVH}, 9")
    A.salu(f"s_lshl_b32 s{sKVB}, s{sB}, 4")
    A.salu(f"s_add_u32 s{sKVB}, s{sKVB}, s{sKVH}")
    if OPT["rot"] == 1:
        A.salu(f"s_and_b32 s{sMASK}, s{sKVB}, 7")
    elif OPT["rot"] == 2:
        A.salu(f"s_add_u32 s{sMASK}, s{sKVH}, s{sB}")
        A.salu(f"s_and_b32 s{sMASK}, s{sMASK}, 7")
    elif OPT["rot"] == 3:
        A.salu(f"s_and_b32 s{sMASK}, s{sB}, 7")
    A.salu(f"s_lshl_b32 s{sMASK}, s{sMASK}, 14")
    A.salu(f"s_lshl_b32 s{sKVB}, s{sKVB}, 17")
    A.salu(f"s_mov_b32 s{sTHR}, 0x4b800000")
    c = math.log2(math.e) / math.sqrt(128.0)
    import struct
    cbits = struct.unpack("<I", struct.pack("<f", c))[0]
    A.salu(f"s_mov_b32 s{sC}, {cbits:#x}")
    L = T0
    for q in range(2):
        V(f"v_lshrrev_b32 v{T1}, 3, v{L}", w={T1}, r={L})
        A.salu(f"s_lshl_b32 s3, s{sW3}, 4")
        A.salu(f"s_add_u32 s3, s3, {8*q}")
        V(f"v_add_u32 v{T1}, s3, v{T1}", w={T1}, r={T1})
        V(f"v_mul_u32_u24 v{T1}, 1152, v{T1}", w={T1}, r={T1})
        V(f"v_and_b32 v{T2}, 7, v{L}", w={T2}, r={L})
        V(f"v_lshrrev_b32 v{T3}, 4, v{L}", w={T3}, r={L})
        V(f"v_xor_b32 v{T2}, v{T2}, v{T3}", w={T2}, r={T2, T3})
        if q: V(f"v_xor_b32 v{T2}, 4, v{T2}", w={T2}, r={T2})
        V(f"v_lshl_add_u32 v{XO+q}, v{T2}, 4, v{T1}", w={XO+q}, r={T2, T1})
        V(f"v_lshrrev_b32 v{T3}, 5, v{L}", w={T3}, r={L})
        A.salu(f"s_lshl_b32 s3, s{sW3}, 2")
        A.salu(f"s_add_u32 s3, s3, {2*q}")
        V(f"v_add_u32 v{T1}, s3, v{T3}", w={T1}, r={T3})
        V(f"v_lshlrev_b32 v{T1}, 13, v{T1}", w={T1}, r={T1})
        V(f"v_or_b32 v{T3}, {2*q}, v{T3}", w={T3}, r={T3})
        V(f"v_lshlrev_b32 v{T3}, 2, v{T3}", w={T3}, r={T3})
        V(f"v_and_b32 v{T2}, 31, v{L}", w={T2}, r={L})
        V(f"v_xor_b32 v{T2}, v{T2}, v{T3}", w={T2}, r={T2, T3})
        V(f"v_lshl_add_u32 v{WO+q}, v{T2}, 4, v{T1}", w={WO+q}, r={T2, T1})
        V(f"v_lshrrev_b32 v{T3}, 4, v{L}", w={T3}, r={L})
        A.salu(f"s_lshl_b32 s3, s{sW}, 3")
        A.salu(f"s_add_u32 s3, s3, {4*q}")
        V(f"v_add_u32 v{T1}, s3, v{T3}", w={T1}, r={T3})
        V(f"v_lshlrev_b32 v{T1}, 8, v{T1}", w={T1}, r={T1})
        A.salu(f"s_and_b32 s3, s{sW}, 1")
        A.salu(f"s_lshl_b32 s3, s3, 1")
        A.salu(f"s_or_b32 s3, s3, {q}")
        V(f"v_lshlrev_b32 v{T3}, 2, v{T3}", w={T3}, r={T3})
        V(f"v_or_b32 v{T3}, s3, v{T3}", w={T3}, r={T3})
        V(f"v_and_b32 v{T2}, 15, v{L}", w={T2}, r={L})
        V(f"v_xor_b32 v{T2}, v{T2}, v{T3}", w={T2}, r={T2, T3})
        V(f"v_lshl_add_u32 v{KO+q}, v{T2}, 4, v{T1}", w={KO+q}, r={T2, T1})
    V(f"v_lshrrev_b32 v{T1}, 5, v{L}", w={T1}, r={L})
    V(f"v_bfe_u32 v{T2}, v{L}, 4, 1", w={T2}, r={L})
    V(f"v_bfe_u32 v{T3}, v{L}, 2, 2", w={T3}, r={L})
    V(f"v_and_b32 v{T4}, 3, v{L}", w={T4}, r={L})
    V(f"v_and_b32 v{T5}, 31, v{L}", w={T5}, r={L})
    V(f"v_lshl_add_u32 v{T6}, v{T1}, 3, v{T3}", w={T6}, r={T1, T3})
    V(f"v_lshlrev_b32 v{T6}, 9, v{T6}", w={T6}, r={T6})
    V(f"v_lshlrev_b32 v{T7}, 2, v{T3}", w={T7}, r={T3})
    V(f"v_lshl_add_u32 v{T7}, v{T2}, 1, v{T7}", w={T7}, r={T2, T7})
    V(f"v_and_b32 v{BW}, 1, v{T4}", w={BW}, r={T4})
    V(f"v_add_u32 v{T7}, v{T7}, v{BW}", w={T7}, r={T7, BW})
    A.salu(f"s_lshl_b32 s3, s{sHL}, 4")
    V(f"v_add_u32 v{T7}, s3, v{T7}", w={T7}, r={T7})
    V(f"v_lshl_add_u32 v{T6}, v{T7}, 4, v{T6}", w={T6}, r={T7, T6})
    V(f"v_lshrrev_b32 v{T7}, 1, v{T4}", w={T7}, r={T4})
    V(f"v_lshl_add_u32 v{BW}, v{T7}, 3, v{T6}", w={BW}, r={T7, T6})
    A.salu(f"s_lshl_b32 s3, s{sRT}, 5")
    V(f"v_add_u32 v{T6}, s3, v{T5}", w={T6}, r={T5})
    V(f"v_lshlrev_b32 v{T6}, 7, v{T6}", w={T6}, r={T6})
    V(f"v_bfe_u32 v{T7}, v{T5}, 1, 3", w={T7}, r={T5})
    V(f"v_xor_b32 v{T7}, v{T7}, v{T1}", w={T7}, r={T7, T1})
    V(f"v_lshl_add_u32 v{BX}, v{T7}, 4, v{T6}", w={BX}, r={T7, T6})
    V(f"v_lshlrev_b32 v{T6}, 2, v{T4}", w={T6}, r={T4})
    V(f"v_or_b32 v{T6}, v{T6}, v{T3}", w={T6}, r={T6, T3})
    V(f"v_xor_b32 v{T6}, v{T6}, v{T1}", w={T6}, r={T6, T1})
    V(f"v_lshlrev_b32 v{T7}, 8, v{T5}", w={T7}, r={T5})
    V(f"v_lshl_add_u32 v{BK}, v{T6}, 4, v{T7}", w={BK}, r={T6, T7})
    V(f"v_lshl_add_u32 v{T6}, v{T1}, 2, v{T3}", w={T6}, r={T1, T3})
    V(f"v_lshlrev_b32 v{T6}, 8, v{T6}", w={T6}, r={T6})
    V(f"v_lshrrev_b32 v{T7}, 1, v{T4}", w={T7}, r={T4})
    V(f"v_lshl_add_u32 v{T7}, v{T2}, 1, v{T7}", w={T7}, r={T2, T7})
    V(f"v_xor_b32 v{T7}, v{T7}, v{T1}", w={T7}, r={T7, T1})
    V(f"v_lshl_or_b32 v{T7}, v{T3}, 2, v{T7}", w={T7}, r={T3, T7})
    V(f"v_lshl_add_u32 v{T6}, v{T7}, 4, v{T6}", w={T6}, r={T7, T6})
    V(f"v_and_b32 v{T7}, 1, v{T4}", w={T7}, r={T4})
    V(f"v_lshl_add_u32 v{BV}, v{T7}, 3, v{T6}", w={BV}, r={T7, T6})
    V(f"v_lshlrev_b32 v{T6}, 17, v{T2}", w={T6}, r={T2})
    V(f"v_lshl_add_u32 v{T6}, v{T1}, 8, v{T6}", w={T6}, r={T1, T6})
    V(f"v_and_b32 v{T7}, 15, v{L}", w={T7}, r={L})
    V(f"v_lshl_add_u32 v{OST}, v{T7}, 4, v{T6}", w={OST}, r={T7, T6})
    V(f"v_mov_b32 v{LSUM}, 0", w={LSUM})
    A.waitcnt(lgkm=0)
    A.salu(f"s_cmp_eq_u32 s{sBLK}, 0")
    for k in range(8):
        A.salu(f"s_cselect_b32 s{8+k}, s{8+k}, s{16+k}")
    srd(A, SX, 8, 8 * 112 * 576 * 2)
    srd(A, SK, 10, 8 * 16 * 512 * 128 * 2)
    srd(A, SV, 12, 8 * 16 * 512 * 128 * 2)
    srd(A, SW_, 14, 576 * 4096 * 2)
    srd(A, SO, 24, 2 * O_BLK)
    A.salu(f"s_mul_i32 s{sOB}, s{sBLK}, {O_BLK}")
    A.salu(f"s_mul_i32 s3, s{sB}, 7")
    A.salu(f"s_lshl_b32 s{sT}, s{sRT}, 1")
    A.salu(f"s_add_u32 s3, s3, s{sT}")
    A.salu(f"s_lshl_b32 s3, s3, 17")
    A.salu(f"s_add_u32 s{sOB}, s{sOB}, s3")
    A.salu(f"s_lshl_b32 s3, s{sKVH}, 1")
    A.salu(f"s_add_u32 s3, s3, s{sHL}")
    A.salu(f"s_lshl_b32 s3, s3, 12")
    A.salu(f"s_add_u32 s{sOB}, s{sOB}, s3")
    if OPT["prio"]:
        A.salu(f"s_cmp_ge_u32 s{sW}, 4")
        A.salu("s_cbranch_scc0 K1_PRIO_DONE" if OPT["prio"] == 1 else "s_cbranch_scc1 K1_PRIO_DONE")
        A.salu("s_setprio 1")
        A.label("K1_PRIO_DONE")

    NTT = {0: "", 1: " nt", 2: " sc1", 3: " sc0 sc1", 4: " sc1 nt"}[OPT["ntt"]]
    qunits = []
    for s_ in range(9):
        qunits += [("X", s_), ("W", 2 * s_), ("W", 2 * s_ + 1)]
    kvunits = [("K", 0)]
    for h in range(7):
        kvunits += [("K", h + 1), ("V", h)]
    kvunits += [("V", 7)]
    units = qunits + kvunits
    UK = {idx: 27 + i for i, (t_, idx) in enumerate(kvunits) if t_ == "K"}
    UV = {idx: 27 + i for i, (t_, idx) in enumerate(kvunits) if t_ == "V"}
    stage_units = [list(range(3 * s_, 3 * s_ + 3)) for s_ in range(9)]
    unit_last_vm = {}
    unit_slot = {}
    free = list(range(NSLOT))
    nq = [0]; nkv = [0]; xch = []
    KQ = FR
    DV = FR + 2
    NSTG = OPT["nstg"]
    STG = [S + 32, O, O + 32, P][:NSTG]

    def unit_info(u):
        typ, idx = units[u]
        if typ == "X": return sXB, idx * 128, SX, XO, 2 * 16 * 1152, "ntx"
        if typ == "W": return sWB, idx * 32 * 8192, SW_, WO, 2 * 4 * 8192, "ntw"
        if typ == "K": return sKVB, idx * 64 * 256, SK, KO, 4096, "ntkv"
        return sKVB, idx * 64 * 256, SV, KO, 4096, "ntkv"

    def sbase(base, const):
        if base == sKVB and OPT["rot"]:
            A.salu(f"s_add_u32 s{sT}, s{sMASK}, {const}")
            A.salu(f"s_and_b32 s{sT}, s{sT}, 0x1ffff")
            A.salu(f"s_or_b32 s{sT}, s{sT}, s{sKVB}")
        else:
            A.salu(f"s_add_u32 s{sT}, s{base}, {const}")

    def issue_unit_q(u, stage_reg=None):
        if stage_reg is None:
            slot = free.pop(0)
            unit_slot[u] = slot
        base, const, sr_, vo, delta, nto = unit_info(u)
        if vo == KO: vo = KQ
        nt = " nt" if OPT[nto] else ""
        for hv in range(4):
            A.salu(f"s_add_u32 s{sT}, s{base}, {const + delta * hv}")
            for q in range(2):
                if stage_reg is None:
                    A.salu(f"s_add_u32 m0, s{sWL4}, {slot * SLOT + hv * 4096 + q * 1024}", m0w=True)
                    k = A.vmem(f"buffer_load_dwordx4 v{vo+q}, s[{sr_}:{sr_+3}], s{sT} offen{nt} lds", kind="dma", r={vo + q}, m0r=True)
                else:
                    d = stage_reg + (hv * 2 + q) * 4
                    k = A.vmem(f"buffer_load_dwordx4 {vname(d,4)}, v{vo+q}, s[{sr_}:{sr_+3}], s{sT} offen{nt}", w=vr(d, 4), r={vo + q})
        unit_last_vm[u] = k

    def issue_unit_4(u):
        slot = free.pop(0)
        unit_slot[u] = slot
        base, const, sr_, vo, delta, nto = unit_info(u)
        nt = " nt" if OPT[nto] else ""
        sbase(base, const)
        if vo != KO: A.salu(f"s_add_u32 s{sT2}, s{base}, {const + 2 * delta}")
        for hv in range(2):
            for q in range(2):
                A.salu(f"s_add_u32 m0, s{sWL4}, {slot * SLOT + hv * 8192 + q * 1024}", m0w=True)
                if vo == KO:
                    va = (KQ if hv == 0 else KO) + q; so = sT
                else:
                    va = vo + q; so = sT if hv == 0 else sT2
                k = A.vmem(f"buffer_load_dwordx4 v{va}, s[{sr_}:{sr_+3}], s{so} offen{nt} lds", kind="dma", r={va}, m0r=True)
        unit_last_vm[u] = k

    def flood():
        if not OPT["l2pf"]: return
        V(f"v_lshrrev_b32 v{T1}, 2, v{L}", w={T1}, r={L})
        V(f"v_lshlrev_b32 v{T1}, 13, v{T1}", w={T1}, r={T1})
        V(f"v_and_b32 v{T2}, 3, v{L}", w={T2}, r={L})
        V(f"v_lshl_add_u32 v{T1}, v{T2}, 7, v{T1}", w={T1}, r={T2, T1})
        A.salu(f"s_lshl_b32 s3, s{sW}, 4")
        A.salu(f"s_min_u32 s3, s3, 56")
        A.salu(f"s_mul_i32 s{sT}, s{sB}, 72")
        A.salu(f"s_add_u32 s3, s3, s{sT}")
        A.salu(f"s_lshl_b32 s3, s3, 13")
        A.salu(f"s_add_u32 s3, s3, s{sWB}")
        A.vmem(f"buffer_load_dword v{T4}, v{T1}, s[{SW_}:{SW_+3}], s3 offen{NTT}", w={T4}, r={T1})
        V(f"v_lshlrev_b32 v{T2}, 7, v{L}", w={T2}, r={L})
        A.salu(f"s_and_b32 s3, s{sKVH}, 3")
        A.salu(f"s_mul_i32 s3, s3, 32256")
        A.salu(f"s_and_b32 s{sT}, s{sW}, 3")
        A.salu(f"s_lshl_b32 s{sT}, s{sT}, 13")
        A.salu(f"s_add_u32 s3, s3, s{sT}")
        A.salu(f"s_add_u32 s3, s3, s{sXB}")
        A.vmem(f"buffer_load_dword v{T5}, v{T2}, s[{SX}:{SX+3}], s3 offen{NTT}", w={T5}, r={T2})

    def dump_unit(u, stage_reg):
        slot = free.pop(0)
        unit_slot[u] = slot
        V(f"v_add_u32 v{DV+1}, {slot * SLOT}, v{DV}", w={DV + 1}, r={DV})
        for hv in range(4):
            for q in range(2):
                A.ds_write_b128(DV + 1, stage_reg + (hv * 2 + q) * 4, hv * 4096 + q * 1024)

    def dma_items(u):
        slot = free.pop(0)
        unit_slot[u] = slot
        base, const, sr_, vo, delta, nto = unit_info(u)
        nt = " nt" if OPT[nto] else ""
        def mk(q):
            def f():
                sbase(base, const)
                A.salu(f"s_add_u32 m0, s{sWL}, {slot * SLOT + q * 1024}", m0w=True)
                k = A.vmem(f"buffer_load_dwordx4 v{vo+q}, s[{sr_}:{sr_+3}], s{sT} offen{nt} lds", kind="dma", r={vo + q}, m0r=True)
                unit_last_vm[u] = k
            return f
        if not OPT["stag"]: return [mk(0), mk(1)]
        G = 8 // OPT["stag"]
        def cond(f, g):
            def h():
                lab = f"K1_D{nlab[0]}"; nlab[0] += 1
                A.salu(f"s_cmp_eq_u32 s{sT2}, {g}")
                A.salu(f"s_cbranch_scc0 {lab}")
                n0 = len(A.out)
                f()
                for o in A.out[n0:]: o.ws = 0
                A.label(lab)
                if g < G - 1: A.nvm -= 1
            return h
        return [cond(mk(q), g) for q in range(2) for g in range(G)]
    nlab = [0]

    NQ = OPT["nq"]
    PF = Prof(A, 0)
    PF.stamp("start")

    def addr_items(dst, base, slot, xors):
        it = [lambda: V(f"v_add_u32 v{dst[0]}, {slot * SLOT}, v{base}", w={dst[0]}, r={base})]
        for i, x in enumerate(xors):
            if i == 0: continue
            it.append(lambda i=i, x=x: V(f"v_xor_b32 v{dst[i]}, {x}, v{dst[0]}", w={dst[i]}, r={dst[0]}))
        return it

    A.salu(f"s_cmp_lt_u32 s{sW}, 4")
    A.salu("s_cbranch_scc1 K1_FAT")
    pf0 = PF.n
    staged = []
    if OPT["ld4"]:
        for q in range(2):
            V(f"v_subrev_u32 v{KQ+q}, {4*8*256}, v{KO+q}", w={KQ + q}, r={KO + q})
        NL = NSLOT - NQ
        def refill(s):
            done_q = 3 * max(s, 0)
            while nq[0] < 27 and nq[0] - done_q < NQ and free:
                issue_unit_4(nq[0]); nq[0] += 1
        def kv_issue():
            if nkv[0] < NL:
                if free:
                    issue_unit_4(27 + nkv[0]); nkv[0] += 1
        LW, LX = FR + 4, FR + 5
        nroll = [NQ // 3]
        def lroll(n):
            n = min(n, 9 - nroll[0])
            if n <= 0 or OPT["roll"] != 2: return
            a = nroll[0]; nroll[0] += n
            if n < 8:
                m = (1 << (8 * n)) - 1
                A.salu(f"s_mov_b32 exec_lo, {m & 0xffffffff}")
                A.salu(f"s_mov_b32 exec_hi, {m >> 32}")
            A.salu(f"s_add_u32 s3, s8, {a * 64 * 8192}")
            A.vmem(f"buffer_load_dword v{FR+6}, v{LW}, s[{SW_}:{SW_+3}], s3 offen{NTT}", w={FR + 6}, r={LW})
            A.vmem(f"buffer_load_dword v{FR+7}, v{LX}, s[{SX}:{SX+3}], s9 offen offset:{a * 128}{NTT}", w={FR + 7}, r={LX})
            if n < 8: A.salu("s_mov_b64 exec, -1")
        refill(-1)
        for _ in range(OPT["kv0"]): kv_issue()
        if not OPT["roll"]: flood()
        if OPT["roll"] == 2:
            V(f"v_bfe_u32 v{T1}, v{L}, 2, 1", w={T1}, r={L})
            A.salu(f"s_lshl_b32 s3, s{sW3}, 1")
            V(f"v_add_u32 v{T1}, s3, v{T1}", w={T1}, r={T1})
            V(f"v_lshrrev_b32 v{T3}, 3, v{L}", w={T3}, r={L})
            V(f"v_lshl_add_u32 v{T1}, v{T3}, 6, v{T1}", w={T1}, r={T3, T1})
            V(f"v_lshlrev_b32 v{T1}, 13, v{T1}", w={T1}, r={T1})
            V(f"v_and_b32 v{T2}, 3, v{L}", w={T2}, r={L})
            V(f"v_lshl_add_u32 v{LW}, v{T2}, 7, v{T1}", w={LW}, r={T2, T1})
            V(f"v_and_b32 v{T1}, 7, v{L}", w={T1}, r={L})
            V(f"v_min_u32 v{T1}, 6, v{T1}", w={T1}, r={T1})
            A.salu(f"s_mul_i32 s3, s{sW3}, 7")
            V(f"v_add_u32 v{T1}, s3, v{T1}", w={T1}, r={T1})
            V(f"v_mul_u32_u24 v{T1}, 1152, v{T1}", w={T1}, r={T1})
            V(f"v_lshl_add_u32 v{LX}, v{T3}, 7, v{T1}", w={LX}, r={T3, T1})
            A.salu(f"s_lshl_b32 s8, s{sB}, 16")
            A.salu(f"s_add_u32 s8, s8, s{sWB}")
            A.salu(f"s_and_b32 s9, s{sKVH}, 3")
            A.salu(f"s_mul_i32 s9, s9, {28*1152}")
            A.salu(f"s_add_u32 s9, s9, s{sXB}")
            lroll(OPT["pflead"] - nroll[0])
        for s in range(9):
            A.wait_vm(max(unit_last_vm[u] for u in stage_units[s]))
            A.barrier()
            PF.stamp(f"q{s}")
            if s > 0:
                for u in stage_units[s - 1]: free.append(unit_slot[u])
            refill(s)
            lroll(OPT["pfrate"])
            if s == 8:
                xch.append(free.pop(0)); xch.append(free.pop(0))
            elif s >= OPT["kvs"]:
                for _ in range(OPT["kvrate"]): kv_issue()
            if nq[0] == 27 and nkv[0] >= NL:
                while free:
                    issue_unit_4(27 + nkv[0]); nkv[0] += 1
        A.salu("s_branch K1_ATT")
        ldr_vm = (A.nvm, A.vm_done)
    else:
        A.salu(f"s_cmp_ge_u32 s{sW}, 6")
        A.salu("s_cbranch_scc1 K1_KVL")
        pf0 = PF.n
        kvslots = [free.pop() for _ in range(NSLOT - NQ)]
        def refill(s):
            done_q = 3 * max(s, 0)
            while nq[0] < 27 and nq[0] - done_q < NQ and free:
                issue_unit_q(nq[0]); nq[0] += 1
        refill(-1)
        for s in range(9):
            A.wait_vm(max(unit_last_vm[u] for u in stage_units[s]))
            A.barrier()
            PF.stamp(f"q{s}")
            if s > 0:
                for u in stage_units[s - 1]: free.append(unit_slot[u])
            refill(s)
            if s == 8:
                xch.append(free.pop(0)); xch.append(free.pop(0))
        A.waitcnt(vm=0)
        A.vm_done = A.nvm
        A.salu("s_branch K1_ATT")
        A.label("K1_KVL")
        A.win = []
        A.salu("s_nop 4")
        PF.n = pf0; PF.names = PF.names[:pf0]
        for q in range(2):
            V(f"v_subrev_u32 v{KQ+q}, {6*8*256}, v{KO+q}", w={KQ + q}, r={KO + q})
        V(f"v_lshlrev_b32 v{DV}, 4, v{L}", w={DV}, r={L})
        V(f"v_add_u32 v{DV}, s{sWL4}, v{DV}", w={DV}, r={DV})
        late_free = free[:]; free[:] = kvslots
        NL = len(kvslots)
        TV = FR + 4
        V(f"v_lshlrev_b32 v{TV}, 7, v{L}", w={TV}, r={L})
        A.salu(f"s_lshl_b32 s3, s{sW3}, 13")
        V(f"v_add_u32 v{TV}, s3, v{TV}", w={TV}, r={TV})
        NT = OPT["kvt"]
        ntouch = [0]
        def kv_issue():
            i = nkv[0]
            if i < NL: issue_unit_q(27 + i)
            elif i < NL + NSTG: issue_unit_q(27 + i, STG[i - NL])
            else:
                if ntouch[0] < NT:
                    u = 27 + NL + NSTG + ntouch[0]
                    base, const, sr_, vo, delta, nto = unit_info(u)
                    A.salu(f"s_add_u32 s{sT}, s{base}, {const}")
                    A.vmem(f"buffer_load_dword v{TV+1}, v{TV}, s[{sr_}:{sr_+3}], s{sT} offen", w={TV + 1}, r={TV})
                    ntouch[0] += 1
                return
            nkv[0] += 1
        for _ in range(OPT["kv0"]): kv_issue()
        for s in range(9):
            A.barrier()
            PF.stamp(f"q{s}")
            for _ in range(OPT["kvrate"]): kv_issue()
        assert nkv[0] == NL + NSTG
        free[:] = late_free
        staged = [(27 + NL + i, STG[i]) for i in range(NSTG)]
        while staged and free:
            u, r_ = staged.pop(0)
            A.wait_vm(unit_last_vm[u])
            dump_unit(u, r_)
        A.waitcnt(vm=0)
        A.vm_done = A.nvm
        A.wait_ds_all()
        A.salu("s_branch K1_ATT")
    A.label("K1_FAT")
    A.win = []
    A.salu("s_nop 4")
    PF.n = pf0; PF.names = PF.names[:pf0]
    TW, TX = XO, XO + 1
    if OPT["roll"] == 2:
        pass
    elif OPT["ld4"] and not OPT["roll"]:
        V(f"v_lshlrev_b32 v{TW}, 7, v{L}", w={TW}, r={L})
        A.salu(f"s_lshl_b32 s3, s{sW}, 13")
        V(f"v_add_u32 v{TW}, s3, v{TW}", w={TW}, r={TW})
    else:
        TW, TX = XO, XO + 1
        V(f"v_bfe_u32 v{T1}, v{L}, 2, 1", w={T1}, r={L})
        A.salu(f"s_lshl_b32 s3, s{sW}, 1")
        V(f"v_add_u32 v{T1}, s3, v{T1}", w={T1}, r={T1})
        V(f"v_lshlrev_b32 v{T1}, 13, v{T1}", w={T1}, r={T1})
        V(f"v_and_b32 v{T2}, 3, v{L}", w={T2}, r={L})
        V(f"v_lshl_add_u32 v{TW}, v{T2}, 7, v{T1}", w={TW}, r={T2, T1})
        V(f"v_and_b32 v{T1}, 7, v{L}", w={T1}, r={L})
        V(f"v_min_u32 v{T1}, 6, v{T1}", w={T1}, r={T1})
        A.salu(f"s_mul_i32 s3, s{sW}, 7")
        V(f"v_add_u32 v{T1}, s3, v{T1}", w={T1}, r={T1})
        V(f"v_mul_u32_u24 v{TX}, 1152, v{T1}", w={TX}, r={T1})
        A.salu(f"s_lshl_b32 s8, s{sB}, 16")
        A.salu(f"s_add_u32 s8, s8, s{sWB}")
        A.salu(f"s_and_b32 s9, s{sKVH}, 3")
        A.salu(f"s_mul_i32 s9, s9, {28*1152}")
        A.salu(f"s_add_u32 s9, s9, s{sXB}")
    def touch(s_):
        if not OPT["l2pf"] or s_ > 8: return
        A.salu(f"s_add_u32 s3, s8, {s_ * 64 * 8192}")
        A.vmem(f"buffer_load_dword v{T4}, v{TW}, s[{SW_}:{SW_+3}], s3 offen{NTT}", w={T4}, r={TW})
        A.vmem(f"buffer_load_dword v{T5}, v{TX}, s[{SX}:{SX+3}], s9 offen offset:{s_ * 128}{NTT}", w={T5}, r={TX})
    if OPT["roll"] == 2:
        touch = lambda s_: None
    elif OPT["roll"]:
        touch1 = touch
        nroll = [2]
        def roll(n):
            for _ in range(n):
                touch1(nroll[0]); nroll[0] += 1
        roll(OPT["pflead"] - 2)
        touch = lambda s_: roll(OPT["pfrate"])
    elif OPT["ld4"]:
        flood()
        ntouch = [0]
        def touch(s_):
            s_ -= OPT["pflead"]
            if s_ < OPT["kvt0"]: return
            for _ in range(OPT["kvtr"]):
                if ntouch[0] >= OPT["kvt"]: return
                ua = 27 + NL + 1 + ntouch[0]
                ia = unit_info(ua); ib = unit_info(ua + 1)
                A.salu(f"s_cmp_lt_u32 s{sW}, 2")
                A.salu(f"s_mov_b32 s3, {ib[1] - 16384}")
                A.salu(f"s_cselect_b32 s3, {ia[1]}, s3")
                A.salu(f"s_cselect_b32 s60, s{ia[2]}, s{ib[2]}")
                A.salu(f"s_cselect_b32 s61, s{ia[2]+1}, s{ib[2]+1}")
                A.salu(f"s_mov_b32 s62, s{ia[2]+2}")
                A.salu(f"s_mov_b32 s63, s{ia[2]+3}")
                A.salu(f"s_add_u32 s3, s3, s{sKVB}")
                A.vmem(f"buffer_load_dword v{T4}, v{TW}, s[60:63], s3 offen", w={T4}, r={TW})
                ntouch[0] += 2
    if not OPT["ld4"]:
        for s_ in range(2, OPT["pflead"]): touch(s_)
    if OPT["tlbw"]:
        A.salu("s_load_dwordx2 s[16:17], s[0:1], 32")
        A.salu("s_load_dwordx2 s[18:19], s[0:1], 72")
        A.salu("s_load_dwordx2 s[20:21], s[0:1], 80")
        D = NEGM
        V(f"v_lshlrev_b32 v{T1}, 12, v{L}", w={T1}, r={L})
        V(f"v_and_b32 v{T1}, 0x1ffff, v{T1}", w={T1}, r={T1})
        A.vmem(f"buffer_load_dword v{D}, v{T1}, s[{SV}:{SV+3}], s{sKVB} offen", w={D}, r={T1})
        if OPT["tlbw"] > 1:
            A.vmem(f"buffer_load_dword v{D+1}, v{T1}, s[{SK}:{SK+3}], s{sKVB} offen", w={D + 1}, r={T1})
        V(f"v_min_u32 v{T2}, 6, v{L}", w={T2}, r={L})
        V(f"v_lshlrev_b32 v{T2}, 17, v{T2}", w={T2}, r={T2})
        A.salu(f"s_mul_i32 s3, s{sBLK}, {O_BLK}")
        A.salu(f"s_mul_i32 s{sT}, s{sB}, {7*131072}")
        A.salu(f"s_add_u32 s3, s3, s{sT}")
        if OPT["fuse"]:
            A.salu(f"s_lshl_b32 s{sT}, s{sKVH}, 13")
            A.salu(f"s_add_u32 s3, s3, s{sT}")
            A.vmem(f"buffer_store_dword v{T2}, v{T2}, s[{SO}:{SO+3}], s3 offen sc1", r={T2}, storedata={T2})
        else:
            A.vmem(f"buffer_load_dword v{D+2}, v{T2}, s[{SO}:{SO+3}], s3 offen", w={D + 2}, r={T2})
        V(f"v_lshlrev_b32 v{T3}, 16, v{L}", w={T3}, r={L})
        A.salu("s_waitcnt lgkmcnt(0)")
        A.salu(f"s_cmp_eq_u32 s{sBLK}, 0")
        A.salu("s_cselect_b32 s60, s16, s18")
        A.salu("s_cselect_b32 s61, s17, s19")
        A.salu("s_and_b32 s61, s61, 0xffff")
        A.salu(f"s_mov_b32 s62, {4096*576*2}")
        A.salu("s_mov_b32 s63, 0x00020000")
        A.salu(f"s_mov_b32 s3, {8*65536}")
        A.vmem(f"buffer_load_dword v{D+3}, v{T3}, s[60:63], 0 offen", w={D + 3}, r={T3})
        A.vmem(f"buffer_load_dword v{D+4}, v{T3}, s[60:63], s3 offen", w={D + 4}, r={T3})
        A.salu("s_mov_b32 s16, s20")
        A.salu("s_and_b32 s17, s21, 0xffff")
        A.salu(f"s_mov_b32 s18, {896*1152*2}")
        A.salu("s_mov_b32 s19, 0x00020000")
        A.vmem(f"buffer_load_dword v{D+5}, v{T3}, s[16:19], 0 offen", w={D + 5}, r={T3})
    QA = [S, O]
    FBW = [P, QB]; FBX = [P + 16, QB + 16]
    AW = [FR, FR + 4]; AX = FR + 8
    def qaddr(s):
        u0 = 3 * s
        return (addr_items([AX + i for i in range(4)], BX, unit_slot[u0], [0, 32, 64, 96]) +
                addr_items([AW[0] + i for i in range(4)], BW, unit_slot[u0 + 1], [0, 64, 128, 192]) +
                addr_items([AW[1] + i for i in range(4)], BW, unit_slot[u0 + 2], [0, 64, 128, 192]))
    def qread_items(ks):
        it = [lambda: A.ds_read_b128(FBX[ks % 2], AX + ks), lambda: A.ds_read_b128(FBX[ks % 2] + 4, AX + ks, 4096)]
        for t in range(4):
            for j in range(2):
                it.append(lambda t=t, j=j: A.ds_read_tr(FBW[ks % 2] + 4 * t + 2 * j, AW[ks // 2] + t, ((ks % 2) * 16 + 4 * j) * 512))
        return it
    def qreads(ks):
        for it in qread_items(ks): last = it()
        return last
    for it in qaddr(0): it()
    A.barrier()
    PF.stamp("q0")
    pend = qreads(0)
    touch(OPT["pflead"])
    QI = OPT["qi"]
    for s in range(9):
        for ks in range(4):
            A.wait_ds(pend)
            rq = []
            if ks < 3:
                if QI: rq = qread_items(ks + 1)
                else: pend = qreads(ks + 1)
            nxt = qaddr(s + 1) if (ks == 3 and s < 8) else []
            m = 0
            for t in range(4):
                for r2 in range(2):
                    A.mfma(QA[r2] + 16 * t, FBW[ks % 2] + 4 * t, FBX[ks % 2] + 4 * r2, "zero" if (s == 0 and ks == 0) else None)
                    if nxt:
                        if m < 2:
                            for it in nxt[6 * m: 6 * m + 6]: it()
                        if m == 1:
                            A.barrier()
                            PF.stamp(f"q{s+1}")
                            if QI: rq = qread_items(0)
                            else: pend = qreads(0)
                        if m == 3: touch(s + 1 + OPT["pflead"])
                    for _ in range(QI):
                        if rq: pend = rq.pop(0)()
                    m += 1
            assert not rq
    A.salu(f"s_lshr_b32 s3, s{sW}, 1")
    A.salu(f"s_cmp_eq_u32 s3, 0")
    A.salu(f"s_cselect_b32 s3, {xch[0]}, {xch[1]}")
    A.salu(f"s_lshl_b32 s3, s3, 14")
    A.salu(f"s_and_b32 s{sT}, s{sW}, 1")
    A.salu(f"s_lshl_b32 s{sT}, s{sT}, 13")
    A.salu(f"s_add_u32 s3, s3, s{sT}")
    V(f"v_lshlrev_b32 v{T6}, 4, v{L}", w={T6}, r={L})
    V(f"v_add_u32 v{T6}, s3, v{T6}", w={T6}, r={T6})
    for i in range(64):
        V(f"v_mul_f32 v{O+i}, s{sC}, v{O+i}", w={O + i}, r={O + i})
    for q in range(32):
        V(f"v_cvt_pk_bf16_f32 v{P+q}, v{O+2*q}, v{O+2*q+1}", w={P + q}, r={O + 2 * q, O + 2 * q + 1})
        if q % 4 == 3:
            A.ds_write_b128(T6, P + q - 3, (q // 4) * 1024)
    for i in range(64):
        V(f"v_mul_f32 v{S+i}, s{sC}, v{S+i}", w={S + i}, r={S + i})
    for q in range(32):
        V(f"v_cvt_pk_bf16_f32 v{QB+q}, v{S+2*q}, v{S+2*q+1}", w={QB + q}, r={S + 2 * q, S + 2 * q + 1})
    A.wait_ds_all()
    A.waitcnt(vm=0)
    A.vm_done = A.nvm
    if OPT["ld4"]:
        A.nvm, A.vm_done = ldr_vm
    A.label("K1_ATT")
    A.win = []
    A.salu("s_nop 4")
    if OPT["stag"]:
        A.salu(f"s_lshr_b32 s{sT2}, s{sW}, {OPT['stag'] - 1}")

    SETA = [AD + i for i in range(8)]
    SETB = [XO, XO + 1, WO, WO + 1, BW, BX, T4, T5]
    kx = [32 * ks for ks in range(8)]
    vx = [(t << 6) ^ (32 * jj) for t in range(4) for jj in range(2)]
    SB = lambda h: S + 32 * (h % 2)
    PB = lambda h: P + 16 * (h % 2)
    phases = [("qk", 0)] + [x for h in range(7) for x in (("qk", h + 1), ("pv", h))] + [("pv", 7)]
    pset = {}
    for ph in phases:
        pset[ph] = SETA if ph[0] == "qk" else SETB
    pset[("qk", 0)] = SETB; pset[("pv", 7)] = SETA
    punit = lambda ph: UK[ph[1]] if ph[0] == "qk" else UV[ph[1]]
    def paddr(ph):
        u = punit(ph)
        return addr_items(pset[ph], BK if ph[0] == "qk" else BV, unit_slot[u], kx if ph[0] == "qk" else vx)
    mf = [(ph, i) for ph in phases for i in range(16)]
    syncJ = list(range(0, 6, OPT["bstep"]))
    if OPT["fuse"]:
        syncJ.append(6)
        K2 = K2Fused(A, sW, SO, QB)
    sync_pos = [phases.index(("pv", j)) * 16 + 12 for j in syncJ]
    first_read = {}
    for n, (ph, i) in enumerate(mf):
        first_read.setdefault(punit(ph), max(n - 4, -1))
    last_read = {}
    for n, (ph, i) in enumerate(mf):
        last_read[punit(ph)] = n - 4
    def publish_set(pos_from, pos_to):
        return [u for u, fr in first_read.items() if pos_from <= fr < pos_to]
    freed = set()
    dmaq = []
    def refill_att():
        while nkv[0] < 16 and free:
            dmaq.extend(dma_items(27 + nkv[0])); nkv[0] += 1

    pub = publish_set(-1, sync_pos[0])
    A.wait_vm(max(unit_last_vm[u] for u in pub))
    A.barrier()
    PF.stamp("a0")
    for u in stage_units[8]: free.append(unit_slot[u])
    A.salu(f"s_cmp_lt_u32 s{sW}, 4")
    A.salu(f"s_cbranch_scc1 K1_QGOT")
    if staged:
        A.salu(f"s_cmp_lt_u32 s{sW}, 6")
        A.salu(f"s_cbranch_scc1 K1_NODUMP")
        while staged:
            u, r_ = staged.pop(0)
            dump_unit(u, r_)
        A.label("K1_NODUMP")
    refill_att()
    A.salu(f"s_bfe_u32 s3, s{sW}, 0x10001")
    A.salu(f"s_cmp_eq_u32 s3, 0")
    A.salu(f"s_cselect_b32 s3, {xch[0]}, {xch[1]}")
    A.salu(f"s_lshl_b32 s3, s3, 14")
    A.salu(f"s_and_b32 s{sT}, s{sW}, 1")
    A.salu(f"s_lshl_b32 s{sT}, s{sT}, 13")
    A.salu(f"s_add_u32 s3, s3, s{sT}")
    V(f"v_lshlrev_b32 v{T6}, 4, v{L}", w={T6}, r={L})
    V(f"v_add_u32 v{T6}, s3, v{T6}", w={T6}, r={T6})
    for q in range(8):
        A.ds_read_b128(QB + 4 * q, T6, q * 1024)
    A.wait_ds_all()
    A.label("K1_QGOT")
    A.salu("s_nop 1")
    for it in paddr(("qk", 0)) + paddr(("qk", 1)): it()

    TT = [T0, T1, T2, T3]
    def max_items(regs, first, final):
        it = []
        r = list(regs)
        if first:
            a = r[:3]; b = r[3:6]; r = r[6:]
            it.append(lambda a=a: V(f"v_max3_f32 v{MX}, v{a[0]}, v{a[1]}, v{a[2]}", w={MX}, r=set(a)))
            it.append(lambda b=b: V(f"v_max3_f32 v{MX2}, v{b[0]}, v{b[1]}, v{b[2]}", w={MX2}, r=set(b)))
        k = 0
        while r:
            a = r[:2]; r = r[2:]
            d = MX if k % 2 == 0 else MX2
            it.append(lambda a=a, d=d: V(f"v_max3_f32 v{d}, v{d}, v{a[0]}, v{a[1]}", w={d}, r={d} | set(a)))
            k += 1
        if final:
            it.append(lambda: V(f"v_max_f32 v{MX}, v{MX}, v{MX2}", w={MX}, r={MX, MX2}))
            it.append(lambda: V(f"v_mov_b32 v{MX2}, v{MX}", w={MX2}, r={MX}))
            it.append(lambda: V(f"v_permlane32_swap_b32 v{MX}, v{MX2}", w={MX, MX2}, r={MX, MX2}, kind="perm"))
            it.append(lambda: V(f"v_max_f32 v{MX}, v{MX}, v{MX2}", w={MX}, r={MX, MX2}))
        return it
    def sm_items(h, lo, hi, sub):
        it = []
        sb, pb = SB(h), PB(h)
        if sub:
            it.append(lambda: V(f"v_sub_f32 v{sb+lo}, v{sb+lo}, v{MX}", w={sb + lo}, r={sb + lo, MX}))
        for e in range(lo, hi + 2):
            if sub and e + 1 < hi:
                it.append(lambda e=e: V(f"v_sub_f32 v{sb+e+1}, v{sb+e+1}, v{MX}", w={sb + e + 1}, r={sb + e + 1, MX}))
            if e < hi:
                it.append(lambda e=e: V(f"v_exp_f32 v{TT[e%4]}, v{sb+e}", w={TT[e % 4]}, r={sb + e}, kind="trans"))
            if lo <= e - 1 < hi:
                p = e - 1; acc = SUMA if p % 2 == 0 else SUMB
                if p < 2:
                    it.append(lambda p=p, acc=acc: V(f"v_mov_b32 v{acc}, v{TT[p%4]}", w={acc}, r={TT[p % 4]}))
                else:
                    it.append(lambda p=p, acc=acc: V(f"v_add_f32 v{acc}, v{acc}, v{TT[p%4]}", w={acc}, r={acc, TT[p % 4]}))
            if e - 2 >= lo and (e - 2) % 2 == 0 and e - 1 < hi:
                p = e - 2
                it.append(lambda p=p: V(f"v_cvt_pk_bf16_f32 v{pb+p//2}, v{TT[p%4]}, v{TT[(p+1)%4]}", w={pb + p // 2}, r={TT[p % 4], TT[(p + 1) % 4]}))
        return it
    def negm_items():
        return [lambda i=i: V(f"v_sub_f32 v{NEGM+i}, 0, v{MX}", w={NEGM + i}, r={MX}) for i in range(16)]
    def check(h):
        V(f"v_add_f32 v{SUMA}, v{SUMA}, v{SUMB}", w={SUMA}, r={SUMA, SUMB})
        if h > 0:
            V(f"v_cmp_nge_f32 vcc, s{sTHR}, v{SUMA}", r={SUMA}, sw={"vcc"})
            A.salu("s_nop 1")
            A.salu(f"s_cbranch_vccnz K1_SLOW{h}")
            A.label(f"K1_BACK{h}")
        V(f"v_add_f32 v{LSUM}, v{LSUM}, v{SUMA}", w={LSUM}, r={LSUM, SUMA})

    def side_for(ph):
        kind, h = ph
        if ph == ("qk", 0):
            return [], []
        if kind == "qk":
            hh = h - 1
            if hh == 0:
                main = max_items([SB(0) + i for i in range(32)], True, True) + sm_items(0, 0, 32, True)
            else:
                main = sm_items(hh, 16, 32, hh == 1)
            return main, paddr(("pv", hh))
        if h == 7: return [], []
        if h == 6:
            return sm_items(7, 0, 32, False), paddr(("pv", 7)) + (K2.addr_items() if OPT["fuse"] and OPT["fuse"] != 6 else [])
        main = sm_items(h + 1, 0, 16, h == 0)
        if h == 0: main = negm_items() + main
        return main, paddr(("qk", h + 2))

    rid = {}
    def issue_read(n):
        ph, i = mf[n]
        st = pset[ph]; fr = FR + 4 * (n % 4)
        if ph[0] == "qk":
            rid[n] = A.ds_read_b128(fr, st[i % 8], (i // 8) * 8192)
        else:
            g, t = i // 4, i % 4
            A.ds_read_tr(fr, st[2 * t], g * 4096)
            rid[n] = A.ds_read_tr(fr + 2, st[2 * t + 1], g * 4096 + 2048)
    for n in range(4): issue_read(n)
    gap = 0
    for n, (ph, i) in enumerate(mf):
        kind, h = ph
        if i == 0:
            main, adr = side_for(ph)
            plan = [[] for _ in range(16)]
            for k, it in enumerate(adr): plan[k * 12 // max(len(adr), 1)].append(it)
            s0 = 1 if ph == ("qk", 1) else 0
            for k, it in enumerate(main): plan[s0 + k * (16 - s0) // len(main)].append(it)
        A.wait_ds(rid[n])
        fr = FR + 4 * (n % 4)
        if kind == "qk":
            kt, ks = i // 8, i % 8
            c = None
            if ks == 0: c = "zero" if h <= 1 else NEGM
            A.mfma(SB(h) + 16 * kt, fr, QB + 4 * ks, c)
        else:
            g, t = i // 4, i % 4
            A.mfma(O + 16 * t, fr, PB(h) + 4 * g, "zero" if (h == 0 and g == 0) else None)
        if n in sync_pos:
            k = sync_pos.index(n)
            pub = publish_set(n, sync_pos[k + 1] if k + 1 < len(sync_pos) else 10**9)
            while dmaq: dmaq.pop(0)()
            A.wait_ds_all()
            A.wait_vm(max(unit_last_vm[u] for u in pub))
            A.barrier()
            PF.stamp(f"x{h}")
            if k == 0: free.extend(xch)
            for u, lr in last_read.items():
                if lr < n and u not in freed:
                    freed.add(u); free.append(unit_slot[u])
            refill_att()
            if OPT["fuse"] == 6:
                if h == 1: K2.loads()
                if h == 2: K2.scalars()
                if h == 3: K2.addr6()
                if h >= OPT["wo0"]:
                    assert nkv[0] == 16
                    while free and len(K2.slots6) < 8:
                        j = len(K2.slots6); K2.slots6.append(free.pop(0))
                        if h < 6 or OPT["wo6"]:
                            dmaq.extend([lambda j=j, q=q: K2.wo_piece(j >> 1, (j & 1) * 2 + q) for q in range(2)])
                            K2.done6 = j + 1
            elif OPT["fuse"]:
                if h == 4: K2.loads()
                if h == 5: K2.scalars()
                if h == 6:
                    assert len(free) >= 8, free
                    its = K2.wo_items(free[:8])
                    K2.mslot = free[8]
                    if OPT["fuse"] < 3: dmaq.extend(its)
            if OPT["wopf"] and h == OPT["wopf"] - 1:
                A.salu("s_load_dwordx2 s[60:61], s[0:1], 32")
                A.salu("s_load_dwordx2 s[62:63], s[0:1], 72")
                if OPT["xm"]:
                    A.salu(f"s_lshr_b32 s3, s2, 3")
                    A.salu(f"s_lshl_b32 s3, s3, 3")
                    A.salu(f"s_add_u32 s3, s3, s{sW}")
                    A.salu(f"s_mul_i32 s3, s3, {16*1152}")
                    A.salu(f"s_and_b32 s{sT}, s2, 1")
                    A.salu(f"s_lshl_b32 s{sT}, s{sT}, 9")
                    A.salu(f"s_add_u32 s3, s3, s{sT}")
                    V(f"v_mbcnt_lo_u32_b32 v{T6}, -1, 0", w={T6})
                    V(f"v_mbcnt_hi_u32_b32 v{T6}, -1, v{T6}", w={T6}, r={T6})
                    V(f"v_lshrrev_b32 v{T7}, 2, v{T6}", w={T7}, r={T6})
                    V(f"v_mul_u32_u24 v{T7}, 1152, v{T7}", w={T7}, r={T7})
                    V(f"v_and_b32 v{T6}, 3, v{T6}", w={T6}, r={T6})
                    V(f"v_lshl_add_u32 v{T6}, v{T6}, 7, v{T7}", w={T6}, r={T6, T7})
                else:
                    if OPT["wox"]:
                        A.salu(f"s_lshr_b32 s3, s2, 5")
                        A.salu(f"s_lshl_b32 s3, s3, 4")
                        A.salu(f"s_bfe_u32 s{sT}, s2, 0x20003")
                        A.salu(f"s_add_u32 s3, s3, s{sT}")
                    else:
                        A.salu(f"s_lshl_b32 s3, s{sB}, 4")
                        A.salu(f"s_add_u32 s3, s3, s{sKVH}")
                    A.salu(f"s_mul_i32 s3, s3, 288")
                    A.salu(f"s_lshl_b32 s{sT}, s{sW}, 6")
                    A.salu(f"s_min_u32 s{sT}, s{sT}, 224")
                    A.salu(f"s_add_u32 s3, s3, s{sT}")
                    A.salu(f"s_lshl_b32 s3, s3, 7")
                    V(f"v_mbcnt_lo_u32_b32 v{T7}, -1, 0", w={T7})
                    V(f"v_mbcnt_hi_u32_b32 v{T7}, -1, v{T7}", w={T7}, r={T7})
                    V(f"v_lshlrev_b32 v{T7}, 7, v{T7}", w={T7}, r={T7})
                A.salu("s_waitcnt lgkmcnt(0)")
                A.salu(f"s_cmp_eq_u32 s{sBLK}, 0")
                A.salu("s_cselect_b32 s60, s60, s62")
                A.salu("s_cselect_b32 s61, s61, s63")
                A.salu("s_and_b32 s61, s61, 0xffff")
                A.salu(f"s_mov_b32 s62, {4096*576*2}")
                A.salu("s_mov_b32 s63, 0x00020000")
                if OPT["xm"]:
                    A.salu("s_mov_b32 exec_lo, 0x88888888")
                    A.salu("s_mov_b32 exec_hi, 0x88888888")
                    A.vmem(f"buffer_load_dword v{T7}, v{T6}, s[60:63], s3 offen offset:128", w={T7}, r={T6})
                    A.salu("s_mov_b64 exec, -1")
                TA_ = T6 if OPT["xm"] else T7
                A.vmem(f"buffer_load_dword v{T7}, v{TA_}, s[60:63], s3 offen", w={T7}, r={TA_})
        if n + 4 < len(mf): issue_read(n + 4)
        for it in plan[i]: it()
        gap += 1
        if dmaq and gap >= OPT["dmagap"]:
            dmaq.pop(0)(); gap = 0
        if i == 15:
            if kind == "qk" and h >= 1: check(h - 1)
            if ph == ("pv", 6): check(7)
    assert not dmaq
    PF.stamp("pv7")
    V(f"v_mov_b32 v{T0}, v{LSUM}", w={T0}, r={LSUM})
    V(f"v_permlane32_swap_b32 v{T0}, v{LSUM}", w={T0, LSUM}, r={T0, LSUM}, kind="perm")
    V(f"v_add_f32 v{T0}, v{T0}, v{LSUM}", w={T0}, r={T0, LSUM})
    V(f"v_rcp_f32 v{T0}, v{T0}", w={T0}, r={T0}, kind="trans")
    A.salu(f"s_cmp_eq_u32 s{sRT}, 3")
    A.salu("s_cbranch_scc0 K1_NOMASK")
    A.salu("s_mov_b32 exec_lo, 0xffff")
    A.salu("s_mov_b32 exec_hi, 0xffff")
    A.label("K1_NOMASK")
    for f in range(8):
        b0 = O + 8 * f
        for i in range(8):
            V(f"v_mul_f32 v{b0+i}, v{T0}, v{b0+i}", w={b0 + i}, r={T0, b0 + i})
        d = P + 4 * f
        for q in range(4):
            V(f"v_cvt_pk_bf16_f32 v{d+q}, v{b0+2*q}, v{b0+2*q+1}", w={d + q}, r={b0 + 2 * q, b0 + 2 * q + 1})
        A.vmem(f"buffer_store_dwordx4 {vname(d,4)}, v{OST}, s[{SO}:{SO+3}], s{sOB} offen offset:{f*512}{' sc1' if OPT['fuse'] else ' nt' if OPT['ntst'] else ''}", r=vr(d, 4) | {OST}, storedata=vr(d, 4))
    if OPT["fuse"]:
        K2.body(PF, sBLK, sB, sKVH)
    PF.dump(24, sW, 0)
    A.label("K1_END")
    A.salu("s_endpgm")
    for h in range(1, 8):
        A.label(f"K1_SLOW{h}")
        A.flush_hazards()
        sb = SB(h)
        for it in max_items([sb + i for i in range(32)], True, True): it()
        V(f"v_max_f32 v{MX}, 0, v{MX}", w={MX}, r={MX})
        V(f"v_sub_f32 v{MX2}, 0, v{MX}", w={MX2}, r={MX})
        V(f"v_exp_f32 v{MX2}, v{MX2}", w={MX2}, r={MX2}, kind="trans")
        for i in range(64):
            V(f"v_mul_f32 v{O+i}, v{MX2}, v{O+i}", w={O + i}, r={MX2, O + i})
        V(f"v_mul_f32 v{LSUM}, v{MX2}, v{LSUM}", w={LSUM}, r={MX2, LSUM})
        for i in range(16):
            V(f"v_sub_f32 v{NEGM+i}, v{NEGM+i}, v{MX}", w={NEGM + i}, r={NEGM + i, MX})
        if h < 7:
            s2 = SB(h + 1)
            for i in range(32):
                V(f"v_sub_f32 v{s2+i}, v{s2+i}, v{MX}", w={s2 + i}, r={s2 + i, MX})
        for it in sm_items(h, 0, 32, True): it()
        V(f"v_add_f32 v{SUMA}, v{SUMA}, v{SUMB}", w={SUMA}, r={SUMA, SUMB})
        A.flush_hazards()
        A.salu(f"s_branch K1_BACK{h}")

class K2Fused:
    def __init__(self, A, sW, SO, WOFF):
        self.A = A; self.sW = sW; self.SO = SO; self.WOFF = WOFF
        self.SWO, self.SOUT, self.SDBG = 28, 32, 20
        self.sBLK, self.sTT, self.sMT, self.sNT = 16, 17, 18, 19
        self.sWL, self.sWB, self.sO0, self.sO1, self.sT = 49, 50, 8, 9, 52
        self.sP0, self.sP1 = 10, 11
        self.last_vm = {}
    def loads(self):
        A = self.A
        A.salu("s_load_dwordx2 s[8:9], s[0:1], 32")
        A.salu("s_load_dwordx2 s[10:11], s[0:1], 72")
        A.salu("s_load_dwordx2 s[12:13], s[0:1], 80")
        A.salu("s_load_dwordx2 s[14:15], s[0:1], 88")
    def scalars(self):
        A = self.A; sW = self.sW
        sBLK, sTT, sMT, sNT = self.sBLK, self.sTT, self.sMT, self.sNT
        A.salu("s_waitcnt lgkmcnt(0)")
        if OPT["xm"]:
            A.salu("s_bitcmp1_b32 s2, 2")
            A.salu(f"s_cselect_b32 s{sBLK}, 1, 0")
            A.salu("s_cselect_b32 s8, s10, s8")
            A.salu("s_cselect_b32 s9, s11, s9")
            srd(A, self.SWO, 8, 4096 * 576 * 2)
            srd(A, self.SOUT, 12, 896 * 1152 * 2)
            srd(A, self.SDBG, 14, 256)
            A.salu("s_lshr_b32 s3, s2, 3")
            A.salu("s_and_b32 s12, s2, 1")
            A.salu(f"s_lshr_b32 s{sMT}, s3, 2")
            A.salu(f"s_and_b32 s{sNT}, s3, 3")
            A.salu("s_mul_i32 s13, s12, 5")
            A.salu(f"s_add_u32 s{sNT}, s{sNT}, s13")
            A.salu("s_lshl_b32 s13, s12, 2")
            A.salu("s_add_u32 s13, s13, s3")
            A.salu("s_sub_u32 s13, s13, 28")
            A.salu("s_cmp_ge_u32 s3, 28")
            A.salu(f"s_cselect_b32 s{sMT}, s13, s{sMT}")
            A.salu(f"s_cselect_b32 s{sNT}, 4, s{sNT}")
            A.salu(f"s_cmp_eq_u32 s{sMT}, 7")
            A.salu(f"s_cselect_b32 s{sTT}, 255, 0")
            A.salu(f"s_min_u32 s{sMT}, s{sMT}, 6")
            A.salu("s_bfe_u32 s13, s2, 0x10001")
            A.salu("s_mul_i32 s13, s13, 7")
            A.salu(f"s_add_u32 s{sMT}, s{sMT}, s13")
        else:
            A.salu("s_and_b32 s3, s2, 7")
            A.salu("s_lshl_b32 s3, s3, 5")
            A.salu(f"s_lshr_b32 s{sTT}, s2, 3")
            A.salu(f"s_add_u32 s{sTT}, s3, s{sTT}")
            A.salu(f"s_min_u32 s3, s{sTT}, 251")
            A.salu("s_cmp_ge_u32 s3, 126")
            A.salu(f"s_cselect_b32 s{sBLK}, 1, 0")
            A.salu("s_cselect_b32 s8, s10, s8")
            A.salu("s_cselect_b32 s9, s11, s9")
            srd(A, self.SWO, 8, 4096 * 576 * 2)
            srd(A, self.SOUT, 12, 896 * 1152 * 2)
            srd(A, self.SDBG, 14, 256)
            A.salu(f"s_mul_i32 s12, s{sBLK}, 126")
            A.salu("s_sub_u32 s3, s3, s12")
            A.salu("s_mul_i32 s12, s3, 57")
            A.salu(f"s_lshr_b32 s{sMT}, s12, 9")
            A.salu(f"s_mul_i32 s12, s{sMT}, 9")
            A.salu(f"s_sub_u32 s{sNT}, s3, s12")
        A.salu(f"s_mul_i32 s{self.sWB}, s{sW}, {(32 if OPT['fuse'] == 5 else 512)*1152}")
        A.salu(f"s_lshl_b32 s12, s{sNT}, 7")
        A.salu(f"s_add_u32 s{self.sWB}, s{self.sWB}, s12")
        A.salu(f"s_mul_i32 s{self.sO0}, s{sBLK}, {O_BLK}")
        A.salu(f"s_lshl_b32 s12, s{sMT}, 19")
        A.salu(f"s_add_u32 s{self.sO0}, s{self.sO0}, s12")
        A.salu(f"s_lshl_b32 s12, s{sW}, {10 if OPT['fuse'] == 5 else 14}")
        A.salu(f"s_add_u32 s{self.sO0}, s{self.sO0}, s12")
        A.salu(f"s_add_u32 s{self.sO1}, s{self.sO0}, {2*131072}")
        if OPT["ntf"]:
            A.salu(f"s_lshl_b32 s12, s{sBLK}, 6")
            if not OPT["dc"]: A.salu("s_add_u32 s12, s12, 128")
        else:
            A.salu(f"s_lshl_b32 s12, s{sBLK}, 7")
            A.salu(f"s_lshr_b32 s13, s{sW}, 1")
            A.salu("s_lshl_b32 s13, s13, 2")
            A.salu("s_add_u32 s12, s12, s13")
        sh = 2 if OPT["ntf"] else 4
        A.salu(f"s_mul_i32 s13, s{sMT}, 148")
        A.salu(f"s_lshr_b32 s{self.sP0}, s13, 8")
        A.salu(f"s_lshl_b32 s{self.sP0}, s{self.sP0}, {sh}")
        A.salu(f"s_add_u32 s{self.sP0}, s{self.sP0}, s12")
        A.salu("s_add_u32 s13, s13, 111")
        A.salu(f"s_lshr_b32 s{self.sP1}, s13, 8")
        A.salu(f"s_lshl_b32 s{self.sP1}, s{self.sP1}, {sh}")
        A.salu(f"s_add_u32 s{self.sP1}, s{self.sP1}, s12")
    def addr_items(self):
        V = self.A.valu; W = self.WOFF
        L, T1, T2, T4 = W + 4, W + 5, W + 6, W + 7
        return [
            lambda: V(f"v_mbcnt_lo_u32_b32 v{L}, -1, 0", w={L}),
            lambda: V(f"v_mbcnt_hi_u32_b32 v{L}, -1, v{L}", w={L}, r={L}),
            lambda: V(f"v_lshrrev_b32 v{T1}, 3, v{L}", w={T1}, r={L}),
            lambda: V(f"v_mul_u32_u24 v{T1}, 1152, v{T1}", w={T1}, r={T1}),
            lambda: V(f"v_bfe_u32 v{T2}, v{L}, 4, 1", w={T2}, r={L}),
            lambda: V(f"v_lshlrev_b32 v{T2}, 2, v{T2}", w={T2}, r={T2}),
            lambda: V(f"v_and_b32 v{T4}, 7, v{L}", w={T4}, r={L}),
            lambda: V(f"v_xor_b32 v{T4}, v{T4}, v{T2}", w={T4}, r={T4, T2}),
            lambda: V(f"v_lshl_add_u32 v{W}, v{T4}, 4, v{T1}", w={W}, r={T4, T1}),
        ] + [lambda i=i: V(f"v_add_u32 v{W+i}, {9216*i}, v{W}", w={W + i}, r={W}) for i in range(1, 4)]
    def addr6(self):
        V = self.A.valu
        W, L, T1 = 6, 13, 12
        V(f"v_mbcnt_lo_u32_b32 v{L}, -1, 0", w={L})
        V(f"v_mbcnt_hi_u32_b32 v{L}, -1, v{L}", w={L}, r={L})
        V(f"v_lshrrev_b32 v{T1}, 3, v{L}", w={T1}, r={L})
        V(f"v_mul_u32_u24 v{T1}, 1152, v{T1}", w={T1}, r={T1})
        V(f"v_and_b32 v{W}, 7, v{L}", w={W}, r={L})
        V(f"v_bfe_u32 v{L}, v{L}, 4, 1", w={L}, r={L})
        V(f"v_lshlrev_b32 v{L}, 2, v{L}", w={L}, r={L})
        V(f"v_xor_b32 v{W}, v{W}, v{L}", w={W}, r={W, L})
        V(f"v_lshl_add_u32 v{W}, v{W}, 4, v{T1}", w={W}, r={W, T1})
        self.A.salu(f"s_lshl_b32 s{self.sWL}, s{self.sW}, 11")
        self.slots6 = []
    def wo_piece(self, u, i):
        A = self.A; W = self.WOFF; S = self.SWO
        if OPT["fuse"] == 6:
            A.salu(f"s_add_u32 s{self.sT}, s{self.sWB}, {u * 32 * 1152 + i * 9216}")
            A.salu(f"s_add_u32 m0, s{self.sWL}, {self.slots6[2 * (u % OPT['ring']) + (i >> 1)] * SLOT + (i & 1) * 1024}", m0w=True)
            return A.vmem(f"buffer_load_dwordx4 v6, s[{S}:{S+3}], s{self.sT} offen{' nt' if OPT['ntwo'] else ''} lds", kind="dma", r={6}, m0r=True)
        A.salu(f"s_add_u32 s{self.sT}, s{self.sWB}, {u * 32 * 1152}")
        A.salu(f"s_add_u32 m0, s{self.sWL}, {(u % 4) * 4096 + i * 1024}", m0w=True)
        A.vmem(f"buffer_load_dwordx4 v{W+i}, s[{S}:{S+3}], s{self.sT} offen{' nt' if OPT['ntwo'] else ''} lds", kind="dma", r={W + i}, m0r=True)
    def wo_items(self, slots):
        A = self.A
        tab = sum(s << (4 * w) for w, s in enumerate(slots))
        A.salu(f"s_lshl_b32 s3, s{self.sW}, 2")
        A.salu(f"s_lshr_b32 s3, {tab:#x}, s3")
        A.salu("s_and_b32 s3, s3, 15")
        A.salu(f"s_lshl_b32 s{self.sWL}, s3, 14")
        return [lambda u=u, i=i: self.wo_piece(u, i) for u in range(4) for i in range(4)]
    def dyn(self, PF, L, OOFF, BA, AF, OF, ACC):
        A = self.A; V = A.valu; sW = self.sW; SO = self.SO; SDBG = self.SDBG; W = self.WOFF; S = self.SWO
        T1, T2, T3, T4 = 1, 2, 3, 4
        PD = 8
        vPA, vMA, vT, vM = W + 4, W + 5, W + 6, W + 7
        sPM, sCNT, sDONE, sJ, sA, sB_ = 60, 62, 63, 12, 13, 14
        V(f"v_mov_b32 v{vPA}, s{self.sP1}", w={vPA})
        V(f"v_mov_b32 v{T4}, s{self.sP0}", w={T4})
        V(f"v_cmp_gt_u32 vcc, 16, v{L}", r={L}, sw={"vcc"})
        V(f"v_cndmask_b32 v{vPA}, v{vPA}, v{T4}, vcc", w={vPA}, r={vPA, T4}, sr={"vcc"})
        V(f"v_and_b32 v{T4}, 15, v{L}", w={T4}, r={L})
        V(f"v_add_u32 v{vPA}, v{T4}, v{vPA}", w={vPA}, r={vPA, T4})
        V(f"v_mov_b32 v{vMA}, {self.mslot * SLOT}", w={vMA})
        V(f"v_mov_b32 v{vT}, 0", w={vT})
        A.ds(f"ds_write_b32 v{vMA}, v{vT}", r={vMA, vT})
        A.salu(f"s_cmp_eq_u32 s{sW}, 0")
        A.salu(f"s_cselect_b32 s{sPM}, -1, 0")
        A.salu(f"s_mov_b32 s{sPM+1}, 0")
        A.salu(f"s_mov_b32 s{sCNT}, 0x40000")
        A.salu(f"s_mov_b32 s{sDONE}, 0")
        A.salu(f"s_mov_b32 s15, 0")
        A.waitcnt(vm=0, lgkm=0); A.vm_done = A.nvm; A.ds_done = A.nds
        PF.stamp("st")
        A.barrier()
        A.salu("s_cbranch_scc0 K1_NOFLAG")
        A.salu("s_mov_b64 exec, 1")
        A.salu(f"buffer_atomic_add v{T2}, v{T1}, s[{SDBG}:{SDBG+3}], 0 offen sc1")
        A.salu("s_mov_b64 exec, -1")
        A.label("K1_NOFLAG")
        A.salu(f"s_cmp_ge_u32 s{self.sTT}, 252")
        A.salu("s_cbranch_scc1 K1_END")
        def poll(r, counted=True):
            A.salu(f"s_mov_b64 exec, s[{sPM}:{sPM+1}]")
            txt = f"buffer_load_ubyte v{PD+r}, v{vPA}, s[{SDBG}:{SDBG+3}], 0 offen sc1"
            if counted: A.vmem(txt, w={PD + r}, r={vPA})
            else: A.salu(txt)
            A.salu("s_mov_b64 exec, -1")
        def consume(r):
            A.salu(f"s_mov_b64 exec, s[{sPM}:{sPM+1}]")
            V(f"v_cmp_ne_u32 vcc, 0, v{PD+r}", r={PD + r}, sw={"vcc"})
            A.salu("s_nop 1")
            A.salu(f"s_lshr_b32 s{sA}, vcc_lo, 16")
            A.salu(f"s_and_b32 s{sA}, s{sA}, vcc_lo")
            A.salu(f"s_or_b32 s15, s15, s{sA}")
            V(f"v_mov_b32 v{vT}, s15", w={vT})
            A.ds(f"ds_write_b32 v{vMA}, v{vT}", r={vMA, vT})
            A.salu("s_mov_b64 exec, -1")
        def pick(k):
            A.label(f"K1_PK{k}")
            A.ds(f"ds_read_b32 v{vM}, v{vMA}", w={vM}, r={vMA})
            A.waitcnt(lgkm=0); A.ds_done = A.nds
            A._emit(I(f"v_readfirstlane_b32 s{sA}, v{vM}", "rdlane", r={vM}, sw={sA}))
            A.salu(f"s_andn2_b32 s{sA}, s{sA}, s{sDONE}", sr={sA})
            A.salu(f"s_cbranch_scc1 K1_PG{k}")
            poll(k % 4, False)
            A.salu("s_waitcnt vmcnt(0)")
            consume(k % 4)
            A.salu(f"s_sleep {OPT['slp']}")
            A.salu(f"s_sub_u32 s{sCNT}, s{sCNT}, 1")
            A.salu(f"s_cmp_lg_u32 s{sCNT}, 0")
            A.salu(f"s_cbranch_scc1 K1_PK{k}")
            A.salu(f"s_mov_b32 s{sCNT}, 1")
            A.salu(f"s_andn2_b32 s{sA}, 0xffff, s{sDONE}")
            A.label(f"K1_PG{k}")
            A.salu(f"s_ff1_i32_b32 s{sJ}, s{sA}")
            A.salu(f"s_bitset1_b32 s{sDONE}, s{sJ}")
        NU = 16; DEPTH = 4
        last_vm = {}
        def issue(u):
            slot = u % DEPTH
            pick(u)
            if self.first: PF.stamp("go"); self.first = False
            if 4 <= u: poll(u % 4)
            A.salu(f"s_mul_i32 s{sA}, s{sJ}, {256*1152}")
            A.salu(f"s_add_u32 s{sA}, s{sA}, s{self.sWB}")
            for i in range(4):
                A.salu(f"s_add_u32 m0, s{self.sWL}, {slot * 4096 + i * 1024}", m0w=True)
                A.vmem(f"buffer_load_dwordx4 v{W+i}, s[{S}:{S+3}], s{sA} offen{' nt' if OPT['ntwo'] else ''} lds", kind="dma", r={W + i}, m0r=True)
            A.salu(f"s_lshl_b32 s{sJ}, s{sJ}, 13")
            A.salu(f"s_add_u32 s{sA}, s{sJ}, s{self.sO0}")
            A.salu(f"s_add_u32 s{sB_}, s{sJ}, s{self.sO1}")
            for ks in range(2):
                for tm in range(2):
                    d = OF + slot * 16 + (ks * 2 + tm) * 4
                    k = A.vmem(f"buffer_load_dwordx4 {vname(d,4)}, v{OOFF}, s[{SO}:{SO+3}], s{sA if tm == 0 else sB_} offen offset:{ks*512} sc1", w=vr(d, 4), r={OOFF})
            last_vm[u] = k
        def dsreads(u):
            slot = u % DEPTH
            ab = AF + (u % 2) * 16
            for ks in range(2):
                for tn in range(2):
                    for j in range(2):
                        k = A.ds_read_tr(ab + (ks * 2 + tn) * 4 + 2 * j, BA + tn, slot * 4096 + (16 * ks + 8 * j) * 128)
            return k
        self.first = True
        for u in range(DEPTH): issue(u)
        A.wait_vm(last_vm[0])
        pend = dsreads(0)
        for u in range(NU):
            A.wait_ds(pend)
            if u + 1 < NU:
                A.wait_vm(last_vm[u + 1])
                if u + 1 >= 4 and u + DEPTH < NU: consume((u + 1) % 4)
                pend = dsreads(u + 1)
            ab = AF + (u % 2) * 16
            ob = OF + (u % DEPTH) * 16
            for ks in range(2):
                for tn in range(2):
                    for tm in range(2):
                        c = "zero" if (u == 0 and ks == 0) else None
                        A.mfma(ACC + (tn * 2 + tm) * 16, ab + (ks * 2 + tn) * 4, ob + (ks * 2 + tm) * 4, c)
            if u + DEPTH < NU: issue(u + DEPTH)
            if u in (0, 7, 15): PF.stamp(f"u{u}")
    def body(self, PF, sBLK1, sB1, sKVH1):
        A = self.A; V = A.valu; sW = self.sW; SO = self.SO
        T0, T1, T2, T3, T4, T5, T6, T7 = 0, 1, 2, 3, 4, 5, 9, 8
        WOFF = self.WOFF; OOFF = 12; BA = 13; RED = 15; AF = 16; OF = 96; ACC = 160
        sBLK, sMT, sNT = self.sBLK, self.sMT, self.sNT
        SOUT, SDBG = self.SOUT, self.SDBG
        sWL, sO0, sO1, sT = self.sWL, self.sO0, self.sO1, self.sT
        L = T0
        A.salu("s_mov_b64 exec, -1")
        V(f"v_mbcnt_lo_u32_b32 v{L}, -1, 0", w={L})
        V(f"v_mbcnt_hi_u32_b32 v{L}, -1, v{L}", w={L}, r={L})
        V(f"v_bfe_u32 v{T2}, v{L}, 4, 1", w={T2}, r={L})
        V(f"v_lshrrev_b32 v{T1}, 5, v{L}", w={T1}, r={L})
        V(f"v_bfe_u32 v{T3}, v{L}, 2, 2", w={T3}, r={L})
        V(f"v_and_b32 v{T4}, 3, v{L}", w={T4}, r={L})
        V(f"v_lshlrev_b32 v{T6}, 17, v{T2}", w={T6}, r={T2})
        V(f"v_lshl_add_u32 v{T6}, v{T1}, 8, v{T6}", w={T6}, r={T1, T6})
        V(f"v_and_b32 v{T7}, 15, v{L}", w={T7}, r={L})
        V(f"v_lshl_add_u32 v{OOFF}, v{T7}, 4, v{T6}", w={OOFF}, r={T7, T6})
        V(f"v_lshl_add_u32 v{T6}, v{T1}, 2, v{T3}", w={T6}, r={T1, T3})
        V(f"v_lshlrev_b32 v{T6}, 7, v{T6}", w={T6}, r={T6})
        V(f"v_lshrrev_b32 v{T7}, 1, v{T4}", w={T7}, r={T4})
        V(f"v_lshl_add_u32 v{T7}, v{T2}, 1, v{T7}", w={T7}, r={T2, T7})
        V(f"v_lshrrev_b32 v{T5}, 1, v{T3}", w={T5}, r={T3})
        V(f"v_lshlrev_b32 v{T5}, 2, v{T5}", w={T5}, r={T5})
        V(f"v_xor_b32 v{T7}, v{T7}, v{T5}", w={T7}, r={T7, T5})
        V(f"v_lshl_add_u32 v{T6}, v{T7}, 4, v{T6}", w={T6}, r={T7, T6})
        V(f"v_and_b32 v{T7}, 1, v{T4}", w={T7}, r={T4})
        V(f"v_lshl_add_u32 v{T6}, v{T7}, 3, v{T6}", w={T6}, r={T7, T6})
        V(f"v_add_u32 v{BA}, s{sWL}, v{T6}", w={BA}, r={T6})
        V(f"v_xor_b32 v{BA+1}, 64, v{BA}", w={BA + 1}, r={BA})
        XB = 6 if OPT["xb"] else 64
        def xb_addr():
            for q in range(1, 3):
                for tn in range(2):
                    V(f"v_add_u32 v{XB+2*q+tn}, {q*65536}, v{BA+tn}", w={XB + 2 * q + tn}, r={BA + tn})
        if OPT["fuse"] == 6 and not OPT["xb"]: xb_addr()
        V(f"v_lshlrev_b32 v{RED}, 4, v{L}", w={RED}, r={L})
        if OPT["ntf"]:
            A.salu(f"s_lshl_b32 s12, s{sBLK1}, 6")
            A.salu(f"s_lshl_b32 s13, s{sB1}, 2")
            A.salu("s_add_u32 s12, s12, s13")
            A.salu("s_mov_b32 s13, 1")
        else:
            A.salu(f"s_lshl_b32 s12, s{sBLK1}, 7")
            A.salu(f"s_lshl_b32 s13, s{sB1}, 4")
            A.salu("s_add_u32 s12, s12, s13")
            A.salu(f"s_and_b32 s13, s{sKVH1}, 12")
            A.salu("s_add_u32 s12, s12, s13")
            A.salu(f"s_and_b32 s13, s{sKVH1}, 3")
            A.salu("s_lshl_b32 s13, s13, 3")
            A.salu("s_lshl_b32 s13, 1, s13")
        V(f"v_mov_b32 v{T1}, s12", w={T1})
        V(f"v_mov_b32 v{T2}, s13", w={T2})
        if OPT["ntf"]:
            V(f"v_mov_b32 v{T3}, s{self.sP1}", w={T3})
            V(f"v_writelane_b32 v{T3}, s{self.sP0}, 0", w={T3}, r={T3})
            V(f"v_mov_b32 v{T5}, 1", w={T5})
            A.salu(f"s_mov_b32 s14, {16 if OPT['dc'] else 1}")
        elif OPT["fuse"] == 5:
            self.dyn(PF, L, OOFF, BA, AF, OF, ACC)
        elif OPT["fuse"] == 1:
            V(f"v_mov_b32 v{T3}, s{self.sP1}", w={T3})
            V(f"v_writelane_b32 v{T3}, s{self.sP0}, 0", w={T3}, r={T3})
            A.salu(f"s_and_b32 s14, s{sW}, 1")
            A.salu("s_lshl_b32 s14, s14, 4")
            A.salu("s_lshl_b32 s14, 0x101, s14")
        else:
            V(f"v_mov_b32 v{T3}, s{self.sP1}", w={T3})
            V(f"v_mov_b32 v{T4}, s{self.sP0}", w={T4})
            V(f"v_cmp_gt_u32 vcc, 4, v{L}", r={L}, sw={"vcc"})
            V(f"v_cndmask_b32 v{T3}, v{T3}, v{T4}, vcc", w={T3}, r={T3, T4}, sr={"vcc"})
            V(f"v_and_b32 v{T4}, 3, v{L}", w={T4}, r={L})
            V(f"v_lshl_add_u32 v{T3}, v{T4}, 2, v{T3}", w={T3}, r={T3, T4})
            A.salu("s_mov_b32 s14, 0x01010101")
        if OPT["fuse"] != 5:
            PRE = [224, 240, 48, 72][:OPT["pre"]]
            if OPT["pr2"]: PRE = [AF, AF + 16, 224, 240, 48, 72][:OPT["pr2"]]
            if OPT["pr2"] and OPT["xb"]:
                PRE = ([OF + 32, OF + 48][2 - OPT["pro"]:] + [AF, AF + 16, 224, 240, 48, 64, 80])[:OPT["pr2"]]
            wo_vm = {}
            def dsreads(u, ab=None):
                slot = u % OPT["ring"]
                if ab is None: ab = AF + (u % 2) * 16
                for ks in range(2):
                    for tn in range(2):
                        for j in range(2):
                            if OPT["fuse"] == 6:
                                o_ = self.slots6[2 * slot + ks] * SLOT + j * 1024
                                k = A.ds_read_tr(ab + (ks * 2 + tn) * 4 + 2 * j, (BA if o_ < 65536 else XB + 2 * (o_ >> 16)) + tn, o_ & 65535)
                            else:
                                k = A.ds_read_tr(ab + (ks * 2 + tn) * 4 + 2 * j, BA + tn, slot * 4096 + (16 * ks + 8 * j) * 128)
                return k
            A.salu("s_mov_b32 s15, 0x40000")
            A.waitcnt(vm=0); A.vm_done = A.nvm
            PF.stamp("st")
            A.barrier()
            A.salu(f"s_cmp_eq_u32 s{sW}, 0")
            A.salu("s_cbranch_scc0 K1_NOFLAG")
            A.salu("s_mov_b64 exec, 1")
            if OPT["dc"]:
                A.salu(f"buffer_atomic_add v{T2}, v{T1}, s[{SDBG}:{SDBG+3}], 0 offen sc1")
            elif OPT["ea"]:
                A.salu(f"buffer_atomic_add v{T2}, v{T1}, s[{SDBG}:{SDBG+3}], 0 offen sc0 sc1")
                A.salu(f"s_cmp_ge_u32 s{self.sTT}, 252")
                A.salu("s_cbranch_scc0 K1_NOFLAG")
                A.salu("s_waitcnt vmcnt(0)")
                A.salu(f"v_cmp_eq_u32 vcc, 15, v{T2}")
                A.salu("s_nop 1")
                A.salu("s_cbranch_vccz K1_NOFLAG")
                A.salu(f"buffer_store_dword v{T5}, v{T1}, s[{SDBG}:{SDBG+3}], 0 offen offset:128 sc1")
                ea_base = A.nvm
            elif OPT["ntf"]:
                A.salu(f"buffer_atomic_add v{T2}, v{T1}, s[{SDBG}:{SDBG+3}], 0 offen sc0 sc1")
                A.salu("s_waitcnt vmcnt(0)")
                A.salu(f"v_cmp_eq_u32 vcc, 15, v{T2}")
                A.salu("s_nop 1")
                A.salu("s_cbranch_vccz K1_NOFLAG")
                A.salu(f"buffer_store_dword v{T5}, v{T1}, s[{SDBG}:{SDBG+3}], 0 offen offset:128 sc1")
            elif OPT["exp"] != 1: A.salu(f"buffer_atomic_add v{T2}, v{T1}, s[{SDBG}:{SDBG+3}], 0 offen sc1")
            A.label("K1_NOFLAG")
            A.salu(f"s_cmp_ge_u32 s{self.sTT}, 252")
            A.salu("s_cbranch_scc1 K1_END")
            if OPT["exp"]:
                for _ in range(3): A.salu("s_sleep 64")
                A.salu("s_branch K1_GO")
            if OPT["fuse"] == 6:
                A.salu("s_mov_b64 exec, -1")
                if OPT["xb"]: xb_addr()
                if OPT["fb"]:
                    A.salu(f"s_cmp_eq_u32 s{sW}, 0")
                    A.salu("s_cbranch_scc0 K1_FB0")
                    A.salu("s_barrier")
                    A.label("K1_FB0")
                self.slots6 += [s_ for s_ in range(NSLOT) if s_ not in self.slots6]
                for j in range(self.done6, 2 * OPT["ring"]):
                    for q in range(2): wo_vm[j >> 1] = self.wo_piece(j >> 1, (j & 1) * 2 + q)
                if OPT["pr2"]:
                    A.flush_hazards()
                    for u0 in range(0, len(PRE), OPT["prg"]):
                        us = range(u0, min(u0 + OPT["prg"], len(PRE)))
                        for u in us:
                            if u in wo_vm: A.wait_vm(wo_vm[u])
                            dsreads(u, PRE[u])
                            A.wait_ds_all()
                        last_round = u0 + OPT["prg"] >= len(PRE)
                        if OPT["fb"] and u0 == 0:
                            us = list(us)
                            for u in us[:OPT["fb"] - 1]:
                                for i in range(4): wo_vm[u + OPT["ring"]] = self.wo_piece(u + OPT["ring"], i)
                            us = us[OPT["fb"] - 1:]
                            A.salu(f"s_cmp_eq_u32 s{sW}, 0")
                            A.salu("s_cbranch_scc1 K1_FB1")
                            A.salu("s_barrier")
                            A.label("K1_FB1")
                        if OPT["ep"] and last_round:
                            A.salu(f"s_cmp_eq_u32 s{sW}, {OPT['pw']}")
                            A.salu("s_cbranch_scc0 K1_EP")
                            A.salu("s_mov_b64 exec, 3")
                            A.salu(f"buffer_load_dword v{T4}, v{T3}, s[{SDBG}:{SDBG+3}], 0 offen sc1")
                            A.salu("s_mov_b64 exec, -1")
                            A.label("K1_EP")
                            ep_base = A.nvm
                        for u in us:
                            if u + OPT["ring"] >= 16: continue
                            for i in range(4): wo_vm[u + OPT["ring"]] = self.wo_piece(u + OPT["ring"], i)
                        if OPT["ea"] and u0 == 0:
                            A.salu(f"s_cmp_eq_u32 s{sW}, 0")
                            A.salu("s_cbranch_scc0 K1_EA")
                            A.salu("s_mov_b64 exec, 1")
                            A.salu(f"s_waitcnt vmcnt({A.nvm - ea_base})")
                            A.salu(f"v_cmp_eq_u32 vcc, 15, v{T2}")
                            A.salu("s_nop 1")
                            A.salu("s_cbranch_vccz K1_EA")
                            A.salu(f"buffer_store_dword v{T5}, v{T1}, s[{SDBG}:{SDBG+3}], 0 offen offset:128 sc1")
                            A.label("K1_EA")
                            A.salu("s_mov_b64 exec, -1")
                if OPT["pre0"]:
                    A.flush_hazards()
                    for u in range(len(PRE)):
                        dsreads(u, PRE[u])
                        A.wait_ds_all()
                    for u in range(4, 4 + len(PRE)):
                        for i in range(4): self.wo_piece(u, i)
            if OPT["fuse"] == 1:
                A.salu("s_mov_b64 exec, 3")
            else:
                A.salu(f"s_cmp_eq_u32 s{sW}, {OPT['pw']}")
                A.salu("s_cbranch_scc0 K1_GO" if not (OPT["fuse"] == 3 or (OPT["pre"] and not OPT["pre0"])) else "s_cbranch_scc0 K1_WO")
                A.salu("s_mov_b64 exec, 3" if OPT["ntf"] else "s_mov_b64 exec, 0xff")
            if OPT["ep"]:
                A.salu(f"s_waitcnt vmcnt({A.nvm - ep_base})")
                A.salu(f"v_and_b32 v{T4}, s14, v{T4}")
                A.salu(f"v_cmp_ne_u32 vcc, s14, v{T4}")
                A.salu("s_nop 1")
                A.salu("s_cbranch_vccz K1_GO")
            A.label("K1_POLL")
            A.salu(f"buffer_load_dword v{T4}, v{T3}, s[{SDBG}:{SDBG+3}], 0 offen sc1")
            A.salu("s_waitcnt vmcnt(0)")
            A.salu(f"v_and_b32 v{T4}, s14, v{T4}")
            A.salu(f"v_cmp_ne_u32 vcc, s14, v{T4}")
            A.salu("s_nop 1")
            A.salu("s_cbranch_vccz K1_GO")
            A.salu(f"s_sleep {OPT['slp']}")
            A.salu("s_sub_u32 s15, s15, 1")
            A.salu("s_cmp_lg_u32 s15, 0")
            A.salu("s_cbranch_scc1 K1_POLL")
            A.label("K1_GO")
            A.salu("s_mov_b64 exec, -1")
            if OPT["pre"] and not OPT["pre0"]:
                A.barrier()
                A.label("K1_WO")
                A.flush_hazards()
                for u in range(len(PRE)):
                    dsreads(u, PRE[u])
                    A.wait_ds_all()
                for u in range(4, 4 + len(PRE)):
                    for i in range(4): self.wo_piece(u, i)
                A.salu(f"s_cmp_eq_u32 s{sW}, 0")
                A.salu("s_cbranch_scc1 K1_GO2")
                A.barrier()
                A.label("K1_GO2")
            elif OPT["fuse"] == 3:
                A.barrier()
                A.label("K1_WO")
                for u in range(4):
                    for i in range(4): self.wo_piece(u, i)
                A.salu(f"s_cmp_eq_u32 s{sW}, 0")
                A.salu("s_cbranch_scc1 K1_GO2")
                A.barrier()
                A.label("K1_GO2")
            elif OPT["fuse"] > 1: A.barrier()
            PF.stamp("go")
            NU = 16; DEPTH = 4
            last_vm = {}
            def issue(u, wo=True):
                slot = u % DEPTH
                if wo:
                    for i in range(4): self.wo_piece(u, i)
                for ks in range(2):
                    for tm in range(2):
                        d = OF + slot * 16 + (ks * 2 + tm) * 4
                        off = (2 * u + ks) * 512
                        sb = sO0 if tm == 0 else sO1
                        if off >= 4096:
                            A.salu(f"s_add_u32 s{sT}, s{sb}, {off & ~4095}")
                            sb = sT
                        k = A.vmem(f"buffer_load_dwordx4 {vname(d,4)}, v{OOFF}, s[{SO}:{SO+3}], s{sb} offen offset:{off & 4095} sc1", w=vr(d, 4), r={OOFF})
                last_vm[u] = k
            if OPT["pr2"]:
                RG = OPT["ring"]; NP = len(PRE)
                KO = OPT["pro"]
                for u in range(DEPTH - KO): issue(u, False)
                pend = None
                for u in range(NU):
                    if pend is not None: A.wait_ds(pend)
                    if u + 1 < NU and u + 1 >= NP:
                        A.wait_vm(wo_vm[u + 1])
                        pend = dsreads(u + 1)
                    A.wait_vm(last_vm[u])
                    ab = AF + (u % 2) * 16 if u >= NP else PRE[u]
                    ob = OF + (u % DEPTH) * 16
                    for ks in range(2):
                        for tn in range(2):
                            for tm in range(2):
                                c = "zero" if (u == 0 and ks == 0) else None
                                A.mfma(ACC + (tn * 2 + tm) * 16, ab + (ks * 2 + tn) * 4, ob + (ks * 2 + tm) * 4, c)
                    if u >= NP and u + RG < NU:
                        for i in range(4): wo_vm[u + RG] = self.wo_piece(u + RG, i)
                    if u < KO: issue(DEPTH - KO + u, False)
                    if u + DEPTH < NU: issue(u + DEPTH, False)
                    if u in (0, 7, 15): PF.stamp(f"u{u}")
                NU = 0
            if OPT["lp"]:
                RG = OPT["ring"]
                OB = [OF, OF + 16, OF + 32, OF + 48, 224, 240][:RG]
                o_vm = {}; wo_vm.clear()
                def issue_o(u):
                    for ks in range(2):
                        for tm in range(2):
                            d = OB[u % RG] + (ks * 2 + tm) * 4
                            off = (2 * u + ks) * 512
                            sb = sO0 if tm == 0 else sO1
                            if off >= 4096:
                                A.salu(f"s_add_u32 s{sT}, s{sb}, {off & ~4095}")
                                sb = sT
                            o_vm[u] = A.vmem(f"buffer_load_dwordx4 {vname(d,4)}, v{OOFF}, s[{SO}:{SO+3}], s{sb} offen offset:{off & 4095} sc1", w=vr(d, 4), r={OOFF})
                wo_first = A.nvm - 1
                for u in range(RG): issue_o(u)
                pend = dsreads(0)
                for u in range(NU):
                    A.wait_ds(pend)
                    if u + RG < NU:
                        for i in range(4): wo_vm[u + RG] = self.wo_piece(u + RG, i)
                    if u + 1 < NU:
                        if u + 1 in wo_vm: A.wait_vm(wo_vm[u + 1])
                        elif u + 1 >= 3: A.wait_vm(wo_first)
                        pend = dsreads(u + 1)
                    A.wait_vm(o_vm[u])
                    ab = AF + (u % 2) * 16
                    ob = OB[u % RG]
                    for ks in range(2):
                        for tn in range(2):
                            for tm in range(2):
                                c = "zero" if (u == 0 and ks == 0) else None
                                A.mfma(ACC + (tn * 2 + tm) * 16, ab + (ks * 2 + tn) * 4, ob + (ks * 2 + tm) * 4, c)
                    if u + RG < NU: issue_o(u + RG)
                    if u in (0, 7, 15): PF.stamp(f"u{u}")
                NU = 0
            for u in range(DEPTH if NU else 0): issue(u, OPT["fuse"] == 4)
            if OPT["fuse"] in (3, 4): A.wait_vm(last_vm[0])
            NP = len(PRE)
            pend = dsreads(0) if NP == 0 and NU else None
            if NU: A.wait_vm(last_vm[0])
            for u in range(NU):
                if pend is not None: A.wait_ds(pend)
                if u + 1 < NU:
                    A.wait_vm(last_vm[u + 1])
                    pend = dsreads(u + 1) if u + 1 >= NP else None
                ab = AF + (u % 2) * 16 if u >= NP else PRE[u]
                ob = OF + (u % DEPTH) * 16
                for ks in range(2):
                    for tn in range(2):
                        for tm in range(2):
                            c = "zero" if (u == 0 and ks == 0) else None
                            A.mfma(ACC + (tn * 2 + tm) * 16, ab + (ks * 2 + tn) * 4, ob + (ks * 2 + tm) * 4, c)
                if u + DEPTH < NU: issue(u + DEPTH, u >= NP)
                if u in (0, 7, 15): PF.stamp(f"u{u}")
        R = OF
        if OPT["fuse"] == 6 and OPT["red"]:
            A.wait_ds_all()
            V(f"v_add_u32 v{T1}, s{sWL}, v{RED}", w={T1}, r={RED})
            V(f"v_add_u32 v{T2}, 0x10000, v{T1}", w={T2}, r={T1})
            V(f"v_add_u32 v{T3}, 0x20000, v{T1}", w={T3}, r={T1})
            for q in range(16):
                o_ = self.slots6[q >> 1] * SLOT + (q & 1) * 1024
                A.ds_write_b128([T1, T2, T3][o_ >> 16], ACC + 4 * q, o_ & 65535)
            tab = sum(s_ << (4 * w_) for w_, s_ in enumerate(self.slots6[:8]))
            A.salu(f"s_lshl_b32 s6, s{sW}, 2")
            A.salu(f"s_lshr_b32 s6, {tab:#x}, s6")
            A.salu("s_and_b32 s6, s6, 15")
            A.salu("s_lshl_b32 s6, s6, 14")
            V(f"v_add_u32 v{T4}, s6, v{RED}", w={T4}, r={RED})
            A.wait_ds_all()
            A.barrier()
            for ww in range(8):
                for q in range(2):
                    A.ds_read_b128(R + (ww * 2 + q) * 4, T4, ww * 2048 + q * 1024)
                if ww == 5:
                    A.wait_ds_all()
            A.wait_ds_all()
        else:
            A.wait_ds_all()
            A.barrier()
            A.salu(f"s_lshl_b32 s12, s{sW}, 14")
            V(f"v_add_u32 v{T1}, s12, v{RED}", w={T1}, r={RED})
            for q in range(16):
                A.ds_write_b128(T1, ACC + 4 * q, q * 1024)
            A.wait_ds_all()
            A.barrier()
            A.salu(f"s_lshl_b32 s6, s{sW}, 11")
            V(f"v_add_u32 v{T1}, s6, v{RED}", w={T1}, r={RED})
            V(f"v_add_u32 v{T2}, 0x10000, v{T1}", w={T2}, r={T1})
            for ww in range(8):
                for q in range(2):
                    A.ds_read_b128(R + (ww * 2 + q) * 4, T1 if ww < 4 else T2, (ww % 4) * 16384 + q * 1024)
                if ww == 5:
                    A.wait_ds_all()
            A.wait_ds_all()
        for ww in range(1, 8):
            for i in range(8):
                V(f"v_add_f32 v{R+i}, v{R+i}, v{R+ww*8+i}", w={R + i}, r={R + i, R + ww * 8 + i})
        for q in range(4):
            V(f"v_cvt_pk_bf16_f32 v{AF+q}, v{R+2*q}, v{R+2*q+1}", w={AF + q}, r={R + 2 * q, R + 2 * q + 1})
        A.salu(f"s_lshr_b32 s6, s{sW}, 1")
        A.salu("s_and_b32 s7, s6, 1")
        A.salu("s_lshr_b32 s6, s6, 1")
        A.salu(f"s_lshl_b32 s3, s{sMT}, 6")
        A.salu("s_lshl_b32 s7, s7, 5")
        A.salu("s_add_u32 s3, s3, s7")
        A.salu("s_mul_i32 s3, s3, 2304")
        A.salu(f"s_mul_i32 s7, s{sBLK}, 1152")
        A.salu("s_add_u32 s3, s3, s7")
        A.salu(f"s_lshl_b32 s7, s{sNT}, 7")
        A.salu("s_add_u32 s3, s3, s7")
        A.salu("s_lshl_b32 s7, s6, 6")
        A.salu("s_add_u32 s3, s3, s7")
        A.salu(f"s_and_b32 s7, s{sW}, 1")
        A.salu("s_lshl_b32 s7, s7, 5")
        A.salu("s_add_u32 s3, s3, s7")
        V(f"v_and_b32 v{T1}, 31, v{L}", w={T1}, r={L})
        V(f"v_mul_u32_u24 v{T1}, 2304, v{T1}", w={T1}, r={T1})
        V(f"v_lshrrev_b32 v{T2}, 5, v{L}", w={T2}, r={L})
        V(f"v_lshl_add_u32 v{T1}, v{T2}, 3, v{T1}", w={T1}, r={T2, T1})
        fl = ["", " sc1", " nt", " sc0 sc1"][OPT["ost"]]
        A.vmem(f"buffer_store_dwordx2 {vname(AF,2)}, v{T1}, s[{SOUT}:{SOUT+3}], s3 offen{fl}", r=vr(AF, 2) | {T1})
        A.vmem(f"buffer_store_dwordx2 {vname(AF+2,2)}, v{T1}, s[{SOUT}:{SOUT+3}], s3 offen offset:16{fl}", r=vr(AF + 2, 2) | {T1})

def gen_k2(A):
    V = A.valu
    T0, T1, T2, T3, T4, T5, T6, T7 = range(0, 8)
    WOFF = 8
    OOFF = 12
    BA = 13
    RED = 15
    AF = 16
    OF = 48
    ACC = 112
    sBLK, sMT, sNT, sW = 26, 27, 4, 5
    SW_, SO, SOUT = 28, 32, 36
    sWL, sWB, sO0, sO1, sT = 48, 49, 50, 51, 52
    A.win = []
    A.nds = A.ds_done = A.nvm = A.vm_done = 0
    A.raw(f".p2align 8\n.globl k2_kernel\n.type k2_kernel,@function\nk2_kernel:")
    A.salu("s_cmp_ge_u32 s2, 256")
    A.salu("s_cbranch_scc1 K2_END")
    A.salu("s_and_b32 s3, s2, 7")
    A.salu("s_lshl_b32 s3, s3, 5")
    A.salu("s_lshr_b32 s6, s2, 3")
    A.salu("s_add_u32 s3, s3, s6")
    A.salu("s_cmp_ge_u32 s3, 252")
    A.salu("s_cbranch_scc1 K2_END")
    A.salu("s_load_dwordx2 s[8:9], s[0:1], 32")
    A.salu("s_load_dwordx2 s[10:11], s[0:1], 72")
    A.salu("s_load_dwordx2 s[12:13], s[0:1], 80")
    A.salu("s_load_dwordx2 s[14:15], s[0:1], 96")
    A.salu("s_cmp_ge_u32 s3, 126")
    A.salu(f"s_cselect_b32 s{sBLK}, 1, 0")
    A.salu(f"s_mul_i32 s6, s{sBLK}, 126")
    A.salu("s_sub_u32 s3, s3, s6")
    A.salu("s_mul_i32 s6, s3, 57")
    A.salu(f"s_lshr_b32 s{sMT}, s6, 9")
    A.salu(f"s_mul_i32 s6, s{sMT}, 9")
    A.salu(f"s_sub_u32 s{sNT}, s3, s6")
    V(f"v_lshrrev_b32 v{T1}, 6, v0", w={T1}, r={0})
    A._emit(I(f"v_readfirstlane_b32 s{sW}, v{T1}", "rdlane", r={T1}, sw={sW}))
    V(f"v_and_b32 v{T0}, 63, v0", w={T0}, r={0})
    L = T0
    A.salu(f"s_lshl_b32 s{sWL}, s{sW}, 14", sr={sW})
    A.salu(f"s_mul_i32 s{sWB}, s{sW}, {512*1152}", sr={sW})
    A.salu(f"s_lshl_b32 s6, s{sNT}, 7")
    A.salu(f"s_add_u32 s{sWB}, s{sWB}, s6")
    A.salu(f"s_mul_i32 s{sO0}, s{sBLK}, {O_BLK}")
    A.salu(f"s_lshl_b32 s6, s{sMT}, 19")
    A.salu(f"s_add_u32 s{sO0}, s{sO0}, s6")
    A.salu(f"s_lshl_b32 s6, s{sW}, 14")
    A.salu(f"s_add_u32 s{sO0}, s{sO0}, s6")
    A.salu(f"s_add_u32 s{sO1}, s{sO0}, {2*131072}")
    V(f"v_lshrrev_b32 v{T1}, 3, v{L}", w={T1}, r={L})
    V(f"v_mul_u32_u24 v{T1}, 1152, v{T1}", w={T1}, r={T1})
    V(f"v_bfe_u32 v{T2}, v{L}, 4, 1", w={T2}, r={L})
    V(f"v_lshlrev_b32 v{T3}, 2, v{T2}", w={T3}, r={T2})
    V(f"v_and_b32 v{T4}, 7, v{L}", w={T4}, r={L})
    V(f"v_xor_b32 v{T4}, v{T4}, v{T3}", w={T4}, r={T4, T3})
    V(f"v_lshl_add_u32 v{WOFF}, v{T4}, 4, v{T1}", w={WOFF}, r={T4, T1})
    for i in range(1, 4):
        V(f"v_add_u32 v{WOFF+i}, {9216*i}, v{WOFF}", w={WOFF + i}, r={WOFF})
    V(f"v_lshrrev_b32 v{T1}, 5, v{L}", w={T1}, r={L})
    V(f"v_bfe_u32 v{T3}, v{L}, 2, 2", w={T3}, r={L})
    V(f"v_and_b32 v{T4}, 3, v{L}", w={T4}, r={L})
    V(f"v_lshlrev_b32 v{T6}, 17, v{T2}", w={T6}, r={T2})
    V(f"v_lshl_add_u32 v{T6}, v{T1}, 8, v{T6}", w={T6}, r={T1, T6})
    V(f"v_and_b32 v{T7}, 15, v{L}", w={T7}, r={L})
    V(f"v_lshl_add_u32 v{OOFF}, v{T7}, 4, v{T6}", w={OOFF}, r={T7, T6})
    V(f"v_lshl_add_u32 v{T6}, v{T1}, 2, v{T3}", w={T6}, r={T1, T3})
    V(f"v_lshlrev_b32 v{T6}, 7, v{T6}", w={T6}, r={T6})
    V(f"v_lshrrev_b32 v{T7}, 1, v{T4}", w={T7}, r={T4})
    V(f"v_lshl_add_u32 v{T7}, v{T2}, 1, v{T7}", w={T7}, r={T2, T7})
    V(f"v_lshrrev_b32 v{T5}, 1, v{T3}", w={T5}, r={T3})
    V(f"v_lshlrev_b32 v{T5}, 2, v{T5}", w={T5}, r={T5})
    V(f"v_xor_b32 v{T7}, v{T7}, v{T5}", w={T7}, r={T7, T5})
    V(f"v_lshl_add_u32 v{T6}, v{T7}, 4, v{T6}", w={T6}, r={T7, T6})
    V(f"v_and_b32 v{T7}, 1, v{T4}", w={T7}, r={T4})
    V(f"v_lshl_add_u32 v{T6}, v{T7}, 3, v{T6}", w={T6}, r={T7, T6})
    V(f"v_add_u32 v{BA}, s{sWL}, v{T6}", w={BA}, r={T6})
    V(f"v_xor_b32 v{BA+1}, 64, v{BA}", w={BA + 1}, r={BA})
    V(f"v_lshlrev_b32 v{RED}, 4, v{L}", w={RED}, r={L})
    A.waitcnt(lgkm=0)
    A.salu(f"s_cmp_eq_u32 s{sBLK}, 0")
    A.salu("s_cselect_b32 s8, s8, s10")
    A.salu("s_cselect_b32 s9, s9, s11")
    srd(A, SW_, 8, 4096 * 576 * 2)
    srd(A, SO, 14, 2 * O_BLK)
    srd(A, SOUT, 12, 896 * 1152 * 2)

    NU = 16; DEPTH = 4
    last_vm = {}
    def issue(u):
        slot = u % DEPTH
        A.salu(f"s_add_u32 s{sT}, s{sWB}, {u * 32 * 1152}")
        for i in range(4):
            A.salu(f"s_add_u32 m0, s{sWL}, {slot * 4096 + i * 1024}", m0w=True)
            A.vmem(f"buffer_load_dwordx4 v{WOFF+i}, s[{SW_}:{SW_+3}], s{sT} offen{' nt' if OPT['ntwo'] else ''} lds", kind="dma", r={WOFF + i}, m0r=True)
        for ks in range(2):
            for tm in range(2):
                d = OF + slot * 16 + (ks * 2 + tm) * 4
                off = (2 * u + ks) * 512
                sb = sO0 if tm == 0 else sO1
                if off >= 4096:
                    A.salu(f"s_add_u32 s{sT}, s{sb}, {off & ~4095}")
                    k = A.vmem(f"buffer_load_dwordx4 {vname(d,4)}, v{OOFF}, s[{SO}:{SO+3}], s{sT} offen offset:{off & 4095}{' nt' if OPT['nto'] else ''}", w=vr(d, 4), r={OOFF})
                else:
                    k = A.vmem(f"buffer_load_dwordx4 {vname(d,4)}, v{OOFF}, s[{SO}:{SO+3}], s{sb} offen offset:{off}{' nt' if OPT['nto'] else ''}", w=vr(d, 4), r={OOFF})
        last_vm[u] = k
    def dsreads(u):
        slot = u % DEPTH
        ab = AF + (u % 2) * 16
        for ks in range(2):
            for tn in range(2):
                for j in range(2):
                    k = A.ds_read_tr(ab + (ks * 2 + tn) * 4 + 2 * j, BA + tn, slot * 4096 + (16 * ks + 8 * j) * 128)
        return k
    PF = Prof(A, 1)
    PF.stamp("start")
    for u in range(DEPTH): issue(u)
    A.wait_vm(last_vm[0])
    pend = dsreads(0)
    for u in range(NU):
        A.wait_ds(pend)
        if u + 1 < NU:
            A.wait_vm(last_vm[u + 1])
            pend = dsreads(u + 1)
        ab = AF + (u % 2) * 16
        ob = OF + (u % DEPTH) * 16
        for ks in range(2):
            for tn in range(2):
                for tm in range(2):
                    c = "zero" if (u == 0 and ks == 0) else None
                    A.mfma(ACC + (tn * 2 + tm) * 16, ab + (ks * 2 + tn) * 4, ob + (ks * 2 + tm) * 4, c)
        if u + DEPTH < NU: issue(u + DEPTH)
        PF.stamp(f"u{u}")
    A.wait_ds_all()
    A.barrier()
    V(f"v_add_u32 v{T1}, s{sWL}, v{RED}", w={T1}, r={RED})
    for q in range(16):
        A.ds_write_b128(T1, ACC + 4 * q, q * 1024)
    A.wait_ds_all()
    A.barrier()
    A.salu(f"s_lshl_b32 s6, s{sW}, 11")
    V(f"v_add_u32 v{T1}, s6, v{RED}", w={T1}, r={RED})
    V(f"v_add_u32 v{T2}, 0x10000, v{T1}", w={T2}, r={T1})
    R = OF
    for ww in range(8):
        for q in range(2):
            A.ds_read_b128(R + (ww * 2 + q) * 4, T1 if ww < 4 else T2, (ww % 4) * 16384 + q * 1024)
            if ww == 6 and q == 1: pass
        if ww == 5:
            A.wait_ds_all()
    A.wait_ds_all()
    for ww in range(1, 8):
        for i in range(8):
            V(f"v_add_f32 v{R+i}, v{R+i}, v{R+ww*8+i}", w={R + i}, r={R + i, R + ww * 8 + i})
    for q in range(4):
        V(f"v_cvt_pk_bf16_f32 v{AF+q}, v{R+2*q}, v{R+2*q+1}", w={AF + q}, r={R + 2 * q, R + 2 * q + 1})
    A.salu(f"s_lshr_b32 s6, s{sW}, 1")
    A.salu("s_and_b32 s7, s6, 1")
    A.salu("s_lshr_b32 s6, s6, 1")
    A.salu(f"s_lshl_b32 s3, s{sMT}, 6")
    A.salu("s_lshl_b32 s7, s7, 5")
    A.salu("s_add_u32 s3, s3, s7")
    A.salu("s_mul_i32 s3, s3, 2304")
    A.salu(f"s_mul_i32 s7, s{sBLK}, 1152")
    A.salu("s_add_u32 s3, s3, s7")
    A.salu(f"s_lshl_b32 s7, s{sNT}, 7")
    A.salu("s_add_u32 s3, s3, s7")
    A.salu("s_lshl_b32 s7, s6, 6")
    A.salu("s_add_u32 s3, s3, s7")
    A.salu(f"s_and_b32 s7, s{sW}, 1")
    A.salu("s_lshl_b32 s7, s7, 5")
    A.salu("s_add_u32 s3, s3, s7")
    V(f"v_and_b32 v{T1}, 31, v{L}", w={T1}, r={L})
    V(f"v_mul_u32_u24 v{T1}, 2304, v{T1}", w={T1}, r={T1})
    V(f"v_lshrrev_b32 v{T2}, 5, v{L}", w={T2}, r={L})
    V(f"v_lshl_add_u32 v{T1}, v{T2}, 3, v{T1}", w={T1}, r={T2, T1})
    A.vmem(f"buffer_store_dwordx2 {vname(AF,2)}, v{T1}, s[{SOUT}:{SOUT+3}], s3 offen", r=vr(AF, 2) | {T1})
    A.vmem(f"buffer_store_dwordx2 {vname(AF+2,2)}, v{T1}, s[{SOUT}:{SOUT+3}], s3 offen offset:16", r=vr(AF + 2, 2) | {T1})
    PF.dump(14, sW, 0)
    A.label("K2_END")
    A.salu("s_endpgm")

def kd(name, vgpr, sgpr):
    return f""".amdhsa_kernel {name}
  .amdhsa_next_free_vgpr {vgpr}
  .amdhsa_next_free_sgpr {sgpr}
  .amdhsa_accum_offset {(vgpr + 3) // 4 * 4}
  .amdhsa_group_segment_fixed_size 0
  .amdhsa_kernarg_size 104
  .amdhsa_user_sgpr_count 2
  .amdhsa_user_sgpr_kernarg_segment_ptr 1
  .amdhsa_system_sgpr_workgroup_id_x 1
.end_amdhsa_kernel
"""

def main():
    A = Asm()
    gen_k1(A)
    if not OPT["fuse"]: gen_k2(A)
    head = """; Two-launch GQA block pair: k1 = Q projection + attention (o -> ws), k2 = output projection.
; @launch kernel=k1_kernel grid=(256,1,1) block=(512,1,1) lds=163840
; @launch kernel=k2_kernel grid=(256,1,1) block=(512,1,1) lds=131072
.amdgcn_target "amdgcn-amd-amdhsa--gfx950"
.text
"""
    tail = '\n.section .rodata,"a"\n.p2align 6\n' + kd("k1_kernel", 256, 102 if OPT["prof"] else 64) + ".p2align 6\n" + kd("k2_kernel", 176, 102 if OPT["prof"] else 64)
    if OPT["fuse"]:
        head = """; GQA block pair in one launch: Q projection + attention, o handed over through ws, output projection.
; @launch kernel=k1_kernel grid=(256,1,1) block=(512,1,1) lds=163840
.amdgcn_target "amdgcn-amd-amdhsa--gfx950"
.text
"""
        tail = '\n.section .rodata,"a"\n.p2align 6\n' + kd("k1_kernel", 256, 102 if OPT["prof"] else 64)
    txt = head + A.text() + tail
    if "CODE_BYTES" in txt:
        import subprocess, re
        open("_p1.s", "w").write(txt.replace("CODE_BYTES", "0x12345"))
        subprocess.check_call(["clang", "-x", "assembler", "-target", "amdgcn-amd-amdhsa", "-mcpu=gfx950", "-c", "_p1.s", "-o", "_p1.o"])
        o = subprocess.check_output(["llvm-objdump", "-h", "_p1.o"]).decode()
        n = int(re.search(r"\.text\s+([0-9a-f]+)", o).group(1), 16)
        txt = txt.replace("CODE_BYTES", str(n))
    open(sys.argv[1], "w").write(txt)
    print("nops inserted:", A.nops_inserted, "lines:", len(A.out))

main()
```

```python
import sys, math
sys.path.insert(0, "gen")
from asmlib import *

NAME = "concat_heads__gqa_block_cached__gqa_block_cached__near_ridge"
OPT = dict(prio=1, prof=0, ntkv=1, ntw=0, ntx=0, ntwo=0, nto=0, ntst=0, nq=6, kvrate=1, l2pf=1, wopf=4, fat=1, bstep=1, dmagap=1, pflead=4, kv0=2, nstg=4, kvt=0, ld4=1, cpf=0, mid=0, kvt0=1, kvtr=1, roll=0, pfrate=1, kvs=0, rot=0, stag=0, qi=0, tlbw=0, ntt=0, fuse=0, slp=1, wox=0, xm=0, wo0=3, wo6=0, exp=0, ntf=0, pv=0, ost=0, red=0, pre=0, ring=4, lp=0, pre0=0, pr2=0, xb=0, pro=0, prg=3, ea=0, ep=0, fb=0, pw=0, dc=0, es=0, esr=0, od=0)
for a in sys.argv[2:]:
    k, v = a.split("="); OPT[k] = int(v)

O_BLK = 896 * 4096 * 2
SLOT = 16384
NSLOT = 10

def srd(A, d, base, nbytes):
    A.salu(f"s_mov_b32 s{d}, s{base}")
    A.salu(f"s_and_b32 s{d+1}, s{base+1}, 0xffff")
    A.salu(f"s_mov_b32 s{d+2}, {nbytes}")
    A.salu(f"s_mov_b32 s{d+3}, 0x00020000")

class Prof:
    def __init__(self, A, kidx):
        self.A = A; self.n = 0; self.names = []; self.kidx = kidx
    def stamp(self, name):
        A = self.A
        if OPT["prof"] == 3:
            sel = ["start", "q0", "a0", "pv7", "st", "go", "u15", "end"]
            if name == "start" or name == sel[OPT["pv"]]:
                A.salu("s_waitcnt lgkmcnt(0)")
                A.ds_done = A.nds
                A.salu("s_memrealtime s[96:97]")
                A.salu("s_waitcnt lgkmcnt(0)")
                if name == "start": A.salu("s_not_b32 s64, s96")
                if name == sel[OPT["pv"]]: A.salu(f"s_mov_b32 s65, s96")
            return
        if OPT["prof"] == 2:
            sel = ["start", "q0", "a0", "pv7", "st", "go", "u15", "end"]
            if name in sel:
                A.salu("s_waitcnt lgkmcnt(0)")
                A.ds_done = A.nds
                A.salu("s_memrealtime s[96:97]")
                A.salu("s_waitcnt lgkmcnt(0)")
                if name == "start": A.salu("s_not_b32 s96, s96")
                A.salu(f"s_mov_b32 s{64+sel.index(name)}, s96")
            return
        if not OPT["prof"]: return
        assert self.n < 30
        A.salu("s_waitcnt lgkmcnt(0)")
        A.ds_done = A.nds
        A.salu("s_memtime s[96:97]")
        A.salu("s_waitcnt lgkmcnt(0)")
        A.salu(f"s_mov_b32 s{64+self.n}, s96")
        if self.n == 0:
            A.salu("s_memrealtime s[98:99]")
            A.salu("s_waitcnt lgkmcnt(0)")
        self.n += 1; self.names.append(name)
    def dump(self, wsreg, sW, tmp):
        if not OPT["prof"]: return
        A = self.A
        self.stamp("end")
        if OPT["prof"] == 3:
            A.salu(f"s_cmp_eq_u32 s{sW}, 0")
            A.salu("s_cbranch_scc0 K1_END")
            A.salu("s_mov_b64 exec, -1")
            A.salu("s_nop 4")
            for i in range(2):
                A.salu(f"v_writelane_b32 v{tmp}, s{64+i}, {i}")
            A.salu(f"v_mbcnt_lo_u32_b32 v{tmp+1}, -1, 0")
            A.salu(f"v_lshlrev_b32 v{tmp+1}, 2, v{tmp+1}")
            A.salu(f"v_mov_b32 v{tmp+2}, 1")
            A.salu("s_mov_b64 exec, 3")
            A.salu("s_nop 4")
            A.salu(f"buffer_atomic_umax v{tmp}, v{tmp+1}, s[20:23], 0 offen offset:32 sc1")
            A.salu("s_waitcnt vmcnt(0)")
            A.salu("s_mov_b64 exec, 1")
            A.salu(f"buffer_atomic_add v{tmp+2}, v{tmp+1}, s[20:23], 0 offen offset:40 sc0 sc1")
            A.salu("s_waitcnt vmcnt(0)")
            A.salu(f"v_readfirstlane_b32 s66, v{tmp+2}")
            A.salu("s_cmp_eq_u32 s66, 251")
            A.salu("s_cbranch_scc0 K1_END")
            A.salu("s_mov_b64 exec, 3")
            A.salu(f"buffer_load_dword v{tmp}, v{tmp+1}, s[20:23], 0 offen offset:32 sc1")
            A.salu("s_waitcnt vmcnt(0)")
            A.salu(f"v_readlane_b32 s66, v{tmp}, 0")
            A.salu(f"v_readlane_b32 s67, v{tmp}, 1")
            A.salu("s_not_b32 s66, s66")
            A.salu("s_sub_u32 s66, s67, s66")
            A.salu("s_min_u32 s66, s66, 10000")
            A.salu("s_lshl_b32 s66, s66, 3")
            A.salu("s_memrealtime s[96:97]")
            A.salu("s_waitcnt lgkmcnt(0)")
            A.salu("s_mov_b32 s67, s96")
            A.label("K1_DLY")
            A.salu("s_memrealtime s[96:97]")
            A.salu("s_waitcnt lgkmcnt(0)")
            A.salu("s_sub_u32 s96, s96, s67")
            A.salu("s_cmp_lt_u32 s96, s66")
            A.salu("s_cbranch_scc1 K1_DLY")
            return
        if OPT["prof"] == 2:
            A.salu("s_mov_b64 exec, -1")
            A.salu("s_nop 4")
            for i in range(8):
                A.salu(f"v_writelane_b32 v{tmp}, s{64+i}, {i}")
            A.salu(f"v_mbcnt_lo_u32_b32 v{tmp+1}, -1, 0")
            A.salu(f"v_lshlrev_b32 v{tmp+1}, 2, v{tmp+1}")
            A.salu("s_mov_b64 exec, 0xff")
            A.salu("s_nop 4")
            A.salu(f"buffer_atomic_umax v{tmp}, v{tmp+1}, s[20:23], 0 offen offset:32 sc1")
            return
        A.salu("s_memrealtime s[96:97]")
        A.salu("s_waitcnt lgkmcnt(0)")
        A.salu("s_mov_b64 exec, -1")
        A.salu("s_nop 4")
        for i in range(self.n):
            A.salu(f"v_writelane_b32 v{tmp}, s{64+i}, {i}")
        A.salu("s_getreg_b32 s97, hwreg(HW_REG_HW_ID)")
        A.salu(f"v_writelane_b32 v{tmp}, s97, 29")
        A.salu(f"v_writelane_b32 v{tmp}, s98, 30")
        A.salu(f"v_writelane_b32 v{tmp}, s96, 31")
        A.salu(f"s_mov_b32 s60, s{wsreg}")
        A.salu(f"s_and_b32 s61, s{wsreg+1}, 0xffff")
        A.salu("s_mov_b32 s62, 0x10000000")
        A.salu("s_mov_b32 s63, 0x00020000")
        A.salu("s_lshl_b32 s96, s2, 3")
        A.salu(f"s_add_u32 s96, s96, s{sW}")
        A.salu("s_lshl_b32 s96, s96, 7")
        A.salu(f"s_add_u32 s96, s96, {255*1024*1024 + self.kidx*512*1024}")
        A.salu(f"v_mbcnt_lo_u32_b32 v{tmp+1}, -1, 0")
        A.salu(f"v_mbcnt_hi_u32_b32 v{tmp+1}, -1, v{tmp+1}")
        A.salu(f"v_lshlrev_b32 v{tmp+1}, 2, v{tmp+1}")
        A.salu("s_mov_b64 exec, 0xffffffff")
        A.salu("s_nop 4")
        A.salu(f"buffer_store_dword v{tmp}, v{tmp+1}, s[60:63], s96 offen")
        print("stamps k%d:" % self.kidx, self.names)

def gen_k1(A):
    V = A.valu
    T0, T1, T2, T3, T4, T5, T6, T7 = range(0, 8)
    XO, WO, KO = 8, 10, 12
    BW, BX, BK, BV = 14, 15, 16, 17
    LSUM, OST = 18, 19
    SUMA, SUMB, MX, MX2 = 20, 21, 22, 23
    AD = 24
    FR = 32
    NEGM = 48
    QB = 64
    S = 96
    O = 160
    P = 224
    sBLK, sKVH, sB, sW, sHL, sRT = 26, 27, 4, 5, 6, 7
    SX, SW_, SK, SV, SO = 28, 32, 36, 40, 44
    sWL, sXB, sWB, sKVB, sT, sOB = 48, 49, 50, 51, 52, 53
    sMASK, sTHR, sC = 54, 56, 57
    sW3, sWL4, sT2 = 58, 59, 55

    A.raw(f".p2align 8\n.globl k1_kernel\n.type k1_kernel,@function\nk1_kernel:\nK1_BEGIN:")
    A.salu("s_cmp_ge_u32 s2, 256")
    A.salu("s_cbranch_scc1 K1_END")
    A.salu("s_load_dwordx8 s[8:15], s[0:1], 0")
    A.salu("s_load_dwordx8 s[16:23], s[0:1], 40")
    A.salu("s_load_dwordx2 s[24:25], s[0:1], 96")
    if OPT["cpf"]:
        A.salu("s_getpc_b64 s[60:61]")
        A.salu("s_and_b32 s60, s60, 0xffffff00")
        A.salu("s_and_b32 s61, s61, 0xffff")
        A.salu("s_mov_b32 s62, CODE_BYTES")
        A.salu("s_mov_b32 s63, 0x00020000")
        V(f"v_lshlrev_b32 v{T7}, 7, v0", w={T7}, r={0})
        A.vmem(f"buffer_load_dword v{NEGM+15}, v{T7}, s[60:63], 0 offen", w={NEGM+15}, r={T7})
    A.salu("s_and_b32 s3, s2, 7")
    A.salu(f"s_lshr_b32 s{sB}, s2, 3")
    A.salu(f"s_lshr_b32 s{sBLK}, s3, 2")
    A.salu("s_and_b32 s3, s3, 3")
    A.salu("s_lshl_b32 s3, s3, 2")
    A.salu(f"s_and_b32 s{sKVH}, s{sB}, 3")
    A.salu(f"s_add_u32 s{sKVH}, s{sKVH}, s3")
    A.salu(f"s_lshr_b32 s{sB}, s{sB}, 2")
    V(f"v_lshrrev_b32 v{T1}, 6, v0", w={T1}, r={0})
    A._emit(I(f"v_readfirstlane_b32 s{sW}, v{T1}", "rdlane", r={T1}, sw={sW}))
    V(f"v_and_b32 v{T0}, 63, v0", w={T0}, r={0})
    if OPT["fat"]:
        A.salu(f"s_bfe_u32 s{sHL}, s{sW}, 0x10001", sr={sW})
        A.salu(f"s_and_b32 s{sRT}, s{sW}, 1", sr={sW})
        A.salu(f"s_lshl_b32 s{sRT}, s{sRT}, 1")
        A.salu(f"s_lshr_b32 s3, s{sW}, 2", sr={sW})
        A.salu(f"s_add_u32 s{sRT}, s{sRT}, s3")
    else:
        A.salu(f"s_lshr_b32 s{sHL}, s{sW}, 2", sr={sW})
        A.salu(f"s_and_b32 s{sRT}, s{sW}, 3", sr={sW})
    A.salu(f"s_lshl_b32 s{sWL}, s{sW}, 11", sr={sW})
    A.salu(f"s_and_b32 s{sW3}, s{sW}, {3 if OPT['ld4'] else 1}", sr={sW})
    A.salu(f"s_lshl_b32 s{sWL4}, s{sW3}, 11")
    A.salu(f"s_mul_i32 s{sXB}, s{sB}, 129024")
    A.salu(f"s_lshl_b32 s{sWB}, s{sKVH}, 9")
    A.salu(f"s_lshl_b32 s{sKVB}, s{sB}, 4")
    A.salu(f"s_add_u32 s{sKVB}, s{sKVB}, s{sKVH}")
    if OPT["rot"] == 1:
        A.salu(f"s_and_b32 s{sMASK}, s{sKVB}, 7")
    elif OPT["rot"] == 2:
        A.salu(f"s_add_u32 s{sMASK}, s{sKVH}, s{sB}")
        A.salu(f"s_and_b32 s{sMASK}, s{sMASK}, 7")
    elif OPT["rot"] == 3:
        A.salu(f"s_and_b32 s{sMASK}, s{sB}, 7")
    A.salu(f"s_lshl_b32 s{sMASK}, s{sMASK}, 14")
    A.salu(f"s_lshl_b32 s{sKVB}, s{sKVB}, 17")
    A.salu(f"s_mov_b32 s{sTHR}, 0x4b800000")
    c = math.log2(math.e) / math.sqrt(128.0)
    import struct
    cbits = struct.unpack("<I", struct.pack("<f", c))[0]
    A.salu(f"s_mov_b32 s{sC}, {cbits:#x}")
    L = T0
    for q in range(2):
        V(f"v_lshrrev_b32 v{T1}, 3, v{L}", w={T1}, r={L})
        A.salu(f"s_lshl_b32 s3, s{sW3}, 4")
        A.salu(f"s_add_u32 s3, s3, {8*q}")
        V(f"v_add_u32 v{T1}, s3, v{T1}", w={T1}, r={T1})
        V(f"v_mul_u32_u24 v{T1}, 1152, v{T1}", w={T1}, r={T1})
        V(f"v_and_b32 v{T2}, 7, v{L}", w={T2}, r={L})
        V(f"v_lshrrev_b32 v{T3}, 4, v{L}", w={T3}, r={L})
        V(f"v_xor_b32 v{T2}, v{T2}, v{T3}", w={T2}, r={T2, T3})
        if q: V(f"v_xor_b32 v{T2}, 4, v{T2}", w={T2}, r={T2})
        V(f"v_lshl_add_u32 v{XO+q}, v{T2}, 4, v{T1}", w={XO+q}, r={T2, T1})
        V(f"v_lshrrev_b32 v{T3}, 5, v{L}", w={T3}, r={L})
        A.salu(f"s_lshl_b32 s3, s{sW3}, 2")
        A.salu(f"s_add_u32 s3, s3, {2*q}")
        V(f"v_add_u32 v{T1}, s3, v{T3}", w={T1}, r={T3})
        V(f"v_lshlrev_b32 v{T1}, 13, v{T1}", w={T1}, r={T1})
        V(f"v_or_b32 v{T3}, {2*q}, v{T3}", w={T3}, r={T3})
        V(f"v_lshlrev_b32 v{T3}, 2, v{T3}", w={T3}, r={T3})
        V(f"v_and_b32 v{T2}, 31, v{L}", w={T2}, r={L})
        V(f"v_xor_b32 v{T2}, v{T2}, v{T3}", w={T2}, r={T2, T3})
        V(f"v_lshl_add_u32 v{WO+q}, v{T2}, 4, v{T1}", w={WO+q}, r={T2, T1})
        V(f"v_lshrrev_b32 v{T3}, 4, v{L}", w={T3}, r={L})
        A.salu(f"s_lshl_b32 s3, s{sW}, 3")
        A.salu(f"s_add_u32 s3, s3, {4*q}")
        V(f"v_add_u32 v{T1}, s3, v{T3}", w={T1}, r={T3})
        V(f"v_lshlrev_b32 v{T1}, 8, v{T1}", w={T1}, r={T1})
        A.salu(f"s_and_b32 s3, s{sW}, 1")
        A.salu(f"s_lshl_b32 s3, s3, 1")
        A.salu(f"s_or_b32 s3, s3, {q}")
        V(f"v_lshlrev_b32 v{T3}, 2, v{T3}", w={T3}, r={T3})
        V(f"v_or_b32 v{T3}, s3, v{T3}", w={T3}, r={T3})
        V(f"v_and_b32 v{T2}, 15, v{L}", w={T2}, r={L})
        V(f"v_xor_b32 v{T2}, v{T2}, v{T3}", w={T2}, r={T2, T3})
        V(f"v_lshl_add_u32 v{KO+q}, v{T2}, 4, v{T1}", w={KO+q}, r={T2, T1})
    V(f"v_lshrrev_b32 v{T1}, 5, v{L}", w={T1}, r={L})
    V(f"v_bfe_u32 v{T2}, v{L}, 4, 1", w={T2}, r={L})
    V(f"v_bfe_u32 v{T3}, v{L}, 2, 2", w={T3}, r={L})
    V(f"v_and_b32 v{T4}, 3, v{L}", w={T4}, r={L})
    V(f"v_and_b32 v{T5}, 31, v{L}", w={T5}, r={L})
    V(f"v_lshl_add_u32 v{T6}, v{T1}, 3, v{T3}", w={T6}, r={T1, T3})
    V(f"v_lshlrev_b32 v{T6}, 9, v{T6}", w={T6}, r={T6})
    V(f"v_lshlrev_b32 v{T7}, 2, v{T3}", w={T7}, r={T3})
    V(f"v_lshl_add_u32 v{T7}, v{T2}, 1, v{T7}", w={T7}, r={T2, T7})
    V(f"v_and_b32 v{BW}, 1, v{T4}", w={BW}, r={T4})
    V(f"v_add_u32 v{T7}, v{T7}, v{BW}", w={T7}, r={T7, BW})
    A.salu(f"s_lshl_b32 s3, s{sHL}, 4")
    V(f"v_add_u32 v{T7}, s3, v{T7}", w={T7}, r={T7})
    V(f"v_lshl_add_u32 v{T6}, v{T7}, 4, v{T6}", w={T6}, r={T7, T6})
    V(f"v_lshrrev_b32 v{T7}, 1, v{T4}", w={T7}, r={T4})
    V(f"v_lshl_add_u32 v{BW}, v{T7}, 3, v{T6}", w={BW}, r={T7, T6})
    A.salu(f"s_lshl_b32 s3, s{sRT}, 5")
    V(f"v_add_u32 v{T6}, s3, v{T5}", w={T6}, r={T5})
    V(f"v_lshlrev_b32 v{T6}, 7, v{T6}", w={T6}, r={T6})
    V(f"v_bfe_u32 v{T7}, v{T5}, 1, 3", w={T7}, r={T5})
    V(f"v_xor_b32 v{T7}, v{T7}, v{T1}", w={T7}, r={T7, T1})
    V(f"v_lshl_add_u32 v{BX}, v{T7}, 4, v{T6}", w={BX}, r={T7, T6})
    V(f"v_lshlrev_b32 v{T6}, 2, v{T4}", w={T6}, r={T4})
    V(f"v_or_b32 v{T6}, v{T6}, v{T3}", w={T6}, r={T6, T3})
    V(f"v_xor_b32 v{T6}, v{T6}, v{T1}", w={T6}, r={T6, T1})
    V(f"v_lshlrev_b32 v{T7}, 8, v{T5}", w={T7}, r={T5})
    V(f"v_lshl_add_u32 v{BK}, v{T6}, 4, v{T7}", w={BK}, r={T6, T7})
    V(f"v_lshl_add_u32 v{T6}, v{T1}, 2, v{T3}", w={T6}, r={T1, T3})
    V(f"v_lshlrev_b32 v{T6}, 8, v{T6}", w={T6}, r={T6})
    V(f"v_lshrrev_b32 v{T7}, 1, v{T4}", w={T7}, r={T4})
    V(f"v_lshl_add_u32 v{T7}, v{T2}, 1, v{T7}", w={T7}, r={T2, T7})
    V(f"v_xor_b32 v{T7}, v{T7}, v{T1}", w={T7}, r={T7, T1})
    V(f"v_lshl_or_b32 v{T7}, v{T3}, 2, v{T7}", w={T7}, r={T3, T7})
    V(f"v_lshl_add_u32 v{T6}, v{T7}, 4, v{T6}", w={T6}, r={T7, T6})
    V(f"v_and_b32 v{T7}, 1, v{T4}", w={T7}, r={T4})
    V(f"v_lshl_add_u32 v{BV}, v{T7}, 3, v{T6}", w={BV}, r={T7, T6})
    V(f"v_lshlrev_b32 v{T6}, 17, v{T2}", w={T6}, r={T2})
    V(f"v_lshl_add_u32 v{T6}, v{T1}, 8, v{T6}", w={T6}, r={T1, T6})
    V(f"v_and_b32 v{T7}, 15, v{L}", w={T7}, r={L})
    V(f"v_lshl_add_u32 v{OST}, v{T7}, 4, v{T6}", w={OST}, r={T7, T6})
    V(f"v_mov_b32 v{LSUM}, 0", w={LSUM})
    A.waitcnt(lgkm=0)
    A.salu(f"s_cmp_eq_u32 s{sBLK}, 0")
    for k in range(8):
        A.salu(f"s_cselect_b32 s{8+k}, s{8+k}, s{16+k}")
    srd(A, SX, 8, 8 * 112 * 576 * 2)
    srd(A, SK, 10, 8 * 16 * 512 * 128 * 2)
    srd(A, SV, 12, 8 * 16 * 512 * 128 * 2)
    srd(A, SW_, 14, 576 * 4096 * 2)
    srd(A, SO, 24, 2 * O_BLK)
    A.salu(f"s_mul_i32 s{sOB}, s{sBLK}, {O_BLK}")
    A.salu(f"s_mul_i32 s3, s{sB}, 7")
    A.salu(f"s_lshl_b32 s{sT}, s{sRT}, 1")
    A.salu(f"s_add_u32 s3, s3, s{sT}")
    A.salu(f"s_lshl_b32 s3, s3, 17")
    A.salu(f"s_add_u32 s{sOB}, s{sOB}, s3")
    A.salu(f"s_lshl_b32 s3, s{sKVH}, 1")
    A.salu(f"s_add_u32 s3, s3, s{sHL}")
    A.salu(f"s_lshl_b32 s3, s3, 12")
    A.salu(f"s_add_u32 s{sOB}, s{sOB}, s3")
    if OPT["prio"]:
        A.salu(f"s_cmp_ge_u32 s{sW}, 4")
        A.salu("s_cbranch_scc0 K1_PRIO_DONE" if OPT["prio"] == 1 else "s_cbranch_scc1 K1_PRIO_DONE")
        A.salu("s_setprio 1")
        A.label("K1_PRIO_DONE")

    NTT = {0: "", 1: " nt", 2: " sc1", 3: " sc0 sc1", 4: " sc1 nt"}[OPT["ntt"]]
    qunits = []
    for s_ in range(9):
        qunits += [("X", s_), ("W", 2 * s_), ("W", 2 * s_ + 1)]
    kvunits = [("K", 0)]
    for h in range(7):
        kvunits += [("K", h + 1), ("V", h)]
    kvunits += [("V", 7)]
    units = qunits + kvunits
    UK = {idx: 27 + i for i, (t_, idx) in enumerate(kvunits) if t_ == "K"}
    UV = {idx: 27 + i for i, (t_, idx) in enumerate(kvunits) if t_ == "V"}
    stage_units = [list(range(3 * s_, 3 * s_ + 3)) for s_ in range(9)]
    unit_last_vm = {}
    unit_slot = {}
    free = list(range(NSLOT))
    nq = [0]; nkv = [0]; xch = []
    KQ = FR
    DV = FR + 2
    NSTG = OPT["nstg"]
    STG = [S + 32, O, O + 32, P][:NSTG]

    def unit_info(u):
        typ, idx = units[u]
        if typ == "X": return sXB, idx * 128, SX, XO, 2 * 16 * 1152, "ntx"
        if typ == "W": return sWB, idx * 32 * 8192, SW_, WO, 2 * 4 * 8192, "ntw"
        if typ == "K": return sKVB, idx * 64 * 256, SK, KO, 4096, "ntkv"
        return sKVB, idx * 64 * 256, SV, KO, 4096, "ntkv"

    def sbase(base, const):
        if base == sKVB and OPT["rot"]:
            A.salu(f"s_add_u32 s{sT}, s{sMASK}, {const}")
            A.salu(f"s_and_b32 s{sT}, s{sT}, 0x1ffff")
            A.salu(f"s_or_b32 s{sT}, s{sT}, s{sKVB}")
        else:
            A.salu(f"s_add_u32 s{sT}, s{base}, {const}")

    def issue_unit_q(u, stage_reg=None):
        if stage_reg is None:
            slot = free.pop(0)
            unit_slot[u] = slot
        base, const, sr_, vo, delta, nto = unit_info(u)
        if vo == KO: vo = KQ
        nt = " nt" if OPT[nto] else ""
        for hv in range(4):
            A.salu(f"s_add_u32 s{sT}, s{base}, {const + delta * hv}")
            for q in range(2):
                if stage_reg is None:
                    A.salu(f"s_add_u32 m0, s{sWL4}, {slot * SLOT + hv * 4096 + q * 1024}", m0w=True)
                    k = A.vmem(f"buffer_load_dwordx4 v{vo+q}, s[{sr_}:{sr_+3}], s{sT} offen{nt} lds", kind="dma", r={vo + q}, m0r=True)
                else:
                    d = stage_reg + (hv * 2 + q) * 4
                    k = A.vmem(f"buffer_load_dwordx4 {vname(d,4)}, v{vo+q}, s[{sr_}:{sr_+3}], s{sT} offen{nt}", w=vr(d, 4), r={vo + q})
        unit_last_vm[u] = k

    def issue_unit_4(u):
        slot = free.pop(0)
        unit_slot[u] = slot
        base, const, sr_, vo, delta, nto = unit_info(u)
        nt = " nt" if OPT[nto] else ""
        sbase(base, const)
        if vo != KO: A.salu(f"s_add_u32 s{sT2}, s{base}, {const + 2 * delta}")
        for hv in range(2):
            for q in range(2):
                A.salu(f"s_add_u32 m0, s{sWL4}, {slot * SLOT + hv * 8192 + q * 1024}", m0w=True)
                if vo == KO:
                    va = (KQ if hv == 0 else KO) + q; so = sT
                else:
                    va = vo + q; so = sT if hv == 0 else sT2
                k = A.vmem(f"buffer_load_dwordx4 v{va}, s[{sr_}:{sr_+3}], s{so} offen{nt} lds", kind="dma", r={va}, m0r=True)
        unit_last_vm[u] = k

    def flood():
        if not OPT["l2pf"]: return
        V(f"v_lshrrev_b32 v{T1}, 2, v{L}", w={T1}, r={L})
        V(f"v_lshlrev_b32 v{T1}, 13, v{T1}", w={T1}, r={T1})
        V(f"v_and_b32 v{T2}, 3, v{L}", w={T2}, r={L})
        V(f"v_lshl_add_u32 v{T1}, v{T2}, 7, v{T1}", w={T1}, r={T2, T1})
        A.salu(f"s_lshl_b32 s3, s{sW}, 4")
        A.salu(f"s_min_u32 s3, s3, 56")
        A.salu(f"s_mul_i32 s{sT}, s{sB}, 72")
        A.salu(f"s_add_u32 s3, s3, s{sT}")
        A.salu(f"s_lshl_b32 s3, s3, 13")
        A.salu(f"s_add_u32 s3, s3, s{sWB}")
        A.vmem(f"buffer_load_dword v{T4}, v{T1}, s[{SW_}:{SW_+3}], s3 offen{NTT}", w={T4}, r={T1})
        V(f"v_lshlrev_b32 v{T2}, 7, v{L}", w={T2}, r={L})
        A.salu(f"s_and_b32 s3, s{sKVH}, 3")
        A.salu(f"s_mul_i32 s3, s3, 32256")
        A.salu(f"s_and_b32 s{sT}, s{sW}, 3")
        A.salu(f"s_lshl_b32 s{sT}, s{sT}, 13")
        A.salu(f"s_add_u32 s3, s3, s{sT}")
        A.salu(f"s_add_u32 s3, s3, s{sXB}")
        A.vmem(f"buffer_load_dword v{T5}, v{T2}, s[{SX}:{SX+3}], s3 offen{NTT}", w={T5}, r={T2})

    def dump_unit(u, stage_reg):
        slot = free.pop(0)
        unit_slot[u] = slot
        V(f"v_add_u32 v{DV+1}, {slot * SLOT}, v{DV}", w={DV + 1}, r={DV})
        for hv in range(4):
            for q in range(2):
                A.ds_write_b128(DV + 1, stage_reg + (hv * 2 + q) * 4, hv * 4096 + q * 1024)

    def dma_items(u):
        slot = free.pop(0)
        unit_slot[u] = slot
        base, const, sr_, vo, delta, nto = unit_info(u)
        nt = " nt" if OPT[nto] else ""
        def mk(q):
            def f():
                sbase(base, const)
                A.salu(f"s_add_u32 m0, s{sWL}, {slot * SLOT + q * 1024}", m0w=True)
                k = A.vmem(f"buffer_load_dwordx4 v{vo+q}, s[{sr_}:{sr_+3}], s{sT} offen{nt} lds", kind="dma", r={vo + q}, m0r=True)
                unit_last_vm[u] = k
            return f
        if not OPT["stag"]: return [mk(0), mk(1)]
        G = 8 // OPT["stag"]
        def cond(f, g):
            def h():
                lab = f"K1_D{nlab[0]}"; nlab[0] += 1
                A.salu(f"s_cmp_eq_u32 s{sT2}, {g}")
                A.salu(f"s_cbranch_scc0 {lab}")
                n0 = len(A.out)
                f()
                for o in A.out[n0:]: o.ws = 0
                A.label(lab)
                if g < G - 1: A.nvm -= 1
            return h
        return [cond(mk(q), g) for q in range(2) for g in range(G)]
    nlab = [0]

    NQ = OPT["nq"]
    PF = Prof(A, 0)
    PF.stamp("start")

    def addr_items(dst, base, slot, xors):
        it = [lambda: V(f"v_add_u32 v{dst[0]}, {slot * SLOT}, v{base}", w={dst[0]}, r={base})]
        for i, x in enumerate(xors):
            if i == 0: continue
            it.append(lambda i=i, x=x: V(f"v_xor_b32 v{dst[i]}, {x}, v{dst[0]}", w={dst[i]}, r={dst[0]}))
        return it

    A.salu(f"s_cmp_lt_u32 s{sW}, 4")
    A.salu("s_cbranch_scc1 K1_FAT")
    pf0 = PF.n
    staged = []
    if OPT["ld4"]:
        for q in range(2):
            V(f"v_subrev_u32 v{KQ+q}, {4*8*256}, v{KO+q}", w={KQ + q}, r={KO + q})
        NL = NSLOT - NQ
        def refill(s):
            done_q = 3 * max(s, 0)
            while nq[0] < 27 and nq[0] - done_q < NQ and free:
                issue_unit_4(nq[0]); nq[0] += 1
        def kv_issue():
            if nkv[0] < NL:
                if free:
                    issue_unit_4(27 + nkv[0]); nkv[0] += 1
        LW, LX = FR + 4, FR + 5
        nroll = [NQ // 3]
        def lroll(n):
            n = min(n, 9 - nroll[0])
            if n <= 0 or OPT["roll"] != 2: return
            a = nroll[0]; nroll[0] += n
            if n < 8:
                m = (1 << (8 * n)) - 1
                A.salu(f"s_mov_b32 exec_lo, {m & 0xffffffff}")
                A.salu(f"s_mov_b32 exec_hi, {m >> 32}")
            A.salu(f"s_add_u32 s3, s8, {a * 64 * 8192}")
            A.vmem(f"buffer_load_dword v{FR+6}, v{LW}, s[{SW_}:{SW_+3}], s3 offen{NTT}", w={FR + 6}, r={LW})
            A.vmem(f"buffer_load_dword v{FR+7}, v{LX}, s[{SX}:{SX+3}], s9 offen offset:{a * 128}{NTT}", w={FR + 7}, r={LX})
            if n < 8: A.salu("s_mov_b64 exec, -1")
        refill(-1)
        for _ in range(OPT["kv0"]): kv_issue()
        if not OPT["roll"]: flood()
        if OPT["roll"] == 2:
            V(f"v_bfe_u32 v{T1}, v{L}, 2, 1", w={T1}, r={L})
            A.salu(f"s_lshl_b32 s3, s{sW3}, 1")
            V(f"v_add_u32 v{T1}, s3, v{T1}", w={T1}, r={T1})
            V(f"v_lshrrev_b32 v{T3}, 3, v{L}", w={T3}, r={L})
            V(f"v_lshl_add_u32 v{T1}, v{T3}, 6, v{T1}", w={T1}, r={T3, T1})
            V(f"v_lshlrev_b32 v{T1}, 13, v{T1}", w={T1}, r={T1})
            V(f"v_and_b32 v{T2}, 3, v{L}", w={T2}, r={L})
            V(f"v_lshl_add_u32 v{LW}, v{T2}, 7, v{T1}", w={LW}, r={T2, T1})
            V(f"v_and_b32 v{T1}, 7, v{L}", w={T1}, r={L})
            V(f"v_min_u32 v{T1}, 6, v{T1}", w={T1}, r={T1})
            A.salu(f"s_mul_i32 s3, s{sW3}, 7")
            V(f"v_add_u32 v{T1}, s3, v{T1}", w={T1}, r={T1})
            V(f"v_mul_u32_u24 v{T1}, 1152, v{T1}", w={T1}, r={T1})
            V(f"v_lshl_add_u32 v{LX}, v{T3}, 7, v{T1}", w={LX}, r={T3, T1})
            A.salu(f"s_lshl_b32 s8, s{sB}, 16")
            A.salu(f"s_add_u32 s8, s8, s{sWB}")
            A.salu(f"s_and_b32 s9, s{sKVH}, 3")
            A.salu(f"s_mul_i32 s9, s9, {28*1152}")
            A.salu(f"s_add_u32 s9, s9, s{sXB}")
            lroll(OPT["pflead"] - nroll[0])
        for s in range(9):
            A.wait_vm(max(unit_last_vm[u] for u in stage_units[s]))
            A.barrier()
            PF.stamp(f"q{s}")
            if s > 0:
                for u in stage_units[s - 1]: free.append(unit_slot[u])
            refill(s)
            lroll(OPT["pfrate"])
            if s == 8:
                xch.append(free.pop(0)); xch.append(free.pop(0))
            elif s >= OPT["kvs"]:
                for _ in range(OPT["kvrate"]): kv_issue()
            if nq[0] == 27 and nkv[0] >= NL:
                while free:
                    issue_unit_4(27 + nkv[0]); nkv[0] += 1
        A.salu("s_branch K1_ATT")
        ldr_vm = (A.nvm, A.vm_done)
    else:
        A.salu(f"s_cmp_ge_u32 s{sW}, 6")
        A.salu("s_cbranch_scc1 K1_KVL")
        pf0 = PF.n
        kvslots = [free.pop() for _ in range(NSLOT - NQ)]
        def refill(s):
            done_q = 3 * max(s, 0)
            while nq[0] < 27 and nq[0] - done_q < NQ and free:
                issue_unit_q(nq[0]); nq[0] += 1
        refill(-1)
        for s in range(9):
            A.wait_vm(max(unit_last_vm[u] for u in stage_units[s]))
            A.barrier()
            PF.stamp(f"q{s}")
            if s > 0:
                for u in stage_units[s - 1]: free.append(unit_slot[u])
            refill(s)
            if s == 8:
                xch.append(free.pop(0)); xch.append(free.pop(0))
        A.waitcnt(vm=0)
        A.vm_done = A.nvm
        A.salu("s_branch K1_ATT")
        A.label("K1_KVL")
        A.win = []
        A.salu("s_nop 4")
        PF.n = pf0; PF.names = PF.names[:pf0]
        for q in range(2):
            V(f"v_subrev_u32 v{KQ+q}, {6*8*256}, v{KO+q}", w={KQ + q}, r={KO + q})
        V(f"v_lshlrev_b32 v{DV}, 4, v{L}", w={DV}, r={L})
        V(f"v_add_u32 v{DV}, s{sWL4}, v{DV}", w={DV}, r={DV})
        late_free = free[:]; free[:] = kvslots
        NL = len(kvslots)
        TV = FR + 4
        V(f"v_lshlrev_b32 v{TV}, 7, v{L}", w={TV}, r={L})
        A.salu(f"s_lshl_b32 s3, s{sW3}, 13")
        V(f"v_add_u32 v{TV}, s3, v{TV}", w={TV}, r={TV})
        NT = OPT["kvt"]
        ntouch = [0]
        def kv_issue():
            i = nkv[0]
            if i < NL: issue_unit_q(27 + i)
            elif i < NL + NSTG: issue_unit_q(27 + i, STG[i - NL])
            else:
                if ntouch[0] < NT:
                    u = 27 + NL + NSTG + ntouch[0]
                    base, const, sr_, vo, delta, nto = unit_info(u)
                    A.salu(f"s_add_u32 s{sT}, s{base}, {const}")
                    A.vmem(f"buffer_load_dword v{TV+1}, v{TV}, s[{sr_}:{sr_+3}], s{sT} offen", w={TV + 1}, r={TV})
                    ntouch[0] += 1
                return
            nkv[0] += 1
        for _ in range(OPT["kv0"]): kv_issue()
        for s in range(9):
            A.barrier()
            PF.stamp(f"q{s}")
            for _ in range(OPT["kvrate"]): kv_issue()
        assert nkv[0] == NL + NSTG
        free[:] = late_free
        staged = [(27 + NL + i, STG[i]) for i in range(NSTG)]
        while staged and free:
            u, r_ = staged.pop(0)
            A.wait_vm(unit_last_vm[u])
            dump_unit(u, r_)
        A.waitcnt(vm=0)
        A.vm_done = A.nvm
        A.wait_ds_all()
        A.salu("s_branch K1_ATT")
    A.label("K1_FAT")
    A.win = []
    A.salu("s_nop 4")
    PF.n = pf0; PF.names = PF.names[:pf0]
    TW, TX = XO, XO + 1
    if OPT["roll"] == 2:
        pass
    elif OPT["ld4"] and not OPT["roll"]:
        V(f"v_lshlrev_b32 v{TW}, 7, v{L}", w={TW}, r={L})
        A.salu(f"s_lshl_b32 s3, s{sW}, 13")
        V(f"v_add_u32 v{TW}, s3, v{TW}", w={TW}, r={TW})
    else:
        TW, TX = XO, XO + 1
        V(f"v_bfe_u32 v{T1}, v{L}, 2, 1", w={T1}, r={L})
        A.salu(f"s_lshl_b32 s3, s{sW}, 1")
        V(f"v_add_u32 v{T1}, s3, v{T1}", w={T1}, r={T1})
        V(f"v_lshlrev_b32 v{T1}, 13, v{T1}", w={T1}, r={T1})
        V(f"v_and_b32 v{T2}, 3, v{L}", w={T2}, r={L})
        V(f"v_lshl_add_u32 v{TW}, v{T2}, 7, v{T1}", w={TW}, r={T2, T1})
        V(f"v_and_b32 v{T1}, 7, v{L}", w={T1}, r={L})
        V(f"v_min_u32 v{T1}, 6, v{T1}", w={T1}, r={T1})
        A.salu(f"s_mul_i32 s3, s{sW}, 7")
        V(f"v_add_u32 v{T1}, s3, v{T1}", w={T1}, r={T1})
        V(f"v_mul_u32_u24 v{TX}, 1152, v{T1}", w={TX}, r={T1})
        A.salu(f"s_lshl_b32 s8, s{sB}, 16")
        A.salu(f"s_add_u32 s8, s8, s{sWB}")
        A.salu(f"s_and_b32 s9, s{sKVH}, 3")
        A.salu(f"s_mul_i32 s9, s9, {28*1152}")
        A.salu(f"s_add_u32 s9, s9, s{sXB}")
    def touch(s_):
        if not OPT["l2pf"] or s_ > 8: return
        A.salu(f"s_add_u32 s3, s8, {s_ * 64 * 8192}")
        A.vmem(f"buffer_load_dword v{T4}, v{TW}, s[{SW_}:{SW_+3}], s3 offen{NTT}", w={T4}, r={TW})
        A.vmem(f"buffer_load_dword v{T5}, v{TX}, s[{SX}:{SX+3}], s9 offen offset:{s_ * 128}{NTT}", w={T5}, r={TX})
    if OPT["roll"] == 2:
        touch = lambda s_: None
    elif OPT["roll"]:
        touch1 = touch
        nroll = [2]
        def roll(n):
            for _ in range(n):
                touch1(nroll[0]); nroll[0] += 1
        roll(OPT["pflead"] - 2)
        touch = lambda s_: roll(OPT["pfrate"])
    elif OPT["ld4"]:
        flood()
        ntouch = [0]
        def touch(s_):
            s_ -= OPT["pflead"]
            if s_ < OPT["kvt0"]: return
            for _ in range(OPT["kvtr"]):
                if ntouch[0] >= OPT["kvt"]: return
                ua = 27 + NL + 1 + ntouch[0]
                ia = unit_info(ua); ib = unit_info(ua + 1)
                A.salu(f"s_cmp_lt_u32 s{sW}, 2")
                A.salu(f"s_mov_b32 s3, {ib[1] - 16384}")
                A.salu(f"s_cselect_b32 s3, {ia[1]}, s3")
                A.salu(f"s_cselect_b32 s60, s{ia[2]}, s{ib[2]}")
                A.salu(f"s_cselect_b32 s61, s{ia[2]+1}, s{ib[2]+1}")
                A.salu(f"s_mov_b32 s62, s{ia[2]+2}")
                A.salu(f"s_mov_b32 s63, s{ia[2]+3}")
                A.salu(f"s_add_u32 s3, s3, s{sKVB}")
                A.vmem(f"buffer_load_dword v{T4}, v{TW}, s[60:63], s3 offen", w={T4}, r={TW})
                ntouch[0] += 2
    if not OPT["ld4"]:
        for s_ in range(2, OPT["pflead"]): touch(s_)
    if OPT["tlbw"]:
        A.salu("s_load_dwordx2 s[16:17], s[0:1], 32")
        A.salu("s_load_dwordx2 s[18:19], s[0:1], 72")
        A.salu("s_load_dwordx2 s[20:21], s[0:1], 80")
        D = NEGM
        V(f"v_lshlrev_b32 v{T1}, 12, v{L}", w={T1}, r={L})
        V(f"v_and_b32 v{T1}, 0x1ffff, v{T1}", w={T1}, r={T1})
        A.vmem(f"buffer_load_dword v{D}, v{T1}, s[{SV}:{SV+3}], s{sKVB} offen", w={D}, r={T1})
        if OPT["tlbw"] > 1:
            A.vmem(f"buffer_load_dword v{D+1}, v{T1}, s[{SK}:{SK+3}], s{sKVB} offen", w={D + 1}, r={T1})
        V(f"v_min_u32 v{T2}, 6, v{L}", w={T2}, r={L})
        V(f"v_lshlrev_b32 v{T2}, 17, v{T2}", w={T2}, r={T2})
        A.salu(f"s_mul_i32 s3, s{sBLK}, {O_BLK}")
        A.salu(f"s_mul_i32 s{sT}, s{sB}, {7*131072}")
        A.salu(f"s_add_u32 s3, s3, s{sT}")
        if OPT["fuse"]:
            A.salu(f"s_lshl_b32 s{sT}, s{sKVH}, 13")
            A.salu(f"s_add_u32 s3, s3, s{sT}")
            A.vmem(f"buffer_store_dword v{T2}, v{T2}, s[{SO}:{SO+3}], s3 offen sc1", r={T2}, storedata={T2})
        else:
            A.vmem(f"buffer_load_dword v{D+2}, v{T2}, s[{SO}:{SO+3}], s3 offen", w={D + 2}, r={T2})
        V(f"v_lshlrev_b32 v{T3}, 16, v{L}", w={T3}, r={L})
        A.salu("s_waitcnt lgkmcnt(0)")
        A.salu(f"s_cmp_eq_u32 s{sBLK}, 0")
        A.salu("s_cselect_b32 s60, s16, s18")
        A.salu("s_cselect_b32 s61, s17, s19")
        A.salu("s_and_b32 s61, s61, 0xffff")
        A.salu(f"s_mov_b32 s62, {4096*576*2}")
        A.salu("s_mov_b32 s63, 0x00020000")
        A.salu(f"s_mov_b32 s3, {8*65536}")
        A.vmem(f"buffer_load_dword v{D+3}, v{T3}, s[60:63], 0 offen", w={D + 3}, r={T3})
        A.vmem(f"buffer_load_dword v{D+4}, v{T3}, s[60:63], s3 offen", w={D + 4}, r={T3})
        A.salu("s_mov_b32 s16, s20")
        A.salu("s_and_b32 s17, s21, 0xffff")
        A.salu(f"s_mov_b32 s18, {896*1152*2}")
        A.salu("s_mov_b32 s19, 0x00020000")
        A.vmem(f"buffer_load_dword v{D+5}, v{T3}, s[16:19], 0 offen", w={D + 5}, r={T3})
    QA = [S, O]
    FBW = [P, QB]; FBX = [P + 16, QB + 16]
    AW = [FR, FR + 4]; AX = FR + 8
    def qaddr(s):
        u0 = 3 * s
        return (addr_items([AX + i for i in range(4)], BX, unit_slot[u0], [0, 32, 64, 96]) +
                addr_items([AW[0] + i for i in range(4)], BW, unit_slot[u0 + 1], [0, 64, 128, 192]) +
                addr_items([AW[1] + i for i in range(4)], BW, unit_slot[u0 + 2], [0, 64, 128, 192]))
    def qread_items(ks):
        it = [lambda: A.ds_read_b128(FBX[ks % 2], AX + ks), lambda: A.ds_read_b128(FBX[ks % 2] + 4, AX + ks, 4096)]
        for t in range(4):
            for j in range(2):
                it.append(lambda t=t, j=j: A.ds_read_tr(FBW[ks % 2] + 4 * t + 2 * j, AW[ks // 2] + t, ((ks % 2) * 16 + 4 * j) * 512))
        return it
    def qreads(ks):
        for it in qread_items(ks): last = it()
        return last
    for it in qaddr(0): it()
    A.barrier()
    PF.stamp("q0")
    pend = qreads(0)
    touch(OPT["pflead"])
    QI = OPT["qi"]
    for s in range(9):
        for ks in range(4):
            A.wait_ds(pend)
            rq = []
            if ks < 3:
                if QI: rq = qread_items(ks + 1)
                else: pend = qreads(ks + 1)
            nxt = qaddr(s + 1) if (ks == 3 and s < 8) else []
            m = 0
            for t in range(4):
                for r2 in range(2):
                    A.mfma(QA[r2] + 16 * t, FBW[ks % 2] + 4 * t, FBX[ks % 2] + 4 * r2, "zero" if (s == 0 and ks == 0) else None)
                    if nxt:
                        if m < 2:
                            for it in nxt[6 * m: 6 * m + 6]: it()
                        if m == 1:
                            A.barrier()
                            PF.stamp(f"q{s+1}")
                            if QI: rq = qread_items(0)
                            else: pend = qreads(0)
                        if m == 3: touch(s + 1 + OPT["pflead"])
                    for _ in range(QI):
                        if rq: pend = rq.pop(0)()
                    m += 1
            assert not rq
    A.salu(f"s_lshr_b32 s3, s{sW}, 1")
    A.salu(f"s_cmp_eq_u32 s3, 0")
    A.salu(f"s_cselect_b32 s3, {xch[0]}, {xch[1]}")
    A.salu(f"s_lshl_b32 s3, s3, 14")
    A.salu(f"s_and_b32 s{sT}, s{sW}, 1")
    A.salu(f"s_lshl_b32 s{sT}, s{sT}, 13")
    A.salu(f"s_add_u32 s3, s3, s{sT}")
    V(f"v_lshlrev_b32 v{T6}, 4, v{L}", w={T6}, r={L})
    V(f"v_add_u32 v{T6}, s3, v{T6}", w={T6}, r={T6})
    for i in range(64):
        V(f"v_mul_f32 v{O+i}, s{sC}, v{O+i}", w={O + i}, r={O + i})
    for q in range(32):
        V(f"v_cvt_pk_bf16_f32 v{P+q}, v{O+2*q}, v{O+2*q+1}", w={P + q}, r={O + 2 * q, O + 2 * q + 1})
        if q % 4 == 3:
            A.ds_write_b128(T6, P + q - 3, (q // 4) * 1024)
    for i in range(64):
        V(f"v_mul_f32 v{S+i}, s{sC}, v{S+i}", w={S + i}, r={S + i})
    for q in range(32):
        V(f"v_cvt_pk_bf16_f32 v{QB+q}, v{S+2*q}, v{S+2*q+1}", w={QB + q}, r={S + 2 * q, S + 2 * q + 1})
    A.wait_ds_all()
    A.waitcnt(vm=0)
    A.vm_done = A.nvm
    if OPT["ld4"]:
        A.nvm, A.vm_done = ldr_vm
    A.label("K1_ATT")
    A.win = []
    A.salu("s_nop 4")
    if OPT["stag"]:
        A.salu(f"s_lshr_b32 s{sT2}, s{sW}, {OPT['stag'] - 1}")

    SETA = [AD + i for i in range(8)]
    SETB = [XO, XO + 1, WO, WO + 1, BW, BX, T4, T5]
    kx = [32 * ks for ks in range(8)]
    vx = [(t << 6) ^ (32 * jj) for t in range(4) for jj in range(2)]
    SB = lambda h: S + 32 * (h % 2)
    PB = lambda h: P + 16 * (h % 2)
    phases = [("qk", 0)] + [x for h in range(7) for x in (("qk", h + 1), ("pv", h))] + [("pv", 7)]
    pset = {}
    for ph in phases:
        pset[ph] = SETA if ph[0] == "qk" else SETB
    pset[("qk", 0)] = SETB; pset[("pv", 7)] = SETA
    punit = lambda ph: UK[ph[1]] if ph[0] == "qk" else UV[ph[1]]
    def paddr(ph):
        u = punit(ph)
        return addr_items(pset[ph], BK if ph[0] == "qk" else BV, unit_slot[u], kx if ph[0] == "qk" else vx)
    mf = [(ph, i) for ph in phases for i in range(16)]
    syncJ = list(range(0, 6, OPT["bstep"]))
    if OPT["fuse"]:
        syncJ.append(6)
        K2 = K2Fused(A, sW, SO, QB)
    sync_pos = [phases.index(("pv", j)) * 16 + 12 for j in syncJ]
    first_read = {}
    for n, (ph, i) in enumerate(mf):
        first_read.setdefault(punit(ph), max(n - 4, -1))
    last_read = {}
    for n, (ph, i) in enumerate(mf):
        last_read[punit(ph)] = n - 4
    def publish_set(pos_from, pos_to):
        return [u for u, fr in first_read.items() if pos_from <= fr < pos_to]
    freed = set()
    dmaq = []
    def refill_att():
        while nkv[0] < 16 and free:
            dmaq.extend(dma_items(27 + nkv[0])); nkv[0] += 1

    pub = publish_set(-1, sync_pos[0])
    A.wait_vm(max(unit_last_vm[u] for u in pub))
    A.barrier()
    PF.stamp("a0")
    for u in stage_units[8]: free.append(unit_slot[u])
    A.salu(f"s_cmp_lt_u32 s{sW}, 4")
    A.salu(f"s_cbranch_scc1 K1_QGOT")
    if staged:
        A.salu(f"s_cmp_lt_u32 s{sW}, 6")
        A.salu(f"s_cbranch_scc1 K1_NODUMP")
        while staged:
            u, r_ = staged.pop(0)
            dump_unit(u, r_)
        A.label("K1_NODUMP")
    refill_att()
    A.salu(f"s_bfe_u32 s3, s{sW}, 0x10001")
    A.salu(f"s_cmp_eq_u32 s3, 0")
    A.salu(f"s_cselect_b32 s3, {xch[0]}, {xch[1]}")
    A.salu(f"s_lshl_b32 s3, s3, 14")
    A.salu(f"s_and_b32 s{sT}, s{sW}, 1")
    A.salu(f"s_lshl_b32 s{sT}, s{sT}, 13")
    A.salu(f"s_add_u32 s3, s3, s{sT}")
    V(f"v_lshlrev_b32 v{T6}, 4, v{L}", w={T6}, r={L})
    V(f"v_add_u32 v{T6}, s3, v{T6}", w={T6}, r={T6})
    for q in range(8):
        A.ds_read_b128(QB + 4 * q, T6, q * 1024)
    A.wait_ds_all()
    A.label("K1_QGOT")
    A.salu("s_nop 1")
    for it in paddr(("qk", 0)) + paddr(("qk", 1)): it()

    TT = [T0, T1, T2, T3]
    def max_items(regs, first, final):
        it = []
        r = list(regs)
        if first:
            a = r[:3]; b = r[3:6]; r = r[6:]
            it.append(lambda a=a: V(f"v_max3_f32 v{MX}, v{a[0]}, v{a[1]}, v{a[2]}", w={MX}, r=set(a)))
            it.append(lambda b=b: V(f"v_max3_f32 v{MX2}, v{b[0]}, v{b[1]}, v{b[2]}", w={MX2}, r=set(b)))
        k = 0
        while r:
            a = r[:2]; r = r[2:]
            d = MX if k % 2 == 0 else MX2
            it.append(lambda a=a, d=d: V(f"v_max3_f32 v{d}, v{d}, v{a[0]}, v{a[1]}", w={d}, r={d} | set(a)))
            k += 1
        if final:
            it.append(lambda: V(f"v_max_f32 v{MX}, v{MX}, v{MX2}", w={MX}, r={MX, MX2}))
            it.append(lambda: V(f"v_mov_b32 v{MX2}, v{MX}", w={MX2}, r={MX}))
            it.append(lambda: V(f"v_permlane32_swap_b32 v{MX}, v{MX2}", w={MX, MX2}, r={MX, MX2}, kind="perm"))
            it.append(lambda: V(f"v_max_f32 v{MX}, v{MX}, v{MX2}", w={MX}, r={MX, MX2}))
        return it
    def sm_items(h, lo, hi, sub):
        it = []
        sb, pb = SB(h), PB(h)
        if sub:
            it.append(lambda: V(f"v_sub_f32 v{sb+lo}, v{sb+lo}, v{MX}", w={sb + lo}, r={sb + lo, MX}))
        for e in range(lo, hi + 2):
            if sub and e + 1 < hi:
                it.append(lambda e=e: V(f"v_sub_f32 v{sb+e+1}, v{sb+e+1}, v{MX}", w={sb + e + 1}, r={sb + e + 1, MX}))
            if e < hi:
                it.append(lambda e=e: V(f"v_exp_f32 v{TT[e%4]}, v{sb+e}", w={TT[e % 4]}, r={sb + e}, kind="trans"))
            if lo <= e - 1 < hi:
                p = e - 1; acc = SUMA if p % 2 == 0 else SUMB
                if p < 2:
                    it.append(lambda p=p, acc=acc: V(f"v_mov_b32 v{acc}, v{TT[p%4]}", w={acc}, r={TT[p % 4]}))
                else:
                    it.append(lambda p=p, acc=acc: V(f"v_add_f32 v{acc}, v{acc}, v{TT[p%4]}", w={acc}, r={acc, TT[p % 4]}))
            if e - 2 >= lo and (e - 2) % 2 == 0 and e - 1 < hi:
                p = e - 2
                it.append(lambda p=p: V(f"v_cvt_pk_bf16_f32 v{pb+p//2}, v{TT[p%4]}, v{TT[(p+1)%4]}", w={pb + p // 2}, r={TT[p % 4], TT[(p + 1) % 4]}))
        return it
    def negm_items():
        return [lambda i=i: V(f"v_sub_f32 v{NEGM+i}, 0, v{MX}", w={NEGM + i}, r={MX}) for i in range(16)]
    def check(h):
        V(f"v_add_f32 v{SUMA}, v{SUMA}, v{SUMB}", w={SUMA}, r={SUMA, SUMB})
        if h > 0:
            V(f"v_cmp_nge_f32 vcc, s{sTHR}, v{SUMA}", r={SUMA}, sw={"vcc"})
            A.salu("s_nop 1")
            A.salu(f"s_cbranch_vccnz K1_SLOW{h}")
            A.label(f"K1_BACK{h}")
        V(f"v_add_f32 v{LSUM}, v{LSUM}, v{SUMA}", w={LSUM}, r={LSUM, SUMA})

    def side_for(ph):
        kind, h = ph
        if ph == ("qk", 0):
            return [], []
        if kind == "qk":
            hh = h - 1
            if hh == 0:
                main = max_items([SB(0) + i for i in range(32)], True, True) + sm_items(0, 0, 32, True)
            else:
                main = sm_items(hh, 16, 32, hh == 1)
            return main, paddr(("pv", hh))
        if h == 7: return [], []
        if h == 6:
            return sm_items(7, 0, 32, False), paddr(("pv", 7)) + (K2.addr_items() if OPT["fuse"] and OPT["fuse"] != 6 else [])
        main = sm_items(h + 1, 0, 16, h == 0)
        if h == 0: main = negm_items() + main
        return main, paddr(("qk", h + 2))

    rid = {}
    def issue_read(n):
        ph, i = mf[n]
        st = pset[ph]; fr = FR + 4 * (n % 4)
        if ph[0] == "qk":
            rid[n] = A.ds_read_b128(fr, st[i % 8], (i // 8) * 8192)
        else:
            g, t = i // 4, i % 4
            A.ds_read_tr(fr, st[2 * t], g * 4096)
            rid[n] = A.ds_read_tr(fr + 2, st[2 * t + 1], g * 4096 + 2048)
    for n in range(4): issue_read(n)
    gap = 0
    for n, (ph, i) in enumerate(mf):
        kind, h = ph
        if i == 0:
            main, adr = side_for(ph)
            plan = [[] for _ in range(16)]
            for k, it in enumerate(adr): plan[k * 12 // max(len(adr), 1)].append(it)
            s0 = 1 if ph == ("qk", 1) else 0
            for k, it in enumerate(main): plan[s0 + k * (16 - s0) // len(main)].append(it)
        A.wait_ds(rid[n])
        fr = FR + 4 * (n % 4)
        if kind == "qk":
            kt, ks = i // 8, i % 8
            c = None
            if ks == 0: c = "zero" if h <= 1 else NEGM
            A.mfma(SB(h) + 16 * kt, fr, QB + 4 * ks, c)
        else:
            g, t = i // 4, i % 4
            A.mfma(O + 16 * t, fr, PB(h) + 4 * g, "zero" if (h == 0 and g == 0) else None)
        if n in sync_pos:
            k = sync_pos.index(n)
            pub = publish_set(n, sync_pos[k + 1] if k + 1 < len(sync_pos) else 10**9)
            while dmaq: dmaq.pop(0)()
            A.wait_ds_all()
            A.wait_vm(max(unit_last_vm[u] for u in pub))
            A.barrier()
            PF.stamp(f"x{h}")
            if k == 0: free.extend(xch)
            for u, lr in last_read.items():
                if lr < n and u not in freed:
                    freed.add(u); free.append(unit_slot[u])
            refill_att()
            if OPT["fuse"] == 6:
                if h == 1: K2.loads()
                if h == 2: K2.scalars()
                if h == 3: K2.addr6()
                if h >= OPT["wo0"]:
                    assert nkv[0] == 16
                    while free and len(K2.slots6) < 8:
                        j = len(K2.slots6); K2.slots6.append(free.pop(0))
                        if h < 6 or OPT["wo6"]:
                            dmaq.extend([lambda j=j, q=q: K2.wo_piece(j >> 1, (j & 1) * 2 + q) for q in range(2)])
                            K2.done6 = j + 1
            elif OPT["fuse"]:
                if h == 4: K2.loads()
                if h == 5: K2.scalars()
                if h == 6:
                    assert len(free) >= 8, free
                    its = K2.wo_items(free[:8])
                    K2.mslot = free[8]
                    if OPT["fuse"] < 3: dmaq.extend(its)
            if OPT["wopf"] and h == OPT["wopf"] - 1:
                A.salu("s_load_dwordx2 s[60:61], s[0:1], 32")
                A.salu("s_load_dwordx2 s[62:63], s[0:1], 72")
                if OPT["xm"]:
                    A.salu(f"s_lshr_b32 s3, s2, 3")
                    A.salu(f"s_lshl_b32 s3, s3, 3")
                    A.salu(f"s_add_u32 s3, s3, s{sW}")
                    A.salu(f"s_mul_i32 s3, s3, {16*1152}")
                    A.salu(f"s_and_b32 s{sT}, s2, 1")
                    A.salu(f"s_lshl_b32 s{sT}, s{sT}, 9")
                    A.salu(f"s_add_u32 s3, s3, s{sT}")
                    V(f"v_mbcnt_lo_u32_b32 v{T6}, -1, 0", w={T6})
                    V(f"v_mbcnt_hi_u32_b32 v{T6}, -1, v{T6}", w={T6}, r={T6})
                    V(f"v_lshrrev_b32 v{T7}, 2, v{T6}", w={T7}, r={T6})
                    V(f"v_mul_u32_u24 v{T7}, 1152, v{T7}", w={T7}, r={T7})
                    V(f"v_and_b32 v{T6}, 3, v{T6}", w={T6}, r={T6})
                    V(f"v_lshl_add_u32 v{T6}, v{T6}, 7, v{T7}", w={T6}, r={T6, T7})
                else:
                    if OPT["wox"]:
                        A.salu(f"s_lshr_b32 s3, s2, 5")
                        A.salu(f"s_lshl_b32 s3, s3, 4")
                        A.salu(f"s_bfe_u32 s{sT}, s2, 0x20003")
                        A.salu(f"s_add_u32 s3, s3, s{sT}")
                    else:
                        A.salu(f"s_lshl_b32 s3, s{sB}, 4")
                        A.salu(f"s_add_u32 s3, s3, s{sKVH}")
                    A.salu(f"s_mul_i32 s3, s3, 288")
                    A.salu(f"s_lshl_b32 s{sT}, s{sW}, 6")
                    A.salu(f"s_min_u32 s{sT}, s{sT}, 224")
                    A.salu(f"s_add_u32 s3, s3, s{sT}")
                    A.salu(f"s_lshl_b32 s3, s3, 7")
                    V(f"v_mbcnt_lo_u32_b32 v{T7}, -1, 0", w={T7})
                    V(f"v_mbcnt_hi_u32_b32 v{T7}, -1, v{T7}", w={T7}, r={T7})
                    V(f"v_lshlrev_b32 v{T7}, 7, v{T7}", w={T7}, r={T7})
                A.salu("s_waitcnt lgkmcnt(0)")
                A.salu(f"s_cmp_eq_u32 s{sBLK}, 0")
                A.salu("s_cselect_b32 s60, s60, s62")
                A.salu("s_cselect_b32 s61, s61, s63")
                A.salu("s_and_b32 s61, s61, 0xffff")
                A.salu(f"s_mov_b32 s62, {4096*576*2}")
                A.salu("s_mov_b32 s63, 0x00020000")
                if OPT["xm"]:
                    A.salu("s_mov_b32 exec_lo, 0x88888888")
                    A.salu("s_mov_b32 exec_hi, 0x88888888")
                    A.vmem(f"buffer_load_dword v{T7}, v{T6}, s[60:63], s3 offen offset:128", w={T7}, r={T6})
                    A.salu("s_mov_b64 exec, -1")
                TA_ = T6 if OPT["xm"] else T7
                A.vmem(f"buffer_load_dword v{T7}, v{TA_}, s[60:63], s3 offen", w={T7}, r={TA_})
        if n + 4 < len(mf): issue_read(n + 4)
        for it in plan[i]: it()
        gap += 1
        if dmaq and gap >= OPT["dmagap"]:
            dmaq.pop(0)(); gap = 0
        if i == 15:
            if kind == "qk" and h >= 1: check(h - 1)
            if ph == ("pv", 6): check(7)
    assert not dmaq
    PF.stamp("pv7")
    V(f"v_mov_b32 v{T0}, v{LSUM}", w={T0}, r={LSUM})
    V(f"v_permlane32_swap_b32 v{T0}, v{LSUM}", w={T0, LSUM}, r={T0, LSUM}, kind="perm")
    V(f"v_add_f32 v{T0}, v{T0}, v{LSUM}", w={T0}, r={T0, LSUM})
    V(f"v_rcp_f32 v{T0}, v{T0}", w={T0}, r={T0}, kind="trans")
    A.salu(f"s_cmp_eq_u32 s{sRT}, 3")
    A.salu("s_cbranch_scc0 K1_NOMASK")
    A.salu("s_mov_b32 exec_lo, 0xffff")
    A.salu("s_mov_b32 exec_hi, 0xffff")
    A.label("K1_NOMASK")
    for f in range(8):
        b0 = O + 8 * f
        for i in range(8):
            V(f"v_mul_f32 v{b0+i}, v{T0}, v{b0+i}", w={b0 + i}, r={T0, b0 + i})
        d = P + 4 * f
        for q in range(4):
            V(f"v_cvt_pk_bf16_f32 v{d+q}, v{b0+2*q}, v{b0+2*q+1}", w={d + q}, r={b0 + 2 * q, b0 + 2 * q + 1})
        A.vmem(f"buffer_store_dwordx4 {vname(d,4)}, v{OST}, s[{SO}:{SO+3}], s{sOB} offen offset:{f*512}{' sc1' if OPT['fuse'] else ' nt' if OPT['ntst'] else ''}", r=vr(d, 4) | {OST}, storedata=vr(d, 4))
    if OPT["fuse"]:
        K2.body(PF, sBLK, sB, sKVH)
    PF.dump(24, sW, 0)
    A.label("K1_END")
    A.salu("s_endpgm")
    for h in range(1, 8):
        A.label(f"K1_SLOW{h}")
        A.flush_hazards()
        sb = SB(h)
        for it in max_items([sb + i for i in range(32)], True, True): it()
        V(f"v_max_f32 v{MX}, 0, v{MX}", w={MX}, r={MX})
        V(f"v_sub_f32 v{MX2}, 0, v{MX}", w={MX2}, r={MX})
        V(f"v_exp_f32 v{MX2}, v{MX2}", w={MX2}, r={MX2}, kind="trans")
        for i in range(64):
            V(f"v_mul_f32 v{O+i}, v{MX2}, v{O+i}", w={O + i}, r={MX2, O + i})
        V(f"v_mul_f32 v{LSUM}, v{MX2}, v{LSUM}", w={LSUM}, r={MX2, LSUM})
        for i in range(16):
            V(f"v_sub_f32 v{NEGM+i}, v{NEGM+i}, v{MX}", w={NEGM + i}, r={NEGM + i, MX})
        if h < 7:
            s2 = SB(h + 1)
            for i in range(32):
                V(f"v_sub_f32 v{s2+i}, v{s2+i}, v{MX}", w={s2 + i}, r={s2 + i, MX})
        for it in sm_items(h, 0, 32, True): it()
        V(f"v_add_f32 v{SUMA}, v{SUMA}, v{SUMB}", w={SUMA}, r={SUMA, SUMB})
        A.flush_hazards()
        A.salu(f"s_branch K1_BACK{h}")

class K2Fused:
    def __init__(self, A, sW, SO, WOFF):
        self.A = A; self.sW = sW; self.SO = SO; self.WOFF = WOFF
        self.SWO, self.SOUT, self.SDBG = 28, 32, 20
        self.sBLK, self.sTT, self.sMT, self.sNT = 16, 17, 18, 19
        self.sWL, self.sWB, self.sO0, self.sO1, self.sT = 49, 50, 8, 9, 52
        self.sP0, self.sP1 = 10, 11
        self.last_vm = {}
    def loads(self):
        A = self.A
        A.salu("s_load_dwordx2 s[8:9], s[0:1], 32")
        A.salu("s_load_dwordx2 s[10:11], s[0:1], 72")
        A.salu("s_load_dwordx2 s[12:13], s[0:1], 80")
        A.salu("s_load_dwordx2 s[14:15], s[0:1], 88")
    def scalars(self):
        A = self.A; sW = self.sW
        sBLK, sTT, sMT, sNT = self.sBLK, self.sTT, self.sMT, self.sNT
        A.salu("s_waitcnt lgkmcnt(0)")
        if OPT["xm"]:
            A.salu("s_bitcmp1_b32 s2, 2")
            A.salu(f"s_cselect_b32 s{sBLK}, 1, 0")
            A.salu("s_cselect_b32 s8, s10, s8")
            A.salu("s_cselect_b32 s9, s11, s9")
            srd(A, self.SWO, 8, 4096 * 576 * 2)
            srd(A, self.SOUT, 12, 896 * 1152 * 2)
            srd(A, self.SDBG, 14, 256)
            A.salu("s_lshr_b32 s3, s2, 3")
            A.salu("s_and_b32 s12, s2, 1")
            A.salu(f"s_lshr_b32 s{sMT}, s3, 2")
            A.salu(f"s_and_b32 s{sNT}, s3, 3")
            A.salu("s_mul_i32 s13, s12, 5")
            A.salu(f"s_add_u32 s{sNT}, s{sNT}, s13")
            A.salu("s_lshl_b32 s13, s12, 2")
            A.salu("s_add_u32 s13, s13, s3")
            A.salu("s_sub_u32 s13, s13, 28")
            A.salu("s_cmp_ge_u32 s3, 28")
            A.salu(f"s_cselect_b32 s{sMT}, s13, s{sMT}")
            A.salu(f"s_cselect_b32 s{sNT}, 4, s{sNT}")
            A.salu(f"s_cmp_eq_u32 s{sMT}, 7")
            A.salu(f"s_cselect_b32 s{sTT}, 255, 0")
            A.salu(f"s_min_u32 s{sMT}, s{sMT}, 6")
            A.salu("s_bfe_u32 s13, s2, 0x10001")
            A.salu("s_mul_i32 s13, s13, 7")
            A.salu(f"s_add_u32 s{sMT}, s{sMT}, s13")
        else:
            A.salu("s_and_b32 s3, s2, 7")
            A.salu("s_lshl_b32 s3, s3, 5")
            A.salu(f"s_lshr_b32 s{sTT}, s2, 3")
            A.salu(f"s_add_u32 s{sTT}, s3, s{sTT}")
            A.salu(f"s_min_u32 s3, s{sTT}, 251")
            A.salu("s_cmp_ge_u32 s3, 126")
            A.salu(f"s_cselect_b32 s{sBLK}, 1, 0")
            A.salu("s_cselect_b32 s8, s10, s8")
            A.salu("s_cselect_b32 s9, s11, s9")
            srd(A, self.SWO, 8, 4096 * 576 * 2)
            srd(A, self.SOUT, 12, 896 * 1152 * 2)
            srd(A, self.SDBG, 14, 256)
            A.salu(f"s_mul_i32 s12, s{sBLK}, 126")
            A.salu("s_sub_u32 s3, s3, s12")
            A.salu("s_mul_i32 s12, s3, 57")
            A.salu(f"s_lshr_b32 s{sMT}, s12, 9")
            A.salu(f"s_mul_i32 s12, s{sMT}, 9")
            A.salu(f"s_sub_u32 s{sNT}, s3, s12")
        A.salu(f"s_mul_i32 s{self.sWB}, s{sW}, {(32 if OPT['fuse'] == 5 else 512)*1152}")
        A.salu(f"s_lshl_b32 s12, s{sNT}, 7")
        A.salu(f"s_add_u32 s{self.sWB}, s{self.sWB}, s12")
        A.salu(f"s_mul_i32 s{self.sO0}, s{sBLK}, {O_BLK}")
        A.salu(f"s_lshl_b32 s12, s{sMT}, 19")
        A.salu(f"s_add_u32 s{self.sO0}, s{self.sO0}, s12")
        A.salu(f"s_lshl_b32 s12, s{sW}, {10 if OPT['fuse'] == 5 else 14}")
        A.salu(f"s_add_u32 s{self.sO0}, s{self.sO0}, s12")
        A.salu(f"s_add_u32 s{self.sO1}, s{self.sO0}, {2*131072}")
        if OPT["ntf"]:
            A.salu(f"s_lshl_b32 s12, s{sBLK}, 6")
            if not OPT["dc"]: A.salu("s_add_u32 s12, s12, 128")
        else:
            A.salu(f"s_lshl_b32 s12, s{sBLK}, 7")
            A.salu(f"s_lshr_b32 s13, s{sW}, 1")
            A.salu("s_lshl_b32 s13, s13, 2")
            A.salu("s_add_u32 s12, s12, s13")
        sh = 2 if OPT["ntf"] else 4
        A.salu(f"s_mul_i32 s13, s{sMT}, 148")
        A.salu(f"s_lshr_b32 s{self.sP0}, s13, 8")
        A.salu(f"s_lshl_b32 s{self.sP0}, s{self.sP0}, {sh}")
        A.salu(f"s_add_u32 s{self.sP0}, s{self.sP0}, s12")
        A.salu("s_add_u32 s13, s13, 111")
        A.salu(f"s_lshr_b32 s{self.sP1}, s13, 8")
        A.salu(f"s_lshl_b32 s{self.sP1}, s{self.sP1}, {sh}")
        A.salu(f"s_add_u32 s{self.sP1}, s{self.sP1}, s12")
    def addr_items(self):
        V = self.A.valu; W = self.WOFF
        L, T1, T2, T4 = W + 4, W + 5, W + 6, W + 7
        return [
            lambda: V(f"v_mbcnt_lo_u32_b32 v{L}, -1, 0", w={L}),
            lambda: V(f"v_mbcnt_hi_u32_b32 v{L}, -1, v{L}", w={L}, r={L}),
            lambda: V(f"v_lshrrev_b32 v{T1}, 3, v{L}", w={T1}, r={L}),
            lambda: V(f"v_mul_u32_u24 v{T1}, 1152, v{T1}", w={T1}, r={T1}),
            lambda: V(f"v_bfe_u32 v{T2}, v{L}, 4, 1", w={T2}, r={L}),
            lambda: V(f"v_lshlrev_b32 v{T2}, 2, v{T2}", w={T2}, r={T2}),
            lambda: V(f"v_and_b32 v{T4}, 7, v{L}", w={T4}, r={L}),
            lambda: V(f"v_xor_b32 v{T4}, v{T4}, v{T2}", w={T4}, r={T4, T2}),
            lambda: V(f"v_lshl_add_u32 v{W}, v{T4}, 4, v{T1}", w={W}, r={T4, T1}),
        ] + [lambda i=i: V(f"v_add_u32 v{W+i}, {9216*i}, v{W}", w={W + i}, r={W}) for i in range(1, 4)]
    def addr6(self):
        V = self.A.valu
        W, L, T1 = 6, 13, 12
        V(f"v_mbcnt_lo_u32_b32 v{L}, -1, 0", w={L})
        V(f"v_mbcnt_hi_u32_b32 v{L}, -1, v{L}", w={L}, r={L})
        V(f"v_lshrrev_b32 v{T1}, 3, v{L}", w={T1}, r={L})
        V(f"v_mul_u32_u24 v{T1}, 1152, v{T1}", w={T1}, r={T1})
        V(f"v_and_b32 v{W}, 7, v{L}", w={W}, r={L})
        V(f"v_bfe_u32 v{L}, v{L}, 4, 1", w={L}, r={L})
        V(f"v_lshlrev_b32 v{L}, 2, v{L}", w={L}, r={L})
        V(f"v_xor_b32 v{W}, v{W}, v{L}", w={W}, r={W, L})
        V(f"v_lshl_add_u32 v{W}, v{W}, 4, v{T1}", w={W}, r={W, T1})
        self.A.salu(f"s_lshl_b32 s{self.sWL}, s{self.sW}, 11")
        self.slots6 = []
    def wo_piece(self, u, i):
        A = self.A; W = self.WOFF; S = self.SWO
        if OPT["fuse"] == 6:
            A.salu(f"s_add_u32 s{self.sT}, s{self.sWB}, {u * 32 * 1152 + i * 9216}")
            A.salu(f"s_add_u32 m0, s{self.sWL}, {self.slots6[2 * (u % OPT['ring']) + (i >> 1)] * SLOT + (i & 1) * 1024}", m0w=True)
            return A.vmem(f"buffer_load_dwordx4 v6, s[{S}:{S+3}], s{self.sT} offen{' nt' if OPT['ntwo'] else ''} lds", kind="dma", r={6}, m0r=True)
        A.salu(f"s_add_u32 s{self.sT}, s{self.sWB}, {u * 32 * 1152}")
        A.salu(f"s_add_u32 m0, s{self.sWL}, {(u % 4) * 4096 + i * 1024}", m0w=True)
        A.vmem(f"buffer_load_dwordx4 v{W+i}, s[{S}:{S+3}], s{self.sT} offen{' nt' if OPT['ntwo'] else ''} lds", kind="dma", r={W + i}, m0r=True)
    def wo_items(self, slots):
        A = self.A
        tab = sum(s << (4 * w) for w, s in enumerate(slots))
        A.salu(f"s_lshl_b32 s3, s{self.sW}, 2")
        A.salu(f"s_lshr_b32 s3, {tab:#x}, s3")
        A.salu("s_and_b32 s3, s3, 15")
        A.salu(f"s_lshl_b32 s{self.sWL}, s3, 14")
        return [lambda u=u, i=i: self.wo_piece(u, i) for u in range(4) for i in range(4)]
    def dyn(self, PF, L, OOFF, BA, AF, OF, ACC):
        A = self.A; V = A.valu; sW = self.sW; SO = self.SO; SDBG = self.SDBG; W = self.WOFF; S = self.SWO
        T1, T2, T3, T4 = 1, 2, 3, 4
        PD = 8
        vPA, vMA, vT, vM = W + 4, W + 5, W + 6, W + 7
        sPM, sCNT, sDONE, sJ, sA, sB_ = 60, 62, 63, 12, 13, 14
        V(f"v_mov_b32 v{vPA}, s{self.sP1}", w={vPA})
        V(f"v_mov_b32 v{T4}, s{self.sP0}", w={T4})
        V(f"v_cmp_gt_u32 vcc, 16, v{L}", r={L}, sw={"vcc"})
        V(f"v_cndmask_b32 v{vPA}, v{vPA}, v{T4}, vcc", w={vPA}, r={vPA, T4}, sr={"vcc"})
        V(f"v_and_b32 v{T4}, 15, v{L}", w={T4}, r={L})
        V(f"v_add_u32 v{vPA}, v{T4}, v{vPA}", w={vPA}, r={vPA, T4})
        V(f"v_mov_b32 v{vMA}, {self.mslot * SLOT}", w={vMA})
        V(f"v_mov_b32 v{vT}, 0", w={vT})
        A.ds(f"ds_write_b32 v{vMA}, v{vT}", r={vMA, vT})
        A.salu(f"s_cmp_eq_u32 s{sW}, 0")
        A.salu(f"s_cselect_b32 s{sPM}, -1, 0")
        A.salu(f"s_mov_b32 s{sPM+1}, 0")
        A.salu(f"s_mov_b32 s{sCNT}, 0x40000")
        A.salu(f"s_mov_b32 s{sDONE}, 0")
        A.salu(f"s_mov_b32 s15, 0")
        A.waitcnt(vm=0, lgkm=0); A.vm_done = A.nvm; A.ds_done = A.nds
        PF.stamp("st")
        A.barrier()
        A.salu("s_cbranch_scc0 K1_NOFLAG")
        A.salu("s_mov_b64 exec, 1")
        A.salu(f"buffer_atomic_add v{T2}, v{T1}, s[{SDBG}:{SDBG+3}], 0 offen sc1")
        A.salu("s_mov_b64 exec, -1")
        A.label("K1_NOFLAG")
        A.salu(f"s_cmp_ge_u32 s{self.sTT}, 252")
        A.salu("s_cbranch_scc1 K1_END")
        def poll(r, counted=True):
            A.salu(f"s_mov_b64 exec, s[{sPM}:{sPM+1}]")
            txt = f"buffer_load_ubyte v{PD+r}, v{vPA}, s[{SDBG}:{SDBG+3}], 0 offen sc1"
            if counted: A.vmem(txt, w={PD + r}, r={vPA})
            else: A.salu(txt)
            A.salu("s_mov_b64 exec, -1")
        def consume(r):
            A.salu(f"s_mov_b64 exec, s[{sPM}:{sPM+1}]")
            V(f"v_cmp_ne_u32 vcc, 0, v{PD+r}", r={PD + r}, sw={"vcc"})
            A.salu("s_nop 1")
            A.salu(f"s_lshr_b32 s{sA}, vcc_lo, 16")
            A.salu(f"s_and_b32 s{sA}, s{sA}, vcc_lo")
            A.salu(f"s_or_b32 s15, s15, s{sA}")
            V(f"v_mov_b32 v{vT}, s15", w={vT})
            A.ds(f"ds_write_b32 v{vMA}, v{vT}", r={vMA, vT})
            A.salu("s_mov_b64 exec, -1")
        def pick(k):
            A.label(f"K1_PK{k}")
            A.ds(f"ds_read_b32 v{vM}, v{vMA}", w={vM}, r={vMA})
            A.waitcnt(lgkm=0); A.ds_done = A.nds
            A._emit(I(f"v_readfirstlane_b32 s{sA}, v{vM}", "rdlane", r={vM}, sw={sA}))
            A.salu(f"s_andn2_b32 s{sA}, s{sA}, s{sDONE}", sr={sA})
            A.salu(f"s_cbranch_scc1 K1_PG{k}")
            poll(k % 4, False)
            A.salu("s_waitcnt vmcnt(0)")
            consume(k % 4)
            A.salu(f"s_sleep {OPT['slp']}")
            A.salu(f"s_sub_u32 s{sCNT}, s{sCNT}, 1")
            A.salu(f"s_cmp_lg_u32 s{sCNT}, 0")
            A.salu(f"s_cbranch_scc1 K1_PK{k}")
            A.salu(f"s_mov_b32 s{sCNT}, 1")
            A.salu(f"s_andn2_b32 s{sA}, 0xffff, s{sDONE}")
            A.label(f"K1_PG{k}")
            A.salu(f"s_ff1_i32_b32 s{sJ}, s{sA}")
            A.salu(f"s_bitset1_b32 s{sDONE}, s{sJ}")
        NU = 16; DEPTH = 4
        last_vm = {}
        def issue(u):
            slot = u % DEPTH
            pick(u)
            if self.first: PF.stamp("go"); self.first = False
            if 4 <= u: poll(u % 4)
            A.salu(f"s_mul_i32 s{sA}, s{sJ}, {256*1152}")
            A.salu(f"s_add_u32 s{sA}, s{sA}, s{self.sWB}")
            for i in range(4):
                A.salu(f"s_add_u32 m0, s{self.sWL}, {slot * 4096 + i * 1024}", m0w=True)
                A.vmem(f"buffer_load_dwordx4 v{W+i}, s[{S}:{S+3}], s{sA} offen{' nt' if OPT['ntwo'] else ''} lds", kind="dma", r={W + i}, m0r=True)
            A.salu(f"s_lshl_b32 s{sJ}, s{sJ}, 13")
            A.salu(f"s_add_u32 s{sA}, s{sJ}, s{self.sO0}")
            A.salu(f"s_add_u32 s{sB_}, s{sJ}, s{self.sO1}")
            for ks in range(2):
                for tm in range(2):
                    d = OF + slot * 16 + (ks * 2 + tm) * 4
                    k = A.vmem(f"buffer_load_dwordx4 {vname(d,4)}, v{OOFF}, s[{SO}:{SO+3}], s{sA if tm == 0 else sB_} offen offset:{ks*512} sc1", w=vr(d, 4), r={OOFF})
            last_vm[u] = k
        def dsreads(u):
            slot = u % DEPTH
            ab = AF + (u % 2) * 16
            for ks in range(2):
                for tn in range(2):
                    for j in range(2):
                        k = A.ds_read_tr(ab + (ks * 2 + tn) * 4 + 2 * j, BA + tn, slot * 4096 + (16 * ks + 8 * j) * 128)
            return k
        self.first = True
        for u in range(DEPTH): issue(u)
        A.wait_vm(last_vm[0])
        pend = dsreads(0)
        for u in range(NU):
            A.wait_ds(pend)
            if u + 1 < NU:
                A.wait_vm(last_vm[u + 1])
                if u + 1 >= 4 and u + DEPTH < NU: consume((u + 1) % 4)
                pend = dsreads(u + 1)
            ab = AF + (u % 2) * 16
            ob = OF + (u % DEPTH) * 16
            for ks in range(2):
                for tn in range(2):
                    for tm in range(2):
                        c = "zero" if (u == 0 and ks == 0) else None
                        A.mfma(ACC + (tn * 2 + tm) * 16, ab + (ks * 2 + tn) * 4, ob + (ks * 2 + tm) * 4, c)
            if u + DEPTH < NU: issue(u + DEPTH)
            if u in (0, 7, 15): PF.stamp(f"u{u}")
    def body(self, PF, sBLK1, sB1, sKVH1):
        A = self.A; V = A.valu; sW = self.sW; SO = self.SO
        T0, T1, T2, T3, T4, T5, T6, T7 = 0, 1, 2, 3, 4, 5, 9, 8
        WOFF = self.WOFF; OOFF = 12; BA = 13; RED = 15; AF = 16; OF = 96; ACC = 160
        sBLK, sMT, sNT = self.sBLK, self.sMT, self.sNT
        SOUT, SDBG = self.SOUT, self.SDBG
        sWL, sO0, sO1, sT = self.sWL, self.sO0, self.sO1, self.sT
        L = T0
        A.salu("s_mov_b64 exec, -1")
        V(f"v_mbcnt_lo_u32_b32 v{L}, -1, 0", w={L})
        V(f"v_mbcnt_hi_u32_b32 v{L}, -1, v{L}", w={L}, r={L})
        V(f"v_bfe_u32 v{T2}, v{L}, 4, 1", w={T2}, r={L})
        V(f"v_lshrrev_b32 v{T1}, 5, v{L}", w={T1}, r={L})
        V(f"v_bfe_u32 v{T3}, v{L}, 2, 2", w={T3}, r={L})
        V(f"v_and_b32 v{T4}, 3, v{L}", w={T4}, r={L})
        V(f"v_lshlrev_b32 v{T6}, 17, v{T2}", w={T6}, r={T2})
        V(f"v_lshl_add_u32 v{T6}, v{T1}, 8, v{T6}", w={T6}, r={T1, T6})
        V(f"v_and_b32 v{T7}, 15, v{L}", w={T7}, r={L})
        V(f"v_lshl_add_u32 v{OOFF}, v{T7}, 4, v{T6}", w={OOFF}, r={T7, T6})
        V(f"v_lshl_add_u32 v{T6}, v{T1}, 2, v{T3}", w={T6}, r={T1, T3})
        V(f"v_lshlrev_b32 v{T6}, 7, v{T6}", w={T6}, r={T6})
        V(f"v_lshrrev_b32 v{T7}, 1, v{T4}", w={T7}, r={T4})
        V(f"v_lshl_add_u32 v{T7}, v{T2}, 1, v{T7}", w={T7}, r={T2, T7})
        V(f"v_lshrrev_b32 v{T5}, 1, v{T3}", w={T5}, r={T3})
        V(f"v_lshlrev_b32 v{T5}, 2, v{T5}", w={T5}, r={T5})
        V(f"v_xor_b32 v{T7}, v{T7}, v{T5}", w={T7}, r={T7, T5})
        V(f"v_lshl_add_u32 v{T6}, v{T7}, 4, v{T6}", w={T6}, r={T7, T6})
        V(f"v_and_b32 v{T7}, 1, v{T4}", w={T7}, r={T4})
        V(f"v_lshl_add_u32 v{T6}, v{T7}, 3, v{T6}", w={T6}, r={T7, T6})
        V(f"v_add_u32 v{BA}, s{sWL}, v{T6}", w={BA}, r={T6})
        V(f"v_xor_b32 v{BA+1}, 64, v{BA}", w={BA + 1}, r={BA})
        XB = 6 if OPT["xb"] else 64
        def xb_addr():
            for q in range(1, 3):
                for tn in range(2):
                    V(f"v_add_u32 v{XB+2*q+tn}, {q*65536}, v{BA+tn}", w={XB + 2 * q + tn}, r={BA + tn})
        if OPT["fuse"] == 6 and not OPT["xb"]: xb_addr()
        V(f"v_lshlrev_b32 v{RED}, 4, v{L}", w={RED}, r={L})
        if OPT["ntf"]:
            A.salu(f"s_lshl_b32 s12, s{sBLK1}, 6")
            A.salu(f"s_lshl_b32 s13, s{sB1}, 2")
            A.salu("s_add_u32 s12, s12, s13")
            A.salu("s_mov_b32 s13, 1")
        else:
            A.salu(f"s_lshl_b32 s12, s{sBLK1}, 7")
            A.salu(f"s_lshl_b32 s13, s{sB1}, 4")
            A.salu("s_add_u32 s12, s12, s13")
            A.salu(f"s_and_b32 s13, s{sKVH1}, 12")
            A.salu("s_add_u32 s12, s12, s13")
            A.salu(f"s_and_b32 s13, s{sKVH1}, 3")
            A.salu("s_lshl_b32 s13, s13, 3")
            A.salu("s_lshl_b32 s13, 1, s13")
        V(f"v_mov_b32 v{T1}, s12", w={T1})
        V(f"v_mov_b32 v{T2}, s13", w={T2})
        if OPT["ntf"]:
            V(f"v_mov_b32 v{T3}, s{self.sP1}", w={T3})
            V(f"v_writelane_b32 v{T3}, s{self.sP0}, 0", w={T3}, r={T3})
            V(f"v_mov_b32 v{T5}, 1", w={T5})
            A.salu(f"s_mov_b32 s14, {16 if OPT['dc'] else 1}")
        elif OPT["fuse"] == 5:
            self.dyn(PF, L, OOFF, BA, AF, OF, ACC)
        elif OPT["fuse"] == 1:
            V(f"v_mov_b32 v{T3}, s{self.sP1}", w={T3})
            V(f"v_writelane_b32 v{T3}, s{self.sP0}, 0", w={T3}, r={T3})
            A.salu(f"s_and_b32 s14, s{sW}, 1")
            A.salu("s_lshl_b32 s14, s14, 4")
            A.salu("s_lshl_b32 s14, 0x101, s14")
        else:
            V(f"v_mov_b32 v{T3}, s{self.sP1}", w={T3})
            V(f"v_mov_b32 v{T4}, s{self.sP0}", w={T4})
            V(f"v_cmp_gt_u32 vcc, 4, v{L}", r={L}, sw={"vcc"})
            V(f"v_cndmask_b32 v{T3}, v{T3}, v{T4}, vcc", w={T3}, r={T3, T4}, sr={"vcc"})
            V(f"v_and_b32 v{T4}, 3, v{L}", w={T4}, r={L})
            V(f"v_lshl_add_u32 v{T3}, v{T4}, 2, v{T3}", w={T3}, r={T3, T4})
            A.salu("s_mov_b32 s14, 0x01010101")
        if OPT["fuse"] != 5:
            PRE = [224, 240, 48, 72][:OPT["pre"]]
            if OPT["pr2"]: PRE = [AF, AF + 16, 224, 240, 48, 72][:OPT["pr2"]]
            if OPT["pr2"] and OPT["xb"]:
                PRE = ([OF + 32, OF + 48][2 - OPT["pro"]:] + [AF, AF + 16, 224, 240, 48, 64, 80])[:OPT["pr2"]]
            if OPT["od"]:
                assert OPT["pr2"] == 6 and not (OPT["es"] or OPT["pro"])
                PRE = [224, 240, 48, 64 if OPT["xb"] else 72, AF, AF + 16]
            if OPT["es"]: PRE = [AF + 16, 48, 72, AF, 224, 240]
            wo_vm = {}
            def dsreads(u, ab=None):
                slot = u % OPT["ring"]
                if ab is None: ab = AF + (u % 2) * 16
                for ks in range(2):
                    for tn in range(2):
                        for j in range(2):
                            if OPT["fuse"] == 6:
                                o_ = self.slots6[2 * slot + ks] * SLOT + j * 1024
                                k = A.ds_read_tr(ab + (ks * 2 + tn) * 4 + 2 * j, (BA if o_ < 65536 else XB + 2 * (o_ >> 16)) + tn, o_ & 65535)
                            else:
                                k = A.ds_read_tr(ab + (ks * 2 + tn) * 4 + 2 * j, BA + tn, slot * 4096 + (16 * ks + 8 * j) * 128)
                return k
            A.salu("s_mov_b32 s15, 0x40000")
            if OPT["es"]:
                assert OPT["pr2"] == 6 and OPT["prg"] == 3 and OPT["ring"] == 4 and self.done6 >= 6 and not (OPT["ea"] or OPT["fb"] or OPT["xb"])
                A.wait_vm(A.nvm - 9)
                A.flush_hazards()
                for u in range(3):
                    dsreads(u, PRE[u])
                    A.wait_ds_all()
                A.salu(f"s_cmp_eq_u32 s{sW}, 0")
                A.salu("s_cbranch_scc1 K1_ES0")
                A.salu(f"s_cmp_ge_u32 s{self.sTT}, 252")
                A.salu("s_cbranch_scc1 K1_ES0")
                n0 = A.nvm
                for u in range(4, 4 + OPT["es"]):
                    for i in range(4): wo_vm[u] = self.wo_piece(u, i)
                A.waitcnt(vm=A.nvm - n0)
                A.salu("s_branch K1_ES1")
                A.label("K1_ES0")
                A.waitcnt(vm=0)
                A.label("K1_ES1")
                A.vm_done = n0
            else:
                A.waitcnt(vm=0); A.vm_done = A.nvm
            PF.stamp("st")
            A.barrier()
            A.salu(f"s_cmp_eq_u32 s{sW}, 0")
            A.salu("s_cbranch_scc0 K1_NOFLAG")
            A.salu("s_mov_b64 exec, 1")
            if OPT["dc"]:
                A.salu(f"buffer_atomic_add v{T2}, v{T1}, s[{SDBG}:{SDBG+3}], 0 offen sc1")
            elif OPT["ea"]:
                A.salu(f"buffer_atomic_add v{T2}, v{T1}, s[{SDBG}:{SDBG+3}], 0 offen sc0 sc1")
                A.salu(f"s_cmp_ge_u32 s{self.sTT}, 252")
                A.salu("s_cbranch_scc0 K1_NOFLAG")
                A.salu("s_waitcnt vmcnt(0)")
                A.salu(f"v_cmp_eq_u32 vcc, 15, v{T2}")
                A.salu("s_nop 1")
                A.salu("s_cbranch_vccz K1_NOFLAG")
                A.salu(f"buffer_store_dword v{T5}, v{T1}, s[{SDBG}:{SDBG+3}], 0 offen offset:128 sc1")
                ea_base = A.nvm
            elif OPT["ntf"]:
                A.salu(f"buffer_atomic_add v{T2}, v{T1}, s[{SDBG}:{SDBG+3}], 0 offen sc0 sc1")
                A.salu("s_waitcnt vmcnt(0)")
                A.salu(f"v_cmp_eq_u32 vcc, 15, v{T2}")
                A.salu("s_nop 1")
                A.salu("s_cbranch_vccz K1_NOFLAG")
                A.salu(f"buffer_store_dword v{T5}, v{T1}, s[{SDBG}:{SDBG+3}], 0 offen offset:128 sc1")
            elif OPT["exp"] != 1: A.salu(f"buffer_atomic_add v{T2}, v{T1}, s[{SDBG}:{SDBG+3}], 0 offen sc1")
            A.label("K1_NOFLAG")
            A.salu(f"s_cmp_ge_u32 s{self.sTT}, 252")
            A.salu("s_cbranch_scc1 K1_END")
            if OPT["exp"]:
                for _ in range(3): A.salu("s_sleep 64")
                A.salu("s_branch K1_GO")
            if OPT["fuse"] == 6:
                A.salu("s_mov_b64 exec, -1")
                if OPT["xb"]: xb_addr()
                if OPT["fb"]:
                    A.salu(f"s_cmp_eq_u32 s{sW}, 0")
                    A.salu("s_cbranch_scc0 K1_FB0")
                    A.salu("s_barrier")
                    A.label("K1_FB0")
                self.slots6 += [s_ for s_ in range(NSLOT) if s_ not in self.slots6]
                if OPT["es"]:
                    A.salu(f"s_cmp_eq_u32 s{sW}, 0")
                    A.salu("s_cbranch_scc0 K1_ES2")
                    n1 = A.nvm
                    for u in range(4, 4 + OPT["es"]):
                        for i in range(4): self.wo_piece(u, i)
                    A.nvm = n1
                    A.label("K1_ES2")
                    for u in range(4 + OPT["es"], 7):
                        for i in range(4): wo_vm[u] = self.wo_piece(u, i)
                for j in range(self.done6, 2 * OPT["ring"]):
                    for q in range(2): wo_vm[j >> 1] = self.wo_piece(j >> 1, (j & 1) * 2 + q)
                if OPT["pr2"]:
                    A.flush_hazards()
                    for u0 in range(0, len(PRE), OPT["prg"]):
                        us = range(u0, min(u0 + OPT["prg"], len(PRE)))
                        if OPT["es"] and u0 == 0: continue
                        for u in ([4, 5, 3] if OPT["es"] else us):
                            if u in wo_vm: A.wait_vm(wo_vm[u])
                            dsreads(u, PRE[u])
                            A.wait_ds_all()
                            if OPT["esr"] and u == 5:
                                for u2 in (8, 9):
                                    for i in range(4): wo_vm[u2] = self.wo_piece(u2, i)
                        if OPT["esr"]: us = [3]
                        last_round = u0 + OPT["prg"] >= len(PRE)
                        if OPT["fb"] and u0 == 0:
                            us = list(us)
                            for u in us[:OPT["fb"] - 1]:
                                for i in range(4): wo_vm[u + OPT["ring"]] = self.wo_piece(u + OPT["ring"], i)
                            us = us[OPT["fb"] - 1:]
                            A.salu(f"s_cmp_eq_u32 s{sW}, 0")
                            A.salu("s_cbranch_scc1 K1_FB1")
                            A.salu("s_barrier")
                            A.label("K1_FB1")
                        if OPT["ep"] and last_round:
                            A.salu(f"s_cmp_eq_u32 s{sW}, {OPT['pw']}")
                            A.salu("s_cbranch_scc0 K1_EP")
                            A.salu("s_mov_b64 exec, 3")
                            A.salu(f"buffer_load_dword v{T4}, v{T3}, s[{SDBG}:{SDBG+3}], 0 offen sc1")
                            A.salu("s_mov_b64 exec, -1")
                            A.label("K1_EP")
                            ep_base = A.nvm
                        for u in us:
                            if u + OPT["ring"] >= 16: continue
                            for i in range(4): wo_vm[u + OPT["ring"]] = self.wo_piece(u + OPT["ring"], i)
                        if OPT["ea"] and u0 == 0:
                            A.salu(f"s_cmp_eq_u32 s{sW}, 0")
                            A.salu("s_cbranch_scc0 K1_EA")
                            A.salu("s_mov_b64 exec, 1")
                            A.salu(f"s_waitcnt vmcnt({A.nvm - ea_base})")
                            A.salu(f"v_cmp_eq_u32 vcc, 15, v{T2}")
                            A.salu("s_nop 1")
                            A.salu("s_cbranch_vccz K1_EA")
                            A.salu(f"buffer_store_dword v{T5}, v{T1}, s[{SDBG}:{SDBG+3}], 0 offen offset:128 sc1")
                            A.label("K1_EA")
                            A.salu("s_mov_b64 exec, -1")
                if OPT["pre0"]:
                    A.flush_hazards()
                    for u in range(len(PRE)):
                        dsreads(u, PRE[u])
                        A.wait_ds_all()
                    for u in range(4, 4 + len(PRE)):
                        for i in range(4): self.wo_piece(u, i)
            if OPT["fuse"] == 1:
                A.salu("s_mov_b64 exec, 3")
            else:
                A.salu(f"s_cmp_eq_u32 s{sW}, {OPT['pw']}")
                A.salu("s_cbranch_scc0 K1_GO" if not (OPT["fuse"] == 3 or (OPT["pre"] and not OPT["pre0"])) else "s_cbranch_scc0 K1_WO")
                A.salu("s_mov_b64 exec, 3" if OPT["ntf"] else "s_mov_b64 exec, 0xff")
            if OPT["ep"]:
                A.salu(f"s_waitcnt vmcnt({A.nvm - ep_base})")
                A.salu(f"v_and_b32 v{T4}, s14, v{T4}")
                A.salu(f"v_cmp_ne_u32 vcc, s14, v{T4}")
                A.salu("s_nop 1")
                A.salu("s_cbranch_vccz K1_GO")
            A.label("K1_POLL")
            A.salu(f"buffer_load_dword v{T4}, v{T3}, s[{SDBG}:{SDBG+3}], 0 offen sc1")
            A.salu("s_waitcnt vmcnt(0)")
            A.salu(f"v_and_b32 v{T4}, s14, v{T4}")
            A.salu(f"v_cmp_ne_u32 vcc, s14, v{T4}")
            A.salu("s_nop 1")
            A.salu("s_cbranch_vccz K1_GO")
            A.salu(f"s_sleep {OPT['slp']}")
            A.salu("s_sub_u32 s15, s15, 1")
            A.salu("s_cmp_lg_u32 s15, 0")
            A.salu("s_cbranch_scc1 K1_POLL")
            A.label("K1_GO")
            A.salu("s_mov_b64 exec, -1")
            if OPT["pre"] and not OPT["pre0"]:
                A.barrier()
                A.label("K1_WO")
                A.flush_hazards()
                for u in range(len(PRE)):
                    dsreads(u, PRE[u])
                    A.wait_ds_all()
                for u in range(4, 4 + len(PRE)):
                    for i in range(4): self.wo_piece(u, i)
                A.salu(f"s_cmp_eq_u32 s{sW}, 0")
                A.salu("s_cbranch_scc1 K1_GO2")
                A.barrier()
                A.label("K1_GO2")
            elif OPT["fuse"] == 3:
                A.barrier()
                A.label("K1_WO")
                for u in range(4):
                    for i in range(4): self.wo_piece(u, i)
                A.salu(f"s_cmp_eq_u32 s{sW}, 0")
                A.salu("s_cbranch_scc1 K1_GO2")
                A.barrier()
                A.label("K1_GO2")
            elif OPT["fuse"] > 1: A.barrier()
            PF.stamp("go")
            NU = 16; DEPTH = 4
            last_vm = {}
            obuf = {}
            def issue(u, wo=True, buf=None):
                slot = u % DEPTH
                obuf[u] = OF + slot * 16 if buf is None else buf
                if wo:
                    for i in range(4): self.wo_piece(u, i)
                for ks in range(2):
                    for tm in range(2):
                        d = obuf[u] + (ks * 2 + tm) * 4
                        off = (2 * u + ks) * 512
                        sb = sO0 if tm == 0 else sO1
                        if off >= 4096:
                            A.salu(f"s_add_u32 s{sT}, s{sb}, {off & ~4095}")
                            sb = sT
                        k = A.vmem(f"buffer_load_dwordx4 {vname(d,4)}, v{OOFF}, s[{SO}:{SO+3}], s{sb} offen offset:{off & 4095} sc1", w=vr(d, 4), r={OOFF})
                last_vm[u] = k
            if OPT["od"]:
                RG = OPT["ring"]; NP = len(PRE)
                fr = [OF + 16 * q for q in range(4)] + ([80] if OPT["xb"] else [])
                nxt = 0
                while fr: issue(nxt, False, fr.pop(0)); nxt += 1
                pend = None
                for u in range(NU):
                    if pend is not None: A.wait_ds(pend)
                    if u + 1 < NU and u + 1 >= NP:
                        A.wait_vm(wo_vm[u + 1])
                        pend = dsreads(u + 1)
                    A.wait_vm(last_vm[u])
                    ab = AF + (u % 2) * 16 if u >= NP else PRE[u]
                    ob = obuf[u]
                    for ks in range(2):
                        for tn in range(2):
                            for tm in range(2):
                                c = "zero" if (u == 0 and ks == 0) else None
                                A.mfma(ACC + (tn * 2 + tm) * 16, ab + (ks * 2 + tn) * 4, ob + (ks * 2 + tm) * 4, c)
                    if u >= NP and u + RG < NU:
                        for i in range(4): wo_vm[u + RG] = self.wo_piece(u + RG, i)
                    fr.append(ob)
                    if u < OPT["od"]: fr.append(PRE[u])
                    while fr and nxt < NU: issue(nxt, False, fr.pop(0)); nxt += 1
                    if u in (0, 7, 15): PF.stamp(f"u{u}")
                NU = 0
            elif OPT["pr2"]:
                RG = OPT["ring"]; NP = len(PRE)
                KO = OPT["pro"]
                for u in range(DEPTH - KO): issue(u, False)
                pend = None
                for u in range(NU):
                    if pend is not None: A.wait_ds(pend)
                    if u + 1 < NU and u + 1 >= NP:
                        A.wait_vm(wo_vm[u + 1])
                        pend = dsreads(u + 1)
                    A.wait_vm(last_vm[u])
                    ab = AF + (u % 2) * 16 if u >= NP else PRE[u]
                    ob = OF + (u % DEPTH) * 16
                    for ks in range(2):
                        for tn in range(2):
                            for tm in range(2):
                                c = "zero" if (u == 0 and ks == 0) else None
                                A.mfma(ACC + (tn * 2 + tm) * 16, ab + (ks * 2 + tn) * 4, ob + (ks * 2 + tm) * 4, c)
                    if u >= NP and u + RG < NU:
                        for i in range(4): wo_vm[u + RG] = self.wo_piece(u + RG, i)
                    if u < KO: issue(DEPTH - KO + u, False)
                    if u + DEPTH < NU: issue(u + DEPTH, False)
                    if u in (0, 7, 15): PF.stamp(f"u{u}")
                NU = 0
            if OPT["lp"]:
                RG = OPT["ring"]
                OB = [OF, OF + 16, OF + 32, OF + 48, 224, 240][:RG]
                o_vm = {}; wo_vm.clear()
                def issue_o(u):
                    for ks in range(2):
                        for tm in range(2):
                            d = OB[u % RG] + (ks * 2 + tm) * 4
                            off = (2 * u + ks) * 512
                            sb = sO0 if tm == 0 else sO1
                            if off >= 4096:
                                A.salu(f"s_add_u32 s{sT}, s{sb}, {off & ~4095}")
                                sb = sT
                            o_vm[u] = A.vmem(f"buffer_load_dwordx4 {vname(d,4)}, v{OOFF}, s[{SO}:{SO+3}], s{sb} offen offset:{off & 4095} sc1", w=vr(d, 4), r={OOFF})
                wo_first = A.nvm - 1
                for u in range(RG): issue_o(u)
                pend = dsreads(0)
                for u in range(NU):
                    A.wait_ds(pend)
                    if u + RG < NU:
                        for i in range(4): wo_vm[u + RG] = self.wo_piece(u + RG, i)
                    if u + 1 < NU:
                        if u + 1 in wo_vm: A.wait_vm(wo_vm[u + 1])
                        elif u + 1 >= 3: A.wait_vm(wo_first)
                        pend = dsreads(u + 1)
                    A.wait_vm(o_vm[u])
                    ab = AF + (u % 2) * 16
                    ob = OB[u % RG]
                    for ks in range(2):
                        for tn in range(2):
                            for tm in range(2):
                                c = "zero" if (u == 0 and ks == 0) else None
                                A.mfma(ACC + (tn * 2 + tm) * 16, ab + (ks * 2 + tn) * 4, ob + (ks * 2 + tm) * 4, c)
                    if u + RG < NU: issue_o(u + RG)
                    if u in (0, 7, 15): PF.stamp(f"u{u}")
                NU = 0
            for u in range(DEPTH if NU else 0): issue(u, OPT["fuse"] == 4)
            if OPT["fuse"] in (3, 4): A.wait_vm(last_vm[0])
            NP = len(PRE)
            pend = dsreads(0) if NP == 0 and NU else None
            if NU: A.wait_vm(last_vm[0])
            for u in range(NU):
                if pend is not None: A.wait_ds(pend)
                if u + 1 < NU:
                    A.wait_vm(last_vm[u + 1])
                    pend = dsreads(u + 1) if u + 1 >= NP else None
                ab = AF + (u % 2) * 16 if u >= NP else PRE[u]
                ob = OF + (u % DEPTH) * 16
                for ks in range(2):
                    for tn in range(2):
                        for tm in range(2):
                            c = "zero" if (u == 0 and ks == 0) else None
                            A.mfma(ACC + (tn * 2 + tm) * 16, ab + (ks * 2 + tn) * 4, ob + (ks * 2 + tm) * 4, c)
                if u + DEPTH < NU: issue(u + DEPTH, u >= NP)
                if u in (0, 7, 15): PF.stamp(f"u{u}")
        R = OF
        if OPT["fuse"] == 6 and OPT["red"]:
            A.wait_ds_all()
            V(f"v_add_u32 v{T1}, s{sWL}, v{RED}", w={T1}, r={RED})
            V(f"v_add_u32 v{T2}, 0x10000, v{T1}", w={T2}, r={T1})
            V(f"v_add_u32 v{T3}, 0x20000, v{T1}", w={T3}, r={T1})
            for q in range(16):
                o_ = self.slots6[q >> 1] * SLOT + (q & 1) * 1024
                A.ds_write_b128([T1, T2, T3][o_ >> 16], ACC + 4 * q, o_ & 65535)
            tab = sum(s_ << (4 * w_) for w_, s_ in enumerate(self.slots6[:8]))
            A.salu(f"s_lshl_b32 s6, s{sW}, 2")
            A.salu(f"s_lshr_b32 s6, {tab:#x}, s6")
            A.salu("s_and_b32 s6, s6, 15")
            A.salu("s_lshl_b32 s6, s6, 14")
            V(f"v_add_u32 v{T4}, s6, v{RED}", w={T4}, r={RED})
            A.wait_ds_all()
            A.barrier()
            for ww in range(8):
                for q in range(2):
                    A.ds_read_b128(R + (ww * 2 + q) * 4, T4, ww * 2048 + q * 1024)
                if ww == 5:
                    A.wait_ds_all()
            A.wait_ds_all()
        else:
            A.wait_ds_all()
            A.barrier()
            A.salu(f"s_lshl_b32 s12, s{sW}, 14")
            V(f"v_add_u32 v{T1}, s12, v{RED}", w={T1}, r={RED})
            for q in range(16):
                A.ds_write_b128(T1, ACC + 4 * q, q * 1024)
            A.wait_ds_all()
            A.barrier()
            A.salu(f"s_lshl_b32 s6, s{sW}, 11")
            V(f"v_add_u32 v{T1}, s6, v{RED}", w={T1}, r={RED})
            V(f"v_add_u32 v{T2}, 0x10000, v{T1}", w={T2}, r={T1})
            for ww in range(8):
                for q in range(2):
                    A.ds_read_b128(R + (ww * 2 + q) * 4, T1 if ww < 4 else T2, (ww % 4) * 16384 + q * 1024)
                if ww == 5:
                    A.wait_ds_all()
            A.wait_ds_all()
        for ww in range(1, 8):
            for i in range(8):
                V(f"v_add_f32 v{R+i}, v{R+i}, v{R+ww*8+i}", w={R + i}, r={R + i, R + ww * 8 + i})
        for q in range(4):
            V(f"v_cvt_pk_bf16_f32 v{AF+q}, v{R+2*q}, v{R+2*q+1}", w={AF + q}, r={R + 2 * q, R + 2 * q + 1})
        A.salu(f"s_lshr_b32 s6, s{sW}, 1")
        A.salu("s_and_b32 s7, s6, 1")
        A.salu("s_lshr_b32 s6, s6, 1")
        A.salu(f"s_lshl_b32 s3, s{sMT}, 6")
        A.salu("s_lshl_b32 s7, s7, 5")
        A.salu("s_add_u32 s3, s3, s7")
        A.salu("s_mul_i32 s3, s3, 2304")
        A.salu(f"s_mul_i32 s7, s{sBLK}, 1152")
        A.salu("s_add_u32 s3, s3, s7")
        A.salu(f"s_lshl_b32 s7, s{sNT}, 7")
        A.salu("s_add_u32 s3, s3, s7")
        A.salu("s_lshl_b32 s7, s6, 6")
        A.salu("s_add_u32 s3, s3, s7")
        A.salu(f"s_and_b32 s7, s{sW}, 1")
        A.salu("s_lshl_b32 s7, s7, 5")
        A.salu("s_add_u32 s3, s3, s7")
        V(f"v_and_b32 v{T1}, 31, v{L}", w={T1}, r={L})
        V(f"v_mul_u32_u24 v{T1}, 2304, v{T1}", w={T1}, r={T1})
        V(f"v_lshrrev_b32 v{T2}, 5, v{L}", w={T2}, r={L})
        V(f"v_lshl_add_u32 v{T1}, v{T2}, 3, v{T1}", w={T1}, r={T2, T1})
        fl = ["", " sc1", " nt", " sc0 sc1"][OPT["ost"]]
        A.vmem(f"buffer_store_dwordx2 {vname(AF,2)}, v{T1}, s[{SOUT}:{SOUT+3}], s3 offen{fl}", r=vr(AF, 2) | {T1})
        A.vmem(f"buffer_store_dwordx2 {vname(AF+2,2)}, v{T1}, s[{SOUT}:{SOUT+3}], s3 offen offset:16{fl}", r=vr(AF + 2, 2) | {T1})

def gen_k2(A):
    V = A.valu
    T0, T1, T2, T3, T4, T5, T6, T7 = range(0, 8)
    WOFF = 8
    OOFF = 12
    BA = 13
    RED = 15
    AF = 16
    OF = 48
    ACC = 112
    sBLK, sMT, sNT, sW = 26, 27, 4, 5
    SW_, SO, SOUT = 28, 32, 36
    sWL, sWB, sO0, sO1, sT = 48, 49, 50, 51, 52
    A.win = []
    A.nds = A.ds_done = A.nvm = A.vm_done = 0
    A.raw(f".p2align 8\n.globl k2_kernel\n.type k2_kernel,@function\nk2_kernel:")
    A.salu("s_cmp_ge_u32 s2, 256")
    A.salu("s_cbranch_scc1 K2_END")
    A.salu("s_and_b32 s3, s2, 7")
    A.salu("s_lshl_b32 s3, s3, 5")
    A.salu("s_lshr_b32 s6, s2, 3")
    A.salu("s_add_u32 s3, s3, s6")
    A.salu("s_cmp_ge_u32 s3, 252")
    A.salu("s_cbranch_scc1 K2_END")
    A.salu("s_load_dwordx2 s[8:9], s[0:1], 32")
    A.salu("s_load_dwordx2 s[10:11], s[0:1], 72")
    A.salu("s_load_dwordx2 s[12:13], s[0:1], 80")
    A.salu("s_load_dwordx2 s[14:15], s[0:1], 96")
    A.salu("s_cmp_ge_u32 s3, 126")
    A.salu(f"s_cselect_b32 s{sBLK}, 1, 0")
    A.salu(f"s_mul_i32 s6, s{sBLK}, 126")
    A.salu("s_sub_u32 s3, s3, s6")
    A.salu("s_mul_i32 s6, s3, 57")
    A.salu(f"s_lshr_b32 s{sMT}, s6, 9")
    A.salu(f"s_mul_i32 s6, s{sMT}, 9")
    A.salu(f"s_sub_u32 s{sNT}, s3, s6")
    V(f"v_lshrrev_b32 v{T1}, 6, v0", w={T1}, r={0})
    A._emit(I(f"v_readfirstlane_b32 s{sW}, v{T1}", "rdlane", r={T1}, sw={sW}))
    V(f"v_and_b32 v{T0}, 63, v0", w={T0}, r={0})
    L = T0
    A.salu(f"s_lshl_b32 s{sWL}, s{sW}, 14", sr={sW})
    A.salu(f"s_mul_i32 s{sWB}, s{sW}, {512*1152}", sr={sW})
    A.salu(f"s_lshl_b32 s6, s{sNT}, 7")
    A.salu(f"s_add_u32 s{sWB}, s{sWB}, s6")
    A.salu(f"s_mul_i32 s{sO0}, s{sBLK}, {O_BLK}")
    A.salu(f"s_lshl_b32 s6, s{sMT}, 19")
    A.salu(f"s_add_u32 s{sO0}, s{sO0}, s6")
    A.salu(f"s_lshl_b32 s6, s{sW}, 14")
    A.salu(f"s_add_u32 s{sO0}, s{sO0}, s6")
    A.salu(f"s_add_u32 s{sO1}, s{sO0}, {2*131072}")
    V(f"v_lshrrev_b32 v{T1}, 3, v{L}", w={T1}, r={L})
    V(f"v_mul_u32_u24 v{T1}, 1152, v{T1}", w={T1}, r={T1})
    V(f"v_bfe_u32 v{T2}, v{L}, 4, 1", w={T2}, r={L})
    V(f"v_lshlrev_b32 v{T3}, 2, v{T2}", w={T3}, r={T2})
    V(f"v_and_b32 v{T4}, 7, v{L}", w={T4}, r={L})
    V(f"v_xor_b32 v{T4}, v{T4}, v{T3}", w={T4}, r={T4, T3})
    V(f"v_lshl_add_u32 v{WOFF}, v{T4}, 4, v{T1}", w={WOFF}, r={T4, T1})
    for i in range(1, 4):
        V(f"v_add_u32 v{WOFF+i}, {9216*i}, v{WOFF}", w={WOFF + i}, r={WOFF})
    V(f"v_lshrrev_b32 v{T1}, 5, v{L}", w={T1}, r={L})
    V(f"v_bfe_u32 v{T3}, v{L}, 2, 2", w={T3}, r={L})
    V(f"v_and_b32 v{T4}, 3, v{L}", w={T4}, r={L})
    V(f"v_lshlrev_b32 v{T6}, 17, v{T2}", w={T6}, r={T2})
    V(f"v_lshl_add_u32 v{T6}, v{T1}, 8, v{T6}", w={T6}, r={T1, T6})
    V(f"v_and_b32 v{T7}, 15, v{L}", w={T7}, r={L})
    V(f"v_lshl_add_u32 v{OOFF}, v{T7}, 4, v{T6}", w={OOFF}, r={T7, T6})
    V(f"v_lshl_add_u32 v{T6}, v{T1}, 2, v{T3}", w={T6}, r={T1, T3})
    V(f"v_lshlrev_b32 v{T6}, 7, v{T6}", w={T6}, r={T6})
    V(f"v_lshrrev_b32 v{T7}, 1, v{T4}", w={T7}, r={T4})
    V(f"v_lshl_add_u32 v{T7}, v{T2}, 1, v{T7}", w={T7}, r={T2, T7})
    V(f"v_lshrrev_b32 v{T5}, 1, v{T3}", w={T5}, r={T3})
    V(f"v_lshlrev_b32 v{T5}, 2, v{T5}", w={T5}, r={T5})
    V(f"v_xor_b32 v{T7}, v{T7}, v{T5}", w={T7}, r={T7, T5})
    V(f"v_lshl_add_u32 v{T6}, v{T7}, 4, v{T6}", w={T6}, r={T7, T6})
    V(f"v_and_b32 v{T7}, 1, v{T4}", w={T7}, r={T4})
    V(f"v_lshl_add_u32 v{T6}, v{T7}, 3, v{T6}", w={T6}, r={T7, T6})
    V(f"v_add_u32 v{BA}, s{sWL}, v{T6}", w={BA}, r={T6})
    V(f"v_xor_b32 v{BA+1}, 64, v{BA}", w={BA + 1}, r={BA})
    V(f"v_lshlrev_b32 v{RED}, 4, v{L}", w={RED}, r={L})
    A.waitcnt(lgkm=0)
    A.salu(f"s_cmp_eq_u32 s{sBLK}, 0")
    A.salu("s_cselect_b32 s8, s8, s10")
    A.salu("s_cselect_b32 s9, s9, s11")
    srd(A, SW_, 8, 4096 * 576 * 2)
    srd(A, SO, 14, 2 * O_BLK)
    srd(A, SOUT, 12, 896 * 1152 * 2)

    NU = 16; DEPTH = 4
    last_vm = {}
    def issue(u):
        slot = u % DEPTH
        A.salu(f"s_add_u32 s{sT}, s{sWB}, {u * 32 * 1152}")
        for i in range(4):
            A.salu(f"s_add_u32 m0, s{sWL}, {slot * 4096 + i * 1024}", m0w=True)
            A.vmem(f"buffer_load_dwordx4 v{WOFF+i}, s[{SW_}:{SW_+3}], s{sT} offen{' nt' if OPT['ntwo'] else ''} lds", kind="dma", r={WOFF + i}, m0r=True)
        for ks in range(2):
            for tm in range(2):
                d = OF + slot * 16 + (ks * 2 + tm) * 4
                off = (2 * u + ks) * 512
                sb = sO0 if tm == 0 else sO1
                if off >= 4096:
                    A.salu(f"s_add_u32 s{sT}, s{sb}, {off & ~4095}")
                    k = A.vmem(f"buffer_load_dwordx4 {vname(d,4)}, v{OOFF}, s[{SO}:{SO+3}], s{sT} offen offset:{off & 4095}{' nt' if OPT['nto'] else ''}", w=vr(d, 4), r={OOFF})
                else:
                    k = A.vmem(f"buffer_load_dwordx4 {vname(d,4)}, v{OOFF}, s[{SO}:{SO+3}], s{sb} offen offset:{off}{' nt' if OPT['nto'] else ''}", w=vr(d, 4), r={OOFF})
        last_vm[u] = k
    def dsreads(u):
        slot = u % DEPTH
        ab = AF + (u % 2) * 16
        for ks in range(2):
            for tn in range(2):
                for j in range(2):
                    k = A.ds_read_tr(ab + (ks * 2 + tn) * 4 + 2 * j, BA + tn, slot * 4096 + (16 * ks + 8 * j) * 128)
        return k
    PF = Prof(A, 1)
    PF.stamp("start")
    for u in range(DEPTH): issue(u)
    A.wait_vm(last_vm[0])
    pend = dsreads(0)
    for u in range(NU):
        A.wait_ds(pend)
        if u + 1 < NU:
            A.wait_vm(last_vm[u + 1])
            pend = dsreads(u + 1)
        ab = AF + (u % 2) * 16
        ob = OF + (u % DEPTH) * 16
        for ks in range(2):
            for tn in range(2):
                for tm in range(2):
                    c = "zero" if (u == 0 and ks == 0) else None
                    A.mfma(ACC + (tn * 2 + tm) * 16, ab + (ks * 2 + tn) * 4, ob + (ks * 2 + tm) * 4, c)
        if u + DEPTH < NU: issue(u + DEPTH)
        PF.stamp(f"u{u}")
    A.wait_ds_all()
    A.barrier()
    V(f"v_add_u32 v{T1}, s{sWL}, v{RED}", w={T1}, r={RED})
    for q in range(16):
        A.ds_write_b128(T1, ACC + 4 * q, q * 1024)
    A.wait_ds_all()
    A.barrier()
    A.salu(f"s_lshl_b32 s6, s{sW}, 11")
    V(f"v_add_u32 v{T1}, s6, v{RED}", w={T1}, r={RED})
    V(f"v_add_u32 v{T2}, 0x10000, v{T1}", w={T2}, r={T1})
    R = OF
    for ww in range(8):
        for q in range(2):
            A.ds_read_b128(R + (ww * 2 + q) * 4, T1 if ww < 4 else T2, (ww % 4) * 16384 + q * 1024)
            if ww == 6 and q == 1: pass
        if ww == 5:
            A.wait_ds_all()
    A.wait_ds_all()
    for ww in range(1, 8):
        for i in range(8):
            V(f"v_add_f32 v{R+i}, v{R+i}, v{R+ww*8+i}", w={R + i}, r={R + i, R + ww * 8 + i})
    for q in range(4):
        V(f"v_cvt_pk_bf16_f32 v{AF+q}, v{R+2*q}, v{R+2*q+1}", w={AF + q}, r={R + 2 * q, R + 2 * q + 1})
    A.salu(f"s_lshr_b32 s6, s{sW}, 1")
    A.salu("s_and_b32 s7, s6, 1")
    A.salu("s_lshr_b32 s6, s6, 1")
    A.salu(f"s_lshl_b32 s3, s{sMT}, 6")
    A.salu("s_lshl_b32 s7, s7, 5")
    A.salu("s_add_u32 s3, s3, s7")
    A.salu("s_mul_i32 s3, s3, 2304")
    A.salu(f"s_mul_i32 s7, s{sBLK}, 1152")
    A.salu("s_add_u32 s3, s3, s7")
    A.salu(f"s_lshl_b32 s7, s{sNT}, 7")
    A.salu("s_add_u32 s3, s3, s7")
    A.salu("s_lshl_b32 s7, s6, 6")
    A.salu("s_add_u32 s3, s3, s7")
    A.salu(f"s_and_b32 s7, s{sW}, 1")
    A.salu("s_lshl_b32 s7, s7, 5")
    A.salu("s_add_u32 s3, s3, s7")
    V(f"v_and_b32 v{T1}, 31, v{L}", w={T1}, r={L})
    V(f"v_mul_u32_u24 v{T1}, 2304, v{T1}", w={T1}, r={T1})
    V(f"v_lshrrev_b32 v{T2}, 5, v{L}", w={T2}, r={L})
    V(f"v_lshl_add_u32 v{T1}, v{T2}, 3, v{T1}", w={T1}, r={T2, T1})
    A.vmem(f"buffer_store_dwordx2 {vname(AF,2)}, v{T1}, s[{SOUT}:{SOUT+3}], s3 offen", r=vr(AF, 2) | {T1})
    A.vmem(f"buffer_store_dwordx2 {vname(AF+2,2)}, v{T1}, s[{SOUT}:{SOUT+3}], s3 offen offset:16", r=vr(AF + 2, 2) | {T1})
    PF.dump(14, sW, 0)
    A.label("K2_END")
    A.salu("s_endpgm")

def kd(name, vgpr, sgpr):
    return f""".amdhsa_kernel {name}
  .amdhsa_next_free_vgpr {vgpr}
  .amdhsa_next_free_sgpr {sgpr}
  .amdhsa_accum_offset {(vgpr + 3) // 4 * 4}
  .amdhsa_group_segment_fixed_size 0
  .amdhsa_kernarg_size 104
  .amdhsa_user_sgpr_count 2
  .amdhsa_user_sgpr_kernarg_segment_ptr 1
  .amdhsa_system_sgpr_workgroup_id_x 1
.end_amdhsa_kernel
"""

def main():
    A = Asm()
    gen_k1(A)
    if not OPT["fuse"]: gen_k2(A)
    head = """; Two-launch GQA block pair: k1 = Q projection + attention (o -> ws), k2 = output projection.
; @launch kernel=k1_kernel grid=(256,1,1) block=(512,1,1) lds=163840
; @launch kernel=k2_kernel grid=(256,1,1) block=(512,1,1) lds=131072
.amdgcn_target "amdgcn-amd-amdhsa--gfx950"
.text
"""
    tail = '\n.section .rodata,"a"\n.p2align 6\n' + kd("k1_kernel", 256, 102 if OPT["prof"] else 64) + ".p2align 6\n" + kd("k2_kernel", 176, 102 if OPT["prof"] else 64)
    if OPT["fuse"]:
        head = """; GQA block pair in one launch: Q projection + attention, o handed over through ws, output projection.
; @launch kernel=k1_kernel grid=(256,1,1) block=(512,1,1) lds=163840
.amdgcn_target "amdgcn-amd-amdhsa--gfx950"
.text
"""
        tail = '\n.section .rodata,"a"\n.p2align 6\n' + kd("k1_kernel", 256, 102 if OPT["prof"] else 64)
    txt = head + A.text() + tail
    if "CODE_BYTES" in txt:
        import subprocess, re
        open("_p1.s", "w").write(txt.replace("CODE_BYTES", "0x12345"))
        subprocess.check_call(["clang", "-x", "assembler", "-target", "amdgcn-amd-amdhsa", "-mcpu=gfx950", "-c", "_p1.s", "-o", "_p1.o"])
        o = subprocess.check_output(["llvm-objdump", "-h", "_p1.o"]).decode()
        n = int(re.search(r"\.text\s+([0-9a-f]+)", o).group(1), 16)
        txt = txt.replace("CODE_BYTES", str(n))
    open(sys.argv[1], "w").write(txt)
    print("nops inserted:", A.nops_inserted, "lines:", len(A.out))

main()
```

```python
import sys, math
sys.path.insert(0, "gen")
from asmlib import *

NAME = "concat_heads__gqa_block_cached__gqa_block_cached__near_ridge"
OPT = dict(prio=1, prof=0, ntkv=1, ntw=0, ntx=0, ntwo=0, nto=0, ntst=0, nq=6, kvrate=1, l2pf=1, wopf=4, fat=1, bstep=1, dmagap=1, pflead=4, kv0=2, nstg=4, kvt=0, ld4=1, cpf=0, mid=0, kvt0=1, kvtr=1, roll=0, pfrate=1, kvs=0, rot=0, stag=0, qi=0, tlbw=0, ntt=0, fuse=0, slp=1, wox=0, xm=0, wo0=3, wo6=0, exp=0, ntf=0, pv=0, ost=0, red=0, pre=0, ring=4, lp=0, pre0=0, pr2=0, xb=0, pro=0, prg=3, ea=0, ep=0, fb=0, pw=0, dc=0, es=0, esr=0, od=0, sq=0)
for a in sys.argv[2:]:
    k, v = a.split("="); OPT[k] = int(v)

O_BLK = 896 * 4096 * 2
SLOT = 16384
NSLOT = 10

def srd(A, d, base, nbytes):
    A.salu(f"s_mov_b32 s{d}, s{base}")
    A.salu(f"s_and_b32 s{d+1}, s{base+1}, 0xffff")
    A.salu(f"s_mov_b32 s{d+2}, {nbytes}")
    A.salu(f"s_mov_b32 s{d+3}, 0x00020000")

class Prof:
    def __init__(self, A, kidx):
        self.A = A; self.n = 0; self.names = []; self.kidx = kidx
    def stamp(self, name):
        A = self.A
        if OPT["prof"] == 3:
            sel = ["start", "q0", "a0", "pv7", "st", "go", "u15", "end"]
            if name == "start" or name == sel[OPT["pv"]]:
                A.salu("s_waitcnt lgkmcnt(0)")
                A.ds_done = A.nds
                A.salu("s_memrealtime s[96:97]")
                A.salu("s_waitcnt lgkmcnt(0)")
                if name == "start": A.salu("s_not_b32 s64, s96")
                if name == sel[OPT["pv"]]: A.salu(f"s_mov_b32 s65, s96")
            return
        if OPT["prof"] == 2:
            sel = ["start", "q0", "a0", "pv7", "st", "go", "u15", "end"]
            if name in sel:
                A.salu("s_waitcnt lgkmcnt(0)")
                A.ds_done = A.nds
                A.salu("s_memrealtime s[96:97]")
                A.salu("s_waitcnt lgkmcnt(0)")
                if name == "start": A.salu("s_not_b32 s96, s96")
                A.salu(f"s_mov_b32 s{64+sel.index(name)}, s96")
            return
        if not OPT["prof"]: return
        assert self.n < 30
        A.salu("s_waitcnt lgkmcnt(0)")
        A.ds_done = A.nds
        A.salu("s_memtime s[96:97]")
        A.salu("s_waitcnt lgkmcnt(0)")
        A.salu(f"s_mov_b32 s{64+self.n}, s96")
        if self.n == 0:
            A.salu("s_memrealtime s[98:99]")
            A.salu("s_waitcnt lgkmcnt(0)")
        self.n += 1; self.names.append(name)
    def dump(self, wsreg, sW, tmp):
        if not OPT["prof"]: return
        A = self.A
        self.stamp("end")
        if OPT["prof"] == 3:
            A.salu(f"s_cmp_eq_u32 s{sW}, 0")
            A.salu("s_cbranch_scc0 K1_END")
            A.salu("s_mov_b64 exec, -1")
            A.salu("s_nop 4")
            for i in range(2):
                A.salu(f"v_writelane_b32 v{tmp}, s{64+i}, {i}")
            A.salu(f"v_mbcnt_lo_u32_b32 v{tmp+1}, -1, 0")
            A.salu(f"v_lshlrev_b32 v{tmp+1}, 2, v{tmp+1}")
            A.salu(f"v_mov_b32 v{tmp+2}, 1")
            A.salu("s_mov_b64 exec, 3")
            A.salu("s_nop 4")
            A.salu(f"buffer_atomic_umax v{tmp}, v{tmp+1}, s[20:23], 0 offen offset:32 sc1")
            A.salu("s_waitcnt vmcnt(0)")
            A.salu("s_mov_b64 exec, 1")
            A.salu(f"buffer_atomic_add v{tmp+2}, v{tmp+1}, s[20:23], 0 offen offset:40 sc0 sc1")
            A.salu("s_waitcnt vmcnt(0)")
            A.salu(f"v_readfirstlane_b32 s66, v{tmp+2}")
            A.salu("s_cmp_eq_u32 s66, 251")
            A.salu("s_cbranch_scc0 K1_END")
            A.salu("s_mov_b64 exec, 3")
            A.salu(f"buffer_load_dword v{tmp}, v{tmp+1}, s[20:23], 0 offen offset:32 sc1")
            A.salu("s_waitcnt vmcnt(0)")
            A.salu(f"v_readlane_b32 s66, v{tmp}, 0")
            A.salu(f"v_readlane_b32 s67, v{tmp}, 1")
            A.salu("s_not_b32 s66, s66")
            A.salu("s_sub_u32 s66, s67, s66")
            A.salu("s_min_u32 s66, s66, 10000")
            A.salu("s_lshl_b32 s66, s66, 3")
            A.salu("s_memrealtime s[96:97]")
            A.salu("s_waitcnt lgkmcnt(0)")
            A.salu("s_mov_b32 s67, s96")
            A.label("K1_DLY")
            A.salu("s_memrealtime s[96:97]")
            A.salu("s_waitcnt lgkmcnt(0)")
            A.salu("s_sub_u32 s96, s96, s67")
            A.salu("s_cmp_lt_u32 s96, s66")
            A.salu("s_cbranch_scc1 K1_DLY")
            return
        if OPT["prof"] == 2:
            A.salu("s_mov_b64 exec, -1")
            A.salu("s_nop 4")
            for i in range(8):
                A.salu(f"v_writelane_b32 v{tmp}, s{64+i}, {i}")
            A.salu(f"v_mbcnt_lo_u32_b32 v{tmp+1}, -1, 0")
            A.salu(f"v_lshlrev_b32 v{tmp+1}, 2, v{tmp+1}")
            A.salu("s_mov_b64 exec, 0xff")
            A.salu("s_nop 4")
            A.salu(f"buffer_atomic_umax v{tmp}, v{tmp+1}, s[20:23], 0 offen offset:32 sc1")
            return
        A.salu("s_memrealtime s[96:97]")
        A.salu("s_waitcnt lgkmcnt(0)")
        A.salu("s_mov_b64 exec, -1")
        A.salu("s_nop 4")
        for i in range(self.n):
            A.salu(f"v_writelane_b32 v{tmp}, s{64+i}, {i}")
        A.salu("s_getreg_b32 s97, hwreg(HW_REG_HW_ID)")
        A.salu(f"v_writelane_b32 v{tmp}, s97, 29")
        A.salu(f"v_writelane_b32 v{tmp}, s98, 30")
        A.salu(f"v_writelane_b32 v{tmp}, s96, 31")
        A.salu(f"s_mov_b32 s60, s{wsreg}")
        A.salu(f"s_and_b32 s61, s{wsreg+1}, 0xffff")
        A.salu("s_mov_b32 s62, 0x10000000")
        A.salu("s_mov_b32 s63, 0x00020000")
        A.salu("s_lshl_b32 s96, s2, 3")
        A.salu(f"s_add_u32 s96, s96, s{sW}")
        A.salu("s_lshl_b32 s96, s96, 7")
        A.salu(f"s_add_u32 s96, s96, {255*1024*1024 + self.kidx*512*1024}")
        A.salu(f"v_mbcnt_lo_u32_b32 v{tmp+1}, -1, 0")
        A.salu(f"v_mbcnt_hi_u32_b32 v{tmp+1}, -1, v{tmp+1}")
        A.salu(f"v_lshlrev_b32 v{tmp+1}, 2, v{tmp+1}")
        A.salu("s_mov_b64 exec, 0xffffffff")
        A.salu("s_nop 4")
        A.salu(f"buffer_store_dword v{tmp}, v{tmp+1}, s[60:63], s96 offen")
        print("stamps k%d:" % self.kidx, self.names)

def gen_k1(A):
    V = A.valu
    T0, T1, T2, T3, T4, T5, T6, T7 = range(0, 8)
    XO, WO, KO = 8, 10, 12
    BW, BX, BK, BV = 14, 15, 16, 17
    LSUM, OST = 18, 19
    SUMA, SUMB, MX, MX2 = 20, 21, 22, 23
    AD = 24
    FR = 32
    NEGM = 48
    QB = 64
    S = 96
    O = 160
    P = 224
    sBLK, sKVH, sB, sW, sHL, sRT = 26, 27, 4, 5, 6, 7
    SX, SW_, SK, SV, SO = 28, 32, 36, 40, 44
    sWL, sXB, sWB, sKVB, sT, sOB = 48, 49, 50, 51, 52, 53
    sMASK, sTHR, sC = 54, 56, 57
    sW3, sWL4, sT2 = 58, 59, 55

    A.raw(f".p2align 8\n.globl k1_kernel\n.type k1_kernel,@function\nk1_kernel:\nK1_BEGIN:")
    A.salu("s_cmp_ge_u32 s2, 256")
    A.salu("s_cbranch_scc1 K1_END")
    A.salu("s_load_dwordx8 s[8:15], s[0:1], 0")
    A.salu("s_load_dwordx8 s[16:23], s[0:1], 40")
    A.salu("s_load_dwordx2 s[24:25], s[0:1], 96")
    if OPT["cpf"]:
        A.salu("s_getpc_b64 s[60:61]")
        A.salu("s_and_b32 s60, s60, 0xffffff00")
        A.salu("s_and_b32 s61, s61, 0xffff")
        A.salu("s_mov_b32 s62, CODE_BYTES")
        A.salu("s_mov_b32 s63, 0x00020000")
        V(f"v_lshlrev_b32 v{T7}, 7, v0", w={T7}, r={0})
        A.vmem(f"buffer_load_dword v{NEGM+15}, v{T7}, s[60:63], 0 offen", w={NEGM+15}, r={T7})
    A.salu("s_and_b32 s3, s2, 7")
    A.salu(f"s_lshr_b32 s{sB}, s2, 3")
    A.salu(f"s_lshr_b32 s{sBLK}, s3, 2")
    A.salu("s_and_b32 s3, s3, 3")
    A.salu("s_lshl_b32 s3, s3, 2")
    A.salu(f"s_and_b32 s{sKVH}, s{sB}, 3")
    A.salu(f"s_add_u32 s{sKVH}, s{sKVH}, s3")
    A.salu(f"s_lshr_b32 s{sB}, s{sB}, 2")
    V(f"v_lshrrev_b32 v{T1}, 6, v0", w={T1}, r={0})
    A._emit(I(f"v_readfirstlane_b32 s{sW}, v{T1}", "rdlane", r={T1}, sw={sW}))
    V(f"v_and_b32 v{T0}, 63, v0", w={T0}, r={0})
    if OPT["fat"]:
        A.salu(f"s_bfe_u32 s{sHL}, s{sW}, 0x10001", sr={sW})
        A.salu(f"s_and_b32 s{sRT}, s{sW}, 1", sr={sW})
        A.salu(f"s_lshl_b32 s{sRT}, s{sRT}, 1")
        A.salu(f"s_lshr_b32 s3, s{sW}, 2", sr={sW})
        A.salu(f"s_add_u32 s{sRT}, s{sRT}, s3")
    else:
        A.salu(f"s_lshr_b32 s{sHL}, s{sW}, 2", sr={sW})
        A.salu(f"s_and_b32 s{sRT}, s{sW}, 3", sr={sW})
    A.salu(f"s_lshl_b32 s{sWL}, s{sW}, 11", sr={sW})
    A.salu(f"s_and_b32 s{sW3}, s{sW}, {3 if OPT['ld4'] else 1}", sr={sW})
    A.salu(f"s_lshl_b32 s{sWL4}, s{sW3}, 11")
    A.salu(f"s_mul_i32 s{sXB}, s{sB}, 129024")
    A.salu(f"s_lshl_b32 s{sWB}, s{sKVH}, 9")
    A.salu(f"s_lshl_b32 s{sKVB}, s{sB}, 4")
    A.salu(f"s_add_u32 s{sKVB}, s{sKVB}, s{sKVH}")
    if OPT["rot"] == 1:
        A.salu(f"s_and_b32 s{sMASK}, s{sKVB}, 7")
    elif OPT["rot"] == 2:
        A.salu(f"s_add_u32 s{sMASK}, s{sKVH}, s{sB}")
        A.salu(f"s_and_b32 s{sMASK}, s{sMASK}, 7")
    elif OPT["rot"] == 3:
        A.salu(f"s_and_b32 s{sMASK}, s{sB}, 7")
    A.salu(f"s_lshl_b32 s{sMASK}, s{sMASK}, 14")
    A.salu(f"s_lshl_b32 s{sKVB}, s{sKVB}, 17")
    A.salu(f"s_mov_b32 s{sTHR}, 0x4b800000")
    c = math.log2(math.e) / math.sqrt(128.0)
    import struct
    cbits = struct.unpack("<I", struct.pack("<f", c))[0]
    A.salu(f"s_mov_b32 s{sC}, {cbits:#x}")
    L = T0
    for q in range(2):
        V(f"v_lshrrev_b32 v{T1}, 3, v{L}", w={T1}, r={L})
        A.salu(f"s_lshl_b32 s3, s{sW3}, 4")
        A.salu(f"s_add_u32 s3, s3, {8*q}")
        V(f"v_add_u32 v{T1}, s3, v{T1}", w={T1}, r={T1})
        V(f"v_mul_u32_u24 v{T1}, 1152, v{T1}", w={T1}, r={T1})
        V(f"v_and_b32 v{T2}, 7, v{L}", w={T2}, r={L})
        V(f"v_lshrrev_b32 v{T3}, 4, v{L}", w={T3}, r={L})
        V(f"v_xor_b32 v{T2}, v{T2}, v{T3}", w={T2}, r={T2, T3})
        if q: V(f"v_xor_b32 v{T2}, 4, v{T2}", w={T2}, r={T2})
        V(f"v_lshl_add_u32 v{XO+q}, v{T2}, 4, v{T1}", w={XO+q}, r={T2, T1})
        V(f"v_lshrrev_b32 v{T3}, 5, v{L}", w={T3}, r={L})
        A.salu(f"s_lshl_b32 s3, s{sW3}, 2")
        A.salu(f"s_add_u32 s3, s3, {2*q}")
        V(f"v_add_u32 v{T1}, s3, v{T3}", w={T1}, r={T3})
        V(f"v_lshlrev_b32 v{T1}, 13, v{T1}", w={T1}, r={T1})
        V(f"v_or_b32 v{T3}, {2*q}, v{T3}", w={T3}, r={T3})
        V(f"v_lshlrev_b32 v{T3}, 2, v{T3}", w={T3}, r={T3})
        V(f"v_and_b32 v{T2}, 31, v{L}", w={T2}, r={L})
        V(f"v_xor_b32 v{T2}, v{T2}, v{T3}", w={T2}, r={T2, T3})
        V(f"v_lshl_add_u32 v{WO+q}, v{T2}, 4, v{T1}", w={WO+q}, r={T2, T1})
        V(f"v_lshrrev_b32 v{T3}, 4, v{L}", w={T3}, r={L})
        A.salu(f"s_lshl_b32 s3, s{sW}, 3")
        A.salu(f"s_add_u32 s3, s3, {4*q}")
        V(f"v_add_u32 v{T1}, s3, v{T3}", w={T1}, r={T3})
        V(f"v_lshlrev_b32 v{T1}, 8, v{T1}", w={T1}, r={T1})
        A.salu(f"s_and_b32 s3, s{sW}, 1")
        A.salu(f"s_lshl_b32 s3, s3, 1")
        A.salu(f"s_or_b32 s3, s3, {q}")
        V(f"v_lshlrev_b32 v{T3}, 2, v{T3}", w={T3}, r={T3})
        V(f"v_or_b32 v{T3}, s3, v{T3}", w={T3}, r={T3})
        V(f"v_and_b32 v{T2}, 15, v{L}", w={T2}, r={L})
        V(f"v_xor_b32 v{T2}, v{T2}, v{T3}", w={T2}, r={T2, T3})
        V(f"v_lshl_add_u32 v{KO+q}, v{T2}, 4, v{T1}", w={KO+q}, r={T2, T1})
    V(f"v_lshrrev_b32 v{T1}, 5, v{L}", w={T1}, r={L})
    V(f"v_bfe_u32 v{T2}, v{L}, 4, 1", w={T2}, r={L})
    V(f"v_bfe_u32 v{T3}, v{L}, 2, 2", w={T3}, r={L})
    V(f"v_and_b32 v{T4}, 3, v{L}", w={T4}, r={L})
    V(f"v_and_b32 v{T5}, 31, v{L}", w={T5}, r={L})
    V(f"v_lshl_add_u32 v{T6}, v{T1}, 3, v{T3}", w={T6}, r={T1, T3})
    V(f"v_lshlrev_b32 v{T6}, 9, v{T6}", w={T6}, r={T6})
    V(f"v_lshlrev_b32 v{T7}, 2, v{T3}", w={T7}, r={T3})
    V(f"v_lshl_add_u32 v{T7}, v{T2}, 1, v{T7}", w={T7}, r={T2, T7})
    V(f"v_and_b32 v{BW}, 1, v{T4}", w={BW}, r={T4})
    V(f"v_add_u32 v{T7}, v{T7}, v{BW}", w={T7}, r={T7, BW})
    A.salu(f"s_lshl_b32 s3, s{sHL}, 4")
    V(f"v_add_u32 v{T7}, s3, v{T7}", w={T7}, r={T7})
    V(f"v_lshl_add_u32 v{T6}, v{T7}, 4, v{T6}", w={T6}, r={T7, T6})
    V(f"v_lshrrev_b32 v{T7}, 1, v{T4}", w={T7}, r={T4})
    V(f"v_lshl_add_u32 v{BW}, v{T7}, 3, v{T6}", w={BW}, r={T7, T6})
    A.salu(f"s_lshl_b32 s3, s{sRT}, 5")
    V(f"v_add_u32 v{T6}, s3, v{T5}", w={T6}, r={T5})
    V(f"v_lshlrev_b32 v{T6}, 7, v{T6}", w={T6}, r={T6})
    V(f"v_bfe_u32 v{T7}, v{T5}, 1, 3", w={T7}, r={T5})
    V(f"v_xor_b32 v{T7}, v{T7}, v{T1}", w={T7}, r={T7, T1})
    V(f"v_lshl_add_u32 v{BX}, v{T7}, 4, v{T6}", w={BX}, r={T7, T6})
    V(f"v_lshlrev_b32 v{T6}, 2, v{T4}", w={T6}, r={T4})
    V(f"v_or_b32 v{T6}, v{T6}, v{T3}", w={T6}, r={T6, T3})
    V(f"v_xor_b32 v{T6}, v{T6}, v{T1}", w={T6}, r={T6, T1})
    V(f"v_lshlrev_b32 v{T7}, 8, v{T5}", w={T7}, r={T5})
    V(f"v_lshl_add_u32 v{BK}, v{T6}, 4, v{T7}", w={BK}, r={T6, T7})
    V(f"v_lshl_add_u32 v{T6}, v{T1}, 2, v{T3}", w={T6}, r={T1, T3})
    V(f"v_lshlrev_b32 v{T6}, 8, v{T6}", w={T6}, r={T6})
    V(f"v_lshrrev_b32 v{T7}, 1, v{T4}", w={T7}, r={T4})
    V(f"v_lshl_add_u32 v{T7}, v{T2}, 1, v{T7}", w={T7}, r={T2, T7})
    V(f"v_xor_b32 v{T7}, v{T7}, v{T1}", w={T7}, r={T7, T1})
    V(f"v_lshl_or_b32 v{T7}, v{T3}, 2, v{T7}", w={T7}, r={T3, T7})
    V(f"v_lshl_add_u32 v{T6}, v{T7}, 4, v{T6}", w={T6}, r={T7, T6})
    V(f"v_and_b32 v{T7}, 1, v{T4}", w={T7}, r={T4})
    V(f"v_lshl_add_u32 v{BV}, v{T7}, 3, v{T6}", w={BV}, r={T7, T6})
    V(f"v_lshlrev_b32 v{T6}, 17, v{T2}", w={T6}, r={T2})
    V(f"v_lshl_add_u32 v{T6}, v{T1}, 8, v{T6}", w={T6}, r={T1, T6})
    V(f"v_and_b32 v{T7}, 15, v{L}", w={T7}, r={L})
    V(f"v_lshl_add_u32 v{OST}, v{T7}, 4, v{T6}", w={OST}, r={T7, T6})
    V(f"v_mov_b32 v{LSUM}, 0", w={LSUM})
    A.waitcnt(lgkm=0)
    A.salu(f"s_cmp_eq_u32 s{sBLK}, 0")
    for k in range(8):
        A.salu(f"s_cselect_b32 s{8+k}, s{8+k}, s{16+k}")
    srd(A, SX, 8, 8 * 112 * 576 * 2)
    srd(A, SK, 10, 8 * 16 * 512 * 128 * 2)
    srd(A, SV, 12, 8 * 16 * 512 * 128 * 2)
    srd(A, SW_, 14, 576 * 4096 * 2)
    srd(A, SO, 24, 2 * O_BLK)
    A.salu(f"s_mul_i32 s{sOB}, s{sBLK}, {O_BLK}")
    A.salu(f"s_mul_i32 s3, s{sB}, 7")
    A.salu(f"s_lshl_b32 s{sT}, s{sRT}, 1")
    A.salu(f"s_add_u32 s3, s3, s{sT}")
    A.salu(f"s_lshl_b32 s3, s3, 17")
    A.salu(f"s_add_u32 s{sOB}, s{sOB}, s3")
    A.salu(f"s_lshl_b32 s3, s{sKVH}, 1")
    A.salu(f"s_add_u32 s3, s3, s{sHL}")
    A.salu(f"s_lshl_b32 s3, s3, 12")
    A.salu(f"s_add_u32 s{sOB}, s{sOB}, s3")
    if OPT["prio"]:
        A.salu(f"s_cmp_ge_u32 s{sW}, 4")
        A.salu("s_cbranch_scc0 K1_PRIO_DONE" if OPT["prio"] == 1 else "s_cbranch_scc1 K1_PRIO_DONE")
        A.salu("s_setprio 1")
        A.label("K1_PRIO_DONE")

    NTT = {0: "", 1: " nt", 2: " sc1", 3: " sc0 sc1", 4: " sc1 nt"}[OPT["ntt"]]
    qunits = []
    for s_ in range(9):
        qunits += [("X", s_), ("W", 2 * s_), ("W", 2 * s_ + 1)]
    kvunits = [("K", 0)]
    for h in range(7):
        kvunits += [("K", h + 1), ("V", h)]
    kvunits += [("V", 7)]
    units = qunits + kvunits
    UK = {idx: 27 + i for i, (t_, idx) in enumerate(kvunits) if t_ == "K"}
    UV = {idx: 27 + i for i, (t_, idx) in enumerate(kvunits) if t_ == "V"}
    stage_units = [list(range(3 * s_, 3 * s_ + 3)) for s_ in range(9)]
    unit_last_vm = {}
    unit_slot = {}
    free = list(range(NSLOT))
    nq = [0]; nkv = [0]; xch = []
    KQ = FR
    DV = FR + 2
    NSTG = OPT["nstg"]
    STG = [S + 32, O, O + 32, P][:NSTG]

    def unit_info(u):
        typ, idx = units[u]
        if typ == "X": return sXB, idx * 128, SX, XO, 2 * 16 * 1152, "ntx"
        if typ == "W": return sWB, idx * 32 * 8192, SW_, WO, 2 * 4 * 8192, "ntw"
        if typ == "K": return sKVB, idx * 64 * 256, SK, KO, 4096, "ntkv"
        return sKVB, idx * 64 * 256, SV, KO, 4096, "ntkv"

    def sbase(base, const):
        if base == sKVB and OPT["rot"]:
            A.salu(f"s_add_u32 s{sT}, s{sMASK}, {const}")
            A.salu(f"s_and_b32 s{sT}, s{sT}, 0x1ffff")
            A.salu(f"s_or_b32 s{sT}, s{sT}, s{sKVB}")
        else:
            A.salu(f"s_add_u32 s{sT}, s{base}, {const}")

    def issue_unit_q(u, stage_reg=None):
        if stage_reg is None:
            slot = free.pop(0)
            unit_slot[u] = slot
        base, const, sr_, vo, delta, nto = unit_info(u)
        if vo == KO: vo = KQ
        nt = " nt" if OPT[nto] else ""
        for hv in range(4):
            A.salu(f"s_add_u32 s{sT}, s{base}, {const + delta * hv}")
            for q in range(2):
                if stage_reg is None:
                    A.salu(f"s_add_u32 m0, s{sWL4}, {slot * SLOT + hv * 4096 + q * 1024}", m0w=True)
                    k = A.vmem(f"buffer_load_dwordx4 v{vo+q}, s[{sr_}:{sr_+3}], s{sT} offen{nt} lds", kind="dma", r={vo + q}, m0r=True)
                else:
                    d = stage_reg + (hv * 2 + q) * 4
                    k = A.vmem(f"buffer_load_dwordx4 {vname(d,4)}, v{vo+q}, s[{sr_}:{sr_+3}], s{sT} offen{nt}", w=vr(d, 4), r={vo + q})
        unit_last_vm[u] = k

    def issue_unit_4(u):
        slot = free.pop(0)
        unit_slot[u] = slot
        base, const, sr_, vo, delta, nto = unit_info(u)
        nt = " nt" if OPT[nto] else ""
        sbase(base, const)
        if vo != KO: A.salu(f"s_add_u32 s{sT2}, s{base}, {const + 2 * delta}")
        for hv in range(2):
            for q in range(2):
                A.salu(f"s_add_u32 m0, s{sWL4}, {slot * SLOT + hv * 8192 + q * 1024}", m0w=True)
                if vo == KO:
                    va = (KQ if hv == 0 else KO) + q; so = sT
                else:
                    va = vo + q; so = sT if hv == 0 else sT2
                k = A.vmem(f"buffer_load_dwordx4 v{va}, s[{sr_}:{sr_+3}], s{so} offen{nt} lds", kind="dma", r={va}, m0r=True)
        unit_last_vm[u] = k

    def flood():
        if not OPT["l2pf"]: return
        V(f"v_lshrrev_b32 v{T1}, 2, v{L}", w={T1}, r={L})
        V(f"v_lshlrev_b32 v{T1}, 13, v{T1}", w={T1}, r={T1})
        V(f"v_and_b32 v{T2}, 3, v{L}", w={T2}, r={L})
        V(f"v_lshl_add_u32 v{T1}, v{T2}, 7, v{T1}", w={T1}, r={T2, T1})
        A.salu(f"s_lshl_b32 s3, s{sW}, 4")
        A.salu(f"s_min_u32 s3, s3, 56")
        A.salu(f"s_mul_i32 s{sT}, s{sB}, 72")
        A.salu(f"s_add_u32 s3, s3, s{sT}")
        A.salu(f"s_lshl_b32 s3, s3, 13")
        A.salu(f"s_add_u32 s3, s3, s{sWB}")
        A.vmem(f"buffer_load_dword v{T4}, v{T1}, s[{SW_}:{SW_+3}], s3 offen{NTT}", w={T4}, r={T1})
        V(f"v_lshlrev_b32 v{T2}, 7, v{L}", w={T2}, r={L})
        A.salu(f"s_and_b32 s3, s{sKVH}, 3")
        A.salu(f"s_mul_i32 s3, s3, 32256")
        A.salu(f"s_and_b32 s{sT}, s{sW}, 3")
        A.salu(f"s_lshl_b32 s{sT}, s{sT}, 13")
        A.salu(f"s_add_u32 s3, s3, s{sT}")
        A.salu(f"s_add_u32 s3, s3, s{sXB}")
        A.vmem(f"buffer_load_dword v{T5}, v{T2}, s[{SX}:{SX+3}], s3 offen{NTT}", w={T5}, r={T2})

    def dump_unit(u, stage_reg):
        slot = free.pop(0)
        unit_slot[u] = slot
        V(f"v_add_u32 v{DV+1}, {slot * SLOT}, v{DV}", w={DV + 1}, r={DV})
        for hv in range(4):
            for q in range(2):
                A.ds_write_b128(DV + 1, stage_reg + (hv * 2 + q) * 4, hv * 4096 + q * 1024)

    def dma_items(u):
        slot = free.pop(0)
        unit_slot[u] = slot
        base, const, sr_, vo, delta, nto = unit_info(u)
        nt = " nt" if OPT[nto] else ""
        def mk(q):
            def f():
                sbase(base, const)
                A.salu(f"s_add_u32 m0, s{sWL}, {slot * SLOT + q * 1024}", m0w=True)
                k = A.vmem(f"buffer_load_dwordx4 v{vo+q}, s[{sr_}:{sr_+3}], s{sT} offen{nt} lds", kind="dma", r={vo + q}, m0r=True)
                unit_last_vm[u] = k
            return f
        if not OPT["stag"]: return [mk(0), mk(1)]
        G = 8 // OPT["stag"]
        def cond(f, g):
            def h():
                lab = f"K1_D{nlab[0]}"; nlab[0] += 1
                A.salu(f"s_cmp_eq_u32 s{sT2}, {g}")
                A.salu(f"s_cbranch_scc0 {lab}")
                n0 = len(A.out)
                f()
                for o in A.out[n0:]: o.ws = 0
                A.label(lab)
                if g < G - 1: A.nvm -= 1
            return h
        return [cond(mk(q), g) for q in range(2) for g in range(G)]
    nlab = [0]

    NQ = OPT["nq"]
    PF = Prof(A, 0)
    PF.stamp("start")

    def addr_items(dst, base, slot, xors):
        it = [lambda: V(f"v_add_u32 v{dst[0]}, {slot * SLOT}, v{base}", w={dst[0]}, r={base})]
        for i, x in enumerate(xors):
            if i == 0: continue
            it.append(lambda i=i, x=x: V(f"v_xor_b32 v{dst[i]}, {x}, v{dst[0]}", w={dst[i]}, r={dst[0]}))
        return it

    A.salu(f"s_cmp_lt_u32 s{sW}, 4")
    A.salu("s_cbranch_scc1 K1_FAT")
    pf0 = PF.n
    staged = []
    if OPT["ld4"]:
        for q in range(2):
            V(f"v_subrev_u32 v{KQ+q}, {4*8*256}, v{KO+q}", w={KQ + q}, r={KO + q})
        NL = NSLOT - NQ
        def refill(s):
            done_q = 3 * max(s, 0)
            while nq[0] < 27 and nq[0] - done_q < NQ and free:
                issue_unit_4(nq[0]); nq[0] += 1
        def kv_issue():
            if nkv[0] < NL:
                if free:
                    issue_unit_4(27 + nkv[0]); nkv[0] += 1
        LW, LX = FR + 4, FR + 5
        nroll = [NQ // 3]
        def lroll(n):
            n = min(n, 9 - nroll[0])
            if n <= 0 or OPT["roll"] != 2: return
            a = nroll[0]; nroll[0] += n
            if n < 8:
                m = (1 << (8 * n)) - 1
                A.salu(f"s_mov_b32 exec_lo, {m & 0xffffffff}")
                A.salu(f"s_mov_b32 exec_hi, {m >> 32}")
            A.salu(f"s_add_u32 s3, s8, {a * 64 * 8192}")
            A.vmem(f"buffer_load_dword v{FR+6}, v{LW}, s[{SW_}:{SW_+3}], s3 offen{NTT}", w={FR + 6}, r={LW})
            A.vmem(f"buffer_load_dword v{FR+7}, v{LX}, s[{SX}:{SX+3}], s9 offen offset:{a * 128}{NTT}", w={FR + 7}, r={LX})
            if n < 8: A.salu("s_mov_b64 exec, -1")
        refill(-1)
        for _ in range(OPT["kv0"]): kv_issue()
        if not OPT["roll"]: flood()
        if OPT["roll"] == 2:
            V(f"v_bfe_u32 v{T1}, v{L}, 2, 1", w={T1}, r={L})
            A.salu(f"s_lshl_b32 s3, s{sW3}, 1")
            V(f"v_add_u32 v{T1}, s3, v{T1}", w={T1}, r={T1})
            V(f"v_lshrrev_b32 v{T3}, 3, v{L}", w={T3}, r={L})
            V(f"v_lshl_add_u32 v{T1}, v{T3}, 6, v{T1}", w={T1}, r={T3, T1})
            V(f"v_lshlrev_b32 v{T1}, 13, v{T1}", w={T1}, r={T1})
            V(f"v_and_b32 v{T2}, 3, v{L}", w={T2}, r={L})
            V(f"v_lshl_add_u32 v{LW}, v{T2}, 7, v{T1}", w={LW}, r={T2, T1})
            V(f"v_and_b32 v{T1}, 7, v{L}", w={T1}, r={L})
            V(f"v_min_u32 v{T1}, 6, v{T1}", w={T1}, r={T1})
            A.salu(f"s_mul_i32 s3, s{sW3}, 7")
            V(f"v_add_u32 v{T1}, s3, v{T1}", w={T1}, r={T1})
            V(f"v_mul_u32_u24 v{T1}, 1152, v{T1}", w={T1}, r={T1})
            V(f"v_lshl_add_u32 v{LX}, v{T3}, 7, v{T1}", w={LX}, r={T3, T1})
            A.salu(f"s_lshl_b32 s8, s{sB}, 16")
            A.salu(f"s_add_u32 s8, s8, s{sWB}")
            A.salu(f"s_and_b32 s9, s{sKVH}, 3")
            A.salu(f"s_mul_i32 s9, s9, {28*1152}")
            A.salu(f"s_add_u32 s9, s9, s{sXB}")
            lroll(OPT["pflead"] - nroll[0])
        for s in range(9):
            A.wait_vm(max(unit_last_vm[u] for u in stage_units[s]))
            A.barrier()
            PF.stamp(f"q{s}")
            if s > 0:
                for u in stage_units[s - 1]: free.append(unit_slot[u])
            refill(s)
            lroll(OPT["pfrate"])
            if s == 8:
                xch.append(free.pop(0)); xch.append(free.pop(0))
            elif s >= OPT["kvs"]:
                for _ in range(OPT["kvrate"]): kv_issue()
            if nq[0] == 27 and nkv[0] >= NL:
                while free:
                    issue_unit_4(27 + nkv[0]); nkv[0] += 1
        A.salu("s_branch K1_ATT")
        ldr_vm = (A.nvm, A.vm_done)
    else:
        A.salu(f"s_cmp_ge_u32 s{sW}, 6")
        A.salu("s_cbranch_scc1 K1_KVL")
        pf0 = PF.n
        kvslots = [free.pop() for _ in range(NSLOT - NQ)]
        def refill(s):
            done_q = 3 * max(s, 0)
            while nq[0] < 27 and nq[0] - done_q < NQ and free:
                issue_unit_q(nq[0]); nq[0] += 1
        refill(-1)
        for s in range(9):
            A.wait_vm(max(unit_last_vm[u] for u in stage_units[s]))
            A.barrier()
            PF.stamp(f"q{s}")
            if s > 0:
                for u in stage_units[s - 1]: free.append(unit_slot[u])
            refill(s)
            if s == 8:
                xch.append(free.pop(0)); xch.append(free.pop(0))
        A.waitcnt(vm=0)
        A.vm_done = A.nvm
        A.salu("s_branch K1_ATT")
        A.label("K1_KVL")
        A.win = []
        A.salu("s_nop 4")
        PF.n = pf0; PF.names = PF.names[:pf0]
        for q in range(2):
            V(f"v_subrev_u32 v{KQ+q}, {6*8*256}, v{KO+q}", w={KQ + q}, r={KO + q})
        V(f"v_lshlrev_b32 v{DV}, 4, v{L}", w={DV}, r={L})
        V(f"v_add_u32 v{DV}, s{sWL4}, v{DV}", w={DV}, r={DV})
        late_free = free[:]; free[:] = kvslots
        NL = len(kvslots)
        TV = FR + 4
        V(f"v_lshlrev_b32 v{TV}, 7, v{L}", w={TV}, r={L})
        A.salu(f"s_lshl_b32 s3, s{sW3}, 13")
        V(f"v_add_u32 v{TV}, s3, v{TV}", w={TV}, r={TV})
        NT = OPT["kvt"]
        ntouch = [0]
        def kv_issue():
            i = nkv[0]
            if i < NL: issue_unit_q(27 + i)
            elif i < NL + NSTG: issue_unit_q(27 + i, STG[i - NL])
            else:
                if ntouch[0] < NT:
                    u = 27 + NL + NSTG + ntouch[0]
                    base, const, sr_, vo, delta, nto = unit_info(u)
                    A.salu(f"s_add_u32 s{sT}, s{base}, {const}")
                    A.vmem(f"buffer_load_dword v{TV+1}, v{TV}, s[{sr_}:{sr_+3}], s{sT} offen", w={TV + 1}, r={TV})
                    ntouch[0] += 1
                return
            nkv[0] += 1
        for _ in range(OPT["kv0"]): kv_issue()
        for s in range(9):
            A.barrier()
            PF.stamp(f"q{s}")
            for _ in range(OPT["kvrate"]): kv_issue()
        assert nkv[0] == NL + NSTG
        free[:] = late_free
        staged = [(27 + NL + i, STG[i]) for i in range(NSTG)]
        while staged and free:
            u, r_ = staged.pop(0)
            A.wait_vm(unit_last_vm[u])
            dump_unit(u, r_)
        A.waitcnt(vm=0)
        A.vm_done = A.nvm
        A.wait_ds_all()
        A.salu("s_branch K1_ATT")
    A.label("K1_FAT")
    A.win = []
    A.salu("s_nop 4")
    PF.n = pf0; PF.names = PF.names[:pf0]
    TW, TX = XO, XO + 1
    if OPT["roll"] == 2:
        pass
    elif OPT["ld4"] and not OPT["roll"]:
        V(f"v_lshlrev_b32 v{TW}, 7, v{L}", w={TW}, r={L})
        A.salu(f"s_lshl_b32 s3, s{sW}, 13")
        V(f"v_add_u32 v{TW}, s3, v{TW}", w={TW}, r={TW})
    else:
        TW, TX = XO, XO + 1
        V(f"v_bfe_u32 v{T1}, v{L}, 2, 1", w={T1}, r={L})
        A.salu(f"s_lshl_b32 s3, s{sW}, 1")
        V(f"v_add_u32 v{T1}, s3, v{T1}", w={T1}, r={T1})
        V(f"v_lshlrev_b32 v{T1}, 13, v{T1}", w={T1}, r={T1})
        V(f"v_and_b32 v{T2}, 3, v{L}", w={T2}, r={L})
        V(f"v_lshl_add_u32 v{TW}, v{T2}, 7, v{T1}", w={TW}, r={T2, T1})
        V(f"v_and_b32 v{T1}, 7, v{L}", w={T1}, r={L})
        V(f"v_min_u32 v{T1}, 6, v{T1}", w={T1}, r={T1})
        A.salu(f"s_mul_i32 s3, s{sW}, 7")
        V(f"v_add_u32 v{T1}, s3, v{T1}", w={T1}, r={T1})
        V(f"v_mul_u32_u24 v{TX}, 1152, v{T1}", w={TX}, r={T1})
        A.salu(f"s_lshl_b32 s8, s{sB}, 16")
        A.salu(f"s_add_u32 s8, s8, s{sWB}")
        A.salu(f"s_and_b32 s9, s{sKVH}, 3")
        A.salu(f"s_mul_i32 s9, s9, {28*1152}")
        A.salu(f"s_add_u32 s9, s9, s{sXB}")
    def touch(s_):
        if not OPT["l2pf"] or s_ > 8: return
        A.salu(f"s_add_u32 s3, s8, {s_ * 64 * 8192}")
        A.vmem(f"buffer_load_dword v{T4}, v{TW}, s[{SW_}:{SW_+3}], s3 offen{NTT}", w={T4}, r={TW})
        A.vmem(f"buffer_load_dword v{T5}, v{TX}, s[{SX}:{SX+3}], s9 offen offset:{s_ * 128}{NTT}", w={T5}, r={TX})
    if OPT["roll"] == 2:
        touch = lambda s_: None
    elif OPT["roll"]:
        touch1 = touch
        nroll = [2]
        def roll(n):
            for _ in range(n):
                touch1(nroll[0]); nroll[0] += 1
        roll(OPT["pflead"] - 2)
        touch = lambda s_: roll(OPT["pfrate"])
    elif OPT["ld4"]:
        flood()
        ntouch = [0]
        def touch(s_):
            s_ -= OPT["pflead"]
            if s_ < OPT["kvt0"]: return
            for _ in range(OPT["kvtr"]):
                if ntouch[0] >= OPT["kvt"]: return
                ua = 27 + NL + 1 + ntouch[0]
                ia = unit_info(ua); ib = unit_info(ua + 1)
                A.salu(f"s_cmp_lt_u32 s{sW}, 2")
                A.salu(f"s_mov_b32 s3, {ib[1] - 16384}")
                A.salu(f"s_cselect_b32 s3, {ia[1]}, s3")
                A.salu(f"s_cselect_b32 s60, s{ia[2]}, s{ib[2]}")
                A.salu(f"s_cselect_b32 s61, s{ia[2]+1}, s{ib[2]+1}")
                A.salu(f"s_mov_b32 s62, s{ia[2]+2}")
                A.salu(f"s_mov_b32 s63, s{ia[2]+3}")
                A.salu(f"s_add_u32 s3, s3, s{sKVB}")
                A.vmem(f"buffer_load_dword v{T4}, v{TW}, s[60:63], s3 offen", w={T4}, r={TW})
                ntouch[0] += 2
    if not OPT["ld4"]:
        for s_ in range(2, OPT["pflead"]): touch(s_)
    if OPT["tlbw"]:
        A.salu("s_load_dwordx2 s[16:17], s[0:1], 32")
        A.salu("s_load_dwordx2 s[18:19], s[0:1], 72")
        A.salu("s_load_dwordx2 s[20:21], s[0:1], 80")
        D = NEGM
        V(f"v_lshlrev_b32 v{T1}, 12, v{L}", w={T1}, r={L})
        V(f"v_and_b32 v{T1}, 0x1ffff, v{T1}", w={T1}, r={T1})
        A.vmem(f"buffer_load_dword v{D}, v{T1}, s[{SV}:{SV+3}], s{sKVB} offen", w={D}, r={T1})
        if OPT["tlbw"] > 1:
            A.vmem(f"buffer_load_dword v{D+1}, v{T1}, s[{SK}:{SK+3}], s{sKVB} offen", w={D + 1}, r={T1})
        V(f"v_min_u32 v{T2}, 6, v{L}", w={T2}, r={L})
        V(f"v_lshlrev_b32 v{T2}, 17, v{T2}", w={T2}, r={T2})
        A.salu(f"s_mul_i32 s3, s{sBLK}, {O_BLK}")
        A.salu(f"s_mul_i32 s{sT}, s{sB}, {7*131072}")
        A.salu(f"s_add_u32 s3, s3, s{sT}")
        if OPT["fuse"]:
            A.salu(f"s_lshl_b32 s{sT}, s{sKVH}, 13")
            A.salu(f"s_add_u32 s3, s3, s{sT}")
            A.vmem(f"buffer_store_dword v{T2}, v{T2}, s[{SO}:{SO+3}], s3 offen sc1", r={T2}, storedata={T2})
        else:
            A.vmem(f"buffer_load_dword v{D+2}, v{T2}, s[{SO}:{SO+3}], s3 offen", w={D + 2}, r={T2})
        V(f"v_lshlrev_b32 v{T3}, 16, v{L}", w={T3}, r={L})
        A.salu("s_waitcnt lgkmcnt(0)")
        A.salu(f"s_cmp_eq_u32 s{sBLK}, 0")
        A.salu("s_cselect_b32 s60, s16, s18")
        A.salu("s_cselect_b32 s61, s17, s19")
        A.salu("s_and_b32 s61, s61, 0xffff")
        A.salu(f"s_mov_b32 s62, {4096*576*2}")
        A.salu("s_mov_b32 s63, 0x00020000")
        A.salu(f"s_mov_b32 s3, {8*65536}")
        A.vmem(f"buffer_load_dword v{D+3}, v{T3}, s[60:63], 0 offen", w={D + 3}, r={T3})
        A.vmem(f"buffer_load_dword v{D+4}, v{T3}, s[60:63], s3 offen", w={D + 4}, r={T3})
        A.salu("s_mov_b32 s16, s20")
        A.salu("s_and_b32 s17, s21, 0xffff")
        A.salu(f"s_mov_b32 s18, {896*1152*2}")
        A.salu("s_mov_b32 s19, 0x00020000")
        A.vmem(f"buffer_load_dword v{D+5}, v{T3}, s[16:19], 0 offen", w={D + 5}, r={T3})
    QA = [S, O]
    FBW = [P, QB]; FBX = [P + 16, QB + 16]
    AW = [FR, FR + 4]; AX = FR + 8
    def qaddr(s):
        u0 = 3 * s
        return (addr_items([AX + i for i in range(4)], BX, unit_slot[u0], [0, 32, 64, 96]) +
                addr_items([AW[0] + i for i in range(4)], BW, unit_slot[u0 + 1], [0, 64, 128, 192]) +
                addr_items([AW[1] + i for i in range(4)], BW, unit_slot[u0 + 2], [0, 64, 128, 192]))
    def qread_items(ks):
        it = [lambda: A.ds_read_b128(FBX[ks % 2], AX + ks), lambda: A.ds_read_b128(FBX[ks % 2] + 4, AX + ks, 4096)]
        for t in range(4):
            for j in range(2):
                it.append(lambda t=t, j=j: A.ds_read_tr(FBW[ks % 2] + 4 * t + 2 * j, AW[ks // 2] + t, ((ks % 2) * 16 + 4 * j) * 512))
        return it
    def qreads(ks):
        for it in qread_items(ks): last = it()
        return last
    for it in qaddr(0): it()
    A.barrier()
    PF.stamp("q0")
    pend = qreads(0)
    touch(OPT["pflead"])
    QI = OPT["qi"]
    for s in range(9):
        for ks in range(4):
            A.wait_ds(pend)
            rq = []
            if ks < 3:
                if QI: rq = qread_items(ks + 1)
                else: pend = qreads(ks + 1)
            nxt = qaddr(s + 1) if (ks == 3 and s < 8) else []
            m = 0
            for t in range(4):
                for r2 in range(2):
                    A.mfma(QA[r2] + 16 * t, FBW[ks % 2] + 4 * t, FBX[ks % 2] + 4 * r2, "zero" if (s == 0 and ks == 0) else None)
                    if nxt:
                        if m < 2:
                            for it in nxt[6 * m: 6 * m + 6]: it()
                        if m == 1:
                            A.barrier()
                            PF.stamp(f"q{s+1}")
                            if QI: rq = qread_items(0)
                            else: pend = qreads(0)
                        if m == 3: touch(s + 1 + OPT["pflead"])
                    for _ in range(QI):
                        if rq: pend = rq.pop(0)()
                    m += 1
            assert not rq
    A.salu(f"s_lshr_b32 s3, s{sW}, 1")
    A.salu(f"s_cmp_eq_u32 s3, 0")
    A.salu(f"s_cselect_b32 s3, {xch[0]}, {xch[1]}")
    A.salu(f"s_lshl_b32 s3, s3, 14")
    A.salu(f"s_and_b32 s{sT}, s{sW}, 1")
    A.salu(f"s_lshl_b32 s{sT}, s{sT}, 13")
    A.salu(f"s_add_u32 s3, s3, s{sT}")
    V(f"v_lshlrev_b32 v{T6}, 4, v{L}", w={T6}, r={L})
    V(f"v_add_u32 v{T6}, s3, v{T6}", w={T6}, r={T6})
    for i in range(64):
        V(f"v_mul_f32 v{O+i}, s{sC}, v{O+i}", w={O + i}, r={O + i})
    for q in range(32):
        V(f"v_cvt_pk_bf16_f32 v{P+q}, v{O+2*q}, v{O+2*q+1}", w={P + q}, r={O + 2 * q, O + 2 * q + 1})
        if q % 4 == 3:
            A.ds_write_b128(T6, P + q - 3, (q // 4) * 1024)
    for i in range(64):
        V(f"v_mul_f32 v{S+i}, s{sC}, v{S+i}", w={S + i}, r={S + i})
    for q in range(32):
        V(f"v_cvt_pk_bf16_f32 v{QB+q}, v{S+2*q}, v{S+2*q+1}", w={QB + q}, r={S + 2 * q, S + 2 * q + 1})
    A.wait_ds_all()
    A.waitcnt(vm=0)
    A.vm_done = A.nvm
    if OPT["ld4"]:
        A.nvm, A.vm_done = ldr_vm
    A.label("K1_ATT")
    A.win = []
    A.salu("s_nop 4")
    if OPT["stag"]:
        A.salu(f"s_lshr_b32 s{sT2}, s{sW}, {OPT['stag'] - 1}")

    SETA = [AD + i for i in range(8)]
    SETB = [XO, XO + 1, WO, WO + 1, BW, BX, T4, T5]
    kx = [32 * ks for ks in range(8)]
    vx = [(t << 6) ^ (32 * jj) for t in range(4) for jj in range(2)]
    SB = lambda h: S + 32 * (h % 2)
    PB = lambda h: P + 16 * (h % 2)
    phases = [("qk", 0)] + [x for h in range(7) for x in (("qk", h + 1), ("pv", h))] + [("pv", 7)]
    pset = {}
    for ph in phases:
        pset[ph] = SETA if ph[0] == "qk" else SETB
    pset[("qk", 0)] = SETB; pset[("pv", 7)] = SETA
    punit = lambda ph: UK[ph[1]] if ph[0] == "qk" else UV[ph[1]]
    def paddr(ph):
        u = punit(ph)
        return addr_items(pset[ph], BK if ph[0] == "qk" else BV, unit_slot[u], kx if ph[0] == "qk" else vx)
    mf = [(ph, i) for ph in phases for i in range(16)]
    syncJ = list(range(0, 6, OPT["bstep"]))
    if OPT["fuse"]:
        syncJ.append(6)
        K2 = K2Fused(A, sW, SO, QB)
    sync_pos = [phases.index(("pv", j)) * 16 + 12 for j in syncJ]
    first_read = {}
    for n, (ph, i) in enumerate(mf):
        first_read.setdefault(punit(ph), max(n - 4, -1))
    last_read = {}
    for n, (ph, i) in enumerate(mf):
        last_read[punit(ph)] = n - 4
    def publish_set(pos_from, pos_to):
        return [u for u, fr in first_read.items() if pos_from <= fr < pos_to]
    freed = set()
    dmaq = []
    def refill_att():
        while nkv[0] < 16 and free:
            dmaq.extend(dma_items(27 + nkv[0])); nkv[0] += 1

    pub = publish_set(-1, sync_pos[0])
    A.wait_vm(max(unit_last_vm[u] for u in pub))
    A.barrier()
    PF.stamp("a0")
    for u in stage_units[8]: free.append(unit_slot[u])
    A.salu(f"s_cmp_lt_u32 s{sW}, 4")
    A.salu(f"s_cbranch_scc1 K1_QGOT")
    if staged:
        A.salu(f"s_cmp_lt_u32 s{sW}, 6")
        A.salu(f"s_cbranch_scc1 K1_NODUMP")
        while staged:
            u, r_ = staged.pop(0)
            dump_unit(u, r_)
        A.label("K1_NODUMP")
    refill_att()
    A.salu(f"s_bfe_u32 s3, s{sW}, 0x10001")
    A.salu(f"s_cmp_eq_u32 s3, 0")
    A.salu(f"s_cselect_b32 s3, {xch[0]}, {xch[1]}")
    A.salu(f"s_lshl_b32 s3, s3, 14")
    A.salu(f"s_and_b32 s{sT}, s{sW}, 1")
    A.salu(f"s_lshl_b32 s{sT}, s{sT}, 13")
    A.salu(f"s_add_u32 s3, s3, s{sT}")
    V(f"v_lshlrev_b32 v{T6}, 4, v{L}", w={T6}, r={L})
    V(f"v_add_u32 v{T6}, s3, v{T6}", w={T6}, r={T6})
    for q in range(8):
        A.ds_read_b128(QB + 4 * q, T6, q * 1024)
    A.wait_ds_all()
    A.label("K1_QGOT")
    A.salu("s_nop 1")
    for it in paddr(("qk", 0)) + paddr(("qk", 1)): it()

    TT = [T0, T1, T2, T3]
    def max_items(regs, first, final):
        it = []
        r = list(regs)
        if first:
            a = r[:3]; b = r[3:6]; r = r[6:]
            it.append(lambda a=a: V(f"v_max3_f32 v{MX}, v{a[0]}, v{a[1]}, v{a[2]}", w={MX}, r=set(a)))
            it.append(lambda b=b: V(f"v_max3_f32 v{MX2}, v{b[0]}, v{b[1]}, v{b[2]}", w={MX2}, r=set(b)))
        k = 0
        while r:
            a = r[:2]; r = r[2:]
            d = MX if k % 2 == 0 else MX2
            it.append(lambda a=a, d=d: V(f"v_max3_f32 v{d}, v{d}, v{a[0]}, v{a[1]}", w={d}, r={d} | set(a)))
            k += 1
        if final:
            it.append(lambda: V(f"v_max_f32 v{MX}, v{MX}, v{MX2}", w={MX}, r={MX, MX2}))
            it.append(lambda: V(f"v_mov_b32 v{MX2}, v{MX}", w={MX2}, r={MX}))
            it.append(lambda: V(f"v_permlane32_swap_b32 v{MX}, v{MX2}", w={MX, MX2}, r={MX, MX2}, kind="perm"))
            it.append(lambda: V(f"v_max_f32 v{MX}, v{MX}, v{MX2}", w={MX}, r={MX, MX2}))
        return it
    def sm_items(h, lo, hi, sub):
        it = []
        sb, pb = SB(h), PB(h)
        if sub:
            it.append(lambda: V(f"v_sub_f32 v{sb+lo}, v{sb+lo}, v{MX}", w={sb + lo}, r={sb + lo, MX}))
        for e in range(lo, hi + 2):
            if sub and e + 1 < hi:
                it.append(lambda e=e: V(f"v_sub_f32 v{sb+e+1}, v{sb+e+1}, v{MX}", w={sb + e + 1}, r={sb + e + 1, MX}))
            if e < hi:
                it.append(lambda e=e: V(f"v_exp_f32 v{TT[e%4]}, v{sb+e}", w={TT[e % 4]}, r={sb + e}, kind="trans"))
            if lo <= e - 1 < hi:
                p = e - 1; acc = SUMA if p % 2 == 0 else SUMB
                if p < 2:
                    it.append(lambda p=p, acc=acc: V(f"v_mov_b32 v{acc}, v{TT[p%4]}", w={acc}, r={TT[p % 4]}))
                else:
                    it.append(lambda p=p, acc=acc: V(f"v_add_f32 v{acc}, v{acc}, v{TT[p%4]}", w={acc}, r={acc, TT[p % 4]}))
            if e - 2 >= lo and (e - 2) % 2 == 0 and e - 1 < hi:
                p = e - 2
                it.append(lambda p=p: V(f"v_cvt_pk_bf16_f32 v{pb+p//2}, v{TT[p%4]}, v{TT[(p+1)%4]}", w={pb + p // 2}, r={TT[p % 4], TT[(p + 1) % 4]}))
        return it
    def negm_items():
        return [lambda i=i: V(f"v_sub_f32 v{NEGM+i}, 0, v{MX}", w={NEGM + i}, r={MX}) for i in range(16)]
    def check(h):
        V(f"v_add_f32 v{SUMA}, v{SUMA}, v{SUMB}", w={SUMA}, r={SUMA, SUMB})
        if h > 0:
            V(f"v_cmp_nge_f32 vcc, s{sTHR}, v{SUMA}", r={SUMA}, sw={"vcc"})
            A.salu("s_nop 1")
            A.salu(f"s_cbranch_vccnz K1_SLOW{h}")
            A.label(f"K1_BACK{h}")
        V(f"v_add_f32 v{LSUM}, v{LSUM}, v{SUMA}", w={LSUM}, r={LSUM, SUMA})

    def side_for(ph):
        kind, h = ph
        if ph == ("qk", 0):
            return [], []
        if kind == "qk":
            hh = h - 1
            if hh == 0:
                main = max_items([SB(0) + i for i in range(32)], True, True) + sm_items(0, 0, 32, True)
            else:
                main = sm_items(hh, 16, 32, hh == 1)
            return main, paddr(("pv", hh))
        if h == 7: return [], []
        if h == 6:
            return sm_items(7, 0, 32, False), paddr(("pv", 7)) + (K2.addr_items() if OPT["fuse"] and OPT["fuse"] != 6 else [])
        main = sm_items(h + 1, 0, 16, h == 0)
        if h == 0: main = negm_items() + main
        return main, paddr(("qk", h + 2))

    rid = {}
    def issue_read(n):
        ph, i = mf[n]
        st = pset[ph]; fr = FR + 4 * (n % 4)
        if ph[0] == "qk":
            rid[n] = A.ds_read_b128(fr, st[i % 8], (i // 8) * 8192)
        else:
            g, t = i // 4, i % 4
            A.ds_read_tr(fr, st[2 * t], g * 4096)
            rid[n] = A.ds_read_tr(fr + 2, st[2 * t + 1], g * 4096 + 2048)
    for n in range(4): issue_read(n)
    gap = 0
    for n, (ph, i) in enumerate(mf):
        kind, h = ph
        if i == 0:
            main, adr = side_for(ph)
            plan = [[] for _ in range(16)]
            for k, it in enumerate(adr): plan[k * 12 // max(len(adr), 1)].append(it)
            s0 = 1 if ph == ("qk", 1) else 0
            for k, it in enumerate(main): plan[s0 + k * (16 - s0) // len(main)].append(it)
        A.wait_ds(rid[n])
        fr = FR + 4 * (n % 4)
        if kind == "qk":
            kt, ks = i // 8, i % 8
            c = None
            if ks == 0: c = "zero" if h <= 1 else NEGM
            A.mfma(SB(h) + 16 * kt, fr, QB + 4 * ks, c)
        else:
            g, t = i // 4, i % 4
            A.mfma(O + 16 * t, fr, PB(h) + 4 * g, "zero" if (h == 0 and g == 0) else None)
        if n in sync_pos:
            k = sync_pos.index(n)
            pub = publish_set(n, sync_pos[k + 1] if k + 1 < len(sync_pos) else 10**9)
            while dmaq: dmaq.pop(0)()
            A.wait_ds_all()
            A.wait_vm(max(unit_last_vm[u] for u in pub))
            A.barrier()
            PF.stamp(f"x{h}")
            if k == 0: free.extend(xch)
            for u, lr in last_read.items():
                if lr < n and u not in freed:
                    freed.add(u); free.append(unit_slot[u])
            refill_att()
            if OPT["fuse"] == 6:
                if h == 1: K2.loads()
                if h == 2: K2.scalars()
                if h == 3: K2.addr6()
                if h >= OPT["wo0"]:
                    assert nkv[0] == 16
                    while free and len(K2.slots6) < 8:
                        j = len(K2.slots6); K2.slots6.append(free.pop(0))
                        if h < 6 or OPT["wo6"]:
                            dmaq.extend([lambda j=j, q=q: K2.wo_piece(j >> 1, (j & 1) * 2 + q) for q in range(2)])
                            K2.done6 = j + 1
            elif OPT["fuse"]:
                if h == 4: K2.loads()
                if h == 5: K2.scalars()
                if h == 6:
                    assert len(free) >= 8, free
                    its = K2.wo_items(free[:8])
                    K2.mslot = free[8]
                    if OPT["fuse"] < 3: dmaq.extend(its)
            if OPT["wopf"] and h == OPT["wopf"] - 1:
                A.salu("s_load_dwordx2 s[60:61], s[0:1], 32")
                A.salu("s_load_dwordx2 s[62:63], s[0:1], 72")
                if OPT["xm"]:
                    A.salu(f"s_lshr_b32 s3, s2, 3")
                    A.salu(f"s_lshl_b32 s3, s3, 3")
                    A.salu(f"s_add_u32 s3, s3, s{sW}")
                    A.salu(f"s_mul_i32 s3, s3, {16*1152}")
                    A.salu(f"s_and_b32 s{sT}, s2, 1")
                    A.salu(f"s_lshl_b32 s{sT}, s{sT}, 9")
                    A.salu(f"s_add_u32 s3, s3, s{sT}")
                    V(f"v_mbcnt_lo_u32_b32 v{T6}, -1, 0", w={T6})
                    V(f"v_mbcnt_hi_u32_b32 v{T6}, -1, v{T6}", w={T6}, r={T6})
                    V(f"v_lshrrev_b32 v{T7}, 2, v{T6}", w={T7}, r={T6})
                    V(f"v_mul_u32_u24 v{T7}, 1152, v{T7}", w={T7}, r={T7})
                    V(f"v_and_b32 v{T6}, 3, v{T6}", w={T6}, r={T6})
                    V(f"v_lshl_add_u32 v{T6}, v{T6}, 7, v{T7}", w={T6}, r={T6, T7})
                else:
                    if OPT["wox"]:
                        A.salu(f"s_lshr_b32 s3, s2, 5")
                        A.salu(f"s_lshl_b32 s3, s3, 4")
                        A.salu(f"s_bfe_u32 s{sT}, s2, 0x20003")
                        A.salu(f"s_add_u32 s3, s3, s{sT}")
                    else:
                        A.salu(f"s_lshl_b32 s3, s{sB}, 4")
                        A.salu(f"s_add_u32 s3, s3, s{sKVH}")
                    A.salu(f"s_mul_i32 s3, s3, 288")
                    A.salu(f"s_lshl_b32 s{sT}, s{sW}, 6")
                    A.salu(f"s_min_u32 s{sT}, s{sT}, 224")
                    A.salu(f"s_add_u32 s3, s3, s{sT}")
                    A.salu(f"s_lshl_b32 s3, s3, 7")
                    V(f"v_mbcnt_lo_u32_b32 v{T7}, -1, 0", w={T7})
                    V(f"v_mbcnt_hi_u32_b32 v{T7}, -1, v{T7}", w={T7}, r={T7})
                    V(f"v_lshlrev_b32 v{T7}, 7, v{T7}", w={T7}, r={T7})
                A.salu("s_waitcnt lgkmcnt(0)")
                A.salu(f"s_cmp_eq_u32 s{sBLK}, 0")
                A.salu("s_cselect_b32 s60, s60, s62")
                A.salu("s_cselect_b32 s61, s61, s63")
                A.salu("s_and_b32 s61, s61, 0xffff")
                A.salu(f"s_mov_b32 s62, {4096*576*2}")
                A.salu("s_mov_b32 s63, 0x00020000")
                if OPT["xm"]:
                    A.salu("s_mov_b32 exec_lo, 0x88888888")
                    A.salu("s_mov_b32 exec_hi, 0x88888888")
                    A.vmem(f"buffer_load_dword v{T7}, v{T6}, s[60:63], s3 offen offset:128", w={T7}, r={T6})
                    A.salu("s_mov_b64 exec, -1")
                TA_ = T6 if OPT["xm"] else T7
                A.vmem(f"buffer_load_dword v{T7}, v{TA_}, s[60:63], s3 offen", w={T7}, r={TA_})
        if n + 4 < len(mf): issue_read(n + 4)
        for it in plan[i]: it()
        gap += 1
        if dmaq and gap >= OPT["dmagap"]:
            dmaq.pop(0)(); gap = 0
        if i == 15:
            if kind == "qk" and h >= 1: check(h - 1)
            if ph == ("pv", 6): check(7)
    assert not dmaq
    PF.stamp("pv7")
    V(f"v_mov_b32 v{T0}, v{LSUM}", w={T0}, r={LSUM})
    V(f"v_permlane32_swap_b32 v{T0}, v{LSUM}", w={T0, LSUM}, r={T0, LSUM}, kind="perm")
    V(f"v_add_f32 v{T0}, v{T0}, v{LSUM}", w={T0}, r={T0, LSUM})
    V(f"v_rcp_f32 v{T0}, v{T0}", w={T0}, r={T0}, kind="trans")
    A.salu(f"s_cmp_eq_u32 s{sRT}, 3")
    A.salu("s_cbranch_scc0 K1_NOMASK")
    A.salu("s_mov_b32 exec_lo, 0xffff")
    A.salu("s_mov_b32 exec_hi, 0xffff")
    A.label("K1_NOMASK")
    for f in range(8):
        b0 = O + 8 * f
        for i in range(8):
            V(f"v_mul_f32 v{b0+i}, v{T0}, v{b0+i}", w={b0 + i}, r={T0, b0 + i})
        d = P + 4 * f
        for q in range(4):
            V(f"v_cvt_pk_bf16_f32 v{d+q}, v{b0+2*q}, v{b0+2*q+1}", w={d + q}, r={b0 + 2 * q, b0 + 2 * q + 1})
        A.vmem(f"buffer_store_dwordx4 {vname(d,4)}, v{OST}, s[{SO}:{SO+3}], s{sOB} offen offset:{f*512}{' sc1' if OPT['fuse'] else ' nt' if OPT['ntst'] else ''}", r=vr(d, 4) | {OST}, storedata=vr(d, 4))
    if OPT["fuse"]:
        K2.body(PF, sBLK, sB, sKVH)
    PF.dump(24, sW, 0)
    A.label("K1_END")
    A.salu("s_endpgm")
    for h in range(1, 8):
        A.label(f"K1_SLOW{h}")
        A.flush_hazards()
        sb = SB(h)
        for it in max_items([sb + i for i in range(32)], True, True): it()
        V(f"v_max_f32 v{MX}, 0, v{MX}", w={MX}, r={MX})
        V(f"v_sub_f32 v{MX2}, 0, v{MX}", w={MX2}, r={MX})
        V(f"v_exp_f32 v{MX2}, v{MX2}", w={MX2}, r={MX2}, kind="trans")
        for i in range(64):
            V(f"v_mul_f32 v{O+i}, v{MX2}, v{O+i}", w={O + i}, r={MX2, O + i})
        V(f"v_mul_f32 v{LSUM}, v{MX2}, v{LSUM}", w={LSUM}, r={MX2, LSUM})
        for i in range(16):
            V(f"v_sub_f32 v{NEGM+i}, v{NEGM+i}, v{MX}", w={NEGM + i}, r={NEGM + i, MX})
        if h < 7:
            s2 = SB(h + 1)
            for i in range(32):
                V(f"v_sub_f32 v{s2+i}, v{s2+i}, v{MX}", w={s2 + i}, r={s2 + i, MX})
        for it in sm_items(h, 0, 32, True): it()
        V(f"v_add_f32 v{SUMA}, v{SUMA}, v{SUMB}", w={SUMA}, r={SUMA, SUMB})
        A.flush_hazards()
        A.salu(f"s_branch K1_BACK{h}")

class K2Fused:
    def __init__(self, A, sW, SO, WOFF):
        self.A = A; self.sW = sW; self.SO = SO; self.WOFF = WOFF
        self.SWO, self.SOUT, self.SDBG = 28, 32, 20
        self.sBLK, self.sTT, self.sMT, self.sNT = 16, 17, 18, 19
        self.sWL, self.sWB, self.sO0, self.sO1, self.sT = 49, 50, 8, 9, 52
        self.sP0, self.sP1 = 10, 11
        self.last_vm = {}
    def loads(self):
        A = self.A
        A.salu("s_load_dwordx2 s[8:9], s[0:1], 32")
        A.salu("s_load_dwordx2 s[10:11], s[0:1], 72")
        A.salu("s_load_dwordx2 s[12:13], s[0:1], 80")
        A.salu("s_load_dwordx2 s[14:15], s[0:1], 88")
    def scalars(self):
        A = self.A; sW = self.sW
        sBLK, sTT, sMT, sNT = self.sBLK, self.sTT, self.sMT, self.sNT
        A.salu("s_waitcnt lgkmcnt(0)")
        if OPT["xm"]:
            A.salu("s_bitcmp1_b32 s2, 2")
            A.salu(f"s_cselect_b32 s{sBLK}, 1, 0")
            A.salu("s_cselect_b32 s8, s10, s8")
            A.salu("s_cselect_b32 s9, s11, s9")
            srd(A, self.SWO, 8, 4096 * 576 * 2)
            srd(A, self.SOUT, 12, 896 * 1152 * 2)
            srd(A, self.SDBG, 14, 256)
            A.salu("s_lshr_b32 s3, s2, 3")
            A.salu("s_and_b32 s12, s2, 1")
            A.salu(f"s_lshr_b32 s{sMT}, s3, 2")
            A.salu(f"s_and_b32 s{sNT}, s3, 3")
            A.salu("s_mul_i32 s13, s12, 5")
            A.salu(f"s_add_u32 s{sNT}, s{sNT}, s13")
            A.salu("s_lshl_b32 s13, s12, 2")
            A.salu("s_add_u32 s13, s13, s3")
            A.salu("s_sub_u32 s13, s13, 28")
            A.salu("s_cmp_ge_u32 s3, 28")
            A.salu(f"s_cselect_b32 s{sMT}, s13, s{sMT}")
            A.salu(f"s_cselect_b32 s{sNT}, 4, s{sNT}")
            A.salu(f"s_cmp_eq_u32 s{sMT}, 7")
            A.salu(f"s_cselect_b32 s{sTT}, 255, 0")
            A.salu(f"s_min_u32 s{sMT}, s{sMT}, 6")
            A.salu("s_bfe_u32 s13, s2, 0x10001")
            A.salu("s_mul_i32 s13, s13, 7")
            A.salu(f"s_add_u32 s{sMT}, s{sMT}, s13")
        else:
            A.salu("s_and_b32 s3, s2, 7")
            A.salu("s_lshl_b32 s3, s3, 5")
            A.salu(f"s_lshr_b32 s{sTT}, s2, 3")
            A.salu(f"s_add_u32 s{sTT}, s3, s{sTT}")
            A.salu(f"s_min_u32 s3, s{sTT}, 251")
            A.salu("s_cmp_ge_u32 s3, 126")
            A.salu(f"s_cselect_b32 s{sBLK}, 1, 0")
            A.salu("s_cselect_b32 s8, s10, s8")
            A.salu("s_cselect_b32 s9, s11, s9")
            srd(A, self.SWO, 8, 4096 * 576 * 2)
            srd(A, self.SOUT, 12, 896 * 1152 * 2)
            srd(A, self.SDBG, 14, 256)
            A.salu(f"s_mul_i32 s12, s{sBLK}, 126")
            A.salu("s_sub_u32 s3, s3, s12")
            A.salu("s_mul_i32 s12, s3, 57")
            A.salu(f"s_lshr_b32 s{sMT}, s12, 9")
            A.salu(f"s_mul_i32 s12, s{sMT}, 9")
            A.salu(f"s_sub_u32 s{sNT}, s3, s12")
        A.salu(f"s_mul_i32 s{self.sWB}, s{sW}, {(32 if OPT['fuse'] == 5 else 512)*1152}")
        A.salu(f"s_lshl_b32 s12, s{sNT}, 7")
        A.salu(f"s_add_u32 s{self.sWB}, s{self.sWB}, s12")
        A.salu(f"s_mul_i32 s{self.sO0}, s{sBLK}, {O_BLK}")
        A.salu(f"s_lshl_b32 s12, s{sMT}, 19")
        A.salu(f"s_add_u32 s{self.sO0}, s{self.sO0}, s12")
        A.salu(f"s_lshl_b32 s12, s{sW}, {10 if OPT['fuse'] == 5 else 14}")
        A.salu(f"s_add_u32 s{self.sO0}, s{self.sO0}, s12")
        A.salu(f"s_add_u32 s{self.sO1}, s{self.sO0}, {2*131072}")
        if OPT["ntf"]:
            A.salu(f"s_lshl_b32 s12, s{sBLK}, 6")
            if not OPT["dc"]: A.salu("s_add_u32 s12, s12, 128")
        else:
            A.salu(f"s_lshl_b32 s12, s{sBLK}, 7")
            A.salu(f"s_lshr_b32 s13, s{sW}, 1")
            A.salu("s_lshl_b32 s13, s13, 2")
            A.salu("s_add_u32 s12, s12, s13")
        sh = 2 if OPT["ntf"] else 4
        A.salu(f"s_mul_i32 s13, s{sMT}, 148")
        A.salu(f"s_lshr_b32 s{self.sP0}, s13, 8")
        A.salu(f"s_lshl_b32 s{self.sP0}, s{self.sP0}, {sh}")
        A.salu(f"s_add_u32 s{self.sP0}, s{self.sP0}, s12")
        A.salu("s_add_u32 s13, s13, 111")
        A.salu(f"s_lshr_b32 s{self.sP1}, s13, 8")
        A.salu(f"s_lshl_b32 s{self.sP1}, s{self.sP1}, {sh}")
        A.salu(f"s_add_u32 s{self.sP1}, s{self.sP1}, s12")
    def addr_items(self):
        V = self.A.valu; W = self.WOFF
        L, T1, T2, T4 = W + 4, W + 5, W + 6, W + 7
        return [
            lambda: V(f"v_mbcnt_lo_u32_b32 v{L}, -1, 0", w={L}),
            lambda: V(f"v_mbcnt_hi_u32_b32 v{L}, -1, v{L}", w={L}, r={L}),
            lambda: V(f"v_lshrrev_b32 v{T1}, 3, v{L}", w={T1}, r={L}),
            lambda: V(f"v_mul_u32_u24 v{T1}, 1152, v{T1}", w={T1}, r={T1}),
            lambda: V(f"v_bfe_u32 v{T2}, v{L}, 4, 1", w={T2}, r={L}),
            lambda: V(f"v_lshlrev_b32 v{T2}, 2, v{T2}", w={T2}, r={T2}),
            lambda: V(f"v_and_b32 v{T4}, 7, v{L}", w={T4}, r={L}),
            lambda: V(f"v_xor_b32 v{T4}, v{T4}, v{T2}", w={T4}, r={T4, T2}),
            lambda: V(f"v_lshl_add_u32 v{W}, v{T4}, 4, v{T1}", w={W}, r={T4, T1}),
        ] + [lambda i=i: V(f"v_add_u32 v{W+i}, {9216*i}, v{W}", w={W + i}, r={W}) for i in range(1, 4)]
    def addr6(self):
        V = self.A.valu
        W, L, T1 = 6, 13, 12
        V(f"v_mbcnt_lo_u32_b32 v{L}, -1, 0", w={L})
        V(f"v_mbcnt_hi_u32_b32 v{L}, -1, v{L}", w={L}, r={L})
        V(f"v_lshrrev_b32 v{T1}, 3, v{L}", w={T1}, r={L})
        V(f"v_mul_u32_u24 v{T1}, 1152, v{T1}", w={T1}, r={T1})
        V(f"v_and_b32 v{W}, 7, v{L}", w={W}, r={L})
        V(f"v_bfe_u32 v{L}, v{L}, 4, 1", w={L}, r={L})
        V(f"v_lshlrev_b32 v{L}, 2, v{L}", w={L}, r={L})
        V(f"v_xor_b32 v{W}, v{W}, v{L}", w={W}, r={W, L})
        V(f"v_lshl_add_u32 v{W}, v{W}, 4, v{T1}", w={W}, r={W, T1})
        self.A.salu(f"s_lshl_b32 s{self.sWL}, s{self.sW}, 11")
        self.slots6 = []
    def wo_piece(self, u, i):
        A = self.A; W = self.WOFF; S = self.SWO
        if OPT["fuse"] == 6:
            A.salu(f"s_add_u32 s{self.sT}, s{self.sWB}, {u * 32 * 1152 + i * 9216}")
            A.salu(f"s_add_u32 m0, s{self.sWL}, {self.slots6[2 * (u % OPT['ring']) + (i >> 1)] * SLOT + (i & 1) * 1024}", m0w=True)
            return A.vmem(f"buffer_load_dwordx4 v6, s[{S}:{S+3}], s{self.sT} offen{' nt' if OPT['ntwo'] else ''} lds", kind="dma", r={6}, m0r=True)
        A.salu(f"s_add_u32 s{self.sT}, s{self.sWB}, {u * 32 * 1152}")
        A.salu(f"s_add_u32 m0, s{self.sWL}, {(u % 4) * 4096 + i * 1024}", m0w=True)
        A.vmem(f"buffer_load_dwordx4 v{W+i}, s[{S}:{S+3}], s{self.sT} offen{' nt' if OPT['ntwo'] else ''} lds", kind="dma", r={W + i}, m0r=True)
    def wo_items(self, slots):
        A = self.A
        tab = sum(s << (4 * w) for w, s in enumerate(slots))
        A.salu(f"s_lshl_b32 s3, s{self.sW}, 2")
        A.salu(f"s_lshr_b32 s3, {tab:#x}, s3")
        A.salu("s_and_b32 s3, s3, 15")
        A.salu(f"s_lshl_b32 s{self.sWL}, s3, 14")
        return [lambda u=u, i=i: self.wo_piece(u, i) for u in range(4) for i in range(4)]
    def dyn(self, PF, L, OOFF, BA, AF, OF, ACC):
        A = self.A; V = A.valu; sW = self.sW; SO = self.SO; SDBG = self.SDBG; W = self.WOFF; S = self.SWO
        T1, T2, T3, T4 = 1, 2, 3, 4
        PD = 8
        vPA, vMA, vT, vM = W + 4, W + 5, W + 6, W + 7
        sPM, sCNT, sDONE, sJ, sA, sB_ = 60, 62, 63, 12, 13, 14
        V(f"v_mov_b32 v{vPA}, s{self.sP1}", w={vPA})
        V(f"v_mov_b32 v{T4}, s{self.sP0}", w={T4})
        V(f"v_cmp_gt_u32 vcc, 16, v{L}", r={L}, sw={"vcc"})
        V(f"v_cndmask_b32 v{vPA}, v{vPA}, v{T4}, vcc", w={vPA}, r={vPA, T4}, sr={"vcc"})
        V(f"v_and_b32 v{T4}, 15, v{L}", w={T4}, r={L})
        V(f"v_add_u32 v{vPA}, v{T4}, v{vPA}", w={vPA}, r={vPA, T4})
        V(f"v_mov_b32 v{vMA}, {self.mslot * SLOT}", w={vMA})
        V(f"v_mov_b32 v{vT}, 0", w={vT})
        A.ds(f"ds_write_b32 v{vMA}, v{vT}", r={vMA, vT})
        A.salu(f"s_cmp_eq_u32 s{sW}, 0")
        A.salu(f"s_cselect_b32 s{sPM}, -1, 0")
        A.salu(f"s_mov_b32 s{sPM+1}, 0")
        A.salu(f"s_mov_b32 s{sCNT}, 0x40000")
        A.salu(f"s_mov_b32 s{sDONE}, 0")
        A.salu(f"s_mov_b32 s15, 0")
        A.waitcnt(vm=0, lgkm=0); A.vm_done = A.nvm; A.ds_done = A.nds
        PF.stamp("st")
        A.barrier()
        A.salu("s_cbranch_scc0 K1_NOFLAG")
        A.salu("s_mov_b64 exec, 1")
        A.salu(f"buffer_atomic_add v{T2}, v{T1}, s[{SDBG}:{SDBG+3}], 0 offen sc1")
        A.salu("s_mov_b64 exec, -1")
        A.label("K1_NOFLAG")
        A.salu(f"s_cmp_ge_u32 s{self.sTT}, 252")
        A.salu("s_cbranch_scc1 K1_END")
        def poll(r, counted=True):
            A.salu(f"s_mov_b64 exec, s[{sPM}:{sPM+1}]")
            txt = f"buffer_load_ubyte v{PD+r}, v{vPA}, s[{SDBG}:{SDBG+3}], 0 offen sc1"
            if counted: A.vmem(txt, w={PD + r}, r={vPA})
            else: A.salu(txt)
            A.salu("s_mov_b64 exec, -1")
        def consume(r):
            A.salu(f"s_mov_b64 exec, s[{sPM}:{sPM+1}]")
            V(f"v_cmp_ne_u32 vcc, 0, v{PD+r}", r={PD + r}, sw={"vcc"})
            A.salu("s_nop 1")
            A.salu(f"s_lshr_b32 s{sA}, vcc_lo, 16")
            A.salu(f"s_and_b32 s{sA}, s{sA}, vcc_lo")
            A.salu(f"s_or_b32 s15, s15, s{sA}")
            V(f"v_mov_b32 v{vT}, s15", w={vT})
            A.ds(f"ds_write_b32 v{vMA}, v{vT}", r={vMA, vT})
            A.salu("s_mov_b64 exec, -1")
        def pick(k):
            A.label(f"K1_PK{k}")
            A.ds(f"ds_read_b32 v{vM}, v{vMA}", w={vM}, r={vMA})
            A.waitcnt(lgkm=0); A.ds_done = A.nds
            A._emit(I(f"v_readfirstlane_b32 s{sA}, v{vM}", "rdlane", r={vM}, sw={sA}))
            A.salu(f"s_andn2_b32 s{sA}, s{sA}, s{sDONE}", sr={sA})
            A.salu(f"s_cbranch_scc1 K1_PG{k}")
            poll(k % 4, False)
            A.salu("s_waitcnt vmcnt(0)")
            consume(k % 4)
            A.salu(f"s_sleep {OPT['slp']}")
            A.salu(f"s_sub_u32 s{sCNT}, s{sCNT}, 1")
            A.salu(f"s_cmp_lg_u32 s{sCNT}, 0")
            A.salu(f"s_cbranch_scc1 K1_PK{k}")
            A.salu(f"s_mov_b32 s{sCNT}, 1")
            A.salu(f"s_andn2_b32 s{sA}, 0xffff, s{sDONE}")
            A.label(f"K1_PG{k}")
            A.salu(f"s_ff1_i32_b32 s{sJ}, s{sA}")
            A.salu(f"s_bitset1_b32 s{sDONE}, s{sJ}")
        NU = 16; DEPTH = 4
        last_vm = {}
        def issue(u):
            slot = u % DEPTH
            pick(u)
            if self.first: PF.stamp("go"); self.first = False
            if 4 <= u: poll(u % 4)
            A.salu(f"s_mul_i32 s{sA}, s{sJ}, {256*1152}")
            A.salu(f"s_add_u32 s{sA}, s{sA}, s{self.sWB}")
            for i in range(4):
                A.salu(f"s_add_u32 m0, s{self.sWL}, {slot * 4096 + i * 1024}", m0w=True)
                A.vmem(f"buffer_load_dwordx4 v{W+i}, s[{S}:{S+3}], s{sA} offen{' nt' if OPT['ntwo'] else ''} lds", kind="dma", r={W + i}, m0r=True)
            A.salu(f"s_lshl_b32 s{sJ}, s{sJ}, 13")
            A.salu(f"s_add_u32 s{sA}, s{sJ}, s{self.sO0}")
            A.salu(f"s_add_u32 s{sB_}, s{sJ}, s{self.sO1}")
            for ks in range(2):
                for tm in range(2):
                    d = OF + slot * 16 + (ks * 2 + tm) * 4
                    k = A.vmem(f"buffer_load_dwordx4 {vname(d,4)}, v{OOFF}, s[{SO}:{SO+3}], s{sA if tm == 0 else sB_} offen offset:{ks*512} sc1", w=vr(d, 4), r={OOFF})
            last_vm[u] = k
        def dsreads(u):
            slot = u % DEPTH
            ab = AF + (u % 2) * 16
            for ks in range(2):
                for tn in range(2):
                    for j in range(2):
                        k = A.ds_read_tr(ab + (ks * 2 + tn) * 4 + 2 * j, BA + tn, slot * 4096 + (16 * ks + 8 * j) * 128)
            return k
        self.first = True
        for u in range(DEPTH): issue(u)
        A.wait_vm(last_vm[0])
        pend = dsreads(0)
        for u in range(NU):
            A.wait_ds(pend)
            if u + 1 < NU:
                A.wait_vm(last_vm[u + 1])
                if u + 1 >= 4 and u + DEPTH < NU: consume((u + 1) % 4)
                pend = dsreads(u + 1)
            ab = AF + (u % 2) * 16
            ob = OF + (u % DEPTH) * 16
            for ks in range(2):
                for tn in range(2):
                    for tm in range(2):
                        c = "zero" if (u == 0 and ks == 0) else None
                        A.mfma(ACC + (tn * 2 + tm) * 16, ab + (ks * 2 + tn) * 4, ob + (ks * 2 + tm) * 4, c)
            if u + DEPTH < NU: issue(u + DEPTH)
            if u in (0, 7, 15): PF.stamp(f"u{u}")
    def body(self, PF, sBLK1, sB1, sKVH1):
        A = self.A; V = A.valu; sW = self.sW; SO = self.SO
        T0, T1, T2, T3, T4, T5, T6, T7 = 0, 1, 2, 3, 4, 5, 9, 8
        WOFF = self.WOFF; OOFF = 12; BA = 13; RED = 15; AF = 16; OF = 96; ACC = 160
        sBLK, sMT, sNT = self.sBLK, self.sMT, self.sNT
        SOUT, SDBG = self.SOUT, self.SDBG
        sWL, sO0, sO1, sT = self.sWL, self.sO0, self.sO1, self.sT
        L = T0
        A.salu("s_mov_b64 exec, -1")
        V(f"v_mbcnt_lo_u32_b32 v{L}, -1, 0", w={L})
        V(f"v_mbcnt_hi_u32_b32 v{L}, -1, v{L}", w={L}, r={L})
        V(f"v_bfe_u32 v{T2}, v{L}, 4, 1", w={T2}, r={L})
        V(f"v_lshrrev_b32 v{T1}, 5, v{L}", w={T1}, r={L})
        V(f"v_bfe_u32 v{T3}, v{L}, 2, 2", w={T3}, r={L})
        V(f"v_and_b32 v{T4}, 3, v{L}", w={T4}, r={L})
        V(f"v_lshlrev_b32 v{T6}, 17, v{T2}", w={T6}, r={T2})
        V(f"v_lshl_add_u32 v{T6}, v{T1}, 8, v{T6}", w={T6}, r={T1, T6})
        V(f"v_and_b32 v{T7}, 15, v{L}", w={T7}, r={L})
        V(f"v_lshl_add_u32 v{OOFF}, v{T7}, 4, v{T6}", w={OOFF}, r={T7, T6})
        V(f"v_lshl_add_u32 v{T6}, v{T1}, 2, v{T3}", w={T6}, r={T1, T3})
        V(f"v_lshlrev_b32 v{T6}, 7, v{T6}", w={T6}, r={T6})
        V(f"v_lshrrev_b32 v{T7}, 1, v{T4}", w={T7}, r={T4})
        V(f"v_lshl_add_u32 v{T7}, v{T2}, 1, v{T7}", w={T7}, r={T2, T7})
        V(f"v_lshrrev_b32 v{T5}, 1, v{T3}", w={T5}, r={T3})
        V(f"v_lshlrev_b32 v{T5}, 2, v{T5}", w={T5}, r={T5})
        V(f"v_xor_b32 v{T7}, v{T7}, v{T5}", w={T7}, r={T7, T5})
        V(f"v_lshl_add_u32 v{T6}, v{T7}, 4, v{T6}", w={T6}, r={T7, T6})
        V(f"v_and_b32 v{T7}, 1, v{T4}", w={T7}, r={T4})
        V(f"v_lshl_add_u32 v{T6}, v{T7}, 3, v{T6}", w={T6}, r={T7, T6})
        V(f"v_add_u32 v{BA}, s{sWL}, v{T6}", w={BA}, r={T6})
        V(f"v_xor_b32 v{BA+1}, 64, v{BA}", w={BA + 1}, r={BA})
        XB = 6 if OPT["xb"] else 64
        def xb_addr():
            for q in range(1, 3):
                for tn in range(2):
                    V(f"v_add_u32 v{XB+2*q+tn}, {q*65536}, v{BA+tn}", w={XB + 2 * q + tn}, r={BA + tn})
        if OPT["fuse"] == 6 and not OPT["xb"]: xb_addr()
        V(f"v_lshlrev_b32 v{RED}, 4, v{L}", w={RED}, r={L})
        if OPT["ntf"]:
            A.salu(f"s_lshl_b32 s12, s{sBLK1}, 6")
            A.salu(f"s_lshl_b32 s13, s{sB1}, 2")
            A.salu("s_add_u32 s12, s12, s13")
            A.salu("s_mov_b32 s13, 1")
        else:
            A.salu(f"s_lshl_b32 s12, s{sBLK1}, 7")
            A.salu(f"s_lshl_b32 s13, s{sB1}, 4")
            A.salu("s_add_u32 s12, s12, s13")
            A.salu(f"s_and_b32 s13, s{sKVH1}, 12")
            A.salu("s_add_u32 s12, s12, s13")
            A.salu(f"s_and_b32 s13, s{sKVH1}, 3")
            A.salu("s_lshl_b32 s13, s13, 3")
            A.salu("s_lshl_b32 s13, 1, s13")
        V(f"v_mov_b32 v{T1}, s12", w={T1})
        V(f"v_mov_b32 v{T2}, s13", w={T2})
        if OPT["ntf"]:
            V(f"v_mov_b32 v{T3}, s{self.sP1}", w={T3})
            V(f"v_writelane_b32 v{T3}, s{self.sP0}, 0", w={T3}, r={T3})
            V(f"v_mov_b32 v{T5}, 1", w={T5})
            A.salu(f"s_mov_b32 s14, {16 if OPT['dc'] else 1}")
        elif OPT["fuse"] == 5:
            self.dyn(PF, L, OOFF, BA, AF, OF, ACC)
        elif OPT["fuse"] == 1:
            V(f"v_mov_b32 v{T3}, s{self.sP1}", w={T3})
            V(f"v_writelane_b32 v{T3}, s{self.sP0}, 0", w={T3}, r={T3})
            A.salu(f"s_and_b32 s14, s{sW}, 1")
            A.salu("s_lshl_b32 s14, s14, 4")
            A.salu("s_lshl_b32 s14, 0x101, s14")
        else:
            V(f"v_mov_b32 v{T3}, s{self.sP1}", w={T3})
            V(f"v_mov_b32 v{T4}, s{self.sP0}", w={T4})
            V(f"v_cmp_gt_u32 vcc, 4, v{L}", r={L}, sw={"vcc"})
            V(f"v_cndmask_b32 v{T3}, v{T3}, v{T4}, vcc", w={T3}, r={T3, T4}, sr={"vcc"})
            V(f"v_and_b32 v{T4}, 3, v{L}", w={T4}, r={L})
            V(f"v_lshl_add_u32 v{T3}, v{T4}, 2, v{T3}", w={T3}, r={T3, T4})
            A.salu("s_mov_b32 s14, 0x01010101")
        if OPT["fuse"] != 5:
            PRE = [224, 240, 48, 72][:OPT["pre"]]
            if OPT["pr2"]: PRE = [AF, AF + 16, 224, 240, 48, 72][:OPT["pr2"]]
            if OPT["pr2"] and OPT["xb"]:
                PRE = ([OF + 32, OF + 48][2 - OPT["pro"]:] + [AF, AF + 16, 224, 240, 48, 64, 80])[:OPT["pr2"]]
            if OPT["od"]:
                assert OPT["pr2"] == 6 and not (OPT["es"] or OPT["pro"])
                PRE = [224, 240, 48, 64 if OPT["xb"] else 72, AF, AF + 16]
            if OPT["es"]: PRE = [AF + 16, 48, 72, AF, 224, 240]
            wo_vm = {}
            def dsreads(u, ab=None):
                slot = u % OPT["ring"]
                if ab is None: ab = AF + (u % 2) * 16
                for ks in range(2):
                    for tn in range(2):
                        for j in range(2):
                            if OPT["fuse"] == 6:
                                o_ = self.slots6[2 * slot + ks] * SLOT + j * 1024
                                k = A.ds_read_tr(ab + (ks * 2 + tn) * 4 + 2 * j, (BA if o_ < 65536 else XB + 2 * (o_ >> 16)) + tn, o_ & 65535)
                            else:
                                k = A.ds_read_tr(ab + (ks * 2 + tn) * 4 + 2 * j, BA + tn, slot * 4096 + (16 * ks + 8 * j) * 128)
                return k
            A.salu("s_mov_b32 s15, 0x40000")
            if OPT["es"]:
                assert OPT["pr2"] == 6 and OPT["prg"] == 3 and OPT["ring"] == 4 and self.done6 >= 6 and not (OPT["ea"] or OPT["fb"] or OPT["xb"])
                A.wait_vm(A.nvm - 9)
                A.flush_hazards()
                for u in range(3):
                    dsreads(u, PRE[u])
                    A.wait_ds_all()
                A.salu(f"s_cmp_eq_u32 s{sW}, 0")
                A.salu("s_cbranch_scc1 K1_ES0")
                A.salu(f"s_cmp_ge_u32 s{self.sTT}, 252")
                A.salu("s_cbranch_scc1 K1_ES0")
                n0 = A.nvm
                for u in range(4, 4 + OPT["es"]):
                    for i in range(4): wo_vm[u] = self.wo_piece(u, i)
                A.waitcnt(vm=A.nvm - n0)
                A.salu("s_branch K1_ES1")
                A.label("K1_ES0")
                A.waitcnt(vm=0)
                A.label("K1_ES1")
                A.vm_done = n0
            else:
                A.waitcnt(vm=0); A.vm_done = A.nvm
            PF.stamp("st")
            A.barrier()
            A.salu(f"s_cmp_eq_u32 s{sW}, 0")
            A.salu("s_cbranch_scc0 K1_NOFLAG")
            A.salu("s_mov_b64 exec, 1")
            if OPT["dc"]:
                A.salu(f"buffer_atomic_add v{T2}, v{T1}, s[{SDBG}:{SDBG+3}], 0 offen sc1")
            elif OPT["ea"]:
                A.salu(f"buffer_atomic_add v{T2}, v{T1}, s[{SDBG}:{SDBG+3}], 0 offen sc0 sc1")
                A.salu(f"s_cmp_ge_u32 s{self.sTT}, 252")
                A.salu("s_cbranch_scc0 K1_NOFLAG")
                A.salu("s_waitcnt vmcnt(0)")
                A.salu(f"v_cmp_eq_u32 vcc, 15, v{T2}")
                A.salu("s_nop 1")
                A.salu("s_cbranch_vccz K1_NOFLAG")
                A.salu(f"buffer_store_dword v{T5}, v{T1}, s[{SDBG}:{SDBG+3}], 0 offen offset:128 sc1")
                ea_base = A.nvm
            elif OPT["ntf"]:
                A.salu(f"buffer_atomic_add v{T2}, v{T1}, s[{SDBG}:{SDBG+3}], 0 offen sc0 sc1")
                A.salu("s_waitcnt vmcnt(0)")
                A.salu(f"v_cmp_eq_u32 vcc, 15, v{T2}")
                A.salu("s_nop 1")
                A.salu("s_cbranch_vccz K1_NOFLAG")
                A.salu(f"buffer_store_dword v{T5}, v{T1}, s[{SDBG}:{SDBG+3}], 0 offen offset:128 sc1")
            elif OPT["exp"] != 1: A.salu(f"buffer_atomic_add v{T2}, v{T1}, s[{SDBG}:{SDBG+3}], 0 offen sc1")
            A.label("K1_NOFLAG")
            A.salu(f"s_cmp_ge_u32 s{self.sTT}, 252")
            A.salu("s_cbranch_scc1 K1_END")
            if OPT["exp"]:
                for _ in range(3): A.salu("s_sleep 64")
                A.salu("s_branch K1_GO")
            if OPT["fuse"] == 6:
                A.salu("s_mov_b64 exec, -1")
                if OPT["xb"]: xb_addr()
                if OPT["fb"]:
                    A.salu(f"s_cmp_eq_u32 s{sW}, 0")
                    A.salu("s_cbranch_scc0 K1_FB0")
                    A.salu("s_barrier")
                    A.label("K1_FB0")
                self.slots6 += [s_ for s_ in range(NSLOT) if s_ not in self.slots6]
                if OPT["es"]:
                    A.salu(f"s_cmp_eq_u32 s{sW}, 0")
                    A.salu("s_cbranch_scc0 K1_ES2")
                    n1 = A.nvm
                    for u in range(4, 4 + OPT["es"]):
                        for i in range(4): self.wo_piece(u, i)
                    A.nvm = n1
                    A.label("K1_ES2")
                    for u in range(4 + OPT["es"], 7):
                        for i in range(4): wo_vm[u] = self.wo_piece(u, i)
                for j in range(self.done6, 2 * OPT["ring"]):
                    for q in range(2): wo_vm[j >> 1] = self.wo_piece(j >> 1, (j & 1) * 2 + q)
                if OPT["pr2"]:
                    A.flush_hazards()
                    for u0 in range(0, len(PRE), OPT["prg"]):
                        us = range(u0, min(u0 + OPT["prg"], len(PRE)))
                        if OPT["es"] and u0 == 0: continue
                        for u in ([4, 5, 3] if OPT["es"] else us):
                            if u in wo_vm: A.wait_vm(wo_vm[u])
                            dsreads(u, PRE[u])
                            A.wait_ds_all()
                            if OPT["esr"] and u == 5:
                                for u2 in (8, 9):
                                    for i in range(4): wo_vm[u2] = self.wo_piece(u2, i)
                        if OPT["esr"]: us = [3]
                        last_round = u0 + OPT["prg"] >= len(PRE)
                        if OPT["fb"] and u0 == 0:
                            us = list(us)
                            for u in us[:OPT["fb"] - 1]:
                                for i in range(4): wo_vm[u + OPT["ring"]] = self.wo_piece(u + OPT["ring"], i)
                            us = us[OPT["fb"] - 1:]
                            A.salu(f"s_cmp_eq_u32 s{sW}, 0")
                            A.salu("s_cbranch_scc1 K1_FB1")
                            A.salu("s_barrier")
                            A.label("K1_FB1")
                        if OPT["ep"] and last_round:
                            A.salu(f"s_cmp_eq_u32 s{sW}, {OPT['pw']}")
                            A.salu("s_cbranch_scc0 K1_EP")
                            A.salu("s_mov_b64 exec, 3")
                            A.salu(f"buffer_load_dword v{T4}, v{T3}, s[{SDBG}:{SDBG+3}], 0 offen sc1")
                            A.salu("s_mov_b64 exec, -1")
                            A.label("K1_EP")
                            ep_base = A.nvm
                        for u in us:
                            if u + OPT["ring"] >= 16: continue
                            for i in range(4): wo_vm[u + OPT["ring"]] = self.wo_piece(u + OPT["ring"], i)
                        if OPT["ea"] and u0 == 0:
                            A.salu(f"s_cmp_eq_u32 s{sW}, 0")
                            A.salu("s_cbranch_scc0 K1_EA")
                            A.salu("s_mov_b64 exec, 1")
                            A.salu(f"s_waitcnt vmcnt({A.nvm - ea_base})")
                            A.salu(f"v_cmp_eq_u32 vcc, 15, v{T2}")
                            A.salu("s_nop 1")
                            A.salu("s_cbranch_vccz K1_EA")
                            A.salu(f"buffer_store_dword v{T5}, v{T1}, s[{SDBG}:{SDBG+3}], 0 offen offset:128 sc1")
                            A.label("K1_EA")
                            A.salu("s_mov_b64 exec, -1")
                if OPT["pre0"]:
                    A.flush_hazards()
                    for u in range(len(PRE)):
                        dsreads(u, PRE[u])
                        A.wait_ds_all()
                    for u in range(4, 4 + len(PRE)):
                        for i in range(4): self.wo_piece(u, i)
            if OPT["fuse"] == 1:
                A.salu("s_mov_b64 exec, 3")
            else:
                A.salu(f"s_cmp_eq_u32 s{sW}, {OPT['pw']}")
                A.salu("s_cbranch_scc0 K1_GO" if not (OPT["fuse"] == 3 or (OPT["pre"] and not OPT["pre0"])) else "s_cbranch_scc0 K1_WO")
                A.salu("s_mov_b64 exec, 3" if OPT["ntf"] else "s_mov_b64 exec, 0xff")
            if OPT["ep"]:
                A.salu(f"s_waitcnt vmcnt({A.nvm - ep_base})")
                A.salu(f"v_and_b32 v{T4}, s14, v{T4}")
                A.salu(f"v_cmp_ne_u32 vcc, s14, v{T4}")
                A.salu("s_nop 1")
                A.salu("s_cbranch_vccz K1_GO")
            A.label("K1_POLL")
            A.salu(f"buffer_load_dword v{T4}, v{T3}, s[{SDBG}:{SDBG+3}], 0 offen sc1")
            A.salu("s_waitcnt vmcnt(0)")
            A.salu(f"v_and_b32 v{T4}, s14, v{T4}")
            A.salu(f"v_cmp_ne_u32 vcc, s14, v{T4}")
            A.salu("s_nop 1")
            A.salu("s_cbranch_vccz K1_GO")
            A.salu(f"s_sleep {OPT['slp']}")
            A.salu("s_sub_u32 s15, s15, 1")
            A.salu("s_cmp_lg_u32 s15, 0")
            A.salu("s_cbranch_scc1 K1_POLL")
            A.label("K1_GO")
            A.salu("s_mov_b64 exec, -1")
            if OPT["pre"] and not OPT["pre0"]:
                A.barrier()
                A.label("K1_WO")
                A.flush_hazards()
                for u in range(len(PRE)):
                    dsreads(u, PRE[u])
                    A.wait_ds_all()
                for u in range(4, 4 + len(PRE)):
                    for i in range(4): self.wo_piece(u, i)
                A.salu(f"s_cmp_eq_u32 s{sW}, 0")
                A.salu("s_cbranch_scc1 K1_GO2")
                A.barrier()
                A.label("K1_GO2")
            elif OPT["fuse"] == 3:
                A.barrier()
                A.label("K1_WO")
                for u in range(4):
                    for i in range(4): self.wo_piece(u, i)
                A.salu(f"s_cmp_eq_u32 s{sW}, 0")
                A.salu("s_cbranch_scc1 K1_GO2")
                A.barrier()
                A.label("K1_GO2")
            elif OPT["fuse"] > 1: A.barrier()
            PF.stamp("go")
            NU = 16; DEPTH = 4
            last_vm = {}
            obuf = {}
            def issue(u, wo=True, buf=None):
                slot = u % DEPTH
                obuf[u] = OF + slot * 16 if buf is None else buf
                if wo:
                    for i in range(4): self.wo_piece(u, i)
                for ks in range(2):
                    for tm in range(2):
                        d = obuf[u] + (ks * 2 + tm) * 4
                        off = (2 * u + ks) * 512
                        sb = sO0 if tm == 0 else sO1
                        if off >= 4096:
                            A.salu(f"s_add_u32 s{sT}, s{sb}, {off & ~4095}")
                            sb = sT
                        k = A.vmem(f"buffer_load_dwordx4 {vname(d,4)}, v{OOFF}, s[{SO}:{SO+3}], s{sb} offen offset:{off & 4095} sc1", w=vr(d, 4), r={OOFF})
                last_vm[u] = k
            if OPT["sq"]:
                assert OPT["pr2"] == 6 and OPT["ring"] == 4 and not (OPT["od"] or OPT["es"] or OPT["xb"])
                RG = 4; NP = 6
                seq = {1: [0, 1, 6, 7, 8, 9, 2, 3, 10, 11, 4, 5, 12, 13, 14, 15],
                       2: [0, 1, 6, 7, 8, 9, 2, 10, 11, 3, 12, 13, 4, 5, 14, 15],
                       3: [0, 1, 6, 7, 2, 8, 9, 3, 10, 11, 4, 12, 13, 5, 14, 15]}[OPT["sq"]]
                assert sorted(seq) == list(range(16))
                fr = [OF + 16 * q for q in range(4)]
                nxt = 0
                while fr: issue(seq[nxt], False, fr.pop(0)); nxt += 1
                pend = None
                for t, u in enumerate(seq):
                    if pend is not None: A.wait_ds(pend); pend = None
                    if t + 1 < NU and seq[t + 1] >= NP:
                        A.wait_vm(wo_vm[seq[t + 1]])
                        pend = dsreads(seq[t + 1])
                    A.wait_vm(last_vm[u])
                    ab = AF + (u % 2) * 16 if u >= NP else PRE[u]
                    ob = obuf[u]
                    for ks in range(2):
                        for tn in range(2):
                            for tm in range(2):
                                c = "zero" if (t == 0 and ks == 0) else None
                                A.mfma(ACC + (tn * 2 + tm) * 16, ab + (ks * 2 + tn) * 4, ob + (ks * 2 + tm) * 4, c)
                    if u >= NP and u + RG < NU:
                        for i in range(4): wo_vm[u + RG] = self.wo_piece(u + RG, i)
                    fr.append(ob)
                    while fr and nxt < NU: issue(seq[nxt], False, fr.pop(0)); nxt += 1
                NU = 0
            elif OPT["od"]:
                RG = OPT["ring"]; NP = len(PRE)
                fr = [OF + 16 * q for q in range(4)] + ([80] if OPT["xb"] else [])
                nxt = 0
                while fr: issue(nxt, False, fr.pop(0)); nxt += 1
                pend = None
                for u in range(NU):
                    if pend is not None: A.wait_ds(pend)
                    if u + 1 < NU and u + 1 >= NP:
                        A.wait_vm(wo_vm[u + 1])
                        pend = dsreads(u + 1)
                    A.wait_vm(last_vm[u])
                    ab = AF + (u % 2) * 16 if u >= NP else PRE[u]
                    ob = obuf[u]
                    for ks in range(2):
                        for tn in range(2):
                            for tm in range(2):
                                c = "zero" if (u == 0 and ks == 0) else None
                                A.mfma(ACC + (tn * 2 + tm) * 16, ab + (ks * 2 + tn) * 4, ob + (ks * 2 + tm) * 4, c)
                    if u >= NP and u + RG < NU:
                        for i in range(4): wo_vm[u + RG] = self.wo_piece(u + RG, i)
                    fr.append(ob)
                    if u < OPT["od"]: fr.append(PRE[u])
                    while fr and nxt < NU: issue(nxt, False, fr.pop(0)); nxt += 1
                    if u in (0, 7, 15): PF.stamp(f"u{u}")
                NU = 0
            elif OPT["pr2"]:
                RG = OPT["ring"]; NP = len(PRE)
                KO = OPT["pro"]
                for u in range(DEPTH - KO): issue(u, False)
                pend = None
                for u in range(NU):
                    if pend is not None: A.wait_ds(pend)
                    if u + 1 < NU and u + 1 >= NP:
                        A.wait_vm(wo_vm[u + 1])
                        pend = dsreads(u + 1)
                    A.wait_vm(last_vm[u])
                    ab = AF + (u % 2) * 16 if u >= NP else PRE[u]
                    ob = OF + (u % DEPTH) * 16
                    for ks in range(2):
                        for tn in range(2):
                            for tm in range(2):
                                c = "zero" if (u == 0 and ks == 0) else None
                                A.mfma(ACC + (tn * 2 + tm) * 16, ab + (ks * 2 + tn) * 4, ob + (ks * 2 + tm) * 4, c)
                    if u >= NP and u + RG < NU:
                        for i in range(4): wo_vm[u + RG] = self.wo_piece(u + RG, i)
                    if u < KO: issue(DEPTH - KO + u, False)
                    if u + DEPTH < NU: issue(u + DEPTH, False)
                    if u in (0, 7, 15): PF.stamp(f"u{u}")
                NU = 0
            if OPT["lp"]:
                RG = OPT["ring"]
                OB = [OF, OF + 16, OF + 32, OF + 48, 224, 240][:RG]
                o_vm = {}; wo_vm.clear()
                def issue_o(u):
                    for ks in range(2):
                        for tm in range(2):
                            d = OB[u % RG] + (ks * 2 + tm) * 4
                            off = (2 * u + ks) * 512
                            sb = sO0 if tm == 0 else sO1
                            if off >= 4096:
                                A.salu(f"s_add_u32 s{sT}, s{sb}, {off & ~4095}")
                                sb = sT
                            o_vm[u] = A.vmem(f"buffer_load_dwordx4 {vname(d,4)}, v{OOFF}, s[{SO}:{SO+3}], s{sb} offen offset:{off & 4095} sc1", w=vr(d, 4), r={OOFF})
                wo_first = A.nvm - 1
                for u in range(RG): issue_o(u)
                pend = dsreads(0)
                for u in range(NU):
                    A.wait_ds(pend)
                    if u + RG < NU:
                        for i in range(4): wo_vm[u + RG] = self.wo_piece(u + RG, i)
                    if u + 1 < NU:
                        if u + 1 in wo_vm: A.wait_vm(wo_vm[u + 1])
                        elif u + 1 >= 3: A.wait_vm(wo_first)
                        pend = dsreads(u + 1)
                    A.wait_vm(o_vm[u])
                    ab = AF + (u % 2) * 16
                    ob = OB[u % RG]
                    for ks in range(2):
                        for tn in range(2):
                            for tm in range(2):
                                c = "zero" if (u == 0 and ks == 0) else None
                                A.mfma(ACC + (tn * 2 + tm) * 16, ab + (ks * 2 + tn) * 4, ob + (ks * 2 + tm) * 4, c)
                    if u + RG < NU: issue_o(u + RG)
                    if u in (0, 7, 15): PF.stamp(f"u{u}")
                NU = 0
            for u in range(DEPTH if NU else 0): issue(u, OPT["fuse"] == 4)
            if OPT["fuse"] in (3, 4): A.wait_vm(last_vm[0])
            NP = len(PRE)
            pend = dsreads(0) if NP == 0 and NU else None
            if NU: A.wait_vm(last_vm[0])
            for u in range(NU):
                if pend is not None: A.wait_ds(pend)
                if u + 1 < NU:
                    A.wait_vm(last_vm[u + 1])
                    pend = dsreads(u + 1) if u + 1 >= NP else None
                ab = AF + (u % 2) * 16 if u >= NP else PRE[u]
                ob = OF + (u % DEPTH) * 16
                for ks in range(2):
                    for tn in range(2):
                        for tm in range(2):
                            c = "zero" if (u == 0 and ks == 0) else None
                            A.mfma(ACC + (tn * 2 + tm) * 16, ab + (ks * 2 + tn) * 4, ob + (ks * 2 + tm) * 4, c)
                if u + DEPTH < NU: issue(u + DEPTH, u >= NP)
                if u in (0, 7, 15): PF.stamp(f"u{u}")
        R = OF
        if OPT["fuse"] == 6 and OPT["red"]:
            A.wait_ds_all()
            V(f"v_add_u32 v{T1}, s{sWL}, v{RED}", w={T1}, r={RED})
            V(f"v_add_u32 v{T2}, 0x10000, v{T1}", w={T2}, r={T1})
            V(f"v_add_u32 v{T3}, 0x20000, v{T1}", w={T3}, r={T1})
            for q in range(16):
                o_ = self.slots6[q >> 1] * SLOT + (q & 1) * 1024
                A.ds_write_b128([T1, T2, T3][o_ >> 16], ACC + 4 * q, o_ & 65535)
            tab = sum(s_ << (4 * w_) for w_, s_ in enumerate(self.slots6[:8]))
            A.salu(f"s_lshl_b32 s6, s{sW}, 2")
            A.salu(f"s_lshr_b32 s6, {tab:#x}, s6")
            A.salu("s_and_b32 s6, s6, 15")
            A.salu("s_lshl_b32 s6, s6, 14")
            V(f"v_add_u32 v{T4}, s6, v{RED}", w={T4}, r={RED})
            A.wait_ds_all()
            A.barrier()
            for ww in range(8):
                for q in range(2):
                    A.ds_read_b128(R + (ww * 2 + q) * 4, T4, ww * 2048 + q * 1024)
                if ww == 5:
                    A.wait_ds_all()
            A.wait_ds_all()
        else:
            A.wait_ds_all()
            A.barrier()
            A.salu(f"s_lshl_b32 s12, s{sW}, 14")
            V(f"v_add_u32 v{T1}, s12, v{RED}", w={T1}, r={RED})
            for q in range(16):
                A.ds_write_b128(T1, ACC + 4 * q, q * 1024)
            A.wait_ds_all()
            A.barrier()
            A.salu(f"s_lshl_b32 s6, s{sW}, 11")
            V(f"v_add_u32 v{T1}, s6, v{RED}", w={T1}, r={RED})
            V(f"v_add_u32 v{T2}, 0x10000, v{T1}", w={T2}, r={T1})
            for ww in range(8):
                for q in range(2):
                    A.ds_read_b128(R + (ww * 2 + q) * 4, T1 if ww < 4 else T2, (ww % 4) * 16384 + q * 1024)
                if ww == 5:
                    A.wait_ds_all()
            A.wait_ds_all()
        for ww in range(1, 8):
            for i in range(8):
                V(f"v_add_f32 v{R+i}, v{R+i}, v{R+ww*8+i}", w={R + i}, r={R + i, R + ww * 8 + i})
        for q in range(4):
            V(f"v_cvt_pk_bf16_f32 v{AF+q}, v{R+2*q}, v{R+2*q+1}", w={AF + q}, r={R + 2 * q, R + 2 * q + 1})
        A.salu(f"s_lshr_b32 s6, s{sW}, 1")
        A.salu("s_and_b32 s7, s6, 1")
        A.salu("s_lshr_b32 s6, s6, 1")
        A.salu(f"s_lshl_b32 s3, s{sMT}, 6")
        A.salu("s_lshl_b32 s7, s7, 5")
        A.salu("s_add_u32 s3, s3, s7")
        A.salu("s_mul_i32 s3, s3, 2304")
        A.salu(f"s_mul_i32 s7, s{sBLK}, 1152")
        A.salu("s_add_u32 s3, s3, s7")
        A.salu(f"s_lshl_b32 s7, s{sNT}, 7")
        A.salu("s_add_u32 s3, s3, s7")
        A.salu("s_lshl_b32 s7, s6, 6")
        A.salu("s_add_u32 s3, s3, s7")
        A.salu(f"s_and_b32 s7, s{sW}, 1")
        A.salu("s_lshl_b32 s7, s7, 5")
        A.salu("s_add_u32 s3, s3, s7")
        V(f"v_and_b32 v{T1}, 31, v{L}", w={T1}, r={L})
        V(f"v_mul_u32_u24 v{T1}, 2304, v{T1}", w={T1}, r={T1})
        V(f"v_lshrrev_b32 v{T2}, 5, v{L}", w={T2}, r={L})
        V(f"v_lshl_add_u32 v{T1}, v{T2}, 3, v{T1}", w={T1}, r={T2, T1})
        fl = ["", " sc1", " nt", " sc0 sc1"][OPT["ost"]]
        A.vmem(f"buffer_store_dwordx2 {vname(AF,2)}, v{T1}, s[{SOUT}:{SOUT+3}], s3 offen{fl}", r=vr(AF, 2) | {T1})
        A.vmem(f"buffer_store_dwordx2 {vname(AF+2,2)}, v{T1}, s[{SOUT}:{SOUT+3}], s3 offen offset:16{fl}", r=vr(AF + 2, 2) | {T1})

def gen_k2(A):
    V = A.valu
    T0, T1, T2, T3, T4, T5, T6, T7 = range(0, 8)
    WOFF = 8
    OOFF = 12
    BA = 13
    RED = 15
    AF = 16
    OF = 48
    ACC = 112
    sBLK, sMT, sNT, sW = 26, 27, 4, 5
    SW_, SO, SOUT = 28, 32, 36
    sWL, sWB, sO0, sO1, sT = 48, 49, 50, 51, 52
    A.win = []
    A.nds = A.ds_done = A.nvm = A.vm_done = 0
    A.raw(f".p2align 8\n.globl k2_kernel\n.type k2_kernel,@function\nk2_kernel:")
    A.salu("s_cmp_ge_u32 s2, 256")
    A.salu("s_cbranch_scc1 K2_END")
    A.salu("s_and_b32 s3, s2, 7")
    A.salu("s_lshl_b32 s3, s3, 5")
    A.salu("s_lshr_b32 s6, s2, 3")
    A.salu("s_add_u32 s3, s3, s6")
    A.salu("s_cmp_ge_u32 s3, 252")
    A.salu("s_cbranch_scc1 K2_END")
    A.salu("s_load_dwordx2 s[8:9], s[0:1], 32")
    A.salu("s_load_dwordx2 s[10:11], s[0:1], 72")
    A.salu("s_load_dwordx2 s[12:13], s[0:1], 80")
    A.salu("s_load_dwordx2 s[14:15], s[0:1], 96")
    A.salu("s_cmp_ge_u32 s3, 126")
    A.salu(f"s_cselect_b32 s{sBLK}, 1, 0")
    A.salu(f"s_mul_i32 s6, s{sBLK}, 126")
    A.salu("s_sub_u32 s3, s3, s6")
    A.salu("s_mul_i32 s6, s3, 57")
    A.salu(f"s_lshr_b32 s{sMT}, s6, 9")
    A.salu(f"s_mul_i32 s6, s{sMT}, 9")
    A.salu(f"s_sub_u32 s{sNT}, s3, s6")
    V(f"v_lshrrev_b32 v{T1}, 6, v0", w={T1}, r={0})
    A._emit(I(f"v_readfirstlane_b32 s{sW}, v{T1}", "rdlane", r={T1}, sw={sW}))
    V(f"v_and_b32 v{T0}, 63, v0", w={T0}, r={0})
    L = T0
    A.salu(f"s_lshl_b32 s{sWL}, s{sW}, 14", sr={sW})
    A.salu(f"s_mul_i32 s{sWB}, s{sW}, {512*1152}", sr={sW})
    A.salu(f"s_lshl_b32 s6, s{sNT}, 7")
    A.salu(f"s_add_u32 s{sWB}, s{sWB}, s6")
    A.salu(f"s_mul_i32 s{sO0}, s{sBLK}, {O_BLK}")
    A.salu(f"s_lshl_b32 s6, s{sMT}, 19")
    A.salu(f"s_add_u32 s{sO0}, s{sO0}, s6")
    A.salu(f"s_lshl_b32 s6, s{sW}, 14")
    A.salu(f"s_add_u32 s{sO0}, s{sO0}, s6")
    A.salu(f"s_add_u32 s{sO1}, s{sO0}, {2*131072}")
    V(f"v_lshrrev_b32 v{T1}, 3, v{L}", w={T1}, r={L})
    V(f"v_mul_u32_u24 v{T1}, 1152, v{T1}", w={T1}, r={T1})
    V(f"v_bfe_u32 v{T2}, v{L}, 4, 1", w={T2}, r={L})
    V(f"v_lshlrev_b32 v{T3}, 2, v{T2}", w={T3}, r={T2})
    V(f"v_and_b32 v{T4}, 7, v{L}", w={T4}, r={L})
    V(f"v_xor_b32 v{T4}, v{T4}, v{T3}", w={T4}, r={T4, T3})
    V(f"v_lshl_add_u32 v{WOFF}, v{T4}, 4, v{T1}", w={WOFF}, r={T4, T1})
    for i in range(1, 4):
        V(f"v_add_u32 v{WOFF+i}, {9216*i}, v{WOFF}", w={WOFF + i}, r={WOFF})
    V(f"v_lshrrev_b32 v{T1}, 5, v{L}", w={T1}, r={L})
    V(f"v_bfe_u32 v{T3}, v{L}, 2, 2", w={T3}, r={L})
    V(f"v_and_b32 v{T4}, 3, v{L}", w={T4}, r={L})
    V(f"v_lshlrev_b32 v{T6}, 17, v{T2}", w={T6}, r={T2})
    V(f"v_lshl_add_u32 v{T6}, v{T1}, 8, v{T6}", w={T6}, r={T1, T6})
    V(f"v_and_b32 v{T7}, 15, v{L}", w={T7}, r={L})
    V(f"v_lshl_add_u32 v{OOFF}, v{T7}, 4, v{T6}", w={OOFF}, r={T7, T6})
    V(f"v_lshl_add_u32 v{T6}, v{T1}, 2, v{T3}", w={T6}, r={T1, T3})
    V(f"v_lshlrev_b32 v{T6}, 7, v{T6}", w={T6}, r={T6})
    V(f"v_lshrrev_b32 v{T7}, 1, v{T4}", w={T7}, r={T4})
    V(f"v_lshl_add_u32 v{T7}, v{T2}, 1, v{T7}", w={T7}, r={T2, T7})
    V(f"v_lshrrev_b32 v{T5}, 1, v{T3}", w={T5}, r={T3})
    V(f"v_lshlrev_b32 v{T5}, 2, v{T5}", w={T5}, r={T5})
    V(f"v_xor_b32 v{T7}, v{T7}, v{T5}", w={T7}, r={T7, T5})
    V(f"v_lshl_add_u32 v{T6}, v{T7}, 4, v{T6}", w={T6}, r={T7, T6})
    V(f"v_and_b32 v{T7}, 1, v{T4}", w={T7}, r={T4})
    V(f"v_lshl_add_u32 v{T6}, v{T7}, 3, v{T6}", w={T6}, r={T7, T6})
    V(f"v_add_u32 v{BA}, s{sWL}, v{T6}", w={BA}, r={T6})
    V(f"v_xor_b32 v{BA+1}, 64, v{BA}", w={BA + 1}, r={BA})
    V(f"v_lshlrev_b32 v{RED}, 4, v{L}", w={RED}, r={L})
    A.waitcnt(lgkm=0)
    A.salu(f"s_cmp_eq_u32 s{sBLK}, 0")
    A.salu("s_cselect_b32 s8, s8, s10")
    A.salu("s_cselect_b32 s9, s9, s11")
    srd(A, SW_, 8, 4096 * 576 * 2)
    srd(A, SO, 14, 2 * O_BLK)
    srd(A, SOUT, 12, 896 * 1152 * 2)

    NU = 16; DEPTH = 4
    last_vm = {}
    def issue(u):
        slot = u % DEPTH
        A.salu(f"s_add_u32 s{sT}, s{sWB}, {u * 32 * 1152}")
        for i in range(4):
            A.salu(f"s_add_u32 m0, s{sWL}, {slot * 4096 + i * 1024}", m0w=True)
            A.vmem(f"buffer_load_dwordx4 v{WOFF+i}, s[{SW_}:{SW_+3}], s{sT} offen{' nt' if OPT['ntwo'] else ''} lds", kind="dma", r={WOFF + i}, m0r=True)
        for ks in range(2):
            for tm in range(2):
                d = OF + slot * 16 + (ks * 2 + tm) * 4
                off = (2 * u + ks) * 512
                sb = sO0 if tm == 0 else sO1
                if off >= 4096:
                    A.salu(f"s_add_u32 s{sT}, s{sb}, {off & ~4095}")
                    k = A.vmem(f"buffer_load_dwordx4 {vname(d,4)}, v{OOFF}, s[{SO}:{SO+3}], s{sT} offen offset:{off & 4095}{' nt' if OPT['nto'] else ''}", w=vr(d, 4), r={OOFF})
                else:
                    k = A.vmem(f"buffer_load_dwordx4 {vname(d,4)}, v{OOFF}, s[{SO}:{SO+3}], s{sb} offen offset:{off}{' nt' if OPT['nto'] else ''}", w=vr(d, 4), r={OOFF})
        last_vm[u] = k
    def dsreads(u):
        slot = u % DEPTH
        ab = AF + (u % 2) * 16
        for ks in range(2):
            for tn in range(2):
                for j in range(2):
                    k = A.ds_read_tr(ab + (ks * 2 + tn) * 4 + 2 * j, BA + tn, slot * 4096 + (16 * ks + 8 * j) * 128)
        return k
    PF = Prof(A, 1)
    PF.stamp("start")
    for u in range(DEPTH): issue(u)
    A.wait_vm(last_vm[0])
    pend = dsreads(0)
    for u in range(NU):
        A.wait_ds(pend)
        if u + 1 < NU:
            A.wait_vm(last_vm[u + 1])
            pend = dsreads(u + 1)
        ab = AF + (u % 2) * 16
        ob = OF + (u % DEPTH) * 16
        for ks in range(2):
            for tn in range(2):
                for tm in range(2):
                    c = "zero" if (u == 0 and ks == 0) else None
                    A.mfma(ACC + (tn * 2 + tm) * 16, ab + (ks * 2 + tn) * 4, ob + (ks * 2 + tm) * 4, c)
        if u + DEPTH < NU: issue(u + DEPTH)
        PF.stamp(f"u{u}")
    A.wait_ds_all()
    A.barrier()
    V(f"v_add_u32 v{T1}, s{sWL}, v{RED}", w={T1}, r={RED})
    for q in range(16):
        A.ds_write_b128(T1, ACC + 4 * q, q * 1024)
    A.wait_ds_all()
    A.barrier()
    A.salu(f"s_lshl_b32 s6, s{sW}, 11")
    V(f"v_add_u32 v{T1}, s6, v{RED}", w={T1}, r={RED})
    V(f"v_add_u32 v{T2}, 0x10000, v{T1}", w={T2}, r={T1})
    R = OF
    for ww in range(8):
        for q in range(2):
            A.ds_read_b128(R + (ww * 2 + q) * 4, T1 if ww < 4 else T2, (ww % 4) * 16384 + q * 1024)
            if ww == 6 and q == 1: pass
        if ww == 5:
            A.wait_ds_all()
    A.wait_ds_all()
    for ww in range(1, 8):
        for i in range(8):
            V(f"v_add_f32 v{R+i}, v{R+i}, v{R+ww*8+i}", w={R + i}, r={R + i, R + ww * 8 + i})
    for q in range(4):
        V(f"v_cvt_pk_bf16_f32 v{AF+q}, v{R+2*q}, v{R+2*q+1}", w={AF + q}, r={R + 2 * q, R + 2 * q + 1})
    A.salu(f"s_lshr_b32 s6, s{sW}, 1")
    A.salu("s_and_b32 s7, s6, 1")
    A.salu("s_lshr_b32 s6, s6, 1")
    A.salu(f"s_lshl_b32 s3, s{sMT}, 6")
    A.salu("s_lshl_b32 s7, s7, 5")
    A.salu("s_add_u32 s3, s3, s7")
    A.salu("s_mul_i32 s3, s3, 2304")
    A.salu(f"s_mul_i32 s7, s{sBLK}, 1152")
    A.salu("s_add_u32 s3, s3, s7")
    A.salu(f"s_lshl_b32 s7, s{sNT}, 7")
    A.salu("s_add_u32 s3, s3, s7")
    A.salu("s_lshl_b32 s7, s6, 6")
    A.salu("s_add_u32 s3, s3, s7")
    A.salu(f"s_and_b32 s7, s{sW}, 1")
    A.salu("s_lshl_b32 s7, s7, 5")
    A.salu("s_add_u32 s3, s3, s7")
    V(f"v_and_b32 v{T1}, 31, v{L}", w={T1}, r={L})
    V(f"v_mul_u32_u24 v{T1}, 2304, v{T1}", w={T1}, r={T1})
    V(f"v_lshrrev_b32 v{T2}, 5, v{L}", w={T2}, r={L})
    V(f"v_lshl_add_u32 v{T1}, v{T2}, 3, v{T1}", w={T1}, r={T2, T1})
    A.vmem(f"buffer_store_dwordx2 {vname(AF,2)}, v{T1}, s[{SOUT}:{SOUT+3}], s3 offen", r=vr(AF, 2) | {T1})
    A.vmem(f"buffer_store_dwordx2 {vname(AF+2,2)}, v{T1}, s[{SOUT}:{SOUT+3}], s3 offen offset:16", r=vr(AF + 2, 2) | {T1})
    PF.dump(14, sW, 0)
    A.label("K2_END")
    A.salu("s_endpgm")

def kd(name, vgpr, sgpr):
    return f""".amdhsa_kernel {name}
  .amdhsa_next_free_vgpr {vgpr}
  .amdhsa_next_free_sgpr {sgpr}
  .amdhsa_accum_offset {(vgpr + 3) // 4 * 4}
  .amdhsa_group_segment_fixed_size 0
  .amdhsa_kernarg_size 104
  .amdhsa_user_sgpr_count 2
  .amdhsa_user_sgpr_kernarg_segment_ptr 1
  .amdhsa_system_sgpr_workgroup_id_x 1
.end_amdhsa_kernel
"""

def main():
    A = Asm()
    gen_k1(A)
    if not OPT["fuse"]: gen_k2(A)
    head = """; Two-launch GQA block pair: k1 = Q projection + attention (o -> ws), k2 = output projection.
; @launch kernel=k1_kernel grid=(256,1,1) block=(512,1,1) lds=163840
; @launch kernel=k2_kernel grid=(256,1,1) block=(512,1,1) lds=131072
.amdgcn_target "amdgcn-amd-amdhsa--gfx950"
.text
"""
    tail = '\n.section .rodata,"a"\n.p2align 6\n' + kd("k1_kernel", 256, 102 if OPT["prof"] else 64) + ".p2align 6\n" + kd("k2_kernel", 176, 102 if OPT["prof"] else 64)
    if OPT["fuse"]:
        head = """; GQA block pair in one launch: Q projection + attention, o handed over through ws, output projection.
; @launch kernel=k1_kernel grid=(256,1,1) block=(512,1,1) lds=163840
.amdgcn_target "amdgcn-amd-amdhsa--gfx950"
.text
"""
        tail = '\n.section .rodata,"a"\n.p2align 6\n' + kd("k1_kernel", 256, 102 if OPT["prof"] else 64)
    txt = head + A.text() + tail
    if "CODE_BYTES" in txt:
        import subprocess, re
        open("_p1.s", "w").write(txt.replace("CODE_BYTES", "0x12345"))
        subprocess.check_call(["clang", "-x", "assembler", "-target", "amdgcn-amd-amdhsa", "-mcpu=gfx950", "-c", "_p1.s", "-o", "_p1.o"])
        o = subprocess.check_output(["llvm-objdump", "-h", "_p1.o"]).decode()
        n = int(re.search(r"\.text\s+([0-9a-f]+)", o).group(1), 16)
        txt = txt.replace("CODE_BYTES", str(n))
    open(sys.argv[1], "w").write(txt)
    print("nops inserted:", A.nops_inserted, "lines:", len(A.out))

main()
```
